```python
import torch

def _softmax(x, axis=-1):
    return torch.softmax(x, dim=axis)
def _gelu(x):
    return torch.nn.functional.gelu(x, approximate="tanh")
def _silu(x):
    return torch.nn.functional.silu(x)
def _sigmoid(x):
    return torch.sigmoid(x)
def _layernorm(x, axis=-1, eps=1e-5):
    m = x.mean(dim=axis, keepdim=True)
    v = x.var(dim=axis, keepdim=True, unbiased=False)
    return (x - m) / torch.sqrt(v + eps)
def _scatter_add(tgt, idx, src, axis=0):
    return tgt.clone().index_add_(axis, idx, src)
def _segment_sum(src, seg, n):
    out = torch.zeros((n,) + src.shape[1:], dtype=src.dtype)
    return out.index_add_(0, seg, src)
def _pad(x, pw):
    flat = tuple(v for pair in reversed(pw) for v in pair)
    return torch.nn.functional.pad(x, flat)

kernel_name = 'standalone__cheap_equivariant_egnn__graph'

def setup_inputs():

    _w = (lambda a: (lambda t: t.to(torch.bfloat16) if t.is_floating_point() else t)(torch.as_tensor(a)))
    N, deg, D, De = 10000, 16, 128, max(0, 1)
    E = N * deg
    return {
        "h": _w((lambda *s: torch.randn(*s, dtype=torch.bfloat16) * 0.2)(N, D)),
        "pos": _w((lambda *s: torch.randn(*s, dtype=torch.bfloat16) * 0.8)(N, 3)),
        "e_attr": _w((lambda *s: torch.randn(*s, dtype=torch.bfloat16) * 0.8)(E, De)),
        "src": _w((lambda lo, hi, *s: torch.randint(lo, hi, s))(0, N, E).to(torch.int64)),
        "dst": _w((lambda lo, hi, *s: torch.randint(lo, hi, s))(0, N, E).to(torch.int64)),
        "w_e": _w(0.1 * (lambda *s: torch.randn(*s, dtype=torch.bfloat16) * 0.8)(2 * D + 1 + De, D)),
        "w_x": _w(0.1 * (lambda *s: torch.randn(*s, dtype=torch.bfloat16) * 0.2)(D, 1)),
        "w_h": _w(0.1 * (lambda *s: torch.randn(*s, dtype=torch.bfloat16) * 0.2)(2 * D, D)),
    }

def reference(h, pos, e_attr, src, dst, w_e, w_x, w_h):
    N, D = h.shape[0], h.shape[1]
    diff = pos[dst] - pos[src]
    dist2 = torch.sum(diff * diff, axis=-1, keepdims=True)
    e_in = torch.concatenate([h[dst], h[src], dist2, e_attr], axis=-1)
    m_ij = _silu(e_in @ w_e)
    coord_scale = m_ij @ w_x
    pos_new = pos + _segment_sum(diff * coord_scale, dst, N)
    m_i = _segment_sum(m_ij, dst, N)
    h_new = h + _silu(torch.concatenate([h, m_i], axis=-1) @ w_h)
    return h_new, pos_new
```

```python
import sys, os

KNAME = "standalone__cheap_equivariant_egnn__graph_kernel"
DBG = os.environ.get("DBG", "")
STOP = os.environ.get("STOP", "")

HT_BUF = 8704
HT = 0
BX = 69632
REC = 90112
REC_G = 12288
DE = 151552
SRCA = 155392
MISC = 159232
LDS_TOTAL = 160256
CNT = MISC
PD4 = MISC + 64
CAND = 32768
CAND_W = 1408
CAND_CAP = 96
W1S = 0
WH1S = 32768
W2S = REC
OWN = REC + 32768
W2F = 0
FL4 = 0
FL4_S = 8832
WH2S = 35328
TILES_G = 6
CAP_G = TILES_G * 32

NLOG2E = 0xBFB8AA3B
NLN2 = 0xBF317218

out = []
def e(s=""):
    out.append("    " + s)
def lab(s):
    out.append(s + ":")
def c(s):
    out.append("    ; " + s)

S_H, S_POS, S_EA, S_SRC, S_DST, S_WE, S_WH, S_O0, S_O1, S_WS, S_WX = [8 + 4 * i for i in range(11)]
def srd(x): return f"s[{x}:{x+3}]"
sW = 52; sQ = 53; sCT = 54
sT0 = 55; sT1 = 56; sT2 = 57; sT3 = 58
sCBEG = 59; sCPTR = 60; sCCNT = 61; sIDX = 62; sL = 63
sM = [64, 66, 68, 70]
sMA = 72
sEX = 74
sB = 76
sCN = [77, 78, 79, 80, 81]
sNT = [82, 83, 84, 85, 86]
sNQ = 87
sNOWN = 88
sST4 = 89
sR = 90
sI = 91
sG = 92; sTT = 93; sNR = 94; sREC = 95; sDEL = 96
sK1 = 97; sK2 = 98; sK3 = 99
sTILE = 100
sOVF = 101
sC4 = 4; sC5 = 5; sC6 = 6; sC7 = 7; sC3 = 3
def sp(x): return f"s[{x}:{x+1}]"

vL = 0
vHT0, vHT1, vTR, vE64, vE4, vSRCP, vSW, vFLP = 1, 2, 3, 4, 5, 6, 7, 8
vT = [9, 10, 11, 12, 13, 14, 15]
W2FR = 16
K1B = 48
BXF = 52
OH = 56
DEF = 60
ACC = 64
SEG = 80
AF = 96
def vr(x, n): return f"v[{x}:{x+n-1}]"

def mfma(d, a, b, cc):
    e(f"v_mfma_f32_32x32x16_bf16 {vr(d,16)}, {vr(a,4)}, {vr(b,4)}, {cc}")

def dump_regs(first, n, slot):
    c(f"DEBUG dump {first}..{first+n-1}")
    e(f"s_lshl_b32 s{sT0}, s2, 4")
    e(f"s_add_u32 s{sT0}, s{sT0}, s{sW}")
    e(f"s_mul_i32 s{sT0}, s{sT0}, {n*256}")
    e(f"v_lshlrev_b32 v{vT[6]}, 2, v{vL}")
    e(f"v_add_u32 v{vT[6]}, s{sT0}, v{vT[6]}")
    e(f"s_mov_b32 s{sC4}, s{S_WS}")
    e(f"s_mov_b32 s{sC5}, s{S_WS+1}")
    e(f"s_add_u32 s{sC4}, s{sC4}, {slot}")
    e(f"s_addc_u32 s{sC5}, s{sC5}, 0")
    for r in range(n):
        e(f"global_store_dword v{vT[6]}, v{first+r}, s[{sC4}:{sC5}] offset:{(r*256) % 4096}")
        if (r % 16) == 15 and r != n-1:
            e(f"v_add_u32 v{vT[6]}, 4096, v{vT[6]}")
    e("s_waitcnt vmcnt(0)")

def dump_lds(base, nbytes, slot):
    c(f"DEBUG dump lds {base} {nbytes}")
    e("s_waitcnt vmcnt(0) lgkmcnt(0)")
    e("s_barrier")
    e(f"s_lshl_b32 s{sT0}, s{sW}, 8")
    e(f"v_lshlrev_b32 v{vT[6]}, 2, v{vL}")
    e(f"v_add_u32 v{vT[6]}, s{sT0}, v{vT[6]}      ; tid*4")
    e(f"s_mul_i32 s{sT0}, s2, {nbytes}")
    e(f"s_mov_b32 s{sC4}, s{S_WS}")
    e(f"s_mov_b32 s{sC5}, s{S_WS+1}")
    e(f"s_add_u32 s{sC4}, s{sC4}, {slot}")
    e(f"s_addc_u32 s{sC5}, s{sC5}, 0")
    e(f"s_add_u32 s{sC4}, s{sC4}, s{sT0}")
    e(f"s_addc_u32 s{sC5}, s{sC5}, 0")
    n = (nbytes + 4095) // 4096
    for i in range(n):
        e(f"v_add_u32 v{vT[5]}, {base + i*4096}, v{vT[6]}")
        e(f"v_add_u32 v{vT[4]}, {i*4096}, v{vT[6]}")
        e(f"ds_read_b32 v{vT[3]}, v{vT[5]}")
        e(f"v_cmp_gt_u32 vcc, {nbytes}, v{vT[4]}")
        e(f"s_and_saveexec_b64 s[{sC6}:{sC7}], vcc")
        e("s_waitcnt lgkmcnt(0)")
        e(f"global_store_dword v{vT[4]}, v{vT[3]}, s[{sC4}:{sC5}]")
        e(f"s_mov_b64 exec, s[{sC6}:{sC7}]")
    e("s_waitcnt vmcnt(0)")
    e("s_barrier")

out.append(f"; @launch grid=(256,1,1) block=(1024,1,1) lds={LDS_TOTAL}")
out.append('.amdgcn_target "amdgcn-amd-amdhsa--gfx950"')
out.append(".text")
out.append(f".globl {KNAME}")
out.append(".p2align 8")
out.append(f".type {KNAME},@function")
lab(KNAME)
e("s_cmp_ge_u32 s2, 256")
e("s_cbranch_scc1 L_end")
for (x, off) in [(S_H,0),(S_POS,8),(S_EA,16),(S_SRC,24),(S_DST,32),(S_WE,40),(S_WX,48),(S_WH,56),(S_O0,64),(S_WS,80)]:
    e(f"s_load_dwordx2 s[{x}:{x+1}], s[0:1], {off}")
e(f"v_lshrrev_b32 v9, 6, v0")
e(f"v_and_b32 v{vL}, 63, v0")
e(f"s_nop 0")
e(f"v_readfirstlane_b32 s{sW}, v9")
for (x, sz) in [(S_H,2560000),(S_POS,60000),(S_EA,320000),(S_SRC,640000),(S_DST,640000),(S_WE,66048),(S_WX,256),(S_WH,65536),(S_O0,2560000),(S_O1,60000),(S_WS,256*1048576)]:
    e(f"s_mov_b32 s{x+2}, {sz}")
    e(f"s_mov_b32 s{x+3}, 0x20000")
e(f"s_lshr_b32 s{sQ}, s{sW}, 2")
e(f"s_and_b32 s{sCT}, s{sW}, 3")
e(f"s_mov_b32 s{sOVF}, 0")
e("s_waitcnt lgkmcnt(0)")
e(f"s_add_u32 s{S_O1}, s{S_O0}, 2560000")
e(f"s_addc_u32 s{S_O1+1}, s{S_O0+1}, 0")

SCANR = AF
ORD = [4, 5, 6, 7, 0, 1, 2, 3]
vL16 = vT[0]
c("scan setup")
e(f"v_lshlrev_b32 v{vL16}, 4, v{vL}")
e(f"s_mul_i32 s{sT0}, s2, 625")
e(f"s_lshr_b32 s{sT0}, s{sT0}, 8        ; L0")
e(f"s_add_u32 s{sL}, s{sT0}, s{sW}")
e(f"s_cmp_ge_u32 s{sL}, 625")
e(f"s_cselect_b32 s{sT1}, 625, 0")
e(f"s_sub_u32 s{sL}, s{sL}, s{sT1}")
e(f"s_mov_b32 s{sK1}, s{sL}")
e(f"s_mov_b32 s{sIDX}, s{sW}")
def scan_issue(u):
    e(f"s_lshl_b32 s{sT0}, s{sK1}, 10")
    e(f"buffer_load_dwordx4 {vr(SCANR+4*u,4)}, v{vL16}, {srd(S_DST)}, s{sT0} offen")
    e(f"s_add_u32 s{sK1}, s{sK1}, 16")
    e(f"s_cmp_ge_u32 s{sK1}, 625")
    e(f"s_cselect_b32 s{sT1}, 625, 0")
    e(f"s_sub_u32 s{sK1}, s{sK1}, s{sT1}")
for u in ORD[:4]:
    scan_issue(u)

c("weights DMA")
e(f"s_lshl_b32 s{sT0}, s{sW}, 11          ; w*2048")
e(f"v_add_u32 v{vT[1]}, s{sT0}, v{vL16}   ; w*2048 + lane*16")
e(f"s_add_u32 m0, s{sT0}, {W1S}")
e(f"s_nop 0")
e(f"buffer_load_dwordx4 v{vT[1]}, {srd(S_WE)}, 0 offen lds")
e(f"buffer_load_dwordx4 v{vT[1]}, {srd(S_WE)}, 0 offen offset:1024 lds")
e(f"s_add_u32 m0, s{sT0}, {WH1S}")
e(f"s_nop 0")
e(f"buffer_load_dwordx4 v{vT[1]}, {srd(S_WH)}, 0 offen lds")
e(f"buffer_load_dwordx4 v{vT[1]}, {srd(S_WH)}, 0 offen offset:1024 lds")
e(f"s_add_u32 m0, s{sT0}, {W2S}")
e(f"s_mov_b32 s{sT1}, 32768")
e(f"buffer_load_dwordx4 v{vT[1]}, {srd(S_WE)}, s{sT1} offen lds")
e(f"buffer_load_dwordx4 v{vT[1]}, {srd(S_WE)}, s{sT1} offen offset:1024 lds")
c("lane constants")
e(f"v_and_b32 v{vT[2]}, 15, v{vL}")
e(f"v_lshrrev_b32 v{vT[3]}, 4, v{vL}")
e(f"v_xor_b32 v{vSW}, v{vT[2]}, v{vT[3]}")
e(f"v_lshlrev_b32 v{vSW}, 4, v{vSW}")
c("own tile DMA: row k = 4w + (l>>4), node = b + 256k")
e(f"s_lshl_b32 s{sT0}, s{sW}, 2")
e(f"v_add_u32 v{vT[4]}, s{sT0}, v{vT[3]}       ; k")
e(f"v_lshlrev_b32 v{vT[4]}, 8, v{vT[4]}")
e(f"v_add_u32 v{vT[4]}, s2, v{vT[4]}           ; node")
e(f"v_lshlrev_b32 v{vT[4]}, 8, v{vT[4]}")
e(f"v_add_u32 v{vT[4]}, v{vT[4]}, v{vSW}")
e(f"s_mul_i32 s{sT0}, s{sW}, 1088")
e(f"s_add_u32 m0, s{sT0}, {OWN}")
e(f"s_nop 0")
e(f"buffer_load_dwordx4 v{vT[4]}, {srd(S_H)}, 0 offen lds")
vN2 = vT[5]
e(f"v_and_b32 v{vT[2]}, 31, v{vL}              ; e / n")
e(f"s_lshl_b32 s{sT0}, s{sCT}, 5")
e(f"v_add_u32 v{vN2}, s{sT0}, v{vT[2]}")
e(f"v_lshlrev_b32 v{vN2}, 1, v{vN2}            ; (ct*32+n)*2")
e(f"s_mov_b32 s{sT1}, 65536")
e(f"buffer_load_ushort v{K1B}, v{vN2}, {srd(S_WE)}, s{sT1} offen")
e(f"buffer_load_ushort v{K1B+1}, v{vN2}, {srd(S_WE)}, s{sT1} offen offset:256")
e(f"v_lshlrev_b32 v{vE64}, 6, v{vT[2]}")
e(f"v_lshlrev_b32 v{vE4}, 2, v{vT[2]}")
e(f"s_lshl_b32 s{sT0}, s{sCT}, 3")
e(f"v_add_u32 v{vSRCP}, s{sT0}, v{vT[3]}")
e(f"v_lshlrev_b32 v{vSRCP}, 2, v{vSRCP}")
c("HT read patterns")
e(f"v_lshrrev_b32 v{vT[3]}, 5, v{vL}           ; hi")
e(f"v_lshrrev_b32 v{vT[4]}, 2, v{vT[2]}        ; grp")
e(f"v_and_b32 v{vT[6]}, 3, v{vT[2]}            ; r4")
e(f"v_mul_u32_u24 v{vT[4]}, 1088, v{vT[4]}")
e(f"v_lshl_add_u32 v{vT[4]}, v{vT[6]}, 8, v{vT[4]}")
e(f"v_xor_b32 v{vHT0}, v{vT[3]}, v{vT[6]}      ; hi ^ r4")
e(f"v_lshl_add_u32 v{vHT0}, v{vHT0}, 4, v{vT[4]}")
e(f"v_or_b32 v{vHT1}, 2, v{vT[3]}")
e(f"v_xor_b32 v{vHT1}, v{vHT1}, v{vT[6]}")
e(f"v_lshl_add_u32 v{vHT1}, v{vHT1}, 4, v{vT[4]}")
c("FL pattern: (4hi)*272 + (ct*32+n)*2")
e(f"v_mul_u32_u24 v{vFLP}, 1088, v{vT[3]}")
e(f"v_add_u32 v{vFLP}, v{vFLP}, v{vN2}")
c("tr pattern for S")
e(f"v_and_b32 v{vT[2]}, 15, v{vL}")
e(f"v_lshrrev_b32 v{vT[4]}, 2, v{vT[2]}        ; r")
e(f"v_and_b32 v{vT[2]}, 3, v{vT[2]}            ; c4")
e(f"v_lshl_add_u32 v{vT[4]}, v{vT[3]}, 2, v{vT[4]}   ; 4hi + r")
e(f"v_bfe_u32 v{vT[6]}, v{vL}, 4, 1            ; rowhalf")
e(f"v_lshlrev_b32 v{vTR}, 6, v{vT[4]}")
e(f"v_lshl_add_u32 v{vTR}, v{vT[6]}, 5, v{vTR}")
e(f"v_lshl_add_u32 v{vTR}, v{vT[2]}, 3, v{vTR}")
def wt_pattern(dst):
    e(f"v_lshrrev_b32 v{vT[3]}, 5, v{vL}")
    e(f"v_and_b32 v{vT[2]}, 15, v{vL}")
    e(f"v_lshrrev_b32 v{vT[4]}, 2, v{vT[2]}")
    e(f"v_and_b32 v{vT[2]}, 3, v{vT[2]}")
    e(f"v_bfe_u32 v{vT[6]}, v{vL}, 4, 1")
    e(f"v_lshl_add_u32 v{dst}, v{vT[3]}, 3, v{vT[4]}")
    e(f"v_lshlrev_b32 v{dst}, 8, v{dst}")
    e(f"v_lshl_add_u32 v{dst}, v{vT[6]}, 5, v{dst}")
    e(f"v_lshl_add_u32 v{dst}, v{vT[2]}, 3, v{dst}")
    e(f"s_lshl_b32 s{sT0}, s{sCT}, 6")
    e(f"v_add_u32 v{dst}, s{sT0}, v{dst}")
vWT = vT[1]
wt_pattern(vWT)
e("s_waitcnt vmcnt(0)")
e("s_barrier")

c("unit reads: mat = w>>3, rt = (w>>2)&1")
WFR = W2FR
HFR = ACC
W2R = OH
UACC = AF
e(f"s_lshr_b32 s{sT0}, s{sW}, 3")
e(f"s_lshl_b32 s{sT0}, s{sT0}, 15         ; mat*32768")
e(f"v_add_u32 v{vT[2]}, s{sT0}, v{vWT}")
for s in range(8):
    e(f"ds_read_b64_tr_b16 {vr(WFR+4*s,2)}, v{vT[2]} offset:{s*4096}")
    e(f"ds_read_b64_tr_b16 {vr(WFR+4*s+2,2)}, v{vT[2]} offset:{s*4096+1024}")
e(f"s_and_b32 s{sT0}, s{sQ}, 1            ; rt")
e(f"s_mul_i32 s{sT0}, s{sT0}, {HT_BUF}")
e(f"s_add_u32 s{sT0}, s{sT0}, {OWN}")
e(f"v_add_u32 v{vT[3]}, s{sT0}, v{vHT0}")
e(f"v_add_u32 v{vT[4]}, s{sT0}, v{vHT1}")
for s in range(8):
    e(f"ds_read_b128 {vr(HFR+4*s,4)}, v{vT[3+(s&1)]} offset:{(s>>1)*64}")
e(f"s_lshl_b32 s{sT0}, s{sQ}, 13          ; 2q*4096")
e(f"s_add_u32 s{sT0}, s{sT0}, {W2S}")
e(f"v_add_u32 v{vT[2]}, s{sT0}, v{vWT}")
e(f"ds_read_b64_tr_b16 {vr(W2R,2)}, v{vT[2]}")
e(f"ds_read_b64_tr_b16 {vr(W2R+2,2)}, v{vT[2]} offset:1024")
e(f"ds_read_b64_tr_b16 {vr(W2R+4,2)}, v{vT[2]} offset:4096")
e(f"ds_read_b64_tr_b16 {vr(W2R+6,2)}, v{vT[2]} offset:5120")
e("s_waitcnt lgkmcnt(0)")
e("s_barrier")

c("unit MFMAs. transposed iff (mat==1 && rt==0) i.e. q==2")
e(f"s_cmp_eq_u32 s{sQ}, 2")
e("s_cbranch_scc1 L_unit_tr")
for s in range(8):
    mfma(UACC, HFR+4*s, WFR+4*s, "0" if s == 0 else vr(UACC,16))
e("s_branch L_unit_done")
lab("L_unit_tr")
for s in range(8):
    mfma(UACC, WFR+4*s, HFR+4*s, "0" if s == 0 else vr(UACC,16))
lab("L_unit_done")
c("zero REC/DE/SRC : 69120 bytes, 4320 per wave; and MISC")
e(f"v_mov_b32 v{BXF}, 0")
e(f"v_mov_b32 v{BXF+1}, 0")
e(f"v_mov_b32 v{BXF+2}, 0")
e(f"v_mov_b32 v{BXF+3}, 0")
e(f"s_mul_i32 s{sT0}, s{sW}, 4320")
e(f"s_add_u32 s{sT0}, s{sT0}, {REC}")
e(f"v_add_u32 v{vT[2]}, s{sT0}, v{vL16}")
for i in range(4):
    e(f"ds_write_b128 v{vT[2]}, {vr(BXF,4)} offset:{i*1024}")
e(f"v_cmp_gt_u32 vcc, 14, v{vL}")
e(f"s_and_saveexec_b64 {sp(sEX)}, vcc")
e(f"ds_write_b128 v{vT[2]}, {vr(BXF,4)} offset:4096")
e(f"s_mov_b64 exec, {sp(sEX)}")
e(f"v_add_u32 v{vT[2]}, {MISC}, v{vL16}")
e(f"s_cmp_eq_u32 s{sW}, 0")
e("s_cbranch_scc0 L_nomisc")
e(f"ds_write_b128 v{vT[2]}, {vr(BXF,4)}")
lab("L_nomisc")
c("scale W2 frags (2 k-steps): 8 regs")
e(f"s_mov_b32 s{sK2}, 0x{NLOG2E:08x}")
e(f"s_mov_b32 s{sK3}, 0xffff0000")
for r in range(8):
    e(f"v_lshlrev_b32 v{vT[3]}, 16, v{W2R+r}")
    e(f"v_and_b32 v{vT[4]}, s{sK3}, v{W2R+r}")
    e(f"v_mul_f32 v{vT[3]}, s{sK2}, v{vT[3]}")
    e(f"v_mul_f32 v{vT[4]}, s{sK2}, v{vT[4]}")
    e(f"v_cvt_pk_bf16_f32 v{W2R+r}, v{vT[3]}, v{vT[4]}")
c("W2F write: ct*8192 + s*1024 + lane*16, s = 2q, 2q+1")
e(f"s_lshl_b32 s{sT0}, s{sCT}, 13")
e(f"s_lshl_b32 s{sT1}, s{sQ}, 11")
e(f"s_add_u32 s{sT0}, s{sT0}, s{sT1}")
e(f"v_add_u32 v{vT[2]}, s{sT0}, v{vL16}")
e(f"ds_write_b128 v{vT[2]}, {vr(W2R,4)} offset:{W2F}")
e(f"ds_write_b128 v{vT[2]}, {vr(W2R+4,4)} offset:{W2F+1024}")
c("K1B: [wd_hi, wa_hi | wd_lo, wa_lo | 0 | 0] for hi=0 lanes, zeros for hi=1")
e(f"v_lshlrev_b32 v{vT[3]}, 16, v{K1B}")
e(f"v_lshlrev_b32 v{vT[4]}, 16, v{K1B+1}")
e(f"v_mul_f32 v{vT[3]}, s{sK2}, v{vT[3]}")
e(f"v_mul_f32 v{vT[4]}, s{sK2}, v{vT[4]}")
e(f"v_cvt_pk_bf16_f32 v{K1B}, v{vT[3]}, v{vT[4]}")
e(f"v_lshlrev_b32 v{vT[5]}, 16, v{K1B}")
e(f"v_and_b32 v{vT[6]}, s{sK3}, v{K1B}")
e(f"v_sub_f32 v{vT[3]}, v{vT[3]}, v{vT[5]}")
e(f"v_sub_f32 v{vT[4]}, v{vT[4]}, v{vT[6]}")
e(f"v_cvt_pk_bf16_f32 v{K1B+1}, v{vT[3]}, v{vT[4]}")
e(f"v_mov_b32 v{K1B+2}, 0")
e(f"v_mov_b32 v{K1B+3}, 0")
e(f"v_cmp_gt_u32 vcc, 32, v{vL}")
e("s_nop 1")
e(f"v_cndmask_b32 v{K1B}, 0, v{K1B}, vcc")
e(f"v_cndmask_b32 v{K1B+1}, 0, v{K1B+1}, vcc")
c("unit outputs")
e(f"s_cmp_ge_u32 s{sQ}, 2")
e("s_cbranch_scc1 L_unit_h1")
c("P' : q=0 -> groups 0..3 ; q=1 -> group 4 (regs 0..3)")
def psplit(g_local, ldsoff):
    r0 = UACC + 4*g_local
    t = [vT[3], vT[4], vT[5], vT[6]]
    for i in range(4):
        e(f"v_mul_f32 v{r0+i}, s{sK2}, v{r0+i}")
    e(f"v_cvt_pk_bf16_f32 v{BXF}, v{r0}, v{r0+1}")
    e(f"v_cvt_pk_bf16_f32 v{BXF+1}, v{r0+2}, v{r0+3}")
    e(f"v_lshlrev_b32 v{t[0]}, 16, v{BXF}")
    e(f"v_and_b32 v{t[1]}, s{sK3}, v{BXF}")
    e(f"v_lshlrev_b32 v{t[2]}, 16, v{BXF+1}")
    e(f"v_and_b32 v{t[3]}, s{sK3}, v{BXF+1}")
    for i in range(4):
        e(f"v_sub_f32 v{t[i]}, v{r0+i}, v{t[i]}")
    e(f"v_cvt_pk_bf16_f32 v{BXF+2}, v{t[0]}, v{t[1]}")
    e(f"v_cvt_pk_bf16_f32 v{BXF+3}, v{t[2]}, v{t[3]}")
    e("s_nop 1")
    e(f"v_permlane32_swap_b32 v{BXF}, v{BXF+2}")
    e(f"v_permlane32_swap_b32 v{BXF+1}, v{BXF+3}")
    e("s_nop 1")
    e(f"ds_write_b128 v{vT[2]}, {vr(BXF,4)} offset:{ldsoff}")
    e("s_nop 1")
e(f"s_lshl_b32 s{sT0}, s{sCT}, 10")
e(f"s_add_u32 s{sT0}, s{sT0}, {BX}")
e(f"s_lshl_b32 s{sT1}, s{sQ}, 14       ; q=1 -> group 4 : +16384")
e(f"s_add_u32 s{sT0}, s{sT0}, s{sT1}")
e(f"v_add_u32 v{vT[2]}, s{sT0}, v{vL16}")
e("s_nop 7")
e("s_nop 7")
psplit(0, 0)
e(f"s_cmp_eq_u32 s{sQ}, 1")
e("s_cbranch_scc1 L_unit_end")
for g in range(1, 4):
    psplit(g, g*4096)
e("s_branch L_unit_end")
lab("L_unit_h1")
c("H1 -> ws : wg*65536 + (w-8)*4096 + quad*1024 + lane*16")
e(f"s_lshl_b32 s{sT0}, s2, 16")
e(f"s_sub_u32 s{sT1}, s{sW}, 8")
e(f"s_lshl_b32 s{sT1}, s{sT1}, 12")
e(f"s_add_u32 s{sT0}, s{sT0}, s{sT1}")
e("s_nop 7")
e("s_nop 7")
for i in range(4):
    e(f"buffer_store_dwordx4 {vr(UACC+4*i,4)}, v{vL16}, {srd(S_WS)}, s{sT0} offen offset:{i*1024}")
lab("L_unit_end")
e("s_waitcnt lgkmcnt(0)")
e("s_barrier")
c("read W2F frags")
e(f"s_lshl_b32 s{sT0}, s{sCT}, 13")
e(f"v_add_u32 v{vT[2]}, s{sT0}, v{vL16}")
for s in range(8):
    e(f"ds_read_b128 {vr(W2FR+4*s,4)}, v{vT[2]} offset:{W2F+s*1024}")
e(f"v_mov_b32 v{DEF+2}, 0")
e(f"v_mov_b32 v{DEF+3}, 0")
if DBG == "bx":
    dump_lds(BX, 20480, 16<<20)
if DBG == "w2f":
    e("s_waitcnt lgkmcnt(0)")
    dump_regs(W2FR, 32, 16<<20)
    dump_regs(K1B, 4, 64<<20)

c("SCAN")
e("s_waitcnt vmcnt(0)")
for u in ORD[4:]:
    scan_issue(u)
e(f"s_mul_i32 s{sCBEG}, s{sW}, {CAND_W}")
e(f"s_add_u32 s{sCBEG}, s{sCBEG}, {CAND}")
e(f"s_mov_b32 s{sCPTR}, s{sCBEG}")
vL4 = vT[1]
e(f"v_lshlrev_b32 v{vL4}, 2, v{vL}")
e(f"s_mov_b32 s{sI}, 5")
lab("L_scan")
for n, u in enumerate(ORD):
    R0 = SCANR + 4*u
    e("s_waitcnt vmcnt(7)")
    e(f"s_cmp_lt_u32 s{sIDX}, 625")
    e(f"s_cselect_b32 s{sB}, s2, 0x100")
    for j in range(4):
        e(f"v_cmp_eq_u32_sdwa {sp(sM[j])}, v{R0+j}, s{sB} src0_sel:BYTE_0 src1_sel:DWORD")
    scan_issue(u)
    e(f"s_or_b64 {sp(sMA)}, {sp(sM[0])}, {sp(sM[1])}")
    e(f"s_or_b64 {sp(sEX)}, {sp(sM[2])}, {sp(sM[3])}")
    e(f"s_or_b64 {sp(sMA)}, {sp(sMA)}, {sp(sEX)}")
    e(f"s_cbranch_scc0 L_skip{n}")
    e(f"s_lshl_b32 s{sT2}, s{sL}, 8")
    for j in range(4):
        e(f"s_cmp_eq_u64 {sp(sM[j])}, 0")
        e(f"s_cbranch_scc1 L_n{n}_{j}")
        e(f"s_mov_b64 exec, {sp(sM[j])}")
        e(f"v_mbcnt_lo_u32_b32 v{vT[2]}, s{sM[j]}, 0")
        e(f"v_mbcnt_hi_u32_b32 v{vT[2]}, s{sM[j]+1}, v{vT[2]}")
        e(f"s_add_u32 s{sT3}, s{sT2}, {j}")
        e(f"v_add_u32 v{vT[3]}, s{sT3}, v{vL4}")
        e(f"v_lshl_add_u32 v{vT[2]}, v{vT[2]}, 2, s{sCPTR}")
        e(f"ds_write_b32 v{vT[2]}, v{vT[3]}")
        e(f"s_bcnt1_i32_b64 s{sT3}, {sp(sM[j])}")
        e(f"s_lshl2_add_u32 s{sCPTR}, s{sT3}, s{sCPTR}")
        lab(f"L_n{n}_{j}")
    e("s_mov_b64 exec, -1")
    e(f"s_sub_u32 s{sT3}, s{sCPTR}, s{sCBEG}")
    e(f"s_cmp_gt_u32 s{sT3}, {CAND_CAP*4}")
    e(f"s_cbranch_scc0 L_skip{n}")
    e(f"s_mov_b32 s{sOVF}, 1")
    e(f"s_mov_b32 s{sCPTR}, s{sCBEG}")
    lab(f"L_skip{n}")
    e(f"s_add_u32 s{sIDX}, s{sIDX}, 16")
    e(f"s_add_u32 s{sL}, s{sL}, 16")
    e(f"s_cmp_ge_u32 s{sL}, 625")
    e(f"s_cselect_b32 s{sT1}, 625, 0")
    e(f"s_sub_u32 s{sL}, s{sL}, s{sT1}")
e(f"s_sub_u32 s{sI}, s{sI}, 1")
e(f"s_cmp_lg_u32 s{sI}, 0")
e("s_cbranch_scc1 L_scan")
e("s_waitcnt vmcnt(0) lgkmcnt(0)")
e(f"s_sub_u32 s{sCCNT}, s{sCPTR}, s{sCBEG}")
e(f"s_lshr_b32 s{sCCNT}, s{sCCNT}, 2")
if STOP == "scan":
    e("s_branch L_end")

c("PREP")
pE, pD, pS, pA = AF, AF+1, AF+2, AF+3
pPS = [AF+4, AF+5, AF+6]; pPD = [AF+7, AF+8, AF+9]
pSL, pG4, pA1, pA2 = AF+10, AF+11, AF+12, AF+13
pX = [AF+14, AF+15, AF+16, AF+17, AF+18, AF+19]
e(f"s_mov_b32 s{sI}, 0")
e(f"s_mov_b32 s{sK2}, 0xffff0000")
lab("L_prep")
e(f"s_cmp_ge_u32 s{sI}, s{sCCNT}")
e("s_cbranch_scc1 L_prep_done")
e(f"v_add_u32 v{pX[0]}, s{sI}, v{vL}")
e(f"v_cmp_gt_u32 vcc, s{sCCNT}, v{pX[0]}")
e(f"s_and_saveexec_b64 {sp(sEX)}, vcc")
e(f"v_lshl_add_u32 v{pX[0]}, v{pX[0]}, 2, s{sCBEG}")
e(f"ds_read_b32 v{pE}, v{pX[0]}")
e("s_waitcnt lgkmcnt(0)")
e(f"v_lshlrev_b32 v{pX[0]}, 2, v{pE}")
e(f"v_lshlrev_b32 v{pX[1]}, 1, v{pE}")
e(f"buffer_load_dword v{pD}, v{pX[0]}, {srd(S_DST)}, 0 offen")
e(f"buffer_load_dword v{pS}, v{pX[0]}, {srd(S_SRC)}, 0 offen")
e(f"buffer_load_ushort v{pA}, v{pX[1]}, {srd(S_EA)}, 0 offen")
e("s_waitcnt vmcnt(1)")
e(f"v_mul_u32_u24 v{pX[0]}, 6, v{pS}")
e(f"v_mul_u32_u24 v{pX[1]}, 6, v{pD}")
for k in range(3):
    e(f"buffer_load_ushort v{pPS[k]}, v{pX[0]}, {srd(S_POS)}, 0 offen offset:{2*k}")
for k in range(3):
    e(f"buffer_load_ushort v{pPD[k]}, v{pX[1]}, {srd(S_POS)}, 0 offen offset:{2*k}")
e(f"v_lshrrev_b32 v{pG4}, 11, v{pD}           ; g")
e(f"v_lshlrev_b32 v{pX[2]}, 2, v{pG4}")
e(f"v_add_u32 v{pX[2]}, {CNT}, v{pX[2]}")
e(f"v_mov_b32 v{pX[3]}, 1")
e(f"ds_add_rtn_u32 v{pSL}, v{pX[2]}, v{pX[3]}")
e("s_waitcnt vmcnt(0) lgkmcnt(0)")
c("overflow lanes are dropped (flag)")
e(f"v_cmp_le_u32 vcc, {CAP_G}, v{pSL}")
e(f"s_cmp_lg_u64 vcc, 0")
e(f"s_cselect_b32 s{sT0}, 1, 0")
e(f"s_or_b32 s{sOVF}, s{sOVF}, s{sT0}")
e(f"s_andn2_b64 exec, exec, vcc")
c("diff, d2")
for k in range(3):
    e(f"v_lshlrev_b32 v{pPS[k]}, 16, v{pPS[k]}")
    e(f"v_lshlrev_b32 v{pPD[k]}, 16, v{pPD[k]}")
    e(f"v_sub_f32 v{pPD[k]}, v{pPD[k]}, v{pPS[k]}")
e(f"v_cvt_pk_bf16_f32 v{pX[0]}, v{pPD[0]}, v{pPD[1]}")
e(f"v_cvt_pk_bf16_f32 v{pX[1]}, v{pPD[2]}, v{pPD[2]}     ; dz")
e(f"v_lshlrev_b32 v{pPS[0]}, 16, v{pX[0]}")
e(f"v_and_b32 v{pPS[1]}, s{sK2}, v{pX[0]}")
e(f"v_lshlrev_b32 v{pPS[2]}, 16, v{pX[1]}")
for k in range(3):
    e(f"v_mul_f32 v{pPS[k]}, v{pPS[k]}, v{pPS[k]}")
e(f"v_cvt_pk_bf16_f32 v{pX[2]}, v{pPS[0]}, v{pPS[1]}")
e(f"v_cvt_pk_bf16_f32 v{pX[3]}, v{pPS[2]}, v{pPS[2]}")
e(f"v_lshlrev_b32 v{pPS[0]}, 16, v{pX[2]}")
e(f"v_and_b32 v{pPS[1]}, s{sK2}, v{pX[2]}")
e(f"v_lshlrev_b32 v{pPS[2]}, 16, v{pX[3]}")
e(f"v_add_f32 v{pPS[0]}, v{pPS[0]}, v{pPS[1]}")
e(f"v_add_f32 v{pPS[0]}, v{pPS[0]}, v{pPS[2]}")
e(f"v_cvt_pk_bf16_f32 v{pX[2]}, v{pPS[0]}, v{pPS[0]}")
e(f"v_and_b32 v{pX[2]}, 0xffff, v{pX[2]}")
e(f"v_lshl_or_b32 v{pX[2]}, v{pA}, 16, v{pX[2]}          ; d2 | ea<<16")
c("addresses: g*12288 + slot*64 + j*2 ; tile idx = g*6 + slot>>5")
e(f"v_mul_u32_u24 v{pA1}, {REC_G}, v{pG4}")
e(f"v_lshl_add_u32 v{pA1}, v{pSL}, 6, v{pA1}")
e(f"v_bfe_u32 v{pX[3]}, v{pD}, 8, 3                      ; j")
e(f"v_lshl_add_u32 v{pA1}, v{pX[3]}, 1, v{pA1}")
e(f"v_add_u32 v{pA1}, {REC}, v{pA1}")
e(f"v_mul_u32_u24 v{pA2}, {TILES_G*128}, v{pG4}")
e(f"v_lshl_add_u32 v{pA2}, v{pSL}, 2, v{pA2}             ; (g*192 + slot)*4")
e(f"v_add_u32 v{pA2}, {DE}, v{pA2}")
e(f"v_mov_b32 v{pX[3]}, 0x3f80")
e(f"v_lshlrev_b32 v{pS}, 8, v{pS}")
e(f"ds_write_b16 v{pA1}, v{pX[3]}")
e(f"ds_write_b16 v{pA1}, v{pX[0]} offset:16")
e(f"ds_write_b16_d16_hi v{pA1}, v{pX[0]} offset:32")
e(f"ds_write_b16 v{pA1}, v{pX[1]} offset:48")
e(f"ds_write_b32 v{pA2}, v{pX[2]}")
e(f"ds_write_b32 v{pA2}, v{pS} offset:{SRCA-DE}")
e(f"s_mov_b64 exec, {sp(sEX)}")
e(f"s_add_u32 s{sI}, s{sI}, 64")
e("s_branch L_prep")
lab("L_prep_done")
c("publish overflow flag")
e(f"s_cmp_eq_u32 s{sOVF}, 0")
e("s_cbranch_scc1 L_noovf")
e(f"v_mov_b32 v{pX[0]}, {CNT+20}")
e(f"v_mov_b32 v{pX[1]}, 1")
e(f"ds_write_b32 v{pX[0]}, v{pX[1]}")
lab("L_noovf")
e("s_waitcnt lgkmcnt(0)")
e("s_barrier")
if DBG == "rec":
    dump_lds(REC, LDS_TOTAL-REC, 16<<20)
if STOP == "prep":
    e("s_branch L_end")

c("SCHEDULE")
e(f"v_mov_b32 v{vT[2]}, {CNT}")
e(f"ds_read_b128 {vr(AF,4)}, v{vT[2]}")
e(f"ds_read_b64 {vr(AF+4,2)}, v{vT[2]} offset:16")
e("s_waitcnt lgkmcnt(0)")
for g in range(5):
    e(f"v_readfirstlane_b32 s{sCN[g]}, v{AF+g}")
e(f"v_readfirstlane_b32 s{sOVF}, v{AF+5}")
e("s_nop 3")
for g in range(5):
    e(f"s_min_u32 s{sCN[g]}, s{sCN[g]}, {CAP_G}")
    e(f"s_add_u32 s{sNT[g]}, s{sCN[g]}, 31")
    e(f"s_lshr_b32 s{sNT[g]}, s{sNT[g]}, 5")
e(f"s_add_u32 s{sT0}, s{sNT[0]}, s{sNT[1]}")
e(f"s_add_u32 s{sT0}, s{sT0}, s{sNT[2]}")
e(f"s_add_u32 s{sT0}, s{sT0}, s{sNT[3]}")
e(f"s_add_u32 s{sT0}, s{sT0}, s{sNT[4]}")
e(f"s_add_u32 s{sT0}, s{sT0}, 3")
e(f"s_lshr_b32 s{sT0}, s{sT0}, 2          ; target")
e(f"s_mov_b32 s{sT1}, 0")
e(f"s_mov_b32 s{sR}, 0")
for q in range(4):
    e(f"s_sub_i32 s{sT2}, s{sT0}, s{sNT[q]}")
    e(f"s_max_i32 s{sT2}, s{sT2}, 0")
    e(f"s_sub_u32 s{sT3}, s{sNT[4]}, s{sT1}")
    e(f"s_min_u32 s{sT2}, s{sT2}, s{sT3}      ; share")
    e(f"s_add_u32 s{sT3}, s{sT2}, s{sNT[q]}")
    e(f"s_max_u32 s{sR}, s{sR}, s{sT3}")
    e(f"s_cmp_eq_u32 s{sQ}, {q}")
    e(f"s_cselect_b32 s{sNQ}, s{sT3}, s{sNQ}")
    e(f"s_cselect_b32 s{sNOWN}, s{sNT[q]}, s{sNOWN}")
    e(f"s_cselect_b32 s{sST4}, s{sT1}, s{sST4}")
    e(f"s_cselect_b32 s{sK1}, s{sCN[q]}, s{sK1}")
    e(f"s_add_u32 s{sT1}, s{sT1}, s{sT2}")

e(f"s_mul_i32 s{sT0}, s{sQ}, {2*HT_BUF}")
e(f"v_add_u32 v{vHT0}, s{sT0}, v{vHT0}")
e(f"v_add_u32 v{vHT1}, s{sT0}, v{vHT1}")
e(f"s_mov_b32 s{sDEL}, {HT_BUF}")
e(f"s_mul_i32 s{sK3}, s{sCT}, 2176")
e(f"s_add_u32 s{sK3}, s{sK3}, s{sT0}")
for r in range(16):
    e(f"v_mov_b32 v{SEG+r}, 0")

def tile_params(idx_sgpr):
    e(f"s_cmp_lt_u32 s{idx_sgpr}, s{sNOWN}")
    e(f"s_cselect_b32 s{sG}, s{sQ}, 4")
    e(f"s_sub_u32 s{sT0}, s{idx_sgpr}, s{sNOWN}")
    e(f"s_add_u32 s{sT0}, s{sT0}, s{sST4}")
    e(f"s_cselect_b32 s{sTT}, s{idx_sgpr}, s{sT0}")
def tile_params2(idx_sgpr):
    e(f"s_sub_u32 s{sT0}, s{idx_sgpr}, s{sNOWN}")
    e(f"s_add_u32 s{sT0}, s{sT0}, s{sST4}")
    e(f"s_cmp_lt_u32 s{idx_sgpr}, s{sNOWN}")
    e(f"s_cselect_b32 s{sG}, s{sQ}, 4")
    e(f"s_cselect_b32 s{sTT}, s{idx_sgpr}, s{sT0}")
    e(f"s_cselect_b32 s{sNR}, s{sK1}, s{sCN[4]}")
    e(f"s_lshl_b32 s{sT0}, s{sTT}, 5")
    e(f"s_sub_u32 s{sNR}, s{sNR}, s{sT0}")
    e(f"s_min_u32 s{sNR}, s{sNR}, 32")
    e(f"s_mul_i32 s{sTILE}, s{sG}, {TILES_G}")
    e(f"s_add_u32 s{sTILE}, s{sTILE}, s{sTT}")

def dma_tile():
    e(f"s_lshl_b32 s{sT0}, s{sTILE}, 7")
    e(f"s_add_u32 s{sT0}, s{sT0}, {SRCA}")
    e(f"v_add_u32 v{vT[2]}, s{sT0}, v{vSRCP}")
    e(f"ds_read2_b32 {vr(vT[3],2)}, v{vT[2]} offset0:0 offset1:4")
    e(f"s_mov_b32 m0, s{sK3}")
    e("s_waitcnt lgkmcnt(0)")
    e(f"v_add_u32 v{vT[3]}, v{vT[3]}, v{vSW}")
    e(f"v_add_u32 v{vT[4]}, v{vT[4]}, v{vSW}")
    e(f"buffer_load_dwordx4 v{vT[3]}, {srd(S_H)}, 0 offen lds")
    e(f"s_add_u32 m0, s{sK3}, 1088")
    e("s_nop 0")
    e(f"buffer_load_dwordx4 v{vT[4]}, {srd(S_H)}, 0 offen lds")
assert vT[3] % 2 == 0

def flush(dest_sgpr):
    e(f"v_add_u32 v{vT[2]}, s{dest_sgpr}, v{vFLP}")
    e(f"s_mov_b32 s{sT1}, 0x{NLN2:08x}")
    for r in range(4):
        e(f"v_mul_f32 v{SEG+r}, s{sT1}, v{SEG+r}")
    for p in range(8):
        e(f"v_cvt_pk_bf16_f32 v{AF+p}, v{SEG+2*p}, v{SEG+2*p+1}")
    for p in range(8):
        r = 2*p
        row0 = 8*(r >> 2) + (r & 3)
        e(f"ds_write_b16 v{vT[2]}, v{AF+p} offset:{row0*272}")
        e(f"ds_write_b16_d16_hi v{vT[2]}, v{AF+p} offset:{(row0+1)*272}")
    for r in range(16):
        e(f"v_mov_b32 v{SEG+r}, 0")

def own_fl_addr():
    e(f"s_mul_i32 s{sT2}, s{sQ}, {REC_G}")
    e(f"s_and_b32 s{sT3}, s{sQ}, 1")
    e(f"s_lshl_b32 s{sT3}, s{sT3}, 7")
    e(f"s_add_u32 s{sT2}, s{sT2}, s{sT3}")
    e(f"s_add_u32 s{sT2}, s{sT2}, {REC}")

c("MAIN: prologue DMA tile 0")
e(f"s_mov_b32 s{sI}, 0")
e(f"s_cmp_eq_u32 s{sNQ}, 0")
e("s_cbranch_scc1 L_m_pro_done")
tile_params2(sI)
dma_tile()
lab("L_m_pro_done")
e(f"s_add_u32 s{sK3}, s{sK3}, s{sDEL}")
e("s_waitcnt vmcnt(0)")
e("s_barrier")
lab("L_round")
e(f"s_cmp_ge_u32 s{sI}, s{sR}")
e("s_cbranch_scc1 L_rounds_done")
c("DMA next tile")
e(f"s_add_u32 s{sK2}, s{sI}, 1")
e(f"s_cmp_ge_u32 s{sK2}, s{sNQ}")
e("s_cbranch_scc1 L_nodma")
tile_params2(sK2)
dma_tile()
lab("L_nodma")
e(f"s_sub_u32 s{sK3}, s{sK3}, s{sDEL}")
c("flush own group when i == nown (before first g4 tile)")
e(f"s_cmp_lg_u32 s{sI}, s{sNOWN}")
e("s_cbranch_scc1 L_noflush")
own_fl_addr()
flush(sT2)
lab("L_noflush")
e(f"s_cmp_ge_u32 s{sI}, s{sNQ}")
e("s_cbranch_scc1 L_round_end")
tile_params2(sI)
c("frag reads")
e(f"s_mul_i32 s{sREC}, s{sG}, {REC_G}")
e(f"s_lshl_b32 s{sT0}, s{sTT}, 11")
e(f"s_add_u32 s{sREC}, s{sREC}, s{sT0}")
e(f"s_add_u32 s{sREC}, s{sREC}, {REC}")
e(f"v_add_u32 v{vT[2]}, s{sREC}, v{vE64}")
e(f"ds_read_b128 {vr(OH,4)}, v{vT[2]}")
e(f"s_lshl_b32 s{sT0}, s{sTILE}, 7")
e(f"s_add_u32 s{sT0}, s{sT0}, {DE}")
e(f"v_add_u32 v{vT[3]}, s{sT0}, v{vE4}")
e(f"ds_read2_b32 {vr(DEF,2)}, v{vT[3]} offset0:0 offset1:0")
e(f"s_lshl_b32 s{sT0}, s{sG}, 12")
e(f"s_lshl_b32 s{sT1}, s{sCT}, 10")
e(f"s_add_u32 s{sT0}, s{sT0}, s{sT1}")
e(f"s_add_u32 s{sT0}, s{sT0}, {BX}")
e(f"v_lshlrev_b32 v{vT[4]}, 4, v{vL}")
e(f"v_add_u32 v{vT[4]}, s{sT0}, v{vT[4]}")
e(f"ds_read_b128 {vr(BXF,4)}, v{vT[4]}")
for s in range(8):
    e(f"ds_read_b128 {vr(AF+4*s,4)}, v{[vHT0,vHT1][s&1]} offset:{(s>>1)*64}")
e(f"v_add_u32 v{vT[2]}, s{sREC}, v{vTR}")
e("s_waitcnt lgkmcnt(8)")
mfma(ACC, OH, BXF, "0")
mfma(ACC, DEF, K1B, vr(ACC,16))
for s in range(8):
    e(f"s_waitcnt lgkmcnt({7-s})")
    mfma(ACC, AF+4*s, W2FR+4*s, vr(ACC,16))
c("S frags -> AF[8:15]")
SF = AF + 8
e(f"ds_read_b64_tr_b16 {vr(SF,2)}, v{vT[2]}")
e(f"ds_read_b64_tr_b16 {vr(SF+2,2)}, v{vT[2]} offset:512")
e(f"ds_read_b64_tr_b16 {vr(SF+4,2)}, v{vT[2]} offset:1024")
e(f"ds_read_b64_tr_b16 {vr(SF+6,2)}, v{vT[2]} offset:1536")
e("s_nop 7")
e("s_nop 3")
MP = AF
TE = AF + 16
for bb in range(4):
    if bb > 0:
        e(f"s_cmp_le_u32 s{sNR}, {8*bb}")
        e(f"s_cbranch_scc1 L_skipblk{bb}")
    a = ACC + 4*bb
    for i in range(4): e(f"v_exp_f32 v{TE+i}, v{a+i}")
    for i in range(4): e(f"v_add_f32 v{TE+i}, 1.0, v{TE+i}")
    for i in range(4): e(f"v_rcp_f32 v{TE+i}, v{TE+i}")
    for i in range(4): e(f"v_mul_f32 v{TE+i}, v{a+i}, v{TE+i}")
    e(f"v_cvt_pk_bf16_f32 v{MP+2*bb}, v{TE}, v{TE+1}")
    e(f"v_cvt_pk_bf16_f32 v{MP+2*bb+1}, v{TE+2}, v{TE+3}")
e("s_branch L_blk_done")
for bb in range(1, 4):
    lab(f"L_skipblk{bb}")
    e(f"v_mov_b32 v{MP+2*bb}, 0")
    e(f"v_mov_b32 v{MP+2*bb+1}, 0")
lab("L_blk_done")
e("s_waitcnt lgkmcnt(0)")
e("s_nop 1")
mfma(SEG, SF, MP, vr(SEG,16))
mfma(SEG, SF+4, MP+4, vr(SEG,16))
lab("L_round_end")
c("toggle HT read buffer")
e(f"v_add_u32 v{vHT0}, s{sDEL}, v{vHT0}")
e(f"v_add_u32 v{vHT1}, s{sDEL}, v{vHT1}")
e(f"s_sub_u32 s{sDEL}, 0, s{sDEL}")
e(f"s_add_u32 s{sI}, s{sI}, 1")
e("s_waitcnt vmcnt(0) lgkmcnt(0)")
e("s_barrier")
e("s_branch L_round")
lab("L_rounds_done")

c("FINAL: wh2 DMA, flushes, role prefetch")
e(f"v_lshlrev_b32 v{vT[1]}, 4, v{vL}")
e(f"s_lshl_b32 s{sT0}, s{sW}, 11")
e(f"v_add_u32 v{vT[1]}, s{sT0}, v{vT[1]}")
e(f"s_add_u32 m0, s{sT0}, {WH2S}")
e(f"s_mov_b32 s{sT1}, 32768")
e(f"buffer_load_dwordx4 v{vT[1]}, {srd(S_WH)}, s{sT1} offen lds")
e(f"buffer_load_dwordx4 v{vT[1]}, {srd(S_WH)}, s{sT1} offen offset:1024 lds")
e(f"s_cmp_lt_u32 s{sNOWN}, s{sR}")
e("s_cbranch_scc1 L_f_noown")
own_fl_addr()
flush(sT2)
lab("L_f_noown")
e(f"s_mul_i32 s{sT2}, s{sQ}, {FL4_S}")
e(f"s_add_u32 s{sT2}, s{sT2}, {FL4}")
flush(sT2)
if DBG == "fl":
    dump_lds(0, LDS_TOTAL, 16<<20)
WXF = W2FR
HRES = OH
vN = vT[1]; vHI = vT[2]; vOFF = vT[3]; vRD = vT[4]
e(f"v_and_b32 v{vN}, 31, v{vL}")
e(f"v_lshrrev_b32 v{vHI}, 5, v{vL}")
e(f"s_cmp_ge_u32 s{sQ}, 2")
e("s_cbranch_scc1 L_f_preCD")
e(f"s_cmp_eq_u32 s{sQ}, 1")
e("s_cbranch_scc1 L_f_preB")
c("role A prefetch: H1 (transposed) -> ACC ; h residual -> HRES[0:7]")
e(f"s_lshl_b32 s{sT0}, s2, 16")
e(f"s_lshl_b32 s{sT1}, s{sCT}, 12")
e(f"s_add_u32 s{sT0}, s{sT0}, s{sT1}")
e(f"v_lshlrev_b32 v{vT[5]}, 4, v{vL}")
for i in range(4):
    e(f"buffer_load_dwordx4 {vr(ACC+4*i,4)}, v{vT[5]}, {srd(S_WS)}, s{sT0} offen offset:{i*1024}")
e(f"v_lshlrev_b32 v{vOFF}, 8, v{vN}")
e(f"v_add_u32 v{vOFF}, s2, v{vOFF}          ; node")
e(f"v_lshlrev_b32 v{vOFF}, 8, v{vOFF}")
e(f"v_lshl_add_u32 v{vOFF}, v{vHI}, 3, v{vOFF}")
e(f"s_lshl_b32 s{sT0}, s{sCT}, 6")
e(f"v_add_u32 v{vOFF}, s{sT0}, v{vOFF}")
for i in range(4):
    e(f"buffer_load_dwordx2 {vr(HRES+2*i,2)}, v{vOFF}, {srd(S_H)}, 0 offen offset:{i*16}")
c("B-operand rows: FL[g=n>>3] row n&7")
e(f"v_lshrrev_b32 v{vT[5]}, 3, v{vN}        ; g")
e(f"v_mul_u32_u24 v{vRD}, {REC_G}, v{vT[5]}")
e(f"v_and_b32 v{vT[5]}, 1, v{vT[5]}")
e(f"v_lshl_add_u32 v{vRD}, v{vT[5]}, 7, v{vRD}")
e(f"v_and_b32 v{vT[5]}, 7, v{vN}")
e(f"v_mul_u32_u24 v{vT[5]}, 272, v{vT[5]}")
e(f"v_add_u32 v{vRD}, v{vRD}, v{vT[5]}")
e(f"v_lshl_add_u32 v{vRD}, v{vHI}, 4, v{vRD}")
e(f"v_add_u32 v{vRD}, {REC}, v{vRD}")
e("s_branch L_f_bar")
lab("L_f_preB")
c("role B prefetch: H1 regs0-3 -> SEG[0:3]; h residual 4 ushorts")
e(f"s_lshl_b32 s{sT0}, s2, 16")
e(f"s_add_u32 s{sT1}, s{sCT}, 4")
e(f"s_lshl_b32 s{sT1}, s{sT1}, 12")
e(f"s_add_u32 s{sT0}, s{sT0}, s{sT1}")
e(f"v_lshlrev_b32 v{vT[5]}, 4, v{vL}")
e(f"buffer_load_dwordx4 {vr(SEG,4)}, v{vT[5]}, {srd(S_WS)}, s{sT0} offen")
c("node = b + 256*(32 + 4hi + r): off = node*256 + (ct*32+n)*2 ; r stride = 65536")
e(f"v_lshl_add_u32 v{vOFF}, v{vHI}, 2, 32")
e(f"v_lshlrev_b32 v{vOFF}, 8, v{vOFF}")
e(f"v_add_u32 v{vOFF}, s2, v{vOFF}")
e(f"v_lshlrev_b32 v{vOFF}, 8, v{vOFF}")
e(f"v_lshl_add_u32 v{vOFF}, v{vN}, 1, v{vOFF}")
e(f"s_lshl_b32 s{sT0}, s{sCT}, 6")
e(f"v_add_u32 v{vOFF}, s{sT0}, v{vOFF}")
for r in range(4):
    e(f"s_mov_b32 s{sT1}, {r*65536}")
    e(f"buffer_load_ushort v{HRES+r}, v{vOFF}, {srd(S_H)}, s{sT1} offen")
c("A-operand rows: FL4[q'=n>>3] row n&7")
e(f"v_lshrrev_b32 v{vT[5]}, 3, v{vN}")
e(f"v_mul_u32_u24 v{vRD}, {FL4_S}, v{vT[5]}")
e(f"v_and_b32 v{vT[5]}, 7, v{vN}")
e(f"v_mul_u32_u24 v{vT[5]}, 272, v{vT[5]}")
e(f"v_add_u32 v{vRD}, v{vRD}, v{vT[5]}")
e(f"v_lshl_add_u32 v{vRD}, v{vHI}, 4, v{vRD}")
e(f"v_add_u32 v{vRD}, {FL4}, v{vRD}")
e("s_branch L_f_bar")
lab("L_f_preCD")
e(f"s_cmp_eq_u32 s{sW}, 15")
e("s_cbranch_scc1 L_f_bar")
c("roles C/D prefetch: wx frags")
e(f"v_lshlrev_b32 v{vT[5]}, 4, v{vHI}")
for s_ in range(8):
    e(f"buffer_load_dwordx4 {vr(WXF+4*s_,4)}, v{vT[5]}, {srd(S_WX)}, 0 offen offset:{s_*32}")
e(f"s_cmp_eq_u32 s{sQ}, 3")
e("s_cbranch_scc1 L_f_preD")
c("role C: g = ct. lane n: c = n>>3, j = n&7; node = b + 256*(8g+j); rows n of FL[g]")
e(f"v_and_b32 v{vT[5]}, 7, v{vN}")
e(f"s_lshl_b32 s{sT0}, s{sCT}, 3")
e(f"v_add_u32 v{vT[5]}, s{sT0}, v{vT[5]}      ; k")
e(f"v_lshlrev_b32 v{vT[5]}, 8, v{vT[5]}")
e(f"v_add_u32 v{vT[5]}, s2, v{vT[5]}          ; node")
e(f"v_mul_u32_u24 v{vOFF}, 6, v{vT[5]}")
e(f"v_lshrrev_b32 v{vT[5]}, 3, v{vN}          ; c")
e(f"v_lshl_add_u32 v{vOFF}, v{vT[5]}, 1, v{vOFF}")
e(f"v_subrev_u32 v{vOFF}, 2, v{vOFF}")
e(f"v_max_i32 v{vOFF}, 0, v{vOFF}")
e(f"buffer_load_ushort v{HRES}, v{vOFF}, {srd(S_POS)}, 0 offen")
e(f"s_mul_i32 s{sT0}, s{sCT}, {REC_G}")
e(f"s_and_b32 s{sT1}, s{sCT}, 1")
e(f"s_lshl_b32 s{sT1}, s{sT1}, 7")
e(f"s_add_u32 s{sT0}, s{sT0}, s{sT1}")
e(f"s_add_u32 s{sT0}, s{sT0}, {REC}")
e(f"v_mul_u32_u24 v{vRD}, 272, v{vN}")
e(f"v_lshl_add_u32 v{vRD}, v{vHI}, 4, v{vRD}")
e(f"v_add_u32 v{vRD}, s{sT0}, v{vRD}")
e("s_branch L_f_bar")
lab("L_f_preD")
c("role D: comp c = ct+1. lane n: q' = n>>3, j = n&7; node = b + 256*(32+j)")
e(f"v_and_b32 v{vT[5]}, 7, v{vN}")
e(f"v_add_u32 v{vT[6]}, 32, v{vT[5]}")
e(f"v_lshlrev_b32 v{vT[6]}, 8, v{vT[6]}")
e(f"v_add_u32 v{vT[6]}, s2, v{vT[6]}          ; node")
e(f"v_mul_u32_u24 v{vOFF}, 6, v{vT[6]}")
e(f"s_lshl_b32 s{sT0}, s{sCT}, 1")
e(f"v_add_u32 v{vOFF}, s{sT0}, v{vOFF}")
e(f"buffer_load_ushort v{HRES}, v{vOFF}, {srd(S_POS)}, 0 offen")
e(f"s_add_u32 s{sT0}, s{sCT}, 1")
e(f"s_mul_i32 s{sT0}, s{sT0}, {8*272}")
e(f"v_mul_u32_u24 v{vT[5]}, 272, v{vT[5]}")
e(f"v_lshrrev_b32 v{vT[6]}, 3, v{vN}")
e(f"v_mul_u32_u24 v{vRD}, {FL4_S}, v{vT[6]}")
e(f"v_add_u32 v{vRD}, v{vRD}, v{vT[5]}")
e(f"v_lshl_add_u32 v{vRD}, v{vHI}, 4, v{vRD}")
e(f"v_add_u32 v{vRD}, s{sT0}, v{vRD}")
e(f"v_add_u32 v{vRD}, {FL4}, v{vRD}")
lab("L_f_bar")
e("s_waitcnt vmcnt(0) lgkmcnt(0)")
e("s_barrier")
e(f"s_cmp_eq_u32 s{sW}, 15")
e("s_cbranch_scc1 L_end")
c("row frags -> AF")
for s_ in range(8):
    e(f"ds_read_b128 {vr(AF+4*s_,4)}, v{vRD} offset:{s_*32}")
e(f"s_cmp_ge_u32 s{sQ}, 2")
e("s_cbranch_scc1 L_f_CD")
c("wh2 frags")
vWT2 = vT[5]
e(f"v_mov_b32 v{SEG+8}, v{vOFF}")
e("s_waitcnt lgkmcnt(0)")
wt_pattern(vWT2)
e(f"v_mov_b32 v{vOFF}, v{SEG+8}")
for s_ in range(8):
    e(f"ds_read_b64_tr_b16 {vr(W2FR+4*s_,2)}, v{vWT2} offset:{WH2S+s_*4096}")
    e(f"ds_read_b64_tr_b16 {vr(W2FR+4*s_+2,2)}, v{vWT2} offset:{WH2S+s_*4096+1024}")
e("s_waitcnt lgkmcnt(0)")
e(f"s_mov_b32 s{sK2}, 0x{NLOG2E:08x}")
e(f"s_mov_b32 s{sK3}, 0xffff0000")
e(f"s_cmp_eq_u32 s{sQ}, 1")
e("s_cbranch_scc1 L_f_B")
c("role A")
for s_ in range(8):
    mfma(ACC, W2FR+4*s_, AF+4*s_, vr(ACC,16))
e("s_nop 7")
e("s_nop 7")
def final_silu(a, n, TEf):
    for i in range(n): e(f"v_mul_f32 v{TEf+i}, s{sK2}, v{a+i}")
    for i in range(n): e(f"v_exp_f32 v{TEf+i}, v{TEf+i}")
    for i in range(n): e(f"v_add_f32 v{TEf+i}, 1.0, v{TEf+i}")
    for i in range(n): e(f"v_rcp_f32 v{TEf+i}, v{TEf+i}")
    for i in range(n): e(f"v_mul_f32 v{a+i}, v{a+i}, v{TEf+i}")
for i in range(4):
    a = ACC + 4*i
    final_silu(a, 4, AF)
    e(f"v_lshlrev_b32 v{AF}, 16, v{HRES+2*i}")
    e(f"v_and_b32 v{AF+1}, s{sK3}, v{HRES+2*i}")
    e(f"v_lshlrev_b32 v{AF+2}, 16, v{HRES+2*i+1}")
    e(f"v_and_b32 v{AF+3}, s{sK3}, v{HRES+2*i+1}")
    for k in range(4): e(f"v_add_f32 v{a+k}, v{a+k}, v{AF+k}")
    e(f"v_cvt_pk_bf16_f32 v{AF+4+2*i}, v{a}, v{a+1}")
    e(f"v_cvt_pk_bf16_f32 v{AF+5+2*i}, v{a+2}, v{a+3}")
    e(f"buffer_store_dwordx2 {vr(AF+4+2*i,2)}, v{vOFF}, {srd(S_O0)}, 0 offen offset:{i*16}")
e("s_branch L_end")
lab("L_f_B")
c("role B")
for s_ in range(8):
    mfma(ACC, AF+4*s_, W2FR+4*s_, "0" if s_ == 0 else vr(ACC,16))
e("s_nop 7")
e("s_nop 7")
for k in range(4):
    e(f"v_add_f32 v{ACC+k}, v{ACC+k}, v{ACC+4+k}")
    e(f"v_add_f32 v{ACC+8+k}, v{ACC+8+k}, v{ACC+12+k}")
    e(f"v_add_f32 v{ACC+k}, v{ACC+k}, v{SEG+k}")
for k in range(4):
    e(f"v_add_f32 v{ACC+k}, v{ACC+k}, v{ACC+8+k}")
final_silu(ACC, 4, AF)
for k in range(4):
    e(f"v_lshlrev_b32 v{AF+k}, 16, v{HRES+k}")
for k in range(4):
    e(f"v_add_f32 v{ACC+k}, v{ACC+k}, v{AF+k}")
for k in range(4):
    e(f"v_cvt_pk_bf16_f32 v{AF+4+k}, v{ACC+k}, v{ACC+k}")
for k in range(4):
    e(f"s_mov_b32 s{sT1}, {k*65536}")
    e(f"buffer_store_short v{AF+4+k}, v{vOFF}, {srd(S_O0)}, s{sT1} offen")
e("s_branch L_end")
lab("L_f_CD")
e("s_waitcnt lgkmcnt(0)")
for s_ in range(8):
    mfma(ACC, WXF+4*s_, AF+4*s_, "0" if s_ == 0 else vr(ACC,16))
e("s_nop 7")
e("s_nop 7")
e(f"s_mov_b32 s{sK2}, 0x{NLN2:08x}")
e(f"v_lshlrev_b32 v{HRES}, 16, v{HRES}")
e(f"s_cmp_eq_u32 s{sQ}, 3")
e("s_cbranch_scc1 L_f_D")
c("role C: lanes 8..31 valid")
e(f"v_fma_f32 v{ACC}, s{sK2}, v{ACC}, v{HRES}")
e(f"v_cvt_pk_bf16_f32 v{ACC}, v{ACC}, v{ACC}")
e(f"s_mov_b32 s{sEX}, 0xffffff00")
e(f"s_mov_b32 s{sEX+1}, 0")
e(f"s_mov_b64 exec, {sp(sEX)}")
e(f"buffer_store_short v{ACC}, v{vOFF}, {srd(S_O1)}, 0 offen")
e("s_branch L_end")
lab("L_f_D")
c("role D: sum over q' (lanes n, n+8, n+16, n+24)")
e(f"v_add_f32_dpp v{ACC+1}, v{ACC}, v{ACC} row_ror:8 row_mask:0xf bank_mask:0xf")
e("s_nop 1")
e(f"v_mov_b32 v{ACC+2}, v{ACC+1}")
e("s_nop 1")
e(f"v_permlane16_swap_b32 v{ACC+1}, v{ACC+2}")
e("s_nop 1")
e(f"v_add_f32 v{ACC}, v{ACC+1}, v{ACC+2}")
e(f"v_fma_f32 v{ACC}, s{sK2}, v{ACC}, v{HRES}")
e(f"v_cvt_pk_bf16_f32 v{ACC}, v{ACC}, v{ACC}")
e(f"s_mov_b64 exec, 0xff")
e(f"buffer_store_short v{ACC}, v{vOFF}, {srd(S_O1)}, 0 offen")
lab("L_end")
out.append("s_endpgm")
out.append(f""".section .rodata,"a"
.p2align 6
.amdhsa_kernel {KNAME}
  .amdhsa_next_free_vgpr 128
  .amdhsa_next_free_sgpr 102
  .amdhsa_accum_offset 128
  .amdhsa_group_segment_fixed_size 0
  .amdhsa_kernarg_size 88
  .amdhsa_user_sgpr_count 2
  .amdhsa_user_sgpr_kernarg_segment_ptr 1
  .amdhsa_system_sgpr_workgroup_id_x 1
.end_amdhsa_kernel""")
dest = sys.argv[1] if len(sys.argv) > 1 else "standalone__cheap_equivariant_egnn__graph.s"
open(dest, "w").write("\n".join(out) + "\n")
print("wrote", dest, len(out), "lines")
```

```python
import os
NLOG2E = 0xBFB8AA3B
NLN2 = 0xBF317218
CELLS = 0
QOFF = 8 << 20
WFOFF = 12 << 20
out = []
def e(s=""): out.append("    " + s)
def lab(s): out.append(s + ":")
def c(s): out.append("    ; " + s)
def srd(x): return f"s[{x}:{x+3}]"
def sp(x): return f"s[{x}:{x+1}]"
def vr(x, n): return f"v[{x}:{x+n-1}]"
def mfma(d, a, b, cc):
    e(f"v_mfma_f32_32x32x16_bf16 {vr(d,16)}, {vr(a,4)}, {vr(b,4)}, {cc}")
```

```python
from g3common import *

K1NAME = "egnn_prep_kernel"
NG = 157; NWP = 2; NCH = 63
K1_GRID = NG + NWP + NCH
K1_LDS = 65536

def gen_k1():
    S_H, S_SRC, S_DST, S_WE, S_WH, S_WS, S_Q = [8 + 4 * i for i in range(7)]
    sW, sCT, sRB, sT0, sT1, sT2, sC = 40, 41, 42, 43, 44, 45, 46
    vL = 1
    lab(K1NAME)
    e(f"s_cmp_ge_u32 s2, {K1_GRID}")
    e("s_cbranch_scc1 L1_end")
    for (x, off) in [(S_DST,32),(S_SRC,24),(S_H,0),(S_WE,40),(S_WH,56),(S_WS,80)]:
        e(f"s_load_dwordx2 s[{x}:{x+1}], s[0:1], {off}")
    e(f"v_lshrrev_b32 v2, 6, v0")
    e(f"v_and_b32 v{vL}, 63, v0")
    e(f"s_nop 0")
    e(f"v_readfirstlane_b32 s{sW}, v2")
    for (x, sz) in [(S_H,2560000),(S_SRC,640000),(S_DST,640000),(S_WE,66048),(S_WH,65536),(S_WS,256*1048576),(S_Q,2560000)]:
        e(f"s_mov_b32 s{x+2}, {sz}")
        e(f"s_mov_b32 s{x+3}, 0x20000")
    e(f"s_and_b32 s{sCT}, s{sW}, 3")
    e(f"s_lshr_b32 s{sRB}, s{sW}, 2")
    e(f"s_cmp_ge_u32 s2, {NG+NWP}")
    e("s_cbranch_scc1 L1_bin")
    c("non-binning: waves 8,9 exit")
    e(f"s_cmp_ge_u32 s{sW}, 8")
    e("s_cbranch_scc1 L1_end")
    e("s_waitcnt lgkmcnt(0)")
    e(f"s_add_u32 s{S_Q}, s{S_WS}, {QOFF}")
    e(f"s_addc_u32 s{S_Q+1}, s{S_WS+1}, 0")
    c("slice DMA lane offset: (l>>2)*256 + ct*64 + (l&3)*16")
    vSL = 2; vTRP = 3; vRA = 4; vRD = 5; vT0 = 6; vT1 = 7; vST = 8
    e(f"v_lshrrev_b32 v{vSL}, 2, v{vL}")
    e(f"v_lshlrev_b32 v{vSL}, 8, v{vSL}")
    e(f"v_and_b32 v{vT0}, 3, v{vL}")
    e(f"v_lshl_add_u32 v{vSL}, v{vT0}, 4, v{vSL}")
    e(f"s_lshl_b32 s{sT0}, s{sCT}, 6")
    e(f"v_add_u32 v{vSL}, s{sT0}, v{vSL}")
    c("tr pattern: (8hi + r)*64 + colhalf*32 + c4*8")
    def trpat(dst):
        e(f"v_lshrrev_b32 v{vT0}, 5, v{vL}")
        e(f"v_bfe_u32 v{vT1}, v{vL}, 2, 2")
        e(f"v_lshl_add_u32 v{dst}, v{vT0}, 3, v{vT1}")
        e(f"v_lshlrev_b32 v{dst}, 6, v{dst}")
        e(f"v_bfe_u32 v{vT0}, v{vL}, 4, 1")
        e(f"v_lshl_add_u32 v{dst}, v{vT0}, 5, v{dst}")
        e(f"v_and_b32 v{vT0}, 3, v{vL}")
        e(f"v_lshl_add_u32 v{dst}, v{vT0}, 3, v{dst}")
    e(f"s_cmp_ge_u32 s2, {NG}")
    e("s_cbranch_scc1 L1_wprep")
    c("GEMM WG: rows 64r..64r+63")
    AF = 16; BF = 48; D = 80
    e(f"s_lshl_b32 s{sT0}, s{sCT}, 13")
    e(f"s_lshl_b32 s{sT1}, s{sRB}, 12")
    e(f"s_add_u32 s{sT0}, s{sT0}, s{sT1}")
    e(f"s_lshl_b32 s{sT1}, s{sRB}, 14")
    e(f"s_add_u32 s{sT1}, s{sT1}, 32768")
    for i in range(4):
        e(f"s_add_u32 m0, s{sT0}, {i*1024}")
        e(f"s_add_u32 s{sT2}, s{sT1}, {i*4096}")
        e(f"buffer_load_dwordx4 v{vSL}, {srd(S_WE)}, s{sT2} offen lds")
    c("rows DMA: row = 8w + 4i + (l>>4); chunk = (l&15) ^ (row&15)")
    e(f"v_lshrrev_b32 v{vT0}, 4, v{vL}")
    e(f"v_and_b32 v{vT1}, 15, v{vL}")
    e(f"v_xor_b32 v{vT1}, v{vT1}, v{vT0}")
    e(f"s_and_b32 s{sT0}, s{sW}, 1")
    e(f"s_lshl_b32 s{sT0}, s{sT0}, 3")
    e(f"v_xor_b32 v{vT1}, s{sT0}, v{vT1}")
    e(f"v_lshlrev_b32 v{vT1}, 4, v{vT1}")
    e(f"v_lshl_add_u32 v{vRA}, v{vT0}, 8, v{vT1}")
    e(f"s_lshl_b32 s{sT0}, s2, 14")
    e(f"s_lshl_b32 s{sT1}, s{sW}, 11")
    e(f"s_add_u32 s{sT0}, s{sT0}, s{sT1}           ; (64r + 8w)*256")
    e(f"s_add_u32 m0, s{sT1}, 32768")
    e(f"s_add_u32 s{sT2}, s{sT0}, 1024")
    e(f"buffer_load_dwordx4 v{vRA}, {srd(S_H)}, s{sT0} offen lds")
    e(f"v_xor_b32 v{vRA}, 64, v{vRA}")
    e(f"s_add_u32 m0, s{sT1}, {32768+1024}")
    e(f"s_nop 0")
    e(f"buffer_load_dwordx4 v{vRA}, {srd(S_H)}, s{sT2} offen lds")
    trpat(vTRP)
    e(f"s_lshl_b32 s{sT0}, s{sCT}, 13")
    e(f"v_add_u32 v{vTRP}, s{sT0}, v{vTRP}")
    c("row read address: 32768 + (rb*32+n)*256 + ((hi ^ (n&15))<<4) ^ (s<<5)")
    e(f"v_and_b32 v{vT0}, 31, v{vL}")
    e(f"v_lshrrev_b32 v{vT1}, 5, v{vL}")
    e(f"v_and_b32 v{vRD}, 15, v{vL}")
    e(f"v_xor_b32 v{vRD}, v{vRD}, v{vT1}")
    e(f"v_lshlrev_b32 v{vRD}, 4, v{vRD}")
    e(f"v_lshl_add_u32 v{vRD}, v{vT0}, 8, v{vRD}")
    e(f"s_lshl_b32 s{sT0}, s{sRB}, 13")
    e(f"s_add_u32 s{sT0}, s{sT0}, 32768")
    e(f"v_add_u32 v{vRD}, s{sT0}, v{vRD}")
    c("store offset: (64r + 32rb + n)*256 + ct*64 + hi*8")
    e(f"v_lshlrev_b32 v{vST}, 8, v{vT0}")
    e(f"v_lshl_add_u32 v{vST}, v{vT1}, 3, v{vST}")
    e(f"s_lshl_b32 s{sT0}, s2, 14")
    e(f"s_lshl_b32 s{sT1}, s{sRB}, 13")
    e(f"s_add_u32 s{sT0}, s{sT0}, s{sT1}")
    e(f"s_lshl_b32 s{sT1}, s{sCT}, 6")
    e(f"s_add_u32 s{sT0}, s{sT0}, s{sT1}")
    e("s_waitcnt vmcnt(0)")
    e("s_barrier")
    for s_ in range(8):
        e(f"v_xor_b32 v{vT0}, {s_<<5}, v{vRD}")
        e(f"ds_read_b128 {vr(BF+4*s_,4)}, v{vT0}")
        e(f"ds_read_b64_tr_b16 {vr(AF+4*s_,2)}, v{vTRP} offset:{s_*1024}")
        e(f"ds_read_b64_tr_b16 {vr(AF+4*s_+2,2)}, v{vTRP} offset:{s_*1024+256}")
    for s_ in range(8):
        e(f"s_waitcnt lgkmcnt({min(15, 3*(7-s_))})")
        mfma(D, AF+4*s_, BF+4*s_, "0" if s_ == 0 else vr(D,16))
    e(f"s_mov_b32 s{sT1}, 0x{NLOG2E:08x}")
    e("s_nop 7"); e("s_nop 3")
    for bb in range(4):
        r0 = D + 4*bb
        for i in range(4):
            e(f"v_mul_f32 v{r0+i}, s{sT1}, v{r0+i}")
        e(f"v_cvt_pk_bf16_f32 v{r0}, v{r0}, v{r0+1}")
        e(f"v_cvt_pk_bf16_f32 v{r0+1}, v{r0+2}, v{r0+3}")
        e(f"buffer_store_dwordx2 {vr(r0,2)}, v{vST}, {srd(S_Q)}, s{sT0} offen offset:{bb*16}")
    e("s_endpgm")
    lab("L1_wprep")
    c("weight prep: WG157: w0-3 W1, w4-7 Wh1 ; WG158: w0-3 Wh2, w4-7 K1B")
    e(f"s_lshl_b32 s{sT2}, s{sW}, 13")
    trpat(vTRP)
    e(f"v_add_u32 v{vTRP}, s{sT2}, v{vTRP}")
    e(f"v_lshlrev_b32 v{vST}, 4, v{vL}")
    e(f"s_cmp_eq_u32 s2, {NG}")
    e("s_cbranch_scc0 L1_w158")
    e(f"s_cmp_eq_u32 s{sRB}, 0")
    e("s_cbranch_scc0 L1_wh1")
    def slice_dma(S, gbase):
        for i in range(8):
            e(f"s_add_u32 m0, s{sT2}, {i*1024}")
            e(f"s_mov_b32 s{sT1}, {gbase + i*4096}")
            e(f"buffer_load_dwordx4 v{vSL}, {srd(S)}, s{sT1} offen lds")
    slice_dma(S_WE, 0)
    e(f"s_mov_b32 s{sC}, {WFOFF + 0}")
    e("s_branch L1_wfin")
    lab("L1_wh1")
    slice_dma(S_WH, 0)
    e(f"s_mov_b32 s{sC}, {WFOFF + 32768}")
    e("s_branch L1_wfin")
    lab("L1_w158")
    e(f"s_cmp_eq_u32 s{sRB}, 0")
    e("s_cbranch_scc0 L1_k1b")
    slice_dma(S_WH, 32768)
    e(f"s_mov_b32 s{sC}, {WFOFF + 65536}")
    lab("L1_wfin")
    e(f"s_lshl_b32 s{sT0}, s{sCT}, 13")
    e(f"s_add_u32 s{sC}, s{sC}, s{sT0}")
    e("s_waitcnt vmcnt(0)")
    for s_ in range(8):
        e(f"ds_read_b64_tr_b16 {vr(16+4*s_,2)}, v{vTRP} offset:{s_*1024}")
        e(f"ds_read_b64_tr_b16 {vr(16+4*s_+2,2)}, v{vTRP} offset:{s_*1024+256}")
    for s_ in range(8):
        if s_ == 4:
            e(f"s_add_u32 s{sC}, s{sC}, 4096")
        e(f"s_waitcnt lgkmcnt({2*(7-s_)})")
        e(f"buffer_store_dwordx4 {vr(16+4*s_,4)}, v{vST}, {srd(S_WS)}, s{sC} offen offset:{(s_%4)*1024}")
    e("s_endpgm")
    lab("L1_k1b")
    KB = 16
    e(f"v_and_b32 v{vT0}, 31, v{vL}")
    e(f"s_lshl_b32 s{sT0}, s{sCT}, 5")
    e(f"v_add_u32 v{vT1}, s{sT0}, v{vT0}")
    e(f"v_lshlrev_b32 v{vT1}, 1, v{vT1}")
    e(f"s_mov_b32 s{sT1}, 65536")
    e(f"buffer_load_ushort v{KB}, v{vT1}, {srd(S_WE)}, s{sT1} offen")
    e(f"buffer_load_ushort v{KB+1}, v{vT1}, {srd(S_WE)}, s{sT1} offen offset:256")
    e(f"s_mov_b32 s{sT0}, 0x{NLOG2E:08x}")
    e(f"s_mov_b32 s{sT2}, 0xffff0000")
    e("s_waitcnt vmcnt(0)")
    e(f"v_lshlrev_b32 v20, 16, v{KB}")
    e(f"v_lshlrev_b32 v21, 16, v{KB+1}")
    e(f"v_mul_f32 v20, s{sT0}, v20")
    e(f"v_mul_f32 v21, s{sT0}, v21")
    e(f"v_cvt_pk_bf16_f32 v{KB}, v20, v21")
    e(f"v_lshlrev_b32 v22, 16, v{KB}")
    e(f"v_and_b32 v23, s{sT2}, v{KB}")
    e(f"v_sub_f32 v20, v20, v22")
    e(f"v_sub_f32 v21, v21, v23")
    e(f"v_cvt_pk_bf16_f32 v{KB+1}, v20, v21")
    e(f"v_mov_b32 v{KB+2}, 0")
    e(f"v_mov_b32 v{KB+3}, 0")
    e(f"v_lshlrev_b32 v{vT0}, 4, v{vT0}")
    e(f"s_lshl_b32 s{sT0}, s{sCT}, 9")
    e(f"s_add_u32 s{sT0}, s{sT0}, {WFOFF + 98304}")
    e("s_mov_b32 exec_hi, 0")
    e(f"buffer_store_dwordx4 {vr(KB,4)}, v{vT0}, {srd(S_WS)}, s{sT0} offen")
    e("s_endpgm")
    lab("L1_bin")
    c("binning WG c = wg - 159: edges e = 2560c + 640i + t")
    vD = 4; vS = 8; vB = 12; vR = 16; vE = 20; vT0 = 21; vT1 = 22; vOne = 23; vK = 24
    e(f"s_sub_u32 s{sC}, s2, {NG+NWP}")
    e(f"s_mul_i32 s{sT0}, s{sC}, {2560*4}")
    e(f"v_lshlrev_b32 v{vE}, 2, v0")
    c("zero headers")
    e(f"v_lshlrev_b32 v{vT0}, 7, v0")
    e(f"v_mov_b32 v{vT1}, 0")
    e(f"v_mov_b32 v{vOne}, 1")
    e(f"v_cmp_gt_u32 vcc, 250, v0")
    e(f"s_mov_b64 exec, vcc")
    e(f"ds_write_b32 v{vT0}, v{vT1}")
    e(f"s_mov_b64 exec, -1")
    e("s_waitcnt lgkmcnt(0)")
    e(f"s_add_u32 s{sT2}, s{sT0}, 5120")
    for i in range(4):
        e(f"buffer_load_dword v{vD+i}, v{vE}, {srd(S_DST)}, s{[sT0,sT2][i>>1]} offen offset:{(i&1)*2560}")
    for i in range(4):
        e(f"buffer_load_dword v{vS+i}, v{vE}, {srd(S_SRC)}, s{[sT0,sT2][i>>1]} offen offset:{(i&1)*2560}")
    c("validity: e < 160000  <=> byte offset < 640000")
    e(f"v_add_u32 v{vE}, s{sT0}, v{vE}")
    e("s_barrier")
    e(f"v_lshlrev_b32 v{vT1}, 22, v0          ; t << 22")
    for i in range(4):
        e(f"s_waitcnt vmcnt({7-i})")
        e(f"v_mul_u32_u24 v{vB+i}, 52429, v{vD+i}")
        e(f"v_lshrrev_b32 v{vB+i}, 21, v{vB+i}")
        e(f"v_lshlrev_b32 v{vT0}, 7, v{vB+i}")
        e(f"v_cmp_gt_u32 vcc, {640000 - i*2560}, v{vE}")
        e(f"s_mov_b64 exec, vcc")
        e(f"ds_add_rtn_u32 v{vR+i}, v{vT0}, v{vOne}")
        e(f"s_mov_b64 exec, -1")
        e(f"v_mul_u32_u24 v{vK}, 40, v{vB+i}")
        e(f"v_sub_u32 v{vD+i}, v{vD+i}, v{vK}       ; k")
        if i: e(f"v_or_b32 v{vD+i}, {i<<6}, v{vD+i}")
        e(f"v_or_b32 v{vD+i}, v{vT1}, v{vD+i}")
    for i in range(4):
        e(f"s_waitcnt vmcnt({3-i})")
        e(f"v_lshl_or_b32 v{vD+i}, v{vS+i}, 8, v{vD+i}    ; rec")
    for i in range(4):
        e(f"s_waitcnt lgkmcnt({3-i})")
        e(f"v_lshlrev_b32 v{vT0}, 7, v{vB+i}")
        e(f"v_lshl_add_u32 v{vT0}, v{vR+i}, 2, v{vT0}")
        e(f"v_cmp_gt_u32 vcc, 31, v{vR+i}")
        e(f"v_mov_b32 v{vK}, {640000 - i*2560}")
        e(f"v_cmp_gt_u32 s[{sT1}:{sT1+1}], v{vK}, v{vE}")
        e(f"s_and_b64 exec, vcc, s[{sT1}:{sT1+1}]")
        e(f"ds_write_b32 v{vT0}, v{vD+i} offset:4")
        e(f"s_mov_b64 exec, -1")
    e("s_waitcnt lgkmcnt(0)")
    e("s_barrier")
    c("copy image (32000 B) -> ws cells[c]")
    e(f"v_lshlrev_b32 v{vT0}, 4, v0")
    e(f"s_mul_i32 s{sT0}, s{sC}, 32000")
    e(f"s_add_u32 s{sT0}, s{sT0}, {CELLS}")
    for i in range(3):
        e(f"ds_read_b128 {vr(4+4*i,4)}, v{vT0} offset:{i*10240}")
    e(f"v_cmp_gt_u32 vcc, {(32000-30720)//16}, v0")
    e(f"s_and_saveexec_b64 s[{sT1}:{sT1+1}], vcc")
    e(f"ds_read_b128 {vr(16,4)}, v{vT0} offset:30720")
    e(f"v_add_u32 v{vT1}, 30720, v{vT0}")
    e("s_waitcnt lgkmcnt(0)")
    e(f"buffer_store_dwordx4 {vr(16,4)}, v{vT1}, {srd(S_WS)}, s{sT0} offen")
    e(f"s_mov_b64 exec, -1")
    e(f"v_add_u32 v{vT1}, 10240, v{vT0}")
    e(f"v_add_u32 v{vK}, 20480, v{vT0}")
    e(f"buffer_store_dwordx4 {vr(4,4)}, v{vT0}, {srd(S_WS)}, s{sT0} offen")
    e(f"buffer_store_dwordx4 {vr(8,4)}, v{vT1}, {srd(S_WS)}, s{sT0} offen")
    e(f"buffer_store_dwordx4 {vr(12,4)}, v{vK}, {srd(S_WS)}, s{sT0} offen")
    lab("L1_end")
    e("s_endpgm")
    return f""".amdhsa_kernel {K1NAME}
  .amdhsa_next_free_vgpr 96
  .amdhsa_next_free_sgpr 48
  .amdhsa_accum_offset 96
  .amdhsa_group_segment_fixed_size 0
  .amdhsa_kernarg_size 88
  .amdhsa_user_sgpr_count 2
  .amdhsa_user_sgpr_kernarg_segment_ptr 1
  .amdhsa_system_sgpr_workgroup_id_x 1
.end_amdhsa_kernel"""
```

```python
import sys, os
sys.path.insert(0, os.path.dirname(os.path.abspath(__file__)))
from g3common import *
import gen3_k1

KNAME = "standalone__cheap_equivariant_egnn__graph_kernel"
TIMING = os.environ.get("TIMING", "")
STOP = os.environ.get("STOP", "")

QT = 0
REC = 65536
DE16 = 126976
BXP = 142336
OWN = 152576
PT = 162816
CTR = 163072
ALLOC = CTR; OVF = CTR + 20; PEND = CTR + 24
PENDB = CTR + 64
LDS_TOTAL = PENDB + 640
CAP_G = 192
NWG = 250

S_H, S_POS, S_EA, S_SRC, S_DST, S_WX, S_O0, S_O1, S_WS, S_Q = [8 + 4 * i for i in range(10)]
sC4, sC5 = 4, 5
sW, sQ, sCT, sMODE, sT0, sT1, sT2, sT3 = range(48, 56)
sEX, sM0, sM1, sM2 = 56, 58, 60, 62
sCN = [64, 65, 66, 67, 68]
sNO, sNT, sCO, sG4B, sL4, sU, sIDX, sNR, sIDX2, sBUF, sK2, sK3, sNODE, sCH, sOWNB, sMASK, sRETRY = range(69, 86)
STAMP0 = 86

vL = 0
vLS, vQD, vTRQ, vTRS, vOD, vODM, vBX = 1, 2, 3, 4, 5, 6, 7
vT = list(range(8, 16))
SEGO = 16; SEG4 = 32; ACC = 48; FACC = 64; QF = 80; SF = 88; OHD = 96; BXF = 100; ID = 104; MP = 112; TE = 120

_st = [0]
def stamp(name):
    if not TIMING: return
    i = _st[0]; _st[0] += 1
    c(f"STAMP {i} {name}")
    e(f"s_memtime s[{sC4}:{sC5}]")
    e("s_waitcnt lgkmcnt(0)")
    e(f"s_mov_b32 s{STAMP0+i}, s{sC4}")
    print("stamp", i, name)
    assert STAMP0 + i < 102
def stamp_flush():
    if not TIMING: return
    e("s_mov_b64 exec, 1")
    e(f"s_lshl_b32 s{sT0}, s2, 4")
    e(f"s_add_u32 s{sT0}, s{sT0}, s{sW}")
    e(f"s_lshl_b32 s{sT0}, s{sT0}, 8")
    e(f"s_add_u32 s{sT0}, s{sT0}, {32<<20}")
    e(f"v_mov_b32 v{vT[1]}, 0")
    for i in range(_st[0]):
        e(f"v_mov_b32 v{vT[0]}, s{STAMP0+i}")
        e(f"buffer_store_dword v{vT[0]}, v{vT[1]}, {srd(S_WS)}, s{sT0} offen offset:{i*4}")

header = []
header.append(f"; @launch kernel={gen3_k1.K1NAME} grid=({gen3_k1.K1_GRID},1,1) block=(640,1,1) lds={gen3_k1.K1_LDS}")
if STOP != "k1":
    header.append(f"; @launch kernel={KNAME} grid=({NWG},1,1) block=(1024,1,1) lds={LDS_TOTAL}")
header.append('.amdgcn_target "amdgcn-amd-amdhsa--gfx950"')
header.append(".text")
for k in (KNAME, gen3_k1.K1NAME):
    header.append(f".globl {k}")
    header.append(f".type {k},@function")

out.append(".p2align 8")
k1_desc = gen3_k1.gen_k1()
out.append(".p2align 8")
lab(KNAME)
e(f"s_cmp_ge_u32 s2, {NWG}")
e("s_cbranch_scc1 L_end2")
for (x, off) in [(S_WS,80),(S_H,0),(S_POS,8),(S_EA,16),(S_SRC,24),(S_DST,32),(S_WX,48),(S_O0,64)]:
    e(f"s_load_dwordx2 s[{x}:{x+1}], s[0:1], {off}")
tid = vT[7]
e(f"v_mov_b32 v{tid}, v0")
e(f"v_lshrrev_b32 v{vT[0]}, 6, v0")
e(f"v_and_b32 v{vL}, 63, v0")
e(f"v_readfirstlane_b32 s{sW}, v{vT[0]}")
for (x, sz) in [(S_H,2560000),(S_POS,60000),(S_EA,320000),(S_SRC,640000),(S_DST,640000),(S_WX,256),(S_O0,2560000),(S_O1,60000),(S_WS,256*1048576),(S_Q,2560000)]:
    e(f"s_mov_b32 s{x+2}, {sz}")
    e(f"s_mov_b32 s{x+3}, 0x20000")
e(f"s_lshr_b32 s{sQ}, s{sW}, 2")
e(f"s_and_b32 s{sCT}, s{sW}, 3")
e(f"s_mov_b32 s{sMODE}, 0")
e(f"s_mov_b32 s{sNODE}, 0")
e(f"s_mov_b32 s{sMASK}, 0x3fff00")
c("zero LIST (t<960: 16B each; t>=960 -> counters region 64B by 4 lanes..)")
Z = 112
for i in range(4): e(f"v_mov_b32 v{Z+i}, 0")
e(f"v_lshlrev_b32 v{vT[0]}, 4, v{tid}")
e(f"v_add_u32 v{vT[1]}, {DE16}, v{vT[0]}")
e(f"v_add_u32 v{vT[2]}, {CTR - 960*16}, v{vT[0]}")
e(f"v_cmp_gt_u32 vcc, 960, v{tid}")
e(f"v_cndmask_b32 v{vT[1]}, v{vT[2]}, v{vT[1]}, vcc")
e(f"v_cmp_gt_u32 vcc, 964, v{tid}")
e("s_mov_b64 exec, vcc")
e(f"ds_write_b128 v{vT[1]}, {vr(Z,4)}")
e("s_mov_b64 exec, -1")
c("record address: (t>>4)*32000 + b*128 + (t&15)*8")
RC = 112
vC = 114
e(f"v_lshrrev_b32 v{vC}, 4, v{tid}")
e(f"v_mul_u32_u24 v{vT[0]}, 32000, v{vC}")
e(f"v_and_b32 v{vT[1]}, 15, v{tid}")
e(f"v_lshl_add_u32 v{vT[0]}, v{vT[1]}, 3, v{vT[0]}")
e(f"s_lshl_b32 s{sT0}, s2, 7")
e("s_waitcnt lgkmcnt(0)")
e(f"s_add_u32 s{S_O1}, s{S_O0}, 2560000")
e(f"s_addc_u32 s{S_O1+1}, s{S_O0+1}, 0")
e(f"s_add_u32 s{S_Q}, s{S_WS}, {QOFF}")
e(f"s_addc_u32 s{S_Q+1}, s{S_WS+1}, 0")
stamp("start")
e(f"v_cmp_gt_u32 vcc, 1008, v{tid}")
e("s_mov_b64 exec, vcc")
e(f"buffer_load_dwordx2 {vr(RC,2)}, v{vT[0]}, {srd(S_WS)}, s{sT0} offen")
e("s_mov_b64 exec, -1")
c("own rows DMA (waves 0..9): rows 4w..4w+3 ; chunk = (l&15) ^ (row&15)")
e(f"s_cmp_ge_u32 s{sW}, 10")
e("s_cbranch_scc1 L_noown")
e(f"v_lshrrev_b32 v{vT[0]}, 4, v{vL}")
e(f"v_and_b32 v{vT[1]}, 15, v{vL}")
e(f"v_xor_b32 v{vT[1]}, v{vT[1]}, v{vT[0]}")
e(f"s_lshl_b32 s{sT0}, s{sCT}, 2")
e(f"v_xor_b32 v{vT[1]}, s{sT0}, v{vT[1]}")
e(f"v_lshlrev_b32 v{vT[1]}, 4, v{vT[1]}")
e(f"v_lshl_add_u32 v{vT[1]}, v{vT[0]}, 8, v{vT[1]}")
e(f"s_mul_i32 s{sT0}, s2, {40*256}")
e(f"s_lshl_b32 s{sT1}, s{sW}, 10")
e(f"s_add_u32 s{sT0}, s{sT0}, s{sT1}")
e(f"s_add_u32 m0, s{sT1}, {OWN}")
e("s_nop 0")
e(f"buffer_load_dwordx4 v{vT[1]}, {srd(S_H)}, s{sT0} offen lds")
e("s_branch L_own_done")
lab("L_noown")
c("PT raw DMA (wave 10): 60 dwords")
e(f"s_cmp_eq_u32 s{sW}, 10")
e("s_cbranch_scc0 L_own_done")
e(f"v_lshlrev_b32 v{vT[1]}, 2, v{vL}")
e(f"s_mul_i32 s{sT0}, s2, 240")
e(f"s_mov_b32 m0, {PT}")
e(f"v_cmp_gt_u32 vcc, 60, v{vL}")
e("s_mov_b64 exec, vcc")
e(f"buffer_load_dword v{vT[1]}, {srd(S_POS)}, s{sT0} offen lds")
e("s_mov_b64 exec, -1")
lab("L_own_done")
c("weight frags: q<2 -> WH1F, else W1F ; slice ct -> v16..47")
WF = 16
e(f"s_cmp_lt_u32 s{sQ}, 2")
e(f"s_cselect_b32 s{sT0}, 32768, 0")
e(f"s_add_u32 s{sT0}, s{sT0}, {WFOFF}")
e(f"s_lshl_b32 s{sT1}, s{sCT}, 13")
e(f"s_add_u32 s{sT0}, s{sT0}, s{sT1}")
e(f"s_add_u32 s{sT1}, s{sT0}, 4096")
e(f"v_lshlrev_b32 v{vT[0]}, 4, v{vL}")
for s_ in range(8):
    e(f"buffer_load_dwordx4 {vr(WF+4*s_,4)}, v{vT[0]}, {srd(S_WS)}, s{[sT0,sT1][s_>>2]} offen offset:{(s_%4)*1024}")
c("K1B -> BXF lanes >= 32")
e(f"v_and_b32 v{vT[1]}, 31, v{vL}")
e(f"v_lshlrev_b32 v{vT[1]}, 4, v{vT[1]}")
e(f"s_lshl_b32 s{sT0}, s{sCT}, 9")
e(f"s_add_u32 s{sT0}, s{sT0}, {WFOFF+98304}")
e("s_mov_b32 exec_lo, 0")
e(f"buffer_load_dwordx4 {vr(BXF,4)}, v{vT[1]}, {srd(S_WS)}, s{sT0} offen")
e("s_mov_b32 exec_lo, -1")
c("touch WH2F for L2 warmup: wave w lanes<16: line (w*16 + l)*128")
e(f"s_lshl_b32 s{sT0}, s{sW}, 11")
e(f"s_add_u32 s{sT0}, s{sT0}, {WFOFF+65536}")
e(f"v_lshlrev_b32 v{vT[2]}, 7, v{vL}")
e("s_mov_b64 exec, 0xffff")
e(f"buffer_load_dword v127, v{vT[2]}, {srd(S_WS)}, s{sT0} offen")
e("s_mov_b64 exec, -1")
NLATE = 10

c("lane constants")
e(f"v_and_b32 v{vT[2]}, 31, v{vL}              ; n / e")
e(f"v_lshrrev_b32 v{vT[3]}, 5, v{vL}           ; hi")
c("vLS = DE16 + 8 + (l>>2)*16 ; vQD = ct*64 + (l&3)*16")
e(f"v_lshrrev_b32 v{vT[4]}, 2, v{vL}")
e(f"v_lshlrev_b32 v{vLS}, 4, v{vT[4]}")
e(f"v_add_u32 v{vLS}, {DE16+8}, v{vLS}")
e(f"v_and_b32 v{vT[5]}, 3, v{vL}")
e(f"v_lshlrev_b32 v{vQD}, 4, v{vT[5]}")
e(f"s_lshl_b32 s{sT0}, s{sCT}, 6")
e(f"v_add_u32 v{vQD}, s{sT0}, v{vQD}")
c("vTRQ = QT + w*4096 + (8hi + r)*64 + colhalf*32 + c4*8 ; vTRS = REC + (4hi + r)*64 + colhalf*32 + c4*8")
e(f"v_bfe_u32 v{vT[4]}, v{vL}, 2, 2            ; r")
e(f"v_bfe_u32 v{vT[6]}, v{vL}, 4, 1            ; colhalf")
e(f"v_lshlrev_b32 v{vT[6]}, 5, v{vT[6]}")
e(f"v_lshl_add_u32 v{vT[6]}, v{vT[5]}, 3, v{vT[6]}   ; colhalf*32 + c4*8")
e(f"v_lshl_add_u32 v{vTRQ}, v{vT[3]}, 3, v{vT[4]}")
e(f"v_lshl_add_u32 v{vTRQ}, v{vTRQ}, 6, v{vT[6]}")
e(f"s_lshl_b32 s{sT0}, s{sW}, 12")
e(f"v_add_u32 v{vTRQ}, s{sT0}, v{vTRQ}")
e(f"v_lshl_add_u32 v{vTRS}, v{vT[3]}, 2, v{vT[4]}")
e(f"v_lshl_add_u32 v{vTRS}, v{vTRS}, 6, v{vT[6]}")
e(f"v_add_u32 v{vTRS}, {REC}, v{vTRS}")
c("OHD: lanes<32: REC + e*64 (mult 64); lanes>=32: DE16 + e*16 (mult 16)")
e(f"v_cmp_gt_u32 vcc, 32, v{vL}")
e(f"v_lshlrev_b32 v{vT[4]}, 6, v{vT[2]}")
e(f"v_add_u32 v{vT[4]}, {REC}, v{vT[4]}")
e(f"v_lshlrev_b32 v{vT[5]}, 4, v{vT[2]}")
e(f"v_add_u32 v{vT[5]}, {DE16}, v{vT[5]}")
e(f"v_cndmask_b32 v{vOD}, v{vT[5]}, v{vT[4]}, vcc")
e(f"v_mov_b32 v{vT[4]}, 64")
e(f"v_mov_b32 v{vT[5]}, 16")
e(f"v_cndmask_b32 v{vODM}, v{vT[5]}, v{vT[4]}, vcc")
c("vBX = BXP + ct*512 + n*16")
e(f"v_lshlrev_b32 v{vBX}, 4, v{vT[2]}")
e(f"s_lshl_b32 s{sT0}, s{sCT}, 9")
e(f"s_add_u32 s{sT0}, s{sT0}, {BXP}")
e(f"v_add_u32 v{vBX}, s{sT0}, v{vBX}")
e(f"s_mul_i32 s{sOWNB}, s{sQ}, {CAP_G}")
c("stage-1 slot constants")
vS0, vS1, vCnt, vOne = 115, 116, 117, 118
e(f"v_and_b32 v{vS1}, 15, v{tid}")
e(f"v_lshlrev_b32 v{vS1}, 1, v{vS1}")
e(f"v_add_u32 v{vS0}, -1, v{vS1}")
e(f"v_mov_b32 v{vOne}, 1")
e("s_waitcnt lgkmcnt(0)")
e("s_barrier")
e(f"s_waitcnt vmcnt({NLATE+1})")
c("NOTE: waves 11..15 have no own/PT dma -> vmcnt(NLATE+1) insufficient for them; use NLATE for those")
e(f"s_cmp_lt_u32 s{sW}, 11")
e("s_cbranch_scc1 L_rec_ok")
e(f"s_waitcnt vmcnt({NLATE})")
lab("L_rec_ok")
stamp("records landed")
c("stage 1 (fast)")
e(f"v_mov_b32_dpp v{vCnt}, v{RC} row_newbcast:0 row_mask:0xf bank_mask:0xf")
vG0, vG1, vR0, vR1, vA0, vA1 = 119, 120, 121, 122, 123, 124
e(f"v_bfe_u32 v{vG0}, v{RC}, 3, 3")
e(f"v_bfe_u32 v{vG1}, v{RC+1}, 3, 3")
e(f"s_mov_b32 s{sT0}, {ALLOC}")
e(f"v_lshl_add_u32 v{vA0}, v{vG0}, 2, s{sT0}")
e(f"v_lshl_add_u32 v{vA1}, v{vG1}, 2, s{sT0}")
e(f"v_cmp_lt_u32 {sp(sM0)}, v{vS0}, v{vCnt}")
e(f"v_cmp_lt_u32 {sp(sM1)}, v{vS1}, v{vCnt}")
e(f"v_cmp_lt_u32 vcc, 31, v{vCnt}")
e(f"s_mov_b64 exec, {sp(sM0)}")
e(f"ds_add_rtn_u32 v{vR0}, v{vA0}, v{vOne}")
e(f"s_mov_b64 exec, {sp(sM1)}")
e(f"ds_add_rtn_u32 v{vR1}, v{vA1}, v{vOne}")
e("s_mov_b64 exec, -1")
e("s_cbranch_vccz L_s1_noovf")
e(f"v_mov_b32 v{vA0}, {OVF}")
e(f"ds_write_b32 v{vA0}, v{vOne}")
lab("L_s1_noovf")
e(f"s_mov_b32 s{sT0}, {DE16+8}")
e(f"v_mul_u32_u24 v{vG0}, {CAP_G}, v{vG0}")
e(f"v_mul_u32_u24 v{vG1}, {CAP_G}, v{vG1}")
def s1_place(vR, vG, vA, rec, msk, tag):
    e(f"v_cmp_gt_u32 vcc, {CAP_G}, v{vR}")
    e(f"v_add_u32 v{vG}, v{vG}, v{vR}")
    e(f"v_lshl_add_u32 v{vA}, v{vG}, 4, s{sT0}")
    e(f"s_and_b64 exec, {sp(msk)}, vcc")
    e(f"ds_write2_b32 v{vA}, v{rec}, v{vC} offset0:0 offset1:1")
    e(f"s_andn2_b64 exec, {sp(msk)}, vcc")
    e(f"s_cbranch_execz L_s1_ok{tag}")
    e(f"v_mov_b32 v{vA}, {OVF}")
    e(f"ds_write_b32 v{vA}, v{vOne}")
    lab(f"L_s1_ok{tag}")
    e("s_mov_b64 exec, -1")
e("s_waitcnt lgkmcnt(1)")
s1_place(vR0, vG0, vA0, RC, sM0, "a")
e("s_waitcnt lgkmcnt(0)")
s1_place(vR1, vG1, vA1, RC+1, sM1, "b")
e(f"s_waitcnt vmcnt(0) lgkmcnt(0)")
e("s_barrier")
stamp("BA")

lab("L_stage2")
c("counts")
e(f"v_mov_b32 v{vT[0]}, {ALLOC}")
e(f"ds_read_b128 {vr(104,4)}, v{vT[0]}")
e(f"ds_read_b64 {vr(108,2)}, v{vT[0]} offset:16")
c("own list entry (idx = tid)")
e(f"s_lshl_b32 s{sT0}, s{sW}, 6")
e(f"v_add_u32 v{tid}, s{sT0}, v{vL}")
e(f"v_lshlrev_b32 v{vT[1]}, 4, v{tid}")
e(f"v_add_u32 v{vT[1]}, {DE16}, v{vT[1]}")
pRC, pC = 112, 113
e(f"ds_read_b64 {vr(pRC,2)}, v{vT[1]} offset:8")
c("zero own REC chunk (4 KB per wave, waves<15)")
e(f"v_mov_b32 v116, 0"); e(f"v_mov_b32 v117, 0"); e(f"v_mov_b32 v118, 0"); e(f"v_mov_b32 v119, 0")
e(f"s_lshl_b32 s{sT0}, s{sW}, 12")
e(f"s_add_u32 s{sT0}, s{sT0}, {REC}")
e(f"v_lshlrev_b32 v{vT[2]}, 4, v{vL}")
e(f"v_add_u32 v{vT[2]}, s{sT0}, v{vT[2]}")
e(f"s_cmp_eq_u32 s{sW}, 15")
e("s_cbranch_scc1 L_nozero")
for i in range(4):
    e(f"ds_write_b128 v{vT[2]}, v[116:119] offset:{i*1024}")
lab("L_nozero")
e("s_waitcnt lgkmcnt(0)" )
for g in range(5):
    e(f"v_readfirstlane_b32 s{sCN[g]}, v{104+g}")
e(f"v_readfirstlane_b32 s{sT3}, v109           ; OVF")
e("s_nop 3")
e(f"s_cmp_eq_u32 s{sMODE}, 0")
e("s_cbranch_scc0 L_s2_noovfchk")
e(f"s_cmp_lg_u32 s{sT3}, 0")
e("s_cbranch_scc1 L_slow_init")
lab("L_s2_noovfchk")
for g in range(5):
    e(f"s_min_u32 s{sCN[g]}, s{sCN[g]}, {CAP_G}")
c("stage 2 part 1: valid = slot < cnt[w/3]; issue pos/ea loads")
e(f"s_mul_i32 s{sT0}, s{sW}, 43")
e(f"s_lshr_b32 s{sT0}, s{sT0}, 7            ; g = w/3")
e(f"s_mul_i32 s{sT1}, s{sT0}, {CAP_G}")
e(f"s_mov_b32 s{sT2}, 0")
for g in range(5):
    e(f"s_cmp_eq_u32 s{sT0}, {g}")
    e(f"s_cselect_b32 s{sT2}, s{sCN[g]}, s{sT2}")
e(f"s_add_u32 s{sT2}, s{sT2}, s{sT1}")
e(f"v_cmp_gt_u32 {sp(sM2)}, s{sT2}, v{tid}")
pS, pK, pE, pPS, pEA, pPD = 114, 115, 116, 118, 117, 120
pX = [123, 124, 125, 126, 127, 96, 97, 98, 99]
e(f"v_bfe_u32 v{pS}, v{pRC}, 8, 14")
e(f"v_and_b32 v{pK}, 63, v{pRC}")
e(f"v_mul_u32_u24 v{pX[0]}, 6, v{pS}")
e(f"v_and_b32 v{pX[0]}, -4, v{pX[0]}")
e(f"v_bfe_u32 v{pX[1]}, v{pRC}, 6, 2")
e(f"v_mul_u32_u24 v{pE}, 2560, v{pC}")
e(f"v_mad_u32_u24 v{pE}, v{pX[1]}, s{sT1}, v{pE}" if False else f"v_mul_u32_u24 v{pX[1]}, 640, v{pX[1]}")
e(f"v_lshrrev_b32 v{pX[2]}, 22, v{pRC}")
e(f"v_add3_u32 v{pE}, v{pE}, v{pX[1]}, v{pX[2]}")
e(f"v_lshlrev_b32 v{pE}, 1, v{pE}")
e(f"s_mov_b64 exec, {sp(sM2)}")
e(f"buffer_load_dwordx2 {vr(pPS,2)}, v{pX[0]}, {srd(S_POS)}, 0 offen")
e(f"buffer_load_ushort v{pEA}, v{pE}, {srd(S_EA)}, 0 offen")
e(f"v_mul_u32_u24 v{pX[3]}, 6, v{pK}")
e(f"v_add_u32 v{pX[3]}, {PT}, v{pX[3]}")
for k in range(3):
    e(f"ds_read_u16 v{pPD+k}, v{pX[3]} offset:{2*k}")
e("s_mov_b64 exec, -1")
c("schedule")
e(f"s_mov_b32 s{sCO}, s{sCN[0]}")
for g in range(1, 4):
    e(f"s_cmp_eq_u32 s{sQ}, {g}")
    e(f"s_cselect_b32 s{sCO}, s{sCN[g]}, s{sCO}")
e(f"s_add_u32 s{sNO}, s{sCO}, 31")
e(f"s_lshr_b32 s{sNO}, s{sNO}, 5")
e(f"s_add_u32 s{sT0}, s{sCN[4]}, 3")
e(f"s_lshr_b32 s{sT0}, s{sT0}, 2")
e(f"s_add_u32 s{sT0}, s{sT0}, 7")
e(f"s_and_b32 s{sT0}, s{sT0}, -8             ; part")
e(f"s_mul_i32 s{sT1}, s{sT0}, s{sQ}")
e(f"s_min_u32 s{sT1}, s{sT1}, s{sCN[4]}       ; st")
e(f"s_sub_u32 s{sL4}, s{sCN[4]}, s{sT1}")
e(f"s_min_u32 s{sL4}, s{sL4}, s{sT0}          ; len")
e(f"s_add_u32 s{sG4B}, s{sT1}, {4*CAP_G}")
e(f"s_add_u32 s{sT0}, s{sL4}, 31")
e(f"s_lshr_b32 s{sT0}, s{sT0}, 5")
e(f"s_add_u32 s{sNT}, s{sNO}, s{sT0}")
def tile_params(u, idx, nr=None):
    us = f"s{u}" if not isinstance(u, str) else u
    e(f"s_sub_u32 s{sT0}, {us}, s{sNO}")
    e(f"s_cmp_lt_u32 {us}, s{sNO}")
    e(f"s_cselect_b32 s{sT0}, {us}, s{sT0}")
    e(f"s_cselect_b32 s{idx}, s{sOWNB}, s{sG4B}")
    if nr is not None:
        e(f"s_cselect_b32 s{nr}, s{sCO}, s{sL4}")
    e(f"s_lshl_b32 s{sT0}, s{sT0}, 5")
    e(f"s_add_u32 s{idx}, s{idx}, s{sT0}")
    if nr is not None:
        e(f"s_sub_u32 s{nr}, s{nr}, s{sT0}")
        e(f"s_min_u32 s{nr}, s{nr}, 32")
def dma_lookup(idx):
    e(f"s_lshl_b32 s{sT0}, s{idx}, 4")
    e(f"v_add_u32 v{vT[0]}, s{sT0}, v{vLS}")
    e(f"ds_read2_b32 {vr(vT[2],2)}, v{vT[0]} offset0:0 offset1:64")
def dma_issue(buf):
    e(f"v_and_or_b32 v{vT[2]}, v{vT[2]}, s{sMASK}, v{vQD}")
    e(f"v_and_or_b32 v{vT[3]}, v{vT[3]}, s{sMASK}, v{vQD}")
    e(f"s_mov_b32 m0, s{buf}")
    e(f"s_nop 0")
    e(f"buffer_load_dwordx4 v{vT[2]}, {srd(S_Q)}, 0 offen lds")
    e(f"s_add_u32 m0, s{buf}, 1024")
    e(f"s_nop 0")
    e(f"buffer_load_dwordx4 v{vT[3]}, {srd(S_Q)}, 0 offen lds")
e(f"s_lshl_b32 s{sBUF}, s{sW}, 12")
e(f"s_cmp_eq_u32 s{sNT}, 0")
e("s_cbranch_scc1 L_dma0_done")
tile_params("0", sIDX2)
dma_lookup(sIDX2)
e("s_waitcnt lgkmcnt(0)")
dma_issue(sBUF)
e(f"s_cmp_lt_u32 s{sNT}, 2")
e("s_cbranch_scc1 L_dma0_done")
tile_params("1", sIDX2)
dma_lookup(sIDX2)
e(f"s_add_u32 s{sT2}, s{sBUF}, 2048")
e("s_waitcnt lgkmcnt(0)")
dma_issue(sT2)
lab("L_dma0_done")
stamp("dma0 issued")
c("node task (once)")
e(f"s_cmp_eq_u32 s{sNODE}, 0")
e("s_cbranch_scc0 L_node_done")
e(f"s_mov_b32 s{sNODE}, 1")
def rowreg(s_): return (ACC + 4*s_) if s_ < 4 else (QF + 4*(s_-4))
c("row read address: OWN + row*256 + ((hi ^ (row&15))<<4) ^ (s<<5); row = n (q even) or min(32+n,39) (q odd)")
e(f"v_and_b32 v{vT[4]}, 31, v{vL}")
e(f"v_lshrrev_b32 v{vT[5]}, 5, v{vL}")
e(f"v_add_u32 v{vT[6]}, 32, v{vT[4]}")
e(f"v_min_u32 v{vT[6]}, 39, v{vT[6]}")
e(f"s_bitcmp1_b32 s{sQ}, 0")
e(f"s_cselect_b64 vcc, -1, 0")
e(f"v_cndmask_b32 v{vT[6]}, v{vT[4]}, v{vT[6]}, vcc      ; row")
e(f"v_and_b32 v{vT[0]}, 15, v{vT[6]}")
e(f"v_xor_b32 v{vT[0]}, v{vT[0]}, v{vT[5]}")
e(f"v_lshlrev_b32 v{vT[0]}, 4, v{vT[0]}")
e(f"v_lshl_add_u32 v{vT[0]}, v{vT[6]}, 8, v{vT[0]}")
e(f"v_add_u32 v{vT[0]}, {OWN}, v{vT[0]}")
for s_ in range(8):
    e(f"v_xor_b32 v{vT[6]}, {s_<<5}, v{vT[0]}")
    e(f"ds_read_b128 {vr(rowreg(s_),4)}, v{vT[6]}")
e(f"s_cmp_eq_u32 s{sQ}, 0")
e("s_cbranch_scc0 L_node_nt")
for s_ in range(8):
    e(f"s_waitcnt lgkmcnt({7-s_})")
    mfma(FACC, WF+4*s_, rowreg(s_), "0" if s_ == 0 else vr(FACC,16))
e("s_branch L_node_fin")
lab("L_node_nt")
for s_ in range(8):
    e(f"s_waitcnt lgkmcnt({7-s_})")
    mfma(FACC, rowreg(s_), WF+4*s_, "0" if s_ == 0 else vr(FACC,16))
e(f"s_cmp_eq_u32 s{sQ}, 1")
e("s_cbranch_scc1 L_node_fin")
c("P' write: BXP + (g*4+ct)*512 + n*16 + hi*8 ; q2: g=0..3 ; q3: g=4")
e(f"v_lshl_add_u32 v{vT[6]}, v{vT[5]}, 3, v{vBX}")
e(f"s_mov_b32 s{sK2}, 0x{NLOG2E:08x}")
e("s_nop 7"); e("s_nop 3")
def pwrite(r0, g):
    for i in range(4):
        e(f"v_mul_f32 v{r0+i}, s{sK2}, v{r0+i}")
    e(f"v_cvt_pk_bf16_f32 v{r0}, v{r0}, v{r0+1}")
    e(f"v_cvt_pk_bf16_f32 v{r0+1}, v{r0+2}, v{r0+3}")
    e(f"ds_write_b64 v{vT[6]}, {vr(r0,2)} offset:{g*2048}")
e(f"s_cmp_eq_u32 s{sQ}, 3")
e("s_cbranch_scc1 L_node_g4")
for g in range(4):
    pwrite(FACC+4*g, g)
e("s_branch L_node_fin")
lab("L_node_g4")
pwrite(FACC, 4)
lab("L_node_fin")
e("s_nop 7")
for r in range(32):
    e(f"v_mov_b32 v{SEGO+r}, 0")
lab("L_node_done")
stamp("node done")
c("stage 2 part 2")
e("s_waitcnt vmcnt(0) lgkmcnt(0)")
stamp("pos landed")
e(f"s_mov_b64 exec, {sp(sM2)}")
e("s_cbranch_execz L_s2_done")
e(f"v_and_b32 v{pX[0]}, 1, v{pS}")
e(f"v_lshlrev_b32 v{pX[0]}, 4, v{pX[0]}        ; shift")
e(f"v_alignbit_b32 v{pX[1]}, v{pPS+1}, v{pPS}, v{pX[0]}     ; x | y<<16")
e(f"v_lshrrev_b32 v{pX[2]}, v{pX[0]}, v{pPS+1}              ; z (low 16)")
e(f"v_lshlrev_b32 v{pPS}, 16, v{pX[1]}")
e(f"v_and_b32 v{pPS+1}, 0xffff0000, v{pX[1]}")
e(f"v_lshlrev_b32 v{pX[2]}, 16, v{pX[2]}")
for k in range(3):
    e(f"v_lshlrev_b32 v{pPD+k}, 16, v{pPD+k}")
e(f"v_sub_f32 v{pPD}, v{pPD}, v{pPS}")
e(f"v_sub_f32 v{pPD+1}, v{pPD+1}, v{pPS+1}")
e(f"v_sub_f32 v{pPD+2}, v{pPD+2}, v{pX[2]}")
e(f"v_cvt_pk_bf16_f32 v{pX[0]}, v{pPD}, v{pPD+1}")
e(f"v_cvt_pk_bf16_f32 v{pX[1]}, v{pPD+2}, v{pPD+2}     ; dz")
e(f"v_lshlrev_b32 v{pPD}, 16, v{pX[0]}")
e(f"v_and_b32 v{pPD+1}, 0xffff0000, v{pX[0]}")
e(f"v_lshlrev_b32 v{pPD+2}, 16, v{pX[1]}")
for k in range(3):
    e(f"v_mul_f32 v{pPD+k}, v{pPD+k}, v{pPD+k}")
e(f"v_cvt_pk_bf16_f32 v{pX[2]}, v{pPD}, v{pPD+1}")
e(f"v_cvt_pk_bf16_f32 v{pX[3]}, v{pPD+2}, v{pPD+2}")
e(f"v_lshlrev_b32 v{pPD}, 16, v{pX[2]}")
e(f"v_and_b32 v{pPD+1}, 0xffff0000, v{pX[2]}")
e(f"v_lshlrev_b32 v{pPD+2}, 16, v{pX[3]}")
e(f"v_add_f32 v{pPD}, v{pPD}, v{pPD+1}")
e(f"v_add_f32 v{pPD}, v{pPD}, v{pPD+2}")
e(f"v_cvt_pk_bf16_f32 v{pX[2]}, v{pPD}, v{pPD}")
e(f"v_and_b32 v{pX[2]}, 0xffff, v{pX[2]}")
e(f"v_and_b32 v{pX[6]}, 7, v{pK}")
e(f"v_lshlrev_b32 v{pX[6]}, 1, v{pX[6]}")
e(f"v_lshl_add_u32 v{pX[6]}, v{tid}, 6, v{pX[6]}")
e(f"v_add_u32 v{pX[6]}, {REC}, v{pX[6]}")
e(f"v_mov_b32 v{pX[7]}, 0x3f80")
e(f"ds_write_b16 v{pX[6]}, v{pX[7]}")
e(f"ds_write_b16 v{pX[6]}, v{pX[0]} offset:16")
e(f"ds_write_b16_d16_hi v{pX[6]}, v{pX[0]} offset:32")
e(f"ds_write_b16 v{pX[6]}, v{pX[1]} offset:48")
DW = 124
e(f"v_lshl_or_b32 v{DW}, v{pEA}, 16, v{pX[2]}           ; d2 | ea<<16")
e(f"v_mov_b32 v{DW+1}, v{DW}")
e(f"v_and_b32 v{DW+2}, s{sMASK}, v{pRC}")
e(f"v_mov_b32 v{DW+3}, 0")
e(f"v_lshlrev_b32 v{pX[5]}, 4, v{tid}")
e(f"v_add_u32 v{pX[5]}, {DE16}, v{pX[5]}")
e(f"ds_write_b128 v{pX[5]}, {vr(DW,4)}")
lab("L_s2_done")
e("s_mov_b64 exec, -1")
c("ID constants: lane (m,hi): step s elem i = (m == 16s + 8hi + i)")
e(f"v_and_b32 v{vT[4]}, 31, v{vL}")
e(f"v_lshrrev_b32 v{vT[5]}, 5, v{vL}")
e(f"v_lshlrev_b32 v{vT[5]}, 3, v{vT[5]}")
e(f"v_sub_u32 v{vT[4]}, v{vT[4]}, v{vT[5]}        ; x = m - 8hi")
e(f"v_mov_b32 v{vT[5]}, 0x3f80")
e(f"v_mov_b32 v{vT[6]}, 0x3f800000")
for s_ in range(2):
    for r in range(4):
        x0 = 16*s_ + 2*r
        e(f"v_cmp_eq_u32 vcc, {x0}, v{vT[4]}")
        e(f"v_cndmask_b32 v{ID+4*s_+r}, 0, v{vT[5]}, vcc")
        e(f"v_cmp_eq_u32 vcc, {x0+1}, v{vT[4]}")
        e(f"v_cndmask_b32 v{ID+4*s_+r}, v{ID+4*s_+r}, v{vT[6]}, vcc")
c("own-group BXF (lanes<32)")
e(f"s_lshl_b32 s{sT0}, s{sQ}, 11")
e(f"v_add_u32 v{vT[4]}, s{sT0}, v{vBX}")
e("s_waitcnt lgkmcnt(0)")
e("s_barrier          ; BB")
stamp("BB")
e("s_mov_b32 exec_hi, 0")
e(f"ds_read_b128 {vr(BXF,4)}, v{vT[4]}")
e("s_mov_b32 exec_hi, -1")
e(f"s_mov_b32 s{sU}, 0")
c("make vTRQ point at buffer 0")
e(f"v_and_b32 v{vTRQ}, {0xffffffff ^ 2048:#x}, v{vTRQ}")

def tile_body(SEG, tag):
    tile_params(sU, sIDX, sNR)
    c("lookup for tile u+2")
    e(f"s_add_u32 s{sT2}, s{sU}, 2")
    e(f"s_cmp_lt_u32 s{sT2}, s{sNT}")
    e(f"s_cselect_b32 s{sK3}, 1, 0")
    e(f"s_cbranch_scc0 L_nolk{tag}")
    tile_params(sT2, sIDX2)
    dma_lookup(sIDX2)
    lab(f"L_nolk{tag}")
    e(f"v_mad_u32_u24 v{vT[1]}, s{sIDX}, v{vODM}, v{vOD}")
    e(f"ds_read_b128 {vr(OHD,4)}, v{vT[1]}")
    e(f"s_lshl_b32 s{sT0}, s{sIDX}, 6")
    e(f"v_add_u32 v{vT[4]}, s{sT0}, v{vTRS}")
    c("wait for this tile's Q")
    e(f"s_add_u32 s{sT2}, s{sU}, 1")
    e(f"s_cmp_lt_u32 s{sT2}, s{sNT}")
    e(f"s_cbranch_scc1 L_w2{tag}")
    e("s_waitcnt vmcnt(0)")
    e(f"s_branch L_wd{tag}")
    lab(f"L_w2{tag}")
    e("s_waitcnt vmcnt(2)")
    lab(f"L_wd{tag}")
    e(f"ds_read_b64_tr_b16 {vr(QF,2)}, v{vTRQ}")
    e(f"ds_read_b64_tr_b16 {vr(QF+2,2)}, v{vTRQ} offset:256")
    e(f"ds_read_b64_tr_b16 {vr(QF+4,2)}, v{vTRQ} offset:1024")
    e(f"ds_read_b64_tr_b16 {vr(QF+6,2)}, v{vTRQ} offset:1280")
    e(f"ds_read_b64_tr_b16 {vr(SF,2)}, v{vT[4]}")
    e(f"ds_read_b64_tr_b16 {vr(SF+2,2)}, v{vT[4]} offset:512")
    e(f"ds_read_b64_tr_b16 {vr(SF+4,2)}, v{vT[4]} offset:1024")
    e(f"ds_read_b64_tr_b16 {vr(SF+6,2)}, v{vT[4]} offset:1536")
    e("s_waitcnt lgkmcnt(8)")
    mfma(ACC, OHD, BXF, "0")
    e("s_waitcnt lgkmcnt(6)")
    mfma(ACC, ID, QF, vr(ACC,16))
    e("s_waitcnt lgkmcnt(4)")
    mfma(ACC, ID+4, QF+4, vr(ACC,16))
    e(f"s_cmp_eq_u32 s{sK3}, 0")
    e(f"s_cbranch_scc1 L_nodma{tag}")
    dma_issue(sBUF)
    lab(f"L_nodma{tag}")
    e(f"s_xor_b32 s{sBUF}, s{sBUF}, 2048")
    e(f"v_xor_b32 v{vTRQ}, 2048, v{vTRQ}")
    e("s_nop 7")
    e("s_nop 2")
    for bb in range(4):
        if bb > 0:
            e(f"s_cmp_le_u32 s{sNR}, {8*bb}")
            e(f"s_cbranch_scc1 L_skip{tag}{bb}")
        a = ACC + 4*bb
        t = TE + 4*(bb & 1)
        for i in range(4): e(f"v_exp_f32 v{t+i}, v{a+i}")
        for i in range(4): e(f"v_add_f32 v{t+i}, 1.0, v{t+i}")
        for i in range(4): e(f"v_rcp_f32 v{t+i}, v{t+i}")
        for i in range(4): e(f"v_mul_f32 v{t+i}, v{a+i}, v{t+i}")
        e(f"v_cvt_pk_bf16_f32 v{MP+2*bb}, v{t}, v{t+1}")
        e(f"v_cvt_pk_bf16_f32 v{MP+2*bb+1}, v{t+2}, v{t+3}")
    e(f"s_branch L_blk{tag}")
    for bb in range(1, 4):
        lab(f"L_skip{tag}{bb}")
        e(f"v_mov_b32 v{MP+2*bb}, 0")
        e(f"v_mov_b32 v{MP+2*bb+1}, 0")
    lab(f"L_blk{tag}")
    e("s_waitcnt lgkmcnt(0)")
    e("s_nop 1")
    mfma(SEG, SF, MP, vr(SEG,16))
    mfma(SEG, SF+4, MP+4, vr(SEG,16))
    e(f"s_add_u32 s{sU}, s{sU}, 1")

e(f"s_cmp_eq_u32 s{sNO}, 0")
e("s_cbranch_scc1 L_own_end")
lab("L_own_loop")
tile_body(SEGO, "o")
e(f"s_cmp_lt_u32 s{sU}, s{sNO}")
e("s_cbranch_scc1 L_own_loop")
lab("L_own_end")
stamp("own tiles done")
e(f"s_cmp_ge_u32 s{sU}, s{sNT}")
e("s_cbranch_scc1 L_tiles_done")
e(f"v_add_u32 v{vT[4]}, {4*2048}, v{vBX}")
e("s_mov_b32 exec_hi, 0")
e(f"ds_read_b128 {vr(BXF,4)}, v{vT[4]}")
e("s_mov_b32 exec_hi, -1")
lab("L_g4_loop")
tile_body(SEG4, "p")
e(f"s_cmp_lt_u32 s{sU}, s{sNT}")
e("s_cbranch_scc1 L_g4_loop")
lab("L_tiles_done")
stamp("tiles done")
e(f"s_cmp_eq_u32 s{sMODE}, 0")
e("s_cbranch_scc0 L_slow_next")

lab("L_final")
WFL = 80
ROW = 16
HRES = 112
vN = vT[1]; vHI = vT[2]; vOFF = vT[3]; vRD = vT[4]
e(f"v_and_b32 v{vN}, 31, v{vL}")
e(f"v_lshrrev_b32 v{vHI}, 5, v{vL}")
c("late frags: q<2: WH2F slice ct ; q>=2: wx frags")
e(f"s_cmp_ge_u32 s{sQ}, 2")
e("s_cbranch_scc1 L_f_wx")
e(f"s_lshl_b32 s{sT0}, s{sCT}, 13")
e(f"s_add_u32 s{sT0}, s{sT0}, {WFOFF+65536}")
e(f"s_add_u32 s{sT1}, s{sT0}, 4096")
e(f"v_lshlrev_b32 v{vT[0]}, 4, v{vL}")
for s_ in range(8):
    e(f"buffer_load_dwordx4 {vr(WFL+4*s_,4)}, v{vT[0]}, {srd(S_WS)}, s{[sT0,sT1][s_>>2]} offen offset:{(s_%4)*1024}")
e("s_branch L_f_flush")
lab("L_f_wx")
e(f"v_lshlrev_b32 v{vT[0]}, 4, v{vHI}")
for s_ in range(8):
    e(f"buffer_load_dwordx4 {vr(WFL+4*s_,4)}, v{vT[0]}, {srd(S_WX)}, 0 offen offset:{s_*32}")
lab("L_f_flush")
c("flush: addr a = QT + w*4096 + hi*256 + (((n>>3) ^ (hi | ((q&1)<<1)))<<4) + (n&7)*2 ; b = a ^ 32")
e(f"s_and_b32 s{sT0}, s{sQ}, 1")
e(f"s_lshl_b32 s{sT0}, s{sT0}, 1")
e(f"v_or_b32 v{vT[5]}, s{sT0}, v{vHI}")
e(f"v_lshrrev_b32 v{vT[6]}, 3, v{vN}")
e(f"v_xor_b32 v{vT[5]}, v{vT[5]}, v{vT[6]}")
e(f"v_lshlrev_b32 v{vT[5]}, 4, v{vT[5]}")
e(f"v_lshl_add_u32 v{vT[5]}, v{vHI}, 8, v{vT[5]}")
e(f"v_and_b32 v{vT[6]}, 7, v{vN}")
e(f"v_lshl_add_u32 v{vT[5]}, v{vT[6]}, 1, v{vT[5]}")
e(f"s_lshl_b32 s{sT0}, s{sW}, 12")
e(f"v_add_u32 v{vT[5]}, s{sT0}, v{vT[5]}")
e(f"v_xor_b32 v{vT[6]}, 32, v{vT[5]}")
e(f"s_mov_b32 s{sT1}, 0x{NLN2:08x}")
e("s_nop 7")
def flush(SEG, which):
    for r in range(4):
        e(f"v_mul_f32 v{SEG+r}, s{sT1}, v{SEG+r}")
    for p in range(8):
        e(f"v_cvt_pk_bf16_f32 v{SEG+p}, v{SEG+2*p}, v{SEG+2*p+1}")
    for p in range(8):
        r = 2*p
        row0 = 8*(r >> 2) + (r & 3)
        a = vT[5] if ((r >> 2) & 1) == 0 else vT[6]
        e(f"ds_write_b16 v{a}, v{SEG+p} offset:{which*2048 + row0*64}")
        e(f"ds_write_b16_d16_hi v{a}, v{SEG+p} offset:{which*2048 + (row0+1)*64}")
flush(SEGO, 0)
flush(SEG4, 1)
c("row address per role: addr = q'*16384 + which*2048 + rho*64 + ((hi ^ ((rho>>2)&3) ^ ((q'&1)<<1))<<4)")
vQP = vT[5]; vRHO = vT[6]
e(f"v_lshrrev_b32 v{vQP}, 3, v{vN}            ; q' = n>>3 (roles A,B,D)")
e(f"v_and_b32 v{vRHO}, 7, v{vN}")
e(f"s_and_b32 s{sT2}, s{sQ}, 1")
e(f"s_lshl_b32 s{sT2}, s{sT2}, 11")
e(f"s_cmp_eq_u32 s{sQ}, 2")
e("s_cbranch_scc0 L_f_notC")
e(f"v_mov_b32 v{vQP}, s{sCT}")
e(f"v_mov_b32 v{vRHO}, v{vN}")
lab("L_f_notC")
e(f"s_cmp_eq_u32 s{sQ}, 3")
e("s_cbranch_scc0 L_f_notD")
e(f"s_lshl_b32 s{sT0}, s{sCT}, 3")
e(f"s_add_u32 s{sT0}, s{sT0}, 8")
e(f"s_and_b32 s{sT0}, s{sT0}, 31")
e(f"v_add_u32 v{vRHO}, s{sT0}, v{vRHO}")
lab("L_f_notD")
e(f"v_bfe_u32 v{vT[0]}, v{vRHO}, 2, 2")
e(f"v_xor_b32 v{vT[0]}, v{vT[0]}, v{vHI}")
e(f"v_and_b32 v{vT[7]}, 1, v{vQP}")
e(f"v_lshlrev_b32 v{vT[7]}, 1, v{vT[7]}")
e(f"v_xor_b32 v{vT[0]}, v{vT[0]}, v{vT[7]}")
e(f"v_lshlrev_b32 v{vRD}, 4, v{vT[0]}")
e(f"v_lshl_add_u32 v{vRD}, v{vRHO}, 6, v{vRD}")
e(f"v_lshl_add_u32 v{vRD}, v{vQP}, 14, v{vRD}")
e(f"v_add_u32 v{vRD}, s{sT2}, v{vRD}")
c("residuals + output offsets")
e(f"s_mul_i32 s{sK3}, s2, 40")
e(f"s_cmp_ge_u32 s{sQ}, 2")
e("s_cbranch_scc1 L_f_resCD")
e(f"s_cmp_eq_u32 s{sQ}, 1")
e("s_cbranch_scc1 L_f_resB")
c("role A: h[node n][32ct + 8bb + 4hi..+3]: OWN + n*256 + (((ct*4+bb) ^ (n&15))<<4) + hi*8")
e(f"v_and_b32 v{vT[0]}, 15, v{vN}")
e(f"s_lshl_b32 s{sT0}, s{sCT}, 2")
e(f"v_xor_b32 v{vT[0]}, s{sT0}, v{vT[0]}")
e(f"v_lshlrev_b32 v{vT[0]}, 4, v{vT[0]}")
e(f"v_lshl_add_u32 v{vT[0]}, v{vN}, 8, v{vT[0]}")
e(f"v_lshl_add_u32 v{vT[0]}, v{vHI}, 3, v{vT[0]}")
e(f"v_add_u32 v{vT[0]}, {OWN}, v{vT[0]}")
for bb in range(4):
    e(f"v_xor_b32 v{vT[7]}, {bb<<4}, v{vT[0]}")
    e(f"ds_read_b64 {vr(HRES+2*bb,2)}, v{vT[7]}")
e(f"v_add_u32 v{vOFF}, s{sK3}, v{vN}")
e(f"v_lshlrev_b32 v{vOFF}, 8, v{vOFF}")
e(f"v_lshl_add_u32 v{vOFF}, v{vHI}, 3, v{vOFF}")
e(f"s_lshl_b32 s{sT0}, s{sCT}, 6")
e(f"v_add_u32 v{vOFF}, s{sT0}, v{vOFF}")
e("s_branch L_f_bar")
lab("L_f_resB")
c("role B: rows 32+4hi+i, col 32ct+n: OWN + row*256 + (((ct*4 + (n>>3)) ^ (row&15))<<4) + (n&7)*2")
e(f"v_lshrrev_b32 v{vT[0]}, 3, v{vN}")
e(f"s_lshl_b32 s{sT0}, s{sCT}, 2")
e(f"v_add_u32 v{vT[0]}, s{sT0}, v{vT[0]}          ; chunk")
e(f"v_lshlrev_b32 v{vT[7]}, 2, v{vHI}             ; 4hi")
e(f"v_xor_b32 v{vT[0]}, v{vT[0]}, v{vT[7]}")
e(f"v_lshlrev_b32 v{vT[0]}, 4, v{vT[0]}")
e(f"v_lshl_add_u32 v{vT[0]}, v{vT[7]}, 8, v{vT[0]}   ; + 4hi*256")
e(f"v_and_b32 v{vT[5]}, 7, v{vN}")
e(f"v_lshl_add_u32 v{vT[0]}, v{vT[5]}, 1, v{vT[0]}")
e(f"v_add_u32 v{vT[0]}, {OWN + 32*256}, v{vT[0]}")
for i in range(4):
    e(f"v_xor_b32 v{vT[5]}, {i<<4}, v{vT[0]}")
    e(f"ds_read_u16 v{HRES+i}, v{vT[5]} offset:{i*256}")
e(f"s_add_u32 s{sT0}, s{sK3}, 32")
e(f"v_add_u32 v{vOFF}, s{sT0}, v{vT[7]}")
e(f"v_lshlrev_b32 v{vOFF}, 8, v{vOFF}")
e(f"v_lshl_add_u32 v{vOFF}, v{vN}, 1, v{vOFF}")
e(f"s_lshl_b32 s{sT0}, s{sCT}, 6")
e(f"v_add_u32 v{vOFF}, s{sT0}, v{vOFF}")
e("s_branch L_f_bar")
lab("L_f_resCD")
e(f"s_cmp_eq_u32 s{sQ}, 3")
e("s_cbranch_scc1 L_f_resD")
c("role C: g = ct. lane n: c = n>>3, j = n&7; k = 8g + j ; comp c-1")
e(f"v_and_b32 v{vT[5]}, 7, v{vN}")
e(f"s_lshl_b32 s{sT0}, s{sCT}, 3")
e(f"v_add_u32 v{vT[5]}, s{sT0}, v{vT[5]}      ; k")
e(f"v_mul_u32_u24 v{vT[5]}, 6, v{vT[5]}")
e(f"v_lshrrev_b32 v{vT[0]}, 3, v{vN}          ; c")
e(f"v_lshl_add_u32 v{vT[5]}, v{vT[0]}, 1, v{vT[5]}")
e(f"v_subrev_u32 v{vT[5]}, 2, v{vT[5]}        ; k*6 + (c-1)*2")
e(f"v_max_i32 v{vT[5]}, 0, v{vT[5]}")
e("s_branch L_f_resCD2")
lab("L_f_resD")
c("role D: comp c = ct+1. lane n: j = n&7; k = 32 + j")
e(f"v_and_b32 v{vT[5]}, 7, v{vN}")
e(f"v_add_u32 v{vT[5]}, 32, v{vT[5]}")
e(f"v_mul_u32_u24 v{vT[5]}, 6, v{vT[5]}")
e(f"s_lshl_b32 s{sT0}, s{sCT}, 1")
e(f"v_add_u32 v{vT[5]}, s{sT0}, v{vT[5]}")
lab("L_f_resCD2")
e(f"v_add_u32 v{vT[0]}, {PT}, v{vT[5]}")
e(f"ds_read_u16 v{HRES}, v{vT[0]}")
e(f"s_mul_i32 s{sT0}, s2, 240")
e(f"v_add_u32 v{vOFF}, s{sT0}, v{vT[5]}")
lab("L_f_bar")
e("s_waitcnt lgkmcnt(0)")
e("s_barrier")
stamp("final bar")
e(f"s_cmp_eq_u32 s{sW}, 15")
e("s_cbranch_scc1 L_end")
e(f"v_xor_b32 v{vT[0]}, 32, v{vRD}")
for s_ in range(8):
    e(f"ds_read_b128 {vr(ROW+4*s_,4)}, v{[vRD, vT[0]][s_&1]} offset:{(s_>>1)*4096}")
e(f"s_mov_b32 s{sK2}, 0x{NLOG2E:08x}")
e(f"s_mov_b32 s{sK3}, 0xffff0000")
e("s_waitcnt vmcnt(0)")
e(f"s_cmp_ge_u32 s{sQ}, 2")
e("s_cbranch_scc1 L_f_CD")
e(f"s_cmp_eq_u32 s{sQ}, 1")
e("s_cbranch_scc1 L_f_B")
c("role A")
for s_ in range(8):
    e(f"s_waitcnt lgkmcnt({7-s_})")
    mfma(FACC, WFL+4*s_, ROW+4*s_, vr(FACC,16))
e("s_nop 7")
e("s_nop 3")
def final_silu(a, n, TEf):
    for i in range(n): e(f"v_mul_f32 v{TEf+i}, s{sK2}, v{a+i}")
    for i in range(n): e(f"v_exp_f32 v{TEf+i}, v{TEf+i}")
    for i in range(n): e(f"v_add_f32 v{TEf+i}, 1.0, v{TEf+i}")
    for i in range(n): e(f"v_rcp_f32 v{TEf+i}, v{TEf+i}")
    for i in range(n): e(f"v_mul_f32 v{a+i}, v{a+i}, v{TEf+i}")
X = 48
for i in range(4):
    a = FACC + 4*i
    final_silu(a, 4, X)
    e(f"v_lshlrev_b32 v{X}, 16, v{HRES+2*i}")
    e(f"v_and_b32 v{X+1}, s{sK3}, v{HRES+2*i}")
    e(f"v_lshlrev_b32 v{X+2}, 16, v{HRES+2*i+1}")
    e(f"v_and_b32 v{X+3}, s{sK3}, v{HRES+2*i+1}")
    for k in range(4): e(f"v_add_f32 v{a+k}, v{a+k}, v{X+k}")
    e(f"v_cvt_pk_bf16_f32 v{X+4+2*i}, v{a}, v{a+1}")
    e(f"v_cvt_pk_bf16_f32 v{X+5+2*i}, v{a+2}, v{a+3}")
    e(f"buffer_store_dwordx2 {vr(X+4+2*i,2)}, v{vOFF}, {srd(S_O0)}, 0 offen offset:{i*16}")
e("s_branch L_end")
lab("L_f_B")
c("role B: rows (p,j)")
for s_ in range(8):
    e(f"s_waitcnt lgkmcnt({7-s_})")
    mfma(ACC, ROW+4*s_, WFL+4*s_, "0" if s_ == 0 else vr(ACC,16))
e("s_nop 7")
e("s_nop 3")
for k in range(4):
    e(f"v_add_f32 v{ACC+k}, v{ACC+k}, v{ACC+4+k}")
    e(f"v_add_f32 v{ACC+8+k}, v{ACC+8+k}, v{ACC+12+k}")
for k in range(4):
    e(f"v_add_f32 v{ACC+k}, v{ACC+k}, v{ACC+8+k}")
for k in range(4):
    e(f"v_add_f32 v{ACC+k}, v{ACC+k}, v{FACC+k}")
final_silu(ACC, 4, ROW)
for k in range(4):
    e(f"v_lshlrev_b32 v{ROW+k}, 16, v{HRES+k}")
for k in range(4):
    e(f"v_add_f32 v{ACC+k}, v{ACC+k}, v{ROW+k}")
for k in range(4):
    e(f"v_cvt_pk_bf16_f32 v{ROW+8+k}, v{ACC+k}, v{ACC+k}")
for r in range(4):
    e(f"buffer_store_short v{ROW+8+r}, v{vOFF}, {srd(S_O0)}, 0 offen offset:{r*256}")
e("s_branch L_end")
lab("L_f_CD")
for s_ in range(8):
    e(f"s_waitcnt lgkmcnt({7-s_})")
    mfma(ACC, WFL+4*s_, ROW+4*s_, "0" if s_ == 0 else vr(ACC,16))
e("s_nop 7")
e("s_nop 3")
e(f"s_mov_b32 s{sK2}, 0x{NLN2:08x}")
e(f"v_lshlrev_b32 v{HRES}, 16, v{HRES}")
e(f"s_cmp_eq_u32 s{sQ}, 3")
e("s_cbranch_scc1 L_f_D")
c("role C: lanes 8..31 valid")
e(f"v_fma_f32 v{ACC}, s{sK2}, v{ACC}, v{HRES}")
e(f"v_cvt_pk_bf16_f32 v{ACC}, v{ACC}, v{ACC}")
e(f"s_mov_b32 s{sEX}, 0xffffff00")
e(f"s_mov_b32 s{sEX+1}, 0")
e(f"s_mov_b64 exec, {sp(sEX)}")
e(f"buffer_store_short v{ACC}, v{vOFF}, {srd(S_O1)}, 0 offen")
e("s_branch L_end")
lab("L_f_D")
c("role D: sum over p: lanes n, n+8, n+16, n+24")
e(f"v_add_f32_dpp v{ACC+1}, v{ACC}, v{ACC} row_ror:8 row_mask:0xf bank_mask:0xf")
e("s_nop 1")
e(f"ds_swizzle_b32 v{ACC+2}, v{ACC+1} offset:0x401F")
e("s_waitcnt lgkmcnt(0)")
e(f"v_add_f32 v{ACC+1}, v{ACC+1}, v{ACC+2}")
e(f"v_fma_f32 v{ACC}, s{sK2}, v{ACC+1}, v{HRES}")
e(f"v_cvt_pk_bf16_f32 v{ACC}, v{ACC}, v{ACC}")
e(f"s_mov_b64 exec, 0xff")
e(f"buffer_store_short v{ACC}, v{vOFF}, {srd(S_O1)}, 0 offen")
lab("L_end")
if TIMING:
    e("s_mov_b64 exec, -1")
stamp("end")
stamp_flush()
lab("L_end2")
e("s_endpgm")

lab("L_slow_init")
e(f"s_mov_b32 s{sMODE}, 1")
e(f"s_mov_b32 s{sCH}, 0")
e(f"s_mov_b32 s{sRETRY}, 0")
e("s_branch L_slow_pass")
lab("L_slow_next")
c("PEND flag was read into sK... re-read now (stable since BA)")
e(f"v_mov_b32 v{vT[0]}, {PEND}")
e(f"ds_read_b32 v{vT[1]}, v{vT[0]}")
e("s_waitcnt lgkmcnt(0)")
e(f"v_readfirstlane_b32 s{sRETRY}, v{vT[1]}")
e("s_nop 3")
e(f"s_cmp_lg_u32 s{sRETRY}, 0")
e("s_cbranch_scc1 L_slow_pass")
lab("L_slow_adv")
e(f"s_add_u32 s{sCH}, s{sCH}, 1")
e(f"s_cmp_ge_u32 s{sCH}, 250")
e("s_cbranch_scc1 L_slow_fin")
lab("L_slow_pass")
e("s_waitcnt vmcnt(0) lgkmcnt(0)")
e("s_barrier")
e(f"s_lshl_b32 s{sT0}, s{sW}, 6")
e(f"v_add_u32 v{tid}, s{sT0}, v{vL}")
for i in range(4): e(f"v_mov_b32 v{Z+i}, 0")
e(f"v_lshlrev_b32 v{vT[0]}, 4, v{tid}")
e(f"v_add_u32 v{vT[1]}, {DE16}, v{vT[0]}")
e(f"v_add_u32 v{vT[2]}, {CTR - 960*16}, v{vT[0]}")
e(f"v_cmp_gt_u32 vcc, 960, v{tid}")
e(f"v_cndmask_b32 v{vT[1]}, v{vT[2]}, v{vT[1]}, vcc")
e(f"v_cmp_gt_u32 vcc, 964, v{tid}")
e("s_mov_b64 exec, vcc")
e(f"ds_write_b128 v{vT[1]}, {vr(Z,4)}")
e("s_mov_b64 exec, -1")
c("raw edge e = 640*ch + t (t<640)")
qD, qS, qP, qB, qK, qR, qA = 112, 113, 114, 115, 116, 117, 118
e(f"s_mul_i32 s{sT0}, s{sCH}, 2560")
e(f"v_lshlrev_b32 v{vT[0]}, 2, v{tid}")
e(f"v_mov_b32 v{qD}, -1")
e(f"v_mov_b32 v{qS}, 0")
e(f"v_mov_b32 v{qP}, 0")
e(f"v_cmp_gt_u32 {sp(sM0)}, 640, v{tid}" if False else f"v_mov_b32 v{qA}, 640")
e(f"v_cmp_gt_u32 {sp(sM0)}, v{qA}, v{tid}")
e(f"s_mov_b64 exec, {sp(sM0)}")
e(f"buffer_load_dword v{qD}, v{vT[0]}, {srd(S_DST)}, s{sT0} offen")
e(f"buffer_load_dword v{qS}, v{vT[0]}, {srd(S_SRC)}, s{sT0} offen")
e(f"v_add_u32 v{qA}, {PENDB}, v{tid}")
e(f"ds_read_u8 v{qP}, v{qA}")
e("s_mov_b64 exec, -1")
e("s_waitcnt vmcnt(0) lgkmcnt(0)")
e("s_barrier")
e(f"v_mul_u32_u24 v{qB}, 52429, v{qD}")
e(f"v_lshrrev_b32 v{qB}, 21, v{qB}")
e(f"v_mul_u32_u24 v{qK}, 40, v{qB}")
e(f"v_sub_u32 v{qK}, v{qD}, v{qK}")
e(f"v_cmp_eq_u32 vcc, s2, v{qB}")
e(f"s_and_b64 {sp(sM0)}, {sp(sM0)}, vcc          ; match")
e(f"s_cmp_eq_u32 s{sRETRY}, 0")
e("s_cbranch_scc1 L_slow_fresh")
e(f"v_cmp_ne_u32 vcc, 0, v{qP}")
e(f"s_and_b64 {sp(sM0)}, {sp(sM0)}, vcc")
lab("L_slow_fresh")
c("rec = t<<22 | src<<8 | (ch&3)<<6 | k ; c = ch>>2")
e(f"s_and_b32 s{sT0}, s{sCH}, 3")
e(f"s_lshl_b32 s{sT0}, s{sT0}, 6")
e(f"v_lshlrev_b32 v{qD}, 22, v{tid}")
e(f"v_lshl_or_b32 v{qD}, v{qS}, 8, v{qD}")
e(f"v_or_b32 v{qD}, s{sT0}, v{qD}")
e(f"v_or_b32 v{qD}, v{qK}, v{qD}")
e(f"s_lshr_b32 s{sT0}, s{sCH}, 2")
e(f"v_mov_b32 v{qS}, s{sT0}")
e(f"v_lshrrev_b32 v{qB}, 3, v{qK}           ; g")
e(f"s_mov_b32 s{sT0}, {ALLOC}")
e(f"v_lshl_add_u32 v{qA}, v{qB}, 2, s{sT0}")
e(f"v_mov_b32 v{qK}, 1")
e(f"v_mov_b32 v{qP}, 0")
e(f"s_mov_b64 exec, {sp(sM0)}")
e(f"ds_add_rtn_u32 v{qR}, v{qA}, v{qK}")
e("s_waitcnt lgkmcnt(0)")
e(f"v_cmp_gt_u32 vcc, {CAP_G}, v{qR}")
e(f"v_mul_u32_u24 v{qB}, {CAP_G}, v{qB}")
e(f"v_add_u32 v{qB}, v{qB}, v{qR}")
e(f"s_mov_b32 s{sT0}, {DE16+8}")
e(f"v_lshl_add_u32 v{qA}, v{qB}, 4, s{sT0}")
e(f"s_and_b64 exec, {sp(sM0)}, vcc")
e(f"ds_write2_b32 v{qA}, v{qD}, v{qS} offset0:0 offset1:1")
e(f"s_andn2_b64 exec, {sp(sM0)}, vcc")
e("s_cbranch_execz L_slow_nopend")
e(f"v_mov_b32 v{qP}, 1")
e(f"v_mov_b32 v{qA}, {PEND}")
e(f"ds_write_b32 v{qA}, v{qK}")
lab("L_slow_nopend")
e("s_mov_b64 exec, -1")
e(f"v_mov_b32 v{qA}, 640")
e(f"v_cmp_gt_u32 vcc, v{qA}, v{tid}")
e("s_mov_b64 exec, vcc")
e(f"v_add_u32 v{qA}, {PENDB}, v{tid}")
e(f"ds_write_b8 v{qA}, v{qP}")
e("s_mov_b64 exec, -1")
e("s_waitcnt lgkmcnt(0)")
e("s_barrier")
c("skip quickly if nothing placed (and node task already done)")
e(f"v_mov_b32 v{vT[0]}, {ALLOC}")
e(f"ds_read_b128 {vr(104,4)}, v{vT[0]}")
e(f"ds_read_b32 v108, v{vT[0]} offset:16")
e("s_waitcnt lgkmcnt(0)")
e(f"v_or_b32 v104, v104, v105")
e(f"v_or3_b32 v104, v104, v106, v107")
e(f"v_or_b32 v104, v104, v108")
e("s_nop 0")
e(f"v_readfirstlane_b32 s{sT0}, v104")
e("s_nop 3")
e(f"s_cmp_lg_u32 s{sT0}, 0")
e("s_cbranch_scc1 L_stage2")
e(f"s_mov_b32 s{sRETRY}, 0")
e("s_branch L_slow_adv")
lab("L_slow_fin")
c("ensure node task ran: if never, run one empty pass through stage2 with zero counts")
e(f"s_cmp_eq_u32 s{sNODE}, 0")
e("s_cbranch_scc0 L_final_bar")
e(f"s_mov_b32 s{sMODE}, 2")
e("s_branch L_stage2")
lab("L_final_bar")
e("s_barrier")
e("s_branch L_final")

desc = f""".amdhsa_kernel {KNAME}
  .amdhsa_next_free_vgpr 128
  .amdhsa_next_free_sgpr 102
  .amdhsa_accum_offset 128
  .amdhsa_group_segment_fixed_size 0
  .amdhsa_kernarg_size 88
  .amdhsa_user_sgpr_count 2
  .amdhsa_user_sgpr_kernarg_segment_ptr 1
  .amdhsa_system_sgpr_workgroup_id_x 1
.end_amdhsa_kernel"""
body = "\n".join(out)
final = "\n".join(header) + "\n" + body + "\n" + '.section .rodata,"a"\n.p2align 6\n' + k1_desc + "\n.p2align 6\n" + desc + "\n"
dest = sys.argv[1] if len(sys.argv) > 1 else "standalone__cheap_equivariant_egnn__graph.s"
open(dest, "w").write(final)
print("wrote", dest, len(out), "lines")
```

```python
from g3common import *

K1NAME = "egnn_prep_kernel"
NG = 157; NWP = 2; NCH = 63
K1_GRID = NG + NWP + NCH
K1_LDS = 65536

TIMING = os.environ.get("TIMING", "")
DBGT = os.environ.get("DBGT", "")
def dbg_stamp(slot, inv, sbase, sW, vtmp):
    if not DBGT: return
    L = f"L_dbg_{slot}_{len(out)}"
    e(f"s_and_b32 s{sbase}, s2, 7")
    e(f"s_or_b32 s{sbase}, s{sbase}, s{sW}")
    e(f"s_cmp_lg_u32 s{sbase}, 0")
    e(f"s_cbranch_scc1 {L}")
    e(f"s_load_dwordx2 s[{sbase}:{sbase+1}], s[0:1], 72")
    e(f"s_memrealtime s[{sbase+4}:{sbase+5}]")
    e(f"s_mov_b32 s{sbase+2}, 256")
    e(f"s_mov_b32 s{sbase+3}, 0x20000")
    e("s_waitcnt lgkmcnt(0)")
    if inv: e(f"s_not_b32 s{sbase+4}, s{sbase+4}")
    e(f"s_mov_b64 s[{sbase+6}:{sbase+7}], exec")
    e("s_mov_b64 exec, 1")
    e(f"v_mov_b32 v{vtmp}, s{sbase+4}")
    e(f"v_mov_b32 v{vtmp+1}, {slot*4}")
    e(f"buffer_atomic_umax v{vtmp}, v{vtmp+1}, s[{sbase}:{sbase+3}], 0 offen")
    e(f"s_mov_b64 exec, s[{sbase+6}:{sbase+7}]")
    lab(L)
def rt_start():
    if not TIMING: return
    e("s_memrealtime s[50:51]")
    e("s_memtime s[52:53]")
def rt_end(S_WS, sW):
    if DBGT:
        e("s_mov_b64 exec, -1")
        e("s_waitcnt vmcnt(0)")
        dbg_stamp(1, False, 64, sW, 90)
    if not TIMING: return
    e("s_waitcnt vmcnt(0)")
    e("s_memrealtime s[54:55]")
    e("s_memtime s[56:57]")
    e("s_mov_b64 exec, 1")
    e(f"s_lshl_b32 s58, s2, 4")
    e(f"s_add_u32 s58, s58, s{sW}")
    e(f"s_lshl_b32 s58, s58, 4")
    e(f"s_add_u32 s58, s58, {33<<20}")
    e("s_waitcnt lgkmcnt(0)")
    e("v_mov_b32 v60, s50"); e("v_mov_b32 v61, s54"); e("v_mov_b32 v62, s52"); e("v_mov_b32 v63, s56")
    e("v_mov_b32 v59, 0")
    e(f"buffer_store_dwordx4 v[60:63], v59, {srd(S_WS)}, s58 offen")

def gen_k1():
    S_H, S_SRC, S_DST, S_WE, S_WH, S_WS, S_Q = [8 + 4 * i for i in range(7)]
    sW, sCT, sRB, sT0, sT1, sT2, sC = 40, 41, 42, 43, 44, 45, 46
    vL = 1
    lab(K1NAME)
    e(f"s_cmp_ge_u32 s2, {K1_GRID}")
    e("s_cbranch_scc1 L1_end")
    rt_start()
    for (x, off) in [(S_DST,32),(S_SRC,24),(S_H,0),(S_WE,40),(S_WH,56),(S_WS,80)]:
        e(f"s_load_dwordx2 s[{x}:{x+1}], s[0:1], {off}")
    e(f"v_lshrrev_b32 v2, 6, v0")
    e(f"v_and_b32 v{vL}, 63, v0")
    e(f"s_nop 0")
    e(f"v_readfirstlane_b32 s{sW}, v2")
    for (x, sz) in [(S_H,2560000),(S_SRC,640000),(S_DST,640000),(S_WE,66048),(S_WH,65536),(S_WS,256*1048576),(S_Q,2560000)]:
        e(f"s_mov_b32 s{x+2}, {sz}")
        e(f"s_mov_b32 s{x+3}, 0x20000")
    e(f"s_and_b32 s{sCT}, s{sW}, 3")
    e(f"s_lshr_b32 s{sRB}, s{sW}, 2")
    dbg_stamp(0, True, 64, sW, 90)
    e(f"s_cmp_ge_u32 s2, {NG+NWP}")
    e("s_cbranch_scc1 L1_bin")
    c("non-binning: waves 8,9 exit")
    e(f"s_cmp_ge_u32 s{sW}, 8")
    e("s_cbranch_scc1 L1_end")
    e("s_waitcnt lgkmcnt(0)")
    e(f"s_add_u32 s{S_Q}, s{S_WS}, {QOFF}")
    e(f"s_addc_u32 s{S_Q+1}, s{S_WS+1}, 0")
    c("slice DMA lane offset: (l>>2)*256 + ct*64 + (l&3)*16")
    vSL = 2; vTRP = 3; vRA = 4; vRD = 5; vT0 = 6; vT1 = 7; vST = 8
    e(f"v_lshrrev_b32 v{vSL}, 2, v{vL}")
    e(f"v_lshlrev_b32 v{vSL}, 8, v{vSL}")
    e(f"v_and_b32 v{vT0}, 3, v{vL}")
    e(f"v_lshl_add_u32 v{vSL}, v{vT0}, 4, v{vSL}")
    e(f"s_lshl_b32 s{sT0}, s{sCT}, 6")
    e(f"v_add_u32 v{vSL}, s{sT0}, v{vSL}")
    c("tr pattern: (8hi + r)*64 + colhalf*32 + c4*8")
    def trpat(dst):
        e(f"v_lshrrev_b32 v{vT0}, 5, v{vL}")
        e(f"v_bfe_u32 v{vT1}, v{vL}, 2, 2")
        e(f"v_lshl_add_u32 v{dst}, v{vT0}, 3, v{vT1}")
        e(f"v_lshlrev_b32 v{dst}, 6, v{dst}")
        e(f"v_bfe_u32 v{vT0}, v{vL}, 4, 1")
        e(f"v_lshl_add_u32 v{dst}, v{vT0}, 5, v{dst}")
        e(f"v_and_b32 v{vT0}, 3, v{vL}")
        e(f"v_lshl_add_u32 v{dst}, v{vT0}, 3, v{dst}")
    e(f"s_cmp_ge_u32 s2, {NG}")
    e("s_cbranch_scc1 L1_wprep")
    c("GEMM WG: rows 64r..64r+63")
    AF = 16; BF = 48; D = 80
    e(f"s_lshl_b32 s{sT0}, s{sCT}, 13")
    e(f"s_lshl_b32 s{sT1}, s{sRB}, 12")
    e(f"s_add_u32 s{sT0}, s{sT0}, s{sT1}")
    e(f"s_lshl_b32 s{sT1}, s{sRB}, 14")
    e(f"s_add_u32 s{sT1}, s{sT1}, 32768")
    for i in range(4):
        e(f"s_add_u32 m0, s{sT0}, {i*1024}")
        e(f"s_add_u32 s{sT2}, s{sT1}, {i*4096}")
        e(f"buffer_load_dwordx4 v{vSL}, {srd(S_WE)}, s{sT2} offen lds")
    c("rows DMA: row = 8w + 4i + (l>>4); chunk = (l&15) ^ (row&15)")
    e(f"v_lshrrev_b32 v{vT0}, 4, v{vL}")
    e(f"v_and_b32 v{vT1}, 15, v{vL}")
    e(f"v_xor_b32 v{vT1}, v{vT1}, v{vT0}")
    e(f"s_and_b32 s{sT0}, s{sW}, 1")
    e(f"s_lshl_b32 s{sT0}, s{sT0}, 3")
    e(f"v_xor_b32 v{vT1}, s{sT0}, v{vT1}")
    e(f"v_lshlrev_b32 v{vT1}, 4, v{vT1}")
    e(f"v_lshl_add_u32 v{vRA}, v{vT0}, 8, v{vT1}")
    e(f"s_lshl_b32 s{sT0}, s2, 14")
    e(f"s_lshl_b32 s{sT1}, s{sW}, 11")
    e(f"s_add_u32 s{sT0}, s{sT0}, s{sT1}           ; (64r + 8w)*256")
    e(f"s_add_u32 m0, s{sT1}, 32768")
    e(f"s_add_u32 s{sT2}, s{sT0}, 1024")
    e(f"buffer_load_dwordx4 v{vRA}, {srd(S_H)}, s{sT0} offen lds")
    e(f"v_xor_b32 v{vRA}, 64, v{vRA}")
    e(f"s_add_u32 m0, s{sT1}, {32768+1024}")
    e(f"s_nop 0")
    e(f"buffer_load_dwordx4 v{vRA}, {srd(S_H)}, s{sT2} offen lds")
    trpat(vTRP)
    e(f"s_lshl_b32 s{sT0}, s{sCT}, 13")
    e(f"v_add_u32 v{vTRP}, s{sT0}, v{vTRP}")
    c("row read address: 32768 + (rb*32+n)*256 + ((hi ^ (n&15))<<4) ^ (s<<5)")
    e(f"v_and_b32 v{vT0}, 31, v{vL}")
    e(f"v_lshrrev_b32 v{vT1}, 5, v{vL}")
    e(f"v_and_b32 v{vRD}, 15, v{vL}")
    e(f"v_xor_b32 v{vRD}, v{vRD}, v{vT1}")
    e(f"v_lshlrev_b32 v{vRD}, 4, v{vRD}")
    e(f"v_lshl_add_u32 v{vRD}, v{vT0}, 8, v{vRD}")
    e(f"s_lshl_b32 s{sT0}, s{sRB}, 13")
    e(f"s_add_u32 s{sT0}, s{sT0}, 32768")
    e(f"v_add_u32 v{vRD}, s{sT0}, v{vRD}")
    c("store offset: (64r + 32rb + n)*256 + ct*64 + hi*8")
    e(f"v_lshlrev_b32 v{vST}, 8, v{vT0}")
    e(f"v_lshl_add_u32 v{vST}, v{vT1}, 3, v{vST}")
    e(f"s_lshl_b32 s{sT0}, s2, 14")
    e(f"s_lshl_b32 s{sT1}, s{sRB}, 13")
    e(f"s_add_u32 s{sT0}, s{sT0}, s{sT1}")
    e(f"s_lshl_b32 s{sT1}, s{sCT}, 6")
    e(f"s_add_u32 s{sT0}, s{sT0}, s{sT1}")
    e("s_waitcnt vmcnt(0)")
    e("s_barrier")
    for s_ in range(8):
        e(f"v_xor_b32 v{vT0}, {s_<<5}, v{vRD}")
        e(f"ds_read_b128 {vr(BF+4*s_,4)}, v{vT0}")
        e(f"ds_read_b64_tr_b16 {vr(AF+4*s_,2)}, v{vTRP} offset:{s_*1024}")
        e(f"ds_read_b64_tr_b16 {vr(AF+4*s_+2,2)}, v{vTRP} offset:{s_*1024+256}")
    for s_ in range(8):
        e(f"s_waitcnt lgkmcnt({min(15, 3*(7-s_))})")
        mfma(D, AF+4*s_, BF+4*s_, "0" if s_ == 0 else vr(D,16))
    e(f"s_mov_b32 s{sT1}, 0x{NLOG2E:08x}")
    e("s_nop 7"); e("s_nop 3")
    for bb in range(4):
        r0 = D + 4*bb
        for i in range(4):
            e(f"v_mul_f32 v{r0+i}, s{sT1}, v{r0+i}")
        e(f"v_cvt_pk_bf16_f32 v{r0}, v{r0}, v{r0+1}")
        e(f"v_cvt_pk_bf16_f32 v{r0+1}, v{r0+2}, v{r0+3}")
        e(f"buffer_store_dwordx2 {vr(r0,2)}, v{vST}, {srd(S_Q)}, s{sT0} offen offset:{bb*16}")
    rt_end(S_WS, sW)
    e("s_endpgm")
    lab("L1_wprep")
    c("weight prep: WG157: w0-3 W1, w4-7 Wh1 ; WG158: w0-3 Wh2, w4-7 K1B")
    e(f"s_lshl_b32 s{sT2}, s{sW}, 13")
    trpat(vTRP)
    e(f"v_add_u32 v{vTRP}, s{sT2}, v{vTRP}")
    e(f"v_lshlrev_b32 v{vST}, 4, v{vL}")
    e(f"s_cmp_eq_u32 s2, {NG}")
    e("s_cbranch_scc0 L1_w158")
    e(f"s_cmp_eq_u32 s{sRB}, 0")
    e("s_cbranch_scc0 L1_wh1")
    def slice_dma(S, gbase):
        for i in range(8):
            e(f"s_add_u32 m0, s{sT2}, {i*1024}")
            e(f"s_mov_b32 s{sT1}, {gbase + i*4096}")
            e(f"buffer_load_dwordx4 v{vSL}, {srd(S)}, s{sT1} offen lds")
    slice_dma(S_WE, 0)
    e(f"s_mov_b32 s{sC}, {WFOFF + 0}")
    e("s_branch L1_wfin")
    lab("L1_wh1")
    slice_dma(S_WH, 0)
    e(f"s_mov_b32 s{sC}, {WFOFF + 32768}")
    e("s_branch L1_wfin")
    lab("L1_w158")
    e(f"s_cmp_eq_u32 s{sRB}, 0")
    e("s_cbranch_scc0 L1_k1b")
    slice_dma(S_WH, 32768)
    e(f"s_mov_b32 s{sC}, {WFOFF + 65536}")
    lab("L1_wfin")
    e(f"s_lshl_b32 s{sT0}, s{sCT}, 13")
    e(f"s_add_u32 s{sC}, s{sC}, s{sT0}")
    e("s_waitcnt vmcnt(0)")
    for s_ in range(8):
        e(f"ds_read_b64_tr_b16 {vr(16+4*s_,2)}, v{vTRP} offset:{s_*1024}")
        e(f"ds_read_b64_tr_b16 {vr(16+4*s_+2,2)}, v{vTRP} offset:{s_*1024+256}")
    for s_ in range(8):
        if s_ == 4:
            e(f"s_add_u32 s{sC}, s{sC}, 4096")
        e(f"s_waitcnt lgkmcnt({2*(7-s_)})")
        e(f"buffer_store_dwordx4 {vr(16+4*s_,4)}, v{vST}, {srd(S_WS)}, s{sC} offen offset:{(s_%4)*1024}")
    rt_end(S_WS, sW)
    e("s_endpgm")
    lab("L1_k1b")
    KB = 16
    e(f"v_and_b32 v{vT0}, 31, v{vL}")
    e(f"s_lshl_b32 s{sT0}, s{sCT}, 5")
    e(f"v_add_u32 v{vT1}, s{sT0}, v{vT0}")
    e(f"v_lshlrev_b32 v{vT1}, 1, v{vT1}")
    e(f"s_mov_b32 s{sT1}, 65536")
    e(f"buffer_load_ushort v{KB}, v{vT1}, {srd(S_WE)}, s{sT1} offen")
    e(f"buffer_load_ushort v{KB+1}, v{vT1}, {srd(S_WE)}, s{sT1} offen offset:256")
    e(f"s_mov_b32 s{sT0}, 0x{NLOG2E:08x}")
    e(f"s_mov_b32 s{sT2}, 0xffff0000")
    e("s_waitcnt vmcnt(0)")
    e(f"v_lshlrev_b32 v20, 16, v{KB}")
    e(f"v_lshlrev_b32 v21, 16, v{KB+1}")
    e(f"v_mul_f32 v20, s{sT0}, v20")
    e(f"v_mul_f32 v21, s{sT0}, v21")
    e(f"v_cvt_pk_bf16_f32 v{KB}, v20, v21")
    e(f"v_lshlrev_b32 v22, 16, v{KB}")
    e(f"v_and_b32 v23, s{sT2}, v{KB}")
    e(f"v_sub_f32 v20, v20, v22")
    e(f"v_sub_f32 v21, v21, v23")
    e(f"v_cvt_pk_bf16_f32 v{KB+1}, v20, v21")
    e(f"v_mov_b32 v{KB+2}, 0")
    e(f"v_mov_b32 v{KB+3}, 0")
    e(f"v_lshlrev_b32 v{vT0}, 4, v{vT0}")
    e(f"s_lshl_b32 s{sT0}, s{sCT}, 9")
    e(f"s_add_u32 s{sT0}, s{sT0}, {WFOFF + 98304}")
    e("s_mov_b32 exec_hi, 0")
    e(f"buffer_store_dwordx4 {vr(KB,4)}, v{vT0}, {srd(S_WS)}, s{sT0} offen")
    e("s_endpgm")
    lab("L1_bin")
    c("binning WG c = wg - 159: edges e = 2560c + 640i + t")
    vD = 4; vS = 8; vB = 12; vR = 16; vE = 20; vT0 = 21; vT1 = 22; vOne = 23; vK = 24
    e(f"s_sub_u32 s{sC}, s2, {NG+NWP}")
    e(f"s_mul_i32 s{sT0}, s{sC}, {2560*4}")
    e(f"v_lshlrev_b32 v{vE}, 2, v0")
    c("zero headers")
    e(f"v_lshlrev_b32 v{vT0}, 7, v0")
    e(f"v_mov_b32 v{vT1}, 0")
    e(f"v_mov_b32 v{vOne}, 1")
    e(f"v_cmp_gt_u32 vcc, 250, v0")
    e(f"s_mov_b64 exec, vcc")
    e(f"ds_write_b32 v{vT0}, v{vT1}")
    e(f"s_mov_b64 exec, -1")
    e("s_waitcnt lgkmcnt(0)")
    e(f"s_add_u32 s{sT2}, s{sT0}, 5120")
    for i in range(4):
        e(f"buffer_load_dword v{vD+i}, v{vE}, {srd(S_DST)}, s{[sT0,sT2][i>>1]} offen offset:{(i&1)*2560}")
    for i in range(4):
        e(f"buffer_load_dword v{vS+i}, v{vE}, {srd(S_SRC)}, s{[sT0,sT2][i>>1]} offen offset:{(i&1)*2560}")
    c("validity: e < 160000  <=> byte offset < 640000")
    e(f"v_add_u32 v{vE}, s{sT0}, v{vE}")
    e("s_barrier")
    e(f"v_lshlrev_b32 v{vT1}, 22, v0          ; t << 22")
    for i in range(4):
        e(f"s_waitcnt vmcnt({7-i})")
        e(f"v_mul_u32_u24 v{vB+i}, 52429, v{vD+i}")
        e(f"v_lshrrev_b32 v{vB+i}, 21, v{vB+i}")
        e(f"v_lshlrev_b32 v{vT0}, 7, v{vB+i}")
        e(f"v_cmp_gt_u32 vcc, {640000 - i*2560}, v{vE}")
        e(f"s_mov_b64 exec, vcc")
        e(f"ds_add_rtn_u32 v{vR+i}, v{vT0}, v{vOne}")
        e(f"s_mov_b64 exec, -1")
        e(f"v_mul_u32_u24 v{vK}, 40, v{vB+i}")
        e(f"v_sub_u32 v{vD+i}, v{vD+i}, v{vK}       ; k")
        if i: e(f"v_or_b32 v{vD+i}, {i<<6}, v{vD+i}")
        e(f"v_or_b32 v{vD+i}, v{vT1}, v{vD+i}")
    for i in range(4):
        e(f"s_waitcnt vmcnt({3-i})")
        e(f"v_lshl_or_b32 v{vD+i}, v{vS+i}, 8, v{vD+i}    ; rec")
    for i in range(4):
        e(f"s_waitcnt lgkmcnt({3-i})")
        e(f"v_lshlrev_b32 v{vT0}, 7, v{vB+i}")
        e(f"v_lshl_add_u32 v{vT0}, v{vR+i}, 2, v{vT0}")
        e(f"v_cmp_gt_u32 vcc, 31, v{vR+i}")
        e(f"v_mov_b32 v{vK}, {640000 - i*2560}")
        e(f"v_cmp_gt_u32 s[{sT1}:{sT1+1}], v{vK}, v{vE}")
        e(f"s_and_b64 exec, vcc, s[{sT1}:{sT1+1}]")
        e(f"ds_write_b32 v{vT0}, v{vD+i} offset:4")
        e(f"s_mov_b64 exec, -1")
    e("s_waitcnt lgkmcnt(0)")
    e("s_barrier")
    c("copy image (32000 B) -> ws cells[c]")
    e(f"v_lshlrev_b32 v{vT0}, 4, v0")
    e(f"s_mul_i32 s{sT0}, s{sC}, 32000")
    e(f"s_add_u32 s{sT0}, s{sT0}, {CELLS}")
    for i in range(3):
        e(f"ds_read_b128 {vr(4+4*i,4)}, v{vT0} offset:{i*10240}")
    e(f"v_cmp_gt_u32 vcc, {(32000-30720)//16}, v0")
    e(f"s_and_saveexec_b64 s[{sT1}:{sT1+1}], vcc")
    e(f"ds_read_b128 {vr(16,4)}, v{vT0} offset:30720")
    e(f"v_add_u32 v{vT1}, 30720, v{vT0}")
    e("s_waitcnt lgkmcnt(0)")
    e(f"buffer_store_dwordx4 {vr(16,4)}, v{vT1}, {srd(S_WS)}, s{sT0} offen")
    e(f"s_mov_b64 exec, -1")
    e(f"v_add_u32 v{vT1}, 10240, v{vT0}")
    e(f"v_add_u32 v{vK}, 20480, v{vT0}")
    e(f"buffer_store_dwordx4 {vr(4,4)}, v{vT0}, {srd(S_WS)}, s{sT0} offen")
    e(f"buffer_store_dwordx4 {vr(8,4)}, v{vT1}, {srd(S_WS)}, s{sT0} offen")
    e(f"buffer_store_dwordx4 {vr(12,4)}, v{vK}, {srd(S_WS)}, s{sT0} offen")
    rt_end(S_WS, sW)
    lab("L1_end")
    e("s_endpgm")
    return f""".amdhsa_kernel {K1NAME}
  .amdhsa_next_free_vgpr 96
  .amdhsa_next_free_sgpr 72
  .amdhsa_accum_offset 96
  .amdhsa_group_segment_fixed_size 0
  .amdhsa_kernarg_size 88
  .amdhsa_user_sgpr_count 2
  .amdhsa_user_sgpr_kernarg_segment_ptr 1
  .amdhsa_system_sgpr_workgroup_id_x 1
.end_amdhsa_kernel"""
```

```python
import sys, os
sys.path.insert(0, os.path.dirname(os.path.abspath(__file__)))
from g3common import *
import gen3_k1

KNAME = "standalone__cheap_equivariant_egnn__graph_kernel"
TIMING = os.environ.get("TIMING", "")
STOP = os.environ.get("STOP", "")

QT = 0
REC = 65536
DE16 = 126976
BXP = 142336
OWN = 152576
PT = 162816
CTR = 163072
ALLOC = CTR; OVF = CTR + 20; PEND = CTR + 24
PENDB = CTR + 64
LDS_TOTAL = PENDB + 640
CAP_G = 192
NWG = 250

S_H, S_POS, S_EA, S_SRC, S_DST, S_WX, S_O0, S_O1, S_WS, S_Q = [8 + 4 * i for i in range(10)]
sC4, sC5 = 4, 5
sW, sQ, sCT, sMODE, sT0, sT1, sT2, sT3 = range(48, 56)
sEX, sM0, sM1, sM2 = 56, 58, 60, 62
sCN = [64, 65, 66, 67, 68]
sNO, sNT, sCO, sG4B, sL4, sU, sIDX, sNR, sIDX2, sBUF, sK2, sK3, sNODE, sCH, sOWNB, sMASK, sRETRY = range(69, 86)
STAMP0 = 86

vL = 0
vLS, vQD, vTRQ, vTRS, vOD, vODM, vBX = 1, 2, 3, 4, 5, 6, 7
vT = list(range(8, 16))
SEGO = 16; SEG4 = 32; ACC = 48; FACC = 64; QF = 80; SF = 88; OHD = 96; BXF = 100; ID = 104; MP = 112; TE = 120

_st = [0]
def stamp(name):
    if not TIMING: return
    i = _st[0]; _st[0] += 1
    c(f"STAMP {i} {name}")
    e(f"s_memtime s[{sC4}:{sC5}]")
    e("s_waitcnt lgkmcnt(0)")
    e(f"s_mov_b32 s{STAMP0+i}, s{sC4}")
    print("stamp", i, name)
    assert STAMP0 + i < 100
def stamp_flush():
    if not TIMING: return
    e(f"s_memrealtime s[{sC4}:{sC5}]")
    e("s_waitcnt lgkmcnt(0)")
    e("s_mov_b64 exec, 1")
    e(f"s_lshl_b32 s{sT0}, s2, 4")
    e(f"s_add_u32 s{sT0}, s{sT0}, s{sW}")
    e(f"s_lshl_b32 s{sT0}, s{sT0}, 8")
    e(f"s_add_u32 s{sT0}, s{sT0}, {32<<20}")
    e(f"v_mov_b32 v{vT[1]}, 0")
    for i in range(_st[0]):
        e(f"v_mov_b32 v{vT[0]}, s{STAMP0+i}")
        e(f"buffer_store_dword v{vT[0]}, v{vT[1]}, {srd(S_WS)}, s{sT0} offen offset:{i*4}")
    e(f"v_mov_b32 v{vT[0]}, s100")
    e(f"buffer_store_dword v{vT[0]}, v{vT[1]}, {srd(S_WS)}, s{sT0} offen offset:{62*4}")
    e(f"v_mov_b32 v{vT[0]}, s{sC4}")
    e(f"buffer_store_dword v{vT[0]}, v{vT[1]}, {srd(S_WS)}, s{sT0} offen offset:{63*4}")

header = []
header.append(f"; @launch kernel={gen3_k1.K1NAME} grid=({gen3_k1.K1_GRID},1,1) block=(640,1,1) lds={gen3_k1.K1_LDS}")
if STOP != "k1":
    header.append(f"; @launch kernel={KNAME} grid=({NWG},1,1) block=(1024,1,1) lds={LDS_TOTAL}")
header.append('.amdgcn_target "amdgcn-amd-amdhsa--gfx950"')
header.append(".text")
for k in (KNAME, gen3_k1.K1NAME):
    header.append(f".globl {k}")
    header.append(f".type {k},@function")

out.append(".p2align 8")
k1_desc = gen3_k1.gen_k1()
out.append(".p2align 8")
lab(KNAME)
e(f"s_cmp_ge_u32 s2, {NWG}")
e("s_cbranch_scc1 L_end2")
if TIMING:
    e("s_memrealtime s[100:101]")
for (x, off) in [(S_WS,80),(S_H,0),(S_POS,8),(S_EA,16),(S_SRC,24),(S_DST,32),(S_WX,48),(S_O0,64)]:
    e(f"s_load_dwordx2 s[{x}:{x+1}], s[0:1], {off}")
tid = vT[7]
e(f"v_mov_b32 v{tid}, v0")
e(f"v_lshrrev_b32 v{vT[0]}, 6, v0")
e(f"v_and_b32 v{vL}, 63, v0")
e(f"v_readfirstlane_b32 s{sW}, v{vT[0]}")
for (x, sz) in [(S_H,2560000),(S_POS,60000),(S_EA,320000),(S_SRC,640000),(S_DST,640000),(S_WX,256),(S_O0,2560000),(S_O1,60000),(S_WS,256*1048576),(S_Q,2560000)]:
    e(f"s_mov_b32 s{x+2}, {sz}")
    e(f"s_mov_b32 s{x+3}, 0x20000")
e(f"s_lshr_b32 s{sQ}, s{sW}, 2")
e(f"s_and_b32 s{sCT}, s{sW}, 3")
e(f"s_mov_b32 s{sMODE}, 0")
e(f"s_mov_b32 s{sNODE}, 0")
e(f"s_mov_b32 s{sMASK}, 0x3fff00")
c("zero LIST (t<960: 16B each; t>=960 -> counters region 64B by 4 lanes..)")
Z = 112
for i in range(4): e(f"v_mov_b32 v{Z+i}, 0")
e(f"v_lshlrev_b32 v{vT[0]}, 4, v{tid}")
e(f"v_add_u32 v{vT[1]}, {DE16}, v{vT[0]}")
e(f"v_add_u32 v{vT[2]}, {CTR - 960*16}, v{vT[0]}")
e(f"v_cmp_gt_u32 vcc, 960, v{tid}")
e(f"v_cndmask_b32 v{vT[1]}, v{vT[2]}, v{vT[1]}, vcc")
e(f"v_cmp_gt_u32 vcc, 964, v{tid}")
e("s_mov_b64 exec, vcc")
e(f"ds_write_b128 v{vT[1]}, {vr(Z,4)}")
e("s_mov_b64 exec, -1")
c("record address: (t>>4)*32000 + b*128 + (t&15)*8")
RC = 112
vC = 114
e(f"v_lshrrev_b32 v{vC}, 4, v{tid}")
e(f"v_mul_u32_u24 v{vT[0]}, 32000, v{vC}")
e(f"v_and_b32 v{vT[1]}, 15, v{tid}")
e(f"v_lshl_add_u32 v{vT[0]}, v{vT[1]}, 3, v{vT[0]}")
e(f"s_lshl_b32 s{sT0}, s2, 7")
e("s_waitcnt lgkmcnt(0)")
e(f"s_add_u32 s{S_O1}, s{S_O0}, 2560000")
e(f"s_addc_u32 s{S_O1+1}, s{S_O0+1}, 0")
e(f"s_add_u32 s{S_Q}, s{S_WS}, {QOFF}")
e(f"s_addc_u32 s{S_Q+1}, s{S_WS+1}, 0")
stamp("start")
gen3_k1.dbg_stamp(2, True, 88, sW, 125)
e(f"v_cmp_gt_u32 vcc, 1008, v{tid}")
e("s_mov_b64 exec, vcc")
e(f"buffer_load_dwordx2 {vr(RC,2)}, v{vT[0]}, {srd(S_WS)}, s{sT0} offen")
e("s_mov_b64 exec, -1")
c("own rows DMA (waves 0..9): rows 4w..4w+3 ; chunk = (l&15) ^ (row&15)")
e(f"s_cmp_ge_u32 s{sW}, 10")
e("s_cbranch_scc1 L_noown")
e(f"v_lshrrev_b32 v{vT[0]}, 4, v{vL}")
e(f"v_and_b32 v{vT[1]}, 15, v{vL}")
e(f"v_xor_b32 v{vT[1]}, v{vT[1]}, v{vT[0]}")
e(f"s_lshl_b32 s{sT0}, s{sCT}, 2")
e(f"v_xor_b32 v{vT[1]}, s{sT0}, v{vT[1]}")
e(f"v_lshlrev_b32 v{vT[1]}, 4, v{vT[1]}")
e(f"v_lshl_add_u32 v{vT[1]}, v{vT[0]}, 8, v{vT[1]}")
e(f"s_mul_i32 s{sT0}, s2, {40*256}")
e(f"s_lshl_b32 s{sT1}, s{sW}, 10")
e(f"s_add_u32 s{sT0}, s{sT0}, s{sT1}")
e(f"s_add_u32 m0, s{sT1}, {OWN}")
e("s_nop 0")
e(f"buffer_load_dwordx4 v{vT[1]}, {srd(S_H)}, s{sT0} offen lds")
e("s_branch L_own_done")
lab("L_noown")
c("PT raw DMA (wave 10): 60 dwords")
e(f"s_cmp_eq_u32 s{sW}, 10")
e("s_cbranch_scc0 L_own_done")
e(f"v_lshlrev_b32 v{vT[1]}, 2, v{vL}")
e(f"s_mul_i32 s{sT0}, s2, 240")
e(f"s_mov_b32 m0, {PT}")
e(f"v_cmp_gt_u32 vcc, 60, v{vL}")
e("s_mov_b64 exec, vcc")
e(f"buffer_load_dword v{vT[1]}, {srd(S_POS)}, s{sT0} offen lds")
e("s_mov_b64 exec, -1")
lab("L_own_done")
c("weight frags: q<2 -> WH1F, else W1F ; slice ct -> v16..47")
WF = 16
e(f"s_cmp_lt_u32 s{sQ}, 2")
e(f"s_cselect_b32 s{sT0}, 32768, 0")
e(f"s_add_u32 s{sT0}, s{sT0}, {WFOFF}")
e(f"s_lshl_b32 s{sT1}, s{sCT}, 13")
e(f"s_add_u32 s{sT0}, s{sT0}, s{sT1}")
e(f"s_add_u32 s{sT1}, s{sT0}, 4096")
e(f"v_lshlrev_b32 v{vT[0]}, 4, v{vL}")
for s_ in range(8):
    e(f"buffer_load_dwordx4 {vr(WF+4*s_,4)}, v{vT[0]}, {srd(S_WS)}, s{[sT0,sT1][s_>>2]} offen offset:{(s_%4)*1024}")
c("K1B -> BXF lanes >= 32")
e(f"v_and_b32 v{vT[1]}, 31, v{vL}")
e(f"v_lshlrev_b32 v{vT[1]}, 4, v{vT[1]}")
e(f"s_lshl_b32 s{sT0}, s{sCT}, 9")
e(f"s_add_u32 s{sT0}, s{sT0}, {WFOFF+98304}")
e("s_mov_b32 exec_lo, 0")
e(f"buffer_load_dwordx4 {vr(BXF,4)}, v{vT[1]}, {srd(S_WS)}, s{sT0} offen")
e("s_mov_b32 exec_lo, -1")
c("touch WH2F for L2 warmup: wave w lanes<16: line (w*16 + l)*128")
e(f"s_lshl_b32 s{sT0}, s{sW}, 11")
e(f"s_add_u32 s{sT0}, s{sT0}, {WFOFF+65536}")
e(f"v_lshlrev_b32 v{vT[2]}, 7, v{vL}")
e("s_mov_b64 exec, 0xffff")
e(f"buffer_load_dword v127, v{vT[2]}, {srd(S_WS)}, s{sT0} offen")
e("s_mov_b64 exec, -1")
NLATE = 10

c("lane constants")
e(f"v_and_b32 v{vT[2]}, 31, v{vL}              ; n / e")
e(f"v_lshrrev_b32 v{vT[3]}, 5, v{vL}           ; hi")
c("vLS = DE16 + 8 + (l>>2)*16 ; vQD = ct*64 + (l&3)*16")
e(f"v_lshrrev_b32 v{vT[4]}, 2, v{vL}")
e(f"v_lshlrev_b32 v{vLS}, 4, v{vT[4]}")
e(f"v_add_u32 v{vLS}, {DE16+8}, v{vLS}")
e(f"v_and_b32 v{vT[5]}, 3, v{vL}")
e(f"v_lshlrev_b32 v{vQD}, 4, v{vT[5]}")
e(f"s_lshl_b32 s{sT0}, s{sCT}, 6")
e(f"v_add_u32 v{vQD}, s{sT0}, v{vQD}")
c("vTRQ = QT + w*4096 + (8hi + r)*64 + colhalf*32 + c4*8 ; vTRS = REC + (4hi + r)*64 + colhalf*32 + c4*8")
e(f"v_bfe_u32 v{vT[4]}, v{vL}, 2, 2            ; r")
e(f"v_bfe_u32 v{vT[6]}, v{vL}, 4, 1            ; colhalf")
e(f"v_lshlrev_b32 v{vT[6]}, 5, v{vT[6]}")
e(f"v_lshl_add_u32 v{vT[6]}, v{vT[5]}, 3, v{vT[6]}   ; colhalf*32 + c4*8")
e(f"v_lshl_add_u32 v{vTRQ}, v{vT[3]}, 3, v{vT[4]}")
e(f"v_lshl_add_u32 v{vTRQ}, v{vTRQ}, 6, v{vT[6]}")
e(f"s_lshl_b32 s{sT0}, s{sW}, 12")
e(f"v_add_u32 v{vTRQ}, s{sT0}, v{vTRQ}")
e(f"v_lshl_add_u32 v{vTRS}, v{vT[3]}, 2, v{vT[4]}")
e(f"v_lshl_add_u32 v{vTRS}, v{vTRS}, 6, v{vT[6]}")
e(f"v_add_u32 v{vTRS}, {REC}, v{vTRS}")
c("OHD: lanes<32: REC + e*64 (mult 64); lanes>=32: DE16 + e*16 (mult 16)")
e(f"v_cmp_gt_u32 vcc, 32, v{vL}")
e(f"v_lshlrev_b32 v{vT[4]}, 6, v{vT[2]}")
e(f"v_add_u32 v{vT[4]}, {REC}, v{vT[4]}")
e(f"v_lshlrev_b32 v{vT[5]}, 4, v{vT[2]}")
e(f"v_add_u32 v{vT[5]}, {DE16}, v{vT[5]}")
e(f"v_cndmask_b32 v{vOD}, v{vT[5]}, v{vT[4]}, vcc")
e(f"v_mov_b32 v{vT[4]}, 64")
e(f"v_mov_b32 v{vT[5]}, 16")
e(f"v_cndmask_b32 v{vODM}, v{vT[5]}, v{vT[4]}, vcc")
c("vBX = BXP + ct*512 + n*16")
e(f"v_lshlrev_b32 v{vBX}, 4, v{vT[2]}")
e(f"s_lshl_b32 s{sT0}, s{sCT}, 9")
e(f"s_add_u32 s{sT0}, s{sT0}, {BXP}")
e(f"v_add_u32 v{vBX}, s{sT0}, v{vBX}")
e(f"s_mul_i32 s{sOWNB}, s{sQ}, {CAP_G}")
c("stage-1 slot constants")
vS0, vS1, vCnt, vOne = 115, 116, 117, 118
e(f"v_and_b32 v{vS1}, 15, v{tid}")
e(f"v_lshlrev_b32 v{vS1}, 1, v{vS1}")
e(f"v_add_u32 v{vS0}, -1, v{vS1}")
e(f"v_mov_b32 v{vOne}, 1")
e("s_waitcnt lgkmcnt(0)")
e("s_barrier")
e(f"s_waitcnt vmcnt({NLATE+1})")
c("NOTE: waves 11..15 have no own/PT dma -> vmcnt(NLATE+1) insufficient for them; use NLATE for those")
e(f"s_cmp_lt_u32 s{sW}, 11")
e("s_cbranch_scc1 L_rec_ok")
e(f"s_waitcnt vmcnt({NLATE})")
lab("L_rec_ok")
stamp("records landed")
c("stage 1 (fast)")
e(f"v_mov_b32_dpp v{vCnt}, v{RC} row_newbcast:0 row_mask:0xf bank_mask:0xf")
vG0, vG1, vR0, vR1, vA0, vA1 = 119, 120, 121, 122, 123, 124
e(f"v_bfe_u32 v{vG0}, v{RC}, 3, 3")
e(f"v_bfe_u32 v{vG1}, v{RC+1}, 3, 3")
e(f"s_mov_b32 s{sT0}, {ALLOC}")
e(f"v_lshl_add_u32 v{vA0}, v{vG0}, 2, s{sT0}")
e(f"v_lshl_add_u32 v{vA1}, v{vG1}, 2, s{sT0}")
e(f"v_cmp_lt_u32 {sp(sM0)}, v{vS0}, v{vCnt}")
e(f"v_cmp_lt_u32 {sp(sM1)}, v{vS1}, v{vCnt}")
e(f"v_cmp_lt_u32 vcc, 31, v{vCnt}")
e(f"s_mov_b64 exec, {sp(sM0)}")
e(f"ds_add_rtn_u32 v{vR0}, v{vA0}, v{vOne}")
e(f"s_mov_b64 exec, {sp(sM1)}")
e(f"ds_add_rtn_u32 v{vR1}, v{vA1}, v{vOne}")
e("s_mov_b64 exec, -1")
e("s_cbranch_vccz L_s1_noovf")
e(f"v_mov_b32 v{vA0}, {OVF}")
e(f"ds_write_b32 v{vA0}, v{vOne}")
lab("L_s1_noovf")
e(f"s_mov_b32 s{sT0}, {DE16+8}")
e(f"v_mul_u32_u24 v{vG0}, {CAP_G}, v{vG0}")
e(f"v_mul_u32_u24 v{vG1}, {CAP_G}, v{vG1}")
def s1_place(vR, vG, vA, rec, msk, tag):
    e(f"v_cmp_gt_u32 vcc, {CAP_G}, v{vR}")
    e(f"v_add_u32 v{vG}, v{vG}, v{vR}")
    e(f"v_lshl_add_u32 v{vA}, v{vG}, 4, s{sT0}")
    e(f"s_and_b64 exec, {sp(msk)}, vcc")
    e(f"ds_write2_b32 v{vA}, v{rec}, v{vC} offset0:0 offset1:1")
    e(f"s_andn2_b64 exec, {sp(msk)}, vcc")
    e(f"s_cbranch_execz L_s1_ok{tag}")
    e(f"v_mov_b32 v{vA}, {OVF}")
    e(f"ds_write_b32 v{vA}, v{vOne}")
    lab(f"L_s1_ok{tag}")
    e("s_mov_b64 exec, -1")
e("s_waitcnt lgkmcnt(1)")
s1_place(vR0, vG0, vA0, RC, sM0, "a")
e("s_waitcnt lgkmcnt(0)")
s1_place(vR1, vG1, vA1, RC+1, sM1, "b")
e(f"s_waitcnt vmcnt(0) lgkmcnt(0)")
e("s_barrier")
stamp("BA")

lab("L_stage2")
c("counts")
e(f"v_mov_b32 v{vT[0]}, {ALLOC}")
e(f"ds_read_b128 {vr(104,4)}, v{vT[0]}")
e(f"ds_read_b64 {vr(108,2)}, v{vT[0]} offset:16")
c("own list entry (idx = tid)")
e(f"s_lshl_b32 s{sT0}, s{sW}, 6")
e(f"v_add_u32 v{tid}, s{sT0}, v{vL}")
e(f"v_lshlrev_b32 v{vT[1]}, 4, v{tid}")
e(f"v_add_u32 v{vT[1]}, {DE16}, v{vT[1]}")
pRC, pC = 112, 113
e(f"ds_read_b64 {vr(pRC,2)}, v{vT[1]} offset:8")
c("zero own REC chunk (4 KB per wave, waves<15)")
e(f"v_mov_b32 v116, 0"); e(f"v_mov_b32 v117, 0"); e(f"v_mov_b32 v118, 0"); e(f"v_mov_b32 v119, 0")
e(f"s_lshl_b32 s{sT0}, s{sW}, 12")
e(f"s_add_u32 s{sT0}, s{sT0}, {REC}")
e(f"v_lshlrev_b32 v{vT[2]}, 4, v{vL}")
e(f"v_add_u32 v{vT[2]}, s{sT0}, v{vT[2]}")
e(f"s_cmp_eq_u32 s{sW}, 15")
e("s_cbranch_scc1 L_nozero")
for i in range(4):
    e(f"ds_write_b128 v{vT[2]}, v[116:119] offset:{i*1024}")
lab("L_nozero")
e("s_waitcnt lgkmcnt(0)" )
for g in range(5):
    e(f"v_readfirstlane_b32 s{sCN[g]}, v{104+g}")
e(f"v_readfirstlane_b32 s{sT3}, v109           ; OVF")
e("s_nop 3")
e(f"s_cmp_eq_u32 s{sMODE}, 0")
e("s_cbranch_scc0 L_s2_noovfchk")
e(f"s_cmp_lg_u32 s{sT3}, 0")
e("s_cbranch_scc1 L_slow_init")
lab("L_s2_noovfchk")
for g in range(5):
    e(f"s_min_u32 s{sCN[g]}, s{sCN[g]}, {CAP_G}")
c("stage 2 part 1: valid = slot < cnt[w/3]; issue pos/ea loads")
e(f"s_mul_i32 s{sT0}, s{sW}, 43")
e(f"s_lshr_b32 s{sT0}, s{sT0}, 7            ; g = w/3")
e(f"s_mul_i32 s{sT1}, s{sT0}, {CAP_G}")
e(f"s_mov_b32 s{sT2}, 0")
for g in range(5):
    e(f"s_cmp_eq_u32 s{sT0}, {g}")
    e(f"s_cselect_b32 s{sT2}, s{sCN[g]}, s{sT2}")
e(f"s_add_u32 s{sT2}, s{sT2}, s{sT1}")
e(f"v_cmp_gt_u32 {sp(sM2)}, s{sT2}, v{tid}")
pS, pK, pE, pPS, pEA, pPD = 114, 115, 116, 118, 117, 120
pX = [123, 124, 125, 126, 127, 96, 97, 98, 99]
e(f"v_bfe_u32 v{pS}, v{pRC}, 8, 14")
e(f"v_and_b32 v{pK}, 63, v{pRC}")
e(f"v_mul_u32_u24 v{pX[0]}, 6, v{pS}")
e(f"v_and_b32 v{pX[0]}, -4, v{pX[0]}")
e(f"v_bfe_u32 v{pX[1]}, v{pRC}, 6, 2")
e(f"v_mul_u32_u24 v{pE}, 2560, v{pC}")
e(f"v_mad_u32_u24 v{pE}, v{pX[1]}, s{sT1}, v{pE}" if False else f"v_mul_u32_u24 v{pX[1]}, 640, v{pX[1]}")
e(f"v_lshrrev_b32 v{pX[2]}, 22, v{pRC}")
e(f"v_add3_u32 v{pE}, v{pE}, v{pX[1]}, v{pX[2]}")
e(f"v_lshlrev_b32 v{pE}, 1, v{pE}")
e(f"s_mov_b64 exec, {sp(sM2)}")
e(f"buffer_load_dwordx2 {vr(pPS,2)}, v{pX[0]}, {srd(S_POS)}, 0 offen")
e(f"buffer_load_ushort v{pEA}, v{pE}, {srd(S_EA)}, 0 offen")
e(f"v_mul_u32_u24 v{pX[3]}, 6, v{pK}")
e(f"v_add_u32 v{pX[3]}, {PT}, v{pX[3]}")
for k in range(3):
    e(f"ds_read_u16 v{pPD+k}, v{pX[3]} offset:{2*k}")
e("s_mov_b64 exec, -1")
c("schedule")
e(f"s_mov_b32 s{sCO}, s{sCN[0]}")
for g in range(1, 4):
    e(f"s_cmp_eq_u32 s{sQ}, {g}")
    e(f"s_cselect_b32 s{sCO}, s{sCN[g]}, s{sCO}")
e(f"s_add_u32 s{sNO}, s{sCO}, 31")
e(f"s_lshr_b32 s{sNO}, s{sNO}, 5")
e(f"s_add_u32 s{sT0}, s{sCN[4]}, 3")
e(f"s_lshr_b32 s{sT0}, s{sT0}, 2")
e(f"s_add_u32 s{sT0}, s{sT0}, 7")
e(f"s_and_b32 s{sT0}, s{sT0}, -8             ; part")
e(f"s_mul_i32 s{sT1}, s{sT0}, s{sQ}")
e(f"s_min_u32 s{sT1}, s{sT1}, s{sCN[4]}       ; st")
e(f"s_sub_u32 s{sL4}, s{sCN[4]}, s{sT1}")
e(f"s_min_u32 s{sL4}, s{sL4}, s{sT0}          ; len")
e(f"s_add_u32 s{sG4B}, s{sT1}, {4*CAP_G}")
e(f"s_add_u32 s{sT0}, s{sL4}, 31")
e(f"s_lshr_b32 s{sT0}, s{sT0}, 5")
e(f"s_add_u32 s{sNT}, s{sNO}, s{sT0}")
def tile_params(u, idx, nr=None):
    us = f"s{u}" if not isinstance(u, str) else u
    e(f"s_sub_u32 s{sT0}, {us}, s{sNO}")
    e(f"s_cmp_lt_u32 {us}, s{sNO}")
    e(f"s_cselect_b32 s{sT0}, {us}, s{sT0}")
    e(f"s_cselect_b32 s{idx}, s{sOWNB}, s{sG4B}")
    if nr is not None:
        e(f"s_cselect_b32 s{nr}, s{sCO}, s{sL4}")
    e(f"s_lshl_b32 s{sT0}, s{sT0}, 5")
    e(f"s_add_u32 s{idx}, s{idx}, s{sT0}")
    if nr is not None:
        e(f"s_sub_u32 s{nr}, s{nr}, s{sT0}")
        e(f"s_min_u32 s{nr}, s{nr}, 32")
def dma_lookup(idx):
    e(f"s_lshl_b32 s{sT0}, s{idx}, 4")
    e(f"v_add_u32 v{vT[0]}, s{sT0}, v{vLS}")
    e(f"ds_read2_b32 {vr(vT[2],2)}, v{vT[0]} offset0:0 offset1:64")
def dma_issue(buf):
    e(f"v_and_or_b32 v{vT[2]}, v{vT[2]}, s{sMASK}, v{vQD}")
    e(f"v_and_or_b32 v{vT[3]}, v{vT[3]}, s{sMASK}, v{vQD}")
    e(f"s_mov_b32 m0, s{buf}")
    e(f"s_nop 0")
    e(f"buffer_load_dwordx4 v{vT[2]}, {srd(S_Q)}, 0 offen lds")
    e(f"s_add_u32 m0, s{buf}, 1024")
    e(f"s_nop 0")
    e(f"buffer_load_dwordx4 v{vT[3]}, {srd(S_Q)}, 0 offen lds")
e(f"s_lshl_b32 s{sBUF}, s{sW}, 12")
e(f"s_cmp_eq_u32 s{sNT}, 0")
e("s_cbranch_scc1 L_dma0_done")
tile_params("0", sIDX2)
dma_lookup(sIDX2)
e("s_waitcnt lgkmcnt(0)")
dma_issue(sBUF)
e(f"s_cmp_lt_u32 s{sNT}, 2")
e("s_cbranch_scc1 L_dma0_done")
tile_params("1", sIDX2)
dma_lookup(sIDX2)
e(f"s_add_u32 s{sT2}, s{sBUF}, 2048")
e("s_waitcnt lgkmcnt(0)")
dma_issue(sT2)
lab("L_dma0_done")
stamp("dma0 issued")
c("node task (once)")
e(f"s_cmp_eq_u32 s{sNODE}, 0")
e("s_cbranch_scc0 L_node_done")
e(f"s_mov_b32 s{sNODE}, 1")
def rowreg(s_): return (ACC + 4*s_) if s_ < 4 else (QF + 4*(s_-4))
c("row read address: OWN + row*256 + ((hi ^ (row&15))<<4) ^ (s<<5); row = n (q even) or min(32+n,39) (q odd)")
e(f"v_and_b32 v{vT[4]}, 31, v{vL}")
e(f"v_lshrrev_b32 v{vT[5]}, 5, v{vL}")
e(f"v_add_u32 v{vT[6]}, 32, v{vT[4]}")
e(f"v_min_u32 v{vT[6]}, 39, v{vT[6]}")
e(f"s_bitcmp1_b32 s{sQ}, 0")
e(f"s_cselect_b64 vcc, -1, 0")
e(f"v_cndmask_b32 v{vT[6]}, v{vT[4]}, v{vT[6]}, vcc      ; row")
e(f"v_and_b32 v{vT[0]}, 15, v{vT[6]}")
e(f"v_xor_b32 v{vT[0]}, v{vT[0]}, v{vT[5]}")
e(f"v_lshlrev_b32 v{vT[0]}, 4, v{vT[0]}")
e(f"v_lshl_add_u32 v{vT[0]}, v{vT[6]}, 8, v{vT[0]}")
e(f"v_add_u32 v{vT[0]}, {OWN}, v{vT[0]}")
for s_ in range(8):
    e(f"v_xor_b32 v{vT[6]}, {s_<<5}, v{vT[0]}")
    e(f"ds_read_b128 {vr(rowreg(s_),4)}, v{vT[6]}")
e(f"s_cmp_eq_u32 s{sQ}, 0")
e("s_cbranch_scc0 L_node_nt")
for s_ in range(8):
    e(f"s_waitcnt lgkmcnt({7-s_})")
    mfma(FACC, WF+4*s_, rowreg(s_), "0" if s_ == 0 else vr(FACC,16))
e("s_branch L_node_fin")
lab("L_node_nt")
for s_ in range(8):
    e(f"s_waitcnt lgkmcnt({7-s_})")
    mfma(FACC, rowreg(s_), WF+4*s_, "0" if s_ == 0 else vr(FACC,16))
e(f"s_cmp_eq_u32 s{sQ}, 1")
e("s_cbranch_scc1 L_node_fin")
c("P' write: BXP + (g*4+ct)*512 + n*16 + hi*8 ; q2: g=0..3 ; q3: g=4")
e(f"v_lshl_add_u32 v{vT[6]}, v{vT[5]}, 3, v{vBX}")
e(f"s_mov_b32 s{sK2}, 0x{NLOG2E:08x}")
e("s_nop 7"); e("s_nop 3")
def pwrite(r0, g):
    for i in range(4):
        e(f"v_mul_f32 v{r0+i}, s{sK2}, v{r0+i}")
    e(f"v_cvt_pk_bf16_f32 v{r0}, v{r0}, v{r0+1}")
    e(f"v_cvt_pk_bf16_f32 v{r0+1}, v{r0+2}, v{r0+3}")
    e(f"ds_write_b64 v{vT[6]}, {vr(r0,2)} offset:{g*2048}")
e(f"s_cmp_eq_u32 s{sQ}, 3")
e("s_cbranch_scc1 L_node_g4")
for g in range(4):
    pwrite(FACC+4*g, g)
e("s_branch L_node_fin")
lab("L_node_g4")
pwrite(FACC, 4)
lab("L_node_fin")
e("s_nop 7")
for r in range(32):
    e(f"v_mov_b32 v{SEGO+r}, 0")
lab("L_node_done")
stamp("node done")
c("stage 2 part 2")
e("s_waitcnt vmcnt(0) lgkmcnt(0)")
stamp("pos landed")
e(f"s_mov_b64 exec, {sp(sM2)}")
e("s_cbranch_execz L_s2_done")
e(f"v_and_b32 v{pX[0]}, 1, v{pS}")
e(f"v_lshlrev_b32 v{pX[0]}, 4, v{pX[0]}        ; shift")
e(f"v_alignbit_b32 v{pX[1]}, v{pPS+1}, v{pPS}, v{pX[0]}     ; x | y<<16")
e(f"v_lshrrev_b32 v{pX[2]}, v{pX[0]}, v{pPS+1}              ; z (low 16)")
e(f"v_lshlrev_b32 v{pPS}, 16, v{pX[1]}")
e(f"v_and_b32 v{pPS+1}, 0xffff0000, v{pX[1]}")
e(f"v_lshlrev_b32 v{pX[2]}, 16, v{pX[2]}")
for k in range(3):
    e(f"v_lshlrev_b32 v{pPD+k}, 16, v{pPD+k}")
e(f"v_sub_f32 v{pPD}, v{pPD}, v{pPS}")
e(f"v_sub_f32 v{pPD+1}, v{pPD+1}, v{pPS+1}")
e(f"v_sub_f32 v{pPD+2}, v{pPD+2}, v{pX[2]}")
e(f"v_cvt_pk_bf16_f32 v{pX[0]}, v{pPD}, v{pPD+1}")
e(f"v_cvt_pk_bf16_f32 v{pX[1]}, v{pPD+2}, v{pPD+2}     ; dz")
e(f"v_lshlrev_b32 v{pPD}, 16, v{pX[0]}")
e(f"v_and_b32 v{pPD+1}, 0xffff0000, v{pX[0]}")
e(f"v_lshlrev_b32 v{pPD+2}, 16, v{pX[1]}")
for k in range(3):
    e(f"v_mul_f32 v{pPD+k}, v{pPD+k}, v{pPD+k}")
e(f"v_cvt_pk_bf16_f32 v{pX[2]}, v{pPD}, v{pPD+1}")
e(f"v_cvt_pk_bf16_f32 v{pX[3]}, v{pPD+2}, v{pPD+2}")
e(f"v_lshlrev_b32 v{pPD}, 16, v{pX[2]}")
e(f"v_and_b32 v{pPD+1}, 0xffff0000, v{pX[2]}")
e(f"v_lshlrev_b32 v{pPD+2}, 16, v{pX[3]}")
e(f"v_add_f32 v{pPD}, v{pPD}, v{pPD+1}")
e(f"v_add_f32 v{pPD}, v{pPD}, v{pPD+2}")
e(f"v_cvt_pk_bf16_f32 v{pX[2]}, v{pPD}, v{pPD}")
e(f"v_and_b32 v{pX[2]}, 0xffff, v{pX[2]}")
e(f"v_and_b32 v{pX[6]}, 7, v{pK}")
e(f"v_lshlrev_b32 v{pX[6]}, 1, v{pX[6]}")
e(f"v_lshl_add_u32 v{pX[6]}, v{tid}, 6, v{pX[6]}")
e(f"v_add_u32 v{pX[6]}, {REC}, v{pX[6]}")
e(f"v_mov_b32 v{pX[7]}, 0x3f80")
e(f"ds_write_b16 v{pX[6]}, v{pX[7]}")
e(f"ds_write_b16 v{pX[6]}, v{pX[0]} offset:16")
e(f"ds_write_b16_d16_hi v{pX[6]}, v{pX[0]} offset:32")
e(f"ds_write_b16 v{pX[6]}, v{pX[1]} offset:48")
DW = 124
e(f"v_lshl_or_b32 v{DW}, v{pEA}, 16, v{pX[2]}           ; d2 | ea<<16")
e(f"v_mov_b32 v{DW+1}, v{DW}")
e(f"v_and_b32 v{DW+2}, s{sMASK}, v{pRC}")
e(f"v_mov_b32 v{DW+3}, 0")
e(f"v_lshlrev_b32 v{pX[5]}, 4, v{tid}")
e(f"v_add_u32 v{pX[5]}, {DE16}, v{pX[5]}")
e(f"ds_write_b128 v{pX[5]}, {vr(DW,4)}")
lab("L_s2_done")
e("s_mov_b64 exec, -1")
c("ID constants: lane (m,hi): step s elem i = (m == 16s + 8hi + i)")
e(f"v_and_b32 v{vT[4]}, 31, v{vL}")
e(f"v_lshrrev_b32 v{vT[5]}, 5, v{vL}")
e(f"v_lshlrev_b32 v{vT[5]}, 3, v{vT[5]}")
e(f"v_sub_u32 v{vT[4]}, v{vT[4]}, v{vT[5]}        ; x = m - 8hi")
e(f"v_mov_b32 v{vT[5]}, 0x3f80")
e(f"v_mov_b32 v{vT[6]}, 0x3f800000")
for s_ in range(2):
    for r in range(4):
        x0 = 16*s_ + 2*r
        e(f"v_cmp_eq_u32 vcc, {x0}, v{vT[4]}")
        e(f"v_cndmask_b32 v{ID+4*s_+r}, 0, v{vT[5]}, vcc")
        e(f"v_cmp_eq_u32 vcc, {x0+1}, v{vT[4]}")
        e(f"v_cndmask_b32 v{ID+4*s_+r}, v{ID+4*s_+r}, v{vT[6]}, vcc")
c("own-group BXF (lanes<32)")
e(f"s_lshl_b32 s{sT0}, s{sQ}, 11")
e(f"v_add_u32 v{vT[4]}, s{sT0}, v{vBX}")
e("s_waitcnt lgkmcnt(0)")
e("s_barrier          ; BB")
stamp("BB")
e("s_mov_b32 exec_hi, 0")
e(f"ds_read_b128 {vr(BXF,4)}, v{vT[4]}")
e("s_mov_b32 exec_hi, -1")
e(f"s_mov_b32 s{sU}, 0")
c("make vTRQ point at buffer 0")
e(f"v_and_b32 v{vTRQ}, {0xffffffff ^ 2048:#x}, v{vTRQ}")

def tile_body(SEG, tag):
    tile_params(sU, sIDX, sNR)
    c("lookup for tile u+2")
    e(f"s_add_u32 s{sT2}, s{sU}, 2")
    e(f"s_cmp_lt_u32 s{sT2}, s{sNT}")
    e(f"s_cselect_b32 s{sK3}, 1, 0")
    e(f"s_cbranch_scc0 L_nolk{tag}")
    tile_params(sT2, sIDX2)
    dma_lookup(sIDX2)
    lab(f"L_nolk{tag}")
    e(f"v_mad_u32_u24 v{vT[1]}, s{sIDX}, v{vODM}, v{vOD}")
    e(f"ds_read_b128 {vr(OHD,4)}, v{vT[1]}")
    e(f"s_lshl_b32 s{sT0}, s{sIDX}, 6")
    e(f"v_add_u32 v{vT[4]}, s{sT0}, v{vTRS}")
    c("wait for this tile's Q")
    e(f"s_add_u32 s{sT2}, s{sU}, 1")
    e(f"s_cmp_lt_u32 s{sT2}, s{sNT}")
    e(f"s_cbranch_scc1 L_w2{tag}")
    e("s_waitcnt vmcnt(0)")
    e(f"s_branch L_wd{tag}")
    lab(f"L_w2{tag}")
    e("s_waitcnt vmcnt(2)")
    lab(f"L_wd{tag}")
    e(f"ds_read_b64_tr_b16 {vr(QF,2)}, v{vTRQ}")
    e(f"ds_read_b64_tr_b16 {vr(QF+2,2)}, v{vTRQ} offset:256")
    e(f"ds_read_b64_tr_b16 {vr(QF+4,2)}, v{vTRQ} offset:1024")
    e(f"ds_read_b64_tr_b16 {vr(QF+6,2)}, v{vTRQ} offset:1280")
    e(f"ds_read_b64_tr_b16 {vr(SF,2)}, v{vT[4]}")
    e(f"ds_read_b64_tr_b16 {vr(SF+2,2)}, v{vT[4]} offset:512")
    e(f"ds_read_b64_tr_b16 {vr(SF+4,2)}, v{vT[4]} offset:1024")
    e(f"ds_read_b64_tr_b16 {vr(SF+6,2)}, v{vT[4]} offset:1536")
    e("s_waitcnt lgkmcnt(8)")
    mfma(ACC, OHD, BXF, "0")
    e("s_waitcnt lgkmcnt(6)")
    mfma(ACC, ID, QF, vr(ACC,16))
    e("s_waitcnt lgkmcnt(4)")
    mfma(ACC, ID+4, QF+4, vr(ACC,16))
    e(f"s_cmp_eq_u32 s{sK3}, 0")
    e(f"s_cbranch_scc1 L_nodma{tag}")
    dma_issue(sBUF)
    lab(f"L_nodma{tag}")
    e(f"s_xor_b32 s{sBUF}, s{sBUF}, 2048")
    e(f"v_xor_b32 v{vTRQ}, 2048, v{vTRQ}")
    e("s_nop 7")
    e("s_nop 2")
    for bb in range(4):
        if bb > 0:
            e(f"s_cmp_le_u32 s{sNR}, {8*bb}")
            e(f"s_cbranch_scc1 L_skip{tag}{bb}")
        a = ACC + 4*bb
        t = TE + 4*(bb & 1)
        for i in range(4): e(f"v_exp_f32 v{t+i}, v{a+i}")
        for i in range(4): e(f"v_add_f32 v{t+i}, 1.0, v{t+i}")
        for i in range(4): e(f"v_rcp_f32 v{t+i}, v{t+i}")
        for i in range(4): e(f"v_mul_f32 v{t+i}, v{a+i}, v{t+i}")
        e(f"v_cvt_pk_bf16_f32 v{MP+2*bb}, v{t}, v{t+1}")
        e(f"v_cvt_pk_bf16_f32 v{MP+2*bb+1}, v{t+2}, v{t+3}")
    e(f"s_branch L_blk{tag}")
    for bb in range(1, 4):
        lab(f"L_skip{tag}{bb}")
        e(f"v_mov_b32 v{MP+2*bb}, 0")
        e(f"v_mov_b32 v{MP+2*bb+1}, 0")
    lab(f"L_blk{tag}")
    e("s_waitcnt lgkmcnt(0)")
    e("s_nop 1")
    mfma(SEG, SF, MP, vr(SEG,16))
    mfma(SEG, SF+4, MP+4, vr(SEG,16))
    e(f"s_add_u32 s{sU}, s{sU}, 1")

e(f"s_cmp_eq_u32 s{sNO}, 0")
e("s_cbranch_scc1 L_own_end")
lab("L_own_loop")
tile_body(SEGO, "o")
e(f"s_cmp_lt_u32 s{sU}, s{sNO}")
e("s_cbranch_scc1 L_own_loop")
lab("L_own_end")
stamp("own tiles done")
e(f"s_cmp_ge_u32 s{sU}, s{sNT}")
e("s_cbranch_scc1 L_tiles_done")
e(f"v_add_u32 v{vT[4]}, {4*2048}, v{vBX}")
e("s_mov_b32 exec_hi, 0")
e(f"ds_read_b128 {vr(BXF,4)}, v{vT[4]}")
e("s_mov_b32 exec_hi, -1")
lab("L_g4_loop")
tile_body(SEG4, "p")
e(f"s_cmp_lt_u32 s{sU}, s{sNT}")
e("s_cbranch_scc1 L_g4_loop")
lab("L_tiles_done")
stamp("tiles done")
e(f"s_cmp_eq_u32 s{sMODE}, 0")
e("s_cbranch_scc0 L_slow_next")

lab("L_final")
WFL = 80
ROW = 16
HRES = 112
vN = vT[1]; vHI = vT[2]; vOFF = vT[3]; vRD = vT[4]
e(f"v_and_b32 v{vN}, 31, v{vL}")
e(f"v_lshrrev_b32 v{vHI}, 5, v{vL}")
c("late frags: q<2: WH2F slice ct ; q>=2: wx frags")
e(f"s_cmp_ge_u32 s{sQ}, 2")
e("s_cbranch_scc1 L_f_wx")
e(f"s_lshl_b32 s{sT0}, s{sCT}, 13")
e(f"s_add_u32 s{sT0}, s{sT0}, {WFOFF+65536}")
e(f"s_add_u32 s{sT1}, s{sT0}, 4096")
e(f"v_lshlrev_b32 v{vT[0]}, 4, v{vL}")
for s_ in range(8):
    e(f"buffer_load_dwordx4 {vr(WFL+4*s_,4)}, v{vT[0]}, {srd(S_WS)}, s{[sT0,sT1][s_>>2]} offen offset:{(s_%4)*1024}")
e("s_branch L_f_flush")
lab("L_f_wx")
e(f"v_lshlrev_b32 v{vT[0]}, 4, v{vHI}")
for s_ in range(8):
    e(f"buffer_load_dwordx4 {vr(WFL+4*s_,4)}, v{vT[0]}, {srd(S_WX)}, 0 offen offset:{s_*32}")
lab("L_f_flush")
c("flush: addr a = QT + w*4096 + hi*256 + (((n>>3) ^ (hi | ((q&1)<<1)))<<4) + (n&7)*2 ; b = a ^ 32")
e(f"s_and_b32 s{sT0}, s{sQ}, 1")
e(f"s_lshl_b32 s{sT0}, s{sT0}, 1")
e(f"v_or_b32 v{vT[5]}, s{sT0}, v{vHI}")
e(f"v_lshrrev_b32 v{vT[6]}, 3, v{vN}")
e(f"v_xor_b32 v{vT[5]}, v{vT[5]}, v{vT[6]}")
e(f"v_lshlrev_b32 v{vT[5]}, 4, v{vT[5]}")
e(f"v_lshl_add_u32 v{vT[5]}, v{vHI}, 8, v{vT[5]}")
e(f"v_and_b32 v{vT[6]}, 7, v{vN}")
e(f"v_lshl_add_u32 v{vT[5]}, v{vT[6]}, 1, v{vT[5]}")
e(f"s_lshl_b32 s{sT0}, s{sW}, 12")
e(f"v_add_u32 v{vT[5]}, s{sT0}, v{vT[5]}")
e(f"v_xor_b32 v{vT[6]}, 32, v{vT[5]}")
e(f"s_mov_b32 s{sT1}, 0x{NLN2:08x}")
e("s_nop 7")
def flush(SEG, which):
    for r in range(4):
        e(f"v_mul_f32 v{SEG+r}, s{sT1}, v{SEG+r}")
    for p in range(8):
        e(f"v_cvt_pk_bf16_f32 v{SEG+p}, v{SEG+2*p}, v{SEG+2*p+1}")
    for p in range(8):
        r = 2*p
        row0 = 8*(r >> 2) + (r & 3)
        a = vT[5] if ((r >> 2) & 1) == 0 else vT[6]
        e(f"ds_write_b16 v{a}, v{SEG+p} offset:{which*2048 + row0*64}")
        e(f"ds_write_b16_d16_hi v{a}, v{SEG+p} offset:{which*2048 + (row0+1)*64}")
flush(SEGO, 0)
flush(SEG4, 1)
c("row address per role: addr = q'*16384 + which*2048 + rho*64 + ((hi ^ ((rho>>2)&3) ^ ((q'&1)<<1))<<4)")
vQP = vT[5]; vRHO = vT[6]
e(f"v_lshrrev_b32 v{vQP}, 3, v{vN}            ; q' = n>>3 (roles A,B,D)")
e(f"v_and_b32 v{vRHO}, 7, v{vN}")
e(f"s_and_b32 s{sT2}, s{sQ}, 1")
e(f"s_lshl_b32 s{sT2}, s{sT2}, 11")
e(f"s_cmp_eq_u32 s{sQ}, 2")
e("s_cbranch_scc0 L_f_notC")
e(f"v_mov_b32 v{vQP}, s{sCT}")
e(f"v_mov_b32 v{vRHO}, v{vN}")
lab("L_f_notC")
e(f"s_cmp_eq_u32 s{sQ}, 3")
e("s_cbranch_scc0 L_f_notD")
e(f"s_lshl_b32 s{sT0}, s{sCT}, 3")
e(f"s_add_u32 s{sT0}, s{sT0}, 8")
e(f"s_and_b32 s{sT0}, s{sT0}, 31")
e(f"v_add_u32 v{vRHO}, s{sT0}, v{vRHO}")
lab("L_f_notD")
e(f"v_bfe_u32 v{vT[0]}, v{vRHO}, 2, 2")
e(f"v_xor_b32 v{vT[0]}, v{vT[0]}, v{vHI}")
e(f"v_and_b32 v{vT[7]}, 1, v{vQP}")
e(f"v_lshlrev_b32 v{vT[7]}, 1, v{vT[7]}")
e(f"v_xor_b32 v{vT[0]}, v{vT[0]}, v{vT[7]}")
e(f"v_lshlrev_b32 v{vRD}, 4, v{vT[0]}")
e(f"v_lshl_add_u32 v{vRD}, v{vRHO}, 6, v{vRD}")
e(f"v_lshl_add_u32 v{vRD}, v{vQP}, 14, v{vRD}")
e(f"v_add_u32 v{vRD}, s{sT2}, v{vRD}")
c("residuals + output offsets")
e(f"s_mul_i32 s{sK3}, s2, 40")
e(f"s_cmp_ge_u32 s{sQ}, 2")
e("s_cbranch_scc1 L_f_resCD")
e(f"s_cmp_eq_u32 s{sQ}, 1")
e("s_cbranch_scc1 L_f_resB")
c("role A: h[node n][32ct + 8bb + 4hi..+3]: OWN + n*256 + (((ct*4+bb) ^ (n&15))<<4) + hi*8")
e(f"v_and_b32 v{vT[0]}, 15, v{vN}")
e(f"s_lshl_b32 s{sT0}, s{sCT}, 2")
e(f"v_xor_b32 v{vT[0]}, s{sT0}, v{vT[0]}")
e(f"v_lshlrev_b32 v{vT[0]}, 4, v{vT[0]}")
e(f"v_lshl_add_u32 v{vT[0]}, v{vN}, 8, v{vT[0]}")
e(f"v_lshl_add_u32 v{vT[0]}, v{vHI}, 3, v{vT[0]}")
e(f"v_add_u32 v{vT[0]}, {OWN}, v{vT[0]}")
for bb in range(4):
    e(f"v_xor_b32 v{vT[7]}, {bb<<4}, v{vT[0]}")
    e(f"ds_read_b64 {vr(HRES+2*bb,2)}, v{vT[7]}")
e(f"v_add_u32 v{vOFF}, s{sK3}, v{vN}")
e(f"v_lshlrev_b32 v{vOFF}, 8, v{vOFF}")
e(f"v_lshl_add_u32 v{vOFF}, v{vHI}, 3, v{vOFF}")
e(f"s_lshl_b32 s{sT0}, s{sCT}, 6")
e(f"v_add_u32 v{vOFF}, s{sT0}, v{vOFF}")
e("s_branch L_f_bar")
lab("L_f_resB")
c("role B: rows 32+4hi+i, col 32ct+n: OWN + row*256 + (((ct*4 + (n>>3)) ^ (row&15))<<4) + (n&7)*2")
e(f"v_lshrrev_b32 v{vT[0]}, 3, v{vN}")
e(f"s_lshl_b32 s{sT0}, s{sCT}, 2")
e(f"v_add_u32 v{vT[0]}, s{sT0}, v{vT[0]}          ; chunk")
e(f"v_lshlrev_b32 v{vT[7]}, 2, v{vHI}             ; 4hi")
e(f"v_xor_b32 v{vT[0]}, v{vT[0]}, v{vT[7]}")
e(f"v_lshlrev_b32 v{vT[0]}, 4, v{vT[0]}")
e(f"v_lshl_add_u32 v{vT[0]}, v{vT[7]}, 8, v{vT[0]}   ; + 4hi*256")
e(f"v_and_b32 v{vT[5]}, 7, v{vN}")
e(f"v_lshl_add_u32 v{vT[0]}, v{vT[5]}, 1, v{vT[0]}")
e(f"v_add_u32 v{vT[0]}, {OWN + 32*256}, v{vT[0]}")
for i in range(4):
    e(f"v_xor_b32 v{vT[5]}, {i<<4}, v{vT[0]}")
    e(f"ds_read_u16 v{HRES+i}, v{vT[5]} offset:{i*256}")
e(f"s_add_u32 s{sT0}, s{sK3}, 32")
e(f"v_add_u32 v{vOFF}, s{sT0}, v{vT[7]}")
e(f"v_lshlrev_b32 v{vOFF}, 8, v{vOFF}")
e(f"v_lshl_add_u32 v{vOFF}, v{vN}, 1, v{vOFF}")
e(f"s_lshl_b32 s{sT0}, s{sCT}, 6")
e(f"v_add_u32 v{vOFF}, s{sT0}, v{vOFF}")
e("s_branch L_f_bar")
lab("L_f_resCD")
e(f"s_cmp_eq_u32 s{sQ}, 3")
e("s_cbranch_scc1 L_f_resD")
c("role C: g = ct. lane n: c = n>>3, j = n&7; k = 8g + j ; comp c-1")
e(f"v_and_b32 v{vT[5]}, 7, v{vN}")
e(f"s_lshl_b32 s{sT0}, s{sCT}, 3")
e(f"v_add_u32 v{vT[5]}, s{sT0}, v{vT[5]}      ; k")
e(f"v_mul_u32_u24 v{vT[5]}, 6, v{vT[5]}")
e(f"v_lshrrev_b32 v{vT[0]}, 3, v{vN}          ; c")
e(f"v_lshl_add_u32 v{vT[5]}, v{vT[0]}, 1, v{vT[5]}")
e(f"v_subrev_u32 v{vT[5]}, 2, v{vT[5]}        ; k*6 + (c-1)*2")
e(f"v_max_i32 v{vT[5]}, 0, v{vT[5]}")
e("s_branch L_f_resCD2")
lab("L_f_resD")
c("role D: comp c = ct+1. lane n: j = n&7; k = 32 + j")
e(f"v_and_b32 v{vT[5]}, 7, v{vN}")
e(f"v_add_u32 v{vT[5]}, 32, v{vT[5]}")
e(f"v_mul_u32_u24 v{vT[5]}, 6, v{vT[5]}")
e(f"s_lshl_b32 s{sT0}, s{sCT}, 1")
e(f"v_add_u32 v{vT[5]}, s{sT0}, v{vT[5]}")
lab("L_f_resCD2")
e(f"v_add_u32 v{vT[0]}, {PT}, v{vT[5]}")
e(f"ds_read_u16 v{HRES}, v{vT[0]}")
e(f"s_mul_i32 s{sT0}, s2, 240")
e(f"v_add_u32 v{vOFF}, s{sT0}, v{vT[5]}")
lab("L_f_bar")
e("s_waitcnt lgkmcnt(0)")
e("s_barrier")
stamp("final bar")
e(f"s_cmp_eq_u32 s{sW}, 15")
e("s_cbranch_scc1 L_end")
e(f"v_xor_b32 v{vT[0]}, 32, v{vRD}")
for s_ in range(8):
    e(f"ds_read_b128 {vr(ROW+4*s_,4)}, v{[vRD, vT[0]][s_&1]} offset:{(s_>>1)*4096}")
e(f"s_mov_b32 s{sK2}, 0x{NLOG2E:08x}")
e(f"s_mov_b32 s{sK3}, 0xffff0000")
e("s_waitcnt vmcnt(0)")
e(f"s_cmp_ge_u32 s{sQ}, 2")
e("s_cbranch_scc1 L_f_CD")
e(f"s_cmp_eq_u32 s{sQ}, 1")
e("s_cbranch_scc1 L_f_B")
c("role A")
for s_ in range(8):
    e(f"s_waitcnt lgkmcnt({7-s_})")
    mfma(FACC, WFL+4*s_, ROW+4*s_, vr(FACC,16))
e("s_nop 7")
e("s_nop 3")
def final_silu(a, n, TEf):
    for i in range(n): e(f"v_mul_f32 v{TEf+i}, s{sK2}, v{a+i}")
    for i in range(n): e(f"v_exp_f32 v{TEf+i}, v{TEf+i}")
    for i in range(n): e(f"v_add_f32 v{TEf+i}, 1.0, v{TEf+i}")
    for i in range(n): e(f"v_rcp_f32 v{TEf+i}, v{TEf+i}")
    for i in range(n): e(f"v_mul_f32 v{a+i}, v{a+i}, v{TEf+i}")
X = 48
for i in range(4):
    a = FACC + 4*i
    final_silu(a, 4, X)
    e(f"v_lshlrev_b32 v{X}, 16, v{HRES+2*i}")
    e(f"v_and_b32 v{X+1}, s{sK3}, v{HRES+2*i}")
    e(f"v_lshlrev_b32 v{X+2}, 16, v{HRES+2*i+1}")
    e(f"v_and_b32 v{X+3}, s{sK3}, v{HRES+2*i+1}")
    for k in range(4): e(f"v_add_f32 v{a+k}, v{a+k}, v{X+k}")
    e(f"v_cvt_pk_bf16_f32 v{X+4+2*i}, v{a}, v{a+1}")
    e(f"v_cvt_pk_bf16_f32 v{X+5+2*i}, v{a+2}, v{a+3}")
    e(f"buffer_store_dwordx2 {vr(X+4+2*i,2)}, v{vOFF}, {srd(S_O0)}, 0 offen offset:{i*16}")
e("s_branch L_end")
lab("L_f_B")
c("role B: rows (p,j)")
for s_ in range(8):
    e(f"s_waitcnt lgkmcnt({7-s_})")
    mfma(ACC, ROW+4*s_, WFL+4*s_, "0" if s_ == 0 else vr(ACC,16))
e("s_nop 7")
e("s_nop 3")
for k in range(4):
    e(f"v_add_f32 v{ACC+k}, v{ACC+k}, v{ACC+4+k}")
    e(f"v_add_f32 v{ACC+8+k}, v{ACC+8+k}, v{ACC+12+k}")
for k in range(4):
    e(f"v_add_f32 v{ACC+k}, v{ACC+k}, v{ACC+8+k}")
for k in range(4):
    e(f"v_add_f32 v{ACC+k}, v{ACC+k}, v{FACC+k}")
final_silu(ACC, 4, ROW)
for k in range(4):
    e(f"v_lshlrev_b32 v{ROW+k}, 16, v{HRES+k}")
for k in range(4):
    e(f"v_add_f32 v{ACC+k}, v{ACC+k}, v{ROW+k}")
for k in range(4):
    e(f"v_cvt_pk_bf16_f32 v{ROW+8+k}, v{ACC+k}, v{ACC+k}")
for r in range(4):
    e(f"buffer_store_short v{ROW+8+r}, v{vOFF}, {srd(S_O0)}, 0 offen offset:{r*256}")
e("s_branch L_end")
lab("L_f_CD")
for s_ in range(8):
    e(f"s_waitcnt lgkmcnt({7-s_})")
    mfma(ACC, WFL+4*s_, ROW+4*s_, "0" if s_ == 0 else vr(ACC,16))
e("s_nop 7")
e("s_nop 3")
e(f"s_mov_b32 s{sK2}, 0x{NLN2:08x}")
e(f"v_lshlrev_b32 v{HRES}, 16, v{HRES}")
e(f"s_cmp_eq_u32 s{sQ}, 3")
e("s_cbranch_scc1 L_f_D")
c("role C: lanes 8..31 valid")
e(f"v_fma_f32 v{ACC}, s{sK2}, v{ACC}, v{HRES}")
e(f"v_cvt_pk_bf16_f32 v{ACC}, v{ACC}, v{ACC}")
e(f"s_mov_b32 s{sEX}, 0xffffff00")
e(f"s_mov_b32 s{sEX+1}, 0")
e(f"s_mov_b64 exec, {sp(sEX)}")
e(f"buffer_store_short v{ACC}, v{vOFF}, {srd(S_O1)}, 0 offen")
e("s_branch L_end")
lab("L_f_D")
c("role D: sum over p: lanes n, n+8, n+16, n+24")
e(f"v_add_f32_dpp v{ACC+1}, v{ACC}, v{ACC} row_ror:8 row_mask:0xf bank_mask:0xf")
e("s_nop 1")
e(f"ds_swizzle_b32 v{ACC+2}, v{ACC+1} offset:0x401F")
e("s_waitcnt lgkmcnt(0)")
e(f"v_add_f32 v{ACC+1}, v{ACC+1}, v{ACC+2}")
e(f"v_fma_f32 v{ACC}, s{sK2}, v{ACC+1}, v{HRES}")
e(f"v_cvt_pk_bf16_f32 v{ACC}, v{ACC}, v{ACC}")
e(f"s_mov_b64 exec, 0xff")
e(f"buffer_store_short v{ACC}, v{vOFF}, {srd(S_O1)}, 0 offen")
lab("L_end")
if TIMING:
    e("s_mov_b64 exec, -1")
stamp("end")
stamp_flush()
if gen3_k1.DBGT:
    e("s_mov_b64 exec, -1")
    e("s_waitcnt vmcnt(0)")
    gen3_k1.dbg_stamp(3, False, 88, sW, 125)
lab("L_end2")
e("s_endpgm")

lab("L_slow_init")
e(f"s_mov_b32 s{sMODE}, 1")
e(f"s_mov_b32 s{sCH}, 0")
e(f"s_mov_b32 s{sRETRY}, 0")
e("s_branch L_slow_pass")
lab("L_slow_next")
c("PEND flag was read into sK... re-read now (stable since BA)")
e(f"v_mov_b32 v{vT[0]}, {PEND}")
e(f"ds_read_b32 v{vT[1]}, v{vT[0]}")
e("s_waitcnt lgkmcnt(0)")
e(f"v_readfirstlane_b32 s{sRETRY}, v{vT[1]}")
e("s_nop 3")
e(f"s_cmp_lg_u32 s{sRETRY}, 0")
e("s_cbranch_scc1 L_slow_pass")
lab("L_slow_adv")
e(f"s_add_u32 s{sCH}, s{sCH}, 1")
e(f"s_cmp_ge_u32 s{sCH}, 250")
e("s_cbranch_scc1 L_slow_fin")
lab("L_slow_pass")
e("s_waitcnt vmcnt(0) lgkmcnt(0)")
e("s_barrier")
e(f"s_lshl_b32 s{sT0}, s{sW}, 6")
e(f"v_add_u32 v{tid}, s{sT0}, v{vL}")
for i in range(4): e(f"v_mov_b32 v{Z+i}, 0")
e(f"v_lshlrev_b32 v{vT[0]}, 4, v{tid}")
e(f"v_add_u32 v{vT[1]}, {DE16}, v{vT[0]}")
e(f"v_add_u32 v{vT[2]}, {CTR - 960*16}, v{vT[0]}")
e(f"v_cmp_gt_u32 vcc, 960, v{tid}")
e(f"v_cndmask_b32 v{vT[1]}, v{vT[2]}, v{vT[1]}, vcc")
e(f"v_cmp_gt_u32 vcc, 964, v{tid}")
e("s_mov_b64 exec, vcc")
e(f"ds_write_b128 v{vT[1]}, {vr(Z,4)}")
e("s_mov_b64 exec, -1")
c("raw edge e = 640*ch + t (t<640)")
qD, qS, qP, qB, qK, qR, qA = 112, 113, 114, 115, 116, 117, 118
e(f"s_mul_i32 s{sT0}, s{sCH}, 2560")
e(f"v_lshlrev_b32 v{vT[0]}, 2, v{tid}")
e(f"v_mov_b32 v{qD}, -1")
e(f"v_mov_b32 v{qS}, 0")
e(f"v_mov_b32 v{qP}, 0")
e(f"v_cmp_gt_u32 {sp(sM0)}, 640, v{tid}" if False else f"v_mov_b32 v{qA}, 640")
e(f"v_cmp_gt_u32 {sp(sM0)}, v{qA}, v{tid}")
e(f"s_mov_b64 exec, {sp(sM0)}")
e(f"buffer_load_dword v{qD}, v{vT[0]}, {srd(S_DST)}, s{sT0} offen")
e(f"buffer_load_dword v{qS}, v{vT[0]}, {srd(S_SRC)}, s{sT0} offen")
e(f"v_add_u32 v{qA}, {PENDB}, v{tid}")
e(f"ds_read_u8 v{qP}, v{qA}")
e("s_mov_b64 exec, -1")
e("s_waitcnt vmcnt(0) lgkmcnt(0)")
e("s_barrier")
e(f"v_mul_u32_u24 v{qB}, 52429, v{qD}")
e(f"v_lshrrev_b32 v{qB}, 21, v{qB}")
e(f"v_mul_u32_u24 v{qK}, 40, v{qB}")
e(f"v_sub_u32 v{qK}, v{qD}, v{qK}")
e(f"v_cmp_eq_u32 vcc, s2, v{qB}")
e(f"s_and_b64 {sp(sM0)}, {sp(sM0)}, vcc          ; match")
e(f"s_cmp_eq_u32 s{sRETRY}, 0")
e("s_cbranch_scc1 L_slow_fresh")
e(f"v_cmp_ne_u32 vcc, 0, v{qP}")
e(f"s_and_b64 {sp(sM0)}, {sp(sM0)}, vcc")
lab("L_slow_fresh")
c("rec = t<<22 | src<<8 | (ch&3)<<6 | k ; c = ch>>2")
e(f"s_and_b32 s{sT0}, s{sCH}, 3")
e(f"s_lshl_b32 s{sT0}, s{sT0}, 6")
e(f"v_lshlrev_b32 v{qD}, 22, v{tid}")
e(f"v_lshl_or_b32 v{qD}, v{qS}, 8, v{qD}")
e(f"v_or_b32 v{qD}, s{sT0}, v{qD}")
e(f"v_or_b32 v{qD}, v{qK}, v{qD}")
e(f"s_lshr_b32 s{sT0}, s{sCH}, 2")
e(f"v_mov_b32 v{qS}, s{sT0}")
e(f"v_lshrrev_b32 v{qB}, 3, v{qK}           ; g")
e(f"s_mov_b32 s{sT0}, {ALLOC}")
e(f"v_lshl_add_u32 v{qA}, v{qB}, 2, s{sT0}")
e(f"v_mov_b32 v{qK}, 1")
e(f"v_mov_b32 v{qP}, 0")
e(f"s_mov_b64 exec, {sp(sM0)}")
e(f"ds_add_rtn_u32 v{qR}, v{qA}, v{qK}")
e("s_waitcnt lgkmcnt(0)")
e(f"v_cmp_gt_u32 vcc, {CAP_G}, v{qR}")
e(f"v_mul_u32_u24 v{qB}, {CAP_G}, v{qB}")
e(f"v_add_u32 v{qB}, v{qB}, v{qR}")
e(f"s_mov_b32 s{sT0}, {DE16+8}")
e(f"v_lshl_add_u32 v{qA}, v{qB}, 4, s{sT0}")
e(f"s_and_b64 exec, {sp(sM0)}, vcc")
e(f"ds_write2_b32 v{qA}, v{qD}, v{qS} offset0:0 offset1:1")
e(f"s_andn2_b64 exec, {sp(sM0)}, vcc")
e("s_cbranch_execz L_slow_nopend")
e(f"v_mov_b32 v{qP}, 1")
e(f"v_mov_b32 v{qA}, {PEND}")
e(f"ds_write_b32 v{qA}, v{qK}")
lab("L_slow_nopend")
e("s_mov_b64 exec, -1")
e(f"v_mov_b32 v{qA}, 640")
e(f"v_cmp_gt_u32 vcc, v{qA}, v{tid}")
e("s_mov_b64 exec, vcc")
e(f"v_add_u32 v{qA}, {PENDB}, v{tid}")
e(f"ds_write_b8 v{qA}, v{qP}")
e("s_mov_b64 exec, -1")
e("s_waitcnt lgkmcnt(0)")
e("s_barrier")
c("skip quickly if nothing placed (and node task already done)")
e(f"v_mov_b32 v{vT[0]}, {ALLOC}")
e(f"ds_read_b128 {vr(104,4)}, v{vT[0]}")
e(f"ds_read_b32 v108, v{vT[0]} offset:16")
e("s_waitcnt lgkmcnt(0)")
e(f"v_or_b32 v104, v104, v105")
e(f"v_or3_b32 v104, v104, v106, v107")
e(f"v_or_b32 v104, v104, v108")
e("s_nop 0")
e(f"v_readfirstlane_b32 s{sT0}, v104")
e("s_nop 3")
e(f"s_cmp_lg_u32 s{sT0}, 0")
e("s_cbranch_scc1 L_stage2")
e(f"s_mov_b32 s{sRETRY}, 0")
e("s_branch L_slow_adv")
lab("L_slow_fin")
c("ensure node task ran: if never, run one empty pass through stage2 with zero counts")
e(f"s_cmp_eq_u32 s{sNODE}, 0")
e("s_cbranch_scc0 L_final_bar")
e(f"s_mov_b32 s{sMODE}, 2")
e("s_branch L_stage2")
lab("L_final_bar")
e("s_barrier")
e("s_branch L_final")

desc = f""".amdhsa_kernel {KNAME}
  .amdhsa_next_free_vgpr 128
  .amdhsa_next_free_sgpr 102
  .amdhsa_accum_offset 128
  .amdhsa_group_segment_fixed_size 0
  .amdhsa_kernarg_size 88
  .amdhsa_user_sgpr_count 2
  .amdhsa_user_sgpr_kernarg_segment_ptr 1
  .amdhsa_system_sgpr_workgroup_id_x 1
.end_amdhsa_kernel"""
body = "\n".join(out)
final = "\n".join(header) + "\n" + body + "\n" + '.section .rodata,"a"\n.p2align 6\n' + k1_desc + "\n.p2align 6\n" + desc + "\n"
dest = sys.argv[1] if len(sys.argv) > 1 else "standalone__cheap_equivariant_egnn__graph.s"
open(dest, "w").write(final)
print("wrote", dest, len(out), "lines")
```

```python
from g3common import *

K1NAME = "egnn_prep_kernel"
NG = 157; NWP = 2; NCH = 63
K1_GRID = NG + NWP + NCH
K1_LDS = 65536

TIMING = os.environ.get("TIMING", "")
DBGT = os.environ.get("DBGT", "")
def dbg_stamp(slot, inv, sbase, sW, vtmp):
    if not DBGT: return
    L = f"L_dbg_{slot}_{len(out)}"
    e(f"s_and_b32 s{sbase}, s2, 7")
    e(f"s_or_b32 s{sbase}, s{sbase}, s{sW}")
    e(f"s_cmp_lg_u32 s{sbase}, 0")
    e(f"s_cbranch_scc1 {L}")
    e(f"s_load_dwordx2 s[{sbase}:{sbase+1}], s[0:1], 72")
    e(f"s_memrealtime s[{sbase+4}:{sbase+5}]")
    e(f"s_mov_b32 s{sbase+2}, 256")
    e(f"s_mov_b32 s{sbase+3}, 0x20000")
    e("s_waitcnt lgkmcnt(0)")
    if inv: e(f"s_not_b32 s{sbase+4}, s{sbase+4}")
    e(f"s_mov_b64 s[{sbase+6}:{sbase+7}], exec")
    e("s_mov_b64 exec, 1")
    e(f"v_mov_b32 v{vtmp}, s{sbase+4}")
    e(f"v_mov_b32 v{vtmp+1}, {slot*4}")
    e(f"buffer_atomic_umax v{vtmp}, v{vtmp+1}, s[{sbase}:{sbase+3}], 0 offen")
    e(f"s_mov_b64 exec, s[{sbase+6}:{sbase+7}]")
    lab(L)
def k1_ws_stamp(which, S_WS, sW):
    if not DBGT: return
    L = f"L_k1ws_{which}_{len(out)}"
    e(f"s_and_b32 s64, s2, 31")
    e(f"s_or_b32 s64, s64, s{sW}")
    e(f"s_cmp_lg_u32 s64, 0")
    e(f"s_cbranch_scc1 {L}")
    if which == 1:
        e(f"s_memrealtime s[66:67]")
        e("s_waitcnt lgkmcnt(0)")
    e(f"s_lshr_b32 s64, s2, 5")
    e(f"s_lshl_b32 s64, s64, 3")
    e(f"s_add_u32 s64, s64, {40<<20}")
    e(f"s_mov_b64 s[68:69], exec")
    e("s_mov_b64 exec, 1")
    e(f"v_mov_b32 v90, s70")
    e(f"v_mov_b32 v91, s66")
    e(f"v_mov_b32 v92, 0")
    e(f"buffer_store_dwordx2 v[90:91], v92, {srd(S_WS)}, s64 offen")
    e(f"s_mov_b64 exec, s[68:69]")
    lab(L)
def rt_start():
    if DBGT: e("s_memrealtime s[70:71]")
    if not TIMING: return
    e("s_memrealtime s[50:51]")
    e("s_memtime s[52:53]")
def rt_end(S_WS, sW):
    if DBGT:
        e("s_mov_b64 exec, -1")
        e("s_waitcnt vmcnt(0)")
        k1_ws_stamp(1, S_WS, sW)
    if not TIMING: return
    e("s_waitcnt vmcnt(0)")
    e("s_memrealtime s[54:55]")
    e("s_memtime s[56:57]")
    e("s_mov_b64 exec, 1")
    e(f"s_lshl_b32 s58, s2, 4")
    e(f"s_add_u32 s58, s58, s{sW}")
    e(f"s_lshl_b32 s58, s58, 4")
    e(f"s_add_u32 s58, s58, {33<<20}")
    e("s_waitcnt lgkmcnt(0)")
    e("v_mov_b32 v60, s50"); e("v_mov_b32 v61, s54"); e("v_mov_b32 v62, s52"); e("v_mov_b32 v63, s56")
    e("v_mov_b32 v59, 0")
    e(f"buffer_store_dwordx4 v[60:63], v59, {srd(S_WS)}, s58 offen")

def gen_k1():
    S_H, S_SRC, S_DST, S_WE, S_WH, S_WS, S_Q = [8 + 4 * i for i in range(7)]
    sW, sCT, sRB, sT0, sT1, sT2, sC = 40, 41, 42, 43, 44, 45, 46
    vL = 1
    lab(K1NAME)
    e(f"s_cmp_ge_u32 s2, {K1_GRID}")
    e("s_cbranch_scc1 L1_end")
    rt_start()
    for (x, off) in [(S_DST,32),(S_SRC,24),(S_H,0),(S_WE,40),(S_WH,56),(S_WS,80)]:
        e(f"s_load_dwordx2 s[{x}:{x+1}], s[0:1], {off}")
    e(f"v_lshrrev_b32 v2, 6, v0")
    e(f"v_and_b32 v{vL}, 63, v0")
    e(f"s_nop 0")
    e(f"v_readfirstlane_b32 s{sW}, v2")
    for (x, sz) in [(S_H,2560000),(S_SRC,640000),(S_DST,640000),(S_WE,66048),(S_WH,65536),(S_WS,256*1048576),(S_Q,2560000)]:
        e(f"s_mov_b32 s{x+2}, {sz}")
        e(f"s_mov_b32 s{x+3}, 0x20000")
    e(f"s_and_b32 s{sCT}, s{sW}, 3")
    e(f"s_lshr_b32 s{sRB}, s{sW}, 2")
    e(f"s_cmp_ge_u32 s2, {NG+NWP}")
    e("s_cbranch_scc1 L1_bin")
    c("non-binning: waves 8,9 exit")
    e(f"s_cmp_ge_u32 s{sW}, 8")
    e("s_cbranch_scc1 L1_end")
    e("s_waitcnt lgkmcnt(0)")
    e(f"s_add_u32 s{S_Q}, s{S_WS}, {QOFF}")
    e(f"s_addc_u32 s{S_Q+1}, s{S_WS+1}, 0")
    c("slice DMA lane offset: (l>>2)*256 + ct*64 + (l&3)*16")
    vSL = 2; vTRP = 3; vRA = 4; vRD = 5; vT0 = 6; vT1 = 7; vST = 8
    e(f"v_lshrrev_b32 v{vSL}, 2, v{vL}")
    e(f"v_lshlrev_b32 v{vSL}, 8, v{vSL}")
    e(f"v_and_b32 v{vT0}, 3, v{vL}")
    e(f"v_lshl_add_u32 v{vSL}, v{vT0}, 4, v{vSL}")
    e(f"s_lshl_b32 s{sT0}, s{sCT}, 6")
    e(f"v_add_u32 v{vSL}, s{sT0}, v{vSL}")
    c("tr pattern: (8hi + r)*64 + colhalf*32 + c4*8")
    def trpat(dst):
        e(f"v_lshrrev_b32 v{vT0}, 5, v{vL}")
        e(f"v_bfe_u32 v{vT1}, v{vL}, 2, 2")
        e(f"v_lshl_add_u32 v{dst}, v{vT0}, 3, v{vT1}")
        e(f"v_lshlrev_b32 v{dst}, 6, v{dst}")
        e(f"v_bfe_u32 v{vT0}, v{vL}, 4, 1")
        e(f"v_lshl_add_u32 v{dst}, v{vT0}, 5, v{dst}")
        e(f"v_and_b32 v{vT0}, 3, v{vL}")
        e(f"v_lshl_add_u32 v{dst}, v{vT0}, 3, v{dst}")
    e(f"s_cmp_ge_u32 s2, {NG}")
    e("s_cbranch_scc1 L1_wprep")
    c("GEMM WG: rows 64r..64r+63")
    AF = 16; BF = 48; D = 80
    e(f"s_lshl_b32 s{sT0}, s{sCT}, 13")
    e(f"s_lshl_b32 s{sT1}, s{sRB}, 12")
    e(f"s_add_u32 s{sT0}, s{sT0}, s{sT1}")
    e(f"s_lshl_b32 s{sT1}, s{sRB}, 14")
    e(f"s_add_u32 s{sT1}, s{sT1}, 32768")
    for i in range(4):
        e(f"s_add_u32 m0, s{sT0}, {i*1024}")
        e(f"s_add_u32 s{sT2}, s{sT1}, {i*4096}")
        e(f"buffer_load_dwordx4 v{vSL}, {srd(S_WE)}, s{sT2} offen lds")
    c("rows DMA: row = 8w + 4i + (l>>4); chunk = (l&15) ^ (row&15)")
    e(f"v_lshrrev_b32 v{vT0}, 4, v{vL}")
    e(f"v_and_b32 v{vT1}, 15, v{vL}")
    e(f"v_xor_b32 v{vT1}, v{vT1}, v{vT0}")
    e(f"s_and_b32 s{sT0}, s{sW}, 1")
    e(f"s_lshl_b32 s{sT0}, s{sT0}, 3")
    e(f"v_xor_b32 v{vT1}, s{sT0}, v{vT1}")
    e(f"v_lshlrev_b32 v{vT1}, 4, v{vT1}")
    e(f"v_lshl_add_u32 v{vRA}, v{vT0}, 8, v{vT1}")
    e(f"s_lshl_b32 s{sT0}, s2, 14")
    e(f"s_lshl_b32 s{sT1}, s{sW}, 11")
    e(f"s_add_u32 s{sT0}, s{sT0}, s{sT1}           ; (64r + 8w)*256")
    e(f"s_add_u32 m0, s{sT1}, 32768")
    e(f"s_add_u32 s{sT2}, s{sT0}, 1024")
    e(f"buffer_load_dwordx4 v{vRA}, {srd(S_H)}, s{sT0} offen lds")
    e(f"v_xor_b32 v{vRA}, 64, v{vRA}")
    e(f"s_add_u32 m0, s{sT1}, {32768+1024}")
    e(f"s_nop 0")
    e(f"buffer_load_dwordx4 v{vRA}, {srd(S_H)}, s{sT2} offen lds")
    trpat(vTRP)
    e(f"s_lshl_b32 s{sT0}, s{sCT}, 13")
    e(f"v_add_u32 v{vTRP}, s{sT0}, v{vTRP}")
    c("row read address: 32768 + (rb*32+n)*256 + ((hi ^ (n&15))<<4) ^ (s<<5)")
    e(f"v_and_b32 v{vT0}, 31, v{vL}")
    e(f"v_lshrrev_b32 v{vT1}, 5, v{vL}")
    e(f"v_and_b32 v{vRD}, 15, v{vL}")
    e(f"v_xor_b32 v{vRD}, v{vRD}, v{vT1}")
    e(f"v_lshlrev_b32 v{vRD}, 4, v{vRD}")
    e(f"v_lshl_add_u32 v{vRD}, v{vT0}, 8, v{vRD}")
    e(f"s_lshl_b32 s{sT0}, s{sRB}, 13")
    e(f"s_add_u32 s{sT0}, s{sT0}, 32768")
    e(f"v_add_u32 v{vRD}, s{sT0}, v{vRD}")
    c("store offset: (64r + 32rb + n)*256 + ct*64 + hi*8")
    e(f"v_lshlrev_b32 v{vST}, 8, v{vT0}")
    e(f"v_lshl_add_u32 v{vST}, v{vT1}, 3, v{vST}")
    e(f"s_lshl_b32 s{sT0}, s2, 14")
    e(f"s_lshl_b32 s{sT1}, s{sRB}, 13")
    e(f"s_add_u32 s{sT0}, s{sT0}, s{sT1}")
    e(f"s_lshl_b32 s{sT1}, s{sCT}, 6")
    e(f"s_add_u32 s{sT0}, s{sT0}, s{sT1}")
    e("s_waitcnt vmcnt(0)")
    e("s_barrier")
    for s_ in range(8):
        e(f"v_xor_b32 v{vT0}, {s_<<5}, v{vRD}")
        e(f"ds_read_b128 {vr(BF+4*s_,4)}, v{vT0}")
        e(f"ds_read_b64_tr_b16 {vr(AF+4*s_,2)}, v{vTRP} offset:{s_*1024}")
        e(f"ds_read_b64_tr_b16 {vr(AF+4*s_+2,2)}, v{vTRP} offset:{s_*1024+256}")
    for s_ in range(8):
        e(f"s_waitcnt lgkmcnt({min(15, 3*(7-s_))})")
        mfma(D, AF+4*s_, BF+4*s_, "0" if s_ == 0 else vr(D,16))
    e(f"s_mov_b32 s{sT1}, 0x{NLOG2E:08x}")
    e("s_nop 7"); e("s_nop 3")
    for bb in range(4):
        r0 = D + 4*bb
        for i in range(4):
            e(f"v_mul_f32 v{r0+i}, s{sT1}, v{r0+i}")
        e(f"v_cvt_pk_bf16_f32 v{r0}, v{r0}, v{r0+1}")
        e(f"v_cvt_pk_bf16_f32 v{r0+1}, v{r0+2}, v{r0+3}")
        e(f"buffer_store_dwordx2 {vr(r0,2)}, v{vST}, {srd(S_Q)}, s{sT0} offen offset:{bb*16}")
    rt_end(S_WS, sW)
    e("s_endpgm")
    lab("L1_wprep")
    c("weight prep: WG157: w0-3 W1, w4-7 Wh1 ; WG158: w0-3 Wh2, w4-7 K1B")
    e(f"s_lshl_b32 s{sT2}, s{sW}, 13")
    trpat(vTRP)
    e(f"v_add_u32 v{vTRP}, s{sT2}, v{vTRP}")
    e(f"v_lshlrev_b32 v{vST}, 4, v{vL}")
    e(f"s_cmp_eq_u32 s2, {NG}")
    e("s_cbranch_scc0 L1_w158")
    e(f"s_cmp_eq_u32 s{sRB}, 0")
    e("s_cbranch_scc0 L1_wh1")
    def slice_dma(S, gbase):
        for i in range(8):
            e(f"s_add_u32 m0, s{sT2}, {i*1024}")
            e(f"s_mov_b32 s{sT1}, {gbase + i*4096}")
            e(f"buffer_load_dwordx4 v{vSL}, {srd(S)}, s{sT1} offen lds")
    slice_dma(S_WE, 0)
    e(f"s_mov_b32 s{sC}, {WFOFF + 0}")
    e("s_branch L1_wfin")
    lab("L1_wh1")
    slice_dma(S_WH, 0)
    e(f"s_mov_b32 s{sC}, {WFOFF + 32768}")
    e("s_branch L1_wfin")
    lab("L1_w158")
    e(f"s_cmp_eq_u32 s{sRB}, 0")
    e("s_cbranch_scc0 L1_k1b")
    slice_dma(S_WH, 32768)
    e(f"s_mov_b32 s{sC}, {WFOFF + 65536}")
    lab("L1_wfin")
    e(f"s_lshl_b32 s{sT0}, s{sCT}, 13")
    e(f"s_add_u32 s{sC}, s{sC}, s{sT0}")
    e("s_waitcnt vmcnt(0)")
    for s_ in range(8):
        e(f"ds_read_b64_tr_b16 {vr(16+4*s_,2)}, v{vTRP} offset:{s_*1024}")
        e(f"ds_read_b64_tr_b16 {vr(16+4*s_+2,2)}, v{vTRP} offset:{s_*1024+256}")
    for s_ in range(8):
        if s_ == 4:
            e(f"s_add_u32 s{sC}, s{sC}, 4096")
        e(f"s_waitcnt lgkmcnt({2*(7-s_)})")
        e(f"buffer_store_dwordx4 {vr(16+4*s_,4)}, v{vST}, {srd(S_WS)}, s{sC} offen offset:{(s_%4)*1024}")
    rt_end(S_WS, sW)
    e("s_endpgm")
    lab("L1_k1b")
    KB = 16
    e(f"v_and_b32 v{vT0}, 31, v{vL}")
    e(f"s_lshl_b32 s{sT0}, s{sCT}, 5")
    e(f"v_add_u32 v{vT1}, s{sT0}, v{vT0}")
    e(f"v_lshlrev_b32 v{vT1}, 1, v{vT1}")
    e(f"s_mov_b32 s{sT1}, 65536")
    e(f"buffer_load_ushort v{KB}, v{vT1}, {srd(S_WE)}, s{sT1} offen")
    e(f"buffer_load_ushort v{KB+1}, v{vT1}, {srd(S_WE)}, s{sT1} offen offset:256")
    e(f"s_mov_b32 s{sT0}, 0x{NLOG2E:08x}")
    e(f"s_mov_b32 s{sT2}, 0xffff0000")
    e("s_waitcnt vmcnt(0)")
    e(f"v_lshlrev_b32 v20, 16, v{KB}")
    e(f"v_lshlrev_b32 v21, 16, v{KB+1}")
    e(f"v_mul_f32 v20, s{sT0}, v20")
    e(f"v_mul_f32 v21, s{sT0}, v21")
    e(f"v_cvt_pk_bf16_f32 v{KB}, v20, v21")
    e(f"v_lshlrev_b32 v22, 16, v{KB}")
    e(f"v_and_b32 v23, s{sT2}, v{KB}")
    e(f"v_sub_f32 v20, v20, v22")
    e(f"v_sub_f32 v21, v21, v23")
    e(f"v_cvt_pk_bf16_f32 v{KB+1}, v20, v21")
    e(f"v_mov_b32 v{KB+2}, 0")
    e(f"v_mov_b32 v{KB+3}, 0")
    e(f"v_lshlrev_b32 v{vT0}, 4, v{vT0}")
    e(f"s_lshl_b32 s{sT0}, s{sCT}, 9")
    e(f"s_add_u32 s{sT0}, s{sT0}, {WFOFF + 98304}")
    e("s_mov_b32 exec_hi, 0")
    e(f"buffer_store_dwordx4 {vr(KB,4)}, v{vT0}, {srd(S_WS)}, s{sT0} offen")
    e("s_endpgm")
    lab("L1_bin")
    c("binning WG c = wg - 159: edges e = 2560c + 640i + t")
    vD = 4; vS = 8; vB = 12; vR = 16; vE = 20; vT0 = 21; vT1 = 22; vOne = 23; vK = 24
    e(f"s_sub_u32 s{sC}, s2, {NG+NWP}")
    e(f"s_mul_i32 s{sT0}, s{sC}, {2560*4}")
    e(f"v_lshlrev_b32 v{vE}, 2, v0")
    c("zero headers")
    e(f"v_lshlrev_b32 v{vT0}, 7, v0")
    e(f"v_mov_b32 v{vT1}, 0")
    e(f"v_mov_b32 v{vOne}, 1")
    e(f"v_cmp_gt_u32 vcc, 250, v0")
    e(f"s_mov_b64 exec, vcc")
    e(f"ds_write_b32 v{vT0}, v{vT1}")
    e(f"s_mov_b64 exec, -1")
    e("s_waitcnt lgkmcnt(0)")
    e(f"s_add_u32 s{sT2}, s{sT0}, 5120")
    for i in range(4):
        e(f"buffer_load_dword v{vD+i}, v{vE}, {srd(S_DST)}, s{[sT0,sT2][i>>1]} offen offset:{(i&1)*2560}")
    for i in range(4):
        e(f"buffer_load_dword v{vS+i}, v{vE}, {srd(S_SRC)}, s{[sT0,sT2][i>>1]} offen offset:{(i&1)*2560}")
    c("validity: e < 160000  <=> byte offset < 640000")
    e(f"v_add_u32 v{vE}, s{sT0}, v{vE}")
    e("s_barrier")
    e(f"v_lshlrev_b32 v{vT1}, 22, v0          ; t << 22")
    for i in range(4):
        e(f"s_waitcnt vmcnt({7-i})")
        e(f"v_mul_u32_u24 v{vB+i}, 52429, v{vD+i}")
        e(f"v_lshrrev_b32 v{vB+i}, 21, v{vB+i}")
        e(f"v_lshlrev_b32 v{vT0}, 7, v{vB+i}")
        e(f"v_cmp_gt_u32 vcc, {640000 - i*2560}, v{vE}")
        e(f"s_mov_b64 exec, vcc")
        e(f"ds_add_rtn_u32 v{vR+i}, v{vT0}, v{vOne}")
        e(f"s_mov_b64 exec, -1")
        e(f"v_mul_u32_u24 v{vK}, 40, v{vB+i}")
        e(f"v_sub_u32 v{vD+i}, v{vD+i}, v{vK}       ; k")
        if i: e(f"v_or_b32 v{vD+i}, {i<<6}, v{vD+i}")
        e(f"v_or_b32 v{vD+i}, v{vT1}, v{vD+i}")
    for i in range(4):
        e(f"s_waitcnt vmcnt({3-i})")
        e(f"v_lshl_or_b32 v{vD+i}, v{vS+i}, 8, v{vD+i}    ; rec")
    for i in range(4):
        e(f"s_waitcnt lgkmcnt({3-i})")
        e(f"v_lshlrev_b32 v{vT0}, 7, v{vB+i}")
        e(f"v_lshl_add_u32 v{vT0}, v{vR+i}, 2, v{vT0}")
        e(f"v_cmp_gt_u32 vcc, 31, v{vR+i}")
        e(f"v_mov_b32 v{vK}, {640000 - i*2560}")
        e(f"v_cmp_gt_u32 s[{sT1}:{sT1+1}], v{vK}, v{vE}")
        e(f"s_and_b64 exec, vcc, s[{sT1}:{sT1+1}]")
        e(f"ds_write_b32 v{vT0}, v{vD+i} offset:4")
        e(f"s_mov_b64 exec, -1")
    e("s_waitcnt lgkmcnt(0)")
    e("s_barrier")
    c("copy image (32000 B) -> ws cells[c]")
    e(f"v_lshlrev_b32 v{vT0}, 4, v0")
    e(f"s_mul_i32 s{sT0}, s{sC}, 32000")
    e(f"s_add_u32 s{sT0}, s{sT0}, {CELLS}")
    for i in range(3):
        e(f"ds_read_b128 {vr(4+4*i,4)}, v{vT0} offset:{i*10240}")
    e(f"v_cmp_gt_u32 vcc, {(32000-30720)//16}, v0")
    e(f"s_and_saveexec_b64 s[{sT1}:{sT1+1}], vcc")
    e(f"ds_read_b128 {vr(16,4)}, v{vT0} offset:30720")
    e(f"v_add_u32 v{vT1}, 30720, v{vT0}")
    e("s_waitcnt lgkmcnt(0)")
    e(f"buffer_store_dwordx4 {vr(16,4)}, v{vT1}, {srd(S_WS)}, s{sT0} offen")
    e(f"s_mov_b64 exec, -1")
    e(f"v_add_u32 v{vT1}, 10240, v{vT0}")
    e(f"v_add_u32 v{vK}, 20480, v{vT0}")
    e(f"buffer_store_dwordx4 {vr(4,4)}, v{vT0}, {srd(S_WS)}, s{sT0} offen")
    e(f"buffer_store_dwordx4 {vr(8,4)}, v{vT1}, {srd(S_WS)}, s{sT0} offen")
    e(f"buffer_store_dwordx4 {vr(12,4)}, v{vK}, {srd(S_WS)}, s{sT0} offen")
    rt_end(S_WS, sW)
    lab("L1_end")
    e("s_endpgm")
    return f""".amdhsa_kernel {K1NAME}
  .amdhsa_next_free_vgpr 96
  .amdhsa_next_free_sgpr 72
  .amdhsa_accum_offset 96
  .amdhsa_group_segment_fixed_size 0
  .amdhsa_kernarg_size 88
  .amdhsa_user_sgpr_count 2
  .amdhsa_user_sgpr_kernarg_segment_ptr 1
  .amdhsa_system_sgpr_workgroup_id_x 1
.end_amdhsa_kernel"""
```

```python
import sys, os
sys.path.insert(0, os.path.dirname(os.path.abspath(__file__)))
from g3common import *
import gen3_k1

KNAME = "standalone__cheap_equivariant_egnn__graph_kernel"
TIMING = os.environ.get("TIMING", "")
STOP = os.environ.get("STOP", "")

QT = 0
REC = 65536
DE16 = 126976
BXP = 142336
OWN = 152576
PT = 162816
CTR = 163072
ALLOC = CTR; OVF = CTR + 20; PEND = CTR + 24
PENDB = CTR + 64
LDS_TOTAL = PENDB + 640
CAP_G = 192
NWG = 250

S_H, S_POS, S_EA, S_SRC, S_DST, S_WX, S_O0, S_O1, S_WS, S_Q = [8 + 4 * i for i in range(10)]
sC4, sC5 = 4, 5
sW, sQ, sCT, sMODE, sT0, sT1, sT2, sT3 = range(48, 56)
sEX, sM0, sM1, sM2 = 56, 58, 60, 62
sCN = [64, 65, 66, 67, 68]
sNO, sNT, sCO, sG4B, sL4, sU, sIDX, sNR, sIDX2, sBUF, sK2, sK3, sNODE, sCH, sOWNB, sMASK, sRETRY = range(69, 86)
STAMP0 = 86

vL = 0
vLS, vQD, vTRQ, vTRS, vOD, vODM, vBX = 1, 2, 3, 4, 5, 6, 7
vT = list(range(8, 16))
SEGO = 16; SEG4 = 32; ACC = 48; FACC = 64; QF = 80; SF = 88; OHD = 96; BXF = 100; ID = 104; MP = 112; TE = 120

_st = [0]
def stamp(name):
    if not TIMING: return
    i = _st[0]; _st[0] += 1
    c(f"STAMP {i} {name}")
    e(f"s_memtime s[{sC4}:{sC5}]")
    e("s_waitcnt lgkmcnt(0)")
    e(f"s_mov_b32 s{STAMP0+i}, s{sC4}")
    print("stamp", i, name)
    assert STAMP0 + i < 100
def stamp_flush():
    if not TIMING: return
    e(f"s_memrealtime s[{sC4}:{sC5}]")
    e("s_waitcnt lgkmcnt(0)")
    e("s_mov_b64 exec, 1")
    e(f"s_lshl_b32 s{sT0}, s2, 4")
    e(f"s_add_u32 s{sT0}, s{sT0}, s{sW}")
    e(f"s_lshl_b32 s{sT0}, s{sT0}, 8")
    e(f"s_add_u32 s{sT0}, s{sT0}, {32<<20}")
    e(f"v_mov_b32 v{vT[1]}, 0")
    for i in range(_st[0]):
        e(f"v_mov_b32 v{vT[0]}, s{STAMP0+i}")
        e(f"buffer_store_dword v{vT[0]}, v{vT[1]}, {srd(S_WS)}, s{sT0} offen offset:{i*4}")
    e(f"v_mov_b32 v{vT[0]}, s100")
    e(f"buffer_store_dword v{vT[0]}, v{vT[1]}, {srd(S_WS)}, s{sT0} offen offset:{62*4}")
    e(f"v_mov_b32 v{vT[0]}, s{sC4}")
    e(f"buffer_store_dword v{vT[0]}, v{vT[1]}, {srd(S_WS)}, s{sT0} offen offset:{63*4}")

header = []
header.append(f"; @launch kernel={gen3_k1.K1NAME} grid=({gen3_k1.K1_GRID},1,1) block=(640,1,1) lds={gen3_k1.K1_LDS}")
if STOP != "k1":
    header.append(f"; @launch kernel={KNAME} grid=({NWG},1,1) block=(1024,1,1) lds={LDS_TOTAL}")
header.append('.amdgcn_target "amdgcn-amd-amdhsa--gfx950"')
header.append(".text")
for k in (KNAME, gen3_k1.K1NAME):
    header.append(f".globl {k}")
    header.append(f".type {k},@function")

out.append(".p2align 8")
k1_desc = gen3_k1.gen_k1()
out.append(".p2align 8")
lab(KNAME)
e(f"s_cmp_ge_u32 s2, {NWG}")
e("s_cbranch_scc1 L_end2")
if TIMING:
    e("s_memrealtime s[100:101]")
for (x, off) in [(S_WS,80),(S_H,0),(S_POS,8),(S_EA,16),(S_SRC,24),(S_DST,32),(S_WX,48),(S_O0,64)]:
    e(f"s_load_dwordx2 s[{x}:{x+1}], s[0:1], {off}")
tid = vT[7]
e(f"v_mov_b32 v{tid}, v0")
e(f"v_lshrrev_b32 v{vT[0]}, 6, v0")
e(f"v_and_b32 v{vL}, 63, v0")
e(f"v_readfirstlane_b32 s{sW}, v{vT[0]}")
for (x, sz) in [(S_H,2560000),(S_POS,60000),(S_EA,320000),(S_SRC,640000),(S_DST,640000),(S_WX,256),(S_O0,2560000),(S_O1,60000),(S_WS,256*1048576),(S_Q,2560000)]:
    e(f"s_mov_b32 s{x+2}, {sz}")
    e(f"s_mov_b32 s{x+3}, 0x20000")
e(f"s_lshr_b32 s{sQ}, s{sW}, 2")
e(f"s_and_b32 s{sCT}, s{sW}, 3")
e(f"s_mov_b32 s{sMODE}, 0")
e(f"s_mov_b32 s{sNODE}, 0")
e(f"s_mov_b32 s{sMASK}, 0x3fff00")
c("zero LIST (t<960: 16B each; t>=960 -> counters region 64B by 4 lanes..)")
Z = 112
for i in range(4): e(f"v_mov_b32 v{Z+i}, 0")
e(f"v_lshlrev_b32 v{vT[0]}, 4, v{tid}")
e(f"v_add_u32 v{vT[1]}, {DE16}, v{vT[0]}")
e(f"v_add_u32 v{vT[2]}, {CTR - 960*16}, v{vT[0]}")
e(f"v_cmp_gt_u32 vcc, 960, v{tid}")
e(f"v_cndmask_b32 v{vT[1]}, v{vT[2]}, v{vT[1]}, vcc")
e(f"v_cmp_gt_u32 vcc, 964, v{tid}")
e("s_mov_b64 exec, vcc")
e(f"ds_write_b128 v{vT[1]}, {vr(Z,4)}")
e("s_mov_b64 exec, -1")
c("record address: (t>>4)*32000 + b*128 + (t&15)*8")
RC = 112
vC = 114
e(f"v_lshrrev_b32 v{vC}, 4, v{tid}")
e(f"v_mul_u32_u24 v{vT[0]}, 32000, v{vC}")
e(f"v_and_b32 v{vT[1]}, 15, v{tid}")
e(f"v_lshl_add_u32 v{vT[0]}, v{vT[1]}, 3, v{vT[0]}")
e(f"s_lshl_b32 s{sT0}, s2, 7")
e("s_waitcnt lgkmcnt(0)")
e(f"s_add_u32 s{S_O1}, s{S_O0}, 2560000")
e(f"s_addc_u32 s{S_O1+1}, s{S_O0+1}, 0")
e(f"s_add_u32 s{S_Q}, s{S_WS}, {QOFF}")
e(f"s_addc_u32 s{S_Q+1}, s{S_WS+1}, 0")
stamp("start")
gen3_k1.dbg_stamp(2, True, 88, sW, 125)
e(f"v_cmp_gt_u32 vcc, 1008, v{tid}")
e("s_mov_b64 exec, vcc")
e(f"buffer_load_dwordx2 {vr(RC,2)}, v{vT[0]}, {srd(S_WS)}, s{sT0} offen")
e("s_mov_b64 exec, -1")
c("own rows DMA (waves 0..9): rows 4w..4w+3 ; chunk = (l&15) ^ (row&15)")
e(f"s_cmp_ge_u32 s{sW}, 10")
e("s_cbranch_scc1 L_noown")
e(f"v_lshrrev_b32 v{vT[0]}, 4, v{vL}")
e(f"v_and_b32 v{vT[1]}, 15, v{vL}")
e(f"v_xor_b32 v{vT[1]}, v{vT[1]}, v{vT[0]}")
e(f"s_lshl_b32 s{sT0}, s{sCT}, 2")
e(f"v_xor_b32 v{vT[1]}, s{sT0}, v{vT[1]}")
e(f"v_lshlrev_b32 v{vT[1]}, 4, v{vT[1]}")
e(f"v_lshl_add_u32 v{vT[1]}, v{vT[0]}, 8, v{vT[1]}")
e(f"s_mul_i32 s{sT0}, s2, {40*256}")
e(f"s_lshl_b32 s{sT1}, s{sW}, 10")
e(f"s_add_u32 s{sT0}, s{sT0}, s{sT1}")
e(f"s_add_u32 m0, s{sT1}, {OWN}")
e("s_nop 0")
e(f"buffer_load_dwordx4 v{vT[1]}, {srd(S_H)}, s{sT0} offen lds")
e("s_branch L_own_done")
lab("L_noown")
c("PT raw DMA (wave 10): 60 dwords")
e(f"s_cmp_eq_u32 s{sW}, 10")
e("s_cbranch_scc0 L_own_done")
e(f"v_lshlrev_b32 v{vT[1]}, 2, v{vL}")
e(f"s_mul_i32 s{sT0}, s2, 240")
e(f"s_mov_b32 m0, {PT}")
e(f"v_cmp_gt_u32 vcc, 60, v{vL}")
e("s_mov_b64 exec, vcc")
e(f"buffer_load_dword v{vT[1]}, {srd(S_POS)}, s{sT0} offen lds")
e("s_mov_b64 exec, -1")
lab("L_own_done")
c("weight frags: q<2 -> WH1F, else W1F ; slice ct -> v16..47")
WF = 16
e(f"s_cmp_lt_u32 s{sQ}, 2")
e(f"s_cselect_b32 s{sT0}, 32768, 0")
e(f"s_add_u32 s{sT0}, s{sT0}, {WFOFF}")
e(f"s_lshl_b32 s{sT1}, s{sCT}, 13")
e(f"s_add_u32 s{sT0}, s{sT0}, s{sT1}")
e(f"s_add_u32 s{sT1}, s{sT0}, 4096")
e(f"v_lshlrev_b32 v{vT[0]}, 4, v{vL}")
for s_ in range(8):
    e(f"buffer_load_dwordx4 {vr(WF+4*s_,4)}, v{vT[0]}, {srd(S_WS)}, s{[sT0,sT1][s_>>2]} offen offset:{(s_%4)*1024}")
c("K1B -> BXF lanes >= 32")
e(f"v_and_b32 v{vT[1]}, 31, v{vL}")
e(f"v_lshlrev_b32 v{vT[1]}, 4, v{vT[1]}")
e(f"s_lshl_b32 s{sT0}, s{sCT}, 9")
e(f"s_add_u32 s{sT0}, s{sT0}, {WFOFF+98304}")
e("s_mov_b32 exec_lo, 0")
e(f"buffer_load_dwordx4 {vr(BXF,4)}, v{vT[1]}, {srd(S_WS)}, s{sT0} offen")
e("s_mov_b32 exec_lo, -1")
c("touch WH2F for L2 warmup: wave w lanes<16: line (w*16 + l)*128")
e(f"s_lshl_b32 s{sT0}, s{sW}, 11")
e(f"s_add_u32 s{sT0}, s{sT0}, {WFOFF+65536}")
e(f"v_lshlrev_b32 v{vT[2]}, 7, v{vL}")
e("s_mov_b64 exec, 0xffff")
e(f"buffer_load_dword v127, v{vT[2]}, {srd(S_WS)}, s{sT0} offen")
e("s_mov_b64 exec, -1")
NLATE = 10

c("lane constants")
e(f"v_and_b32 v{vT[2]}, 31, v{vL}              ; n / e")
e(f"v_lshrrev_b32 v{vT[3]}, 5, v{vL}           ; hi")
c("vLS = DE16 + 8 + (l>>2)*16 ; vQD = ct*64 + (l&3)*16")
e(f"v_lshrrev_b32 v{vT[4]}, 2, v{vL}")
e(f"v_lshlrev_b32 v{vLS}, 4, v{vT[4]}")
e(f"v_add_u32 v{vLS}, {DE16+8}, v{vLS}")
e(f"v_and_b32 v{vT[5]}, 3, v{vL}")
e(f"v_lshlrev_b32 v{vQD}, 4, v{vT[5]}")
e(f"s_lshl_b32 s{sT0}, s{sCT}, 6")
e(f"v_add_u32 v{vQD}, s{sT0}, v{vQD}")
c("vTRQ = QT + w*4096 + (8hi + r)*64 + colhalf*32 + c4*8 ; vTRS = REC + (4hi + r)*64 + colhalf*32 + c4*8")
e(f"v_bfe_u32 v{vT[4]}, v{vL}, 2, 2            ; r")
e(f"v_bfe_u32 v{vT[6]}, v{vL}, 4, 1            ; colhalf")
e(f"v_lshlrev_b32 v{vT[6]}, 5, v{vT[6]}")
e(f"v_lshl_add_u32 v{vT[6]}, v{vT[5]}, 3, v{vT[6]}   ; colhalf*32 + c4*8")
e(f"v_lshl_add_u32 v{vTRQ}, v{vT[3]}, 3, v{vT[4]}")
e(f"v_lshl_add_u32 v{vTRQ}, v{vTRQ}, 6, v{vT[6]}")
e(f"s_lshl_b32 s{sT0}, s{sW}, 12")
e(f"v_add_u32 v{vTRQ}, s{sT0}, v{vTRQ}")
e(f"v_lshl_add_u32 v{vTRS}, v{vT[3]}, 2, v{vT[4]}")
e(f"v_lshl_add_u32 v{vTRS}, v{vTRS}, 6, v{vT[6]}")
e(f"v_add_u32 v{vTRS}, {REC}, v{vTRS}")
c("OHD: lanes<32: REC + e*64 (mult 64); lanes>=32: DE16 + e*16 (mult 16)")
e(f"v_cmp_gt_u32 vcc, 32, v{vL}")
e(f"v_lshlrev_b32 v{vT[4]}, 6, v{vT[2]}")
e(f"v_add_u32 v{vT[4]}, {REC}, v{vT[4]}")
e(f"v_lshlrev_b32 v{vT[5]}, 4, v{vT[2]}")
e(f"v_add_u32 v{vT[5]}, {DE16}, v{vT[5]}")
e(f"v_cndmask_b32 v{vOD}, v{vT[5]}, v{vT[4]}, vcc")
e(f"v_mov_b32 v{vT[4]}, 64")
e(f"v_mov_b32 v{vT[5]}, 16")
e(f"v_cndmask_b32 v{vODM}, v{vT[5]}, v{vT[4]}, vcc")
c("vBX = BXP + ct*512 + n*16")
e(f"v_lshlrev_b32 v{vBX}, 4, v{vT[2]}")
e(f"s_lshl_b32 s{sT0}, s{sCT}, 9")
e(f"s_add_u32 s{sT0}, s{sT0}, {BXP}")
e(f"v_add_u32 v{vBX}, s{sT0}, v{vBX}")
e(f"s_mul_i32 s{sOWNB}, s{sQ}, {CAP_G}")
c("stage-1 slot constants")
vS0, vS1, vCnt, vOne = 115, 116, 117, 118
e(f"v_and_b32 v{vS1}, 15, v{tid}")
e(f"v_lshlrev_b32 v{vS1}, 1, v{vS1}")
e(f"v_add_u32 v{vS0}, -1, v{vS1}")
e(f"v_mov_b32 v{vOne}, 1")
e("s_waitcnt lgkmcnt(0)")
e("s_barrier")
e(f"s_waitcnt vmcnt({NLATE+1})")
c("NOTE: waves 11..15 have no own/PT dma -> vmcnt(NLATE+1) insufficient for them; use NLATE for those")
e(f"s_cmp_lt_u32 s{sW}, 11")
e("s_cbranch_scc1 L_rec_ok")
e(f"s_waitcnt vmcnt({NLATE})")
lab("L_rec_ok")
stamp("records landed")
c("stage 1 (fast)")
e(f"v_mov_b32_dpp v{vCnt}, v{RC} row_newbcast:0 row_mask:0xf bank_mask:0xf")
vG0, vG1, vR0, vR1, vA0, vA1 = 119, 120, 121, 122, 123, 124
e(f"v_bfe_u32 v{vG0}, v{RC}, 3, 3")
e(f"v_bfe_u32 v{vG1}, v{RC+1}, 3, 3")
e(f"s_mov_b32 s{sT0}, {ALLOC}")
e(f"v_lshl_add_u32 v{vA0}, v{vG0}, 2, s{sT0}")
e(f"v_lshl_add_u32 v{vA1}, v{vG1}, 2, s{sT0}")
e(f"v_cmp_lt_u32 {sp(sM0)}, v{vS0}, v{vCnt}")
e(f"v_cmp_lt_u32 {sp(sM1)}, v{vS1}, v{vCnt}")
e(f"v_cmp_lt_u32 vcc, 31, v{vCnt}")
e(f"s_mov_b64 exec, {sp(sM0)}")
e(f"ds_add_rtn_u32 v{vR0}, v{vA0}, v{vOne}")
e(f"s_mov_b64 exec, {sp(sM1)}")
e(f"ds_add_rtn_u32 v{vR1}, v{vA1}, v{vOne}")
e("s_mov_b64 exec, -1")
e("s_cbranch_vccz L_s1_noovf")
e(f"v_mov_b32 v{vA0}, {OVF}")
e(f"ds_write_b32 v{vA0}, v{vOne}")
lab("L_s1_noovf")
e(f"s_mov_b32 s{sT0}, {DE16+8}")
e(f"v_mul_u32_u24 v{vG0}, {CAP_G}, v{vG0}")
e(f"v_mul_u32_u24 v{vG1}, {CAP_G}, v{vG1}")
def s1_place(vR, vG, vA, rec, msk, tag):
    e(f"v_cmp_gt_u32 vcc, {CAP_G}, v{vR}")
    e(f"v_add_u32 v{vG}, v{vG}, v{vR}")
    e(f"v_lshl_add_u32 v{vA}, v{vG}, 4, s{sT0}")
    e(f"s_and_b64 exec, {sp(msk)}, vcc")
    e(f"ds_write2_b32 v{vA}, v{rec}, v{vC} offset0:0 offset1:1")
    e(f"s_andn2_b64 exec, {sp(msk)}, vcc")
    e(f"s_cbranch_execz L_s1_ok{tag}")
    e(f"v_mov_b32 v{vA}, {OVF}")
    e(f"ds_write_b32 v{vA}, v{vOne}")
    lab(f"L_s1_ok{tag}")
    e("s_mov_b64 exec, -1")
e("s_waitcnt lgkmcnt(1)")
s1_place(vR0, vG0, vA0, RC, sM0, "a")
e("s_waitcnt lgkmcnt(0)")
s1_place(vR1, vG1, vA1, RC+1, sM1, "b")
e(f"s_waitcnt vmcnt(0) lgkmcnt(0)")
e("s_barrier")
stamp("BA")

lab("L_stage2")
c("counts")
e(f"v_mov_b32 v{vT[0]}, {ALLOC}")
e(f"ds_read_b128 {vr(104,4)}, v{vT[0]}")
e(f"ds_read_b64 {vr(108,2)}, v{vT[0]} offset:16")
c("own list entry (idx = tid)")
e(f"s_lshl_b32 s{sT0}, s{sW}, 6")
e(f"v_add_u32 v{tid}, s{sT0}, v{vL}")
e(f"v_lshlrev_b32 v{vT[1]}, 4, v{tid}")
e(f"v_add_u32 v{vT[1]}, {DE16}, v{vT[1]}")
pRC, pC = 112, 113
e(f"ds_read_b64 {vr(pRC,2)}, v{vT[1]} offset:8")
c("zero own REC chunk (4 KB per wave, waves<15)")
e(f"v_mov_b32 v116, 0"); e(f"v_mov_b32 v117, 0"); e(f"v_mov_b32 v118, 0"); e(f"v_mov_b32 v119, 0")
e(f"s_lshl_b32 s{sT0}, s{sW}, 12")
e(f"s_add_u32 s{sT0}, s{sT0}, {REC}")
e(f"v_lshlrev_b32 v{vT[2]}, 4, v{vL}")
e(f"v_add_u32 v{vT[2]}, s{sT0}, v{vT[2]}")
e(f"s_cmp_eq_u32 s{sW}, 15")
e("s_cbranch_scc1 L_nozero")
for i in range(4):
    e(f"ds_write_b128 v{vT[2]}, v[116:119] offset:{i*1024}")
lab("L_nozero")
e("s_waitcnt lgkmcnt(0)" )
for g in range(5):
    e(f"v_readfirstlane_b32 s{sCN[g]}, v{104+g}")
e(f"v_readfirstlane_b32 s{sT3}, v109           ; OVF")
e("s_nop 3")
e(f"s_cmp_eq_u32 s{sMODE}, 0")
e("s_cbranch_scc0 L_s2_noovfchk")
e(f"s_cmp_lg_u32 s{sT3}, 0")
e("s_cbranch_scc1 L_slow_init")
lab("L_s2_noovfchk")
for g in range(5):
    e(f"s_min_u32 s{sCN[g]}, s{sCN[g]}, {CAP_G}")
c("stage 2 part 1: valid = slot < cnt[w/3]; issue pos/ea loads")
e(f"s_mul_i32 s{sT0}, s{sW}, 43")
e(f"s_lshr_b32 s{sT0}, s{sT0}, 7            ; g = w/3")
e(f"s_mul_i32 s{sT1}, s{sT0}, {CAP_G}")
e(f"s_mov_b32 s{sT2}, 0")
for g in range(5):
    e(f"s_cmp_eq_u32 s{sT0}, {g}")
    e(f"s_cselect_b32 s{sT2}, s{sCN[g]}, s{sT2}")
e(f"s_add_u32 s{sT2}, s{sT2}, s{sT1}")
e(f"v_cmp_gt_u32 {sp(sM2)}, s{sT2}, v{tid}")
pS, pK, pE, pPS, pEA, pPD = 114, 115, 116, 118, 117, 120
pX = [123, 124, 125, 126, 127, 96, 97, 98, 99]
e(f"v_bfe_u32 v{pS}, v{pRC}, 8, 14")
e(f"v_and_b32 v{pK}, 63, v{pRC}")
e(f"v_mul_u32_u24 v{pX[0]}, 6, v{pS}")
e(f"v_and_b32 v{pX[0]}, -4, v{pX[0]}")
e(f"v_bfe_u32 v{pX[1]}, v{pRC}, 6, 2")
e(f"v_mul_u32_u24 v{pE}, 2560, v{pC}")
e(f"v_mad_u32_u24 v{pE}, v{pX[1]}, s{sT1}, v{pE}" if False else f"v_mul_u32_u24 v{pX[1]}, 640, v{pX[1]}")
e(f"v_lshrrev_b32 v{pX[2]}, 22, v{pRC}")
e(f"v_add3_u32 v{pE}, v{pE}, v{pX[1]}, v{pX[2]}")
e(f"v_lshlrev_b32 v{pE}, 1, v{pE}")
e(f"s_mov_b64 exec, {sp(sM2)}")
e(f"buffer_load_dwordx2 {vr(pPS,2)}, v{pX[0]}, {srd(S_POS)}, 0 offen")
e(f"buffer_load_ushort v{pEA}, v{pE}, {srd(S_EA)}, 0 offen")
e(f"v_mul_u32_u24 v{pX[3]}, 6, v{pK}")
e(f"v_add_u32 v{pX[3]}, {PT}, v{pX[3]}")
for k in range(3):
    e(f"ds_read_u16 v{pPD+k}, v{pX[3]} offset:{2*k}")
e("s_mov_b64 exec, -1")
c("schedule")
e(f"s_mov_b32 s{sCO}, s{sCN[0]}")
for g in range(1, 4):
    e(f"s_cmp_eq_u32 s{sQ}, {g}")
    e(f"s_cselect_b32 s{sCO}, s{sCN[g]}, s{sCO}")
e(f"s_add_u32 s{sNO}, s{sCO}, 31")
e(f"s_lshr_b32 s{sNO}, s{sNO}, 5")
e(f"s_add_u32 s{sT0}, s{sCN[4]}, 3")
e(f"s_lshr_b32 s{sT0}, s{sT0}, 2")
e(f"s_add_u32 s{sT0}, s{sT0}, 7")
e(f"s_and_b32 s{sT0}, s{sT0}, -8             ; part")
e(f"s_mul_i32 s{sT1}, s{sT0}, s{sQ}")
e(f"s_min_u32 s{sT1}, s{sT1}, s{sCN[4]}       ; st")
e(f"s_sub_u32 s{sL4}, s{sCN[4]}, s{sT1}")
e(f"s_min_u32 s{sL4}, s{sL4}, s{sT0}          ; len")
e(f"s_add_u32 s{sG4B}, s{sT1}, {4*CAP_G}")
e(f"s_add_u32 s{sT0}, s{sL4}, 31")
e(f"s_lshr_b32 s{sT0}, s{sT0}, 5")
e(f"s_add_u32 s{sNT}, s{sNO}, s{sT0}")
def tile_params(u, idx, nr=None):
    us = f"s{u}" if not isinstance(u, str) else u
    e(f"s_sub_u32 s{sT0}, {us}, s{sNO}")
    e(f"s_cmp_lt_u32 {us}, s{sNO}")
    e(f"s_cselect_b32 s{sT0}, {us}, s{sT0}")
    e(f"s_cselect_b32 s{idx}, s{sOWNB}, s{sG4B}")
    if nr is not None:
        e(f"s_cselect_b32 s{nr}, s{sCO}, s{sL4}")
    e(f"s_lshl_b32 s{sT0}, s{sT0}, 5")
    e(f"s_add_u32 s{idx}, s{idx}, s{sT0}")
    if nr is not None:
        e(f"s_sub_u32 s{nr}, s{nr}, s{sT0}")
        e(f"s_min_u32 s{nr}, s{nr}, 32")
def dma_lookup(idx):
    e(f"s_lshl_b32 s{sT0}, s{idx}, 4")
    e(f"v_add_u32 v{vT[0]}, s{sT0}, v{vLS}")
    e(f"ds_read2_b32 {vr(vT[2],2)}, v{vT[0]} offset0:0 offset1:64")
def dma_issue(buf):
    e(f"v_and_or_b32 v{vT[2]}, v{vT[2]}, s{sMASK}, v{vQD}")
    e(f"v_and_or_b32 v{vT[3]}, v{vT[3]}, s{sMASK}, v{vQD}")
    e(f"s_mov_b32 m0, s{buf}")
    e(f"s_nop 0")
    e(f"buffer_load_dwordx4 v{vT[2]}, {srd(S_Q)}, 0 offen lds")
    e(f"s_add_u32 m0, s{buf}, 1024")
    e(f"s_nop 0")
    e(f"buffer_load_dwordx4 v{vT[3]}, {srd(S_Q)}, 0 offen lds")
e(f"s_lshl_b32 s{sBUF}, s{sW}, 12")
e(f"s_cmp_eq_u32 s{sNT}, 0")
e("s_cbranch_scc1 L_dma0_done")
tile_params("0", sIDX2)
dma_lookup(sIDX2)
e("s_waitcnt lgkmcnt(0)")
dma_issue(sBUF)
e(f"s_cmp_lt_u32 s{sNT}, 2")
e("s_cbranch_scc1 L_dma0_done")
tile_params("1", sIDX2)
dma_lookup(sIDX2)
e(f"s_add_u32 s{sT2}, s{sBUF}, 2048")
e("s_waitcnt lgkmcnt(0)")
dma_issue(sT2)
lab("L_dma0_done")
stamp("dma0 issued")
c("node task (once)")
e(f"s_cmp_eq_u32 s{sNODE}, 0")
e("s_cbranch_scc0 L_node_done")
e(f"s_mov_b32 s{sNODE}, 1")
def rowreg(s_): return (ACC + 4*s_) if s_ < 4 else (QF + 4*(s_-4))
c("row read address: OWN + row*256 + ((hi ^ (row&15))<<4) ^ (s<<5); row = n (q even) or min(32+n,39) (q odd)")
e(f"v_and_b32 v{vT[4]}, 31, v{vL}")
e(f"v_lshrrev_b32 v{vT[5]}, 5, v{vL}")
e(f"v_add_u32 v{vT[6]}, 32, v{vT[4]}")
e(f"v_min_u32 v{vT[6]}, 39, v{vT[6]}")
e(f"s_bitcmp1_b32 s{sQ}, 0")
e(f"s_cselect_b64 vcc, -1, 0")
e(f"v_cndmask_b32 v{vT[6]}, v{vT[4]}, v{vT[6]}, vcc      ; row")
e(f"v_and_b32 v{vT[0]}, 15, v{vT[6]}")
e(f"v_xor_b32 v{vT[0]}, v{vT[0]}, v{vT[5]}")
e(f"v_lshlrev_b32 v{vT[0]}, 4, v{vT[0]}")
e(f"v_lshl_add_u32 v{vT[0]}, v{vT[6]}, 8, v{vT[0]}")
e(f"v_add_u32 v{vT[0]}, {OWN}, v{vT[0]}")
for s_ in range(8):
    e(f"v_xor_b32 v{vT[6]}, {s_<<5}, v{vT[0]}")
    e(f"ds_read_b128 {vr(rowreg(s_),4)}, v{vT[6]}")
e(f"s_cmp_eq_u32 s{sQ}, 0")
e("s_cbranch_scc0 L_node_nt")
for s_ in range(8):
    e(f"s_waitcnt lgkmcnt({7-s_})")
    mfma(FACC, WF+4*s_, rowreg(s_), "0" if s_ == 0 else vr(FACC,16))
e("s_branch L_node_fin")
lab("L_node_nt")
for s_ in range(8):
    e(f"s_waitcnt lgkmcnt({7-s_})")
    mfma(FACC, rowreg(s_), WF+4*s_, "0" if s_ == 0 else vr(FACC,16))
e(f"s_cmp_eq_u32 s{sQ}, 1")
e("s_cbranch_scc1 L_node_fin")
c("P' write: BXP + (g*4+ct)*512 + n*16 + hi*8 ; q2: g=0..3 ; q3: g=4")
e(f"v_lshl_add_u32 v{vT[6]}, v{vT[5]}, 3, v{vBX}")
e(f"s_mov_b32 s{sK2}, 0x{NLOG2E:08x}")
e("s_nop 7"); e("s_nop 3")
def pwrite(r0, g):
    for i in range(4):
        e(f"v_mul_f32 v{r0+i}, s{sK2}, v{r0+i}")
    e(f"v_cvt_pk_bf16_f32 v{r0}, v{r0}, v{r0+1}")
    e(f"v_cvt_pk_bf16_f32 v{r0+1}, v{r0+2}, v{r0+3}")
    e(f"ds_write_b64 v{vT[6]}, {vr(r0,2)} offset:{g*2048}")
e(f"s_cmp_eq_u32 s{sQ}, 3")
e("s_cbranch_scc1 L_node_g4")
for g in range(4):
    pwrite(FACC+4*g, g)
e("s_branch L_node_fin")
lab("L_node_g4")
pwrite(FACC, 4)
lab("L_node_fin")
e("s_nop 7")
for r in range(32):
    e(f"v_mov_b32 v{SEGO+r}, 0")
lab("L_node_done")
stamp("node done")
c("stage 2 part 2")
e("s_waitcnt vmcnt(0) lgkmcnt(0)")
stamp("pos landed")
e(f"s_mov_b64 exec, {sp(sM2)}")
e("s_cbranch_execz L_s2_done")
e(f"v_and_b32 v{pX[0]}, 1, v{pS}")
e(f"v_lshlrev_b32 v{pX[0]}, 4, v{pX[0]}        ; shift")
e(f"v_alignbit_b32 v{pX[1]}, v{pPS+1}, v{pPS}, v{pX[0]}     ; x | y<<16")
e(f"v_lshrrev_b32 v{pX[2]}, v{pX[0]}, v{pPS+1}              ; z (low 16)")
e(f"v_lshlrev_b32 v{pPS}, 16, v{pX[1]}")
e(f"v_and_b32 v{pPS+1}, 0xffff0000, v{pX[1]}")
e(f"v_lshlrev_b32 v{pX[2]}, 16, v{pX[2]}")
for k in range(3):
    e(f"v_lshlrev_b32 v{pPD+k}, 16, v{pPD+k}")
e(f"v_sub_f32 v{pPD}, v{pPD}, v{pPS}")
e(f"v_sub_f32 v{pPD+1}, v{pPD+1}, v{pPS+1}")
e(f"v_sub_f32 v{pPD+2}, v{pPD+2}, v{pX[2]}")
e(f"v_cvt_pk_bf16_f32 v{pX[0]}, v{pPD}, v{pPD+1}")
e(f"v_cvt_pk_bf16_f32 v{pX[1]}, v{pPD+2}, v{pPD+2}     ; dz")
e(f"v_lshlrev_b32 v{pPD}, 16, v{pX[0]}")
e(f"v_and_b32 v{pPD+1}, 0xffff0000, v{pX[0]}")
e(f"v_lshlrev_b32 v{pPD+2}, 16, v{pX[1]}")
for k in range(3):
    e(f"v_mul_f32 v{pPD+k}, v{pPD+k}, v{pPD+k}")
e(f"v_cvt_pk_bf16_f32 v{pX[2]}, v{pPD}, v{pPD+1}")
e(f"v_cvt_pk_bf16_f32 v{pX[3]}, v{pPD+2}, v{pPD+2}")
e(f"v_lshlrev_b32 v{pPD}, 16, v{pX[2]}")
e(f"v_and_b32 v{pPD+1}, 0xffff0000, v{pX[2]}")
e(f"v_lshlrev_b32 v{pPD+2}, 16, v{pX[3]}")
e(f"v_add_f32 v{pPD}, v{pPD}, v{pPD+1}")
e(f"v_add_f32 v{pPD}, v{pPD}, v{pPD+2}")
e(f"v_cvt_pk_bf16_f32 v{pX[2]}, v{pPD}, v{pPD}")
e(f"v_and_b32 v{pX[2]}, 0xffff, v{pX[2]}")
e(f"v_and_b32 v{pX[6]}, 7, v{pK}")
e(f"v_lshlrev_b32 v{pX[6]}, 1, v{pX[6]}")
e(f"v_lshl_add_u32 v{pX[6]}, v{tid}, 6, v{pX[6]}")
e(f"v_add_u32 v{pX[6]}, {REC}, v{pX[6]}")
e(f"v_mov_b32 v{pX[7]}, 0x3f80")
e(f"ds_write_b16 v{pX[6]}, v{pX[7]}")
e(f"ds_write_b16 v{pX[6]}, v{pX[0]} offset:16")
e(f"ds_write_b16_d16_hi v{pX[6]}, v{pX[0]} offset:32")
e(f"ds_write_b16 v{pX[6]}, v{pX[1]} offset:48")
DW = 124
e(f"v_lshl_or_b32 v{DW}, v{pEA}, 16, v{pX[2]}           ; d2 | ea<<16")
e(f"v_mov_b32 v{DW+1}, v{DW}")
e(f"v_and_b32 v{DW+2}, s{sMASK}, v{pRC}")
e(f"v_mov_b32 v{DW+3}, 0")
e(f"v_lshlrev_b32 v{pX[5]}, 4, v{tid}")
e(f"v_add_u32 v{pX[5]}, {DE16}, v{pX[5]}")
e(f"ds_write_b128 v{pX[5]}, {vr(DW,4)}")
lab("L_s2_done")
e("s_mov_b64 exec, -1")
c("ID constants: lane (m,hi): step s elem i = (m == 16s + 8hi + i)")
e(f"v_and_b32 v{vT[4]}, 31, v{vL}")
e(f"v_lshrrev_b32 v{vT[5]}, 5, v{vL}")
e(f"v_lshlrev_b32 v{vT[5]}, 3, v{vT[5]}")
e(f"v_sub_u32 v{vT[4]}, v{vT[4]}, v{vT[5]}        ; x = m - 8hi")
e(f"v_mov_b32 v{vT[5]}, 0x3f80")
e(f"v_mov_b32 v{vT[6]}, 0x3f800000")
for s_ in range(2):
    for r in range(4):
        x0 = 16*s_ + 2*r
        e(f"v_cmp_eq_u32 vcc, {x0}, v{vT[4]}")
        e(f"v_cndmask_b32 v{ID+4*s_+r}, 0, v{vT[5]}, vcc")
        e(f"v_cmp_eq_u32 vcc, {x0+1}, v{vT[4]}")
        e(f"v_cndmask_b32 v{ID+4*s_+r}, v{ID+4*s_+r}, v{vT[6]}, vcc")
c("own-group BXF (lanes<32)")
e(f"s_lshl_b32 s{sT0}, s{sQ}, 11")
e(f"v_add_u32 v{vT[4]}, s{sT0}, v{vBX}")
e("s_waitcnt lgkmcnt(0)")
e("s_barrier          ; BB")
stamp("BB")
e("s_mov_b32 exec_hi, 0")
e(f"ds_read_b128 {vr(BXF,4)}, v{vT[4]}")
e("s_mov_b32 exec_hi, -1")
e(f"s_mov_b32 s{sU}, 0")
c("make vTRQ point at buffer 0")
e(f"v_and_b32 v{vTRQ}, {0xffffffff ^ 2048:#x}, v{vTRQ}")

def tile_body(SEG, tag):
    tile_params(sU, sIDX, sNR)
    c("lookup for tile u+2")
    e(f"s_add_u32 s{sT2}, s{sU}, 2")
    e(f"s_cmp_lt_u32 s{sT2}, s{sNT}")
    e(f"s_cselect_b32 s{sK3}, 1, 0")
    e(f"s_cbranch_scc0 L_nolk{tag}")
    tile_params(sT2, sIDX2)
    dma_lookup(sIDX2)
    lab(f"L_nolk{tag}")
    e(f"v_mad_u32_u24 v{vT[1]}, s{sIDX}, v{vODM}, v{vOD}")
    e(f"ds_read_b128 {vr(OHD,4)}, v{vT[1]}")
    e(f"s_lshl_b32 s{sT0}, s{sIDX}, 6")
    e(f"v_add_u32 v{vT[4]}, s{sT0}, v{vTRS}")
    c("wait for this tile's Q")
    e(f"s_add_u32 s{sT2}, s{sU}, 1")
    e(f"s_cmp_lt_u32 s{sT2}, s{sNT}")
    e(f"s_cbranch_scc1 L_w2{tag}")
    e("s_waitcnt vmcnt(0)")
    e(f"s_branch L_wd{tag}")
    lab(f"L_w2{tag}")
    e("s_waitcnt vmcnt(2)")
    lab(f"L_wd{tag}")
    e(f"ds_read_b64_tr_b16 {vr(QF,2)}, v{vTRQ}")
    e(f"ds_read_b64_tr_b16 {vr(QF+2,2)}, v{vTRQ} offset:256")
    e(f"ds_read_b64_tr_b16 {vr(QF+4,2)}, v{vTRQ} offset:1024")
    e(f"ds_read_b64_tr_b16 {vr(QF+6,2)}, v{vTRQ} offset:1280")
    e(f"ds_read_b64_tr_b16 {vr(SF,2)}, v{vT[4]}")
    e(f"ds_read_b64_tr_b16 {vr(SF+2,2)}, v{vT[4]} offset:512")
    e(f"ds_read_b64_tr_b16 {vr(SF+4,2)}, v{vT[4]} offset:1024")
    e(f"ds_read_b64_tr_b16 {vr(SF+6,2)}, v{vT[4]} offset:1536")
    e("s_waitcnt lgkmcnt(8)")
    mfma(ACC, OHD, BXF, "0")
    e("s_waitcnt lgkmcnt(6)")
    mfma(ACC, ID, QF, vr(ACC,16))
    e("s_waitcnt lgkmcnt(4)")
    mfma(ACC, ID+4, QF+4, vr(ACC,16))
    e(f"s_cmp_eq_u32 s{sK3}, 0")
    e(f"s_cbranch_scc1 L_nodma{tag}")
    dma_issue(sBUF)
    lab(f"L_nodma{tag}")
    e(f"s_xor_b32 s{sBUF}, s{sBUF}, 2048")
    e(f"v_xor_b32 v{vTRQ}, 2048, v{vTRQ}")
    e("s_nop 7")
    e("s_nop 2")
    for bb in range(4):
        if bb > 0:
            e(f"s_cmp_le_u32 s{sNR}, {8*bb}")
            e(f"s_cbranch_scc1 L_skip{tag}{bb}")
        a = ACC + 4*bb
        t = TE + 4*(bb & 1)
        for i in range(4): e(f"v_exp_f32 v{t+i}, v{a+i}")
        for i in range(4): e(f"v_add_f32 v{t+i}, 1.0, v{t+i}")
        for i in range(4): e(f"v_rcp_f32 v{t+i}, v{t+i}")
        for i in range(4): e(f"v_mul_f32 v{t+i}, v{a+i}, v{t+i}")
        e(f"v_cvt_pk_bf16_f32 v{MP+2*bb}, v{t}, v{t+1}")
        e(f"v_cvt_pk_bf16_f32 v{MP+2*bb+1}, v{t+2}, v{t+3}")
    e(f"s_branch L_blk{tag}")
    for bb in range(1, 4):
        lab(f"L_skip{tag}{bb}")
        e(f"v_mov_b32 v{MP+2*bb}, 0")
        e(f"v_mov_b32 v{MP+2*bb+1}, 0")
    lab(f"L_blk{tag}")
    e("s_waitcnt lgkmcnt(0)")
    e("s_nop 1")
    mfma(SEG, SF, MP, vr(SEG,16))
    mfma(SEG, SF+4, MP+4, vr(SEG,16))
    e(f"s_add_u32 s{sU}, s{sU}, 1")

e(f"s_cmp_eq_u32 s{sNO}, 0")
e("s_cbranch_scc1 L_own_end")
lab("L_own_loop")
tile_body(SEGO, "o")
e(f"s_cmp_lt_u32 s{sU}, s{sNO}")
e("s_cbranch_scc1 L_own_loop")
lab("L_own_end")
stamp("own tiles done")
e(f"s_cmp_ge_u32 s{sU}, s{sNT}")
e("s_cbranch_scc1 L_tiles_done")
e(f"v_add_u32 v{vT[4]}, {4*2048}, v{vBX}")
e("s_mov_b32 exec_hi, 0")
e(f"ds_read_b128 {vr(BXF,4)}, v{vT[4]}")
e("s_mov_b32 exec_hi, -1")
lab("L_g4_loop")
tile_body(SEG4, "p")
e(f"s_cmp_lt_u32 s{sU}, s{sNT}")
e("s_cbranch_scc1 L_g4_loop")
lab("L_tiles_done")
stamp("tiles done")
e(f"s_cmp_eq_u32 s{sMODE}, 0")
e("s_cbranch_scc0 L_slow_next")

lab("L_final")
WFL = 80
ROW = 16
HRES = 112
vN = vT[1]; vHI = vT[2]; vOFF = vT[3]; vRD = vT[4]
e(f"v_and_b32 v{vN}, 31, v{vL}")
e(f"v_lshrrev_b32 v{vHI}, 5, v{vL}")
c("late frags: q<2: WH2F slice ct ; q>=2: wx frags")
e(f"s_cmp_ge_u32 s{sQ}, 2")
e("s_cbranch_scc1 L_f_wx")
e(f"s_lshl_b32 s{sT0}, s{sCT}, 13")
e(f"s_add_u32 s{sT0}, s{sT0}, {WFOFF+65536}")
e(f"s_add_u32 s{sT1}, s{sT0}, 4096")
e(f"v_lshlrev_b32 v{vT[0]}, 4, v{vL}")
for s_ in range(8):
    e(f"buffer_load_dwordx4 {vr(WFL+4*s_,4)}, v{vT[0]}, {srd(S_WS)}, s{[sT0,sT1][s_>>2]} offen offset:{(s_%4)*1024}")
e("s_branch L_f_flush")
lab("L_f_wx")
e(f"v_lshlrev_b32 v{vT[0]}, 4, v{vHI}")
for s_ in range(8):
    e(f"buffer_load_dwordx4 {vr(WFL+4*s_,4)}, v{vT[0]}, {srd(S_WX)}, 0 offen offset:{s_*32}")
lab("L_f_flush")
c("flush: addr a = QT + w*4096 + hi*256 + (((n>>3) ^ (hi | ((q&1)<<1)))<<4) + (n&7)*2 ; b = a ^ 32")
e(f"s_and_b32 s{sT0}, s{sQ}, 1")
e(f"s_lshl_b32 s{sT0}, s{sT0}, 1")
e(f"v_or_b32 v{vT[5]}, s{sT0}, v{vHI}")
e(f"v_lshrrev_b32 v{vT[6]}, 3, v{vN}")
e(f"v_xor_b32 v{vT[5]}, v{vT[5]}, v{vT[6]}")
e(f"v_lshlrev_b32 v{vT[5]}, 4, v{vT[5]}")
e(f"v_lshl_add_u32 v{vT[5]}, v{vHI}, 8, v{vT[5]}")
e(f"v_and_b32 v{vT[6]}, 7, v{vN}")
e(f"v_lshl_add_u32 v{vT[5]}, v{vT[6]}, 1, v{vT[5]}")
e(f"s_lshl_b32 s{sT0}, s{sW}, 12")
e(f"v_add_u32 v{vT[5]}, s{sT0}, v{vT[5]}")
e(f"v_xor_b32 v{vT[6]}, 32, v{vT[5]}")
e(f"s_mov_b32 s{sT1}, 0x{NLN2:08x}")
e("s_nop 7")
def flush(SEG, which):
    for r in range(4):
        e(f"v_mul_f32 v{SEG+r}, s{sT1}, v{SEG+r}")
    for p in range(8):
        e(f"v_cvt_pk_bf16_f32 v{SEG+p}, v{SEG+2*p}, v{SEG+2*p+1}")
    for p in range(8):
        r = 2*p
        row0 = 8*(r >> 2) + (r & 3)
        a = vT[5] if ((r >> 2) & 1) == 0 else vT[6]
        e(f"ds_write_b16 v{a}, v{SEG+p} offset:{which*2048 + row0*64}")
        e(f"ds_write_b16_d16_hi v{a}, v{SEG+p} offset:{which*2048 + (row0+1)*64}")
flush(SEGO, 0)
flush(SEG4, 1)
c("row address per role: addr = q'*16384 + which*2048 + rho*64 + ((hi ^ ((rho>>2)&3) ^ ((q'&1)<<1))<<4)")
vQP = vT[5]; vRHO = vT[6]
e(f"v_lshrrev_b32 v{vQP}, 3, v{vN}            ; q' = n>>3 (roles A,B,D)")
e(f"v_and_b32 v{vRHO}, 7, v{vN}")
e(f"s_and_b32 s{sT2}, s{sQ}, 1")
e(f"s_lshl_b32 s{sT2}, s{sT2}, 11")
e(f"s_cmp_eq_u32 s{sQ}, 2")
e("s_cbranch_scc0 L_f_notC")
e(f"v_mov_b32 v{vQP}, s{sCT}")
e(f"v_mov_b32 v{vRHO}, v{vN}")
lab("L_f_notC")
e(f"s_cmp_eq_u32 s{sQ}, 3")
e("s_cbranch_scc0 L_f_notD")
e(f"s_lshl_b32 s{sT0}, s{sCT}, 3")
e(f"s_add_u32 s{sT0}, s{sT0}, 8")
e(f"s_and_b32 s{sT0}, s{sT0}, 31")
e(f"v_add_u32 v{vRHO}, s{sT0}, v{vRHO}")
lab("L_f_notD")
e(f"v_bfe_u32 v{vT[0]}, v{vRHO}, 2, 2")
e(f"v_xor_b32 v{vT[0]}, v{vT[0]}, v{vHI}")
e(f"v_and_b32 v{vT[7]}, 1, v{vQP}")
e(f"v_lshlrev_b32 v{vT[7]}, 1, v{vT[7]}")
e(f"v_xor_b32 v{vT[0]}, v{vT[0]}, v{vT[7]}")
e(f"v_lshlrev_b32 v{vRD}, 4, v{vT[0]}")
e(f"v_lshl_add_u32 v{vRD}, v{vRHO}, 6, v{vRD}")
e(f"v_lshl_add_u32 v{vRD}, v{vQP}, 14, v{vRD}")
e(f"v_add_u32 v{vRD}, s{sT2}, v{vRD}")
c("residuals + output offsets")
e(f"s_mul_i32 s{sK3}, s2, 40")
e(f"s_cmp_ge_u32 s{sQ}, 2")
e("s_cbranch_scc1 L_f_resCD")
e(f"s_cmp_eq_u32 s{sQ}, 1")
e("s_cbranch_scc1 L_f_resB")
c("role A: h[node n][32ct + 8bb + 4hi..+3]: OWN + n*256 + (((ct*4+bb) ^ (n&15))<<4) + hi*8")
e(f"v_and_b32 v{vT[0]}, 15, v{vN}")
e(f"s_lshl_b32 s{sT0}, s{sCT}, 2")
e(f"v_xor_b32 v{vT[0]}, s{sT0}, v{vT[0]}")
e(f"v_lshlrev_b32 v{vT[0]}, 4, v{vT[0]}")
e(f"v_lshl_add_u32 v{vT[0]}, v{vN}, 8, v{vT[0]}")
e(f"v_lshl_add_u32 v{vT[0]}, v{vHI}, 3, v{vT[0]}")
e(f"v_add_u32 v{vT[0]}, {OWN}, v{vT[0]}")
for bb in range(4):
    e(f"v_xor_b32 v{vT[7]}, {bb<<4}, v{vT[0]}")
    e(f"ds_read_b64 {vr(HRES+2*bb,2)}, v{vT[7]}")
e(f"v_add_u32 v{vOFF}, s{sK3}, v{vN}")
e(f"v_lshlrev_b32 v{vOFF}, 8, v{vOFF}")
e(f"v_lshl_add_u32 v{vOFF}, v{vHI}, 3, v{vOFF}")
e(f"s_lshl_b32 s{sT0}, s{sCT}, 6")
e(f"v_add_u32 v{vOFF}, s{sT0}, v{vOFF}")
e("s_branch L_f_bar")
lab("L_f_resB")
c("role B: rows 32+4hi+i, col 32ct+n: OWN + row*256 + (((ct*4 + (n>>3)) ^ (row&15))<<4) + (n&7)*2")
e(f"v_lshrrev_b32 v{vT[0]}, 3, v{vN}")
e(f"s_lshl_b32 s{sT0}, s{sCT}, 2")
e(f"v_add_u32 v{vT[0]}, s{sT0}, v{vT[0]}          ; chunk")
e(f"v_lshlrev_b32 v{vT[7]}, 2, v{vHI}             ; 4hi")
e(f"v_xor_b32 v{vT[0]}, v{vT[0]}, v{vT[7]}")
e(f"v_lshlrev_b32 v{vT[0]}, 4, v{vT[0]}")
e(f"v_lshl_add_u32 v{vT[0]}, v{vT[7]}, 8, v{vT[0]}   ; + 4hi*256")
e(f"v_and_b32 v{vT[5]}, 7, v{vN}")
e(f"v_lshl_add_u32 v{vT[0]}, v{vT[5]}, 1, v{vT[0]}")
e(f"v_add_u32 v{vT[0]}, {OWN + 32*256}, v{vT[0]}")
for i in range(4):
    e(f"v_xor_b32 v{vT[5]}, {i<<4}, v{vT[0]}")
    e(f"ds_read_u16 v{HRES+i}, v{vT[5]} offset:{i*256}")
e(f"s_add_u32 s{sT0}, s{sK3}, 32")
e(f"v_add_u32 v{vOFF}, s{sT0}, v{vT[7]}")
e(f"v_lshlrev_b32 v{vOFF}, 8, v{vOFF}")
e(f"v_lshl_add_u32 v{vOFF}, v{vN}, 1, v{vOFF}")
e(f"s_lshl_b32 s{sT0}, s{sCT}, 6")
e(f"v_add_u32 v{vOFF}, s{sT0}, v{vOFF}")
e("s_branch L_f_bar")
lab("L_f_resCD")
e(f"s_cmp_eq_u32 s{sQ}, 3")
e("s_cbranch_scc1 L_f_resD")
c("role C: g = ct. lane n: c = n>>3, j = n&7; k = 8g + j ; comp c-1")
e(f"v_and_b32 v{vT[5]}, 7, v{vN}")
e(f"s_lshl_b32 s{sT0}, s{sCT}, 3")
e(f"v_add_u32 v{vT[5]}, s{sT0}, v{vT[5]}      ; k")
e(f"v_mul_u32_u24 v{vT[5]}, 6, v{vT[5]}")
e(f"v_lshrrev_b32 v{vT[0]}, 3, v{vN}          ; c")
e(f"v_lshl_add_u32 v{vT[5]}, v{vT[0]}, 1, v{vT[5]}")
e(f"v_subrev_u32 v{vT[5]}, 2, v{vT[5]}        ; k*6 + (c-1)*2")
e(f"v_max_i32 v{vT[5]}, 0, v{vT[5]}")
e("s_branch L_f_resCD2")
lab("L_f_resD")
c("role D: comp c = ct+1. lane n: j = n&7; k = 32 + j")
e(f"v_and_b32 v{vT[5]}, 7, v{vN}")
e(f"v_add_u32 v{vT[5]}, 32, v{vT[5]}")
e(f"v_mul_u32_u24 v{vT[5]}, 6, v{vT[5]}")
e(f"s_lshl_b32 s{sT0}, s{sCT}, 1")
e(f"v_add_u32 v{vT[5]}, s{sT0}, v{vT[5]}")
lab("L_f_resCD2")
e(f"v_add_u32 v{vT[0]}, {PT}, v{vT[5]}")
e(f"ds_read_u16 v{HRES}, v{vT[0]}")
e(f"s_mul_i32 s{sT0}, s2, 240")
e(f"v_add_u32 v{vOFF}, s{sT0}, v{vT[5]}")
lab("L_f_bar")
e("s_waitcnt lgkmcnt(0)")
e("s_barrier")
stamp("final bar")
e(f"s_cmp_eq_u32 s{sW}, 15")
e("s_cbranch_scc1 L_end")
e(f"v_xor_b32 v{vT[0]}, 32, v{vRD}")
for s_ in range(8):
    e(f"ds_read_b128 {vr(ROW+4*s_,4)}, v{[vRD, vT[0]][s_&1]} offset:{(s_>>1)*4096}")
e(f"s_mov_b32 s{sK2}, 0x{NLOG2E:08x}")
e(f"s_mov_b32 s{sK3}, 0xffff0000")
e("s_waitcnt vmcnt(0)")
e(f"s_cmp_ge_u32 s{sQ}, 2")
e("s_cbranch_scc1 L_f_CD")
e(f"s_cmp_eq_u32 s{sQ}, 1")
e("s_cbranch_scc1 L_f_B")
c("role A")
for s_ in range(8):
    e(f"s_waitcnt lgkmcnt({7-s_})")
    mfma(FACC, WFL+4*s_, ROW+4*s_, vr(FACC,16))
e("s_nop 7")
e("s_nop 3")
def final_silu(a, n, TEf):
    for i in range(n): e(f"v_mul_f32 v{TEf+i}, s{sK2}, v{a+i}")
    for i in range(n): e(f"v_exp_f32 v{TEf+i}, v{TEf+i}")
    for i in range(n): e(f"v_add_f32 v{TEf+i}, 1.0, v{TEf+i}")
    for i in range(n): e(f"v_rcp_f32 v{TEf+i}, v{TEf+i}")
    for i in range(n): e(f"v_mul_f32 v{a+i}, v{a+i}, v{TEf+i}")
X = 48
for i in range(4):
    a = FACC + 4*i
    final_silu(a, 4, X)
    e(f"v_lshlrev_b32 v{X}, 16, v{HRES+2*i}")
    e(f"v_and_b32 v{X+1}, s{sK3}, v{HRES+2*i}")
    e(f"v_lshlrev_b32 v{X+2}, 16, v{HRES+2*i+1}")
    e(f"v_and_b32 v{X+3}, s{sK3}, v{HRES+2*i+1}")
    for k in range(4): e(f"v_add_f32 v{a+k}, v{a+k}, v{X+k}")
    e(f"v_cvt_pk_bf16_f32 v{X+4+2*i}, v{a}, v{a+1}")
    e(f"v_cvt_pk_bf16_f32 v{X+5+2*i}, v{a+2}, v{a+3}")
    e(f"buffer_store_dwordx2 {vr(X+4+2*i,2)}, v{vOFF}, {srd(S_O0)}, 0 offen offset:{i*16}")
e("s_branch L_end")
lab("L_f_B")
c("role B: rows (p,j)")
for s_ in range(8):
    e(f"s_waitcnt lgkmcnt({7-s_})")
    mfma(ACC, ROW+4*s_, WFL+4*s_, "0" if s_ == 0 else vr(ACC,16))
e("s_nop 7")
e("s_nop 3")
for k in range(4):
    e(f"v_add_f32 v{ACC+k}, v{ACC+k}, v{ACC+4+k}")
    e(f"v_add_f32 v{ACC+8+k}, v{ACC+8+k}, v{ACC+12+k}")
for k in range(4):
    e(f"v_add_f32 v{ACC+k}, v{ACC+k}, v{ACC+8+k}")
for k in range(4):
    e(f"v_add_f32 v{ACC+k}, v{ACC+k}, v{FACC+k}")
final_silu(ACC, 4, ROW)
for k in range(4):
    e(f"v_lshlrev_b32 v{ROW+k}, 16, v{HRES+k}")
for k in range(4):
    e(f"v_add_f32 v{ACC+k}, v{ACC+k}, v{ROW+k}")
for k in range(4):
    e(f"v_cvt_pk_bf16_f32 v{ROW+8+k}, v{ACC+k}, v{ACC+k}")
for r in range(4):
    e(f"buffer_store_short v{ROW+8+r}, v{vOFF}, {srd(S_O0)}, 0 offen offset:{r*256}")
e("s_branch L_end")
lab("L_f_CD")
for s_ in range(8):
    e(f"s_waitcnt lgkmcnt({7-s_})")
    mfma(ACC, WFL+4*s_, ROW+4*s_, "0" if s_ == 0 else vr(ACC,16))
e("s_nop 7")
e("s_nop 3")
e(f"s_mov_b32 s{sK2}, 0x{NLN2:08x}")
e(f"v_lshlrev_b32 v{HRES}, 16, v{HRES}")
e(f"s_cmp_eq_u32 s{sQ}, 3")
e("s_cbranch_scc1 L_f_D")
c("role C: lanes 8..31 valid")
e(f"v_fma_f32 v{ACC}, s{sK2}, v{ACC}, v{HRES}")
e(f"v_cvt_pk_bf16_f32 v{ACC}, v{ACC}, v{ACC}")
e(f"s_mov_b32 s{sEX}, 0xffffff00")
e(f"s_mov_b32 s{sEX+1}, 0")
e(f"s_mov_b64 exec, {sp(sEX)}")
e(f"buffer_store_short v{ACC}, v{vOFF}, {srd(S_O1)}, 0 offen")
e("s_branch L_end")
lab("L_f_D")
c("role D: sum over p: lanes n, n+8, n+16, n+24")
e(f"v_add_f32_dpp v{ACC+1}, v{ACC}, v{ACC} row_ror:8 row_mask:0xf bank_mask:0xf")
e("s_nop 1")
e(f"ds_swizzle_b32 v{ACC+2}, v{ACC+1} offset:0x401F")
e("s_waitcnt lgkmcnt(0)")
e(f"v_add_f32 v{ACC+1}, v{ACC+1}, v{ACC+2}")
e(f"v_fma_f32 v{ACC}, s{sK2}, v{ACC+1}, v{HRES}")
e(f"v_cvt_pk_bf16_f32 v{ACC}, v{ACC}, v{ACC}")
e(f"s_mov_b64 exec, 0xff")
e(f"buffer_store_short v{ACC}, v{vOFF}, {srd(S_O1)}, 0 offen")
lab("L_end")
if TIMING:
    e("s_mov_b64 exec, -1")
stamp("end")
stamp_flush()
if gen3_k1.DBGT:
    e("s_mov_b64 exec, -1")
    e("s_waitcnt vmcnt(0)")
    gen3_k1.dbg_stamp(3, False, 88, sW, 125)
    c("copy K1 stamps")
    e(f"s_or_b32 s88, s2, s{sW}")
    e(f"s_cmp_lg_u32 s88, 0")
    e("s_cbranch_scc1 L_nocopy")
    e(f"s_load_dwordx2 s[88:89], s[0:1], 72")
    e(f"s_mov_b32 s90, 256")
    e(f"s_mov_b32 s91, 0x20000")
    e("s_mov_b64 exec, 0xfff")
    e(f"v_lshlrev_b32 v125, 2, v{vL}")
    e(f"s_mov_b32 s92, {40<<20}")
    e(f"buffer_load_dword v126, v125, {srd(S_WS)}, s92 offen")
    e("s_waitcnt vmcnt(0) lgkmcnt(0)")
    e(f"buffer_store_dword v126, v125, s[88:91], 0 offen offset:16")
    lab("L_nocopy")
lab("L_end2")
e("s_endpgm")

lab("L_slow_init")
e(f"s_mov_b32 s{sMODE}, 1")
e(f"s_mov_b32 s{sCH}, 0")
e(f"s_mov_b32 s{sRETRY}, 0")
e("s_branch L_slow_pass")
lab("L_slow_next")
c("PEND flag was read into sK... re-read now (stable since BA)")
e(f"v_mov_b32 v{vT[0]}, {PEND}")
e(f"ds_read_b32 v{vT[1]}, v{vT[0]}")
e("s_waitcnt lgkmcnt(0)")
e(f"v_readfirstlane_b32 s{sRETRY}, v{vT[1]}")
e("s_nop 3")
e(f"s_cmp_lg_u32 s{sRETRY}, 0")
e("s_cbranch_scc1 L_slow_pass")
lab("L_slow_adv")
e(f"s_add_u32 s{sCH}, s{sCH}, 1")
e(f"s_cmp_ge_u32 s{sCH}, 250")
e("s_cbranch_scc1 L_slow_fin")
lab("L_slow_pass")
e("s_waitcnt vmcnt(0) lgkmcnt(0)")
e("s_barrier")
e(f"s_lshl_b32 s{sT0}, s{sW}, 6")
e(f"v_add_u32 v{tid}, s{sT0}, v{vL}")
for i in range(4): e(f"v_mov_b32 v{Z+i}, 0")
e(f"v_lshlrev_b32 v{vT[0]}, 4, v{tid}")
e(f"v_add_u32 v{vT[1]}, {DE16}, v{vT[0]}")
e(f"v_add_u32 v{vT[2]}, {CTR - 960*16}, v{vT[0]}")
e(f"v_cmp_gt_u32 vcc, 960, v{tid}")
e(f"v_cndmask_b32 v{vT[1]}, v{vT[2]}, v{vT[1]}, vcc")
e(f"v_cmp_gt_u32 vcc, 964, v{tid}")
e("s_mov_b64 exec, vcc")
e(f"ds_write_b128 v{vT[1]}, {vr(Z,4)}")
e("s_mov_b64 exec, -1")
c("raw edge e = 640*ch + t (t<640)")
qD, qS, qP, qB, qK, qR, qA = 112, 113, 114, 115, 116, 117, 118
e(f"s_mul_i32 s{sT0}, s{sCH}, 2560")
e(f"v_lshlrev_b32 v{vT[0]}, 2, v{tid}")
e(f"v_mov_b32 v{qD}, -1")
e(f"v_mov_b32 v{qS}, 0")
e(f"v_mov_b32 v{qP}, 0")
e(f"v_cmp_gt_u32 {sp(sM0)}, 640, v{tid}" if False else f"v_mov_b32 v{qA}, 640")
e(f"v_cmp_gt_u32 {sp(sM0)}, v{qA}, v{tid}")
e(f"s_mov_b64 exec, {sp(sM0)}")
e(f"buffer_load_dword v{qD}, v{vT[0]}, {srd(S_DST)}, s{sT0} offen")
e(f"buffer_load_dword v{qS}, v{vT[0]}, {srd(S_SRC)}, s{sT0} offen")
e(f"v_add_u32 v{qA}, {PENDB}, v{tid}")
e(f"ds_read_u8 v{qP}, v{qA}")
e("s_mov_b64 exec, -1")
e("s_waitcnt vmcnt(0) lgkmcnt(0)")
e("s_barrier")
e(f"v_mul_u32_u24 v{qB}, 52429, v{qD}")
e(f"v_lshrrev_b32 v{qB}, 21, v{qB}")
e(f"v_mul_u32_u24 v{qK}, 40, v{qB}")
e(f"v_sub_u32 v{qK}, v{qD}, v{qK}")
e(f"v_cmp_eq_u32 vcc, s2, v{qB}")
e(f"s_and_b64 {sp(sM0)}, {sp(sM0)}, vcc          ; match")
e(f"s_cmp_eq_u32 s{sRETRY}, 0")
e("s_cbranch_scc1 L_slow_fresh")
e(f"v_cmp_ne_u32 vcc, 0, v{qP}")
e(f"s_and_b64 {sp(sM0)}, {sp(sM0)}, vcc")
lab("L_slow_fresh")
c("rec = t<<22 | src<<8 | (ch&3)<<6 | k ; c = ch>>2")
e(f"s_and_b32 s{sT0}, s{sCH}, 3")
e(f"s_lshl_b32 s{sT0}, s{sT0}, 6")
e(f"v_lshlrev_b32 v{qD}, 22, v{tid}")
e(f"v_lshl_or_b32 v{qD}, v{qS}, 8, v{qD}")
e(f"v_or_b32 v{qD}, s{sT0}, v{qD}")
e(f"v_or_b32 v{qD}, v{qK}, v{qD}")
e(f"s_lshr_b32 s{sT0}, s{sCH}, 2")
e(f"v_mov_b32 v{qS}, s{sT0}")
e(f"v_lshrrev_b32 v{qB}, 3, v{qK}           ; g")
e(f"s_mov_b32 s{sT0}, {ALLOC}")
e(f"v_lshl_add_u32 v{qA}, v{qB}, 2, s{sT0}")
e(f"v_mov_b32 v{qK}, 1")
e(f"v_mov_b32 v{qP}, 0")
e(f"s_mov_b64 exec, {sp(sM0)}")
e(f"ds_add_rtn_u32 v{qR}, v{qA}, v{qK}")
e("s_waitcnt lgkmcnt(0)")
e(f"v_cmp_gt_u32 vcc, {CAP_G}, v{qR}")
e(f"v_mul_u32_u24 v{qB}, {CAP_G}, v{qB}")
e(f"v_add_u32 v{qB}, v{qB}, v{qR}")
e(f"s_mov_b32 s{sT0}, {DE16+8}")
e(f"v_lshl_add_u32 v{qA}, v{qB}, 4, s{sT0}")
e(f"s_and_b64 exec, {sp(sM0)}, vcc")
e(f"ds_write2_b32 v{qA}, v{qD}, v{qS} offset0:0 offset1:1")
e(f"s_andn2_b64 exec, {sp(sM0)}, vcc")
e("s_cbranch_execz L_slow_nopend")
e(f"v_mov_b32 v{qP}, 1")
e(f"v_mov_b32 v{qA}, {PEND}")
e(f"ds_write_b32 v{qA}, v{qK}")
lab("L_slow_nopend")
e("s_mov_b64 exec, -1")
e(f"v_mov_b32 v{qA}, 640")
e(f"v_cmp_gt_u32 vcc, v{qA}, v{tid}")
e("s_mov_b64 exec, vcc")
e(f"v_add_u32 v{qA}, {PENDB}, v{tid}")
e(f"ds_write_b8 v{qA}, v{qP}")
e("s_mov_b64 exec, -1")
e("s_waitcnt lgkmcnt(0)")
e("s_barrier")
c("skip quickly if nothing placed (and node task already done)")
e(f"v_mov_b32 v{vT[0]}, {ALLOC}")
e(f"ds_read_b128 {vr(104,4)}, v{vT[0]}")
e(f"ds_read_b32 v108, v{vT[0]} offset:16")
e("s_waitcnt lgkmcnt(0)")
e(f"v_or_b32 v104, v104, v105")
e(f"v_or3_b32 v104, v104, v106, v107")
e(f"v_or_b32 v104, v104, v108")
e("s_nop 0")
e(f"v_readfirstlane_b32 s{sT0}, v104")
e("s_nop 3")
e(f"s_cmp_lg_u32 s{sT0}, 0")
e("s_cbranch_scc1 L_stage2")
e(f"s_mov_b32 s{sRETRY}, 0")
e("s_branch L_slow_adv")
lab("L_slow_fin")
c("ensure node task ran: if never, run one empty pass through stage2 with zero counts")
e(f"s_cmp_eq_u32 s{sNODE}, 0")
e("s_cbranch_scc0 L_final_bar")
e(f"s_mov_b32 s{sMODE}, 2")
e("s_branch L_stage2")
lab("L_final_bar")
e("s_barrier")
e("s_branch L_final")

desc = f""".amdhsa_kernel {KNAME}
  .amdhsa_next_free_vgpr 128
  .amdhsa_next_free_sgpr 102
  .amdhsa_accum_offset 128
  .amdhsa_group_segment_fixed_size 0
  .amdhsa_kernarg_size 88
  .amdhsa_user_sgpr_count 2
  .amdhsa_user_sgpr_kernarg_segment_ptr 1
  .amdhsa_system_sgpr_workgroup_id_x 1
.end_amdhsa_kernel"""
body = "\n".join(out)
final = "\n".join(header) + "\n" + body + "\n" + '.section .rodata,"a"\n.p2align 6\n' + k1_desc + "\n.p2align 6\n" + desc + "\n"
dest = sys.argv[1] if len(sys.argv) > 1 else "standalone__cheap_equivariant_egnn__graph.s"
open(dest, "w").write(final)
print("wrote", dest, len(out), "lines")
```

```python
from g3common import *

K1NAME = "egnn_prep_kernel"
NG = 157; NWP = 2; NCH = 63
K1_GRID = NG + NWP + NCH
K1_LDS = 65536

TIMING = os.environ.get("TIMING", "")
def rt_start():
    if not TIMING: return
    e("s_memrealtime s[50:51]")
    e("s_memtime s[52:53]")
def rt_end(S_WS, sW):
    if not TIMING: return
    e("s_waitcnt vmcnt(0)")
    e("s_memrealtime s[54:55]")
    e("s_memtime s[56:57]")
    e("s_mov_b64 exec, 1")
    e(f"s_lshl_b32 s58, s2, 4")
    e(f"s_add_u32 s58, s58, s{sW}")
    e(f"s_lshl_b32 s58, s58, 4")
    e(f"s_add_u32 s58, s58, {33<<20}")
    e("s_waitcnt lgkmcnt(0)")
    e("v_mov_b32 v60, s50"); e("v_mov_b32 v61, s54"); e("v_mov_b32 v62, s52"); e("v_mov_b32 v63, s56")
    e("v_mov_b32 v59, 0")
    e(f"buffer_store_dwordx4 v[60:63], v59, {srd(S_WS)}, s58 offen")

def gen_k1():
    S_H, S_SRC, S_DST, S_WE, S_WH, S_WS, S_Q = [8 + 4 * i for i in range(7)]
    sW, sCT, sRB, sT0, sT1, sT2, sC = 40, 41, 42, 43, 44, 45, 46
    vL = 1
    lab(K1NAME)
    e(f"s_cmp_ge_u32 s2, {K1_GRID}")
    e("s_cbranch_scc1 L1_end")
    rt_start()
    for (x, off) in [(S_DST,32),(S_SRC,24),(S_H,0),(S_WE,40),(S_WH,56),(S_WS,80)]:
        e(f"s_load_dwordx2 s[{x}:{x+1}], s[0:1], {off}")
    e(f"v_lshrrev_b32 v2, 6, v0")
    e(f"v_and_b32 v{vL}, 63, v0")
    e(f"s_nop 0")
    e(f"v_readfirstlane_b32 s{sW}, v2")
    for (x, sz) in [(S_H,2560000),(S_SRC,640000),(S_DST,640000),(S_WE,66048),(S_WH,65536),(S_WS,256*1048576),(S_Q,2560000)]:
        e(f"s_mov_b32 s{x+2}, {sz}")
        e(f"s_mov_b32 s{x+3}, 0x20000")
    e(f"s_and_b32 s{sCT}, s{sW}, 3")
    e(f"s_lshr_b32 s{sRB}, s{sW}, 2")
    e(f"s_cmp_ge_u32 s2, {NG+NWP}")
    e("s_cbranch_scc1 L1_bin")
    c("non-binning: waves 8,9 exit")
    e(f"s_cmp_ge_u32 s{sW}, 8")
    e("s_cbranch_scc1 L1_end")
    e("s_waitcnt lgkmcnt(0)")
    e(f"s_add_u32 s{S_Q}, s{S_WS}, {QOFF}")
    e(f"s_addc_u32 s{S_Q+1}, s{S_WS+1}, 0")
    c("slice DMA lane offset: (l>>2)*256 + ct*64 + (l&3)*16")
    vSL = 2; vTRP = 3; vRA = 4; vRD = 5; vT0 = 6; vT1 = 7; vST = 8
    e(f"v_lshrrev_b32 v{vSL}, 2, v{vL}")
    e(f"v_lshlrev_b32 v{vSL}, 8, v{vSL}")
    e(f"v_and_b32 v{vT0}, 3, v{vL}")
    e(f"v_lshl_add_u32 v{vSL}, v{vT0}, 4, v{vSL}")
    e(f"s_lshl_b32 s{sT0}, s{sCT}, 6")
    e(f"v_add_u32 v{vSL}, s{sT0}, v{vSL}")
    c("tr pattern: (8hi + r)*64 + colhalf*32 + c4*8")
    def trpat(dst):
        e(f"v_lshrrev_b32 v{vT0}, 5, v{vL}")
        e(f"v_bfe_u32 v{vT1}, v{vL}, 2, 2")
        e(f"v_lshl_add_u32 v{dst}, v{vT0}, 3, v{vT1}")
        e(f"v_lshlrev_b32 v{dst}, 6, v{dst}")
        e(f"v_bfe_u32 v{vT0}, v{vL}, 4, 1")
        e(f"v_lshl_add_u32 v{dst}, v{vT0}, 5, v{dst}")
        e(f"v_and_b32 v{vT0}, 3, v{vL}")
        e(f"v_lshl_add_u32 v{dst}, v{vT0}, 3, v{dst}")
    e(f"s_cmp_ge_u32 s2, {NG}")
    e("s_cbranch_scc1 L1_wprep")
    c("GEMM WG: rows 64r..64r+63")
    AF = 16; BF = 48; D = 80
    e(f"s_lshl_b32 s{sT0}, s{sCT}, 13")
    e(f"s_lshl_b32 s{sT1}, s{sRB}, 12")
    e(f"s_add_u32 s{sT0}, s{sT0}, s{sT1}")
    e(f"s_lshl_b32 s{sT1}, s{sRB}, 14")
    e(f"s_add_u32 s{sT1}, s{sT1}, 32768")
    for i in range(4):
        e(f"s_add_u32 m0, s{sT0}, {i*1024}")
        e(f"s_add_u32 s{sT2}, s{sT1}, {i*4096}")
        e(f"buffer_load_dwordx4 v{vSL}, {srd(S_WE)}, s{sT2} offen lds")
    c("rows DMA: row = 8w + 4i + (l>>4); chunk = (l&15) ^ (row&15)")
    e(f"v_lshrrev_b32 v{vT0}, 4, v{vL}")
    e(f"v_and_b32 v{vT1}, 15, v{vL}")
    e(f"v_xor_b32 v{vT1}, v{vT1}, v{vT0}")
    e(f"s_and_b32 s{sT0}, s{sW}, 1")
    e(f"s_lshl_b32 s{sT0}, s{sT0}, 3")
    e(f"v_xor_b32 v{vT1}, s{sT0}, v{vT1}")
    e(f"v_lshlrev_b32 v{vT1}, 4, v{vT1}")
    e(f"v_lshl_add_u32 v{vRA}, v{vT0}, 8, v{vT1}")
    e(f"s_lshl_b32 s{sT0}, s2, 14")
    e(f"s_lshl_b32 s{sT1}, s{sW}, 11")
    e(f"s_add_u32 s{sT0}, s{sT0}, s{sT1}           ; (64r + 8w)*256")
    e(f"s_add_u32 m0, s{sT1}, 32768")
    e(f"s_add_u32 s{sT2}, s{sT0}, 1024")
    e(f"buffer_load_dwordx4 v{vRA}, {srd(S_H)}, s{sT0} offen lds")
    e(f"v_xor_b32 v{vRA}, 64, v{vRA}")
    e(f"s_add_u32 m0, s{sT1}, {32768+1024}")
    e(f"s_nop 0")
    e(f"buffer_load_dwordx4 v{vRA}, {srd(S_H)}, s{sT2} offen lds")
    trpat(vTRP)
    e(f"s_lshl_b32 s{sT0}, s{sCT}, 13")
    e(f"v_add_u32 v{vTRP}, s{sT0}, v{vTRP}")
    c("row read address: 32768 + (rb*32+n)*256 + ((hi ^ (n&15))<<4) ^ (s<<5)")
    e(f"v_and_b32 v{vT0}, 31, v{vL}")
    e(f"v_lshrrev_b32 v{vT1}, 5, v{vL}")
    e(f"v_and_b32 v{vRD}, 15, v{vL}")
    e(f"v_xor_b32 v{vRD}, v{vRD}, v{vT1}")
    e(f"v_lshlrev_b32 v{vRD}, 4, v{vRD}")
    e(f"v_lshl_add_u32 v{vRD}, v{vT0}, 8, v{vRD}")
    e(f"s_lshl_b32 s{sT0}, s{sRB}, 13")
    e(f"s_add_u32 s{sT0}, s{sT0}, 32768")
    e(f"v_add_u32 v{vRD}, s{sT0}, v{vRD}")
    c("store offset: (64r + 32rb + n)*256 + ct*64 + hi*8")
    e(f"v_lshlrev_b32 v{vST}, 8, v{vT0}")
    e(f"v_lshl_add_u32 v{vST}, v{vT1}, 3, v{vST}")
    e(f"s_lshl_b32 s{sT0}, s2, 14")
    e(f"s_lshl_b32 s{sT1}, s{sRB}, 13")
    e(f"s_add_u32 s{sT0}, s{sT0}, s{sT1}")
    e(f"s_lshl_b32 s{sT1}, s{sCT}, 6")
    e(f"s_add_u32 s{sT0}, s{sT0}, s{sT1}")
    e("s_waitcnt vmcnt(0)")
    e("s_barrier")
    for s_ in range(8):
        e(f"v_xor_b32 v{vT0}, {s_<<5}, v{vRD}")
        e(f"ds_read_b128 {vr(BF+4*s_,4)}, v{vT0}")
        e(f"ds_read_b64_tr_b16 {vr(AF+4*s_,2)}, v{vTRP} offset:{s_*1024}")
        e(f"ds_read_b64_tr_b16 {vr(AF+4*s_+2,2)}, v{vTRP} offset:{s_*1024+256}")
    for s_ in range(8):
        e(f"s_waitcnt lgkmcnt({min(15, 3*(7-s_))})")
        mfma(D, AF+4*s_, BF+4*s_, "0" if s_ == 0 else vr(D,16))
    e(f"s_mov_b32 s{sT1}, 0x{NLOG2E:08x}")
    e("s_nop 7"); e("s_nop 3")
    for bb in range(4):
        r0 = D + 4*bb
        for i in range(4):
            e(f"v_mul_f32 v{r0+i}, s{sT1}, v{r0+i}")
        e(f"v_cvt_pk_bf16_f32 v{r0}, v{r0}, v{r0+1}")
        e(f"v_cvt_pk_bf16_f32 v{r0+1}, v{r0+2}, v{r0+3}")
        e(f"buffer_store_dwordx2 {vr(r0,2)}, v{vST}, {srd(S_Q)}, s{sT0} offen offset:{bb*16}")
    rt_end(S_WS, sW)
    e("s_endpgm")
    lab("L1_wprep")
    c("weight prep: WG157: w0-3 W1, w4-7 Wh1 ; WG158: w0-3 Wh2, w4-7 K1B")
    e(f"s_lshl_b32 s{sT2}, s{sW}, 13")
    trpat(vTRP)
    e(f"v_add_u32 v{vTRP}, s{sT2}, v{vTRP}")
    e(f"v_lshlrev_b32 v{vST}, 4, v{vL}")
    e(f"s_cmp_eq_u32 s2, {NG}")
    e("s_cbranch_scc0 L1_w158")
    e(f"s_cmp_eq_u32 s{sRB}, 0")
    e("s_cbranch_scc0 L1_wh1")
    def slice_dma(S, gbase):
        for i in range(8):
            e(f"s_add_u32 m0, s{sT2}, {i*1024}")
            e(f"s_mov_b32 s{sT1}, {gbase + i*4096}")
            e(f"buffer_load_dwordx4 v{vSL}, {srd(S)}, s{sT1} offen lds")
    slice_dma(S_WE, 0)
    e(f"s_mov_b32 s{sC}, {WFOFF + 0}")
    e("s_branch L1_wfin")
    lab("L1_wh1")
    slice_dma(S_WH, 0)
    e(f"s_mov_b32 s{sC}, {WFOFF + 32768}")
    e("s_branch L1_wfin")
    lab("L1_w158")
    e(f"s_cmp_eq_u32 s{sRB}, 0")
    e("s_cbranch_scc0 L1_k1b")
    slice_dma(S_WH, 32768)
    e(f"s_mov_b32 s{sC}, {WFOFF + 65536}")
    lab("L1_wfin")
    e(f"s_lshl_b32 s{sT0}, s{sCT}, 13")
    e(f"s_add_u32 s{sC}, s{sC}, s{sT0}")
    e("s_waitcnt vmcnt(0)")
    for s_ in range(8):
        e(f"ds_read_b64_tr_b16 {vr(16+4*s_,2)}, v{vTRP} offset:{s_*1024}")
        e(f"ds_read_b64_tr_b16 {vr(16+4*s_+2,2)}, v{vTRP} offset:{s_*1024+256}")
    for s_ in range(8):
        if s_ == 4:
            e(f"s_add_u32 s{sC}, s{sC}, 4096")
        e(f"s_waitcnt lgkmcnt({2*(7-s_)})")
        e(f"buffer_store_dwordx4 {vr(16+4*s_,4)}, v{vST}, {srd(S_WS)}, s{sC} offen offset:{(s_%4)*1024}")
    rt_end(S_WS, sW)
    e("s_endpgm")
    lab("L1_k1b")
    KB = 16
    e(f"v_and_b32 v{vT0}, 31, v{vL}")
    e(f"s_lshl_b32 s{sT0}, s{sCT}, 5")
    e(f"v_add_u32 v{vT1}, s{sT0}, v{vT0}")
    e(f"v_lshlrev_b32 v{vT1}, 1, v{vT1}")
    e(f"s_mov_b32 s{sT1}, 65536")
    e(f"buffer_load_ushort v{KB}, v{vT1}, {srd(S_WE)}, s{sT1} offen")
    e(f"buffer_load_ushort v{KB+1}, v{vT1}, {srd(S_WE)}, s{sT1} offen offset:256")
    e(f"s_mov_b32 s{sT0}, 0x{NLOG2E:08x}")
    e(f"s_mov_b32 s{sT2}, 0xffff0000")
    e("s_waitcnt vmcnt(0)")
    e(f"v_lshlrev_b32 v20, 16, v{KB}")
    e(f"v_lshlrev_b32 v21, 16, v{KB+1}")
    e(f"v_mul_f32 v20, s{sT0}, v20")
    e(f"v_mul_f32 v21, s{sT0}, v21")
    e(f"v_cvt_pk_bf16_f32 v{KB}, v20, v21")
    e(f"v_lshlrev_b32 v22, 16, v{KB}")
    e(f"v_and_b32 v23, s{sT2}, v{KB}")
    e(f"v_sub_f32 v20, v20, v22")
    e(f"v_sub_f32 v21, v21, v23")
    e(f"v_cvt_pk_bf16_f32 v{KB+1}, v20, v21")
    e(f"v_mov_b32 v{KB+2}, 0")
    e(f"v_mov_b32 v{KB+3}, 0")
    e(f"v_lshlrev_b32 v{vT0}, 4, v{vT0}")
    e(f"s_lshl_b32 s{sT0}, s{sCT}, 9")
    e(f"s_add_u32 s{sT0}, s{sT0}, {WFOFF + 98304}")
    e("s_mov_b32 exec_hi, 0")
    e(f"buffer_store_dwordx4 {vr(KB,4)}, v{vT0}, {srd(S_WS)}, s{sT0} offen")
    e("s_endpgm")
    lab("L1_bin")
    c("binning WG c = wg - 159: edges e = 2560c + 640i + t")
    vD = 4; vS = 8; vB = 12; vR = 16; vE = 20; vT0 = 21; vT1 = 22; vOne = 23; vK = 24
    e(f"s_sub_u32 s{sC}, s2, {NG+NWP}")
    e(f"s_mul_i32 s{sT0}, s{sC}, {2560*4}")
    e(f"v_lshlrev_b32 v{vE}, 2, v0")
    c("zero headers")
    e(f"v_lshlrev_b32 v{vT0}, 7, v0")
    e(f"v_mov_b32 v{vT1}, 0")
    e(f"v_mov_b32 v{vOne}, 1")
    e(f"v_cmp_gt_u32 vcc, 250, v0")
    e(f"s_mov_b64 exec, vcc")
    e(f"ds_write_b32 v{vT0}, v{vT1}")
    e(f"s_mov_b64 exec, -1")
    e("s_waitcnt lgkmcnt(0)")
    e(f"s_add_u32 s{sT2}, s{sT0}, 5120")
    for i in range(4):
        e(f"buffer_load_dword v{vD+i}, v{vE}, {srd(S_DST)}, s{[sT0,sT2][i>>1]} offen offset:{(i&1)*2560}")
    for i in range(4):
        e(f"buffer_load_dword v{vS+i}, v{vE}, {srd(S_SRC)}, s{[sT0,sT2][i>>1]} offen offset:{(i&1)*2560}")
    c("validity: e < 160000  <=> byte offset < 640000")
    e(f"v_add_u32 v{vE}, s{sT0}, v{vE}")
    e("s_barrier")
    e(f"v_lshlrev_b32 v{vT1}, 22, v0          ; t << 22")
    for i in range(4):
        e(f"s_waitcnt vmcnt({7-i})")
        e(f"v_mul_u32_u24 v{vB+i}, 52429, v{vD+i}")
        e(f"v_lshrrev_b32 v{vB+i}, 21, v{vB+i}")
        e(f"v_lshlrev_b32 v{vT0}, 7, v{vB+i}")
        e(f"v_cmp_gt_u32 vcc, {640000 - i*2560}, v{vE}")
        e(f"s_mov_b64 exec, vcc")
        e(f"ds_add_rtn_u32 v{vR+i}, v{vT0}, v{vOne}")
        e(f"s_mov_b64 exec, -1")
        e(f"v_mul_u32_u24 v{vK}, 40, v{vB+i}")
        e(f"v_sub_u32 v{vD+i}, v{vD+i}, v{vK}       ; k")
        if i: e(f"v_or_b32 v{vD+i}, {i<<6}, v{vD+i}")
        e(f"v_or_b32 v{vD+i}, v{vT1}, v{vD+i}")
    for i in range(4):
        e(f"s_waitcnt vmcnt({3-i})")
        e(f"v_lshl_or_b32 v{vD+i}, v{vS+i}, 8, v{vD+i}    ; rec")
    for i in range(4):
        e(f"s_waitcnt lgkmcnt({3-i})")
        e(f"v_lshlrev_b32 v{vT0}, 7, v{vB+i}")
        e(f"v_lshl_add_u32 v{vT0}, v{vR+i}, 2, v{vT0}")
        e(f"v_cmp_gt_u32 vcc, 31, v{vR+i}")
        e(f"v_mov_b32 v{vK}, {640000 - i*2560}")
        e(f"v_cmp_gt_u32 s[{sT1}:{sT1+1}], v{vK}, v{vE}")
        e(f"s_and_b64 exec, vcc, s[{sT1}:{sT1+1}]")
        e(f"ds_write_b32 v{vT0}, v{vD+i} offset:4")
        e(f"s_mov_b64 exec, -1")
    e("s_waitcnt lgkmcnt(0)")
    e("s_barrier")
    c("copy image (32000 B) -> ws cells[c]")
    e(f"v_lshlrev_b32 v{vT0}, 4, v0")
    e(f"s_mul_i32 s{sT0}, s{sC}, 32000")
    e(f"s_add_u32 s{sT0}, s{sT0}, {CELLS}")
    for i in range(3):
        e(f"ds_read_b128 {vr(4+4*i,4)}, v{vT0} offset:{i*10240}")
    e(f"v_cmp_gt_u32 vcc, {(32000-30720)//16}, v0")
    e(f"s_and_saveexec_b64 s[{sT1}:{sT1+1}], vcc")
    e(f"ds_read_b128 {vr(16,4)}, v{vT0} offset:30720")
    e(f"v_add_u32 v{vT1}, 30720, v{vT0}")
    e("s_waitcnt lgkmcnt(0)")
    e(f"buffer_store_dwordx4 {vr(16,4)}, v{vT1}, {srd(S_WS)}, s{sT0} offen")
    e(f"s_mov_b64 exec, -1")
    e(f"v_add_u32 v{vT1}, 10240, v{vT0}")
    e(f"v_add_u32 v{vK}, 20480, v{vT0}")
    e(f"buffer_store_dwordx4 {vr(4,4)}, v{vT0}, {srd(S_WS)}, s{sT0} offen")
    e(f"buffer_store_dwordx4 {vr(8,4)}, v{vT1}, {srd(S_WS)}, s{sT0} offen")
    e(f"buffer_store_dwordx4 {vr(12,4)}, v{vK}, {srd(S_WS)}, s{sT0} offen")
    rt_end(S_WS, sW)
    lab("L1_end")
    e("s_endpgm")
    return f""".amdhsa_kernel {K1NAME}
  .amdhsa_next_free_vgpr 96
  .amdhsa_next_free_sgpr 64
  .amdhsa_accum_offset 96
  .amdhsa_group_segment_fixed_size 0
  .amdhsa_kernarg_size 88
  .amdhsa_user_sgpr_count 2
  .amdhsa_user_sgpr_kernarg_segment_ptr 1
  .amdhsa_system_sgpr_workgroup_id_x 1
.end_amdhsa_kernel"""
```

```python
import sys, os
sys.path.insert(0, os.path.dirname(os.path.abspath(__file__)))
from g3common import *
import gen3_k1

KNAME = "standalone__cheap_equivariant_egnn__graph_kernel"
TIMING = os.environ.get("TIMING", "")
STOP = os.environ.get("STOP", "")

QT = 0
REC = 65536
DE16 = 126976
BXP = 142336
OWN = 152576
PT = 162816
CTR = 163072
ALLOC = CTR; OVF = CTR + 20; PEND = CTR + 24
PENDB = CTR + 64
LDS_TOTAL = PENDB + 640
CAP_G = 192
NWG = 250

S_H, S_POS, S_EA, S_SRC, S_DST, S_WX, S_O0, S_O1, S_WS, S_Q = [8 + 4 * i for i in range(10)]
sC4, sC5 = 4, 5
sW, sQ, sCT, sMODE, sT0, sT1, sT2, sT3 = range(48, 56)
sEX, sM0, sM1, sM2 = 56, 58, 60, 62
sCN = [64, 65, 66, 67, 68]
sNO, sNT, sCO, sG4B, sL4, sU, sIDX, sNR, sIDX2, sBUF, sK2, sK3, sNODE, sCH, sOWNB, sMASK, sRETRY = range(69, 86)
STAMP0 = 86

vL = 0
vLS, vQD, vTRQ, vTRS, vOD, vODM, vBX = 1, 2, 3, 4, 5, 6, 7
vT = list(range(8, 16))
SEGO = 16; SEG4 = 32; ACC = 48; FACC = 64; QF = 80; SF = 88; OHD = 96; BXF = 100; ID = 104; MP = 112; TE = 120

_st = [0]
def stamp(name):
    if not TIMING: return
    i = _st[0]; _st[0] += 1
    c(f"STAMP {i} {name}")
    e(f"s_memtime s[{sC4}:{sC5}]")
    e("s_waitcnt lgkmcnt(0)")
    e(f"s_mov_b32 s{STAMP0+i}, s{sC4}")
    print("stamp", i, name)
    assert STAMP0 + i < 100
def stamp_flush():
    if not TIMING: return
    e(f"s_memrealtime s[{sC4}:{sC5}]")
    e("s_waitcnt lgkmcnt(0)")
    e("s_mov_b64 exec, 1")
    e(f"s_lshl_b32 s{sT0}, s2, 4")
    e(f"s_add_u32 s{sT0}, s{sT0}, s{sW}")
    e(f"s_lshl_b32 s{sT0}, s{sT0}, 8")
    e(f"s_add_u32 s{sT0}, s{sT0}, {32<<20}")
    e(f"v_mov_b32 v{vT[1]}, 0")
    for i in range(_st[0]):
        e(f"v_mov_b32 v{vT[0]}, s{STAMP0+i}")
        e(f"buffer_store_dword v{vT[0]}, v{vT[1]}, {srd(S_WS)}, s{sT0} offen offset:{i*4}")
    e(f"v_mov_b32 v{vT[0]}, s100")
    e(f"buffer_store_dword v{vT[0]}, v{vT[1]}, {srd(S_WS)}, s{sT0} offen offset:{62*4}")
    e(f"v_mov_b32 v{vT[0]}, s{sC4}")
    e(f"buffer_store_dword v{vT[0]}, v{vT[1]}, {srd(S_WS)}, s{sT0} offen offset:{63*4}")

header = []
header.append(f"; @launch kernel={gen3_k1.K1NAME} grid=({gen3_k1.K1_GRID},1,1) block=(640,1,1) lds={gen3_k1.K1_LDS}")
if STOP != "k1":
    header.append(f"; @launch kernel={KNAME} grid=({NWG},1,1) block=(1024,1,1) lds={LDS_TOTAL}")
header.append('.amdgcn_target "amdgcn-amd-amdhsa--gfx950"')
header.append(".text")
for k in (KNAME, gen3_k1.K1NAME):
    header.append(f".globl {k}")
    header.append(f".type {k},@function")

out.append(".p2align 8")
k1_desc = gen3_k1.gen_k1()
out.append(".p2align 8")
lab(KNAME)
e(f"s_cmp_ge_u32 s2, {NWG}")
e("s_cbranch_scc1 L_end2")
if TIMING:
    e("s_memrealtime s[100:101]")
for (x, off) in [(S_WS,80),(S_H,0),(S_POS,8),(S_EA,16),(S_SRC,24),(S_DST,32),(S_WX,48),(S_O0,64)]:
    e(f"s_load_dwordx2 s[{x}:{x+1}], s[0:1], {off}")
tid = vT[7]
e(f"v_mov_b32 v{tid}, v0")
e(f"v_lshrrev_b32 v{vT[0]}, 6, v0")
e(f"v_and_b32 v{vL}, 63, v0")
e(f"v_readfirstlane_b32 s{sW}, v{vT[0]}")
for (x, sz) in [(S_H,2560000),(S_POS,60000),(S_EA,320000),(S_SRC,640000),(S_DST,640000),(S_WX,256),(S_O0,2560000),(S_O1,60000),(S_WS,256*1048576),(S_Q,2560000)]:
    e(f"s_mov_b32 s{x+2}, {sz}")
    e(f"s_mov_b32 s{x+3}, 0x20000")
e(f"s_lshr_b32 s{sQ}, s{sW}, 2")
e(f"s_and_b32 s{sCT}, s{sW}, 3")
e(f"s_mov_b32 s{sMODE}, 0")
e(f"s_mov_b32 s{sNODE}, 0")
e(f"s_mov_b32 s{sMASK}, 0x3fff00")
c("zero LIST (t<960: 16B each; t>=960 -> counters region 64B by 4 lanes..)")
Z = 112
for i in range(4): e(f"v_mov_b32 v{Z+i}, 0")
e(f"v_lshlrev_b32 v{vT[0]}, 4, v{tid}")
e(f"v_add_u32 v{vT[1]}, {DE16}, v{vT[0]}")
e(f"v_add_u32 v{vT[2]}, {CTR - 960*16}, v{vT[0]}")
e(f"v_cmp_gt_u32 vcc, 960, v{tid}")
e(f"v_cndmask_b32 v{vT[1]}, v{vT[2]}, v{vT[1]}, vcc")
e(f"v_cmp_gt_u32 vcc, 964, v{tid}")
e("s_mov_b64 exec, vcc")
e(f"ds_write_b128 v{vT[1]}, {vr(Z,4)}")
e("s_mov_b64 exec, -1")
c("record address: (t>>4)*32000 + b*128 + (t&15)*8")
RC = 112
vC = 114
e(f"v_lshrrev_b32 v{vC}, 4, v{tid}")
e(f"v_mul_u32_u24 v{vT[0]}, 32000, v{vC}")
e(f"v_and_b32 v{vT[1]}, 15, v{tid}")
e(f"v_lshl_add_u32 v{vT[0]}, v{vT[1]}, 3, v{vT[0]}")
e(f"s_lshl_b32 s{sT0}, s2, 7")
e("s_waitcnt lgkmcnt(0)")
e(f"s_add_u32 s{S_O1}, s{S_O0}, 2560000")
e(f"s_addc_u32 s{S_O1+1}, s{S_O0+1}, 0")
e(f"s_add_u32 s{S_Q}, s{S_WS}, {QOFF}")
e(f"s_addc_u32 s{S_Q+1}, s{S_WS+1}, 0")
stamp("start")
e(f"v_cmp_gt_u32 vcc, 1008, v{tid}")
e("s_mov_b64 exec, vcc")
e(f"buffer_load_dwordx2 {vr(RC,2)}, v{vT[0]}, {srd(S_WS)}, s{sT0} offen")
e("s_mov_b64 exec, -1")
c("own rows DMA (waves 0..9): rows 4w..4w+3 ; chunk = (l&15) ^ (row&15)")
e(f"s_cmp_ge_u32 s{sW}, 10")
e("s_cbranch_scc1 L_noown")
e(f"v_lshrrev_b32 v{vT[0]}, 4, v{vL}")
e(f"v_and_b32 v{vT[1]}, 15, v{vL}")
e(f"v_xor_b32 v{vT[1]}, v{vT[1]}, v{vT[0]}")
e(f"s_lshl_b32 s{sT0}, s{sCT}, 2")
e(f"v_xor_b32 v{vT[1]}, s{sT0}, v{vT[1]}")
e(f"v_lshlrev_b32 v{vT[1]}, 4, v{vT[1]}")
e(f"v_lshl_add_u32 v{vT[1]}, v{vT[0]}, 8, v{vT[1]}")
e(f"s_mul_i32 s{sT0}, s2, {40*256}")
e(f"s_lshl_b32 s{sT1}, s{sW}, 10")
e(f"s_add_u32 s{sT0}, s{sT0}, s{sT1}")
e(f"s_add_u32 m0, s{sT1}, {OWN}")
e("s_nop 0")
e(f"buffer_load_dwordx4 v{vT[1]}, {srd(S_H)}, s{sT0} offen lds")
e("s_branch L_own_done")
lab("L_noown")
c("PT raw DMA (wave 10): 60 dwords")
e(f"s_cmp_eq_u32 s{sW}, 10")
e("s_cbranch_scc0 L_own_done")
e(f"v_lshlrev_b32 v{vT[1]}, 2, v{vL}")
e(f"s_mul_i32 s{sT0}, s2, 240")
e(f"s_mov_b32 m0, {PT}")
e(f"v_cmp_gt_u32 vcc, 60, v{vL}")
e("s_mov_b64 exec, vcc")
e(f"buffer_load_dword v{vT[1]}, {srd(S_POS)}, s{sT0} offen lds")
e("s_mov_b64 exec, -1")
lab("L_own_done")
c("weight frags: q<2 -> WH1F, else W1F ; slice ct -> v16..47")
WF = 16
e(f"s_cmp_lt_u32 s{sQ}, 2")
e(f"s_cselect_b32 s{sT0}, 32768, 0")
e(f"s_add_u32 s{sT0}, s{sT0}, {WFOFF}")
e(f"s_lshl_b32 s{sT1}, s{sCT}, 13")
e(f"s_add_u32 s{sT0}, s{sT0}, s{sT1}")
e(f"s_add_u32 s{sT1}, s{sT0}, 4096")
e(f"v_lshlrev_b32 v{vT[0]}, 4, v{vL}")
for s_ in range(8):
    e(f"buffer_load_dwordx4 {vr(WF+4*s_,4)}, v{vT[0]}, {srd(S_WS)}, s{[sT0,sT1][s_>>2]} offen offset:{(s_%4)*1024}")
c("K1B -> BXF lanes >= 32")
e(f"v_and_b32 v{vT[1]}, 31, v{vL}")
e(f"v_lshlrev_b32 v{vT[1]}, 4, v{vT[1]}")
e(f"s_lshl_b32 s{sT0}, s{sCT}, 9")
e(f"s_add_u32 s{sT0}, s{sT0}, {WFOFF+98304}")
e("s_mov_b32 exec_lo, 0")
e(f"buffer_load_dwordx4 {vr(BXF,4)}, v{vT[1]}, {srd(S_WS)}, s{sT0} offen")
e("s_mov_b32 exec_lo, -1")
c("touch WH2F for L2 warmup: wave w lanes<16: line (w*16 + l)*128")
e(f"s_lshl_b32 s{sT0}, s{sW}, 11")
e(f"s_add_u32 s{sT0}, s{sT0}, {WFOFF+65536}")
e(f"v_lshlrev_b32 v{vT[2]}, 7, v{vL}")
e("s_mov_b64 exec, 0xffff")
e(f"buffer_load_dword v127, v{vT[2]}, {srd(S_WS)}, s{sT0} offen")
e("s_mov_b64 exec, -1")
NLATE = 10

c("lane constants")
e(f"v_and_b32 v{vT[2]}, 31, v{vL}              ; n / e")
e(f"v_lshrrev_b32 v{vT[3]}, 5, v{vL}           ; hi")
c("vLS = DE16 + 8 + (l>>2)*16 ; vQD = ct*64 + (l&3)*16")
e(f"v_lshrrev_b32 v{vT[4]}, 2, v{vL}")
e(f"v_lshlrev_b32 v{vLS}, 4, v{vT[4]}")
e(f"v_add_u32 v{vLS}, {DE16+8}, v{vLS}")
e(f"v_and_b32 v{vT[5]}, 3, v{vL}")
e(f"v_lshlrev_b32 v{vQD}, 4, v{vT[5]}")
e(f"s_lshl_b32 s{sT0}, s{sCT}, 6")
e(f"v_add_u32 v{vQD}, s{sT0}, v{vQD}")
c("vTRQ = QT + w*4096 + (8hi + r)*64 + colhalf*32 + c4*8 ; vTRS = REC + (4hi + r)*64 + colhalf*32 + c4*8")
e(f"v_bfe_u32 v{vT[4]}, v{vL}, 2, 2            ; r")
e(f"v_bfe_u32 v{vT[6]}, v{vL}, 4, 1            ; colhalf")
e(f"v_lshlrev_b32 v{vT[6]}, 5, v{vT[6]}")
e(f"v_lshl_add_u32 v{vT[6]}, v{vT[5]}, 3, v{vT[6]}   ; colhalf*32 + c4*8")
e(f"v_lshl_add_u32 v{vTRQ}, v{vT[3]}, 3, v{vT[4]}")
e(f"v_lshl_add_u32 v{vTRQ}, v{vTRQ}, 6, v{vT[6]}")
e(f"s_lshl_b32 s{sT0}, s{sW}, 12")
e(f"v_add_u32 v{vTRQ}, s{sT0}, v{vTRQ}")
e(f"v_lshl_add_u32 v{vTRS}, v{vT[3]}, 2, v{vT[4]}")
e(f"v_lshl_add_u32 v{vTRS}, v{vTRS}, 6, v{vT[6]}")
e(f"v_add_u32 v{vTRS}, {REC}, v{vTRS}")
c("OHD: lanes<32: REC + e*64 (mult 64); lanes>=32: DE16 + e*16 (mult 16)")
e(f"v_cmp_gt_u32 vcc, 32, v{vL}")
e(f"v_lshlrev_b32 v{vT[4]}, 6, v{vT[2]}")
e(f"v_add_u32 v{vT[4]}, {REC}, v{vT[4]}")
e(f"v_lshlrev_b32 v{vT[5]}, 4, v{vT[2]}")
e(f"v_add_u32 v{vT[5]}, {DE16}, v{vT[5]}")
e(f"v_cndmask_b32 v{vOD}, v{vT[5]}, v{vT[4]}, vcc")
e(f"v_mov_b32 v{vT[4]}, 64")
e(f"v_mov_b32 v{vT[5]}, 16")
e(f"v_cndmask_b32 v{vODM}, v{vT[5]}, v{vT[4]}, vcc")
c("vBX = BXP + ct*512 + n*16")
e(f"v_lshlrev_b32 v{vBX}, 4, v{vT[2]}")
e(f"s_lshl_b32 s{sT0}, s{sCT}, 9")
e(f"s_add_u32 s{sT0}, s{sT0}, {BXP}")
e(f"v_add_u32 v{vBX}, s{sT0}, v{vBX}")
e(f"s_mul_i32 s{sOWNB}, s{sQ}, {CAP_G}")
c("stage-1 slot constants")
vS0, vS1, vCnt, vOne = 115, 116, 117, 118
e(f"v_and_b32 v{vS1}, 15, v{tid}")
e(f"v_lshlrev_b32 v{vS1}, 1, v{vS1}")
e(f"v_add_u32 v{vS0}, -1, v{vS1}")
e(f"v_mov_b32 v{vOne}, 1")
e("s_waitcnt lgkmcnt(0)")
e("s_barrier")
e(f"s_waitcnt vmcnt({NLATE+1})")
c("NOTE: waves 11..15 have no own/PT dma -> vmcnt(NLATE+1) insufficient for them; use NLATE for those")
e(f"s_cmp_lt_u32 s{sW}, 11")
e("s_cbranch_scc1 L_rec_ok")
e(f"s_waitcnt vmcnt({NLATE})")
lab("L_rec_ok")
stamp("records landed")
c("stage 1 (fast)")
e(f"v_mov_b32_dpp v{vCnt}, v{RC} row_newbcast:0 row_mask:0xf bank_mask:0xf")
vG0, vG1, vR0, vR1, vA0, vA1 = 119, 120, 121, 122, 123, 124
e(f"v_bfe_u32 v{vG0}, v{RC}, 3, 3")
e(f"v_bfe_u32 v{vG1}, v{RC+1}, 3, 3")
e(f"s_mov_b32 s{sT0}, {ALLOC}")
e(f"v_lshl_add_u32 v{vA0}, v{vG0}, 2, s{sT0}")
e(f"v_lshl_add_u32 v{vA1}, v{vG1}, 2, s{sT0}")
e(f"v_cmp_lt_u32 {sp(sM0)}, v{vS0}, v{vCnt}")
e(f"v_cmp_lt_u32 {sp(sM1)}, v{vS1}, v{vCnt}")
e(f"v_cmp_lt_u32 vcc, 31, v{vCnt}")
e(f"s_mov_b64 exec, {sp(sM0)}")
e(f"ds_add_rtn_u32 v{vR0}, v{vA0}, v{vOne}")
e(f"s_mov_b64 exec, {sp(sM1)}")
e(f"ds_add_rtn_u32 v{vR1}, v{vA1}, v{vOne}")
e("s_mov_b64 exec, -1")
e("s_cbranch_vccz L_s1_noovf")
e(f"v_mov_b32 v{vA0}, {OVF}")
e(f"ds_write_b32 v{vA0}, v{vOne}")
lab("L_s1_noovf")
e(f"s_mov_b32 s{sT0}, {DE16+8}")
e(f"v_mul_u32_u24 v{vG0}, {CAP_G}, v{vG0}")
e(f"v_mul_u32_u24 v{vG1}, {CAP_G}, v{vG1}")
def s1_place(vR, vG, vA, rec, msk, tag):
    e(f"v_cmp_gt_u32 vcc, {CAP_G}, v{vR}")
    e(f"v_add_u32 v{vG}, v{vG}, v{vR}")
    e(f"v_lshl_add_u32 v{vA}, v{vG}, 4, s{sT0}")
    e(f"s_and_b64 exec, {sp(msk)}, vcc")
    e(f"ds_write2_b32 v{vA}, v{rec}, v{vC} offset0:0 offset1:1")
    e(f"s_andn2_b64 exec, {sp(msk)}, vcc")
    e(f"s_cbranch_execz L_s1_ok{tag}")
    e(f"v_mov_b32 v{vA}, {OVF}")
    e(f"ds_write_b32 v{vA}, v{vOne}")
    lab(f"L_s1_ok{tag}")
    e("s_mov_b64 exec, -1")
e("s_waitcnt lgkmcnt(1)")
s1_place(vR0, vG0, vA0, RC, sM0, "a")
e("s_waitcnt lgkmcnt(0)")
s1_place(vR1, vG1, vA1, RC+1, sM1, "b")
e(f"s_waitcnt vmcnt(0) lgkmcnt(0)")
e("s_barrier")
stamp("BA")

lab("L_stage2")
c("counts")
e(f"v_mov_b32 v{vT[0]}, {ALLOC}")
e(f"ds_read_b128 {vr(104,4)}, v{vT[0]}")
e(f"ds_read_b64 {vr(108,2)}, v{vT[0]} offset:16")
c("own list entry (idx = tid)")
e(f"s_lshl_b32 s{sT0}, s{sW}, 6")
e(f"v_add_u32 v{tid}, s{sT0}, v{vL}")
e(f"v_lshlrev_b32 v{vT[1]}, 4, v{tid}")
e(f"v_add_u32 v{vT[1]}, {DE16}, v{vT[1]}")
pRC, pC = 112, 113
e(f"ds_read_b64 {vr(pRC,2)}, v{vT[1]} offset:8")
c("zero own REC chunk (4 KB per wave, waves<15)")
e(f"v_mov_b32 v116, 0"); e(f"v_mov_b32 v117, 0"); e(f"v_mov_b32 v118, 0"); e(f"v_mov_b32 v119, 0")
e(f"s_lshl_b32 s{sT0}, s{sW}, 12")
e(f"s_add_u32 s{sT0}, s{sT0}, {REC}")
e(f"v_lshlrev_b32 v{vT[2]}, 4, v{vL}")
e(f"v_add_u32 v{vT[2]}, s{sT0}, v{vT[2]}")
e(f"s_cmp_eq_u32 s{sW}, 15")
e("s_cbranch_scc1 L_nozero")
for i in range(4):
    e(f"ds_write_b128 v{vT[2]}, v[116:119] offset:{i*1024}")
lab("L_nozero")
e("s_waitcnt lgkmcnt(0)" )
for g in range(5):
    e(f"v_readfirstlane_b32 s{sCN[g]}, v{104+g}")
e(f"v_readfirstlane_b32 s{sT3}, v109           ; OVF")
e("s_nop 3")
e(f"s_cmp_eq_u32 s{sMODE}, 0")
e("s_cbranch_scc0 L_s2_noovfchk")
e(f"s_cmp_lg_u32 s{sT3}, 0")
e("s_cbranch_scc1 L_slow_init")
lab("L_s2_noovfchk")
for g in range(5):
    e(f"s_min_u32 s{sCN[g]}, s{sCN[g]}, {CAP_G}")
c("stage 2 part 1: valid = slot < cnt[w/3]; issue pos/ea loads")
e(f"s_mul_i32 s{sT0}, s{sW}, 43")
e(f"s_lshr_b32 s{sT0}, s{sT0}, 7            ; g = w/3")
e(f"s_mul_i32 s{sT1}, s{sT0}, {CAP_G}")
e(f"s_mov_b32 s{sT2}, 0")
for g in range(5):
    e(f"s_cmp_eq_u32 s{sT0}, {g}")
    e(f"s_cselect_b32 s{sT2}, s{sCN[g]}, s{sT2}")
e(f"s_add_u32 s{sT2}, s{sT2}, s{sT1}")
e(f"v_cmp_gt_u32 {sp(sM2)}, s{sT2}, v{tid}")
pS, pK, pE, pPS, pEA, pPD = 114, 115, 116, 118, 117, 120
pX = [123, 124, 125, 126, 127, 96, 97, 98, 99]
e(f"v_bfe_u32 v{pS}, v{pRC}, 8, 14")
e(f"v_and_b32 v{pK}, 63, v{pRC}")
e(f"v_mul_u32_u24 v{pX[0]}, 6, v{pS}")
e(f"v_and_b32 v{pX[0]}, -4, v{pX[0]}")
e(f"v_bfe_u32 v{pX[1]}, v{pRC}, 6, 2")
e(f"v_mul_u32_u24 v{pE}, 2560, v{pC}")
e(f"v_mad_u32_u24 v{pE}, v{pX[1]}, s{sT1}, v{pE}" if False else f"v_mul_u32_u24 v{pX[1]}, 640, v{pX[1]}")
e(f"v_lshrrev_b32 v{pX[2]}, 22, v{pRC}")
e(f"v_add3_u32 v{pE}, v{pE}, v{pX[1]}, v{pX[2]}")
e(f"v_lshlrev_b32 v{pE}, 1, v{pE}")
e(f"s_mov_b64 exec, {sp(sM2)}")
e(f"buffer_load_dwordx2 {vr(pPS,2)}, v{pX[0]}, {srd(S_POS)}, 0 offen")
e(f"buffer_load_ushort v{pEA}, v{pE}, {srd(S_EA)}, 0 offen")
e(f"v_mul_u32_u24 v{pX[3]}, 6, v{pK}")
e(f"v_add_u32 v{pX[3]}, {PT}, v{pX[3]}")
for k in range(3):
    e(f"ds_read_u16 v{pPD+k}, v{pX[3]} offset:{2*k}")
e("s_mov_b64 exec, -1")
c("schedule")
e(f"s_mov_b32 s{sCO}, s{sCN[0]}")
for g in range(1, 4):
    e(f"s_cmp_eq_u32 s{sQ}, {g}")
    e(f"s_cselect_b32 s{sCO}, s{sCN[g]}, s{sCO}")
e(f"s_add_u32 s{sNO}, s{sCO}, 31")
e(f"s_lshr_b32 s{sNO}, s{sNO}, 5")
e(f"s_add_u32 s{sT0}, s{sCN[4]}, 3")
e(f"s_lshr_b32 s{sT0}, s{sT0}, 2")
e(f"s_add_u32 s{sT0}, s{sT0}, 7")
e(f"s_and_b32 s{sT0}, s{sT0}, -8             ; part")
e(f"s_mul_i32 s{sT1}, s{sT0}, s{sQ}")
e(f"s_min_u32 s{sT1}, s{sT1}, s{sCN[4]}       ; st")
e(f"s_sub_u32 s{sL4}, s{sCN[4]}, s{sT1}")
e(f"s_min_u32 s{sL4}, s{sL4}, s{sT0}          ; len")
e(f"s_add_u32 s{sG4B}, s{sT1}, {4*CAP_G}")
e(f"s_add_u32 s{sT0}, s{sL4}, 31")
e(f"s_lshr_b32 s{sT0}, s{sT0}, 5")
e(f"s_add_u32 s{sNT}, s{sNO}, s{sT0}")
def tile_params(u, idx, nr=None):
    us = f"s{u}" if not isinstance(u, str) else u
    e(f"s_sub_u32 s{sT0}, {us}, s{sNO}")
    e(f"s_cmp_lt_u32 {us}, s{sNO}")
    e(f"s_cselect_b32 s{sT0}, {us}, s{sT0}")
    e(f"s_cselect_b32 s{idx}, s{sOWNB}, s{sG4B}")
    if nr is not None:
        e(f"s_cselect_b32 s{nr}, s{sCO}, s{sL4}")
    e(f"s_lshl_b32 s{sT0}, s{sT0}, 5")
    e(f"s_add_u32 s{idx}, s{idx}, s{sT0}")
    if nr is not None:
        e(f"s_sub_u32 s{nr}, s{nr}, s{sT0}")
        e(f"s_min_u32 s{nr}, s{nr}, 32")
def dma_lookup(idx):
    e(f"s_lshl_b32 s{sT0}, s{idx}, 4")
    e(f"v_add_u32 v{vT[0]}, s{sT0}, v{vLS}")
    e(f"ds_read2_b32 {vr(vT[2],2)}, v{vT[0]} offset0:0 offset1:64")
def dma_issue(buf):
    e(f"v_and_or_b32 v{vT[2]}, v{vT[2]}, s{sMASK}, v{vQD}")
    e(f"v_and_or_b32 v{vT[3]}, v{vT[3]}, s{sMASK}, v{vQD}")
    e(f"s_mov_b32 m0, s{buf}")
    e(f"s_nop 0")
    e(f"buffer_load_dwordx4 v{vT[2]}, {srd(S_Q)}, 0 offen lds")
    e(f"s_add_u32 m0, s{buf}, 1024")
    e(f"s_nop 0")
    e(f"buffer_load_dwordx4 v{vT[3]}, {srd(S_Q)}, 0 offen lds")
e(f"s_lshl_b32 s{sBUF}, s{sW}, 12")
e(f"s_cmp_eq_u32 s{sNT}, 0")
e("s_cbranch_scc1 L_dma0_done")
tile_params("0", sIDX2)
dma_lookup(sIDX2)
e("s_waitcnt lgkmcnt(0)")
dma_issue(sBUF)
e(f"s_cmp_lt_u32 s{sNT}, 2")
e("s_cbranch_scc1 L_dma0_done")
tile_params("1", sIDX2)
dma_lookup(sIDX2)
e(f"s_add_u32 s{sT2}, s{sBUF}, 2048")
e("s_waitcnt lgkmcnt(0)")
dma_issue(sT2)
lab("L_dma0_done")
stamp("dma0 issued")
c("node task (once)")
e(f"s_cmp_eq_u32 s{sNODE}, 0")
e("s_cbranch_scc0 L_node_done")
e(f"s_mov_b32 s{sNODE}, 1")
def rowreg(s_): return (ACC + 4*s_) if s_ < 4 else (QF + 4*(s_-4))
c("row read address: OWN + row*256 + ((hi ^ (row&15))<<4) ^ (s<<5); row = n (q even) or min(32+n,39) (q odd)")
e(f"v_and_b32 v{vT[4]}, 31, v{vL}")
e(f"v_lshrrev_b32 v{vT[5]}, 5, v{vL}")
e(f"v_add_u32 v{vT[6]}, 32, v{vT[4]}")
e(f"v_min_u32 v{vT[6]}, 39, v{vT[6]}")
e(f"s_bitcmp1_b32 s{sQ}, 0")
e(f"s_cselect_b64 vcc, -1, 0")
e(f"v_cndmask_b32 v{vT[6]}, v{vT[4]}, v{vT[6]}, vcc      ; row")
e(f"v_and_b32 v{vT[0]}, 15, v{vT[6]}")
e(f"v_xor_b32 v{vT[0]}, v{vT[0]}, v{vT[5]}")
e(f"v_lshlrev_b32 v{vT[0]}, 4, v{vT[0]}")
e(f"v_lshl_add_u32 v{vT[0]}, v{vT[6]}, 8, v{vT[0]}")
e(f"v_add_u32 v{vT[0]}, {OWN}, v{vT[0]}")
for s_ in range(8):
    e(f"v_xor_b32 v{vT[6]}, {s_<<5}, v{vT[0]}")
    e(f"ds_read_b128 {vr(rowreg(s_),4)}, v{vT[6]}")
e(f"s_cmp_eq_u32 s{sQ}, 0")
e("s_cbranch_scc0 L_node_nt")
for s_ in range(8):
    e(f"s_waitcnt lgkmcnt({7-s_})")
    mfma(FACC, WF+4*s_, rowreg(s_), "0" if s_ == 0 else vr(FACC,16))
e("s_branch L_node_fin")
lab("L_node_nt")
for s_ in range(8):
    e(f"s_waitcnt lgkmcnt({7-s_})")
    mfma(FACC, rowreg(s_), WF+4*s_, "0" if s_ == 0 else vr(FACC,16))
e(f"s_cmp_eq_u32 s{sQ}, 1")
e("s_cbranch_scc1 L_node_fin")
c("P' write: BXP + (g*4+ct)*512 + n*16 + hi*8 ; q2: g=0..3 ; q3: g=4")
e(f"v_lshl_add_u32 v{vT[6]}, v{vT[5]}, 3, v{vBX}")
e(f"s_mov_b32 s{sK2}, 0x{NLOG2E:08x}")
e("s_nop 7"); e("s_nop 3")
def pwrite(r0, g):
    for i in range(4):
        e(f"v_mul_f32 v{r0+i}, s{sK2}, v{r0+i}")
    e(f"v_cvt_pk_bf16_f32 v{r0}, v{r0}, v{r0+1}")
    e(f"v_cvt_pk_bf16_f32 v{r0+1}, v{r0+2}, v{r0+3}")
    e(f"ds_write_b64 v{vT[6]}, {vr(r0,2)} offset:{g*2048}")
e(f"s_cmp_eq_u32 s{sQ}, 3")
e("s_cbranch_scc1 L_node_g4")
for g in range(4):
    pwrite(FACC+4*g, g)
e("s_branch L_node_fin")
lab("L_node_g4")
pwrite(FACC, 4)
lab("L_node_fin")
e("s_nop 7")
for r in range(32):
    e(f"v_mov_b32 v{SEGO+r}, 0")
lab("L_node_done")
stamp("node done")
c("stage 2 part 2")
e("s_waitcnt vmcnt(0) lgkmcnt(0)")
stamp("pos landed")
e(f"s_mov_b64 exec, {sp(sM2)}")
e("s_cbranch_execz L_s2_done")
e(f"v_and_b32 v{pX[0]}, 1, v{pS}")
e(f"v_lshlrev_b32 v{pX[0]}, 4, v{pX[0]}        ; shift")
e(f"v_alignbit_b32 v{pX[1]}, v{pPS+1}, v{pPS}, v{pX[0]}     ; x | y<<16")
e(f"v_lshrrev_b32 v{pX[2]}, v{pX[0]}, v{pPS+1}              ; z (low 16)")
e(f"v_lshlrev_b32 v{pPS}, 16, v{pX[1]}")
e(f"v_and_b32 v{pPS+1}, 0xffff0000, v{pX[1]}")
e(f"v_lshlrev_b32 v{pX[2]}, 16, v{pX[2]}")
for k in range(3):
    e(f"v_lshlrev_b32 v{pPD+k}, 16, v{pPD+k}")
e(f"v_sub_f32 v{pPD}, v{pPD}, v{pPS}")
e(f"v_sub_f32 v{pPD+1}, v{pPD+1}, v{pPS+1}")
e(f"v_sub_f32 v{pPD+2}, v{pPD+2}, v{pX[2]}")
e(f"v_cvt_pk_bf16_f32 v{pX[0]}, v{pPD}, v{pPD+1}")
e(f"v_cvt_pk_bf16_f32 v{pX[1]}, v{pPD+2}, v{pPD+2}     ; dz")
e(f"v_lshlrev_b32 v{pPD}, 16, v{pX[0]}")
e(f"v_and_b32 v{pPD+1}, 0xffff0000, v{pX[0]}")
e(f"v_lshlrev_b32 v{pPD+2}, 16, v{pX[1]}")
for k in range(3):
    e(f"v_mul_f32 v{pPD+k}, v{pPD+k}, v{pPD+k}")
e(f"v_cvt_pk_bf16_f32 v{pX[2]}, v{pPD}, v{pPD+1}")
e(f"v_cvt_pk_bf16_f32 v{pX[3]}, v{pPD+2}, v{pPD+2}")
e(f"v_lshlrev_b32 v{pPD}, 16, v{pX[2]}")
e(f"v_and_b32 v{pPD+1}, 0xffff0000, v{pX[2]}")
e(f"v_lshlrev_b32 v{pPD+2}, 16, v{pX[3]}")
e(f"v_add_f32 v{pPD}, v{pPD}, v{pPD+1}")
e(f"v_add_f32 v{pPD}, v{pPD}, v{pPD+2}")
e(f"v_cvt_pk_bf16_f32 v{pX[2]}, v{pPD}, v{pPD}")
e(f"v_and_b32 v{pX[2]}, 0xffff, v{pX[2]}")
e(f"v_and_b32 v{pX[6]}, 7, v{pK}")
e(f"v_lshlrev_b32 v{pX[6]}, 1, v{pX[6]}")
e(f"v_lshl_add_u32 v{pX[6]}, v{tid}, 6, v{pX[6]}")
e(f"v_add_u32 v{pX[6]}, {REC}, v{pX[6]}")
e(f"v_mov_b32 v{pX[7]}, 0x3f80")
e(f"ds_write_b16 v{pX[6]}, v{pX[7]}")
e(f"ds_write_b16 v{pX[6]}, v{pX[0]} offset:16")
e(f"ds_write_b16_d16_hi v{pX[6]}, v{pX[0]} offset:32")
e(f"ds_write_b16 v{pX[6]}, v{pX[1]} offset:48")
DW = 124
e(f"v_lshl_or_b32 v{DW}, v{pEA}, 16, v{pX[2]}           ; d2 | ea<<16")
e(f"v_mov_b32 v{DW+1}, v{DW}")
e(f"v_and_b32 v{DW+2}, s{sMASK}, v{pRC}")
e(f"v_mov_b32 v{DW+3}, 0")
e(f"v_lshlrev_b32 v{pX[5]}, 4, v{tid}")
e(f"v_add_u32 v{pX[5]}, {DE16}, v{pX[5]}")
e(f"ds_write_b128 v{pX[5]}, {vr(DW,4)}")
lab("L_s2_done")
e("s_mov_b64 exec, -1")
c("ID constants: lane (m,hi): step s elem i = (m == 16s + 8hi + i)")
e(f"v_and_b32 v{vT[4]}, 31, v{vL}")
e(f"v_lshrrev_b32 v{vT[5]}, 5, v{vL}")
e(f"v_lshlrev_b32 v{vT[5]}, 3, v{vT[5]}")
e(f"v_sub_u32 v{vT[4]}, v{vT[4]}, v{vT[5]}        ; x = m - 8hi")
e(f"v_mov_b32 v{vT[5]}, 0x3f80")
e(f"v_mov_b32 v{vT[6]}, 0x3f800000")
for s_ in range(2):
    for r in range(4):
        x0 = 16*s_ + 2*r
        e(f"v_cmp_eq_u32 vcc, {x0}, v{vT[4]}")
        e(f"v_cndmask_b32 v{ID+4*s_+r}, 0, v{vT[5]}, vcc")
        e(f"v_cmp_eq_u32 vcc, {x0+1}, v{vT[4]}")
        e(f"v_cndmask_b32 v{ID+4*s_+r}, v{ID+4*s_+r}, v{vT[6]}, vcc")
c("own-group BXF (lanes<32)")
e(f"s_lshl_b32 s{sT0}, s{sQ}, 11")
e(f"v_add_u32 v{vT[4]}, s{sT0}, v{vBX}")
e("s_waitcnt lgkmcnt(0)")
e("s_barrier          ; BB")
stamp("BB")
e("s_mov_b32 exec_hi, 0")
e(f"ds_read_b128 {vr(BXF,4)}, v{vT[4]}")
e("s_mov_b32 exec_hi, -1")
e(f"s_mov_b32 s{sU}, 0")
c("make vTRQ point at buffer 0")
e(f"v_and_b32 v{vTRQ}, {0xffffffff ^ 2048:#x}, v{vTRQ}")

def tile_body(SEG, tag):
    tile_params(sU, sIDX, sNR)
    c("lookup for tile u+2")
    e(f"s_add_u32 s{sT2}, s{sU}, 2")
    e(f"s_cmp_lt_u32 s{sT2}, s{sNT}")
    e(f"s_cselect_b32 s{sK3}, 1, 0")
    e(f"s_cbranch_scc0 L_nolk{tag}")
    tile_params(sT2, sIDX2)
    dma_lookup(sIDX2)
    lab(f"L_nolk{tag}")
    e(f"v_mad_u32_u24 v{vT[1]}, s{sIDX}, v{vODM}, v{vOD}")
    e(f"ds_read_b128 {vr(OHD,4)}, v{vT[1]}")
    e(f"s_lshl_b32 s{sT0}, s{sIDX}, 6")
    e(f"v_add_u32 v{vT[4]}, s{sT0}, v{vTRS}")
    c("wait for this tile's Q")
    e(f"s_add_u32 s{sT2}, s{sU}, 1")
    e(f"s_cmp_lt_u32 s{sT2}, s{sNT}")
    e(f"s_cbranch_scc1 L_w2{tag}")
    e("s_waitcnt vmcnt(0)")
    e(f"s_branch L_wd{tag}")
    lab(f"L_w2{tag}")
    e("s_waitcnt vmcnt(2)")
    lab(f"L_wd{tag}")
    e(f"ds_read_b64_tr_b16 {vr(QF,2)}, v{vTRQ}")
    e(f"ds_read_b64_tr_b16 {vr(QF+2,2)}, v{vTRQ} offset:256")
    e(f"ds_read_b64_tr_b16 {vr(QF+4,2)}, v{vTRQ} offset:1024")
    e(f"ds_read_b64_tr_b16 {vr(QF+6,2)}, v{vTRQ} offset:1280")
    e(f"ds_read_b64_tr_b16 {vr(SF,2)}, v{vT[4]}")
    e(f"ds_read_b64_tr_b16 {vr(SF+2,2)}, v{vT[4]} offset:512")
    e(f"ds_read_b64_tr_b16 {vr(SF+4,2)}, v{vT[4]} offset:1024")
    e(f"ds_read_b64_tr_b16 {vr(SF+6,2)}, v{vT[4]} offset:1536")
    e("s_waitcnt lgkmcnt(8)")
    mfma(ACC, OHD, BXF, "0")
    e("s_waitcnt lgkmcnt(6)")
    mfma(ACC, ID, QF, vr(ACC,16))
    e("s_waitcnt lgkmcnt(4)")
    mfma(ACC, ID+4, QF+4, vr(ACC,16))
    e(f"s_cmp_eq_u32 s{sK3}, 0")
    e(f"s_cbranch_scc1 L_nodma{tag}")
    dma_issue(sBUF)
    lab(f"L_nodma{tag}")
    e(f"s_xor_b32 s{sBUF}, s{sBUF}, 2048")
    e(f"v_xor_b32 v{vTRQ}, 2048, v{vTRQ}")
    e("s_nop 7")
    e("s_nop 2")
    for bb in range(4):
        if bb > 0:
            e(f"s_cmp_le_u32 s{sNR}, {8*bb}")
            e(f"s_cbranch_scc1 L_skip{tag}{bb}")
        a = ACC + 4*bb
        t = TE + 4*(bb & 1)
        for i in range(4): e(f"v_exp_f32 v{t+i}, v{a+i}")
        for i in range(4): e(f"v_add_f32 v{t+i}, 1.0, v{t+i}")
        for i in range(4): e(f"v_rcp_f32 v{t+i}, v{t+i}")
        for i in range(4): e(f"v_mul_f32 v{t+i}, v{a+i}, v{t+i}")
        e(f"v_cvt_pk_bf16_f32 v{MP+2*bb}, v{t}, v{t+1}")
        e(f"v_cvt_pk_bf16_f32 v{MP+2*bb+1}, v{t+2}, v{t+3}")
    e(f"s_branch L_blk{tag}")
    for bb in range(1, 4):
        lab(f"L_skip{tag}{bb}")
        e(f"v_mov_b32 v{MP+2*bb}, 0")
        e(f"v_mov_b32 v{MP+2*bb+1}, 0")
    lab(f"L_blk{tag}")
    e("s_waitcnt lgkmcnt(0)")
    e("s_nop 1")
    mfma(SEG, SF, MP, vr(SEG,16))
    mfma(SEG, SF+4, MP+4, vr(SEG,16))
    e(f"s_add_u32 s{sU}, s{sU}, 1")

e(f"s_cmp_eq_u32 s{sNO}, 0")
e("s_cbranch_scc1 L_own_end")
lab("L_own_loop")
tile_body(SEGO, "o")
e(f"s_cmp_lt_u32 s{sU}, s{sNO}")
e("s_cbranch_scc1 L_own_loop")
lab("L_own_end")
stamp("own tiles done")
e(f"s_cmp_ge_u32 s{sU}, s{sNT}")
e("s_cbranch_scc1 L_tiles_done")
e(f"v_add_u32 v{vT[4]}, {4*2048}, v{vBX}")
e("s_mov_b32 exec_hi, 0")
e(f"ds_read_b128 {vr(BXF,4)}, v{vT[4]}")
e("s_mov_b32 exec_hi, -1")
lab("L_g4_loop")
tile_body(SEG4, "p")
e(f"s_cmp_lt_u32 s{sU}, s{sNT}")
e("s_cbranch_scc1 L_g4_loop")
lab("L_tiles_done")
stamp("tiles done")
e(f"s_cmp_eq_u32 s{sMODE}, 0")
e("s_cbranch_scc0 L_slow_next")

lab("L_final")
WFL = 80
ROW = 16
HRES = 112
vN = vT[1]; vHI = vT[2]; vOFF = vT[3]; vRD = vT[4]
e(f"v_and_b32 v{vN}, 31, v{vL}")
e(f"v_lshrrev_b32 v{vHI}, 5, v{vL}")
c("late frags: q<2: WH2F slice ct ; q>=2: wx frags")
e(f"s_cmp_ge_u32 s{sQ}, 2")
e("s_cbranch_scc1 L_f_wx")
e(f"s_lshl_b32 s{sT0}, s{sCT}, 13")
e(f"s_add_u32 s{sT0}, s{sT0}, {WFOFF+65536}")
e(f"s_add_u32 s{sT1}, s{sT0}, 4096")
e(f"v_lshlrev_b32 v{vT[0]}, 4, v{vL}")
for s_ in range(8):
    e(f"buffer_load_dwordx4 {vr(WFL+4*s_,4)}, v{vT[0]}, {srd(S_WS)}, s{[sT0,sT1][s_>>2]} offen offset:{(s_%4)*1024}")
e("s_branch L_f_flush")
lab("L_f_wx")
e(f"v_lshlrev_b32 v{vT[0]}, 4, v{vHI}")
for s_ in range(8):
    e(f"buffer_load_dwordx4 {vr(WFL+4*s_,4)}, v{vT[0]}, {srd(S_WX)}, 0 offen offset:{s_*32}")
lab("L_f_flush")
c("flush: addr a = QT + w*4096 + hi*256 + (((n>>3) ^ (hi | ((q&1)<<1)))<<4) + (n&7)*2 ; b = a ^ 32")
e(f"s_and_b32 s{sT0}, s{sQ}, 1")
e(f"s_lshl_b32 s{sT0}, s{sT0}, 1")
e(f"v_or_b32 v{vT[5]}, s{sT0}, v{vHI}")
e(f"v_lshrrev_b32 v{vT[6]}, 3, v{vN}")
e(f"v_xor_b32 v{vT[5]}, v{vT[5]}, v{vT[6]}")
e(f"v_lshlrev_b32 v{vT[5]}, 4, v{vT[5]}")
e(f"v_lshl_add_u32 v{vT[5]}, v{vHI}, 8, v{vT[5]}")
e(f"v_and_b32 v{vT[6]}, 7, v{vN}")
e(f"v_lshl_add_u32 v{vT[5]}, v{vT[6]}, 1, v{vT[5]}")
e(f"s_lshl_b32 s{sT0}, s{sW}, 12")
e(f"v_add_u32 v{vT[5]}, s{sT0}, v{vT[5]}")
e(f"v_xor_b32 v{vT[6]}, 32, v{vT[5]}")
e(f"s_mov_b32 s{sT1}, 0x{NLN2:08x}")
e("s_nop 7")
def flush(SEG, which):
    for r in range(4):
        e(f"v_mul_f32 v{SEG+r}, s{sT1}, v{SEG+r}")
    for p in range(8):
        e(f"v_cvt_pk_bf16_f32 v{SEG+p}, v{SEG+2*p}, v{SEG+2*p+1}")
    for p in range(8):
        r = 2*p
        row0 = 8*(r >> 2) + (r & 3)
        a = vT[5] if ((r >> 2) & 1) == 0 else vT[6]
        e(f"ds_write_b16 v{a}, v{SEG+p} offset:{which*2048 + row0*64}")
        e(f"ds_write_b16_d16_hi v{a}, v{SEG+p} offset:{which*2048 + (row0+1)*64}")
flush(SEGO, 0)
flush(SEG4, 1)
c("row address per role: addr = q'*16384 + which*2048 + rho*64 + ((hi ^ ((rho>>2)&3) ^ ((q'&1)<<1))<<4)")
vQP = vT[5]; vRHO = vT[6]
e(f"v_lshrrev_b32 v{vQP}, 3, v{vN}            ; q' = n>>3 (roles A,B,D)")
e(f"v_and_b32 v{vRHO}, 7, v{vN}")
e(f"s_and_b32 s{sT2}, s{sQ}, 1")
e(f"s_lshl_b32 s{sT2}, s{sT2}, 11")
e(f"s_cmp_eq_u32 s{sQ}, 2")
e("s_cbranch_scc0 L_f_notC")
e(f"v_mov_b32 v{vQP}, s{sCT}")
e(f"v_mov_b32 v{vRHO}, v{vN}")
lab("L_f_notC")
e(f"s_cmp_eq_u32 s{sQ}, 3")
e("s_cbranch_scc0 L_f_notD")
e(f"s_lshl_b32 s{sT0}, s{sCT}, 3")
e(f"s_add_u32 s{sT0}, s{sT0}, 8")
e(f"s_and_b32 s{sT0}, s{sT0}, 31")
e(f"v_add_u32 v{vRHO}, s{sT0}, v{vRHO}")
lab("L_f_notD")
e(f"v_bfe_u32 v{vT[0]}, v{vRHO}, 2, 2")
e(f"v_xor_b32 v{vT[0]}, v{vT[0]}, v{vHI}")
e(f"v_and_b32 v{vT[7]}, 1, v{vQP}")
e(f"v_lshlrev_b32 v{vT[7]}, 1, v{vT[7]}")
e(f"v_xor_b32 v{vT[0]}, v{vT[0]}, v{vT[7]}")
e(f"v_lshlrev_b32 v{vRD}, 4, v{vT[0]}")
e(f"v_lshl_add_u32 v{vRD}, v{vRHO}, 6, v{vRD}")
e(f"v_lshl_add_u32 v{vRD}, v{vQP}, 14, v{vRD}")
e(f"v_add_u32 v{vRD}, s{sT2}, v{vRD}")
c("residuals + output offsets")
e(f"s_mul_i32 s{sK3}, s2, 40")
e(f"s_cmp_ge_u32 s{sQ}, 2")
e("s_cbranch_scc1 L_f_resCD")
e(f"s_cmp_eq_u32 s{sQ}, 1")
e("s_cbranch_scc1 L_f_resB")
c("role A: h[node n][32ct + 8bb + 4hi..+3]: OWN + n*256 + (((ct*4+bb) ^ (n&15))<<4) + hi*8")
e(f"v_and_b32 v{vT[0]}, 15, v{vN}")
e(f"s_lshl_b32 s{sT0}, s{sCT}, 2")
e(f"v_xor_b32 v{vT[0]}, s{sT0}, v{vT[0]}")
e(f"v_lshlrev_b32 v{vT[0]}, 4, v{vT[0]}")
e(f"v_lshl_add_u32 v{vT[0]}, v{vN}, 8, v{vT[0]}")
e(f"v_lshl_add_u32 v{vT[0]}, v{vHI}, 3, v{vT[0]}")
e(f"v_add_u32 v{vT[0]}, {OWN}, v{vT[0]}")
for bb in range(4):
    e(f"v_xor_b32 v{vT[7]}, {bb<<4}, v{vT[0]}")
    e(f"ds_read_b64 {vr(HRES+2*bb,2)}, v{vT[7]}")
e(f"v_add_u32 v{vOFF}, s{sK3}, v{vN}")
e(f"v_lshlrev_b32 v{vOFF}, 8, v{vOFF}")
e(f"v_lshl_add_u32 v{vOFF}, v{vHI}, 3, v{vOFF}")
e(f"s_lshl_b32 s{sT0}, s{sCT}, 6")
e(f"v_add_u32 v{vOFF}, s{sT0}, v{vOFF}")
e("s_branch L_f_bar")
lab("L_f_resB")
c("role B: rows 32+4hi+i, col 32ct+n: OWN + row*256 + (((ct*4 + (n>>3)) ^ (row&15))<<4) + (n&7)*2")
e(f"v_lshrrev_b32 v{vT[0]}, 3, v{vN}")
e(f"s_lshl_b32 s{sT0}, s{sCT}, 2")
e(f"v_add_u32 v{vT[0]}, s{sT0}, v{vT[0]}          ; chunk")
e(f"v_lshlrev_b32 v{vT[7]}, 2, v{vHI}             ; 4hi")
e(f"v_xor_b32 v{vT[0]}, v{vT[0]}, v{vT[7]}")
e(f"v_lshlrev_b32 v{vT[0]}, 4, v{vT[0]}")
e(f"v_lshl_add_u32 v{vT[0]}, v{vT[7]}, 8, v{vT[0]}   ; + 4hi*256")
e(f"v_and_b32 v{vT[5]}, 7, v{vN}")
e(f"v_lshl_add_u32 v{vT[0]}, v{vT[5]}, 1, v{vT[0]}")
e(f"v_add_u32 v{vT[0]}, {OWN + 32*256}, v{vT[0]}")
for i in range(4):
    e(f"v_xor_b32 v{vT[5]}, {i<<4}, v{vT[0]}")
    e(f"ds_read_u16 v{HRES+i}, v{vT[5]} offset:{i*256}")
e(f"s_add_u32 s{sT0}, s{sK3}, 32")
e(f"v_add_u32 v{vOFF}, s{sT0}, v{vT[7]}")
e(f"v_lshlrev_b32 v{vOFF}, 8, v{vOFF}")
e(f"v_lshl_add_u32 v{vOFF}, v{vN}, 1, v{vOFF}")
e(f"s_lshl_b32 s{sT0}, s{sCT}, 6")
e(f"v_add_u32 v{vOFF}, s{sT0}, v{vOFF}")
e("s_branch L_f_bar")
lab("L_f_resCD")
e(f"s_cmp_eq_u32 s{sQ}, 3")
e("s_cbranch_scc1 L_f_resD")
c("role C: g = ct. lane n: c = n>>3, j = n&7; k = 8g + j ; comp c-1")
e(f"v_and_b32 v{vT[5]}, 7, v{vN}")
e(f"s_lshl_b32 s{sT0}, s{sCT}, 3")
e(f"v_add_u32 v{vT[5]}, s{sT0}, v{vT[5]}      ; k")
e(f"v_mul_u32_u24 v{vT[5]}, 6, v{vT[5]}")
e(f"v_lshrrev_b32 v{vT[0]}, 3, v{vN}          ; c")
e(f"v_lshl_add_u32 v{vT[5]}, v{vT[0]}, 1, v{vT[5]}")
e(f"v_subrev_u32 v{vT[5]}, 2, v{vT[5]}        ; k*6 + (c-1)*2")
e(f"v_max_i32 v{vT[5]}, 0, v{vT[5]}")
e("s_branch L_f_resCD2")
lab("L_f_resD")
c("role D: comp c = ct+1. lane n: j = n&7; k = 32 + j")
e(f"v_and_b32 v{vT[5]}, 7, v{vN}")
e(f"v_add_u32 v{vT[5]}, 32, v{vT[5]}")
e(f"v_mul_u32_u24 v{vT[5]}, 6, v{vT[5]}")
e(f"s_lshl_b32 s{sT0}, s{sCT}, 1")
e(f"v_add_u32 v{vT[5]}, s{sT0}, v{vT[5]}")
lab("L_f_resCD2")
e(f"v_add_u32 v{vT[0]}, {PT}, v{vT[5]}")
e(f"ds_read_u16 v{HRES}, v{vT[0]}")
e(f"s_mul_i32 s{sT0}, s2, 240")
e(f"v_add_u32 v{vOFF}, s{sT0}, v{vT[5]}")
lab("L_f_bar")
e("s_waitcnt lgkmcnt(0)")
e("s_barrier")
stamp("final bar")
e(f"s_cmp_eq_u32 s{sW}, 15")
e("s_cbranch_scc1 L_end")
e(f"v_xor_b32 v{vT[0]}, 32, v{vRD}")
for s_ in range(8):
    e(f"ds_read_b128 {vr(ROW+4*s_,4)}, v{[vRD, vT[0]][s_&1]} offset:{(s_>>1)*4096}")
e(f"s_mov_b32 s{sK2}, 0x{NLOG2E:08x}")
e(f"s_mov_b32 s{sK3}, 0xffff0000")
e("s_waitcnt vmcnt(0)")
e(f"s_cmp_ge_u32 s{sQ}, 2")
e("s_cbranch_scc1 L_f_CD")
e(f"s_cmp_eq_u32 s{sQ}, 1")
e("s_cbranch_scc1 L_f_B")
c("role A")
for s_ in range(8):
    e(f"s_waitcnt lgkmcnt({7-s_})")
    mfma(FACC, WFL+4*s_, ROW+4*s_, vr(FACC,16))
e("s_nop 7")
e("s_nop 3")
def final_silu(a, n, TEf):
    for i in range(n): e(f"v_mul_f32 v{TEf+i}, s{sK2}, v{a+i}")
    for i in range(n): e(f"v_exp_f32 v{TEf+i}, v{TEf+i}")
    for i in range(n): e(f"v_add_f32 v{TEf+i}, 1.0, v{TEf+i}")
    for i in range(n): e(f"v_rcp_f32 v{TEf+i}, v{TEf+i}")
    for i in range(n): e(f"v_mul_f32 v{a+i}, v{a+i}, v{TEf+i}")
X = 48
for i in range(4):
    a = FACC + 4*i
    final_silu(a, 4, X)
    e(f"v_lshlrev_b32 v{X}, 16, v{HRES+2*i}")
    e(f"v_and_b32 v{X+1}, s{sK3}, v{HRES+2*i}")
    e(f"v_lshlrev_b32 v{X+2}, 16, v{HRES+2*i+1}")
    e(f"v_and_b32 v{X+3}, s{sK3}, v{HRES+2*i+1}")
    for k in range(4): e(f"v_add_f32 v{a+k}, v{a+k}, v{X+k}")
    e(f"v_cvt_pk_bf16_f32 v{X+4+2*i}, v{a}, v{a+1}")
    e(f"v_cvt_pk_bf16_f32 v{X+5+2*i}, v{a+2}, v{a+3}")
    e(f"buffer_store_dwordx2 {vr(X+4+2*i,2)}, v{vOFF}, {srd(S_O0)}, 0 offen offset:{i*16}")
e("s_branch L_end")
lab("L_f_B")
c("role B: rows (p,j)")
for s_ in range(8):
    e(f"s_waitcnt lgkmcnt({7-s_})")
    mfma(ACC, ROW+4*s_, WFL+4*s_, "0" if s_ == 0 else vr(ACC,16))
e("s_nop 7")
e("s_nop 3")
for k in range(4):
    e(f"v_add_f32 v{ACC+k}, v{ACC+k}, v{ACC+4+k}")
    e(f"v_add_f32 v{ACC+8+k}, v{ACC+8+k}, v{ACC+12+k}")
for k in range(4):
    e(f"v_add_f32 v{ACC+k}, v{ACC+k}, v{ACC+8+k}")
for k in range(4):
    e(f"v_add_f32 v{ACC+k}, v{ACC+k}, v{FACC+k}")
final_silu(ACC, 4, ROW)
for k in range(4):
    e(f"v_lshlrev_b32 v{ROW+k}, 16, v{HRES+k}")
for k in range(4):
    e(f"v_add_f32 v{ACC+k}, v{ACC+k}, v{ROW+k}")
for k in range(4):
    e(f"v_cvt_pk_bf16_f32 v{ROW+8+k}, v{ACC+k}, v{ACC+k}")
for r in range(4):
    e(f"buffer_store_short v{ROW+8+r}, v{vOFF}, {srd(S_O0)}, 0 offen offset:{r*256}")
e("s_branch L_end")
lab("L_f_CD")
for s_ in range(8):
    e(f"s_waitcnt lgkmcnt({7-s_})")
    mfma(ACC, WFL+4*s_, ROW+4*s_, "0" if s_ == 0 else vr(ACC,16))
e("s_nop 7")
e("s_nop 3")
e(f"s_mov_b32 s{sK2}, 0x{NLN2:08x}")
e(f"v_lshlrev_b32 v{HRES}, 16, v{HRES}")
e(f"s_cmp_eq_u32 s{sQ}, 3")
e("s_cbranch_scc1 L_f_D")
c("role C: lanes 8..31 valid")
e(f"v_fma_f32 v{ACC}, s{sK2}, v{ACC}, v{HRES}")
e(f"v_cvt_pk_bf16_f32 v{ACC}, v{ACC}, v{ACC}")
e(f"s_mov_b32 s{sEX}, 0xffffff00")
e(f"s_mov_b32 s{sEX+1}, 0")
e(f"s_mov_b64 exec, {sp(sEX)}")
e(f"buffer_store_short v{ACC}, v{vOFF}, {srd(S_O1)}, 0 offen")
e("s_branch L_end")
lab("L_f_D")
c("role D: sum over p: lanes n, n+8, n+16, n+24")
e(f"v_add_f32_dpp v{ACC+1}, v{ACC}, v{ACC} row_ror:8 row_mask:0xf bank_mask:0xf")
e("s_nop 1")
e(f"ds_swizzle_b32 v{ACC+2}, v{ACC+1} offset:0x401F")
e("s_waitcnt lgkmcnt(0)")
e(f"v_add_f32 v{ACC+1}, v{ACC+1}, v{ACC+2}")
e(f"v_fma_f32 v{ACC}, s{sK2}, v{ACC+1}, v{HRES}")
e(f"v_cvt_pk_bf16_f32 v{ACC}, v{ACC}, v{ACC}")
e(f"s_mov_b64 exec, 0xff")
e(f"buffer_store_short v{ACC}, v{vOFF}, {srd(S_O1)}, 0 offen")
lab("L_end")
if TIMING:
    e("s_mov_b64 exec, -1")
stamp("end")
stamp_flush()
lab("L_end2")
e("s_endpgm")

lab("L_slow_init")
e(f"s_mov_b32 s{sMODE}, 1")
e(f"s_mov_b32 s{sCH}, 0")
e(f"s_mov_b32 s{sRETRY}, 0")
e("s_branch L_slow_pass")
lab("L_slow_next")
c("PEND flag was read into sK... re-read now (stable since BA)")
e(f"v_mov_b32 v{vT[0]}, {PEND}")
e(f"ds_read_b32 v{vT[1]}, v{vT[0]}")
e("s_waitcnt lgkmcnt(0)")
e(f"v_readfirstlane_b32 s{sRETRY}, v{vT[1]}")
e("s_nop 3")
e(f"s_cmp_lg_u32 s{sRETRY}, 0")
e("s_cbranch_scc1 L_slow_pass")
lab("L_slow_adv")
e(f"s_add_u32 s{sCH}, s{sCH}, 1")
e(f"s_cmp_ge_u32 s{sCH}, 250")
e("s_cbranch_scc1 L_slow_fin")
lab("L_slow_pass")
e("s_waitcnt vmcnt(0) lgkmcnt(0)")
e("s_barrier")
e(f"s_lshl_b32 s{sT0}, s{sW}, 6")
e(f"v_add_u32 v{tid}, s{sT0}, v{vL}")
for i in range(4): e(f"v_mov_b32 v{Z+i}, 0")
e(f"v_lshlrev_b32 v{vT[0]}, 4, v{tid}")
e(f"v_add_u32 v{vT[1]}, {DE16}, v{vT[0]}")
e(f"v_add_u32 v{vT[2]}, {CTR - 960*16}, v{vT[0]}")
e(f"v_cmp_gt_u32 vcc, 960, v{tid}")
e(f"v_cndmask_b32 v{vT[1]}, v{vT[2]}, v{vT[1]}, vcc")
e(f"v_cmp_gt_u32 vcc, 964, v{tid}")
e("s_mov_b64 exec, vcc")
e(f"ds_write_b128 v{vT[1]}, {vr(Z,4)}")
e("s_mov_b64 exec, -1")
c("raw edge e = 640*ch + t (t<640)")
qD, qS, qP, qB, qK, qR, qA = 112, 113, 114, 115, 116, 117, 118
e(f"s_mul_i32 s{sT0}, s{sCH}, 2560")
e(f"v_lshlrev_b32 v{vT[0]}, 2, v{tid}")
e(f"v_mov_b32 v{qD}, -1")
e(f"v_mov_b32 v{qS}, 0")
e(f"v_mov_b32 v{qP}, 0")
e(f"v_cmp_gt_u32 {sp(sM0)}, 640, v{tid}" if False else f"v_mov_b32 v{qA}, 640")
e(f"v_cmp_gt_u32 {sp(sM0)}, v{qA}, v{tid}")
e(f"s_mov_b64 exec, {sp(sM0)}")
e(f"buffer_load_dword v{qD}, v{vT[0]}, {srd(S_DST)}, s{sT0} offen")
e(f"buffer_load_dword v{qS}, v{vT[0]}, {srd(S_SRC)}, s{sT0} offen")
e(f"v_add_u32 v{qA}, {PENDB}, v{tid}")
e(f"ds_read_u8 v{qP}, v{qA}")
e("s_mov_b64 exec, -1")
e("s_waitcnt vmcnt(0) lgkmcnt(0)")
e("s_barrier")
e(f"v_mul_u32_u24 v{qB}, 52429, v{qD}")
e(f"v_lshrrev_b32 v{qB}, 21, v{qB}")
e(f"v_mul_u32_u24 v{qK}, 40, v{qB}")
e(f"v_sub_u32 v{qK}, v{qD}, v{qK}")
e(f"v_cmp_eq_u32 vcc, s2, v{qB}")
e(f"s_and_b64 {sp(sM0)}, {sp(sM0)}, vcc          ; match")
e(f"s_cmp_eq_u32 s{sRETRY}, 0")
e("s_cbranch_scc1 L_slow_fresh")
e(f"v_cmp_ne_u32 vcc, 0, v{qP}")
e(f"s_and_b64 {sp(sM0)}, {sp(sM0)}, vcc")
lab("L_slow_fresh")
c("rec = t<<22 | src<<8 | (ch&3)<<6 | k ; c = ch>>2")
e(f"s_and_b32 s{sT0}, s{sCH}, 3")
e(f"s_lshl_b32 s{sT0}, s{sT0}, 6")
e(f"v_lshlrev_b32 v{qD}, 22, v{tid}")
e(f"v_lshl_or_b32 v{qD}, v{qS}, 8, v{qD}")
e(f"v_or_b32 v{qD}, s{sT0}, v{qD}")
e(f"v_or_b32 v{qD}, v{qK}, v{qD}")
e(f"s_lshr_b32 s{sT0}, s{sCH}, 2")
e(f"v_mov_b32 v{qS}, s{sT0}")
e(f"v_lshrrev_b32 v{qB}, 3, v{qK}           ; g")
e(f"s_mov_b32 s{sT0}, {ALLOC}")
e(f"v_lshl_add_u32 v{qA}, v{qB}, 2, s{sT0}")
e(f"v_mov_b32 v{qK}, 1")
e(f"v_mov_b32 v{qP}, 0")
e(f"s_mov_b64 exec, {sp(sM0)}")
e(f"ds_add_rtn_u32 v{qR}, v{qA}, v{qK}")
e("s_waitcnt lgkmcnt(0)")
e(f"v_cmp_gt_u32 vcc, {CAP_G}, v{qR}")
e(f"v_mul_u32_u24 v{qB}, {CAP_G}, v{qB}")
e(f"v_add_u32 v{qB}, v{qB}, v{qR}")
e(f"s_mov_b32 s{sT0}, {DE16+8}")
e(f"v_lshl_add_u32 v{qA}, v{qB}, 4, s{sT0}")
e(f"s_and_b64 exec, {sp(sM0)}, vcc")
e(f"ds_write2_b32 v{qA}, v{qD}, v{qS} offset0:0 offset1:1")
e(f"s_andn2_b64 exec, {sp(sM0)}, vcc")
e("s_cbranch_execz L_slow_nopend")
e(f"v_mov_b32 v{qP}, 1")
e(f"v_mov_b32 v{qA}, {PEND}")
e(f"ds_write_b32 v{qA}, v{qK}")
lab("L_slow_nopend")
e("s_mov_b64 exec, -1")
e(f"v_mov_b32 v{qA}, 640")
e(f"v_cmp_gt_u32 vcc, v{qA}, v{tid}")
e("s_mov_b64 exec, vcc")
e(f"v_add_u32 v{qA}, {PENDB}, v{tid}")
e(f"ds_write_b8 v{qA}, v{qP}")
e("s_mov_b64 exec, -1")
e("s_waitcnt lgkmcnt(0)")
e("s_barrier")
c("skip quickly if nothing placed (and node task already done)")
e(f"v_mov_b32 v{vT[0]}, {ALLOC}")
e(f"ds_read_b128 {vr(104,4)}, v{vT[0]}")
e(f"ds_read_b32 v108, v{vT[0]} offset:16")
e("s_waitcnt lgkmcnt(0)")
e(f"v_or_b32 v104, v104, v105")
e(f"v_or3_b32 v104, v104, v106, v107")
e(f"v_or_b32 v104, v104, v108")
e("s_nop 0")
e(f"v_readfirstlane_b32 s{sT0}, v104")
e("s_nop 3")
e(f"s_cmp_lg_u32 s{sT0}, 0")
e("s_cbranch_scc1 L_stage2")
e(f"s_mov_b32 s{sRETRY}, 0")
e("s_branch L_slow_adv")
lab("L_slow_fin")
c("ensure node task ran: if never, run one empty pass through stage2 with zero counts")
e(f"s_cmp_eq_u32 s{sNODE}, 0")
e("s_cbranch_scc0 L_final_bar")
e(f"s_mov_b32 s{sMODE}, 2")
e("s_branch L_stage2")
lab("L_final_bar")
e("s_barrier")
e("s_branch L_final")

desc = f""".amdhsa_kernel {KNAME}
  .amdhsa_next_free_vgpr 128
  .amdhsa_next_free_sgpr 102
  .amdhsa_accum_offset 128
  .amdhsa_group_segment_fixed_size 0
  .amdhsa_kernarg_size 88
  .amdhsa_user_sgpr_count 2
  .amdhsa_user_sgpr_kernarg_segment_ptr 1
  .amdhsa_system_sgpr_workgroup_id_x 1
.end_amdhsa_kernel"""
body = "\n".join(out)
final = "\n".join(header) + "\n" + body + "\n" + '.section .rodata,"a"\n.p2align 6\n' + k1_desc + "\n.p2align 6\n" + desc + "\n"
dest = sys.argv[1] if len(sys.argv) > 1 else "standalone__cheap_equivariant_egnn__graph.s"
open(dest, "w").write(final)
print("wrote", dest, len(out), "lines")
```

```python
import sys, os
sys.path.insert(0, os.path.dirname(os.path.abspath(__file__)))
from g3common import *

KNAME = "standalone__cheap_equivariant_egnn__graph_kernel"
TIMING = os.environ.get("TIMING", "")
NOPRIO = os.environ.get("NOPRIO", "")
QSC = os.environ.get("QSC", " sc1")
FORCE = os.environ.get("FORCE", "")
NPOLL = int(os.environ.get("NPOLL", "3000"))
RSL = int(os.environ.get("RSL", "8"))
QSL = int(os.environ.get("QSL", "4"))
NSL = int(os.environ.get("NSL", "8"))
QST = int(os.environ.get("QST", "8"))
PK = int(os.environ.get("PK", "1"))
XM = int(os.environ.get("XM", "0"))
LATE = int(os.environ.get("LATE", "1"))
BSPEC = int(os.environ.get("BSPEC", "1"))
PPF = int(os.environ.get("PPF", "1"))

CELLA = 0
CHB = 32000
CELLB = 4 << 20
WH2F = 12 << 20
NG = 157; NCH = 63
BIN0 = NG; WPR = NG + NCH
CAP = 136
GSTR = CAP * 64
REC = 0
QT = 8 * GSTR
BXP = QT + 65536
OWN = BXP + 16384
PTF = OWN + 10240
CTR = PTF + 640
ALLOC = CTR; OVF = CTR + 32; PEND = CTR + 36; GCNT = CTR + 40; NONCE = CTR + 44; ZERO16 = CTR + 48
SYN = CTR + 64
RISS = SYN; RCNT = SYN + 4; RCNT2 = SYN + 8; FCNT = SYN + 12; FCNT2 = SYN + 16; NOK = SYN + 20; RLAND = SYN + 24
PENDB = CTR + 128
NTAB = PENDB
LDS_TOTAL = PENDB + 640
FLG = 13 << 20
assert LDS_TOTAL <= 163840
NWG = 250

S_H, S_POS, S_EA, S_SRC, S_DST, S_WX, S_O0, S_O1, S_WS, S_Q, S_WE, S_WH, S_DBG = [8 + 4 * i for i in range(13)]
sC4, sC5 = 4, 5
sW, sQ, sCT, sMODE, sT0, sT1, sT2, sT3 = range(60, 68)
sEX, sM0, sM1, sM2 = 68, 70, 72, 74
sG, sCH2, sCO, sNT, sU, sREM, sK2, sK3, sNODE, sCH, sRETRY, sB0, sB1, sGB, sRT, sROLE = range(76, 92)
sNON, sTAG, sCNT, sC = 92, 93, 94, 95
sPA, sPB = 96, 98
sX0, sX1, sX2 = 96, 97, 98
KS = 76

vL = 0
vLK, vQD, vTRQ0, vTRQ1, vTRS, vOD, vODM = 1, 2, 3, 4, 5, 6, 7
vT = list(range(8, 16))
SEG = 16; ACC = 48; FACC = 64; QF = 80; SF = 88; OHD = 96; BXF = 100; ID = 104; MP = 112; FB = 120
TE = QF
VST = 127

_st = [0]
def stamp(name, idx=None):
    if not TIMING: return
    i = _st[0] if idx is None else idx
    if idx is None: _st[0] += 1
    c(f"STAMP {i} {name}")
    e(f"s_memtime s[{sC4}:{sC5}]")
    e("s_waitcnt lgkmcnt(0)")
    e(f"v_writelane_b32 v{VST}, s{sC4}, {i}")
    print("stamp", i, name)
def stamp_dyn(base, scnt, mx=11):
    if not TIMING: return
    e(f"s_memtime s[{sC4}:{sC5}]")
    e(f"s_min_u32 s3, s{scnt}, {mx}")
    e(f"s_add_u32 m0, s3, {base}")
    e("s_waitcnt lgkmcnt(0)")
    e(f"v_writelane_b32 v{VST}, s{sC4}, m0")
def stamp_flush():
    if not TIMING: return
    e(f"s_memrealtime s[{sC4}:{sC5}]")
    e("s_waitcnt lgkmcnt(0)")
    e("s_mov_b64 exec, -1")
    e(f"v_writelane_b32 v{VST}, s100, 62")
    e(f"v_writelane_b32 v{VST}, s{sC4}, 63")
    e(f"s_lshl_b32 s{sT0}, s2, 4")
    e(f"s_add_u32 s{sT0}, s{sT0}, s{sW}")
    e(f"s_lshl_b32 s{sT0}, s{sT0}, 8")
    e(f"s_add_u32 s{sT0}, s{sT0}, {32<<20}")
    e(f"v_lshlrev_b32 v{vT[1]}, 2, v{vL}")
    e(f"buffer_store_dword v{VST}, v{vT[1]}, {srd(S_WS)}, s{sT0} offen")

header = []
header.append(f"; @launch grid=({NWG},1,1) block=(1024,1,1) lds={LDS_TOTAL}")
header.append('.amdgcn_target "amdgcn-amd-amdhsa--gfx950"')
header.append(".text")
header.append(f".globl {KNAME}")
header.append(".p2align 8")
header.append(f".type {KNAME},@function")

lab(KNAME)
e(f"s_cmp_ge_u32 s2, {NWG}")
e("s_cbranch_scc1 L_end2")
if TIMING:
    e("s_memrealtime s[100:101]")
if TIMING:
    e(f"v_mov_b32 v{VST}, 0")
stamp("entry")
e(f"s_load_dwordx16 s[{KS}:{KS+15}], s[0:1], 0")
e(f"s_load_dwordx2 s[{S_WS}:{S_WS+1}], s[0:1], 80")
e(f"s_load_dwordx2 s[{S_O0}:{S_O0+1}], s[0:1], 64")
e(f"s_load_dwordx2 s[{S_DBG}:{S_DBG+1}], s[0:1], 72")
tid = vT[7]
e(f"v_mov_b32 v{tid}, v0")
e(f"v_lshrrev_b32 v{vT[0]}, 6, v0")
e(f"v_and_b32 v{vL}, 63, v0")
e(f"v_readfirstlane_b32 s{sW}, v{vT[0]}")
for (x, sz) in [(S_H,2560000),(S_POS,60000),(S_EA,320000),(S_SRC,640000),(S_DST,640000),(S_WX,256),(S_O0,2560000),(S_O1,60000),
                (S_WS,256*1048576),(S_Q,2560000),(S_WE,66048),(S_WH,65536),(S_DBG,256)]:
    e(f"s_mov_b32 s{x+2}, {sz}")
    e(f"s_mov_b32 s{x+3}, 0x20000")
e(f"s_lshr_b32 s{sQ}, s{sW}, 2")
e(f"s_and_b32 s{sCT}, s{sW}, 3")
e(f"s_mov_b32 s{sMODE}, 0")
def kernarg_copy():
    for (x, k) in [(S_H,0),(S_POS,2),(S_EA,4),(S_SRC,6),(S_DST,8),(S_WE,10),(S_WX,12),(S_WH,14)]:
        e(f"s_mov_b64 s[{x}:{x+1}], s[{KS+k}:{KS+k+1}]")
    e(f"s_add_u32 s{S_O1}, s{S_O0}, 2560000")
    e(f"s_addc_u32 s{S_O1+1}, s{S_O0+1}, 0")
    e(f"s_add_u32 s{S_Q}, s{S_WS}, {QOFF}")
    e(f"s_addc_u32 s{S_Q+1}, s{S_WS+1}, 0")

vSL = 16; vTRP = 17; vRA = 18; vRD = 19; vST = 20; vU0 = 21; vU1 = 22
def slice_lane(dst, sct):
    e(f"v_lshrrev_b32 v{dst}, 2, v{vL}")
    e(f"v_lshlrev_b32 v{dst}, 8, v{dst}")
    e(f"v_and_b32 v{vU0}, 3, v{vL}")
    e(f"v_lshl_add_u32 v{dst}, v{vU0}, 4, v{dst}")
    e(f"s_lshl_b32 s{sT0}, s{sct}, 6")
    e(f"v_add_u32 v{dst}, s{sT0}, v{dst}")
def trpat(dst, t0, t1):
    e(f"v_lshrrev_b32 v{t0}, 5, v{vL}")
    e(f"v_bfe_u32 v{t1}, v{vL}, 2, 2")
    e(f"v_lshl_add_u32 v{dst}, v{t0}, 3, v{t1}")
    e(f"v_lshlrev_b32 v{dst}, 6, v{dst}")
    e(f"v_bfe_u32 v{t0}, v{vL}, 4, 1")
    e(f"v_lshl_add_u32 v{dst}, v{t0}, 5, v{dst}")
    e(f"v_and_b32 v{t0}, 3, v{vL}")
    e(f"v_lshl_add_u32 v{dst}, v{t0}, 3, v{dst}")
def row_addr(dst, vrow, vhi, tmp, base=OWN):
    e(f"v_and_b32 v{tmp}, 15, v{vrow}")
    e(f"v_xor_b32 v{tmp}, v{tmp}, v{vhi}")
    e(f"v_lshlrev_b32 v{tmp}, 4, v{tmp}")
    e(f"v_lshl_add_u32 v{dst}, v{vrow}, 8, v{tmp}")
    e(f"v_add_u32 v{dst}, {base}, v{dst}")

Z = 24
for i in range(4): e(f"v_mov_b32 v{Z+i}, 0")
c("wave 0: zero the counters (128 B), then B0")
e(f"s_cmp_eq_u32 s{sW}, 0")
e("s_cbranch_scc0 L_b0")
e(f"v_lshlrev_b32 v{vT[0]}, 4, v{vL}")
e(f"v_add_u32 v{vT[0]}, {CTR}, v{vT[0]}")
e("s_mov_b64 exec, 0xff")
e(f"ds_write_b128 v{vT[0]}, {vr(Z,4)}")
e("s_mov_b64 exec, -1")
e("s_waitcnt lgkmcnt(0)")
lab("L_b0")
e("s_barrier")
vA_ = 23
_sy = [0]
def arrive(addr):
    e(f"v_mov_b32 v{vA_}, {addr}")
    e(f"v_mov_b32 v{vU1}, 1")
    e("s_mov_b64 exec, 1")
    e(f"ds_add_u32 v{vA_}, v{vU1}")
    e("s_mov_b64 exec, -1")
def wait_cnt(addr, n, nz=False, dst=None):
    i = _sy[0]; _sy[0] += 1
    d = dst if dst is not None else sT0
    e(f"v_mov_b32 v{vA_}, {addr}")
    lab(f"L_sy{i}")
    e(f"ds_read_b32 v{vU1}, v{vA_}")
    e("s_waitcnt lgkmcnt(0)")
    e(f"v_readfirstlane_b32 s{d}, v{vU1}")
    if nz: e(f"s_cmp_lg_u32 s{d}, 0")
    else:  e(f"s_cmp_ge_u32 s{d}, {n}")
    e(f"s_cbranch_scc1 L_syd{i}")
    e("s_sleep 1")
    e(f"s_branch L_sy{i}")
    lab(f"L_syd{i}")
e(f"s_cmp_ge_u32 s{sW}, 8")
e("s_cbranch_scc1 L_front")
if not NOPRIO: e("s_setprio 2")
c("zero REC tail (4096 B, threads 256..511)")
e(f"v_lshlrev_b32 v{vT[0]}, 4, v{tid}")
e(f"v_add_u32 v{vT[1]}, {65536 - 4096}, v{vT[0]}")
e(f"v_cmp_lt_u32 vcc, 255, v{tid}")
e("s_mov_b64 exec, vcc")
e(f"s_cbranch_execz L_notail")
e(f"ds_write_b128 v{vT[1]}, {vr(Z,4)}")
lab("L_notail")
e("s_mov_b64 exec, -1")
e(f"s_cmp_ge_u32 s2, {BIN0}")
e("s_cbranch_scc1 L_notgemm")

AF = 24; BF = 56; D0 = 88
def gemm_role(tag, blk, fb):
    slice_lane(vSL, sCT)
    c("rows DMA lane offset: row = 8w + 4i + (l>>4); chunk = (l&15) ^ (row&15)")
    e(f"v_lshrrev_b32 v{vU0}, 4, v{vL}")
    e(f"v_and_b32 v{vU1}, 15, v{vL}")
    e(f"v_xor_b32 v{vU1}, v{vU1}, v{vU0}")
    e(f"s_and_b32 s{sT0}, s{sW}, 1")
    e(f"s_lshl_b32 s{sT0}, s{sT0}, 3")
    e(f"v_xor_b32 v{vU1}, s{sT0}, v{vU1}")
    e(f"v_lshlrev_b32 v{vU1}, 4, v{vU1}")
    e(f"v_lshl_add_u32 v{vRA}, v{vU0}, 8, v{vU1}")
    e(f"v_xor_b32 v{vRD}, 64, v{vRA}")
    e(f"s_lshl_b32 s{sT0}, s{sCT}, 13")
    e(f"s_lshl_b32 s{sT1}, s{sQ}, 12")
    e(f"s_add_u32 s{sT0}, s{sT0}, s{sT1}")
    e(f"s_add_u32 s{sT0}, s{sT0}, {QT}")
    e(f"s_lshl_b32 s{sT1}, s{sQ}, 14")
    e(f"s_add_u32 s{sT1}, s{sT1}, 32768")
    e(f"s_lshl_b32 s{sT3}, s{sW}, 11")
    e(f"s_lshl_b32 s{sX0}, s{blk}, 14")
    e(f"s_add_u32 s{sX0}, s{sX0}, s{sT3}           ; (64r + 8w)*256")
    if not fb:
        e("s_waitcnt lgkmcnt(0)")
        stamp("kernarg", 1)
        kernarg_copy()
    e(f"s_add_u32 m0, s{sT3}, {QT+32768}")
    e(f"s_add_u32 s{sX1}, s{sX0}, 1024")
    e(f"buffer_load_dwordx4 v{vRA}, {srd(S_H)}, s{sX0} offen lds")
    e(f"s_add_u32 m0, s{sT3}, {QT+32768+1024}")
    e(f"s_nop 0")
    e(f"buffer_load_dwordx4 v{vRD}, {srd(S_H)}, s{sX1} offen lds")
    for i in range(4):
        e(f"s_add_u32 m0, s{sT0}, {i*1024}")
        e(f"s_add_u32 s{sT2}, s{sT1}, {i*4096}")
        e(f"buffer_load_dwordx4 v{vSL}, {srd(S_WE)}, s{sT2} offen lds")
    if not fb:
        if not LATE: arrive(RISS)
        stamp("role loads issued", 2)
    c("compute: all 8 waves, rb = w>>2, ct = w&3 : 32 rows x 32 cols")
    trpat(vTRP, vU0, vU1)
    e(f"s_lshl_b32 s{sT0}, s{sCT}, 13")
    e(f"s_add_u32 s{sT0}, s{sT0}, {QT}")
    e(f"v_add_u32 v{vTRP}, s{sT0}, v{vTRP}")
    c("row read address: QT+32768 + (rb*32+n)*256 + ((hi ^ (n&15))<<4) ^ (s<<5)")
    e(f"v_and_b32 v{vU0}, 31, v{vL}")
    e(f"v_lshrrev_b32 v{vU1}, 5, v{vL}")
    e(f"v_and_b32 v{vRD}, 15, v{vL}")
    e(f"v_xor_b32 v{vRD}, v{vRD}, v{vU1}")
    e(f"v_lshlrev_b32 v{vRD}, 4, v{vRD}")
    e(f"v_lshl_add_u32 v{vRD}, v{vU0}, 8, v{vRD}")
    e(f"s_lshl_b32 s{sT0}, s{sQ}, 13")
    e(f"s_add_u32 s{sT0}, s{sT0}, {QT+32768}")
    e(f"v_add_u32 v{vRD}, s{sT0}, v{vRD}")
    c("out tile (2 KB per wave) write addr: OB + n*64 + ((bb ^ ((n>>2)&3))<<4) + hi*8")
    e(f"s_lshl_b32 s{sT0}, s{sW}, 11")
    e(f"s_add_u32 s{sT0}, s{sT0}, {QT+49152}")
    e(f"v_bfe_u32 v{vRA}, v{vL}, 2, 2")
    e(f"v_lshlrev_b32 v{vRA}, 4, v{vRA}")
    e(f"v_lshl_add_u32 v{vRA}, v{vU0}, 6, v{vRA}")
    e(f"v_lshl_add_u32 v{vRA}, v{vU1}, 3, v{vRA}")
    e(f"v_add_u32 v{vRA}, s{sT0}, v{vRA}")
    c("out tile read addr: OB + (r + 16i)*64 + ((q ^ ((r>>2)&3))<<4), r = l>>2, q = l&3 ; store: row*256 + ct*64 + q*16")
    e(f"v_lshrrev_b32 v{vU0}, 2, v{vL}")
    e(f"v_and_b32 v{vU1}, 3, v{vL}")
    e(f"v_bfe_u32 v{vSL}, v{vL}, 4, 2")
    e(f"v_xor_b32 v{vSL}, v{vSL}, v{vU1}")
    e(f"v_lshlrev_b32 v{vSL}, 4, v{vSL}")
    e(f"v_lshl_add_u32 v{vSL}, v{vU0}, 6, v{vSL}")
    e(f"v_add_u32 v{vSL}, s{sT0}, v{vSL}")
    e(f"v_lshlrev_b32 v{vST}, 4, v{vU1}")
    e(f"v_lshl_add_u32 v{vST}, v{vU0}, 8, v{vST}")
    e(f"s_lshl_b32 s{sT0}, s{blk}, 14")
    e(f"s_lshl_b32 s{sT1}, s{sQ}, 13")
    e(f"s_add_u32 s{sT0}, s{sT0}, s{sT1}")
    e(f"s_lshl_b32 s{sT1}, s{sCT}, 6")
    e(f"s_add_u32 s{sC}, s{sT0}, s{sT1}")
    e("s_waitcnt vmcnt(0) lgkmcnt(0)")
    if not fb: stamp("role loads landed", 3)
    if fb:
        e("s_barrier")
    else:
        arrive(RCNT)
        if LATE: arrive(RISS)
        wait_cnt(RCNT, 8)
        stamp("B1", 4)
    for s_ in range(8):
        e(f"v_xor_b32 v{vU0}, {s_<<5}, v{vRD}")
        e(f"ds_read_b128 {vr(BF+4*s_,4)}, v{vU0}")
        e(f"ds_read_b64_tr_b16 {vr(AF+4*s_,2)}, v{vTRP} offset:{s_*1024}")
        e(f"ds_read_b64_tr_b16 {vr(AF+4*s_+2,2)}, v{vTRP} offset:{s_*1024+256}")
    for s_ in range(8):
        e(f"s_waitcnt lgkmcnt({min(15, 21-3*s_)})")
        mfma(D0, AF+4*s_, BF+4*s_, "0" if s_ == 0 else vr(D0,16))
    e(f"s_mov_b32 s{sT1}, 0x{NLOG2E:08x}")
    e("s_nop 7")
    e("s_nop 3")
    for bb in range(4):
        r0 = D0 + 4*bb
        for i in range(4):
            e(f"v_mul_f32 v{r0+i}, s{sT1}, v{r0+i}")
        e(f"v_cvt_pk_bf16_f32 v{r0}, v{r0}, v{r0+1}")
        e(f"v_cvt_pk_bf16_f32 v{r0+1}, v{r0+2}, v{r0+3}")
        e(f"v_xor_b32 v{vU0}, {bb<<4}, v{vRA}")
        e(f"ds_write_b64 v{vU0}, {vr(r0,2)}")
    e("s_waitcnt lgkmcnt(0)")
    for i in range(2):
        e(f"ds_read_b128 {vr(AF+4*i,4)}, v{vSL} offset:{i*1024}")
    e(f"s_add_u32 s{sT1}, s{sC}, 4096")
    for i in range(2):
        e(f"s_waitcnt lgkmcnt({1-i})")
        e(f"buffer_store_dwordx4 {vr(AF+4*i,4)}, v{vST}, {srd(S_Q)}, s{[sC,sT1][i]} offen sc1")
    if not fb: stamp("role stores issued", 5)

gemm_role("", 2, False)
c("signal: last of the compute waves writes flag[b] = nonce of chunk 0")
def signal(nw, idx_setup, tag, nl=1):
    e("s_waitcnt vmcnt(0)")
    e(f"v_mov_b32 v{vU0}, {GCNT}")
    e(f"v_mov_b32 v{vU1}, 1")
    e("s_mov_b64 exec, 1")
    e(f"ds_add_rtn_u32 v{vRA}, v{vU0}, v{vU1}")
    e("s_waitcnt lgkmcnt(0)")
    e("s_mov_b64 exec, -1")
    e(f"v_readfirstlane_b32 s{sT0}, v{vRA}")
    e(f"s_cmp_eq_u32 s{sT0}, {nw-1}")
    e(f"s_cbranch_scc0 L_nosig{tag}")
    wait_cnt(NOK, 0, nz=True)
    e(f"v_mov_b32 v{vU0}, {NTAB}")
    e(f"ds_read_b32 v{vU1}, v{vU0}")
    idx_setup()
    e(f"v_lshlrev_b32 v{vU0}, 2, v{vL}")
    e("s_waitcnt lgkmcnt(0)")
    e(f"s_mov_b64 exec, {(1<<nl)-1}")
    e(f"buffer_store_dword v{vU1}, v{vU0}, {srd(S_WS)}, s{sT1} offen sc1")
    e("s_mov_b64 exec, -1")
    lab(f"L_nosig{tag}")
def idx_gemm():
    e(f"s_lshl_b32 s{sT1}, s2, 2")
    e(f"s_add_u32 s{sT1}, s{sT1}, {FLG}")
signal(8, idx_gemm, "g")
stamp("role signalled", 6)
e("s_branch L_common")

lab("L_notgemm")
e(f"s_cmp_ge_u32 s2, {WPR}")
e("s_cbranch_scc1 L_notbin")
c("binning chunk c = wg - 157: edges e = 2560c + 512i + t ; LDS image: cell b at QT + b*128 (+32000 for ranks 16..31), 8-B records")
NE = 5
CNT = QT + 64000
vD = 24; vS = 29; vB = 34; vR = 39; vP = 44; vE = 54; vE2 = 55; vOne_ = 56; vK = 57; vG_ = 58
e(f"s_sub_u32 s{sC}, s2, {BIN0}")
e(f"s_mul_i32 s{sT0}, s{sC}, {2560*4}")
e(f"v_lshlrev_b32 v{vE}, 2, v{tid}")
e(f"v_lshlrev_b32 v{vE2}, 1, v{tid}")
c("zero counters")
e(f"v_mov_b32 v{vU1}, 0")
e(f"v_mov_b32 v{vOne_}, 1")
e(f"v_cmp_gt_u32 vcc, 250, v{tid}")
e(f"s_mov_b64 exec, vcc")
e(f"v_add_u32 v{vU0}, {CNT}, v{vE}")
e(f"ds_write_b32 v{vU0}, v{vU1}")
e(f"s_mov_b64 exec, -1")
e(f"s_add_u32 s{sT2}, s{sT0}, 4096")
e(f"s_add_u32 s{sT1}, s{sT0}, 8192")
e(f"s_lshr_b32 s{sX0}, s{sT0}, 1")
e(f"s_add_u32 s{sX1}, s{sX0}, 4096")
e("s_memrealtime s[6:7]")
e("s_waitcnt lgkmcnt(0)")
stamp("kernarg", 1)
kernarg_copy()
c("wave 0: this chunk's nonce -> LDS and d_debug[c]")
e(f"s_cmp_eq_u32 s{sW}, 0")
e("s_cbranch_scc0 L_bin_nonon")
e("s_or_b32 s6, s6, 1")
e(f"v_mov_b32 v{vU1}, s6")
e(f"v_mov_b32 v{vU0}, {NONCE}")
e(f"s_lshl_b32 s{sT3}, s{sC}, 2")
e(f"v_mov_b32 v{vK}, s{sT3}")
e("s_mov_b64 exec, 1")
e(f"buffer_store_dword v{vU1}, v{vK}, {srd(S_DBG)}, 0 offen sc1")
e(f"ds_write_b32 v{vU0}, v{vU1}")
e("s_mov_b64 exec, -1")
lab("L_bin_nonon")
def soff(i): return [sT0, sT0, sT2, sT2, sT1][i], (i & 1) * 2048 if i < 4 else 0
for i in range(NE):
    so, of = soff(i)
    e(f"buffer_load_dword v{vD+i}, v{vE}, {srd(S_DST)}, s{so} offen offset:{of}")
for i in range(NE):
    so, of = soff(i)
    e(f"buffer_load_dword v{vS+i}, v{vE}, {srd(S_SRC)}, s{so} offen offset:{of}")
for i in range(NE):
    so = sX0 if i < 4 else sX1
    e(f"buffer_load_ushort v{vP+2*i+1}, v{vE2}, {srd(S_EA)}, s{so} offen offset:{(i & 3) * 1024 if i < 4 else 0}")
if not LATE: arrive(RISS)
arrive(RCNT)
stamp("role loads issued", 2)
c("validity: e < 160000  <=> byte offset < 640000")
e(f"v_add_u32 v{vE}, s{sT0}, v{vE}")
e(f"s_mov_b32 s{sX0}, {CNT}")
e(f"s_mov_b32 s{sX1}, {QT}")
wait_cnt(RCNT, 8, dst=sX2)
stamp("B1", 4)
for i in range(NE):
    e(f"s_waitcnt vmcnt({3*NE-1-i})")
    e(f"v_mul_u32_u24 v{vB+i}, 52429, v{vD+i}")
    e(f"v_lshrrev_b32 v{vB+i}, 21, v{vB+i}")
    e(f"v_lshl_add_u32 v{vU0}, v{vB+i}, 2, s{sX0}")
    e(f"v_mov_b32 v{vK}, {640000 - i*2048}")
    e(f"v_cmp_gt_u32 vcc, v{vK}, v{vE}")
    e(f"s_mov_b64 exec, vcc")
    e(f"ds_add_rtn_u32 v{vR+i}, v{vU0}, v{vOne_}")
    e(f"s_mov_b64 exec, -1")
    e(f"v_mul_u32_u24 v{vK}, 40, v{vB+i}")
    e(f"v_sub_u32 v{vD+i}, v{vD+i}, v{vK}       ; k")
    e(f"v_lshl_add_u32 v{vB+i}, v{vB+i}, 7, s{sX1}")
    e(f"v_mul_u32_u24 v{vG_}, 52, v{vD+i}")
    e(f"v_lshrrev_b32 v{vG_}, 8, v{vG_}           ; g = k/5")
    e(f"v_mul_u32_u24 v{vK}, 5, v{vG_}")
    e(f"v_sub_u32 v{vK}, v{vD+i}, v{vK}        ; j")
    e(f"v_lshl_or_b32 v{vD+i}, v{vK}, 3, v{vG_}       ; g | j<<3")
    e(f"v_or_b32 v{vD+i}, 64, v{vD+i}                ; valid")
for i in range(NE):
    e(f"s_waitcnt vmcnt({2*NE-1-i})")
    e(f"v_lshl_or_b32 v{vP+2*i}, v{vD+i}, 14, v{vS+i}    ; rec")
e("s_waitcnt vmcnt(0) lgkmcnt(0)")
if LATE: arrive(RISS)
stamp("role loads landed", 3)
for i in range(NE):
    e(f"v_and_b32 v{vU0}, 15, v{vR+i}")
    e(f"v_lshrrev_b32 v{vU1}, 4, v{vR+i}")
    e(f"v_lshl_add_u32 v{vU0}, v{vU0}, 3, v{vB+i}")
    e(f"v_mul_u32_u24 v{vU1}, {CHB}, v{vU1}")
    e(f"v_add_u32 v{vU0}, v{vU0}, v{vU1}")
    e(f"v_cmp_gt_u32 vcc, 32, v{vR+i}")
    e(f"v_mov_b32 v{vK}, {640000 - i*2048}")
    e(f"v_cmp_gt_u32 {sp(sM0)}, v{vK}, v{vE}")
    e(f"s_and_b64 exec, vcc, {sp(sM0)}")
    e(f"ds_write_b64 v{vU0}, {vr(vP+2*i,2)}")
    e(f"s_mov_b64 exec, -1")
e("s_waitcnt lgkmcnt(0)")
arrive(RCNT2)
wait_cnt(NONCE, 0, nz=True, dst=sNON)
wait_cnt(RCNT2, 8, dst=sX2)
stamp("B2", 6)
c("copy-out: granule x = t + 512i (<2000): cell b = x>>3, q = x&7")
GA = 24; vCn = 40; vR0 = 44; vX = 45; vF = 46; vY = 47; vXL = 52
e(f"v_lshlrev_b32 v{vX}, 4, v{tid}               ; x*16 (i=0)")
e(f"v_lshrrev_b32 v{vY}, 3, v{tid}")
e(f"v_lshl_add_u32 v{vY}, v{vY}, 2, s{sX0}")
e(f"v_add_u32 v{vXL}, {QT}, v{vX}")
for i in range(4):
    if i == 3:
        e(f"v_cmp_gt_u32 vcc, {2000-1536}, v{tid}")
        e("s_mov_b64 exec, vcc")
    e(f"ds_read_b128 {vr(GA+4*i,4)}, v{vXL} offset:{i*8192}")
    e(f"ds_read_b32 v{vCn+i}, v{vY} offset:{i*256}")
e("s_mov_b64 exec, -1")
e(f"v_and_b32 v{vR0}, 7, v{tid}")
e(f"v_lshlrev_b32 v{vR0}, 1, v{vR0}              ; r0 = 2q")
e(f"s_mul_i32 s{sT0}, s{sC}, {CHB}")
e(f"s_mul_i32 s{sTAG}, s{sNON}, 0x9E3779B1")
e(f"s_lshr_b32 s{sTAG}, s{sTAG}, 23")
e(f"s_lshl_b32 s{sT1}, s{sTAG}, 23")
def granule(G, cn, r0off, so, ioff):
    e(f"v_mov_b32 v{vF}, s{sT1}")
    e(f"v_cmp_lt_u32 vcc, 16, v{cn}")
    e(f"v_cndmask_b32 v{vU0}, 0, 1, vcc")
    e(f"v_lshl_or_b32 v{vF}, v{vU0}, 21, v{vF}")
    e(f"v_cmp_lt_u32 vcc, 32, v{cn}")
    e(f"v_cndmask_b32 v{vU0}, 0, 1, vcc")
    e(f"v_lshl_or_b32 v{vF}, v{vU0}, 22, v{vF}")
    e(f"v_add_u32 v{vU0}, {r0off}, v{vR0}")
    e(f"v_cmp_lt_u32 vcc, v{vU0}, v{cn}")
    e(f"v_cndmask_b32 v{G}, 0, v{G}, vcc")
    e(f"v_add_u32 v{vU0}, 1, v{vU0}")
    e(f"v_cmp_lt_u32 vcc, v{vU0}, v{cn}")
    e(f"v_cndmask_b32 v{G+2}, 0, v{G+2}, vcc")
    e(f"v_and_b32 v{G+1}, 0xffff, v{G+1}")
    e(f"v_lshl_or_b32 v{vU0}, v{G+3}, 16, v{G+1}      ; d2")
    e(f"v_or_b32 v{G+1}, v{G+2}, v{vF}                ; d1")
    e(f"v_or_b32 v{G}, v{G}, v{vF}                    ; d0")
    e(f"v_mov_b32 v{G+2}, v{vU0}")
    e(f"v_mov_b32 v{G+3}, s{sNON}")
    e(f"buffer_store_dwordx4 {vr(G,4)}, v{vX}, {srd(S_WS)}, s{so} offen sc1")
for i in range(4):
    if i == 3:
        e(f"v_cmp_gt_u32 vcc, {2000-1536}, v{tid}")
        e(f"s_mov_b64 {sp(sM1)}, vcc")
        e(f"s_mov_b64 exec, vcc")
    e(f"s_waitcnt lgkmcnt({2*(3-i)})")
    granule(GA+4*i, vCn+i, 0, sT0, i)
    e(f"s_add_u32 s{sT0}, s{sT0}, 8192")
e("s_mov_b64 exec, -1")
stamp("role stores issued", 5)
c("B lines (ranks 16..31) for cells with count > 16")
e(f"s_mul_i32 s{sT0}, s{sC}, {CHB}")
e(f"s_add_u32 s{sT0}, s{sT0}, {CELLB}")
for i in range(4):
    e(f"v_cmp_lt_u32 vcc, 16, v{vCn+i}")
    if i == 3:
        e(f"s_and_b64 vcc, vcc, {sp(sM1)}")
    e("s_mov_b64 exec, vcc")
    e(f"s_cbranch_execz L_nob{i}")
    e(f"ds_read_b128 {vr(48,4)}, v{vXL} offset:{CHB+i*8192}")
    e("s_waitcnt lgkmcnt(0)")
    granule(48, vCn+i, 16, sT0, i)
    e("s_nop 1")
    lab(f"L_nob{i}")
    e("s_mov_b64 exec, -1")
    e(f"s_add_u32 s{sT0}, s{sT0}, 8192")
e("s_branch L_common")

lab("L_notbin")
def wprep_role(tag, fb):
    slice_lane(vSL, sCT)
    e(f"s_lshl_b32 s{sT2}, s{sCT}, 13")
    e(f"s_add_u32 s{sT2}, s{sT2}, {QT}")
    trpat(vTRP, vU0, vU1)
    e(f"v_add_u32 v{vTRP}, s{sT2}, v{vTRP}")
    e(f"v_lshlrev_b32 v{vST}, 4, v{vL}")
    for i in range(8):
        e(f"s_add_u32 m0, s{sT2}, {i*1024}")
        e(f"s_mov_b32 s{sT1}, {32768 + i*4096}")
        e(f"buffer_load_dwordx4 v{vSL}, {srd(S_WH)}, s{sT1} offen lds")
    e(f"s_lshl_b32 s{sC}, s{sCT}, 13")
    e(f"s_add_u32 s{sC}, s{sC}, {WH2F}")
    e("s_waitcnt vmcnt(0)")
    for s_ in range(8):
        e(f"ds_read_b64_tr_b16 {vr(AF+4*s_,2)}, v{vTRP} offset:{s_*1024}")
        e(f"ds_read_b64_tr_b16 {vr(AF+4*s_+2,2)}, v{vTRP} offset:{s_*1024+256}")
    for s_ in range(8):
        if s_ == 4:
            e(f"s_add_u32 s{sC}, s{sC}, 4096")
        e(f"s_waitcnt lgkmcnt({2*(7-s_)})")
        e(f"buffer_store_dwordx4 {vr(AF+4*s_,4)}, v{vST}, {srd(S_WS)}, s{sC} offen offset:{(s_%4)*1024} sc1")
e("s_waitcnt lgkmcnt(0)")
stamp("kernarg", 1)
kernarg_copy()
arrive(RISS)
e(f"s_cmp_eq_u32 s2, {WPR}")
e("s_cbranch_scc0 L_common")
e(f"s_cmp_ge_u32 s{sW}, 4")
e("s_cbranch_scc1 L_common")
wprep_role("", False)
def idx_w():
    e(f"s_mov_b32 s{sT1}, {FLG + NG*4}")
signal(4, idx_w, "w", nl=3)
e("s_branch L_common")

lab("L_front")
QC, QP, QH = 0, 2, 3
WF = 16
KB = 124
PWR = 116
fw = sX2
e(f"s_sub_u32 s{fw}, s{sW}, 8")
c("own rows dma: instr idx u covers rows 4u..4u+3 ; lane: row = 4u + (l>>4); chunk = (l&15) ^ (row&15)")
e(f"v_lshrrev_b32 v{vT[4]}, 4, v{vL}")
e(f"v_and_b32 v{vT[1]}, 15, v{vL}")
e(f"v_xor_b32 v{vT[1]}, v{vT[1]}, v{vT[4]}")
e(f"s_lshl_b32 s{sT1}, s{sCT}, 2")
e(f"v_xor_b32 v{vT[1]}, s{sT1}, v{vT[1]}")
e(f"v_lshlrev_b32 v{vT[1]}, 4, v{vT[1]}")
e(f"v_lshl_add_u32 v{vT[1]}, v{vT[4]}, 8, v{vT[1]}")
slice_lane(vT[2], sCT)
e(f"s_lshl_b32 s{sT2}, s{fw}, 13")
e(f"s_mul_i32 s{sT0}, s2, {40*256}")
e(f"s_lshl_b32 s{sT1}, s{fw}, 10")
e(f"s_add_u32 s{sT0}, s{sT0}, s{sT1}")
e(f"v_mul_u32_u24 v{vT[3]}, 6, v{vL}")
e(f"v_and_b32 v{vT[5]}, 31, v{vL}")
e(f"s_lshl_b32 s{sT3}, s{sCT}, 5")
e(f"v_add_u32 v{vT[5]}, s{sT3}, v{vT[5]}")
e(f"v_lshlrev_b32 v{vT[5]}, 1, v{vT[5]}           ; (32ct + n)*2")
e("s_waitcnt lgkmcnt(0)")
stamp("kernarg", 1)
kernarg_copy()
e(f"s_add_u32 m0, s{sT1}, {OWN}")
e("s_nop 0")
e(f"buffer_load_dwordx4 v{vT[1]}, {srd(S_H)}, s{sT0} offen lds")
e(f"s_cmp_ge_u32 s{fw}, 2")
e("s_cbranch_scc1 L_f_no2")
e(f"s_add_u32 m0, s{sT1}, {OWN+8192}")
e(f"s_add_u32 s{sT0}, s{sT0}, 8192")
e(f"buffer_load_dwordx4 v{vT[1]}, {srd(S_H)}, s{sT0} offen lds")
lab("L_f_no2")
c("wave 10: own pos (lane l<40 loads x,y,z u16)")
e(f"s_cmp_eq_u32 s{fw}, 2")
e("s_cbranch_scc0 L_f_nopos")
e(f"s_mul_i32 s{sT0}, s2, 240")
e(f"v_cmp_gt_u32 vcc, 40, v{vL}")
e("s_mov_b64 exec, vcc")
for k in range(3):
    e(f"buffer_load_ushort v{PWR+k}, v{vT[3]}, {srd(S_POS)}, s{sT0} offen offset:{2*k}")
e("s_mov_b64 exec, -1")
lab("L_f_nopos")
if PPF:
    c("L2 warm-up of pos: segment (wg>>3)&7 of 7680 B, 960 B per F wave (result unused)")
    e(f"s_lshr_b32 s{sT1}, s2, 3")
    e(f"s_and_b32 s{sT1}, s{sT1}, 7")
    e(f"s_lshl_b32 s{sT1}, s{sT1}, 3")
    e(f"s_add_u32 s{sT1}, s{sT1}, s{fw}")
    e(f"s_mul_i32 s{sT1}, s{sT1}, 960")
    e(f"v_lshlrev_b32 v{vT[7]}, 4, v{vL}")
    e(f"buffer_load_dwordx4 {vr(108,4)}, v{vT[7]}, {srd(S_POS)}, s{sT1} offen")
c("K1B raw: w_e rows 256, 257 (QP uses them)")
e(f"s_mov_b32 s{sT1}, 65536")
e(f"buffer_load_ushort v{KB}, v{vT[5]}, {srd(S_WE)}, s{sT1} offen")
e(f"buffer_load_ushort v{KB+1}, v{vT[5]}, {srd(S_WE)}, s{sT1} offen offset:256")
NV = 112
trpat(vT[6], vT[0], vT[1])
e(f"s_add_u32 s{sT3}, s{sT2}, {REC}")
e(f"v_add_u32 v{vT[6]}, s{sT3}, v{vT[6]}")
stamp("role loads issued", 2)
c("let the role loads go first")
wait_cnt(RISS, 8)
stamp("B1", 4)
c("weight slice: QP: W1 (w_e rows 0..127), QH: WH1 (w_h rows 0..127)")
e(f"s_cmp_eq_u32 s{sQ}, {QP}")
e("s_cbranch_scc0 L_f_slh")
for i in range(8):
    e(f"s_add_u32 m0, s{sT2}, {REC + i*1024}")
    e(f"s_mov_b32 s{sT1}, {i*4096}")
    e(f"buffer_load_dwordx4 v{vT[2]}, {srd(S_WE)}, s{sT1} offen lds")
e("s_branch L_f_sld")
lab("L_f_slh")
for i in range(8):
    e(f"s_add_u32 m0, s{sT2}, {REC + i*1024}")
    e(f"s_mov_b32 s{sT1}, {i*4096}")
    e(f"buffer_load_dwordx4 v{vT[2]}, {srd(S_WH)}, s{sT1} offen lds")
lab("L_f_sld")
e(f"s_add_u32 s{sT2}, s{sT2}, {REC}")
e("s_waitcnt vmcnt(8)")
arrive(FCNT)
c("wave 10: PTF (f32 x4 per node)")
e(f"s_cmp_eq_u32 s{fw}, 2")
e("s_cbranch_scc0 L_noptf")
for k in range(3): e(f"v_lshlrev_b32 v{PWR+k}, 16, v{PWR+k}")
e(f"v_mov_b32 v{PWR+3}, 0")
e(f"v_lshlrev_b32 v{vT[0]}, 4, v{vL}")
e(f"v_add_u32 v{vT[0]}, {PTF}, v{vT[0]}")
e(f"v_cmp_gt_u32 vcc, 40, v{vL}")
e("s_mov_b64 exec, vcc")
e(f"ds_write_b128 v{vT[0]}, {vr(PWR,4)}")
e("s_mov_b64 exec, -1")
lab("L_noptf")
stamp("role loads landed", 3)
e("s_waitcnt vmcnt(0)")
stamp("slices landed", 6)
c("wave 15: first read of the nonce table (checked after the H1 work)")
e(f"v_lshlrev_b32 v{NV+1}, 2, v{vL}")
e(f"v_mov_b32 v{NV}, 0")
e(f"s_cmp_eq_u32 s{sW}, 15")
e("s_cbranch_scc0 L_f_nont")
e(f"buffer_load_dword v{NV}, v{NV+1}, {srd(S_DBG)}, 0 offen sc1")
lab("L_f_nont")
wait_cnt(FCNT, 8)
for s_ in range(8):
    e(f"ds_read_b64_tr_b16 {vr(WF+4*s_,2)}, v{vT[6]} offset:{s_*1024}")
    e(f"ds_read_b64_tr_b16 {vr(WF+4*s_+2,2)}, v{vT[6]} offset:{s_*1024+256}")
def rowreg(s_): return (ACC + 4*s_) if s_ < 4 else (QF + 4*(s_-4))
D1 = 96
e(f"v_lshrrev_b32 v{vT[3]}, 5, v{vL}           ; hi")
e(f"s_cmp_eq_u32 s{sQ}, {QP}")
e("s_cbranch_scc0 L_f_h1")
c("P' task: rows m: slot = m&7, g' = m>>3 ; node = 5*(4B + g') + max(slot-3,0)")
e(f"v_and_b32 v{vT[0]}, 7, v{vL}")
e(f"v_subrev_u32 v{vT[0]}, 3, v{vT[0]}")
e(f"v_max_i32 v{vT[0]}, 0, v{vT[0]}")
e(f"v_bfe_u32 v{vT[1]}, v{vL}, 3, 2")
e(f"v_mad_u32_u24 v{vT[0]}, v{vT[1]}, 5, v{vT[0]}        ; node (B=0)")
row_addr(vT[1], vT[0], vT[3], vT[2])
e(f"v_add_u32 v{vT[0]}, 20, v{vT[0]}")
vR2 = 114
row_addr(vR2, vT[0], vT[3], vT[2])
for s_ in range(8):
    e(f"v_xor_b32 v{vT[2]}, {s_<<5}, v{vT[1]}")
    e(f"ds_read_b128 {vr(rowreg(s_),4)}, v{vT[2]}")
def zero_stage():
    c("zero own staging area (8 KB) once the fragments are in registers")
    for i in range(4): e(f"v_mov_b32 v{116+i}, 0")
    e(f"v_lshlrev_b32 v{vT[0]}, 4, v{vL}")
    e(f"v_add_u32 v{vT[0]}, s{sT2}, v{vT[0]}")
c("K1B: (wd, we) scaled, hi and lo parts")
e(f"s_mov_b32 s{sT0}, 0x{NLOG2E:08x}")
e(f"s_mov_b32 s{sT1}, 0xffff0000")
k0, k1, k2, k3 = 116, 117, 118, 119
e(f"v_lshlrev_b32 v{k0}, 16, v{KB}")
e(f"v_lshlrev_b32 v{k1}, 16, v{KB+1}")
e(f"v_mul_f32 v{k0}, s{sT0}, v{k0}")
e(f"v_mul_f32 v{k1}, s{sT0}, v{k1}")
e(f"v_cvt_pk_bf16_f32 v{KB}, v{k0}, v{k1}")
e(f"v_lshlrev_b32 v{k2}, 16, v{KB}")
e(f"v_and_b32 v{k3}, s{sT1}, v{KB}")
e(f"v_sub_f32 v{k0}, v{k0}, v{k2}")
e(f"v_sub_f32 v{k1}, v{k1}, v{k3}")
e(f"v_cvt_pk_bf16_f32 v{KB+1}, v{k0}, v{k1}")
zero_stage()
e("s_waitcnt lgkmcnt(8)")
for i in range(8):
    e(f"ds_write_b128 v{vT[0]}, {vr(116,4)} offset:{i*1024}")
c("row block 0 (rows landed after the 8 zero writes are queued: in-order LDS)")
e("s_waitcnt lgkmcnt(8)")
for s_ in range(8):
    mfma(FACC, rowreg(s_), WF+4*s_, "0" if s_ == 0 else vr(FACC,16))
    e(f"v_xor_b32 v{vT[2]}, {s_<<5}, v{vR2}")
    e(f"ds_read_b128 {vr(rowreg(s_),4)}, v{vT[2]}")
for s_ in range(8):
    e(f"s_waitcnt lgkmcnt({7-s_})")
    mfma(D1, rowreg(s_), WF+4*s_, "0" if s_ == 0 else vr(D1,16))
c("P' write: BXP + g*2048 + (32ct + n)*16 + hi*8 ; hi=0 lanes: slots 0,1 = (wd,we) hi ; slot 2 = wd lo ; slot 3 = P'[j=0]")
e(f"v_and_b32 v{vT[0]}, 31, v{vL}")
e(f"v_lshlrev_b32 v{vT[0]}, 4, v{vT[0]}")
e(f"v_lshl_add_u32 v{vT[0]}, v{vT[3]}, 3, v{vT[0]}")
e(f"s_lshl_b32 s{sT0}, s{sCT}, 9")
e(f"s_add_u32 s{sT0}, s{sT0}, {BXP}")
e(f"v_add_u32 v{vT[0]}, s{sT0}, v{vT[0]}")
e(f"v_cmp_gt_u32 vcc, 32, v{vL}")
e(f"v_mov_b32 v{vT[1]}, 0xffff0000")
e(f"v_cndmask_b32 v{vT[1]}, -1, v{vT[1]}, vcc         ; mask M")
e(f"v_and_b32 v{KB+1}, 0xffff, v{KB+1}")
e(f"v_cndmask_b32 v{KB+1}, 0, v{KB+1}, vcc")
e(f"s_mov_b32 s{sK2}, 0x{NLOG2E:08x}")
def pwrite(r0, g):
    for i in range(4):
        e(f"v_mul_f32 v{r0+i}, s{sK2}, v{r0+i}")
    e(f"v_cvt_pk_bf16_f32 v{r0}, v{r0}, v{r0+1}")
    e(f"v_cvt_pk_bf16_f32 v{r0+1}, v{r0+2}, v{r0+3}")
    e(f"v_cndmask_b32 v{r0}, v{r0}, v{KB}, vcc")
    e(f"v_and_or_b32 v{r0+1}, v{r0+1}, v{vT[1]}, v{KB+1}")
    e(f"ds_write_b64 v{vT[0]}, {vr(r0,2)} offset:{g*2048}")
for g in range(4):
    pwrite(FACC+4*g, g)
e("s_nop 3")
for g in range(4):
    pwrite(D1+4*g, 4+g)
e("s_branch L_f_done")
lab("L_f_h1")
c("H1 A: rows n = 0..31 as B operand ; H1 B: rows min(32+n,39) as A operand")
e(f"v_and_b32 v{vT[4]}, 31, v{vL}")
row_addr(vT[1], vT[4], vT[3], vT[2])
e(f"v_add_u32 v{vT[4]}, 32, v{vT[4]}")
e(f"v_min_u32 v{vT[4]}, 39, v{vT[4]}")
row_addr(vR2, vT[4], vT[3], vT[2])
for s_ in range(8):
    e(f"v_xor_b32 v{vT[2]}, {s_<<5}, v{vT[1]}")
    e(f"ds_read_b128 {vr(rowreg(s_),4)}, v{vT[2]}")
zero_stage()
e("s_waitcnt lgkmcnt(8)")
for i in range(8):
    e(f"ds_write_b128 v{vT[0]}, {vr(116,4)} offset:{i*1024}")
e("s_waitcnt lgkmcnt(8)")
for s_ in range(8):
    mfma(FACC, WF+4*s_, rowreg(s_), "0" if s_ == 0 else vr(FACC,16))
    e(f"v_xor_b32 v{vT[2]}, {s_<<5}, v{vR2}")
    e(f"ds_read_b128 {vr(rowreg(s_),4)}, v{vT[2]}")
for s_ in range(8):
    e(f"s_waitcnt lgkmcnt({7-s_})")
    mfma(D1, rowreg(s_), WF+4*s_, "0" if s_ == 0 else vr(D1,16))
e(f"s_mov_b32 s{sK2}, 0x{NLOG2E:08x}")
for r in range(16):
    e(f"v_mul_f32 v{FACC+r}, s{sK2}, v{FACC+r}")
e("s_nop 3")
for r in range(4):
    e(f"v_mul_f32 v{FB+r}, s{sK2}, v{D1+r}")
c("wave 15: nonce table complete?")
e(f"s_cmp_eq_u32 s{sW}, 15")
e("s_cbranch_scc0 L_f_done")
e(f"s_mov_b32 s{sCNT}, 0")
lab("L_npoll")
e("s_waitcnt vmcnt(0)")
stamp_dyn(32, sCNT)
e(f"v_cmp_eq_u32 vcc, 0, v{NV}")
e("s_bitset0_b32 vcc_hi, 31")
e("s_cmp_eq_u64 vcc, 0")
e("s_cbranch_scc1 L_npoll_ok")
e(f"s_sleep {NSL}")
e(f"s_add_u32 s{sCNT}, s{sCNT}, 1")
e(f"buffer_load_dword v{NV}, v{NV+1}, {srd(S_DBG)}, 0 offen sc1")
e(f"s_cmp_lt_u32 s{sCNT}, {NPOLL}")
e("s_cbranch_scc1 L_npoll")
e("s_waitcnt vmcnt(0)")
e(f"v_mov_b32 v{vT[0]}, {OVF}")
e(f"v_mov_b32 v{vT[1]}, 3")
e(f"ds_or_b32 v{vT[0]}, v{vT[1]}")
lab("L_npoll_ok")
e(f"v_add_u32 v{vT[0]}, {NTAB}, v{NV+1}")
e(f"ds_write_b32 v{vT[0]}, v{NV}")
e(f"v_mov_b32 v{vT[0]}, {NOK}")
e(f"v_mov_b32 v{vT[1]}, 1")
e("s_waitcnt lgkmcnt(0)")
e(f"ds_write_b32 v{vT[0]}, v{vT[1]}")
lab("L_f_done")
stamp("front done", 5)

lab("L_common")
e(f"s_lshr_b32 s{sG}, s{sW}, 1")
e(f"s_and_b32 s{sCH2}, s{sW}, 1")
e(f"s_mul_i32 s{sGB}, s{sG}, {GSTR}")
e(f"s_lshl_b32 s{sB0}, s{sW}, 12")
e(f"s_add_u32 s{sB0}, s{sB0}, {QT}")
e(f"s_add_u32 s{sB1}, s{sB0}, 2048")
c("lane constants (REC rows swizzled: 16-B chunk c of row with rank p at position c ^ ((p>>2)&3))")
e(f"v_lshrrev_b32 v{vT[3]}, 5, v{vL}           ; hi")
e(f"v_lshrrev_b32 v{vT[4]}, 3, v{vL}")
e(f"v_lshlrev_b32 v{vLK}, 6, v{vT[4]}")
e(f"v_xor_b32 v{vT[4]}, 1, v{vT[3]}")
e(f"v_lshl_add_u32 v{vLK}, v{vT[4]}, 4, v{vLK}")
e(f"s_add_u32 s{sT0}, s{sGB}, {REC}")
e(f"v_add_u32 v{vLK}, s{sT0}, v{vLK}")
e(f"v_and_b32 v{vT[5]}, 7, v{vL}")
e(f"v_bfe_u32 v{vT[6]}, v{vL}, 4, 1")
e(f"v_lshlrev_b32 v{vT[4]}, 2, v{vT[6]}")
e(f"v_xor_b32 v{vT[5]}, v{vT[5]}, v{vT[4]}")
e(f"v_lshlrev_b32 v{vQD}, 4, v{vT[5]}")
e(f"s_lshl_b32 s{sT1}, s{sCH2}, 7")
e(f"v_add_u32 v{vQD}, s{sT1}, v{vQD}            ; ch*128 + (((l&7) ^ 4*((l>>4)&1))<<4)")
c("vT6 = colhalf ; r = (l>>2)&3 ; c4 = l&3")
e(f"v_bfe_u32 v{vT[4]}, v{vL}, 2, 2            ; r")
e(f"v_and_b32 v{vT[5]}, 3, v{vL}")
e(f"v_lshlrev_b32 v{vT[2]}, 5, v{vT[6]}")
e(f"v_lshl_add_u32 v{vT[2]}, v{vT[5]}, 3, v{vT[2]}   ; colhalf*32 + c4*8")
e(f"v_lshl_add_u32 v{vTRQ0}, v{vT[3]}, 3, v{vT[4]}   ; 8hi + r")
e(f"v_lshl_add_u32 v{vTRQ0}, v{vTRQ0}, 7, v{vT[2]}")
e(f"v_bfe_u32 v{vT[5]}, v{vL}, 3, 1            ; (r>>1)&1")
e(f"v_lshl_add_u32 v{vTRQ0}, v{vT[5]}, 6, v{vTRQ0}")
e(f"v_add_u32 v{vTRQ0}, s{sB0}, v{vTRQ0}")
e(f"v_xor_b32 v{vTRQ1}, 64, v{vTRQ0}")
c("vTRS = REC + g*GSTR + (4hi + r)*64 + ((colhalf*32 + c4*8) ^ (hi<<4))")
e(f"v_lshlrev_b32 v{vT[5]}, 4, v{vT[3]}")
e(f"v_xor_b32 v{vT[2]}, v{vT[2]}, v{vT[5]}")
e(f"v_lshl_add_u32 v{vTRS}, v{vT[3]}, 2, v{vT[4]}    ; 4hi + r")
e(f"v_lshl_add_u32 v{vTRS}, v{vTRS}, 6, v{vT[2]}")
e(f"v_add_u32 v{vTRS}, s{sT0}, v{vTRS}")
c("OHD: lanes 0..15 and 48..63 read chunk 0 of row (l&15) at position (row>>2)&3; others read ZERO16")
e(f"v_and_b32 v{vT[4]}, 15, v{vL}")
e(f"v_bfe_u32 v{vT[5]}, v{vL}, 2, 2")
e(f"v_lshlrev_b32 v{vT[4]}, 6, v{vT[4]}")
e(f"v_lshl_add_u32 v{vT[4]}, v{vT[5]}, 4, v{vT[4]}")
e(f"v_add_u32 v{vT[4]}, s{sT0}, v{vT[4]}")
e(f"v_cmp_eq_u32 vcc, v{vT[3]}, v{vT[6]}")
e(f"v_mov_b32 v{vT[5]}, {ZERO16}")
e(f"v_cndmask_b32 v{vOD}, v{vT[5]}, v{vT[4]}, vcc")
e(f"v_mov_b32 v{vT[4]}, 1024")
e(f"v_cndmask_b32 v{vODM}, 0, v{vT[4]}, vcc")
RA = 48; RB = 52; vGA = 88
PS = [56, 58, 60, 62]
VI = [80, 81, 82, 83]
VR = [84, 85, 86, 87]
vOne = 89
qP = 90
MK = [sM0, sM1, sPA, sPB]
e(f"s_mov_b32 s{sNODE}, 1")
e(f"s_cmp_ge_u32 s{sW}, 8")
e("s_cbranch_scc1 L_frec")
c("---- R waves: no records ; wave 7 waits for the Q / WH2F flags once the records have landed")
for m in MK: e(f"s_mov_b64 {sp(m)}, 0")
e(f"s_cmp_eq_u32 s{sW}, 7")
e("s_cbranch_scc0 L_ba")
e("s_setprio 0")
wait_cnt(RLAND, QST)
e(f"v_mov_b32 v{vT[0]}, {NTAB}")
e(f"ds_read_b32 v{vT[1]}, v{vT[0]}")
e(f"v_lshlrev_b32 v{vT[4]}, 4, v{vL}")
e(f"s_mov_b32 s{sCNT}, 0")
e(f"s_mov_b32 s{sT2}, {FLG}")
e("s_waitcnt lgkmcnt(0)")
e(f"v_readfirstlane_b32 s{sNON}, v{vT[1]}")
if FORCE == "fb":
    e(f"s_xor_b32 s{sNON}, s{sNON}, 2")
e("s_mov_b32 exec_lo, -1")
e("s_mov_b32 exec_hi, 0xff")
lab("L_qpoll")
e(f"buffer_load_dwordx4 {vr(RA,4)}, v{vT[4]}, {srd(S_WS)}, s{sT2} offen sc1")
e(f"s_add_u32 s{sCNT}, s{sCNT}, 1")
e("s_waitcnt vmcnt(0)")
stamp_dyn(19, sCNT)
for k in range(4):
    e(f"v_xor_b32 v{RA+k}, s{sNON}, v{RA+k}")
e(f"v_or3_b32 v{RA}, v{RA}, v{RA+1}, v{RA+2}")
e(f"v_or_b32 v{RA}, v{RA}, v{RA+3}")
e(f"v_cmp_ne_u32 vcc, 0, v{RA}")
e("s_cmp_eq_u64 vcc, 0")
e("s_cbranch_scc1 L_qp_ok")
e(f"s_sleep {QSL}")
e(f"s_cmp_lt_u32 s{sCNT}, {NPOLL}")
e("s_cbranch_scc1 L_qpoll")
e(f"v_mov_b32 v{vT[0]}, {OVF}")
e(f"v_mov_b32 v{vT[1]}, 2")
e(f"ds_or_b32 v{vT[0]}, v{vT[1]}")
lab("L_qp_ok")
e("s_mov_b64 exec, -1")
e("s_branch L_ba")
lab("L_frec")
c("---- F waves: granule (16 B, two records) per lane: c = 8fw + (l>>3), q = l&7 : c*32000 + q*16 (+ b*128)")
e("s_waitcnt lgkmcnt(0)")
arrive(FCNT2)
e(f"s_sub_u32 s{sT0}, s{sW}, 8")
e(f"s_lshl_b32 s{sT0}, s{sT0}, 3")
e(f"v_lshrrev_b32 v{vT[4]}, 3, v{vL}")
e(f"v_add_u32 v{vT[4]}, s{sT0}, v{vT[4]}          ; c")
e(f"v_mul_u32_u24 v{vGA}, {CHB}, v{vT[4]}")
e(f"v_and_b32 v{vT[5]}, 7, v{vL}")
e(f"v_lshl_add_u32 v{vGA}, v{vT[5]}, 4, v{vGA}")
e(f"v_cmp_gt_u32 {sp(sPA)}, {NCH}, v{vT[4]}")
e(f"s_lshl_b32 s{sT2}, s2, 7")
e(f"s_add_u32 s{sT3}, s{sT2}, {CELLB}")
e(f"s_mov_b64 {sp(sPB)}, {sp(sPA)}")
e(f"s_mov_b64 {sp(sEX)}, {sp(sPA)}")
vNON = 16; vTAG = 17
e(f"v_lshlrev_b32 v{vT[4]}, 2, v{vT[4]}")
e(f"v_add_u32 v{vT[4]}, {NTAB}, v{vT[4]}")
wait_cnt(NOK, 0, nz=True)
e(f"ds_read_b32 v{vNON}, v{vT[4]}")
e(f"s_mov_b32 s{sT0}, 0x9E3779B1")
e("s_waitcnt lgkmcnt(0)")
e(f"v_mul_lo_u32 v{vTAG}, v{vNON}, s{sT0}")
e(f"v_lshrrev_b32 v{vTAG}, 23, v{vTAG}")
if FORCE == "ovf":
    e(f"v_xor_b32 v{vTAG}, 1, v{vTAG}")
e(f"s_mov_b32 s{sCNT}, 0")
stamp("B3", 7)
_st[0] = 8
e(f"s_mov_b64 {sp(sM2)}, {sp(sPB)}")
lab("L_rpoll")
e(f"s_cmp_eq_u64 {sp(sPA)}, 0")
e("s_cbranch_scc1 L_rp_noa")
e(f"s_mov_b64 exec, {sp(sPA)}")
e(f"buffer_load_dwordx4 {vr(RA,4)}, v{vGA}, {srd(S_WS)}, s{sT2} offen sc1")
lab("L_rp_noa")
e(f"s_cmp_eq_u64 {sp(sM2)}, 0")
e("s_cbranch_scc1 L_rp_nob")
e(f"s_mov_b64 exec, {sp(sM2)}")
e(f"buffer_load_dwordx4 {vr(RB,4)}, v{vGA}, {srd(S_WS)}, s{sT3} offen sc1")
lab("L_rp_nob")
e("s_mov_b64 exec, -1")
e(f"s_add_u32 s{sCNT}, s{sCNT}, 1")
e("s_waitcnt vmcnt(0)")
stamp_dyn(19, sCNT)
e(f"v_lshrrev_b32 v{vT[0]}, 23, v{RA}")
e(f"v_lshrrev_b32 v{vT[1]}, 23, v{RB}")
e(f"v_cmp_eq_u32 vcc, v{vNON}, v{RA+3}")
e(f"v_cmp_eq_u32 {sp(sM0)}, v{vTAG}, v{vT[0]}")
e(f"v_cmp_eq_u32 {sp(sM1)}, v{vNON}, v{RB+3}")
e(f"v_cmp_eq_u32 {sp(sM2)}, v{vTAG}, v{vT[1]}")
e(f"v_bfe_u32 v{vT[0]}, v{RA}, 21, 1")
e(f"s_and_b64 vcc, vcc, {sp(sM0)}                ; A ok")
e(f"s_andn2_b64 {sp(sPA)}, {sp(sPA)}, vcc")
e(f"s_and_b64 {sp(sM1)}, {sp(sM1)}, {sp(sM2)}      ; B ok")
e(f"s_andn2_b64 {sp(sPB)}, {sp(sPB)}, {sp(sM1)}")
e(f"v_cmp_ne_u32 vcc, 0, v{vT[0]}                ; more")
e(f"s_andn2_b64 vcc, vcc, {sp(sPA)}")
if BSPEC:
    e(f"s_or_b64 vcc, vcc, {sp(sPA)}")
e(f"s_and_b64 {sp(sM2)}, {sp(sPB)}, vcc")
e(f"s_or_b64 vcc, {sp(sPA)}, {sp(sM2)}")
e("s_cmp_eq_u64 vcc, 0")
e("s_cbranch_scc1 L_rp_ok")
e(f"s_sleep {RSL}")
e(f"s_cmp_lt_u32 s{sCNT}, {NPOLL}")
e("s_cbranch_scc1 L_rpoll")
c("timed out: take the slow path")
e(f"v_mov_b32 v{vT[0]}, {OVF}")
e(f"v_mov_b32 v{vT[1]}, 1")
e(f"ds_or_b32 v{vT[0]}, v{vT[1]}")
e(f"s_andn2_b64 {sp(sEX)}, {sp(sEX)}, vcc")
lab("L_rp_ok")
e("s_mov_b64 exec, -1")
arrive(RLAND)
stamp("records landed")
c("masks: a,b = valid bits of granule A ; c,d = valid bits of granule B & more")
RCS = [RA, RA+1, RB, RB+1]
e(f"v_bfe_u32 v{vT[0]}, v{RA}, 20, 1")
e(f"v_bfe_u32 v{vT[1]}, v{RA+1}, 20, 1")
e(f"v_bfe_u32 v{vT[2]}, v{RB}, 20, 1")
e(f"v_bfe_u32 v{vT[3]}, v{RB+1}, 20, 1")
e(f"v_bfe_u32 v{vT[4]}, v{RA}, 21, 1")
e(f"v_bfe_u32 v{vT[5]}, v{RA}, 22, 1")
e(f"v_and_b32 v{vT[2]}, v{vT[2]}, v{vT[4]}")
e(f"v_and_b32 v{vT[3]}, v{vT[3]}, v{vT[4]}")
for k in range(4):
    e(f"v_cmp_ne_u32 {sp(MK[k])}, 0, v{vT[k]}")
e(f"v_cmp_ne_u32 {sp(sM2)}, 0, v{vT[5]}")
for k in range(4):
    e(f"s_and_b64 {sp(MK[k])}, {sp(MK[k])}, {sp(sEX)}")
e(f"s_and_b64 {sp(sM2)}, {sp(sM2)}, {sp(sEX)}")
e(f"v_mov_b32 v{vOne}, 1")
e(f"s_mov_b32 s{sT0}, {ALLOC}")
VS = [91, 92, 93, 94]
def s1_issue(k):
    e(f"v_and_b32 v{VS[k]}, 0x3fff, v{RCS[k]}")
    e(f"v_mul_u32_u24 v{vT[0]}, 6, v{VS[k]}")
    e(f"v_and_b32 v{vT[0]}, -4, v{vT[0]}")
    e(f"v_bfe_u32 v{VI[k]}, v{RCS[k]}, 14, 3")
    e(f"v_lshl_add_u32 v{vT[1]}, v{VI[k]}, 2, s{sT0}")
    e(f"s_mov_b64 exec, {sp(MK[k])}")
    e(f"buffer_load_dwordx2 {vr(PS[k],2)}, v{vT[0]}, {srd(S_POS)}, 0 offen")
    e(f"ds_add_rtn_u32 v{VR[k]}, v{vT[1]}, v{vOne}")
    e("s_mov_b64 exec, -1")
    e(f"v_mul_u32_u24 v{VI[k]}, {GSTR}, v{VI[k]}")
c("REC must be zero before placement (all F waves have zeroed their staging)")
wait_cnt(FCNT2, 8, dst=sT1)
for k in range(4):
    e(f"s_cmp_eq_u64 {sp(MK[k])}, 0")
    e(f"s_cbranch_scc1 L_s1i{k}")
    s1_issue(k)
    lab(f"L_s1i{k}")
e(f"s_cmp_eq_u64 {sp(sM2)}, 0")
e("s_cbranch_scc1 L_s1_noovf")
e(f"v_mov_b32 v{vT[0]}, {OVF}")
e(f"ds_or_b32 v{vT[0]}, v{vOne}")
lab("L_s1_noovf")
def s1_place(vR, vI, vS, msk, tag, slow=False):
    e(f"v_cmp_gt_u32 vcc, {CAP}, v{vR}")
    e(f"v_lshl_add_u32 v{vI}, v{vR}, 6, v{vI}")
    e(f"v_bfe_u32 v{vR}, v{vR}, 2, 2")
    e(f"v_lshl_add_u32 v{vI}, v{vR}, 4, v{vI}")
    e(f"v_xor_b32 v{vR}, 16, v{vI}")
    e(f"s_andn2_b64 exec, {sp(msk)}, vcc")
    e(f"s_cbranch_execz L_s1_ok{tag}")
    if slow:
        e(f"v_mov_b32 v{qP}, 1")
        e(f"v_mov_b32 v{vT[0]}, {PEND}")
        e(f"ds_write_b32 v{vT[0]}, v{vOne}")
    else:
        e(f"v_mov_b32 v{vT[0]}, {OVF}")
        e(f"ds_or_b32 v{vT[0]}, v{vOne}")
    lab(f"L_s1_ok{tag}")
    e(f"s_and_b64 {sp(msk)}, {sp(msk)}, vcc")
    e(f"s_mov_b64 exec, {sp(msk)}")
    e(f"ds_write_b16 v{vR}, v{vS} offset:{REC}")
    e("s_mov_b64 exec, -1")
e("s_waitcnt lgkmcnt(0)")
for k in range(4):
    e(f"s_cmp_eq_u64 {sp(MK[k])}, 0")
    e(f"s_cbranch_scc1 L_s1p{k}")
    s1_place(VR[k], VI[k], VS[k], MK[k], "abcd"[k])
    lab(f"L_s1p{k}")
def dma_issue(va, vb, sbuf):
    e(f"v_lshl_add_u32 v{va}, v{va}, 8, v{vQD}")
    e(f"v_lshl_add_u32 v{vb}, v{vb}, 8, v{vQD}")
    e(f"s_mov_b32 m0, s{sbuf}")
    e(f"s_nop 0")
    e(f"buffer_load_dwordx4 v{va}, {srd(S_Q)}, 0 offen{QSC} lds")
    e(f"s_add_u32 m0, s{sbuf}, 1024")
    e(f"s_nop 0")
    e(f"buffer_load_dwordx4 v{vb}, {srd(S_Q)}, 0 offen{QSC} lds")
lab("L_st2")
c("stage 2 (sparse, up to four records per lane)")
PD = [96, 100, 112, 116]
e(f"s_mov_b32 s{sT0}, {PTF}")
e(f"s_mov_b32 s{sK2}, 0xffff0000")
e(f"v_mov_b32 v{vT[6]}, 0x3f80")
for k in range(4):
    e(f"s_cmp_eq_u64 {sp(MK[k])}, 0")
    e(f"s_cbranch_scc1 L_s2r{k}")
    e(f"v_bfe_u32 v{vT[4]}, v{RCS[k]}, 14, 3")
    e(f"v_bfe_u32 v{vT[5]}, v{RCS[k]}, 17, 3")
    e(f"v_mad_u32_u24 v{vT[5]}, v{vT[4]}, 5, v{vT[5]}        ; k = 5g + j")
    e(f"v_min_u32 v{vT[5]}, 39, v{vT[5]}")
    e(f"v_lshl_add_u32 v{vT[5]}, v{vT[5]}, 4, s{sT0}")
    e(f"ds_read_b128 {vr(PD[k],4)}, v{vT[5]}")
    lab(f"L_s2r{k}")
e("s_waitcnt vmcnt(0) lgkmcnt(0)")
stamp("pos landed", 12)
def stage2_pass(rec, ea, hi_half, ps, pd, row, msk, tag):
    X = [104, 105, 106, 107, 108, 109]
    e(f"s_cmp_eq_u64 {sp(msk)}, 0")
    e(f"s_cbranch_scc1 L_s2_done{tag}")
    e(f"s_mov_b64 exec, {sp(msk)}")
    e(f"v_and_b32 v{X[0]}, 1, v{rec}")
    e(f"v_lshlrev_b32 v{X[0]}, 4, v{X[0]}        ; shift")
    e(f"v_alignbit_b32 v{X[1]}, v{ps+1}, v{ps}, v{X[0]}     ; x | y<<16")
    e(f"v_lshrrev_b32 v{X[2]}, v{X[0]}, v{ps+1}              ; z (low 16)")
    e(f"v_lshlrev_b32 v{ps}, 16, v{X[1]}")
    e(f"v_and_b32 v{ps+1}, s{sK2}, v{X[1]}")
    e(f"v_lshlrev_b32 v{X[2]}, 16, v{X[2]}")
    e(f"v_sub_f32 v{pd}, v{pd}, v{ps}")
    e(f"v_sub_f32 v{pd+1}, v{pd+1}, v{ps+1}")
    e(f"v_sub_f32 v{pd+2}, v{pd+2}, v{X[2]}")
    e(f"v_cvt_pk_bf16_f32 v{X[0]}, v{pd}, v{pd+1}")
    e(f"v_cvt_pk_bf16_f32 v{X[1]}, v{pd+2}, v{pd+2}     ; dz")
    e(f"v_bfe_u32 v{X[3]}, v{rec}, 17, 3")
    e(f"v_lshl_add_u32 v{X[3]}, v{X[3]}, 1, v{row}")
    e(f"v_xor_b32 v{X[5]}, 16, v{X[3]}")
    e(f"ds_write_b16 v{X[3]}, v{vT[6]} offset:{REC+6}")
    e(f"ds_write_b16 v{X[5]}, v{X[0]} offset:{REC+6}")
    e(f"v_xor_b32 v{X[5]}, 32, v{X[3]}")
    e(f"v_xor_b32 v{X[3]}, 48, v{X[3]}")
    e(f"ds_write_b16_d16_hi v{X[5]}, v{X[0]} offset:{REC+6}")
    e(f"ds_write_b16 v{X[3]}, v{X[1]} offset:{REC+6}")
    e(f"v_lshlrev_b32 v{pd}, 16, v{X[0]}")
    e(f"v_and_b32 v{pd+1}, s{sK2}, v{X[0]}")
    e(f"v_lshlrev_b32 v{pd+2}, 16, v{X[1]}")
    for k in range(3):
        e(f"v_mul_f32 v{pd+k}, v{pd+k}, v{pd+k}")
    e(f"v_cvt_pk_bf16_f32 v{X[2]}, v{pd}, v{pd+1}")
    e(f"v_cvt_pk_bf16_f32 v{X[4]}, v{pd+2}, v{pd+2}")
    e(f"v_lshlrev_b32 v{pd}, 16, v{X[2]}")
    e(f"v_and_b32 v{pd+1}, s{sK2}, v{X[2]}")
    e(f"v_lshlrev_b32 v{pd+2}, 16, v{X[4]}")
    e(f"v_add_f32 v{pd}, v{pd}, v{pd+1}")
    e(f"v_add_f32 v{pd}, v{pd}, v{pd+2}")
    e(f"v_cvt_pk_bf16_f32 v{X[2]}, v{pd}, 0")
    if hi_half:
        e(f"v_and_or_b32 v{X[4]}, v{ea}, s{sK2}, v{X[2]}")
    else:
        e(f"v_lshl_or_b32 v{X[4]}, v{ea}, 16, v{X[2]}")
    e(f"ds_write_b32 v{row}, v{X[4]} offset:{REC}")
    e(f"ds_write_b16 v{row}, v{X[2]} offset:{REC+4}")
    e("s_mov_b64 exec, -1")
    lab(f"L_s2_done{tag}")
for k in range(4):
    stage2_pass(RCS[k], [RA+2, RB+2][k>>1], k & 1, PS[k], PD[k], VI[k], MK[k], "abcd"[k])
stamp("stage2 done", 13)
lab("L_ba")
stamp("placed+Q", 9)
if not NOPRIO: e("s_setprio 0")
e(f"s_waitcnt lgkmcnt(0)")
e("s_barrier")
stamp("BA", 10)

lab("L_post")
c("count of own group, OVF, lookups for tiles 0,1")
e(f"s_lshl_b32 s{sT0}, s{sG}, 2")
e(f"s_add_u32 s{sT0}, s{sT0}, {ALLOC}")
e(f"v_mov_b32 v{vT[0]}, s{sT0}")
e(f"v_mov_b32 v{vT[1]}, {OVF}")
e(f"ds_read_b32 v{vT[2]}, v{vT[0]}")
e(f"ds_read_b32 v{vT[3]}, v{vT[1]}")
LK = [104, 105, 80, 81]
e(f"v_xor_b32 v{vT[4]}, 32, v{vLK}")
e(f"ds_read_u16 v{LK[0]}, v{vLK}")
e(f"ds_read_u16 v{LK[1]}, v{vT[4]} offset:512")
e(f"ds_read_u16 v{LK[2]}, v{vLK} offset:1024")
e(f"ds_read_u16 v{LK[3]}, v{vT[4]} offset:1536")
e(f"s_cmp_eq_u32 s{sMODE}, 0")
e("s_cbranch_scc1 L_post_fast")
c("slow path: skip quickly if nothing was placed in this pass")
e(f"v_mov_b32 v{vT[0]}, {ALLOC}")
e(f"ds_read_b128 {vr(96,4)}, v{vT[0]}")
e(f"ds_read_b128 {vr(100,4)}, v{vT[0]} offset:16")
e("s_waitcnt lgkmcnt(0)")
e(f"v_or3_b32 v96, v96, v97, v98")
e(f"v_or3_b32 v96, v96, v99, v100")
e(f"v_or3_b32 v96, v96, v101, v102")
e(f"v_or_b32 v96, v96, v103")
e("s_nop 0")
e(f"v_readfirstlane_b32 s{sT0}, v96")
e(f"v_readfirstlane_b32 s{sCO}, v{vT[2]}")
e("s_nop 3")
e(f"s_cmp_lg_u32 s{sT0}, 0")
e("s_cbranch_scc1 L_post_go")
e(f"s_mov_b32 s{sRETRY}, 0")
e("s_branch L_slow_adv")
lab("L_post_fast")
e("s_waitcnt lgkmcnt(4)")
e(f"v_readfirstlane_b32 s{sCO}, v{vT[2]}")
e(f"v_readfirstlane_b32 s{sT3}, v{vT[3]}           ; OVF")
e("s_nop 3")
e(f"s_cmp_lg_u32 s{sT3}, 0")
e("s_cbranch_scc1 L_slow_init")
lab("L_post_go")
e(f"s_min_u32 s{sCO}, s{sCO}, {CAP}")
e(f"s_add_u32 s{sNT}, s{sCO}, 15")
e(f"s_lshr_b32 s{sNT}, s{sNT}, 4")
e("s_waitcnt lgkmcnt(2)")
dma_issue(LK[0], LK[1], sB0)
stamp("dma0 issued", 11)
c("ID constants: lane (m,hi): step s elem i = (m == 16s + 8hi + i)")
e(f"v_and_b32 v{vT[4]}, 31, v{vL}")
e(f"v_lshrrev_b32 v{vT[5]}, 5, v{vL}")
e(f"v_lshlrev_b32 v{vT[5]}, 3, v{vT[5]}")
e(f"v_sub_u32 v{vT[4]}, v{vT[4]}, v{vT[5]}        ; x = m - 8hi")
e(f"v_mov_b32 v{vT[5]}, 0x3f80")
e(f"v_mov_b32 v{vT[6]}, 0x3f800000")
for s_ in range(2):
    for r in range(4):
        x0 = 16*s_ + 2*r
        e(f"v_cmp_eq_u32 vcc, {x0}, v{vT[4]}")
        e(f"v_cndmask_b32 v{ID+4*s_+r}, 0, v{vT[5]}, vcc")
        e(f"v_cmp_eq_u32 vcc, {x0+1}, v{vT[4]}")
        e(f"v_cndmask_b32 v{ID+4*s_+r}, v{ID+4*s_+r}, v{vT[6]}, vcc")
c("BXF address: BXP + g*2048 + (64ch + l)*16   (l = 32hi + n)")
e(f"s_lshl_b32 s{sT0}, s{sG}, 11")
e(f"s_lshl_b32 s{sT1}, s{sCH2}, 10")
e(f"s_add_u32 s{sT0}, s{sT0}, s{sT1}")
e(f"s_add_u32 s{sT0}, s{sT0}, {BXP}")
e(f"v_lshlrev_b32 v{vT[4]}, 4, v{vL}")
e(f"v_add_u32 v{vT[4]}, s{sT0}, v{vT[4]}")
c("SEG zero (first pass only)")
e(f"s_cmp_eq_u32 s{sNODE}, 0")
e("s_cbranch_scc1 L_noseg0")
e(f"s_mov_b32 s{sNODE}, 0")
for r in range(32):
    e(f"v_mov_b32 v{SEG+r}, 0")
lab("L_noseg0")
e("s_waitcnt lgkmcnt(0)")
dma_issue(LK[2], LK[3], sB1)
stamp("BB", 14)
_st[0] = 15
e(f"ds_read_b128 {vr(BXF,4)}, v{vT[4]}")
if not NOPRIO: e("s_setprio 3")
e(f"s_mov_b32 s{sU}, 0")
if XM:
    for i in range(4): e(f"v_mov_b32 v{124+i}, 0")
e("s_mov_b32 s6, 1.0")
e("s_mov_b32 s7, 1.0")
e(f"s_mov_b32 s{sREM}, s{sCO}")
e(f"s_mov_b32 s{sRT}, s{sNT}")
c("running pointers: vLK -> tile 2 ; working copies of vOD / vTRS")
vLKr, vODr, vTRSr, vTRSr2 = 92, 93, 94, 95
e(f"v_add_u32 v{vLKr}, 2048, v{vLK}")
e(f"v_mov_b32 v{vODr}, v{vOD}")
e(f"v_mov_b32 v{vTRSr}, v{vTRS}")
e(f"v_xor_b32 v{vTRSr2}, 32, v{vTRS}")

def tile_body(buf):
    tag = f"t{buf}"
    sBUF = [sB0, sB1][buf]
    bo = buf * 2048
    c(f"---- tile (buffer {buf}) ----")
    e(f"s_cmp_gt_u32 s{sRT}, 2")
    e(f"s_cselect_b32 s{sK3}, 1, 0")
    e(f"s_cbranch_scc0 L_nolk{tag}")
    e(f"v_xor_b32 v{vT[4]}, 32, v{vLKr}")
    e(f"ds_read_u16 v{vT[2]}, v{vLKr}")
    e(f"ds_read_u16 v{vT[3]}, v{vT[4]} offset:512")
    lab(f"L_nolk{tag}")
    e(f"ds_read_b128 {vr(OHD,4)}, v{vODr}")
    e(f"s_cmp_gt_u32 s{sRT}, 1")
    e(f"s_cbranch_scc1 L_w2{tag}")
    e("s_waitcnt vmcnt(0)")
    e(f"s_branch L_wd{tag}")
    lab(f"L_w2{tag}")
    e("s_waitcnt vmcnt(2)")
    lab(f"L_wd{tag}")
    e(f"ds_read_b64_tr_b16 {vr(QF,2)}, v{vTRQ0} offset:{bo}")
    e(f"ds_read_b64_tr_b16 {vr(QF+2,2)}, v{vTRQ0} offset:{bo+512}")
    e(f"ds_read_b64_tr_b16 {vr(QF+4,2)}, v{vTRQ1} offset:{bo}")
    e(f"ds_read_b64_tr_b16 {vr(QF+6,2)}, v{vTRQ1} offset:{bo+512}")
    e(f"ds_read_b64_tr_b16 {vr(SF,2)}, v{vTRSr}")
    e(f"ds_read_b64_tr_b16 {vr(SF+2,2)}, v{vTRSr2} offset:512")
    e(f"v_add_u32 v{vLKr}, 1024, v{vLKr}")
    e(f"v_add_u32 v{vODr}, v{vODM}, v{vODr}")
    e(f"v_add_u32 v{vTRSr}, 1024, v{vTRSr}")
    e(f"v_add_u32 v{vTRSr2}, 1024, v{vTRSr2}")
    e("s_waitcnt lgkmcnt(6)")
    mfma(ACC, OHD, BXF, "0")
    e("s_waitcnt lgkmcnt(4)")
    mfma(ACC, ID, QF, vr(ACC,16))
    e("s_waitcnt lgkmcnt(2)")
    mfma(ACC, ID+4, QF+4, vr(ACC,16))
    for _ in range(XM):
        mfma(ACC, 124, QF+4*(_&1), vr(ACC,16))
    e(f"s_cmp_eq_u32 s{sK3}, 0")
    e(f"s_cbranch_scc1 L_nodma{tag}")
    dma_issue(vT[2], vT[3], sBUF)
    lab(f"L_nodma{tag}")
    e("s_nop 7")
    e("s_nop 3")
    def blk(bb, t):
        a = ACC + 4*bb
        for i in range(4): e(f"v_exp_f32 v{t+i}, v{a+i}")
        if PK:
            for i in (0, 2): e(f"v_pk_add_f32 {vr(t+i,2)}, {vr(t+i,2)}, s[6:7]")
        else:
            for i in range(4): e(f"v_add_f32 v{t+i}, 1.0, v{t+i}")
        for i in range(4): e(f"v_rcp_f32 v{t+i}, v{t+i}")
        if PK:
            for i in (0, 2): e(f"v_pk_mul_f32 {vr(t+i,2)}, {vr(a+i,2)}, {vr(t+i,2)}")
        else:
            for i in range(4): e(f"v_mul_f32 v{t+i}, v{a+i}, v{t+i}")
        e(f"v_cvt_pk_bf16_f32 v{MP+2*bb}, v{t}, v{t+1}")
        e(f"v_cvt_pk_bf16_f32 v{MP+2*bb+1}, v{t+2}, v{t+3}")
    blk(0, TE); blk(2, TE+4)
    e(f"s_cmp_le_u32 s{sREM}, 8")
    e(f"s_cbranch_scc1 L_skip{tag}")
    blk(1, TE); blk(3, TE+4)
    e(f"s_branch L_blk{tag}")
    lab(f"L_skip{tag}")
    for r in (2, 3, 6, 7): e(f"v_mov_b32 v{MP+r}, 0")
    lab(f"L_blk{tag}")
    e("s_waitcnt lgkmcnt(0)")
    e("s_nop 1")
    mfma(SEG, MP, SF, vr(SEG,16))
    mfma(SEG+16, MP+4, SF, vr(SEG+16,16))
    e(f"s_sub_u32 s{sREM}, s{sREM}, 16")
    e(f"s_sub_u32 s{sRT}, s{sRT}, 1")
    if not NOPRIO:
        e(f"s_cmp_gt_u32 s{sRT}, 3")
        e(f"s_cbranch_scc1 L_pr{tag}")
        e(f"s_setprio 2")
        e(f"s_cmp_eq_u32 s{sRT}, 3")
        e(f"s_cbranch_scc1 L_pr{tag}")
        e(f"s_setprio 1")
        e(f"s_cmp_eq_u32 s{sRT}, 2")
        e(f"s_cbranch_scc1 L_pr{tag}")
        e(f"s_setprio 0")
        lab(f"L_pr{tag}")

e(f"s_cmp_eq_u32 s{sRT}, 0")
e("s_cbranch_scc1 L_tiles_done")
lab("L_tile_loop")
tile_body(0)
e(f"s_cmp_eq_u32 s{sRT}, 0")
e("s_cbranch_scc1 L_tiles_done")
tile_body(1)
e(f"s_cmp_lg_u32 s{sRT}, 0")
e("s_cbranch_scc1 L_tile_loop")
lab("L_tiles_done")
e("s_waitcnt vmcnt(0)")
if not NOPRIO: e("s_setprio 3")
stamp("tiles done")
e(f"s_cmp_eq_u32 s{sMODE}, 0")
e("s_cbranch_scc0 L_slow_next")

lab("L_final")
WFL = 80
ROW = 16
HRES = 112
HRB = 60
vN = vT[1]; vHI = vT[2]; vOFF = vT[3]; vRD_ = vT[4]
e(f"v_and_b32 v{vN}, 31, v{vL}")
e(f"v_lshrrev_b32 v{vHI}, 5, v{vL}")
e(f"v_mov_b32 v52, 0")
e(f"v_mov_b32 v53, 0")
c("late frags: QH: WH2F slice ct ; QC: wx frags")
e(f"s_cmp_eq_u32 s{sQ}, {QH}")
e("s_cbranch_scc0 L_f_wx")
e(f"s_lshl_b32 s{sT0}, s{sCT}, 13")
e(f"s_add_u32 s{sT0}, s{sT0}, {WH2F}")
e(f"s_add_u32 s{sT1}, s{sT0}, 4096")
e(f"v_lshlrev_b32 v{vT[0]}, 4, v{vL}")
for s_ in range(8):
    e(f"buffer_load_dwordx4 {vr(WFL+4*s_,4)}, v{vT[0]}, {srd(S_WS)}, s{[sT0,sT1][s_>>2]} offen offset:{(s_%4)*1024}{QSC}")
e("s_branch L_f_flush")
lab("L_f_wx")
e(f"s_cmp_eq_u32 s{sQ}, {QC}")
e("s_cbranch_scc0 L_f_flush")
e(f"v_lshlrev_b32 v{vT[0]}, 4, v{vHI}")
for s_ in range(8):
    e(f"buffer_load_dwordx4 {vr(WFL+4*s_,4)}, v{vT[0]}, {srd(S_WX)}, 0 offen offset:{s_*32}")
lab("L_f_flush")
c("flush: lane (f=n, hi): addr = QTw + h*2048 + f*64 + ((bb ^ ((f>>2)&3) ^ (g&3))<<4) + hi*8")
e(f"s_and_b32 s{sT0}, s{sG}, 3")
e(f"v_bfe_u32 v{vT[5]}, v{vN}, 2, 2")
e(f"v_xor_b32 v{vT[5]}, s{sT0}, v{vT[5]}")
e(f"v_lshlrev_b32 v{vT[5]}, 4, v{vT[5]}")
e(f"v_lshl_add_u32 v{vT[5]}, v{vN}, 6, v{vT[5]}")
e(f"v_lshl_add_u32 v{vT[5]}, v{vHI}, 3, v{vT[5]}")
e(f"v_add_u32 v{vT[5]}, s{sB0}, v{vT[5]}")
e("s_nop 7")
e("s_nop 3")
for h in range(2):
    for bb in range(4):
        r0 = SEG + 16*h + 4*bb
        e(f"v_cvt_pk_bf16_f32 v{r0}, v{r0}, v{r0+1}")
        e(f"v_cvt_pk_bf16_f32 v{r0+1}, v{r0+2}, v{r0+3}")
        if bb == 0:
            e(f"ds_write_b64 v{vT[5]}, {vr(r0,2)} offset:{h*2048}")
        else:
            e(f"v_xor_b32 v{vT[6]}, {bb<<4}, v{vT[5]}")
            e(f"ds_write_b64 v{vT[6]}, {vr(r0,2)} offset:{h*2048}")
c("per-role (node, comp) -> g, f ; addr = QT + g*8192 + f*64 + ((hi ^ ((f>>2)&3) ^ (g&3))<<4)")
vNODE = vT[5]; vCMP = vT[6]
def node_addr(dst, node, cmp_, t0, t1):
    e(f"v_mul_u32_u24 v{t1}, 52, v{node}")
    e(f"v_lshrrev_b32 v{t1}, 8, v{t1}             ; g")
    e(f"v_mul_u32_u24 v{t0}, 5, v{t1}")
    e(f"v_sub_u32 v{t0}, v{node}, v{t0}          ; j")
    if cmp_ is not None:
        e(f"v_lshl_add_u32 v{t0}, v{cmp_}, 3, v{t0}")
    e(f"v_add_u32 v{t0}, 3, v{t0}                 ; f")
    e(f"v_bfe_u32 v{dst}, v{t0}, 2, 2")
    e(f"v_xor_b32 v{dst}, v{dst}, v{vHI}")
    e(f"v_lshlrev_b32 v{t0}, 6, v{t0}")
    e(f"v_lshl_add_u32 v{t0}, v{t1}, 13, v{t0}")
    e(f"v_and_b32 v{t1}, 3, v{t1}")
    e(f"v_xor_b32 v{dst}, v{dst}, v{t1}")
    e(f"v_lshl_add_u32 v{dst}, v{dst}, 4, v{t0}")
    e(f"v_add_u32 v{dst}, {QT}, v{dst}")
e(f"s_mul_i32 s{sK3}, s2, 40")
e(f"s_cmp_eq_u32 s{sQ}, {QC}")
e("s_cbranch_scc1 L_f_roleC")
e(f"s_cmp_eq_u32 s{sQ}, {QH}")
e("s_cbranch_scc0 L_f_bar")
c("QH: role A (nodes n) and role B (nodes 32 + (n&7))")
vRDB = 52; vOFFB = 53; HB = 54
node_addr(vRD_, vN, None, vT[0], vT[7])
e(f"v_and_b32 v{vNODE}, 7, v{vN}")
e(f"v_add_u32 v{vNODE}, 32, v{vNODE}")
node_addr(vRDB, vNODE, None, vT[0], vT[7])
c("role A residual: h[node n][32ct + 8bb + 4hi..+3]: OWN + n*256 + (((ct*4+bb) ^ (n&15))<<4) + hi*8")
e(f"v_and_b32 v{vT[0]}, 15, v{vN}")
e(f"s_lshl_b32 s{sT0}, s{sCT}, 2")
e(f"v_xor_b32 v{vT[0]}, s{sT0}, v{vT[0]}")
e(f"v_lshlrev_b32 v{vT[0]}, 4, v{vT[0]}")
e(f"v_lshl_add_u32 v{vT[0]}, v{vN}, 8, v{vT[0]}")
e(f"v_lshl_add_u32 v{vT[0]}, v{vHI}, 3, v{vT[0]}")
e(f"v_add_u32 v{vT[0]}, {OWN}, v{vT[0]}")
for bb in range(4):
    e(f"v_xor_b32 v{vT[7]}, {bb<<4}, v{vT[0]}")
    e(f"ds_read_b64 {vr(HRES+2*bb,2)}, v{vT[7]}")
e(f"v_add_u32 v{vOFF}, s{sK3}, v{vN}")
e(f"v_lshlrev_b32 v{vOFF}, 8, v{vOFF}")
e(f"v_lshl_add_u32 v{vOFF}, v{vHI}, 3, v{vOFF}")
e(f"s_lshl_b32 s{sT0}, s{sCT}, 6")
e(f"v_add_u32 v{vOFF}, s{sT0}, v{vOFF}")
c("role B residual: rows 32+4hi+i, col 32ct+n: OWN + row*256 + (((ct*4 + (n>>3)) ^ (row&15))<<4) + (n&7)*2")
e(f"v_lshrrev_b32 v{vT[0]}, 3, v{vN}")
e(f"s_lshl_b32 s{sT0}, s{sCT}, 2")
e(f"v_add_u32 v{vT[0]}, s{sT0}, v{vT[0]}          ; chunk")
e(f"v_lshlrev_b32 v{vT[7]}, 2, v{vHI}             ; 4hi")
e(f"v_xor_b32 v{vT[0]}, v{vT[0]}, v{vT[7]}")
e(f"v_lshlrev_b32 v{vT[0]}, 4, v{vT[0]}")
e(f"v_lshl_add_u32 v{vT[0]}, v{vT[7]}, 8, v{vT[0]}   ; + 4hi*256")
e(f"v_and_b32 v{vT[5]}, 7, v{vN}")
e(f"v_lshl_add_u32 v{vT[0]}, v{vT[5]}, 1, v{vT[0]}")
e(f"v_add_u32 v{vT[0]}, {OWN + 32*256}, v{vT[0]}")
for i in range(4):
    e(f"v_xor_b32 v{vT[5]}, {i<<4}, v{vT[0]}")
    e(f"ds_read_u16 v{HB+i}, v{vT[5]} offset:{i*256}")
e(f"s_add_u32 s{sT0}, s{sK3}, 32")
e(f"v_add_u32 v{vOFFB}, s{sT0}, v{vT[7]}")
e(f"v_lshlrev_b32 v{vOFFB}, 8, v{vOFFB}")
e(f"v_lshl_add_u32 v{vOFFB}, v{vN}, 1, v{vOFFB}")
e(f"s_lshl_b32 s{sT0}, s{sCT}, 6")
e(f"v_add_u32 v{vOFFB}, s{sT0}, v{vOFFB}")
e("s_branch L_f_bar")
lab("L_f_roleC")
c("role C: n' = min(n,29); idx = 30ct + n' ; G = idx/15 ; r = idx%15 ; c = r/5 ; j = r%5 ; node = 5G + j ; comp = c+1")
e(f"v_min_u32 v{vT[0]}, 29, v{vN}")
e(f"v_cmp_lt_u32 vcc, 14, v{vT[0]}")
e(f"v_cndmask_b32 v{vT[7]}, 0, 1, vcc               ; G&1")
e(f"v_mul_u32_u24 v{vNODE}, 15, v{vT[7]}")
e(f"v_sub_u32 v{vT[0]}, v{vT[0]}, v{vNODE}          ; r")
e(f"v_mul_u32_u24 v{vCMP}, 52, v{vT[0]}")
e(f"v_lshrrev_b32 v{vCMP}, 8, v{vCMP}              ; c")
e(f"v_mul_u32_u24 v{vNODE}, 5, v{vCMP}")
e(f"v_sub_u32 v{vT[0]}, v{vT[0]}, v{vNODE}          ; j")
e(f"s_lshl_b32 s{sT0}, s{sCT}, 1")
e(f"v_add_u32 v{vT[7]}, s{sT0}, v{vT[7]}            ; G")
e(f"v_mad_u32_u24 v{vNODE}, v{vT[7]}, 5, v{vT[0]}")
e(f"v_add_u32 v{vCMP}, 1, v{vCMP}")
node_addr(vRD_, vNODE, vCMP, vT[0], vT[7])
c("role C: pos residual PTF[node][comp-1] ; out offset (40b + node)*6 + (comp-1)*2")
e(f"v_lshlrev_b32 v{vT[0]}, 4, v{vNODE}")
e(f"v_lshl_add_u32 v{vT[0]}, v{vCMP}, 2, v{vT[0]}")
e(f"v_add_u32 v{vT[0]}, {PTF-4}, v{vT[0]}")
e(f"ds_read_b32 v{HRES}, v{vT[0]}")
e(f"v_add_u32 v{vOFF}, s{sK3}, v{vNODE}")
e(f"v_mul_u32_u24 v{vOFF}, 6, v{vOFF}")
e(f"v_lshl_add_u32 v{vOFF}, v{vCMP}, 1, v{vOFF}")
e(f"v_subrev_u32 v{vOFF}, 2, v{vOFF}")
lab("L_f_bar")
e("s_waitcnt lgkmcnt(0)")
e("s_barrier")
stamp("final bar")
e(f"s_cmp_eq_u32 s{sQ}, {QC}")
e("s_cbranch_scc1 L_f_go")
e(f"s_cmp_eq_u32 s{sQ}, {QH}")
e("s_cbranch_scc0 L_end")
lab("L_f_go")
e(f"v_xor_b32 v{vT[0]}, 32, v{vRD_}")
for s_ in range(8):
    e(f"ds_read_b128 {vr(ROW+4*s_,4)}, v{[vRD_, vT[0]][s_&1]} offset:{(s_>>1)*2048}")
e(f"s_mov_b32 s{sK2}, 0x{NLN2:08x}")
e(f"s_mov_b32 s{sK3}, 0xffff0000")
e("s_waitcnt vmcnt(0)")
e(f"s_cmp_eq_u32 s{sQ}, {QC}")
e("s_cbranch_scc1 L_f_C")
c("role A")
e(f"v_xor_b32 v{vT[0]}, 32, v{vRDB}")
DB = 96
for s_ in range(8):
    e(f"s_waitcnt lgkmcnt(7)")
    mfma(FACC, WFL+4*s_, ROW+4*s_, vr(FACC,16))
    e(f"ds_read_b128 {vr(ROW+4*s_,4)}, v{[vRDB, vT[0]][s_&1]} offset:{(s_>>1)*2048}")
def final_silu(a, n, T):
    for i in range(n): e(f"v_exp_f32 v{T+i}, v{a+i}")
    for i in range(n): e(f"v_add_f32 v{T+i}, 1.0, v{T+i}")
    for i in range(n): e(f"v_rcp_f32 v{T+i}, v{T+i}")
    for i in range(n): e(f"v_mul_f32 v{a+i}, v{a+i}, v{T+i}")
c("role B accumulator: v112..127 would clash; use ACC (48..63) after saving vRDB/vOFFB/HB -> C input rows 0..7 = FB")
mvOFFB = vT[5]; mHB = 124
e(f"v_mov_b32 v{mvOFFB}, v{vOFFB}")
HB2 = [124, 125, 126, vT[6]]
for i in range(4): e(f"v_mov_b32 v{HB2[i]}, v{HB+i}")
for i in range(4): e(f"v_mov_b32 v{ACC+i}, v{FB+i}")
e("s_nop 1")
for s_ in range(8):
    e(f"s_waitcnt lgkmcnt({7-s_})")
    mfma(ACC, ROW+4*s_, WFL+4*s_, vr(ACC,16))
X = 16
e("s_nop 7")
e("s_nop 3")
for i in range(4):
    a = FACC + 4*i
    final_silu(a, 4, X)
    e(f"v_lshlrev_b32 v{X}, 16, v{HRES+2*i}")
    e(f"v_and_b32 v{X+1}, s{sK3}, v{HRES+2*i}")
    e(f"v_lshlrev_b32 v{X+2}, 16, v{HRES+2*i+1}")
    e(f"v_and_b32 v{X+3}, s{sK3}, v{HRES+2*i+1}")
    for k in range(4): e(f"v_fma_f32 v{a+k}, v{a+k}, s{sK2}, v{X+k}")
    e(f"v_cvt_pk_bf16_f32 v{X+4+2*i}, v{a}, v{a+1}")
    e(f"v_cvt_pk_bf16_f32 v{X+5+2*i}, v{a+2}, v{a+3}")
    e(f"buffer_store_dwordx2 {vr(X+4+2*i,2)}, v{vOFF}, {srd(S_O0)}, 0 offen offset:{i*16}")
c("role B: rows j")
Y = 32
final_silu(ACC, 4, Y)
for k in range(4):
    e(f"v_lshlrev_b32 v{Y+k}, 16, v{HB2[k]}")
for k in range(4):
    e(f"v_fma_f32 v{ACC+k}, v{ACC+k}, s{sK2}, v{Y+k}")
for k in range(4):
    e(f"v_cvt_pk_bf16_f32 v{Y+8+k}, v{ACC+k}, v{ACC+k}")
for r in range(4):
    e(f"buffer_store_short v{Y+8+r}, v{mvOFFB}, {srd(S_O0)}, 0 offen offset:{r*256}")
e("s_branch L_end")
lab("L_f_C")
for s_ in range(8):
    e(f"s_waitcnt lgkmcnt({7-s_})")
    mfma(ACC, WFL+4*s_, ROW+4*s_, "0" if s_ == 0 else vr(ACC,16))
e("s_nop 7")
e("s_nop 3")
e(f"v_fma_f32 v{ACC}, v{ACC}, s{sK2}, v{HRES}")
e(f"v_cvt_pk_bf16_f32 v{ACC}, v{ACC}, v{ACC}")
e(f"s_mov_b32 exec_lo, 0x3fffffff")
e(f"s_mov_b32 exec_hi, 0")
e(f"buffer_store_short v{ACC}, v{vOFF}, {srd(S_O1)}, 0 offen")
lab("L_end")
stamp("end")
stamp_flush()
lab("L_end2")
e("s_endpgm")

def zero_lds(Z, vtid):
    c("zero REC (69632 B = 4352 x 16 B) and counters (64 B)")
    for i in range(4): e(f"v_mov_b32 v{Z+i}, 0")
    e(f"v_lshlrev_b32 v{vT[0]}, 4, v{vtid}")
    for i in range(4):
        e(f"ds_write_b128 v{vT[0]}, {vr(Z,4)} offset:{i*16384}")
    e(f"v_add_u32 v{vT[1]}, {65536}, v{vT[0]}")
    e(f"v_add_u32 v{vT[2]}, {CTR - 256*16}, v{vT[0]}")
    e(f"v_cmp_gt_u32 vcc, 256, v{vtid}")
    e(f"v_cndmask_b32 v{vT[1]}, v{vT[2]}, v{vT[1]}, vcc")
    e(f"v_cmp_gt_u32 vcc, 260, v{vtid}")
    e("s_mov_b64 exec, vcc")
    e(f"ds_write_b128 v{vT[1]}, {vr(Z,4)}")
    e("s_mov_b64 exec, -1")
lab("L_slow_init")
e(f"s_mov_b32 s{sMODE}, 1")
e(f"s_mov_b32 s{sCH}, 0")
e(f"s_mov_b32 s{sRETRY}, 0")
e(f"s_and_b32 s{sT3}, s{sT3}, 2")
e(f"s_cmp_eq_u32 s{sT3}, 0")
e("s_cbranch_scc1 L_slow_pass")
c("fallback: the hand-off timed out -> this workgroup computes all of Q and the WH2 fragments itself")
c("(waves 12..15 keep FACC (64..79) / FB (120..123); only waves 0..7 touch vector state other than vT)")
e(f"s_mov_b32 s{sU}, 0")
lab("L_fb_loop")
e("s_waitcnt vmcnt(0) lgkmcnt(0)")
e("s_barrier")
e(f"s_cmp_ge_u32 s{sW}, 8")
e("s_cbranch_scc1 L_fb_idle")
gemm_role("fb", sU, True)
e("s_branch L_fb_next")
lab("L_fb_idle")
e("s_barrier")
lab("L_fb_next")
e(f"s_add_u32 s{sU}, s{sU}, 1")
e(f"s_cmp_lt_u32 s{sU}, {NG}")
e("s_cbranch_scc1 L_fb_loop")
e("s_waitcnt vmcnt(0) lgkmcnt(0)")
e("s_barrier")
e(f"s_cmp_ge_u32 s{sW}, 4")
e("s_cbranch_scc1 L_slow_pass")
wprep_role("fb", True)
e("s_branch L_slow_pass")
lab("L_slow_next")
e(f"v_mov_b32 v{vT[0]}, {PEND}")
e(f"ds_read_b32 v{vT[1]}, v{vT[0]}")
e("s_waitcnt lgkmcnt(0)")
e(f"v_readfirstlane_b32 s{sRETRY}, v{vT[1]}")
e("s_nop 3")
e(f"s_cmp_lg_u32 s{sRETRY}, 0")
e("s_cbranch_scc1 L_slow_pass")
lab("L_slow_adv")
e(f"s_add_u32 s{sCH}, s{sCH}, 1")
e(f"s_cmp_ge_u32 s{sCH}, 250")
e("s_cbranch_scc1 L_slow_fin")
lab("L_slow_pass")
e("s_waitcnt vmcnt(0) lgkmcnt(0)")
e("s_barrier")
e(f"s_lshl_b32 s{sT0}, s{sW}, 6")
e(f"v_add_u32 v{tid}, s{sT0}, v{vL}")
zero_lds(116, tid)
c("raw edge e = 640*ch + t (t<640)")
qD, qS, qB, qK, qR, qA = 104, 105, 106, 107, 108, 109
RC = RA; vEA = RA + 2; vI0 = VI[0]; PS0 = PS[0]
e(f"s_mul_i32 s{sT0}, s{sCH}, 2560")
e(f"s_mul_i32 s{sT1}, s{sCH}, 1280")
e(f"v_lshlrev_b32 v{vT[0]}, 2, v{tid}")
e(f"v_lshlrev_b32 v{vT[1]}, 1, v{tid}")
e(f"v_mov_b32 v{qD}, -1")
e(f"v_mov_b32 v{qS}, 0")
e(f"v_mov_b32 v{qP}, 0")
e(f"v_mov_b32 v{vEA}, 0")
e(f"v_mov_b32 v{qA}, 640")
e(f"v_cmp_gt_u32 {sp(sM0)}, v{qA}, v{tid}")
e(f"s_cmp_eq_u64 {sp(sM0)}, 0")
e("s_cbranch_scc1 L_slow_nold")
e(f"s_mov_b64 exec, {sp(sM0)}")
e(f"buffer_load_dword v{qD}, v{vT[0]}, {srd(S_DST)}, s{sT0} offen")
e(f"buffer_load_dword v{qS}, v{vT[0]}, {srd(S_SRC)}, s{sT0} offen")
e(f"buffer_load_ushort v{vEA}, v{vT[1]}, {srd(S_EA)}, s{sT1} offen")
e(f"v_add_u32 v{qA}, {PENDB}, v{tid}")
e(f"ds_read_u8 v{qP}, v{qA}")
e("s_mov_b64 exec, -1")
lab("L_slow_nold")
e("s_waitcnt vmcnt(0) lgkmcnt(0)")
e("s_barrier")
e(f"v_mul_u32_u24 v{qB}, 52429, v{qD}")
e(f"v_lshrrev_b32 v{qB}, 21, v{qB}")
e(f"v_mul_u32_u24 v{qK}, 40, v{qB}")
e(f"v_sub_u32 v{qK}, v{qD}, v{qK}")
e(f"v_cmp_eq_u32 vcc, s2, v{qB}")
e(f"s_and_b64 {sp(sM0)}, {sp(sM0)}, vcc          ; match")
e(f"s_cmp_eq_u32 s{sRETRY}, 0")
e("s_cbranch_scc1 L_slow_fresh")
e(f"v_cmp_ne_u32 vcc, 0, v{qP}")
e(f"s_and_b64 {sp(sM0)}, {sp(sM0)}, vcc")
lab("L_slow_fresh")
e(f"v_and_b32 v{qK}, 63, v{qK}")
e(f"v_min_u32 v{qK}, 39, v{qK}")
e(f"v_mul_u32_u24 v{vI0}, 52, v{qK}")
e(f"v_lshrrev_b32 v{vI0}, 8, v{vI0}           ; g")
e(f"v_mul_u32_u24 v{qA}, 5, v{vI0}")
e(f"v_sub_u32 v{qA}, v{qK}, v{qA}             ; j")
e(f"v_and_b32 v{qS}, 0x3fff, v{qS}")
e(f"v_lshl_or_b32 v{RC}, v{vI0}, 14, v{qS}")
e(f"v_lshl_or_b32 v{RC}, v{qA}, 17, v{RC}")
e(f"s_mov_b32 s{sT0}, {ALLOC}")
e(f"v_lshl_add_u32 v{qA}, v{vI0}, 2, s{sT0}")
e(f"v_mov_b32 v{vOne}, 1")
e(f"v_mov_b32 v{qP}, 0")
e(f"v_mul_u32_u24 v{qB}, 6, v{qS}")
e(f"v_and_b32 v{qB}, -4, v{qB}")
for m in MK[1:]: e(f"s_mov_b64 {sp(m)}, 0")
e(f"s_cmp_eq_u64 {sp(sM0)}, 0")
e("s_cbranch_scc1 L_slow_nom")
e(f"s_mov_b64 exec, {sp(sM0)}")
e(f"buffer_load_dwordx2 {vr(PS0,2)}, v{qB}, {srd(S_POS)}, 0 offen")
e(f"ds_add_rtn_u32 v{qR}, v{qA}, v{vOne}")
e("s_mov_b64 exec, -1")
e(f"v_mul_u32_u24 v{vI0}, {GSTR}, v{vI0}")
e("s_waitcnt lgkmcnt(0)")
s1_place(qR, vI0, qS, sM0, "s", slow=True)
lab("L_slow_nom")
e(f"v_mov_b32 v{qA}, 640")
e(f"v_cmp_gt_u32 vcc, v{qA}, v{tid}")
e("s_mov_b64 exec, vcc")
e("s_cbranch_execz L_slow_nopb")
e(f"v_add_u32 v{qA}, {PENDB}, v{tid}")
e(f"ds_write_b8 v{qA}, v{qP}")
lab("L_slow_nopb")
e("s_mov_b64 exec, -1")
e("s_branch L_st2")
lab("L_slow_fin")
c("SEG must be zero-initialised if no pass ever ran")
e(f"s_cmp_eq_u32 s{sNODE}, 0")
e("s_cbranch_scc1 L_final_bar")
for r in range(32):
    e(f"v_mov_b32 v{SEG+r}, 0")
lab("L_final_bar")
e("s_barrier")
e("s_branch L_final")

desc = f""".amdhsa_kernel {KNAME}
  .amdhsa_next_free_vgpr 128
  .amdhsa_next_free_sgpr 102
  .amdhsa_accum_offset 128
  .amdhsa_group_segment_fixed_size 0
  .amdhsa_kernarg_size 88
  .amdhsa_user_sgpr_count 2
  .amdhsa_user_sgpr_kernarg_segment_ptr 1
  .amdhsa_system_sgpr_workgroup_id_x 1
.end_amdhsa_kernel"""
body = "\n".join(x for x in out if x is not None)
final = "\n".join(header) + "\n" + body + "\n" + '.section .rodata,"a"\n.p2align 6\n' + desc + "\n"
dest = sys.argv[1] if len(sys.argv) > 1 else "standalone__cheap_equivariant_egnn__graph.s"
open(dest, "w").write(final)
print("wrote", dest, len(out), "lines")
```

```python
import sys, os
sys.path.insert(0, os.path.dirname(os.path.abspath(__file__)))
from g3common import *

KNAME = "standalone__cheap_equivariant_egnn__graph_kernel"
TIMING = os.environ.get("TIMING", "")
NOPRIO = os.environ.get("NOPRIO", "")
QSC = os.environ.get("QSC", " sc1")
FORCE = os.environ.get("FORCE", "")
NPOLL = int(os.environ.get("NPOLL", "3000"))
RSL = int(os.environ.get("RSL", "8"))
QSL = int(os.environ.get("QSL", "4"))
NSL = int(os.environ.get("NSL", "8"))
QST = int(os.environ.get("QST", "8"))
PK = int(os.environ.get("PK", "0"))
XM = int(os.environ.get("XM", "0"))
LATE = int(os.environ.get("LATE", "1"))
BSPEC = int(os.environ.get("BSPEC", "1"))
PPF = int(os.environ.get("PPF", "1"))
WSOFF = int(os.environ.get("WSOFF", "0")) << 20

CELLA = 0
CHB = 32000
CELLB = 4 << 20
WH2F = 12 << 20
NG = 157; NCH = 63
BIN0 = NG; WPR = NG + NCH
CAP = 136
GSTR = CAP * 64
REC = 0
QT = 8 * GSTR
BXP = QT + 65536
OWN = BXP + 16384
PTF = OWN + 10240
CTR = PTF + 640
ALLOC = CTR; OVF = CTR + 32; PEND = CTR + 36; GCNT = CTR + 40; NONCE = CTR + 44; ZERO16 = CTR + 48
SYN = CTR + 64
RISS = SYN; RCNT = SYN + 4; RCNT2 = SYN + 8; FCNT = SYN + 12; FCNT2 = SYN + 16; NOK = SYN + 20; RLAND = SYN + 24
PENDB = CTR + 128
NTAB = PENDB
LDS_TOTAL = PENDB + 640
FLG = 13 << 20
assert LDS_TOTAL <= 163840
NWG = 250

S_H, S_POS, S_EA, S_SRC, S_DST, S_WX, S_O0, S_O1, S_WS, S_Q, S_WE, S_WH, S_DBG = [8 + 4 * i for i in range(13)]
sC4, sC5 = 4, 5
sW, sQ, sCT, sMODE, sT0, sT1, sT2, sT3 = range(60, 68)
sEX, sM0, sM1, sM2 = 68, 70, 72, 74
sG, sCH2, sCO, sNT, sU, sREM, sK2, sK3, sNODE, sCH, sRETRY, sB0, sB1, sGB, sRT, sROLE = range(76, 92)
sNON, sTAG, sCNT, sC = 92, 93, 94, 95
sPA, sPB = 96, 98
sX0, sX1, sX2 = 96, 97, 98
KS = 76

vL = 0
vLK, vQD, vTRQ0, vTRQ1, vTRS, vOD, vODM = 1, 2, 3, 4, 5, 6, 7
vT = list(range(8, 16))
SEG = 16; ACC = 48; FACC = 64; QF = 80; SF = 88; OHD = 96; BXF = 100; ID = 104; MP = 112; FB = 120
TE = QF
VST = 127

_st = [0]
def stamp(name, idx=None):
    if not TIMING: return
    i = _st[0] if idx is None else idx
    if idx is None: _st[0] += 1
    c(f"STAMP {i} {name}")
    e(f"s_memtime s[{sC4}:{sC5}]")
    e("s_waitcnt lgkmcnt(0)")
    e(f"v_writelane_b32 v{VST}, s{sC4}, {i}")
    print("stamp", i, name)
def stamp_dyn(base, scnt, mx=11):
    if not TIMING: return
    e(f"s_memtime s[{sC4}:{sC5}]")
    e(f"s_min_u32 s3, s{scnt}, {mx}")
    e(f"s_add_u32 m0, s3, {base}")
    e("s_waitcnt lgkmcnt(0)")
    e(f"v_writelane_b32 v{VST}, s{sC4}, m0")
def stamp_flush():
    if not TIMING: return
    e(f"s_memrealtime s[{sC4}:{sC5}]")
    e("s_waitcnt lgkmcnt(0)")
    e("s_mov_b64 exec, -1")
    e(f"v_writelane_b32 v{VST}, s100, 62")
    e(f"v_writelane_b32 v{VST}, s{sC4}, 63")
    e(f"s_lshl_b32 s{sT0}, s2, 4")
    e(f"s_add_u32 s{sT0}, s{sT0}, s{sW}")
    e(f"s_lshl_b32 s{sT0}, s{sT0}, 8")
    e(f"s_add_u32 s{sT0}, s{sT0}, {32<<20}")
    e(f"v_lshlrev_b32 v{vT[1]}, 2, v{vL}")
    e(f"buffer_store_dword v{VST}, v{vT[1]}, {srd(S_WS)}, s{sT0} offen")

header = []
header.append(f"; @launch grid=({NWG},1,1) block=(1024,1,1) lds={LDS_TOTAL}")
header.append('.amdgcn_target "amdgcn-amd-amdhsa--gfx950"')
header.append(".text")
header.append(f".globl {KNAME}")
header.append(".p2align 8")
header.append(f".type {KNAME},@function")

lab(KNAME)
e(f"s_cmp_ge_u32 s2, {NWG}")
e("s_cbranch_scc1 L_end2")
if TIMING:
    e("s_memrealtime s[100:101]")
if TIMING:
    e(f"v_mov_b32 v{VST}, 0")
stamp("entry")
e(f"s_load_dwordx16 s[{KS}:{KS+15}], s[0:1], 0")
e(f"s_load_dwordx2 s[{S_WS}:{S_WS+1}], s[0:1], 80")
e(f"s_load_dwordx2 s[{S_O0}:{S_O0+1}], s[0:1], 64")
e(f"s_load_dwordx2 s[{S_DBG}:{S_DBG+1}], s[0:1], 72")
tid = vT[7]
e(f"v_mov_b32 v{tid}, v0")
e(f"v_lshrrev_b32 v{vT[0]}, 6, v0")
e(f"v_and_b32 v{vL}, 63, v0")
e(f"v_readfirstlane_b32 s{sW}, v{vT[0]}")
for (x, sz) in [(S_H,2560000),(S_POS,60000),(S_EA,320000),(S_SRC,640000),(S_DST,640000),(S_WX,256),(S_O0,2560000),(S_O1,60000),
                (S_WS,256*1048576-WSOFF),(S_Q,2560000),(S_WE,66048),(S_WH,65536),(S_DBG,256)]:
    e(f"s_mov_b32 s{x+2}, {sz}")
    e(f"s_mov_b32 s{x+3}, 0x20000")
e(f"s_lshr_b32 s{sQ}, s{sW}, 2")
e(f"s_and_b32 s{sCT}, s{sW}, 3")
e(f"s_mov_b32 s{sMODE}, 0")
def kernarg_copy():
    for (x, k) in [(S_H,0),(S_POS,2),(S_EA,4),(S_SRC,6),(S_DST,8),(S_WE,10),(S_WX,12),(S_WH,14)]:
        e(f"s_mov_b64 s[{x}:{x+1}], s[{KS+k}:{KS+k+1}]")
    if WSOFF:
        e(f"s_add_u32 s{S_WS}, s{S_WS}, {WSOFF}")
        e(f"s_addc_u32 s{S_WS+1}, s{S_WS+1}, 0")
    e(f"s_add_u32 s{S_O1}, s{S_O0}, 2560000")
    e(f"s_addc_u32 s{S_O1+1}, s{S_O0+1}, 0")
    e(f"s_add_u32 s{S_Q}, s{S_WS}, {QOFF}")
    e(f"s_addc_u32 s{S_Q+1}, s{S_WS+1}, 0")

vSL = 16; vTRP = 17; vRA = 18; vRD = 19; vST = 20; vU0 = 21; vU1 = 22
def slice_lane(dst, sct):
    e(f"v_lshrrev_b32 v{dst}, 2, v{vL}")
    e(f"v_lshlrev_b32 v{dst}, 8, v{dst}")
    e(f"v_and_b32 v{vU0}, 3, v{vL}")
    e(f"v_lshl_add_u32 v{dst}, v{vU0}, 4, v{dst}")
    e(f"s_lshl_b32 s{sT0}, s{sct}, 6")
    e(f"v_add_u32 v{dst}, s{sT0}, v{dst}")
def trpat(dst, t0, t1):
    e(f"v_lshrrev_b32 v{t0}, 5, v{vL}")
    e(f"v_bfe_u32 v{t1}, v{vL}, 2, 2")
    e(f"v_lshl_add_u32 v{dst}, v{t0}, 3, v{t1}")
    e(f"v_lshlrev_b32 v{dst}, 6, v{dst}")
    e(f"v_bfe_u32 v{t0}, v{vL}, 4, 1")
    e(f"v_lshl_add_u32 v{dst}, v{t0}, 5, v{dst}")
    e(f"v_and_b32 v{t0}, 3, v{vL}")
    e(f"v_lshl_add_u32 v{dst}, v{t0}, 3, v{dst}")
def row_addr(dst, vrow, vhi, tmp, base=OWN):
    e(f"v_and_b32 v{tmp}, 15, v{vrow}")
    e(f"v_xor_b32 v{tmp}, v{tmp}, v{vhi}")
    e(f"v_lshlrev_b32 v{tmp}, 4, v{tmp}")
    e(f"v_lshl_add_u32 v{dst}, v{vrow}, 8, v{tmp}")
    e(f"v_add_u32 v{dst}, {base}, v{dst}")

Z = 24
for i in range(4): e(f"v_mov_b32 v{Z+i}, 0")
c("wave 0: zero the counters (128 B), then B0")
e(f"s_cmp_eq_u32 s{sW}, 0")
e("s_cbranch_scc0 L_b0")
e(f"v_lshlrev_b32 v{vT[0]}, 4, v{vL}")
e(f"v_add_u32 v{vT[0]}, {CTR}, v{vT[0]}")
e("s_mov_b64 exec, 0xff")
e(f"ds_write_b128 v{vT[0]}, {vr(Z,4)}")
e("s_mov_b64 exec, -1")
e("s_waitcnt lgkmcnt(0)")
lab("L_b0")
e("s_barrier")
vA_ = 23
_sy = [0]
def arrive(addr):
    e(f"v_mov_b32 v{vA_}, {addr}")
    e(f"v_mov_b32 v{vU1}, 1")
    e("s_mov_b64 exec, 1")
    e(f"ds_add_u32 v{vA_}, v{vU1}")
    e("s_mov_b64 exec, -1")
def wait_cnt(addr, n, nz=False, dst=None):
    i = _sy[0]; _sy[0] += 1
    d = dst if dst is not None else sT0
    e(f"v_mov_b32 v{vA_}, {addr}")
    lab(f"L_sy{i}")
    e(f"ds_read_b32 v{vU1}, v{vA_}")
    e("s_waitcnt lgkmcnt(0)")
    e(f"v_readfirstlane_b32 s{d}, v{vU1}")
    if nz: e(f"s_cmp_lg_u32 s{d}, 0")
    else:  e(f"s_cmp_ge_u32 s{d}, {n}")
    e(f"s_cbranch_scc1 L_syd{i}")
    e("s_sleep 1")
    e(f"s_branch L_sy{i}")
    lab(f"L_syd{i}")
e(f"s_cmp_ge_u32 s{sW}, 8")
e("s_cbranch_scc1 L_front")
if not NOPRIO: e("s_setprio 2")
c("zero REC tail (4096 B, threads 256..511)")
e(f"v_lshlrev_b32 v{vT[0]}, 4, v{tid}")
e(f"v_add_u32 v{vT[1]}, {65536 - 4096}, v{vT[0]}")
e(f"v_cmp_lt_u32 vcc, 255, v{tid}")
e("s_mov_b64 exec, vcc")
e(f"s_cbranch_execz L_notail")
e(f"ds_write_b128 v{vT[1]}, {vr(Z,4)}")
lab("L_notail")
e("s_mov_b64 exec, -1")
e(f"s_cmp_ge_u32 s2, {BIN0}")
e("s_cbranch_scc1 L_notgemm")

AF = 24; BF = 56; D0 = 88
def gemm_role(tag, blk, fb):
    slice_lane(vSL, sCT)
    c("rows DMA lane offset: row = 8w + 4i + (l>>4); chunk = (l&15) ^ (row&15)")
    e(f"v_lshrrev_b32 v{vU0}, 4, v{vL}")
    e(f"v_and_b32 v{vU1}, 15, v{vL}")
    e(f"v_xor_b32 v{vU1}, v{vU1}, v{vU0}")
    e(f"s_and_b32 s{sT0}, s{sW}, 1")
    e(f"s_lshl_b32 s{sT0}, s{sT0}, 3")
    e(f"v_xor_b32 v{vU1}, s{sT0}, v{vU1}")
    e(f"v_lshlrev_b32 v{vU1}, 4, v{vU1}")
    e(f"v_lshl_add_u32 v{vRA}, v{vU0}, 8, v{vU1}")
    e(f"v_xor_b32 v{vRD}, 64, v{vRA}")
    e(f"s_lshl_b32 s{sT0}, s{sCT}, 13")
    e(f"s_lshl_b32 s{sT1}, s{sQ}, 12")
    e(f"s_add_u32 s{sT0}, s{sT0}, s{sT1}")
    e(f"s_add_u32 s{sT0}, s{sT0}, {QT}")
    e(f"s_lshl_b32 s{sT1}, s{sQ}, 14")
    e(f"s_add_u32 s{sT1}, s{sT1}, 32768")
    e(f"s_lshl_b32 s{sT3}, s{sW}, 11")
    e(f"s_lshl_b32 s{sX0}, s{blk}, 14")
    e(f"s_add_u32 s{sX0}, s{sX0}, s{sT3}           ; (64r + 8w)*256")
    if not fb:
        e("s_waitcnt lgkmcnt(0)")
        stamp("kernarg", 1)
        kernarg_copy()
    e(f"s_add_u32 m0, s{sT3}, {QT+32768}")
    e(f"s_add_u32 s{sX1}, s{sX0}, 1024")
    e(f"buffer_load_dwordx4 v{vRA}, {srd(S_H)}, s{sX0} offen lds")
    e(f"s_add_u32 m0, s{sT3}, {QT+32768+1024}")
    e(f"s_nop 0")
    e(f"buffer_load_dwordx4 v{vRD}, {srd(S_H)}, s{sX1} offen lds")
    for i in range(4):
        e(f"s_add_u32 m0, s{sT0}, {i*1024}")
        e(f"s_add_u32 s{sT2}, s{sT1}, {i*4096}")
        e(f"buffer_load_dwordx4 v{vSL}, {srd(S_WE)}, s{sT2} offen lds")
    if not fb:
        if not LATE: arrive(RISS)
        stamp("role loads issued", 2)
    c("compute: all 8 waves, rb = w>>2, ct = w&3 : 32 rows x 32 cols")
    trpat(vTRP, vU0, vU1)
    e(f"s_lshl_b32 s{sT0}, s{sCT}, 13")
    e(f"s_add_u32 s{sT0}, s{sT0}, {QT}")
    e(f"v_add_u32 v{vTRP}, s{sT0}, v{vTRP}")
    c("row read address: QT+32768 + (rb*32+n)*256 + ((hi ^ (n&15))<<4) ^ (s<<5)")
    e(f"v_and_b32 v{vU0}, 31, v{vL}")
    e(f"v_lshrrev_b32 v{vU1}, 5, v{vL}")
    e(f"v_and_b32 v{vRD}, 15, v{vL}")
    e(f"v_xor_b32 v{vRD}, v{vRD}, v{vU1}")
    e(f"v_lshlrev_b32 v{vRD}, 4, v{vRD}")
    e(f"v_lshl_add_u32 v{vRD}, v{vU0}, 8, v{vRD}")
    e(f"s_lshl_b32 s{sT0}, s{sQ}, 13")
    e(f"s_add_u32 s{sT0}, s{sT0}, {QT+32768}")
    e(f"v_add_u32 v{vRD}, s{sT0}, v{vRD}")
    c("out tile (2 KB per wave) write addr: OB + n*64 + ((bb ^ ((n>>2)&3))<<4) + hi*8")
    e(f"s_lshl_b32 s{sT0}, s{sW}, 11")
    e(f"s_add_u32 s{sT0}, s{sT0}, {QT+49152}")
    e(f"v_bfe_u32 v{vRA}, v{vL}, 2, 2")
    e(f"v_lshlrev_b32 v{vRA}, 4, v{vRA}")
    e(f"v_lshl_add_u32 v{vRA}, v{vU0}, 6, v{vRA}")
    e(f"v_lshl_add_u32 v{vRA}, v{vU1}, 3, v{vRA}")
    e(f"v_add_u32 v{vRA}, s{sT0}, v{vRA}")
    c("out tile read addr: OB + (r + 16i)*64 + ((q ^ ((r>>2)&3))<<4), r = l>>2, q = l&3 ; store: row*256 + ct*64 + q*16")
    e(f"v_lshrrev_b32 v{vU0}, 2, v{vL}")
    e(f"v_and_b32 v{vU1}, 3, v{vL}")
    e(f"v_bfe_u32 v{vSL}, v{vL}, 4, 2")
    e(f"v_xor_b32 v{vSL}, v{vSL}, v{vU1}")
    e(f"v_lshlrev_b32 v{vSL}, 4, v{vSL}")
    e(f"v_lshl_add_u32 v{vSL}, v{vU0}, 6, v{vSL}")
    e(f"v_add_u32 v{vSL}, s{sT0}, v{vSL}")
    e(f"v_lshlrev_b32 v{vST}, 4, v{vU1}")
    e(f"v_lshl_add_u32 v{vST}, v{vU0}, 8, v{vST}")
    e(f"s_lshl_b32 s{sT0}, s{blk}, 14")
    e(f"s_lshl_b32 s{sT1}, s{sQ}, 13")
    e(f"s_add_u32 s{sT0}, s{sT0}, s{sT1}")
    e(f"s_lshl_b32 s{sT1}, s{sCT}, 6")
    e(f"s_add_u32 s{sC}, s{sT0}, s{sT1}")
    e("s_waitcnt vmcnt(0) lgkmcnt(0)")
    if not fb: stamp("role loads landed", 3)
    if fb:
        e("s_barrier")
    else:
        arrive(RCNT)
        if LATE: arrive(RISS)
        wait_cnt(RCNT, 8)
        stamp("B1", 4)
    for s_ in range(8):
        e(f"v_xor_b32 v{vU0}, {s_<<5}, v{vRD}")
        e(f"ds_read_b128 {vr(BF+4*s_,4)}, v{vU0}")
        e(f"ds_read_b64_tr_b16 {vr(AF+4*s_,2)}, v{vTRP} offset:{s_*1024}")
        e(f"ds_read_b64_tr_b16 {vr(AF+4*s_+2,2)}, v{vTRP} offset:{s_*1024+256}")
    for s_ in range(8):
        e(f"s_waitcnt lgkmcnt({min(15, 21-3*s_)})")
        mfma(D0, AF+4*s_, BF+4*s_, "0" if s_ == 0 else vr(D0,16))
    e(f"s_mov_b32 s{sT1}, 0x{NLOG2E:08x}")
    e("s_nop 7")
    e("s_nop 3")
    for bb in range(4):
        r0 = D0 + 4*bb
        for i in range(4):
            e(f"v_mul_f32 v{r0+i}, s{sT1}, v{r0+i}")
        e(f"v_cvt_pk_bf16_f32 v{r0}, v{r0}, v{r0+1}")
        e(f"v_cvt_pk_bf16_f32 v{r0+1}, v{r0+2}, v{r0+3}")
        e(f"v_xor_b32 v{vU0}, {bb<<4}, v{vRA}")
        e(f"ds_write_b64 v{vU0}, {vr(r0,2)}")
    e("s_waitcnt lgkmcnt(0)")
    for i in range(2):
        e(f"ds_read_b128 {vr(AF+4*i,4)}, v{vSL} offset:{i*1024}")
    e(f"s_add_u32 s{sT1}, s{sC}, 4096")
    for i in range(2):
        e(f"s_waitcnt lgkmcnt({1-i})")
        e(f"buffer_store_dwordx4 {vr(AF+4*i,4)}, v{vST}, {srd(S_Q)}, s{[sC,sT1][i]} offen sc1")
    if not fb: stamp("role stores issued", 5)

gemm_role("", 2, False)
c("signal: last of the compute waves writes flag[b] = nonce of chunk 0")
def signal(nw, idx_setup, tag, nl=1):
    e("s_waitcnt vmcnt(0)")
    e(f"v_mov_b32 v{vU0}, {GCNT}")
    e(f"v_mov_b32 v{vU1}, 1")
    e("s_mov_b64 exec, 1")
    e(f"ds_add_rtn_u32 v{vRA}, v{vU0}, v{vU1}")
    e("s_waitcnt lgkmcnt(0)")
    e("s_mov_b64 exec, -1")
    e(f"v_readfirstlane_b32 s{sT0}, v{vRA}")
    e(f"s_cmp_eq_u32 s{sT0}, {nw-1}")
    e(f"s_cbranch_scc0 L_nosig{tag}")
    wait_cnt(NOK, 0, nz=True)
    e(f"v_mov_b32 v{vU0}, {NTAB}")
    e(f"ds_read_b32 v{vU1}, v{vU0}")
    idx_setup()
    e(f"v_lshlrev_b32 v{vU0}, 2, v{vL}")
    e("s_waitcnt lgkmcnt(0)")
    e(f"s_mov_b64 exec, {(1<<nl)-1}")
    e(f"buffer_store_dword v{vU1}, v{vU0}, {srd(S_WS)}, s{sT1} offen sc1")
    e("s_mov_b64 exec, -1")
    lab(f"L_nosig{tag}")
def idx_gemm():
    e(f"s_lshl_b32 s{sT1}, s2, 2")
    e(f"s_add_u32 s{sT1}, s{sT1}, {FLG}")
signal(8, idx_gemm, "g")
stamp("role signalled", 6)
e("s_branch L_common")

lab("L_notgemm")
e(f"s_cmp_ge_u32 s2, {WPR}")
e("s_cbranch_scc1 L_notbin")
c("binning chunk c = wg - 157: edges e = 2560c + 512i + t ; LDS image: cell b at QT + b*128 (+32000 for ranks 16..31), 8-B records")
NE = 5
CNT = QT + 64000
vD = 24; vS = 29; vB = 34; vR = 39; vP = 44; vE = 54; vE2 = 55; vOne_ = 56; vK = 57; vG_ = 58
e(f"s_sub_u32 s{sC}, s2, {BIN0}")
e(f"s_mul_i32 s{sT0}, s{sC}, {2560*4}")
e(f"v_lshlrev_b32 v{vE}, 2, v{tid}")
e(f"v_lshlrev_b32 v{vE2}, 1, v{tid}")
c("zero counters")
e(f"v_mov_b32 v{vU1}, 0")
e(f"v_mov_b32 v{vOne_}, 1")
e(f"v_cmp_gt_u32 vcc, 250, v{tid}")
e(f"s_mov_b64 exec, vcc")
e(f"v_add_u32 v{vU0}, {CNT}, v{vE}")
e(f"ds_write_b32 v{vU0}, v{vU1}")
e(f"s_mov_b64 exec, -1")
e(f"s_add_u32 s{sT2}, s{sT0}, 4096")
e(f"s_add_u32 s{sT1}, s{sT0}, 8192")
e(f"s_lshr_b32 s{sX0}, s{sT0}, 1")
e(f"s_add_u32 s{sX1}, s{sX0}, 4096")
e("s_memrealtime s[6:7]")
e("s_waitcnt lgkmcnt(0)")
stamp("kernarg", 1)
kernarg_copy()
c("wave 0: this chunk's nonce -> LDS and d_debug[c]")
e(f"s_cmp_eq_u32 s{sW}, 0")
e("s_cbranch_scc0 L_bin_nonon")
e("s_or_b32 s6, s6, 1")
e(f"v_mov_b32 v{vU1}, s6")
e(f"v_mov_b32 v{vU0}, {NONCE}")
e(f"s_lshl_b32 s{sT3}, s{sC}, 2")
e(f"v_mov_b32 v{vK}, s{sT3}")
e("s_mov_b64 exec, 1")
e(f"buffer_store_dword v{vU1}, v{vK}, {srd(S_DBG)}, 0 offen sc1")
e(f"ds_write_b32 v{vU0}, v{vU1}")
e("s_mov_b64 exec, -1")
lab("L_bin_nonon")
def soff(i): return [sT0, sT0, sT2, sT2, sT1][i], (i & 1) * 2048 if i < 4 else 0
for i in range(NE):
    so, of = soff(i)
    e(f"buffer_load_dword v{vD+i}, v{vE}, {srd(S_DST)}, s{so} offen offset:{of}")
for i in range(NE):
    so, of = soff(i)
    e(f"buffer_load_dword v{vS+i}, v{vE}, {srd(S_SRC)}, s{so} offen offset:{of}")
for i in range(NE):
    so = sX0 if i < 4 else sX1
    e(f"buffer_load_ushort v{vP+2*i+1}, v{vE2}, {srd(S_EA)}, s{so} offen offset:{(i & 3) * 1024 if i < 4 else 0}")
if not LATE: arrive(RISS)
arrive(RCNT)
stamp("role loads issued", 2)
c("validity: e < 160000  <=> byte offset < 640000")
e(f"v_add_u32 v{vE}, s{sT0}, v{vE}")
e(f"s_mov_b32 s{sX0}, {CNT}")
e(f"s_mov_b32 s{sX1}, {QT}")
wait_cnt(RCNT, 8, dst=sX2)
stamp("B1", 4)
for i in range(NE):
    e(f"s_waitcnt vmcnt({3*NE-1-i})")
    e(f"v_mul_u32_u24 v{vB+i}, 52429, v{vD+i}")
    e(f"v_lshrrev_b32 v{vB+i}, 21, v{vB+i}")
    e(f"v_lshl_add_u32 v{vU0}, v{vB+i}, 2, s{sX0}")
    e(f"v_mov_b32 v{vK}, {640000 - i*2048}")
    e(f"v_cmp_gt_u32 vcc, v{vK}, v{vE}")
    e(f"s_mov_b64 exec, vcc")
    e(f"ds_add_rtn_u32 v{vR+i}, v{vU0}, v{vOne_}")
    e(f"s_mov_b64 exec, -1")
    e(f"v_mul_u32_u24 v{vK}, 40, v{vB+i}")
    e(f"v_sub_u32 v{vD+i}, v{vD+i}, v{vK}       ; k")
    e(f"v_lshl_add_u32 v{vB+i}, v{vB+i}, 7, s{sX1}")
    e(f"v_mul_u32_u24 v{vG_}, 52, v{vD+i}")
    e(f"v_lshrrev_b32 v{vG_}, 8, v{vG_}           ; g = k/5")
    e(f"v_mul_u32_u24 v{vK}, 5, v{vG_}")
    e(f"v_sub_u32 v{vK}, v{vD+i}, v{vK}        ; j")
    e(f"v_lshl_or_b32 v{vD+i}, v{vK}, 3, v{vG_}       ; g | j<<3")
    e(f"v_or_b32 v{vD+i}, 64, v{vD+i}                ; valid")
for i in range(NE):
    e(f"s_waitcnt vmcnt({2*NE-1-i})")
    e(f"v_lshl_or_b32 v{vP+2*i}, v{vD+i}, 14, v{vS+i}    ; rec")
e("s_waitcnt vmcnt(0) lgkmcnt(0)")
if LATE: arrive(RISS)
stamp("role loads landed", 3)
for i in range(NE):
    e(f"v_and_b32 v{vU0}, 15, v{vR+i}")
    e(f"v_lshrrev_b32 v{vU1}, 4, v{vR+i}")
    e(f"v_lshl_add_u32 v{vU0}, v{vU0}, 3, v{vB+i}")
    e(f"v_mul_u32_u24 v{vU1}, {CHB}, v{vU1}")
    e(f"v_add_u32 v{vU0}, v{vU0}, v{vU1}")
    e(f"v_cmp_gt_u32 vcc, 32, v{vR+i}")
    e(f"v_mov_b32 v{vK}, {640000 - i*2048}")
    e(f"v_cmp_gt_u32 {sp(sM0)}, v{vK}, v{vE}")
    e(f"s_and_b64 exec, vcc, {sp(sM0)}")
    e(f"ds_write_b64 v{vU0}, {vr(vP+2*i,2)}")
    e(f"s_mov_b64 exec, -1")
e("s_waitcnt lgkmcnt(0)")
arrive(RCNT2)
wait_cnt(NONCE, 0, nz=True, dst=sNON)
wait_cnt(RCNT2, 8, dst=sX2)
stamp("B2", 6)
c("copy-out: granule x = t + 512i (<2000): cell b = x>>3, q = x&7")
GA = 24; vCn = 40; vR0 = 44; vX = 45; vF = 46; vY = 47; vXL = 52
e(f"v_lshlrev_b32 v{vX}, 4, v{tid}               ; x*16 (i=0)")
e(f"v_lshrrev_b32 v{vY}, 3, v{tid}")
e(f"v_lshl_add_u32 v{vY}, v{vY}, 2, s{sX0}")
e(f"v_add_u32 v{vXL}, {QT}, v{vX}")
for i in range(4):
    if i == 3:
        e(f"v_cmp_gt_u32 vcc, {2000-1536}, v{tid}")
        e("s_mov_b64 exec, vcc")
    e(f"ds_read_b128 {vr(GA+4*i,4)}, v{vXL} offset:{i*8192}")
    e(f"ds_read_b32 v{vCn+i}, v{vY} offset:{i*256}")
e("s_mov_b64 exec, -1")
e(f"v_and_b32 v{vR0}, 7, v{tid}")
e(f"v_lshlrev_b32 v{vR0}, 1, v{vR0}              ; r0 = 2q")
e(f"s_mul_i32 s{sT0}, s{sC}, {CHB}")
e(f"s_mul_i32 s{sTAG}, s{sNON}, 0x9E3779B1")
e(f"s_lshr_b32 s{sTAG}, s{sTAG}, 23")
e(f"s_lshl_b32 s{sT1}, s{sTAG}, 23")
def granule(G, cn, r0off, so, ioff):
    e(f"v_mov_b32 v{vF}, s{sT1}")
    e(f"v_cmp_lt_u32 vcc, 16, v{cn}")
    e(f"v_cndmask_b32 v{vU0}, 0, 1, vcc")
    e(f"v_lshl_or_b32 v{vF}, v{vU0}, 21, v{vF}")
    e(f"v_cmp_lt_u32 vcc, 32, v{cn}")
    e(f"v_cndmask_b32 v{vU0}, 0, 1, vcc")
    e(f"v_lshl_or_b32 v{vF}, v{vU0}, 22, v{vF}")
    e(f"v_add_u32 v{vU0}, {r0off}, v{vR0}")
    e(f"v_cmp_lt_u32 vcc, v{vU0}, v{cn}")
    e(f"v_cndmask_b32 v{G}, 0, v{G}, vcc")
    e(f"v_add_u32 v{vU0}, 1, v{vU0}")
    e(f"v_cmp_lt_u32 vcc, v{vU0}, v{cn}")
    e(f"v_cndmask_b32 v{G+2}, 0, v{G+2}, vcc")
    e(f"v_and_b32 v{G+1}, 0xffff, v{G+1}")
    e(f"v_lshl_or_b32 v{vU0}, v{G+3}, 16, v{G+1}      ; d2")
    e(f"v_or_b32 v{G+1}, v{G+2}, v{vF}                ; d1")
    e(f"v_or_b32 v{G}, v{G}, v{vF}                    ; d0")
    e(f"v_mov_b32 v{G+2}, v{vU0}")
    e(f"v_mov_b32 v{G+3}, s{sNON}")
    e(f"buffer_store_dwordx4 {vr(G,4)}, v{vX}, {srd(S_WS)}, s{so} offen sc1")
for i in range(4):
    if i == 3:
        e(f"v_cmp_gt_u32 vcc, {2000-1536}, v{tid}")
        e(f"s_mov_b64 {sp(sM1)}, vcc")
        e(f"s_mov_b64 exec, vcc")
    e(f"s_waitcnt lgkmcnt({2*(3-i)})")
    granule(GA+4*i, vCn+i, 0, sT0, i)
    e(f"s_add_u32 s{sT0}, s{sT0}, 8192")
e("s_mov_b64 exec, -1")
stamp("role stores issued", 5)
c("B lines (ranks 16..31) for cells with count > 16")
e(f"s_mul_i32 s{sT0}, s{sC}, {CHB}")
e(f"s_add_u32 s{sT0}, s{sT0}, {CELLB}")
for i in range(4):
    e(f"v_cmp_lt_u32 vcc, 16, v{vCn+i}")
    if i == 3:
        e(f"s_and_b64 vcc, vcc, {sp(sM1)}")
    e("s_mov_b64 exec, vcc")
    e(f"s_cbranch_execz L_nob{i}")
    e(f"ds_read_b128 {vr(48,4)}, v{vXL} offset:{CHB+i*8192}")
    e("s_waitcnt lgkmcnt(0)")
    granule(48, vCn+i, 16, sT0, i)
    e("s_nop 1")
    lab(f"L_nob{i}")
    e("s_mov_b64 exec, -1")
    e(f"s_add_u32 s{sT0}, s{sT0}, 8192")
e("s_branch L_common")

lab("L_notbin")
def wprep_role(tag, fb):
    slice_lane(vSL, sCT)
    e(f"s_lshl_b32 s{sT2}, s{sCT}, 13")
    e(f"s_add_u32 s{sT2}, s{sT2}, {QT}")
    trpat(vTRP, vU0, vU1)
    e(f"v_add_u32 v{vTRP}, s{sT2}, v{vTRP}")
    e(f"v_lshlrev_b32 v{vST}, 4, v{vL}")
    for i in range(8):
        e(f"s_add_u32 m0, s{sT2}, {i*1024}")
        e(f"s_mov_b32 s{sT1}, {32768 + i*4096}")
        e(f"buffer_load_dwordx4 v{vSL}, {srd(S_WH)}, s{sT1} offen lds")
    e(f"s_lshl_b32 s{sC}, s{sCT}, 13")
    e(f"s_add_u32 s{sC}, s{sC}, {WH2F}")
    e("s_waitcnt vmcnt(0)")
    for s_ in range(8):
        e(f"ds_read_b64_tr_b16 {vr(AF+4*s_,2)}, v{vTRP} offset:{s_*1024}")
        e(f"ds_read_b64_tr_b16 {vr(AF+4*s_+2,2)}, v{vTRP} offset:{s_*1024+256}")
    for s_ in range(8):
        if s_ == 4:
            e(f"s_add_u32 s{sC}, s{sC}, 4096")
        e(f"s_waitcnt lgkmcnt({2*(7-s_)})")
        e(f"buffer_store_dwordx4 {vr(AF+4*s_,4)}, v{vST}, {srd(S_WS)}, s{sC} offen offset:{(s_%4)*1024} sc1")
e("s_waitcnt lgkmcnt(0)")
stamp("kernarg", 1)
kernarg_copy()
arrive(RISS)
e(f"s_cmp_eq_u32 s2, {WPR}")
e("s_cbranch_scc0 L_common")
e(f"s_cmp_ge_u32 s{sW}, 4")
e("s_cbranch_scc1 L_common")
wprep_role("", False)
def idx_w():
    e(f"s_mov_b32 s{sT1}, {FLG + NG*4}")
signal(4, idx_w, "w", nl=3)
e("s_branch L_common")

lab("L_front")
QC, QP, QH = 0, 2, 3
WF = 16
KB = 124
PWR = 116
fw = sX2
e(f"s_sub_u32 s{fw}, s{sW}, 8")
c("own rows dma: instr idx u covers rows 4u..4u+3 ; lane: row = 4u + (l>>4); chunk = (l&15) ^ (row&15)")
e(f"v_lshrrev_b32 v{vT[4]}, 4, v{vL}")
e(f"v_and_b32 v{vT[1]}, 15, v{vL}")
e(f"v_xor_b32 v{vT[1]}, v{vT[1]}, v{vT[4]}")
e(f"s_lshl_b32 s{sT1}, s{sCT}, 2")
e(f"v_xor_b32 v{vT[1]}, s{sT1}, v{vT[1]}")
e(f"v_lshlrev_b32 v{vT[1]}, 4, v{vT[1]}")
e(f"v_lshl_add_u32 v{vT[1]}, v{vT[4]}, 8, v{vT[1]}")
slice_lane(vT[2], sCT)
e(f"s_lshl_b32 s{sT2}, s{fw}, 13")
e(f"s_mul_i32 s{sT0}, s2, {40*256}")
e(f"s_lshl_b32 s{sT1}, s{fw}, 10")
e(f"s_add_u32 s{sT0}, s{sT0}, s{sT1}")
e(f"v_mul_u32_u24 v{vT[3]}, 6, v{vL}")
e(f"v_and_b32 v{vT[5]}, 31, v{vL}")
e(f"s_lshl_b32 s{sT3}, s{sCT}, 5")
e(f"v_add_u32 v{vT[5]}, s{sT3}, v{vT[5]}")
e(f"v_lshlrev_b32 v{vT[5]}, 1, v{vT[5]}           ; (32ct + n)*2")
e("s_waitcnt lgkmcnt(0)")
stamp("kernarg", 1)
kernarg_copy()
e(f"s_add_u32 m0, s{sT1}, {OWN}")
e("s_nop 0")
e(f"buffer_load_dwordx4 v{vT[1]}, {srd(S_H)}, s{sT0} offen lds")
e(f"s_cmp_ge_u32 s{fw}, 2")
e("s_cbranch_scc1 L_f_no2")
e(f"s_add_u32 m0, s{sT1}, {OWN+8192}")
e(f"s_add_u32 s{sT0}, s{sT0}, 8192")
e(f"buffer_load_dwordx4 v{vT[1]}, {srd(S_H)}, s{sT0} offen lds")
lab("L_f_no2")
c("wave 10: own pos (lane l<40 loads x,y,z u16)")
e(f"s_cmp_eq_u32 s{fw}, 2")
e("s_cbranch_scc0 L_f_nopos")
e(f"s_mul_i32 s{sT0}, s2, 240")
e(f"v_cmp_gt_u32 vcc, 40, v{vL}")
e("s_mov_b64 exec, vcc")
for k in range(3):
    e(f"buffer_load_ushort v{PWR+k}, v{vT[3]}, {srd(S_POS)}, s{sT0} offen offset:{2*k}")
e("s_mov_b64 exec, -1")
lab("L_f_nopos")
if PPF:
    c("L2 warm-up of pos: segment (wg>>3)&7 of 7680 B, 960 B per F wave (result unused)")
    e(f"s_lshr_b32 s{sT1}, s2, 3")
    e(f"s_and_b32 s{sT1}, s{sT1}, 7")
    e(f"s_lshl_b32 s{sT1}, s{sT1}, 3")
    e(f"s_add_u32 s{sT1}, s{sT1}, s{fw}")
    e(f"s_mul_i32 s{sT1}, s{sT1}, 960")
    e(f"v_lshlrev_b32 v{vT[7]}, 4, v{vL}")
    e(f"buffer_load_dwordx4 {vr(108,4)}, v{vT[7]}, {srd(S_POS)}, s{sT1} offen")
c("K1B raw: w_e rows 256, 257 (QP uses them)")
e(f"s_mov_b32 s{sT1}, 65536")
e(f"buffer_load_ushort v{KB}, v{vT[5]}, {srd(S_WE)}, s{sT1} offen")
e(f"buffer_load_ushort v{KB+1}, v{vT[5]}, {srd(S_WE)}, s{sT1} offen offset:256")
NV = 112
trpat(vT[6], vT[0], vT[1])
e(f"s_add_u32 s{sT3}, s{sT2}, {REC}")
e(f"v_add_u32 v{vT[6]}, s{sT3}, v{vT[6]}")
stamp("role loads issued", 2)
c("let the role loads go first")
wait_cnt(RISS, 8)
stamp("B1", 4)
c("weight slice: QP: W1 (w_e rows 0..127), QH: WH1 (w_h rows 0..127)")
e(f"s_cmp_eq_u32 s{sQ}, {QP}")
e("s_cbranch_scc0 L_f_slh")
for i in range(8):
    e(f"s_add_u32 m0, s{sT2}, {REC + i*1024}")
    e(f"s_mov_b32 s{sT1}, {i*4096}")
    e(f"buffer_load_dwordx4 v{vT[2]}, {srd(S_WE)}, s{sT1} offen lds")
e("s_branch L_f_sld")
lab("L_f_slh")
for i in range(8):
    e(f"s_add_u32 m0, s{sT2}, {REC + i*1024}")
    e(f"s_mov_b32 s{sT1}, {i*4096}")
    e(f"buffer_load_dwordx4 v{vT[2]}, {srd(S_WH)}, s{sT1} offen lds")
lab("L_f_sld")
e(f"s_add_u32 s{sT2}, s{sT2}, {REC}")
e("s_waitcnt vmcnt(8)")
arrive(FCNT)
c("wave 10: PTF (f32 x4 per node)")
e(f"s_cmp_eq_u32 s{fw}, 2")
e("s_cbranch_scc0 L_noptf")
for k in range(3): e(f"v_lshlrev_b32 v{PWR+k}, 16, v{PWR+k}")
e(f"v_mov_b32 v{PWR+3}, 0")
e(f"v_lshlrev_b32 v{vT[0]}, 4, v{vL}")
e(f"v_add_u32 v{vT[0]}, {PTF}, v{vT[0]}")
e(f"v_cmp_gt_u32 vcc, 40, v{vL}")
e("s_mov_b64 exec, vcc")
e(f"ds_write_b128 v{vT[0]}, {vr(PWR,4)}")
e("s_mov_b64 exec, -1")
lab("L_noptf")
stamp("role loads landed", 3)
e("s_waitcnt vmcnt(0)")
stamp("slices landed", 6)
c("wave 15: first read of the nonce table (checked after the H1 work)")
e(f"v_lshlrev_b32 v{NV+1}, 2, v{vL}")
e(f"v_mov_b32 v{NV}, 0")
e(f"s_cmp_eq_u32 s{sW}, 15")
e("s_cbranch_scc0 L_f_nont")
e(f"buffer_load_dword v{NV}, v{NV+1}, {srd(S_DBG)}, 0 offen sc1")
lab("L_f_nont")
wait_cnt(FCNT, 8)
for s_ in range(8):
    e(f"ds_read_b64_tr_b16 {vr(WF+4*s_,2)}, v{vT[6]} offset:{s_*1024}")
    e(f"ds_read_b64_tr_b16 {vr(WF+4*s_+2,2)}, v{vT[6]} offset:{s_*1024+256}")
def rowreg(s_): return (ACC + 4*s_) if s_ < 4 else (QF + 4*(s_-4))
D1 = 96
e(f"v_lshrrev_b32 v{vT[3]}, 5, v{vL}           ; hi")
e(f"s_cmp_eq_u32 s{sQ}, {QP}")
e("s_cbranch_scc0 L_f_h1")
c("P' task: rows m: slot = m&7, g' = m>>3 ; node = 5*(4B + g') + max(slot-3,0)")
e(f"v_and_b32 v{vT[0]}, 7, v{vL}")
e(f"v_subrev_u32 v{vT[0]}, 3, v{vT[0]}")
e(f"v_max_i32 v{vT[0]}, 0, v{vT[0]}")
e(f"v_bfe_u32 v{vT[1]}, v{vL}, 3, 2")
e(f"v_mad_u32_u24 v{vT[0]}, v{vT[1]}, 5, v{vT[0]}        ; node (B=0)")
row_addr(vT[1], vT[0], vT[3], vT[2])
e(f"v_add_u32 v{vT[0]}, 20, v{vT[0]}")
vR2 = 114
row_addr(vR2, vT[0], vT[3], vT[2])
for s_ in range(8):
    e(f"v_xor_b32 v{vT[2]}, {s_<<5}, v{vT[1]}")
    e(f"ds_read_b128 {vr(rowreg(s_),4)}, v{vT[2]}")
def zero_stage():
    c("zero own staging area (8 KB) once the fragments are in registers")
    for i in range(4): e(f"v_mov_b32 v{116+i}, 0")
    e(f"v_lshlrev_b32 v{vT[0]}, 4, v{vL}")
    e(f"v_add_u32 v{vT[0]}, s{sT2}, v{vT[0]}")
c("K1B: (wd, we) scaled, hi and lo parts")
e(f"s_mov_b32 s{sT0}, 0x{NLOG2E:08x}")
e(f"s_mov_b32 s{sT1}, 0xffff0000")
k0, k1, k2, k3 = 116, 117, 118, 119
e(f"v_lshlrev_b32 v{k0}, 16, v{KB}")
e(f"v_lshlrev_b32 v{k1}, 16, v{KB+1}")
e(f"v_mul_f32 v{k0}, s{sT0}, v{k0}")
e(f"v_mul_f32 v{k1}, s{sT0}, v{k1}")
e(f"v_cvt_pk_bf16_f32 v{KB}, v{k0}, v{k1}")
e(f"v_lshlrev_b32 v{k2}, 16, v{KB}")
e(f"v_and_b32 v{k3}, s{sT1}, v{KB}")
e(f"v_sub_f32 v{k0}, v{k0}, v{k2}")
e(f"v_sub_f32 v{k1}, v{k1}, v{k3}")
e(f"v_cvt_pk_bf16_f32 v{KB+1}, v{k0}, v{k1}")
zero_stage()
e("s_waitcnt lgkmcnt(8)")
for i in range(8):
    e(f"ds_write_b128 v{vT[0]}, {vr(116,4)} offset:{i*1024}")
c("row block 0 (rows landed after the 8 zero writes are queued: in-order LDS)")
e("s_waitcnt lgkmcnt(8)")
for s_ in range(8):
    mfma(FACC, rowreg(s_), WF+4*s_, "0" if s_ == 0 else vr(FACC,16))
    e(f"v_xor_b32 v{vT[2]}, {s_<<5}, v{vR2}")
    e(f"ds_read_b128 {vr(rowreg(s_),4)}, v{vT[2]}")
for s_ in range(8):
    e(f"s_waitcnt lgkmcnt({7-s_})")
    mfma(D1, rowreg(s_), WF+4*s_, "0" if s_ == 0 else vr(D1,16))
c("P' write: BXP + g*2048 + (32ct + n)*16 + hi*8 ; hi=0 lanes: slots 0,1 = (wd,we) hi ; slot 2 = wd lo ; slot 3 = P'[j=0]")
e(f"v_and_b32 v{vT[0]}, 31, v{vL}")
e(f"v_lshlrev_b32 v{vT[0]}, 4, v{vT[0]}")
e(f"v_lshl_add_u32 v{vT[0]}, v{vT[3]}, 3, v{vT[0]}")
e(f"s_lshl_b32 s{sT0}, s{sCT}, 9")
e(f"s_add_u32 s{sT0}, s{sT0}, {BXP}")
e(f"v_add_u32 v{vT[0]}, s{sT0}, v{vT[0]}")
e(f"v_cmp_gt_u32 vcc, 32, v{vL}")
e(f"v_mov_b32 v{vT[1]}, 0xffff0000")
e(f"v_cndmask_b32 v{vT[1]}, -1, v{vT[1]}, vcc         ; mask M")
e(f"v_and_b32 v{KB+1}, 0xffff, v{KB+1}")
e(f"v_cndmask_b32 v{KB+1}, 0, v{KB+1}, vcc")
e(f"s_mov_b32 s{sK2}, 0x{NLOG2E:08x}")
def pwrite(r0, g):
    for i in range(4):
        e(f"v_mul_f32 v{r0+i}, s{sK2}, v{r0+i}")
    e(f"v_cvt_pk_bf16_f32 v{r0}, v{r0}, v{r0+1}")
    e(f"v_cvt_pk_bf16_f32 v{r0+1}, v{r0+2}, v{r0+3}")
    e(f"v_cndmask_b32 v{r0}, v{r0}, v{KB}, vcc")
    e(f"v_and_or_b32 v{r0+1}, v{r0+1}, v{vT[1]}, v{KB+1}")
    e(f"ds_write_b64 v{vT[0]}, {vr(r0,2)} offset:{g*2048}")
for g in range(4):
    pwrite(FACC+4*g, g)
e("s_nop 3")
for g in range(4):
    pwrite(D1+4*g, 4+g)
e("s_branch L_f_done")
lab("L_f_h1")
c("H1 A: rows n = 0..31 as B operand ; H1 B: rows min(32+n,39) as A operand")
e(f"v_and_b32 v{vT[4]}, 31, v{vL}")
row_addr(vT[1], vT[4], vT[3], vT[2])
e(f"v_add_u32 v{vT[4]}, 32, v{vT[4]}")
e(f"v_min_u32 v{vT[4]}, 39, v{vT[4]}")
row_addr(vR2, vT[4], vT[3], vT[2])
for s_ in range(8):
    e(f"v_xor_b32 v{vT[2]}, {s_<<5}, v{vT[1]}")
    e(f"ds_read_b128 {vr(rowreg(s_),4)}, v{vT[2]}")
zero_stage()
e("s_waitcnt lgkmcnt(8)")
for i in range(8):
    e(f"ds_write_b128 v{vT[0]}, {vr(116,4)} offset:{i*1024}")
e("s_waitcnt lgkmcnt(8)")
for s_ in range(8):
    mfma(FACC, WF+4*s_, rowreg(s_), "0" if s_ == 0 else vr(FACC,16))
    e(f"v_xor_b32 v{vT[2]}, {s_<<5}, v{vR2}")
    e(f"ds_read_b128 {vr(rowreg(s_),4)}, v{vT[2]}")
for s_ in range(8):
    e(f"s_waitcnt lgkmcnt({7-s_})")
    mfma(D1, rowreg(s_), WF+4*s_, "0" if s_ == 0 else vr(D1,16))
e(f"s_mov_b32 s{sK2}, 0x{NLOG2E:08x}")
for r in range(16):
    e(f"v_mul_f32 v{FACC+r}, s{sK2}, v{FACC+r}")
e("s_nop 3")
for r in range(4):
    e(f"v_mul_f32 v{FB+r}, s{sK2}, v{D1+r}")
c("wave 15: nonce table complete?")
e(f"s_cmp_eq_u32 s{sW}, 15")
e("s_cbranch_scc0 L_f_done")
e(f"s_mov_b32 s{sCNT}, 0")
lab("L_npoll")
e("s_waitcnt vmcnt(0)")
stamp_dyn(32, sCNT)
e(f"v_cmp_eq_u32 vcc, 0, v{NV}")
e("s_bitset0_b32 vcc_hi, 31")
e("s_cmp_eq_u64 vcc, 0")
e("s_cbranch_scc1 L_npoll_ok")
e(f"s_sleep {NSL}")
e(f"s_add_u32 s{sCNT}, s{sCNT}, 1")
e(f"buffer_load_dword v{NV}, v{NV+1}, {srd(S_DBG)}, 0 offen sc1")
e(f"s_cmp_lt_u32 s{sCNT}, {NPOLL}")
e("s_cbranch_scc1 L_npoll")
e("s_waitcnt vmcnt(0)")
e(f"v_mov_b32 v{vT[0]}, {OVF}")
e(f"v_mov_b32 v{vT[1]}, 3")
e(f"ds_or_b32 v{vT[0]}, v{vT[1]}")
lab("L_npoll_ok")
e(f"v_add_u32 v{vT[0]}, {NTAB}, v{NV+1}")
e(f"ds_write_b32 v{vT[0]}, v{NV}")
e(f"v_mov_b32 v{vT[0]}, {NOK}")
e(f"v_mov_b32 v{vT[1]}, 1")
e("s_waitcnt lgkmcnt(0)")
e(f"ds_write_b32 v{vT[0]}, v{vT[1]}")
lab("L_f_done")
stamp("front done", 5)

lab("L_common")
e(f"s_lshr_b32 s{sG}, s{sW}, 1")
e(f"s_and_b32 s{sCH2}, s{sW}, 1")
e(f"s_mul_i32 s{sGB}, s{sG}, {GSTR}")
e(f"s_lshl_b32 s{sB0}, s{sW}, 12")
e(f"s_add_u32 s{sB0}, s{sB0}, {QT}")
e(f"s_add_u32 s{sB1}, s{sB0}, 2048")
c("lane constants (REC rows swizzled: 16-B chunk c of row with rank p at position c ^ ((p>>2)&3))")
e(f"v_lshrrev_b32 v{vT[3]}, 5, v{vL}           ; hi")
e(f"v_lshrrev_b32 v{vT[4]}, 3, v{vL}")
e(f"v_lshlrev_b32 v{vLK}, 6, v{vT[4]}")
e(f"v_xor_b32 v{vT[4]}, 1, v{vT[3]}")
e(f"v_lshl_add_u32 v{vLK}, v{vT[4]}, 4, v{vLK}")
e(f"s_add_u32 s{sT0}, s{sGB}, {REC}")
e(f"v_add_u32 v{vLK}, s{sT0}, v{vLK}")
e(f"v_and_b32 v{vT[5]}, 7, v{vL}")
e(f"v_bfe_u32 v{vT[6]}, v{vL}, 4, 1")
e(f"v_lshlrev_b32 v{vT[4]}, 2, v{vT[6]}")
e(f"v_xor_b32 v{vT[5]}, v{vT[5]}, v{vT[4]}")
e(f"v_lshlrev_b32 v{vQD}, 4, v{vT[5]}")
e(f"s_lshl_b32 s{sT1}, s{sCH2}, 7")
e(f"v_add_u32 v{vQD}, s{sT1}, v{vQD}            ; ch*128 + (((l&7) ^ 4*((l>>4)&1))<<4)")
c("vT6 = colhalf ; r = (l>>2)&3 ; c4 = l&3")
e(f"v_bfe_u32 v{vT[4]}, v{vL}, 2, 2            ; r")
e(f"v_and_b32 v{vT[5]}, 3, v{vL}")
e(f"v_lshlrev_b32 v{vT[2]}, 5, v{vT[6]}")
e(f"v_lshl_add_u32 v{vT[2]}, v{vT[5]}, 3, v{vT[2]}   ; colhalf*32 + c4*8")
e(f"v_lshl_add_u32 v{vTRQ0}, v{vT[3]}, 3, v{vT[4]}   ; 8hi + r")
e(f"v_lshl_add_u32 v{vTRQ0}, v{vTRQ0}, 7, v{vT[2]}")
e(f"v_bfe_u32 v{vT[5]}, v{vL}, 3, 1            ; (r>>1)&1")
e(f"v_lshl_add_u32 v{vTRQ0}, v{vT[5]}, 6, v{vTRQ0}")
e(f"v_add_u32 v{vTRQ0}, s{sB0}, v{vTRQ0}")
e(f"v_xor_b32 v{vTRQ1}, 64, v{vTRQ0}")
c("vTRS = REC + g*GSTR + (4hi + r)*64 + ((colhalf*32 + c4*8) ^ (hi<<4))")
e(f"v_lshlrev_b32 v{vT[5]}, 4, v{vT[3]}")
e(f"v_xor_b32 v{vT[2]}, v{vT[2]}, v{vT[5]}")
e(f"v_lshl_add_u32 v{vTRS}, v{vT[3]}, 2, v{vT[4]}    ; 4hi + r")
e(f"v_lshl_add_u32 v{vTRS}, v{vTRS}, 6, v{vT[2]}")
e(f"v_add_u32 v{vTRS}, s{sT0}, v{vTRS}")
c("OHD: lanes 0..15 and 48..63 read chunk 0 of row (l&15) at position (row>>2)&3; others read ZERO16")
e(f"v_and_b32 v{vT[4]}, 15, v{vL}")
e(f"v_bfe_u32 v{vT[5]}, v{vL}, 2, 2")
e(f"v_lshlrev_b32 v{vT[4]}, 6, v{vT[4]}")
e(f"v_lshl_add_u32 v{vT[4]}, v{vT[5]}, 4, v{vT[4]}")
e(f"v_add_u32 v{vT[4]}, s{sT0}, v{vT[4]}")
e(f"v_cmp_eq_u32 vcc, v{vT[3]}, v{vT[6]}")
e(f"v_mov_b32 v{vT[5]}, {ZERO16}")
e(f"v_cndmask_b32 v{vOD}, v{vT[5]}, v{vT[4]}, vcc")
e(f"v_mov_b32 v{vT[4]}, 1024")
e(f"v_cndmask_b32 v{vODM}, 0, v{vT[4]}, vcc")
RA = 48; RB = 52; vGA = 88
PS = [56, 58, 60, 62]
VI = [80, 81, 82, 83]
VR = [84, 85, 86, 87]
vOne = 89
qP = 90
MK = [sM0, sM1, sPA, sPB]
e(f"s_mov_b32 s{sNODE}, 1")
e(f"s_cmp_ge_u32 s{sW}, 8")
e("s_cbranch_scc1 L_frec")
c("---- R waves: no records ; wave 7 waits for the Q / WH2F flags once the records have landed")
for m in MK: e(f"s_mov_b64 {sp(m)}, 0")
e(f"s_cmp_eq_u32 s{sW}, 7")
e("s_cbranch_scc0 L_ba")
e("s_setprio 0")
wait_cnt(RLAND, QST)
e(f"v_mov_b32 v{vT[0]}, {NTAB}")
e(f"ds_read_b32 v{vT[1]}, v{vT[0]}")
e(f"v_lshlrev_b32 v{vT[4]}, 4, v{vL}")
e(f"s_mov_b32 s{sCNT}, 0")
e(f"s_mov_b32 s{sT2}, {FLG}")
e("s_waitcnt lgkmcnt(0)")
e(f"v_readfirstlane_b32 s{sNON}, v{vT[1]}")
if FORCE == "fb":
    e(f"s_xor_b32 s{sNON}, s{sNON}, 2")
e("s_mov_b32 exec_lo, -1")
e("s_mov_b32 exec_hi, 0xff")
lab("L_qpoll")
e(f"buffer_load_dwordx4 {vr(RA,4)}, v{vT[4]}, {srd(S_WS)}, s{sT2} offen sc1")
e(f"s_add_u32 s{sCNT}, s{sCNT}, 1")
e("s_waitcnt vmcnt(0)")
stamp_dyn(19, sCNT)
for k in range(4):
    e(f"v_xor_b32 v{RA+k}, s{sNON}, v{RA+k}")
e(f"v_or3_b32 v{RA}, v{RA}, v{RA+1}, v{RA+2}")
e(f"v_or_b32 v{RA}, v{RA}, v{RA+3}")
e(f"v_cmp_ne_u32 vcc, 0, v{RA}")
e("s_cmp_eq_u64 vcc, 0")
e("s_cbranch_scc1 L_qp_ok")
e(f"s_sleep {QSL}")
e(f"s_cmp_lt_u32 s{sCNT}, {NPOLL}")
e("s_cbranch_scc1 L_qpoll")
e(f"v_mov_b32 v{vT[0]}, {OVF}")
e(f"v_mov_b32 v{vT[1]}, 2")
e(f"ds_or_b32 v{vT[0]}, v{vT[1]}")
lab("L_qp_ok")
e("s_mov_b64 exec, -1")
e("s_branch L_ba")
lab("L_frec")
c("---- F waves: granule (16 B, two records) per lane: c = 8fw + (l>>3), q = l&7 : c*32000 + q*16 (+ b*128)")
e("s_waitcnt lgkmcnt(0)")
arrive(FCNT2)
e(f"s_sub_u32 s{sT0}, s{sW}, 8")
e(f"s_lshl_b32 s{sT0}, s{sT0}, 3")
e(f"v_lshrrev_b32 v{vT[4]}, 3, v{vL}")
e(f"v_add_u32 v{vT[4]}, s{sT0}, v{vT[4]}          ; c")
e(f"v_mul_u32_u24 v{vGA}, {CHB}, v{vT[4]}")
e(f"v_and_b32 v{vT[5]}, 7, v{vL}")
e(f"v_lshl_add_u32 v{vGA}, v{vT[5]}, 4, v{vGA}")
e(f"v_cmp_gt_u32 {sp(sPA)}, {NCH}, v{vT[4]}")
e(f"s_lshl_b32 s{sT2}, s2, 7")
e(f"s_add_u32 s{sT3}, s{sT2}, {CELLB}")
e(f"s_mov_b64 {sp(sPB)}, {sp(sPA)}")
e(f"s_mov_b64 {sp(sEX)}, {sp(sPA)}")
vNON = 16; vTAG = 17
e(f"v_lshlrev_b32 v{vT[4]}, 2, v{vT[4]}")
e(f"v_add_u32 v{vT[4]}, {NTAB}, v{vT[4]}")
wait_cnt(NOK, 0, nz=True)
e(f"ds_read_b32 v{vNON}, v{vT[4]}")
e(f"s_mov_b32 s{sT0}, 0x9E3779B1")
e("s_waitcnt lgkmcnt(0)")
e(f"v_mul_lo_u32 v{vTAG}, v{vNON}, s{sT0}")
e(f"v_lshrrev_b32 v{vTAG}, 23, v{vTAG}")
if FORCE == "ovf":
    e(f"v_xor_b32 v{vTAG}, 1, v{vTAG}")
e(f"s_mov_b32 s{sCNT}, 0")
stamp("B3", 7)
_st[0] = 8
e(f"s_mov_b64 {sp(sM2)}, {sp(sPB)}")
lab("L_rpoll")
e(f"s_cmp_eq_u64 {sp(sPA)}, 0")
e("s_cbranch_scc1 L_rp_noa")
e(f"s_mov_b64 exec, {sp(sPA)}")
e(f"buffer_load_dwordx4 {vr(RA,4)}, v{vGA}, {srd(S_WS)}, s{sT2} offen sc1")
lab("L_rp_noa")
e(f"s_cmp_eq_u64 {sp(sM2)}, 0")
e("s_cbranch_scc1 L_rp_nob")
e(f"s_mov_b64 exec, {sp(sM2)}")
e(f"buffer_load_dwordx4 {vr(RB,4)}, v{vGA}, {srd(S_WS)}, s{sT3} offen sc1")
lab("L_rp_nob")
e("s_mov_b64 exec, -1")
e(f"s_add_u32 s{sCNT}, s{sCNT}, 1")
e("s_waitcnt vmcnt(0)")
stamp_dyn(19, sCNT)
e(f"v_lshrrev_b32 v{vT[0]}, 23, v{RA}")
e(f"v_lshrrev_b32 v{vT[1]}, 23, v{RB}")
e(f"v_cmp_eq_u32 vcc, v{vNON}, v{RA+3}")
e(f"v_cmp_eq_u32 {sp(sM0)}, v{vTAG}, v{vT[0]}")
e(f"v_cmp_eq_u32 {sp(sM1)}, v{vNON}, v{RB+3}")
e(f"v_cmp_eq_u32 {sp(sM2)}, v{vTAG}, v{vT[1]}")
e(f"v_bfe_u32 v{vT[0]}, v{RA}, 21, 1")
e(f"s_and_b64 vcc, vcc, {sp(sM0)}                ; A ok")
e(f"s_andn2_b64 {sp(sPA)}, {sp(sPA)}, vcc")
e(f"s_and_b64 {sp(sM1)}, {sp(sM1)}, {sp(sM2)}      ; B ok")
e(f"s_andn2_b64 {sp(sPB)}, {sp(sPB)}, {sp(sM1)}")
e(f"v_cmp_ne_u32 vcc, 0, v{vT[0]}                ; more")
e(f"s_andn2_b64 vcc, vcc, {sp(sPA)}")
if BSPEC:
    e(f"s_or_b64 vcc, vcc, {sp(sPA)}")
e(f"s_and_b64 {sp(sM2)}, {sp(sPB)}, vcc")
e(f"s_or_b64 vcc, {sp(sPA)}, {sp(sM2)}")
e("s_cmp_eq_u64 vcc, 0")
e("s_cbranch_scc1 L_rp_ok")
e(f"s_sleep {RSL}")
e(f"s_cmp_lt_u32 s{sCNT}, {NPOLL}")
e("s_cbranch_scc1 L_rpoll")
c("timed out: take the slow path")
e(f"v_mov_b32 v{vT[0]}, {OVF}")
e(f"v_mov_b32 v{vT[1]}, 1")
e(f"ds_or_b32 v{vT[0]}, v{vT[1]}")
e(f"s_andn2_b64 {sp(sEX)}, {sp(sEX)}, vcc")
lab("L_rp_ok")
e("s_mov_b64 exec, -1")
arrive(RLAND)
stamp("records landed")
c("masks: a,b = valid bits of granule A ; c,d = valid bits of granule B & more")
RCS = [RA, RA+1, RB, RB+1]
e(f"v_bfe_u32 v{vT[0]}, v{RA}, 20, 1")
e(f"v_bfe_u32 v{vT[1]}, v{RA+1}, 20, 1")
e(f"v_bfe_u32 v{vT[2]}, v{RB}, 20, 1")
e(f"v_bfe_u32 v{vT[3]}, v{RB+1}, 20, 1")
e(f"v_bfe_u32 v{vT[4]}, v{RA}, 21, 1")
e(f"v_bfe_u32 v{vT[5]}, v{RA}, 22, 1")
e(f"v_and_b32 v{vT[2]}, v{vT[2]}, v{vT[4]}")
e(f"v_and_b32 v{vT[3]}, v{vT[3]}, v{vT[4]}")
for k in range(4):
    e(f"v_cmp_ne_u32 {sp(MK[k])}, 0, v{vT[k]}")
e(f"v_cmp_ne_u32 {sp(sM2)}, 0, v{vT[5]}")
for k in range(4):
    e(f"s_and_b64 {sp(MK[k])}, {sp(MK[k])}, {sp(sEX)}")
e(f"s_and_b64 {sp(sM2)}, {sp(sM2)}, {sp(sEX)}")
e(f"v_mov_b32 v{vOne}, 1")
e(f"s_mov_b32 s{sT0}, {ALLOC}")
VS = [91, 92, 93, 94]
def s1_issue(k):
    e(f"v_and_b32 v{VS[k]}, 0x3fff, v{RCS[k]}")
    e(f"v_mul_u32_u24 v{vT[0]}, 6, v{VS[k]}")
    e(f"v_and_b32 v{vT[0]}, -4, v{vT[0]}")
    e(f"v_bfe_u32 v{VI[k]}, v{RCS[k]}, 14, 3")
    e(f"v_lshl_add_u32 v{vT[1]}, v{VI[k]}, 2, s{sT0}")
    e(f"s_mov_b64 exec, {sp(MK[k])}")
    e(f"buffer_load_dwordx2 {vr(PS[k],2)}, v{vT[0]}, {srd(S_POS)}, 0 offen")
    e(f"ds_add_rtn_u32 v{VR[k]}, v{vT[1]}, v{vOne}")
    e("s_mov_b64 exec, -1")
    e(f"v_mul_u32_u24 v{VI[k]}, {GSTR}, v{VI[k]}")
c("REC must be zero before placement (all F waves have zeroed their staging)")
wait_cnt(FCNT2, 8, dst=sT1)
for k in range(4):
    e(f"s_cmp_eq_u64 {sp(MK[k])}, 0")
    e(f"s_cbranch_scc1 L_s1i{k}")
    s1_issue(k)
    lab(f"L_s1i{k}")
e(f"s_cmp_eq_u64 {sp(sM2)}, 0")
e("s_cbranch_scc1 L_s1_noovf")
e(f"v_mov_b32 v{vT[0]}, {OVF}")
e(f"ds_or_b32 v{vT[0]}, v{vOne}")
lab("L_s1_noovf")
def s1_place(vR, vI, vS, msk, tag, slow=False):
    e(f"v_cmp_gt_u32 vcc, {CAP}, v{vR}")
    e(f"v_lshl_add_u32 v{vI}, v{vR}, 6, v{vI}")
    e(f"v_bfe_u32 v{vR}, v{vR}, 2, 2")
    e(f"v_lshl_add_u32 v{vI}, v{vR}, 4, v{vI}")
    e(f"v_xor_b32 v{vR}, 16, v{vI}")
    e(f"s_andn2_b64 exec, {sp(msk)}, vcc")
    e(f"s_cbranch_execz L_s1_ok{tag}")
    if slow:
        e(f"v_mov_b32 v{qP}, 1")
        e(f"v_mov_b32 v{vT[0]}, {PEND}")
        e(f"ds_write_b32 v{vT[0]}, v{vOne}")
    else:
        e(f"v_mov_b32 v{vT[0]}, {OVF}")
        e(f"ds_or_b32 v{vT[0]}, v{vOne}")
    lab(f"L_s1_ok{tag}")
    e(f"s_and_b64 {sp(msk)}, {sp(msk)}, vcc")
    e(f"s_mov_b64 exec, {sp(msk)}")
    e(f"ds_write_b16 v{vR}, v{vS} offset:{REC}")
    e("s_mov_b64 exec, -1")
e("s_waitcnt lgkmcnt(0)")
for k in range(4):
    e(f"s_cmp_eq_u64 {sp(MK[k])}, 0")
    e(f"s_cbranch_scc1 L_s1p{k}")
    s1_place(VR[k], VI[k], VS[k], MK[k], "abcd"[k])
    lab(f"L_s1p{k}")
def dma_issue(va, vb, sbuf):
    e(f"v_lshl_add_u32 v{va}, v{va}, 8, v{vQD}")
    e(f"v_lshl_add_u32 v{vb}, v{vb}, 8, v{vQD}")
    e(f"s_mov_b32 m0, s{sbuf}")
    e(f"s_nop 0")
    e(f"buffer_load_dwordx4 v{va}, {srd(S_Q)}, 0 offen{QSC} lds")
    e(f"s_add_u32 m0, s{sbuf}, 1024")
    e(f"s_nop 0")
    e(f"buffer_load_dwordx4 v{vb}, {srd(S_Q)}, 0 offen{QSC} lds")
lab("L_st2")
c("stage 2 (sparse, up to four records per lane)")
PD = [96, 100, 112, 116]
e(f"s_mov_b32 s{sT0}, {PTF}")
e(f"s_mov_b32 s{sK2}, 0xffff0000")
e(f"v_mov_b32 v{vT[6]}, 0x3f80")
for k in range(4):
    e(f"s_cmp_eq_u64 {sp(MK[k])}, 0")
    e(f"s_cbranch_scc1 L_s2r{k}")
    e(f"v_bfe_u32 v{vT[4]}, v{RCS[k]}, 14, 3")
    e(f"v_bfe_u32 v{vT[5]}, v{RCS[k]}, 17, 3")
    e(f"v_mad_u32_u24 v{vT[5]}, v{vT[4]}, 5, v{vT[5]}        ; k = 5g + j")
    e(f"v_min_u32 v{vT[5]}, 39, v{vT[5]}")
    e(f"v_lshl_add_u32 v{vT[5]}, v{vT[5]}, 4, s{sT0}")
    e(f"ds_read_b128 {vr(PD[k],4)}, v{vT[5]}")
    lab(f"L_s2r{k}")
e("s_waitcnt vmcnt(0) lgkmcnt(0)")
stamp("pos landed", 12)
def stage2_pass(rec, ea, hi_half, ps, pd, row, msk, tag):
    X = [104, 105, 106, 107, 108, 109]
    e(f"s_cmp_eq_u64 {sp(msk)}, 0")
    e(f"s_cbranch_scc1 L_s2_done{tag}")
    e(f"s_mov_b64 exec, {sp(msk)}")
    e(f"v_and_b32 v{X[0]}, 1, v{rec}")
    e(f"v_lshlrev_b32 v{X[0]}, 4, v{X[0]}        ; shift")
    e(f"v_alignbit_b32 v{X[1]}, v{ps+1}, v{ps}, v{X[0]}     ; x | y<<16")
    e(f"v_lshrrev_b32 v{X[2]}, v{X[0]}, v{ps+1}              ; z (low 16)")
    e(f"v_lshlrev_b32 v{ps}, 16, v{X[1]}")
    e(f"v_and_b32 v{ps+1}, s{sK2}, v{X[1]}")
    e(f"v_lshlrev_b32 v{X[2]}, 16, v{X[2]}")
    e(f"v_sub_f32 v{pd}, v{pd}, v{ps}")
    e(f"v_sub_f32 v{pd+1}, v{pd+1}, v{ps+1}")
    e(f"v_sub_f32 v{pd+2}, v{pd+2}, v{X[2]}")
    e(f"v_cvt_pk_bf16_f32 v{X[0]}, v{pd}, v{pd+1}")
    e(f"v_cvt_pk_bf16_f32 v{X[1]}, v{pd+2}, v{pd+2}     ; dz")
    e(f"v_bfe_u32 v{X[3]}, v{rec}, 17, 3")
    e(f"v_lshl_add_u32 v{X[3]}, v{X[3]}, 1, v{row}")
    e(f"v_xor_b32 v{X[5]}, 16, v{X[3]}")
    e(f"ds_write_b16 v{X[3]}, v{vT[6]} offset:{REC+6}")
    e(f"ds_write_b16 v{X[5]}, v{X[0]} offset:{REC+6}")
    e(f"v_xor_b32 v{X[5]}, 32, v{X[3]}")
    e(f"v_xor_b32 v{X[3]}, 48, v{X[3]}")
    e(f"ds_write_b16_d16_hi v{X[5]}, v{X[0]} offset:{REC+6}")
    e(f"ds_write_b16 v{X[3]}, v{X[1]} offset:{REC+6}")
    e(f"v_lshlrev_b32 v{pd}, 16, v{X[0]}")
    e(f"v_and_b32 v{pd+1}, s{sK2}, v{X[0]}")
    e(f"v_lshlrev_b32 v{pd+2}, 16, v{X[1]}")
    for k in range(3):
        e(f"v_mul_f32 v{pd+k}, v{pd+k}, v{pd+k}")
    e(f"v_cvt_pk_bf16_f32 v{X[2]}, v{pd}, v{pd+1}")
    e(f"v_cvt_pk_bf16_f32 v{X[4]}, v{pd+2}, v{pd+2}")
    e(f"v_lshlrev_b32 v{pd}, 16, v{X[2]}")
    e(f"v_and_b32 v{pd+1}, s{sK2}, v{X[2]}")
    e(f"v_lshlrev_b32 v{pd+2}, 16, v{X[4]}")
    e(f"v_add_f32 v{pd}, v{pd}, v{pd+1}")
    e(f"v_add_f32 v{pd}, v{pd}, v{pd+2}")
    e(f"v_cvt_pk_bf16_f32 v{X[2]}, v{pd}, 0")
    if hi_half:
        e(f"v_and_or_b32 v{X[4]}, v{ea}, s{sK2}, v{X[2]}")
    else:
        e(f"v_lshl_or_b32 v{X[4]}, v{ea}, 16, v{X[2]}")
    e(f"ds_write_b32 v{row}, v{X[4]} offset:{REC}")
    e(f"ds_write_b16 v{row}, v{X[2]} offset:{REC+4}")
    e("s_mov_b64 exec, -1")
    lab(f"L_s2_done{tag}")
for k in range(4):
    stage2_pass(RCS[k], [RA+2, RB+2][k>>1], k & 1, PS[k], PD[k], VI[k], MK[k], "abcd"[k])
stamp("stage2 done", 13)
lab("L_ba")
stamp("placed+Q", 9)
if not NOPRIO: e("s_setprio 0")
e(f"s_waitcnt lgkmcnt(0)")
e("s_barrier")
stamp("BA", 10)

lab("L_post")
c("count of own group, OVF, lookups for tiles 0,1")
e(f"s_lshl_b32 s{sT0}, s{sG}, 2")
e(f"s_add_u32 s{sT0}, s{sT0}, {ALLOC}")
e(f"v_mov_b32 v{vT[0]}, s{sT0}")
e(f"v_mov_b32 v{vT[1]}, {OVF}")
e(f"ds_read_b32 v{vT[2]}, v{vT[0]}")
e(f"ds_read_b32 v{vT[3]}, v{vT[1]}")
LK = [104, 105, 80, 81]
e(f"v_xor_b32 v{vT[4]}, 32, v{vLK}")
e(f"ds_read_u16 v{LK[0]}, v{vLK}")
e(f"ds_read_u16 v{LK[1]}, v{vT[4]} offset:512")
e(f"ds_read_u16 v{LK[2]}, v{vLK} offset:1024")
e(f"ds_read_u16 v{LK[3]}, v{vT[4]} offset:1536")
e(f"s_cmp_eq_u32 s{sMODE}, 0")
e("s_cbranch_scc1 L_post_fast")
c("slow path: skip quickly if nothing was placed in this pass")
e(f"v_mov_b32 v{vT[0]}, {ALLOC}")
e(f"ds_read_b128 {vr(96,4)}, v{vT[0]}")
e(f"ds_read_b128 {vr(100,4)}, v{vT[0]} offset:16")
e("s_waitcnt lgkmcnt(0)")
e(f"v_or3_b32 v96, v96, v97, v98")
e(f"v_or3_b32 v96, v96, v99, v100")
e(f"v_or3_b32 v96, v96, v101, v102")
e(f"v_or_b32 v96, v96, v103")
e("s_nop 0")
e(f"v_readfirstlane_b32 s{sT0}, v96")
e(f"v_readfirstlane_b32 s{sCO}, v{vT[2]}")
e("s_nop 3")
e(f"s_cmp_lg_u32 s{sT0}, 0")
e("s_cbranch_scc1 L_post_go")
e(f"s_mov_b32 s{sRETRY}, 0")
e("s_branch L_slow_adv")
lab("L_post_fast")
e("s_waitcnt lgkmcnt(4)")
e(f"v_readfirstlane_b32 s{sCO}, v{vT[2]}")
e(f"v_readfirstlane_b32 s{sT3}, v{vT[3]}           ; OVF")
e("s_nop 3")
e(f"s_cmp_lg_u32 s{sT3}, 0")
e("s_cbranch_scc1 L_slow_init")
lab("L_post_go")
e(f"s_min_u32 s{sCO}, s{sCO}, {CAP}")
e(f"s_add_u32 s{sNT}, s{sCO}, 15")
e(f"s_lshr_b32 s{sNT}, s{sNT}, 4")
e("s_waitcnt lgkmcnt(2)")
dma_issue(LK[0], LK[1], sB0)
stamp("dma0 issued", 11)
c("ID constants: lane (m,hi): step s elem i = (m == 16s + 8hi + i)")
e(f"v_and_b32 v{vT[4]}, 31, v{vL}")
e(f"v_lshrrev_b32 v{vT[5]}, 5, v{vL}")
e(f"v_lshlrev_b32 v{vT[5]}, 3, v{vT[5]}")
e(f"v_sub_u32 v{vT[4]}, v{vT[4]}, v{vT[5]}        ; x = m - 8hi")
e(f"v_mov_b32 v{vT[5]}, 0x3f80")
e(f"v_mov_b32 v{vT[6]}, 0x3f800000")
for s_ in range(2):
    for r in range(4):
        x0 = 16*s_ + 2*r
        e(f"v_cmp_eq_u32 vcc, {x0}, v{vT[4]}")
        e(f"v_cndmask_b32 v{ID+4*s_+r}, 0, v{vT[5]}, vcc")
        e(f"v_cmp_eq_u32 vcc, {x0+1}, v{vT[4]}")
        e(f"v_cndmask_b32 v{ID+4*s_+r}, v{ID+4*s_+r}, v{vT[6]}, vcc")
c("BXF address: BXP + g*2048 + (64ch + l)*16   (l = 32hi + n)")
e(f"s_lshl_b32 s{sT0}, s{sG}, 11")
e(f"s_lshl_b32 s{sT1}, s{sCH2}, 10")
e(f"s_add_u32 s{sT0}, s{sT0}, s{sT1}")
e(f"s_add_u32 s{sT0}, s{sT0}, {BXP}")
e(f"v_lshlrev_b32 v{vT[4]}, 4, v{vL}")
e(f"v_add_u32 v{vT[4]}, s{sT0}, v{vT[4]}")
c("SEG zero (first pass only)")
e(f"s_cmp_eq_u32 s{sNODE}, 0")
e("s_cbranch_scc1 L_noseg0")
e(f"s_mov_b32 s{sNODE}, 0")
for r in range(32):
    e(f"v_mov_b32 v{SEG+r}, 0")
lab("L_noseg0")
e("s_waitcnt lgkmcnt(0)")
dma_issue(LK[2], LK[3], sB1)
stamp("BB", 14)
_st[0] = 15
e(f"ds_read_b128 {vr(BXF,4)}, v{vT[4]}")
if not NOPRIO: e("s_setprio 3")
e(f"s_mov_b32 s{sU}, 0")
if XM:
    for i in range(4): e(f"v_mov_b32 v{124+i}, 0")
e("s_mov_b32 s6, 1.0")
e("s_mov_b32 s7, 1.0")
e(f"s_mov_b32 s{sREM}, s{sCO}")
e(f"s_mov_b32 s{sRT}, s{sNT}")
c("running pointers: vLK -> tile 2 ; working copies of vOD / vTRS")
vLKr, vODr, vTRSr, vTRSr2 = 92, 93, 94, 95
e(f"v_add_u32 v{vLKr}, 2048, v{vLK}")
e(f"v_mov_b32 v{vODr}, v{vOD}")
e(f"v_mov_b32 v{vTRSr}, v{vTRS}")
e(f"v_xor_b32 v{vTRSr2}, 32, v{vTRS}")

def tile_body(buf):
    tag = f"t{buf}"
    sBUF = [sB0, sB1][buf]
    bo = buf * 2048
    c(f"---- tile (buffer {buf}) ----")
    e(f"s_cmp_gt_u32 s{sRT}, 2")
    e(f"s_cselect_b32 s{sK3}, 1, 0")
    e(f"s_cbranch_scc0 L_nolk{tag}")
    e(f"v_xor_b32 v{vT[4]}, 32, v{vLKr}")
    e(f"ds_read_u16 v{vT[2]}, v{vLKr}")
    e(f"ds_read_u16 v{vT[3]}, v{vT[4]} offset:512")
    lab(f"L_nolk{tag}")
    e(f"ds_read_b128 {vr(OHD,4)}, v{vODr}")
    e(f"s_cmp_gt_u32 s{sRT}, 1")
    e(f"s_cbranch_scc1 L_w2{tag}")
    e("s_waitcnt vmcnt(0)")
    e(f"s_branch L_wd{tag}")
    lab(f"L_w2{tag}")
    e("s_waitcnt vmcnt(2)")
    lab(f"L_wd{tag}")
    e(f"ds_read_b64_tr_b16 {vr(QF,2)}, v{vTRQ0} offset:{bo}")
    e(f"ds_read_b64_tr_b16 {vr(QF+2,2)}, v{vTRQ0} offset:{bo+512}")
    e(f"ds_read_b64_tr_b16 {vr(QF+4,2)}, v{vTRQ1} offset:{bo}")
    e(f"ds_read_b64_tr_b16 {vr(QF+6,2)}, v{vTRQ1} offset:{bo+512}")
    e(f"ds_read_b64_tr_b16 {vr(SF,2)}, v{vTRSr}")
    e(f"ds_read_b64_tr_b16 {vr(SF+2,2)}, v{vTRSr2} offset:512")
    e(f"v_add_u32 v{vLKr}, 1024, v{vLKr}")
    e(f"v_add_u32 v{vODr}, v{vODM}, v{vODr}")
    e(f"v_add_u32 v{vTRSr}, 1024, v{vTRSr}")
    e(f"v_add_u32 v{vTRSr2}, 1024, v{vTRSr2}")
    e("s_waitcnt lgkmcnt(6)")
    mfma(ACC, OHD, BXF, "0")
    e("s_waitcnt lgkmcnt(4)")
    mfma(ACC, ID, QF, vr(ACC,16))
    e("s_waitcnt lgkmcnt(2)")
    mfma(ACC, ID+4, QF+4, vr(ACC,16))
    for _ in range(XM):
        mfma(ACC, 124, QF+4*(_&1), vr(ACC,16))
    e(f"s_cmp_eq_u32 s{sK3}, 0")
    e(f"s_cbranch_scc1 L_nodma{tag}")
    dma_issue(vT[2], vT[3], sBUF)
    lab(f"L_nodma{tag}")
    e("s_nop 7")
    e("s_nop 3")
    def blk(bb, t):
        a = ACC + 4*bb
        for i in range(4): e(f"v_exp_f32 v{t+i}, v{a+i}")
        if PK:
            for i in (0, 2): e(f"v_pk_add_f32 {vr(t+i,2)}, {vr(t+i,2)}, s[6:7]")
        else:
            for i in range(4): e(f"v_add_f32 v{t+i}, 1.0, v{t+i}")
        for i in range(4): e(f"v_rcp_f32 v{t+i}, v{t+i}")
        if PK:
            for i in (0, 2): e(f"v_pk_mul_f32 {vr(t+i,2)}, {vr(a+i,2)}, {vr(t+i,2)}")
        else:
            for i in range(4): e(f"v_mul_f32 v{t+i}, v{a+i}, v{t+i}")
        e(f"v_cvt_pk_bf16_f32 v{MP+2*bb}, v{t}, v{t+1}")
        e(f"v_cvt_pk_bf16_f32 v{MP+2*bb+1}, v{t+2}, v{t+3}")
    blk(0, TE); blk(2, TE+4)
    e(f"s_cmp_le_u32 s{sREM}, 8")
    e(f"s_cbranch_scc1 L_skip{tag}")
    blk(1, TE); blk(3, TE+4)
    e(f"s_branch L_blk{tag}")
    lab(f"L_skip{tag}")
    for r in (2, 3, 6, 7): e(f"v_mov_b32 v{MP+r}, 0")
    lab(f"L_blk{tag}")
    e("s_waitcnt lgkmcnt(0)")
    e("s_nop 1")
    mfma(SEG, MP, SF, vr(SEG,16))
    mfma(SEG+16, MP+4, SF, vr(SEG+16,16))
    e(f"s_sub_u32 s{sREM}, s{sREM}, 16")
    e(f"s_sub_u32 s{sRT}, s{sRT}, 1")
    if not NOPRIO:
        e(f"s_cmp_gt_u32 s{sRT}, 3")
        e(f"s_cbranch_scc1 L_pr{tag}")
        e(f"s_setprio 2")
        e(f"s_cmp_eq_u32 s{sRT}, 3")
        e(f"s_cbranch_scc1 L_pr{tag}")
        e(f"s_setprio 1")
        e(f"s_cmp_eq_u32 s{sRT}, 2")
        e(f"s_cbranch_scc1 L_pr{tag}")
        e(f"s_setprio 0")
        lab(f"L_pr{tag}")

e(f"s_cmp_eq_u32 s{sRT}, 0")
e("s_cbranch_scc1 L_tiles_done")
lab("L_tile_loop")
tile_body(0)
e(f"s_cmp_eq_u32 s{sRT}, 0")
e("s_cbranch_scc1 L_tiles_done")
tile_body(1)
e(f"s_cmp_lg_u32 s{sRT}, 0")
e("s_cbranch_scc1 L_tile_loop")
lab("L_tiles_done")
e("s_waitcnt vmcnt(0)")
if not NOPRIO: e("s_setprio 3")
stamp("tiles done")
e(f"s_cmp_eq_u32 s{sMODE}, 0")
e("s_cbranch_scc0 L_slow_next")

lab("L_final")
WFL = 80
ROW = 16
HRES = 112
HRB = 60
vN = vT[1]; vHI = vT[2]; vOFF = vT[3]; vRD_ = vT[4]
e(f"v_and_b32 v{vN}, 31, v{vL}")
e(f"v_lshrrev_b32 v{vHI}, 5, v{vL}")
e(f"v_mov_b32 v52, 0")
e(f"v_mov_b32 v53, 0")
c("late frags: QH: WH2F slice ct ; QC: wx frags")
e(f"s_cmp_eq_u32 s{sQ}, {QH}")
e("s_cbranch_scc0 L_f_wx")
e(f"s_lshl_b32 s{sT0}, s{sCT}, 13")
e(f"s_add_u32 s{sT0}, s{sT0}, {WH2F}")
e(f"s_add_u32 s{sT1}, s{sT0}, 4096")
e(f"v_lshlrev_b32 v{vT[0]}, 4, v{vL}")
for s_ in range(8):
    e(f"buffer_load_dwordx4 {vr(WFL+4*s_,4)}, v{vT[0]}, {srd(S_WS)}, s{[sT0,sT1][s_>>2]} offen offset:{(s_%4)*1024}{QSC}")
e("s_branch L_f_flush")
lab("L_f_wx")
e(f"s_cmp_eq_u32 s{sQ}, {QC}")
e("s_cbranch_scc0 L_f_flush")
e(f"v_lshlrev_b32 v{vT[0]}, 4, v{vHI}")
for s_ in range(8):
    e(f"buffer_load_dwordx4 {vr(WFL+4*s_,4)}, v{vT[0]}, {srd(S_WX)}, 0 offen offset:{s_*32}")
lab("L_f_flush")
c("flush: lane (f=n, hi): addr = QTw + h*2048 + f*64 + ((bb ^ ((f>>2)&3) ^ (g&3))<<4) + hi*8")
e(f"s_and_b32 s{sT0}, s{sG}, 3")
e(f"v_bfe_u32 v{vT[5]}, v{vN}, 2, 2")
e(f"v_xor_b32 v{vT[5]}, s{sT0}, v{vT[5]}")
e(f"v_lshlrev_b32 v{vT[5]}, 4, v{vT[5]}")
e(f"v_lshl_add_u32 v{vT[5]}, v{vN}, 6, v{vT[5]}")
e(f"v_lshl_add_u32 v{vT[5]}, v{vHI}, 3, v{vT[5]}")
e(f"v_add_u32 v{vT[5]}, s{sB0}, v{vT[5]}")
e("s_nop 7")
e("s_nop 3")
for h in range(2):
    for bb in range(4):
        r0 = SEG + 16*h + 4*bb
        e(f"v_cvt_pk_bf16_f32 v{r0}, v{r0}, v{r0+1}")
        e(f"v_cvt_pk_bf16_f32 v{r0+1}, v{r0+2}, v{r0+3}")
        if bb == 0:
            e(f"ds_write_b64 v{vT[5]}, {vr(r0,2)} offset:{h*2048}")
        else:
            e(f"v_xor_b32 v{vT[6]}, {bb<<4}, v{vT[5]}")
            e(f"ds_write_b64 v{vT[6]}, {vr(r0,2)} offset:{h*2048}")
c("per-role (node, comp) -> g, f ; addr = QT + g*8192 + f*64 + ((hi ^ ((f>>2)&3) ^ (g&3))<<4)")
vNODE = vT[5]; vCMP = vT[6]
def node_addr(dst, node, cmp_, t0, t1):
    e(f"v_mul_u32_u24 v{t1}, 52, v{node}")
    e(f"v_lshrrev_b32 v{t1}, 8, v{t1}             ; g")
    e(f"v_mul_u32_u24 v{t0}, 5, v{t1}")
    e(f"v_sub_u32 v{t0}, v{node}, v{t0}          ; j")
    if cmp_ is not None:
        e(f"v_lshl_add_u32 v{t0}, v{cmp_}, 3, v{t0}")
    e(f"v_add_u32 v{t0}, 3, v{t0}                 ; f")
    e(f"v_bfe_u32 v{dst}, v{t0}, 2, 2")
    e(f"v_xor_b32 v{dst}, v{dst}, v{vHI}")
    e(f"v_lshlrev_b32 v{t0}, 6, v{t0}")
    e(f"v_lshl_add_u32 v{t0}, v{t1}, 13, v{t0}")
    e(f"v_and_b32 v{t1}, 3, v{t1}")
    e(f"v_xor_b32 v{dst}, v{dst}, v{t1}")
    e(f"v_lshl_add_u32 v{dst}, v{dst}, 4, v{t0}")
    e(f"v_add_u32 v{dst}, {QT}, v{dst}")
e(f"s_mul_i32 s{sK3}, s2, 40")
e(f"s_cmp_eq_u32 s{sQ}, {QC}")
e("s_cbranch_scc1 L_f_roleC")
e(f"s_cmp_eq_u32 s{sQ}, {QH}")
e("s_cbranch_scc0 L_f_bar")
c("QH: role A (nodes n) and role B (nodes 32 + (n&7))")
vRDB = 52; vOFFB = 53; HB = 54
node_addr(vRD_, vN, None, vT[0], vT[7])
e(f"v_and_b32 v{vNODE}, 7, v{vN}")
e(f"v_add_u32 v{vNODE}, 32, v{vNODE}")
node_addr(vRDB, vNODE, None, vT[0], vT[7])
c("role A residual: h[node n][32ct + 8bb + 4hi..+3]: OWN + n*256 + (((ct*4+bb) ^ (n&15))<<4) + hi*8")
e(f"v_and_b32 v{vT[0]}, 15, v{vN}")
e(f"s_lshl_b32 s{sT0}, s{sCT}, 2")
e(f"v_xor_b32 v{vT[0]}, s{sT0}, v{vT[0]}")
e(f"v_lshlrev_b32 v{vT[0]}, 4, v{vT[0]}")
e(f"v_lshl_add_u32 v{vT[0]}, v{vN}, 8, v{vT[0]}")
e(f"v_lshl_add_u32 v{vT[0]}, v{vHI}, 3, v{vT[0]}")
e(f"v_add_u32 v{vT[0]}, {OWN}, v{vT[0]}")
for bb in range(4):
    e(f"v_xor_b32 v{vT[7]}, {bb<<4}, v{vT[0]}")
    e(f"ds_read_b64 {vr(HRES+2*bb,2)}, v{vT[7]}")
e(f"v_add_u32 v{vOFF}, s{sK3}, v{vN}")
e(f"v_lshlrev_b32 v{vOFF}, 8, v{vOFF}")
e(f"v_lshl_add_u32 v{vOFF}, v{vHI}, 3, v{vOFF}")
e(f"s_lshl_b32 s{sT0}, s{sCT}, 6")
e(f"v_add_u32 v{vOFF}, s{sT0}, v{vOFF}")
c("role B residual: rows 32+4hi+i, col 32ct+n: OWN + row*256 + (((ct*4 + (n>>3)) ^ (row&15))<<4) + (n&7)*2")
e(f"v_lshrrev_b32 v{vT[0]}, 3, v{vN}")
e(f"s_lshl_b32 s{sT0}, s{sCT}, 2")
e(f"v_add_u32 v{vT[0]}, s{sT0}, v{vT[0]}          ; chunk")
e(f"v_lshlrev_b32 v{vT[7]}, 2, v{vHI}             ; 4hi")
e(f"v_xor_b32 v{vT[0]}, v{vT[0]}, v{vT[7]}")
e(f"v_lshlrev_b32 v{vT[0]}, 4, v{vT[0]}")
e(f"v_lshl_add_u32 v{vT[0]}, v{vT[7]}, 8, v{vT[0]}   ; + 4hi*256")
e(f"v_and_b32 v{vT[5]}, 7, v{vN}")
e(f"v_lshl_add_u32 v{vT[0]}, v{vT[5]}, 1, v{vT[0]}")
e(f"v_add_u32 v{vT[0]}, {OWN + 32*256}, v{vT[0]}")
for i in range(4):
    e(f"v_xor_b32 v{vT[5]}, {i<<4}, v{vT[0]}")
    e(f"ds_read_u16 v{HB+i}, v{vT[5]} offset:{i*256}")
e(f"s_add_u32 s{sT0}, s{sK3}, 32")
e(f"v_add_u32 v{vOFFB}, s{sT0}, v{vT[7]}")
e(f"v_lshlrev_b32 v{vOFFB}, 8, v{vOFFB}")
e(f"v_lshl_add_u32 v{vOFFB}, v{vN}, 1, v{vOFFB}")
e(f"s_lshl_b32 s{sT0}, s{sCT}, 6")
e(f"v_add_u32 v{vOFFB}, s{sT0}, v{vOFFB}")
e("s_branch L_f_bar")
lab("L_f_roleC")
c("role C: n' = min(n,29); idx = 30ct + n' ; G = idx/15 ; r = idx%15 ; c = r/5 ; j = r%5 ; node = 5G + j ; comp = c+1")
e(f"v_min_u32 v{vT[0]}, 29, v{vN}")
e(f"v_cmp_lt_u32 vcc, 14, v{vT[0]}")
e(f"v_cndmask_b32 v{vT[7]}, 0, 1, vcc               ; G&1")
e(f"v_mul_u32_u24 v{vNODE}, 15, v{vT[7]}")
e(f"v_sub_u32 v{vT[0]}, v{vT[0]}, v{vNODE}          ; r")
e(f"v_mul_u32_u24 v{vCMP}, 52, v{vT[0]}")
e(f"v_lshrrev_b32 v{vCMP}, 8, v{vCMP}              ; c")
e(f"v_mul_u32_u24 v{vNODE}, 5, v{vCMP}")
e(f"v_sub_u32 v{vT[0]}, v{vT[0]}, v{vNODE}          ; j")
e(f"s_lshl_b32 s{sT0}, s{sCT}, 1")
e(f"v_add_u32 v{vT[7]}, s{sT0}, v{vT[7]}            ; G")
e(f"v_mad_u32_u24 v{vNODE}, v{vT[7]}, 5, v{vT[0]}")
e(f"v_add_u32 v{vCMP}, 1, v{vCMP}")
node_addr(vRD_, vNODE, vCMP, vT[0], vT[7])
c("role C: pos residual PTF[node][comp-1] ; out offset (40b + node)*6 + (comp-1)*2")
e(f"v_lshlrev_b32 v{vT[0]}, 4, v{vNODE}")
e(f"v_lshl_add_u32 v{vT[0]}, v{vCMP}, 2, v{vT[0]}")
e(f"v_add_u32 v{vT[0]}, {PTF-4}, v{vT[0]}")
e(f"ds_read_b32 v{HRES}, v{vT[0]}")
e(f"v_add_u32 v{vOFF}, s{sK3}, v{vNODE}")
e(f"v_mul_u32_u24 v{vOFF}, 6, v{vOFF}")
e(f"v_lshl_add_u32 v{vOFF}, v{vCMP}, 1, v{vOFF}")
e(f"v_subrev_u32 v{vOFF}, 2, v{vOFF}")
lab("L_f_bar")
e("s_waitcnt lgkmcnt(0)")
e("s_barrier")
stamp("final bar")
e(f"s_cmp_eq_u32 s{sQ}, {QC}")
e("s_cbranch_scc1 L_f_go")
e(f"s_cmp_eq_u32 s{sQ}, {QH}")
e("s_cbranch_scc0 L_end")
lab("L_f_go")
e(f"v_xor_b32 v{vT[0]}, 32, v{vRD_}")
for s_ in range(8):
    e(f"ds_read_b128 {vr(ROW+4*s_,4)}, v{[vRD_, vT[0]][s_&1]} offset:{(s_>>1)*2048}")
e(f"s_mov_b32 s{sK2}, 0x{NLN2:08x}")
e(f"s_mov_b32 s{sK3}, 0xffff0000")
e("s_waitcnt vmcnt(0)")
e(f"s_cmp_eq_u32 s{sQ}, {QC}")
e("s_cbranch_scc1 L_f_C")
c("role A")
e(f"v_xor_b32 v{vT[0]}, 32, v{vRDB}")
DB = 96
for s_ in range(8):
    e(f"s_waitcnt lgkmcnt(7)")
    mfma(FACC, WFL+4*s_, ROW+4*s_, vr(FACC,16))
    e(f"ds_read_b128 {vr(ROW+4*s_,4)}, v{[vRDB, vT[0]][s_&1]} offset:{(s_>>1)*2048}")
def final_silu(a, n, T):
    for i in range(n): e(f"v_exp_f32 v{T+i}, v{a+i}")
    for i in range(n): e(f"v_add_f32 v{T+i}, 1.0, v{T+i}")
    for i in range(n): e(f"v_rcp_f32 v{T+i}, v{T+i}")
    for i in range(n): e(f"v_mul_f32 v{a+i}, v{a+i}, v{T+i}")
c("role B accumulator: v112..127 would clash; use ACC (48..63) after saving vRDB/vOFFB/HB -> C input rows 0..7 = FB")
mvOFFB = vT[5]; mHB = 124
e(f"v_mov_b32 v{mvOFFB}, v{vOFFB}")
HB2 = [124, 125, 126, vT[6]]
for i in range(4): e(f"v_mov_b32 v{HB2[i]}, v{HB+i}")
for i in range(4): e(f"v_mov_b32 v{ACC+i}, v{FB+i}")
e("s_nop 1")
for s_ in range(8):
    e(f"s_waitcnt lgkmcnt({7-s_})")
    mfma(ACC, ROW+4*s_, WFL+4*s_, vr(ACC,16))
X = 16
e("s_nop 7")
e("s_nop 3")
for i in range(4):
    a = FACC + 4*i
    final_silu(a, 4, X)
    e(f"v_lshlrev_b32 v{X}, 16, v{HRES+2*i}")
    e(f"v_and_b32 v{X+1}, s{sK3}, v{HRES+2*i}")
    e(f"v_lshlrev_b32 v{X+2}, 16, v{HRES+2*i+1}")
    e(f"v_and_b32 v{X+3}, s{sK3}, v{HRES+2*i+1}")
    for k in range(4): e(f"v_fma_f32 v{a+k}, v{a+k}, s{sK2}, v{X+k}")
    e(f"v_cvt_pk_bf16_f32 v{X+4+2*i}, v{a}, v{a+1}")
    e(f"v_cvt_pk_bf16_f32 v{X+5+2*i}, v{a+2}, v{a+3}")
    e(f"buffer_store_dwordx2 {vr(X+4+2*i,2)}, v{vOFF}, {srd(S_O0)}, 0 offen offset:{i*16}")
c("role B: rows j")
Y = 32
final_silu(ACC, 4, Y)
for k in range(4):
    e(f"v_lshlrev_b32 v{Y+k}, 16, v{HB2[k]}")
for k in range(4):
    e(f"v_fma_f32 v{ACC+k}, v{ACC+k}, s{sK2}, v{Y+k}")
for k in range(4):
    e(f"v_cvt_pk_bf16_f32 v{Y+8+k}, v{ACC+k}, v{ACC+k}")
for r in range(4):
    e(f"buffer_store_short v{Y+8+r}, v{mvOFFB}, {srd(S_O0)}, 0 offen offset:{r*256}")
e("s_branch L_end")
lab("L_f_C")
for s_ in range(8):
    e(f"s_waitcnt lgkmcnt({7-s_})")
    mfma(ACC, WFL+4*s_, ROW+4*s_, "0" if s_ == 0 else vr(ACC,16))
e("s_nop 7")
e("s_nop 3")
e(f"v_fma_f32 v{ACC}, v{ACC}, s{sK2}, v{HRES}")
e(f"v_cvt_pk_bf16_f32 v{ACC}, v{ACC}, v{ACC}")
e(f"s_mov_b32 exec_lo, 0x3fffffff")
e(f"s_mov_b32 exec_hi, 0")
e(f"buffer_store_short v{ACC}, v{vOFF}, {srd(S_O1)}, 0 offen")
lab("L_end")
stamp("end")
stamp_flush()
lab("L_end2")
e("s_endpgm")

def zero_lds(Z, vtid):
    c("zero REC (69632 B = 4352 x 16 B) and counters (64 B)")
    for i in range(4): e(f"v_mov_b32 v{Z+i}, 0")
    e(f"v_lshlrev_b32 v{vT[0]}, 4, v{vtid}")
    for i in range(4):
        e(f"ds_write_b128 v{vT[0]}, {vr(Z,4)} offset:{i*16384}")
    e(f"v_add_u32 v{vT[1]}, {65536}, v{vT[0]}")
    e(f"v_add_u32 v{vT[2]}, {CTR - 256*16}, v{vT[0]}")
    e(f"v_cmp_gt_u32 vcc, 256, v{vtid}")
    e(f"v_cndmask_b32 v{vT[1]}, v{vT[2]}, v{vT[1]}, vcc")
    e(f"v_cmp_gt_u32 vcc, 260, v{vtid}")
    e("s_mov_b64 exec, vcc")
    e(f"ds_write_b128 v{vT[1]}, {vr(Z,4)}")
    e("s_mov_b64 exec, -1")
lab("L_slow_init")
e(f"s_mov_b32 s{sMODE}, 1")
e(f"s_mov_b32 s{sCH}, 0")
e(f"s_mov_b32 s{sRETRY}, 0")
e(f"s_and_b32 s{sT3}, s{sT3}, 2")
e(f"s_cmp_eq_u32 s{sT3}, 0")
e("s_cbranch_scc1 L_slow_pass")
c("fallback: the hand-off timed out -> this workgroup computes all of Q and the WH2 fragments itself")
c("(waves 12..15 keep FACC (64..79) / FB (120..123); only waves 0..7 touch vector state other than vT)")
e(f"s_mov_b32 s{sU}, 0")
lab("L_fb_loop")
e("s_waitcnt vmcnt(0) lgkmcnt(0)")
e("s_barrier")
e(f"s_cmp_ge_u32 s{sW}, 8")
e("s_cbranch_scc1 L_fb_idle")
gemm_role("fb", sU, True)
e("s_branch L_fb_next")
lab("L_fb_idle")
e("s_barrier")
lab("L_fb_next")
e(f"s_add_u32 s{sU}, s{sU}, 1")
e(f"s_cmp_lt_u32 s{sU}, {NG}")
e("s_cbranch_scc1 L_fb_loop")
e("s_waitcnt vmcnt(0) lgkmcnt(0)")
e("s_barrier")
e(f"s_cmp_ge_u32 s{sW}, 4")
e("s_cbranch_scc1 L_slow_pass")
wprep_role("fb", True)
e("s_branch L_slow_pass")
lab("L_slow_next")
e(f"v_mov_b32 v{vT[0]}, {PEND}")
e(f"ds_read_b32 v{vT[1]}, v{vT[0]}")
e("s_waitcnt lgkmcnt(0)")
e(f"v_readfirstlane_b32 s{sRETRY}, v{vT[1]}")
e("s_nop 3")
e(f"s_cmp_lg_u32 s{sRETRY}, 0")
e("s_cbranch_scc1 L_slow_pass")
lab("L_slow_adv")
e(f"s_add_u32 s{sCH}, s{sCH}, 1")
e(f"s_cmp_ge_u32 s{sCH}, 250")
e("s_cbranch_scc1 L_slow_fin")
lab("L_slow_pass")
e("s_waitcnt vmcnt(0) lgkmcnt(0)")
e("s_barrier")
e(f"s_lshl_b32 s{sT0}, s{sW}, 6")
e(f"v_add_u32 v{tid}, s{sT0}, v{vL}")
zero_lds(116, tid)
c("raw edge e = 640*ch + t (t<640)")
qD, qS, qB, qK, qR, qA = 104, 105, 106, 107, 108, 109
RC = RA; vEA = RA + 2; vI0 = VI[0]; PS0 = PS[0]
e(f"s_mul_i32 s{sT0}, s{sCH}, 2560")
e(f"s_mul_i32 s{sT1}, s{sCH}, 1280")
e(f"v_lshlrev_b32 v{vT[0]}, 2, v{tid}")
e(f"v_lshlrev_b32 v{vT[1]}, 1, v{tid}")
e(f"v_mov_b32 v{qD}, -1")
e(f"v_mov_b32 v{qS}, 0")
e(f"v_mov_b32 v{qP}, 0")
e(f"v_mov_b32 v{vEA}, 0")
e(f"v_mov_b32 v{qA}, 640")
e(f"v_cmp_gt_u32 {sp(sM0)}, v{qA}, v{tid}")
e(f"s_cmp_eq_u64 {sp(sM0)}, 0")
e("s_cbranch_scc1 L_slow_nold")
e(f"s_mov_b64 exec, {sp(sM0)}")
e(f"buffer_load_dword v{qD}, v{vT[0]}, {srd(S_DST)}, s{sT0} offen")
e(f"buffer_load_dword v{qS}, v{vT[0]}, {srd(S_SRC)}, s{sT0} offen")
e(f"buffer_load_ushort v{vEA}, v{vT[1]}, {srd(S_EA)}, s{sT1} offen")
e(f"v_add_u32 v{qA}, {PENDB}, v{tid}")
e(f"ds_read_u8 v{qP}, v{qA}")
e("s_mov_b64 exec, -1")
lab("L_slow_nold")
e("s_waitcnt vmcnt(0) lgkmcnt(0)")
e("s_barrier")
e(f"v_mul_u32_u24 v{qB}, 52429, v{qD}")
e(f"v_lshrrev_b32 v{qB}, 21, v{qB}")
e(f"v_mul_u32_u24 v{qK}, 40, v{qB}")
e(f"v_sub_u32 v{qK}, v{qD}, v{qK}")
e(f"v_cmp_eq_u32 vcc, s2, v{qB}")
e(f"s_and_b64 {sp(sM0)}, {sp(sM0)}, vcc          ; match")
e(f"s_cmp_eq_u32 s{sRETRY}, 0")
e("s_cbranch_scc1 L_slow_fresh")
e(f"v_cmp_ne_u32 vcc, 0, v{qP}")
e(f"s_and_b64 {sp(sM0)}, {sp(sM0)}, vcc")
lab("L_slow_fresh")
e(f"v_and_b32 v{qK}, 63, v{qK}")
e(f"v_min_u32 v{qK}, 39, v{qK}")
e(f"v_mul_u32_u24 v{vI0}, 52, v{qK}")
e(f"v_lshrrev_b32 v{vI0}, 8, v{vI0}           ; g")
e(f"v_mul_u32_u24 v{qA}, 5, v{vI0}")
e(f"v_sub_u32 v{qA}, v{qK}, v{qA}             ; j")
e(f"v_and_b32 v{qS}, 0x3fff, v{qS}")
e(f"v_lshl_or_b32 v{RC}, v{vI0}, 14, v{qS}")
e(f"v_lshl_or_b32 v{RC}, v{qA}, 17, v{RC}")
e(f"s_mov_b32 s{sT0}, {ALLOC}")
e(f"v_lshl_add_u32 v{qA}, v{vI0}, 2, s{sT0}")
e(f"v_mov_b32 v{vOne}, 1")
e(f"v_mov_b32 v{qP}, 0")
e(f"v_mul_u32_u24 v{qB}, 6, v{qS}")
e(f"v_and_b32 v{qB}, -4, v{qB}")
for m in MK[1:]: e(f"s_mov_b64 {sp(m)}, 0")
e(f"s_cmp_eq_u64 {sp(sM0)}, 0")
e("s_cbranch_scc1 L_slow_nom")
e(f"s_mov_b64 exec, {sp(sM0)}")
e(f"buffer_load_dwordx2 {vr(PS0,2)}, v{qB}, {srd(S_POS)}, 0 offen")
e(f"ds_add_rtn_u32 v{qR}, v{qA}, v{vOne}")
e("s_mov_b64 exec, -1")
e(f"v_mul_u32_u24 v{vI0}, {GSTR}, v{vI0}")
e("s_waitcnt lgkmcnt(0)")
s1_place(qR, vI0, qS, sM0, "s", slow=True)
lab("L_slow_nom")
e(f"v_mov_b32 v{qA}, 640")
e(f"v_cmp_gt_u32 vcc, v{qA}, v{tid}")
e("s_mov_b64 exec, vcc")
e("s_cbranch_execz L_slow_nopb")
e(f"v_add_u32 v{qA}, {PENDB}, v{tid}")
e(f"ds_write_b8 v{qA}, v{qP}")
lab("L_slow_nopb")
e("s_mov_b64 exec, -1")
e("s_branch L_st2")
lab("L_slow_fin")
c("SEG must be zero-initialised if no pass ever ran")
e(f"s_cmp_eq_u32 s{sNODE}, 0")
e("s_cbranch_scc1 L_final_bar")
for r in range(32):
    e(f"v_mov_b32 v{SEG+r}, 0")
lab("L_final_bar")
e("s_barrier")
e("s_branch L_final")

desc = f""".amdhsa_kernel {KNAME}
  .amdhsa_next_free_vgpr 128
  .amdhsa_next_free_sgpr 102
  .amdhsa_accum_offset 128
  .amdhsa_group_segment_fixed_size 0
  .amdhsa_kernarg_size 88
  .amdhsa_user_sgpr_count 2
  .amdhsa_user_sgpr_kernarg_segment_ptr 1
  .amdhsa_system_sgpr_workgroup_id_x 1
.end_amdhsa_kernel"""
body = "\n".join(x for x in out if x is not None)
final = "\n".join(header) + "\n" + body + "\n" + '.section .rodata,"a"\n.p2align 6\n' + desc + "\n"
dest = sys.argv[1] if len(sys.argv) > 1 else "standalone__cheap_equivariant_egnn__graph.s"
open(dest, "w").write(final)
print("wrote", dest, len(out), "lines")
```

```python
import sys, os
sys.path.insert(0, os.path.dirname(os.path.abspath(__file__)))
from g3common import *

KNAME = "standalone__cheap_equivariant_egnn__graph_kernel"
TIMING = os.environ.get("TIMING", "")
NOPRIO = os.environ.get("NOPRIO", "")
QSC = os.environ.get("QSC", " sc1")
FORCE = os.environ.get("FORCE", "")
NPOLL = int(os.environ.get("NPOLL", "3000"))
RSL = int(os.environ.get("RSL", "8"))
QSL = int(os.environ.get("QSL", "4"))
NSL = int(os.environ.get("NSL", "8"))
QST = int(os.environ.get("QST", "8"))
PK = int(os.environ.get("PK", "0"))
XM = int(os.environ.get("XM", "0"))
LATE = int(os.environ.get("LATE", "1"))
BSPEC = int(os.environ.get("BSPEC", "1"))
PPF = int(os.environ.get("PPF", "1"))
WSOFF = int(os.environ.get("WSOFF", "0")) << 20
TLBW = int(os.environ.get("TLBW", "0"))
EARLY = int(os.environ.get("EARLY", "1"))
PSL = int(os.environ.get("PSL", "0"))
QGATE = int(os.environ.get("QGATE", "8"))
H1W = int(os.environ.get("H1W", "2"))
FPRIO = int(os.environ.get("FPRIO", "2"))
DELTA = 600
WIN = 8192
GUARD = 800
TAGC = 0x1a5
FLC = 0x5A5AA5A5

CELLA = 0
CHB = 32000
CELLB = 4 << 20
WH2F = 12 << 20
NG = 157; NCH = 63
BIN0 = NG; WPR = NG + NCH
CAP = 136
GSTR = CAP * 64
REC = 0
QT = 8 * GSTR
BXP = QT + 65536
OWN = BXP + 16384
PTF = OWN + 10240
CTR = PTF + 640
ALLOC = CTR; OVF = CTR + 32; PEND = CTR + 36; GCNT = CTR + 40; NONCE = CTR + 44; ZERO16 = CTR + 48
SYN = CTR + 64
RISS = SYN; RCNT = SYN + 4; RCNT2 = SYN + 8; FCNT = SYN + 12; FCNT2 = SYN + 16; RCA = SYN + 20; RLAND = SYN + 24
RCB = SYN + 28; FCB = SYN + 32; FCC = SYN + 36
PENDB = CTR + 128
LDS_TOTAL = PENDB + 640
FLG = 13 << 20
assert LDS_TOTAL <= 163840
NWG = 250

S_H, S_POS, S_EA, S_SRC, S_DST, S_WX, S_O0, S_O1, S_WS, S_Q, S_WE, S_WH = [8 + 4 * i for i in range(12)]
sRW, sRQ, sRL = 56, 57, 58
sC4, sC5 = 4, 5
sW, sQ, sCT, sMODE, sT0, sT1, sT2, sT3 = range(60, 68)
sEX, sM0, sM1, sM2 = 68, 70, 72, 74
sG, sCH2, sCO, sNT, sU, sREM, sK2, sK3, sNODE, sCH, sRETRY, sB0, sB1, sGB, sRT, sROLE = range(76, 92)
sTW, sLOW, sCNT, sC = 92, 93, 94, 95
sPA, sPB = 96, 98
sX0, sX1, sX2 = 96, 97, 98
KS = 76

vL = 0
vLK, vQD, vTRQ0, vTRQ1, vTRS, vOD, vODM = 1, 2, 3, 4, 5, 6, 7
vT = list(range(8, 16))
SEG = 16; ACC = 48; FACC = 64; QF = 80; SF = 88; OHD = 96; BXF = 100; ID = 104; MP = 112; FB = 120
TE = QF
VST = 127

_st = [0]
STAMPS = os.environ.get("STAMPS", "")
STAMPS = set(int(x) for x in STAMPS.split(",")) if STAMPS else None
def stamp(name, idx=None):
    if not TIMING: return
    i = _st[0] if idx is None else idx
    if idx is None: _st[0] += 1
    if STAMPS is not None and i not in STAMPS: return
    c(f"STAMP {i} {name}")
    e(f"s_memtime s[{sC4}:{sC5}]")
    e("s_waitcnt lgkmcnt(0)")
    e(f"v_writelane_b32 v{VST}, s{sC4}, {i}")
    print("stamp", i, name)
def stamp_dyn(base, scnt, mx=11):
    if not TIMING or os.environ.get("STAMPS", ""): return
    e(f"s_memtime s[{sC4}:{sC5}]")
    e(f"s_min_u32 s3, s{scnt}, {mx}")
    e(f"s_add_u32 m0, s3, {base}")
    e("s_waitcnt lgkmcnt(0)")
    e(f"v_writelane_b32 v{VST}, s{sC4}, m0")
def stamp_flush():
    if not TIMING: return
    e(f"s_memrealtime s[{sC4}:{sC5}]")
    e("s_waitcnt lgkmcnt(0)")
    e("s_mov_b64 exec, -1")
    e(f"v_writelane_b32 v{VST}, s100, 62")
    e(f"v_writelane_b32 v{VST}, s{sC4}, 63")
    e(f"s_lshl_b32 s{sT0}, s2, 4")
    e(f"s_add_u32 s{sT0}, s{sT0}, s{sW}")
    e(f"s_lshl_b32 s{sT0}, s{sT0}, 8")
    e(f"s_add_u32 s{sT0}, s{sT0}, {32<<20}")
    e(f"v_lshlrev_b32 v{vT[1]}, 2, v{vL}")
    e(f"buffer_store_dword v{VST}, v{vT[1]}, {srd(S_WS)}, s{sT0} offen")

header = []
header.append(f"; @launch grid=({NWG},1,1) block=(1024,1,1) lds={LDS_TOTAL}")
header.append('.amdgcn_target "amdgcn-amd-amdhsa--gfx950"')
header.append(".text")
header.append(f".globl {KNAME}")
header.append(".p2align 8")
header.append(f".type {KNAME},@function")

lab(KNAME)
e(f"s_cmp_ge_u32 s2, {NWG}")
e("s_cbranch_scc1 L_end2")
e("s_memrealtime s[6:7]")
if TIMING:
    e("s_memrealtime s[100:101]")
if TIMING:
    e(f"v_mov_b32 v{VST}, 0")
stamp("entry")
e(f"s_load_dwordx16 s[{KS}:{KS+15}], s[0:1], 0")
e(f"s_load_dwordx2 s[{S_WS}:{S_WS+1}], s[0:1], 80")
e(f"s_load_dwordx2 s[{S_O0}:{S_O0+1}], s[0:1], 64")
tid = vT[7]
e(f"v_mov_b32 v{tid}, v0")
e(f"v_lshrrev_b32 v{vT[0]}, 6, v0")
e(f"v_and_b32 v{vL}, 63, v0")
e(f"v_readfirstlane_b32 s{sW}, v{vT[0]}")
for (x, sz) in [(S_H,2560000),(S_POS,60000),(S_EA,320000),(S_SRC,640000),(S_DST,640000),(S_WX,256),(S_O0,2560000),(S_O1,60000),
                (S_WS,256*1048576-WSOFF),(S_Q,2560000),(S_WE,66048),(S_WH,65536)]:
    e(f"s_mov_b32 s{x+2}, {sz}")
    e(f"s_mov_b32 s{x+3}, 0x20000")
e(f"s_lshr_b32 s{sQ}, s{sW}, 2")
e(f"s_and_b32 s{sCT}, s{sW}, 3")
e(f"s_and_b32 s{sRW}, s{sW}, 7")
e(f"s_and_b32 s{sRQ}, s{sQ}, 1")
e(f"s_mov_b32 s{sMODE}, 0")
e(f"s_mov_b32 s{sRL}, 0")
def kernarg_copy():
    for (x, k) in [(S_H,0),(S_POS,2),(S_EA,4),(S_SRC,6),(S_DST,8),(S_WE,10),(S_WX,12),(S_WH,14)]:
        e(f"s_mov_b64 s[{x}:{x+1}], s[{KS+k}:{KS+k+1}]")
    if WSOFF:
        e(f"s_add_u32 s{S_WS}, s{S_WS}, {WSOFF}")
        e(f"s_addc_u32 s{S_WS+1}, s{S_WS+1}, 0")
    e(f"s_add_u32 s{S_O1}, s{S_O0}, 2560000")
    e(f"s_addc_u32 s{S_O1+1}, s{S_O0+1}, 0")
    e(f"s_add_u32 s{S_Q}, s{S_WS}, {QOFF}")
    e(f"s_addc_u32 s{S_Q+1}, s{S_WS+1}, 0")
    e(f"s_mov_b32 s{sTW}, s6")

vSL = 16; vTRP = 17; vRA = 18; vRD = 19; vST = 20; vU0 = 21; vU1 = 22
def slice_lane(dst, sct):
    e(f"v_lshrrev_b32 v{dst}, 2, v{vL}")
    e(f"v_lshlrev_b32 v{dst}, 8, v{dst}")
    e(f"v_and_b32 v{vU0}, 3, v{vL}")
    e(f"v_lshl_add_u32 v{dst}, v{vU0}, 4, v{dst}")
    e(f"s_lshl_b32 s{sT0}, s{sct}, 6")
    e(f"v_add_u32 v{dst}, s{sT0}, v{dst}")
def trpat(dst, t0, t1):
    e(f"v_lshrrev_b32 v{t0}, 5, v{vL}")
    e(f"v_bfe_u32 v{t1}, v{vL}, 2, 2")
    e(f"v_lshl_add_u32 v{dst}, v{t0}, 3, v{t1}")
    e(f"v_lshlrev_b32 v{dst}, 6, v{dst}")
    e(f"v_bfe_u32 v{t0}, v{vL}, 4, 1")
    e(f"v_lshl_add_u32 v{dst}, v{t0}, 5, v{dst}")
    e(f"v_and_b32 v{t0}, 3, v{vL}")
    e(f"v_lshl_add_u32 v{dst}, v{t0}, 3, v{dst}")
def row_addr(dst, vrow, vhi, tmp, base=OWN):
    e(f"v_and_b32 v{tmp}, 15, v{vrow}")
    e(f"v_xor_b32 v{tmp}, v{tmp}, v{vhi}")
    e(f"v_lshlrev_b32 v{tmp}, 4, v{tmp}")
    e(f"v_lshl_add_u32 v{dst}, v{vrow}, 8, v{tmp}")
    e(f"v_add_u32 v{dst}, {base}, v{dst}")

Z = 24
for i in range(4): e(f"v_mov_b32 v{Z+i}, 0")
c("wave 0: zero the counters (128 B), then B0")
e(f"s_cmp_eq_u32 s{sW}, 0")
e("s_cbranch_scc0 L_b0")
e(f"v_lshlrev_b32 v{vT[0]}, 4, v{vL}")
e(f"v_add_u32 v{vT[0]}, {CTR}, v{vT[0]}")
e("s_mov_b64 exec, 0xff")
e(f"ds_write_b128 v{vT[0]}, {vr(Z,4)}")
e("s_mov_b64 exec, -1")
e("s_waitcnt lgkmcnt(0)")
lab("L_b0")
e("s_barrier")
vA_ = 23
_sy = [0]
def arrive(addr):
    e(f"v_mov_b32 v{vA_}, {addr}")
    e(f"v_mov_b32 v{vU1}, 1")
    e("s_mov_b64 exec, 1")
    e(f"ds_add_u32 v{vA_}, v{vU1}")
    e("s_mov_b64 exec, -1")
def wait_cnt(addr, n, nz=False, dst=None):
    i = _sy[0]; _sy[0] += 1
    d = dst if dst is not None else sT0
    e(f"v_mov_b32 v{vA_}, {addr}")
    lab(f"L_sy{i}")
    e(f"ds_read_b32 v{vU1}, v{vA_}")
    e("s_waitcnt lgkmcnt(0)")
    e(f"v_readfirstlane_b32 s{d}, v{vU1}")
    if nz: e(f"s_cmp_lg_u32 s{d}, 0")
    else:  e(f"s_cmp_ge_u32 s{d}, {n}")
    e(f"s_cbranch_scc1 L_syd{i}")
    e("s_sleep 1")
    e(f"s_branch L_sy{i}")
    lab(f"L_syd{i}")
e(f"s_cmp_ge_u32 s{sW}, 8")
e("s_cbranch_scc1 L_front")
def lane_consts():
    e(f"s_lshr_b32 s{sG}, s{sW}, 1")
    e(f"s_and_b32 s{sCH2}, s{sW}, 1")
    e(f"s_mul_i32 s{sGB}, s{sG}, {GSTR}")
    e(f"s_lshl_b32 s{sB0}, s{sW}, 12")
    e(f"s_add_u32 s{sB0}, s{sB0}, {QT}")
    e(f"s_add_u32 s{sB1}, s{sB0}, 2048")
    c("lane constants (REC rows swizzled: 16-B chunk c of row with rank p at position c ^ ((p>>2)&3))")
    e(f"v_lshrrev_b32 v{vT[3]}, 5, v{vL}           ; hi")
    e(f"v_lshrrev_b32 v{vT[4]}, 3, v{vL}")
    e(f"v_lshlrev_b32 v{vLK}, 6, v{vT[4]}")
    e(f"v_xor_b32 v{vT[4]}, 1, v{vT[3]}")
    e(f"v_lshl_add_u32 v{vLK}, v{vT[4]}, 4, v{vLK}")
    e(f"s_add_u32 s{sT0}, s{sGB}, {REC}")
    e(f"v_add_u32 v{vLK}, s{sT0}, v{vLK}")
    e(f"v_and_b32 v{vT[5]}, 7, v{vL}")
    e(f"v_bfe_u32 v{vT[6]}, v{vL}, 4, 1")
    e(f"v_lshlrev_b32 v{vT[4]}, 2, v{vT[6]}")
    e(f"v_xor_b32 v{vT[5]}, v{vT[5]}, v{vT[4]}")
    e(f"v_lshlrev_b32 v{vQD}, 4, v{vT[5]}")
    e(f"s_lshl_b32 s{sT1}, s{sCH2}, 7")
    e(f"v_add_u32 v{vQD}, s{sT1}, v{vQD}            ; ch*128 + (((l&7) ^ 4*((l>>4)&1))<<4)")
    c("vT6 = colhalf ; r = (l>>2)&3 ; c4 = l&3")
    e(f"v_bfe_u32 v{vT[4]}, v{vL}, 2, 2            ; r")
    e(f"v_and_b32 v{vT[5]}, 3, v{vL}")
    e(f"v_lshlrev_b32 v{vT[2]}, 5, v{vT[6]}")
    e(f"v_lshl_add_u32 v{vT[2]}, v{vT[5]}, 3, v{vT[2]}   ; colhalf*32 + c4*8")
    e(f"v_lshl_add_u32 v{vTRQ0}, v{vT[3]}, 3, v{vT[4]}   ; 8hi + r")
    e(f"v_lshl_add_u32 v{vTRQ0}, v{vTRQ0}, 7, v{vT[2]}")
    e(f"v_bfe_u32 v{vT[5]}, v{vL}, 3, 1            ; (r>>1)&1")
    e(f"v_lshl_add_u32 v{vTRQ0}, v{vT[5]}, 6, v{vTRQ0}")
    e(f"v_add_u32 v{vTRQ0}, s{sB0}, v{vTRQ0}")
    e(f"v_xor_b32 v{vTRQ1}, 64, v{vTRQ0}")
    c("vTRS = REC + g*GSTR + (4hi + r)*64 + ((colhalf*32 + c4*8) ^ (hi<<4))")
    e(f"v_lshlrev_b32 v{vT[5]}, 4, v{vT[3]}")
    e(f"v_xor_b32 v{vT[2]}, v{vT[2]}, v{vT[5]}")
    e(f"v_lshl_add_u32 v{vTRS}, v{vT[3]}, 2, v{vT[4]}    ; 4hi + r")
    e(f"v_lshl_add_u32 v{vTRS}, v{vTRS}, 6, v{vT[2]}")
    e(f"v_add_u32 v{vTRS}, s{sT0}, v{vTRS}")
    c("OHD: lanes 0..15 and 48..63 read chunk 0 of row (l&15) at position (row>>2)&3; others read ZERO16")
    e(f"v_and_b32 v{vT[4]}, 15, v{vL}")
    e(f"v_bfe_u32 v{vT[5]}, v{vL}, 2, 2")
    e(f"v_lshlrev_b32 v{vT[4]}, 6, v{vT[4]}")
    e(f"v_lshl_add_u32 v{vT[4]}, v{vT[5]}, 4, v{vT[4]}")
    e(f"v_add_u32 v{vT[4]}, s{sT0}, v{vT[4]}")
    e(f"v_cmp_eq_u32 vcc, v{vT[3]}, v{vT[6]}")
    e(f"v_mov_b32 v{vT[5]}, {ZERO16}")
    e(f"v_cndmask_b32 v{vOD}, v{vT[5]}, v{vT[4]}, vcc")
    e(f"v_mov_b32 v{vT[4]}, 1024")
    e(f"v_cndmask_b32 v{vODM}, 0, v{vT[4]}, vcc")
    e(f"s_mov_b32 s{sNODE}, 1")
RA = 48; RB = 52; vGA = 88
PS = [56, 58, 60, 62]
VI = [80, 81, 82, 83]
VR = [84, 85, 86, 87]
vOne = 89
qP = 90
MK = [sM0, sM1, sPA, sPB]
if not NOPRIO: e("s_setprio 2")
c("zero REC tail (4096 B, threads 256..511)")
e(f"v_lshlrev_b32 v{vT[0]}, 4, v{tid}")
e(f"v_add_u32 v{vT[1]}, {65536 - 4096}, v{vT[0]}")
e(f"v_cmp_lt_u32 vcc, 255, v{tid}")
e("s_mov_b64 exec, vcc")
e(f"s_cbranch_execz L_notail")
e(f"ds_write_b128 v{vT[1]}, {vr(Z,4)}")
lab("L_notail")
e("s_mov_b64 exec, -1")
e(f"s_cmp_ge_u32 s2, {BIN0}")
e("s_cbranch_scc1 L_notgemm")

AF = 24; BF = 56; D0 = 88
def gemm_role(tag, blk, fb):
    slice_lane(vSL, sCT)
    c("rows DMA lane offset: row = 8w + 4i + (l>>4); chunk = (l&15) ^ (row&15)")
    e(f"v_lshrrev_b32 v{vU0}, 4, v{vL}")
    e(f"v_and_b32 v{vU1}, 15, v{vL}")
    e(f"v_xor_b32 v{vU1}, v{vU1}, v{vU0}")
    e(f"s_and_b32 s{sT0}, s{sRW}, 1")
    e(f"s_lshl_b32 s{sT0}, s{sT0}, 3")
    e(f"v_xor_b32 v{vU1}, s{sT0}, v{vU1}")
    e(f"v_lshlrev_b32 v{vU1}, 4, v{vU1}")
    e(f"v_lshl_add_u32 v{vRA}, v{vU0}, 8, v{vU1}")
    e(f"v_xor_b32 v{vRD}, 64, v{vRA}")
    e(f"s_lshl_b32 s{sT0}, s{sCT}, 13")
    e(f"s_lshl_b32 s{sT1}, s{sRQ}, 12")
    e(f"s_add_u32 s{sT0}, s{sT0}, s{sT1}")
    e(f"s_add_u32 s{sT0}, s{sT0}, {QT}")
    e(f"s_lshl_b32 s{sT1}, s{sRQ}, 14")
    e(f"s_add_u32 s{sT1}, s{sT1}, 32768")
    e(f"s_lshl_b32 s{sT3}, s{sRW}, 11")
    e(f"s_lshl_b32 s{sX0}, s{blk}, 14")
    e(f"s_add_u32 s{sX0}, s{sX0}, s{sT3}           ; (64r + 8w)*256")
    if not fb:
        e("s_waitcnt lgkmcnt(0)")
        stamp("kernarg", 1)
        kernarg_copy()
    e(f"s_add_u32 m0, s{sT3}, {QT+32768}")
    e(f"s_add_u32 s{sX1}, s{sX0}, 1024")
    e(f"buffer_load_dwordx4 v{vRA}, {srd(S_H)}, s{sX0} offen lds")
    e(f"s_add_u32 m0, s{sT3}, {QT+32768+1024}")
    e(f"s_nop 0")
    e(f"buffer_load_dwordx4 v{vRD}, {srd(S_H)}, s{sX1} offen lds")
    for i in range(4):
        e(f"s_add_u32 m0, s{sT0}, {i*1024}")
        e(f"s_add_u32 s{sT2}, s{sT1}, {i*4096}")
        e(f"buffer_load_dwordx4 v{vSL}, {srd(S_WE)}, s{sT2} offen lds")
    if not fb:
        if not LATE: arrive(RISS)
        stamp("role loads issued", 2)
    c("compute: all 8 waves, rb = w>>2, ct = w&3 : 32 rows x 32 cols")
    trpat(vTRP, vU0, vU1)
    e(f"s_lshl_b32 s{sT0}, s{sCT}, 13")
    e(f"s_add_u32 s{sT0}, s{sT0}, {QT}")
    e(f"v_add_u32 v{vTRP}, s{sT0}, v{vTRP}")
    c("row read address: QT+32768 + (rb*32+n)*256 + ((hi ^ (n&15))<<4) ^ (s<<5)")
    e(f"v_and_b32 v{vU0}, 31, v{vL}")
    e(f"v_lshrrev_b32 v{vU1}, 5, v{vL}")
    e(f"v_and_b32 v{vRD}, 15, v{vL}")
    e(f"v_xor_b32 v{vRD}, v{vRD}, v{vU1}")
    e(f"v_lshlrev_b32 v{vRD}, 4, v{vRD}")
    e(f"v_lshl_add_u32 v{vRD}, v{vU0}, 8, v{vRD}")
    e(f"s_lshl_b32 s{sT0}, s{sRQ}, 13")
    e(f"s_add_u32 s{sT0}, s{sT0}, {QT+32768}")
    e(f"v_add_u32 v{vRD}, s{sT0}, v{vRD}")
    c("out tile (2 KB per wave) write addr: OB + n*64 + ((bb ^ ((n>>2)&3))<<4) + hi*8")
    e(f"s_lshl_b32 s{sT0}, s{sRW}, 11")
    e(f"s_add_u32 s{sT0}, s{sT0}, {QT+49152}")
    e(f"v_bfe_u32 v{vRA}, v{vL}, 2, 2")
    e(f"v_lshlrev_b32 v{vRA}, 4, v{vRA}")
    e(f"v_lshl_add_u32 v{vRA}, v{vU0}, 6, v{vRA}")
    e(f"v_lshl_add_u32 v{vRA}, v{vU1}, 3, v{vRA}")
    e(f"v_add_u32 v{vRA}, s{sT0}, v{vRA}")
    c("out tile read addr: OB + (r + 16i)*64 + ((q ^ ((r>>2)&3))<<4), r = l>>2, q = l&3 ; store: row*256 + ct*64 + q*16")
    e(f"v_lshrrev_b32 v{vU0}, 2, v{vL}")
    e(f"v_and_b32 v{vU1}, 3, v{vL}")
    e(f"v_bfe_u32 v{vSL}, v{vL}, 4, 2")
    e(f"v_xor_b32 v{vSL}, v{vSL}, v{vU1}")
    e(f"v_lshlrev_b32 v{vSL}, 4, v{vSL}")
    e(f"v_lshl_add_u32 v{vSL}, v{vU0}, 6, v{vSL}")
    e(f"v_add_u32 v{vSL}, s{sT0}, v{vSL}")
    e(f"v_lshlrev_b32 v{vST}, 4, v{vU1}")
    e(f"v_lshl_add_u32 v{vST}, v{vU0}, 8, v{vST}")
    e(f"s_lshl_b32 s{sT0}, s{blk}, 14")
    e(f"s_lshl_b32 s{sT1}, s{sRQ}, 13")
    e(f"s_add_u32 s{sT0}, s{sT0}, s{sT1}")
    e(f"s_lshl_b32 s{sT1}, s{sCT}, 6")
    e(f"s_add_u32 s{sC}, s{sT0}, s{sT1}")
    e("s_waitcnt vmcnt(0) lgkmcnt(0)")
    if not fb: stamp("role loads landed", 3)
    if fb:
        e("s_barrier")
    else:
        arrive(RCNT)
        if LATE: arrive(RISS)
        wait_cnt(RCNT, 8)
        stamp("B1", 4)
    for s_ in range(8):
        e(f"v_xor_b32 v{vU0}, {s_<<5}, v{vRD}")
        e(f"ds_read_b128 {vr(BF+4*s_,4)}, v{vU0}")
        e(f"ds_read_b64_tr_b16 {vr(AF+4*s_,2)}, v{vTRP} offset:{s_*1024}")
        e(f"ds_read_b64_tr_b16 {vr(AF+4*s_+2,2)}, v{vTRP} offset:{s_*1024+256}")
    for s_ in range(8):
        e(f"s_waitcnt lgkmcnt({min(15, 21-3*s_)})")
        mfma(D0, AF+4*s_, BF+4*s_, "0" if s_ == 0 else vr(D0,16))
    if not fb: arrive(RCA)
    e(f"s_mov_b32 s{sT1}, 0x{NLOG2E:08x}")
    e("s_nop 7")
    e("s_nop 3")
    for bb in range(4):
        r0 = D0 + 4*bb
        for i in range(4):
            e(f"v_mul_f32 v{r0+i}, s{sT1}, v{r0+i}")
        e(f"v_cvt_pk_bf16_f32 v{r0}, v{r0}, v{r0+1}")
        e(f"v_cvt_pk_bf16_f32 v{r0+1}, v{r0+2}, v{r0+3}")
        e(f"v_xor_b32 v{vU0}, {bb<<4}, v{vRA}")
        e(f"ds_write_b64 v{vU0}, {vr(r0,2)}")
    e("s_waitcnt lgkmcnt(0)")
    for i in range(2):
        e(f"ds_read_b128 {vr(AF+4*i,4)}, v{vSL} offset:{i*1024}")
    e(f"s_add_u32 s{sT1}, s{sC}, 4096")
    for i in range(2):
        e(f"s_waitcnt lgkmcnt({1-i})")
        e(f"buffer_store_dwordx4 {vr(AF+4*i,4)}, v{vST}, {srd(S_Q)}, s{[sC,sT1][i]} offen sc1")
    if not fb: stamp("role stores issued", 5)

gemm_role("", 2, False)
e(f"s_mov_b32 s{sRL}, 8")
e(f"s_lshl_b32 s{sX1}, s2, 2")
e(f"s_add_u32 s{sX1}, s{sX1}, {FLG}")
e(f"s_mov_b64 {sp(sM0)}, 1")
e("s_branch L_rfront")

lab("L_notgemm")
e(f"s_cmp_ge_u32 s2, {WPR}")
e("s_cbranch_scc1 L_notbin")
c("binning chunk c = wg - 157: edges e = 2560c + 512i + t ; LDS image: cell b at QT + b*128 (+32000 for ranks 16..31), 8-B records")
NE = 5
CNT = QT + 64000
vD = 24; vS = 29; vB = 34; vR = 39; vP = 44; vE = 54; vE2 = 55; vOne_ = 56; vK = 57; vG_ = 58
e(f"s_sub_u32 s{sC}, s2, {BIN0}")
e(f"s_mul_i32 s{sT0}, s{sC}, {2560*4}")
e(f"v_lshlrev_b32 v{vE}, 2, v{tid}")
e(f"v_lshlrev_b32 v{vE2}, 1, v{tid}")
c("zero counters")
e(f"v_mov_b32 v{vU1}, 0")
e(f"v_mov_b32 v{vOne_}, 1")
e(f"v_cmp_gt_u32 vcc, 250, v{tid}")
e(f"s_mov_b64 exec, vcc")
e(f"v_add_u32 v{vU0}, {CNT}, v{vE}")
e(f"ds_write_b32 v{vU0}, v{vU1}")
e(f"s_mov_b64 exec, -1")
e(f"s_add_u32 s{sT2}, s{sT0}, 4096")
e(f"s_add_u32 s{sT1}, s{sT0}, 8192")
e(f"s_lshr_b32 s{sX0}, s{sT0}, 1")
e(f"s_add_u32 s{sX1}, s{sX0}, 4096")
e("s_waitcnt lgkmcnt(0)")
stamp("kernarg", 1)
kernarg_copy()
def soff(i): return [sT0, sT0, sT2, sT2, sT1][i], (i & 1) * 2048 if i < 4 else 0
for i in range(NE):
    so, of = soff(i)
    e(f"buffer_load_dword v{vD+i}, v{vE}, {srd(S_DST)}, s{so} offen offset:{of}")
for i in range(NE):
    so, of = soff(i)
    e(f"buffer_load_dword v{vS+i}, v{vE}, {srd(S_SRC)}, s{so} offen offset:{of}")
for i in range(NE):
    so = sX0 if i < 4 else sX1
    e(f"buffer_load_ushort v{vP+2*i+1}, v{vE2}, {srd(S_EA)}, s{so} offen offset:{(i & 3) * 1024 if i < 4 else 0}")
if not LATE: arrive(RISS)
arrive(RCNT)
stamp("role loads issued", 2)
c("validity: e < 160000  <=> byte offset < 640000")
e(f"v_add_u32 v{vE}, s{sT0}, v{vE}")
e(f"s_mov_b32 s{sX0}, {CNT}")
e(f"s_mov_b32 s{sX1}, {QT}")
wait_cnt(RCNT, 8, dst=sX2)
stamp("B1", 4)
for i in range(NE):
    e(f"s_waitcnt vmcnt({3*NE-1-i})")
    e(f"v_mul_u32_u24 v{vB+i}, 52429, v{vD+i}")
    e(f"v_lshrrev_b32 v{vB+i}, 21, v{vB+i}")
    e(f"v_lshl_add_u32 v{vU0}, v{vB+i}, 2, s{sX0}")
    e(f"v_mov_b32 v{vK}, {640000 - i*2048}")
    e(f"v_cmp_gt_u32 vcc, v{vK}, v{vE}")
    e(f"s_mov_b64 exec, vcc")
    e(f"ds_add_rtn_u32 v{vR+i}, v{vU0}, v{vOne_}")
    e(f"s_mov_b64 exec, -1")
    e(f"v_mul_u32_u24 v{vK}, 40, v{vB+i}")
    e(f"v_sub_u32 v{vD+i}, v{vD+i}, v{vK}       ; k")
    e(f"v_lshl_add_u32 v{vB+i}, v{vB+i}, 7, s{sX1}")
    e(f"v_mul_u32_u24 v{vG_}, 52, v{vD+i}")
    e(f"v_lshrrev_b32 v{vG_}, 8, v{vG_}           ; g = k/5")
    e(f"v_mul_u32_u24 v{vK}, 5, v{vG_}")
    e(f"v_sub_u32 v{vK}, v{vD+i}, v{vK}        ; j")
    e(f"v_lshl_or_b32 v{vD+i}, v{vK}, 3, v{vG_}       ; g | j<<3")
    e(f"v_or_b32 v{vD+i}, 64, v{vD+i}                ; valid")
for i in range(NE):
    e(f"s_waitcnt vmcnt({2*NE-1-i})")
    e(f"v_lshl_or_b32 v{vP+2*i}, v{vD+i}, 14, v{vS+i}    ; rec")
e("s_waitcnt vmcnt(0) lgkmcnt(0)")
if LATE: arrive(RISS)
stamp("role loads landed", 3)
for i in range(NE):
    e(f"v_and_b32 v{vU0}, 15, v{vR+i}")
    e(f"v_lshrrev_b32 v{vU1}, 4, v{vR+i}")
    e(f"v_lshl_add_u32 v{vU0}, v{vU0}, 3, v{vB+i}")
    e(f"v_mul_u32_u24 v{vU1}, {CHB}, v{vU1}")
    e(f"v_add_u32 v{vU0}, v{vU0}, v{vU1}")
    e(f"v_cmp_gt_u32 vcc, 32, v{vR+i}")
    e(f"v_mov_b32 v{vK}, {640000 - i*2048}")
    e(f"v_cmp_gt_u32 {sp(sM0)}, v{vK}, v{vE}")
    e(f"s_and_b64 exec, vcc, {sp(sM0)}")
    e(f"ds_write_b64 v{vU0}, {vr(vP+2*i,2)}")
    e(f"s_mov_b64 exec, -1")
e("s_waitcnt lgkmcnt(0)")
arrive(RCNT2)
wait_cnt(RCNT2, 8, dst=sX2)
stamp("B2", 6)
c("copy-out: granule x = t + 512i (<2000): cell b = x>>3, q = x&7")
GA = 24; vCn = 40; vR0 = 44; vX = 45; vF = 46; vY = 47; vXL = 52
e(f"v_lshlrev_b32 v{vX}, 4, v{tid}               ; x*16 (i=0)")
e(f"v_lshrrev_b32 v{vY}, 3, v{tid}")
e(f"v_lshl_add_u32 v{vY}, v{vY}, 2, s{sX0}")
e(f"v_add_u32 v{vXL}, {QT}, v{vX}")
for i in range(4):
    if i == 3:
        e(f"v_cmp_gt_u32 vcc, {2000-1536}, v{tid}")
        e("s_mov_b64 exec, vcc")
    e(f"ds_read_b128 {vr(GA+4*i,4)}, v{vXL} offset:{i*8192}")
    e(f"ds_read_b32 v{vCn+i}, v{vY} offset:{i*256}")
e("s_mov_b64 exec, -1")
e(f"v_and_b32 v{vR0}, 7, v{tid}")
e(f"v_lshlrev_b32 v{vR0}, 1, v{vR0}              ; r0 = 2q")
e(f"s_mul_i32 s{sT0}, s{sC}, {CHB}")
e(f"s_bfe_u32 s{sT1}, s{sTW}, {3 | (9<<16)}")
e(f"s_xor_b32 s{sT1}, s{sT1}, {TAGC}")
e(f"s_lshl_b32 s{sT1}, s{sT1}, 23")
def granule(G, cn, r0off, so, ioff):
    e(f"v_mov_b32 v{vF}, s{sT1}")
    e(f"v_cmp_lt_u32 vcc, 16, v{cn}")
    e(f"v_cndmask_b32 v{vU0}, 0, 1, vcc")
    e(f"v_lshl_or_b32 v{vF}, v{vU0}, 21, v{vF}")
    e(f"v_cmp_lt_u32 vcc, 32, v{cn}")
    e(f"v_cndmask_b32 v{vU0}, 0, 1, vcc")
    e(f"v_lshl_or_b32 v{vF}, v{vU0}, 22, v{vF}")
    e(f"v_add_u32 v{vU0}, {r0off}, v{vR0}")
    e(f"v_cmp_lt_u32 vcc, v{vU0}, v{cn}")
    e(f"v_cndmask_b32 v{G}, 0, v{G}, vcc")
    e(f"v_add_u32 v{vU0}, 1, v{vU0}")
    e(f"v_cmp_lt_u32 vcc, v{vU0}, v{cn}")
    e(f"v_cndmask_b32 v{G+2}, 0, v{G+2}, vcc")
    e(f"v_and_b32 v{G+1}, 0xffff, v{G+1}")
    e(f"v_lshl_or_b32 v{vU0}, v{G+3}, 16, v{G+1}      ; d2")
    e(f"v_or_b32 v{G+1}, v{G+2}, v{vF}                ; d1")
    e(f"v_or_b32 v{G}, v{G}, v{vF}                    ; d0")
    e(f"v_mov_b32 v{G+2}, v{vU0}")
    e(f"v_mov_b32 v{G+3}, s{sTW}")
    e(f"buffer_store_dwordx4 {vr(G,4)}, v{vX}, {srd(S_WS)}, s{so} offen sc1")
for i in range(4):
    if i == 3:
        e(f"v_cmp_gt_u32 vcc, {2000-1536}, v{tid}")
        e(f"s_mov_b64 {sp(sM1)}, vcc")
        e(f"s_mov_b64 exec, vcc")
    e(f"s_waitcnt lgkmcnt({2*(3-i)})")
    granule(GA+4*i, vCn+i, 0, sT0, i)
    e(f"s_add_u32 s{sT0}, s{sT0}, 8192")
e("s_mov_b64 exec, -1")
stamp("role stores issued", 5)
c("B lines (ranks 16..31) for cells with count > 16")
e(f"s_mul_i32 s{sT0}, s{sC}, {CHB}")
e(f"s_add_u32 s{sT0}, s{sT0}, {CELLB}")
for i in range(4):
    e(f"v_cmp_lt_u32 vcc, 16, v{vCn+i}")
    if i == 3:
        e(f"s_and_b64 vcc, vcc, {sp(sM1)}")
    e("s_mov_b64 exec, vcc")
    e(f"s_cbranch_execz L_nob{i}")
    e(f"ds_read_b128 {vr(48,4)}, v{vXL} offset:{CHB+i*8192}")
    e("s_waitcnt lgkmcnt(0)")
    granule(48, vCn+i, 16, sT0, i)
    e("s_nop 1")
    lab(f"L_nob{i}")
    e("s_mov_b64 exec, -1")
    e(f"s_add_u32 s{sT0}, s{sT0}, 8192")
arrive(RCA)
e("s_branch L_rfront")

lab("L_notbin")
def wprep_role(tag, fb):
    slice_lane(vSL, sCT)
    e(f"s_lshl_b32 s{sT2}, s{sCT}, 13")
    e(f"s_add_u32 s{sT2}, s{sT2}, {QT}")
    trpat(vTRP, vU0, vU1)
    e(f"v_add_u32 v{vTRP}, s{sT2}, v{vTRP}")
    e(f"v_lshlrev_b32 v{vST}, 4, v{vL}")
    for i in range(8):
        e(f"s_add_u32 m0, s{sT2}, {i*1024}")
        e(f"s_mov_b32 s{sT1}, {32768 + i*4096}")
        e(f"buffer_load_dwordx4 v{vSL}, {srd(S_WH)}, s{sT1} offen lds")
    e(f"s_lshl_b32 s{sC}, s{sCT}, 13")
    e(f"s_add_u32 s{sC}, s{sC}, {WH2F}")
    e("s_waitcnt vmcnt(0)")
    for s_ in range(8):
        e(f"ds_read_b64_tr_b16 {vr(AF+4*s_,2)}, v{vTRP} offset:{s_*1024}")
        e(f"ds_read_b64_tr_b16 {vr(AF+4*s_+2,2)}, v{vTRP} offset:{s_*1024+256}")
    for s_ in range(8):
        if s_ == 4:
            e(f"s_add_u32 s{sC}, s{sC}, 4096")
        e(f"s_waitcnt lgkmcnt({2*(7-s_)})")
        e(f"buffer_store_dwordx4 {vr(AF+4*s_,4)}, v{vST}, {srd(S_WS)}, s{sC} offen offset:{(s_%4)*1024} sc1")
e("s_waitcnt lgkmcnt(0)")
stamp("kernarg", 1)
kernarg_copy()
arrive(RISS)
c("workgroups WPR..WPR+3: slice ct = wg - WPR of WH2 ; wave w converts k-step w")
e(f"s_sub_u32 s{sC}, s2, {WPR}")
e(f"s_cmp_ge_u32 s{sC}, 4")
e("s_cbranch_scc1 L_norole")
slice_lane(vSL, sC)
trpat(vTRP, vU0, vU1)
e(f"s_lshl_b32 s{sT2}, s{sW}, 10")
e(f"s_add_u32 s{sT2}, s{sT2}, {QT}")
e(f"v_add_u32 v{vTRP}, s{sT2}, v{vTRP}")
e(f"v_lshlrev_b32 v{vST}, 4, v{vL}")
e(f"s_lshl_b32 s{sT1}, s{sW}, 12")
e(f"s_add_u32 s{sT1}, s{sT1}, 32768")
e(f"s_mov_b32 m0, s{sT2}")
e(f"s_lshl_b32 s{sT3}, s{sC}, 13")
e(f"buffer_load_dwordx4 v{vSL}, {srd(S_WH)}, s{sT1} offen lds")
e(f"s_lshl_b32 s{sT0}, s{sW}, 10")
e(f"s_add_u32 s{sT3}, s{sT3}, s{sT0}")
e(f"s_add_u32 s{sT3}, s{sT3}, {WH2F}")
e("s_waitcnt vmcnt(0)")
e(f"ds_read_b64_tr_b16 {vr(AF,2)}, v{vTRP}")
e(f"ds_read_b64_tr_b16 {vr(AF+2,2)}, v{vTRP} offset:256")
e("s_waitcnt lgkmcnt(0)")
e(f"buffer_store_dwordx4 {vr(AF,4)}, v{vST}, {srd(S_WS)}, s{sT3} offen sc1")
e(f"s_mov_b32 s{sRL}, 8")
e(f"s_lshl_b32 s{sX1}, s{sC}, 2")
e(f"s_add_u32 s{sX1}, s{sX1}, {FLG + NG*4}")
e(f"s_mov_b64 {sp(sM0)}, 1")
e(f"s_cmp_eq_u32 s{sC}, 3")
e(f"s_cselect_b64 {sp(sM0)}, 15, {sp(sM0)}")
lab("L_norole")
arrive(RCA)
lab("L_rfront")
c("R waves after the role: H1 (quad 0: nodes 0..31, quad 1: nodes 32..39); WH1 slices staged in QT (ct*8192)")
WF = 16
D1 = 96
vR2 = 114
def rowreg(s_): return (ACC + 4*s_) if s_ < 4 else (QF + 4*(s_-4))
slice_lane(vT[2], sCT)
e(f"s_lshl_b32 s{sT2}, s{sCT}, 13")
e(f"s_add_u32 s{sT2}, s{sT2}, {QT}")
e(f"s_lshl_b32 s{sT3}, s{sRQ}, 12")
e(f"s_add_u32 s{sT3}, s{sT3}, s{sT2}          ; + half*4096")
e(f"s_lshl_b32 s{sX0}, s{sRQ}, 14")
wait_cnt(RCA, 8, dst=sX2)
for i in range(4):
    e(f"s_add_u32 m0, s{sT3}, {i*1024}")
    e(f"s_add_u32 s{sT1}, s{sX0}, {i*4096}")
    e(f"buffer_load_dwordx4 v{vT[2]}, {srd(S_WH)}, s{sT1} offen lds")
stamp("h1 dma", 7)
c("signal: the last of the role's waves writes the flag(s) once all stores are complete")
e(f"s_mov_b32 s{sC}, 0")
e(f"s_cmp_eq_u32 s{sRL}, 0")
e("s_cbranch_scc1 L_nosig")
e("s_waitcnt vmcnt(4)")
e(f"v_mov_b32 v{vU0}, {GCNT}")
e(f"v_mov_b32 v{vU1}, 1")
e("s_mov_b64 exec, 1")
e(f"ds_add_rtn_u32 v{vRA}, v{vU0}, v{vU1}")
e("s_waitcnt lgkmcnt(0)")
e("s_mov_b64 exec, -1")
e(f"v_readfirstlane_b32 s{sT0}, v{vRA}")
e(f"s_xor_b32 s{sT1}, s{sTW}, {FLC}")
e(f"v_mov_b32 v{vU1}, s{sT1}")
e(f"v_lshlrev_b32 v{vU0}, 2, v{vL}")
e(f"s_add_u32 s{sT0}, s{sT0}, 1")
e(f"s_cmp_eq_u32 s{sT0}, s{sRL}")
e(f"s_cbranch_scc0 L_nosig")
e(f"s_mov_b64 exec, {sp(sM0)}")
e(f"buffer_store_dword v{vU1}, v{vU0}, {srd(S_WS)}, s{sX1} offen sc1")
e("s_mov_b64 exec, -1")
e(f"s_mov_b32 s{sC}, 1")
lab("L_nosig")
stamp("role signalled", 6)
if not NOPRIO: e("s_setprio 0")
e(f"s_mov_b32 s{sX0}, s{sT2}")
lane_consts()
trpat(vT[6], vT[0], vT[1])
e(f"v_add_u32 v{vT[6]}, s{sX0}, v{vT[6]}")
e(f"v_lshrrev_b32 v{vT[3]}, 5, v{vL}           ; hi")
e(f"v_and_b32 v{vT[4]}, 31, v{vL}")
e(f"s_lshl_b32 s{sT0}, s{sRQ}, 5")
e(f"v_add_u32 v{vT[4]}, s{sT0}, v{vT[4]}")
e(f"v_min_u32 v{vT[4]}, 39, v{vT[4]}")
row_addr(vT[1], vT[4], vT[3], vT[2])
c("DMA landed (the flag store, if this wave issued it, may stay in flight)")
e(f"s_cmp_eq_u32 s{sC}, 0")
e("s_cbranch_scc1 L_h1w0")
e(f"s_waitcnt vmcnt(1)")
e("s_branch L_h1w1")
lab("L_h1w0")
e("s_waitcnt vmcnt(0)")
lab("L_h1w1")
arrive(RCB)
wait_cnt([FCNT, FCC, FCNT2][H1W], 8, dst=sX2)
for s_ in range(8):
    e(f"v_xor_b32 v{vT[2]}, {s_<<5}, v{vT[1]}")
    e(f"ds_read_b128 {vr(rowreg(s_),4)}, v{vT[2]}")
wait_cnt(RCB, 8, dst=sX2)
for s_ in range(8):
    e(f"ds_read_b64_tr_b16 {vr(WF+4*s_,2)}, v{vT[6]} offset:{s_*1024}")
    e(f"ds_read_b64_tr_b16 {vr(WF+4*s_+2,2)}, v{vT[6]} offset:{s_*1024+256}")
e(f"s_mov_b32 s{sK2}, 0x{NLOG2E:08x}")
e(f"s_cmp_eq_u32 s{sRQ}, 0")
e("s_cbranch_scc0 L_h1b")
for s_ in range(8):
    e(f"s_waitcnt lgkmcnt({2*(7-s_)})")
    mfma(FACC, WF+4*s_, rowreg(s_), "0" if s_ == 0 else vr(FACC,16))
e("s_nop 7")
e("s_nop 3")
for r in range(16):
    e(f"v_mul_f32 v{FACC+r}, s{sK2}, v{FACC+r}")
e("s_branch L_h1d")
lab("L_h1b")
for s_ in range(8):
    e(f"s_waitcnt lgkmcnt({2*(7-s_)})")
    mfma(D1, rowreg(s_), WF+4*s_, "0" if s_ == 0 else vr(D1,16))
e("s_nop 7")
e("s_nop 3")
for r in range(4):
    e(f"v_mul_f32 v{FB+r}, s{sK2}, v{D1+r}")
lab("L_h1d")
stamp("h1 done", 8)
e("s_branch L_common")

lab("L_front")
QA, QB, QC = 0, 1, 2
KB = 124
PWR = 116
fw = sX2
e(f"s_sub_u32 s{fw}, s{sW}, 8")
c("zero REC[32768, 65536) (the first 32 KB stage W1 and are zeroed after use)")
e(f"v_lshlrev_b32 v{vT[0]}, 4, v{tid}")
for i in range(4):
    e(f"ds_write_b128 v{vT[0]}, {vr(Z,4)} offset:{32768 - 8192 + i*8192}")
c("own rows dma: instr idx u covers rows 4u..4u+3 ; lane: row = 4u + (l>>4); chunk = (l&15) ^ (row&15)")
e(f"v_lshrrev_b32 v{vT[4]}, 4, v{vL}")
e(f"v_and_b32 v{vT[1]}, 15, v{vL}")
e(f"v_xor_b32 v{vT[1]}, v{vT[1]}, v{vT[4]}")
e(f"s_lshl_b32 s{sT1}, s{sCT}, 2")
e(f"v_xor_b32 v{vT[1]}, s{sT1}, v{vT[1]}")
e(f"v_lshlrev_b32 v{vT[1]}, 4, v{vT[1]}")
e(f"v_lshl_add_u32 v{vT[1]}, v{vT[4]}, 8, v{vT[1]}")
slice_lane(vT[2], sCT)
e(f"s_lshl_b32 s{sT2}, s{sCT}, 13")
e(f"s_mul_i32 s{sT0}, s2, {40*256}")
e(f"s_lshl_b32 s{sT1}, s{fw}, 10")
e(f"s_add_u32 s{sT0}, s{sT0}, s{sT1}")
e(f"v_mul_u32_u24 v{vT[3]}, 6, v{vL}")
e(f"v_and_b32 v{vT[5]}, 31, v{vL}")
e(f"s_lshl_b32 s{sT3}, s{sCT}, 5")
e(f"v_add_u32 v{vT[5]}, s{sT3}, v{vT[5]}")
e(f"v_lshlrev_b32 v{vT[5]}, 1, v{vT[5]}           ; (32ct + n)*2")
e("s_waitcnt lgkmcnt(0)")
stamp("kernarg", 1)
kernarg_copy()
e(f"s_add_u32 m0, s{sT1}, {OWN}")
e("s_nop 0")
e(f"buffer_load_dwordx4 v{vT[1]}, {srd(S_H)}, s{sT0} offen lds")
e(f"s_cmp_ge_u32 s{fw}, 2")
e("s_cbranch_scc1 L_f_no2")
e(f"s_add_u32 m0, s{sT1}, {OWN+8192}")
e(f"s_add_u32 s{sT0}, s{sT0}, 8192")
e(f"buffer_load_dwordx4 v{vT[1]}, {srd(S_H)}, s{sT0} offen lds")
lab("L_f_no2")
c("wave 10: own pos (lane l<40 loads x,y,z u16)")
e(f"s_cmp_eq_u32 s{fw}, 2")
e("s_cbranch_scc0 L_f_nopos")
e(f"s_mul_i32 s{sT0}, s2, 240")
e(f"v_cmp_gt_u32 vcc, 40, v{vL}")
e("s_mov_b64 exec, vcc")
for k in range(3):
    e(f"buffer_load_ushort v{PWR+k}, v{vT[3]}, {srd(S_POS)}, s{sT0} offen offset:{2*k}")
e("s_mov_b64 exec, -1")
lab("L_f_nopos")
if PPF:
    c("L2 warm-up of pos: segment (wg>>3)&7 of 7680 B, 960 B per F wave (result unused)")
    e(f"s_lshr_b32 s{sT1}, s2, 3")
    e(f"s_and_b32 s{sT1}, s{sT1}, 7")
    e(f"s_lshl_b32 s{sT1}, s{sT1}, 3")
    e(f"s_add_u32 s{sT1}, s{sT1}, s{fw}")
    e(f"s_mul_i32 s{sT1}, s{sT1}, 960")
    e(f"v_lshlrev_b32 v{vT[7]}, 4, v{vL}")
    e(f"buffer_load_dwordx4 {vr(108,4)}, v{vT[7]}, {srd(S_POS)}, s{sT1} offen")
c("K1B raw: w_e rows 256, 257")
e(f"s_mov_b32 s{sT1}, 65536")
e(f"buffer_load_ushort v{KB}, v{vT[5]}, {srd(S_WE)}, s{sT1} offen")
e(f"buffer_load_ushort v{KB+1}, v{vT[5]}, {srd(S_WE)}, s{sT1} offen offset:256")
e(f"s_add_u32 s{sX1}, s{sT2}, {REC}")
e(f"s_lshl_b32 s{sT3}, s{sRQ}, 12")
e(f"s_add_u32 s{sT3}, s{sT3}, s{sX1}          ; + half*4096")
e(f"s_lshl_b32 s{sX0}, s{sRQ}, 14")
stamp("role loads issued", 2)
c("let the role loads go first")
wait_cnt(RISS, 8)
stamp("B1", 4)
c("W1 slice ct (w_e rows 0..127): this wave loads k-steps 4*half .. 4*half+3")
for i in range(4):
    e(f"s_add_u32 m0, s{sT3}, {i*1024}")
    e(f"s_add_u32 s{sT1}, s{sX0}, {i*4096}")
    e(f"buffer_load_dwordx4 v{vT[2]}, {srd(S_WE)}, s{sT1} offen lds")
lane_consts()
e("s_waitcnt vmcnt(4)")
arrive(FCNT)
c("wave 10: PTF (f32 x4 per node)")
e(f"s_cmp_eq_u32 s{fw}, 2")
e("s_cbranch_scc0 L_noptf")
for k in range(3): e(f"v_lshlrev_b32 v{PWR+k}, 16, v{PWR+k}")
e(f"v_mov_b32 v{PWR+3}, 0")
e(f"v_lshlrev_b32 v{vT[0]}, 4, v{vL}")
e(f"v_add_u32 v{vT[0]}, {PTF}, v{vT[0]}")
e(f"v_cmp_gt_u32 vcc, 40, v{vL}")
e("s_mov_b64 exec, vcc")
e(f"ds_write_b128 v{vT[0]}, {vr(PWR,4)}")
e("s_mov_b64 exec, -1")
lab("L_noptf")
stamp("role loads landed", 3)
trpat(vT[6], vT[0], vT[1])
e(f"v_add_u32 v{vT[6]}, s{sX1}, v{vT[6]}")
c("P' task: rows m: slot = m&7, g' = m>>3 ; node = 5*(4B + g') + max(slot-3,0), B = half")
e(f"v_lshrrev_b32 v{vT[3]}, 5, v{vL}           ; hi")
e(f"v_and_b32 v{vT[0]}, 7, v{vL}")
e(f"v_subrev_u32 v{vT[0]}, 3, v{vT[0]}")
e(f"v_max_i32 v{vT[0]}, 0, v{vT[0]}")
e(f"v_bfe_u32 v{vT[1]}, v{vL}, 3, 2")
e(f"v_mad_u32_u24 v{vT[0]}, v{vT[1]}, 5, v{vT[0]}        ; node (B=0)")
e(f"s_mul_i32 s{sT0}, s{sRQ}, 20")
e(f"v_add_u32 v{vT[0]}, s{sT0}, v{vT[0]}")
row_addr(vT[1], vT[0], vT[3], vT[2])
c("K1B: (wd, we) scaled, hi and lo parts")
e(f"s_mov_b32 s{sT0}, 0x{NLOG2E:08x}")
e(f"s_mov_b32 s{sT1}, 0xffff0000")
k0, k1, k2, k3 = 116, 117, 118, 119
e(f"v_lshlrev_b32 v{k0}, 16, v{KB}")
e(f"v_lshlrev_b32 v{k1}, 16, v{KB+1}")
e(f"v_mul_f32 v{k0}, s{sT0}, v{k0}")
e(f"v_mul_f32 v{k1}, s{sT0}, v{k1}")
e(f"v_cvt_pk_bf16_f32 v{KB}, v{k0}, v{k1}")
e(f"v_lshlrev_b32 v{k2}, 16, v{KB}")
e(f"v_and_b32 v{k3}, s{sT1}, v{KB}")
e(f"v_sub_f32 v{k0}, v{k0}, v{k2}")
e(f"v_sub_f32 v{k1}, v{k1}, v{k3}")
e(f"v_cvt_pk_bf16_f32 v{KB+1}, v{k0}, v{k1}")
c("P' write: BXP + g*2048 + (32ct + n)*16 + hi*8 ; hi=0 lanes: slots 0,1 = (wd,we) hi ; slot 2 = wd lo ; slot 3 = P'[j=0]")
vPW, vPM = 126, 127 if not TIMING else 115
e(f"v_and_b32 v{vPW}, 31, v{vL}")
e(f"v_lshlrev_b32 v{vPW}, 4, v{vPW}")
e(f"v_lshl_add_u32 v{vPW}, v{vT[3]}, 3, v{vPW}")
e(f"s_lshl_b32 s{sT0}, s{sCT}, 9")
e(f"s_lshl_b32 s{sT1}, s{sRQ}, 13")
e(f"s_add_u32 s{sT0}, s{sT0}, s{sT1}")
e(f"s_add_u32 s{sT0}, s{sT0}, {BXP}")
e(f"v_add_u32 v{vPW}, s{sT0}, v{vPW}")
e(f"v_cmp_gt_u32 vcc, 32, v{vL}")
e(f"v_mov_b32 v{vPM}, 0xffff0000")
e(f"v_cndmask_b32 v{vPM}, -1, v{vPM}, vcc         ; mask M")
e(f"v_and_b32 v{KB+1}, 0xffff, v{KB+1}")
e(f"v_cndmask_b32 v{KB+1}, 0, v{KB+1}, vcc")
e(f"s_mov_b32 s{sK2}, 0x{NLOG2E:08x}")
for i in range(4): e(f"v_mov_b32 v{116+i}, 0")
e("s_waitcnt vmcnt(0)")
stamp("slices landed", 6)
arrive(FCB)
wait_cnt(FCB, 8)
stamp("fcb", 45)
for s_ in range(8):
    e(f"v_xor_b32 v{vT[2]}, {s_<<5}, v{vT[1]}")
    e(f"ds_read_b128 {vr(rowreg(s_),4)}, v{vT[2]}")
    e(f"ds_read_b64_tr_b16 {vr(WF+4*s_,2)}, v{vT[6]} offset:{s_*1024}")
    e(f"ds_read_b64_tr_b16 {vr(WF+4*s_+2,2)}, v{vT[6]} offset:{s_*1024+256}")
for s_ in range(8):
    e(f"s_waitcnt lgkmcnt({min(15, 21-3*s_)})")
    mfma(FACC, rowreg(s_), WF+4*s_, "0" if s_ == 0 else vr(FACC,16))
stamp("mfma issued", 46)
arrive(FCC)
c("---- granule (16 B, two records) per lane: c = 8fw + (l>>3), q = l&7 : c*32000 + q*16 (+ b*128)")
e(f"s_lshl_b32 s{sT0}, s{fw}, 3")
e(f"v_lshrrev_b32 v{vT[4]}, 3, v{vL}")
e(f"v_add_u32 v{vT[4]}, s{sT0}, v{vT[4]}          ; c")
e(f"v_mul_u32_u24 v{vGA}, {CHB}, v{vT[4]}")
e(f"v_and_b32 v{vT[5]}, 7, v{vL}")
e(f"v_lshl_add_u32 v{vGA}, v{vT[5]}, 4, v{vGA}")
e(f"v_cmp_gt_u32 {sp(sPA)}, {NCH}, v{vT[4]}")
e(f"s_lshl_b32 s{sT2}, s2, 7")
e(f"s_add_u32 s{sT3}, s{sT2}, {CELLB}")
e(f"v_lshlrev_b32 v{vT[1]}, 4, v{vL}")
e(f"s_lshl_b32 s{sT0}, s{fw}, 12")
e(f"v_add_u32 v{vT[1]}, s{sT0}, v{vT[1]}")
e(f"s_mov_b64 {sp(sPB)}, {sp(sPA)}")
e(f"s_mov_b64 {sp(sEX)}, {sp(sPA)}")
e(f"s_sub_u32 s{sLOW}, s{sTW}, {DELTA}")
if FORCE == "ovf":
    e(f"s_add_u32 s{sLOW}, s{sLOW}, 0x40000000")
e(f"s_mov_b32 s{sK3}, {WIN}")
e(f"s_mov_b32 s{sCNT}, 0")
e(f"s_mov_b64 {sp(sM2)}, {sp(sPB)}")
_pi = [0]
def poll_issue():
    i = _pi[0]; _pi[0] += 1
    e(f"s_cmp_eq_u64 {sp(sPA)}, 0")
    e(f"s_cbranch_scc1 L_rp_noa{i}")
    e(f"s_mov_b64 exec, {sp(sPA)}")
    e(f"buffer_load_dwordx4 {vr(RA,4)}, v{vGA}, {srd(S_WS)}, s{sT2} offen sc1")
    lab(f"L_rp_noa{i}")
    e(f"s_cmp_eq_u64 {sp(sM2)}, 0")
    e(f"s_cbranch_scc1 L_rp_nob{i}")
    e(f"s_mov_b64 exec, {sp(sM2)}")
    e(f"buffer_load_dwordx4 {vr(RB,4)}, v{vGA}, {srd(S_WS)}, s{sT3} offen sc1")
    lab(f"L_rp_nob{i}")
    e("s_mov_b64 exec, -1")
if EARLY:
    poll_issue()
    stamp("B3", 7)
def pwrite(r0, g):
    for i in range(4):
        e(f"v_mul_f32 v{r0+i}, s{sK2}, v{r0+i}")
    e(f"v_cvt_pk_bf16_f32 v{r0}, v{r0}, v{r0+1}")
    e(f"v_cvt_pk_bf16_f32 v{r0+1}, v{r0+2}, v{r0+3}")
    e(f"v_cndmask_b32 v{r0}, v{r0}, v{KB}, vcc")
    e(f"v_and_or_b32 v{r0+1}, v{r0+1}, v{vPM}, v{KB+1}")
    e(f"ds_write_b64 v{vPW}, {vr(r0,2)} offset:{g*2048}")
e(f"v_cmp_gt_u32 vcc, 32, v{vL}")
e("s_nop 3")
for g in range(4):
    pwrite(FACC+4*g, g)
c("all eight waves hold their fragments: zero the staging area (4 KB per wave)")
wait_cnt(FCC, 8)
for i in range(4):
    e(f"ds_write_b128 v{vT[1]}, {vr(116,4)} offset:{REC + i*1024}")
e("s_waitcnt lgkmcnt(0)")
arrive(FCNT2)
stamp("front done", 5)
if not NOPRIO: e(f"s_setprio {FPRIO}")
if not EARLY:
    if PSL: e(f"s_sleep {PSL}")
    poll_issue()
    stamp("B3", 7)
e("s_branch L_rpoll")

lab("L_common")
c("---- R waves: no records ; wave 7 waits for the Q / WH2F flags")
for m in MK: e(f"s_mov_b64 {sp(m)}, 0")
e(f"s_cmp_eq_u32 s{sW}, 7")
e("s_cbranch_scc0 L_ba")
if QGATE: wait_cnt(RLAND, QGATE)
e(f"v_lshlrev_b32 v{vT[4]}, 4, v{vL}")
e(f"s_mov_b32 s{sCNT}, 0")
e(f"s_mov_b32 s{sT2}, {FLG}")
e(f"s_sub_u32 s{sLOW}, s{sTW}, {DELTA}")
if FORCE == "fb":
    e(f"s_add_u32 s{sLOW}, s{sLOW}, 0x40000000")
e(f"s_mov_b32 s{sK3}, {WIN}")
e("s_mov_b32 exec_lo, -1")
e("s_mov_b32 exec_hi, 0x1ff")
lab("L_qpoll")
e(f"buffer_load_dwordx4 {vr(RA,4)}, v{vT[4]}, {srd(S_WS)}, s{sT2} offen sc1")
e(f"s_add_u32 s{sCNT}, s{sCNT}, 1")
e("s_waitcnt vmcnt(0)")
stamp_dyn(19, sCNT)
for k in range(4):
    e(f"v_xor_b32 v{RA+k}, {FLC}, v{RA+k}")
for k in range(4):
    e(f"v_subrev_u32 v{RA+k}, s{sLOW}, v{RA+k}")
e(f"v_max_u32 v{RA}, v{RA}, v{RA+1}")
e(f"v_max3_u32 v{RA}, v{RA}, v{RA+2}, v{RA+3}")
e(f"v_cmp_le_u32 vcc, s{sK3}, v{RA}")
e("s_cmp_eq_u64 vcc, 0")
e("s_cbranch_scc1 L_qp_ok")
e(f"s_sleep {QSL}")
e(f"s_cmp_lt_u32 s{sCNT}, {NPOLL}")
e("s_cbranch_scc1 L_qpoll")
e(f"v_mov_b32 v{vT[0]}, {OVF}")
e(f"v_mov_b32 v{vT[1]}, 2")
e(f"ds_or_b32 v{vT[0]}, v{vT[1]}")
lab("L_qp_ok")
e("s_mov_b64 exec, -1")
e("s_branch L_ba")
_st[0] = 8
def gcheck(G, M, M2):
    e(f"v_bfe_u32 v{vT[2]}, v{G+3}, 3, 9")
    e(f"v_xor_b32 v{vT[2]}, {TAGC}, v{vT[2]}")
    e(f"v_lshrrev_b32 v{vT[0]}, 23, v{G}")
    e(f"v_lshrrev_b32 v{vT[1]}, 23, v{G+1}")
    e(f"v_subrev_u32 v{vT[3]}, s{sLOW}, v{G+3}")
    e(f"v_cmp_eq_u32 {M}, v{vT[0]}, v{vT[2]}")
    e(f"v_cmp_eq_u32 {M2}, v{vT[1]}, v{vT[2]}")
    e(f"s_and_b64 {M}, {M}, {M2}")
    e(f"v_cmp_gt_u32 {M2}, s{sK3}, v{vT[3]}")
    e(f"s_and_b64 {M}, {M}, {M2}")
e("s_branch L_rpoll")
lab("L_rpoll_again")
poll_issue()
lab("L_rpoll")
e(f"s_add_u32 s{sCNT}, s{sCNT}, 1")
e("s_waitcnt vmcnt(0)")
stamp_dyn(19, sCNT)
gcheck(RA, "vcc", sp(sM0))
e(f"s_andn2_b64 {sp(sPA)}, {sp(sPA)}, vcc")
gcheck(RB, sp(sM1), sp(sM0))
e(f"v_bfe_u32 v{vT[0]}, v{RA}, 21, 1")
e(f"s_andn2_b64 {sp(sPB)}, {sp(sPB)}, {sp(sM1)}")
e(f"v_cmp_ne_u32 vcc, 0, v{vT[0]}                ; more")
e(f"s_andn2_b64 vcc, vcc, {sp(sPA)}")
if BSPEC:
    e(f"s_or_b64 vcc, vcc, {sp(sPA)}")
e(f"s_and_b64 {sp(sM2)}, {sp(sPB)}, vcc")
e(f"s_or_b64 vcc, {sp(sPA)}, {sp(sM2)}")
e("s_cmp_eq_u64 vcc, 0")
e("s_cbranch_scc1 L_rp_ok")
e(f"s_sleep {RSL}")
e(f"s_cmp_lt_u32 s{sCNT}, {NPOLL}")
e("s_cbranch_scc1 L_rpoll_again")
c("timed out: take the slow path")
e(f"v_mov_b32 v{vT[0]}, {OVF}")
e(f"v_mov_b32 v{vT[1]}, 1")
e(f"ds_or_b32 v{vT[0]}, v{vT[1]}")
e(f"s_andn2_b64 {sp(sEX)}, {sp(sEX)}, vcc")
lab("L_rp_ok")
e("s_mov_b64 exec, -1")
arrive(RLAND)
stamp("records landed")
c("masks: a,b = valid bits of granule A ; c,d = valid bits of granule B & more")
RCS = [RA, RA+1, RB, RB+1]
e(f"v_bfe_u32 v{vT[0]}, v{RA}, 20, 1")
e(f"v_bfe_u32 v{vT[1]}, v{RA+1}, 20, 1")
e(f"v_bfe_u32 v{vT[2]}, v{RB}, 20, 1")
e(f"v_bfe_u32 v{vT[3]}, v{RB+1}, 20, 1")
e(f"v_bfe_u32 v{vT[4]}, v{RA}, 21, 1")
e(f"v_bfe_u32 v{vT[5]}, v{RA}, 22, 1")
e(f"v_and_b32 v{vT[2]}, v{vT[2]}, v{vT[4]}")
e(f"v_and_b32 v{vT[3]}, v{vT[3]}, v{vT[4]}")
for k in range(4):
    e(f"v_cmp_ne_u32 {sp(MK[k])}, 0, v{vT[k]}")
e(f"v_cmp_ne_u32 {sp(sM2)}, 0, v{vT[5]}")
for k in range(4):
    e(f"s_and_b64 {sp(MK[k])}, {sp(MK[k])}, {sp(sEX)}")
e(f"s_and_b64 {sp(sM2)}, {sp(sM2)}, {sp(sEX)}")
e(f"v_mov_b32 v{vOne}, 1")
e(f"s_mov_b32 s{sT0}, {ALLOC}")
VS = [91, 92, 93, 94]
def s1_issue(k):
    e(f"v_and_b32 v{VS[k]}, 0x3fff, v{RCS[k]}")
    e(f"v_mul_u32_u24 v{vT[0]}, 6, v{VS[k]}")
    e(f"v_and_b32 v{vT[0]}, -4, v{vT[0]}")
    e(f"v_bfe_u32 v{VI[k]}, v{RCS[k]}, 14, 3")
    e(f"v_lshl_add_u32 v{vT[1]}, v{VI[k]}, 2, s{sT0}")
    e(f"s_mov_b64 exec, {sp(MK[k])}")
    e(f"buffer_load_dwordx2 {vr(PS[k],2)}, v{vT[0]}, {srd(S_POS)}, 0 offen")
    e(f"ds_add_rtn_u32 v{VR[k]}, v{vT[1]}, v{vOne}")
    e("s_mov_b64 exec, -1")
    e(f"v_mul_u32_u24 v{VI[k]}, {GSTR}, v{VI[k]}")
c("REC must be zero before placement (all F waves have zeroed their staging)")
wait_cnt(FCNT2, 8, dst=sT1)
for k in range(4):
    e(f"s_cmp_eq_u64 {sp(MK[k])}, 0")
    e(f"s_cbranch_scc1 L_s1i{k}")
    s1_issue(k)
    lab(f"L_s1i{k}")
e(f"s_cmp_eq_u64 {sp(sM2)}, 0")
e("s_cbranch_scc1 L_s1_noovf")
e(f"v_mov_b32 v{vT[0]}, {OVF}")
e(f"ds_or_b32 v{vT[0]}, v{vOne}")
lab("L_s1_noovf")
def s1_place(vR, vI, vS, msk, tag, slow=False):
    e(f"v_cmp_gt_u32 vcc, {CAP}, v{vR}")
    e(f"v_lshl_add_u32 v{vI}, v{vR}, 6, v{vI}")
    e(f"v_bfe_u32 v{vR}, v{vR}, 2, 2")
    e(f"v_lshl_add_u32 v{vI}, v{vR}, 4, v{vI}")
    e(f"v_xor_b32 v{vR}, 16, v{vI}")
    e(f"s_andn2_b64 exec, {sp(msk)}, vcc")
    e(f"s_cbranch_execz L_s1_ok{tag}")
    if slow:
        e(f"v_mov_b32 v{qP}, 1")
        e(f"v_mov_b32 v{vT[0]}, {PEND}")
        e(f"ds_write_b32 v{vT[0]}, v{vOne}")
    else:
        e(f"v_mov_b32 v{vT[0]}, {OVF}")
        e(f"ds_or_b32 v{vT[0]}, v{vOne}")
    lab(f"L_s1_ok{tag}")
    e(f"s_and_b64 {sp(msk)}, {sp(msk)}, vcc")
    e(f"s_mov_b64 exec, {sp(msk)}")
    e(f"ds_write_b16 v{vR}, v{vS} offset:{REC}")
    e("s_mov_b64 exec, -1")
e("s_waitcnt lgkmcnt(0)")
for k in range(4):
    e(f"s_cmp_eq_u64 {sp(MK[k])}, 0")
    e(f"s_cbranch_scc1 L_s1p{k}")
    s1_place(VR[k], VI[k], VS[k], MK[k], "abcd"[k])
    lab(f"L_s1p{k}")
def dma_issue(va, vb, sbuf):
    e(f"v_lshl_add_u32 v{va}, v{va}, 8, v{vQD}")
    e(f"v_lshl_add_u32 v{vb}, v{vb}, 8, v{vQD}")
    e(f"s_mov_b32 m0, s{sbuf}")
    e(f"s_nop 0")
    e(f"buffer_load_dwordx4 v{va}, {srd(S_Q)}, 0 offen{QSC} lds")
    e(f"s_add_u32 m0, s{sbuf}, 1024")
    e(f"s_nop 0")
    e(f"buffer_load_dwordx4 v{vb}, {srd(S_Q)}, 0 offen{QSC} lds")
lab("L_st2")
c("stage 2 (sparse, up to four records per lane)")
PD = [96, 100, 112, 116]
e(f"s_mov_b32 s{sT0}, {PTF}")
e(f"s_mov_b32 s{sK2}, 0xffff0000")
e(f"v_mov_b32 v{vT[6]}, 0x3f80")
for k in range(4):
    e(f"s_cmp_eq_u64 {sp(MK[k])}, 0")
    e(f"s_cbranch_scc1 L_s2r{k}")
    e(f"v_bfe_u32 v{vT[4]}, v{RCS[k]}, 14, 3")
    e(f"v_bfe_u32 v{vT[5]}, v{RCS[k]}, 17, 3")
    e(f"v_mad_u32_u24 v{vT[5]}, v{vT[4]}, 5, v{vT[5]}        ; k = 5g + j")
    e(f"v_min_u32 v{vT[5]}, 39, v{vT[5]}")
    e(f"v_lshl_add_u32 v{vT[5]}, v{vT[5]}, 4, s{sT0}")
    e(f"ds_read_b128 {vr(PD[k],4)}, v{vT[5]}")
    lab(f"L_s2r{k}")
e("s_waitcnt vmcnt(0) lgkmcnt(0)")
stamp("pos landed", 12)
def stage2_pass(rec, ea, hi_half, ps, pd, row, msk, tag):
    X = [104, 105, 106, 107, 108, 109]
    e(f"s_cmp_eq_u64 {sp(msk)}, 0")
    e(f"s_cbranch_scc1 L_s2_done{tag}")
    e(f"s_mov_b64 exec, {sp(msk)}")
    e(f"v_and_b32 v{X[0]}, 1, v{rec}")
    e(f"v_lshlrev_b32 v{X[0]}, 4, v{X[0]}        ; shift")
    e(f"v_alignbit_b32 v{X[1]}, v{ps+1}, v{ps}, v{X[0]}     ; x | y<<16")
    e(f"v_lshrrev_b32 v{X[2]}, v{X[0]}, v{ps+1}              ; z (low 16)")
    e(f"v_lshlrev_b32 v{ps}, 16, v{X[1]}")
    e(f"v_and_b32 v{ps+1}, s{sK2}, v{X[1]}")
    e(f"v_lshlrev_b32 v{X[2]}, 16, v{X[2]}")
    e(f"v_sub_f32 v{pd}, v{pd}, v{ps}")
    e(f"v_sub_f32 v{pd+1}, v{pd+1}, v{ps+1}")
    e(f"v_sub_f32 v{pd+2}, v{pd+2}, v{X[2]}")
    e(f"v_cvt_pk_bf16_f32 v{X[0]}, v{pd}, v{pd+1}")
    e(f"v_cvt_pk_bf16_f32 v{X[1]}, v{pd+2}, v{pd+2}     ; dz")
    e(f"v_bfe_u32 v{X[3]}, v{rec}, 17, 3")
    e(f"v_lshl_add_u32 v{X[3]}, v{X[3]}, 1, v{row}")
    e(f"v_xor_b32 v{X[5]}, 16, v{X[3]}")
    e(f"ds_write_b16 v{X[3]}, v{vT[6]} offset:{REC+6}")
    e(f"ds_write_b16 v{X[5]}, v{X[0]} offset:{REC+6}")
    e(f"v_xor_b32 v{X[5]}, 32, v{X[3]}")
    e(f"v_xor_b32 v{X[3]}, 48, v{X[3]}")
    e(f"ds_write_b16_d16_hi v{X[5]}, v{X[0]} offset:{REC+6}")
    e(f"ds_write_b16 v{X[3]}, v{X[1]} offset:{REC+6}")
    e(f"v_lshlrev_b32 v{pd}, 16, v{X[0]}")
    e(f"v_and_b32 v{pd+1}, s{sK2}, v{X[0]}")
    e(f"v_lshlrev_b32 v{pd+2}, 16, v{X[1]}")
    for k in range(3):
        e(f"v_mul_f32 v{pd+k}, v{pd+k}, v{pd+k}")
    e(f"v_cvt_pk_bf16_f32 v{X[2]}, v{pd}, v{pd+1}")
    e(f"v_cvt_pk_bf16_f32 v{X[4]}, v{pd+2}, v{pd+2}")
    e(f"v_lshlrev_b32 v{pd}, 16, v{X[2]}")
    e(f"v_and_b32 v{pd+1}, s{sK2}, v{X[2]}")
    e(f"v_lshlrev_b32 v{pd+2}, 16, v{X[4]}")
    e(f"v_add_f32 v{pd}, v{pd}, v{pd+1}")
    e(f"v_add_f32 v{pd}, v{pd}, v{pd+2}")
    e(f"v_cvt_pk_bf16_f32 v{X[2]}, v{pd}, 0")
    if hi_half:
        e(f"v_and_or_b32 v{X[4]}, v{ea}, s{sK2}, v{X[2]}")
    else:
        e(f"v_lshl_or_b32 v{X[4]}, v{ea}, 16, v{X[2]}")
    e(f"ds_write_b32 v{row}, v{X[4]} offset:{REC}")
    e(f"ds_write_b16 v{row}, v{X[2]} offset:{REC+4}")
    e("s_mov_b64 exec, -1")
    lab(f"L_s2_done{tag}")
for k in range(4):
    stage2_pass(RCS[k], [RA+2, RB+2][k>>1], k & 1, PS[k], PD[k], VI[k], MK[k], "abcd"[k])
stamp("stage2 done", 13)
lab("L_ba")
stamp("placed+Q", 9)
if not NOPRIO: e("s_setprio 0")
e(f"s_waitcnt lgkmcnt(0)")
e("s_barrier")
stamp("BA", 10)

lab("L_post")
c("count of own group, OVF, lookups for tiles 0,1")
e(f"s_lshl_b32 s{sT0}, s{sG}, 2")
e(f"s_add_u32 s{sT0}, s{sT0}, {ALLOC}")
e(f"v_mov_b32 v{vT[0]}, s{sT0}")
e(f"v_mov_b32 v{vT[1]}, {OVF}")
e(f"ds_read_b32 v{vT[2]}, v{vT[0]}")
e(f"ds_read_b32 v{vT[3]}, v{vT[1]}")
LK = [104, 105, 80, 81]
e(f"v_xor_b32 v{vT[4]}, 32, v{vLK}")
e(f"ds_read_u16 v{LK[0]}, v{vLK}")
e(f"ds_read_u16 v{LK[1]}, v{vT[4]} offset:512")
e(f"ds_read_u16 v{LK[2]}, v{vLK} offset:1024")
e(f"ds_read_u16 v{LK[3]}, v{vT[4]} offset:1536")
e(f"s_cmp_eq_u32 s{sMODE}, 0")
e("s_cbranch_scc1 L_post_fast")
c("slow path: skip quickly if nothing was placed in this pass")
e(f"v_mov_b32 v{vT[0]}, {ALLOC}")
e(f"ds_read_b128 {vr(96,4)}, v{vT[0]}")
e(f"ds_read_b128 {vr(100,4)}, v{vT[0]} offset:16")
e("s_waitcnt lgkmcnt(0)")
e(f"v_or3_b32 v96, v96, v97, v98")
e(f"v_or3_b32 v96, v96, v99, v100")
e(f"v_or3_b32 v96, v96, v101, v102")
e(f"v_or_b32 v96, v96, v103")
e("s_nop 0")
e(f"v_readfirstlane_b32 s{sT0}, v96")
e(f"v_readfirstlane_b32 s{sCO}, v{vT[2]}")
e("s_nop 3")
e(f"s_cmp_lg_u32 s{sT0}, 0")
e("s_cbranch_scc1 L_post_go")
e(f"s_mov_b32 s{sRETRY}, 0")
e("s_branch L_slow_adv")
lab("L_post_fast")
e("s_waitcnt lgkmcnt(4)")
e(f"v_readfirstlane_b32 s{sCO}, v{vT[2]}")
e(f"v_readfirstlane_b32 s{sT3}, v{vT[3]}           ; OVF")
e("s_nop 3")
e(f"s_cmp_lg_u32 s{sT3}, 0")
e("s_cbranch_scc1 L_slow_init")
lab("L_post_go")
e(f"s_min_u32 s{sCO}, s{sCO}, {CAP}")
e(f"s_add_u32 s{sNT}, s{sCO}, 15")
e(f"s_lshr_b32 s{sNT}, s{sNT}, 4")
e("s_waitcnt lgkmcnt(2)")
dma_issue(LK[0], LK[1], sB0)
stamp("dma0 issued", 11)
c("ID constants: lane (m,hi): step s elem i = (m == 16s + 8hi + i)")
e(f"v_and_b32 v{vT[4]}, 31, v{vL}")
e(f"v_lshrrev_b32 v{vT[5]}, 5, v{vL}")
e(f"v_lshlrev_b32 v{vT[5]}, 3, v{vT[5]}")
e(f"v_sub_u32 v{vT[4]}, v{vT[4]}, v{vT[5]}        ; x = m - 8hi")
e(f"v_mov_b32 v{vT[5]}, 0x3f80")
e(f"v_mov_b32 v{vT[6]}, 0x3f800000")
for s_ in range(2):
    for r in range(4):
        x0 = 16*s_ + 2*r
        e(f"v_cmp_eq_u32 vcc, {x0}, v{vT[4]}")
        e(f"v_cndmask_b32 v{ID+4*s_+r}, 0, v{vT[5]}, vcc")
        e(f"v_cmp_eq_u32 vcc, {x0+1}, v{vT[4]}")
        e(f"v_cndmask_b32 v{ID+4*s_+r}, v{ID+4*s_+r}, v{vT[6]}, vcc")
c("BXF address: BXP + g*2048 + (64ch + l)*16   (l = 32hi + n)")
e(f"s_lshl_b32 s{sT0}, s{sG}, 11")
e(f"s_lshl_b32 s{sT1}, s{sCH2}, 10")
e(f"s_add_u32 s{sT0}, s{sT0}, s{sT1}")
e(f"s_add_u32 s{sT0}, s{sT0}, {BXP}")
e(f"v_lshlrev_b32 v{vT[4]}, 4, v{vL}")
e(f"v_add_u32 v{vT[4]}, s{sT0}, v{vT[4]}")
c("SEG zero (first pass only)")
e(f"s_cmp_eq_u32 s{sNODE}, 0")
e("s_cbranch_scc1 L_noseg0")
e(f"s_mov_b32 s{sNODE}, 0")
for r in range(32):
    e(f"v_mov_b32 v{SEG+r}, 0")
lab("L_noseg0")
e("s_waitcnt lgkmcnt(0)")
dma_issue(LK[2], LK[3], sB1)
stamp("BB", 14)
_st[0] = 15
e(f"ds_read_b128 {vr(BXF,4)}, v{vT[4]}")
if not NOPRIO: e("s_setprio 3")
e(f"s_mov_b32 s{sU}, 0")
if XM:
    for i in range(4): e(f"v_mov_b32 v{124+i}, 0")
e("s_mov_b32 s6, 1.0")
e("s_mov_b32 s7, 1.0")
e(f"s_mov_b32 s{sREM}, s{sCO}")
e(f"s_mov_b32 s{sRT}, s{sNT}")
c("running pointers: vLK -> tile 2 ; working copies of vOD / vTRS")
vLKr, vODr, vTRSr, vTRSr2 = 92, 93, 94, 95
e(f"v_add_u32 v{vLKr}, 2048, v{vLK}")
e(f"v_mov_b32 v{vODr}, v{vOD}")
e(f"v_mov_b32 v{vTRSr}, v{vTRS}")
e(f"v_xor_b32 v{vTRSr2}, 32, v{vTRS}")

def tile_body(buf):
    tag = f"t{buf}"
    sBUF = [sB0, sB1][buf]
    bo = buf * 2048
    c(f"---- tile (buffer {buf}) ----")
    e(f"s_cmp_gt_u32 s{sRT}, 2")
    e(f"s_cselect_b32 s{sK3}, 1, 0")
    e(f"s_cbranch_scc0 L_nolk{tag}")
    e(f"v_xor_b32 v{vT[4]}, 32, v{vLKr}")
    e(f"ds_read_u16 v{vT[2]}, v{vLKr}")
    e(f"ds_read_u16 v{vT[3]}, v{vT[4]} offset:512")
    lab(f"L_nolk{tag}")
    e(f"ds_read_b128 {vr(OHD,4)}, v{vODr}")
    e(f"s_cmp_gt_u32 s{sRT}, 1")
    e(f"s_cbranch_scc1 L_w2{tag}")
    e("s_waitcnt vmcnt(0)")
    e(f"s_branch L_wd{tag}")
    lab(f"L_w2{tag}")
    e("s_waitcnt vmcnt(2)")
    lab(f"L_wd{tag}")
    e(f"ds_read_b64_tr_b16 {vr(QF,2)}, v{vTRQ0} offset:{bo}")
    e(f"ds_read_b64_tr_b16 {vr(QF+2,2)}, v{vTRQ0} offset:{bo+512}")
    e(f"ds_read_b64_tr_b16 {vr(QF+4,2)}, v{vTRQ1} offset:{bo}")
    e(f"ds_read_b64_tr_b16 {vr(QF+6,2)}, v{vTRQ1} offset:{bo+512}")
    e(f"ds_read_b64_tr_b16 {vr(SF,2)}, v{vTRSr}")
    e(f"ds_read_b64_tr_b16 {vr(SF+2,2)}, v{vTRSr2} offset:512")
    e(f"v_add_u32 v{vLKr}, 1024, v{vLKr}")
    e(f"v_add_u32 v{vODr}, v{vODM}, v{vODr}")
    e(f"v_add_u32 v{vTRSr}, 1024, v{vTRSr}")
    e(f"v_add_u32 v{vTRSr2}, 1024, v{vTRSr2}")
    e("s_waitcnt lgkmcnt(6)")
    mfma(ACC, OHD, BXF, "0")
    e("s_waitcnt lgkmcnt(4)")
    mfma(ACC, ID, QF, vr(ACC,16))
    e("s_waitcnt lgkmcnt(2)")
    mfma(ACC, ID+4, QF+4, vr(ACC,16))
    for _ in range(XM):
        mfma(ACC, 124, QF+4*(_&1), vr(ACC,16))
    e(f"s_cmp_eq_u32 s{sK3}, 0")
    e(f"s_cbranch_scc1 L_nodma{tag}")
    dma_issue(vT[2], vT[3], sBUF)
    lab(f"L_nodma{tag}")
    e("s_nop 7")
    e("s_nop 3")
    def blk(bb, t):
        a = ACC + 4*bb
        for i in range(4): e(f"v_exp_f32 v{t+i}, v{a+i}")
        if PK:
            for i in (0, 2): e(f"v_pk_add_f32 {vr(t+i,2)}, {vr(t+i,2)}, s[6:7]")
        else:
            for i in range(4): e(f"v_add_f32 v{t+i}, 1.0, v{t+i}")
        for i in range(4): e(f"v_rcp_f32 v{t+i}, v{t+i}")
        if PK:
            for i in (0, 2): e(f"v_pk_mul_f32 {vr(t+i,2)}, {vr(a+i,2)}, {vr(t+i,2)}")
        else:
            for i in range(4): e(f"v_mul_f32 v{t+i}, v{a+i}, v{t+i}")
        e(f"v_cvt_pk_bf16_f32 v{MP+2*bb}, v{t}, v{t+1}")
        e(f"v_cvt_pk_bf16_f32 v{MP+2*bb+1}, v{t+2}, v{t+3}")
    blk(0, TE); blk(2, TE+4)
    e(f"s_cmp_le_u32 s{sREM}, 8")
    e(f"s_cbranch_scc1 L_skip{tag}")
    blk(1, TE); blk(3, TE+4)
    e(f"s_branch L_blk{tag}")
    lab(f"L_skip{tag}")
    for r in (2, 3, 6, 7): e(f"v_mov_b32 v{MP+r}, 0")
    lab(f"L_blk{tag}")
    e("s_waitcnt lgkmcnt(0)")
    e("s_nop 1")
    mfma(SEG, MP, SF, vr(SEG,16))
    mfma(SEG+16, MP+4, SF, vr(SEG+16,16))
    e(f"s_sub_u32 s{sREM}, s{sREM}, 16")
    e(f"s_sub_u32 s{sRT}, s{sRT}, 1")
    if not NOPRIO:
        e(f"s_cmp_gt_u32 s{sRT}, 3")
        e(f"s_cbranch_scc1 L_pr{tag}")
        e(f"s_setprio 2")
        e(f"s_cmp_eq_u32 s{sRT}, 3")
        e(f"s_cbranch_scc1 L_pr{tag}")
        e(f"s_setprio 1")
        e(f"s_cmp_eq_u32 s{sRT}, 2")
        e(f"s_cbranch_scc1 L_pr{tag}")
        e(f"s_setprio 0")
        lab(f"L_pr{tag}")

e(f"s_cmp_eq_u32 s{sRT}, 0")
e("s_cbranch_scc1 L_tiles_done")
lab("L_tile_loop")
tile_body(0)
e(f"s_cmp_eq_u32 s{sRT}, 0")
e("s_cbranch_scc1 L_tiles_done")
tile_body(1)
e(f"s_cmp_lg_u32 s{sRT}, 0")
e("s_cbranch_scc1 L_tile_loop")
lab("L_tiles_done")
e("s_waitcnt vmcnt(0)")
if not NOPRIO: e("s_setprio 3")
stamp("tiles done")
e(f"s_cmp_eq_u32 s{sMODE}, 0")
e("s_cbranch_scc0 L_slow_next")

lab("L_final")
WFL = 80
ROW = 16
HRES = 112
vN = vT[1]; vHI = vT[2]; vOFF = vT[3]; vRD_ = vT[4]
e(f"s_memrealtime s[6:7]")
e(f"v_and_b32 v{vN}, 31, v{vL}")
e(f"v_lshrrev_b32 v{vHI}, 5, v{vL}")
c("late frags: quads 1, 2: WH2F slice ct ; quad 0: wx frags")
e(f"s_cmp_eq_u32 s{sQ}, {QC}")
e("s_cbranch_scc1 L_f_wx")
e(f"s_cmp_eq_u32 s{sQ}, 3")
e("s_cbranch_scc1 L_f_flush")
e(f"s_lshl_b32 s{sT0}, s{sCT}, 13")
e(f"s_add_u32 s{sT0}, s{sT0}, {WH2F}")
e(f"s_add_u32 s{sT1}, s{sT0}, 4096")
e(f"v_lshlrev_b32 v{vT[0]}, 4, v{vL}")
for s_ in range(8):
    e(f"buffer_load_dwordx4 {vr(WFL+4*s_,4)}, v{vT[0]}, {srd(S_WS)}, s{[sT0,sT1][s_>>2]} offen offset:{(s_%4)*1024}{QSC}")
e("s_branch L_f_flush")
lab("L_f_wx")
e(f"v_lshlrev_b32 v{vT[0]}, 4, v{vHI}")
for s_ in range(8):
    e(f"buffer_load_dwordx4 {vr(WFL+4*s_,4)}, v{vT[0]}, {srd(S_WX)}, 0 offen offset:{s_*32}")
lab("L_f_flush")
c("flush: lane (f=n, hi): addr = QTw + h*2048 + f*64 + ((bb ^ ((f>>2)&3) ^ (g&3))<<4) + hi*8")
e(f"s_and_b32 s{sT0}, s{sG}, 3")
e(f"v_bfe_u32 v{vT[5]}, v{vN}, 2, 2")
e(f"v_xor_b32 v{vT[5]}, s{sT0}, v{vT[5]}")
e(f"v_lshlrev_b32 v{vT[5]}, 4, v{vT[5]}")
e(f"v_lshl_add_u32 v{vT[5]}, v{vN}, 6, v{vT[5]}")
e(f"v_lshl_add_u32 v{vT[5]}, v{vHI}, 3, v{vT[5]}")
e(f"v_add_u32 v{vT[5]}, s{sB0}, v{vT[5]}")
e("s_nop 7")
e("s_nop 3")
for h in range(2):
    for bb in range(4):
        r0 = SEG + 16*h + 4*bb
        e(f"v_cvt_pk_bf16_f32 v{r0}, v{r0}, v{r0+1}")
        e(f"v_cvt_pk_bf16_f32 v{r0+1}, v{r0+2}, v{r0+3}")
        if bb == 0:
            e(f"ds_write_b64 v{vT[5]}, {vr(r0,2)} offset:{h*2048}")
        else:
            e(f"v_xor_b32 v{vT[6]}, {bb<<4}, v{vT[5]}")
            e(f"ds_write_b64 v{vT[6]}, {vr(r0,2)} offset:{h*2048}")
c("per-role (node, comp) -> g, f ; addr = QT + g*8192 + f*64 + ((hi ^ ((f>>2)&3) ^ (g&3))<<4)")
vNODE = vT[5]; vCMP = vT[6]
def node_addr(dst, node, cmp_, t0, t1):
    e(f"v_mul_u32_u24 v{t1}, 52, v{node}")
    e(f"v_lshrrev_b32 v{t1}, 8, v{t1}             ; g")
    e(f"v_mul_u32_u24 v{t0}, 5, v{t1}")
    e(f"v_sub_u32 v{t0}, v{node}, v{t0}          ; j")
    if cmp_ is not None:
        e(f"v_lshl_add_u32 v{t0}, v{cmp_}, 3, v{t0}")
    e(f"v_add_u32 v{t0}, 3, v{t0}                 ; f")
    e(f"v_bfe_u32 v{dst}, v{t0}, 2, 2")
    e(f"v_xor_b32 v{dst}, v{dst}, v{vHI}")
    e(f"v_lshlrev_b32 v{t0}, 6, v{t0}")
    e(f"v_lshl_add_u32 v{t0}, v{t1}, 13, v{t0}")
    e(f"v_and_b32 v{t1}, 3, v{t1}")
    e(f"v_xor_b32 v{dst}, v{dst}, v{t1}")
    e(f"v_lshl_add_u32 v{dst}, v{dst}, 4, v{t0}")
    e(f"v_add_u32 v{dst}, {QT}, v{dst}")
e(f"s_mul_i32 s{sK3}, s2, 40")
e(f"s_cmp_eq_u32 s{sQ}, {QC}")
e("s_cbranch_scc1 L_f_roleC")
e(f"s_cmp_eq_u32 s{sQ}, {QB}")
e("s_cbranch_scc1 L_f_roleB")
e(f"s_cmp_eq_u32 s{sQ}, {QA}")
e("s_cbranch_scc0 L_f_bar")
c("role A (nodes n)")
node_addr(vRD_, vN, None, vT[0], vT[7])
c("role A residual: h[node n][32ct + 8bb + 4hi..+3]: OWN + n*256 + (((ct*4+bb) ^ (n&15))<<4) + hi*8")
e(f"v_and_b32 v{vT[0]}, 15, v{vN}")
e(f"s_lshl_b32 s{sT0}, s{sCT}, 2")
e(f"v_xor_b32 v{vT[0]}, s{sT0}, v{vT[0]}")
e(f"v_lshlrev_b32 v{vT[0]}, 4, v{vT[0]}")
e(f"v_lshl_add_u32 v{vT[0]}, v{vN}, 8, v{vT[0]}")
e(f"v_lshl_add_u32 v{vT[0]}, v{vHI}, 3, v{vT[0]}")
e(f"v_add_u32 v{vT[0]}, {OWN}, v{vT[0]}")
for bb in range(4):
    e(f"v_xor_b32 v{vT[7]}, {bb<<4}, v{vT[0]}")
    e(f"ds_read_b64 {vr(HRES+2*bb,2)}, v{vT[7]}")
e(f"v_add_u32 v{vOFF}, s{sK3}, v{vN}")
e(f"v_lshlrev_b32 v{vOFF}, 8, v{vOFF}")
e(f"v_lshl_add_u32 v{vOFF}, v{vHI}, 3, v{vOFF}")
e(f"s_lshl_b32 s{sT0}, s{sCT}, 6")
e(f"v_add_u32 v{vOFF}, s{sT0}, v{vOFF}")
e("s_branch L_f_bar")
lab("L_f_roleB")
c("role B (nodes 32 + (n&7))")
e(f"v_and_b32 v{vNODE}, 7, v{vN}")
e(f"v_add_u32 v{vNODE}, 32, v{vNODE}")
node_addr(vRD_, vNODE, None, vT[0], vT[7])
c("role B residual: rows 32+4hi+i, col 32ct+n: OWN + row*256 + (((ct*4 + (n>>3)) ^ (row&15))<<4) + (n&7)*2")
e(f"v_lshrrev_b32 v{vT[0]}, 3, v{vN}")
e(f"s_lshl_b32 s{sT0}, s{sCT}, 2")
e(f"v_add_u32 v{vT[0]}, s{sT0}, v{vT[0]}          ; chunk")
e(f"v_lshlrev_b32 v{vT[7]}, 2, v{vHI}             ; 4hi")
e(f"v_xor_b32 v{vT[0]}, v{vT[0]}, v{vT[7]}")
e(f"v_lshlrev_b32 v{vT[0]}, 4, v{vT[0]}")
e(f"v_lshl_add_u32 v{vT[0]}, v{vT[7]}, 8, v{vT[0]}   ; + 4hi*256")
e(f"v_and_b32 v{vT[5]}, 7, v{vN}")
e(f"v_lshl_add_u32 v{vT[0]}, v{vT[5]}, 1, v{vT[0]}")
e(f"v_add_u32 v{vT[0]}, {OWN + 32*256}, v{vT[0]}")
for i in range(4):
    e(f"v_xor_b32 v{vT[5]}, {i<<4}, v{vT[0]}")
    e(f"ds_read_u16 v{HRES+i}, v{vT[5]} offset:{i*256}")
e(f"s_add_u32 s{sT0}, s{sK3}, 32")
e(f"v_add_u32 v{vOFF}, s{sT0}, v{vT[7]}")
e(f"v_lshlrev_b32 v{vOFF}, 8, v{vOFF}")
e(f"v_lshl_add_u32 v{vOFF}, v{vN}, 1, v{vOFF}")
e(f"s_lshl_b32 s{sT0}, s{sCT}, 6")
e(f"v_add_u32 v{vOFF}, s{sT0}, v{vOFF}")
e("s_branch L_f_bar")
lab("L_f_roleC")
c("role C: n' = min(n,29); idx = 30ct + n' ; G = idx/15 ; r = idx%15 ; c = r/5 ; j = r%5 ; node = 5G + j ; comp = c+1")
e(f"v_min_u32 v{vT[0]}, 29, v{vN}")
e(f"v_cmp_lt_u32 vcc, 14, v{vT[0]}")
e(f"v_cndmask_b32 v{vT[7]}, 0, 1, vcc               ; G&1")
e(f"v_mul_u32_u24 v{vNODE}, 15, v{vT[7]}")
e(f"v_sub_u32 v{vT[0]}, v{vT[0]}, v{vNODE}          ; r")
e(f"v_mul_u32_u24 v{vCMP}, 52, v{vT[0]}")
e(f"v_lshrrev_b32 v{vCMP}, 8, v{vCMP}              ; c")
e(f"v_mul_u32_u24 v{vNODE}, 5, v{vCMP}")
e(f"v_sub_u32 v{vT[0]}, v{vT[0]}, v{vNODE}          ; j")
e(f"s_lshl_b32 s{sT0}, s{sCT}, 1")
e(f"v_add_u32 v{vT[7]}, s{sT0}, v{vT[7]}            ; G")
e(f"v_mad_u32_u24 v{vNODE}, v{vT[7]}, 5, v{vT[0]}")
e(f"v_add_u32 v{vCMP}, 1, v{vCMP}")
node_addr(vRD_, vNODE, vCMP, vT[0], vT[7])
c("role C: pos residual PTF[node][comp-1] ; out offset (40b + node)*6 + (comp-1)*2")
e(f"v_lshlrev_b32 v{vT[0]}, 4, v{vNODE}")
e(f"v_lshl_add_u32 v{vT[0]}, v{vCMP}, 2, v{vT[0]}")
e(f"v_add_u32 v{vT[0]}, {PTF-4}, v{vT[0]}")
e(f"ds_read_b32 v{HRES}, v{vT[0]}")
e(f"v_add_u32 v{vOFF}, s{sK3}, v{vNODE}")
e(f"v_mul_u32_u24 v{vOFF}, 6, v{vOFF}")
e(f"v_lshl_add_u32 v{vOFF}, v{vCMP}, 1, v{vOFF}")
e(f"v_subrev_u32 v{vOFF}, 2, v{vOFF}")
lab("L_f_bar")
e("s_waitcnt lgkmcnt(0)")
c("residency guard: this wave's stamp must be older than the accept window of any later launch")
lab("L_guard")
e(f"s_sub_u32 s{sT0}, s6, s{sTW}")
e(f"s_cmp_ge_u32 s{sT0}, {GUARD}")
e("s_cbranch_scc1 L_guard_ok")
e("s_sleep 8")
e("s_memrealtime s[6:7]")
e("s_waitcnt lgkmcnt(0)")
e("s_branch L_guard")
lab("L_guard_ok")
e("s_barrier")
stamp("final bar")
e(f"s_cmp_eq_u32 s{sQ}, 3")
e("s_cbranch_scc1 L_end")
e(f"v_xor_b32 v{vT[0]}, 32, v{vRD_}")
for s_ in range(8):
    e(f"ds_read_b128 {vr(ROW+4*s_,4)}, v{[vRD_, vT[0]][s_&1]} offset:{(s_>>1)*2048}")
e(f"s_mov_b32 s{sK2}, 0x{NLN2:08x}")
e(f"s_mov_b32 s{sK3}, 0xffff0000")
e("s_waitcnt vmcnt(0)")
e(f"s_cmp_eq_u32 s{sQ}, {QC}")
e("s_cbranch_scc1 L_f_C")
e(f"s_cmp_eq_u32 s{sQ}, {QB}")
e("s_cbranch_scc1 L_f_B")
c("role A")
for s_ in range(8):
    e(f"s_waitcnt lgkmcnt({7-s_})")
    mfma(FACC, WFL+4*s_, ROW+4*s_, vr(FACC,16))
def final_silu(a, n, T):
    for i in range(n): e(f"v_exp_f32 v{T+i}, v{a+i}")
    for i in range(n): e(f"v_add_f32 v{T+i}, 1.0, v{T+i}")
    for i in range(n): e(f"v_rcp_f32 v{T+i}, v{T+i}")
    for i in range(n): e(f"v_mul_f32 v{a+i}, v{a+i}, v{T+i}")
X = 48
e("s_nop 7")
e("s_nop 3")
for i in range(4):
    a = FACC + 4*i
    final_silu(a, 4, X)
    e(f"v_lshlrev_b32 v{X}, 16, v{HRES+2*i}")
    e(f"v_and_b32 v{X+1}, s{sK3}, v{HRES+2*i}")
    e(f"v_lshlrev_b32 v{X+2}, 16, v{HRES+2*i+1}")
    e(f"v_and_b32 v{X+3}, s{sK3}, v{HRES+2*i+1}")
    for k in range(4): e(f"v_fma_f32 v{a+k}, v{a+k}, s{sK2}, v{X+k}")
    e(f"v_cvt_pk_bf16_f32 v{X+4+2*i}, v{a}, v{a+1}")
    e(f"v_cvt_pk_bf16_f32 v{X+5+2*i}, v{a+2}, v{a+3}")
    e(f"buffer_store_dwordx2 {vr(X+4+2*i,2)}, v{vOFF}, {srd(S_O0)}, 0 offen offset:{i*16}")
e("s_branch L_end")
lab("L_f_B")
c("role B: rows 32 + 4hi + r")
for i in range(4): e(f"v_mov_b32 v{ACC+i}, v{FB+i}")
e("s_nop 1")
for s_ in range(8):
    e(f"s_waitcnt lgkmcnt({7-s_})")
    mfma(ACC, ROW+4*s_, WFL+4*s_, vr(ACC,16))
Y = 64
e("s_nop 7")
e("s_nop 3")
final_silu(ACC, 4, Y)
for k in range(4):
    e(f"v_lshlrev_b32 v{Y+k}, 16, v{HRES+k}")
for k in range(4):
    e(f"v_fma_f32 v{ACC+k}, v{ACC+k}, s{sK2}, v{Y+k}")
for k in range(4):
    e(f"v_cvt_pk_bf16_f32 v{Y+8+k}, v{ACC+k}, v{ACC+k}")
for r in range(4):
    e(f"buffer_store_short v{Y+8+r}, v{vOFF}, {srd(S_O0)}, 0 offen offset:{r*256}")
e("s_branch L_end")
lab("L_f_C")
for s_ in range(8):
    e(f"s_waitcnt lgkmcnt({7-s_})")
    mfma(ACC, WFL+4*s_, ROW+4*s_, "0" if s_ == 0 else vr(ACC,16))
e("s_nop 7")
e("s_nop 3")
e(f"v_fma_f32 v{ACC}, v{ACC}, s{sK2}, v{HRES}")
e(f"v_cvt_pk_bf16_f32 v{ACC}, v{ACC}, v{ACC}")
e(f"s_mov_b32 exec_lo, 0x3fffffff")
e(f"s_mov_b32 exec_hi, 0")
e(f"buffer_store_short v{ACC}, v{vOFF}, {srd(S_O1)}, 0 offen")
lab("L_end")
stamp("end")
stamp_flush()
lab("L_end2")
e("s_endpgm")

def zero_lds(Z, vtid):
    c("zero REC (69632 B = 4352 x 16 B) and counters (64 B)")
    for i in range(4): e(f"v_mov_b32 v{Z+i}, 0")
    e(f"v_lshlrev_b32 v{vT[0]}, 4, v{vtid}")
    for i in range(4):
        e(f"ds_write_b128 v{vT[0]}, {vr(Z,4)} offset:{i*16384}")
    e(f"v_add_u32 v{vT[1]}, {65536}, v{vT[0]}")
    e(f"v_add_u32 v{vT[2]}, {CTR - 256*16}, v{vT[0]}")
    e(f"v_cmp_gt_u32 vcc, 256, v{vtid}")
    e(f"v_cndmask_b32 v{vT[1]}, v{vT[2]}, v{vT[1]}, vcc")
    e(f"v_cmp_gt_u32 vcc, 260, v{vtid}")
    e("s_mov_b64 exec, vcc")
    e(f"ds_write_b128 v{vT[1]}, {vr(Z,4)}")
    e("s_mov_b64 exec, -1")
lab("L_slow_init")
e(f"s_mov_b32 s{sMODE}, 1")
e(f"s_mov_b32 s{sCH}, 0")
e(f"s_mov_b32 s{sRETRY}, 0")
e(f"s_and_b32 s{sT3}, s{sT3}, 2")
e(f"s_cmp_eq_u32 s{sT3}, 0")
e("s_cbranch_scc1 L_slow_pass")
c("fallback: the hand-off timed out -> this workgroup computes all of Q and the WH2 fragments itself")
c("(waves 0..7 keep FACC (64..79) / FB (120..123); waves 8..15 run the GEMM blocks)")
e(f"s_mov_b32 s{sU}, 0")
lab("L_fb_loop")
e("s_waitcnt vmcnt(0) lgkmcnt(0)")
e("s_barrier")
e(f"s_cmp_lt_u32 s{sW}, 8")
e("s_cbranch_scc1 L_fb_idle")
gemm_role("fb", sU, True)
e("s_branch L_fb_next")
lab("L_fb_idle")
e("s_barrier")
lab("L_fb_next")
e(f"s_add_u32 s{sU}, s{sU}, 1")
e(f"s_cmp_lt_u32 s{sU}, {NG}")
e("s_cbranch_scc1 L_fb_loop")
e("s_waitcnt vmcnt(0) lgkmcnt(0)")
e("s_barrier")
e(f"s_cmp_ge_u32 s{sW}, 4")
e("s_cbranch_scc1 L_slow_pass")
wprep_role("fb", True)
e("s_branch L_slow_pass")
lab("L_slow_next")
e(f"v_mov_b32 v{vT[0]}, {PEND}")
e(f"ds_read_b32 v{vT[1]}, v{vT[0]}")
e("s_waitcnt lgkmcnt(0)")
e(f"v_readfirstlane_b32 s{sRETRY}, v{vT[1]}")
e("s_nop 3")
e(f"s_cmp_lg_u32 s{sRETRY}, 0")
e("s_cbranch_scc1 L_slow_pass")
lab("L_slow_adv")
e(f"s_add_u32 s{sCH}, s{sCH}, 1")
e(f"s_cmp_ge_u32 s{sCH}, 250")
e("s_cbranch_scc1 L_slow_fin")
lab("L_slow_pass")
e("s_waitcnt vmcnt(0) lgkmcnt(0)")
e("s_barrier")
e(f"s_lshl_b32 s{sT0}, s{sW}, 6")
e(f"v_add_u32 v{tid}, s{sT0}, v{vL}")
zero_lds(116, tid)
c("raw edge e = 640*ch + t (t<640)")
qD, qS, qB, qK, qR, qA = 104, 105, 106, 107, 108, 109
RC = RA; vEA = RA + 2; vI0 = VI[0]; PS0 = PS[0]
e(f"s_mul_i32 s{sT0}, s{sCH}, 2560")
e(f"s_mul_i32 s{sT1}, s{sCH}, 1280")
e(f"v_lshlrev_b32 v{vT[0]}, 2, v{tid}")
e(f"v_lshlrev_b32 v{vT[1]}, 1, v{tid}")
e(f"v_mov_b32 v{qD}, -1")
e(f"v_mov_b32 v{qS}, 0")
e(f"v_mov_b32 v{qP}, 0")
e(f"v_mov_b32 v{vEA}, 0")
e(f"v_mov_b32 v{qA}, 640")
e(f"v_cmp_gt_u32 {sp(sM0)}, v{qA}, v{tid}")
e(f"s_cmp_eq_u64 {sp(sM0)}, 0")
e("s_cbranch_scc1 L_slow_nold")
e(f"s_mov_b64 exec, {sp(sM0)}")
e(f"buffer_load_dword v{qD}, v{vT[0]}, {srd(S_DST)}, s{sT0} offen")
e(f"buffer_load_dword v{qS}, v{vT[0]}, {srd(S_SRC)}, s{sT0} offen")
e(f"buffer_load_ushort v{vEA}, v{vT[1]}, {srd(S_EA)}, s{sT1} offen")
e(f"v_add_u32 v{qA}, {PENDB}, v{tid}")
e(f"ds_read_u8 v{qP}, v{qA}")
e("s_mov_b64 exec, -1")
lab("L_slow_nold")
e("s_waitcnt vmcnt(0) lgkmcnt(0)")
e("s_barrier")
e(f"v_mul_u32_u24 v{qB}, 52429, v{qD}")
e(f"v_lshrrev_b32 v{qB}, 21, v{qB}")
e(f"v_mul_u32_u24 v{qK}, 40, v{qB}")
e(f"v_sub_u32 v{qK}, v{qD}, v{qK}")
e(f"v_cmp_eq_u32 vcc, s2, v{qB}")
e(f"s_and_b64 {sp(sM0)}, {sp(sM0)}, vcc          ; match")
e(f"s_cmp_eq_u32 s{sRETRY}, 0")
e("s_cbranch_scc1 L_slow_fresh")
e(f"v_cmp_ne_u32 vcc, 0, v{qP}")
e(f"s_and_b64 {sp(sM0)}, {sp(sM0)}, vcc")
lab("L_slow_fresh")
e(f"v_and_b32 v{qK}, 63, v{qK}")
e(f"v_min_u32 v{qK}, 39, v{qK}")
e(f"v_mul_u32_u24 v{vI0}, 52, v{qK}")
e(f"v_lshrrev_b32 v{vI0}, 8, v{vI0}           ; g")
e(f"v_mul_u32_u24 v{qA}, 5, v{vI0}")
e(f"v_sub_u32 v{qA}, v{qK}, v{qA}             ; j")
e(f"v_and_b32 v{qS}, 0x3fff, v{qS}")
e(f"v_lshl_or_b32 v{RC}, v{vI0}, 14, v{qS}")
e(f"v_lshl_or_b32 v{RC}, v{qA}, 17, v{RC}")
e(f"s_mov_b32 s{sT0}, {ALLOC}")
e(f"v_lshl_add_u32 v{qA}, v{vI0}, 2, s{sT0}")
e(f"v_mov_b32 v{vOne}, 1")
e(f"v_mov_b32 v{qP}, 0")
e(f"v_mul_u32_u24 v{qB}, 6, v{qS}")
e(f"v_and_b32 v{qB}, -4, v{qB}")
for m in MK[1:]: e(f"s_mov_b64 {sp(m)}, 0")
e(f"s_cmp_eq_u64 {sp(sM0)}, 0")
e("s_cbranch_scc1 L_slow_nom")
e(f"s_mov_b64 exec, {sp(sM0)}")
e(f"buffer_load_dwordx2 {vr(PS0,2)}, v{qB}, {srd(S_POS)}, 0 offen")
e(f"ds_add_rtn_u32 v{qR}, v{qA}, v{vOne}")
e("s_mov_b64 exec, -1")
e(f"v_mul_u32_u24 v{vI0}, {GSTR}, v{vI0}")
e("s_waitcnt lgkmcnt(0)")
s1_place(qR, vI0, qS, sM0, "s", slow=True)
lab("L_slow_nom")
e(f"v_mov_b32 v{qA}, 640")
e(f"v_cmp_gt_u32 vcc, v{qA}, v{tid}")
e("s_mov_b64 exec, vcc")
e("s_cbranch_execz L_slow_nopb")
e(f"v_add_u32 v{qA}, {PENDB}, v{tid}")
e(f"ds_write_b8 v{qA}, v{qP}")
lab("L_slow_nopb")
e("s_mov_b64 exec, -1")
e("s_branch L_st2")
lab("L_slow_fin")
c("SEG must be zero-initialised if no pass ever ran")
e(f"s_cmp_eq_u32 s{sNODE}, 0")
e("s_cbranch_scc1 L_final_bar")
for r in range(32):
    e(f"v_mov_b32 v{SEG+r}, 0")
lab("L_final_bar")
e("s_barrier")
e("s_branch L_final")

desc = f""".amdhsa_kernel {KNAME}
  .amdhsa_next_free_vgpr 128
  .amdhsa_next_free_sgpr 102
  .amdhsa_accum_offset 128
  .amdhsa_group_segment_fixed_size 0
  .amdhsa_kernarg_size 88
  .amdhsa_user_sgpr_count 2
  .amdhsa_user_sgpr_kernarg_segment_ptr 1
  .amdhsa_system_sgpr_workgroup_id_x 1
.end_amdhsa_kernel"""
body = "\n".join(x for x in out if x is not None)
final = "\n".join(header) + "\n" + body + "\n" + '.section .rodata,"a"\n.p2align 6\n' + desc + "\n"
dest = sys.argv[1] if len(sys.argv) > 1 else "standalone__cheap_equivariant_egnn__graph.s"
open(dest, "w").write(final)
print("wrote", dest, len(out), "lines")
```

```python
import sys, os
sys.path.insert(0, os.path.dirname(os.path.abspath(__file__)))
from g3common import *

KNAME = "standalone__cheap_equivariant_egnn__graph_kernel"
TIMING = os.environ.get("TIMING", "")
NOPRIO = os.environ.get("NOPRIO", "")
QSC = os.environ.get("QSC", " sc1")
FORCE = os.environ.get("FORCE", "")
NPOLL = int(os.environ.get("NPOLL", "3000"))
RSL = int(os.environ.get("RSL", "8"))
QSL = int(os.environ.get("QSL", "4"))
NSL = int(os.environ.get("NSL", "8"))
QST = int(os.environ.get("QST", "8"))
PK = int(os.environ.get("PK", "0"))
XM = int(os.environ.get("XM", "0"))
LATE = int(os.environ.get("LATE", "1"))
BSPEC = int(os.environ.get("BSPEC", "1"))
PPF = int(os.environ.get("PPF", "1"))
WSOFF = int(os.environ.get("WSOFF", "0")) << 20
TLBW = int(os.environ.get("TLBW", "0"))
EARLY = int(os.environ.get("EARLY", "0"))
KO = os.environ.get("KO", "")
OSC = os.environ.get("OSC", "")
if OSC: OSC = " " + OSC.replace("_", " ")
PSL = int(os.environ.get("PSL", "0"))
QGATE = int(os.environ.get("QGATE", "8"))
H1W = int(os.environ.get("H1W", "2"))
FPRIO = int(os.environ.get("FPRIO", "2"))
DELTA = 600
WIN = 8192
GUARD = 800
TAGC = 0x1a5
FLC = 0x5A5AA5A5

CELLA = 0
CHB = 32000
CELLB = 4 << 20
WH2F = 12 << 20
NG = 157; NCH = 63
BIN0 = NG; WPR = NG + NCH
CAP = 136
GSTR = CAP * 64
REC = 0
QT = 8 * GSTR
BXP = QT + 65536
OWN = BXP + 16384
PTF = OWN + 10240
CTR = PTF + 640
ALLOC = CTR; OVF = CTR + 32; PEND = CTR + 36; GCNT = CTR + 40; NONCE = CTR + 44; ZERO16 = CTR + 48
SYN = CTR + 64
RISS = SYN; RCNT = SYN + 4; RCNT2 = SYN + 8; FCNT = SYN + 12; FCNT2 = SYN + 16; RCA = SYN + 20; RLAND = SYN + 24
RCB = SYN + 28; FCB = SYN + 32; FCC = SYN + 36
PENDB = CTR + 128
LDS_TOTAL = PENDB + 640
FLG = 13 << 20
assert LDS_TOTAL <= 163840
NWG = 250

S_H, S_POS, S_EA, S_SRC, S_DST, S_WX, S_O0, S_O1, S_WS, S_Q, S_WE, S_WH = [8 + 4 * i for i in range(12)]
sRW, sRQ, sRL = 56, 57, 58
sC4, sC5 = 4, 5
sW, sQ, sCT, sMODE, sT0, sT1, sT2, sT3 = range(60, 68)
sEX, sM0, sM1, sM2 = 68, 70, 72, 74
sG, sCH2, sCO, sNT, sU, sREM, sK2, sK3, sNODE, sCH, sRETRY, sB0, sB1, sGB, sRT, sROLE = range(76, 92)
sTW, sLOW, sCNT, sC = 92, 93, 94, 95
sPA, sPB = 96, 98
sX0, sX1, sX2 = 96, 97, 98
KS = 76

vL = 0
vLK, vQD, vTRQ0, vTRQ1, vTRS, vOD, vODM = 1, 2, 3, 4, 5, 6, 7
vT = list(range(8, 16))
SEG = 16; ACC = 48; FACC = 64; QF = 80; SF = 88; OHD = 96; BXF = 100; ID = 104; MP = 112; FB = 120
TE = QF
VST = 127

_st = [0]
STAMPS = os.environ.get("STAMPS", "")
STAMPS = set(int(x) for x in STAMPS.split(",")) if STAMPS else None
def stamp(name, idx=None):
    if not TIMING: return
    i = _st[0] if idx is None else idx
    if idx is None: _st[0] += 1
    if STAMPS is not None and i not in STAMPS: return
    c(f"STAMP {i} {name}")
    e(f"s_memtime s[{sC4}:{sC5}]")
    e("s_waitcnt lgkmcnt(0)")
    e(f"v_writelane_b32 v{VST}, s{sC4}, {i}")
    print("stamp", i, name)
def stamp_dyn(base, scnt, mx=11):
    if not TIMING or os.environ.get("STAMPS", ""): return
    e(f"s_memtime s[{sC4}:{sC5}]")
    e(f"s_min_u32 s3, s{scnt}, {mx}")
    e(f"s_add_u32 m0, s3, {base}")
    e("s_waitcnt lgkmcnt(0)")
    e(f"v_writelane_b32 v{VST}, s{sC4}, m0")
def stamp_flush():
    if not TIMING: return
    e(f"s_memrealtime s[{sC4}:{sC5}]")
    e("s_waitcnt lgkmcnt(0)")
    e("s_mov_b64 exec, -1")
    e(f"v_writelane_b32 v{VST}, s100, 62")
    e(f"v_writelane_b32 v{VST}, s{sC4}, 63")
    e(f"s_lshl_b32 s{sT0}, s2, 4")
    e(f"s_add_u32 s{sT0}, s{sT0}, s{sW}")
    e(f"s_lshl_b32 s{sT0}, s{sT0}, 8")
    e(f"s_add_u32 s{sT0}, s{sT0}, {32<<20}")
    e(f"v_lshlrev_b32 v{vT[1]}, 2, v{vL}")
    e(f"buffer_store_dword v{VST}, v{vT[1]}, {srd(S_WS)}, s{sT0} offen")

header = []
header.append(f"; @launch grid=({NWG},1,1) block=(1024,1,1) lds={LDS_TOTAL}")
header.append('.amdgcn_target "amdgcn-amd-amdhsa--gfx950"')
header.append(".text")
header.append(f".globl {KNAME}")
header.append(".p2align 8")
header.append(f".type {KNAME},@function")

lab(KNAME)
e(f"s_cmp_ge_u32 s2, {NWG}")
e("s_cbranch_scc1 L_end2")
e("s_memrealtime s[6:7]")
if TIMING:
    e("s_memrealtime s[100:101]")
if TIMING:
    e(f"v_mov_b32 v{VST}, 0")
stamp("entry")
e(f"s_load_dwordx16 s[{KS}:{KS+15}], s[0:1], 0")
e(f"s_load_dwordx2 s[{S_WS}:{S_WS+1}], s[0:1], 80")
e(f"s_load_dwordx2 s[{S_O0}:{S_O0+1}], s[0:1], 64")
tid = vT[7]
e(f"v_mov_b32 v{tid}, v0")
e(f"v_lshrrev_b32 v{vT[0]}, 6, v0")
e(f"v_and_b32 v{vL}, 63, v0")
e(f"v_readfirstlane_b32 s{sW}, v{vT[0]}")
for (x, sz) in [(S_H,2560000),(S_POS,60000),(S_EA,320000),(S_SRC,640000),(S_DST,640000),(S_WX,256),(S_O0,2560000),(S_O1,60000),
                (S_WS,256*1048576-WSOFF),(S_Q,2560000),(S_WE,66048),(S_WH,65536)]:
    e(f"s_mov_b32 s{x+2}, {sz}")
    e(f"s_mov_b32 s{x+3}, 0x20000")
e(f"s_lshr_b32 s{sQ}, s{sW}, 2")
e(f"s_and_b32 s{sCT}, s{sW}, 3")
e(f"s_and_b32 s{sRW}, s{sW}, 7")
e(f"s_and_b32 s{sRQ}, s{sQ}, 1")
e(f"s_mov_b32 s{sMODE}, 0")
e(f"s_mov_b32 s{sRL}, 0")
def kernarg_copy():
    for (x, k) in [(S_H,0),(S_POS,2),(S_EA,4),(S_SRC,6),(S_DST,8),(S_WE,10),(S_WX,12),(S_WH,14)]:
        e(f"s_mov_b64 s[{x}:{x+1}], s[{KS+k}:{KS+k+1}]")
    if WSOFF:
        e(f"s_add_u32 s{S_WS}, s{S_WS}, {WSOFF}")
        e(f"s_addc_u32 s{S_WS+1}, s{S_WS+1}, 0")
    e(f"s_add_u32 s{S_O1}, s{S_O0}, 2560000")
    e(f"s_addc_u32 s{S_O1+1}, s{S_O0+1}, 0")
    e(f"s_add_u32 s{S_Q}, s{S_WS}, {QOFF}")
    e(f"s_addc_u32 s{S_Q+1}, s{S_WS+1}, 0")
    e(f"s_mov_b32 s{sTW}, s6")

vSL = 16; vTRP = 17; vRA = 18; vRD = 19; vST = 20; vU0 = 21; vU1 = 22
def slice_lane(dst, sct):
    e(f"v_lshrrev_b32 v{dst}, 2, v{vL}")
    e(f"v_lshlrev_b32 v{dst}, 8, v{dst}")
    e(f"v_and_b32 v{vU0}, 3, v{vL}")
    e(f"v_lshl_add_u32 v{dst}, v{vU0}, 4, v{dst}")
    e(f"s_lshl_b32 s{sT0}, s{sct}, 6")
    e(f"v_add_u32 v{dst}, s{sT0}, v{dst}")
def trpat(dst, t0, t1):
    e(f"v_lshrrev_b32 v{t0}, 5, v{vL}")
    e(f"v_bfe_u32 v{t1}, v{vL}, 2, 2")
    e(f"v_lshl_add_u32 v{dst}, v{t0}, 3, v{t1}")
    e(f"v_lshlrev_b32 v{dst}, 6, v{dst}")
    e(f"v_bfe_u32 v{t0}, v{vL}, 4, 1")
    e(f"v_lshl_add_u32 v{dst}, v{t0}, 5, v{dst}")
    e(f"v_and_b32 v{t0}, 3, v{vL}")
    e(f"v_lshl_add_u32 v{dst}, v{t0}, 3, v{dst}")
def row_addr(dst, vrow, vhi, tmp, base=OWN):
    e(f"v_and_b32 v{tmp}, 15, v{vrow}")
    e(f"v_xor_b32 v{tmp}, v{tmp}, v{vhi}")
    e(f"v_lshlrev_b32 v{tmp}, 4, v{tmp}")
    e(f"v_lshl_add_u32 v{dst}, v{vrow}, 8, v{tmp}")
    e(f"v_add_u32 v{dst}, {base}, v{dst}")

Z = 24
for i in range(4): e(f"v_mov_b32 v{Z+i}, 0")
c("wave 0: zero the counters (128 B), then B0")
e(f"s_cmp_eq_u32 s{sW}, 0")
e("s_cbranch_scc0 L_b0")
e(f"v_lshlrev_b32 v{vT[0]}, 4, v{vL}")
e(f"v_add_u32 v{vT[0]}, {CTR}, v{vT[0]}")
e("s_mov_b64 exec, 0xff")
e(f"ds_write_b128 v{vT[0]}, {vr(Z,4)}")
e("s_mov_b64 exec, -1")
e("s_waitcnt lgkmcnt(0)")
lab("L_b0")
e("s_barrier")
vA_ = 23
_sy = [0]
def arrive(addr):
    e(f"v_mov_b32 v{vA_}, {addr}")
    e(f"v_mov_b32 v{vU1}, 1")
    e("s_mov_b64 exec, 1")
    e(f"ds_add_u32 v{vA_}, v{vU1}")
    e("s_mov_b64 exec, -1")
def wait_cnt(addr, n, nz=False, dst=None):
    i = _sy[0]; _sy[0] += 1
    d = dst if dst is not None else sT0
    e(f"v_mov_b32 v{vA_}, {addr}")
    lab(f"L_sy{i}")
    e(f"ds_read_b32 v{vU1}, v{vA_}")
    e("s_waitcnt lgkmcnt(0)")
    e(f"v_readfirstlane_b32 s{d}, v{vU1}")
    if nz: e(f"s_cmp_lg_u32 s{d}, 0")
    else:  e(f"s_cmp_ge_u32 s{d}, {n}")
    e(f"s_cbranch_scc1 L_syd{i}")
    e("s_sleep 1")
    e(f"s_branch L_sy{i}")
    lab(f"L_syd{i}")
e(f"s_cmp_ge_u32 s{sW}, 8")
e("s_cbranch_scc1 L_front")
def lane_consts():
    e(f"s_lshr_b32 s{sG}, s{sW}, 1")
    e(f"s_and_b32 s{sCH2}, s{sW}, 1")
    e(f"s_mul_i32 s{sGB}, s{sG}, {GSTR}")
    e(f"s_lshl_b32 s{sB0}, s{sW}, 12")
    e(f"s_add_u32 s{sB0}, s{sB0}, {QT}")
    e(f"s_add_u32 s{sB1}, s{sB0}, 2048")
    c("lane constants (REC rows swizzled: 16-B chunk c of row with rank p at position c ^ ((p>>2)&3))")
    e(f"v_lshrrev_b32 v{vT[3]}, 5, v{vL}           ; hi")
    e(f"v_lshrrev_b32 v{vT[4]}, 3, v{vL}")
    e(f"v_lshlrev_b32 v{vLK}, 6, v{vT[4]}")
    e(f"v_xor_b32 v{vT[4]}, 1, v{vT[3]}")
    e(f"v_lshl_add_u32 v{vLK}, v{vT[4]}, 4, v{vLK}")
    e(f"s_add_u32 s{sT0}, s{sGB}, {REC}")
    e(f"v_add_u32 v{vLK}, s{sT0}, v{vLK}")
    e(f"v_and_b32 v{vT[5]}, 7, v{vL}")
    e(f"v_bfe_u32 v{vT[6]}, v{vL}, 4, 1")
    e(f"v_lshlrev_b32 v{vT[4]}, 2, v{vT[6]}")
    e(f"v_xor_b32 v{vT[5]}, v{vT[5]}, v{vT[4]}")
    e(f"v_lshlrev_b32 v{vQD}, 4, v{vT[5]}")
    e(f"s_lshl_b32 s{sT1}, s{sCH2}, 7")
    e(f"v_add_u32 v{vQD}, s{sT1}, v{vQD}            ; ch*128 + (((l&7) ^ 4*((l>>4)&1))<<4)")
    c("vT6 = colhalf ; r = (l>>2)&3 ; c4 = l&3")
    e(f"v_bfe_u32 v{vT[4]}, v{vL}, 2, 2            ; r")
    e(f"v_and_b32 v{vT[5]}, 3, v{vL}")
    e(f"v_lshlrev_b32 v{vT[2]}, 5, v{vT[6]}")
    e(f"v_lshl_add_u32 v{vT[2]}, v{vT[5]}, 3, v{vT[2]}   ; colhalf*32 + c4*8")
    e(f"v_lshl_add_u32 v{vTRQ0}, v{vT[3]}, 3, v{vT[4]}   ; 8hi + r")
    e(f"v_lshl_add_u32 v{vTRQ0}, v{vTRQ0}, 7, v{vT[2]}")
    e(f"v_bfe_u32 v{vT[5]}, v{vL}, 3, 1            ; (r>>1)&1")
    e(f"v_lshl_add_u32 v{vTRQ0}, v{vT[5]}, 6, v{vTRQ0}")
    e(f"v_add_u32 v{vTRQ0}, s{sB0}, v{vTRQ0}")
    e(f"v_xor_b32 v{vTRQ1}, 64, v{vTRQ0}")
    c("vTRS = REC + g*GSTR + (4hi + r)*64 + ((colhalf*32 + c4*8) ^ (hi<<4))")
    e(f"v_lshlrev_b32 v{vT[5]}, 4, v{vT[3]}")
    e(f"v_xor_b32 v{vT[2]}, v{vT[2]}, v{vT[5]}")
    e(f"v_lshl_add_u32 v{vTRS}, v{vT[3]}, 2, v{vT[4]}    ; 4hi + r")
    e(f"v_lshl_add_u32 v{vTRS}, v{vTRS}, 6, v{vT[2]}")
    e(f"v_add_u32 v{vTRS}, s{sT0}, v{vTRS}")
    c("OHD: lanes 0..15 and 48..63 read chunk 0 of row (l&15) at position (row>>2)&3; others read ZERO16")
    e(f"v_and_b32 v{vT[4]}, 15, v{vL}")
    e(f"v_bfe_u32 v{vT[5]}, v{vL}, 2, 2")
    e(f"v_lshlrev_b32 v{vT[4]}, 6, v{vT[4]}")
    e(f"v_lshl_add_u32 v{vT[4]}, v{vT[5]}, 4, v{vT[4]}")
    e(f"v_add_u32 v{vT[4]}, s{sT0}, v{vT[4]}")
    e(f"v_cmp_eq_u32 vcc, v{vT[3]}, v{vT[6]}")
    e(f"v_mov_b32 v{vT[5]}, {ZERO16}")
    e(f"v_cndmask_b32 v{vOD}, v{vT[5]}, v{vT[4]}, vcc")
    e(f"v_mov_b32 v{vT[4]}, 1024")
    e(f"v_cndmask_b32 v{vODM}, 0, v{vT[4]}, vcc")
    e(f"s_mov_b32 s{sNODE}, 1")
RA = 48; RB = 52; vGA = 88
PS = [56, 58, 60, 62]
VI = [80, 81, 82, 83]
VR = [84, 85, 86, 87]
vOne = 89
qP = 90
MK = [sM0, sM1, sPA, sPB]
if not NOPRIO: e("s_setprio 2")
c("zero REC tail (4096 B, threads 256..511)")
e(f"v_lshlrev_b32 v{vT[0]}, 4, v{tid}")
e(f"v_add_u32 v{vT[1]}, {65536 - 4096}, v{vT[0]}")
e(f"v_cmp_lt_u32 vcc, 255, v{tid}")
e("s_mov_b64 exec, vcc")
e(f"s_cbranch_execz L_notail")
e(f"ds_write_b128 v{vT[1]}, {vr(Z,4)}")
lab("L_notail")
e("s_mov_b64 exec, -1")
e(f"s_cmp_ge_u32 s2, {BIN0}")
e("s_cbranch_scc1 L_notgemm")

AF = 24; BF = 56; D0 = 88
def gemm_role(tag, blk, fb):
    slice_lane(vSL, sCT)
    c("rows DMA lane offset: row = 8w + 4i + (l>>4); chunk = (l&15) ^ (row&15)")
    e(f"v_lshrrev_b32 v{vU0}, 4, v{vL}")
    e(f"v_and_b32 v{vU1}, 15, v{vL}")
    e(f"v_xor_b32 v{vU1}, v{vU1}, v{vU0}")
    e(f"s_and_b32 s{sT0}, s{sRW}, 1")
    e(f"s_lshl_b32 s{sT0}, s{sT0}, 3")
    e(f"v_xor_b32 v{vU1}, s{sT0}, v{vU1}")
    e(f"v_lshlrev_b32 v{vU1}, 4, v{vU1}")
    e(f"v_lshl_add_u32 v{vRA}, v{vU0}, 8, v{vU1}")
    e(f"v_xor_b32 v{vRD}, 64, v{vRA}")
    e(f"s_lshl_b32 s{sT0}, s{sCT}, 13")
    e(f"s_lshl_b32 s{sT1}, s{sRQ}, 12")
    e(f"s_add_u32 s{sT0}, s{sT0}, s{sT1}")
    e(f"s_add_u32 s{sT0}, s{sT0}, {QT}")
    e(f"s_lshl_b32 s{sT1}, s{sRQ}, 14")
    e(f"s_add_u32 s{sT1}, s{sT1}, 32768")
    e(f"s_lshl_b32 s{sT3}, s{sRW}, 11")
    e(f"s_lshl_b32 s{sX0}, s{blk}, 14")
    e(f"s_add_u32 s{sX0}, s{sX0}, s{sT3}           ; (64r + 8w)*256")
    if not fb:
        e("s_waitcnt lgkmcnt(0)")
        stamp("kernarg", 1)
        kernarg_copy()
    e(f"s_add_u32 m0, s{sT3}, {QT+32768}")
    e(f"s_add_u32 s{sX1}, s{sX0}, 1024")
    e(f"buffer_load_dwordx4 v{vRA}, {srd(S_H)}, s{sX0} offen lds")
    e(f"s_add_u32 m0, s{sT3}, {QT+32768+1024}")
    e(f"s_nop 0")
    e(f"buffer_load_dwordx4 v{vRD}, {srd(S_H)}, s{sX1} offen lds")
    for i in range(4):
        e(f"s_add_u32 m0, s{sT0}, {i*1024}")
        e(f"s_add_u32 s{sT2}, s{sT1}, {i*4096}")
        e(f"buffer_load_dwordx4 v{vSL}, {srd(S_WE)}, s{sT2} offen lds")
    if not fb:
        if not LATE: arrive(RISS)
        stamp("role loads issued", 2)
    c("compute: all 8 waves, rb = w>>2, ct = w&3 : 32 rows x 32 cols")
    trpat(vTRP, vU0, vU1)
    e(f"s_lshl_b32 s{sT0}, s{sCT}, 13")
    e(f"s_add_u32 s{sT0}, s{sT0}, {QT}")
    e(f"v_add_u32 v{vTRP}, s{sT0}, v{vTRP}")
    c("row read address: QT+32768 + (rb*32+n)*256 + ((hi ^ (n&15))<<4) ^ (s<<5)")
    e(f"v_and_b32 v{vU0}, 31, v{vL}")
    e(f"v_lshrrev_b32 v{vU1}, 5, v{vL}")
    e(f"v_and_b32 v{vRD}, 15, v{vL}")
    e(f"v_xor_b32 v{vRD}, v{vRD}, v{vU1}")
    e(f"v_lshlrev_b32 v{vRD}, 4, v{vRD}")
    e(f"v_lshl_add_u32 v{vRD}, v{vU0}, 8, v{vRD}")
    e(f"s_lshl_b32 s{sT0}, s{sRQ}, 13")
    e(f"s_add_u32 s{sT0}, s{sT0}, {QT+32768}")
    e(f"v_add_u32 v{vRD}, s{sT0}, v{vRD}")
    c("out tile (2 KB per wave) write addr: OB + n*64 + ((bb ^ ((n>>2)&3))<<4) + hi*8")
    e(f"s_lshl_b32 s{sT0}, s{sRW}, 11")
    e(f"s_add_u32 s{sT0}, s{sT0}, {QT+49152}")
    e(f"v_bfe_u32 v{vRA}, v{vL}, 2, 2")
    e(f"v_lshlrev_b32 v{vRA}, 4, v{vRA}")
    e(f"v_lshl_add_u32 v{vRA}, v{vU0}, 6, v{vRA}")
    e(f"v_lshl_add_u32 v{vRA}, v{vU1}, 3, v{vRA}")
    e(f"v_add_u32 v{vRA}, s{sT0}, v{vRA}")
    c("out tile read addr: OB + (r + 16i)*64 + ((q ^ ((r>>2)&3))<<4), r = l>>2, q = l&3 ; store: row*256 + ct*64 + q*16")
    e(f"v_lshrrev_b32 v{vU0}, 2, v{vL}")
    e(f"v_and_b32 v{vU1}, 3, v{vL}")
    e(f"v_bfe_u32 v{vSL}, v{vL}, 4, 2")
    e(f"v_xor_b32 v{vSL}, v{vSL}, v{vU1}")
    e(f"v_lshlrev_b32 v{vSL}, 4, v{vSL}")
    e(f"v_lshl_add_u32 v{vSL}, v{vU0}, 6, v{vSL}")
    e(f"v_add_u32 v{vSL}, s{sT0}, v{vSL}")
    e(f"v_lshlrev_b32 v{vST}, 4, v{vU1}")
    e(f"v_lshl_add_u32 v{vST}, v{vU0}, 8, v{vST}")
    e(f"s_lshl_b32 s{sT0}, s{blk}, 14")
    e(f"s_lshl_b32 s{sT1}, s{sRQ}, 13")
    e(f"s_add_u32 s{sT0}, s{sT0}, s{sT1}")
    e(f"s_lshl_b32 s{sT1}, s{sCT}, 6")
    e(f"s_add_u32 s{sC}, s{sT0}, s{sT1}")
    e("s_waitcnt vmcnt(0) lgkmcnt(0)")
    if not fb: stamp("role loads landed", 3)
    if fb:
        e("s_barrier")
    else:
        arrive(RCNT)
        if LATE: arrive(RISS)
        wait_cnt(RCNT, 8)
        stamp("B1", 4)
    for s_ in range(8):
        e(f"v_xor_b32 v{vU0}, {s_<<5}, v{vRD}")
        e(f"ds_read_b128 {vr(BF+4*s_,4)}, v{vU0}")
        e(f"ds_read_b64_tr_b16 {vr(AF+4*s_,2)}, v{vTRP} offset:{s_*1024}")
        e(f"ds_read_b64_tr_b16 {vr(AF+4*s_+2,2)}, v{vTRP} offset:{s_*1024+256}")
    for s_ in range(8):
        e(f"s_waitcnt lgkmcnt({min(15, 21-3*s_)})")
        mfma(D0, AF+4*s_, BF+4*s_, "0" if s_ == 0 else vr(D0,16))
    if not fb: arrive(RCA)
    e(f"s_mov_b32 s{sT1}, 0x{NLOG2E:08x}")
    e("s_nop 7")
    e("s_nop 3")
    for bb in range(4):
        r0 = D0 + 4*bb
        for i in range(4):
            e(f"v_mul_f32 v{r0+i}, s{sT1}, v{r0+i}")
        e(f"v_cvt_pk_bf16_f32 v{r0}, v{r0}, v{r0+1}")
        e(f"v_cvt_pk_bf16_f32 v{r0+1}, v{r0+2}, v{r0+3}")
        e(f"v_xor_b32 v{vU0}, {bb<<4}, v{vRA}")
        e(f"ds_write_b64 v{vU0}, {vr(r0,2)}")
    e("s_waitcnt lgkmcnt(0)")
    for i in range(2):
        e(f"ds_read_b128 {vr(AF+4*i,4)}, v{vSL} offset:{i*1024}")
    e(f"s_add_u32 s{sT1}, s{sC}, 4096")
    for i in range(2):
        e(f"s_waitcnt lgkmcnt({1-i})")
        e(f"buffer_store_dwordx4 {vr(AF+4*i,4)}, v{vST}, {srd(S_Q)}, s{[sC,sT1][i]} offen sc1")
    if not fb: stamp("role stores issued", 5)

gemm_role("", 2, False)
e(f"s_mov_b32 s{sRL}, 8")
e(f"s_lshl_b32 s{sX1}, s2, 2")
e(f"s_add_u32 s{sX1}, s{sX1}, {FLG}")
e(f"s_mov_b64 {sp(sM0)}, 1")
e("s_branch L_rfront")

lab("L_notgemm")
e(f"s_cmp_ge_u32 s2, {WPR}")
e("s_cbranch_scc1 L_notbin")
c("binning chunk c = wg - 157: edges e = 2560c + 512i + t ; LDS image: cell b at QT + b*128 (+32000 for ranks 16..31), 8-B records")
NE = 5
CNT = QT + 64000
vD = 24; vS = 29; vB = 34; vR = 39; vP = 44; vE = 54; vE2 = 55; vOne_ = 56; vK = 57; vG_ = 58
e(f"s_sub_u32 s{sC}, s2, {BIN0}")
e(f"s_mul_i32 s{sT0}, s{sC}, {2560*4}")
e(f"v_lshlrev_b32 v{vE}, 2, v{tid}")
e(f"v_lshlrev_b32 v{vE2}, 1, v{tid}")
c("zero counters")
e(f"v_mov_b32 v{vU1}, 0")
e(f"v_mov_b32 v{vOne_}, 1")
e(f"v_cmp_gt_u32 vcc, 250, v{tid}")
e(f"s_mov_b64 exec, vcc")
e(f"v_add_u32 v{vU0}, {CNT}, v{vE}")
e(f"ds_write_b32 v{vU0}, v{vU1}")
e(f"s_mov_b64 exec, -1")
e(f"s_add_u32 s{sT2}, s{sT0}, 4096")
e(f"s_add_u32 s{sT1}, s{sT0}, 8192")
e(f"s_lshr_b32 s{sX0}, s{sT0}, 1")
e(f"s_add_u32 s{sX1}, s{sX0}, 4096")
e("s_waitcnt lgkmcnt(0)")
stamp("kernarg", 1)
kernarg_copy()
def soff(i): return [sT0, sT0, sT2, sT2, sT1][i], (i & 1) * 2048 if i < 4 else 0
for i in range(NE):
    so, of = soff(i)
    e(f"buffer_load_dword v{vD+i}, v{vE}, {srd(S_DST)}, s{so} offen offset:{of}")
for i in range(NE):
    so, of = soff(i)
    e(f"buffer_load_dword v{vS+i}, v{vE}, {srd(S_SRC)}, s{so} offen offset:{of}")
for i in range(NE):
    so = sX0 if i < 4 else sX1
    e(f"buffer_load_ushort v{vP+2*i+1}, v{vE2}, {srd(S_EA)}, s{so} offen offset:{(i & 3) * 1024 if i < 4 else 0}")
if not LATE: arrive(RISS)
arrive(RCNT)
stamp("role loads issued", 2)
c("validity: e < 160000  <=> byte offset < 640000")
e(f"v_add_u32 v{vE}, s{sT0}, v{vE}")
e(f"s_mov_b32 s{sX0}, {CNT}")
e(f"s_mov_b32 s{sX1}, {QT}")
wait_cnt(RCNT, 8, dst=sX2)
stamp("B1", 4)
for i in range(NE):
    e(f"s_waitcnt vmcnt({3*NE-1-i})")
    e(f"v_mul_u32_u24 v{vB+i}, 52429, v{vD+i}")
    e(f"v_lshrrev_b32 v{vB+i}, 21, v{vB+i}")
    e(f"v_lshl_add_u32 v{vU0}, v{vB+i}, 2, s{sX0}")
    e(f"v_mov_b32 v{vK}, {640000 - i*2048}")
    e(f"v_cmp_gt_u32 vcc, v{vK}, v{vE}")
    e(f"s_mov_b64 exec, vcc")
    e(f"ds_add_rtn_u32 v{vR+i}, v{vU0}, v{vOne_}")
    e(f"s_mov_b64 exec, -1")
    e(f"v_mul_u32_u24 v{vK}, 40, v{vB+i}")
    e(f"v_sub_u32 v{vD+i}, v{vD+i}, v{vK}       ; k")
    e(f"v_lshl_add_u32 v{vB+i}, v{vB+i}, 7, s{sX1}")
    e(f"v_mul_u32_u24 v{vG_}, 52, v{vD+i}")
    e(f"v_lshrrev_b32 v{vG_}, 8, v{vG_}           ; g = k/5")
    e(f"v_mul_u32_u24 v{vK}, 5, v{vG_}")
    e(f"v_sub_u32 v{vK}, v{vD+i}, v{vK}        ; j")
    e(f"v_lshl_or_b32 v{vD+i}, v{vK}, 3, v{vG_}       ; g | j<<3")
    e(f"v_or_b32 v{vD+i}, 64, v{vD+i}                ; valid")
for i in range(NE):
    e(f"s_waitcnt vmcnt({2*NE-1-i})")
    e(f"v_lshl_or_b32 v{vP+2*i}, v{vD+i}, 14, v{vS+i}    ; rec")
e("s_waitcnt vmcnt(0) lgkmcnt(0)")
if LATE: arrive(RISS)
stamp("role loads landed", 3)
for i in range(NE):
    e(f"v_and_b32 v{vU0}, 15, v{vR+i}")
    e(f"v_lshrrev_b32 v{vU1}, 4, v{vR+i}")
    e(f"v_lshl_add_u32 v{vU0}, v{vU0}, 3, v{vB+i}")
    e(f"v_mul_u32_u24 v{vU1}, {CHB}, v{vU1}")
    e(f"v_add_u32 v{vU0}, v{vU0}, v{vU1}")
    e(f"v_cmp_gt_u32 vcc, 32, v{vR+i}")
    e(f"v_mov_b32 v{vK}, {640000 - i*2048}")
    e(f"v_cmp_gt_u32 {sp(sM0)}, v{vK}, v{vE}")
    e(f"s_and_b64 exec, vcc, {sp(sM0)}")
    e(f"ds_write_b64 v{vU0}, {vr(vP+2*i,2)}")
    e(f"s_mov_b64 exec, -1")
e("s_waitcnt lgkmcnt(0)")
arrive(RCNT2)
wait_cnt(RCNT2, 8, dst=sX2)
stamp("B2", 6)
c("copy-out: granule x = t + 512i (<2000): cell b = x>>3, q = x&7")
GA = 24; vCn = 40; vR0 = 44; vX = 45; vF = 46; vY = 47; vXL = 52
e(f"v_lshlrev_b32 v{vX}, 4, v{tid}               ; x*16 (i=0)")
e(f"v_lshrrev_b32 v{vY}, 3, v{tid}")
e(f"v_lshl_add_u32 v{vY}, v{vY}, 2, s{sX0}")
e(f"v_add_u32 v{vXL}, {QT}, v{vX}")
for i in range(4):
    if i == 3:
        e(f"v_cmp_gt_u32 vcc, {2000-1536}, v{tid}")
        e("s_mov_b64 exec, vcc")
    e(f"ds_read_b128 {vr(GA+4*i,4)}, v{vXL} offset:{i*8192}")
    e(f"ds_read_b32 v{vCn+i}, v{vY} offset:{i*256}")
e("s_mov_b64 exec, -1")
e(f"v_and_b32 v{vR0}, 7, v{tid}")
e(f"v_lshlrev_b32 v{vR0}, 1, v{vR0}              ; r0 = 2q")
e(f"s_mul_i32 s{sT0}, s{sC}, {CHB}")
e(f"s_bfe_u32 s{sT1}, s{sTW}, {3 | (9<<16)}")
e(f"s_xor_b32 s{sT1}, s{sT1}, {TAGC}")
e(f"s_lshl_b32 s{sT1}, s{sT1}, 23")
def granule(G, cn, r0off, so, ioff):
    e(f"v_mov_b32 v{vF}, s{sT1}")
    e(f"v_cmp_lt_u32 vcc, 16, v{cn}")
    e(f"v_cndmask_b32 v{vU0}, 0, 1, vcc")
    e(f"v_lshl_or_b32 v{vF}, v{vU0}, 21, v{vF}")
    e(f"v_cmp_lt_u32 vcc, 32, v{cn}")
    e(f"v_cndmask_b32 v{vU0}, 0, 1, vcc")
    e(f"v_lshl_or_b32 v{vF}, v{vU0}, 22, v{vF}")
    e(f"v_add_u32 v{vU0}, {r0off}, v{vR0}")
    e(f"v_cmp_lt_u32 vcc, v{vU0}, v{cn}")
    e(f"v_cndmask_b32 v{G}, 0, v{G}, vcc")
    e(f"v_add_u32 v{vU0}, 1, v{vU0}")
    e(f"v_cmp_lt_u32 vcc, v{vU0}, v{cn}")
    e(f"v_cndmask_b32 v{G+2}, 0, v{G+2}, vcc")
    e(f"v_and_b32 v{G+1}, 0xffff, v{G+1}")
    e(f"v_lshl_or_b32 v{vU0}, v{G+3}, 16, v{G+1}      ; d2")
    e(f"v_or_b32 v{G+1}, v{G+2}, v{vF}                ; d1")
    e(f"v_or_b32 v{G}, v{G}, v{vF}                    ; d0")
    e(f"v_mov_b32 v{G+2}, v{vU0}")
    e(f"v_mov_b32 v{G+3}, s{sTW}")
    e(f"buffer_store_dwordx4 {vr(G,4)}, v{vX}, {srd(S_WS)}, s{so} offen sc1")
for i in range(4):
    if i == 3:
        e(f"v_cmp_gt_u32 vcc, {2000-1536}, v{tid}")
        e(f"s_mov_b64 {sp(sM1)}, vcc")
        e(f"s_mov_b64 exec, vcc")
    e(f"s_waitcnt lgkmcnt({2*(3-i)})")
    granule(GA+4*i, vCn+i, 0, sT0, i)
    e(f"s_add_u32 s{sT0}, s{sT0}, 8192")
e("s_mov_b64 exec, -1")
stamp("role stores issued", 5)
c("B lines (ranks 16..31) for cells with count > 16")
e(f"s_mul_i32 s{sT0}, s{sC}, {CHB}")
e(f"s_add_u32 s{sT0}, s{sT0}, {CELLB}")
for i in range(4):
    e(f"v_cmp_lt_u32 vcc, 16, v{vCn+i}")
    if i == 3:
        e(f"s_and_b64 vcc, vcc, {sp(sM1)}")
    e("s_mov_b64 exec, vcc")
    e(f"s_cbranch_execz L_nob{i}")
    e(f"ds_read_b128 {vr(48,4)}, v{vXL} offset:{CHB+i*8192}")
    e("s_waitcnt lgkmcnt(0)")
    granule(48, vCn+i, 16, sT0, i)
    e("s_nop 1")
    lab(f"L_nob{i}")
    e("s_mov_b64 exec, -1")
    e(f"s_add_u32 s{sT0}, s{sT0}, 8192")
arrive(RCA)
e("s_branch L_rfront")

lab("L_notbin")
def wprep_role(tag, fb):
    slice_lane(vSL, sCT)
    e(f"s_lshl_b32 s{sT2}, s{sCT}, 13")
    e(f"s_add_u32 s{sT2}, s{sT2}, {QT}")
    trpat(vTRP, vU0, vU1)
    e(f"v_add_u32 v{vTRP}, s{sT2}, v{vTRP}")
    e(f"v_lshlrev_b32 v{vST}, 4, v{vL}")
    for i in range(8):
        e(f"s_add_u32 m0, s{sT2}, {i*1024}")
        e(f"s_mov_b32 s{sT1}, {32768 + i*4096}")
        e(f"buffer_load_dwordx4 v{vSL}, {srd(S_WH)}, s{sT1} offen lds")
    e(f"s_lshl_b32 s{sC}, s{sCT}, 13")
    e(f"s_add_u32 s{sC}, s{sC}, {WH2F}")
    e("s_waitcnt vmcnt(0)")
    for s_ in range(8):
        e(f"ds_read_b64_tr_b16 {vr(AF+4*s_,2)}, v{vTRP} offset:{s_*1024}")
        e(f"ds_read_b64_tr_b16 {vr(AF+4*s_+2,2)}, v{vTRP} offset:{s_*1024+256}")
    for s_ in range(8):
        if s_ == 4:
            e(f"s_add_u32 s{sC}, s{sC}, 4096")
        e(f"s_waitcnt lgkmcnt({2*(7-s_)})")
        e(f"buffer_store_dwordx4 {vr(AF+4*s_,4)}, v{vST}, {srd(S_WS)}, s{sC} offen offset:{(s_%4)*1024} sc1")
e("s_waitcnt lgkmcnt(0)")
stamp("kernarg", 1)
kernarg_copy()
arrive(RISS)
c("workgroups WPR..WPR+3: slice ct = wg - WPR of WH2 ; wave w converts k-step w")
e(f"s_sub_u32 s{sC}, s2, {WPR}")
e(f"s_cmp_ge_u32 s{sC}, 4")
e("s_cbranch_scc1 L_norole")
slice_lane(vSL, sC)
trpat(vTRP, vU0, vU1)
e(f"s_lshl_b32 s{sT2}, s{sW}, 10")
e(f"s_add_u32 s{sT2}, s{sT2}, {QT}")
e(f"v_add_u32 v{vTRP}, s{sT2}, v{vTRP}")
e(f"v_lshlrev_b32 v{vST}, 4, v{vL}")
e(f"s_lshl_b32 s{sT1}, s{sW}, 12")
e(f"s_add_u32 s{sT1}, s{sT1}, 32768")
e(f"s_mov_b32 m0, s{sT2}")
e(f"s_lshl_b32 s{sT3}, s{sC}, 13")
e(f"buffer_load_dwordx4 v{vSL}, {srd(S_WH)}, s{sT1} offen lds")
e(f"s_lshl_b32 s{sT0}, s{sW}, 10")
e(f"s_add_u32 s{sT3}, s{sT3}, s{sT0}")
e(f"s_add_u32 s{sT3}, s{sT3}, {WH2F}")
e("s_waitcnt vmcnt(0)")
e(f"ds_read_b64_tr_b16 {vr(AF,2)}, v{vTRP}")
e(f"ds_read_b64_tr_b16 {vr(AF+2,2)}, v{vTRP} offset:256")
e("s_waitcnt lgkmcnt(0)")
e(f"buffer_store_dwordx4 {vr(AF,4)}, v{vST}, {srd(S_WS)}, s{sT3} offen sc1")
e(f"s_mov_b32 s{sRL}, 8")
e(f"s_lshl_b32 s{sX1}, s{sC}, 2")
e(f"s_add_u32 s{sX1}, s{sX1}, {FLG + NG*4}")
e(f"s_mov_b64 {sp(sM0)}, 1")
e(f"s_cmp_eq_u32 s{sC}, 3")
e(f"s_cselect_b64 {sp(sM0)}, 15, {sp(sM0)}")
lab("L_norole")
arrive(RCA)
lab("L_rfront")
c("R waves after the role: H1 (quad 0: nodes 0..31, quad 1: nodes 32..39); WH1 slices staged in QT (ct*8192)")
WF = 16
D1 = 96
vR2 = 114
def rowreg(s_): return (ACC + 4*s_) if s_ < 4 else (QF + 4*(s_-4))
slice_lane(vT[2], sCT)
e(f"s_lshl_b32 s{sT2}, s{sCT}, 13")
e(f"s_add_u32 s{sT2}, s{sT2}, {QT}")
e(f"s_lshl_b32 s{sT3}, s{sRQ}, 12")
e(f"s_add_u32 s{sT3}, s{sT3}, s{sT2}          ; + half*4096")
e(f"s_lshl_b32 s{sX0}, s{sRQ}, 14")
wait_cnt(RCA, 8, dst=sX2)
for i in range(4):
    e(f"s_add_u32 m0, s{sT3}, {i*1024}")
    e(f"s_add_u32 s{sT1}, s{sX0}, {i*4096}")
    e(f"buffer_load_dwordx4 v{vT[2]}, {srd(S_WH)}, s{sT1} offen lds")
stamp("h1 dma", 7)
c("signal: the last of the role's waves writes the flag(s) once all stores are complete")
e(f"s_mov_b32 s{sC}, 0")
e(f"s_cmp_eq_u32 s{sRL}, 0")
e("s_cbranch_scc1 L_nosig")
e("s_waitcnt vmcnt(4)")
e(f"v_mov_b32 v{vU0}, {GCNT}")
e(f"v_mov_b32 v{vU1}, 1")
e("s_mov_b64 exec, 1")
e(f"ds_add_rtn_u32 v{vRA}, v{vU0}, v{vU1}")
e("s_waitcnt lgkmcnt(0)")
e("s_mov_b64 exec, -1")
e(f"v_readfirstlane_b32 s{sT0}, v{vRA}")
e(f"s_xor_b32 s{sT1}, s{sTW}, {FLC}")
e(f"v_mov_b32 v{vU1}, s{sT1}")
e(f"v_lshlrev_b32 v{vU0}, 2, v{vL}")
e(f"s_add_u32 s{sT0}, s{sT0}, 1")
e(f"s_cmp_eq_u32 s{sT0}, s{sRL}")
e(f"s_cbranch_scc0 L_nosig")
e(f"s_mov_b64 exec, {sp(sM0)}")
e(f"buffer_store_dword v{vU1}, v{vU0}, {srd(S_WS)}, s{sX1} offen sc1")
e("s_mov_b64 exec, -1")
e(f"s_mov_b32 s{sC}, 1")
lab("L_nosig")
stamp("role signalled", 6)
if not NOPRIO: e("s_setprio 0")
e(f"s_mov_b32 s{sX0}, s{sT2}")
lane_consts()
trpat(vT[6], vT[0], vT[1])
e(f"v_add_u32 v{vT[6]}, s{sX0}, v{vT[6]}")
e(f"v_lshrrev_b32 v{vT[3]}, 5, v{vL}           ; hi")
e(f"v_and_b32 v{vT[4]}, 31, v{vL}")
e(f"s_lshl_b32 s{sT0}, s{sRQ}, 5")
e(f"v_add_u32 v{vT[4]}, s{sT0}, v{vT[4]}")
e(f"v_min_u32 v{vT[4]}, 39, v{vT[4]}")
row_addr(vT[1], vT[4], vT[3], vT[2])
c("DMA landed (the flag store, if this wave issued it, may stay in flight)")
e(f"s_cmp_eq_u32 s{sC}, 0")
e("s_cbranch_scc1 L_h1w0")
e(f"s_waitcnt vmcnt(1)")
e("s_branch L_h1w1")
lab("L_h1w0")
e("s_waitcnt vmcnt(0)")
lab("L_h1w1")
arrive(RCB)
wait_cnt([FCNT, FCC, FCNT2][H1W], 8, dst=sX2)
for s_ in range(8):
    e(f"v_xor_b32 v{vT[2]}, {s_<<5}, v{vT[1]}")
    e(f"ds_read_b128 {vr(rowreg(s_),4)}, v{vT[2]}")
wait_cnt(RCB, 8, dst=sX2)
for s_ in range(8):
    e(f"ds_read_b64_tr_b16 {vr(WF+4*s_,2)}, v{vT[6]} offset:{s_*1024}")
    e(f"ds_read_b64_tr_b16 {vr(WF+4*s_+2,2)}, v{vT[6]} offset:{s_*1024+256}")
e(f"s_mov_b32 s{sK2}, 0x{NLOG2E:08x}")
e(f"s_cmp_eq_u32 s{sRQ}, 0")
e("s_cbranch_scc0 L_h1b")
for s_ in range(8):
    e(f"s_waitcnt lgkmcnt({2*(7-s_)})")
    mfma(FACC, WF+4*s_, rowreg(s_), "0" if s_ == 0 else vr(FACC,16))
e("s_nop 7")
e("s_nop 3")
for r in range(16):
    e(f"v_mul_f32 v{FACC+r}, s{sK2}, v{FACC+r}")
e("s_branch L_h1d")
lab("L_h1b")
for s_ in range(8):
    e(f"s_waitcnt lgkmcnt({2*(7-s_)})")
    mfma(D1, rowreg(s_), WF+4*s_, "0" if s_ == 0 else vr(D1,16))
e("s_nop 7")
e("s_nop 3")
for r in range(4):
    e(f"v_mul_f32 v{FB+r}, s{sK2}, v{D1+r}")
lab("L_h1d")
stamp("h1 done", 8)
e("s_branch L_common")

lab("L_front")
QA, QB, QC = 0, 1, 2
KB = 124
PWR = 116
fw = sX2
e(f"s_sub_u32 s{fw}, s{sW}, 8")
c("zero REC[32768, 65536) (the first 32 KB stage W1 and are zeroed after use)")
e(f"v_lshlrev_b32 v{vT[0]}, 4, v{tid}")
for i in range(4):
    e(f"ds_write_b128 v{vT[0]}, {vr(Z,4)} offset:{32768 - 8192 + i*8192}")
c("own rows dma: instr idx u covers rows 4u..4u+3 ; lane: row = 4u + (l>>4); chunk = (l&15) ^ (row&15)")
e(f"v_lshrrev_b32 v{vT[4]}, 4, v{vL}")
e(f"v_and_b32 v{vT[1]}, 15, v{vL}")
e(f"v_xor_b32 v{vT[1]}, v{vT[1]}, v{vT[4]}")
e(f"s_lshl_b32 s{sT1}, s{sCT}, 2")
e(f"v_xor_b32 v{vT[1]}, s{sT1}, v{vT[1]}")
e(f"v_lshlrev_b32 v{vT[1]}, 4, v{vT[1]}")
e(f"v_lshl_add_u32 v{vT[1]}, v{vT[4]}, 8, v{vT[1]}")
slice_lane(vT[2], sCT)
e(f"s_lshl_b32 s{sT2}, s{sCT}, 13")
e(f"s_mul_i32 s{sT0}, s2, {40*256}")
e(f"s_lshl_b32 s{sT1}, s{fw}, 10")
e(f"s_add_u32 s{sT0}, s{sT0}, s{sT1}")
e(f"v_mul_u32_u24 v{vT[3]}, 6, v{vL}")
e(f"v_and_b32 v{vT[5]}, 31, v{vL}")
e(f"s_lshl_b32 s{sT3}, s{sCT}, 5")
e(f"v_add_u32 v{vT[5]}, s{sT3}, v{vT[5]}")
e(f"v_lshlrev_b32 v{vT[5]}, 1, v{vT[5]}           ; (32ct + n)*2")
e("s_waitcnt lgkmcnt(0)")
stamp("kernarg", 1)
kernarg_copy()
e(f"s_add_u32 m0, s{sT1}, {OWN}")
e("s_nop 0")
e(f"buffer_load_dwordx4 v{vT[1]}, {srd(S_H)}, s{sT0} offen lds")
e(f"s_cmp_ge_u32 s{fw}, 2")
e("s_cbranch_scc1 L_f_no2")
e(f"s_add_u32 m0, s{sT1}, {OWN+8192}")
e(f"s_add_u32 s{sT0}, s{sT0}, 8192")
e(f"buffer_load_dwordx4 v{vT[1]}, {srd(S_H)}, s{sT0} offen lds")
lab("L_f_no2")
c("wave 10: own pos (lane l<40 loads x,y,z u16)")
e(f"s_cmp_eq_u32 s{fw}, 2")
e("s_cbranch_scc0 L_f_nopos")
e(f"s_mul_i32 s{sT0}, s2, 240")
e(f"v_cmp_gt_u32 vcc, 40, v{vL}")
e("s_mov_b64 exec, vcc")
for k in range(3):
    e(f"buffer_load_ushort v{PWR+k}, v{vT[3]}, {srd(S_POS)}, s{sT0} offen offset:{2*k}")
e("s_mov_b64 exec, -1")
lab("L_f_nopos")
if PPF:
    c("L2 warm-up of pos: segment (wg>>3)&7 of 7680 B, 960 B per F wave (result unused)")
    e(f"s_lshr_b32 s{sT1}, s2, 3")
    e(f"s_and_b32 s{sT1}, s{sT1}, 7")
    e(f"s_lshl_b32 s{sT1}, s{sT1}, 3")
    e(f"s_add_u32 s{sT1}, s{sT1}, s{fw}")
    e(f"s_mul_i32 s{sT1}, s{sT1}, 960")
    e(f"v_lshlrev_b32 v{vT[7]}, 4, v{vL}")
    e(f"buffer_load_dwordx4 {vr(108,4)}, v{vT[7]}, {srd(S_POS)}, s{sT1} offen")
c("K1B raw: w_e rows 256, 257")
e(f"s_mov_b32 s{sT1}, 65536")
e(f"buffer_load_ushort v{KB}, v{vT[5]}, {srd(S_WE)}, s{sT1} offen")
e(f"buffer_load_ushort v{KB+1}, v{vT[5]}, {srd(S_WE)}, s{sT1} offen offset:256")
e(f"s_add_u32 s{sX1}, s{sT2}, {REC}")
e(f"s_lshl_b32 s{sT3}, s{sRQ}, 12")
e(f"s_add_u32 s{sT3}, s{sT3}, s{sX1}          ; + half*4096")
e(f"s_lshl_b32 s{sX0}, s{sRQ}, 14")
stamp("role loads issued", 2)
c("let the role loads go first")
wait_cnt(RISS, 8)
stamp("B1", 4)
c("W1 slice ct (w_e rows 0..127): this wave loads k-steps 4*half .. 4*half+3")
for i in range(4):
    e(f"s_add_u32 m0, s{sT3}, {i*1024}")
    e(f"s_add_u32 s{sT1}, s{sX0}, {i*4096}")
    e(f"buffer_load_dwordx4 v{vT[2]}, {srd(S_WE)}, s{sT1} offen lds")
lane_consts()
e("s_waitcnt vmcnt(4)")
arrive(FCNT)
c("wave 10: PTF (f32 x4 per node)")
e(f"s_cmp_eq_u32 s{fw}, 2")
e("s_cbranch_scc0 L_noptf")
for k in range(3): e(f"v_lshlrev_b32 v{PWR+k}, 16, v{PWR+k}")
e(f"v_mov_b32 v{PWR+3}, 0")
e(f"v_lshlrev_b32 v{vT[0]}, 4, v{vL}")
e(f"v_add_u32 v{vT[0]}, {PTF}, v{vT[0]}")
e(f"v_cmp_gt_u32 vcc, 40, v{vL}")
e("s_mov_b64 exec, vcc")
e(f"ds_write_b128 v{vT[0]}, {vr(PWR,4)}")
e("s_mov_b64 exec, -1")
lab("L_noptf")
stamp("role loads landed", 3)
trpat(vT[6], vT[0], vT[1])
e(f"v_add_u32 v{vT[6]}, s{sX1}, v{vT[6]}")
c("P' task: rows m: slot = m&7, g' = m>>3 ; node = 5*(4B + g') + max(slot-3,0), B = half")
e(f"v_lshrrev_b32 v{vT[3]}, 5, v{vL}           ; hi")
e(f"v_and_b32 v{vT[0]}, 7, v{vL}")
e(f"v_subrev_u32 v{vT[0]}, 3, v{vT[0]}")
e(f"v_max_i32 v{vT[0]}, 0, v{vT[0]}")
e(f"v_bfe_u32 v{vT[1]}, v{vL}, 3, 2")
e(f"v_mad_u32_u24 v{vT[0]}, v{vT[1]}, 5, v{vT[0]}        ; node (B=0)")
e(f"s_mul_i32 s{sT0}, s{sRQ}, 20")
e(f"v_add_u32 v{vT[0]}, s{sT0}, v{vT[0]}")
row_addr(vT[1], vT[0], vT[3], vT[2])
c("K1B: (wd, we) scaled, hi and lo parts")
e(f"s_mov_b32 s{sT0}, 0x{NLOG2E:08x}")
e(f"s_mov_b32 s{sT1}, 0xffff0000")
k0, k1, k2, k3 = 116, 117, 118, 119
e(f"v_lshlrev_b32 v{k0}, 16, v{KB}")
e(f"v_lshlrev_b32 v{k1}, 16, v{KB+1}")
e(f"v_mul_f32 v{k0}, s{sT0}, v{k0}")
e(f"v_mul_f32 v{k1}, s{sT0}, v{k1}")
e(f"v_cvt_pk_bf16_f32 v{KB}, v{k0}, v{k1}")
e(f"v_lshlrev_b32 v{k2}, 16, v{KB}")
e(f"v_and_b32 v{k3}, s{sT1}, v{KB}")
e(f"v_sub_f32 v{k0}, v{k0}, v{k2}")
e(f"v_sub_f32 v{k1}, v{k1}, v{k3}")
e(f"v_cvt_pk_bf16_f32 v{KB+1}, v{k0}, v{k1}")
c("P' write: BXP + g*2048 + (32ct + n)*16 + hi*8 ; hi=0 lanes: slots 0,1 = (wd,we) hi ; slot 2 = wd lo ; slot 3 = P'[j=0]")
vPW, vPM = 126, 127 if not TIMING else 115
e(f"v_and_b32 v{vPW}, 31, v{vL}")
e(f"v_lshlrev_b32 v{vPW}, 4, v{vPW}")
e(f"v_lshl_add_u32 v{vPW}, v{vT[3]}, 3, v{vPW}")
e(f"s_lshl_b32 s{sT0}, s{sCT}, 9")
e(f"s_lshl_b32 s{sT1}, s{sRQ}, 13")
e(f"s_add_u32 s{sT0}, s{sT0}, s{sT1}")
e(f"s_add_u32 s{sT0}, s{sT0}, {BXP}")
e(f"v_add_u32 v{vPW}, s{sT0}, v{vPW}")
e(f"v_cmp_gt_u32 vcc, 32, v{vL}")
e(f"v_mov_b32 v{vPM}, 0xffff0000")
e(f"v_cndmask_b32 v{vPM}, -1, v{vPM}, vcc         ; mask M")
e(f"v_and_b32 v{KB+1}, 0xffff, v{KB+1}")
e(f"v_cndmask_b32 v{KB+1}, 0, v{KB+1}, vcc")
e(f"s_mov_b32 s{sK2}, 0x{NLOG2E:08x}")
for i in range(4): e(f"v_mov_b32 v{116+i}, 0")
e("s_waitcnt vmcnt(0)")
stamp("slices landed", 6)
arrive(FCB)
wait_cnt(FCB, 8)
stamp("fcb", 45)
for s_ in range(8):
    e(f"v_xor_b32 v{vT[2]}, {s_<<5}, v{vT[1]}")
    e(f"ds_read_b128 {vr(rowreg(s_),4)}, v{vT[2]}")
    e(f"ds_read_b64_tr_b16 {vr(WF+4*s_,2)}, v{vT[6]} offset:{s_*1024}")
    e(f"ds_read_b64_tr_b16 {vr(WF+4*s_+2,2)}, v{vT[6]} offset:{s_*1024+256}")
for s_ in range(8):
    e(f"s_waitcnt lgkmcnt({min(15, 21-3*s_)})")
    mfma(FACC, rowreg(s_), WF+4*s_, "0" if s_ == 0 else vr(FACC,16))
stamp("mfma issued", 46)
arrive(FCC)
c("---- granule (16 B, two records) per lane: c = 8fw + (l>>3), q = l&7 : c*32000 + q*16 (+ b*128)")
e(f"s_lshl_b32 s{sT0}, s{fw}, 3")
e(f"v_lshrrev_b32 v{vT[4]}, 3, v{vL}")
e(f"v_add_u32 v{vT[4]}, s{sT0}, v{vT[4]}          ; c")
e(f"v_mul_u32_u24 v{vGA}, {CHB}, v{vT[4]}")
e(f"v_and_b32 v{vT[5]}, 7, v{vL}")
e(f"v_lshl_add_u32 v{vGA}, v{vT[5]}, 4, v{vGA}")
e(f"v_cmp_gt_u32 {sp(sPA)}, {NCH}, v{vT[4]}")
e(f"s_lshl_b32 s{sT2}, s2, 7")
e(f"s_add_u32 s{sT3}, s{sT2}, {CELLB}")
e(f"v_lshlrev_b32 v{vT[1]}, 4, v{vL}")
e(f"s_lshl_b32 s{sT0}, s{fw}, 12")
e(f"v_add_u32 v{vT[1]}, s{sT0}, v{vT[1]}")
e(f"s_mov_b64 {sp(sPB)}, {sp(sPA)}")
e(f"s_mov_b64 {sp(sEX)}, {sp(sPA)}")
e(f"s_sub_u32 s{sLOW}, s{sTW}, {DELTA}")
if FORCE == "ovf":
    e(f"s_add_u32 s{sLOW}, s{sLOW}, 0x40000000")
e(f"s_mov_b32 s{sK3}, {WIN}")
e(f"s_mov_b32 s{sCNT}, 0")
e(f"s_mov_b64 {sp(sM2)}, {sp(sPB)}")
_pi = [0]
def poll_issue():
    i = _pi[0]; _pi[0] += 1
    e(f"s_cmp_eq_u64 {sp(sPA)}, 0")
    e(f"s_cbranch_scc1 L_rp_noa{i}")
    e(f"s_mov_b64 exec, {sp(sPA)}")
    e(f"buffer_load_dwordx4 {vr(RA,4)}, v{vGA}, {srd(S_WS)}, s{sT2} offen sc1")
    lab(f"L_rp_noa{i}")
    e(f"s_cmp_eq_u64 {sp(sM2)}, 0")
    e(f"s_cbranch_scc1 L_rp_nob{i}")
    e(f"s_mov_b64 exec, {sp(sM2)}")
    e(f"buffer_load_dwordx4 {vr(RB,4)}, v{vGA}, {srd(S_WS)}, s{sT3} offen sc1")
    lab(f"L_rp_nob{i}")
    e("s_mov_b64 exec, -1")
if EARLY:
    poll_issue()
    stamp("B3", 7)
def pwrite(r0, g):
    for i in range(4):
        e(f"v_mul_f32 v{r0+i}, s{sK2}, v{r0+i}")
    e(f"v_cvt_pk_bf16_f32 v{r0}, v{r0}, v{r0+1}")
    e(f"v_cvt_pk_bf16_f32 v{r0+1}, v{r0+2}, v{r0+3}")
    e(f"v_cndmask_b32 v{r0}, v{r0}, v{KB}, vcc")
    e(f"v_and_or_b32 v{r0+1}, v{r0+1}, v{vPM}, v{KB+1}")
    e(f"ds_write_b64 v{vPW}, {vr(r0,2)} offset:{g*2048}")
e(f"v_cmp_gt_u32 vcc, 32, v{vL}")
e("s_nop 3")
for g in range(4):
    pwrite(FACC+4*g, g)
c("all eight waves hold their fragments: zero the staging area (4 KB per wave)")
wait_cnt(FCC, 8)
for i in range(4):
    e(f"ds_write_b128 v{vT[1]}, {vr(116,4)} offset:{REC + i*1024}")
e("s_waitcnt lgkmcnt(0)")
arrive(FCNT2)
stamp("front done", 5)
if not NOPRIO: e(f"s_setprio {FPRIO}")
if not EARLY:
    if PSL: e(f"s_sleep {PSL}")
    poll_issue()
    stamp("B3", 7)
e("s_branch L_rpoll")

lab("L_common")
c("---- R waves: no records ; wave 7 waits for the Q / WH2F flags")
for m in MK: e(f"s_mov_b64 {sp(m)}, 0")
e(f"s_cmp_eq_u32 s{sW}, 7")
e("s_cbranch_scc0 L_ba")
if QGATE: wait_cnt(RLAND, QGATE)
e(f"v_lshlrev_b32 v{vT[4]}, 4, v{vL}")
e(f"s_mov_b32 s{sCNT}, 0")
e(f"s_mov_b32 s{sT2}, {FLG}")
e(f"s_sub_u32 s{sLOW}, s{sTW}, {DELTA}")
if FORCE == "fb":
    e(f"s_add_u32 s{sLOW}, s{sLOW}, 0x40000000")
e(f"s_mov_b32 s{sK3}, {WIN}")
e("s_mov_b32 exec_lo, -1")
e("s_mov_b32 exec_hi, 0x1ff")
lab("L_qpoll")
e(f"buffer_load_dwordx4 {vr(RA,4)}, v{vT[4]}, {srd(S_WS)}, s{sT2} offen sc1")
e(f"s_add_u32 s{sCNT}, s{sCNT}, 1")
e("s_waitcnt vmcnt(0)")
stamp_dyn(19, sCNT)
for k in range(4):
    e(f"v_xor_b32 v{RA+k}, {FLC}, v{RA+k}")
for k in range(4):
    e(f"v_subrev_u32 v{RA+k}, s{sLOW}, v{RA+k}")
e(f"v_max_u32 v{RA}, v{RA}, v{RA+1}")
e(f"v_max3_u32 v{RA}, v{RA}, v{RA+2}, v{RA+3}")
e(f"v_cmp_le_u32 vcc, s{sK3}, v{RA}")
e("s_cmp_eq_u64 vcc, 0")
e("s_cbranch_scc1 L_qp_ok")
e(f"s_sleep {QSL}")
e(f"s_cmp_lt_u32 s{sCNT}, {NPOLL}")
e("s_cbranch_scc1 L_qpoll")
e(f"v_mov_b32 v{vT[0]}, {OVF}")
e(f"v_mov_b32 v{vT[1]}, 2")
e(f"ds_or_b32 v{vT[0]}, v{vT[1]}")
lab("L_qp_ok")
e("s_mov_b64 exec, -1")
e("s_branch L_ba")
_st[0] = 8
def gcheck(G, M, M2):
    e(f"v_bfe_u32 v{vT[2]}, v{G+3}, 3, 9")
    e(f"v_xor_b32 v{vT[2]}, {TAGC}, v{vT[2]}")
    e(f"v_lshrrev_b32 v{vT[0]}, 23, v{G}")
    e(f"v_lshrrev_b32 v{vT[1]}, 23, v{G+1}")
    e(f"v_subrev_u32 v{vT[3]}, s{sLOW}, v{G+3}")
    e(f"v_cmp_eq_u32 {M}, v{vT[0]}, v{vT[2]}")
    e(f"v_cmp_eq_u32 {M2}, v{vT[1]}, v{vT[2]}")
    e(f"s_and_b64 {M}, {M}, {M2}")
    e(f"v_cmp_gt_u32 {M2}, s{sK3}, v{vT[3]}")
    e(f"s_and_b64 {M}, {M}, {M2}")
e("s_branch L_rpoll")
lab("L_rpoll_again")
poll_issue()
lab("L_rpoll")
e(f"s_add_u32 s{sCNT}, s{sCNT}, 1")
e("s_waitcnt vmcnt(0)")
stamp_dyn(19, sCNT)
gcheck(RA, "vcc", sp(sM0))
e(f"s_andn2_b64 {sp(sPA)}, {sp(sPA)}, vcc")
gcheck(RB, sp(sM1), sp(sM0))
e(f"v_bfe_u32 v{vT[0]}, v{RA}, 21, 1")
e(f"s_andn2_b64 {sp(sPB)}, {sp(sPB)}, {sp(sM1)}")
e(f"v_cmp_ne_u32 vcc, 0, v{vT[0]}                ; more")
e(f"s_andn2_b64 vcc, vcc, {sp(sPA)}")
if BSPEC:
    e(f"s_or_b64 vcc, vcc, {sp(sPA)}")
e(f"s_and_b64 {sp(sM2)}, {sp(sPB)}, vcc")
e(f"s_or_b64 vcc, {sp(sPA)}, {sp(sM2)}")
e("s_cmp_eq_u64 vcc, 0")
e("s_cbranch_scc1 L_rp_ok")
e(f"s_sleep {RSL}")
e(f"s_cmp_lt_u32 s{sCNT}, {NPOLL}")
e("s_cbranch_scc1 L_rpoll_again")
c("timed out: take the slow path")
e(f"v_mov_b32 v{vT[0]}, {OVF}")
e(f"v_mov_b32 v{vT[1]}, 1")
e(f"ds_or_b32 v{vT[0]}, v{vT[1]}")
e(f"s_andn2_b64 {sp(sEX)}, {sp(sEX)}, vcc")
lab("L_rp_ok")
e("s_mov_b64 exec, -1")
arrive(RLAND)
stamp("records landed")
c("masks: a,b = valid bits of granule A ; c,d = valid bits of granule B & more")
RCS = [RA, RA+1, RB, RB+1]
e(f"v_bfe_u32 v{vT[0]}, v{RA}, 20, 1")
e(f"v_bfe_u32 v{vT[1]}, v{RA+1}, 20, 1")
e(f"v_bfe_u32 v{vT[2]}, v{RB}, 20, 1")
e(f"v_bfe_u32 v{vT[3]}, v{RB+1}, 20, 1")
e(f"v_bfe_u32 v{vT[4]}, v{RA}, 21, 1")
e(f"v_bfe_u32 v{vT[5]}, v{RA}, 22, 1")
e(f"v_and_b32 v{vT[2]}, v{vT[2]}, v{vT[4]}")
e(f"v_and_b32 v{vT[3]}, v{vT[3]}, v{vT[4]}")
for k in range(4):
    e(f"v_cmp_ne_u32 {sp(MK[k])}, 0, v{vT[k]}")
e(f"v_cmp_ne_u32 {sp(sM2)}, 0, v{vT[5]}")
for k in range(4):
    e(f"s_and_b64 {sp(MK[k])}, {sp(MK[k])}, {sp(sEX)}")
e(f"s_and_b64 {sp(sM2)}, {sp(sM2)}, {sp(sEX)}")
e(f"v_mov_b32 v{vOne}, 1")
e(f"s_mov_b32 s{sT0}, {ALLOC}")
VS = [91, 92, 93, 94]
def s1_issue(k):
    e(f"v_and_b32 v{VS[k]}, 0x3fff, v{RCS[k]}")
    e(f"v_mul_u32_u24 v{vT[0]}, 6, v{VS[k]}")
    e(f"v_and_b32 v{vT[0]}, -4, v{vT[0]}")
    e(f"v_bfe_u32 v{VI[k]}, v{RCS[k]}, 14, 3")
    e(f"v_lshl_add_u32 v{vT[1]}, v{VI[k]}, 2, s{sT0}")
    e(f"s_mov_b64 exec, {sp(MK[k])}")
    e(f"buffer_load_dwordx2 {vr(PS[k],2)}, v{vT[0]}, {srd(S_POS)}, 0 offen")
    e(f"ds_add_rtn_u32 v{VR[k]}, v{vT[1]}, v{vOne}")
    e("s_mov_b64 exec, -1")
    e(f"v_mul_u32_u24 v{VI[k]}, {GSTR}, v{VI[k]}")
c("REC must be zero before placement (all F waves have zeroed their staging)")
wait_cnt(FCNT2, 8, dst=sT1)
for k in range(4):
    e(f"s_cmp_eq_u64 {sp(MK[k])}, 0")
    e(f"s_cbranch_scc1 L_s1i{k}")
    s1_issue(k)
    lab(f"L_s1i{k}")
e(f"s_cmp_eq_u64 {sp(sM2)}, 0")
e("s_cbranch_scc1 L_s1_noovf")
e(f"v_mov_b32 v{vT[0]}, {OVF}")
e(f"ds_or_b32 v{vT[0]}, v{vOne}")
lab("L_s1_noovf")
def s1_place(vR, vI, vS, msk, tag, slow=False):
    e(f"v_cmp_gt_u32 vcc, {CAP}, v{vR}")
    e(f"v_lshl_add_u32 v{vI}, v{vR}, 6, v{vI}")
    e(f"v_bfe_u32 v{vR}, v{vR}, 2, 2")
    e(f"v_lshl_add_u32 v{vI}, v{vR}, 4, v{vI}")
    e(f"v_xor_b32 v{vR}, 16, v{vI}")
    e(f"s_andn2_b64 exec, {sp(msk)}, vcc")
    e(f"s_cbranch_execz L_s1_ok{tag}")
    if slow:
        e(f"v_mov_b32 v{qP}, 1")
        e(f"v_mov_b32 v{vT[0]}, {PEND}")
        e(f"ds_write_b32 v{vT[0]}, v{vOne}")
    else:
        e(f"v_mov_b32 v{vT[0]}, {OVF}")
        e(f"ds_or_b32 v{vT[0]}, v{vOne}")
    lab(f"L_s1_ok{tag}")
    e(f"s_and_b64 {sp(msk)}, {sp(msk)}, vcc")
    e(f"s_mov_b64 exec, {sp(msk)}")
    e(f"ds_write_b16 v{vR}, v{vS} offset:{REC}")
    e("s_mov_b64 exec, -1")
e("s_waitcnt lgkmcnt(0)")
for k in range(4):
    e(f"s_cmp_eq_u64 {sp(MK[k])}, 0")
    e(f"s_cbranch_scc1 L_s1p{k}")
    s1_place(VR[k], VI[k], VS[k], MK[k], "abcd"[k])
    lab(f"L_s1p{k}")
def dma_issue(va, vb, sbuf):
    e(f"v_lshl_add_u32 v{va}, v{va}, 8, v{vQD}")
    e(f"v_lshl_add_u32 v{vb}, v{vb}, 8, v{vQD}")
    e(f"s_mov_b32 m0, s{sbuf}")
    e(f"s_nop 0")
    e(f"buffer_load_dwordx4 v{va}, {srd(S_Q)}, 0 offen{QSC} lds")
    e(f"s_add_u32 m0, s{sbuf}, 1024")
    e(f"s_nop 0")
    e(f"buffer_load_dwordx4 v{vb}, {srd(S_Q)}, 0 offen{QSC} lds")
lab("L_st2")
c("stage 2 (sparse, up to four records per lane)")
PD = [96, 100, 112, 116]
e(f"s_mov_b32 s{sT0}, {PTF}")
e(f"s_mov_b32 s{sK2}, 0xffff0000")
e(f"v_mov_b32 v{vT[6]}, 0x3f80")
for k in range(4):
    e(f"s_cmp_eq_u64 {sp(MK[k])}, 0")
    e(f"s_cbranch_scc1 L_s2r{k}")
    e(f"v_bfe_u32 v{vT[4]}, v{RCS[k]}, 14, 3")
    e(f"v_bfe_u32 v{vT[5]}, v{RCS[k]}, 17, 3")
    e(f"v_mad_u32_u24 v{vT[5]}, v{vT[4]}, 5, v{vT[5]}        ; k = 5g + j")
    e(f"v_min_u32 v{vT[5]}, 39, v{vT[5]}")
    e(f"v_lshl_add_u32 v{vT[5]}, v{vT[5]}, 4, s{sT0}")
    e(f"ds_read_b128 {vr(PD[k],4)}, v{vT[5]}")
    lab(f"L_s2r{k}")
e("s_waitcnt vmcnt(0) lgkmcnt(0)")
stamp("pos landed", 12)
def stage2_pass(rec, ea, hi_half, ps, pd, row, msk, tag):
    X = [104, 105, 106, 107, 108, 109]
    e(f"s_cmp_eq_u64 {sp(msk)}, 0")
    e(f"s_cbranch_scc1 L_s2_done{tag}")
    e(f"s_mov_b64 exec, {sp(msk)}")
    e(f"v_and_b32 v{X[0]}, 1, v{rec}")
    e(f"v_lshlrev_b32 v{X[0]}, 4, v{X[0]}        ; shift")
    e(f"v_alignbit_b32 v{X[1]}, v{ps+1}, v{ps}, v{X[0]}     ; x | y<<16")
    e(f"v_lshrrev_b32 v{X[2]}, v{X[0]}, v{ps+1}              ; z (low 16)")
    e(f"v_lshlrev_b32 v{ps}, 16, v{X[1]}")
    e(f"v_and_b32 v{ps+1}, s{sK2}, v{X[1]}")
    e(f"v_lshlrev_b32 v{X[2]}, 16, v{X[2]}")
    e(f"v_sub_f32 v{pd}, v{pd}, v{ps}")
    e(f"v_sub_f32 v{pd+1}, v{pd+1}, v{ps+1}")
    e(f"v_sub_f32 v{pd+2}, v{pd+2}, v{X[2]}")
    e(f"v_cvt_pk_bf16_f32 v{X[0]}, v{pd}, v{pd+1}")
    e(f"v_cvt_pk_bf16_f32 v{X[1]}, v{pd+2}, v{pd+2}     ; dz")
    e(f"v_bfe_u32 v{X[3]}, v{rec}, 17, 3")
    e(f"v_lshl_add_u32 v{X[3]}, v{X[3]}, 1, v{row}")
    e(f"v_xor_b32 v{X[5]}, 16, v{X[3]}")
    e(f"ds_write_b16 v{X[3]}, v{vT[6]} offset:{REC+6}")
    e(f"ds_write_b16 v{X[5]}, v{X[0]} offset:{REC+6}")
    e(f"v_xor_b32 v{X[5]}, 32, v{X[3]}")
    e(f"v_xor_b32 v{X[3]}, 48, v{X[3]}")
    e(f"ds_write_b16_d16_hi v{X[5]}, v{X[0]} offset:{REC+6}")
    e(f"ds_write_b16 v{X[3]}, v{X[1]} offset:{REC+6}")
    e(f"v_lshlrev_b32 v{pd}, 16, v{X[0]}")
    e(f"v_and_b32 v{pd+1}, s{sK2}, v{X[0]}")
    e(f"v_lshlrev_b32 v{pd+2}, 16, v{X[1]}")
    for k in range(3):
        e(f"v_mul_f32 v{pd+k}, v{pd+k}, v{pd+k}")
    e(f"v_cvt_pk_bf16_f32 v{X[2]}, v{pd}, v{pd+1}")
    e(f"v_cvt_pk_bf16_f32 v{X[4]}, v{pd+2}, v{pd+2}")
    e(f"v_lshlrev_b32 v{pd}, 16, v{X[2]}")
    e(f"v_and_b32 v{pd+1}, s{sK2}, v{X[2]}")
    e(f"v_lshlrev_b32 v{pd+2}, 16, v{X[4]}")
    e(f"v_add_f32 v{pd}, v{pd}, v{pd+1}")
    e(f"v_add_f32 v{pd}, v{pd}, v{pd+2}")
    e(f"v_cvt_pk_bf16_f32 v{X[2]}, v{pd}, 0")
    if hi_half:
        e(f"v_and_or_b32 v{X[4]}, v{ea}, s{sK2}, v{X[2]}")
    else:
        e(f"v_lshl_or_b32 v{X[4]}, v{ea}, 16, v{X[2]}")
    e(f"ds_write_b32 v{row}, v{X[4]} offset:{REC}")
    e(f"ds_write_b16 v{row}, v{X[2]} offset:{REC+4}")
    e("s_mov_b64 exec, -1")
    lab(f"L_s2_done{tag}")
for k in range(4):
    stage2_pass(RCS[k], [RA+2, RB+2][k>>1], k & 1, PS[k], PD[k], VI[k], MK[k], "abcd"[k])
stamp("stage2 done", 13)
lab("L_ba")
stamp("placed+Q", 9)
if not NOPRIO: e("s_setprio 0")
e(f"s_waitcnt lgkmcnt(0)")
e("s_barrier")
stamp("BA", 10)

lab("L_post")
c("count of own group, OVF, lookups for tiles 0,1")
e(f"s_lshl_b32 s{sT0}, s{sG}, 2")
e(f"s_add_u32 s{sT0}, s{sT0}, {ALLOC}")
e(f"v_mov_b32 v{vT[0]}, s{sT0}")
e(f"v_mov_b32 v{vT[1]}, {OVF}")
e(f"ds_read_b32 v{vT[2]}, v{vT[0]}")
e(f"ds_read_b32 v{vT[3]}, v{vT[1]}")
LK = [104, 105, 80, 81]
e(f"v_xor_b32 v{vT[4]}, 32, v{vLK}")
e(f"ds_read_u16 v{LK[0]}, v{vLK}")
e(f"ds_read_u16 v{LK[1]}, v{vT[4]} offset:512")
e(f"ds_read_u16 v{LK[2]}, v{vLK} offset:1024")
e(f"ds_read_u16 v{LK[3]}, v{vT[4]} offset:1536")
e(f"s_cmp_eq_u32 s{sMODE}, 0")
e("s_cbranch_scc1 L_post_fast")
c("slow path: skip quickly if nothing was placed in this pass")
e(f"v_mov_b32 v{vT[0]}, {ALLOC}")
e(f"ds_read_b128 {vr(96,4)}, v{vT[0]}")
e(f"ds_read_b128 {vr(100,4)}, v{vT[0]} offset:16")
e("s_waitcnt lgkmcnt(0)")
e(f"v_or3_b32 v96, v96, v97, v98")
e(f"v_or3_b32 v96, v96, v99, v100")
e(f"v_or3_b32 v96, v96, v101, v102")
e(f"v_or_b32 v96, v96, v103")
e("s_nop 0")
e(f"v_readfirstlane_b32 s{sT0}, v96")
e(f"v_readfirstlane_b32 s{sCO}, v{vT[2]}")
e("s_nop 3")
e(f"s_cmp_lg_u32 s{sT0}, 0")
e("s_cbranch_scc1 L_post_go")
e(f"s_mov_b32 s{sRETRY}, 0")
e("s_branch L_slow_adv")
lab("L_post_fast")
e("s_waitcnt lgkmcnt(4)")
e(f"v_readfirstlane_b32 s{sCO}, v{vT[2]}")
e(f"v_readfirstlane_b32 s{sT3}, v{vT[3]}           ; OVF")
e("s_nop 3")
e(f"s_cmp_lg_u32 s{sT3}, 0")
e("s_cbranch_scc1 L_slow_init")
lab("L_post_go")
e(f"s_min_u32 s{sCO}, s{sCO}, {CAP}")
e(f"s_add_u32 s{sNT}, s{sCO}, 15")
e(f"s_lshr_b32 s{sNT}, s{sNT}, 4")
e("s_waitcnt lgkmcnt(2)")
dma_issue(LK[0], LK[1], sB0)
stamp("dma0 issued", 11)
c("ID constants: lane (m,hi): step s elem i = (m == 16s + 8hi + i)")
e(f"v_and_b32 v{vT[4]}, 31, v{vL}")
e(f"v_lshrrev_b32 v{vT[5]}, 5, v{vL}")
e(f"v_lshlrev_b32 v{vT[5]}, 3, v{vT[5]}")
e(f"v_sub_u32 v{vT[4]}, v{vT[4]}, v{vT[5]}        ; x = m - 8hi")
e(f"v_mov_b32 v{vT[5]}, 0x3f80")
e(f"v_mov_b32 v{vT[6]}, 0x3f800000")
for s_ in range(2):
    for r in range(4):
        x0 = 16*s_ + 2*r
        e(f"v_cmp_eq_u32 vcc, {x0}, v{vT[4]}")
        e(f"v_cndmask_b32 v{ID+4*s_+r}, 0, v{vT[5]}, vcc")
        e(f"v_cmp_eq_u32 vcc, {x0+1}, v{vT[4]}")
        e(f"v_cndmask_b32 v{ID+4*s_+r}, v{ID+4*s_+r}, v{vT[6]}, vcc")
c("BXF address: BXP + g*2048 + (64ch + l)*16   (l = 32hi + n)")
e(f"s_lshl_b32 s{sT0}, s{sG}, 11")
e(f"s_lshl_b32 s{sT1}, s{sCH2}, 10")
e(f"s_add_u32 s{sT0}, s{sT0}, s{sT1}")
e(f"s_add_u32 s{sT0}, s{sT0}, {BXP}")
e(f"v_lshlrev_b32 v{vT[4]}, 4, v{vL}")
e(f"v_add_u32 v{vT[4]}, s{sT0}, v{vT[4]}")
c("SEG zero (first pass only)")
e(f"s_cmp_eq_u32 s{sNODE}, 0")
e("s_cbranch_scc1 L_noseg0")
e(f"s_mov_b32 s{sNODE}, 0")
for r in range(32):
    e(f"v_mov_b32 v{SEG+r}, 0")
lab("L_noseg0")
e("s_waitcnt lgkmcnt(0)")
dma_issue(LK[2], LK[3], sB1)
stamp("BB", 14)
_st[0] = 15
e(f"ds_read_b128 {vr(BXF,4)}, v{vT[4]}")
if not NOPRIO: e("s_setprio 3")
e(f"s_mov_b32 s{sU}, 0")
if XM:
    for i in range(4): e(f"v_mov_b32 v{124+i}, 0")
e("s_mov_b32 s6, 1.0")
e("s_mov_b32 s7, 1.0")
e(f"s_mov_b32 s{sREM}, s{sCO}")
e(f"s_mov_b32 s{sRT}, s{sNT}")
c("running pointers: vLK -> tile 2 ; working copies of vOD / vTRS")
vLKr, vODr, vTRSr, vTRSr2 = 92, 93, 94, 95
e(f"v_add_u32 v{vLKr}, 2048, v{vLK}")
e(f"v_mov_b32 v{vODr}, v{vOD}")
e(f"v_mov_b32 v{vTRSr}, v{vTRS}")
e(f"v_xor_b32 v{vTRSr2}, 32, v{vTRS}")

def tile_body(buf):
    tag = f"t{buf}"
    sBUF = [sB0, sB1][buf]
    bo = buf * 2048
    c(f"---- tile (buffer {buf}) ----")
    e(f"s_cmp_gt_u32 s{sRT}, 2")
    e(f"s_cselect_b32 s{sK3}, 1, 0")
    e(f"s_cbranch_scc0 L_nolk{tag}")
    e(f"v_xor_b32 v{vT[4]}, 32, v{vLKr}")
    e(f"ds_read_u16 v{vT[2]}, v{vLKr}")
    e(f"ds_read_u16 v{vT[3]}, v{vT[4]} offset:512")
    lab(f"L_nolk{tag}")
    e(f"ds_read_b128 {vr(OHD,4)}, v{vODr}")
    e(f"s_cmp_gt_u32 s{sRT}, 1")
    e(f"s_cbranch_scc1 L_w2{tag}")
    e("s_waitcnt vmcnt(0)")
    e(f"s_branch L_wd{tag}")
    lab(f"L_w2{tag}")
    e("s_waitcnt vmcnt(2)")
    lab(f"L_wd{tag}")
    e(f"ds_read_b64_tr_b16 {vr(QF,2)}, v{vTRQ0} offset:{bo}")
    e(f"ds_read_b64_tr_b16 {vr(QF+2,2)}, v{vTRQ0} offset:{bo+512}")
    e(f"ds_read_b64_tr_b16 {vr(QF+4,2)}, v{vTRQ1} offset:{bo}")
    e(f"ds_read_b64_tr_b16 {vr(QF+6,2)}, v{vTRQ1} offset:{bo+512}")
    e(f"ds_read_b64_tr_b16 {vr(SF,2)}, v{vTRSr}")
    e(f"ds_read_b64_tr_b16 {vr(SF+2,2)}, v{vTRSr2} offset:512")
    e(f"v_add_u32 v{vLKr}, 1024, v{vLKr}")
    e(f"v_add_u32 v{vODr}, v{vODM}, v{vODr}")
    e(f"v_add_u32 v{vTRSr}, 1024, v{vTRSr}")
    e(f"v_add_u32 v{vTRSr2}, 1024, v{vTRSr2}")
    e("s_waitcnt lgkmcnt(6)")
    mfma(ACC, OHD, BXF, "0")
    e("s_waitcnt lgkmcnt(4)")
    mfma(ACC, ID, QF, vr(ACC,16))
    e("s_waitcnt lgkmcnt(2)")
    mfma(ACC, ID+4, QF+4, vr(ACC,16))
    for _ in range(XM):
        mfma(ACC, 124, QF+4*(_&1), vr(ACC,16))
    e(f"s_cmp_eq_u32 s{sK3}, 0")
    e(f"s_cbranch_scc1 L_nodma{tag}")
    if "d" not in KO: dma_issue(vT[2], vT[3], sBUF)
    lab(f"L_nodma{tag}")
    e("s_nop 7")
    e("s_nop 3")
    def blk(bb, t):
        a = ACC + 4*bb
        if "e" in KO:
            for i in range(4): e(f"v_mov_b32 v{t+i}, v{a+i}")
        else:
            for i in range(4): e(f"v_exp_f32 v{t+i}, v{a+i}")
        if PK & 1:
            if PK & 4:
                for i in (0, 2): e(f"v_pk_add_f32 {vr(t+i,2)}, {vr(t+i,2)}, 1.0 op_sel_hi:[1,0]")
            else:
                for i in (0, 2): e(f"v_pk_add_f32 {vr(t+i,2)}, {vr(t+i,2)}, s[6:7]")
        elif "a" not in KO:
            for i in range(4): e(f"v_add_f32 v{t+i}, 1.0, v{t+i}")
        if "r" not in KO:
            for i in range(4): e(f"v_rcp_f32 v{t+i}, v{t+i}")
        if PK & 2:
            for i in (0, 2): e(f"v_pk_mul_f32 {vr(t+i,2)}, {vr(a+i,2)}, {vr(t+i,2)}")
        elif "m" not in KO:
            for i in range(4): e(f"v_mul_f32 v{t+i}, v{a+i}, v{t+i}")
        e(f"v_cvt_pk_bf16_f32 v{MP+2*bb}, v{t}, v{t+1}")
        e(f"v_cvt_pk_bf16_f32 v{MP+2*bb+1}, v{t+2}, v{t+3}")
    blk(0, TE); blk(2, TE+4)
    e(f"s_cmp_le_u32 s{sREM}, 8")
    e(f"s_cbranch_scc1 L_skip{tag}")
    blk(1, TE); blk(3, TE+4)
    e(f"s_branch L_blk{tag}")
    lab(f"L_skip{tag}")
    for r in (2, 3, 6, 7): e(f"v_mov_b32 v{MP+r}, 0")
    lab(f"L_blk{tag}")
    e("s_waitcnt lgkmcnt(0)")
    e("s_nop 1")
    mfma(SEG, MP, SF, vr(SEG,16))
    mfma(SEG+16, MP+4, SF, vr(SEG+16,16))
    e(f"s_sub_u32 s{sREM}, s{sREM}, 16")
    e(f"s_sub_u32 s{sRT}, s{sRT}, 1")
    if not NOPRIO:
        e(f"s_cmp_gt_u32 s{sRT}, 3")
        e(f"s_cbranch_scc1 L_pr{tag}")
        e(f"s_setprio 2")
        e(f"s_cmp_eq_u32 s{sRT}, 3")
        e(f"s_cbranch_scc1 L_pr{tag}")
        e(f"s_setprio 1")
        e(f"s_cmp_eq_u32 s{sRT}, 2")
        e(f"s_cbranch_scc1 L_pr{tag}")
        e(f"s_setprio 0")
        lab(f"L_pr{tag}")

e(f"s_cmp_eq_u32 s{sRT}, 0")
e("s_cbranch_scc1 L_tiles_done")
lab("L_tile_loop")
tile_body(0)
e(f"s_cmp_eq_u32 s{sRT}, 0")
e("s_cbranch_scc1 L_tiles_done")
tile_body(1)
e(f"s_cmp_lg_u32 s{sRT}, 0")
e("s_cbranch_scc1 L_tile_loop")
lab("L_tiles_done")
e("s_waitcnt vmcnt(0)")
if not NOPRIO: e("s_setprio 3")
stamp("tiles done")
e(f"s_cmp_eq_u32 s{sMODE}, 0")
e("s_cbranch_scc0 L_slow_next")

lab("L_final")
WFL = 80
ROW = 16
HRES = 112
vN = vT[1]; vHI = vT[2]; vOFF = vT[3]; vRD_ = vT[4]
e(f"s_memrealtime s[6:7]")
e(f"v_and_b32 v{vN}, 31, v{vL}")
e(f"v_lshrrev_b32 v{vHI}, 5, v{vL}")
c("late frags: quads 1, 2: WH2F slice ct ; quad 0: wx frags")
e(f"s_cmp_eq_u32 s{sQ}, {QC}")
e("s_cbranch_scc1 L_f_wx")
e(f"s_cmp_eq_u32 s{sQ}, 3")
e("s_cbranch_scc1 L_f_flush")
e(f"s_lshl_b32 s{sT0}, s{sCT}, 13")
e(f"s_add_u32 s{sT0}, s{sT0}, {WH2F}")
e(f"s_add_u32 s{sT1}, s{sT0}, 4096")
e(f"v_lshlrev_b32 v{vT[0]}, 4, v{vL}")
for s_ in range(8):
    e(f"buffer_load_dwordx4 {vr(WFL+4*s_,4)}, v{vT[0]}, {srd(S_WS)}, s{[sT0,sT1][s_>>2]} offen offset:{(s_%4)*1024}{QSC}")
e("s_branch L_f_flush")
lab("L_f_wx")
e(f"v_lshlrev_b32 v{vT[0]}, 4, v{vHI}")
for s_ in range(8):
    e(f"buffer_load_dwordx4 {vr(WFL+4*s_,4)}, v{vT[0]}, {srd(S_WX)}, 0 offen offset:{s_*32}")
lab("L_f_flush")
c("flush: lane (f=n, hi): addr = QTw + h*2048 + f*64 + ((bb ^ ((f>>2)&3) ^ (g&3))<<4) + hi*8")
e(f"s_and_b32 s{sT0}, s{sG}, 3")
e(f"v_bfe_u32 v{vT[5]}, v{vN}, 2, 2")
e(f"v_xor_b32 v{vT[5]}, s{sT0}, v{vT[5]}")
e(f"v_lshlrev_b32 v{vT[5]}, 4, v{vT[5]}")
e(f"v_lshl_add_u32 v{vT[5]}, v{vN}, 6, v{vT[5]}")
e(f"v_lshl_add_u32 v{vT[5]}, v{vHI}, 3, v{vT[5]}")
e(f"v_add_u32 v{vT[5]}, s{sB0}, v{vT[5]}")
e("s_nop 7")
e("s_nop 3")
for h in range(2):
    for bb in range(4):
        r0 = SEG + 16*h + 4*bb
        e(f"v_cvt_pk_bf16_f32 v{r0}, v{r0}, v{r0+1}")
        e(f"v_cvt_pk_bf16_f32 v{r0+1}, v{r0+2}, v{r0+3}")
        if bb == 0:
            e(f"ds_write_b64 v{vT[5]}, {vr(r0,2)} offset:{h*2048}")
        else:
            e(f"v_xor_b32 v{vT[6]}, {bb<<4}, v{vT[5]}")
            e(f"ds_write_b64 v{vT[6]}, {vr(r0,2)} offset:{h*2048}")
c("per-role (node, comp) -> g, f ; addr = QT + g*8192 + f*64 + ((hi ^ ((f>>2)&3) ^ (g&3))<<4)")
vNODE = vT[5]; vCMP = vT[6]
def node_addr(dst, node, cmp_, t0, t1):
    e(f"v_mul_u32_u24 v{t1}, 52, v{node}")
    e(f"v_lshrrev_b32 v{t1}, 8, v{t1}             ; g")
    e(f"v_mul_u32_u24 v{t0}, 5, v{t1}")
    e(f"v_sub_u32 v{t0}, v{node}, v{t0}          ; j")
    if cmp_ is not None:
        e(f"v_lshl_add_u32 v{t0}, v{cmp_}, 3, v{t0}")
    e(f"v_add_u32 v{t0}, 3, v{t0}                 ; f")
    e(f"v_bfe_u32 v{dst}, v{t0}, 2, 2")
    e(f"v_xor_b32 v{dst}, v{dst}, v{vHI}")
    e(f"v_lshlrev_b32 v{t0}, 6, v{t0}")
    e(f"v_lshl_add_u32 v{t0}, v{t1}, 13, v{t0}")
    e(f"v_and_b32 v{t1}, 3, v{t1}")
    e(f"v_xor_b32 v{dst}, v{dst}, v{t1}")
    e(f"v_lshl_add_u32 v{dst}, v{dst}, 4, v{t0}")
    e(f"v_add_u32 v{dst}, {QT}, v{dst}")
e(f"s_mul_i32 s{sK3}, s2, 40")
e(f"s_cmp_eq_u32 s{sQ}, {QC}")
e("s_cbranch_scc1 L_f_roleC")
e(f"s_cmp_eq_u32 s{sQ}, {QB}")
e("s_cbranch_scc1 L_f_roleB")
e(f"s_cmp_eq_u32 s{sQ}, {QA}")
e("s_cbranch_scc0 L_f_bar")
c("role A (nodes n)")
node_addr(vRD_, vN, None, vT[0], vT[7])
c("role A residual: h[node n][32ct + 8bb + 4hi..+3]: OWN + n*256 + (((ct*4+bb) ^ (n&15))<<4) + hi*8")
e(f"v_and_b32 v{vT[0]}, 15, v{vN}")
e(f"s_lshl_b32 s{sT0}, s{sCT}, 2")
e(f"v_xor_b32 v{vT[0]}, s{sT0}, v{vT[0]}")
e(f"v_lshlrev_b32 v{vT[0]}, 4, v{vT[0]}")
e(f"v_lshl_add_u32 v{vT[0]}, v{vN}, 8, v{vT[0]}")
e(f"v_lshl_add_u32 v{vT[0]}, v{vHI}, 3, v{vT[0]}")
e(f"v_add_u32 v{vT[0]}, {OWN}, v{vT[0]}")
for bb in range(4):
    e(f"v_xor_b32 v{vT[7]}, {bb<<4}, v{vT[0]}")
    e(f"ds_read_b64 {vr(HRES+2*bb,2)}, v{vT[7]}")
e(f"v_add_u32 v{vOFF}, s{sK3}, v{vN}")
e(f"v_lshlrev_b32 v{vOFF}, 8, v{vOFF}")
e(f"v_lshl_add_u32 v{vOFF}, v{vHI}, 3, v{vOFF}")
e(f"s_lshl_b32 s{sT0}, s{sCT}, 6")
e(f"v_add_u32 v{vOFF}, s{sT0}, v{vOFF}")
e("s_branch L_f_bar")
lab("L_f_roleB")
c("role B (nodes 32 + (n&7))")
e(f"v_and_b32 v{vNODE}, 7, v{vN}")
e(f"v_add_u32 v{vNODE}, 32, v{vNODE}")
node_addr(vRD_, vNODE, None, vT[0], vT[7])
c("role B residual: rows 32+4hi+i, col 32ct+n: OWN + row*256 + (((ct*4 + (n>>3)) ^ (row&15))<<4) + (n&7)*2")
e(f"v_lshrrev_b32 v{vT[0]}, 3, v{vN}")
e(f"s_lshl_b32 s{sT0}, s{sCT}, 2")
e(f"v_add_u32 v{vT[0]}, s{sT0}, v{vT[0]}          ; chunk")
e(f"v_lshlrev_b32 v{vT[7]}, 2, v{vHI}             ; 4hi")
e(f"v_xor_b32 v{vT[0]}, v{vT[0]}, v{vT[7]}")
e(f"v_lshlrev_b32 v{vT[0]}, 4, v{vT[0]}")
e(f"v_lshl_add_u32 v{vT[0]}, v{vT[7]}, 8, v{vT[0]}   ; + 4hi*256")
e(f"v_and_b32 v{vT[5]}, 7, v{vN}")
e(f"v_lshl_add_u32 v{vT[0]}, v{vT[5]}, 1, v{vT[0]}")
e(f"v_add_u32 v{vT[0]}, {OWN + 32*256}, v{vT[0]}")
for i in range(4):
    e(f"v_xor_b32 v{vT[5]}, {i<<4}, v{vT[0]}")
    e(f"ds_read_u16 v{HRES+i}, v{vT[5]} offset:{i*256}")
e(f"s_add_u32 s{sT0}, s{sK3}, 32")
e(f"v_add_u32 v{vOFF}, s{sT0}, v{vT[7]}")
e(f"v_lshlrev_b32 v{vOFF}, 8, v{vOFF}")
e(f"v_lshl_add_u32 v{vOFF}, v{vN}, 1, v{vOFF}")
e(f"s_lshl_b32 s{sT0}, s{sCT}, 6")
e(f"v_add_u32 v{vOFF}, s{sT0}, v{vOFF}")
e("s_branch L_f_bar")
lab("L_f_roleC")
c("role C: n' = min(n,29); idx = 30ct + n' ; G = idx/15 ; r = idx%15 ; c = r/5 ; j = r%5 ; node = 5G + j ; comp = c+1")
e(f"v_min_u32 v{vT[0]}, 29, v{vN}")
e(f"v_cmp_lt_u32 vcc, 14, v{vT[0]}")
e(f"v_cndmask_b32 v{vT[7]}, 0, 1, vcc               ; G&1")
e(f"v_mul_u32_u24 v{vNODE}, 15, v{vT[7]}")
e(f"v_sub_u32 v{vT[0]}, v{vT[0]}, v{vNODE}          ; r")
e(f"v_mul_u32_u24 v{vCMP}, 52, v{vT[0]}")
e(f"v_lshrrev_b32 v{vCMP}, 8, v{vCMP}              ; c")
e(f"v_mul_u32_u24 v{vNODE}, 5, v{vCMP}")
e(f"v_sub_u32 v{vT[0]}, v{vT[0]}, v{vNODE}          ; j")
e(f"s_lshl_b32 s{sT0}, s{sCT}, 1")
e(f"v_add_u32 v{vT[7]}, s{sT0}, v{vT[7]}            ; G")
e(f"v_mad_u32_u24 v{vNODE}, v{vT[7]}, 5, v{vT[0]}")
e(f"v_add_u32 v{vCMP}, 1, v{vCMP}")
node_addr(vRD_, vNODE, vCMP, vT[0], vT[7])
c("role C: pos residual PTF[node][comp-1] ; out offset (40b + node)*6 + (comp-1)*2")
e(f"v_lshlrev_b32 v{vT[0]}, 4, v{vNODE}")
e(f"v_lshl_add_u32 v{vT[0]}, v{vCMP}, 2, v{vT[0]}")
e(f"v_add_u32 v{vT[0]}, {PTF-4}, v{vT[0]}")
e(f"ds_read_b32 v{HRES}, v{vT[0]}")
e(f"v_add_u32 v{vOFF}, s{sK3}, v{vNODE}")
e(f"v_mul_u32_u24 v{vOFF}, 6, v{vOFF}")
e(f"v_lshl_add_u32 v{vOFF}, v{vCMP}, 1, v{vOFF}")
e(f"v_subrev_u32 v{vOFF}, 2, v{vOFF}")
lab("L_f_bar")
e("s_waitcnt lgkmcnt(0)")
c("residency guard: this wave's stamp must be older than the accept window of any later launch")
lab("L_guard")
e(f"s_sub_u32 s{sT0}, s6, s{sTW}")
e(f"s_cmp_ge_u32 s{sT0}, {GUARD}")
e("s_cbranch_scc1 L_guard_ok")
e("s_sleep 8")
e("s_memrealtime s[6:7]")
e("s_waitcnt lgkmcnt(0)")
e("s_branch L_guard")
lab("L_guard_ok")
e("s_barrier")
stamp("final bar")
e(f"s_cmp_eq_u32 s{sQ}, 3")
e("s_cbranch_scc1 L_end")
e(f"v_xor_b32 v{vT[0]}, 32, v{vRD_}")
for s_ in range(8):
    e(f"ds_read_b128 {vr(ROW+4*s_,4)}, v{[vRD_, vT[0]][s_&1]} offset:{(s_>>1)*2048}")
e(f"s_mov_b32 s{sK2}, 0x{NLN2:08x}")
e(f"s_mov_b32 s{sK3}, 0xffff0000")
e("s_waitcnt vmcnt(0)")
e(f"s_cmp_eq_u32 s{sQ}, {QC}")
e("s_cbranch_scc1 L_f_C")
e(f"s_cmp_eq_u32 s{sQ}, {QB}")
e("s_cbranch_scc1 L_f_B")
c("role A")
for s_ in range(8):
    e(f"s_waitcnt lgkmcnt({7-s_})")
    mfma(FACC, WFL+4*s_, ROW+4*s_, vr(FACC,16))
def final_silu(a, n, T):
    for i in range(n): e(f"v_exp_f32 v{T+i}, v{a+i}")
    for i in range(n): e(f"v_add_f32 v{T+i}, 1.0, v{T+i}")
    for i in range(n): e(f"v_rcp_f32 v{T+i}, v{T+i}")
    for i in range(n): e(f"v_mul_f32 v{a+i}, v{a+i}, v{T+i}")
X = 48
e("s_nop 7")
e("s_nop 3")
for i in range(4):
    a = FACC + 4*i
    final_silu(a, 4, X)
    e(f"v_lshlrev_b32 v{X}, 16, v{HRES+2*i}")
    e(f"v_and_b32 v{X+1}, s{sK3}, v{HRES+2*i}")
    e(f"v_lshlrev_b32 v{X+2}, 16, v{HRES+2*i+1}")
    e(f"v_and_b32 v{X+3}, s{sK3}, v{HRES+2*i+1}")
    for k in range(4): e(f"v_fma_f32 v{a+k}, v{a+k}, s{sK2}, v{X+k}")
    e(f"v_cvt_pk_bf16_f32 v{X+4+2*i}, v{a}, v{a+1}")
    e(f"v_cvt_pk_bf16_f32 v{X+5+2*i}, v{a+2}, v{a+3}")
    e(f"buffer_store_dwordx2 {vr(X+4+2*i,2)}, v{vOFF}, {srd(S_O0)}, 0 offen offset:{i*16}{OSC}")
e("s_branch L_end")
lab("L_f_B")
c("role B: rows 32 + 4hi + r")
for i in range(4): e(f"v_mov_b32 v{ACC+i}, v{FB+i}")
e("s_nop 1")
for s_ in range(8):
    e(f"s_waitcnt lgkmcnt({7-s_})")
    mfma(ACC, ROW+4*s_, WFL+4*s_, vr(ACC,16))
Y = 64
e("s_nop 7")
e("s_nop 3")
final_silu(ACC, 4, Y)
for k in range(4):
    e(f"v_lshlrev_b32 v{Y+k}, 16, v{HRES+k}")
for k in range(4):
    e(f"v_fma_f32 v{ACC+k}, v{ACC+k}, s{sK2}, v{Y+k}")
for k in range(4):
    e(f"v_cvt_pk_bf16_f32 v{Y+8+k}, v{ACC+k}, v{ACC+k}")
for r in range(4):
    e(f"buffer_store_short v{Y+8+r}, v{vOFF}, {srd(S_O0)}, 0 offen offset:{r*256}{OSC}")
e("s_branch L_end")
lab("L_f_C")
for s_ in range(8):
    e(f"s_waitcnt lgkmcnt({7-s_})")
    mfma(ACC, WFL+4*s_, ROW+4*s_, "0" if s_ == 0 else vr(ACC,16))
e("s_nop 7")
e("s_nop 3")
e(f"v_fma_f32 v{ACC}, v{ACC}, s{sK2}, v{HRES}")
e(f"v_cvt_pk_bf16_f32 v{ACC}, v{ACC}, v{ACC}")
e(f"s_mov_b32 exec_lo, 0x3fffffff")
e(f"s_mov_b32 exec_hi, 0")
e(f"buffer_store_short v{ACC}, v{vOFF}, {srd(S_O1)}, 0 offen{OSC}")
lab("L_end")
stamp("end")
stamp_flush()
lab("L_end2")
e("s_endpgm")

def zero_lds(Z, vtid):
    c("zero REC (69632 B = 4352 x 16 B) and counters (64 B)")
    for i in range(4): e(f"v_mov_b32 v{Z+i}, 0")
    e(f"v_lshlrev_b32 v{vT[0]}, 4, v{vtid}")
    for i in range(4):
        e(f"ds_write_b128 v{vT[0]}, {vr(Z,4)} offset:{i*16384}")
    e(f"v_add_u32 v{vT[1]}, {65536}, v{vT[0]}")
    e(f"v_add_u32 v{vT[2]}, {CTR - 256*16}, v{vT[0]}")
    e(f"v_cmp_gt_u32 vcc, 256, v{vtid}")
    e(f"v_cndmask_b32 v{vT[1]}, v{vT[2]}, v{vT[1]}, vcc")
    e(f"v_cmp_gt_u32 vcc, 260, v{vtid}")
    e("s_mov_b64 exec, vcc")
    e(f"ds_write_b128 v{vT[1]}, {vr(Z,4)}")
    e("s_mov_b64 exec, -1")
lab("L_slow_init")
e(f"s_mov_b32 s{sMODE}, 1")
e(f"s_mov_b32 s{sCH}, 0")
e(f"s_mov_b32 s{sRETRY}, 0")
e(f"s_and_b32 s{sT3}, s{sT3}, 2")
e(f"s_cmp_eq_u32 s{sT3}, 0")
e("s_cbranch_scc1 L_slow_pass")
c("fallback: the hand-off timed out -> this workgroup computes all of Q and the WH2 fragments itself")
c("(waves 0..7 keep FACC (64..79) / FB (120..123); waves 8..15 run the GEMM blocks)")
e(f"s_mov_b32 s{sU}, 0")
lab("L_fb_loop")
e("s_waitcnt vmcnt(0) lgkmcnt(0)")
e("s_barrier")
e(f"s_cmp_lt_u32 s{sW}, 8")
e("s_cbranch_scc1 L_fb_idle")
gemm_role("fb", sU, True)
e("s_branch L_fb_next")
lab("L_fb_idle")
e("s_barrier")
lab("L_fb_next")
e(f"s_add_u32 s{sU}, s{sU}, 1")
e(f"s_cmp_lt_u32 s{sU}, {NG}")
e("s_cbranch_scc1 L_fb_loop")
e("s_waitcnt vmcnt(0) lgkmcnt(0)")
e("s_barrier")
e(f"s_cmp_ge_u32 s{sW}, 4")
e("s_cbranch_scc1 L_slow_pass")
wprep_role("fb", True)
e("s_branch L_slow_pass")
lab("L_slow_next")
e(f"v_mov_b32 v{vT[0]}, {PEND}")
e(f"ds_read_b32 v{vT[1]}, v{vT[0]}")
e("s_waitcnt lgkmcnt(0)")
e(f"v_readfirstlane_b32 s{sRETRY}, v{vT[1]}")
e("s_nop 3")
e(f"s_cmp_lg_u32 s{sRETRY}, 0")
e("s_cbranch_scc1 L_slow_pass")
lab("L_slow_adv")
e(f"s_add_u32 s{sCH}, s{sCH}, 1")
e(f"s_cmp_ge_u32 s{sCH}, 250")
e("s_cbranch_scc1 L_slow_fin")
lab("L_slow_pass")
e("s_waitcnt vmcnt(0) lgkmcnt(0)")
e("s_barrier")
e(f"s_lshl_b32 s{sT0}, s{sW}, 6")
e(f"v_add_u32 v{tid}, s{sT0}, v{vL}")
zero_lds(116, tid)
c("raw edge e = 640*ch + t (t<640)")
qD, qS, qB, qK, qR, qA = 104, 105, 106, 107, 108, 109
RC = RA; vEA = RA + 2; vI0 = VI[0]; PS0 = PS[0]
e(f"s_mul_i32 s{sT0}, s{sCH}, 2560")
e(f"s_mul_i32 s{sT1}, s{sCH}, 1280")
e(f"v_lshlrev_b32 v{vT[0]}, 2, v{tid}")
e(f"v_lshlrev_b32 v{vT[1]}, 1, v{tid}")
e(f"v_mov_b32 v{qD}, -1")
e(f"v_mov_b32 v{qS}, 0")
e(f"v_mov_b32 v{qP}, 0")
e(f"v_mov_b32 v{vEA}, 0")
e(f"v_mov_b32 v{qA}, 640")
e(f"v_cmp_gt_u32 {sp(sM0)}, v{qA}, v{tid}")
e(f"s_cmp_eq_u64 {sp(sM0)}, 0")
e("s_cbranch_scc1 L_slow_nold")
e(f"s_mov_b64 exec, {sp(sM0)}")
e(f"buffer_load_dword v{qD}, v{vT[0]}, {srd(S_DST)}, s{sT0} offen")
e(f"buffer_load_dword v{qS}, v{vT[0]}, {srd(S_SRC)}, s{sT0} offen")
e(f"buffer_load_ushort v{vEA}, v{vT[1]}, {srd(S_EA)}, s{sT1} offen")
e(f"v_add_u32 v{qA}, {PENDB}, v{tid}")
e(f"ds_read_u8 v{qP}, v{qA}")
e("s_mov_b64 exec, -1")
lab("L_slow_nold")
e("s_waitcnt vmcnt(0) lgkmcnt(0)")
e("s_barrier")
e(f"v_mul_u32_u24 v{qB}, 52429, v{qD}")
e(f"v_lshrrev_b32 v{qB}, 21, v{qB}")
e(f"v_mul_u32_u24 v{qK}, 40, v{qB}")
e(f"v_sub_u32 v{qK}, v{qD}, v{qK}")
e(f"v_cmp_eq_u32 vcc, s2, v{qB}")
e(f"s_and_b64 {sp(sM0)}, {sp(sM0)}, vcc          ; match")
e(f"s_cmp_eq_u32 s{sRETRY}, 0")
e("s_cbranch_scc1 L_slow_fresh")
e(f"v_cmp_ne_u32 vcc, 0, v{qP}")
e(f"s_and_b64 {sp(sM0)}, {sp(sM0)}, vcc")
lab("L_slow_fresh")
e(f"v_and_b32 v{qK}, 63, v{qK}")
e(f"v_min_u32 v{qK}, 39, v{qK}")
e(f"v_mul_u32_u24 v{vI0}, 52, v{qK}")
e(f"v_lshrrev_b32 v{vI0}, 8, v{vI0}           ; g")
e(f"v_mul_u32_u24 v{qA}, 5, v{vI0}")
e(f"v_sub_u32 v{qA}, v{qK}, v{qA}             ; j")
e(f"v_and_b32 v{qS}, 0x3fff, v{qS}")
e(f"v_lshl_or_b32 v{RC}, v{vI0}, 14, v{qS}")
e(f"v_lshl_or_b32 v{RC}, v{qA}, 17, v{RC}")
e(f"s_mov_b32 s{sT0}, {ALLOC}")
e(f"v_lshl_add_u32 v{qA}, v{vI0}, 2, s{sT0}")
e(f"v_mov_b32 v{vOne}, 1")
e(f"v_mov_b32 v{qP}, 0")
e(f"v_mul_u32_u24 v{qB}, 6, v{qS}")
e(f"v_and_b32 v{qB}, -4, v{qB}")
for m in MK[1:]: e(f"s_mov_b64 {sp(m)}, 0")
e(f"s_cmp_eq_u64 {sp(sM0)}, 0")
e("s_cbranch_scc1 L_slow_nom")
e(f"s_mov_b64 exec, {sp(sM0)}")
e(f"buffer_load_dwordx2 {vr(PS0,2)}, v{qB}, {srd(S_POS)}, 0 offen")
e(f"ds_add_rtn_u32 v{qR}, v{qA}, v{vOne}")
e("s_mov_b64 exec, -1")
e(f"v_mul_u32_u24 v{vI0}, {GSTR}, v{vI0}")
e("s_waitcnt lgkmcnt(0)")
s1_place(qR, vI0, qS, sM0, "s", slow=True)
lab("L_slow_nom")
e(f"v_mov_b32 v{qA}, 640")
e(f"v_cmp_gt_u32 vcc, v{qA}, v{tid}")
e("s_mov_b64 exec, vcc")
e("s_cbranch_execz L_slow_nopb")
e(f"v_add_u32 v{qA}, {PENDB}, v{tid}")
e(f"ds_write_b8 v{qA}, v{qP}")
lab("L_slow_nopb")
e("s_mov_b64 exec, -1")
e("s_branch L_st2")
lab("L_slow_fin")
c("SEG must be zero-initialised if no pass ever ran")
e(f"s_cmp_eq_u32 s{sNODE}, 0")
e("s_cbranch_scc1 L_final_bar")
for r in range(32):
    e(f"v_mov_b32 v{SEG+r}, 0")
lab("L_final_bar")
e("s_barrier")
e("s_branch L_final")

desc = f""".amdhsa_kernel {KNAME}
  .amdhsa_next_free_vgpr 128
  .amdhsa_next_free_sgpr 102
  .amdhsa_accum_offset 128
  .amdhsa_group_segment_fixed_size 0
  .amdhsa_kernarg_size 88
  .amdhsa_user_sgpr_count 2
  .amdhsa_user_sgpr_kernarg_segment_ptr 1
  .amdhsa_system_sgpr_workgroup_id_x 1
.end_amdhsa_kernel"""
body = "\n".join(x for x in out if x is not None)
final = "\n".join(header) + "\n" + body + "\n" + '.section .rodata,"a"\n.p2align 6\n' + desc + "\n"
dest = sys.argv[1] if len(sys.argv) > 1 else "standalone__cheap_equivariant_egnn__graph.s"
open(dest, "w").write(final)
print("wrote", dest, len(out), "lines")
```

```python
import sys, os
sys.path.insert(0, os.path.dirname(os.path.abspath(__file__)))
from g3common import *

KNAME = "standalone__cheap_equivariant_egnn__graph_kernel"
TIMING = os.environ.get("TIMING", "")
NOPRIO = os.environ.get("NOPRIO", "")
QSC = os.environ.get("QSC", " sc1")
FORCE = os.environ.get("FORCE", "")
NPOLL = int(os.environ.get("NPOLL", "3000"))
RSL = int(os.environ.get("RSL", "8"))
QSL = int(os.environ.get("QSL", "4"))
NSL = int(os.environ.get("NSL", "8"))
QST = int(os.environ.get("QST", "8"))
PK = int(os.environ.get("PK", "0"))
XM = int(os.environ.get("XM", "0"))
LATE = int(os.environ.get("LATE", "1"))
BSPEC = int(os.environ.get("BSPEC", "1"))
PPF = int(os.environ.get("PPF", "1"))
WSOFF = int(os.environ.get("WSOFF", "0")) << 20
TLBW = int(os.environ.get("TLBW", "0"))
EARLY = int(os.environ.get("EARLY", "0"))
PSL = int(os.environ.get("PSL", "0"))
QGATE = int(os.environ.get("QGATE", "8"))
H1W = int(os.environ.get("H1W", "2"))
FPRIO = int(os.environ.get("FPRIO", "2"))
DELTA = 600
WIN = 8192
GUARD = 800
TAGC = 0x1a5
FLC = 0x5A5AA5A5

CELLA = 0
CHB = 32000
CELLB = 4 << 20
WH2F = 12 << 20
NG = 157; NCH = 63
BIN0 = NG; WPR = NG + NCH
CAP = 136
GSTR = CAP * 64
REC = 0
QT = 8 * GSTR
BXP = QT + 65536
OWN = BXP + 16384
PTF = OWN + 10240
CTR = PTF + 640
ALLOC = CTR; OVF = CTR + 32; PEND = CTR + 36; GCNT = CTR + 40; NONCE = CTR + 44; ZERO16 = CTR + 48
SYN = CTR + 64
RISS = SYN; RCNT = SYN + 4; RCNT2 = SYN + 8; FCNT = SYN + 12; FCNT2 = SYN + 16; RCA = SYN + 20; RLAND = SYN + 24
RCB = SYN + 28; FCB = SYN + 32; FCC = SYN + 36
PENDB = CTR + 128
LDS_TOTAL = PENDB + 640
FLG = 13 << 20
assert LDS_TOTAL <= 163840
NWG = 250

S_H, S_POS, S_EA, S_SRC, S_DST, S_WX, S_O0, S_O1, S_WS, S_Q, S_WE, S_WH = [8 + 4 * i for i in range(12)]
sRW, sRQ, sRL = 56, 57, 58
sC4, sC5 = 4, 5
sW, sQ, sCT, sMODE, sT0, sT1, sT2, sT3 = range(60, 68)
sEX, sM0, sM1, sM2 = 68, 70, 72, 74
sG, sCH2, sCO, sNT, sU, sREM, sK2, sK3, sNODE, sCH, sRETRY, sB0, sB1, sGB, sRT, sROLE = range(76, 92)
sTW, sLOW, sCNT, sC = 92, 93, 94, 95
sPA, sPB = 96, 98
sX0, sX1, sX2 = 96, 97, 98
KS = 76

vL = 0
vLK, vQD, vTRQ0, vTRQ1, vTRS, vOD, vODM = 1, 2, 3, 4, 5, 6, 7
vT = list(range(8, 16))
SEG = 16; ACC = 48; FACC = 64; QF = 80; SF = 88; OHD = 96; BXF = 100; ID = 104; MP = 112; FB = 120
TE = QF
VST = 127

_st = [0]
STAMPS = os.environ.get("STAMPS", "")
STAMPS = set(int(x) for x in STAMPS.split(",")) if STAMPS else None
def stamp(name, idx=None):
    if not TIMING: return
    i = _st[0] if idx is None else idx
    if idx is None: _st[0] += 1
    if STAMPS is not None and i not in STAMPS: return
    c(f"STAMP {i} {name}")
    e(f"s_memtime s[{sC4}:{sC5}]")
    e("s_waitcnt lgkmcnt(0)")
    e(f"v_writelane_b32 v{VST}, s{sC4}, {i}")
    print("stamp", i, name)
def stamp_dyn(base, scnt, mx=11):
    if not TIMING or os.environ.get("STAMPS", ""): return
    e(f"s_memtime s[{sC4}:{sC5}]")
    e(f"s_min_u32 s3, s{scnt}, {mx}")
    e(f"s_add_u32 m0, s3, {base}")
    e("s_waitcnt lgkmcnt(0)")
    e(f"v_writelane_b32 v{VST}, s{sC4}, m0")
def stamp_flush():
    if not TIMING: return
    e(f"s_memrealtime s[{sC4}:{sC5}]")
    e("s_waitcnt lgkmcnt(0)")
    e("s_mov_b64 exec, -1")
    e(f"v_writelane_b32 v{VST}, s100, 62")
    e(f"v_writelane_b32 v{VST}, s{sC4}, 63")
    e(f"s_lshl_b32 s{sT0}, s2, 4")
    e(f"s_add_u32 s{sT0}, s{sT0}, s{sW}")
    e(f"s_lshl_b32 s{sT0}, s{sT0}, 8")
    e(f"s_add_u32 s{sT0}, s{sT0}, {32<<20}")
    e(f"v_lshlrev_b32 v{vT[1]}, 2, v{vL}")
    e(f"buffer_store_dword v{VST}, v{vT[1]}, {srd(S_WS)}, s{sT0} offen")

header = []
header.append(f"; @launch grid=({NWG},1,1) block=(1024,1,1) lds={LDS_TOTAL}")
header.append('.amdgcn_target "amdgcn-amd-amdhsa--gfx950"')
header.append(".text")
header.append(f".globl {KNAME}")
header.append(".p2align 8")
header.append(f".type {KNAME},@function")

lab(KNAME)
e(f"s_cmp_ge_u32 s2, {NWG}")
e("s_cbranch_scc1 L_end2")
e("s_memrealtime s[6:7]")
if TIMING:
    e("s_memrealtime s[100:101]")
if TIMING:
    e(f"v_mov_b32 v{VST}, 0")
stamp("entry")
e(f"s_load_dwordx16 s[{KS}:{KS+15}], s[0:1], 0")
e(f"s_load_dwordx2 s[{S_WS}:{S_WS+1}], s[0:1], 80")
e(f"s_load_dwordx2 s[{S_O0}:{S_O0+1}], s[0:1], 64")
tid = vT[7]
e(f"v_mov_b32 v{tid}, v0")
e(f"v_lshrrev_b32 v{vT[0]}, 6, v0")
e(f"v_and_b32 v{vL}, 63, v0")
e(f"v_readfirstlane_b32 s{sW}, v{vT[0]}")
for (x, sz) in [(S_H,2560000),(S_POS,60000),(S_EA,320000),(S_SRC,640000),(S_DST,640000),(S_WX,256),(S_O0,2560000),(S_O1,60000),
                (S_WS,256*1048576-WSOFF),(S_Q,2560000),(S_WE,66048),(S_WH,65536)]:
    e(f"s_mov_b32 s{x+2}, {sz}")
    e(f"s_mov_b32 s{x+3}, 0x20000")
e(f"s_lshr_b32 s{sQ}, s{sW}, 2")
e(f"s_and_b32 s{sCT}, s{sW}, 3")
e(f"s_and_b32 s{sRW}, s{sW}, 7")
e(f"s_and_b32 s{sRQ}, s{sQ}, 1")
e(f"s_mov_b32 s{sMODE}, 0")
e(f"s_mov_b32 s{sRL}, 0")
def kernarg_copy():
    for (x, k) in [(S_H,0),(S_POS,2),(S_EA,4),(S_SRC,6),(S_DST,8),(S_WE,10),(S_WX,12),(S_WH,14)]:
        e(f"s_mov_b64 s[{x}:{x+1}], s[{KS+k}:{KS+k+1}]")
    if WSOFF:
        e(f"s_add_u32 s{S_WS}, s{S_WS}, {WSOFF}")
        e(f"s_addc_u32 s{S_WS+1}, s{S_WS+1}, 0")
    e(f"s_add_u32 s{S_O1}, s{S_O0}, 2560000")
    e(f"s_addc_u32 s{S_O1+1}, s{S_O0+1}, 0")
    e(f"s_add_u32 s{S_Q}, s{S_WS}, {QOFF}")
    e(f"s_addc_u32 s{S_Q+1}, s{S_WS+1}, 0")
    e(f"s_mov_b32 s{sTW}, s6")

vSL = 16; vTRP = 17; vRA = 18; vRD = 19; vST = 20; vU0 = 21; vU1 = 22
def slice_lane(dst, sct):
    e(f"v_lshrrev_b32 v{dst}, 2, v{vL}")
    e(f"v_lshlrev_b32 v{dst}, 8, v{dst}")
    e(f"v_and_b32 v{vU0}, 3, v{vL}")
    e(f"v_lshl_add_u32 v{dst}, v{vU0}, 4, v{dst}")
    e(f"s_lshl_b32 s{sT0}, s{sct}, 6")
    e(f"v_add_u32 v{dst}, s{sT0}, v{dst}")
def trpat(dst, t0, t1):
    e(f"v_lshrrev_b32 v{t0}, 5, v{vL}")
    e(f"v_bfe_u32 v{t1}, v{vL}, 2, 2")
    e(f"v_lshl_add_u32 v{dst}, v{t0}, 3, v{t1}")
    e(f"v_lshlrev_b32 v{dst}, 6, v{dst}")
    e(f"v_bfe_u32 v{t0}, v{vL}, 4, 1")
    e(f"v_lshl_add_u32 v{dst}, v{t0}, 5, v{dst}")
    e(f"v_and_b32 v{t0}, 3, v{vL}")
    e(f"v_lshl_add_u32 v{dst}, v{t0}, 3, v{dst}")
def row_addr(dst, vrow, vhi, tmp, base=OWN):
    e(f"v_and_b32 v{tmp}, 15, v{vrow}")
    e(f"v_xor_b32 v{tmp}, v{tmp}, v{vhi}")
    e(f"v_lshlrev_b32 v{tmp}, 4, v{tmp}")
    e(f"v_lshl_add_u32 v{dst}, v{vrow}, 8, v{tmp}")
    e(f"v_add_u32 v{dst}, {base}, v{dst}")

Z = 24
for i in range(4): e(f"v_mov_b32 v{Z+i}, 0")
c("wave 0: zero the counters (128 B), then B0")
e(f"s_cmp_eq_u32 s{sW}, 0")
e("s_cbranch_scc0 L_b0")
e(f"v_lshlrev_b32 v{vT[0]}, 4, v{vL}")
e(f"v_add_u32 v{vT[0]}, {CTR}, v{vT[0]}")
e("s_mov_b64 exec, 0xff")
e(f"ds_write_b128 v{vT[0]}, {vr(Z,4)}")
e("s_mov_b64 exec, -1")
e("s_waitcnt lgkmcnt(0)")
lab("L_b0")
e("s_barrier")
vA_ = 23
_sy = [0]
def arrive(addr):
    e(f"v_mov_b32 v{vA_}, {addr}")
    e(f"v_mov_b32 v{vU1}, 1")
    e("s_mov_b64 exec, 1")
    e(f"ds_add_u32 v{vA_}, v{vU1}")
    e("s_mov_b64 exec, -1")
def wait_cnt(addr, n, nz=False, dst=None):
    i = _sy[0]; _sy[0] += 1
    d = dst if dst is not None else sT0
    e(f"v_mov_b32 v{vA_}, {addr}")
    lab(f"L_sy{i}")
    e(f"ds_read_b32 v{vU1}, v{vA_}")
    e("s_waitcnt lgkmcnt(0)")
    e(f"v_readfirstlane_b32 s{d}, v{vU1}")
    if nz: e(f"s_cmp_lg_u32 s{d}, 0")
    else:  e(f"s_cmp_ge_u32 s{d}, {n}")
    e(f"s_cbranch_scc1 L_syd{i}")
    e("s_sleep 1")
    e(f"s_branch L_sy{i}")
    lab(f"L_syd{i}")
e(f"s_cmp_ge_u32 s{sW}, 8")
e("s_cbranch_scc1 L_front")
def lane_consts():
    e(f"s_lshr_b32 s{sG}, s{sW}, 1")
    e(f"s_and_b32 s{sCH2}, s{sW}, 1")
    e(f"s_mul_i32 s{sGB}, s{sG}, {GSTR}")
    e(f"s_lshl_b32 s{sB0}, s{sW}, 12")
    e(f"s_add_u32 s{sB0}, s{sB0}, {QT}")
    e(f"s_add_u32 s{sB1}, s{sB0}, 2048")
    c("lane constants (REC rows swizzled: 16-B chunk c of row with rank p at position c ^ ((p>>2)&3))")
    e(f"v_lshrrev_b32 v{vT[3]}, 5, v{vL}           ; hi")
    e(f"v_lshrrev_b32 v{vT[4]}, 3, v{vL}")
    e(f"v_lshlrev_b32 v{vLK}, 6, v{vT[4]}")
    e(f"v_xor_b32 v{vT[4]}, 1, v{vT[3]}")
    e(f"v_lshl_add_u32 v{vLK}, v{vT[4]}, 4, v{vLK}")
    e(f"s_add_u32 s{sT0}, s{sGB}, {REC}")
    e(f"v_add_u32 v{vLK}, s{sT0}, v{vLK}")
    e(f"v_and_b32 v{vT[5]}, 7, v{vL}")
    e(f"v_bfe_u32 v{vT[6]}, v{vL}, 4, 1")
    e(f"v_lshlrev_b32 v{vT[4]}, 2, v{vT[6]}")
    e(f"v_xor_b32 v{vT[5]}, v{vT[5]}, v{vT[4]}")
    e(f"v_lshlrev_b32 v{vQD}, 4, v{vT[5]}")
    e(f"s_lshl_b32 s{sT1}, s{sCH2}, 7")
    e(f"v_add_u32 v{vQD}, s{sT1}, v{vQD}            ; ch*128 + (((l&7) ^ 4*((l>>4)&1))<<4)")
    c("vT6 = colhalf ; r = (l>>2)&3 ; c4 = l&3")
    e(f"v_bfe_u32 v{vT[4]}, v{vL}, 2, 2            ; r")
    e(f"v_and_b32 v{vT[5]}, 3, v{vL}")
    e(f"v_lshlrev_b32 v{vT[2]}, 5, v{vT[6]}")
    e(f"v_lshl_add_u32 v{vT[2]}, v{vT[5]}, 3, v{vT[2]}   ; colhalf*32 + c4*8")
    e(f"v_lshl_add_u32 v{vTRQ0}, v{vT[3]}, 3, v{vT[4]}   ; 8hi + r")
    e(f"v_lshl_add_u32 v{vTRQ0}, v{vTRQ0}, 7, v{vT[2]}")
    e(f"v_bfe_u32 v{vT[5]}, v{vL}, 3, 1            ; (r>>1)&1")
    e(f"v_lshl_add_u32 v{vTRQ0}, v{vT[5]}, 6, v{vTRQ0}")
    e(f"v_add_u32 v{vTRQ0}, s{sB0}, v{vTRQ0}")
    e(f"v_xor_b32 v{vTRQ1}, 64, v{vTRQ0}")
    c("vTRS = REC + g*GSTR + (4hi + r)*64 + ((colhalf*32 + c4*8) ^ (hi<<4))")
    e(f"v_lshlrev_b32 v{vT[5]}, 4, v{vT[3]}")
    e(f"v_xor_b32 v{vT[2]}, v{vT[2]}, v{vT[5]}")
    e(f"v_lshl_add_u32 v{vTRS}, v{vT[3]}, 2, v{vT[4]}    ; 4hi + r")
    e(f"v_lshl_add_u32 v{vTRS}, v{vTRS}, 6, v{vT[2]}")
    e(f"v_add_u32 v{vTRS}, s{sT0}, v{vTRS}")
    c("OHD: lanes 0..15 and 48..63 read chunk 0 of row (l&15) at position (row>>2)&3; others read ZERO16")
    e(f"v_and_b32 v{vT[4]}, 15, v{vL}")
    e(f"v_bfe_u32 v{vT[5]}, v{vL}, 2, 2")
    e(f"v_lshlrev_b32 v{vT[4]}, 6, v{vT[4]}")
    e(f"v_lshl_add_u32 v{vT[4]}, v{vT[5]}, 4, v{vT[4]}")
    e(f"v_add_u32 v{vT[4]}, s{sT0}, v{vT[4]}")
    e(f"v_cmp_eq_u32 vcc, v{vT[3]}, v{vT[6]}")
    e(f"v_mov_b32 v{vT[5]}, {ZERO16}")
    e(f"v_cndmask_b32 v{vOD}, v{vT[5]}, v{vT[4]}, vcc")
    e(f"v_mov_b32 v{vT[4]}, 1024")
    e(f"v_cndmask_b32 v{vODM}, 0, v{vT[4]}, vcc")
    e(f"s_mov_b32 s{sNODE}, 1")
RA = 48; RB = 52; vGA = 88
PS = [56, 58, 60, 62]
VI = [80, 81, 82, 83]
VR = [84, 85, 86, 87]
vOne = 89
qP = 90
MK = [sM0, sM1, sPA, sPB]
if not NOPRIO: e("s_setprio 2")
c("zero REC tail (4096 B, threads 256..511)")
e(f"v_lshlrev_b32 v{vT[0]}, 4, v{tid}")
e(f"v_add_u32 v{vT[1]}, {65536 - 4096}, v{vT[0]}")
e(f"v_cmp_lt_u32 vcc, 255, v{tid}")
e("s_mov_b64 exec, vcc")
e(f"s_cbranch_execz L_notail")
e(f"ds_write_b128 v{vT[1]}, {vr(Z,4)}")
lab("L_notail")
e("s_mov_b64 exec, -1")
e(f"s_cmp_ge_u32 s2, {BIN0}")
e("s_cbranch_scc1 L_notgemm")

AF = 24; BF = 56; D0 = 88
def gemm_role(tag, blk, fb):
    slice_lane(vSL, sCT)
    c("rows DMA lane offset: row = 8w + 4i + (l>>4); chunk = (l&15) ^ (row&15)")
    e(f"v_lshrrev_b32 v{vU0}, 4, v{vL}")
    e(f"v_and_b32 v{vU1}, 15, v{vL}")
    e(f"v_xor_b32 v{vU1}, v{vU1}, v{vU0}")
    e(f"s_and_b32 s{sT0}, s{sRW}, 1")
    e(f"s_lshl_b32 s{sT0}, s{sT0}, 3")
    e(f"v_xor_b32 v{vU1}, s{sT0}, v{vU1}")
    e(f"v_lshlrev_b32 v{vU1}, 4, v{vU1}")
    e(f"v_lshl_add_u32 v{vRA}, v{vU0}, 8, v{vU1}")
    e(f"v_xor_b32 v{vRD}, 64, v{vRA}")
    e(f"s_lshl_b32 s{sT0}, s{sCT}, 13")
    e(f"s_lshl_b32 s{sT1}, s{sRQ}, 12")
    e(f"s_add_u32 s{sT0}, s{sT0}, s{sT1}")
    e(f"s_add_u32 s{sT0}, s{sT0}, {QT}")
    e(f"s_lshl_b32 s{sT1}, s{sRQ}, 14")
    e(f"s_add_u32 s{sT1}, s{sT1}, 32768")
    e(f"s_lshl_b32 s{sT3}, s{sRW}, 11")
    e(f"s_lshl_b32 s{sX0}, s{blk}, 14")
    e(f"s_add_u32 s{sX0}, s{sX0}, s{sT3}           ; (64r + 8w)*256")
    if not fb:
        e("s_waitcnt lgkmcnt(0)")
        stamp("kernarg", 1)
        kernarg_copy()
    e(f"s_add_u32 m0, s{sT3}, {QT+32768}")
    e(f"s_add_u32 s{sX1}, s{sX0}, 1024")
    e(f"buffer_load_dwordx4 v{vRA}, {srd(S_H)}, s{sX0} offen lds")
    e(f"s_add_u32 m0, s{sT3}, {QT+32768+1024}")
    e(f"s_nop 0")
    e(f"buffer_load_dwordx4 v{vRD}, {srd(S_H)}, s{sX1} offen lds")
    for i in range(4):
        e(f"s_add_u32 m0, s{sT0}, {i*1024}")
        e(f"s_add_u32 s{sT2}, s{sT1}, {i*4096}")
        e(f"buffer_load_dwordx4 v{vSL}, {srd(S_WE)}, s{sT2} offen lds")
    if not fb:
        if not LATE: arrive(RISS)
        stamp("role loads issued", 2)
    c("compute: all 8 waves, rb = w>>2, ct = w&3 : 32 rows x 32 cols")
    trpat(vTRP, vU0, vU1)
    e(f"s_lshl_b32 s{sT0}, s{sCT}, 13")
    e(f"s_add_u32 s{sT0}, s{sT0}, {QT}")
    e(f"v_add_u32 v{vTRP}, s{sT0}, v{vTRP}")
    c("row read address: QT+32768 + (rb*32+n)*256 + ((hi ^ (n&15))<<4) ^ (s<<5)")
    e(f"v_and_b32 v{vU0}, 31, v{vL}")
    e(f"v_lshrrev_b32 v{vU1}, 5, v{vL}")
    e(f"v_and_b32 v{vRD}, 15, v{vL}")
    e(f"v_xor_b32 v{vRD}, v{vRD}, v{vU1}")
    e(f"v_lshlrev_b32 v{vRD}, 4, v{vRD}")
    e(f"v_lshl_add_u32 v{vRD}, v{vU0}, 8, v{vRD}")
    e(f"s_lshl_b32 s{sT0}, s{sRQ}, 13")
    e(f"s_add_u32 s{sT0}, s{sT0}, {QT+32768}")
    e(f"v_add_u32 v{vRD}, s{sT0}, v{vRD}")
    c("out tile (2 KB per wave) write addr: OB + n*64 + ((bb ^ ((n>>2)&3))<<4) + hi*8")
    e(f"s_lshl_b32 s{sT0}, s{sRW}, 11")
    e(f"s_add_u32 s{sT0}, s{sT0}, {QT+49152}")
    e(f"v_bfe_u32 v{vRA}, v{vL}, 2, 2")
    e(f"v_lshlrev_b32 v{vRA}, 4, v{vRA}")
    e(f"v_lshl_add_u32 v{vRA}, v{vU0}, 6, v{vRA}")
    e(f"v_lshl_add_u32 v{vRA}, v{vU1}, 3, v{vRA}")
    e(f"v_add_u32 v{vRA}, s{sT0}, v{vRA}")
    c("out tile read addr: OB + (r + 16i)*64 + ((q ^ ((r>>2)&3))<<4), r = l>>2, q = l&3 ; store: row*256 + ct*64 + q*16")
    e(f"v_lshrrev_b32 v{vU0}, 2, v{vL}")
    e(f"v_and_b32 v{vU1}, 3, v{vL}")
    e(f"v_bfe_u32 v{vSL}, v{vL}, 4, 2")
    e(f"v_xor_b32 v{vSL}, v{vSL}, v{vU1}")
    e(f"v_lshlrev_b32 v{vSL}, 4, v{vSL}")
    e(f"v_lshl_add_u32 v{vSL}, v{vU0}, 6, v{vSL}")
    e(f"v_add_u32 v{vSL}, s{sT0}, v{vSL}")
    e(f"v_lshlrev_b32 v{vST}, 4, v{vU1}")
    e(f"v_lshl_add_u32 v{vST}, v{vU0}, 8, v{vST}")
    e(f"s_lshl_b32 s{sT0}, s{blk}, 14")
    e(f"s_lshl_b32 s{sT1}, s{sRQ}, 13")
    e(f"s_add_u32 s{sT0}, s{sT0}, s{sT1}")
    e(f"s_lshl_b32 s{sT1}, s{sCT}, 6")
    e(f"s_add_u32 s{sC}, s{sT0}, s{sT1}")
    e("s_waitcnt vmcnt(0) lgkmcnt(0)")
    if not fb: stamp("role loads landed", 3)
    if fb:
        e("s_barrier")
    else:
        arrive(RCNT)
        if LATE: arrive(RISS)
        wait_cnt(RCNT, 8)
        stamp("B1", 4)
    for s_ in range(8):
        e(f"v_xor_b32 v{vU0}, {s_<<5}, v{vRD}")
        e(f"ds_read_b128 {vr(BF+4*s_,4)}, v{vU0}")
        e(f"ds_read_b64_tr_b16 {vr(AF+4*s_,2)}, v{vTRP} offset:{s_*1024}")
        e(f"ds_read_b64_tr_b16 {vr(AF+4*s_+2,2)}, v{vTRP} offset:{s_*1024+256}")
    for s_ in range(8):
        e(f"s_waitcnt lgkmcnt({min(15, 21-3*s_)})")
        mfma(D0, AF+4*s_, BF+4*s_, "0" if s_ == 0 else vr(D0,16))
    if not fb: arrive(RCA)
    e(f"s_mov_b32 s{sT1}, 0x{NLOG2E:08x}")
    e("s_nop 7")
    e("s_nop 3")
    for bb in range(4):
        r0 = D0 + 4*bb
        for i in range(4):
            e(f"v_mul_f32 v{r0+i}, s{sT1}, v{r0+i}")
        e(f"v_cvt_pk_bf16_f32 v{r0}, v{r0}, v{r0+1}")
        e(f"v_cvt_pk_bf16_f32 v{r0+1}, v{r0+2}, v{r0+3}")
        e(f"v_xor_b32 v{vU0}, {bb<<4}, v{vRA}")
        e(f"ds_write_b64 v{vU0}, {vr(r0,2)}")
    e("s_waitcnt lgkmcnt(0)")
    for i in range(2):
        e(f"ds_read_b128 {vr(AF+4*i,4)}, v{vSL} offset:{i*1024}")
    e(f"s_add_u32 s{sT1}, s{sC}, 4096")
    for i in range(2):
        e(f"s_waitcnt lgkmcnt({1-i})")
        e(f"buffer_store_dwordx4 {vr(AF+4*i,4)}, v{vST}, {srd(S_Q)}, s{[sC,sT1][i]} offen sc1")
    if not fb: stamp("role stores issued", 5)

gemm_role("", 2, False)
e(f"s_mov_b32 s{sRL}, 8")
e(f"s_lshl_b32 s{sX1}, s2, 2")
e(f"s_add_u32 s{sX1}, s{sX1}, {FLG}")
e(f"s_mov_b64 {sp(sM0)}, 1")
e("s_branch L_rfront")

lab("L_notgemm")
e(f"s_cmp_ge_u32 s2, {WPR}")
e("s_cbranch_scc1 L_notbin")
c("binning chunk c = wg - 157: edges e = 2560c + 512i + t ; LDS image: cell b at QT + b*128 (+32000 for ranks 16..31), 8-B records")
NE = 5
CNT = QT + 64000
vD = 24; vS = 29; vB = 34; vR = 39; vP = 44; vE = 54; vE2 = 55; vOne_ = 56; vK = 57; vG_ = 58
e(f"s_sub_u32 s{sC}, s2, {BIN0}")
e(f"s_mul_i32 s{sT0}, s{sC}, {2560*4}")
e(f"v_lshlrev_b32 v{vE}, 2, v{tid}")
e(f"v_lshlrev_b32 v{vE2}, 1, v{tid}")
c("zero counters")
e(f"v_mov_b32 v{vU1}, 0")
e(f"v_mov_b32 v{vOne_}, 1")
e(f"v_cmp_gt_u32 vcc, 250, v{tid}")
e(f"s_mov_b64 exec, vcc")
e(f"v_add_u32 v{vU0}, {CNT}, v{vE}")
e(f"ds_write_b32 v{vU0}, v{vU1}")
e(f"s_mov_b64 exec, -1")
e(f"s_add_u32 s{sT2}, s{sT0}, 4096")
e(f"s_add_u32 s{sT1}, s{sT0}, 8192")
e(f"s_lshr_b32 s{sX0}, s{sT0}, 1")
e(f"s_add_u32 s{sX1}, s{sX0}, 4096")
e("s_waitcnt lgkmcnt(0)")
stamp("kernarg", 1)
kernarg_copy()
def soff(i): return [sT0, sT0, sT2, sT2, sT1][i], (i & 1) * 2048 if i < 4 else 0
for i in range(NE):
    so, of = soff(i)
    e(f"buffer_load_dword v{vD+i}, v{vE}, {srd(S_DST)}, s{so} offen offset:{of}")
for i in range(NE):
    so, of = soff(i)
    e(f"buffer_load_dword v{vS+i}, v{vE}, {srd(S_SRC)}, s{so} offen offset:{of}")
for i in range(NE):
    so = sX0 if i < 4 else sX1
    e(f"buffer_load_ushort v{vP+2*i+1}, v{vE2}, {srd(S_EA)}, s{so} offen offset:{(i & 3) * 1024 if i < 4 else 0}")
if not LATE: arrive(RISS)
arrive(RCNT)
stamp("role loads issued", 2)
c("validity: e < 160000  <=> byte offset < 640000")
e(f"v_add_u32 v{vE}, s{sT0}, v{vE}")
e(f"s_mov_b32 s{sX0}, {CNT}")
e(f"s_mov_b32 s{sX1}, {QT}")
wait_cnt(RCNT, 8, dst=sX2)
stamp("B1", 4)
for i in range(NE):
    e(f"s_waitcnt vmcnt({3*NE-1-i})")
    e(f"v_mul_u32_u24 v{vB+i}, 52429, v{vD+i}")
    e(f"v_lshrrev_b32 v{vB+i}, 21, v{vB+i}")
    e(f"v_lshl_add_u32 v{vU0}, v{vB+i}, 2, s{sX0}")
    e(f"v_mov_b32 v{vK}, {640000 - i*2048}")
    e(f"v_cmp_gt_u32 vcc, v{vK}, v{vE}")
    e(f"s_mov_b64 exec, vcc")
    e(f"ds_add_rtn_u32 v{vR+i}, v{vU0}, v{vOne_}")
    e(f"s_mov_b64 exec, -1")
    e(f"v_mul_u32_u24 v{vK}, 40, v{vB+i}")
    e(f"v_sub_u32 v{vD+i}, v{vD+i}, v{vK}       ; k")
    e(f"v_lshl_add_u32 v{vB+i}, v{vB+i}, 7, s{sX1}")
    e(f"v_mul_u32_u24 v{vG_}, 52, v{vD+i}")
    e(f"v_lshrrev_b32 v{vG_}, 8, v{vG_}           ; g = k/5")
    e(f"v_mul_u32_u24 v{vK}, 5, v{vG_}")
    e(f"v_sub_u32 v{vK}, v{vD+i}, v{vK}        ; j")
    e(f"v_lshl_or_b32 v{vD+i}, v{vK}, 3, v{vG_}       ; g | j<<3")
    e(f"v_or_b32 v{vD+i}, 64, v{vD+i}                ; valid")
for i in range(NE):
    e(f"s_waitcnt vmcnt({2*NE-1-i})")
    e(f"v_lshl_or_b32 v{vP+2*i}, v{vD+i}, 14, v{vS+i}    ; rec")
e("s_waitcnt vmcnt(0) lgkmcnt(0)")
if LATE: arrive(RISS)
stamp("role loads landed", 3)
for i in range(NE):
    e(f"v_and_b32 v{vU0}, 15, v{vR+i}")
    e(f"v_lshrrev_b32 v{vU1}, 4, v{vR+i}")
    e(f"v_lshl_add_u32 v{vU0}, v{vU0}, 3, v{vB+i}")
    e(f"v_mul_u32_u24 v{vU1}, {CHB}, v{vU1}")
    e(f"v_add_u32 v{vU0}, v{vU0}, v{vU1}")
    e(f"v_cmp_gt_u32 vcc, 32, v{vR+i}")
    e(f"v_mov_b32 v{vK}, {640000 - i*2048}")
    e(f"v_cmp_gt_u32 {sp(sM0)}, v{vK}, v{vE}")
    e(f"s_and_b64 exec, vcc, {sp(sM0)}")
    e(f"ds_write_b64 v{vU0}, {vr(vP+2*i,2)}")
    e(f"s_mov_b64 exec, -1")
e("s_waitcnt lgkmcnt(0)")
arrive(RCNT2)
wait_cnt(RCNT2, 8, dst=sX2)
stamp("B2", 6)
c("copy-out: granule x = t + 512i (<2000): cell b = x>>3, q = x&7")
GA = 24; vCn = 40; vR0 = 44; vX = 45; vF = 46; vY = 47; vXL = 52
e(f"v_lshlrev_b32 v{vX}, 4, v{tid}               ; x*16 (i=0)")
e(f"v_lshrrev_b32 v{vY}, 3, v{tid}")
e(f"v_lshl_add_u32 v{vY}, v{vY}, 2, s{sX0}")
e(f"v_add_u32 v{vXL}, {QT}, v{vX}")
for i in range(4):
    if i == 3:
        e(f"v_cmp_gt_u32 vcc, {2000-1536}, v{tid}")
        e("s_mov_b64 exec, vcc")
    e(f"ds_read_b128 {vr(GA+4*i,4)}, v{vXL} offset:{i*8192}")
    e(f"ds_read_b32 v{vCn+i}, v{vY} offset:{i*256}")
e("s_mov_b64 exec, -1")
e(f"v_and_b32 v{vR0}, 7, v{tid}")
e(f"v_lshlrev_b32 v{vR0}, 1, v{vR0}              ; r0 = 2q")
e(f"s_mul_i32 s{sT0}, s{sC}, {CHB}")
e(f"s_bfe_u32 s{sT1}, s{sTW}, {3 | (9<<16)}")
e(f"s_xor_b32 s{sT1}, s{sT1}, {TAGC}")
e(f"s_lshl_b32 s{sT1}, s{sT1}, 23")
def granule(G, cn, r0off, so, ioff):
    e(f"v_mov_b32 v{vF}, s{sT1}")
    e(f"v_cmp_lt_u32 vcc, 16, v{cn}")
    e(f"v_cndmask_b32 v{vU0}, 0, 1, vcc")
    e(f"v_lshl_or_b32 v{vF}, v{vU0}, 21, v{vF}")
    e(f"v_cmp_lt_u32 vcc, 32, v{cn}")
    e(f"v_cndmask_b32 v{vU0}, 0, 1, vcc")
    e(f"v_lshl_or_b32 v{vF}, v{vU0}, 22, v{vF}")
    e(f"v_add_u32 v{vU0}, {r0off}, v{vR0}")
    e(f"v_cmp_lt_u32 vcc, v{vU0}, v{cn}")
    e(f"v_cndmask_b32 v{G}, 0, v{G}, vcc")
    e(f"v_add_u32 v{vU0}, 1, v{vU0}")
    e(f"v_cmp_lt_u32 vcc, v{vU0}, v{cn}")
    e(f"v_cndmask_b32 v{G+2}, 0, v{G+2}, vcc")
    e(f"v_and_b32 v{G+1}, 0xffff, v{G+1}")
    e(f"v_lshl_or_b32 v{vU0}, v{G+3}, 16, v{G+1}      ; d2")
    e(f"v_or_b32 v{G+1}, v{G+2}, v{vF}                ; d1")
    e(f"v_or_b32 v{G}, v{G}, v{vF}                    ; d0")
    e(f"v_mov_b32 v{G+2}, v{vU0}")
    e(f"v_mov_b32 v{G+3}, s{sTW}")
    e(f"buffer_store_dwordx4 {vr(G,4)}, v{vX}, {srd(S_WS)}, s{so} offen sc1")
for i in range(4):
    if i == 3:
        e(f"v_cmp_gt_u32 vcc, {2000-1536}, v{tid}")
        e(f"s_mov_b64 {sp(sM1)}, vcc")
        e(f"s_mov_b64 exec, vcc")
    e(f"s_waitcnt lgkmcnt({2*(3-i)})")
    granule(GA+4*i, vCn+i, 0, sT0, i)
    e(f"s_add_u32 s{sT0}, s{sT0}, 8192")
e("s_mov_b64 exec, -1")
stamp("role stores issued", 5)
c("B lines (ranks 16..31) for cells with count > 16")
e(f"s_mul_i32 s{sT0}, s{sC}, {CHB}")
e(f"s_add_u32 s{sT0}, s{sT0}, {CELLB}")
for i in range(4):
    e(f"v_cmp_lt_u32 vcc, 16, v{vCn+i}")
    if i == 3:
        e(f"s_and_b64 vcc, vcc, {sp(sM1)}")
    e("s_mov_b64 exec, vcc")
    e(f"s_cbranch_execz L_nob{i}")
    e(f"ds_read_b128 {vr(48,4)}, v{vXL} offset:{CHB+i*8192}")
    e("s_waitcnt lgkmcnt(0)")
    granule(48, vCn+i, 16, sT0, i)
    e("s_nop 1")
    lab(f"L_nob{i}")
    e("s_mov_b64 exec, -1")
    e(f"s_add_u32 s{sT0}, s{sT0}, 8192")
arrive(RCA)
e("s_branch L_rfront")

lab("L_notbin")
def wprep_role(tag, fb):
    slice_lane(vSL, sCT)
    e(f"s_lshl_b32 s{sT2}, s{sCT}, 13")
    e(f"s_add_u32 s{sT2}, s{sT2}, {QT}")
    trpat(vTRP, vU0, vU1)
    e(f"v_add_u32 v{vTRP}, s{sT2}, v{vTRP}")
    e(f"v_lshlrev_b32 v{vST}, 4, v{vL}")
    for i in range(8):
        e(f"s_add_u32 m0, s{sT2}, {i*1024}")
        e(f"s_mov_b32 s{sT1}, {32768 + i*4096}")
        e(f"buffer_load_dwordx4 v{vSL}, {srd(S_WH)}, s{sT1} offen lds")
    e(f"s_lshl_b32 s{sC}, s{sCT}, 13")
    e(f"s_add_u32 s{sC}, s{sC}, {WH2F}")
    e("s_waitcnt vmcnt(0)")
    for s_ in range(8):
        e(f"ds_read_b64_tr_b16 {vr(AF+4*s_,2)}, v{vTRP} offset:{s_*1024}")
        e(f"ds_read_b64_tr_b16 {vr(AF+4*s_+2,2)}, v{vTRP} offset:{s_*1024+256}")
    for s_ in range(8):
        if s_ == 4:
            e(f"s_add_u32 s{sC}, s{sC}, 4096")
        e(f"s_waitcnt lgkmcnt({2*(7-s_)})")
        e(f"buffer_store_dwordx4 {vr(AF+4*s_,4)}, v{vST}, {srd(S_WS)}, s{sC} offen offset:{(s_%4)*1024} sc1")
e("s_waitcnt lgkmcnt(0)")
stamp("kernarg", 1)
kernarg_copy()
arrive(RISS)
c("workgroups WPR..WPR+3: slice ct = wg - WPR of WH2 ; wave w converts k-step w")
e(f"s_sub_u32 s{sC}, s2, {WPR}")
e(f"s_cmp_ge_u32 s{sC}, 4")
e("s_cbranch_scc1 L_norole")
slice_lane(vSL, sC)
trpat(vTRP, vU0, vU1)
e(f"s_lshl_b32 s{sT2}, s{sW}, 10")
e(f"s_add_u32 s{sT2}, s{sT2}, {QT}")
e(f"v_add_u32 v{vTRP}, s{sT2}, v{vTRP}")
e(f"v_lshlrev_b32 v{vST}, 4, v{vL}")
e(f"s_lshl_b32 s{sT1}, s{sW}, 12")
e(f"s_add_u32 s{sT1}, s{sT1}, 32768")
e(f"s_mov_b32 m0, s{sT2}")
e(f"s_lshl_b32 s{sT3}, s{sC}, 13")
e(f"buffer_load_dwordx4 v{vSL}, {srd(S_WH)}, s{sT1} offen lds")
e(f"s_lshl_b32 s{sT0}, s{sW}, 10")
e(f"s_add_u32 s{sT3}, s{sT3}, s{sT0}")
e(f"s_add_u32 s{sT3}, s{sT3}, {WH2F}")
e("s_waitcnt vmcnt(0)")
e(f"ds_read_b64_tr_b16 {vr(AF,2)}, v{vTRP}")
e(f"ds_read_b64_tr_b16 {vr(AF+2,2)}, v{vTRP} offset:256")
e("s_waitcnt lgkmcnt(0)")
e(f"buffer_store_dwordx4 {vr(AF,4)}, v{vST}, {srd(S_WS)}, s{sT3} offen sc1")
e(f"s_mov_b32 s{sRL}, 8")
e(f"s_lshl_b32 s{sX1}, s{sC}, 2")
e(f"s_add_u32 s{sX1}, s{sX1}, {FLG + NG*4}")
e(f"s_mov_b64 {sp(sM0)}, 1")
e(f"s_cmp_eq_u32 s{sC}, 3")
e(f"s_cselect_b64 {sp(sM0)}, 15, {sp(sM0)}")
lab("L_norole")
arrive(RCA)
lab("L_rfront")
c("R waves after the role: H1 (quad 0: nodes 0..31, quad 1: nodes 32..39); WH1 slices staged in QT (ct*8192)")
WF = 16
D1 = 96
vR2 = 114
def rowreg(s_): return (ACC + 4*s_) if s_ < 4 else (QF + 4*(s_-4))
slice_lane(vT[2], sCT)
e(f"s_lshl_b32 s{sT2}, s{sCT}, 13")
e(f"s_add_u32 s{sT2}, s{sT2}, {QT}")
e(f"s_lshl_b32 s{sT3}, s{sRQ}, 12")
e(f"s_add_u32 s{sT3}, s{sT3}, s{sT2}          ; + half*4096")
e(f"s_lshl_b32 s{sX0}, s{sRQ}, 14")
wait_cnt(RCA, 8, dst=sX2)
for i in range(4):
    e(f"s_add_u32 m0, s{sT3}, {i*1024}")
    e(f"s_add_u32 s{sT1}, s{sX0}, {i*4096}")
    e(f"buffer_load_dwordx4 v{vT[2]}, {srd(S_WH)}, s{sT1} offen lds")
stamp("h1 dma", 7)
c("signal: the last of the role's waves writes the flag(s) once all stores are complete")
e(f"s_mov_b32 s{sC}, 0")
e(f"s_cmp_eq_u32 s{sRL}, 0")
e("s_cbranch_scc1 L_nosig")
e("s_waitcnt vmcnt(4)")
e(f"v_mov_b32 v{vU0}, {GCNT}")
e(f"v_mov_b32 v{vU1}, 1")
e("s_mov_b64 exec, 1")
e(f"ds_add_rtn_u32 v{vRA}, v{vU0}, v{vU1}")
e("s_waitcnt lgkmcnt(0)")
e("s_mov_b64 exec, -1")
e(f"v_readfirstlane_b32 s{sT0}, v{vRA}")
e(f"s_xor_b32 s{sT1}, s{sTW}, {FLC}")
e(f"v_mov_b32 v{vU1}, s{sT1}")
e(f"v_lshlrev_b32 v{vU0}, 2, v{vL}")
e(f"s_add_u32 s{sT0}, s{sT0}, 1")
e(f"s_cmp_eq_u32 s{sT0}, s{sRL}")
e(f"s_cbranch_scc0 L_nosig")
e(f"s_mov_b64 exec, {sp(sM0)}")
e(f"buffer_store_dword v{vU1}, v{vU0}, {srd(S_WS)}, s{sX1} offen sc1")
e("s_mov_b64 exec, -1")
e(f"s_mov_b32 s{sC}, 1")
lab("L_nosig")
stamp("role signalled", 6)
if not NOPRIO: e("s_setprio 0")
e(f"s_mov_b32 s{sX0}, s{sT2}")
lane_consts()
trpat(vT[6], vT[0], vT[1])
e(f"v_add_u32 v{vT[6]}, s{sX0}, v{vT[6]}")
e(f"v_lshrrev_b32 v{vT[3]}, 5, v{vL}           ; hi")
e(f"v_and_b32 v{vT[4]}, 31, v{vL}")
e(f"s_lshl_b32 s{sT0}, s{sRQ}, 5")
e(f"v_add_u32 v{vT[4]}, s{sT0}, v{vT[4]}")
e(f"v_min_u32 v{vT[4]}, 39, v{vT[4]}")
row_addr(vT[1], vT[4], vT[3], vT[2])
c("DMA landed (the flag store, if this wave issued it, may stay in flight)")
e(f"s_cmp_eq_u32 s{sC}, 0")
e("s_cbranch_scc1 L_h1w0")
e(f"s_waitcnt vmcnt(1)")
e("s_branch L_h1w1")
lab("L_h1w0")
e("s_waitcnt vmcnt(0)")
lab("L_h1w1")
arrive(RCB)
wait_cnt([FCNT, FCC, FCNT2][H1W], 8, dst=sX2)
for s_ in range(8):
    e(f"v_xor_b32 v{vT[2]}, {s_<<5}, v{vT[1]}")
    e(f"ds_read_b128 {vr(rowreg(s_),4)}, v{vT[2]}")
wait_cnt(RCB, 8, dst=sX2)
for s_ in range(8):
    e(f"ds_read_b64_tr_b16 {vr(WF+4*s_,2)}, v{vT[6]} offset:{s_*1024}")
    e(f"ds_read_b64_tr_b16 {vr(WF+4*s_+2,2)}, v{vT[6]} offset:{s_*1024+256}")
e(f"s_mov_b32 s{sK2}, 0x{NLOG2E:08x}")
e(f"s_cmp_eq_u32 s{sRQ}, 0")
e("s_cbranch_scc0 L_h1b")
for s_ in range(8):
    e(f"s_waitcnt lgkmcnt({2*(7-s_)})")
    mfma(FACC, WF+4*s_, rowreg(s_), "0" if s_ == 0 else vr(FACC,16))
e("s_nop 7")
e("s_nop 3")
for r in range(16):
    e(f"v_mul_f32 v{FACC+r}, s{sK2}, v{FACC+r}")
e("s_branch L_h1d")
lab("L_h1b")
for s_ in range(8):
    e(f"s_waitcnt lgkmcnt({2*(7-s_)})")
    mfma(D1, rowreg(s_), WF+4*s_, "0" if s_ == 0 else vr(D1,16))
e("s_nop 7")
e("s_nop 3")
for r in range(4):
    e(f"v_mul_f32 v{FB+r}, s{sK2}, v{D1+r}")
lab("L_h1d")
stamp("h1 done", 8)
e("s_branch L_common")

lab("L_front")
QA, QB, QC = 0, 1, 2
KB = 124
PWR = 116
fw = sX2
e(f"s_sub_u32 s{fw}, s{sW}, 8")
c("zero REC[32768, 65536) (the first 32 KB stage W1 and are zeroed after use)")
e(f"v_lshlrev_b32 v{vT[0]}, 4, v{tid}")
for i in range(4):
    e(f"ds_write_b128 v{vT[0]}, {vr(Z,4)} offset:{32768 - 8192 + i*8192}")
c("own rows dma: instr idx u covers rows 4u..4u+3 ; lane: row = 4u + (l>>4); chunk = (l&15) ^ (row&15)")
e(f"v_lshrrev_b32 v{vT[4]}, 4, v{vL}")
e(f"v_and_b32 v{vT[1]}, 15, v{vL}")
e(f"v_xor_b32 v{vT[1]}, v{vT[1]}, v{vT[4]}")
e(f"s_lshl_b32 s{sT1}, s{sCT}, 2")
e(f"v_xor_b32 v{vT[1]}, s{sT1}, v{vT[1]}")
e(f"v_lshlrev_b32 v{vT[1]}, 4, v{vT[1]}")
e(f"v_lshl_add_u32 v{vT[1]}, v{vT[4]}, 8, v{vT[1]}")
slice_lane(vT[2], sCT)
e(f"s_lshl_b32 s{sT2}, s{sCT}, 13")
e(f"s_mul_i32 s{sT0}, s2, {40*256}")
e(f"s_lshl_b32 s{sT1}, s{fw}, 10")
e(f"s_add_u32 s{sT0}, s{sT0}, s{sT1}")
e(f"v_mul_u32_u24 v{vT[3]}, 6, v{vL}")
e(f"v_and_b32 v{vT[5]}, 31, v{vL}")
e(f"s_lshl_b32 s{sT3}, s{sCT}, 5")
e(f"v_add_u32 v{vT[5]}, s{sT3}, v{vT[5]}")
e(f"v_lshlrev_b32 v{vT[5]}, 1, v{vT[5]}           ; (32ct + n)*2")
e("s_waitcnt lgkmcnt(0)")
stamp("kernarg", 1)
kernarg_copy()
e(f"s_add_u32 m0, s{sT1}, {OWN}")
e("s_nop 0")
e(f"buffer_load_dwordx4 v{vT[1]}, {srd(S_H)}, s{sT0} offen lds")
e(f"s_cmp_ge_u32 s{fw}, 2")
e("s_cbranch_scc1 L_f_no2")
e(f"s_add_u32 m0, s{sT1}, {OWN+8192}")
e(f"s_add_u32 s{sT0}, s{sT0}, 8192")
e(f"buffer_load_dwordx4 v{vT[1]}, {srd(S_H)}, s{sT0} offen lds")
lab("L_f_no2")
c("wave 10: own pos (lane l<40 loads x,y,z u16)")
e(f"s_cmp_eq_u32 s{fw}, 2")
e("s_cbranch_scc0 L_f_nopos")
e(f"s_mul_i32 s{sT0}, s2, 240")
e(f"v_cmp_gt_u32 vcc, 40, v{vL}")
e("s_mov_b64 exec, vcc")
for k in range(3):
    e(f"buffer_load_ushort v{PWR+k}, v{vT[3]}, {srd(S_POS)}, s{sT0} offen offset:{2*k}")
e("s_mov_b64 exec, -1")
lab("L_f_nopos")
if PPF:
    c("L2 warm-up of pos: segment (wg>>3)&7 of 7680 B, 960 B per F wave (result unused)")
    e(f"s_lshr_b32 s{sT1}, s2, 3")
    e(f"s_and_b32 s{sT1}, s{sT1}, 7")
    e(f"s_lshl_b32 s{sT1}, s{sT1}, 3")
    e(f"s_add_u32 s{sT1}, s{sT1}, s{fw}")
    e(f"s_mul_i32 s{sT1}, s{sT1}, 960")
    e(f"v_lshlrev_b32 v{vT[7]}, 4, v{vL}")
    e(f"buffer_load_dwordx4 {vr(108,4)}, v{vT[7]}, {srd(S_POS)}, s{sT1} offen")
c("K1B raw: w_e rows 256, 257")
e(f"s_mov_b32 s{sT1}, 65536")
e(f"buffer_load_ushort v{KB}, v{vT[5]}, {srd(S_WE)}, s{sT1} offen")
e(f"buffer_load_ushort v{KB+1}, v{vT[5]}, {srd(S_WE)}, s{sT1} offen offset:256")
e(f"s_add_u32 s{sX1}, s{sT2}, {REC}")
e(f"s_lshl_b32 s{sT3}, s{sRQ}, 12")
e(f"s_add_u32 s{sT3}, s{sT3}, s{sX1}          ; + half*4096")
e(f"s_lshl_b32 s{sX0}, s{sRQ}, 14")
stamp("role loads issued", 2)
c("let the role loads go first")
wait_cnt(RISS, 8)
stamp("B1", 4)
c("W1 slice ct (w_e rows 0..127): this wave loads k-steps 4*half .. 4*half+3")
for i in range(4):
    e(f"s_add_u32 m0, s{sT3}, {i*1024}")
    e(f"s_add_u32 s{sT1}, s{sX0}, {i*4096}")
    e(f"buffer_load_dwordx4 v{vT[2]}, {srd(S_WE)}, s{sT1} offen lds")
lane_consts()
e("s_waitcnt vmcnt(4)")
arrive(FCNT)
c("wave 10: PTF (f32 x4 per node)")
e(f"s_cmp_eq_u32 s{fw}, 2")
e("s_cbranch_scc0 L_noptf")
for k in range(3): e(f"v_lshlrev_b32 v{PWR+k}, 16, v{PWR+k}")
e(f"v_mov_b32 v{PWR+3}, 0")
e(f"v_lshlrev_b32 v{vT[0]}, 4, v{vL}")
e(f"v_add_u32 v{vT[0]}, {PTF}, v{vT[0]}")
e(f"v_cmp_gt_u32 vcc, 40, v{vL}")
e("s_mov_b64 exec, vcc")
e(f"ds_write_b128 v{vT[0]}, {vr(PWR,4)}")
e("s_mov_b64 exec, -1")
lab("L_noptf")
stamp("role loads landed", 3)
trpat(vT[6], vT[0], vT[1])
e(f"v_add_u32 v{vT[6]}, s{sX1}, v{vT[6]}")
c("P' task: rows m: slot = m&7, g' = m>>3 ; node = 5*(4B + g') + max(slot-3,0), B = half")
e(f"v_lshrrev_b32 v{vT[3]}, 5, v{vL}           ; hi")
e(f"v_and_b32 v{vT[0]}, 7, v{vL}")
e(f"v_subrev_u32 v{vT[0]}, 3, v{vT[0]}")
e(f"v_max_i32 v{vT[0]}, 0, v{vT[0]}")
e(f"v_bfe_u32 v{vT[1]}, v{vL}, 3, 2")
e(f"v_mad_u32_u24 v{vT[0]}, v{vT[1]}, 5, v{vT[0]}        ; node (B=0)")
e(f"s_mul_i32 s{sT0}, s{sRQ}, 20")
e(f"v_add_u32 v{vT[0]}, s{sT0}, v{vT[0]}")
row_addr(vT[1], vT[0], vT[3], vT[2])
c("K1B: (wd, we) scaled, hi and lo parts")
e(f"s_mov_b32 s{sT0}, 0x{NLOG2E:08x}")
e(f"s_mov_b32 s{sT1}, 0xffff0000")
k0, k1, k2, k3 = 116, 117, 118, 119
e(f"v_lshlrev_b32 v{k0}, 16, v{KB}")
e(f"v_lshlrev_b32 v{k1}, 16, v{KB+1}")
e(f"v_mul_f32 v{k0}, s{sT0}, v{k0}")
e(f"v_mul_f32 v{k1}, s{sT0}, v{k1}")
e(f"v_cvt_pk_bf16_f32 v{KB}, v{k0}, v{k1}")
e(f"v_lshlrev_b32 v{k2}, 16, v{KB}")
e(f"v_and_b32 v{k3}, s{sT1}, v{KB}")
e(f"v_sub_f32 v{k0}, v{k0}, v{k2}")
e(f"v_sub_f32 v{k1}, v{k1}, v{k3}")
e(f"v_cvt_pk_bf16_f32 v{KB+1}, v{k0}, v{k1}")
c("P' write: BXP + g*2048 + (32ct + n)*16 + hi*8 ; hi=0 lanes: slots 0,1 = (wd,we) hi ; slot 2 = wd lo ; slot 3 = P'[j=0]")
vPW, vPM = 126, 127 if not TIMING else 115
e(f"v_and_b32 v{vPW}, 31, v{vL}")
e(f"v_lshlrev_b32 v{vPW}, 4, v{vPW}")
e(f"v_lshl_add_u32 v{vPW}, v{vT[3]}, 3, v{vPW}")
e(f"s_lshl_b32 s{sT0}, s{sCT}, 9")
e(f"s_lshl_b32 s{sT1}, s{sRQ}, 13")
e(f"s_add_u32 s{sT0}, s{sT0}, s{sT1}")
e(f"s_add_u32 s{sT0}, s{sT0}, {BXP}")
e(f"v_add_u32 v{vPW}, s{sT0}, v{vPW}")
e(f"v_cmp_gt_u32 vcc, 32, v{vL}")
e(f"v_mov_b32 v{vPM}, 0xffff0000")
e(f"v_cndmask_b32 v{vPM}, -1, v{vPM}, vcc         ; mask M")
e(f"v_and_b32 v{KB+1}, 0xffff, v{KB+1}")
e(f"v_cndmask_b32 v{KB+1}, 0, v{KB+1}, vcc")
e(f"s_mov_b32 s{sK2}, 0x{NLOG2E:08x}")
for i in range(4): e(f"v_mov_b32 v{116+i}, 0")
e("s_waitcnt vmcnt(0)")
stamp("slices landed", 6)
arrive(FCB)
wait_cnt(FCB, 8)
stamp("fcb", 45)
for s_ in range(8):
    e(f"v_xor_b32 v{vT[2]}, {s_<<5}, v{vT[1]}")
    e(f"ds_read_b128 {vr(rowreg(s_),4)}, v{vT[2]}")
    e(f"ds_read_b64_tr_b16 {vr(WF+4*s_,2)}, v{vT[6]} offset:{s_*1024}")
    e(f"ds_read_b64_tr_b16 {vr(WF+4*s_+2,2)}, v{vT[6]} offset:{s_*1024+256}")
for s_ in range(8):
    e(f"s_waitcnt lgkmcnt({min(15, 21-3*s_)})")
    mfma(FACC, rowreg(s_), WF+4*s_, "0" if s_ == 0 else vr(FACC,16))
stamp("mfma issued", 46)
arrive(FCC)
c("---- granule (16 B, two records) per lane: c = 8fw + (l>>3), q = l&7 : c*32000 + q*16 (+ b*128)")
e(f"s_lshl_b32 s{sT0}, s{fw}, 3")
e(f"v_lshrrev_b32 v{vT[4]}, 3, v{vL}")
e(f"v_add_u32 v{vT[4]}, s{sT0}, v{vT[4]}          ; c")
e(f"v_mul_u32_u24 v{vGA}, {CHB}, v{vT[4]}")
e(f"v_and_b32 v{vT[5]}, 7, v{vL}")
e(f"v_lshl_add_u32 v{vGA}, v{vT[5]}, 4, v{vGA}")
e(f"v_cmp_gt_u32 {sp(sPA)}, {NCH}, v{vT[4]}")
e(f"s_lshl_b32 s{sT2}, s2, 7")
e(f"s_add_u32 s{sT3}, s{sT2}, {CELLB}")
e(f"v_lshlrev_b32 v{vT[1]}, 4, v{vL}")
e(f"s_lshl_b32 s{sT0}, s{fw}, 12")
e(f"v_add_u32 v{vT[1]}, s{sT0}, v{vT[1]}")
e(f"s_mov_b64 {sp(sPB)}, {sp(sPA)}")
e(f"s_mov_b64 {sp(sEX)}, {sp(sPA)}")
e(f"s_sub_u32 s{sLOW}, s{sTW}, {DELTA}")
if FORCE == "ovf":
    e(f"s_add_u32 s{sLOW}, s{sLOW}, 0x40000000")
e(f"s_mov_b32 s{sK3}, {WIN}")
e(f"s_mov_b32 s{sCNT}, 0")
e(f"s_mov_b64 {sp(sM2)}, {sp(sPB)}")
_pi = [0]
def poll_issue():
    i = _pi[0]; _pi[0] += 1
    e(f"s_cmp_eq_u64 {sp(sPA)}, 0")
    e(f"s_cbranch_scc1 L_rp_noa{i}")
    e(f"s_mov_b64 exec, {sp(sPA)}")
    e(f"buffer_load_dwordx4 {vr(RA,4)}, v{vGA}, {srd(S_WS)}, s{sT2} offen sc1")
    lab(f"L_rp_noa{i}")
    e(f"s_cmp_eq_u64 {sp(sM2)}, 0")
    e(f"s_cbranch_scc1 L_rp_nob{i}")
    e(f"s_mov_b64 exec, {sp(sM2)}")
    e(f"buffer_load_dwordx4 {vr(RB,4)}, v{vGA}, {srd(S_WS)}, s{sT3} offen sc1")
    lab(f"L_rp_nob{i}")
    e("s_mov_b64 exec, -1")
if EARLY:
    poll_issue()
    stamp("B3", 7)
def pwrite(r0, g):
    for i in range(4):
        e(f"v_mul_f32 v{r0+i}, s{sK2}, v{r0+i}")
    e(f"v_cvt_pk_bf16_f32 v{r0}, v{r0}, v{r0+1}")
    e(f"v_cvt_pk_bf16_f32 v{r0+1}, v{r0+2}, v{r0+3}")
    e(f"v_cndmask_b32 v{r0}, v{r0}, v{KB}, vcc")
    e(f"v_and_or_b32 v{r0+1}, v{r0+1}, v{vPM}, v{KB+1}")
    e(f"ds_write_b64 v{vPW}, {vr(r0,2)} offset:{g*2048}")
e(f"v_cmp_gt_u32 vcc, 32, v{vL}")
e("s_nop 3")
for g in range(4):
    pwrite(FACC+4*g, g)
c("all eight waves hold their fragments: zero the staging area (4 KB per wave)")
wait_cnt(FCC, 8)
for i in range(4):
    e(f"ds_write_b128 v{vT[1]}, {vr(116,4)} offset:{REC + i*1024}")
e("s_waitcnt lgkmcnt(0)")
arrive(FCNT2)
stamp("front done", 5)
if not NOPRIO: e(f"s_setprio {FPRIO}")
if not EARLY:
    if PSL: e(f"s_sleep {PSL}")
    poll_issue()
    stamp("B3", 7)
e("s_branch L_rpoll")

lab("L_common")
c("---- R waves: no records ; wave 7 waits for the Q / WH2F flags")
for m in MK: e(f"s_mov_b64 {sp(m)}, 0")
e(f"s_cmp_eq_u32 s{sW}, 7")
e("s_cbranch_scc0 L_ba")
if QGATE: wait_cnt(RLAND, QGATE)
e(f"v_lshlrev_b32 v{vT[4]}, 4, v{vL}")
e(f"s_mov_b32 s{sCNT}, 0")
e(f"s_mov_b32 s{sT2}, {FLG}")
e(f"s_sub_u32 s{sLOW}, s{sTW}, {DELTA}")
if FORCE == "fb":
    e(f"s_add_u32 s{sLOW}, s{sLOW}, 0x40000000")
e(f"s_mov_b32 s{sK3}, {WIN}")
e("s_mov_b32 exec_lo, -1")
e("s_mov_b32 exec_hi, 0x1ff")
lab("L_qpoll")
e(f"buffer_load_dwordx4 {vr(RA,4)}, v{vT[4]}, {srd(S_WS)}, s{sT2} offen sc1")
e(f"s_add_u32 s{sCNT}, s{sCNT}, 1")
e("s_waitcnt vmcnt(0)")
stamp_dyn(19, sCNT)
for k in range(4):
    e(f"v_xor_b32 v{RA+k}, {FLC}, v{RA+k}")
for k in range(4):
    e(f"v_subrev_u32 v{RA+k}, s{sLOW}, v{RA+k}")
e(f"v_max_u32 v{RA}, v{RA}, v{RA+1}")
e(f"v_max3_u32 v{RA}, v{RA}, v{RA+2}, v{RA+3}")
e(f"v_cmp_le_u32 vcc, s{sK3}, v{RA}")
e("s_cmp_eq_u64 vcc, 0")
e("s_cbranch_scc1 L_qp_ok")
e(f"s_sleep {QSL}")
e(f"s_cmp_lt_u32 s{sCNT}, {NPOLL}")
e("s_cbranch_scc1 L_qpoll")
e(f"v_mov_b32 v{vT[0]}, {OVF}")
e(f"v_mov_b32 v{vT[1]}, 2")
e(f"ds_or_b32 v{vT[0]}, v{vT[1]}")
lab("L_qp_ok")
e("s_mov_b64 exec, -1")
e("s_branch L_ba")
_st[0] = 8
def gcheck(G, M, M2):
    e(f"v_bfe_u32 v{vT[2]}, v{G+3}, 3, 9")
    e(f"v_xor_b32 v{vT[2]}, {TAGC}, v{vT[2]}")
    e(f"v_lshrrev_b32 v{vT[0]}, 23, v{G}")
    e(f"v_lshrrev_b32 v{vT[1]}, 23, v{G+1}")
    e(f"v_subrev_u32 v{vT[3]}, s{sLOW}, v{G+3}")
    e(f"v_cmp_eq_u32 {M}, v{vT[0]}, v{vT[2]}")
    e(f"v_cmp_eq_u32 {M2}, v{vT[1]}, v{vT[2]}")
    e(f"s_and_b64 {M}, {M}, {M2}")
    e(f"v_cmp_gt_u32 {M2}, s{sK3}, v{vT[3]}")
    e(f"s_and_b64 {M}, {M}, {M2}")
e("s_branch L_rpoll")
lab("L_rpoll_again")
poll_issue()
lab("L_rpoll")
e(f"s_add_u32 s{sCNT}, s{sCNT}, 1")
e("s_waitcnt vmcnt(0)")
stamp_dyn(19, sCNT)
gcheck(RA, "vcc", sp(sM0))
e(f"s_andn2_b64 {sp(sPA)}, {sp(sPA)}, vcc")
gcheck(RB, sp(sM1), sp(sM0))
e(f"v_bfe_u32 v{vT[0]}, v{RA}, 21, 1")
e(f"s_andn2_b64 {sp(sPB)}, {sp(sPB)}, {sp(sM1)}")
e(f"v_cmp_ne_u32 vcc, 0, v{vT[0]}                ; more")
e(f"s_andn2_b64 vcc, vcc, {sp(sPA)}")
if BSPEC:
    e(f"s_or_b64 vcc, vcc, {sp(sPA)}")
e(f"s_and_b64 {sp(sM2)}, {sp(sPB)}, vcc")
e(f"s_or_b64 vcc, {sp(sPA)}, {sp(sM2)}")
e("s_cmp_eq_u64 vcc, 0")
e("s_cbranch_scc1 L_rp_ok")
e(f"s_sleep {RSL}")
e(f"s_cmp_lt_u32 s{sCNT}, {NPOLL}")
e("s_cbranch_scc1 L_rpoll_again")
c("timed out: take the slow path")
e(f"v_mov_b32 v{vT[0]}, {OVF}")
e(f"v_mov_b32 v{vT[1]}, 1")
e(f"ds_or_b32 v{vT[0]}, v{vT[1]}")
e(f"s_andn2_b64 {sp(sEX)}, {sp(sEX)}, vcc")
lab("L_rp_ok")
e("s_mov_b64 exec, -1")
arrive(RLAND)
stamp("records landed")
c("masks: a,b = valid bits of granule A ; c,d = valid bits of granule B & more")
RCS = [RA, RA+1, RB, RB+1]
e(f"v_bfe_u32 v{vT[0]}, v{RA}, 20, 1")
e(f"v_bfe_u32 v{vT[1]}, v{RA+1}, 20, 1")
e(f"v_bfe_u32 v{vT[2]}, v{RB}, 20, 1")
e(f"v_bfe_u32 v{vT[3]}, v{RB+1}, 20, 1")
e(f"v_bfe_u32 v{vT[4]}, v{RA}, 21, 1")
e(f"v_bfe_u32 v{vT[5]}, v{RA}, 22, 1")
e(f"v_and_b32 v{vT[2]}, v{vT[2]}, v{vT[4]}")
e(f"v_and_b32 v{vT[3]}, v{vT[3]}, v{vT[4]}")
for k in range(4):
    e(f"v_cmp_ne_u32 {sp(MK[k])}, 0, v{vT[k]}")
e(f"v_cmp_ne_u32 {sp(sM2)}, 0, v{vT[5]}")
for k in range(4):
    e(f"s_and_b64 {sp(MK[k])}, {sp(MK[k])}, {sp(sEX)}")
e(f"s_and_b64 {sp(sM2)}, {sp(sM2)}, {sp(sEX)}")
e(f"v_mov_b32 v{vOne}, 1")
e(f"s_mov_b32 s{sT0}, {ALLOC}")
VS = [91, 92, 93, 94]
def s1_issue(k):
    e(f"v_and_b32 v{VS[k]}, 0x3fff, v{RCS[k]}")
    e(f"v_mul_u32_u24 v{vT[0]}, 6, v{VS[k]}")
    e(f"v_and_b32 v{vT[0]}, -4, v{vT[0]}")
    e(f"v_bfe_u32 v{VI[k]}, v{RCS[k]}, 14, 3")
    e(f"v_lshl_add_u32 v{vT[1]}, v{VI[k]}, 2, s{sT0}")
    e(f"s_mov_b64 exec, {sp(MK[k])}")
    e(f"buffer_load_dwordx2 {vr(PS[k],2)}, v{vT[0]}, {srd(S_POS)}, 0 offen")
    e(f"ds_add_rtn_u32 v{VR[k]}, v{vT[1]}, v{vOne}")
    e("s_mov_b64 exec, -1")
    e(f"v_mul_u32_u24 v{VI[k]}, {GSTR}, v{VI[k]}")
c("REC must be zero before placement (all F waves have zeroed their staging)")
wait_cnt(FCNT2, 8, dst=sT1)
for k in range(4):
    e(f"s_cmp_eq_u64 {sp(MK[k])}, 0")
    e(f"s_cbranch_scc1 L_s1i{k}")
    s1_issue(k)
    lab(f"L_s1i{k}")
e(f"s_cmp_eq_u64 {sp(sM2)}, 0")
e("s_cbranch_scc1 L_s1_noovf")
e(f"v_mov_b32 v{vT[0]}, {OVF}")
e(f"ds_or_b32 v{vT[0]}, v{vOne}")
lab("L_s1_noovf")
def s1_place(vR, vI, vS, msk, tag, slow=False):
    e(f"v_cmp_gt_u32 vcc, {CAP}, v{vR}")
    e(f"v_lshl_add_u32 v{vI}, v{vR}, 6, v{vI}")
    e(f"v_bfe_u32 v{vR}, v{vR}, 2, 2")
    e(f"v_lshl_add_u32 v{vI}, v{vR}, 4, v{vI}")
    e(f"v_xor_b32 v{vR}, 16, v{vI}")
    e(f"s_andn2_b64 exec, {sp(msk)}, vcc")
    e(f"s_cbranch_execz L_s1_ok{tag}")
    if slow:
        e(f"v_mov_b32 v{qP}, 1")
        e(f"v_mov_b32 v{vT[0]}, {PEND}")
        e(f"ds_write_b32 v{vT[0]}, v{vOne}")
    else:
        e(f"v_mov_b32 v{vT[0]}, {OVF}")
        e(f"ds_or_b32 v{vT[0]}, v{vOne}")
    lab(f"L_s1_ok{tag}")
    e(f"s_and_b64 {sp(msk)}, {sp(msk)}, vcc")
    e(f"s_mov_b64 exec, {sp(msk)}")
    e(f"ds_write_b16 v{vR}, v{vS} offset:{REC}")
    e("s_mov_b64 exec, -1")
e("s_waitcnt lgkmcnt(0)")
for k in range(4):
    e(f"s_cmp_eq_u64 {sp(MK[k])}, 0")
    e(f"s_cbranch_scc1 L_s1p{k}")
    s1_place(VR[k], VI[k], VS[k], MK[k], "abcd"[k])
    lab(f"L_s1p{k}")
def dma_issue(va, vb, sbuf):
    e(f"v_lshl_add_u32 v{va}, v{va}, 8, v{vQD}")
    e(f"v_lshl_add_u32 v{vb}, v{vb}, 8, v{vQD}")
    e(f"s_mov_b32 m0, s{sbuf}")
    e(f"s_nop 0")
    e(f"buffer_load_dwordx4 v{va}, {srd(S_Q)}, 0 offen{QSC} lds")
    e(f"s_add_u32 m0, s{sbuf}, 1024")
    e(f"s_nop 0")
    e(f"buffer_load_dwordx4 v{vb}, {srd(S_Q)}, 0 offen{QSC} lds")
lab("L_st2")
c("stage 2 (sparse, up to four records per lane)")
PD = [96, 100, 112, 116]
e(f"s_mov_b32 s{sT0}, {PTF}")
e(f"s_mov_b32 s{sK2}, 0xffff0000")
e(f"v_mov_b32 v{vT[6]}, 0x3f80")
for k in range(4):
    e(f"s_cmp_eq_u64 {sp(MK[k])}, 0")
    e(f"s_cbranch_scc1 L_s2r{k}")
    e(f"v_bfe_u32 v{vT[4]}, v{RCS[k]}, 14, 3")
    e(f"v_bfe_u32 v{vT[5]}, v{RCS[k]}, 17, 3")
    e(f"v_mad_u32_u24 v{vT[5]}, v{vT[4]}, 5, v{vT[5]}        ; k = 5g + j")
    e(f"v_min_u32 v{vT[5]}, 39, v{vT[5]}")
    e(f"v_lshl_add_u32 v{vT[5]}, v{vT[5]}, 4, s{sT0}")
    e(f"ds_read_b128 {vr(PD[k],4)}, v{vT[5]}")
    lab(f"L_s2r{k}")
e("s_waitcnt vmcnt(0) lgkmcnt(0)")
stamp("pos landed", 12)
def stage2_pass(rec, ea, hi_half, ps, pd, row, msk, tag):
    X = [104, 105, 106, 107, 108, 109]
    e(f"s_cmp_eq_u64 {sp(msk)}, 0")
    e(f"s_cbranch_scc1 L_s2_done{tag}")
    e(f"s_mov_b64 exec, {sp(msk)}")
    e(f"v_and_b32 v{X[0]}, 1, v{rec}")
    e(f"v_lshlrev_b32 v{X[0]}, 4, v{X[0]}        ; shift")
    e(f"v_alignbit_b32 v{X[1]}, v{ps+1}, v{ps}, v{X[0]}     ; x | y<<16")
    e(f"v_lshrrev_b32 v{X[2]}, v{X[0]}, v{ps+1}              ; z (low 16)")
    e(f"v_lshlrev_b32 v{ps}, 16, v{X[1]}")
    e(f"v_and_b32 v{ps+1}, s{sK2}, v{X[1]}")
    e(f"v_lshlrev_b32 v{X[2]}, 16, v{X[2]}")
    e(f"v_sub_f32 v{pd}, v{pd}, v{ps}")
    e(f"v_sub_f32 v{pd+1}, v{pd+1}, v{ps+1}")
    e(f"v_sub_f32 v{pd+2}, v{pd+2}, v{X[2]}")
    e(f"v_cvt_pk_bf16_f32 v{X[0]}, v{pd}, v{pd+1}")
    e(f"v_cvt_pk_bf16_f32 v{X[1]}, v{pd+2}, v{pd+2}     ; dz")
    e(f"v_bfe_u32 v{X[3]}, v{rec}, 17, 3")
    e(f"v_lshl_add_u32 v{X[3]}, v{X[3]}, 1, v{row}")
    e(f"v_xor_b32 v{X[5]}, 16, v{X[3]}")
    e(f"ds_write_b16 v{X[3]}, v{vT[6]} offset:{REC+6}")
    e(f"ds_write_b16 v{X[5]}, v{X[0]} offset:{REC+6}")
    e(f"v_xor_b32 v{X[5]}, 32, v{X[3]}")
    e(f"v_xor_b32 v{X[3]}, 48, v{X[3]}")
    e(f"ds_write_b16_d16_hi v{X[5]}, v{X[0]} offset:{REC+6}")
    e(f"ds_write_b16 v{X[3]}, v{X[1]} offset:{REC+6}")
    e(f"v_lshlrev_b32 v{pd}, 16, v{X[0]}")
    e(f"v_and_b32 v{pd+1}, s{sK2}, v{X[0]}")
    e(f"v_lshlrev_b32 v{pd+2}, 16, v{X[1]}")
    for k in range(3):
        e(f"v_mul_f32 v{pd+k}, v{pd+k}, v{pd+k}")
    e(f"v_cvt_pk_bf16_f32 v{X[2]}, v{pd}, v{pd+1}")
    e(f"v_cvt_pk_bf16_f32 v{X[4]}, v{pd+2}, v{pd+2}")
    e(f"v_lshlrev_b32 v{pd}, 16, v{X[2]}")
    e(f"v_and_b32 v{pd+1}, s{sK2}, v{X[2]}")
    e(f"v_lshlrev_b32 v{pd+2}, 16, v{X[4]}")
    e(f"v_add_f32 v{pd}, v{pd}, v{pd+1}")
    e(f"v_add_f32 v{pd}, v{pd}, v{pd+2}")
    e(f"v_cvt_pk_bf16_f32 v{X[2]}, v{pd}, 0")
    if hi_half:
        e(f"v_and_or_b32 v{X[4]}, v{ea}, s{sK2}, v{X[2]}")
    else:
        e(f"v_lshl_or_b32 v{X[4]}, v{ea}, 16, v{X[2]}")
    e(f"ds_write_b32 v{row}, v{X[4]} offset:{REC}")
    e(f"ds_write_b16 v{row}, v{X[2]} offset:{REC+4}")
    e("s_mov_b64 exec, -1")
    lab(f"L_s2_done{tag}")
for k in range(4):
    stage2_pass(RCS[k], [RA+2, RB+2][k>>1], k & 1, PS[k], PD[k], VI[k], MK[k], "abcd"[k])
stamp("stage2 done", 13)
lab("L_ba")
stamp("placed+Q", 9)
if not NOPRIO: e("s_setprio 0")
e(f"s_waitcnt lgkmcnt(0)")
e("s_barrier")
stamp("BA", 10)

lab("L_post")
c("count of own group, OVF, lookups for tiles 0,1")
e(f"s_lshl_b32 s{sT0}, s{sG}, 2")
e(f"s_add_u32 s{sT0}, s{sT0}, {ALLOC}")
e(f"v_mov_b32 v{vT[0]}, s{sT0}")
e(f"v_mov_b32 v{vT[1]}, {OVF}")
e(f"ds_read_b32 v{vT[2]}, v{vT[0]}")
e(f"ds_read_b32 v{vT[3]}, v{vT[1]}")
LK = [104, 105, 80, 81]
e(f"v_xor_b32 v{vT[4]}, 32, v{vLK}")
e(f"ds_read_u16 v{LK[0]}, v{vLK}")
e(f"ds_read_u16 v{LK[1]}, v{vT[4]} offset:512")
e(f"ds_read_u16 v{LK[2]}, v{vLK} offset:1024")
e(f"ds_read_u16 v{LK[3]}, v{vT[4]} offset:1536")
e(f"s_cmp_eq_u32 s{sMODE}, 0")
e("s_cbranch_scc1 L_post_fast")
c("slow path: skip quickly if nothing was placed in this pass")
e(f"v_mov_b32 v{vT[0]}, {ALLOC}")
e(f"ds_read_b128 {vr(96,4)}, v{vT[0]}")
e(f"ds_read_b128 {vr(100,4)}, v{vT[0]} offset:16")
e("s_waitcnt lgkmcnt(0)")
e(f"v_or3_b32 v96, v96, v97, v98")
e(f"v_or3_b32 v96, v96, v99, v100")
e(f"v_or3_b32 v96, v96, v101, v102")
e(f"v_or_b32 v96, v96, v103")
e("s_nop 0")
e(f"v_readfirstlane_b32 s{sT0}, v96")
e(f"v_readfirstlane_b32 s{sCO}, v{vT[2]}")
e("s_nop 3")
e(f"s_cmp_lg_u32 s{sT0}, 0")
e("s_cbranch_scc1 L_post_go")
e(f"s_mov_b32 s{sRETRY}, 0")
e("s_branch L_slow_adv")
lab("L_post_fast")
e("s_waitcnt lgkmcnt(4)")
e(f"v_readfirstlane_b32 s{sCO}, v{vT[2]}")
e(f"v_readfirstlane_b32 s{sT3}, v{vT[3]}           ; OVF")
e("s_nop 3")
e(f"s_cmp_lg_u32 s{sT3}, 0")
e("s_cbranch_scc1 L_slow_init")
lab("L_post_go")
e(f"s_min_u32 s{sCO}, s{sCO}, {CAP}")
e(f"s_add_u32 s{sNT}, s{sCO}, 15")
e(f"s_lshr_b32 s{sNT}, s{sNT}, 4")
e("s_waitcnt lgkmcnt(2)")
dma_issue(LK[0], LK[1], sB0)
stamp("dma0 issued", 11)
c("ID constants: lane (m,hi): step s elem i = (m == 16s + 8hi + i)")
e(f"v_and_b32 v{vT[4]}, 31, v{vL}")
e(f"v_lshrrev_b32 v{vT[5]}, 5, v{vL}")
e(f"v_lshlrev_b32 v{vT[5]}, 3, v{vT[5]}")
e(f"v_sub_u32 v{vT[4]}, v{vT[4]}, v{vT[5]}        ; x = m - 8hi")
e(f"v_mov_b32 v{vT[5]}, 0x3f80")
e(f"v_mov_b32 v{vT[6]}, 0x3f800000")
for s_ in range(2):
    for r in range(4):
        x0 = 16*s_ + 2*r
        e(f"v_cmp_eq_u32 vcc, {x0}, v{vT[4]}")
        e(f"v_cndmask_b32 v{ID+4*s_+r}, 0, v{vT[5]}, vcc")
        e(f"v_cmp_eq_u32 vcc, {x0+1}, v{vT[4]}")
        e(f"v_cndmask_b32 v{ID+4*s_+r}, v{ID+4*s_+r}, v{vT[6]}, vcc")
c("BXF address: BXP + g*2048 + (64ch + l)*16   (l = 32hi + n)")
e(f"s_lshl_b32 s{sT0}, s{sG}, 11")
e(f"s_lshl_b32 s{sT1}, s{sCH2}, 10")
e(f"s_add_u32 s{sT0}, s{sT0}, s{sT1}")
e(f"s_add_u32 s{sT0}, s{sT0}, {BXP}")
e(f"v_lshlrev_b32 v{vT[4]}, 4, v{vL}")
e(f"v_add_u32 v{vT[4]}, s{sT0}, v{vT[4]}")
c("SEG zero (first pass only)")
e(f"s_cmp_eq_u32 s{sNODE}, 0")
e("s_cbranch_scc1 L_noseg0")
e(f"s_mov_b32 s{sNODE}, 0")
for r in range(32):
    e(f"v_mov_b32 v{SEG+r}, 0")
lab("L_noseg0")
e("s_waitcnt lgkmcnt(0)")
dma_issue(LK[2], LK[3], sB1)
stamp("BB", 14)
_st[0] = 15
e(f"ds_read_b128 {vr(BXF,4)}, v{vT[4]}")
if not NOPRIO: e("s_setprio 3")
e(f"s_mov_b32 s{sU}, 0")
if XM:
    for i in range(4): e(f"v_mov_b32 v{124+i}, 0")
e("s_mov_b32 s6, 1.0")
e("s_mov_b32 s7, 1.0")
e(f"s_mov_b32 s{sREM}, s{sCO}")
e(f"s_mov_b32 s{sRT}, s{sNT}")
c("running pointers: vLK -> tile 2 ; working copies of vOD / vTRS")
vLKr, vODr, vTRSr, vTRSr2 = 92, 93, 94, 95
e(f"v_add_u32 v{vLKr}, 2048, v{vLK}")
e(f"v_mov_b32 v{vODr}, v{vOD}")
e(f"v_mov_b32 v{vTRSr}, v{vTRS}")
e(f"v_xor_b32 v{vTRSr2}, 32, v{vTRS}")

def tile_body(buf):
    tag = f"t{buf}"
    sBUF = [sB0, sB1][buf]
    bo = buf * 2048
    c(f"---- tile (buffer {buf}) ----")
    e(f"s_cmp_gt_u32 s{sRT}, 2")
    e(f"s_cselect_b32 s{sK3}, 1, 0")
    e(f"s_cbranch_scc0 L_nolk{tag}")
    e(f"v_xor_b32 v{vT[4]}, 32, v{vLKr}")
    e(f"ds_read_u16 v{vT[2]}, v{vLKr}")
    e(f"ds_read_u16 v{vT[3]}, v{vT[4]} offset:512")
    lab(f"L_nolk{tag}")
    e(f"ds_read_b128 {vr(OHD,4)}, v{vODr}")
    e(f"s_cmp_gt_u32 s{sRT}, 1")
    e(f"s_cbranch_scc1 L_w2{tag}")
    e("s_waitcnt vmcnt(0)")
    e(f"s_branch L_wd{tag}")
    lab(f"L_w2{tag}")
    e("s_waitcnt vmcnt(2)")
    lab(f"L_wd{tag}")
    e(f"ds_read_b64_tr_b16 {vr(QF,2)}, v{vTRQ0} offset:{bo}")
    e(f"ds_read_b64_tr_b16 {vr(QF+2,2)}, v{vTRQ0} offset:{bo+512}")
    e(f"ds_read_b64_tr_b16 {vr(QF+4,2)}, v{vTRQ1} offset:{bo}")
    e(f"ds_read_b64_tr_b16 {vr(QF+6,2)}, v{vTRQ1} offset:{bo+512}")
    e(f"ds_read_b64_tr_b16 {vr(SF,2)}, v{vTRSr}")
    e(f"ds_read_b64_tr_b16 {vr(SF+2,2)}, v{vTRSr2} offset:512")
    e(f"v_add_u32 v{vLKr}, 1024, v{vLKr}")
    e(f"v_add_u32 v{vODr}, v{vODM}, v{vODr}")
    e(f"v_add_u32 v{vTRSr}, 1024, v{vTRSr}")
    e(f"v_add_u32 v{vTRSr2}, 1024, v{vTRSr2}")
    e("s_waitcnt lgkmcnt(6)")
    mfma(ACC, OHD, BXF, "0")
    e("s_waitcnt lgkmcnt(4)")
    mfma(ACC, ID, QF, vr(ACC,16))
    e("s_waitcnt lgkmcnt(2)")
    mfma(ACC, ID+4, QF+4, vr(ACC,16))
    for _ in range(XM):
        mfma(ACC, 124, QF+4*(_&1), vr(ACC,16))
    e(f"s_cmp_eq_u32 s{sK3}, 0")
    e(f"s_cbranch_scc1 L_nodma{tag}")
    dma_issue(vT[2], vT[3], sBUF)
    lab(f"L_nodma{tag}")
    e("s_nop 7")
    e("s_nop 3")
    def blk(bb, t):
        a = ACC + 4*bb
        for i in range(4): e(f"v_exp_f32 v{t+i}, v{a+i}")
        if PK:
            for i in (0, 2): e(f"v_pk_add_f32 {vr(t+i,2)}, {vr(t+i,2)}, s[6:7]")
        else:
            for i in range(4): e(f"v_add_f32 v{t+i}, 1.0, v{t+i}")
        for i in range(4): e(f"v_rcp_f32 v{t+i}, v{t+i}")
        if PK:
            for i in (0, 2): e(f"v_pk_mul_f32 {vr(t+i,2)}, {vr(a+i,2)}, {vr(t+i,2)}")
        else:
            for i in range(4): e(f"v_mul_f32 v{t+i}, v{a+i}, v{t+i}")
        e(f"v_cvt_pk_bf16_f32 v{MP+2*bb}, v{t}, v{t+1}")
        e(f"v_cvt_pk_bf16_f32 v{MP+2*bb+1}, v{t+2}, v{t+3}")
    blk(0, TE); blk(2, TE+4)
    e(f"s_cmp_le_u32 s{sREM}, 8")
    e(f"s_cbranch_scc1 L_skip{tag}")
    blk(1, TE); blk(3, TE+4)
    e(f"s_branch L_blk{tag}")
    lab(f"L_skip{tag}")
    for r in (2, 3, 6, 7): e(f"v_mov_b32 v{MP+r}, 0")
    lab(f"L_blk{tag}")
    e("s_waitcnt lgkmcnt(0)")
    e("s_nop 1")
    mfma(SEG, MP, SF, vr(SEG,16))
    mfma(SEG+16, MP+4, SF, vr(SEG+16,16))
    e(f"s_sub_u32 s{sREM}, s{sREM}, 16")
    e(f"s_sub_u32 s{sRT}, s{sRT}, 1")
    if not NOPRIO:
        e(f"s_cmp_gt_u32 s{sRT}, 3")
        e(f"s_cbranch_scc1 L_pr{tag}")
        e(f"s_setprio 2")
        e(f"s_cmp_eq_u32 s{sRT}, 3")
        e(f"s_cbranch_scc1 L_pr{tag}")
        e(f"s_setprio 1")
        e(f"s_cmp_eq_u32 s{sRT}, 2")
        e(f"s_cbranch_scc1 L_pr{tag}")
        e(f"s_setprio 0")
        lab(f"L_pr{tag}")

e(f"s_cmp_eq_u32 s{sRT}, 0")
e("s_cbranch_scc1 L_tiles_done")
lab("L_tile_loop")
tile_body(0)
e(f"s_cmp_eq_u32 s{sRT}, 0")
e("s_cbranch_scc1 L_tiles_done")
tile_body(1)
e(f"s_cmp_lg_u32 s{sRT}, 0")
e("s_cbranch_scc1 L_tile_loop")
lab("L_tiles_done")
e("s_waitcnt vmcnt(0)")
if not NOPRIO: e("s_setprio 3")
stamp("tiles done")
e(f"s_cmp_eq_u32 s{sMODE}, 0")
e("s_cbranch_scc0 L_slow_next")

lab("L_final")
WFL = 80
ROW = 16
HRES = 112
vN = vT[1]; vHI = vT[2]; vOFF = vT[3]; vRD_ = vT[4]
e(f"s_memrealtime s[6:7]")
e(f"v_and_b32 v{vN}, 31, v{vL}")
e(f"v_lshrrev_b32 v{vHI}, 5, v{vL}")
c("late frags: quads 1, 2: WH2F slice ct ; quad 0: wx frags")
e(f"s_cmp_eq_u32 s{sQ}, {QC}")
e("s_cbranch_scc1 L_f_wx")
e(f"s_cmp_eq_u32 s{sQ}, 3")
e("s_cbranch_scc1 L_f_flush")
e(f"s_lshl_b32 s{sT0}, s{sCT}, 13")
e(f"s_add_u32 s{sT0}, s{sT0}, {WH2F}")
e(f"s_add_u32 s{sT1}, s{sT0}, 4096")
e(f"v_lshlrev_b32 v{vT[0]}, 4, v{vL}")
for s_ in range(8):
    e(f"buffer_load_dwordx4 {vr(WFL+4*s_,4)}, v{vT[0]}, {srd(S_WS)}, s{[sT0,sT1][s_>>2]} offen offset:{(s_%4)*1024}{QSC}")
e("s_branch L_f_flush")
lab("L_f_wx")
e(f"v_lshlrev_b32 v{vT[0]}, 4, v{vHI}")
for s_ in range(8):
    e(f"buffer_load_dwordx4 {vr(WFL+4*s_,4)}, v{vT[0]}, {srd(S_WX)}, 0 offen offset:{s_*32}")
lab("L_f_flush")
c("flush: lane (f=n, hi): addr = QTw + h*2048 + f*64 + ((bb ^ ((f>>2)&3) ^ (g&3))<<4) + hi*8")
e(f"s_and_b32 s{sT0}, s{sG}, 3")
e(f"v_bfe_u32 v{vT[5]}, v{vN}, 2, 2")
e(f"v_xor_b32 v{vT[5]}, s{sT0}, v{vT[5]}")
e(f"v_lshlrev_b32 v{vT[5]}, 4, v{vT[5]}")
e(f"v_lshl_add_u32 v{vT[5]}, v{vN}, 6, v{vT[5]}")
e(f"v_lshl_add_u32 v{vT[5]}, v{vHI}, 3, v{vT[5]}")
e(f"v_add_u32 v{vT[5]}, s{sB0}, v{vT[5]}")
e("s_nop 7")
e("s_nop 3")
for h in range(2):
    for bb in range(4):
        r0 = SEG + 16*h + 4*bb
        e(f"v_cvt_pk_bf16_f32 v{r0}, v{r0}, v{r0+1}")
        e(f"v_cvt_pk_bf16_f32 v{r0+1}, v{r0+2}, v{r0+3}")
        if bb == 0:
            e(f"ds_write_b64 v{vT[5]}, {vr(r0,2)} offset:{h*2048}")
        else:
            e(f"v_xor_b32 v{vT[6]}, {bb<<4}, v{vT[5]}")
            e(f"ds_write_b64 v{vT[6]}, {vr(r0,2)} offset:{h*2048}")
c("per-role (node, comp) -> g, f ; addr = QT + g*8192 + f*64 + ((hi ^ ((f>>2)&3) ^ (g&3))<<4)")
vNODE = vT[5]; vCMP = vT[6]
def node_addr(dst, node, cmp_, t0, t1):
    e(f"v_mul_u32_u24 v{t1}, 52, v{node}")
    e(f"v_lshrrev_b32 v{t1}, 8, v{t1}             ; g")
    e(f"v_mul_u32_u24 v{t0}, 5, v{t1}")
    e(f"v_sub_u32 v{t0}, v{node}, v{t0}          ; j")
    if cmp_ is not None:
        e(f"v_lshl_add_u32 v{t0}, v{cmp_}, 3, v{t0}")
    e(f"v_add_u32 v{t0}, 3, v{t0}                 ; f")
    e(f"v_bfe_u32 v{dst}, v{t0}, 2, 2")
    e(f"v_xor_b32 v{dst}, v{dst}, v{vHI}")
    e(f"v_lshlrev_b32 v{t0}, 6, v{t0}")
    e(f"v_lshl_add_u32 v{t0}, v{t1}, 13, v{t0}")
    e(f"v_and_b32 v{t1}, 3, v{t1}")
    e(f"v_xor_b32 v{dst}, v{dst}, v{t1}")
    e(f"v_lshl_add_u32 v{dst}, v{dst}, 4, v{t0}")
    e(f"v_add_u32 v{dst}, {QT}, v{dst}")
e(f"s_mul_i32 s{sK3}, s2, 40")
e(f"s_cmp_eq_u32 s{sQ}, {QC}")
e("s_cbranch_scc1 L_f_roleC")
e(f"s_cmp_eq_u32 s{sQ}, {QB}")
e("s_cbranch_scc1 L_f_roleB")
e(f"s_cmp_eq_u32 s{sQ}, {QA}")
e("s_cbranch_scc0 L_f_bar")
c("role A (nodes n)")
node_addr(vRD_, vN, None, vT[0], vT[7])
c("role A residual: h[node n][32ct + 8bb + 4hi..+3]: OWN + n*256 + (((ct*4+bb) ^ (n&15))<<4) + hi*8")
e(f"v_and_b32 v{vT[0]}, 15, v{vN}")
e(f"s_lshl_b32 s{sT0}, s{sCT}, 2")
e(f"v_xor_b32 v{vT[0]}, s{sT0}, v{vT[0]}")
e(f"v_lshlrev_b32 v{vT[0]}, 4, v{vT[0]}")
e(f"v_lshl_add_u32 v{vT[0]}, v{vN}, 8, v{vT[0]}")
e(f"v_lshl_add_u32 v{vT[0]}, v{vHI}, 3, v{vT[0]}")
e(f"v_add_u32 v{vT[0]}, {OWN}, v{vT[0]}")
for bb in range(4):
    e(f"v_xor_b32 v{vT[7]}, {bb<<4}, v{vT[0]}")
    e(f"ds_read_b64 {vr(HRES+2*bb,2)}, v{vT[7]}")
e(f"v_add_u32 v{vOFF}, s{sK3}, v{vN}")
e(f"v_lshlrev_b32 v{vOFF}, 8, v{vOFF}")
e(f"v_lshl_add_u32 v{vOFF}, v{vHI}, 3, v{vOFF}")
e(f"s_lshl_b32 s{sT0}, s{sCT}, 6")
e(f"v_add_u32 v{vOFF}, s{sT0}, v{vOFF}")
e("s_branch L_f_bar")
lab("L_f_roleB")
c("role B (nodes 32 + (n&7))")
e(f"v_and_b32 v{vNODE}, 7, v{vN}")
e(f"v_add_u32 v{vNODE}, 32, v{vNODE}")
node_addr(vRD_, vNODE, None, vT[0], vT[7])
c("role B residual: rows 32+4hi+i, col 32ct+n: OWN + row*256 + (((ct*4 + (n>>3)) ^ (row&15))<<4) + (n&7)*2")
e(f"v_lshrrev_b32 v{vT[0]}, 3, v{vN}")
e(f"s_lshl_b32 s{sT0}, s{sCT}, 2")
e(f"v_add_u32 v{vT[0]}, s{sT0}, v{vT[0]}          ; chunk")
e(f"v_lshlrev_b32 v{vT[7]}, 2, v{vHI}             ; 4hi")
e(f"v_xor_b32 v{vT[0]}, v{vT[0]}, v{vT[7]}")
e(f"v_lshlrev_b32 v{vT[0]}, 4, v{vT[0]}")
e(f"v_lshl_add_u32 v{vT[0]}, v{vT[7]}, 8, v{vT[0]}   ; + 4hi*256")
e(f"v_and_b32 v{vT[5]}, 7, v{vN}")
e(f"v_lshl_add_u32 v{vT[0]}, v{vT[5]}, 1, v{vT[0]}")
e(f"v_add_u32 v{vT[0]}, {OWN + 32*256}, v{vT[0]}")
for i in range(4):
    e(f"v_xor_b32 v{vT[5]}, {i<<4}, v{vT[0]}")
    e(f"ds_read_u16 v{HRES+i}, v{vT[5]} offset:{i*256}")
e(f"s_add_u32 s{sT0}, s{sK3}, 32")
e(f"v_add_u32 v{vOFF}, s{sT0}, v{vT[7]}")
e(f"v_lshlrev_b32 v{vOFF}, 8, v{vOFF}")
e(f"v_lshl_add_u32 v{vOFF}, v{vN}, 1, v{vOFF}")
e(f"s_lshl_b32 s{sT0}, s{sCT}, 6")
e(f"v_add_u32 v{vOFF}, s{sT0}, v{vOFF}")
e("s_branch L_f_bar")
lab("L_f_roleC")
c("role C: n' = min(n,29); idx = 30ct + n' ; G = idx/15 ; r = idx%15 ; c = r/5 ; j = r%5 ; node = 5G + j ; comp = c+1")
e(f"v_min_u32 v{vT[0]}, 29, v{vN}")
e(f"v_cmp_lt_u32 vcc, 14, v{vT[0]}")
e(f"v_cndmask_b32 v{vT[7]}, 0, 1, vcc               ; G&1")
e(f"v_mul_u32_u24 v{vNODE}, 15, v{vT[7]}")
e(f"v_sub_u32 v{vT[0]}, v{vT[0]}, v{vNODE}          ; r")
e(f"v_mul_u32_u24 v{vCMP}, 52, v{vT[0]}")
e(f"v_lshrrev_b32 v{vCMP}, 8, v{vCMP}              ; c")
e(f"v_mul_u32_u24 v{vNODE}, 5, v{vCMP}")
e(f"v_sub_u32 v{vT[0]}, v{vT[0]}, v{vNODE}          ; j")
e(f"s_lshl_b32 s{sT0}, s{sCT}, 1")
e(f"v_add_u32 v{vT[7]}, s{sT0}, v{vT[7]}            ; G")
e(f"v_mad_u32_u24 v{vNODE}, v{vT[7]}, 5, v{vT[0]}")
e(f"v_add_u32 v{vCMP}, 1, v{vCMP}")
node_addr(vRD_, vNODE, vCMP, vT[0], vT[7])
c("role C: pos residual PTF[node][comp-1] ; out offset (40b + node)*6 + (comp-1)*2")
e(f"v_lshlrev_b32 v{vT[0]}, 4, v{vNODE}")
e(f"v_lshl_add_u32 v{vT[0]}, v{vCMP}, 2, v{vT[0]}")
e(f"v_add_u32 v{vT[0]}, {PTF-4}, v{vT[0]}")
e(f"ds_read_b32 v{HRES}, v{vT[0]}")
e(f"v_add_u32 v{vOFF}, s{sK3}, v{vNODE}")
e(f"v_mul_u32_u24 v{vOFF}, 6, v{vOFF}")
e(f"v_lshl_add_u32 v{vOFF}, v{vCMP}, 1, v{vOFF}")
e(f"v_subrev_u32 v{vOFF}, 2, v{vOFF}")
lab("L_f_bar")
e("s_waitcnt lgkmcnt(0)")
c("residency guard: this wave's stamp must be older than the accept window of any later launch")
lab("L_guard")
e(f"s_sub_u32 s{sT0}, s6, s{sTW}")
e(f"s_cmp_ge_u32 s{sT0}, {GUARD}")
e("s_cbranch_scc1 L_guard_ok")
e("s_sleep 8")
e("s_memrealtime s[6:7]")
e("s_waitcnt lgkmcnt(0)")
e("s_branch L_guard")
lab("L_guard_ok")
e("s_barrier")
stamp("final bar")
e(f"s_cmp_eq_u32 s{sQ}, 3")
e("s_cbranch_scc1 L_end")
e(f"v_xor_b32 v{vT[0]}, 32, v{vRD_}")
for s_ in range(8):
    e(f"ds_read_b128 {vr(ROW+4*s_,4)}, v{[vRD_, vT[0]][s_&1]} offset:{(s_>>1)*2048}")
e(f"s_mov_b32 s{sK2}, 0x{NLN2:08x}")
e(f"s_mov_b32 s{sK3}, 0xffff0000")
e("s_waitcnt vmcnt(0)")
e(f"s_cmp_eq_u32 s{sQ}, {QC}")
e("s_cbranch_scc1 L_f_C")
e(f"s_cmp_eq_u32 s{sQ}, {QB}")
e("s_cbranch_scc1 L_f_B")
c("role A")
for s_ in range(8):
    e(f"s_waitcnt lgkmcnt({7-s_})")
    mfma(FACC, WFL+4*s_, ROW+4*s_, vr(FACC,16))
def final_silu(a, n, T):
    for i in range(n): e(f"v_exp_f32 v{T+i}, v{a+i}")
    for i in range(n): e(f"v_add_f32 v{T+i}, 1.0, v{T+i}")
    for i in range(n): e(f"v_rcp_f32 v{T+i}, v{T+i}")
    for i in range(n): e(f"v_mul_f32 v{a+i}, v{a+i}, v{T+i}")
X = 48
e("s_nop 7")
e("s_nop 3")
for i in range(4):
    a = FACC + 4*i
    final_silu(a, 4, X)
    e(f"v_lshlrev_b32 v{X}, 16, v{HRES+2*i}")
    e(f"v_and_b32 v{X+1}, s{sK3}, v{HRES+2*i}")
    e(f"v_lshlrev_b32 v{X+2}, 16, v{HRES+2*i+1}")
    e(f"v_and_b32 v{X+3}, s{sK3}, v{HRES+2*i+1}")
    for k in range(4): e(f"v_fma_f32 v{a+k}, v{a+k}, s{sK2}, v{X+k}")
    e(f"v_cvt_pk_bf16_f32 v{X+4+2*i}, v{a}, v{a+1}")
    e(f"v_cvt_pk_bf16_f32 v{X+5+2*i}, v{a+2}, v{a+3}")
    e(f"buffer_store_dwordx2 {vr(X+4+2*i,2)}, v{vOFF}, {srd(S_O0)}, 0 offen offset:{i*16}")
e("s_branch L_end")
lab("L_f_B")
c("role B: rows 32 + 4hi + r")
for i in range(4): e(f"v_mov_b32 v{ACC+i}, v{FB+i}")
e("s_nop 1")
for s_ in range(8):
    e(f"s_waitcnt lgkmcnt({7-s_})")
    mfma(ACC, ROW+4*s_, WFL+4*s_, vr(ACC,16))
Y = 64
e("s_nop 7")
e("s_nop 3")
final_silu(ACC, 4, Y)
for k in range(4):
    e(f"v_lshlrev_b32 v{Y+k}, 16, v{HRES+k}")
for k in range(4):
    e(f"v_fma_f32 v{ACC+k}, v{ACC+k}, s{sK2}, v{Y+k}")
for k in range(4):
    e(f"v_cvt_pk_bf16_f32 v{Y+8+k}, v{ACC+k}, v{ACC+k}")
for r in range(4):
    e(f"buffer_store_short v{Y+8+r}, v{vOFF}, {srd(S_O0)}, 0 offen offset:{r*256}")
e("s_branch L_end")
lab("L_f_C")
for s_ in range(8):
    e(f"s_waitcnt lgkmcnt({7-s_})")
    mfma(ACC, WFL+4*s_, ROW+4*s_, "0" if s_ == 0 else vr(ACC,16))
e("s_nop 7")
e("s_nop 3")
e(f"v_fma_f32 v{ACC}, v{ACC}, s{sK2}, v{HRES}")
e(f"v_cvt_pk_bf16_f32 v{ACC}, v{ACC}, v{ACC}")
e(f"s_mov_b32 exec_lo, 0x3fffffff")
e(f"s_mov_b32 exec_hi, 0")
e(f"buffer_store_short v{ACC}, v{vOFF}, {srd(S_O1)}, 0 offen")
lab("L_end")
stamp("end")
stamp_flush()
lab("L_end2")
e("s_endpgm")

def zero_lds(Z, vtid):
    c("zero REC (69632 B = 4352 x 16 B) and counters (64 B)")
    for i in range(4): e(f"v_mov_b32 v{Z+i}, 0")
    e(f"v_lshlrev_b32 v{vT[0]}, 4, v{vtid}")
    for i in range(4):
        e(f"ds_write_b128 v{vT[0]}, {vr(Z,4)} offset:{i*16384}")
    e(f"v_add_u32 v{vT[1]}, {65536}, v{vT[0]}")
    e(f"v_add_u32 v{vT[2]}, {CTR - 256*16}, v{vT[0]}")
    e(f"v_cmp_gt_u32 vcc, 256, v{vtid}")
    e(f"v_cndmask_b32 v{vT[1]}, v{vT[2]}, v{vT[1]}, vcc")
    e(f"v_cmp_gt_u32 vcc, 260, v{vtid}")
    e("s_mov_b64 exec, vcc")
    e(f"ds_write_b128 v{vT[1]}, {vr(Z,4)}")
    e("s_mov_b64 exec, -1")
lab("L_slow_init")
e(f"s_mov_b32 s{sMODE}, 1")
e(f"s_mov_b32 s{sCH}, 0")
e(f"s_mov_b32 s{sRETRY}, 0")
e(f"s_and_b32 s{sT3}, s{sT3}, 2")
e(f"s_cmp_eq_u32 s{sT3}, 0")
e("s_cbranch_scc1 L_slow_pass")
c("fallback: the hand-off timed out -> this workgroup computes all of Q and the WH2 fragments itself")
c("(waves 0..7 keep FACC (64..79) / FB (120..123); waves 8..15 run the GEMM blocks)")
e(f"s_mov_b32 s{sU}, 0")
lab("L_fb_loop")
e("s_waitcnt vmcnt(0) lgkmcnt(0)")
e("s_barrier")
e(f"s_cmp_lt_u32 s{sW}, 8")
e("s_cbranch_scc1 L_fb_idle")
gemm_role("fb", sU, True)
e("s_branch L_fb_next")
lab("L_fb_idle")
e("s_barrier")
lab("L_fb_next")
e(f"s_add_u32 s{sU}, s{sU}, 1")
e(f"s_cmp_lt_u32 s{sU}, {NG}")
e("s_cbranch_scc1 L_fb_loop")
e("s_waitcnt vmcnt(0) lgkmcnt(0)")
e("s_barrier")
e(f"s_cmp_ge_u32 s{sW}, 4")
e("s_cbranch_scc1 L_slow_pass")
wprep_role("fb", True)
e("s_branch L_slow_pass")
lab("L_slow_next")
e(f"v_mov_b32 v{vT[0]}, {PEND}")
e(f"ds_read_b32 v{vT[1]}, v{vT[0]}")
e("s_waitcnt lgkmcnt(0)")
e(f"v_readfirstlane_b32 s{sRETRY}, v{vT[1]}")
e("s_nop 3")
e(f"s_cmp_lg_u32 s{sRETRY}, 0")
e("s_cbranch_scc1 L_slow_pass")
lab("L_slow_adv")
e(f"s_add_u32 s{sCH}, s{sCH}, 1")
e(f"s_cmp_ge_u32 s{sCH}, 250")
e("s_cbranch_scc1 L_slow_fin")
lab("L_slow_pass")
e("s_waitcnt vmcnt(0) lgkmcnt(0)")
e("s_barrier")
e(f"s_lshl_b32 s{sT0}, s{sW}, 6")
e(f"v_add_u32 v{tid}, s{sT0}, v{vL}")
zero_lds(116, tid)
c("raw edge e = 640*ch + t (t<640)")
qD, qS, qB, qK, qR, qA = 104, 105, 106, 107, 108, 109
RC = RA; vEA = RA + 2; vI0 = VI[0]; PS0 = PS[0]
e(f"s_mul_i32 s{sT0}, s{sCH}, 2560")
e(f"s_mul_i32 s{sT1}, s{sCH}, 1280")
e(f"v_lshlrev_b32 v{vT[0]}, 2, v{tid}")
e(f"v_lshlrev_b32 v{vT[1]}, 1, v{tid}")
e(f"v_mov_b32 v{qD}, -1")
e(f"v_mov_b32 v{qS}, 0")
e(f"v_mov_b32 v{qP}, 0")
e(f"v_mov_b32 v{vEA}, 0")
e(f"v_mov_b32 v{qA}, 640")
e(f"v_cmp_gt_u32 {sp(sM0)}, v{qA}, v{tid}")
e(f"s_cmp_eq_u64 {sp(sM0)}, 0")
e("s_cbranch_scc1 L_slow_nold")
e(f"s_mov_b64 exec, {sp(sM0)}")
e(f"buffer_load_dword v{qD}, v{vT[0]}, {srd(S_DST)}, s{sT0} offen")
e(f"buffer_load_dword v{qS}, v{vT[0]}, {srd(S_SRC)}, s{sT0} offen")
e(f"buffer_load_ushort v{vEA}, v{vT[1]}, {srd(S_EA)}, s{sT1} offen")
e(f"v_add_u32 v{qA}, {PENDB}, v{tid}")
e(f"ds_read_u8 v{qP}, v{qA}")
e("s_mov_b64 exec, -1")
lab("L_slow_nold")
e("s_waitcnt vmcnt(0) lgkmcnt(0)")
e("s_barrier")
e(f"v_mul_u32_u24 v{qB}, 52429, v{qD}")
e(f"v_lshrrev_b32 v{qB}, 21, v{qB}")
e(f"v_mul_u32_u24 v{qK}, 40, v{qB}")
e(f"v_sub_u32 v{qK}, v{qD}, v{qK}")
e(f"v_cmp_eq_u32 vcc, s2, v{qB}")
e(f"s_and_b64 {sp(sM0)}, {sp(sM0)}, vcc          ; match")
e(f"s_cmp_eq_u32 s{sRETRY}, 0")
e("s_cbranch_scc1 L_slow_fresh")
e(f"v_cmp_ne_u32 vcc, 0, v{qP}")
e(f"s_and_b64 {sp(sM0)}, {sp(sM0)}, vcc")
lab("L_slow_fresh")
e(f"v_and_b32 v{qK}, 63, v{qK}")
e(f"v_min_u32 v{qK}, 39, v{qK}")
e(f"v_mul_u32_u24 v{vI0}, 52, v{qK}")
e(f"v_lshrrev_b32 v{vI0}, 8, v{vI0}           ; g")
e(f"v_mul_u32_u24 v{qA}, 5, v{vI0}")
e(f"v_sub_u32 v{qA}, v{qK}, v{qA}             ; j")
e(f"v_and_b32 v{qS}, 0x3fff, v{qS}")
e(f"v_lshl_or_b32 v{RC}, v{vI0}, 14, v{qS}")
e(f"v_lshl_or_b32 v{RC}, v{qA}, 17, v{RC}")
e(f"s_mov_b32 s{sT0}, {ALLOC}")
e(f"v_lshl_add_u32 v{qA}, v{vI0}, 2, s{sT0}")
e(f"v_mov_b32 v{vOne}, 1")
e(f"v_mov_b32 v{qP}, 0")
e(f"v_mul_u32_u24 v{qB}, 6, v{qS}")
e(f"v_and_b32 v{qB}, -4, v{qB}")
for m in MK[1:]: e(f"s_mov_b64 {sp(m)}, 0")
e(f"s_cmp_eq_u64 {sp(sM0)}, 0")
e("s_cbranch_scc1 L_slow_nom")
e(f"s_mov_b64 exec, {sp(sM0)}")
e(f"buffer_load_dwordx2 {vr(PS0,2)}, v{qB}, {srd(S_POS)}, 0 offen")
e(f"ds_add_rtn_u32 v{qR}, v{qA}, v{vOne}")
e("s_mov_b64 exec, -1")
e(f"v_mul_u32_u24 v{vI0}, {GSTR}, v{vI0}")
e("s_waitcnt lgkmcnt(0)")
s1_place(qR, vI0, qS, sM0, "s", slow=True)
lab("L_slow_nom")
e(f"v_mov_b32 v{qA}, 640")
e(f"v_cmp_gt_u32 vcc, v{qA}, v{tid}")
e("s_mov_b64 exec, vcc")
e("s_cbranch_execz L_slow_nopb")
e(f"v_add_u32 v{qA}, {PENDB}, v{tid}")
e(f"ds_write_b8 v{qA}, v{qP}")
lab("L_slow_nopb")
e("s_mov_b64 exec, -1")
e("s_branch L_st2")
lab("L_slow_fin")
c("SEG must be zero-initialised if no pass ever ran")
e(f"s_cmp_eq_u32 s{sNODE}, 0")
e("s_cbranch_scc1 L_final_bar")
for r in range(32):
    e(f"v_mov_b32 v{SEG+r}, 0")
lab("L_final_bar")
e("s_barrier")
e("s_branch L_final")

desc = f""".amdhsa_kernel {KNAME}
  .amdhsa_next_free_vgpr 128
  .amdhsa_next_free_sgpr 102
  .amdhsa_accum_offset 128
  .amdhsa_group_segment_fixed_size 0
  .amdhsa_kernarg_size 88
  .amdhsa_user_sgpr_count 2
  .amdhsa_user_sgpr_kernarg_segment_ptr 1
  .amdhsa_system_sgpr_workgroup_id_x 1
.end_amdhsa_kernel"""
body = "\n".join(x for x in out if x is not None)
final = "\n".join(header) + "\n" + body + "\n" + '.section .rodata,"a"\n.p2align 6\n' + desc + "\n"
dest = sys.argv[1] if len(sys.argv) > 1 else "standalone__cheap_equivariant_egnn__graph.s"
open(dest, "w").write(final)
print("wrote", dest, len(out), "lines")
```

```python
import sys, os
sys.path.insert(0, os.path.dirname(os.path.abspath(__file__)))
from g3common import *

KNAME = "standalone__cheap_equivariant_egnn__graph_kernel"
TIMING = os.environ.get("TIMING", "")
NOPRIO = os.environ.get("NOPRIO", "")
QSC = os.environ.get("QSC", " sc1")
FORCE = os.environ.get("FORCE", "")
NPOLL = int(os.environ.get("NPOLL", "3000"))
RSL = int(os.environ.get("RSL", "8"))
QSL = int(os.environ.get("QSL", "4"))
NSL = int(os.environ.get("NSL", "8"))
QST = int(os.environ.get("QST", "8"))
PK = int(os.environ.get("PK", "0"))
XM = int(os.environ.get("XM", "0"))
LATE = int(os.environ.get("LATE", "1"))
BSPEC = int(os.environ.get("BSPEC", "1"))
PPF = int(os.environ.get("PPF", "1"))
WSOFF = int(os.environ.get("WSOFF", "0")) << 20
TLBW = int(os.environ.get("TLBW", "0"))
PLATE = int(os.environ.get("PLATE", "1"))
KO = os.environ.get("KO", "")
OSC = os.environ.get("OSC", "")
if OSC: OSC = " " + OSC.replace("_", " ")
YM = int(os.environ.get("YM", "0"))
SWARM = int(os.environ.get("SWARM", "0"))
PSL = int(os.environ.get("PSL", "0"))
QGATE = int(os.environ.get("QGATE", "8"))
H1W = int(os.environ.get("H1W", "2"))
FPRIO = int(os.environ.get("FPRIO", "2"))
FDEL = int(os.environ.get("FDEL", "0"))
F16 = int(os.environ.get("F16", "1"))
HB = int(os.environ.get("HB", "4"))
DELTA = 600
WIN = 8192
GUARD = 800
TAGC = 0x1a5
FLC = 0x5A5AA5A5

CELLA = 0
CHB = 32000
CELLB = 4 << 20
WH2F = 12 << 20
NG = 157; NCH = 63
BIN0 = NG; WPR = NG + NCH
CAP = 136
GSTR = CAP * 64
REC = 0
QT = 8 * GSTR
BXP = QT + 65536
OWN = BXP + 16384
PTF = OWN + 10240
CTR = PTF + 640
ALLOC = CTR; OVF = CTR + 32; PEND = CTR + 36; GCNT = CTR + 40; NONCE = CTR + 44; ZERO16 = CTR + 48
SYN = CTR + 64
RISS = SYN; RCNT = SYN + 4; RCNT2 = SYN + 8; FCNT = SYN + 12; FCNT2 = SYN + 16; RCA = SYN + 20; RLAND = SYN + 24
RCB = SYN + 28; FCB = SYN + 32; FCC = SYN + 36
PENDB = CTR + 128
LDS_TOTAL = PENDB + 640
FLG = 13 << 20
assert LDS_TOTAL <= 163840
NWG = 250

S_H, S_POS, S_EA, S_SRC, S_DST, S_WX, S_O0, S_O1, S_WS, S_Q, S_WE, S_WH = [8 + 4 * i for i in range(12)]
sRW, sRQ, sRL = 56, 57, 58
sC4, sC5 = 4, 5
sW, sQ, sCT, sMODE, sT0, sT1, sT2, sT3 = range(60, 68)
sEX, sM0, sM1, sM2 = 68, 70, 72, 74
sG, sCH2, sCO, sNT, sU, sREM, sK2, sK3, sNODE, sCH, sRETRY, sB0, sB1, sGB, sRT, sROLE = range(76, 92)
sTW, sLOW, sCNT, sC = 92, 93, 94, 95
sPA, sPB = 96, 98
sX0, sX1, sX2 = 96, 97, 98
KS = 76

vL = 0
vLK, vQD, vTRQ0, vTRQ1, vTRS, vOD, vODM = 1, 2, 3, 4, 5, 6, 7
vT = list(range(8, 16))
SEG = 16; ACC = 48; FACC = 64; QF = 80; SF = 88; OHD = 96; BXF = 100; ID = 104; MP = 112; FB = 120
TE = QF
VST = 127

_st = [0]
STAMPS = os.environ.get("STAMPS", "")
STAMPS = set(int(x) for x in STAMPS.split(",")) if STAMPS else None
def stamp(name, idx=None):
    if not TIMING: return
    i = _st[0] if idx is None else idx
    if idx is None: _st[0] += 1
    if STAMPS is not None and i not in STAMPS: return
    c(f"STAMP {i} {name}")
    e(f"s_memtime s[{sC4}:{sC5}]")
    e("s_waitcnt lgkmcnt(0)")
    e(f"v_writelane_b32 v{VST}, s{sC4}, {i}")
    print("stamp", i, name)
def stamp_dyn(base, scnt, mx=11):
    if not TIMING or os.environ.get("STAMPS", ""): return
    e(f"s_memtime s[{sC4}:{sC5}]")
    e(f"s_min_u32 s3, s{scnt}, {mx}")
    e(f"s_add_u32 m0, s3, {base}")
    e("s_waitcnt lgkmcnt(0)")
    e(f"v_writelane_b32 v{VST}, s{sC4}, m0")
def stamp_flush():
    if not TIMING: return
    e(f"s_memrealtime s[{sC4}:{sC5}]")
    e("s_waitcnt lgkmcnt(0)")
    e("s_mov_b64 exec, -1")
    e(f"v_writelane_b32 v{VST}, s100, 62")
    e(f"v_writelane_b32 v{VST}, s{sC4}, 63")
    e(f"s_lshl_b32 s{sT0}, s2, 4")
    e(f"s_add_u32 s{sT0}, s{sT0}, s{sW}")
    e(f"s_lshl_b32 s{sT0}, s{sT0}, 8")
    e(f"s_add_u32 s{sT0}, s{sT0}, {32<<20}")
    e(f"v_lshlrev_b32 v{vT[1]}, 2, v{vL}")
    e(f"buffer_store_dword v{VST}, v{vT[1]}, {srd(S_WS)}, s{sT0} offen")

header = []
header.append(f"; @launch grid=({NWG},1,1) block=(1024,1,1) lds={LDS_TOTAL}")
header.append('.amdgcn_target "amdgcn-amd-amdhsa--gfx950"')
header.append(".text")
header.append(f".globl {KNAME}")
header.append(".p2align 8")
header.append(f".type {KNAME},@function")

lab(KNAME)
e(f"s_cmp_ge_u32 s2, {NWG}")
e("s_cbranch_scc1 L_end2")
e("s_memrealtime s[6:7]")
if TIMING:
    e("s_memrealtime s[100:101]")
if TIMING:
    e(f"v_mov_b32 v{VST}, 0")
stamp("entry")
e(f"s_load_dwordx16 s[{KS}:{KS+15}], s[0:1], 0")
e(f"s_load_dwordx2 s[{S_WS}:{S_WS+1}], s[0:1], 80")
e(f"s_load_dwordx2 s[{S_O0}:{S_O0+1}], s[0:1], 64")
tid = vT[7]
e(f"v_mov_b32 v{tid}, v0")
e(f"v_lshrrev_b32 v{vT[0]}, 6, v0")
e(f"v_and_b32 v{vL}, 63, v0")
e(f"v_readfirstlane_b32 s{sW}, v{vT[0]}")
for (x, sz) in [(S_H,2560000),(S_POS,60000),(S_EA,320000),(S_SRC,640000),(S_DST,640000),(S_WX,256),(S_O0,2560000),(S_O1,60000),
                (S_WS,256*1048576-WSOFF),(S_Q,2560000),(S_WE,66048),(S_WH,65536)]:
    e(f"s_mov_b32 s{x+2}, {sz}")
    e(f"s_mov_b32 s{x+3}, 0x20000")
e(f"s_lshr_b32 s{sQ}, s{sW}, 2")
e(f"s_and_b32 s{sCT}, s{sW}, 3")
e(f"s_and_b32 s{sRW}, s{sW}, 7")
e(f"s_and_b32 s{sRQ}, s{sQ}, 1")
e(f"s_mov_b32 s{sMODE}, 0")
e(f"s_mov_b32 s{sRL}, 0")
def kernarg_copy():
    for (x, k) in [(S_H,0),(S_POS,2),(S_EA,4),(S_SRC,6),(S_DST,8),(S_WE,10),(S_WX,12),(S_WH,14)]:
        e(f"s_mov_b64 s[{x}:{x+1}], s[{KS+k}:{KS+k+1}]")
    if WSOFF:
        e(f"s_add_u32 s{S_WS}, s{S_WS}, {WSOFF}")
        e(f"s_addc_u32 s{S_WS+1}, s{S_WS+1}, 0")
    e(f"s_add_u32 s{S_O1}, s{S_O0}, 2560000")
    e(f"s_addc_u32 s{S_O1+1}, s{S_O0+1}, 0")
    e(f"s_add_u32 s{S_Q}, s{S_WS}, {QOFF}")
    e(f"s_addc_u32 s{S_Q+1}, s{S_WS+1}, 0")
    e(f"s_mov_b32 s{sTW}, s6")
    if SWARM:
        c("address-translation warm-up through the scalar path (results unused)")
        lst = [(S_H,0),(S_POS,0),(S_WE,0),(S_WH,0),(S_SRC,0),(S_DST,0),(S_EA,0),(S_H,2097152),(S_WS,0),(S_WS,FLG & 0xfffff if False else 0),(S_Q,0),(S_O0,0)]
        if SWARM == 1: lst = [(S_H,0),(S_POS,0),(S_WE,0),(S_WH,0)]
        if SWARM == 2: lst = [(S_H,0),(S_POS,0),(S_WE,0),(S_WH,0),(S_SRC,0),(S_DST,0),(S_EA,0)]
        if SWARM == 3: lst = [(S_H,0),(S_POS,0),(S_WE,0),(S_WH,0),(S_SRC,0),(S_DST,0),(S_EA,0),(S_WS,0),(S_Q,0),(S_O0,0)]
        for (x, off) in lst:
            e(f"s_load_dword s3, s[{x}:{x+1}], {off}")

vSL = 16; vTRP = 17; vRA = 18; vRD = 19; vST = 20; vU0 = 21; vU1 = 22
def slice_lane(dst, sct):
    e(f"v_lshrrev_b32 v{dst}, 2, v{vL}")
    e(f"v_lshlrev_b32 v{dst}, 8, v{dst}")
    e(f"v_and_b32 v{vU0}, 3, v{vL}")
    e(f"v_lshl_add_u32 v{dst}, v{vU0}, 4, v{dst}")
    e(f"s_lshl_b32 s{sT0}, s{sct}, 6")
    e(f"v_add_u32 v{dst}, s{sT0}, v{dst}")
def trpat(dst, t0, t1):
    e(f"v_lshrrev_b32 v{t0}, 5, v{vL}")
    e(f"v_bfe_u32 v{t1}, v{vL}, 2, 2")
    e(f"v_lshl_add_u32 v{dst}, v{t0}, 3, v{t1}")
    e(f"v_lshlrev_b32 v{dst}, 6, v{dst}")
    e(f"v_bfe_u32 v{t0}, v{vL}, 4, 1")
    e(f"v_lshl_add_u32 v{dst}, v{t0}, 5, v{dst}")
    e(f"v_and_b32 v{t0}, 3, v{vL}")
    e(f"v_lshl_add_u32 v{dst}, v{t0}, 3, v{dst}")
def row_addr(dst, vrow, vhi, tmp, base=OWN):
    e(f"v_and_b32 v{tmp}, 15, v{vrow}")
    e(f"v_xor_b32 v{tmp}, v{tmp}, v{vhi}")
    e(f"v_lshlrev_b32 v{tmp}, 4, v{tmp}")
    e(f"v_lshl_add_u32 v{dst}, v{vrow}, 8, v{tmp}")
    e(f"v_add_u32 v{dst}, {base}, v{dst}")

Z = 24
for i in range(4): e(f"v_mov_b32 v{Z+i}, 0")
c("wave 0: zero the counters (128 B), then B0")
e(f"s_cmp_eq_u32 s{sW}, 0")
e("s_cbranch_scc0 L_b0")
e(f"v_lshlrev_b32 v{vT[0]}, 4, v{vL}")
e(f"v_add_u32 v{vT[0]}, {CTR}, v{vT[0]}")
e("s_mov_b64 exec, 0xff")
e(f"ds_write_b128 v{vT[0]}, {vr(Z,4)}")
e("s_mov_b64 exec, -1")
e("s_waitcnt lgkmcnt(0)")
lab("L_b0")
e("s_barrier")
vA_ = 23
_sy = [0]
def arrive(addr, regs=None):
    a_, d_ = regs if regs else (vA_, vU1)
    e(f"v_mov_b32 v{a_}, {addr}")
    e(f"v_mov_b32 v{d_}, 1")
    e("s_mov_b64 exec, 1")
    e(f"ds_add_u32 v{a_}, v{d_}")
    e("s_mov_b64 exec, -1")
def wait_cnt(addr, n, nz=False, dst=None, regs=None):
    i = _sy[0]; _sy[0] += 1
    d = dst if dst is not None else sT0
    a_, d_ = regs if regs else (vA_, vU1)
    e(f"v_mov_b32 v{a_}, {addr}")
    lab(f"L_sy{i}")
    e(f"ds_read_b32 v{d_}, v{a_}")
    e("s_waitcnt lgkmcnt(0)")
    e(f"v_readfirstlane_b32 s{d}, v{d_}")
    if nz: e(f"s_cmp_lg_u32 s{d}, 0")
    else:  e(f"s_cmp_ge_u32 s{d}, {n}")
    e(f"s_cbranch_scc1 L_syd{i}")
    e("s_sleep 1")
    e(f"s_branch L_sy{i}")
    lab(f"L_syd{i}")
e(f"s_cmp_ge_u32 s{sW}, 8")
e("s_cbranch_scc1 L_front")
def lane_consts():
    e(f"s_lshr_b32 s{sG}, s{sW}, 1")
    e(f"s_and_b32 s{sCH2}, s{sW}, 1")
    e(f"s_mul_i32 s{sGB}, s{sG}, {GSTR}")
    e(f"s_lshl_b32 s{sB0}, s{sW}, 12")
    e(f"s_add_u32 s{sB0}, s{sB0}, {QT}")
    e(f"s_add_u32 s{sB1}, s{sB0}, 2048")
    c("lane constants (REC rows swizzled: 16-B chunk c of row with rank p at position c ^ ((p>>2)&3))")
    e(f"v_lshrrev_b32 v{vT[3]}, 5, v{vL}           ; hi")
    e(f"v_lshrrev_b32 v{vT[4]}, 3, v{vL}")
    e(f"v_lshlrev_b32 v{vLK}, 6, v{vT[4]}")
    e(f"v_xor_b32 v{vT[4]}, 1, v{vT[3]}")
    e(f"v_lshl_add_u32 v{vLK}, v{vT[4]}, 4, v{vLK}")
    e(f"s_add_u32 s{sT0}, s{sGB}, {REC}")
    e(f"v_add_u32 v{vLK}, s{sT0}, v{vLK}")
    e(f"v_and_b32 v{vT[5]}, 7, v{vL}")
    e(f"v_bfe_u32 v{vT[6]}, v{vL}, 4, 1")
    e(f"v_lshlrev_b32 v{vT[4]}, 2, v{vT[6]}")
    e(f"v_xor_b32 v{vT[5]}, v{vT[5]}, v{vT[4]}")
    e(f"v_lshlrev_b32 v{vQD}, 4, v{vT[5]}")
    e(f"s_lshl_b32 s{sT1}, s{sCH2}, 7")
    e(f"v_add_u32 v{vQD}, s{sT1}, v{vQD}            ; ch*128 + (((l&7) ^ 4*((l>>4)&1))<<4)")
    c("vT6 = colhalf ; r = (l>>2)&3 ; c4 = l&3")
    e(f"v_bfe_u32 v{vT[4]}, v{vL}, 2, 2            ; r")
    e(f"v_and_b32 v{vT[5]}, 3, v{vL}")
    e(f"v_lshlrev_b32 v{vT[2]}, 5, v{vT[6]}")
    e(f"v_lshl_add_u32 v{vT[2]}, v{vT[5]}, 3, v{vT[2]}   ; colhalf*32 + c4*8")
    e(f"v_lshl_add_u32 v{vTRQ0}, v{vT[3]}, 3, v{vT[4]}   ; 8hi + r")
    e(f"v_lshl_add_u32 v{vTRQ0}, v{vTRQ0}, 7, v{vT[2]}")
    e(f"v_bfe_u32 v{vT[5]}, v{vL}, 3, 1            ; (r>>1)&1")
    e(f"v_lshl_add_u32 v{vTRQ0}, v{vT[5]}, 6, v{vTRQ0}")
    e(f"v_add_u32 v{vTRQ0}, s{sB0}, v{vTRQ0}")
    e(f"v_xor_b32 v{vTRQ1}, 64, v{vTRQ0}")
    c("vTRS = REC + g*GSTR + (4hi + r)*64 + ((colhalf*32 + c4*8) ^ (hi<<4))")
    e(f"v_lshlrev_b32 v{vT[5]}, 4, v{vT[3]}")
    e(f"v_xor_b32 v{vT[2]}, v{vT[2]}, v{vT[5]}")
    e(f"v_lshl_add_u32 v{vTRS}, v{vT[3]}, 2, v{vT[4]}    ; 4hi + r")
    e(f"v_lshl_add_u32 v{vTRS}, v{vTRS}, 6, v{vT[2]}")
    e(f"v_add_u32 v{vTRS}, s{sT0}, v{vTRS}")
    c("OHD: lanes 0..15 and 48..63 read chunk 0 of row (l&15) at position (row>>2)&3; others read ZERO16")
    e(f"v_and_b32 v{vT[4]}, 15, v{vL}")
    e(f"v_bfe_u32 v{vT[5]}, v{vL}, 2, 2")
    e(f"v_lshlrev_b32 v{vT[4]}, 6, v{vT[4]}")
    e(f"v_lshl_add_u32 v{vT[4]}, v{vT[5]}, 4, v{vT[4]}")
    e(f"v_add_u32 v{vT[4]}, s{sT0}, v{vT[4]}")
    e(f"v_cmp_eq_u32 vcc, v{vT[3]}, v{vT[6]}")
    e(f"v_mov_b32 v{vT[5]}, {ZERO16}")
    e(f"v_cndmask_b32 v{vOD}, v{vT[5]}, v{vT[4]}, vcc")
    e(f"v_mov_b32 v{vT[4]}, 1024")
    e(f"v_cndmask_b32 v{vODM}, 0, v{vT[4]}, vcc")
    e(f"s_mov_b32 s{sNODE}, 1")
RA = 96; RB = 100; vGA = 105
PS = [56, 58, 60, 62]
VI = [80, 81, 82, 83]
VR = [84, 85, 86, 87]
vOne = 89
qP = 90
VJ = [120+0, 0, 0, 0]
VJ = [110, 111, 95, 88]
MK = [sM0, sM1, sPA, sPB]
if not NOPRIO: e("s_setprio 2")
c("zero REC tail (4096 B, threads 256..511)")
e(f"v_lshlrev_b32 v{vT[0]}, 4, v{tid}")
e(f"v_add_u32 v{vT[1]}, {65536 - 4096}, v{vT[0]}")
e(f"v_cmp_lt_u32 vcc, 255, v{tid}")
e("s_mov_b64 exec, vcc")
e(f"s_cbranch_execz L_notail")
e(f"ds_write_b128 v{vT[1]}, {vr(Z,4)}")
lab("L_notail")
e("s_mov_b64 exec, -1")
e(f"s_cmp_ge_u32 s2, {BIN0}")
e("s_cbranch_scc1 L_notgemm")

AF = 24; BF = 56; D0 = 88
def gemm_role(tag, blk, fb):
    slice_lane(vSL, sCT)
    c("rows DMA lane offset: row = 8w + 4i + (l>>4); chunk = (l&15) ^ (row&15)")
    e(f"v_lshrrev_b32 v{vU0}, 4, v{vL}")
    e(f"v_and_b32 v{vU1}, 15, v{vL}")
    e(f"v_xor_b32 v{vU1}, v{vU1}, v{vU0}")
    e(f"s_and_b32 s{sT0}, s{sRW}, 1")
    e(f"s_lshl_b32 s{sT0}, s{sT0}, 3")
    e(f"v_xor_b32 v{vU1}, s{sT0}, v{vU1}")
    e(f"v_lshlrev_b32 v{vU1}, 4, v{vU1}")
    e(f"v_lshl_add_u32 v{vRA}, v{vU0}, 8, v{vU1}")
    e(f"v_xor_b32 v{vRD}, 64, v{vRA}")
    e(f"s_lshl_b32 s{sT0}, s{sCT}, 13")
    e(f"s_lshl_b32 s{sT1}, s{sRQ}, 12")
    e(f"s_add_u32 s{sT0}, s{sT0}, s{sT1}")
    e(f"s_add_u32 s{sT0}, s{sT0}, {QT}")
    e(f"s_lshl_b32 s{sT1}, s{sRQ}, 14")
    e(f"s_add_u32 s{sT1}, s{sT1}, 32768")
    e(f"s_lshl_b32 s{sT3}, s{sRW}, 11")
    e(f"s_lshl_b32 s{sX0}, s{blk}, 14")
    e(f"s_add_u32 s{sX0}, s{sX0}, s{sT3}           ; (64r + 8w)*256")
    if not fb:
        e("s_waitcnt lgkmcnt(0)")
        stamp("kernarg", 1)
        kernarg_copy()
    e(f"s_add_u32 m0, s{sT3}, {QT+32768}")
    e(f"s_add_u32 s{sX1}, s{sX0}, 1024")
    e(f"buffer_load_dwordx4 v{vRA}, {srd(S_H)}, s{sX0} offen lds")
    e(f"s_add_u32 m0, s{sT3}, {QT+32768+1024}")
    e(f"s_nop 0")
    e(f"buffer_load_dwordx4 v{vRD}, {srd(S_H)}, s{sX1} offen lds")
    for i in range(4):
        e(f"s_add_u32 m0, s{sT0}, {i*1024}")
        e(f"s_add_u32 s{sT2}, s{sT1}, {i*4096}")
        e(f"buffer_load_dwordx4 v{vSL}, {srd(S_WE)}, s{sT2} offen lds")
    if not fb:
        if not LATE: arrive(RISS)
        stamp("role loads issued", 2)
    c("compute: all 8 waves, rb = w>>2, ct = w&3 : 32 rows x 32 cols")
    trpat(vTRP, vU0, vU1)
    e(f"s_lshl_b32 s{sT0}, s{sCT}, 13")
    e(f"s_add_u32 s{sT0}, s{sT0}, {QT}")
    e(f"v_add_u32 v{vTRP}, s{sT0}, v{vTRP}")
    c("row read address: QT+32768 + (rb*32+n)*256 + ((hi ^ (n&15))<<4) ^ (s<<5)")
    e(f"v_and_b32 v{vU0}, 31, v{vL}")
    e(f"v_lshrrev_b32 v{vU1}, 5, v{vL}")
    e(f"v_and_b32 v{vRD}, 15, v{vL}")
    e(f"v_xor_b32 v{vRD}, v{vRD}, v{vU1}")
    e(f"v_lshlrev_b32 v{vRD}, 4, v{vRD}")
    e(f"v_lshl_add_u32 v{vRD}, v{vU0}, 8, v{vRD}")
    e(f"s_lshl_b32 s{sT0}, s{sRQ}, 13")
    e(f"s_add_u32 s{sT0}, s{sT0}, {QT+32768}")
    e(f"v_add_u32 v{vRD}, s{sT0}, v{vRD}")
    c("out tile (2 KB per wave) write addr: OB + n*64 + ((bb ^ ((n>>2)&3))<<4) + hi*8")
    e(f"s_lshl_b32 s{sT0}, s{sRW}, 11")
    e(f"s_add_u32 s{sT0}, s{sT0}, {QT+49152}")
    e(f"v_bfe_u32 v{vRA}, v{vL}, 2, 2")
    e(f"v_lshlrev_b32 v{vRA}, 4, v{vRA}")
    e(f"v_lshl_add_u32 v{vRA}, v{vU0}, 6, v{vRA}")
    e(f"v_lshl_add_u32 v{vRA}, v{vU1}, 3, v{vRA}")
    e(f"v_add_u32 v{vRA}, s{sT0}, v{vRA}")
    c("out tile read addr: OB + (r + 16i)*64 + ((q ^ ((r>>2)&3))<<4), r = l>>2, q = l&3 ; store: row*256 + ct*64 + q*16")
    e(f"v_lshrrev_b32 v{vU0}, 2, v{vL}")
    e(f"v_and_b32 v{vU1}, 3, v{vL}")
    e(f"v_bfe_u32 v{vSL}, v{vL}, 4, 2")
    e(f"v_xor_b32 v{vSL}, v{vSL}, v{vU1}")
    e(f"v_lshlrev_b32 v{vSL}, 4, v{vSL}")
    e(f"v_lshl_add_u32 v{vSL}, v{vU0}, 6, v{vSL}")
    e(f"v_add_u32 v{vSL}, s{sT0}, v{vSL}")
    e(f"v_lshlrev_b32 v{vST}, 4, v{vU1}")
    e(f"v_lshl_add_u32 v{vST}, v{vU0}, 8, v{vST}")
    e(f"s_lshl_b32 s{sT0}, s{blk}, 14")
    e(f"s_lshl_b32 s{sT1}, s{sRQ}, 13")
    e(f"s_add_u32 s{sT0}, s{sT0}, s{sT1}")
    e(f"s_lshl_b32 s{sT1}, s{sCT}, 6")
    e(f"s_add_u32 s{sC}, s{sT0}, s{sT1}")
    e("s_waitcnt vmcnt(0) lgkmcnt(0)")
    if not fb: stamp("role loads landed", 3)
    if fb:
        e("s_barrier")
    else:
        arrive(RCNT)
        if LATE: arrive(RISS)
        wait_cnt(RCNT, 8)
        stamp("B1", 4)
    for s_ in range(8):
        e(f"v_xor_b32 v{vU0}, {s_<<5}, v{vRD}")
        e(f"ds_read_b128 {vr(BF+4*s_,4)}, v{vU0}")
        e(f"ds_read_b64_tr_b16 {vr(AF+4*s_,2)}, v{vTRP} offset:{s_*1024}")
        e(f"ds_read_b64_tr_b16 {vr(AF+4*s_+2,2)}, v{vTRP} offset:{s_*1024+256}")
    for s_ in range(8):
        e(f"s_waitcnt lgkmcnt({min(15, 21-3*s_)})")
        mfma(D0, AF+4*s_, BF+4*s_, "0" if s_ == 0 else vr(D0,16))
    if not fb: arrive(RCA)
    e(f"s_mov_b32 s{sT1}, 0x{NLOG2E:08x}")
    e("s_nop 7")
    e("s_nop 3")
    for bb in range(4):
        r0 = D0 + 4*bb
        for i in range(4):
            e(f"v_mul_f32 v{r0+i}, s{sT1}, v{r0+i}")
        e(f"v_cvt_pk_bf16_f32 v{r0}, v{r0}, v{r0+1}")
        e(f"v_cvt_pk_bf16_f32 v{r0+1}, v{r0+2}, v{r0+3}")
        e(f"v_xor_b32 v{vU0}, {bb<<4}, v{vRA}")
        e(f"ds_write_b64 v{vU0}, {vr(r0,2)}")
    e("s_waitcnt lgkmcnt(0)")
    for i in range(2):
        e(f"ds_read_b128 {vr(AF+4*i,4)}, v{vSL} offset:{i*1024}")
    e(f"s_add_u32 s{sT1}, s{sC}, 4096")
    for i in range(2):
        e(f"s_waitcnt lgkmcnt({1-i})")
        e(f"buffer_store_dwordx4 {vr(AF+4*i,4)}, v{vST}, {srd(S_Q)}, s{[sC,sT1][i]} offen sc1")
    if not fb: stamp("role stores issued", 5)

gemm_role("", 2, False)
e(f"s_mov_b32 s{sRL}, 8")
e(f"s_lshl_b32 s{sX1}, s2, 2")
e(f"s_add_u32 s{sX1}, s{sX1}, {FLG}")
e(f"s_mov_b64 {sp(sM0)}, 1")
e("s_branch L_rfront")

lab("L_notgemm")
e(f"s_cmp_ge_u32 s2, {WPR}")
e("s_cbranch_scc1 L_notbin")
c("binning chunk c = wg - 157: edges e = 2560c + 512i + t ; LDS image: cell b at QT + b*128 (+32000 for ranks 16..31), 8-B records")
NE = 5
CNT = QT + 64000
vD = 24; vS = 29; vB = 34; vR = 39; vP = 44; vE = 54; vE2 = 55; vOne_ = 56; vK = 57; vG_ = 58
VM = [76, 78, 80, 82, 84]
sN40, sCB = 86, 87
e(f"s_sub_u32 s{sC}, s2, {BIN0}")
e(f"s_mul_i32 s{sT0}, s{sC}, {2560*4}")
e(f"v_lshlrev_b32 v{vE}, 2, v{tid}")
e(f"v_lshlrev_b32 v{vE2}, 1, v{tid}")
e(f"v_lshlrev_b32 v{vK}, 4, v{tid}")
e(f"v_add_u32 v{vK}, {QT}, v{vK}")
e(f"v_mov_b32 v{vOne_}, 1")
e(f"s_add_u32 s{sT2}, s{sT0}, 4096")
e(f"s_add_u32 s{sT1}, s{sT0}, 8192")
e(f"s_lshr_b32 s{sX0}, s{sT0}, 1")
e(f"s_add_u32 s{sX1}, s{sX0}, 4096")
e("s_waitcnt lgkmcnt(0)")
stamp("kernarg", 1)
kernarg_copy()
def soff(i): return [sT0, sT0, sT2, sT2, sT1][i], (i & 1) * 2048 if i < 4 else 0
for i in range(NE):
    so, of = soff(i)
    e(f"buffer_load_dword v{vD+i}, v{vE}, {srd(S_DST)}, s{so} offen offset:{of}")
for i in range(NE):
    so, of = soff(i)
    e(f"buffer_load_dword v{vS+i}, v{vE}, {srd(S_SRC)}, s{so} offen offset:{of}")
for i in range(NE):
    so = sX0 if i < 4 else sX1
    e(f"buffer_load_ushort v{vP+2*i+1}, v{vE2}, {srd(S_EA)}, s{so} offen offset:{(i & 3) * 1024 if i < 4 else 0}")
if not LATE: arrive(RISS)
stamp("role loads issued", 2)
c("zero the image and the counters (64 KB) ; v60..63 = 0")
for i in range(4): e(f"v_mov_b32 v{60+i}, 0")
for i in range(8):
    e(f"ds_write_b128 v{vK}, {vr(60,4)} offset:{i*8192}")
arrive(RCNT)
c("validity: e < 160000  <=> byte offset < 640000")
e(f"v_add_u32 v{vE}, s{sT0}, v{vE}")
for i in range(NE):
    e(f"s_mov_b32 s{sX0}, {640000 - i*2048}")
    e(f"v_cmp_gt_u32 {sp(VM[i])}, s{sX0}, v{vE}")
e(f"s_mov_b32 s{sX0}, {CNT}")
e(f"s_mov_b32 s{sX1}, {QT}")
e(f"s_mov_b32 s{sN40}, -40")
e(f"s_mov_b32 s{sCB}, {CHB - 128}")
e(f"s_mov_b32 s{sT3}, {1 << 20}")
wait_cnt(RCNT, 8, dst=sX2)
stamp("B1", 4)
for i in range(NE):
    e(f"s_waitcnt vmcnt({3*NE-1-i})")
    e(f"v_mul_u32_u24 v{vB+i}, 52429, v{vD+i}")
    e(f"v_lshrrev_b32 v{vB+i}, 21, v{vB+i}")
    e(f"v_lshl_add_u32 v{vU0}, v{vB+i}, 2, s{sX0}")
    e(f"s_mov_b64 exec, {sp(VM[i])}")
    e(f"ds_add_rtn_u32 v{vR+i}, v{vU0}, v{vOne_}")
    e(f"v_mad_i32_i24 v{vD+i}, v{vB+i}, s{sN40}, v{vD+i}       ; k")
    e(f"v_lshl_add_u32 v{vB+i}, v{vB+i}, 7, s{sX1}")
    e(f"v_lshlrev_b32 v{vD+i}, 14, v{vD+i}")
    e(f"s_mov_b64 exec, -1")
for i in range(NE):
    e(f"s_waitcnt vmcnt({2*NE-1-i})")
    e(f"v_or3_b32 v{vP+2*i}, v{vD+i}, v{vS+i}, s{sT3}")
e("s_waitcnt vmcnt(0) lgkmcnt(0)")
if LATE: arrive(RISS)
stamp("role loads landed", 3)
for i in range(NE):
    e(f"v_lshl_add_u32 v{vU0}, v{vR+i}, 3, v{vB+i}")
    e(f"v_lshrrev_b32 v{vU1}, 4, v{vR+i}")
    e(f"s_mov_b64 exec, {sp(VM[i])}")
    e(f"v_cmp_gt_u32 vcc, 32, v{vR+i}")
    e(f"v_mad_u32_u24 v{vU0}, v{vU1}, s{sCB}, v{vU0}")
    e(f"s_mov_b64 exec, vcc")
    e(f"ds_write_b64 v{vU0}, {vr(vP+2*i,2)}")
    e(f"s_mov_b64 exec, -1")
e("s_waitcnt lgkmcnt(0)")
arrive(RCNT2)
c("copy-out: granule x = t + 512i (<2000): cell b = x>>3, q = x&7")
GA = 24; vCn = 40; vX = 45; vF = 46; vY = 47; vXL = 52
e(f"v_lshlrev_b32 v{vX}, 4, v{tid}               ; x*16 (i=0)")
e(f"v_lshrrev_b32 v{vY}, 3, v{tid}")
e(f"v_lshl_add_u32 v{vY}, v{vY}, 2, s{sX0}")
e(f"v_add_u32 v{vXL}, {QT}, v{vX}")
e(f"s_mul_i32 s{sT0}, s{sC}, {CHB}")
e(f"s_bfe_u32 s{sT1}, s{sTW}, {3 | (9<<16)}")
e(f"s_xor_b32 s{sT1}, s{sT1}, {TAGC}")
e(f"s_lshl_b32 s{sT1}, s{sT1}, 23")
e(f"s_mov_b32 s{sX1}, {2000-1536}")
e(f"v_cmp_gt_u32 {sp(sM1)}, s{sX1}, v{tid}")
e(f"v_mov_b32 v{vCn+3}, 0")
wait_cnt(RCNT2, 8, dst=sX2)
stamp("B2", 6)
for i in range(4):
    if i == 3:
        e(f"s_mov_b64 exec, {sp(sM1)}")
    e(f"ds_read_b128 {vr(GA+4*i,4)}, v{vXL} offset:{i*8192}")
    e(f"ds_read_b32 v{vCn+i}, v{vY} offset:{i*256}")
e("s_mov_b64 exec, -1")
def granule(G, cn, so):
    e(f"v_add_u32 v{vU0}, 15, v{cn}")
    e(f"v_lshrrev_b32 v{vU0}, 4, v{vU0}")
    e(f"v_min_u32 v{vU0}, 3, v{vU0}")
    e(f"v_lshl_or_b32 v{vF}, v{vU0}, 21, s{sT1}")
    e(f"v_lshl_or_b32 v{G+1}, v{G+3}, 16, v{G+1}")
    e(f"v_or_b32 v{G}, v{G}, v{vF}")
    e(f"v_or_b32 v{G+2}, v{G+2}, v{vF}")
    e(f"v_mov_b32 v{G+3}, s{sTW}")
    e(f"buffer_store_dwordx4 {vr(G,4)}, v{vX}, {srd(S_WS)}, s{so} offen sc1")
for i in range(4):
    if i == 3:
        e(f"s_mov_b64 exec, {sp(sM1)}")
    e(f"s_waitcnt lgkmcnt({2*(3-i)})")
    granule(GA+4*i, vCn+i, sT0)
    e(f"s_add_u32 s{sT0}, s{sT0}, 8192")
e("s_mov_b64 exec, -1")
stamp("role stores issued", 5)
c("B lines (ranks 16..31) for cells with count > 16")
e(f"s_mul_i32 s{sT0}, s{sC}, {CHB}")
e(f"s_add_u32 s{sT0}, s{sT0}, {CELLB}")
for i in range(4):
    e(f"v_cmp_lt_u32 vcc, 16, v{vCn+i}")
    e("s_mov_b64 exec, vcc")
    e(f"s_cbranch_execz L_nob{i}")
    e(f"ds_read_b128 {vr(48,4)}, v{vXL} offset:{CHB+i*8192}")
    e("s_waitcnt lgkmcnt(0)")
    granule(48, vCn+i, sT0)
    e("s_nop 1")
    lab(f"L_nob{i}")
    e("s_mov_b64 exec, -1")
    e(f"s_add_u32 s{sT0}, s{sT0}, 8192")
arrive(RCA)
e("s_branch L_rfront")

lab("L_notbin")
def wprep_role(tag, fb):
    slice_lane(vSL, sCT)
    e(f"s_lshl_b32 s{sT2}, s{sCT}, 13")
    e(f"s_add_u32 s{sT2}, s{sT2}, {QT}")
    trpat(vTRP, vU0, vU1)
    e(f"v_add_u32 v{vTRP}, s{sT2}, v{vTRP}")
    e(f"v_lshlrev_b32 v{vST}, 4, v{vL}")
    for i in range(8):
        e(f"s_add_u32 m0, s{sT2}, {i*1024}")
        e(f"s_mov_b32 s{sT1}, {32768 + i*4096}")
        e(f"buffer_load_dwordx4 v{vSL}, {srd(S_WH)}, s{sT1} offen lds")
    e(f"s_lshl_b32 s{sC}, s{sCT}, 13")
    e(f"s_add_u32 s{sC}, s{sC}, {WH2F}")
    e("s_waitcnt vmcnt(0)")
    for s_ in range(8):
        e(f"ds_read_b64_tr_b16 {vr(AF+4*s_,2)}, v{vTRP} offset:{s_*1024}")
        e(f"ds_read_b64_tr_b16 {vr(AF+4*s_+2,2)}, v{vTRP} offset:{s_*1024+256}")
    for s_ in range(8):
        if s_ == 4:
            e(f"s_add_u32 s{sC}, s{sC}, 4096")
        e(f"s_waitcnt lgkmcnt({2*(7-s_)})")
        e(f"buffer_store_dwordx4 {vr(AF+4*s_,4)}, v{vST}, {srd(S_WS)}, s{sC} offen offset:{(s_%4)*1024} sc1")
e("s_waitcnt lgkmcnt(0)")
stamp("kernarg", 1)
kernarg_copy()
arrive(RISS)
c("workgroups WPR..WPR+3: slice ct = wg - WPR of WH2 ; wave w converts k-step w")
e(f"s_sub_u32 s{sC}, s2, {WPR}")
e(f"s_cmp_ge_u32 s{sC}, 4")
e("s_cbranch_scc1 L_norole")
slice_lane(vSL, sC)
trpat(vTRP, vU0, vU1)
e(f"s_lshl_b32 s{sT2}, s{sW}, 10")
e(f"s_add_u32 s{sT2}, s{sT2}, {QT}")
e(f"v_add_u32 v{vTRP}, s{sT2}, v{vTRP}")
e(f"v_lshlrev_b32 v{vST}, 4, v{vL}")
e(f"s_lshl_b32 s{sT1}, s{sW}, 12")
e(f"s_add_u32 s{sT1}, s{sT1}, 32768")
e(f"s_mov_b32 m0, s{sT2}")
e(f"s_lshl_b32 s{sT3}, s{sC}, 13")
e(f"buffer_load_dwordx4 v{vSL}, {srd(S_WH)}, s{sT1} offen lds")
e(f"s_lshl_b32 s{sT0}, s{sW}, 10")
e(f"s_add_u32 s{sT3}, s{sT3}, s{sT0}")
e(f"s_add_u32 s{sT3}, s{sT3}, {WH2F}")
e("s_waitcnt vmcnt(0)")
e(f"ds_read_b64_tr_b16 {vr(AF,2)}, v{vTRP}")
e(f"ds_read_b64_tr_b16 {vr(AF+2,2)}, v{vTRP} offset:256")
e("s_waitcnt lgkmcnt(0)")
e(f"buffer_store_dwordx4 {vr(AF,4)}, v{vST}, {srd(S_WS)}, s{sT3} offen sc1")
e(f"s_mov_b32 s{sRL}, 8")
e(f"s_lshl_b32 s{sX1}, s{sC}, 2")
e(f"s_add_u32 s{sX1}, s{sX1}, {FLG + NG*4}")
e(f"s_mov_b64 {sp(sM0)}, 1")
e(f"s_cmp_eq_u32 s{sC}, 3")
e(f"s_cselect_b64 {sp(sM0)}, 15, {sp(sM0)}")
lab("L_norole")
arrive(RCA)
lab("L_rfront")
c("R waves after the role: H1 (quad 0: nodes 0..31, quad 1: nodes 32..39); WH1 slices staged in QT (ct*8192)")
WF = 16
D1 = 96
vR2 = 114
def rowreg(s_): return (ACC + 4*s_) if s_ < 4 else (QF + 4*(s_-4))
slice_lane(vT[2], sCT)
e(f"s_lshl_b32 s{sT2}, s{sCT}, 13")
e(f"s_add_u32 s{sT2}, s{sT2}, {QT}")
e(f"s_lshl_b32 s{sT3}, s{sRQ}, 12")
e(f"s_add_u32 s{sT3}, s{sT3}, s{sT2}          ; + half*4096")
e(f"s_lshl_b32 s{sX0}, s{sRQ}, 14")
wait_cnt(RCA, 8, dst=sX2)
for i in range(4):
    e(f"s_add_u32 m0, s{sT3}, {i*1024}")
    e(f"s_add_u32 s{sT1}, s{sX0}, {i*4096}")
    e(f"buffer_load_dwordx4 v{vT[2]}, {srd(S_WH)}, s{sT1} offen lds")
stamp("h1 dma", 7)
c("signal: the last of the role's waves writes the flag(s) once all stores are complete")
e(f"s_mov_b32 s{sC}, 0")
e(f"s_cmp_eq_u32 s{sRL}, 0")
e("s_cbranch_scc1 L_nosig")
e("s_waitcnt vmcnt(4)")
e(f"v_mov_b32 v{vU0}, {GCNT}")
e(f"v_mov_b32 v{vU1}, 1")
e("s_mov_b64 exec, 1")
e(f"ds_add_rtn_u32 v{vRA}, v{vU0}, v{vU1}")
e("s_waitcnt lgkmcnt(0)")
e("s_mov_b64 exec, -1")
e(f"v_readfirstlane_b32 s{sT0}, v{vRA}")
e(f"s_xor_b32 s{sT1}, s{sTW}, {FLC}")
e(f"v_mov_b32 v{vU1}, s{sT1}")
e(f"v_lshlrev_b32 v{vU0}, 2, v{vL}")
e(f"s_add_u32 s{sT0}, s{sT0}, 1")
e(f"s_cmp_eq_u32 s{sT0}, s{sRL}")
e(f"s_cbranch_scc0 L_nosig")
e(f"s_mov_b64 exec, {sp(sM0)}")
e(f"buffer_store_dword v{vU1}, v{vU0}, {srd(S_WS)}, s{sX1} offen sc1")
e("s_mov_b64 exec, -1")
e(f"s_mov_b32 s{sC}, 1")
lab("L_nosig")
stamp("role signalled", 6)
if not NOPRIO: e("s_setprio 0")
e(f"s_mov_b32 s{sX0}, s{sT2}")
lane_consts()
trpat(vT[6], vT[0], vT[1])
e(f"v_add_u32 v{vT[6]}, s{sX0}, v{vT[6]}")
e(f"v_lshrrev_b32 v{vT[3]}, 5, v{vL}           ; hi")
e(f"v_and_b32 v{vT[4]}, 31, v{vL}")
e(f"s_lshl_b32 s{sT0}, s{sRQ}, 5")
e(f"v_add_u32 v{vT[4]}, s{sT0}, v{vT[4]}")
e(f"v_min_u32 v{vT[4]}, 39, v{vT[4]}")
row_addr(vT[1], vT[4], vT[3], vT[2])
c("DMA landed (the flag store, if this wave issued it, may stay in flight)")
e(f"s_cmp_eq_u32 s{sC}, 0")
e("s_cbranch_scc1 L_h1w0")
e(f"s_waitcnt vmcnt(1)")
e("s_branch L_h1w1")
lab("L_h1w0")
e("s_waitcnt vmcnt(0)")
lab("L_h1w1")
arrive(RCB)
wait_cnt([FCNT, FCC, FCNT2][H1W], 8, dst=sX2)
for s_ in range(8):
    e(f"v_xor_b32 v{vT[2]}, {s_<<5}, v{vT[1]}")
    e(f"ds_read_b128 {vr(rowreg(s_),4)}, v{vT[2]}")
wait_cnt(RCB, 8, dst=sX2)
for s_ in range(8):
    e(f"ds_read_b64_tr_b16 {vr(WF+4*s_,2)}, v{vT[6]} offset:{s_*1024}")
    e(f"ds_read_b64_tr_b16 {vr(WF+4*s_+2,2)}, v{vT[6]} offset:{s_*1024+256}")
e(f"s_mov_b32 s{sK2}, 0x{NLOG2E:08x}")
e(f"s_cmp_eq_u32 s{sRQ}, 0")
e("s_cbranch_scc0 L_h1b")
for s_ in range(8):
    e(f"s_waitcnt lgkmcnt({2*(7-s_)})")
    mfma(FACC, WF+4*s_, rowreg(s_), "0" if s_ == 0 else vr(FACC,16))
e("s_nop 7")
e("s_nop 3")
for r in range(16):
    e(f"v_mul_f32 v{FACC+r}, s{sK2}, v{FACC+r}")
e("s_branch L_h1d")
lab("L_h1b")
for s_ in range(8):
    e(f"s_waitcnt lgkmcnt({2*(7-s_)})")
    mfma(D1, rowreg(s_), WF+4*s_, "0" if s_ == 0 else vr(D1,16))
e("s_nop 7")
e("s_nop 3")
for r in range(4):
    e(f"v_mul_f32 v{FB+r}, s{sK2}, v{D1+r}")
lab("L_h1d")
stamp("h1 done", 8)
e("s_branch L_common")

lab("L_front")
QA, QB, QC = 0, 1, 2
KB = 124
PWR = 116
fw = sX2
e(f"s_sub_u32 s{fw}, s{sW}, 8")
e(f"v_lshlrev_b32 v{vT[0]}, 4, v{tid}")
c("own rows dma: instr idx u covers rows 4u..4u+3 ; lane: row = 4u + (l>>4); chunk = (l&15) ^ (row&15)")
e(f"v_lshrrev_b32 v{vT[4]}, 4, v{vL}")
e(f"v_and_b32 v{vT[1]}, 15, v{vL}")
e(f"v_xor_b32 v{vT[1]}, v{vT[1]}, v{vT[4]}")
e(f"s_lshl_b32 s{sT1}, s{sCT}, 2")
e(f"v_xor_b32 v{vT[1]}, s{sT1}, v{vT[1]}")
e(f"v_lshlrev_b32 v{vT[1]}, 4, v{vT[1]}")
e(f"v_lshl_add_u32 v{vT[1]}, v{vT[4]}, 8, v{vT[1]}")
slice_lane(vT[2], sCT)
e(f"s_lshl_b32 s{sT2}, s{sCT}, 13")
e(f"s_mul_i32 s{sT0}, s2, {40*256}")
e(f"s_lshl_b32 s{sT1}, s{fw}, 10")
e(f"s_add_u32 s{sT0}, s{sT0}, s{sT1}")
e(f"v_mul_u32_u24 v{vT[3]}, 6, v{vL}")
e(f"v_and_b32 v{vT[5]}, 31, v{vL}")
e(f"s_lshl_b32 s{sT3}, s{sCT}, 5")
e(f"v_add_u32 v{vT[5]}, s{sT3}, v{vT[5]}")
e(f"v_lshlrev_b32 v{vT[5]}, 1, v{vT[5]}           ; (32ct + n)*2")
e("s_waitcnt lgkmcnt(0)")
stamp("kernarg", 1)
kernarg_copy()
if FDEL: e(f"s_sleep {FDEL}")
e(f"s_add_u32 m0, s{sT1}, {OWN}")
e("s_nop 0")
e(f"buffer_load_dwordx4 v{vT[1]}, {srd(S_H)}, s{sT0} offen lds")
e(f"s_cmp_ge_u32 s{fw}, 2")
e("s_cbranch_scc1 L_f_no2")
e(f"s_add_u32 m0, s{sT1}, {OWN+8192}")
e(f"s_add_u32 s{sT0}, s{sT0}, 8192")
e(f"buffer_load_dwordx4 v{vT[1]}, {srd(S_H)}, s{sT0} offen lds")
lab("L_f_no2")
c("wave 10: own pos (lane l<40 loads x,y,z u16)")
e(f"s_cmp_eq_u32 s{fw}, 2")
e("s_cbranch_scc0 L_f_nopos")
e(f"s_mul_i32 s{sT0}, s2, 240")
e(f"v_cmp_gt_u32 vcc, 40, v{vL}")
e("s_mov_b64 exec, vcc")
for k in range(3):
    e(f"buffer_load_ushort v{PWR+k}, v{vT[3]}, {srd(S_POS)}, s{sT0} offen offset:{2*k}")
e("s_mov_b64 exec, -1")
lab("L_f_nopos")
if PPF:
    c("L2 warm-up of pos: segment (wg>>3)&7 of 7680 B, 960 B per F wave (result unused)")
    e(f"s_lshr_b32 s{sT1}, s2, 3")
    e(f"s_and_b32 s{sT1}, s{sT1}, 7")
    e(f"s_lshl_b32 s{sT1}, s{sT1}, 3")
    e(f"s_add_u32 s{sT1}, s{sT1}, s{fw}")
    e(f"s_mul_i32 s{sT1}, s{sT1}, 960")
    e(f"v_lshlrev_b32 v{vT[7]}, 4, v{vL}")
    e(f"buffer_load_dwordx4 {vr(108,4)}, v{vT[7]}, {srd(S_POS)}, s{sT1} offen")
c("K1B raw: w_e rows 256, 257")
e(f"s_mov_b32 s{sT1}, 65536")
e(f"buffer_load_ushort v{KB}, v{vT[5]}, {srd(S_WE)}, s{sT1} offen")
e(f"buffer_load_ushort v{KB+1}, v{vT[5]}, {srd(S_WE)}, s{sT1} offen offset:256")
e(f"s_add_u32 s{sX1}, s{sT2}, {REC}")
e(f"s_lshl_b32 s{sT3}, s{sRQ}, 12")
e(f"s_add_u32 s{sT3}, s{sT3}, s{sX1}          ; + half*4096")
e(f"s_lshl_b32 s{sX0}, s{sRQ}, 14")
stamp("role loads issued", 2)
c("zero REC[32768, 65536) (the first 32 KB stage W1 and are zeroed after use)")
for i in range(4):
    e(f"ds_write_b128 v{vT[0]}, {vr(Z,4)} offset:{32768 - 8192 + i*8192}")
c("let the role loads go first")
if YM == 1:
    e(f"s_cmp_lt_u32 s2, {BIN0}")
    e("s_cbranch_scc1 L_f_noriss")
wait_cnt(RISS, 8)
if YM == 1: lab("L_f_noriss")
stamp("B1", 4)
c("W1 slice ct (w_e rows 0..127): this wave loads k-steps 4*half .. 4*half+3")
for i in range(4):
    e(f"s_add_u32 m0, s{sT3}, {i*1024}")
    e(f"s_add_u32 s{sT1}, s{sX0}, {i*4096}")
    e(f"buffer_load_dwordx4 v{vT[2]}, {srd(S_WE)}, s{sT1} offen lds")
lane_consts()
e("s_waitcnt vmcnt(4)")
arrive(FCNT)
c("wave 10: PTF (f32 x4 per node)")
e(f"s_cmp_eq_u32 s{fw}, 2")
e("s_cbranch_scc0 L_noptf")
for k in range(3): e(f"v_lshlrev_b32 v{PWR+k}, 16, v{PWR+k}")
e(f"v_mov_b32 v{PWR+3}, 0")
e(f"v_lshlrev_b32 v{vT[0]}, 4, v{vL}")
e(f"v_add_u32 v{vT[0]}, {PTF}, v{vT[0]}")
e(f"v_cmp_gt_u32 vcc, 40, v{vL}")
e("s_mov_b64 exec, vcc")
e(f"ds_write_b128 v{vT[0]}, {vr(PWR,4)}")
e("s_mov_b64 exec, -1")
lab("L_noptf")
stamp("role loads landed", 3)
trpat(vT[6], vT[0], vT[1])
e(f"v_add_u32 v{vT[6]}, s{sX1}, v{vT[6]}")
c("P' task: rows m: slot = m&7, g' = m>>3 ; node = 5*(4B + g') + max(slot-3,0), B = half")
e(f"v_lshrrev_b32 v{vT[3]}, 5, v{vL}           ; hi")
e(f"v_and_b32 v{vT[0]}, 7, v{vL}")
e(f"v_subrev_u32 v{vT[0]}, 3, v{vT[0]}")
e(f"v_max_i32 v{vT[0]}, 0, v{vT[0]}")
e(f"v_bfe_u32 v{vT[1]}, v{vL}, 3, 2")
e(f"v_mad_u32_u24 v{vT[0]}, v{vT[1]}, 5, v{vT[0]}        ; node (B=0)")
e(f"s_mul_i32 s{sT0}, s{sRQ}, 20")
e(f"v_add_u32 v{vT[0]}, s{sT0}, v{vT[0]}")
row_addr(vT[1], vT[0], vT[3], vT[2])
c("K1B: (wd, we) scaled, hi and lo parts")
e(f"s_mov_b32 s{sT0}, 0x{NLOG2E:08x}")
e(f"s_mov_b32 s{sT1}, 0xffff0000")
k0, k1, k2, k3 = 116, 117, 118, 119
e(f"v_lshlrev_b32 v{k0}, 16, v{KB}")
e(f"v_lshlrev_b32 v{k1}, 16, v{KB+1}")
e(f"v_mul_f32 v{k0}, s{sT0}, v{k0}")
e(f"v_mul_f32 v{k1}, s{sT0}, v{k1}")
e(f"v_cvt_pk_bf16_f32 v{KB}, v{k0}, v{k1}")
e(f"v_lshlrev_b32 v{k2}, 16, v{KB}")
e(f"v_and_b32 v{k3}, s{sT1}, v{KB}")
e(f"v_sub_f32 v{k0}, v{k0}, v{k2}")
e(f"v_sub_f32 v{k1}, v{k1}, v{k3}")
e(f"v_cvt_pk_bf16_f32 v{KB+1}, v{k0}, v{k1}")
c("P' write: BXP + g*2048 + (32ct + n)*16 + hi*8 ; hi=0 lanes: slots 0,1 = (wd,we) hi ; slot 2 = wd lo ; slot 3 = P'[j=0]")
vPW, vPM = 126, 127 if not TIMING else 115
e(f"v_and_b32 v{vPW}, 31, v{vL}")
e(f"v_lshlrev_b32 v{vPW}, 4, v{vPW}")
e(f"v_lshl_add_u32 v{vPW}, v{vT[3]}, 3, v{vPW}")
e(f"s_lshl_b32 s{sT0}, s{sCT}, 9")
e(f"s_lshl_b32 s{sT1}, s{sRQ}, 13")
e(f"s_add_u32 s{sT0}, s{sT0}, s{sT1}")
e(f"s_add_u32 s{sT0}, s{sT0}, {BXP}")
e(f"v_add_u32 v{vPW}, s{sT0}, v{vPW}")
e(f"v_cmp_gt_u32 vcc, 32, v{vL}")
e(f"v_mov_b32 v{vPM}, 0xffff0000")
e(f"v_cndmask_b32 v{vPM}, -1, v{vPM}, vcc         ; mask M")
e(f"v_and_b32 v{KB+1}, 0xffff, v{KB+1}")
e(f"v_cndmask_b32 v{KB+1}, 0, v{KB+1}, vcc")
e(f"s_mov_b32 s{sK2}, 0x{NLOG2E + ((7 << 23) if F16 else 0):08x}")
for i in range(4): e(f"v_mov_b32 v{116+i}, 0")
e("s_waitcnt vmcnt(0)")
stamp("slices landed", 6)
arrive(FCB)
c("---- granule (16 B, two records) per lane: c = 8fw + (l>>3), q = l&7 : c*32000 + q*16 (+ b*128)")
e(f"s_lshl_b32 s{sT0}, s{fw}, 3")
e(f"v_lshrrev_b32 v{vT[4]}, 3, v{vL}")
e(f"v_add_u32 v{vT[4]}, s{sT0}, v{vT[4]}          ; c")
e(f"v_mul_u32_u24 v{vGA}, {CHB}, v{vT[4]}")
e(f"v_and_b32 v{vT[5]}, 7, v{vL}")
e(f"v_lshl_add_u32 v{vGA}, v{vT[5]}, 4, v{vGA}")
e(f"v_lshlrev_b32 v{vT[0]}, 4, v{vL}")
e(f"s_lshl_b32 s{sT0}, s{fw}, 12")
e(f"v_add_u32 v{vT[0]}, s{sT0}, v{vT[0]}")
e(f"v_cmp_gt_u32 {sp(sPA)}, {NCH}, v{vT[4]}")
e(f"s_lshl_b32 s{sT2}, s2, 7")
e(f"s_add_u32 s{sT3}, s{sT2}, {CELLB}")
e(f"s_mov_b64 {sp(sPB)}, {sp(sPA)}")
e(f"s_mov_b64 {sp(sEX)}, {sp(sPA)}")
e(f"s_sub_u32 s{sLOW}, s{sTW}, {DELTA}")
if FORCE == "ovf":
    e(f"s_add_u32 s{sLOW}, s{sLOW}, 0x40000000")
e(f"s_mov_b32 s{sK3}, {WIN}")
e(f"s_mov_b32 s{sCNT}, 0")
e(f"s_mov_b64 {sp(sM2)}, {sp(sPB)}")
wait_cnt(FCB, 8)
stamp("fcb", 45)
for s_ in range(8):
    e(f"ds_read_b64_tr_b16 {vr(WF+4*s_,2)}, v{vT[6]} offset:{s_*1024}")
    e(f"ds_read_b64_tr_b16 {vr(WF+4*s_+2,2)}, v{vT[6]} offset:{s_*1024+256}")
_pi = [0]
def poll_issue():
    i = _pi[0]; _pi[0] += 1
    e(f"s_cmp_eq_u64 {sp(sPA)}, 0")
    e(f"s_cbranch_scc1 L_rp_noa{i}")
    e(f"s_mov_b64 exec, {sp(sPA)}")
    e(f"buffer_load_dwordx4 {vr(RA,4)}, v{vGA}, {srd(S_WS)}, s{sT2} offen sc1")
    lab(f"L_rp_noa{i}")
    e(f"s_cmp_eq_u64 {sp(sM2)}, 0")
    e(f"s_cbranch_scc1 L_rp_nob{i}")
    e(f"s_mov_b64 exec, {sp(sM2)}")
    e(f"buffer_load_dwordx4 {vr(RB,4)}, v{vGA}, {srd(S_WS)}, s{sT3} offen sc1")
    lab(f"L_rp_nob{i}")
    e("s_mov_b64 exec, -1")
def pwrite(r0, g):
    for i in range(4):
        e(f"v_mul_f32 v{r0+i}, s{sK2}, v{r0+i}")
    e(f"v_cvt_pk_bf16_f32 v{r0}, v{r0}, v{r0+1}")
    e(f"v_cvt_pk_bf16_f32 v{r0+1}, v{r0+2}, v{r0+3}")
    e(f"v_cndmask_b32 v{r0}, v{r0}, v{KB}, vcc")
    e(f"v_and_or_b32 v{r0+1}, v{r0+1}, v{vPM}, v{KB+1}")
    e(f"ds_write_b64 v{vPW}, {vr(r0,2)} offset:{g*2048}")
def p_compute(first):
    for s_ in range(8):
        e(f"v_xor_b32 v{vT[2]}, {s_<<5}, v{vT[1]}")
        e(f"ds_read_b128 {vr(rowreg(s_),4)}, v{vT[2]}")
    for s_ in range(8):
        e(f"s_waitcnt lgkmcnt({7-s_})")
        mfma(FACC, rowreg(s_), WF+4*s_, "0" if s_ == 0 else vr(FACC,16))
    stamp("mfma issued", 46)
    e(f"v_cmp_gt_u32 vcc, 32, v{vL}")
    e("s_nop 7")
    e("s_nop 3")
    for g in range(4):
        pwrite(FACC+4*g, g)
e("s_waitcnt lgkmcnt(0)")
FR = (112, 113)
arrive(FCC, FR)
if not PLATE: p_compute(True)
c("all eight waves hold their fragments: zero the staging area (4 KB per wave)")
wait_cnt(FCC, 8, regs=FR)
for i in range(4):
    e(f"ds_write_b128 v{vT[0]}, {vr(116,4)} offset:{REC + i*1024}")
e("s_waitcnt lgkmcnt(0)")
arrive(FCNT2, FR)
stamp("front done", 5)
if not NOPRIO: e(f"s_setprio {FPRIO}")
if PLATE == 2: p_compute(True)
if PSL: e(f"s_sleep {PSL}")
poll_issue()
stamp("B3", 7)
if PLATE == 1: p_compute(True)
e("s_branch L_rpoll")

lab("L_common")
c("---- R waves: no records ; wave 7 waits for the Q / WH2F flags")
for m in MK: e(f"s_mov_b64 {sp(m)}, 0")
e(f"s_cmp_eq_u32 s{sW}, 7")
e("s_cbranch_scc0 L_ba")
if QGATE: wait_cnt(RLAND, QGATE)
e(f"v_lshlrev_b32 v{vT[4]}, 4, v{vL}")
e(f"s_mov_b32 s{sCNT}, 0")
e(f"s_mov_b32 s{sT2}, {FLG}")
e(f"s_sub_u32 s{sLOW}, s{sTW}, {DELTA}")
if FORCE == "fb":
    e(f"s_add_u32 s{sLOW}, s{sLOW}, 0x40000000")
e(f"s_mov_b32 s{sK3}, {WIN}")
e("s_mov_b32 exec_lo, -1")
e("s_mov_b32 exec_hi, 0x1ff")
lab("L_qpoll")
e(f"buffer_load_dwordx4 {vr(RA,4)}, v{vT[4]}, {srd(S_WS)}, s{sT2} offen sc1")
e(f"s_add_u32 s{sCNT}, s{sCNT}, 1")
e("s_waitcnt vmcnt(0)")
stamp_dyn(19, sCNT)
for k in range(4):
    e(f"v_xor_b32 v{RA+k}, {FLC}, v{RA+k}")
for k in range(4):
    e(f"v_subrev_u32 v{RA+k}, s{sLOW}, v{RA+k}")
e(f"v_max_u32 v{RA}, v{RA}, v{RA+1}")
e(f"v_max3_u32 v{RA}, v{RA}, v{RA+2}, v{RA+3}")
e(f"v_cmp_le_u32 vcc, s{sK3}, v{RA}")
e("s_cmp_eq_u64 vcc, 0")
e("s_cbranch_scc1 L_qp_ok")
e(f"s_sleep {QSL}")
e(f"s_cmp_lt_u32 s{sCNT}, {NPOLL}")
e("s_cbranch_scc1 L_qpoll")
e(f"v_mov_b32 v{vT[0]}, {OVF}")
e(f"v_mov_b32 v{vT[1]}, 2")
e(f"ds_or_b32 v{vT[0]}, v{vT[1]}")
lab("L_qp_ok")
e("s_mov_b64 exec, -1")
e("s_branch L_ba")
_st[0] = 8
def gcheck(G, M, M2):
    e(f"v_bfe_u32 v{vT[2]}, v{G+3}, 3, 9")
    e(f"v_xor_b32 v{vT[2]}, {TAGC}, v{vT[2]}")
    e(f"v_lshrrev_b32 v{vT[0]}, 23, v{G}")
    e(f"v_lshrrev_b32 v{vT[1]}, 23, v{G+2}")
    e(f"v_subrev_u32 v{vT[3]}, s{sLOW}, v{G+3}")
    e(f"v_cmp_eq_u32 {M}, v{vT[0]}, v{vT[2]}")
    e(f"v_cmp_eq_u32 {M2}, v{vT[1]}, v{vT[2]}")
    e(f"s_and_b64 {M}, {M}, {M2}")
    e(f"v_cmp_gt_u32 {M2}, s{sK3}, v{vT[3]}")
    e(f"s_and_b64 {M}, {M}, {M2}")
e("s_branch L_rpoll")
lab("L_rpoll_again")
poll_issue()
lab("L_rpoll")
e(f"s_add_u32 s{sCNT}, s{sCNT}, 1")
e("s_waitcnt vmcnt(0)")
stamp_dyn(19, sCNT)
gcheck(RA, "vcc", sp(sM0))
e(f"s_andn2_b64 {sp(sPA)}, {sp(sPA)}, vcc")
gcheck(RB, sp(sM1), sp(sM0))
e(f"v_bfe_u32 v{vT[0]}, v{RA}, 22, 1")
e(f"s_andn2_b64 {sp(sPB)}, {sp(sPB)}, {sp(sM1)}")
e(f"v_cmp_ne_u32 vcc, 0, v{vT[0]}                ; more")
e(f"s_andn2_b64 vcc, vcc, {sp(sPA)}")
if BSPEC:
    e(f"s_or_b64 vcc, vcc, {sp(sPA)}")
e(f"s_and_b64 {sp(sM2)}, {sp(sPB)}, vcc")
e(f"s_or_b64 vcc, {sp(sPA)}, {sp(sM2)}")
e("s_cmp_eq_u64 vcc, 0")
e("s_cbranch_scc1 L_rp_ok")
e(f"s_sleep {RSL}")
e(f"s_cmp_lt_u32 s{sCNT}, {NPOLL}")
e("s_cbranch_scc1 L_rpoll_again")
c("timed out: take the slow path")
e(f"v_mov_b32 v{vT[0]}, {OVF}")
e(f"v_mov_b32 v{vT[1]}, 1")
e(f"ds_or_b32 v{vT[0]}, v{vT[1]}")
e(f"s_andn2_b64 {sp(sEX)}, {sp(sEX)}, vcc")
lab("L_rp_ok")
e("s_mov_b64 exec, -1")
arrive(RLAND)
stamp("records landed")
c("masks: a,b = valid bits of granule A ; c,d = valid bits of granule B & more")
RCS = [RA, RA+2, RB, RB+2]
e(f"v_bfe_u32 v{vT[0]}, v{RA}, 20, 1")
e(f"v_bfe_u32 v{vT[1]}, v{RA+2}, 20, 1")
e(f"v_bfe_u32 v{vT[2]}, v{RB}, 20, 1")
e(f"v_bfe_u32 v{vT[3]}, v{RB+2}, 20, 1")
e(f"v_bfe_u32 v{vT[4]}, v{RA}, 22, 1")
e(f"v_bfe_u32 v{vT[5]}, v{RA}, 21, 2")
e(f"v_and_b32 v{vT[2]}, v{vT[2]}, v{vT[4]}")
e(f"v_and_b32 v{vT[3]}, v{vT[3]}, v{vT[4]}")
for k in range(4):
    e(f"v_cmp_ne_u32 {sp(MK[k])}, 0, v{vT[k]}")
e(f"v_cmp_eq_u32 {sp(sM2)}, 3, v{vT[5]}")
for k in range(4):
    e(f"s_and_b64 {sp(MK[k])}, {sp(MK[k])}, {sp(sEX)}")
e(f"s_and_b64 {sp(sM2)}, {sp(sM2)}, {sp(sEX)}")
e(f"v_mov_b32 v{vOne}, 1")
e(f"s_mov_b32 s{sT0}, {ALLOC}")
VS = [91, 92, 93, 94]
def s1_issue(k):
    e(f"v_and_b32 v{VS[k]}, 0x3fff, v{RCS[k]}")
    e(f"v_mul_u32_u24 v{vT[0]}, 6, v{VS[k]}")
    e(f"v_and_b32 v{vT[0]}, -4, v{vT[0]}")
    e(f"s_mov_b64 exec, {sp(MK[k])}")
    e(f"buffer_load_dwordx2 {vr(PS[k],2)}, v{vT[0]}, {srd(S_POS)}, 0 offen")
    e(f"v_bfe_u32 v{VJ[k]}, v{RCS[k]}, 14, 6          ; k")
    e(f"v_mul_u32_u24 v{VI[k]}, 52, v{VJ[k]}")
    e(f"v_lshrrev_b32 v{VI[k]}, 8, v{VI[k]}           ; g")
    e(f"v_lshl_add_u32 v{vT[1]}, v{VI[k]}, 2, s{sT0}")
    e(f"ds_add_rtn_u32 v{VR[k]}, v{vT[1]}, v{vOne}")
    e(f"v_mul_u32_u24 v{vT[1]}, 5, v{VI[k]}")
    e(f"v_sub_u32 v{VJ[k]}, v{VJ[k]}, v{vT[1]}        ; j")
    e("s_mov_b64 exec, -1")
    e(f"v_mul_u32_u24 v{VI[k]}, {GSTR}, v{VI[k]}")
c("REC must be zero before placement (all F waves have zeroed their staging)")
wait_cnt(FCNT2, 8, dst=sT1)
for k in range(4):
    e(f"s_cmp_eq_u64 {sp(MK[k])}, 0")
    e(f"s_cbranch_scc1 L_s1i{k}")
    s1_issue(k)
    lab(f"L_s1i{k}")
e(f"s_cmp_eq_u64 {sp(sM2)}, 0")
e("s_cbranch_scc1 L_s1_noovf")
e(f"v_mov_b32 v{vT[0]}, {OVF}")
e(f"ds_or_b32 v{vT[0]}, v{vOne}")
lab("L_s1_noovf")
def s1_place(vR, vI, vS, msk, tag, slow=False):
    e(f"v_cmp_gt_u32 vcc, {CAP}, v{vR}")
    e(f"v_lshl_add_u32 v{vI}, v{vR}, 6, v{vI}")
    e(f"v_bfe_u32 v{vR}, v{vR}, 2, 2")
    e(f"v_lshl_add_u32 v{vI}, v{vR}, 4, v{vI}")
    e(f"v_xor_b32 v{vR}, 16, v{vI}")
    e(f"s_andn2_b64 exec, {sp(msk)}, vcc")
    e(f"s_cbranch_execz L_s1_ok{tag}")
    if slow:
        e(f"v_mov_b32 v{qP}, 1")
        e(f"v_mov_b32 v{vT[0]}, {PEND}")
        e(f"ds_write_b32 v{vT[0]}, v{vOne}")
    else:
        e(f"v_mov_b32 v{vT[0]}, {OVF}")
        e(f"ds_or_b32 v{vT[0]}, v{vOne}")
    lab(f"L_s1_ok{tag}")
    e(f"s_and_b64 {sp(msk)}, {sp(msk)}, vcc")
    e(f"s_mov_b64 exec, {sp(msk)}")
    e(f"ds_write_b16 v{vR}, v{vS} offset:{REC}")
    e("s_mov_b64 exec, -1")
e("s_waitcnt lgkmcnt(0)")
for k in range(4):
    e(f"s_cmp_eq_u64 {sp(MK[k])}, 0")
    e(f"s_cbranch_scc1 L_s1p{k}")
    s1_place(VR[k], VI[k], VS[k], MK[k], "abcd"[k])
    lab(f"L_s1p{k}")
def dma_issue(va, vb, sbuf):
    e(f"v_lshl_add_u32 v{va}, v{va}, 8, v{vQD}")
    e(f"v_lshl_add_u32 v{vb}, v{vb}, 8, v{vQD}")
    e(f"s_mov_b32 m0, s{sbuf}")
    e(f"s_nop 0")
    e(f"buffer_load_dwordx4 v{va}, {srd(S_Q)}, 0 offen{QSC} lds")
    e(f"s_add_u32 m0, s{sbuf}, 1024")
    e(f"s_nop 0")
    e(f"buffer_load_dwordx4 v{vb}, {srd(S_Q)}, 0 offen{QSC} lds")
lab("L_st2")
c("stage 2 (sparse, up to four records per lane)")
PD = [48, 52, 112, 116]
e(f"s_mov_b32 s{sT0}, {PTF}")
e(f"s_mov_b32 s{sK2}, 0xffff0000")
e(f"v_mov_b32 v{vT[6]}, {'0x3c00' if F16 else '0x3f80'}")
for k in range(4):
    e(f"s_cmp_eq_u64 {sp(MK[k])}, 0")
    e(f"s_cbranch_scc1 L_s2r{k}")
    e(f"v_bfe_u32 v{vT[5]}, v{RCS[k]}, 14, 6              ; k")
    e(f"v_min_u32 v{vT[5]}, 39, v{vT[5]}")
    e(f"v_lshl_add_u32 v{vT[5]}, v{vT[5]}, 4, s{sT0}")
    e(f"ds_read_b128 {vr(PD[k],4)}, v{vT[5]}")
    lab(f"L_s2r{k}")
e("s_waitcnt vmcnt(0) lgkmcnt(0)")
stamp("pos landed", 12)
def stage2_pass(rec, ea, hi_half, ps, pd, row, msk, tag, vj):
    X = [104, 105, 106, 107, 108, 109]
    e(f"s_cmp_eq_u64 {sp(msk)}, 0")
    e(f"s_cbranch_scc1 L_s2_done{tag}")
    e(f"s_mov_b64 exec, {sp(msk)}")
    e(f"v_and_b32 v{X[0]}, 1, v{rec}")
    e(f"v_lshlrev_b32 v{X[0]}, 4, v{X[0]}        ; shift")
    e(f"v_alignbit_b32 v{X[1]}, v{ps+1}, v{ps}, v{X[0]}     ; x | y<<16")
    e(f"v_lshrrev_b32 v{X[2]}, v{X[0]}, v{ps+1}              ; z (low 16)")
    e(f"v_lshlrev_b32 v{ps}, 16, v{X[1]}")
    e(f"v_and_b32 v{ps+1}, s{sK2}, v{X[1]}")
    e(f"v_lshlrev_b32 v{X[2]}, 16, v{X[2]}")
    e(f"v_sub_f32 v{pd}, v{pd}, v{ps}")
    e(f"v_sub_f32 v{pd+1}, v{pd+1}, v{ps+1}")
    e(f"v_sub_f32 v{pd+2}, v{pd+2}, v{X[2]}")
    e(f"v_cvt_pk_bf16_f32 v{X[0]}, v{pd}, v{pd+1}")
    e(f"v_cvt_pk_bf16_f32 v{X[1]}, v{pd+2}, v{pd+2}     ; dz")
    e(f"v_lshlrev_b32 v{pd}, 16, v{X[0]}")
    e(f"v_and_b32 v{pd+1}, s{sK2}, v{X[0]}")
    e(f"v_lshlrev_b32 v{pd+2}, 16, v{X[1]}")
    e(f"v_lshl_add_u32 v{X[3]}, v{vj}, 1, v{row}")
    e(f"v_xor_b32 v{X[5]}, 16, v{X[3]}")
    if F16:
        e(f"v_cvt_pk_f16_f32 v{X[0]}, v{pd}, v{pd+1}")
        e(f"v_cvt_pk_f16_f32 v{X[1]}, v{pd+2}, v{pd+2}")
    e(f"ds_write_b16 v{X[3]}, v{vT[6]} offset:{REC+6}")
    e(f"ds_write_b16 v{X[5]}, v{X[0]} offset:{REC+6}")
    e(f"v_xor_b32 v{X[5]}, 32, v{X[3]}")
    e(f"v_xor_b32 v{X[3]}, 48, v{X[3]}")
    e(f"ds_write_b16_d16_hi v{X[5]}, v{X[0]} offset:{REC+6}")
    e(f"ds_write_b16 v{X[3]}, v{X[1]} offset:{REC+6}")
    for k in range(3):
        e(f"v_mul_f32 v{pd+k}, v{pd+k}, v{pd+k}")
    e(f"v_cvt_pk_bf16_f32 v{X[2]}, v{pd}, v{pd+1}")
    e(f"v_cvt_pk_bf16_f32 v{X[4]}, v{pd+2}, v{pd+2}")
    e(f"v_lshlrev_b32 v{pd}, 16, v{X[2]}")
    e(f"v_and_b32 v{pd+1}, s{sK2}, v{X[2]}")
    e(f"v_lshlrev_b32 v{pd+2}, 16, v{X[4]}")
    e(f"v_add_f32 v{pd}, v{pd}, v{pd+1}")
    e(f"v_add_f32 v{pd}, v{pd}, v{pd+2}")
    e(f"v_cvt_pk_bf16_f32 v{X[2]}, v{pd}, 0")
    if hi_half:
        e(f"v_and_or_b32 v{X[4]}, v{ea}, s{sK2}, v{X[2]}")
    else:
        e(f"v_lshl_or_b32 v{X[4]}, v{ea}, 16, v{X[2]}")
    e(f"ds_write_b32 v{row}, v{X[4]} offset:{REC}")
    e(f"ds_write_b16 v{row}, v{X[2]} offset:{REC+4}")
    e("s_mov_b64 exec, -1")
    lab(f"L_s2_done{tag}")
for k in range(4):
    stage2_pass(RCS[k], [RA+1, RB+1][k>>1], k & 1, PS[k], PD[k], VI[k], MK[k], "abcd"[k], VJ[k])
stamp("stage2 done", 13)
lab("L_ba")
stamp("placed+Q", 9)
if not NOPRIO: e("s_setprio 0")
e(f"s_waitcnt lgkmcnt(0)")
e("s_barrier")
stamp("BA", 10)

lab("L_post")
c("count of own group, OVF, lookups for tiles 0,1")
e(f"s_lshl_b32 s{sT0}, s{sG}, 2")
e(f"s_add_u32 s{sT0}, s{sT0}, {ALLOC}")
e(f"v_mov_b32 v{vT[0]}, s{sT0}")
e(f"v_mov_b32 v{vT[1]}, {OVF}")
e(f"ds_read_b32 v{vT[2]}, v{vT[0]}")
e(f"ds_read_b32 v{vT[3]}, v{vT[1]}")
LK = [104, 105, 80, 81]
e(f"v_xor_b32 v{vT[4]}, 32, v{vLK}")
e(f"ds_read_u16 v{LK[0]}, v{vLK}")
e(f"ds_read_u16 v{LK[1]}, v{vT[4]} offset:512")
e(f"ds_read_u16 v{LK[2]}, v{vLK} offset:1024")
e(f"ds_read_u16 v{LK[3]}, v{vT[4]} offset:1536")
e(f"s_cmp_eq_u32 s{sMODE}, 0")
e("s_cbranch_scc1 L_post_fast")
c("slow path: skip quickly if nothing was placed in this pass")
e(f"v_mov_b32 v{vT[0]}, {ALLOC}")
e(f"ds_read_b128 {vr(96,4)}, v{vT[0]}")
e(f"ds_read_b128 {vr(100,4)}, v{vT[0]} offset:16")
e("s_waitcnt lgkmcnt(0)")
e(f"v_or3_b32 v96, v96, v97, v98")
e(f"v_or3_b32 v96, v96, v99, v100")
e(f"v_or3_b32 v96, v96, v101, v102")
e(f"v_or_b32 v96, v96, v103")
e("s_nop 0")
e(f"v_readfirstlane_b32 s{sT0}, v96")
e(f"v_readfirstlane_b32 s{sCO}, v{vT[2]}")
e("s_nop 3")
e(f"s_cmp_lg_u32 s{sT0}, 0")
e("s_cbranch_scc1 L_post_go")
e(f"s_mov_b32 s{sRETRY}, 0")
e("s_branch L_slow_adv")
lab("L_post_fast")
e("s_waitcnt lgkmcnt(4)")
e(f"v_readfirstlane_b32 s{sCO}, v{vT[2]}")
e(f"v_readfirstlane_b32 s{sT3}, v{vT[3]}           ; OVF")
e("s_nop 3")
e(f"s_cmp_lg_u32 s{sT3}, 0")
e("s_cbranch_scc1 L_slow_init")
lab("L_post_go")
e(f"s_min_u32 s{sCO}, s{sCO}, {CAP}")
e(f"s_add_u32 s{sNT}, s{sCO}, 15")
e(f"s_lshr_b32 s{sNT}, s{sNT}, 4")
e("s_waitcnt lgkmcnt(2)")
dma_issue(LK[0], LK[1], sB0)
stamp("dma0 issued", 11)
c("ID constants: lane (m,hi): step s elem i = (m == 16s + 8hi + i)")
e(f"v_and_b32 v{vT[4]}, 31, v{vL}")
e(f"v_lshrrev_b32 v{vT[5]}, 5, v{vL}")
e(f"v_lshlrev_b32 v{vT[5]}, 3, v{vT[5]}")
e(f"v_sub_u32 v{vT[4]}, v{vT[4]}, v{vT[5]}        ; x = m - 8hi")
e(f"v_mov_b32 v{vT[5]}, 0x3f80")
e(f"v_mov_b32 v{vT[6]}, 0x3f800000")
for s_ in range(2):
    for r in range(4):
        x0 = 16*s_ + 2*r
        e(f"v_cmp_eq_u32 vcc, {x0}, v{vT[4]}")
        e(f"v_cndmask_b32 v{ID+4*s_+r}, 0, v{vT[5]}, vcc")
        e(f"v_cmp_eq_u32 vcc, {x0+1}, v{vT[4]}")
        e(f"v_cndmask_b32 v{ID+4*s_+r}, v{ID+4*s_+r}, v{vT[6]}, vcc")
c("BXF address: BXP + g*2048 + (64ch + l)*16   (l = 32hi + n)")
e(f"s_lshl_b32 s{sT0}, s{sG}, 11")
e(f"s_lshl_b32 s{sT1}, s{sCH2}, 10")
e(f"s_add_u32 s{sT0}, s{sT0}, s{sT1}")
e(f"s_add_u32 s{sT0}, s{sT0}, {BXP}")
e(f"v_lshlrev_b32 v{vT[4]}, 4, v{vL}")
e(f"v_add_u32 v{vT[4]}, s{sT0}, v{vT[4]}")
c("SEG zero (first pass only)")
e(f"s_cmp_eq_u32 s{sNODE}, 0")
e("s_cbranch_scc1 L_noseg0")
e(f"s_mov_b32 s{sNODE}, 0")
for r in range(32):
    e(f"v_mov_b32 v{SEG+r}, 0")
lab("L_noseg0")
e("s_waitcnt lgkmcnt(0)")
dma_issue(LK[2], LK[3], sB1)
stamp("BB", 14)
_st[0] = 15
e(f"ds_read_b128 {vr(BXF,4)}, v{vT[4]}")
if not NOPRIO: e("s_setprio 3")
e(f"s_mov_b32 s{sU}, 0")
if XM:
    for i in range(4): e(f"v_mov_b32 v{124+i}, 0")
e("s_mov_b32 s6, 1.0")
e("s_mov_b32 s7, 1.0")
e(f"s_mov_b32 s{sREM}, s{sCO}")
e(f"s_mov_b32 s{sRT}, s{sNT}")
c("running pointers: vLK -> tile 2 ; working copies of vOD / vTRS")
vLKr, vODr, vTRSr, vTRSr2 = 92, 93, 94, 95
e(f"v_add_u32 v{vLKr}, 2048, v{vLK}")
e(f"v_mov_b32 v{vODr}, v{vOD}")
e(f"v_mov_b32 v{vTRSr}, v{vTRS}")
e(f"v_xor_b32 v{vTRSr2}, 32, v{vTRS}")

def tile_body(buf):
    tag = f"t{buf}"
    sBUF = [sB0, sB1][buf]
    bo = buf * 2048
    c(f"---- tile (buffer {buf}) ----")
    e(f"s_cmp_gt_u32 s{sRT}, 2")
    e(f"s_cselect_b32 s{sK3}, 1, 0")
    e(f"s_cbranch_scc0 L_nolk{tag}")
    e(f"v_xor_b32 v{vT[4]}, 32, v{vLKr}")
    e(f"ds_read_u16 v{vT[2]}, v{vLKr}")
    e(f"ds_read_u16 v{vT[3]}, v{vT[4]} offset:512")
    lab(f"L_nolk{tag}")
    e(f"ds_read_b128 {vr(OHD,4)}, v{vODr}")
    e(f"s_cmp_gt_u32 s{sRT}, 1")
    e(f"s_cbranch_scc1 L_w2{tag}")
    e("s_waitcnt vmcnt(0)")
    e(f"s_branch L_wd{tag}")
    lab(f"L_w2{tag}")
    e("s_waitcnt vmcnt(2)")
    lab(f"L_wd{tag}")
    e(f"ds_read_b64_tr_b16 {vr(QF,2)}, v{vTRQ0} offset:{bo}")
    e(f"ds_read_b64_tr_b16 {vr(QF+2,2)}, v{vTRQ0} offset:{bo+512}")
    e(f"ds_read_b64_tr_b16 {vr(QF+4,2)}, v{vTRQ1} offset:{bo}")
    e(f"ds_read_b64_tr_b16 {vr(QF+6,2)}, v{vTRQ1} offset:{bo+512}")
    e(f"ds_read_b64_tr_b16 {vr(SF,2)}, v{vTRSr}")
    e(f"ds_read_b64_tr_b16 {vr(SF+2,2)}, v{vTRSr2} offset:512")
    e(f"v_add_u32 v{vLKr}, 1024, v{vLKr}")
    e(f"v_add_u32 v{vODr}, v{vODM}, v{vODr}")
    e(f"v_add_u32 v{vTRSr}, 1024, v{vTRSr}")
    e(f"v_add_u32 v{vTRSr2}, 1024, v{vTRSr2}")
    e("s_waitcnt lgkmcnt(6)")
    mfma(ACC, OHD, BXF, "0")
    e("s_waitcnt lgkmcnt(4)")
    mfma(ACC, ID, QF, vr(ACC,16))
    e("s_waitcnt lgkmcnt(2)")
    mfma(ACC, ID+4, QF+4, vr(ACC,16))
    for _ in range(XM):
        mfma(ACC, 124, QF+4*(_&1), vr(ACC,16))
    e(f"s_cmp_eq_u32 s{sK3}, 0")
    e(f"s_cbranch_scc1 L_nodma{tag}")
    if "d" not in KO: dma_issue(vT[2], vT[3], sBUF)
    lab(f"L_nodma{tag}")
    e("s_nop 7")
    e("s_nop 3")
    def blk(bb, t):
        a = ACC + 4*bb
        if "e" in KO:
            for i in range(4): e(f"v_mov_b32 v{t+i}, v{a+i}")
        else:
            for i in range(4): e(f"v_exp_f32 v{t+i}, v{a+i}")
        if PK & 1:
            if PK & 4:
                for i in (0, 2): e(f"v_pk_add_f32 {vr(t+i,2)}, {vr(t+i,2)}, 1.0 op_sel_hi:[1,0]")
            else:
                for i in (0, 2): e(f"v_pk_add_f32 {vr(t+i,2)}, {vr(t+i,2)}, s[6:7]")
        elif "a" not in KO:
            for i in range(4): e(f"v_add_f32 v{t+i}, 1.0, v{t+i}")
        if "r" not in KO:
            for i in range(4): e(f"v_rcp_f32 v{t+i}, v{t+i}")
        if PK & 2:
            for i in (0, 2): e(f"v_pk_mul_f32 {vr(t+i,2)}, {vr(a+i,2)}, {vr(t+i,2)}")
        elif "m" not in KO:
            for i in range(4): e(f"v_mul_f32 v{t+i}, v{a+i}, v{t+i}")
        e(f"v_cvt_pk_bf16_f32 v{MP+2*bb}, v{t}, v{t+1}")
        e(f"v_cvt_pk_bf16_f32 v{MP+2*bb+1}, v{t+2}, v{t+3}")
    def blk16(bbs):
        P = [(MP+2*bb+h, ACC+4*bb+2*h) for bb in bbs for h in range(2)]
        T = [TE+i for i in range(len(P))]
        for (m, a) in P: e(f"v_cvt_pk_f16_f32 v{m}, v{a}, v{a+1}")
        for (m, a), t in zip(P, T): e(f"v_exp_f16_sdwa v{t}, v{m} dst_sel:WORD_0 dst_unused:UNUSED_PAD src0_sel:WORD_0")
        for (m, a), t in zip(P, T): e(f"v_exp_f16_sdwa v{t}, v{m} dst_sel:WORD_1 dst_unused:UNUSED_PRESERVE src0_sel:WORD_1")
        for t in T: e(f"v_pk_add_f16 v{t}, v{t}, 1.0 op_sel_hi:[1,0]")
        for t in T: e(f"v_rcp_f16_sdwa v{t}, v{t} dst_sel:WORD_0 dst_unused:UNUSED_PRESERVE src0_sel:WORD_0")
        for t in T: e(f"v_rcp_f16_sdwa v{t}, v{t} dst_sel:WORD_1 dst_unused:UNUSED_PRESERVE src0_sel:WORD_1")
        for (m, a), t in zip(P, T): e(f"v_pk_mul_f16 v{m}, v{m}, v{t}")
    if F16: blk16((0, 2))
    else:
        blk(0, TE); blk(2, TE+4)
    e(f"s_cmp_le_u32 s{sREM}, 8")
    e(f"s_cbranch_scc1 L_skip{tag}")
    if F16: blk16((1, 3))
    else:
        blk(1, TE); blk(3, TE+4)
    e(f"s_branch L_blk{tag}")
    lab(f"L_skip{tag}")
    for r in (2, 3, 6, 7): e(f"v_mov_b32 v{MP+r}, 0")
    lab(f"L_blk{tag}")
    e("s_waitcnt lgkmcnt(0)")
    e("s_nop 1")
    if F16:
        e(f"v_mfma_f32_32x32x16_f16 {vr(SEG,16)}, {vr(MP,4)}, {vr(SF,4)}, {vr(SEG,16)}")
        e(f"v_mfma_f32_32x32x16_f16 {vr(SEG+16,16)}, {vr(MP+4,4)}, {vr(SF,4)}, {vr(SEG+16,16)}")
    else:
        mfma(SEG, MP, SF, vr(SEG,16))
        mfma(SEG+16, MP+4, SF, vr(SEG+16,16))
    e(f"s_sub_u32 s{sREM}, s{sREM}, 16")
    e(f"s_sub_u32 s{sRT}, s{sRT}, 1")
    if not NOPRIO:
        e(f"s_cmp_gt_u32 s{sRT}, 3")
        e(f"s_cbranch_scc1 L_pr{tag}")
        e(f"s_setprio 2")
        e(f"s_cmp_eq_u32 s{sRT}, 3")
        e(f"s_cbranch_scc1 L_pr{tag}")
        e(f"s_setprio 1")
        e(f"s_cmp_eq_u32 s{sRT}, 2")
        e(f"s_cbranch_scc1 L_pr{tag}")
        e(f"s_setprio 0")
        lab(f"L_pr{tag}")

e(f"s_cmp_eq_u32 s{sRT}, 0")
e("s_cbranch_scc1 L_tiles_done")
lab("L_tile_loop")
tile_body(0)
e(f"s_cmp_eq_u32 s{sRT}, 0")
e("s_cbranch_scc1 L_tiles_done")
tile_body(1)
e(f"s_cmp_lg_u32 s{sRT}, 0")
e("s_cbranch_scc1 L_tile_loop")
lab("L_tiles_done")
e("s_waitcnt vmcnt(0)")
if not NOPRIO: e("s_setprio 3")
stamp("tiles done")
e(f"s_cmp_eq_u32 s{sMODE}, 0")
e("s_cbranch_scc0 L_slow_next")

lab("L_final")
WFL = 80
ROW = 16
HRES = 112
vN = vT[1]; vHI = vT[2]; vOFF = vT[3]; vRD_ = vT[4]
e(f"s_memrealtime s[6:7]")
e(f"v_and_b32 v{vN}, 31, v{vL}")
e(f"v_lshrrev_b32 v{vHI}, 5, v{vL}")
c("late frags: quads 1, 2: WH2F slice ct ; quad 0: wx frags")
e(f"s_cmp_eq_u32 s{sQ}, {QC}")
e("s_cbranch_scc1 L_f_wx")
e(f"s_cmp_eq_u32 s{sQ}, 3")
e("s_cbranch_scc1 L_f_flush")
e(f"s_lshl_b32 s{sT0}, s{sCT}, 13")
e(f"s_add_u32 s{sT0}, s{sT0}, {WH2F}")
e(f"s_add_u32 s{sT1}, s{sT0}, 4096")
e(f"v_lshlrev_b32 v{vT[0]}, 4, v{vL}")
for s_ in range(8):
    e(f"buffer_load_dwordx4 {vr(WFL+4*s_,4)}, v{vT[0]}, {srd(S_WS)}, s{[sT0,sT1][s_>>2]} offen offset:{(s_%4)*1024}{QSC}")
e("s_branch L_f_flush")
lab("L_f_wx")
e(f"v_lshlrev_b32 v{vT[0]}, 4, v{vHI}")
for s_ in range(8):
    e(f"buffer_load_dwordx4 {vr(WFL+4*s_,4)}, v{vT[0]}, {srd(S_WX)}, 0 offen offset:{s_*32}")
lab("L_f_flush")
c("flush: lane (f=n, hi): addr = QTw + h*2048 + f*64 + ((bb ^ ((f>>2)&3) ^ (g&3))<<4) + hi*8")
e(f"s_and_b32 s{sT0}, s{sG}, 3")
e(f"v_bfe_u32 v{vT[5]}, v{vN}, 2, 2")
e(f"v_xor_b32 v{vT[5]}, s{sT0}, v{vT[5]}")
e(f"v_lshlrev_b32 v{vT[5]}, 4, v{vT[5]}")
e(f"v_lshl_add_u32 v{vT[5]}, v{vN}, 6, v{vT[5]}")
e(f"v_lshl_add_u32 v{vT[5]}, v{vHI}, 3, v{vT[5]}")
e(f"v_add_u32 v{vT[5]}, s{sB0}, v{vT[5]}")
e("s_nop 7")
e("s_nop 3")
for h in range(2):
    for bb in range(4):
        r0 = SEG + 16*h + 4*bb
        e(f"v_cvt_pk_bf16_f32 v{r0}, v{r0}, v{r0+1}")
        e(f"v_cvt_pk_bf16_f32 v{r0+1}, v{r0+2}, v{r0+3}")
        if bb == 0:
            e(f"ds_write_b64 v{vT[5]}, {vr(r0,2)} offset:{h*2048}")
        else:
            e(f"v_xor_b32 v{vT[6]}, {bb<<4}, v{vT[5]}")
            e(f"ds_write_b64 v{vT[6]}, {vr(r0,2)} offset:{h*2048}")
c("per-role (node, comp) -> g, f ; addr = QT + g*8192 + f*64 + ((hi ^ ((f>>2)&3) ^ (g&3))<<4)")
vNODE = vT[5]; vCMP = vT[6]
def node_addr(dst, node, cmp_, t0, t1):
    e(f"v_mul_u32_u24 v{t1}, 52, v{node}")
    e(f"v_lshrrev_b32 v{t1}, 8, v{t1}             ; g")
    e(f"v_mul_u32_u24 v{t0}, 5, v{t1}")
    e(f"v_sub_u32 v{t0}, v{node}, v{t0}          ; j")
    if cmp_ is not None:
        e(f"v_lshl_add_u32 v{t0}, v{cmp_}, 3, v{t0}")
    e(f"v_add_u32 v{t0}, 3, v{t0}                 ; f")
    e(f"v_bfe_u32 v{dst}, v{t0}, 2, 2")
    e(f"v_xor_b32 v{dst}, v{dst}, v{vHI}")
    e(f"v_lshlrev_b32 v{t0}, 6, v{t0}")
    e(f"v_lshl_add_u32 v{t0}, v{t1}, 13, v{t0}")
    e(f"v_and_b32 v{t1}, 3, v{t1}")
    e(f"v_xor_b32 v{dst}, v{dst}, v{t1}")
    e(f"v_lshl_add_u32 v{dst}, v{dst}, 4, v{t0}")
    e(f"v_add_u32 v{dst}, {QT}, v{dst}")
e(f"s_mul_i32 s{sK3}, s2, 40")
e(f"s_cmp_eq_u32 s{sQ}, {QC}")
e("s_cbranch_scc1 L_f_roleC")
e(f"s_cmp_eq_u32 s{sQ}, {QB}")
e("s_cbranch_scc1 L_f_roleB")
e(f"s_cmp_eq_u32 s{sQ}, {QA}")
e("s_cbranch_scc0 L_f_bar")
c("role A (nodes n)")
node_addr(vRD_, vN, None, vT[0], vT[7])
c("role A residual: h[node n][32ct + 8bb + 4hi..+3]: OWN + n*256 + (((ct*4+bb) ^ (n&15))<<4) + hi*8")
e(f"v_and_b32 v{vT[0]}, 15, v{vN}")
e(f"s_lshl_b32 s{sT0}, s{sCT}, 2")
e(f"v_xor_b32 v{vT[0]}, s{sT0}, v{vT[0]}")
e(f"v_lshlrev_b32 v{vT[0]}, 4, v{vT[0]}")
e(f"v_lshl_add_u32 v{vT[0]}, v{vN}, 8, v{vT[0]}")
e(f"v_lshl_add_u32 v{vT[0]}, v{vHI}, 3, v{vT[0]}")
e(f"v_add_u32 v{vT[0]}, {OWN}, v{vT[0]}")
for bb in range(4):
    e(f"v_xor_b32 v{vT[7]}, {bb<<4}, v{vT[0]}")
    e(f"ds_read_b64 {vr(HRES+2*bb,2)}, v{vT[7]}")
e(f"v_add_u32 v{vOFF}, s{sK3}, v{vN}")
e(f"v_lshlrev_b32 v{vOFF}, 8, v{vOFF}")
e(f"v_lshl_add_u32 v{vOFF}, v{vHI}, 3, v{vOFF}")
e(f"s_lshl_b32 s{sT0}, s{sCT}, 6")
e(f"v_add_u32 v{vOFF}, s{sT0}, v{vOFF}")
e("s_branch L_f_bar")
lab("L_f_roleB")
c("role B (nodes 32 + (n&7))")
e(f"v_and_b32 v{vNODE}, 7, v{vN}")
e(f"v_add_u32 v{vNODE}, 32, v{vNODE}")
node_addr(vRD_, vNODE, None, vT[0], vT[7])
c("role B residual: rows 32+4hi+i, col 32ct+n: OWN + row*256 + (((ct*4 + (n>>3)) ^ (row&15))<<4) + (n&7)*2")
e(f"v_lshrrev_b32 v{vT[0]}, 3, v{vN}")
e(f"s_lshl_b32 s{sT0}, s{sCT}, 2")
e(f"v_add_u32 v{vT[0]}, s{sT0}, v{vT[0]}          ; chunk")
e(f"v_lshlrev_b32 v{vT[7]}, 2, v{vHI}             ; 4hi")
e(f"v_xor_b32 v{vT[0]}, v{vT[0]}, v{vT[7]}")
e(f"v_lshlrev_b32 v{vT[0]}, 4, v{vT[0]}")
e(f"v_lshl_add_u32 v{vT[0]}, v{vT[7]}, 8, v{vT[0]}   ; + 4hi*256")
e(f"v_and_b32 v{vT[5]}, 7, v{vN}")
e(f"v_lshl_add_u32 v{vT[0]}, v{vT[5]}, 1, v{vT[0]}")
e(f"v_add_u32 v{vT[0]}, {OWN + 32*256}, v{vT[0]}")
for i in range(4):
    e(f"v_xor_b32 v{vT[5]}, {i<<4}, v{vT[0]}")
    e(f"ds_read_u16 v{HRES+i}, v{vT[5]} offset:{i*256}")
e(f"s_add_u32 s{sT0}, s{sK3}, 32")
e(f"v_add_u32 v{vOFF}, s{sT0}, v{vT[7]}")
e(f"v_lshlrev_b32 v{vOFF}, 8, v{vOFF}")
e(f"v_lshl_add_u32 v{vOFF}, v{vN}, 1, v{vOFF}")
e(f"s_lshl_b32 s{sT0}, s{sCT}, 6")
e(f"v_add_u32 v{vOFF}, s{sT0}, v{vOFF}")
e("s_branch L_f_bar")
lab("L_f_roleC")
c("role C: n' = min(n,29); idx = 30ct + n' ; G = idx/15 ; r = idx%15 ; c = r/5 ; j = r%5 ; node = 5G + j ; comp = c+1")
e(f"v_min_u32 v{vT[0]}, 29, v{vN}")
e(f"v_cmp_lt_u32 vcc, 14, v{vT[0]}")
e(f"v_cndmask_b32 v{vT[7]}, 0, 1, vcc               ; G&1")
e(f"v_mul_u32_u24 v{vNODE}, 15, v{vT[7]}")
e(f"v_sub_u32 v{vT[0]}, v{vT[0]}, v{vNODE}          ; r")
e(f"v_mul_u32_u24 v{vCMP}, 52, v{vT[0]}")
e(f"v_lshrrev_b32 v{vCMP}, 8, v{vCMP}              ; c")
e(f"v_mul_u32_u24 v{vNODE}, 5, v{vCMP}")
e(f"v_sub_u32 v{vT[0]}, v{vT[0]}, v{vNODE}          ; j")
e(f"s_lshl_b32 s{sT0}, s{sCT}, 1")
e(f"v_add_u32 v{vT[7]}, s{sT0}, v{vT[7]}            ; G")
e(f"v_mad_u32_u24 v{vNODE}, v{vT[7]}, 5, v{vT[0]}")
e(f"v_add_u32 v{vCMP}, 1, v{vCMP}")
node_addr(vRD_, vNODE, vCMP, vT[0], vT[7])
c("role C: pos residual PTF[node][comp-1] ; out offset (40b + node)*6 + (comp-1)*2")
e(f"v_lshlrev_b32 v{vT[0]}, 4, v{vNODE}")
e(f"v_lshl_add_u32 v{vT[0]}, v{vCMP}, 2, v{vT[0]}")
e(f"v_add_u32 v{vT[0]}, {PTF-4}, v{vT[0]}")
e(f"ds_read_b32 v{HRES}, v{vT[0]}")
e(f"v_add_u32 v{vOFF}, s{sK3}, v{vNODE}")
e(f"v_mul_u32_u24 v{vOFF}, 6, v{vOFF}")
e(f"v_lshl_add_u32 v{vOFF}, v{vCMP}, 1, v{vOFF}")
e(f"v_subrev_u32 v{vOFF}, 2, v{vOFF}")
lab("L_f_bar")
e("s_waitcnt lgkmcnt(0)")
c("residency guard: this wave's stamp must be older than the accept window of any later launch")
lab("L_guard")
e(f"s_sub_u32 s{sT0}, s6, s{sTW}")
e(f"s_cmp_ge_u32 s{sT0}, {GUARD}")
e("s_cbranch_scc1 L_guard_ok")
e("s_sleep 8")
e("s_memrealtime s[6:7]")
e("s_waitcnt lgkmcnt(0)")
e("s_branch L_guard")
lab("L_guard_ok")
e("s_barrier")
stamp("final bar")
e(f"s_cmp_eq_u32 s{sQ}, 3")
e("s_cbranch_scc1 L_end")
e(f"v_xor_b32 v{vT[0]}, 32, v{vRD_}")
for s_ in range(8):
    e(f"ds_read_b128 {vr(ROW+4*s_,4)}, v{[vRD_, vT[0]][s_&1]} offset:{(s_>>1)*2048}")
e(f"s_mov_b32 s{sK2}, 0x{NLN2:08x}")
e(f"s_mov_b32 s{sK3}, 0xffff0000")
e("s_waitcnt vmcnt(0)")
e(f"s_cmp_eq_u32 s{sQ}, {QC}")
e("s_cbranch_scc1 L_f_C")
e(f"s_cmp_eq_u32 s{sQ}, {QB}")
e("s_cbranch_scc1 L_f_B")
c("role A")
for s_ in range(8):
    e(f"s_waitcnt lgkmcnt({7-s_})")
    mfma(FACC, WFL+4*s_, ROW+4*s_, vr(FACC,16))
def final_silu(a, n, T):
    for i in range(n): e(f"v_exp_f32 v{T+i}, v{a+i}")
    for i in range(n): e(f"v_add_f32 v{T+i}, 1.0, v{T+i}")
    for i in range(n): e(f"v_rcp_f32 v{T+i}, v{T+i}")
    for i in range(n): e(f"v_mul_f32 v{a+i}, v{a+i}, v{T+i}")
X = 48
e("s_nop 7")
e("s_nop 3")
for i in range(4):
    a = FACC + 4*i
    final_silu(a, 4, X)
    e(f"v_lshlrev_b32 v{X}, 16, v{HRES+2*i}")
    e(f"v_and_b32 v{X+1}, s{sK3}, v{HRES+2*i}")
    e(f"v_lshlrev_b32 v{X+2}, 16, v{HRES+2*i+1}")
    e(f"v_and_b32 v{X+3}, s{sK3}, v{HRES+2*i+1}")
    for k in range(4): e(f"v_fma_f32 v{a+k}, v{a+k}, s{sK2}, v{X+k}")
    e(f"v_cvt_pk_bf16_f32 v{X+4+2*i}, v{a}, v{a+1}")
    e(f"v_cvt_pk_bf16_f32 v{X+5+2*i}, v{a+2}, v{a+3}")
    e(f"buffer_store_dwordx2 {vr(X+4+2*i,2)}, v{vOFF}, {srd(S_O0)}, 0 offen offset:{i*16}{OSC}")
e("s_branch L_end")
lab("L_f_B")
c("role B: rows 32 + 4hi + r")
for i in range(4): e(f"v_mov_b32 v{ACC+i}, v{FB+i}")
e("s_nop 1")
for s_ in range(8):
    e(f"s_waitcnt lgkmcnt({7-s_})")
    mfma(ACC, ROW+4*s_, WFL+4*s_, vr(ACC,16))
Y = 64
e("s_nop 7")
e("s_nop 3")
final_silu(ACC, 4, Y)
for k in range(4):
    e(f"v_lshlrev_b32 v{Y+k}, 16, v{HRES+k}")
for k in range(4):
    e(f"v_fma_f32 v{ACC+k}, v{ACC+k}, s{sK2}, v{Y+k}")
for k in range(4):
    e(f"v_cvt_pk_bf16_f32 v{Y+8+k}, v{ACC+k}, v{ACC+k}")
for r in range(4):
    e(f"buffer_store_short v{Y+8+r}, v{vOFF}, {srd(S_O0)}, 0 offen offset:{r*256}{OSC}")
e("s_branch L_end")
lab("L_f_C")
for s_ in range(8):
    e(f"s_waitcnt lgkmcnt({7-s_})")
    mfma(ACC, WFL+4*s_, ROW+4*s_, "0" if s_ == 0 else vr(ACC,16))
e("s_nop 7")
e("s_nop 3")
e(f"v_fma_f32 v{ACC}, v{ACC}, s{sK2}, v{HRES}")
e(f"v_cvt_pk_bf16_f32 v{ACC}, v{ACC}, v{ACC}")
e(f"s_mov_b32 exec_lo, 0x3fffffff")
e(f"s_mov_b32 exec_hi, 0")
e(f"buffer_store_short v{ACC}, v{vOFF}, {srd(S_O1)}, 0 offen{OSC}")
lab("L_end")
stamp("end")
stamp_flush()
lab("L_end2")
e("s_endpgm")

def zero_lds(Z, vtid):
    c("zero REC (69632 B = 4352 x 16 B) and counters (64 B)")
    for i in range(4): e(f"v_mov_b32 v{Z+i}, 0")
    e(f"v_lshlrev_b32 v{vT[0]}, 4, v{vtid}")
    for i in range(4):
        e(f"ds_write_b128 v{vT[0]}, {vr(Z,4)} offset:{i*16384}")
    e(f"v_add_u32 v{vT[1]}, {65536}, v{vT[0]}")
    e(f"v_add_u32 v{vT[2]}, {CTR - 256*16}, v{vT[0]}")
    e(f"v_cmp_gt_u32 vcc, 256, v{vtid}")
    e(f"v_cndmask_b32 v{vT[1]}, v{vT[2]}, v{vT[1]}, vcc")
    e(f"v_cmp_gt_u32 vcc, 260, v{vtid}")
    e("s_mov_b64 exec, vcc")
    e(f"ds_write_b128 v{vT[1]}, {vr(Z,4)}")
    e("s_mov_b64 exec, -1")
lab("L_slow_init")
e(f"s_mov_b32 s{sMODE}, 1")
e(f"s_mov_b32 s{sCH}, 0")
e(f"s_mov_b32 s{sRETRY}, 0")
e(f"s_and_b32 s{sT3}, s{sT3}, 2")
e(f"s_cmp_eq_u32 s{sT3}, 0")
e("s_cbranch_scc1 L_slow_pass")
c("fallback: the hand-off timed out -> this workgroup computes all of Q and the WH2 fragments itself")
c("(waves 0..7 keep FACC (64..79) / FB (120..123); waves 8..15 run the GEMM blocks)")
e(f"s_mov_b32 s{sU}, 0")
lab("L_fb_loop")
e("s_waitcnt vmcnt(0) lgkmcnt(0)")
e("s_barrier")
e(f"s_cmp_lt_u32 s{sW}, 8")
e("s_cbranch_scc1 L_fb_idle")
gemm_role("fb", sU, True)
e("s_branch L_fb_next")
lab("L_fb_idle")
e("s_barrier")
lab("L_fb_next")
e(f"s_add_u32 s{sU}, s{sU}, 1")
e(f"s_cmp_lt_u32 s{sU}, {NG}")
e("s_cbranch_scc1 L_fb_loop")
e("s_waitcnt vmcnt(0) lgkmcnt(0)")
e("s_barrier")
e(f"s_cmp_ge_u32 s{sW}, 4")
e("s_cbranch_scc1 L_slow_pass")
wprep_role("fb", True)
e("s_branch L_slow_pass")
lab("L_slow_next")
e(f"v_mov_b32 v{vT[0]}, {PEND}")
e(f"ds_read_b32 v{vT[1]}, v{vT[0]}")
e("s_waitcnt lgkmcnt(0)")
e(f"v_readfirstlane_b32 s{sRETRY}, v{vT[1]}")
e("s_nop 3")
e(f"s_cmp_lg_u32 s{sRETRY}, 0")
e("s_cbranch_scc1 L_slow_pass")
lab("L_slow_adv")
e(f"s_add_u32 s{sCH}, s{sCH}, 1")
e(f"s_cmp_ge_u32 s{sCH}, 250")
e("s_cbranch_scc1 L_slow_fin")
lab("L_slow_pass")
e("s_waitcnt vmcnt(0) lgkmcnt(0)")
e("s_barrier")
e(f"s_lshl_b32 s{sT0}, s{sW}, 6")
e(f"v_add_u32 v{tid}, s{sT0}, v{vL}")
zero_lds(116, tid)
c("raw edge e = 640*ch + t (t<640)")
qD, qS, qB, qK, qR, qA = 104, 105, 106, 107, 108, 109
RC = RA; vEA = RA + 1; vI0 = VI[0]; PS0 = PS[0]
e(f"s_mul_i32 s{sT0}, s{sCH}, 2560")
e(f"s_mul_i32 s{sT1}, s{sCH}, 1280")
e(f"v_lshlrev_b32 v{vT[0]}, 2, v{tid}")
e(f"v_lshlrev_b32 v{vT[1]}, 1, v{tid}")
e(f"v_mov_b32 v{qD}, -1")
e(f"v_mov_b32 v{qS}, 0")
e(f"v_mov_b32 v{qP}, 0")
e(f"v_mov_b32 v{vEA}, 0")
e(f"v_mov_b32 v{qA}, 640")
e(f"v_cmp_gt_u32 {sp(sM0)}, v{qA}, v{tid}")
e(f"s_cmp_eq_u64 {sp(sM0)}, 0")
e("s_cbranch_scc1 L_slow_nold")
e(f"s_mov_b64 exec, {sp(sM0)}")
e(f"buffer_load_dword v{qD}, v{vT[0]}, {srd(S_DST)}, s{sT0} offen")
e(f"buffer_load_dword v{qS}, v{vT[0]}, {srd(S_SRC)}, s{sT0} offen")
e(f"buffer_load_ushort v{vEA}, v{vT[1]}, {srd(S_EA)}, s{sT1} offen")
e(f"v_add_u32 v{qA}, {PENDB}, v{tid}")
e(f"ds_read_u8 v{qP}, v{qA}")
e("s_mov_b64 exec, -1")
lab("L_slow_nold")
e("s_waitcnt vmcnt(0) lgkmcnt(0)")
e("s_barrier")
e(f"v_mul_u32_u24 v{qB}, 52429, v{qD}")
e(f"v_lshrrev_b32 v{qB}, 21, v{qB}")
e(f"v_mul_u32_u24 v{qK}, 40, v{qB}")
e(f"v_sub_u32 v{qK}, v{qD}, v{qK}")
e(f"v_cmp_eq_u32 vcc, s2, v{qB}")
e(f"s_and_b64 {sp(sM0)}, {sp(sM0)}, vcc          ; match")
e(f"s_cmp_eq_u32 s{sRETRY}, 0")
e("s_cbranch_scc1 L_slow_fresh")
e(f"v_cmp_ne_u32 vcc, 0, v{qP}")
e(f"s_and_b64 {sp(sM0)}, {sp(sM0)}, vcc")
lab("L_slow_fresh")
e(f"v_and_b32 v{qK}, 63, v{qK}")
e(f"v_min_u32 v{qK}, 39, v{qK}")
e(f"v_mul_u32_u24 v{vI0}, 52, v{qK}")
e(f"v_lshrrev_b32 v{vI0}, 8, v{vI0}           ; g")
e(f"v_mul_u32_u24 v{qA}, 5, v{vI0}")
e(f"v_sub_u32 v{qA}, v{qK}, v{qA}             ; j")
e(f"v_and_b32 v{qS}, 0x3fff, v{qS}")
e(f"v_lshl_or_b32 v{RC}, v{qK}, 14, v{qS}")
e(f"v_mov_b32 v{VJ[0]}, v{qA}")
e(f"s_mov_b32 s{sT0}, {ALLOC}")
e(f"v_lshl_add_u32 v{qA}, v{vI0}, 2, s{sT0}")
e(f"v_mov_b32 v{vOne}, 1")
e(f"v_mov_b32 v{qP}, 0")
e(f"v_mul_u32_u24 v{qB}, 6, v{qS}")
e(f"v_and_b32 v{qB}, -4, v{qB}")
for m in MK[1:]: e(f"s_mov_b64 {sp(m)}, 0")
e(f"s_cmp_eq_u64 {sp(sM0)}, 0")
e("s_cbranch_scc1 L_slow_nom")
e(f"s_mov_b64 exec, {sp(sM0)}")
e(f"buffer_load_dwordx2 {vr(PS0,2)}, v{qB}, {srd(S_POS)}, 0 offen")
e(f"ds_add_rtn_u32 v{qR}, v{qA}, v{vOne}")
e("s_mov_b64 exec, -1")
e(f"v_mul_u32_u24 v{vI0}, {GSTR}, v{vI0}")
e("s_waitcnt lgkmcnt(0)")
s1_place(qR, vI0, qS, sM0, "s", slow=True)
lab("L_slow_nom")
e(f"v_mov_b32 v{qA}, 640")
e(f"v_cmp_gt_u32 vcc, v{qA}, v{tid}")
e("s_mov_b64 exec, vcc")
e("s_cbranch_execz L_slow_nopb")
e(f"v_add_u32 v{qA}, {PENDB}, v{tid}")
e(f"ds_write_b8 v{qA}, v{qP}")
lab("L_slow_nopb")
e("s_mov_b64 exec, -1")
e("s_branch L_st2")
lab("L_slow_fin")
c("SEG must be zero-initialised if no pass ever ran")
e(f"s_cmp_eq_u32 s{sNODE}, 0")
e("s_cbranch_scc1 L_final_bar")
for r in range(32):
    e(f"v_mov_b32 v{SEG+r}, 0")
lab("L_final_bar")
e("s_barrier")
e("s_branch L_final")

desc = f""".amdhsa_kernel {KNAME}
  .amdhsa_next_free_vgpr 128
  .amdhsa_next_free_sgpr 102
  .amdhsa_accum_offset 128
  .amdhsa_group_segment_fixed_size 0
  .amdhsa_kernarg_size 88
  .amdhsa_user_sgpr_count 2
  .amdhsa_user_sgpr_kernarg_segment_ptr 1
  .amdhsa_system_sgpr_workgroup_id_x 1
.end_amdhsa_kernel"""
body = "\n".join(x for x in out if x is not None)
final = "\n".join(header) + "\n" + body + "\n" + '.section .rodata,"a"\n.p2align 6\n' + desc + "\n"
dest = sys.argv[1] if len(sys.argv) > 1 else "standalone__cheap_equivariant_egnn__graph.s"
open(dest, "w").write(final)
print("wrote", dest, len(out), "lines")
```

```python
import sys, os
sys.path.insert(0, os.path.dirname(os.path.abspath(__file__)))
from g3common import *

KNAME = "standalone__cheap_equivariant_egnn__graph_kernel"
TIMING = os.environ.get("TIMING", "")
NOPRIO = os.environ.get("NOPRIO", "")
QSC = os.environ.get("QSC", " sc1")
FORCE = os.environ.get("FORCE", "")
NPOLL = int(os.environ.get("NPOLL", "3000"))
RSL = int(os.environ.get("RSL", "8"))
QSL = int(os.environ.get("QSL", "4"))
NSL = int(os.environ.get("NSL", "8"))
QST = int(os.environ.get("QST", "8"))
PK = int(os.environ.get("PK", "0"))
XM = int(os.environ.get("XM", "0"))
LATE = int(os.environ.get("LATE", "1"))
BSPEC = int(os.environ.get("BSPEC", "1"))
PPF = int(os.environ.get("PPF", "1"))
WSOFF = int(os.environ.get("WSOFF", "0")) << 20
TLBW = int(os.environ.get("TLBW", "0"))
PLATE = int(os.environ.get("PLATE", "1"))
KO = os.environ.get("KO", "")
OSC = os.environ.get("OSC", "")
if OSC: OSC = " " + OSC.replace("_", " ")
YM = int(os.environ.get("YM", "0"))
SWARM = int(os.environ.get("SWARM", "0"))
PSL = int(os.environ.get("PSL", "0"))
QGATE = int(os.environ.get("QGATE", "8"))
H1W = int(os.environ.get("H1W", "2"))
FPRIO = int(os.environ.get("FPRIO", "2"))
FDEL = int(os.environ.get("FDEL", "0"))
F16 = int(os.environ.get("F16", "1"))
HB = int(os.environ.get("HB", "4"))
BAP = int(os.environ.get("BAP", "3"))
HOIST = int(os.environ.get("HOIST", "1"))
IMM = int(os.environ.get("IMM", "1"))
IDX = int(os.environ.get("IDX", "1"))
FINR = int(os.environ.get("FINR", "2"))
PRIOS = [int(x) for x in os.environ.get("PRIOS", "3210")]
EARLY = int(os.environ.get("EARLY", "1"))
PREF = int(os.environ.get("PREF", "1"))
RWS = int(os.environ.get("RWS", "1"))
RPS = int(os.environ.get("RPS", "2"))
PREFN = int(os.environ.get("PREFN", "1"))
FCOPY = int(os.environ.get("FCOPY", "16"))
FSTR = int(os.environ.get("FSTR", "1024"))
WSC = " sc1" if os.environ.get("WSC", "1") == "1" else ""
DELTA = 600
WIN = 8192
GUARD = 800
TAGC = 0x1a5
FLC = 0x5A5AA5A5

CELLA = 0
CHB = 32000
CELLB = 4 << 20
WH2F = 12 << 20
NG = 157; NCH = 63
BIN0 = NG; WPR = NG + NCH
CAP = 136
GSTR = CAP * 64
REC = 0
QT = 8 * GSTR
BXP = QT + 65536
OWN = BXP + 16384
PTF = OWN + 10240
CTR = PTF + 640
ALLOC = CTR; OVF = CTR + 32; PEND = CTR + 36; GCNT = CTR + 40; NONCE = CTR + 44; ZERO16 = CTR + 48
SYN = CTR + 64
RISS = SYN; RCNT = SYN + 4; RCNT2 = SYN + 8; FCNT = SYN + 12; FCNT2 = SYN + 16; RCA = SYN + 20; RLAND = SYN + 24
RCB = SYN + 28; FCB = SYN + 32; FCC = SYN + 36; RPL = SYN + 40; QOKF = SYN + 44; RH1 = SYN + 48
PENDB = CTR + 128
LDS_TOTAL = PENDB + 640
ZB2 = ZERO16 + 1024
if IMM: LDS_TOTAL = ZB2 + 16
assert ZB2 >= PENDB + 640
FLG = 13 << 20
assert LDS_TOTAL <= 163840
NWG = 250

S_H, S_POS, S_EA, S_SRC, S_DST, S_WX, S_O0, S_O1, S_WS, S_Q, S_WE, S_WH = [8 + 4 * i for i in range(12)]
sRW, sRQ, sRL = 56, 57, 58
sC4, sC5 = 4, 5
sW, sQ, sCT, sMODE, sT0, sT1, sT2, sT3 = range(60, 68)
sEX, sM0, sM1, sM2 = 68, 70, 72, 74
sG, sCH2, sCO, sNT, sU, sREM, sK2, sK3, sNODE, sCH, sRETRY, sB0, sB1, sGB, sRT, sPREF = range(76, 92)
sTW, sLOW, sCNT, sC = 92, 93, 94, 95
sPA, sPB = 96, 98
sX0, sX1, sX2 = 96, 97, 98
KS = 76

vL = 0
vLK, vQD, vTRQ0, vTRQ1, vTRS, vOD, vODM = 1, 2, 3, 4, 5, 6, 7
vT = list(range(8, 16))
SEG = 16; ACC = 48; FACC = 64; QF = 80; SF = 88; OHD = 96; BXF = 100; ID = 104; MP = 112; FB = 120
TE = QF
VST = 127

_st = [0]
STAMPS = os.environ.get("STAMPS", "")
STAMPS = set(int(x) for x in STAMPS.split(",")) if STAMPS else None
def stamp(name, idx=None):
    if not TIMING: return
    i = _st[0] if idx is None else idx
    if idx is None: _st[0] += 1
    if STAMPS is not None and i not in STAMPS: return
    c(f"STAMP {i} {name}")
    e(f"s_memtime s[{sC4}:{sC5}]")
    e("s_waitcnt lgkmcnt(0)")
    e(f"v_writelane_b32 v{VST}, s{sC4}, {i}")
    print("stamp", i, name)
def stamp_dyn(base, scnt, mx=11):
    if not TIMING or os.environ.get("STAMPS", ""): return
    e(f"s_memtime s[{sC4}:{sC5}]")
    e(f"s_min_u32 s3, s{scnt}, {mx}")
    e(f"s_add_u32 m0, s3, {base}")
    e("s_waitcnt lgkmcnt(0)")
    e(f"v_writelane_b32 v{VST}, s{sC4}, m0")
def stamp_flush():
    if not TIMING: return
    e(f"s_memrealtime s[{sC4}:{sC5}]")
    e("s_waitcnt lgkmcnt(0)")
    e("s_mov_b64 exec, -1")
    e(f"v_writelane_b32 v{VST}, s100, 62")
    e(f"v_writelane_b32 v{VST}, s{sC4}, 63")
    e(f"s_lshl_b32 s{sT0}, s2, 4")
    e(f"s_add_u32 s{sT0}, s{sT0}, s{sW}")
    e(f"s_lshl_b32 s{sT0}, s{sT0}, 8")
    e(f"s_add_u32 s{sT0}, s{sT0}, {32<<20}")
    e(f"v_lshlrev_b32 v{vT[1]}, 2, v{vL}")
    e(f"buffer_store_dword v{VST}, v{vT[1]}, {srd(S_WS)}, s{sT0} offen")

header = []
header.append(f"; @launch grid=({NWG},1,1) block=(1024,1,1) lds={LDS_TOTAL}")
header.append('.amdgcn_target "amdgcn-amd-amdhsa--gfx950"')
header.append(".text")
header.append(f".globl {KNAME}")
header.append(".p2align 8")
header.append(f".type {KNAME},@function")

lab(KNAME)
e(f"s_cmp_ge_u32 s2, {NWG}")
e("s_cbranch_scc1 L_end2")
e("s_memrealtime s[6:7]")
if TIMING:
    e("s_memrealtime s[100:101]")
if TIMING:
    e(f"v_mov_b32 v{VST}, 0")
stamp("entry")
e(f"s_load_dwordx16 s[{KS}:{KS+15}], s[0:1], 0")
e(f"s_load_dwordx2 s[{S_WS}:{S_WS+1}], s[0:1], 80")
e(f"s_load_dwordx2 s[{S_O0}:{S_O0+1}], s[0:1], 64")
tid = vT[7]
e(f"v_mov_b32 v{tid}, v0")
e(f"v_lshrrev_b32 v{vT[0]}, 6, v0")
e(f"v_and_b32 v{vL}, 63, v0")
e(f"v_readfirstlane_b32 s{sW}, v{vT[0]}")
for (x, sz) in [(S_H,2560000),(S_POS,60000),(S_EA,320000),(S_SRC,640000),(S_DST,640000),(S_WX,256),(S_O0,2560000),(S_O1,60000),
                (S_WS,256*1048576-WSOFF),(S_Q,10000 if IDX else 2560000),(S_WE,66048),(S_WH,65536)]:
    e(f"s_mov_b32 s{x+2}, {sz}")
    e(f"s_mov_b32 s{x+3}, 0x20000")
e(f"s_lshr_b32 s{sQ}, s{sW}, 2")
e(f"s_and_b32 s{sCT}, s{sW}, 3")
e(f"s_and_b32 s{sRW}, s{sW}, 7")
e(f"s_and_b32 s{sRQ}, s{sQ}, 1")
e(f"s_mov_b32 s{sMODE}, 0")
e(f"s_mov_b32 s{sRL}, 0")
def kernarg_copy():
    for (x, k) in [(S_H,0),(S_POS,2),(S_EA,4),(S_SRC,6),(S_DST,8),(S_WE,10),(S_WX,12),(S_WH,14)]:
        e(f"s_mov_b64 s[{x}:{x+1}], s[{KS+k}:{KS+k+1}]")
    if WSOFF:
        e(f"s_add_u32 s{S_WS}, s{S_WS}, {WSOFF}")
        e(f"s_addc_u32 s{S_WS+1}, s{S_WS+1}, 0")
    e(f"s_add_u32 s{S_O1}, s{S_O0}, 2560000")
    e(f"s_addc_u32 s{S_O1+1}, s{S_O0+1}, 0")
    e(f"s_add_u32 s{S_Q}, s{S_WS}, {QOFF}")
    e(f"s_addc_u32 s{S_Q+1}, s{S_WS+1}, {(256 << 16) if IDX else 0}")
    e(f"s_mov_b32 s{sTW}, s6")
    if SWARM:
        c("address-translation warm-up through the scalar path (results unused)")
        lst = [(S_H,0),(S_POS,0),(S_WE,0),(S_WH,0),(S_SRC,0),(S_DST,0),(S_EA,0),(S_H,2097152),(S_WS,0),(S_WS,FLG & 0xfffff if False else 0),(S_Q,0),(S_O0,0)]
        if SWARM == 1: lst = [(S_H,0),(S_POS,0),(S_WE,0),(S_WH,0)]
        if SWARM == 2: lst = [(S_H,0),(S_POS,0),(S_WE,0),(S_WH,0),(S_SRC,0),(S_DST,0),(S_EA,0)]
        if SWARM == 3: lst = [(S_H,0),(S_POS,0),(S_WE,0),(S_WH,0),(S_SRC,0),(S_DST,0),(S_EA,0),(S_WS,0),(S_Q,0),(S_O0,0)]
        for (x, off) in lst:
            e(f"s_load_dword s3, s[{x}:{x+1}], {off}")

vSL = 16; vTRP = 17; vRA = 18; vRD = 19; vST = 20; vU0 = 21; vU1 = 22
def slice_lane(dst, sct):
    e(f"v_lshrrev_b32 v{dst}, 2, v{vL}")
    e(f"v_lshlrev_b32 v{dst}, 8, v{dst}")
    e(f"v_and_b32 v{vU0}, 3, v{vL}")
    e(f"v_lshl_add_u32 v{dst}, v{vU0}, 4, v{dst}")
    e(f"s_lshl_b32 s{sT0}, s{sct}, 6")
    e(f"v_add_u32 v{dst}, s{sT0}, v{dst}")
def trpat(dst, t0, t1):
    e(f"v_lshrrev_b32 v{t0}, 5, v{vL}")
    e(f"v_bfe_u32 v{t1}, v{vL}, 2, 2")
    e(f"v_lshl_add_u32 v{dst}, v{t0}, 3, v{t1}")
    e(f"v_lshlrev_b32 v{dst}, 6, v{dst}")
    e(f"v_bfe_u32 v{t0}, v{vL}, 4, 1")
    e(f"v_lshl_add_u32 v{dst}, v{t0}, 5, v{dst}")
    e(f"v_and_b32 v{t0}, 3, v{vL}")
    e(f"v_lshl_add_u32 v{dst}, v{t0}, 3, v{dst}")
def row_addr(dst, vrow, vhi, tmp, base=OWN):
    e(f"v_and_b32 v{tmp}, 15, v{vrow}")
    e(f"v_xor_b32 v{tmp}, v{tmp}, v{vhi}")
    e(f"v_lshlrev_b32 v{tmp}, 4, v{tmp}")
    e(f"v_lshl_add_u32 v{dst}, v{vrow}, 8, v{tmp}")
    e(f"v_add_u32 v{dst}, {base}, v{dst}")

Z = 24
for i in range(4): e(f"v_mov_b32 v{Z+i}, 0")
c("wave 0: zero the counters (128 B), then B0")
e(f"s_cmp_eq_u32 s{sW}, 0")
e("s_cbranch_scc0 L_b0")
e(f"v_lshlrev_b32 v{vT[0]}, 4, v{vL}")
e(f"v_add_u32 v{vT[0]}, {CTR}, v{vT[0]}")
e("s_mov_b64 exec, 0xff")
e(f"ds_write_b128 v{vT[0]}, {vr(Z,4)}")
if IMM:
    e(f"v_mov_b32 v{vT[0]}, {ZB2}")
    e("s_mov_b64 exec, 1")
    e(f"ds_write_b128 v{vT[0]}, {vr(Z,4)}")
e("s_mov_b64 exec, -1")
e("s_waitcnt lgkmcnt(0)")
lab("L_b0")
e("s_barrier")
vA_ = 23
_sy = [0]
def arrive(addr, regs=None):
    a_, d_ = regs if regs else (vA_, vU1)
    e(f"v_mov_b32 v{a_}, {addr}")
    e(f"v_mov_b32 v{d_}, 1")
    e("s_mov_b64 exec, 1")
    e(f"ds_add_u32 v{a_}, v{d_}")
    e("s_mov_b64 exec, -1")
def wait_cnt(addr, n, nz=False, dst=None, regs=None, slp=1):
    i = _sy[0]; _sy[0] += 1
    d = dst if dst is not None else sT0
    a_, d_ = regs if regs else (vA_, vU1)
    e(f"v_mov_b32 v{a_}, {addr}")
    lab(f"L_sy{i}")
    e(f"ds_read_b32 v{d_}, v{a_}")
    e("s_waitcnt lgkmcnt(0)")
    e(f"v_readfirstlane_b32 s{d}, v{d_}")
    if nz: e(f"s_cmp_lg_u32 s{d}, 0")
    else:  e(f"s_cmp_ge_u32 s{d}, {n}")
    e(f"s_cbranch_scc1 L_syd{i}")
    e(f"s_sleep {slp}")
    e(f"s_branch L_sy{i}")
    lab(f"L_syd{i}")
e(f"s_cmp_ge_u32 s{sW}, 8")
e("s_cbranch_scc1 L_front")
def lane_consts():
    e(f"s_lshr_b32 s{sG}, s{sW}, 1")
    e(f"s_and_b32 s{sCH2}, s{sW}, 1")
    e(f"s_mul_i32 s{sGB}, s{sG}, {GSTR}")
    e(f"s_lshl_b32 s{sB0}, s{sW}, 12")
    e(f"s_add_u32 s{sB0}, s{sB0}, {QT}")
    e(f"s_add_u32 s{sB1}, s{sB0}, 2048")
    c("lane constants (REC rows swizzled: 16-B chunk c of row with rank p at position c ^ ((p>>2)&3))")
    e(f"v_lshrrev_b32 v{vT[3]}, 5, v{vL}           ; hi")
    e(f"v_lshrrev_b32 v{vT[4]}, 3, v{vL}")
    e(f"v_lshlrev_b32 v{vLK}, 6, v{vT[4]}")
    e(f"v_xor_b32 v{vT[4]}, 1, v{vT[3]}")
    e(f"v_lshl_add_u32 v{vLK}, v{vT[4]}, 4, v{vLK}")
    e(f"s_add_u32 s{sT0}, s{sGB}, {REC}")
    e(f"v_add_u32 v{vLK}, s{sT0}, v{vLK}")
    e(f"v_and_b32 v{vT[5]}, 7, v{vL}")
    e(f"v_bfe_u32 v{vT[6]}, v{vL}, 4, 1")
    e(f"v_lshlrev_b32 v{vT[4]}, 2, v{vT[6]}")
    e(f"v_xor_b32 v{vT[5]}, v{vT[5]}, v{vT[4]}")
    e(f"v_lshlrev_b32 v{vQD}, 4, v{vT[5]}")
    e(f"s_lshl_b32 s{sT1}, s{sCH2}, 7")
    e(f"v_add_u32 v{vQD}, s{sT1}, v{vQD}            ; ch*128 + (((l&7) ^ 4*((l>>4)&1))<<4)")
    c("vT6 = colhalf ; r = (l>>2)&3 ; c4 = l&3")
    e(f"v_bfe_u32 v{vT[4]}, v{vL}, 2, 2            ; r")
    e(f"v_and_b32 v{vT[5]}, 3, v{vL}")
    e(f"v_lshlrev_b32 v{vT[2]}, 5, v{vT[6]}")
    e(f"v_lshl_add_u32 v{vT[2]}, v{vT[5]}, 3, v{vT[2]}   ; colhalf*32 + c4*8")
    e(f"v_lshl_add_u32 v{vTRQ0}, v{vT[3]}, 3, v{vT[4]}   ; 8hi + r")
    e(f"v_lshl_add_u32 v{vTRQ0}, v{vTRQ0}, 7, v{vT[2]}")
    e(f"v_bfe_u32 v{vT[5]}, v{vL}, 3, 1            ; (r>>1)&1")
    e(f"v_lshl_add_u32 v{vTRQ0}, v{vT[5]}, 6, v{vTRQ0}")
    e(f"v_add_u32 v{vTRQ0}, s{sB0}, v{vTRQ0}")
    e(f"v_xor_b32 v{vTRQ1}, 64, v{vTRQ0}")
    c("vTRS = REC + g*GSTR + (4hi + r)*64 + ((colhalf*32 + c4*8) ^ (hi<<4))")
    e(f"v_lshlrev_b32 v{vT[5]}, 4, v{vT[3]}")
    e(f"v_xor_b32 v{vT[2]}, v{vT[2]}, v{vT[5]}")
    e(f"v_lshl_add_u32 v{vTRS}, v{vT[3]}, 2, v{vT[4]}    ; 4hi + r")
    e(f"v_lshl_add_u32 v{vTRS}, v{vTRS}, 6, v{vT[2]}")
    e(f"v_add_u32 v{vTRS}, s{sT0}, v{vTRS}")
    c("OHD: lanes 0..15 and 48..63 read chunk 0 of row (l&15) at position (row>>2)&3; others read ZERO16")
    e(f"v_and_b32 v{vT[4]}, 15, v{vL}")
    e(f"v_bfe_u32 v{vT[5]}, v{vL}, 2, 2")
    e(f"v_lshlrev_b32 v{vT[4]}, 6, v{vT[4]}")
    e(f"v_lshl_add_u32 v{vT[4]}, v{vT[5]}, 4, v{vT[4]}")
    e(f"v_add_u32 v{vT[4]}, s{sT0}, v{vT[4]}")
    e(f"v_cmp_eq_u32 vcc, v{vT[3]}, v{vT[6]}")
    e(f"v_mov_b32 v{vT[5]}, {ZERO16}")
    e(f"v_cndmask_b32 v{vOD}, v{vT[5]}, v{vT[4]}, vcc")
    e(f"v_mov_b32 v{vT[4]}, {2048 if IMM else 1024}")
    e(f"v_cndmask_b32 v{vODM}, 0, v{vT[4]}, vcc")
    e(f"s_mov_b32 s{sNODE}, 1")
    e(f"s_mov_b32 s{sPREF}, 0")
RA = 96; RB = 100; vGA = 120
PS = [56, 58, 60, 62]
VI = [80, 81, 82, 83]
VR = [84, 85, 86, 87]
vOne = 89
qP = 90
VJ = [120+0, 0, 0, 0]
VJ = [124, 125, 95, 88]
def id_consts(t0, t1):
    c("ID constants: lane (m,hi): step s elem i = (m == 16s + 8hi + i)")
    e(f"v_and_b32 v{t0}, 1, v{vL}")
    e(f"v_lshlrev_b32 v{t0}, 4, v{t0}")
    e(f"v_mov_b32 v{t1}, 0x3f80")
    e(f"v_lshlrev_b32 v{t0}, v{t0}, v{t1}")
    for s_ in range(2):
        for r in range(4):
            m = 0
            for l in range(64):
                x = (l & 31) - 8 * (l >> 5)
                if x in (16*s_ + 2*r, 16*s_ + 2*r + 1): m |= 1 << l
            e(f"s_mov_b32 vcc_lo, 0x{m & 0xffffffff:x}")
            e(f"s_mov_b32 vcc_hi, 0x{m >> 32:x}")
            e(f"v_cndmask_b32 v{ID+4*s_+r}, 0, v{t0}, vcc")
def seg_zero():
    for r in range(32):
        e(f"v_mov_b32 v{SEG+r}, 0")
MK = [sM0, sM1, sPA, sPB]
if not NOPRIO: e("s_setprio 2")
c("zero REC tail (4096 B, threads 256..511)")
e(f"v_lshlrev_b32 v{vT[0]}, 4, v{tid}")
e(f"v_add_u32 v{vT[1]}, {65536 - 4096}, v{vT[0]}")
e(f"v_cmp_lt_u32 vcc, 255, v{tid}")
e("s_mov_b64 exec, vcc")
e(f"s_cbranch_execz L_notail")
e(f"ds_write_b128 v{vT[1]}, {vr(Z,4)}")
lab("L_notail")
e("s_mov_b64 exec, -1")
e(f"s_cmp_ge_u32 s2, {BIN0}")
e("s_cbranch_scc1 L_notgemm")

AF = 24; BF = 56; D0 = 88
def gemm_role(tag, blk, fb):
    slice_lane(vSL, sCT)
    c("rows DMA lane offset: row = 8w + 4i + (l>>4); chunk = (l&15) ^ (row&15)")
    e(f"v_lshrrev_b32 v{vU0}, 4, v{vL}")
    e(f"v_and_b32 v{vU1}, 15, v{vL}")
    e(f"v_xor_b32 v{vU1}, v{vU1}, v{vU0}")
    e(f"s_and_b32 s{sT0}, s{sRW}, 1")
    e(f"s_lshl_b32 s{sT0}, s{sT0}, 3")
    e(f"v_xor_b32 v{vU1}, s{sT0}, v{vU1}")
    e(f"v_lshlrev_b32 v{vU1}, 4, v{vU1}")
    e(f"v_lshl_add_u32 v{vRA}, v{vU0}, 8, v{vU1}")
    e(f"v_xor_b32 v{vRD}, 64, v{vRA}")
    e(f"s_lshl_b32 s{sT0}, s{sCT}, 13")
    e(f"s_lshl_b32 s{sT1}, s{sRQ}, 12")
    e(f"s_add_u32 s{sT0}, s{sT0}, s{sT1}")
    e(f"s_add_u32 s{sT0}, s{sT0}, {QT}")
    e(f"s_lshl_b32 s{sT1}, s{sRQ}, 14")
    e(f"s_add_u32 s{sT1}, s{sT1}, 32768")
    e(f"s_lshl_b32 s{sT3}, s{sRW}, 11")
    e(f"s_lshl_b32 s{sX0}, s{blk}, 14")
    e(f"s_add_u32 s{sX0}, s{sX0}, s{sT3}           ; (64r + 8w)*256")
    if not fb:
        e("s_waitcnt lgkmcnt(0)")
        stamp("kernarg", 1)
        kernarg_copy()
    e(f"s_add_u32 m0, s{sT3}, {QT+32768}")
    e(f"s_add_u32 s{sX1}, s{sX0}, 1024")
    e(f"buffer_load_dwordx4 v{vRA}, {srd(S_H)}, s{sX0} offen lds")
    e(f"s_add_u32 m0, s{sT3}, {QT+32768+1024}")
    e(f"s_nop 0")
    e(f"buffer_load_dwordx4 v{vRD}, {srd(S_H)}, s{sX1} offen lds")
    for i in range(4):
        e(f"s_add_u32 m0, s{sT0}, {i*1024}")
        e(f"s_add_u32 s{sT2}, s{sT1}, {i*4096}")
        e(f"buffer_load_dwordx4 v{vSL}, {srd(S_WE)}, s{sT2} offen lds")
    if not fb:
        if not LATE: arrive(RISS)
        stamp("role loads issued", 2)
    c("compute: all 8 waves, rb = w>>2, ct = w&3 : 32 rows x 32 cols")
    trpat(vTRP, vU0, vU1)
    e(f"s_lshl_b32 s{sT0}, s{sCT}, 13")
    e(f"s_add_u32 s{sT0}, s{sT0}, {QT}")
    e(f"v_add_u32 v{vTRP}, s{sT0}, v{vTRP}")
    c("row read address: QT+32768 + (rb*32+n)*256 + ((hi ^ (n&15))<<4) ^ (s<<5)")
    e(f"v_and_b32 v{vU0}, 31, v{vL}")
    e(f"v_lshrrev_b32 v{vU1}, 5, v{vL}")
    e(f"v_and_b32 v{vRD}, 15, v{vL}")
    e(f"v_xor_b32 v{vRD}, v{vRD}, v{vU1}")
    e(f"v_lshlrev_b32 v{vRD}, 4, v{vRD}")
    e(f"v_lshl_add_u32 v{vRD}, v{vU0}, 8, v{vRD}")
    e(f"s_lshl_b32 s{sT0}, s{sRQ}, 13")
    e(f"s_add_u32 s{sT0}, s{sT0}, {QT+32768}")
    e(f"v_add_u32 v{vRD}, s{sT0}, v{vRD}")
    c("out tile (2 KB per wave) write addr: OB + n*64 + ((bb ^ ((n>>2)&3))<<4) + hi*8")
    e(f"s_lshl_b32 s{sT0}, s{sRW}, 11")
    e(f"s_add_u32 s{sT0}, s{sT0}, {QT+49152}")
    e(f"v_bfe_u32 v{vRA}, v{vL}, 2, 2")
    e(f"v_lshlrev_b32 v{vRA}, 4, v{vRA}")
    e(f"v_lshl_add_u32 v{vRA}, v{vU0}, 6, v{vRA}")
    e(f"v_lshl_add_u32 v{vRA}, v{vU1}, 3, v{vRA}")
    e(f"v_add_u32 v{vRA}, s{sT0}, v{vRA}")
    c("out tile read addr: OB + (r + 16i)*64 + ((q ^ ((r>>2)&3))<<4), r = l>>2, q = l&3 ; store: row*256 + ct*64 + q*16")
    e(f"v_lshrrev_b32 v{vU0}, 2, v{vL}")
    e(f"v_and_b32 v{vU1}, 3, v{vL}")
    e(f"v_bfe_u32 v{vSL}, v{vL}, 4, 2")
    e(f"v_xor_b32 v{vSL}, v{vSL}, v{vU1}")
    e(f"v_lshlrev_b32 v{vSL}, 4, v{vSL}")
    e(f"v_lshl_add_u32 v{vSL}, v{vU0}, 6, v{vSL}")
    e(f"v_add_u32 v{vSL}, s{sT0}, v{vSL}")
    e(f"v_lshlrev_b32 v{vST}, 4, v{vU1}")
    e(f"v_lshl_add_u32 v{vST}, v{vU0}, 8, v{vST}")
    e(f"s_lshl_b32 s{sT0}, s{blk}, 14")
    e(f"s_lshl_b32 s{sT1}, s{sRQ}, 13")
    e(f"s_add_u32 s{sT0}, s{sT0}, s{sT1}")
    e(f"s_lshl_b32 s{sT1}, s{sCT}, 6")
    e(f"s_add_u32 s{sC}, s{sT0}, s{sT1}")
    if IDX: e(f"s_add_u32 s{sC}, s{sC}, {QOFF}")
    e("s_waitcnt vmcnt(0) lgkmcnt(0)")
    if not fb: stamp("role loads landed", 3)
    if fb:
        e("s_barrier")
    else:
        arrive(RCNT)
        if LATE: arrive(RISS)
        wait_cnt(RCNT, 8)
        stamp("B1", 4)
    for s_ in range(8):
        e(f"v_xor_b32 v{vU0}, {s_<<5}, v{vRD}")
        e(f"ds_read_b128 {vr(BF+4*s_,4)}, v{vU0}")
        e(f"ds_read_b64_tr_b16 {vr(AF+4*s_,2)}, v{vTRP} offset:{s_*1024}")
        e(f"ds_read_b64_tr_b16 {vr(AF+4*s_+2,2)}, v{vTRP} offset:{s_*1024+256}")
    for s_ in range(8):
        e(f"s_waitcnt lgkmcnt({min(15, 21-3*s_)})")
        mfma(D0, AF+4*s_, BF+4*s_, "0" if s_ == 0 else vr(D0,16))
    if not fb: arrive(RCA)
    e(f"s_mov_b32 s{sT1}, 0x{NLOG2E:08x}")
    e("s_nop 7")
    e("s_nop 3")
    for bb in range(4):
        r0 = D0 + 4*bb
        for i in range(4):
            e(f"v_mul_f32 v{r0+i}, s{sT1}, v{r0+i}")
        e(f"v_cvt_pk_bf16_f32 v{r0}, v{r0}, v{r0+1}")
        e(f"v_cvt_pk_bf16_f32 v{r0+1}, v{r0+2}, v{r0+3}")
        e(f"v_xor_b32 v{vU0}, {bb<<4}, v{vRA}")
        e(f"ds_write_b64 v{vU0}, {vr(r0,2)}")
    e("s_waitcnt lgkmcnt(0)")
    for i in range(2):
        e(f"ds_read_b128 {vr(AF+4*i,4)}, v{vSL} offset:{i*1024}")
    e(f"s_add_u32 s{sT1}, s{sC}, 4096")
    for i in range(2):
        e(f"s_waitcnt lgkmcnt({1-i})")
        e(f"buffer_store_dwordx4 {vr(AF+4*i,4)}, v{vST}, {srd(S_WS if IDX else S_Q)}, s{[sC,sT1][i]} offen sc1")
    if not fb: stamp("role stores issued", 5)

gemm_role("", 2, False)
e(f"s_mov_b32 s{sRL}, 8")
e(f"s_lshl_b32 s{sX1}, s2, 2")
e(f"s_add_u32 s{sX1}, s{sX1}, {FLG}")
FM1 = sum(1 << (4*i) for i in range(FCOPY)); FM4 = (1 << (4*FCOPY)) - 1
e(f"s_mov_b32 s{sM0}, 0x{FM1 & 0xffffffff:x}")
e(f"s_mov_b32 s{sM0+1}, 0x{FM1 >> 32:x}")
e("s_branch L_rfront")

lab("L_notgemm")
e(f"s_cmp_ge_u32 s2, {WPR}")
e("s_cbranch_scc1 L_notbin")
c("binning chunk c = wg - 157: edges e = 2560c + 512i + t ; LDS image: cell b at QT + b*128 (+32000 for ranks 16..31), 8-B records")
NE = 5
CNT = QT + 64000
vD = 24; vS = 29; vB = 34; vR = 39; vP = 44; vE = 54; vE2 = 55; vOne_ = 56; vK = 57; vG_ = 58
VM = [76, 78, 80, 82, 84]
sN40, sCB = 86, 87
e(f"s_sub_u32 s{sC}, s2, {BIN0}")
e(f"s_mul_i32 s{sT0}, s{sC}, {2560*4}")
e(f"v_lshlrev_b32 v{vE}, 2, v{tid}")
e(f"v_lshlrev_b32 v{vE2}, 1, v{tid}")
e(f"v_lshlrev_b32 v{vK}, 4, v{tid}")
e(f"v_add_u32 v{vK}, {QT}, v{vK}")
e(f"v_mov_b32 v{vOne_}, 1")
e(f"s_add_u32 s{sT2}, s{sT0}, 4096")
e(f"s_add_u32 s{sT1}, s{sT0}, 8192")
e(f"s_lshr_b32 s{sX0}, s{sT0}, 1")
e(f"s_add_u32 s{sX1}, s{sX0}, 4096")
e("s_waitcnt lgkmcnt(0)")
stamp("kernarg", 1)
kernarg_copy()
def soff(i): return [sT0, sT0, sT2, sT2, sT1][i], (i & 1) * 2048 if i < 4 else 0
for i in range(NE):
    so, of = soff(i)
    e(f"buffer_load_dword v{vD+i}, v{vE}, {srd(S_DST)}, s{so} offen offset:{of}")
for i in range(NE):
    so, of = soff(i)
    e(f"buffer_load_dword v{vS+i}, v{vE}, {srd(S_SRC)}, s{so} offen offset:{of}")
for i in range(NE):
    so = sX0 if i < 4 else sX1
    e(f"buffer_load_ushort v{vP+2*i+1}, v{vE2}, {srd(S_EA)}, s{so} offen offset:{(i & 3) * 1024 if i < 4 else 0}")
if not LATE: arrive(RISS)
stamp("role loads issued", 2)
c("zero the image and the counters (64 KB) ; v60..63 = 0")
for i in range(4): e(f"v_mov_b32 v{60+i}, 0")
for i in range(8):
    e(f"ds_write_b128 v{vK}, {vr(60,4)} offset:{i*8192}")
arrive(RCNT)
c("validity: e < 160000  <=> byte offset < 640000")
e(f"v_add_u32 v{vE}, s{sT0}, v{vE}")
for i in range(NE):
    e(f"s_mov_b32 s{sX0}, {640000 - i*2048}")
    e(f"v_cmp_gt_u32 {sp(VM[i])}, s{sX0}, v{vE}")
e(f"s_mov_b32 s{sX0}, {CNT}")
e(f"s_mov_b32 s{sX1}, {QT}")
e(f"s_mov_b32 s{sN40}, -40")
e(f"s_mov_b32 s{sCB}, {CHB - 128}")
e(f"s_mov_b32 s{sT3}, {1 << 20}")
wait_cnt(RCNT, 8, dst=sX2)
stamp("B1", 4)
for i in range(NE):
    e(f"s_waitcnt vmcnt({3*NE-1-i})")
    e(f"v_mul_u32_u24 v{vB+i}, 52429, v{vD+i}")
    e(f"v_lshrrev_b32 v{vB+i}, 21, v{vB+i}")
    e(f"v_lshl_add_u32 v{vU0}, v{vB+i}, 2, s{sX0}")
    e(f"s_mov_b64 exec, {sp(VM[i])}")
    e(f"ds_add_rtn_u32 v{vR+i}, v{vU0}, v{vOne_}")
    e(f"v_mad_i32_i24 v{vD+i}, v{vB+i}, s{sN40}, v{vD+i}       ; k")
    e(f"v_lshl_add_u32 v{vB+i}, v{vB+i}, 7, s{sX1}")
    e(f"v_lshlrev_b32 v{vD+i}, 14, v{vD+i}")
    e(f"s_mov_b64 exec, -1")
for i in range(NE):
    e(f"s_waitcnt vmcnt({2*NE-1-i})")
    e(f"v_or3_b32 v{vP+2*i}, v{vD+i}, v{vS+i}, s{sT3}")
e("s_waitcnt vmcnt(0) lgkmcnt(0)")
if LATE: arrive(RISS)
stamp("role loads landed", 3)
for i in range(NE):
    e(f"v_lshl_add_u32 v{vU0}, v{vR+i}, 3, v{vB+i}")
    e(f"v_lshrrev_b32 v{vU1}, 4, v{vR+i}")
    e(f"s_mov_b64 exec, {sp(VM[i])}")
    e(f"v_cmp_gt_u32 vcc, 32, v{vR+i}")
    e(f"v_mad_u32_u24 v{vU0}, v{vU1}, s{sCB}, v{vU0}")
    e(f"s_mov_b64 exec, vcc")
    e(f"ds_write_b64 v{vU0}, {vr(vP+2*i,2)}")
    e(f"s_mov_b64 exec, -1")
e("s_waitcnt lgkmcnt(0)")
arrive(RCNT2)
c("copy-out: granule x = t + 512i (<2000): cell b = x>>3, q = x&7")
GA = 24; vCn = 40; vX = 45; vF = 46; vY = 47; vXL = 52
e(f"v_lshlrev_b32 v{vX}, 4, v{tid}               ; x*16 (i=0)")
e(f"v_lshrrev_b32 v{vY}, 3, v{tid}")
e(f"v_lshl_add_u32 v{vY}, v{vY}, 2, s{sX0}")
e(f"v_add_u32 v{vXL}, {QT}, v{vX}")
e(f"s_mul_i32 s{sT0}, s{sC}, {CHB}")
e(f"s_bfe_u32 s{sT1}, s{sTW}, {3 | (9<<16)}")
e(f"s_xor_b32 s{sT1}, s{sT1}, {TAGC}")
e(f"s_lshl_b32 s{sT1}, s{sT1}, 23")
e(f"s_mov_b32 s{sX1}, {2000-1536}")
e(f"v_cmp_gt_u32 {sp(sM1)}, s{sX1}, v{tid}")
e(f"v_mov_b32 v{vCn+3}, 0")
wait_cnt(RCNT2, 8, dst=sX2)
stamp("B2", 6)
for i in range(4):
    if i == 3:
        e(f"s_mov_b64 exec, {sp(sM1)}")
    e(f"ds_read_b128 {vr(GA+4*i,4)}, v{vXL} offset:{i*8192}")
    e(f"ds_read_b32 v{vCn+i}, v{vY} offset:{i*256}")
e("s_mov_b64 exec, -1")
def granule(G, cn, so):
    e(f"v_add_u32 v{vU0}, 15, v{cn}")
    e(f"v_lshrrev_b32 v{vU0}, 4, v{vU0}")
    e(f"v_min_u32 v{vU0}, 3, v{vU0}")
    e(f"v_lshl_or_b32 v{vF}, v{vU0}, 21, s{sT1}")
    e(f"v_lshl_or_b32 v{G+1}, v{G+3}, 16, v{G+1}")
    e(f"v_or_b32 v{G}, v{G}, v{vF}")
    e(f"v_or_b32 v{G+2}, v{G+2}, v{vF}")
    e(f"v_mov_b32 v{G+3}, s{sTW}")
    e(f"buffer_store_dwordx4 {vr(G,4)}, v{vX}, {srd(S_WS)}, s{so} offen sc1")
for i in range(4):
    if i == 3:
        e(f"s_mov_b64 exec, {sp(sM1)}")
    e(f"s_waitcnt lgkmcnt({2*(3-i)})")
    granule(GA+4*i, vCn+i, sT0)
    e(f"s_add_u32 s{sT0}, s{sT0}, 8192")
e("s_mov_b64 exec, -1")
stamp("role stores issued", 5)
c("B lines (ranks 16..31) for cells with count > 16")
e(f"s_mul_i32 s{sT0}, s{sC}, {CHB}")
e(f"s_add_u32 s{sT0}, s{sT0}, {CELLB}")
for i in range(4):
    e(f"v_cmp_lt_u32 vcc, 16, v{vCn+i}")
    e("s_mov_b64 exec, vcc")
    e(f"s_cbranch_execz L_nob{i}")
    e(f"ds_read_b128 {vr(48,4)}, v{vXL} offset:{CHB+i*8192}")
    e("s_waitcnt lgkmcnt(0)")
    granule(48, vCn+i, sT0)
    e("s_nop 1")
    lab(f"L_nob{i}")
    e("s_mov_b64 exec, -1")
    e(f"s_add_u32 s{sT0}, s{sT0}, 8192")
arrive(RCA)
e("s_branch L_rfront")

lab("L_notbin")
def wprep_role(tag, fb):
    slice_lane(vSL, sCT)
    e(f"s_lshl_b32 s{sT2}, s{sCT}, 13")
    e(f"s_add_u32 s{sT2}, s{sT2}, {QT}")
    trpat(vTRP, vU0, vU1)
    e(f"v_add_u32 v{vTRP}, s{sT2}, v{vTRP}")
    e(f"v_lshlrev_b32 v{vST}, 4, v{vL}")
    for i in range(8):
        e(f"s_add_u32 m0, s{sT2}, {i*1024}")
        e(f"s_mov_b32 s{sT1}, {32768 + i*4096}")
        e(f"buffer_load_dwordx4 v{vSL}, {srd(S_WH)}, s{sT1} offen lds")
    e(f"s_lshl_b32 s{sC}, s{sCT}, 13")
    e(f"s_add_u32 s{sC}, s{sC}, {WH2F}")
    e("s_waitcnt vmcnt(0)")
    for s_ in range(8):
        e(f"ds_read_b64_tr_b16 {vr(AF+4*s_,2)}, v{vTRP} offset:{s_*1024}")
        e(f"ds_read_b64_tr_b16 {vr(AF+4*s_+2,2)}, v{vTRP} offset:{s_*1024+256}")
    for s_ in range(8):
        if s_ == 4:
            e(f"s_add_u32 s{sC}, s{sC}, 4096")
        e(f"s_waitcnt lgkmcnt({2*(7-s_)})")
        e(f"buffer_store_dwordx4 {vr(AF+4*s_,4)}, v{vST}, {srd(S_WS)}, s{sC} offen offset:{(s_%4)*1024} sc1")
e("s_waitcnt lgkmcnt(0)")
stamp("kernarg", 1)
kernarg_copy()
arrive(RISS)
c("workgroups WPR..WPR+3: slice ct = wg - WPR of WH2 ; wave w converts k-step w")
e(f"s_sub_u32 s{sC}, s2, {WPR}")
e(f"s_cmp_ge_u32 s{sC}, 4")
e("s_cbranch_scc1 L_norole")
slice_lane(vSL, sC)
trpat(vTRP, vU0, vU1)
e(f"s_lshl_b32 s{sT2}, s{sW}, 10")
e(f"s_add_u32 s{sT2}, s{sT2}, {QT}")
e(f"v_add_u32 v{vTRP}, s{sT2}, v{vTRP}")
e(f"v_lshlrev_b32 v{vST}, 4, v{vL}")
e(f"s_lshl_b32 s{sT1}, s{sW}, 12")
e(f"s_add_u32 s{sT1}, s{sT1}, 32768")
e(f"s_mov_b32 m0, s{sT2}")
e(f"s_lshl_b32 s{sT3}, s{sC}, 13")
e(f"buffer_load_dwordx4 v{vSL}, {srd(S_WH)}, s{sT1} offen lds")
e(f"s_lshl_b32 s{sT0}, s{sW}, 10")
e(f"s_add_u32 s{sT3}, s{sT3}, s{sT0}")
e(f"s_add_u32 s{sT3}, s{sT3}, {WH2F}")
e("s_waitcnt vmcnt(0)")
e(f"ds_read_b64_tr_b16 {vr(AF,2)}, v{vTRP}")
e(f"ds_read_b64_tr_b16 {vr(AF+2,2)}, v{vTRP} offset:256")
e("s_waitcnt lgkmcnt(0)")
e(f"buffer_store_dwordx4 {vr(AF,4)}, v{vST}, {srd(S_WS)}, s{sT3} offen sc1")
e(f"s_mov_b32 s{sRL}, 8")
e(f"s_lshl_b32 s{sX1}, s{sC}, 2")
e(f"s_add_u32 s{sX1}, s{sX1}, {FLG + NG*4}")
e(f"s_mov_b32 s{sM0}, 0x{FM1 & 0xffffffff:x}")
e(f"s_mov_b32 s{sM0+1}, 0x{FM1 >> 32:x}")
e(f"s_cmp_eq_u32 s{sC}, 3")
e("s_cbranch_scc0 L_wp_nopad")
c("the last one also fills the three padding flags")
e(f"s_mov_b32 s{sM0}, 0x{FM4 & 0xffffffff:x}")
e(f"s_mov_b32 s{sM0+1}, 0x{FM4 >> 32:x}")
lab("L_wp_nopad")
lab("L_norole")
arrive(RCA)
lab("L_rfront")
c("R waves after the role: H1 (quad 0: nodes 0..31, quad 1: nodes 32..39); WH1 slices staged in QT (ct*8192)")
WF = 16
D1 = 96
vR2 = 114
def rowreg(s_): return (ACC + 4*s_) if s_ < 4 else (QF + 4*(s_-4))
slice_lane(vT[2], sCT)
e(f"s_lshl_b32 s{sT2}, s{sCT}, 13")
e(f"s_add_u32 s{sT2}, s{sT2}, {QT}")
e(f"s_lshl_b32 s{sT3}, s{sRQ}, 12")
e(f"s_add_u32 s{sT3}, s{sT3}, s{sT2}          ; + half*4096")
e(f"s_lshl_b32 s{sX0}, s{sRQ}, 14")
wait_cnt(RCA, 8, dst=sX2)
for i in range(4):
    e(f"s_add_u32 m0, s{sT3}, {i*1024}")
    e(f"s_add_u32 s{sT1}, s{sX0}, {i*4096}")
    e(f"buffer_load_dwordx4 v{vT[2]}, {srd(S_WH)}, s{sT1} offen lds")
stamp("h1 dma", 7)
c("signal: the last of the role's waves writes the flag(s) once all stores are complete")
e(f"s_mov_b32 s{sC}, 0")
e(f"s_cmp_eq_u32 s{sRL}, 0")
e("s_cbranch_scc1 L_nosig")
e("s_waitcnt vmcnt(4)")
e(f"v_mov_b32 v{vU0}, {GCNT}")
e(f"v_mov_b32 v{vU1}, 1")
e("s_mov_b64 exec, 1")
e(f"ds_add_rtn_u32 v{vRA}, v{vU0}, v{vU1}")
e("s_waitcnt lgkmcnt(0)")
e("s_mov_b64 exec, -1")
e(f"v_readfirstlane_b32 s{sT0}, v{vRA}")
e(f"s_xor_b32 s{sT1}, s{sTW}, {FLC}")
e(f"v_mov_b32 v{vU1}, s{sT1}")
e(f"v_lshrrev_b32 v{vU0}, 2, v{vL}")
e(f"v_mul_u32_u24 v{vU0}, {FSTR}, v{vU0}")
e(f"v_and_b32 v{vRA}, 3, v{vL}")
e(f"v_lshl_add_u32 v{vU0}, v{vRA}, 2, v{vU0}")
e(f"s_add_u32 s{sT0}, s{sT0}, 1")
e(f"s_cmp_eq_u32 s{sT0}, s{sRL}")
e(f"s_cbranch_scc0 L_nosig")
e(f"s_mov_b64 exec, {sp(sM0)}")
e(f"buffer_store_dword v{vU1}, v{vU0}, {srd(S_WS)}, s{sX1} offen sc1")
e("s_mov_b64 exec, -1")
e(f"s_mov_b32 s{sC}, 1")
lab("L_nosig")
stamp("role signalled", 6)
if not NOPRIO: e("s_setprio 0")
e(f"s_mov_b32 s{sX0}, s{sT2}")
lane_consts()
trpat(vT[6], vT[0], vT[1])
e(f"v_add_u32 v{vT[6]}, s{sX0}, v{vT[6]}")
e(f"v_lshrrev_b32 v{vT[3]}, 5, v{vL}           ; hi")
e(f"v_and_b32 v{vT[4]}, 31, v{vL}")
e(f"s_lshl_b32 s{sT0}, s{sRQ}, 5")
e(f"v_add_u32 v{vT[4]}, s{sT0}, v{vT[4]}")
e(f"v_min_u32 v{vT[4]}, 39, v{vT[4]}")
row_addr(vT[1], vT[4], vT[3], vT[2])
c("DMA landed (the flag store, if this wave issued it, may stay in flight)")
e(f"s_cmp_eq_u32 s{sC}, 0")
e("s_cbranch_scc1 L_h1w0")
e(f"s_waitcnt vmcnt(1)")
e("s_branch L_h1w1")
lab("L_h1w0")
e("s_waitcnt vmcnt(0)")
lab("L_h1w1")
arrive(RCB)
wait_cnt([FCNT, FCC, FCNT2][H1W], 8, dst=sX2)
for s_ in range(8):
    e(f"v_xor_b32 v{vT[2]}, {s_<<5}, v{vT[1]}")
    e(f"ds_read_b128 {vr(rowreg(s_),4)}, v{vT[2]}")
wait_cnt(RCB, 8, dst=sX2)
for s_ in range(8):
    e(f"ds_read_b64_tr_b16 {vr(WF+4*s_,2)}, v{vT[6]} offset:{s_*1024}")
    e(f"ds_read_b64_tr_b16 {vr(WF+4*s_+2,2)}, v{vT[6]} offset:{s_*1024+256}")
e(f"s_mov_b32 s{sK2}, 0x{NLOG2E:08x}")
e(f"s_cmp_eq_u32 s{sRQ}, 0")
e("s_cbranch_scc0 L_h1b")
for s_ in range(8):
    e(f"s_waitcnt lgkmcnt({2*(7-s_)})")
    mfma(FACC, WF+4*s_, rowreg(s_), "0" if s_ == 0 else vr(FACC,16))
e("s_nop 7")
e("s_nop 3")
for r in range(16):
    e(f"v_mul_f32 v{FACC+r}, s{sK2}, v{FACC+r}")
e("s_branch L_h1d")
lab("L_h1b")
for s_ in range(8):
    e(f"s_waitcnt lgkmcnt({2*(7-s_)})")
    mfma(D1, rowreg(s_), WF+4*s_, "0" if s_ == 0 else vr(D1,16))
e("s_nop 7")
e("s_nop 3")
for r in range(4):
    e(f"v_mul_f32 v{FB+r}, s{sK2}, v{D1+r}")
lab("L_h1d")
if PREF: arrive(RH1)
stamp("h1 done", 8)
e("s_branch L_common")

lab("L_front")
QA, QB, QC = 0, 1, 2
KB = 124
PWR = 116
fw = sX2
e(f"s_sub_u32 s{fw}, s{sW}, 8")
e(f"v_lshlrev_b32 v{vT[0]}, 4, v{tid}")
c("own rows dma: instr idx u covers rows 4u..4u+3 ; lane: row = 4u + (l>>4); chunk = (l&15) ^ (row&15)")
e(f"v_lshrrev_b32 v{vT[4]}, 4, v{vL}")
e(f"v_and_b32 v{vT[1]}, 15, v{vL}")
e(f"v_xor_b32 v{vT[1]}, v{vT[1]}, v{vT[4]}")
e(f"s_lshl_b32 s{sT1}, s{sCT}, 2")
e(f"v_xor_b32 v{vT[1]}, s{sT1}, v{vT[1]}")
e(f"v_lshlrev_b32 v{vT[1]}, 4, v{vT[1]}")
e(f"v_lshl_add_u32 v{vT[1]}, v{vT[4]}, 8, v{vT[1]}")
slice_lane(vT[2], sCT)
e(f"s_lshl_b32 s{sT2}, s{sCT}, 13")
e(f"s_mul_i32 s{sT0}, s2, {40*256}")
e(f"s_lshl_b32 s{sT1}, s{fw}, 10")
e(f"s_add_u32 s{sT0}, s{sT0}, s{sT1}")
e(f"v_mul_u32_u24 v{vT[3]}, 6, v{vL}")
e(f"v_and_b32 v{vT[5]}, 31, v{vL}")
e(f"s_lshl_b32 s{sT3}, s{sCT}, 5")
e(f"v_add_u32 v{vT[5]}, s{sT3}, v{vT[5]}")
e(f"v_lshlrev_b32 v{vT[5]}, 1, v{vT[5]}           ; (32ct + n)*2")
e("s_waitcnt lgkmcnt(0)")
stamp("kernarg", 1)
kernarg_copy()
if FDEL: e(f"s_sleep {FDEL}")
e(f"s_add_u32 m0, s{sT1}, {OWN}")
e("s_nop 0")
e(f"buffer_load_dwordx4 v{vT[1]}, {srd(S_H)}, s{sT0} offen lds")
e(f"s_cmp_ge_u32 s{fw}, 2")
e("s_cbranch_scc1 L_f_no2")
e(f"s_add_u32 m0, s{sT1}, {OWN+8192}")
e(f"s_add_u32 s{sT0}, s{sT0}, 8192")
e(f"buffer_load_dwordx4 v{vT[1]}, {srd(S_H)}, s{sT0} offen lds")
lab("L_f_no2")
c("wave 10: own pos (lane l<40 loads x,y,z u16)")
e(f"s_cmp_eq_u32 s{fw}, 2")
e("s_cbranch_scc0 L_f_nopos")
e(f"s_mul_i32 s{sT0}, s2, 240")
e(f"v_cmp_gt_u32 vcc, 40, v{vL}")
e("s_mov_b64 exec, vcc")
for k in range(3):
    e(f"buffer_load_ushort v{PWR+k}, v{vT[3]}, {srd(S_POS)}, s{sT0} offen offset:{2*k}")
e("s_mov_b64 exec, -1")
lab("L_f_nopos")
if PPF:
    c("L2 warm-up of pos: segment (wg>>3)&7 of 7680 B, 960 B per F wave (result unused)")
    e(f"s_lshr_b32 s{sT1}, s2, 3")
    e(f"s_and_b32 s{sT1}, s{sT1}, 7")
    e(f"s_lshl_b32 s{sT1}, s{sT1}, 3")
    e(f"s_add_u32 s{sT1}, s{sT1}, s{fw}")
    e(f"s_mul_i32 s{sT1}, s{sT1}, 960")
    e(f"v_lshlrev_b32 v{vT[7]}, 4, v{vL}")
    e(f"buffer_load_dwordx4 {vr(108,4)}, v{vT[7]}, {srd(S_POS)}, s{sT1} offen")
c("K1B raw: w_e rows 256, 257")
e(f"s_mov_b32 s{sT1}, 65536")
e(f"buffer_load_ushort v{KB}, v{vT[5]}, {srd(S_WE)}, s{sT1} offen")
e(f"buffer_load_ushort v{KB+1}, v{vT[5]}, {srd(S_WE)}, s{sT1} offen offset:256")
e(f"s_add_u32 s{sX1}, s{sT2}, {REC}")
e(f"s_lshl_b32 s{sT3}, s{sRQ}, 12")
e(f"s_add_u32 s{sT3}, s{sT3}, s{sX1}          ; + half*4096")
e(f"s_lshl_b32 s{sX0}, s{sRQ}, 14")
stamp("role loads issued", 2)
c("zero REC[32768, 65536) (the first 32 KB stage W1 and are zeroed after use)")
for i in range(4):
    e(f"ds_write_b128 v{vT[0]}, {vr(Z,4)} offset:{32768 - 8192 + i*8192}")
c("let the role loads go first")
if YM == 1:
    e(f"s_cmp_lt_u32 s2, {BIN0}")
    e("s_cbranch_scc1 L_f_noriss")
wait_cnt(RISS, 8)
if YM == 1: lab("L_f_noriss")
stamp("B1", 4)
c("W1 slice ct (w_e rows 0..127): this wave loads k-steps 4*half .. 4*half+3")
for i in range(4):
    e(f"s_add_u32 m0, s{sT3}, {i*1024}")
    e(f"s_add_u32 s{sT1}, s{sX0}, {i*4096}")
    e(f"buffer_load_dwordx4 v{vT[2]}, {srd(S_WE)}, s{sT1} offen lds")
lane_consts()
e("s_waitcnt vmcnt(4)")
arrive(FCNT)
c("wave 10: PTF (f32 x4 per node)")
e(f"s_cmp_eq_u32 s{fw}, 2")
e("s_cbranch_scc0 L_noptf")
for k in range(3): e(f"v_lshlrev_b32 v{PWR+k}, 16, v{PWR+k}")
e(f"v_mov_b32 v{PWR+3}, 0")
e(f"v_lshlrev_b32 v{vT[0]}, 4, v{vL}")
e(f"v_add_u32 v{vT[0]}, {PTF}, v{vT[0]}")
e(f"v_cmp_gt_u32 vcc, 40, v{vL}")
e("s_mov_b64 exec, vcc")
e(f"ds_write_b128 v{vT[0]}, {vr(PWR,4)}")
e("s_mov_b64 exec, -1")
lab("L_noptf")
stamp("role loads landed", 3)
trpat(vT[6], vT[0], vT[1])
e(f"v_add_u32 v{vT[6]}, s{sX1}, v{vT[6]}")
c("P' task: rows m: slot = m&7, g' = m>>3 ; node = 5*(4B + g') + max(slot-3,0), B = half")
e(f"v_lshrrev_b32 v{vT[3]}, 5, v{vL}           ; hi")
e(f"v_and_b32 v{vT[0]}, 7, v{vL}")
e(f"v_subrev_u32 v{vT[0]}, 3, v{vT[0]}")
e(f"v_max_i32 v{vT[0]}, 0, v{vT[0]}")
e(f"v_bfe_u32 v{vT[1]}, v{vL}, 3, 2")
e(f"v_mad_u32_u24 v{vT[0]}, v{vT[1]}, 5, v{vT[0]}        ; node (B=0)")
e(f"s_mul_i32 s{sT0}, s{sRQ}, 20")
e(f"v_add_u32 v{vT[0]}, s{sT0}, v{vT[0]}")
row_addr(vT[1], vT[0], vT[3], vT[2])
c("K1B: (wd, we) scaled, hi and lo parts")
e(f"s_mov_b32 s{sT0}, 0x{NLOG2E:08x}")
e(f"s_mov_b32 s{sT1}, 0xffff0000")
k0, k1, k2, k3 = 116, 117, 118, 119
e(f"v_lshlrev_b32 v{k0}, 16, v{KB}")
e(f"v_lshlrev_b32 v{k1}, 16, v{KB+1}")
e(f"v_mul_f32 v{k0}, s{sT0}, v{k0}")
e(f"v_mul_f32 v{k1}, s{sT0}, v{k1}")
e(f"v_cvt_pk_bf16_f32 v{KB}, v{k0}, v{k1}")
e(f"v_lshlrev_b32 v{k2}, 16, v{KB}")
e(f"v_and_b32 v{k3}, s{sT1}, v{KB}")
e(f"v_sub_f32 v{k0}, v{k0}, v{k2}")
e(f"v_sub_f32 v{k1}, v{k1}, v{k3}")
e(f"v_cvt_pk_bf16_f32 v{KB+1}, v{k0}, v{k1}")
c("P' write: BXP + g*2048 + (32ct + n)*16 + hi*8 ; hi=0 lanes: slots 0,1 = (wd,we) hi ; slot 2 = wd lo ; slot 3 = P'[j=0]")
vPW, vPM = 126, 127 if not TIMING else 115
e(f"v_and_b32 v{vPW}, 31, v{vL}")
e(f"v_lshlrev_b32 v{vPW}, 4, v{vPW}")
e(f"v_lshl_add_u32 v{vPW}, v{vT[3]}, 3, v{vPW}")
e(f"s_lshl_b32 s{sT0}, s{sCT}, 9")
e(f"s_lshl_b32 s{sT1}, s{sRQ}, 13")
e(f"s_add_u32 s{sT0}, s{sT0}, s{sT1}")
e(f"s_add_u32 s{sT0}, s{sT0}, {BXP}")
e(f"v_add_u32 v{vPW}, s{sT0}, v{vPW}")
e(f"v_cmp_gt_u32 vcc, 32, v{vL}")
e(f"v_mov_b32 v{vPM}, 0xffff0000")
e(f"v_cndmask_b32 v{vPM}, -1, v{vPM}, vcc         ; mask M")
e(f"v_and_b32 v{KB+1}, 0xffff, v{KB+1}")
e(f"v_cndmask_b32 v{KB+1}, 0, v{KB+1}, vcc")
e(f"s_mov_b32 s{sK2}, 0x{NLOG2E + ((7 << 23) if F16 else 0):08x}")
for i in range(4): e(f"v_mov_b32 v{116+i}, 0")
e("s_waitcnt vmcnt(0)")
stamp("slices landed", 6)
arrive(FCB)
c("---- granule (16 B, two records) per lane: c = 8fw + (l>>3), q = l&7 : c*32000 + q*16 (+ b*128)")
e(f"s_lshl_b32 s{sT0}, s{fw}, 3")
e(f"v_lshrrev_b32 v{vT[4]}, 3, v{vL}")
e(f"v_add_u32 v{vT[4]}, s{sT0}, v{vT[4]}          ; c")
e(f"v_mul_u32_u24 v{vGA}, {CHB}, v{vT[4]}")
e(f"v_and_b32 v{vT[5]}, 7, v{vL}")
e(f"v_lshl_add_u32 v{vGA}, v{vT[5]}, 4, v{vGA}")
e(f"v_lshlrev_b32 v{vT[0]}, 4, v{vL}")
e(f"s_lshl_b32 s{sT0}, s{fw}, 12")
e(f"v_add_u32 v{vT[0]}, s{sT0}, v{vT[0]}")
e(f"v_cmp_gt_u32 {sp(sPA)}, {NCH}, v{vT[4]}")
e(f"s_lshl_b32 s{sT2}, s2, 7")
e(f"s_add_u32 s{sT3}, s{sT2}, {CELLB}")
e(f"s_mov_b64 {sp(sPB)}, {sp(sPA)}")
e(f"s_mov_b64 {sp(sEX)}, {sp(sPA)}")
e(f"s_sub_u32 s{sLOW}, s{sTW}, {DELTA}")
if FORCE == "ovf":
    e(f"s_add_u32 s{sLOW}, s{sLOW}, 0x40000000")
e(f"s_mov_b32 s{sK3}, {WIN}")
e(f"s_mov_b32 s{sCNT}, 0")
e(f"s_mov_b64 {sp(sM2)}, {sp(sPB)}")
wait_cnt(FCB, 8)
stamp("fcb", 45)
for s_ in range(8):
    e(f"ds_read_b64_tr_b16 {vr(WF+4*s_,2)}, v{vT[6]} offset:{s_*1024}")
    e(f"ds_read_b64_tr_b16 {vr(WF+4*s_+2,2)}, v{vT[6]} offset:{s_*1024+256}")
_pi = [0]
def poll_issue():
    i = _pi[0]; _pi[0] += 1
    e(f"s_cmp_eq_u64 {sp(sPA)}, 0")
    e(f"s_cbranch_scc1 L_rp_noa{i}")
    e(f"s_mov_b64 exec, {sp(sPA)}")
    e(f"buffer_load_dwordx4 {vr(RA,4)}, v{vGA}, {srd(S_WS)}, s{sT2} offen sc1")
    lab(f"L_rp_noa{i}")
    e(f"s_cmp_eq_u64 {sp(sM2)}, 0")
    e(f"s_cbranch_scc1 L_rp_nob{i}")
    e(f"s_mov_b64 exec, {sp(sM2)}")
    e(f"buffer_load_dwordx4 {vr(RB,4)}, v{vGA}, {srd(S_WS)}, s{sT3} offen sc1")
    lab(f"L_rp_nob{i}")
    e("s_mov_b64 exec, -1")

vFRD = 126
def node_addr2(dst, node, cmp_, t0, t1, vhi):
    e(f"v_mul_u32_u24 v{t1}, 52, v{node}")
    e(f"v_lshrrev_b32 v{t1}, 8, v{t1}             ; g")
    e(f"v_mul_u32_u24 v{t0}, 5, v{t1}")
    e(f"v_sub_u32 v{t0}, v{node}, v{t0}          ; j")
    if cmp_ is not None:
        e(f"v_lshl_add_u32 v{t0}, v{cmp_}, 3, v{t0}")
    e(f"v_add_u32 v{t0}, 3, v{t0}                 ; f")
    e(f"v_bfe_u32 v{dst}, v{t0}, 2, 2")
    e(f"v_xor_b32 v{dst}, v{dst}, v{vhi}")
    e(f"v_lshlrev_b32 v{t0}, 6, v{t0}")
    e(f"v_lshl_add_u32 v{t0}, v{t1}, 13, v{t0}")
    e(f"v_and_b32 v{t1}, 3, v{t1}")
    e(f"v_xor_b32 v{dst}, v{dst}, v{t1}")
    e(f"v_lshl_add_u32 v{dst}, v{dst}, 4, v{t0}")
    e(f"v_add_u32 v{dst}, {QT}, v{dst}")
def rolec_node(vn, vnode, vcmp, t0, t1):
    c("role C: n' = min(n,29); idx = 30ct + n' ; G = idx/15 ; r = idx%15 ; c = r/5 ; j = r%5 ; node = 5G + j ; comp = c+1")
    e(f"v_min_u32 v{t0}, 29, v{vn}")
    e(f"v_cmp_lt_u32 vcc, 14, v{t0}")
    e(f"v_cndmask_b32 v{t1}, 0, 1, vcc               ; G&1")
    e(f"v_mul_u32_u24 v{vnode}, 15, v{t1}")
    e(f"v_sub_u32 v{t0}, v{t0}, v{vnode}          ; r")
    e(f"v_mul_u32_u24 v{vcmp}, 52, v{t0}")
    e(f"v_lshrrev_b32 v{vcmp}, 8, v{vcmp}              ; c")
    e(f"v_mul_u32_u24 v{vnode}, 5, v{vcmp}")
    e(f"v_sub_u32 v{t0}, v{t0}, v{vnode}          ; j")
    e(f"s_lshl_b32 s{sT0}, s{sCT}, 1")
    e(f"v_add_u32 v{t1}, s{sT0}, v{t1}            ; G")
    e(f"v_mad_u32_u24 v{vnode}, v{t1}, 5, v{t0}")
    e(f"v_add_u32 v{vcmp}, 1, v{vcmp}")
def final_addr(rwaves):
    n, hi, nd, cm, t0, t1 = vT[0], vT[1], vT[2], vT[3], vT[4], vT[5]
    e(f"v_and_b32 v{n}, 31, v{vL}")
    e(f"v_lshrrev_b32 v{hi}, 5, v{vL}")
    if rwaves:
        c("role A: node n ; role B: node 32 + (n&7)")
        e(f"v_and_b32 v{nd}, 7, v{n}")
        e(f"v_add_u32 v{nd}, 32, v{nd}")
        e(f"s_cmp_eq_u32 s{sQ}, 0")
        e(f"s_cselect_b64 vcc, -1, 0")
        e(f"v_cndmask_b32 v{nd}, v{nd}, v{n}, vcc")
        node_addr2(vFRD, nd, None, t0, t1, hi)
    else:
        rolec_node(n, nd, cm, t0, t1)
        node_addr2(vFRD, nd, cm, t0, t1, hi)
vFOFF, vFRES = 124, 125
def final_addr_res(tag):
    n, hi, t0, t1 = vT[0], vT[1], vT[2], vT[3]
    e(f"v_and_b32 v{n}, 31, v{vL}")
    e(f"v_lshrrev_b32 v{hi}, 5, v{vL}")
    e(f"s_mul_i32 s{sT1}, s2, 40")
    e(f"s_cmp_eq_u32 s{sQ}, 0")
    e(f"s_cbranch_scc0 L_far_b{tag}")
    c("role A residual: h[node n][32ct + 8bb + 4hi..+3]: OWN + n*256 + (((ct*4+bb) ^ (n&15))<<4) + hi*8")
    e(f"v_and_b32 v{t0}, 15, v{n}")
    e(f"s_lshl_b32 s{sT0}, s{sCT}, 2")
    e(f"v_xor_b32 v{t0}, s{sT0}, v{t0}")
    e(f"v_lshlrev_b32 v{t0}, 4, v{t0}")
    e(f"v_lshl_add_u32 v{t0}, v{n}, 8, v{t0}")
    e(f"v_lshl_add_u32 v{t0}, v{hi}, 3, v{t0}")
    e(f"v_add_u32 v{vFRES}, {OWN}, v{t0}")
    e(f"v_add_u32 v{vFOFF}, s{sT1}, v{n}")
    e(f"v_lshlrev_b32 v{vFOFF}, 8, v{vFOFF}")
    e(f"v_lshl_add_u32 v{vFOFF}, v{hi}, 3, v{vFOFF}")
    e(f"s_lshl_b32 s{sT0}, s{sCT}, 6")
    e(f"v_add_u32 v{vFOFF}, s{sT0}, v{vFOFF}")
    e(f"s_branch L_far_d{tag}")
    lab(f"L_far_b{tag}")
    c("role B residual: rows 32+4hi+i, col 32ct+n: OWN + row*256 + (((ct*4 + (n>>3)) ^ (row&15))<<4) + (n&7)*2")
    e(f"v_lshrrev_b32 v{t0}, 3, v{n}")
    e(f"s_lshl_b32 s{sT0}, s{sCT}, 2")
    e(f"v_add_u32 v{t0}, s{sT0}, v{t0}          ; chunk")
    e(f"v_lshlrev_b32 v{t1}, 2, v{hi}             ; 4hi")
    e(f"v_xor_b32 v{t0}, v{t0}, v{t1}")
    e(f"v_lshlrev_b32 v{t0}, 4, v{t0}")
    e(f"v_lshl_add_u32 v{t0}, v{t1}, 8, v{t0}   ; + 4hi*256")
    e(f"v_and_b32 v{hi}, 7, v{n}")
    e(f"v_lshl_add_u32 v{t0}, v{hi}, 1, v{t0}")
    e(f"v_add_u32 v{vFRES}, {OWN + 32*256}, v{t0}")
    e(f"s_add_u32 s{sT0}, s{sT1}, 32")
    e(f"v_add_u32 v{vFOFF}, s{sT0}, v{t1}")
    e(f"v_lshlrev_b32 v{vFOFF}, 8, v{vFOFF}")
    e(f"v_lshl_add_u32 v{vFOFF}, v{n}, 1, v{vFOFF}")
    e(f"s_lshl_b32 s{sT0}, s{sCT}, 6")
    e(f"v_add_u32 v{vFOFF}, s{sT0}, v{vFOFF}")
    lab(f"L_far_d{tag}")
def pwrite(r0, g):
    for i in range(4):
        e(f"v_mul_f32 v{r0+i}, s{sK2}, v{r0+i}")
    e(f"v_cvt_pk_bf16_f32 v{r0}, v{r0}, v{r0+1}")
    e(f"v_cvt_pk_bf16_f32 v{r0+1}, v{r0+2}, v{r0+3}")
    e(f"v_cndmask_b32 v{r0}, v{r0}, v{KB}, vcc")
    e(f"v_and_or_b32 v{r0+1}, v{r0+1}, v{vPM}, v{KB+1}")
    e(f"ds_write_b64 v{vPW}, {vr(r0,2)} offset:{g*2048}")
def p_compute(first):
    for s_ in range(8):
        e(f"v_xor_b32 v{vT[2]}, {s_<<5}, v{vT[1]}")
        e(f"ds_read_b128 {vr(rowreg(s_),4)}, v{vT[2]}")
    for s_ in range(8):
        e(f"s_waitcnt lgkmcnt({7-s_})")
        mfma(FACC, rowreg(s_), WF+4*s_, "0" if s_ == 0 else vr(FACC,16))
    stamp("mfma issued", 46)
    e(f"v_cmp_gt_u32 vcc, 32, v{vL}")
    e("s_nop 7")
    e("s_nop 3")
    for g in range(4):
        pwrite(FACC+4*g, g)
e("s_waitcnt lgkmcnt(0)")
FR = (112, 113)
arrive(FCC, FR)
if not PLATE: p_compute(True)
c("all eight waves hold their fragments: zero the staging area (4 KB per wave)")
wait_cnt(FCC, 8, regs=FR)
for i in range(4):
    e(f"ds_write_b128 v{vT[0]}, {vr(116,4)} offset:{REC + i*1024}")
e("s_waitcnt lgkmcnt(0)")
arrive(FCNT2, FR)
stamp("front done", 5)
if not NOPRIO: e(f"s_setprio {FPRIO}")
if PLATE == 2: p_compute(True)
if PSL: e(f"s_sleep {PSL}")
poll_issue()
stamp("B3", 7)
if PLATE == 1: p_compute(True)
if HOIST:
    assert PLATE == 1
    id_consts(vT[0], vT[1])
    seg_zero()
if FINR: final_addr(False)
e("s_branch L_rpoll")

def dma_issue(va, vb, sbuf):
    if not IDX:
        e(f"v_lshl_add_u32 v{va}, v{va}, 8, v{vQD}")
        e(f"v_lshl_add_u32 v{vb}, v{vb}, 8, v{vQD}")
    e(f"s_mov_b32 m0, s{sbuf}")
    e(f"s_nop 0")
    if IDX: e(f"buffer_load_dwordx4 {vr(va,2)}, {srd(S_Q)}, 0 idxen offen{QSC} lds")
    else:   e(f"buffer_load_dwordx4 v{va}, {srd(S_Q)}, 0 offen{QSC} lds")
    e(f"s_add_u32 m0, s{sbuf}, 1024")
    e(f"s_nop 0")
    if IDX: e(f"buffer_load_dwordx4 {vr(vb,2)}, {srd(S_Q)}, 0 idxen offen{QSC} lds")
    else:   e(f"buffer_load_dwordx4 v{vb}, {srd(S_Q)}, 0 offen{QSC} lds")
vLKr, vODr, vTRSr, vTRSr2, vLKr2 = 92, 93, 94, 95, 14
PA, PB = 10, 12
LK = [PA, PB, 80, 82]
def first_gathers(extra=None, part=3):
    if not part & 1:
        dma_issue(LK[0], LK[1], sB0)
        if PREFN == 2: dma_issue(LK[2], LK[3], sB1)
        return
    e(f"v_xor_b32 v{vLKr2}, 32, v{vLK}")
    e(f"ds_read_u16 v{LK[0]}, v{vLK}")
    e(f"ds_read_u16 v{LK[1]}, v{vLKr2} offset:512")
    e(f"ds_read_u16 v{LK[2]}, v{vLK} offset:1024")
    e(f"ds_read_u16 v{LK[3]}, v{vLKr2} offset:1536")
    n = extra() if extra else 0
    if IDX:
        for k in range(4): e(f"v_mov_b32 v{LK[k]+1}, v{vQD}")
    if not part & 2:
        e("s_waitcnt lgkmcnt(0)")
        return
    e(f"s_waitcnt lgkmcnt({2+n})")
    dma_issue(LK[0], LK[1], sB0)
    e(f"s_waitcnt lgkmcnt({n})")
    dma_issue(LK[2], LK[3], sB1)
lab("L_common")
c("---- R waves: no records ; wave 7 waits for the Q / WH2F flags")
for m in MK: e(f"s_mov_b64 {sp(m)}, 0")
if HOIST:
    id_consts(vT[0], vT[1])
    seg_zero()
if FINR: final_addr(True)
if FINR == 2: final_addr_res("r")
vQP = vT[7]
def qpoll_issue():
    e("s_mov_b32 exec_lo, -1")
    e("s_mov_b32 exec_hi, 0x1ff")
    e(f"buffer_load_dwordx4 {vr(RA,4)}, v{vQP}, {srd(S_WS)}, s{sT2} offen sc1")
if PREF: wait_cnt(RH1, 8, regs=FR)
e(f"s_cmp_eq_u32 s{sW}, 7")
e(f"s_cbranch_scc0 {'L_rlk' if PREF else 'L_ba'}")
if QGATE: wait_cnt(RLAND, QGATE, regs=FR)
e(f"v_lshlrev_b32 v{vQP}, 4, v{vL}")
e(f"s_mov_b32 s{sCNT}, 0")
e(f"s_and_b32 s{sT2}, s2, {FCOPY-1}")
e(f"s_mul_i32 s{sT2}, s{sT2}, {FSTR}")
e(f"s_add_u32 s{sT2}, s{sT2}, {FLG}")
e(f"s_sub_u32 s{sLOW}, s{sTW}, {DELTA}")
if FORCE == "fb":
    e(f"s_add_u32 s{sLOW}, s{sLOW}, 0x40000000")
e(f"s_mov_b32 s{sK3}, {WIN}")
if PREF:
    qpoll_issue()
    e("s_mov_b64 exec, -1")
    lab("L_rlk")
    c("all records have their source node in REC: look up the source nodes of the first two tiles")
    wait_cnt(RPL, 8, regs=FR, slp=RPS)
    first_gathers(part=1)
    e(f"s_cmp_eq_u32 s{sW}, 7")
    e("s_cbranch_scc0 L_rwait")
    e("s_mov_b32 exec_lo, -1")
    e("s_mov_b32 exec_hi, 0x1ff")
    e("s_branch L_qpoll1")
lab("L_qpoll")
qpoll_issue()
lab("L_qpoll1")
e(f"s_add_u32 s{sCNT}, s{sCNT}, 1")
e("s_waitcnt vmcnt(0)")
stamp_dyn(19, sCNT)
for k in range(4):
    e(f"v_xor_b32 v{RA+k}, {FLC}, v{RA+k}")
for k in range(4):
    e(f"v_subrev_u32 v{RA+k}, s{sLOW}, v{RA+k}")
e(f"v_max_u32 v{RA}, v{RA}, v{RA+1}")
e(f"v_max3_u32 v{RA}, v{RA}, v{RA+2}, v{RA+3}")
e(f"v_cmp_le_u32 vcc, s{sK3}, v{RA}")
e("s_cmp_eq_u64 vcc, 0")
e("s_cbranch_scc1 L_qp_ok")
e(f"s_sleep {QSL}")
e(f"s_cmp_lt_u32 s{sCNT}, {NPOLL}")
e("s_cbranch_scc1 L_qpoll")
e(f"v_mov_b32 v{vT[0]}, {OVF}")
e(f"v_mov_b32 v{vT[1]}, 2")
e(f"ds_or_b32 v{vT[0]}, v{vT[1]}")
lab("L_qp_ok")
e("s_mov_b64 exec, -1")
if PREF:
    arrive(QOKF, FR)
    e("s_branch L_rpre")
    lab("L_rwait")
    wait_cnt(QOKF, 1, regs=FR, slp=RWS)
    lab("L_rpre")
    c("gather the first two tiles now (all R waves hold their H1 fragments: the tile buffers are free)")
    first_gathers(part=2)
    e(f"s_mov_b32 s{sPREF}, 1")
e("s_branch L_ba")
_st[0] = 8
def gcheck(G, M, M2):
    e(f"v_bfe_u32 v{vT[2]}, v{G+3}, 3, 9")
    e(f"v_xor_b32 v{vT[2]}, {TAGC}, v{vT[2]}")
    e(f"v_lshrrev_b32 v{vT[0]}, 23, v{G}")
    e(f"v_lshrrev_b32 v{vT[1]}, 23, v{G+2}")
    e(f"v_subrev_u32 v{vT[3]}, s{sLOW}, v{G+3}")
    e(f"v_cmp_eq_u32 {M}, v{vT[0]}, v{vT[2]}")
    e(f"v_cmp_eq_u32 {M2}, v{vT[1]}, v{vT[2]}")
    e(f"s_and_b64 {M}, {M}, {M2}")
    e(f"v_cmp_gt_u32 {M2}, s{sK3}, v{vT[3]}")
    e(f"s_and_b64 {M}, {M}, {M2}")
e("s_branch L_rpoll")
lab("L_rpoll_again")
poll_issue()
lab("L_rpoll")
e(f"s_add_u32 s{sCNT}, s{sCNT}, 1")
e("s_waitcnt vmcnt(0)")
stamp_dyn(19, sCNT)
gcheck(RA, "vcc", sp(sM0))
e(f"s_andn2_b64 {sp(sPA)}, {sp(sPA)}, vcc")
gcheck(RB, sp(sM1), sp(sM0))
e(f"v_bfe_u32 v{vT[0]}, v{RA}, 22, 1")
e(f"s_andn2_b64 {sp(sPB)}, {sp(sPB)}, {sp(sM1)}")
e(f"v_cmp_ne_u32 vcc, 0, v{vT[0]}                ; more")
e(f"s_andn2_b64 vcc, vcc, {sp(sPA)}")
if BSPEC:
    e(f"s_or_b64 vcc, vcc, {sp(sPA)}")
e(f"s_and_b64 {sp(sM2)}, {sp(sPB)}, vcc")
e(f"s_or_b64 vcc, {sp(sPA)}, {sp(sM2)}")
e("s_cmp_eq_u64 vcc, 0")
e("s_cbranch_scc1 L_rp_ok")
e(f"s_sleep {RSL}")
e(f"s_cmp_lt_u32 s{sCNT}, {NPOLL}")
e("s_cbranch_scc1 L_rpoll_again")
c("timed out: take the slow path")
e(f"v_mov_b32 v{vT[0]}, {OVF}")
e(f"v_mov_b32 v{vT[1]}, 1")
e(f"ds_or_b32 v{vT[0]}, v{vT[1]}")
e(f"s_andn2_b64 {sp(sEX)}, {sp(sEX)}, vcc")
lab("L_rp_ok")
e("s_mov_b64 exec, -1")
arrive(RLAND, FR)
stamp("records landed")
c("masks: a,b = valid bits of granule A ; c,d = valid bits of granule B & more")
RCS = [RA, RA+2, RB, RB+2]
e(f"v_bfe_u32 v{vT[0]}, v{RA}, 20, 1")
e(f"v_bfe_u32 v{vT[1]}, v{RA+2}, 20, 1")
e(f"v_bfe_u32 v{vT[2]}, v{RB}, 20, 1")
e(f"v_bfe_u32 v{vT[3]}, v{RB+2}, 20, 1")
e(f"v_bfe_u32 v{vT[4]}, v{RA}, 22, 1")
e(f"v_bfe_u32 v{vT[5]}, v{RA}, 21, 2")
e(f"v_and_b32 v{vT[2]}, v{vT[2]}, v{vT[4]}")
e(f"v_and_b32 v{vT[3]}, v{vT[3]}, v{vT[4]}")
for k in range(4):
    e(f"v_cmp_ne_u32 {sp(MK[k])}, 0, v{vT[k]}")
e(f"v_cmp_eq_u32 {sp(sM2)}, 3, v{vT[5]}")
for k in range(4):
    e(f"s_and_b64 {sp(MK[k])}, {sp(MK[k])}, {sp(sEX)}")
e(f"s_and_b64 {sp(sM2)}, {sp(sM2)}, {sp(sEX)}")
e(f"v_mov_b32 v{vOne}, 1")
e(f"s_mov_b32 s{sT0}, {ALLOC}")
VS = [91, 92, 93, 94]
def s1_issue(k):
    e(f"v_and_b32 v{VS[k]}, 0x3fff, v{RCS[k]}")
    e(f"v_mul_u32_u24 v{vT[0]}, 6, v{VS[k]}")
    e(f"v_and_b32 v{vT[0]}, -4, v{vT[0]}")
    e(f"s_mov_b64 exec, {sp(MK[k])}")
    e(f"buffer_load_dwordx2 {vr(PS[k],2)}, v{vT[0]}, {srd(S_POS)}, 0 offen")
    e(f"v_bfe_u32 v{VJ[k]}, v{RCS[k]}, 14, 6          ; k")
    e(f"v_mul_u32_u24 v{VI[k]}, 52, v{VJ[k]}")
    e(f"v_lshrrev_b32 v{VI[k]}, 8, v{VI[k]}           ; g")
    e(f"v_lshl_add_u32 v{vT[1]}, v{VI[k]}, 2, s{sT0}")
    e(f"ds_add_rtn_u32 v{VR[k]}, v{vT[1]}, v{vOne}")
    e(f"v_mul_u32_u24 v{vT[1]}, 5, v{VI[k]}")
    e(f"v_sub_u32 v{VJ[k]}, v{VJ[k]}, v{vT[1]}        ; j")
    e("s_mov_b64 exec, -1")
    e(f"v_mul_u32_u24 v{VI[k]}, {GSTR}, v{VI[k]}")
c("REC must be zero before placement (all F waves have zeroed their staging)")
wait_cnt(FCNT2, 8, dst=sT1, regs=FR)
for k in range(4):
    e(f"s_cmp_eq_u64 {sp(MK[k])}, 0")
    e(f"s_cbranch_scc1 L_s1i{k}")
    s1_issue(k)
    lab(f"L_s1i{k}")
e(f"s_cmp_eq_u64 {sp(sM2)}, 0")
e("s_cbranch_scc1 L_s1_noovf")
e(f"v_mov_b32 v{vT[0]}, {OVF}")
e(f"ds_or_b32 v{vT[0]}, v{vOne}")
lab("L_s1_noovf")
def s1_place(vR, vI, vS, msk, tag, slow=False):
    e(f"v_cmp_gt_u32 vcc, {CAP}, v{vR}")
    e(f"v_lshl_add_u32 v{vI}, v{vR}, 6, v{vI}")
    e(f"v_bfe_u32 v{vR}, v{vR}, 2, 2")
    e(f"v_lshl_add_u32 v{vI}, v{vR}, 4, v{vI}")
    e(f"v_xor_b32 v{vR}, 16, v{vI}")
    e(f"s_andn2_b64 exec, {sp(msk)}, vcc")
    e(f"s_cbranch_execz L_s1_ok{tag}")
    if slow:
        e(f"v_mov_b32 v{qP}, 1")
        e(f"v_mov_b32 v{vT[0]}, {PEND}")
        e(f"ds_write_b32 v{vT[0]}, v{vOne}")
    else:
        e(f"v_mov_b32 v{vT[0]}, {OVF}")
        e(f"ds_or_b32 v{vT[0]}, v{vOne}")
    lab(f"L_s1_ok{tag}")
    e(f"s_and_b64 {sp(msk)}, {sp(msk)}, vcc")
    e(f"s_mov_b64 exec, {sp(msk)}")
    e(f"ds_write_b16 v{vR}, v{vS} offset:{REC}")
    e("s_mov_b64 exec, -1")
e("s_waitcnt lgkmcnt(0)")
for k in range(4):
    e(f"s_cmp_eq_u64 {sp(MK[k])}, 0")
    e(f"s_cbranch_scc1 L_s1p{k}")
    s1_place(VR[k], VI[k], VS[k], MK[k], "abcd"[k])
    lab(f"L_s1p{k}")
if PREF: arrive(RPL, FR)
lab("L_st2")
c("stage 2 (sparse, up to four records per lane)")
PD = [48, 52, 112, 116]
e(f"s_mov_b32 s{sT0}, {PTF}")
e(f"s_mov_b32 s{sK2}, 0xffff0000")
e(f"v_mov_b32 v{vT[6]}, {'0x3c00' if F16 else '0x3f80'}")
for k in range(4):
    e(f"s_cmp_eq_u64 {sp(MK[k])}, 0")
    e(f"s_cbranch_scc1 L_s2r{k}")
    e(f"v_bfe_u32 v{vT[5]}, v{RCS[k]}, 14, 6              ; k")
    e(f"v_min_u32 v{vT[5]}, 39, v{vT[5]}")
    e(f"v_lshl_add_u32 v{vT[5]}, v{vT[5]}, 4, s{sT0}")
    e(f"ds_read_b128 {vr(PD[k],4)}, v{vT[5]}")
    lab(f"L_s2r{k}")
e("s_waitcnt vmcnt(0) lgkmcnt(0)")
stamp("pos landed", 12)
def stage2_pass(rec, ea, hi_half, ps, pd, row, msk, tag, vj):
    X = [84, 85, 86, 87, 91, 92]
    e(f"s_cmp_eq_u64 {sp(msk)}, 0")
    e(f"s_cbranch_scc1 L_s2_done{tag}")
    e(f"s_mov_b64 exec, {sp(msk)}")
    e(f"v_and_b32 v{X[0]}, 1, v{rec}")
    e(f"v_lshlrev_b32 v{X[0]}, 4, v{X[0]}        ; shift")
    e(f"v_alignbit_b32 v{X[1]}, v{ps+1}, v{ps}, v{X[0]}     ; x | y<<16")
    e(f"v_lshrrev_b32 v{X[2]}, v{X[0]}, v{ps+1}              ; z (low 16)")
    e(f"v_lshlrev_b32 v{ps}, 16, v{X[1]}")
    e(f"v_and_b32 v{ps+1}, s{sK2}, v{X[1]}")
    e(f"v_lshlrev_b32 v{X[2]}, 16, v{X[2]}")
    e(f"v_sub_f32 v{pd}, v{pd}, v{ps}")
    e(f"v_sub_f32 v{pd+1}, v{pd+1}, v{ps+1}")
    e(f"v_sub_f32 v{pd+2}, v{pd+2}, v{X[2]}")
    e(f"v_cvt_pk_bf16_f32 v{X[0]}, v{pd}, v{pd+1}")
    e(f"v_cvt_pk_bf16_f32 v{X[1]}, v{pd+2}, v{pd+2}     ; dz")
    e(f"v_lshlrev_b32 v{pd}, 16, v{X[0]}")
    e(f"v_and_b32 v{pd+1}, s{sK2}, v{X[0]}")
    e(f"v_lshlrev_b32 v{pd+2}, 16, v{X[1]}")
    e(f"v_lshl_add_u32 v{X[3]}, v{vj}, 1, v{row}")
    e(f"v_xor_b32 v{X[5]}, 16, v{X[3]}")
    if F16:
        e(f"v_cvt_pk_f16_f32 v{X[0]}, v{pd}, v{pd+1}")
        e(f"v_cvt_pk_f16_f32 v{X[1]}, v{pd+2}, v{pd+2}")
    e(f"ds_write_b16 v{X[3]}, v{vT[6]} offset:{REC+6}")
    e(f"ds_write_b16 v{X[5]}, v{X[0]} offset:{REC+6}")
    e(f"v_xor_b32 v{X[5]}, 32, v{X[3]}")
    e(f"v_xor_b32 v{X[3]}, 48, v{X[3]}")
    e(f"ds_write_b16_d16_hi v{X[5]}, v{X[0]} offset:{REC+6}")
    e(f"ds_write_b16 v{X[3]}, v{X[1]} offset:{REC+6}")
    for k in range(3):
        e(f"v_mul_f32 v{pd+k}, v{pd+k}, v{pd+k}")
    e(f"v_cvt_pk_bf16_f32 v{X[2]}, v{pd}, v{pd+1}")
    e(f"v_cvt_pk_bf16_f32 v{X[4]}, v{pd+2}, v{pd+2}")
    e(f"v_lshlrev_b32 v{pd}, 16, v{X[2]}")
    e(f"v_and_b32 v{pd+1}, s{sK2}, v{X[2]}")
    e(f"v_lshlrev_b32 v{pd+2}, 16, v{X[4]}")
    e(f"v_add_f32 v{pd}, v{pd}, v{pd+1}")
    e(f"v_add_f32 v{pd}, v{pd}, v{pd+2}")
    e(f"v_cvt_pk_bf16_f32 v{X[2]}, v{pd}, 0")
    if hi_half:
        e(f"v_and_or_b32 v{X[4]}, v{ea}, s{sK2}, v{X[2]}")
    else:
        e(f"v_lshl_or_b32 v{X[4]}, v{ea}, 16, v{X[2]}")
    e(f"ds_write_b32 v{row}, v{X[4]} offset:{REC}")
    e(f"ds_write_b16 v{row}, v{X[2]} offset:{REC+4}")
    e("s_mov_b64 exec, -1")
    lab(f"L_s2_done{tag}")
for k in range(4):
    stage2_pass(RCS[k], [RA+1, RB+1][k>>1], k & 1, PS[k], PD[k], VI[k], MK[k], "abcd"[k], VJ[k])
stamp("stage2 done", 13)
lab("L_ba")
stamp("placed+Q", 9)
if not NOPRIO: e(f"s_setprio {BAP}")
e(f"s_waitcnt lgkmcnt(0)")
e("s_barrier")
stamp("BA", 10)

lab("L_post")
c("count of own group, OVF, lookups for tiles 0,1")
assert EARLY
e(f"s_lshl_b32 s{sT0}, s{sG}, 2")
e(f"s_add_u32 s{sT0}, s{sT0}, {ALLOC}")
e(f"v_mov_b32 v{vT[0]}, s{sT0}")
e(f"v_mov_b32 v{vT[1]}, {OVF}")
def cnt_reads():
    e(f"ds_read_b32 v{vT[0]}, v{vT[0]}")
    e(f"ds_read_b32 v{vT[1]}, v{vT[1]}")
    return 2
if PREF:
    e(f"s_cmp_eq_u32 s{sPREF}, 0")
    e("s_cbranch_scc1 L_post_g")
    cnt_reads()
    if PREFN == 1: dma_issue(LK[2], LK[3], sB1)
    e("s_branch L_post_c")
    lab("L_post_g")
first_gathers(cnt_reads)
stamp("dma0 issued", 11)
lab("L_post_c")
e(f"s_cmp_eq_u32 s{sMODE}, 0")
e("s_cbranch_scc1 L_post_fast")
c("slow path: skip quickly if nothing was placed in this pass")
e(f"v_mov_b32 v{vT[7]}, {ALLOC}")
e(f"ds_read_b128 {vr(96,4)}, v{vT[7]}")
e(f"ds_read_b128 {vr(100,4)}, v{vT[7]} offset:16")
e("s_waitcnt lgkmcnt(0)")
e(f"v_or3_b32 v96, v96, v97, v98")
e(f"v_or3_b32 v96, v96, v99, v100")
e(f"v_or3_b32 v96, v96, v101, v102")
e(f"v_or_b32 v96, v96, v103")
e("s_nop 0")
e(f"v_readfirstlane_b32 s{sT0}, v96")
e(f"v_readfirstlane_b32 s{sCO}, v{vT[0]}")
e("s_nop 3")
e(f"s_cmp_lg_u32 s{sT0}, 0")
e("s_cbranch_scc1 L_post_go")
e(f"s_mov_b32 s{sRETRY}, 0")
e("s_branch L_slow_adv")
lab("L_post_fast")
e(f"s_waitcnt lgkmcnt({0 if EARLY else 4})")
e(f"v_readfirstlane_b32 s{sCO}, v{vT[0]}")
e(f"v_readfirstlane_b32 s{sT3}, v{vT[1]}           ; OVF")
e("s_nop 3")
e(f"s_cmp_lg_u32 s{sT3}, 0")
e("s_cbranch_scc1 L_slow_init")
lab("L_post_go")
e(f"s_min_u32 s{sCO}, s{sCO}, {CAP}")
e(f"s_add_u32 s{sNT}, s{sCO}, 15")
e(f"s_lshr_b32 s{sNT}, s{sNT}, 4")
if not EARLY:
    e("s_waitcnt lgkmcnt(2)")
    dma_issue(LK[0], LK[1], sB0)
    stamp("dma0 issued", 11)
if HOIST:
    e(f"s_cmp_eq_u32 s{sMODE}, 0")
    e("s_cbranch_scc1 L_noseg0")
id_consts(vT[0], vT[1])
c("SEG zero (first pass only)")
e(f"s_cmp_eq_u32 s{sNODE}, 0")
e("s_cbranch_scc1 L_noseg0")
e(f"s_mov_b32 s{sNODE}, 0")
seg_zero()
lab("L_noseg0")
c("BXF address: BXP + g*2048 + (64ch + l)*16   (l = 32hi + n)")
e(f"s_lshl_b32 s{sT0}, s{sG}, 11")
e(f"s_lshl_b32 s{sT1}, s{sCH2}, 10")
e(f"s_add_u32 s{sT0}, s{sT0}, s{sT1}")
e(f"s_add_u32 s{sT0}, s{sT0}, {BXP}")
e(f"v_lshlrev_b32 v{vT[0]}, 4, v{vL}")
e(f"v_add_u32 v{vT[0]}, s{sT0}, v{vT[0]}")
e(f"ds_read_b128 {vr(BXF,4)}, v{vT[0]}")
if not EARLY:
    e("s_waitcnt lgkmcnt(1)")
    dma_issue(LK[2], LK[3], sB1)
stamp("BB", 14)
_st[0] = 15
if not NOPRIO: e(f"s_setprio {PRIOS[0]}")
e(f"s_mov_b32 s{sU}, 0")
if XM:
    for i in range(4): e(f"v_mov_b32 v{124+i}, 0")
e("s_mov_b32 s6, 1.0")
e("s_mov_b32 s7, 1.0")
e(f"s_mov_b32 s{sREM}, s{sCO}")
e(f"s_mov_b32 s{sRT}, s{sNT}")
c("running pointers: vLKr / vLKr2 -> tile 2 ; working copies of vOD / vTRS")
e(f"v_add_u32 v{vLKr}, 2048, v{vLK}")
e(f"v_add_u32 v{vLKr2}, 2048, v{vLKr2}")
e(f"v_mov_b32 v{vODr}, v{vOD}")
e(f"v_mov_b32 v{vTRSr}, v{vTRS}")
e(f"v_xor_b32 v{vTRSr2}, 32, v{vTRS}")

def tile_body(buf):
    tag = f"t{buf}"
    sBUF = [sB0, sB1][buf]
    bo = buf * 2048
    c(f"---- tile (buffer {buf}) ----")
    e(f"s_cmp_gt_u32 s{sRT}, 2")
    e(f"s_cselect_b32 s{sK3}, 1, 0")
    e(f"s_cbranch_scc0 L_nolk{tag}")
    io = buf * 1024 if IMM else 0
    e(f"ds_read_u16 v{PA}, v{vLKr} offset:{io}")
    e(f"ds_read_u16 v{PB}, v{vLKr2} offset:{io+512}")
    lab(f"L_nolk{tag}")
    e(f"ds_read_b128 {vr(OHD,4)}, v{vODr} offset:{io}")
    e(f"s_cmp_gt_u32 s{sRT}, 1")
    e(f"s_cbranch_scc1 L_w2{tag}")
    e("s_waitcnt vmcnt(0)")
    e(f"s_branch L_wd{tag}")
    lab(f"L_w2{tag}")
    e("s_waitcnt vmcnt(2)")
    lab(f"L_wd{tag}")
    if os.environ.get("TSTAMP"):
        e(f"s_memtime s[{sC4}:{sC5}]")
        e(f"s_min_u32 s3, s{sU}, 13")
        e(f"s_add_u32 m0, s3, 24")
        e(f"s_add_u32 s{sU}, s{sU}, 1")
        e("s_waitcnt lgkmcnt(0)")
        e(f"v_writelane_b32 v{VST}, s{sC4}, m0")
    if "q" not in KO:
      e(f"ds_read_b64_tr_b16 {vr(QF,2)}, v{vTRQ0} offset:{bo}")
      e(f"ds_read_b64_tr_b16 {vr(QF+2,2)}, v{vTRQ0} offset:{bo+512}")
      e(f"ds_read_b64_tr_b16 {vr(QF+4,2)}, v{vTRQ1} offset:{bo}")
      e(f"ds_read_b64_tr_b16 {vr(QF+6,2)}, v{vTRQ1} offset:{bo+512}")
    e(f"ds_read_b64_tr_b16 {vr(SF,2)}, v{vTRSr} offset:{io}")
    e(f"ds_read_b64_tr_b16 {vr(SF+2,2)}, v{vTRSr2} offset:{io+512}")
    if buf == 1 or not IMM:
        st = 2048 if IMM else 1024
        e(f"v_add_u32 v{vLKr}, {st}, v{vLKr}")
        e(f"v_add_u32 v{vLKr2}, {st}, v{vLKr2}")
        e(f"v_add_u32 v{vODr}, v{vODM}, v{vODr}")
        e(f"v_add_u32 v{vTRSr}, {st}, v{vTRSr}")
        e(f"v_add_u32 v{vTRSr2}, {st}, v{vTRSr2}")
    e("s_waitcnt lgkmcnt(6)")
    mfma(ACC, OHD, BXF, "0")
    e("s_waitcnt lgkmcnt(4)")
    if "i" not in KO:
      mfma(ACC, ID, QF, vr(ACC,16))
      e("s_waitcnt lgkmcnt(2)")
      mfma(ACC, ID+4, QF+4, vr(ACC,16))
    for _ in range(XM):
        mfma(ACC, 124, QF+4*(_&1), vr(ACC,16))
    e(f"s_cmp_eq_u32 s{sK3}, 0")
    e(f"s_cbranch_scc1 L_nodma{tag}")
    if "d" not in KO: dma_issue(PA, PB, sBUF)
    lab(f"L_nodma{tag}")
    e("s_nop 7")
    e("s_nop 3")
    def blk(bb, t):
        a = ACC + 4*bb
        if "e" in KO:
            for i in range(4): e(f"v_mov_b32 v{t+i}, v{a+i}")
        else:
            for i in range(4): e(f"v_exp_f32 v{t+i}, v{a+i}")
        if PK & 1:
            if PK & 4:
                for i in (0, 2): e(f"v_pk_add_f32 {vr(t+i,2)}, {vr(t+i,2)}, 1.0 op_sel_hi:[1,0]")
            else:
                for i in (0, 2): e(f"v_pk_add_f32 {vr(t+i,2)}, {vr(t+i,2)}, s[6:7]")
        elif "a" not in KO:
            for i in range(4): e(f"v_add_f32 v{t+i}, 1.0, v{t+i}")
        if "r" not in KO:
            for i in range(4): e(f"v_rcp_f32 v{t+i}, v{t+i}")
        if PK & 2:
            for i in (0, 2): e(f"v_pk_mul_f32 {vr(t+i,2)}, {vr(a+i,2)}, {vr(t+i,2)}")
        elif "m" not in KO:
            for i in range(4): e(f"v_mul_f32 v{t+i}, v{a+i}, v{t+i}")
        e(f"v_cvt_pk_bf16_f32 v{MP+2*bb}, v{t}, v{t+1}")
        e(f"v_cvt_pk_bf16_f32 v{MP+2*bb+1}, v{t+2}, v{t+3}")
    def blk16(bbs):
        P = [(MP+2*bb+h, ACC+4*bb+2*h) for bb in bbs for h in range(2)]
        T = [TE+i for i in range(len(P))]
        for (m, a) in P: e(f"v_cvt_pk_f16_f32 v{m}, v{a}, v{a+1}")
        if "s" in KO: return
        if "h" in KO and bbs[0] == 1: return
        for (m, a), t in zip(P, T): e(f"v_exp_f16_sdwa v{t}, v{m} dst_sel:WORD_0 dst_unused:UNUSED_PAD src0_sel:WORD_0")
        for (m, a), t in zip(P, T): e(f"v_exp_f16_sdwa v{t}, v{m} dst_sel:WORD_1 dst_unused:UNUSED_PRESERVE src0_sel:WORD_1")
        for t in T: e(f"v_pk_add_f16 v{t}, v{t}, 1.0 op_sel_hi:[1,0]")
        for t in T: e(f"v_rcp_f16_sdwa v{t}, v{t} dst_sel:WORD_0 dst_unused:UNUSED_PRESERVE src0_sel:WORD_0")
        for t in T: e(f"v_rcp_f16_sdwa v{t}, v{t} dst_sel:WORD_1 dst_unused:UNUSED_PRESERVE src0_sel:WORD_1")
        for (m, a), t in zip(P, T): e(f"v_pk_mul_f16 v{m}, v{m}, v{t}")
    if F16: blk16((0, 2))
    else:
        blk(0, TE); blk(2, TE+4)
    e(f"s_cmp_le_u32 s{sREM}, 8")
    e(f"s_cbranch_scc1 L_skip{tag}")
    if F16: blk16((1, 3))
    else:
        blk(1, TE); blk(3, TE+4)
    e(f"s_branch L_blk{tag}")
    lab(f"L_skip{tag}")
    for r in (2, 3, 6, 7): e(f"v_mov_b32 v{MP+r}, 0")
    lab(f"L_blk{tag}")
    e("s_waitcnt lgkmcnt(0)")
    e("s_nop 1")
    if F16:
        e(f"v_mfma_f32_32x32x16_f16 {vr(SEG,16)}, {vr(MP,4)}, {vr(SF,4)}, {vr(SEG,16)}")
        e(f"v_mfma_f32_32x32x16_f16 {vr(SEG+16,16)}, {vr(MP+4,4)}, {vr(SF,4)}, {vr(SEG+16,16)}")
    else:
        mfma(SEG, MP, SF, vr(SEG,16))
        mfma(SEG+16, MP+4, SF, vr(SEG+16,16))
    e(f"s_sub_u32 s{sREM}, s{sREM}, 16")
    e(f"s_sub_u32 s{sRT}, s{sRT}, 1")
    if not NOPRIO:
        e(f"s_cmp_gt_u32 s{sRT}, 3")
        e(f"s_cbranch_scc1 L_pr{tag}")
        e(f"s_setprio {PRIOS[1]}")
        e(f"s_cmp_eq_u32 s{sRT}, 3")
        e(f"s_cbranch_scc1 L_pr{tag}")
        e(f"s_setprio {PRIOS[2]}")
        e(f"s_cmp_eq_u32 s{sRT}, 2")
        e(f"s_cbranch_scc1 L_pr{tag}")
        e(f"s_setprio {PRIOS[3]}")
        lab(f"L_pr{tag}")

e(f"s_cmp_eq_u32 s{sRT}, 0")
e("s_cbranch_scc1 L_tiles_done")
lab("L_tile_loop")
tile_body(0)
e(f"s_cmp_eq_u32 s{sRT}, 0")
e("s_cbranch_scc1 L_tiles_done")
tile_body(1)
e(f"s_cmp_lg_u32 s{sRT}, 0")
e("s_cbranch_scc1 L_tile_loop")
lab("L_tiles_done")
e("s_waitcnt vmcnt(0)")
if not NOPRIO: e("s_setprio 3")
stamp("tiles done")
e(f"s_cmp_eq_u32 s{sMODE}, 0")
e("s_cbranch_scc0 L_slow_next")

lab("L_final")
WFL = 80
ROW = 16
HRES = 112
vN = vT[1]; vHI = vT[2]; vOFF = vT[3]; vRD_ = vT[4]
e(f"s_memrealtime s[6:7]")
e(f"v_and_b32 v{vN}, 31, v{vL}")
e(f"v_lshrrev_b32 v{vHI}, 5, v{vL}")
c("late frags: quads 1, 2: WH2F slice ct ; quad 0: wx frags")
e(f"s_cmp_eq_u32 s{sQ}, {QC}")
e("s_cbranch_scc1 L_f_wx")
e(f"s_cmp_eq_u32 s{sQ}, 3")
e("s_cbranch_scc1 L_f_flush")
e(f"s_lshl_b32 s{sT0}, s{sCT}, 13")
e(f"s_add_u32 s{sT0}, s{sT0}, {WH2F}")
e(f"s_add_u32 s{sT1}, s{sT0}, 4096")
e(f"v_lshlrev_b32 v{vT[0]}, 4, v{vL}")
for s_ in range(8):
    e(f"buffer_load_dwordx4 {vr(WFL+4*s_,4)}, v{vT[0]}, {srd(S_WS)}, s{[sT0,sT1][s_>>2]} offen offset:{(s_%4)*1024}{WSC}")
e("s_branch L_f_flush")
lab("L_f_wx")
e(f"v_lshlrev_b32 v{vT[0]}, 4, v{vHI}")
for s_ in range(8):
    e(f"buffer_load_dwordx4 {vr(WFL+4*s_,4)}, v{vT[0]}, {srd(S_WX)}, 0 offen offset:{s_*32}")
lab("L_f_flush")
c("flush: lane (f=n, hi): addr = QTw + h*2048 + f*64 + ((bb ^ ((f>>2)&3) ^ (g&3))<<4) + hi*8")
e(f"s_and_b32 s{sT0}, s{sG}, 3")
e(f"v_bfe_u32 v{vT[5]}, v{vN}, 2, 2")
e(f"v_xor_b32 v{vT[5]}, s{sT0}, v{vT[5]}")
e(f"v_lshlrev_b32 v{vT[5]}, 4, v{vT[5]}")
e(f"v_lshl_add_u32 v{vT[5]}, v{vN}, 6, v{vT[5]}")
e(f"v_lshl_add_u32 v{vT[5]}, v{vHI}, 3, v{vT[5]}")
e(f"v_add_u32 v{vT[5]}, s{sB0}, v{vT[5]}")
e("s_nop 7")
e("s_nop 3")
for h in range(2):
    for bb in range(4):
        r0 = SEG + 16*h + 4*bb
        e(f"v_cvt_pk_bf16_f32 v{r0}, v{r0}, v{r0+1}")
        e(f"v_cvt_pk_bf16_f32 v{r0+1}, v{r0+2}, v{r0+3}")
        if bb == 0:
            e(f"ds_write_b64 v{vT[5]}, {vr(r0,2)} offset:{h*2048}")
        else:
            e(f"v_xor_b32 v{vT[6]}, {bb<<4}, v{vT[5]}")
            e(f"ds_write_b64 v{vT[6]}, {vr(r0,2)} offset:{h*2048}")
if FINR == 2:
    e(f"s_mul_i32 s{sNT}, s2, 40")
    e(f"s_cmp_eq_u32 s{sQ}, {QC}")
    e("s_cbranch_scc1 L_f_roleC")
    e(f"s_cmp_eq_u32 s{sQ}, {QB}")
    e("s_cbranch_scc1 L_f_roleB")
    e(f"s_cmp_eq_u32 s{sQ}, {QA}")
    e("s_cbranch_scc0 L_f_bar")
    for bb in range(4):
        e(f"v_xor_b32 v{vT[7]}, {bb<<4}, v{vFRES}")
        e(f"ds_read_b64 {vr(HRES+2*bb,2)}, v{vT[7]}")
    e("s_branch L_f_bar")
    lab("L_f_roleB")
    for i in range(4):
        e(f"v_xor_b32 v{vT[5]}, {i<<4}, v{vFRES}")
        e(f"ds_read_u16 v{HRES+i}, v{vT[5]} offset:{i*256}")
    e("s_branch L_f_bar")
    lab("L_f_roleC")
    vNODE = vT[5]; vCMP = vT[6]
    rolec_node(vN, vNODE, vCMP, vT[0], vT[7])
    c("role C: pos residual PTF[node][comp-1] ; out offset (40b + node)*6 + (comp-1)*2")
    e(f"v_lshlrev_b32 v{vT[0]}, 4, v{vNODE}")
    e(f"v_lshl_add_u32 v{vT[0]}, v{vCMP}, 2, v{vT[0]}")
    e(f"v_add_u32 v{vT[0]}, {PTF-4}, v{vT[0]}")
    e(f"ds_read_b32 v{HRES}, v{vT[0]}")
    e(f"v_add_u32 v{vOFF}, s{sNT}, v{vNODE}")
    e(f"v_mul_u32_u24 v{vOFF}, 6, v{vOFF}")
    e(f"v_lshl_add_u32 v{vOFF}, v{vCMP}, 1, v{vOFF}")
    e(f"v_subrev_u32 v{vOFF}, 2, v{vOFF}")
if not FINR:
    c("per-role (node, comp) -> g, f ; addr = QT + g*8192 + f*64 + ((hi ^ ((f>>2)&3) ^ (g&3))<<4)")
    vNODE = vT[5]; vCMP = vT[6]
    def node_addr(dst, node, cmp_, t0, t1):
        e(f"v_mul_u32_u24 v{t1}, 52, v{node}")
        e(f"v_lshrrev_b32 v{t1}, 8, v{t1}             ; g")
        e(f"v_mul_u32_u24 v{t0}, 5, v{t1}")
        e(f"v_sub_u32 v{t0}, v{node}, v{t0}          ; j")
        if cmp_ is not None:
            e(f"v_lshl_add_u32 v{t0}, v{cmp_}, 3, v{t0}")
        e(f"v_add_u32 v{t0}, 3, v{t0}                 ; f")
        e(f"v_bfe_u32 v{dst}, v{t0}, 2, 2")
        e(f"v_xor_b32 v{dst}, v{dst}, v{vHI}")
        e(f"v_lshlrev_b32 v{t0}, 6, v{t0}")
        e(f"v_lshl_add_u32 v{t0}, v{t1}, 13, v{t0}")
        e(f"v_and_b32 v{t1}, 3, v{t1}")
        e(f"v_xor_b32 v{dst}, v{dst}, v{t1}")
        e(f"v_lshl_add_u32 v{dst}, v{dst}, 4, v{t0}")
        e(f"v_add_u32 v{dst}, {QT}, v{dst}")
    e(f"s_mul_i32 s{sK3}, s2, 40")
    e(f"s_cmp_eq_u32 s{sQ}, {QC}")
    e("s_cbranch_scc1 L_f_roleC")
    e(f"s_cmp_eq_u32 s{sQ}, {QB}")
    e("s_cbranch_scc1 L_f_roleB")
    e(f"s_cmp_eq_u32 s{sQ}, {QA}")
    e("s_cbranch_scc0 L_f_bar")
    c("role A (nodes n)")
    node_addr(vRD_, vN, None, vT[0], vT[7])
    c("role A residual: h[node n][32ct + 8bb + 4hi..+3]: OWN + n*256 + (((ct*4+bb) ^ (n&15))<<4) + hi*8")
    e(f"v_and_b32 v{vT[0]}, 15, v{vN}")
    e(f"s_lshl_b32 s{sT0}, s{sCT}, 2")
    e(f"v_xor_b32 v{vT[0]}, s{sT0}, v{vT[0]}")
    e(f"v_lshlrev_b32 v{vT[0]}, 4, v{vT[0]}")
    e(f"v_lshl_add_u32 v{vT[0]}, v{vN}, 8, v{vT[0]}")
    e(f"v_lshl_add_u32 v{vT[0]}, v{vHI}, 3, v{vT[0]}")
    e(f"v_add_u32 v{vT[0]}, {OWN}, v{vT[0]}")
    for bb in range(4):
        e(f"v_xor_b32 v{vT[7]}, {bb<<4}, v{vT[0]}")
        e(f"ds_read_b64 {vr(HRES+2*bb,2)}, v{vT[7]}")
    e(f"v_add_u32 v{vOFF}, s{sK3}, v{vN}")
    e(f"v_lshlrev_b32 v{vOFF}, 8, v{vOFF}")
    e(f"v_lshl_add_u32 v{vOFF}, v{vHI}, 3, v{vOFF}")
    e(f"s_lshl_b32 s{sT0}, s{sCT}, 6")
    e(f"v_add_u32 v{vOFF}, s{sT0}, v{vOFF}")
    e("s_branch L_f_bar")
    lab("L_f_roleB")
    c("role B (nodes 32 + (n&7))")
    e(f"v_and_b32 v{vNODE}, 7, v{vN}")
    e(f"v_add_u32 v{vNODE}, 32, v{vNODE}")
    node_addr(vRD_, vNODE, None, vT[0], vT[7])
    c("role B residual: rows 32+4hi+i, col 32ct+n: OWN + row*256 + (((ct*4 + (n>>3)) ^ (row&15))<<4) + (n&7)*2")
    e(f"v_lshrrev_b32 v{vT[0]}, 3, v{vN}")
    e(f"s_lshl_b32 s{sT0}, s{sCT}, 2")
    e(f"v_add_u32 v{vT[0]}, s{sT0}, v{vT[0]}          ; chunk")
    e(f"v_lshlrev_b32 v{vT[7]}, 2, v{vHI}             ; 4hi")
    e(f"v_xor_b32 v{vT[0]}, v{vT[0]}, v{vT[7]}")
    e(f"v_lshlrev_b32 v{vT[0]}, 4, v{vT[0]}")
    e(f"v_lshl_add_u32 v{vT[0]}, v{vT[7]}, 8, v{vT[0]}   ; + 4hi*256")
    e(f"v_and_b32 v{vT[5]}, 7, v{vN}")
    e(f"v_lshl_add_u32 v{vT[0]}, v{vT[5]}, 1, v{vT[0]}")
    e(f"v_add_u32 v{vT[0]}, {OWN + 32*256}, v{vT[0]}")
    for i in range(4):
        e(f"v_xor_b32 v{vT[5]}, {i<<4}, v{vT[0]}")
        e(f"ds_read_u16 v{HRES+i}, v{vT[5]} offset:{i*256}")
    e(f"s_add_u32 s{sT0}, s{sK3}, 32")
    e(f"v_add_u32 v{vOFF}, s{sT0}, v{vT[7]}")
    e(f"v_lshlrev_b32 v{vOFF}, 8, v{vOFF}")
    e(f"v_lshl_add_u32 v{vOFF}, v{vN}, 1, v{vOFF}")
    e(f"s_lshl_b32 s{sT0}, s{sCT}, 6")
    e(f"v_add_u32 v{vOFF}, s{sT0}, v{vOFF}")
    e("s_branch L_f_bar")
    lab("L_f_roleC")
    c("role C: n' = min(n,29); idx = 30ct + n' ; G = idx/15 ; r = idx%15 ; c = r/5 ; j = r%5 ; node = 5G + j ; comp = c+1")
    e(f"v_min_u32 v{vT[0]}, 29, v{vN}")
    e(f"v_cmp_lt_u32 vcc, 14, v{vT[0]}")
    e(f"v_cndmask_b32 v{vT[7]}, 0, 1, vcc               ; G&1")
    e(f"v_mul_u32_u24 v{vNODE}, 15, v{vT[7]}")
    e(f"v_sub_u32 v{vT[0]}, v{vT[0]}, v{vNODE}          ; r")
    e(f"v_mul_u32_u24 v{vCMP}, 52, v{vT[0]}")
    e(f"v_lshrrev_b32 v{vCMP}, 8, v{vCMP}              ; c")
    e(f"v_mul_u32_u24 v{vNODE}, 5, v{vCMP}")
    e(f"v_sub_u32 v{vT[0]}, v{vT[0]}, v{vNODE}          ; j")
    e(f"s_lshl_b32 s{sT0}, s{sCT}, 1")
    e(f"v_add_u32 v{vT[7]}, s{sT0}, v{vT[7]}            ; G")
    e(f"v_mad_u32_u24 v{vNODE}, v{vT[7]}, 5, v{vT[0]}")
    e(f"v_add_u32 v{vCMP}, 1, v{vCMP}")
    node_addr(vRD_, vNODE, vCMP, vT[0], vT[7])
    c("role C: pos residual PTF[node][comp-1] ; out offset (40b + node)*6 + (comp-1)*2")
    e(f"v_lshlrev_b32 v{vT[0]}, 4, v{vNODE}")
    e(f"v_lshl_add_u32 v{vT[0]}, v{vCMP}, 2, v{vT[0]}")
    e(f"v_add_u32 v{vT[0]}, {PTF-4}, v{vT[0]}")
    e(f"ds_read_b32 v{HRES}, v{vT[0]}")
    e(f"v_add_u32 v{vOFF}, s{sK3}, v{vNODE}")
    e(f"v_mul_u32_u24 v{vOFF}, 6, v{vOFF}")
    e(f"v_lshl_add_u32 v{vOFF}, v{vCMP}, 1, v{vOFF}")
    e(f"v_subrev_u32 v{vOFF}, 2, v{vOFF}")

lab("L_f_bar")
e("s_waitcnt lgkmcnt(0)")
c("residency guard: this wave's stamp must be older than the accept window of any later launch")
lab("L_guard")
e(f"s_sub_u32 s{sT0}, s6, s{sTW}")
e(f"s_cmp_ge_u32 s{sT0}, {GUARD}")
e("s_cbranch_scc1 L_guard_ok")
e("s_sleep 8")
e("s_memrealtime s[6:7]")
e("s_waitcnt lgkmcnt(0)")
e("s_branch L_guard")
lab("L_guard_ok")
e("s_barrier")
stamp("final bar")
e(f"s_cmp_eq_u32 s{sQ}, 3")
e("s_cbranch_scc1 L_end")
if FINR: vRD_ = vFRD
e(f"v_xor_b32 v{vT[0]}, 32, v{vRD_}")
for s_ in range(8):
    e(f"ds_read_b128 {vr(ROW+4*s_,4)}, v{[vRD_, vT[0]][s_&1]} offset:{(s_>>1)*2048}")
e(f"s_mov_b32 s{sK2}, 0x{NLN2:08x}")
e(f"s_mul_i32 s{sNT}, s2, 40")
e(f"s_mov_b32 s{sK3}, 0xffff0000")
if FINR != 1: e("s_waitcnt vmcnt(0)")
vOFFC = vOFF
if FINR == 2: vOFF = vFOFF
e(f"s_cmp_eq_u32 s{sQ}, {QC}")
e("s_cbranch_scc1 L_f_C")
e(f"s_cmp_eq_u32 s{sQ}, {QB}")
e("s_cbranch_scc1 L_f_B")
c("role A")
NX = 0
if FINR == 1:
    NX = 4
    c("role A residual: h[node n][32ct + 8bb + 4hi..+3]: OWN + n*256 + (((ct*4+bb) ^ (n&15))<<4) + hi*8")
    e(f"v_and_b32 v{vT[0]}, 15, v{vN}")
    e(f"s_lshl_b32 s{sT0}, s{sCT}, 2")
    e(f"v_xor_b32 v{vT[0]}, s{sT0}, v{vT[0]}")
    e(f"v_lshlrev_b32 v{vT[0]}, 4, v{vT[0]}")
    e(f"v_lshl_add_u32 v{vT[0]}, v{vN}, 8, v{vT[0]}")
    e(f"v_lshl_add_u32 v{vT[0]}, v{vHI}, 3, v{vT[0]}")
    e(f"v_add_u32 v{vT[0]}, {OWN}, v{vT[0]}")
    for bb in range(4):
        e(f"v_xor_b32 v{vT[7]}, {bb<<4}, v{vT[0]}")
        e(f"ds_read_b64 {vr(HRES+2*bb,2)}, v{vT[7]}")
    e(f"v_add_u32 v{vOFF}, s{sNT}, v{vN}")
    e(f"v_lshlrev_b32 v{vOFF}, 8, v{vOFF}")
    e(f"v_lshl_add_u32 v{vOFF}, v{vHI}, 3, v{vOFF}")
    e(f"s_lshl_b32 s{sT0}, s{sCT}, 6")
    e(f"v_add_u32 v{vOFF}, s{sT0}, v{vOFF}")
    e("s_waitcnt vmcnt(0)")
for s_ in range(8):
    e(f"s_waitcnt lgkmcnt({7-s_+NX})")
    mfma(FACC, WFL+4*s_, ROW+4*s_, vr(FACC,16))
if FINR == 1: e("s_waitcnt lgkmcnt(0)")
def final_silu(a, n, T):
    for i in range(n): e(f"v_exp_f32 v{T+i}, v{a+i}")
    for i in range(n): e(f"v_add_f32 v{T+i}, 1.0, v{T+i}")
    for i in range(n): e(f"v_rcp_f32 v{T+i}, v{T+i}")
    for i in range(n): e(f"v_mul_f32 v{a+i}, v{a+i}, v{T+i}")
X = 48
e("s_nop 7")
e("s_nop 3")
for i in range(4):
    a = FACC + 4*i
    final_silu(a, 4, X)
    e(f"v_lshlrev_b32 v{X}, 16, v{HRES+2*i}")
    e(f"v_and_b32 v{X+1}, s{sK3}, v{HRES+2*i}")
    e(f"v_lshlrev_b32 v{X+2}, 16, v{HRES+2*i+1}")
    e(f"v_and_b32 v{X+3}, s{sK3}, v{HRES+2*i+1}")
    for k in range(4): e(f"v_fma_f32 v{a+k}, v{a+k}, s{sK2}, v{X+k}")
    e(f"v_cvt_pk_bf16_f32 v{X+4+2*i}, v{a}, v{a+1}")
    e(f"v_cvt_pk_bf16_f32 v{X+5+2*i}, v{a+2}, v{a+3}")
    e(f"buffer_store_dwordx2 {vr(X+4+2*i,2)}, v{vOFF}, {srd(S_O0)}, 0 offen offset:{i*16}{OSC}")
e("s_branch L_end")
lab("L_f_B")
c("role B: rows 32 + 4hi + r")
for i in range(4): e(f"v_mov_b32 v{ACC+i}, v{FB+i}")
if FINR == 1:
    c("role B residual: rows 32+4hi+i, col 32ct+n: OWN + row*256 + (((ct*4 + (n>>3)) ^ (row&15))<<4) + (n&7)*2")
    e(f"v_lshrrev_b32 v{vT[0]}, 3, v{vN}")
    e(f"s_lshl_b32 s{sT0}, s{sCT}, 2")
    e(f"v_add_u32 v{vT[0]}, s{sT0}, v{vT[0]}          ; chunk")
    e(f"v_lshlrev_b32 v{vT[7]}, 2, v{vHI}             ; 4hi")
    e(f"v_xor_b32 v{vT[0]}, v{vT[0]}, v{vT[7]}")
    e(f"v_lshlrev_b32 v{vT[0]}, 4, v{vT[0]}")
    e(f"v_lshl_add_u32 v{vT[0]}, v{vT[7]}, 8, v{vT[0]}   ; + 4hi*256")
    e(f"v_and_b32 v{vT[5]}, 7, v{vN}")
    e(f"v_lshl_add_u32 v{vT[0]}, v{vT[5]}, 1, v{vT[0]}")
    e(f"v_add_u32 v{vT[0]}, {OWN + 32*256}, v{vT[0]}")
    for i in range(4):
        e(f"v_xor_b32 v{vT[5]}, {i<<4}, v{vT[0]}")
        e(f"ds_read_u16 v{HRES+i}, v{vT[5]} offset:{i*256}")
    e(f"s_add_u32 s{sT0}, s{sNT}, 32")
    e(f"v_add_u32 v{vOFF}, s{sT0}, v{vT[7]}")
    e(f"v_lshlrev_b32 v{vOFF}, 8, v{vOFF}")
    e(f"v_lshl_add_u32 v{vOFF}, v{vN}, 1, v{vOFF}")
    e(f"s_lshl_b32 s{sT0}, s{sCT}, 6")
    e(f"v_add_u32 v{vOFF}, s{sT0}, v{vOFF}")
    e("s_waitcnt vmcnt(0)")
e("s_nop 1")
for s_ in range(8):
    e(f"s_waitcnt lgkmcnt({7-s_+NX})")
    mfma(ACC, ROW+4*s_, WFL+4*s_, vr(ACC,16))
if FINR == 1: e("s_waitcnt lgkmcnt(0)")
Y = 64
e("s_nop 7")
e("s_nop 3")
final_silu(ACC, 4, Y)
for k in range(4):
    e(f"v_lshlrev_b32 v{Y+k}, 16, v{HRES+k}")
for k in range(4):
    e(f"v_fma_f32 v{ACC+k}, v{ACC+k}, s{sK2}, v{Y+k}")
for k in range(4):
    e(f"v_cvt_pk_bf16_f32 v{Y+8+k}, v{ACC+k}, v{ACC+k}")
for r in range(4):
    e(f"buffer_store_short v{Y+8+r}, v{vOFF}, {srd(S_O0)}, 0 offen offset:{r*256}{OSC}")
e("s_branch L_end")
lab("L_f_C")
vOFF = vOFFC
if FINR == 1:
    vNODE = vT[5]; vCMP = vT[6]
    rolec_node(vN, vNODE, vCMP, vT[0], vT[7])
    c("role C: pos residual PTF[node][comp-1] ; out offset (40b + node)*6 + (comp-1)*2")
    e(f"v_lshlrev_b32 v{vT[0]}, 4, v{vNODE}")
    e(f"v_lshl_add_u32 v{vT[0]}, v{vCMP}, 2, v{vT[0]}")
    e(f"v_add_u32 v{vT[0]}, {PTF-4}, v{vT[0]}")
    e(f"ds_read_b32 v{HRES}, v{vT[0]}")
    e(f"v_add_u32 v{vOFF}, s{sNT}, v{vNODE}")
    e(f"v_mul_u32_u24 v{vOFF}, 6, v{vOFF}")
    e(f"v_lshl_add_u32 v{vOFF}, v{vCMP}, 1, v{vOFF}")
    e(f"v_subrev_u32 v{vOFF}, 2, v{vOFF}")
    e("s_waitcnt vmcnt(0)")
for s_ in range(8):
    e(f"s_waitcnt lgkmcnt({7-s_+(1 if FINR == 1 else 0)})")
    mfma(ACC, WFL+4*s_, ROW+4*s_, "0" if s_ == 0 else vr(ACC,16))
if FINR == 1: e("s_waitcnt lgkmcnt(0)")
e("s_nop 7")
e("s_nop 3")
e(f"v_fma_f32 v{ACC}, v{ACC}, s{sK2}, v{HRES}")
e(f"v_cvt_pk_bf16_f32 v{ACC}, v{ACC}, v{ACC}")
e(f"s_mov_b32 exec_lo, 0x3fffffff")
e(f"s_mov_b32 exec_hi, 0")
e(f"buffer_store_short v{ACC}, v{vOFF}, {srd(S_O1)}, 0 offen{OSC}")
lab("L_end")
stamp("end")
stamp_flush()
lab("L_end2")
e("s_endpgm")

def zero_lds(Z, vtid):
    c("zero REC (69632 B = 4352 x 16 B) and counters (64 B)")
    for i in range(4): e(f"v_mov_b32 v{Z+i}, 0")
    e(f"v_lshlrev_b32 v{vT[0]}, 4, v{vtid}")
    for i in range(4):
        e(f"ds_write_b128 v{vT[0]}, {vr(Z,4)} offset:{i*16384}")
    e(f"v_add_u32 v{vT[1]}, {65536}, v{vT[0]}")
    e(f"v_add_u32 v{vT[2]}, {CTR - 256*16}, v{vT[0]}")
    e(f"v_cmp_gt_u32 vcc, 256, v{vtid}")
    e(f"v_cndmask_b32 v{vT[1]}, v{vT[2]}, v{vT[1]}, vcc")
    e(f"v_cmp_gt_u32 vcc, 260, v{vtid}")
    e("s_mov_b64 exec, vcc")
    e(f"ds_write_b128 v{vT[1]}, {vr(Z,4)}")
    e("s_mov_b64 exec, -1")
lab("L_slow_init")
e(f"s_mov_b32 s{sPREF}, 0")
e(f"s_mov_b32 s{sMODE}, 1")
e(f"s_mov_b32 s{sCH}, 0")
e(f"s_mov_b32 s{sRETRY}, 0")
e(f"s_and_b32 s{sT3}, s{sT3}, 2")
e(f"s_cmp_eq_u32 s{sT3}, 0")
e("s_cbranch_scc1 L_slow_pass")
c("fallback: the hand-off timed out -> this workgroup computes all of Q and the WH2 fragments itself")
c("(waves 0..7 keep FACC (64..79) / FB (120..123); waves 8..15 run the GEMM blocks)")
e(f"s_mov_b32 s{sU}, 0")
lab("L_fb_loop")
e("s_waitcnt vmcnt(0) lgkmcnt(0)")
e("s_barrier")
e(f"s_cmp_lt_u32 s{sW}, 8")
e("s_cbranch_scc1 L_fb_idle")
gemm_role("fb", sU, True)
e("s_branch L_fb_next")
lab("L_fb_idle")
e("s_barrier")
lab("L_fb_next")
e(f"s_add_u32 s{sU}, s{sU}, 1")
e(f"s_cmp_lt_u32 s{sU}, {NG}")
e("s_cbranch_scc1 L_fb_loop")
e("s_waitcnt vmcnt(0) lgkmcnt(0)")
e("s_barrier")
e(f"s_cmp_ge_u32 s{sW}, 4")
e("s_cbranch_scc1 L_slow_pass")
wprep_role("fb", True)
e("s_branch L_slow_pass")
lab("L_slow_next")
e(f"v_mov_b32 v{vT[0]}, {PEND}")
e(f"ds_read_b32 v{vT[1]}, v{vT[0]}")
e("s_waitcnt lgkmcnt(0)")
e(f"v_readfirstlane_b32 s{sRETRY}, v{vT[1]}")
e("s_nop 3")
e(f"s_cmp_lg_u32 s{sRETRY}, 0")
e("s_cbranch_scc1 L_slow_pass")
lab("L_slow_adv")
e(f"s_add_u32 s{sCH}, s{sCH}, 1")
e(f"s_cmp_ge_u32 s{sCH}, 250")
e("s_cbranch_scc1 L_slow_fin")
lab("L_slow_pass")
e("s_waitcnt vmcnt(0) lgkmcnt(0)")
e("s_barrier")
e(f"s_lshl_b32 s{sT0}, s{sW}, 6")
e(f"v_add_u32 v{tid}, s{sT0}, v{vL}")
zero_lds(116, tid)
c("raw edge e = 640*ch + t (t<640)")
qD, qS, qB, qK, qR, qA = 104, 105, 106, 107, 108, 109
RC = RA; vEA = RA + 1; vI0 = VI[0]; PS0 = PS[0]
e(f"s_mul_i32 s{sT0}, s{sCH}, 2560")
e(f"s_mul_i32 s{sT1}, s{sCH}, 1280")
e(f"v_lshlrev_b32 v{vT[0]}, 2, v{tid}")
e(f"v_lshlrev_b32 v{vT[1]}, 1, v{tid}")
e(f"v_mov_b32 v{qD}, -1")
e(f"v_mov_b32 v{qS}, 0")
e(f"v_mov_b32 v{qP}, 0")
e(f"v_mov_b32 v{vEA}, 0")
e(f"v_mov_b32 v{qA}, 640")
e(f"v_cmp_gt_u32 {sp(sM0)}, v{qA}, v{tid}")
e(f"s_cmp_eq_u64 {sp(sM0)}, 0")
e("s_cbranch_scc1 L_slow_nold")
e(f"s_mov_b64 exec, {sp(sM0)}")
e(f"buffer_load_dword v{qD}, v{vT[0]}, {srd(S_DST)}, s{sT0} offen")
e(f"buffer_load_dword v{qS}, v{vT[0]}, {srd(S_SRC)}, s{sT0} offen")
e(f"buffer_load_ushort v{vEA}, v{vT[1]}, {srd(S_EA)}, s{sT1} offen")
e(f"v_add_u32 v{qA}, {PENDB}, v{tid}")
e(f"ds_read_u8 v{qP}, v{qA}")
e("s_mov_b64 exec, -1")
lab("L_slow_nold")
e("s_waitcnt vmcnt(0) lgkmcnt(0)")
e("s_barrier")
e(f"v_mul_u32_u24 v{qB}, 52429, v{qD}")
e(f"v_lshrrev_b32 v{qB}, 21, v{qB}")
e(f"v_mul_u32_u24 v{qK}, 40, v{qB}")
e(f"v_sub_u32 v{qK}, v{qD}, v{qK}")
e(f"v_cmp_eq_u32 vcc, s2, v{qB}")
e(f"s_and_b64 {sp(sM0)}, {sp(sM0)}, vcc          ; match")
e(f"s_cmp_eq_u32 s{sRETRY}, 0")
e("s_cbranch_scc1 L_slow_fresh")
e(f"v_cmp_ne_u32 vcc, 0, v{qP}")
e(f"s_and_b64 {sp(sM0)}, {sp(sM0)}, vcc")
lab("L_slow_fresh")
e(f"v_and_b32 v{qK}, 63, v{qK}")
e(f"v_min_u32 v{qK}, 39, v{qK}")
e(f"v_mul_u32_u24 v{vI0}, 52, v{qK}")
e(f"v_lshrrev_b32 v{vI0}, 8, v{vI0}           ; g")
e(f"v_mul_u32_u24 v{qA}, 5, v{vI0}")
e(f"v_sub_u32 v{qA}, v{qK}, v{qA}             ; j")
e(f"v_and_b32 v{qS}, 0x3fff, v{qS}")
e(f"v_lshl_or_b32 v{RC}, v{qK}, 14, v{qS}")
e(f"v_mov_b32 v{VJ[0]}, v{qA}")
e(f"s_mov_b32 s{sT0}, {ALLOC}")
e(f"v_lshl_add_u32 v{qA}, v{vI0}, 2, s{sT0}")
e(f"v_mov_b32 v{vOne}, 1")
e(f"v_mov_b32 v{qP}, 0")
e(f"v_mul_u32_u24 v{qB}, 6, v{qS}")
e(f"v_and_b32 v{qB}, -4, v{qB}")
for m in MK[1:]: e(f"s_mov_b64 {sp(m)}, 0")
e(f"s_cmp_eq_u64 {sp(sM0)}, 0")
e("s_cbranch_scc1 L_slow_nom")
e(f"s_mov_b64 exec, {sp(sM0)}")
e(f"buffer_load_dwordx2 {vr(PS0,2)}, v{qB}, {srd(S_POS)}, 0 offen")
e(f"ds_add_rtn_u32 v{qR}, v{qA}, v{vOne}")
e("s_mov_b64 exec, -1")
e(f"v_mul_u32_u24 v{vI0}, {GSTR}, v{vI0}")
e("s_waitcnt lgkmcnt(0)")
s1_place(qR, vI0, qS, sM0, "s", slow=True)
lab("L_slow_nom")
e(f"v_mov_b32 v{qA}, 640")
e(f"v_cmp_gt_u32 vcc, v{qA}, v{tid}")
e("s_mov_b64 exec, vcc")
e("s_cbranch_execz L_slow_nopb")
e(f"v_add_u32 v{qA}, {PENDB}, v{tid}")
e(f"ds_write_b8 v{qA}, v{qP}")
lab("L_slow_nopb")
e("s_mov_b64 exec, -1")
e("s_branch L_st2")
lab("L_slow_fin")
if FINR == 2:
    e(f"s_cmp_ge_u32 s{sW}, 8")
    e("s_cbranch_scc1 L_sf_nor")
    final_addr_res("s")
    lab("L_sf_nor")
c("SEG must be zero-initialised if no pass ever ran")
e(f"s_cmp_eq_u32 s{sNODE}, 0")
e("s_cbranch_scc1 L_final_bar")
for r in range(32):
    e(f"v_mov_b32 v{SEG+r}, 0")
lab("L_final_bar")
e("s_barrier")
e("s_branch L_final")

desc = f""".amdhsa_kernel {KNAME}
  .amdhsa_next_free_vgpr 128
  .amdhsa_next_free_sgpr 102
  .amdhsa_accum_offset 128
  .amdhsa_group_segment_fixed_size 0
  .amdhsa_kernarg_size 88
  .amdhsa_user_sgpr_count 2
  .amdhsa_user_sgpr_kernarg_segment_ptr 1
  .amdhsa_system_sgpr_workgroup_id_x 1
.end_amdhsa_kernel"""
body = "\n".join(x for x in out if x is not None)
final = "\n".join(header) + "\n" + body + "\n" + '.section .rodata,"a"\n.p2align 6\n' + desc + "\n"
dest = sys.argv[1] if len(sys.argv) > 1 else "standalone__cheap_equivariant_egnn__graph.s"
open(dest, "w").write(final)
print("wrote", dest, len(out), "lines")
```

```python
import sys, os
sys.path.insert(0, os.path.dirname(os.path.abspath(__file__)))
from g3common import *

KNAME = "standalone__cheap_equivariant_egnn__graph_kernel"
TIMING = os.environ.get("TIMING", "")
NOPRIO = os.environ.get("NOPRIO", "")
QSC = os.environ.get("QSC", " sc1")
FORCE = os.environ.get("FORCE", "")
NPOLL = int(os.environ.get("NPOLL", "3000"))
RSL = int(os.environ.get("RSL", "8"))
QSL = int(os.environ.get("QSL", "4"))
NSL = int(os.environ.get("NSL", "8"))
QST = int(os.environ.get("QST", "8"))
PK = int(os.environ.get("PK", "0"))
XM = int(os.environ.get("XM", "0"))
LATE = int(os.environ.get("LATE", "1"))
BSPEC = int(os.environ.get("BSPEC", "1"))
PPF = int(os.environ.get("PPF", "1"))
WSOFF = int(os.environ.get("WSOFF", "0")) << 20
TLBW = int(os.environ.get("TLBW", "0"))
PLATE = int(os.environ.get("PLATE", "1"))
KO = os.environ.get("KO", "")
OSC = os.environ.get("OSC", "")
if OSC: OSC = " " + OSC.replace("_", " ")
YM = int(os.environ.get("YM", "0"))
SWARM = int(os.environ.get("SWARM", "0"))
PSL = int(os.environ.get("PSL", "0"))
QGATE = int(os.environ.get("QGATE", "8"))
H1W = int(os.environ.get("H1W", "2"))
FPRIO = int(os.environ.get("FPRIO", "2"))
FDEL = int(os.environ.get("FDEL", "0"))
F16 = int(os.environ.get("F16", "1"))
HB = int(os.environ.get("HB", "4"))
BAP = int(os.environ.get("BAP", "3"))
HOIST = int(os.environ.get("HOIST", "1"))
IMM = int(os.environ.get("IMM", "1"))
IDX = int(os.environ.get("IDX", "1"))
FINR = int(os.environ.get("FINR", "2"))
PRIOS = [int(x) for x in os.environ.get("PRIOS", "3210")]
EARLY = int(os.environ.get("EARLY", "1"))
PREF = int(os.environ.get("PREF", "1"))
RWS = int(os.environ.get("RWS", "1"))
RPS = int(os.environ.get("RPS", "2"))
PREFN = int(os.environ.get("PREFN", "1"))
FCOPY = int(os.environ.get("FCOPY", "16"))
FSTR = int(os.environ.get("FSTR", "1024"))
WSC = " sc1" if os.environ.get("WSC", "1") == "1" else ""
DELTA = 600
WIN = 8192
GUARD = 800
TAGC = 0x1a5
FLC = 0x5A5AA5A5

CELLA = 0
CHB = 32000
CELLB = 4 << 20
WH2F = 12 << 20
NG = 157; NCH = 63
BIN0 = NG; WPR = NG + NCH
CAP = 136
GSTR = CAP * 64
REC = 0
QT = 8 * GSTR
BXP = QT + 65536
OWN = BXP + 16384
PTF = OWN + 10240
CTR = PTF + 640
ALLOC = CTR; OVF = CTR + 32; PEND = CTR + 36; GCNT = CTR + 40; NONCE = CTR + 44; ZERO16 = CTR + 48
SYN = CTR + 64
RISS = SYN; RCNT = SYN + 4; RCNT2 = SYN + 8; FCNT = SYN + 12; FCNT2 = SYN + 16; RCA = SYN + 20; RLAND = SYN + 24
RCB = SYN + 28; FCB = SYN + 32; FCC = SYN + 36; RPL = SYN + 40; QOKF = SYN + 44; RH1 = SYN + 48
PENDB = CTR + 128
LDS_TOTAL = PENDB + 640
ZB2 = ZERO16 + 1024
if IMM: LDS_TOTAL = ZB2 + 16
assert ZB2 >= PENDB + 640
FLG = 13 << 20
assert LDS_TOTAL <= 163840
NWG = 250

S_H, S_POS, S_EA, S_SRC, S_DST, S_WX, S_O0, S_O1, S_WS, S_Q, S_WE, S_WH = [8 + 4 * i for i in range(12)]
sRW, sRQ, sRL = 56, 57, 58
sC4, sC5 = 4, 5
sW, sQ, sCT, sMODE, sT0, sT1, sT2, sT3 = range(60, 68)
sEX, sM0, sM1, sM2 = 68, 70, 72, 74
sG, sCH2, sCO, sNT, sU, sREM, sK2, sK3, sNODE, sCH, sRETRY, sB0, sB1, sGB, sRT, sPREF = range(76, 92)
sTW, sLOW, sCNT, sC = 92, 93, 94, 95
sPA, sPB = 96, 98
sX0, sX1, sX2 = 96, 97, 98
KS = 76

vL = 0
vLK, vQD, vTRQ0, vTRQ1, vTRS, vOD, vODM = 1, 2, 3, 4, 5, 6, 7
vT = list(range(8, 16))
SEG = 16; ACC = 48; FACC = 64; QF = 80; SF = 88; OHD = 96; BXF = 100; ID = 104; MP = 112; FB = 120
TE = QF
VST = 127

_st = [0]
STAMPS = os.environ.get("STAMPS", "")
STAMPS = set(int(x) for x in STAMPS.split(",")) if STAMPS else None
def stamp(name, idx=None):
    if not TIMING: return
    i = _st[0] if idx is None else idx
    if idx is None: _st[0] += 1
    if STAMPS is not None and i not in STAMPS: return
    c(f"STAMP {i} {name}")
    e(f"s_memtime s[{sC4}:{sC5}]")
    e("s_waitcnt lgkmcnt(0)")
    e(f"v_writelane_b32 v{VST}, s{sC4}, {i}")
    print("stamp", i, name)
def stamp_dyn(base, scnt, mx=11):
    if not TIMING or os.environ.get("STAMPS", ""): return
    e(f"s_memtime s[{sC4}:{sC5}]")
    e(f"s_min_u32 s3, s{scnt}, {mx}")
    e(f"s_add_u32 m0, s3, {base}")
    e("s_waitcnt lgkmcnt(0)")
    e(f"v_writelane_b32 v{VST}, s{sC4}, m0")
def stamp_flush():
    if not TIMING: return
    e(f"s_memrealtime s[{sC4}:{sC5}]")
    e("s_waitcnt lgkmcnt(0)")
    e("s_mov_b64 exec, -1")
    e(f"v_writelane_b32 v{VST}, s100, 62")
    e(f"v_writelane_b32 v{VST}, s{sC4}, 63")
    e(f"s_lshl_b32 s{sT0}, s2, 4")
    e(f"s_add_u32 s{sT0}, s{sT0}, s{sW}")
    e(f"s_lshl_b32 s{sT0}, s{sT0}, 8")
    e(f"s_add_u32 s{sT0}, s{sT0}, {32<<20}")
    e(f"v_lshlrev_b32 v{vT[1]}, 2, v{vL}")
    e(f"buffer_store_dword v{VST}, v{vT[1]}, {srd(S_WS)}, s{sT0} offen")

header = []
header.append(f"; @launch grid=({NWG},1,1) block=(1024,1,1) lds={LDS_TOTAL}")
header.append('.amdgcn_target "amdgcn-amd-amdhsa--gfx950"')
header.append(".text")
header.append(f".globl {KNAME}")
header.append(".p2align 8")
header.append(f".type {KNAME},@function")

lab(KNAME)
e(f"s_cmp_ge_u32 s2, {NWG}")
e("s_cbranch_scc1 L_end2")
e("s_memrealtime s[6:7]")
if TIMING:
    e("s_memrealtime s[100:101]")
if TIMING:
    e(f"v_mov_b32 v{VST}, 0")
stamp("entry")
e(f"s_load_dwordx16 s[{KS}:{KS+15}], s[0:1], 0")
e(f"s_load_dwordx2 s[{S_WS}:{S_WS+1}], s[0:1], 80")
e(f"s_load_dwordx2 s[{S_O0}:{S_O0+1}], s[0:1], 64")
tid = vT[7]
e(f"v_mov_b32 v{tid}, v0")
e(f"v_lshrrev_b32 v{vT[0]}, 6, v0")
e(f"v_and_b32 v{vL}, 63, v0")
e(f"v_readfirstlane_b32 s{sW}, v{vT[0]}")
for (x, sz) in [(S_H,2560000),(S_POS,60000),(S_EA,320000),(S_SRC,640000),(S_DST,640000),(S_WX,256),(S_O0,2560000),(S_O1,60000),
                (S_WS,256*1048576-WSOFF),(S_Q,10000 if IDX else 2560000),(S_WE,66048),(S_WH,65536)]:
    e(f"s_mov_b32 s{x+2}, {sz}")
    e(f"s_mov_b32 s{x+3}, 0x20000")
e(f"s_lshr_b32 s{sQ}, s{sW}, 2")
e(f"s_and_b32 s{sCT}, s{sW}, 3")
e(f"s_and_b32 s{sRW}, s{sW}, 7")
e(f"s_and_b32 s{sRQ}, s{sQ}, 1")
e(f"s_mov_b32 s{sMODE}, 0")
e(f"s_mov_b32 s{sRL}, 0")
def kernarg_copy():
    for (x, k) in [(S_H,0),(S_POS,2),(S_EA,4),(S_SRC,6),(S_DST,8),(S_WE,10),(S_WX,12),(S_WH,14)]:
        e(f"s_mov_b64 s[{x}:{x+1}], s[{KS+k}:{KS+k+1}]")
    if WSOFF:
        e(f"s_add_u32 s{S_WS}, s{S_WS}, {WSOFF}")
        e(f"s_addc_u32 s{S_WS+1}, s{S_WS+1}, 0")
    e(f"s_add_u32 s{S_O1}, s{S_O0}, 2560000")
    e(f"s_addc_u32 s{S_O1+1}, s{S_O0+1}, 0")
    e(f"s_add_u32 s{S_Q}, s{S_WS}, {QOFF}")
    e(f"s_addc_u32 s{S_Q+1}, s{S_WS+1}, {(256 << 16) if IDX else 0}")
    e(f"s_mov_b32 s{sTW}, s6")
    if SWARM:
        c("address-translation warm-up through the scalar path (results unused)")
        lst = [(S_H,0),(S_POS,0),(S_WE,0),(S_WH,0),(S_SRC,0),(S_DST,0),(S_EA,0),(S_H,2097152),(S_WS,0),(S_WS,FLG & 0xfffff if False else 0),(S_Q,0),(S_O0,0)]
        if SWARM == 1: lst = [(S_H,0),(S_POS,0),(S_WE,0),(S_WH,0)]
        if SWARM == 2: lst = [(S_H,0),(S_POS,0),(S_WE,0),(S_WH,0),(S_SRC,0),(S_DST,0),(S_EA,0)]
        if SWARM == 3: lst = [(S_H,0),(S_POS,0),(S_WE,0),(S_WH,0),(S_SRC,0),(S_DST,0),(S_EA,0),(S_WS,0),(S_Q,0),(S_O0,0)]
        for (x, off) in lst:
            e(f"s_load_dword s3, s[{x}:{x+1}], {off}")

vSL = 16; vTRP = 17; vRA = 18; vRD = 19; vST = 20; vU0 = 21; vU1 = 22
def slice_lane(dst, sct):
    e(f"v_lshrrev_b32 v{dst}, 2, v{vL}")
    e(f"v_lshlrev_b32 v{dst}, 8, v{dst}")
    e(f"v_and_b32 v{vU0}, 3, v{vL}")
    e(f"v_lshl_add_u32 v{dst}, v{vU0}, 4, v{dst}")
    e(f"s_lshl_b32 s{sT0}, s{sct}, 6")
    e(f"v_add_u32 v{dst}, s{sT0}, v{dst}")
def trpat(dst, t0, t1):
    e(f"v_lshrrev_b32 v{t0}, 5, v{vL}")
    e(f"v_bfe_u32 v{t1}, v{vL}, 2, 2")
    e(f"v_lshl_add_u32 v{dst}, v{t0}, 3, v{t1}")
    e(f"v_lshlrev_b32 v{dst}, 6, v{dst}")
    e(f"v_bfe_u32 v{t0}, v{vL}, 4, 1")
    e(f"v_lshl_add_u32 v{dst}, v{t0}, 5, v{dst}")
    e(f"v_and_b32 v{t0}, 3, v{vL}")
    e(f"v_lshl_add_u32 v{dst}, v{t0}, 3, v{dst}")
def row_addr(dst, vrow, vhi, tmp, base=OWN):
    e(f"v_and_b32 v{tmp}, 15, v{vrow}")
    e(f"v_xor_b32 v{tmp}, v{tmp}, v{vhi}")
    e(f"v_lshlrev_b32 v{tmp}, 4, v{tmp}")
    e(f"v_lshl_add_u32 v{dst}, v{vrow}, 8, v{tmp}")
    e(f"v_add_u32 v{dst}, {base}, v{dst}")

Z = 24
for i in range(4): e(f"v_mov_b32 v{Z+i}, 0")
c("wave 0: zero the counters (128 B), then B0")
e(f"s_cmp_eq_u32 s{sW}, 0")
e("s_cbranch_scc0 L_b0")
e(f"v_lshlrev_b32 v{vT[0]}, 4, v{vL}")
e(f"v_add_u32 v{vT[0]}, {CTR}, v{vT[0]}")
e("s_mov_b64 exec, 0xff")
e(f"ds_write_b128 v{vT[0]}, {vr(Z,4)}")
if IMM:
    e(f"v_mov_b32 v{vT[0]}, {ZB2}")
    e("s_mov_b64 exec, 1")
    e(f"ds_write_b128 v{vT[0]}, {vr(Z,4)}")
e("s_mov_b64 exec, -1")
e("s_waitcnt lgkmcnt(0)")
lab("L_b0")
e("s_barrier")
vA_ = 23
_sy = [0]
def arrive(addr, regs=None):
    a_, d_ = regs if regs else (vA_, vU1)
    e(f"v_mov_b32 v{a_}, {addr}")
    e(f"v_mov_b32 v{d_}, 1")
    e("s_mov_b64 exec, 1")
    e(f"ds_add_u32 v{a_}, v{d_}")
    e("s_mov_b64 exec, -1")
def wait_cnt(addr, n, nz=False, dst=None, regs=None, slp=1):
    i = _sy[0]; _sy[0] += 1
    d = dst if dst is not None else sT0
    a_, d_ = regs if regs else (vA_, vU1)
    e(f"v_mov_b32 v{a_}, {addr}")
    lab(f"L_sy{i}")
    e(f"ds_read_b32 v{d_}, v{a_}")
    e("s_waitcnt lgkmcnt(0)")
    e(f"v_readfirstlane_b32 s{d}, v{d_}")
    if nz: e(f"s_cmp_lg_u32 s{d}, 0")
    else:  e(f"s_cmp_ge_u32 s{d}, {n}")
    e(f"s_cbranch_scc1 L_syd{i}")
    e(f"s_sleep {slp}")
    e(f"s_branch L_sy{i}")
    lab(f"L_syd{i}")
e(f"s_cmp_ge_u32 s{sW}, 8")
e("s_cbranch_scc1 L_front")
def lane_consts():
    e(f"s_lshr_b32 s{sG}, s{sW}, 1")
    e(f"s_and_b32 s{sCH2}, s{sW}, 1")
    e(f"s_mul_i32 s{sGB}, s{sG}, {GSTR}")
    e(f"s_lshl_b32 s{sB0}, s{sW}, 12")
    e(f"s_add_u32 s{sB0}, s{sB0}, {QT}")
    e(f"s_add_u32 s{sB1}, s{sB0}, 2048")
    c("lane constants (REC rows swizzled: 16-B chunk c of row with rank p at position c ^ ((p>>2)&3))")
    e(f"v_lshrrev_b32 v{vT[3]}, 5, v{vL}           ; hi")
    e(f"v_lshrrev_b32 v{vT[4]}, 3, v{vL}")
    e(f"v_lshlrev_b32 v{vLK}, 6, v{vT[4]}")
    e(f"v_xor_b32 v{vT[4]}, 1, v{vT[3]}")
    e(f"v_lshl_add_u32 v{vLK}, v{vT[4]}, 4, v{vLK}")
    e(f"s_add_u32 s{sT0}, s{sGB}, {REC}")
    e(f"v_add_u32 v{vLK}, s{sT0}, v{vLK}")
    e(f"v_and_b32 v{vT[5]}, 7, v{vL}")
    e(f"v_bfe_u32 v{vT[6]}, v{vL}, 4, 1")
    e(f"v_lshlrev_b32 v{vT[4]}, 2, v{vT[6]}")
    e(f"v_xor_b32 v{vT[5]}, v{vT[5]}, v{vT[4]}")
    e(f"v_lshlrev_b32 v{vQD}, 4, v{vT[5]}")
    e(f"s_lshl_b32 s{sT1}, s{sCH2}, 7")
    e(f"v_add_u32 v{vQD}, s{sT1}, v{vQD}            ; ch*128 + (((l&7) ^ 4*((l>>4)&1))<<4)")
    c("vT6 = colhalf ; r = (l>>2)&3 ; c4 = l&3")
    e(f"v_bfe_u32 v{vT[4]}, v{vL}, 2, 2            ; r")
    e(f"v_and_b32 v{vT[5]}, 3, v{vL}")
    e(f"v_lshlrev_b32 v{vT[2]}, 5, v{vT[6]}")
    e(f"v_lshl_add_u32 v{vT[2]}, v{vT[5]}, 3, v{vT[2]}   ; colhalf*32 + c4*8")
    e(f"v_lshl_add_u32 v{vTRQ0}, v{vT[3]}, 3, v{vT[4]}   ; 8hi + r")
    e(f"v_lshl_add_u32 v{vTRQ0}, v{vTRQ0}, 7, v{vT[2]}")
    e(f"v_bfe_u32 v{vT[5]}, v{vL}, 3, 1            ; (r>>1)&1")
    e(f"v_lshl_add_u32 v{vTRQ0}, v{vT[5]}, 6, v{vTRQ0}")
    e(f"v_add_u32 v{vTRQ0}, s{sB0}, v{vTRQ0}")
    e(f"v_xor_b32 v{vTRQ1}, 64, v{vTRQ0}")
    c("vTRS = REC + g*GSTR + (4hi + r)*64 + ((colhalf*32 + c4*8) ^ (hi<<4))")
    e(f"v_lshlrev_b32 v{vT[5]}, 4, v{vT[3]}")
    e(f"v_xor_b32 v{vT[2]}, v{vT[2]}, v{vT[5]}")
    e(f"v_lshl_add_u32 v{vTRS}, v{vT[3]}, 2, v{vT[4]}    ; 4hi + r")
    e(f"v_lshl_add_u32 v{vTRS}, v{vTRS}, 6, v{vT[2]}")
    e(f"v_add_u32 v{vTRS}, s{sT0}, v{vTRS}")
    c("OHD: lanes 0..15 and 48..63 read chunk 0 of row (l&15) at position (row>>2)&3; others read ZERO16")
    e(f"v_and_b32 v{vT[4]}, 15, v{vL}")
    e(f"v_bfe_u32 v{vT[5]}, v{vL}, 2, 2")
    e(f"v_lshlrev_b32 v{vT[4]}, 6, v{vT[4]}")
    e(f"v_lshl_add_u32 v{vT[4]}, v{vT[5]}, 4, v{vT[4]}")
    e(f"v_add_u32 v{vT[4]}, s{sT0}, v{vT[4]}")
    e(f"v_cmp_eq_u32 vcc, v{vT[3]}, v{vT[6]}")
    e(f"v_mov_b32 v{vT[5]}, {ZERO16}")
    e(f"v_cndmask_b32 v{vOD}, v{vT[5]}, v{vT[4]}, vcc")
    e(f"v_mov_b32 v{vT[4]}, {2048 if IMM else 1024}")
    e(f"v_cndmask_b32 v{vODM}, 0, v{vT[4]}, vcc")
    e(f"s_mov_b32 s{sNODE}, 1")
    e(f"s_mov_b32 s{sPREF}, 0")
RA = 96; RB = 100; vGA = 120
PS = [56, 58, 60, 62]
VI = [80, 81, 82, 83]
VR = [84, 85, 86, 87]
vOne = 89
qP = 90
VJ = [120+0, 0, 0, 0]
VJ = [124, 125, 95, 88]
def id_consts(t0, t1):
    c("ID constants: lane (m,hi): step s elem i = (m == 16s + 8hi + i)")
    e(f"v_and_b32 v{t0}, 1, v{vL}")
    e(f"v_lshlrev_b32 v{t0}, 4, v{t0}")
    e(f"v_mov_b32 v{t1}, 0x3f80")
    e(f"v_lshlrev_b32 v{t0}, v{t0}, v{t1}")
    for s_ in range(2):
        for r in range(4):
            m = 0
            for l in range(64):
                x = (l & 31) - 8 * (l >> 5)
                if x in (16*s_ + 2*r, 16*s_ + 2*r + 1): m |= 1 << l
            e(f"s_mov_b32 vcc_lo, 0x{m & 0xffffffff:x}")
            e(f"s_mov_b32 vcc_hi, 0x{m >> 32:x}")
            e(f"v_cndmask_b32 v{ID+4*s_+r}, 0, v{t0}, vcc")
def seg_zero():
    for r in range(32):
        e(f"v_mov_b32 v{SEG+r}, 0")
MK = [sM0, sM1, sPA, sPB]
if not NOPRIO: e("s_setprio 2")
c("zero REC tail (4096 B, threads 256..511)")
e(f"v_lshlrev_b32 v{vT[0]}, 4, v{tid}")
e(f"v_add_u32 v{vT[1]}, {65536 - 4096}, v{vT[0]}")
e(f"v_cmp_lt_u32 vcc, 255, v{tid}")
e("s_mov_b64 exec, vcc")
e(f"s_cbranch_execz L_notail")
e(f"ds_write_b128 v{vT[1]}, {vr(Z,4)}")
lab("L_notail")
e("s_mov_b64 exec, -1")
e(f"s_cmp_ge_u32 s2, {BIN0}")
e("s_cbranch_scc1 L_notgemm")

AF = 24; BF = 56; D0 = 88
def gemm_role(tag, blk, fb):
    slice_lane(vSL, sCT)
    c("rows DMA lane offset: row = 8w + 4i + (l>>4); chunk = (l&15) ^ (row&15)")
    e(f"v_lshrrev_b32 v{vU0}, 4, v{vL}")
    e(f"v_and_b32 v{vU1}, 15, v{vL}")
    e(f"v_xor_b32 v{vU1}, v{vU1}, v{vU0}")
    e(f"s_and_b32 s{sT0}, s{sRW}, 1")
    e(f"s_lshl_b32 s{sT0}, s{sT0}, 3")
    e(f"v_xor_b32 v{vU1}, s{sT0}, v{vU1}")
    e(f"v_lshlrev_b32 v{vU1}, 4, v{vU1}")
    e(f"v_lshl_add_u32 v{vRA}, v{vU0}, 8, v{vU1}")
    e(f"v_xor_b32 v{vRD}, 64, v{vRA}")
    e(f"s_lshl_b32 s{sT0}, s{sCT}, 13")
    e(f"s_lshl_b32 s{sT1}, s{sRQ}, 12")
    e(f"s_add_u32 s{sT0}, s{sT0}, s{sT1}")
    e(f"s_add_u32 s{sT0}, s{sT0}, {QT}")
    e(f"s_lshl_b32 s{sT1}, s{sRQ}, 14")
    e(f"s_add_u32 s{sT1}, s{sT1}, 32768")
    e(f"s_lshl_b32 s{sT3}, s{sRW}, 11")
    e(f"s_lshl_b32 s{sX0}, s{blk}, 14")
    e(f"s_add_u32 s{sX0}, s{sX0}, s{sT3}           ; (64r + 8w)*256")
    if not fb:
        e("s_waitcnt lgkmcnt(0)")
        stamp("kernarg", 1)
        kernarg_copy()
    e(f"s_add_u32 m0, s{sT3}, {QT+32768}")
    e(f"s_add_u32 s{sX1}, s{sX0}, 1024")
    e(f"buffer_load_dwordx4 v{vRA}, {srd(S_H)}, s{sX0} offen lds")
    e(f"s_add_u32 m0, s{sT3}, {QT+32768+1024}")
    e(f"s_nop 0")
    e(f"buffer_load_dwordx4 v{vRD}, {srd(S_H)}, s{sX1} offen lds")
    for i in range(4):
        e(f"s_add_u32 m0, s{sT0}, {i*1024}")
        e(f"s_add_u32 s{sT2}, s{sT1}, {i*4096}")
        e(f"buffer_load_dwordx4 v{vSL}, {srd(S_WE)}, s{sT2} offen lds")
    if not fb:
        if not LATE: arrive(RISS)
        stamp("role loads issued", 2)
    c("compute: all 8 waves, rb = w>>2, ct = w&3 : 32 rows x 32 cols")
    trpat(vTRP, vU0, vU1)
    e(f"s_lshl_b32 s{sT0}, s{sCT}, 13")
    e(f"s_add_u32 s{sT0}, s{sT0}, {QT}")
    e(f"v_add_u32 v{vTRP}, s{sT0}, v{vTRP}")
    c("row read address: QT+32768 + (rb*32+n)*256 + ((hi ^ (n&15))<<4) ^ (s<<5)")
    e(f"v_and_b32 v{vU0}, 31, v{vL}")
    e(f"v_lshrrev_b32 v{vU1}, 5, v{vL}")
    e(f"v_and_b32 v{vRD}, 15, v{vL}")
    e(f"v_xor_b32 v{vRD}, v{vRD}, v{vU1}")
    e(f"v_lshlrev_b32 v{vRD}, 4, v{vRD}")
    e(f"v_lshl_add_u32 v{vRD}, v{vU0}, 8, v{vRD}")
    e(f"s_lshl_b32 s{sT0}, s{sRQ}, 13")
    e(f"s_add_u32 s{sT0}, s{sT0}, {QT+32768}")
    e(f"v_add_u32 v{vRD}, s{sT0}, v{vRD}")
    c("out tile (2 KB per wave) write addr: OB + n*64 + ((bb ^ ((n>>2)&3))<<4) + hi*8")
    e(f"s_lshl_b32 s{sT0}, s{sRW}, 11")
    e(f"s_add_u32 s{sT0}, s{sT0}, {QT+49152}")
    e(f"v_bfe_u32 v{vRA}, v{vL}, 2, 2")
    e(f"v_lshlrev_b32 v{vRA}, 4, v{vRA}")
    e(f"v_lshl_add_u32 v{vRA}, v{vU0}, 6, v{vRA}")
    e(f"v_lshl_add_u32 v{vRA}, v{vU1}, 3, v{vRA}")
    e(f"v_add_u32 v{vRA}, s{sT0}, v{vRA}")
    c("out tile read addr: OB + (r + 16i)*64 + ((q ^ ((r>>2)&3))<<4), r = l>>2, q = l&3 ; store: row*256 + ct*64 + q*16")
    e(f"v_lshrrev_b32 v{vU0}, 2, v{vL}")
    e(f"v_and_b32 v{vU1}, 3, v{vL}")
    e(f"v_bfe_u32 v{vSL}, v{vL}, 4, 2")
    e(f"v_xor_b32 v{vSL}, v{vSL}, v{vU1}")
    e(f"v_lshlrev_b32 v{vSL}, 4, v{vSL}")
    e(f"v_lshl_add_u32 v{vSL}, v{vU0}, 6, v{vSL}")
    e(f"v_add_u32 v{vSL}, s{sT0}, v{vSL}")
    e(f"v_lshlrev_b32 v{vST}, 4, v{vU1}")
    e(f"v_lshl_add_u32 v{vST}, v{vU0}, 8, v{vST}")
    e(f"s_lshl_b32 s{sT0}, s{blk}, 14")
    e(f"s_lshl_b32 s{sT1}, s{sRQ}, 13")
    e(f"s_add_u32 s{sT0}, s{sT0}, s{sT1}")
    e(f"s_lshl_b32 s{sT1}, s{sCT}, 6")
    e(f"s_add_u32 s{sC}, s{sT0}, s{sT1}")
    if IDX: e(f"s_add_u32 s{sC}, s{sC}, {QOFF}")
    e("s_waitcnt vmcnt(0) lgkmcnt(0)")
    if not fb: stamp("role loads landed", 3)
    if fb:
        e("s_barrier")
    else:
        arrive(RCNT)
        if LATE: arrive(RISS)
        wait_cnt(RCNT, 8)
        stamp("B1", 4)
    for s_ in range(8):
        e(f"v_xor_b32 v{vU0}, {s_<<5}, v{vRD}")
        e(f"ds_read_b128 {vr(BF+4*s_,4)}, v{vU0}")
        e(f"ds_read_b64_tr_b16 {vr(AF+4*s_,2)}, v{vTRP} offset:{s_*1024}")
        e(f"ds_read_b64_tr_b16 {vr(AF+4*s_+2,2)}, v{vTRP} offset:{s_*1024+256}")
    for s_ in range(8):
        e(f"s_waitcnt lgkmcnt({min(15, 21-3*s_)})")
        mfma(D0, AF+4*s_, BF+4*s_, "0" if s_ == 0 else vr(D0,16))
    if not fb: arrive(RCA)
    e(f"s_mov_b32 s{sT1}, 0x{NLOG2E:08x}")
    e("s_nop 7")
    e("s_nop 3")
    for bb in range(4):
        r0 = D0 + 4*bb
        for i in range(4):
            e(f"v_mul_f32 v{r0+i}, s{sT1}, v{r0+i}")
        e(f"v_cvt_pk_bf16_f32 v{r0}, v{r0}, v{r0+1}")
        e(f"v_cvt_pk_bf16_f32 v{r0+1}, v{r0+2}, v{r0+3}")
        e(f"v_xor_b32 v{vU0}, {bb<<4}, v{vRA}")
        e(f"ds_write_b64 v{vU0}, {vr(r0,2)}")
    e("s_waitcnt lgkmcnt(0)")
    for i in range(2):
        e(f"ds_read_b128 {vr(AF+4*i,4)}, v{vSL} offset:{i*1024}")
    e(f"s_add_u32 s{sT1}, s{sC}, 4096")
    for i in range(2):
        e(f"s_waitcnt lgkmcnt({1-i})")
        e(f"buffer_store_dwordx4 {vr(AF+4*i,4)}, v{vST}, {srd(S_WS if IDX else S_Q)}, s{[sC,sT1][i]} offen sc1")
    if not fb: stamp("role stores issued", 5)

gemm_role("", 2, False)
e(f"s_mov_b32 s{sRL}, 8")
e(f"s_lshl_b32 s{sX1}, s2, 2")
e(f"s_add_u32 s{sX1}, s{sX1}, {FLG}")
FM1 = sum(1 << (4*i) for i in range(FCOPY)); FM4 = (1 << (4*FCOPY)) - 1
e(f"s_mov_b32 s{sM0}, 0x{FM1 & 0xffffffff:x}")
e(f"s_mov_b32 s{sM0+1}, 0x{FM1 >> 32:x}")
e("s_branch L_rfront")

lab("L_notgemm")
e(f"s_cmp_ge_u32 s2, {WPR}")
e("s_cbranch_scc1 L_notbin")
c("binning chunk c = wg - 157: edges e = 2560c + 512i + t ; LDS image: cell b at QT + b*128 (+32000 for ranks 16..31), 8-B records")
NE = 5
CNT = QT + 64000
vD = 24; vS = 29; vB = 34; vR = 39; vP = 44; vE = 54; vE2 = 55; vOne_ = 56; vK = 57; vG_ = 58
VM = [76, 78, 80, 82, 84]
sN40, sCB = 86, 87
e(f"s_sub_u32 s{sC}, s2, {BIN0}")
e(f"s_mul_i32 s{sT0}, s{sC}, {2560*4}")
e(f"v_lshlrev_b32 v{vE}, 2, v{tid}")
e(f"v_lshlrev_b32 v{vE2}, 1, v{tid}")
e(f"v_lshlrev_b32 v{vK}, 4, v{tid}")
e(f"v_add_u32 v{vK}, {QT}, v{vK}")
e(f"v_mov_b32 v{vOne_}, 1")
e(f"s_add_u32 s{sT2}, s{sT0}, 4096")
e(f"s_add_u32 s{sT1}, s{sT0}, 8192")
e(f"s_lshr_b32 s{sX0}, s{sT0}, 1")
e(f"s_add_u32 s{sX1}, s{sX0}, 4096")
e("s_waitcnt lgkmcnt(0)")
stamp("kernarg", 1)
kernarg_copy()
def soff(i): return [sT0, sT0, sT2, sT2, sT1][i], (i & 1) * 2048 if i < 4 else 0
for i in range(NE):
    so, of = soff(i)
    e(f"buffer_load_dword v{vD+i}, v{vE}, {srd(S_DST)}, s{so} offen offset:{of}")
for i in range(NE):
    so, of = soff(i)
    e(f"buffer_load_dword v{vS+i}, v{vE}, {srd(S_SRC)}, s{so} offen offset:{of}")
for i in range(NE):
    so = sX0 if i < 4 else sX1
    e(f"buffer_load_ushort v{vP+2*i+1}, v{vE2}, {srd(S_EA)}, s{so} offen offset:{(i & 3) * 1024 if i < 4 else 0}")
if not LATE: arrive(RISS)
stamp("role loads issued", 2)
c("zero the image and the counters (64 KB) ; v60..63 = 0")
for i in range(4): e(f"v_mov_b32 v{60+i}, 0")
for i in range(8):
    e(f"ds_write_b128 v{vK}, {vr(60,4)} offset:{i*8192}")
arrive(RCNT)
c("validity: e < 160000  <=> byte offset < 640000")
e(f"v_add_u32 v{vE}, s{sT0}, v{vE}")
for i in range(NE):
    e(f"s_mov_b32 s{sX0}, {640000 - i*2048}")
    e(f"v_cmp_gt_u32 {sp(VM[i])}, s{sX0}, v{vE}")
e(f"s_mov_b32 s{sX0}, {CNT}")
e(f"s_mov_b32 s{sX1}, {QT}")
e(f"s_mov_b32 s{sN40}, -40")
e(f"s_mov_b32 s{sCB}, {CHB - 128}")
e(f"s_mov_b32 s{sT3}, {1 << 20}")
wait_cnt(RCNT, 8, dst=sX2)
stamp("B1", 4)
for i in range(NE):
    e(f"s_waitcnt vmcnt({3*NE-1-i})")
    e(f"v_mul_u32_u24 v{vB+i}, 52429, v{vD+i}")
    e(f"v_lshrrev_b32 v{vB+i}, 21, v{vB+i}")
    e(f"v_lshl_add_u32 v{vU0}, v{vB+i}, 2, s{sX0}")
    e(f"s_mov_b64 exec, {sp(VM[i])}")
    e(f"ds_add_rtn_u32 v{vR+i}, v{vU0}, v{vOne_}")
    e(f"v_mad_i32_i24 v{vD+i}, v{vB+i}, s{sN40}, v{vD+i}       ; k")
    e(f"v_lshl_add_u32 v{vB+i}, v{vB+i}, 7, s{sX1}")
    e(f"v_lshlrev_b32 v{vD+i}, 14, v{vD+i}")
    e(f"s_mov_b64 exec, -1")
for i in range(NE):
    e(f"s_waitcnt vmcnt({2*NE-1-i})")
    e(f"v_or3_b32 v{vP+2*i}, v{vD+i}, v{vS+i}, s{sT3}")
e("s_waitcnt vmcnt(0) lgkmcnt(0)")
if LATE: arrive(RISS)
stamp("role loads landed", 3)
for i in range(NE):
    e(f"v_lshl_add_u32 v{vU0}, v{vR+i}, 3, v{vB+i}")
    e(f"v_lshrrev_b32 v{vU1}, 4, v{vR+i}")
    e(f"s_mov_b64 exec, {sp(VM[i])}")
    e(f"v_cmp_gt_u32 vcc, 32, v{vR+i}")
    e(f"v_mad_u32_u24 v{vU0}, v{vU1}, s{sCB}, v{vU0}")
    e(f"s_mov_b64 exec, vcc")
    e(f"ds_write_b64 v{vU0}, {vr(vP+2*i,2)}")
    e(f"s_mov_b64 exec, -1")
e("s_waitcnt lgkmcnt(0)")
arrive(RCNT2)
c("copy-out: granule x = t + 512i (<2000): cell b = x>>3, q = x&7")
GA = 24; vCn = 40; vX = 45; vF = 46; vY = 47; vXL = 52
e(f"v_lshlrev_b32 v{vX}, 4, v{tid}               ; x*16 (i=0)")
e(f"v_lshrrev_b32 v{vY}, 3, v{tid}")
e(f"v_lshl_add_u32 v{vY}, v{vY}, 2, s{sX0}")
e(f"v_add_u32 v{vXL}, {QT}, v{vX}")
e(f"s_mul_i32 s{sT0}, s{sC}, {CHB}")
e(f"s_bfe_u32 s{sT1}, s{sTW}, {3 | (9<<16)}")
e(f"s_xor_b32 s{sT1}, s{sT1}, {TAGC}")
e(f"s_lshl_b32 s{sT1}, s{sT1}, 23")
e(f"s_mov_b32 s{sX1}, {2000-1536}")
e(f"v_cmp_gt_u32 {sp(sM1)}, s{sX1}, v{tid}")
e(f"v_mov_b32 v{vCn+3}, 0")
wait_cnt(RCNT2, 8, dst=sX2)
stamp("B2", 6)
for i in range(4):
    if i == 3:
        e(f"s_mov_b64 exec, {sp(sM1)}")
    e(f"ds_read_b128 {vr(GA+4*i,4)}, v{vXL} offset:{i*8192}")
    e(f"ds_read_b32 v{vCn+i}, v{vY} offset:{i*256}")
e("s_mov_b64 exec, -1")
def granule(G, cn, so):
    e(f"v_add_u32 v{vU0}, 15, v{cn}")
    e(f"v_lshrrev_b32 v{vU0}, 4, v{vU0}")
    e(f"v_min_u32 v{vU0}, 3, v{vU0}")
    e(f"v_lshl_or_b32 v{vF}, v{vU0}, 21, s{sT1}")
    e(f"v_lshl_or_b32 v{G+1}, v{G+3}, 16, v{G+1}")
    e(f"v_or_b32 v{G}, v{G}, v{vF}")
    e(f"v_or_b32 v{G+2}, v{G+2}, v{vF}")
    e(f"v_mov_b32 v{G+3}, s{sTW}")
    e(f"buffer_store_dwordx4 {vr(G,4)}, v{vX}, {srd(S_WS)}, s{so} offen sc1")
for i in range(4):
    if i == 3:
        e(f"s_mov_b64 exec, {sp(sM1)}")
    e(f"s_waitcnt lgkmcnt({2*(3-i)})")
    granule(GA+4*i, vCn+i, sT0)
    e(f"s_add_u32 s{sT0}, s{sT0}, 8192")
e("s_mov_b64 exec, -1")
stamp("role stores issued", 5)
c("B lines (ranks 16..31) for cells with count > 16")
e(f"s_mul_i32 s{sT0}, s{sC}, {CHB}")
e(f"s_add_u32 s{sT0}, s{sT0}, {CELLB}")
for i in range(4):
    e(f"v_cmp_lt_u32 vcc, 16, v{vCn+i}")
    e("s_mov_b64 exec, vcc")
    e(f"s_cbranch_execz L_nob{i}")
    e(f"ds_read_b128 {vr(48,4)}, v{vXL} offset:{CHB+i*8192}")
    e("s_waitcnt lgkmcnt(0)")
    granule(48, vCn+i, sT0)
    e("s_nop 1")
    lab(f"L_nob{i}")
    e("s_mov_b64 exec, -1")
    e(f"s_add_u32 s{sT0}, s{sT0}, 8192")
arrive(RCA)
e("s_branch L_rfront")

lab("L_notbin")
def wprep_role(tag, fb):
    slice_lane(vSL, sCT)
    e(f"s_lshl_b32 s{sT2}, s{sCT}, 13")
    e(f"s_add_u32 s{sT2}, s{sT2}, {QT}")
    trpat(vTRP, vU0, vU1)
    e(f"v_add_u32 v{vTRP}, s{sT2}, v{vTRP}")
    e(f"v_lshlrev_b32 v{vST}, 4, v{vL}")
    for i in range(8):
        e(f"s_add_u32 m0, s{sT2}, {i*1024}")
        e(f"s_mov_b32 s{sT1}, {32768 + i*4096}")
        e(f"buffer_load_dwordx4 v{vSL}, {srd(S_WH)}, s{sT1} offen lds")
    e(f"s_lshl_b32 s{sC}, s{sCT}, 13")
    e(f"s_add_u32 s{sC}, s{sC}, {WH2F}")
    e("s_waitcnt vmcnt(0)")
    for s_ in range(8):
        e(f"ds_read_b64_tr_b16 {vr(AF+4*s_,2)}, v{vTRP} offset:{s_*1024}")
        e(f"ds_read_b64_tr_b16 {vr(AF+4*s_+2,2)}, v{vTRP} offset:{s_*1024+256}")
    for s_ in range(8):
        if s_ == 4:
            e(f"s_add_u32 s{sC}, s{sC}, 4096")
        e(f"s_waitcnt lgkmcnt({2*(7-s_)})")
        e(f"buffer_store_dwordx4 {vr(AF+4*s_,4)}, v{vST}, {srd(S_WS)}, s{sC} offen offset:{(s_%4)*1024} sc1")
e("s_waitcnt lgkmcnt(0)")
stamp("kernarg", 1)
kernarg_copy()
arrive(RISS)
c("workgroups WPR..WPR+3: slice ct = wg - WPR of WH2 ; wave w converts k-step w")
e(f"s_sub_u32 s{sC}, s2, {WPR}")
e(f"s_cmp_ge_u32 s{sC}, 4")
e("s_cbranch_scc1 L_norole")
slice_lane(vSL, sC)
trpat(vTRP, vU0, vU1)
e(f"s_lshl_b32 s{sT2}, s{sW}, 10")
e(f"s_add_u32 s{sT2}, s{sT2}, {QT}")
e(f"v_add_u32 v{vTRP}, s{sT2}, v{vTRP}")
e(f"v_lshlrev_b32 v{vST}, 4, v{vL}")
e(f"s_lshl_b32 s{sT1}, s{sW}, 12")
e(f"s_add_u32 s{sT1}, s{sT1}, 32768")
e(f"s_mov_b32 m0, s{sT2}")
e(f"s_lshl_b32 s{sT3}, s{sC}, 13")
e(f"buffer_load_dwordx4 v{vSL}, {srd(S_WH)}, s{sT1} offen lds")
e(f"s_lshl_b32 s{sT0}, s{sW}, 10")
e(f"s_add_u32 s{sT3}, s{sT3}, s{sT0}")
e(f"s_add_u32 s{sT3}, s{sT3}, {WH2F}")
e("s_waitcnt vmcnt(0)")
e(f"ds_read_b64_tr_b16 {vr(AF,2)}, v{vTRP}")
e(f"ds_read_b64_tr_b16 {vr(AF+2,2)}, v{vTRP} offset:256")
e("s_waitcnt lgkmcnt(0)")
e(f"buffer_store_dwordx4 {vr(AF,4)}, v{vST}, {srd(S_WS)}, s{sT3} offen sc1")
e(f"s_mov_b32 s{sRL}, 8")
e(f"s_lshl_b32 s{sX1}, s{sC}, 2")
e(f"s_add_u32 s{sX1}, s{sX1}, {FLG + NG*4}")
e(f"s_mov_b32 s{sM0}, 0x{FM1 & 0xffffffff:x}")
e(f"s_mov_b32 s{sM0+1}, 0x{FM1 >> 32:x}")
e(f"s_cmp_eq_u32 s{sC}, 3")
e("s_cbranch_scc0 L_wp_nopad")
c("the last one also fills the three padding flags")
e(f"s_mov_b32 s{sM0}, 0x{FM4 & 0xffffffff:x}")
e(f"s_mov_b32 s{sM0+1}, 0x{FM4 >> 32:x}")
lab("L_wp_nopad")
lab("L_norole")
arrive(RCA)
lab("L_rfront")
c("R waves after the role: H1 (quad 0: nodes 0..31, quad 1: nodes 32..39); WH1 slices staged in QT (ct*8192)")
WF = 16
D1 = 96
vR2 = 114
def rowreg(s_): return (ACC + 4*s_) if s_ < 4 else (QF + 4*(s_-4))
slice_lane(vT[2], sCT)
e(f"s_lshl_b32 s{sT2}, s{sCT}, 13")
e(f"s_add_u32 s{sT2}, s{sT2}, {QT}")
e(f"s_lshl_b32 s{sT3}, s{sRQ}, 12")
e(f"s_add_u32 s{sT3}, s{sT3}, s{sT2}          ; + half*4096")
e(f"s_lshl_b32 s{sX0}, s{sRQ}, 14")
wait_cnt(RCA, 8, dst=sX2)
for i in range(4):
    e(f"s_add_u32 m0, s{sT3}, {i*1024}")
    e(f"s_add_u32 s{sT1}, s{sX0}, {i*4096}")
    e(f"buffer_load_dwordx4 v{vT[2]}, {srd(S_WH)}, s{sT1} offen lds")
stamp("h1 dma", 7)
c("signal: the last of the role's waves writes the flag(s) once all stores are complete")
e(f"s_mov_b32 s{sC}, 0")
e(f"s_cmp_eq_u32 s{sRL}, 0")
e("s_cbranch_scc1 L_nosig")
e("s_waitcnt vmcnt(4)")
e(f"v_mov_b32 v{vU0}, {GCNT}")
e(f"v_mov_b32 v{vU1}, 1")
e("s_mov_b64 exec, 1")
e(f"ds_add_rtn_u32 v{vRA}, v{vU0}, v{vU1}")
e("s_waitcnt lgkmcnt(0)")
e("s_mov_b64 exec, -1")
e(f"v_readfirstlane_b32 s{sT0}, v{vRA}")
e(f"s_xor_b32 s{sT1}, s{sTW}, {FLC}")
e(f"v_mov_b32 v{vU1}, s{sT1}")
e(f"v_lshrrev_b32 v{vU0}, 2, v{vL}")
e(f"v_mul_u32_u24 v{vU0}, {FSTR}, v{vU0}")
e(f"v_and_b32 v{vRA}, 3, v{vL}")
e(f"v_lshl_add_u32 v{vU0}, v{vRA}, 2, v{vU0}")
e(f"s_add_u32 s{sT0}, s{sT0}, 1")
e(f"s_cmp_eq_u32 s{sT0}, s{sRL}")
e(f"s_cbranch_scc0 L_nosig")
e(f"s_mov_b64 exec, {sp(sM0)}")
e(f"buffer_store_dword v{vU1}, v{vU0}, {srd(S_WS)}, s{sX1} offen sc1")
e("s_mov_b64 exec, -1")
e(f"s_mov_b32 s{sC}, 1")
lab("L_nosig")
stamp("role signalled", 6)
if not NOPRIO: e("s_setprio 0")
e(f"s_mov_b32 s{sX0}, s{sT2}")
lane_consts()
trpat(vT[6], vT[0], vT[1])
e(f"v_add_u32 v{vT[6]}, s{sX0}, v{vT[6]}")
e(f"v_lshrrev_b32 v{vT[3]}, 5, v{vL}           ; hi")
e(f"v_and_b32 v{vT[4]}, 31, v{vL}")
e(f"s_lshl_b32 s{sT0}, s{sRQ}, 5")
e(f"v_add_u32 v{vT[4]}, s{sT0}, v{vT[4]}")
e(f"v_min_u32 v{vT[4]}, 39, v{vT[4]}")
row_addr(vT[1], vT[4], vT[3], vT[2])
c("DMA landed (the flag store, if this wave issued it, may stay in flight)")
e(f"s_cmp_eq_u32 s{sC}, 0")
e("s_cbranch_scc1 L_h1w0")
e(f"s_waitcnt vmcnt(1)")
e("s_branch L_h1w1")
lab("L_h1w0")
e("s_waitcnt vmcnt(0)")
lab("L_h1w1")
arrive(RCB)
wait_cnt([FCNT, FCC, FCNT2][H1W], 8, dst=sX2)
for s_ in range(8):
    e(f"v_xor_b32 v{vT[2]}, {s_<<5}, v{vT[1]}")
    e(f"ds_read_b128 {vr(rowreg(s_),4)}, v{vT[2]}")
wait_cnt(RCB, 8, dst=sX2)
for s_ in range(8):
    e(f"ds_read_b64_tr_b16 {vr(WF+4*s_,2)}, v{vT[6]} offset:{s_*1024}")
    e(f"ds_read_b64_tr_b16 {vr(WF+4*s_+2,2)}, v{vT[6]} offset:{s_*1024+256}")
e(f"s_mov_b32 s{sK2}, 0x{NLOG2E:08x}")
e(f"s_cmp_eq_u32 s{sRQ}, 0")
e("s_cbranch_scc0 L_h1b")
for s_ in range(8):
    e(f"s_waitcnt lgkmcnt({2*(7-s_)})")
    mfma(FACC, WF+4*s_, rowreg(s_), "0" if s_ == 0 else vr(FACC,16))
e("s_nop 7")
e("s_nop 3")
for r in range(16):
    e(f"v_mul_f32 v{FACC+r}, s{sK2}, v{FACC+r}")
e("s_branch L_h1d")
lab("L_h1b")
for s_ in range(8):
    e(f"s_waitcnt lgkmcnt({2*(7-s_)})")
    mfma(D1, rowreg(s_), WF+4*s_, "0" if s_ == 0 else vr(D1,16))
e("s_nop 7")
e("s_nop 3")
for r in range(4):
    e(f"v_mul_f32 v{FB+r}, s{sK2}, v{D1+r}")
lab("L_h1d")
if PREF: arrive(RH1)
stamp("h1 done", 8)
e("s_branch L_common")

lab("L_front")
QA, QB, QC = 0, 1, 2
KB = 124
PWR = 116
fw = sX2
e(f"s_sub_u32 s{fw}, s{sW}, 8")
e(f"v_lshlrev_b32 v{vT[0]}, 4, v{tid}")
c("own rows dma: instr idx u covers rows 4u..4u+3 ; lane: row = 4u + (l>>4); chunk = (l&15) ^ (row&15)")
e(f"v_lshrrev_b32 v{vT[4]}, 4, v{vL}")
e(f"v_and_b32 v{vT[1]}, 15, v{vL}")
e(f"v_xor_b32 v{vT[1]}, v{vT[1]}, v{vT[4]}")
e(f"s_lshl_b32 s{sT1}, s{sCT}, 2")
e(f"v_xor_b32 v{vT[1]}, s{sT1}, v{vT[1]}")
e(f"v_lshlrev_b32 v{vT[1]}, 4, v{vT[1]}")
e(f"v_lshl_add_u32 v{vT[1]}, v{vT[4]}, 8, v{vT[1]}")
slice_lane(vT[2], sCT)
e(f"s_lshl_b32 s{sT2}, s{sCT}, 13")
e(f"s_mul_i32 s{sT0}, s2, {40*256}")
e(f"s_lshl_b32 s{sT1}, s{fw}, 10")
e(f"s_add_u32 s{sT0}, s{sT0}, s{sT1}")
e(f"v_mul_u32_u24 v{vT[3]}, 6, v{vL}")
e(f"v_and_b32 v{vT[5]}, 31, v{vL}")
e(f"s_lshl_b32 s{sT3}, s{sCT}, 5")
e(f"v_add_u32 v{vT[5]}, s{sT3}, v{vT[5]}")
e(f"v_lshlrev_b32 v{vT[5]}, 1, v{vT[5]}           ; (32ct + n)*2")
e("s_waitcnt lgkmcnt(0)")
stamp("kernarg", 1)
kernarg_copy()
if FDEL: e(f"s_sleep {FDEL}")
e(f"s_add_u32 m0, s{sT1}, {OWN}")
e("s_nop 0")
e(f"buffer_load_dwordx4 v{vT[1]}, {srd(S_H)}, s{sT0} offen lds")
e(f"s_cmp_ge_u32 s{fw}, 2")
e("s_cbranch_scc1 L_f_no2")
e(f"s_add_u32 m0, s{sT1}, {OWN+8192}")
e(f"s_add_u32 s{sT0}, s{sT0}, 8192")
e(f"buffer_load_dwordx4 v{vT[1]}, {srd(S_H)}, s{sT0} offen lds")
lab("L_f_no2")
c("wave 10: own pos (lane l<40 loads x,y,z u16)")
e(f"s_cmp_eq_u32 s{fw}, 2")
e("s_cbranch_scc0 L_f_nopos")
e(f"s_mul_i32 s{sT0}, s2, 240")
e(f"v_cmp_gt_u32 vcc, 40, v{vL}")
e("s_mov_b64 exec, vcc")
for k in range(3):
    e(f"buffer_load_ushort v{PWR+k}, v{vT[3]}, {srd(S_POS)}, s{sT0} offen offset:{2*k}")
e("s_mov_b64 exec, -1")
lab("L_f_nopos")
if PPF:
    c("L2 warm-up of pos: segment (wg>>3)&7 of 7680 B, 960 B per F wave (result unused)")
    e(f"s_lshr_b32 s{sT1}, s2, 3")
    e(f"s_and_b32 s{sT1}, s{sT1}, 7")
    e(f"s_lshl_b32 s{sT1}, s{sT1}, 3")
    e(f"s_add_u32 s{sT1}, s{sT1}, s{fw}")
    e(f"s_mul_i32 s{sT1}, s{sT1}, 960")
    e(f"v_lshlrev_b32 v{vT[7]}, 4, v{vL}")
    e(f"buffer_load_dwordx4 {vr(108,4)}, v{vT[7]}, {srd(S_POS)}, s{sT1} offen")
c("K1B raw: w_e rows 256, 257")
e(f"s_mov_b32 s{sT1}, 65536")
e(f"buffer_load_ushort v{KB}, v{vT[5]}, {srd(S_WE)}, s{sT1} offen")
e(f"buffer_load_ushort v{KB+1}, v{vT[5]}, {srd(S_WE)}, s{sT1} offen offset:256")
e(f"s_add_u32 s{sX1}, s{sT2}, {REC}")
e(f"s_lshl_b32 s{sT3}, s{sRQ}, 12")
e(f"s_add_u32 s{sT3}, s{sT3}, s{sX1}          ; + half*4096")
e(f"s_lshl_b32 s{sX0}, s{sRQ}, 14")
stamp("role loads issued", 2)
c("zero REC[32768, 65536) (the first 32 KB stage W1 and are zeroed after use)")
for i in range(4):
    e(f"ds_write_b128 v{vT[0]}, {vr(Z,4)} offset:{32768 - 8192 + i*8192}")
c("let the role loads go first")
if YM == 1:
    e(f"s_cmp_lt_u32 s2, {BIN0}")
    e("s_cbranch_scc1 L_f_noriss")
wait_cnt(RISS, 8)
if YM == 1: lab("L_f_noriss")
stamp("B1", 4)
c("W1 slice ct (w_e rows 0..127): this wave loads k-steps 4*half .. 4*half+3")
for i in range(4):
    e(f"s_add_u32 m0, s{sT3}, {i*1024}")
    e(f"s_add_u32 s{sT1}, s{sX0}, {i*4096}")
    e(f"buffer_load_dwordx4 v{vT[2]}, {srd(S_WE)}, s{sT1} offen lds")
lane_consts()
e("s_waitcnt vmcnt(4)")
arrive(FCNT)
c("wave 10: PTF (f32 x4 per node)")
e(f"s_cmp_eq_u32 s{fw}, 2")
e("s_cbranch_scc0 L_noptf")
for k in range(3): e(f"v_lshlrev_b32 v{PWR+k}, 16, v{PWR+k}")
e(f"v_mov_b32 v{PWR+3}, 0")
e(f"v_lshlrev_b32 v{vT[0]}, 4, v{vL}")
e(f"v_add_u32 v{vT[0]}, {PTF}, v{vT[0]}")
e(f"v_cmp_gt_u32 vcc, 40, v{vL}")
e("s_mov_b64 exec, vcc")
e(f"ds_write_b128 v{vT[0]}, {vr(PWR,4)}")
e("s_mov_b64 exec, -1")
lab("L_noptf")
stamp("role loads landed", 3)
trpat(vT[6], vT[0], vT[1])
e(f"v_add_u32 v{vT[6]}, s{sX1}, v{vT[6]}")
c("P' task: rows m: slot = m&7, g' = m>>3 ; node = 5*(4B + g') + max(slot-3,0), B = half")
e(f"v_lshrrev_b32 v{vT[3]}, 5, v{vL}           ; hi")
e(f"v_and_b32 v{vT[0]}, 7, v{vL}")
e(f"v_subrev_u32 v{vT[0]}, 3, v{vT[0]}")
e(f"v_max_i32 v{vT[0]}, 0, v{vT[0]}")
e(f"v_bfe_u32 v{vT[1]}, v{vL}, 3, 2")
e(f"v_mad_u32_u24 v{vT[0]}, v{vT[1]}, 5, v{vT[0]}        ; node (B=0)")
e(f"s_mul_i32 s{sT0}, s{sRQ}, 20")
e(f"v_add_u32 v{vT[0]}, s{sT0}, v{vT[0]}")
row_addr(vT[1], vT[0], vT[3], vT[2])
c("K1B: (wd, we) scaled, hi and lo parts")
e(f"s_mov_b32 s{sT0}, 0x{NLOG2E:08x}")
e(f"s_mov_b32 s{sT1}, 0xffff0000")
k0, k1, k2, k3 = 116, 117, 118, 119
e(f"v_lshlrev_b32 v{k0}, 16, v{KB}")
e(f"v_lshlrev_b32 v{k1}, 16, v{KB+1}")
e(f"v_mul_f32 v{k0}, s{sT0}, v{k0}")
e(f"v_mul_f32 v{k1}, s{sT0}, v{k1}")
e(f"v_cvt_pk_bf16_f32 v{KB}, v{k0}, v{k1}")
e(f"v_lshlrev_b32 v{k2}, 16, v{KB}")
e(f"v_and_b32 v{k3}, s{sT1}, v{KB}")
e(f"v_sub_f32 v{k0}, v{k0}, v{k2}")
e(f"v_sub_f32 v{k1}, v{k1}, v{k3}")
e(f"v_cvt_pk_bf16_f32 v{KB+1}, v{k0}, v{k1}")
c("P' write: BXP + g*2048 + (32ct + n)*16 + hi*8 ; hi=0 lanes: slots 0,1 = (wd,we) hi ; slot 2 = wd lo ; slot 3 = P'[j=0]")
vPW, vPM = 126, 127 if not TIMING else 115
e(f"v_and_b32 v{vPW}, 31, v{vL}")
e(f"v_lshlrev_b32 v{vPW}, 4, v{vPW}")
e(f"v_lshl_add_u32 v{vPW}, v{vT[3]}, 3, v{vPW}")
e(f"s_lshl_b32 s{sT0}, s{sCT}, 9")
e(f"s_lshl_b32 s{sT1}, s{sRQ}, 13")
e(f"s_add_u32 s{sT0}, s{sT0}, s{sT1}")
e(f"s_add_u32 s{sT0}, s{sT0}, {BXP}")
e(f"v_add_u32 v{vPW}, s{sT0}, v{vPW}")
e(f"v_cmp_gt_u32 vcc, 32, v{vL}")
e(f"v_mov_b32 v{vPM}, 0xffff0000")
e(f"v_cndmask_b32 v{vPM}, -1, v{vPM}, vcc         ; mask M")
e(f"v_and_b32 v{KB+1}, 0xffff, v{KB+1}")
e(f"v_cndmask_b32 v{KB+1}, 0, v{KB+1}, vcc")
e(f"s_mov_b32 s{sK2}, 0x{NLOG2E + ((7 << 23) if F16 else 0):08x}")
for i in range(4): e(f"v_mov_b32 v{116+i}, 0")
e("s_waitcnt vmcnt(0)")
stamp("slices landed", 6)
arrive(FCB)
c("---- granule (16 B, two records) per lane: c = 8fw + (l>>3), q = l&7 : c*32000 + q*16 (+ b*128)")
e(f"s_lshl_b32 s{sT0}, s{fw}, 3")
e(f"v_lshrrev_b32 v{vT[4]}, 3, v{vL}")
e(f"v_add_u32 v{vT[4]}, s{sT0}, v{vT[4]}          ; c")
e(f"v_mul_u32_u24 v{vGA}, {CHB}, v{vT[4]}")
e(f"v_and_b32 v{vT[5]}, 7, v{vL}")
e(f"v_lshl_add_u32 v{vGA}, v{vT[5]}, 4, v{vGA}")
e(f"v_lshlrev_b32 v{vT[0]}, 4, v{vL}")
e(f"s_lshl_b32 s{sT0}, s{fw}, 12")
e(f"v_add_u32 v{vT[0]}, s{sT0}, v{vT[0]}")
e(f"v_cmp_gt_u32 {sp(sPA)}, {NCH}, v{vT[4]}")
e(f"s_lshl_b32 s{sT2}, s2, 7")
e(f"s_add_u32 s{sT3}, s{sT2}, {CELLB}")
e(f"s_mov_b64 {sp(sPB)}, {sp(sPA)}")
e(f"s_mov_b64 {sp(sEX)}, {sp(sPA)}")
e(f"s_sub_u32 s{sLOW}, s{sTW}, {DELTA}")
if FORCE == "ovf":
    e(f"s_add_u32 s{sLOW}, s{sLOW}, 0x40000000")
e(f"s_mov_b32 s{sK3}, {WIN}")
e(f"s_mov_b32 s{sCNT}, 0")
e(f"s_mov_b64 {sp(sM2)}, {sp(sPB)}")
wait_cnt(FCB, 8)
stamp("fcb", 45)
for s_ in range(8):
    e(f"ds_read_b64_tr_b16 {vr(WF+4*s_,2)}, v{vT[6]} offset:{s_*1024}")
    e(f"ds_read_b64_tr_b16 {vr(WF+4*s_+2,2)}, v{vT[6]} offset:{s_*1024+256}")
_pi = [0]
def poll_issue():
    i = _pi[0]; _pi[0] += 1
    e(f"s_cmp_eq_u64 {sp(sPA)}, 0")
    e(f"s_cbranch_scc1 L_rp_noa{i}")
    e(f"s_mov_b64 exec, {sp(sPA)}")
    e(f"buffer_load_dwordx4 {vr(RA,4)}, v{vGA}, {srd(S_WS)}, s{sT2} offen sc1")
    lab(f"L_rp_noa{i}")
    e(f"s_cmp_eq_u64 {sp(sM2)}, 0")
    e(f"s_cbranch_scc1 L_rp_nob{i}")
    e(f"s_mov_b64 exec, {sp(sM2)}")
    e(f"buffer_load_dwordx4 {vr(RB,4)}, v{vGA}, {srd(S_WS)}, s{sT3} offen sc1")
    lab(f"L_rp_nob{i}")
    e("s_mov_b64 exec, -1")

vFRD = 126
def node_addr2(dst, node, cmp_, t0, t1, vhi):
    e(f"v_mul_u32_u24 v{t1}, 52, v{node}")
    e(f"v_lshrrev_b32 v{t1}, 8, v{t1}             ; g")
    e(f"v_mul_u32_u24 v{t0}, 5, v{t1}")
    e(f"v_sub_u32 v{t0}, v{node}, v{t0}          ; j")
    if cmp_ is not None:
        e(f"v_lshl_add_u32 v{t0}, v{cmp_}, 3, v{t0}")
    e(f"v_add_u32 v{t0}, 3, v{t0}                 ; f")
    e(f"v_bfe_u32 v{dst}, v{t0}, 2, 2")
    e(f"v_xor_b32 v{dst}, v{dst}, v{vhi}")
    e(f"v_lshlrev_b32 v{t0}, 6, v{t0}")
    e(f"v_lshl_add_u32 v{t0}, v{t1}, 13, v{t0}")
    e(f"v_and_b32 v{t1}, 3, v{t1}")
    e(f"v_xor_b32 v{dst}, v{dst}, v{t1}")
    e(f"v_lshl_add_u32 v{dst}, v{dst}, 4, v{t0}")
    e(f"v_add_u32 v{dst}, {QT}, v{dst}")
def rolec_node(vn, vnode, vcmp, t0, t1):
    c("role C: n' = min(n,29); idx = 30ct + n' ; G = idx/15 ; r = idx%15 ; c = r/5 ; j = r%5 ; node = 5G + j ; comp = c+1")
    e(f"v_min_u32 v{t0}, 29, v{vn}")
    e(f"v_cmp_lt_u32 vcc, 14, v{t0}")
    e(f"v_cndmask_b32 v{t1}, 0, 1, vcc               ; G&1")
    e(f"v_mul_u32_u24 v{vnode}, 15, v{t1}")
    e(f"v_sub_u32 v{t0}, v{t0}, v{vnode}          ; r")
    e(f"v_mul_u32_u24 v{vcmp}, 52, v{t0}")
    e(f"v_lshrrev_b32 v{vcmp}, 8, v{vcmp}              ; c")
    e(f"v_mul_u32_u24 v{vnode}, 5, v{vcmp}")
    e(f"v_sub_u32 v{t0}, v{t0}, v{vnode}          ; j")
    e(f"s_lshl_b32 s{sT0}, s{sCT}, 1")
    e(f"v_add_u32 v{t1}, s{sT0}, v{t1}            ; G")
    e(f"v_mad_u32_u24 v{vnode}, v{t1}, 5, v{t0}")
    e(f"v_add_u32 v{vcmp}, 1, v{vcmp}")
def final_addr(rwaves):
    n, hi, nd, cm, t0, t1 = vT[0], vT[1], vT[2], vT[3], vT[4], vT[5]
    e(f"v_and_b32 v{n}, 31, v{vL}")
    e(f"v_lshrrev_b32 v{hi}, 5, v{vL}")
    if rwaves:
        c("role A: node n ; role B: node 32 + (n&7)")
        e(f"v_and_b32 v{nd}, 7, v{n}")
        e(f"v_add_u32 v{nd}, 32, v{nd}")
        e(f"s_cmp_eq_u32 s{sQ}, 0")
        e(f"s_cselect_b64 vcc, -1, 0")
        e(f"v_cndmask_b32 v{nd}, v{nd}, v{n}, vcc")
        node_addr2(vFRD, nd, None, t0, t1, hi)
    else:
        rolec_node(n, nd, cm, t0, t1)
        node_addr2(vFRD, nd, cm, t0, t1, hi)
vFOFF, vFRES = 124, 125
def final_addr_res(tag):
    n, hi, t0, t1 = vT[0], vT[1], vT[2], vT[3]
    e(f"v_and_b32 v{n}, 31, v{vL}")
    e(f"v_lshrrev_b32 v{hi}, 5, v{vL}")
    e(f"s_mul_i32 s{sT1}, s2, 40")
    e(f"s_cmp_eq_u32 s{sQ}, 0")
    e(f"s_cbranch_scc0 L_far_b{tag}")
    c("role A residual: h[node n][32ct + 8bb + 4hi..+3]: OWN + n*256 + (((ct*4+bb) ^ (n&15))<<4) + hi*8")
    e(f"v_and_b32 v{t0}, 15, v{n}")
    e(f"s_lshl_b32 s{sT0}, s{sCT}, 2")
    e(f"v_xor_b32 v{t0}, s{sT0}, v{t0}")
    e(f"v_lshlrev_b32 v{t0}, 4, v{t0}")
    e(f"v_lshl_add_u32 v{t0}, v{n}, 8, v{t0}")
    e(f"v_lshl_add_u32 v{t0}, v{hi}, 3, v{t0}")
    e(f"v_add_u32 v{vFRES}, {OWN}, v{t0}")
    e(f"v_add_u32 v{vFOFF}, s{sT1}, v{n}")
    e(f"v_lshlrev_b32 v{vFOFF}, 8, v{vFOFF}")
    e(f"v_lshl_add_u32 v{vFOFF}, v{hi}, 3, v{vFOFF}")
    e(f"s_lshl_b32 s{sT0}, s{sCT}, 6")
    e(f"v_add_u32 v{vFOFF}, s{sT0}, v{vFOFF}")
    e(f"s_branch L_far_d{tag}")
    lab(f"L_far_b{tag}")
    c("role B residual: rows 32+4hi+i, col 32ct+n: OWN + row*256 + (((ct*4 + (n>>3)) ^ (row&15))<<4) + (n&7)*2")
    e(f"v_lshrrev_b32 v{t0}, 3, v{n}")
    e(f"s_lshl_b32 s{sT0}, s{sCT}, 2")
    e(f"v_add_u32 v{t0}, s{sT0}, v{t0}          ; chunk")
    e(f"v_lshlrev_b32 v{t1}, 2, v{hi}             ; 4hi")
    e(f"v_xor_b32 v{t0}, v{t0}, v{t1}")
    e(f"v_lshlrev_b32 v{t0}, 4, v{t0}")
    e(f"v_lshl_add_u32 v{t0}, v{t1}, 8, v{t0}   ; + 4hi*256")
    e(f"v_and_b32 v{hi}, 7, v{n}")
    e(f"v_lshl_add_u32 v{t0}, v{hi}, 1, v{t0}")
    e(f"v_add_u32 v{vFRES}, {OWN + 32*256}, v{t0}")
    e(f"s_add_u32 s{sT0}, s{sT1}, 32")
    e(f"v_add_u32 v{vFOFF}, s{sT0}, v{t1}")
    e(f"v_lshlrev_b32 v{vFOFF}, 8, v{vFOFF}")
    e(f"v_lshl_add_u32 v{vFOFF}, v{n}, 1, v{vFOFF}")
    e(f"s_lshl_b32 s{sT0}, s{sCT}, 6")
    e(f"v_add_u32 v{vFOFF}, s{sT0}, v{vFOFF}")
    lab(f"L_far_d{tag}")
def pwrite(r0, g):
    for i in range(4):
        e(f"v_mul_f32 v{r0+i}, s{sK2}, v{r0+i}")
    e(f"v_cvt_pk_bf16_f32 v{r0}, v{r0}, v{r0+1}")
    e(f"v_cvt_pk_bf16_f32 v{r0+1}, v{r0+2}, v{r0+3}")
    e(f"v_cndmask_b32 v{r0}, v{r0}, v{KB}, vcc")
    e(f"v_and_or_b32 v{r0+1}, v{r0+1}, v{vPM}, v{KB+1}")
    e(f"ds_write_b64 v{vPW}, {vr(r0,2)} offset:{g*2048}")
def p_compute(first):
    for s_ in range(8):
        e(f"v_xor_b32 v{vT[2]}, {s_<<5}, v{vT[1]}")
        e(f"ds_read_b128 {vr(rowreg(s_),4)}, v{vT[2]}")
    for s_ in range(8):
        e(f"s_waitcnt lgkmcnt({7-s_})")
        mfma(FACC, rowreg(s_), WF+4*s_, "0" if s_ == 0 else vr(FACC,16))
    stamp("mfma issued", 46)
    e(f"v_cmp_gt_u32 vcc, 32, v{vL}")
    e("s_nop 7")
    e("s_nop 3")
    for g in range(4):
        pwrite(FACC+4*g, g)
e("s_waitcnt lgkmcnt(0)")
FR = (112, 113)
arrive(FCC, FR)
if not PLATE: p_compute(True)
c("all eight waves hold their fragments: zero the staging area (4 KB per wave)")
wait_cnt(FCC, 8, regs=FR)
for i in range(4):
    e(f"ds_write_b128 v{vT[0]}, {vr(116,4)} offset:{REC + i*1024}")
e("s_waitcnt lgkmcnt(0)")
arrive(FCNT2, FR)
stamp("front done", 5)
if not NOPRIO: e(f"s_setprio {FPRIO}")
if PLATE == 2: p_compute(True)
if PSL: e(f"s_sleep {PSL}")
poll_issue()
stamp("B3", 7)
if PLATE == 1: p_compute(True)
if HOIST:
    assert PLATE == 1
    id_consts(vT[0], vT[1])
    seg_zero()
if FINR: final_addr(False)
e("s_branch L_rpoll")

def dma_issue(va, vb, sbuf):
    if not IDX:
        e(f"v_lshl_add_u32 v{va}, v{va}, 8, v{vQD}")
        e(f"v_lshl_add_u32 v{vb}, v{vb}, 8, v{vQD}")
    e(f"s_mov_b32 m0, s{sbuf}")
    e(f"s_nop 0")
    if IDX: e(f"buffer_load_dwordx4 {vr(va,2)}, {srd(S_Q)}, 0 idxen offen{QSC} lds")
    else:   e(f"buffer_load_dwordx4 v{va}, {srd(S_Q)}, 0 offen{QSC} lds")
    e(f"s_add_u32 m0, s{sbuf}, 1024")
    e(f"s_nop 0")
    if IDX: e(f"buffer_load_dwordx4 {vr(vb,2)}, {srd(S_Q)}, 0 idxen offen{QSC} lds")
    else:   e(f"buffer_load_dwordx4 v{vb}, {srd(S_Q)}, 0 offen{QSC} lds")
vLKr, vODr, vTRSr, vTRSr2, vLKr2 = 92, 93, 94, 95, 14
PA, PB = 10, 12
LK = [PA, PB, 80, 82]
def first_gathers(extra=None, part=3):
    if not part & 1:
        dma_issue(LK[0], LK[1], sB0)
        if PREFN == 2: dma_issue(LK[2], LK[3], sB1)
        return
    e(f"v_xor_b32 v{vLKr2}, 32, v{vLK}")
    e(f"ds_read_u16 v{LK[0]}, v{vLK}")
    e(f"ds_read_u16 v{LK[1]}, v{vLKr2} offset:512")
    e(f"ds_read_u16 v{LK[2]}, v{vLK} offset:1024")
    e(f"ds_read_u16 v{LK[3]}, v{vLKr2} offset:1536")
    n = extra() if extra else 0
    if IDX:
        for k in range(4): e(f"v_mov_b32 v{LK[k]+1}, v{vQD}")
    if not part & 2:
        e("s_waitcnt lgkmcnt(0)")
        return
    e(f"s_waitcnt lgkmcnt({2+n})")
    dma_issue(LK[0], LK[1], sB0)
    e(f"s_waitcnt lgkmcnt({n})")
    dma_issue(LK[2], LK[3], sB1)
lab("L_common")
c("---- R waves: no records ; wave 7 waits for the Q / WH2F flags")
for m in MK: e(f"s_mov_b64 {sp(m)}, 0")
if HOIST:
    id_consts(vT[0], vT[1])
    seg_zero()
if FINR: final_addr(True)
if FINR == 2: final_addr_res("r")
vQP = vT[7]
def qpoll_issue():
    e("s_mov_b32 exec_lo, -1")
    e("s_mov_b32 exec_hi, 0x1ff")
    e(f"buffer_load_dwordx4 {vr(RA,4)}, v{vQP}, {srd(S_WS)}, s{sT2} offen sc1")
if PREF: wait_cnt(RH1, 8, regs=FR)
e(f"s_cmp_eq_u32 s{sW}, 7")
e(f"s_cbranch_scc0 {'L_rlk' if PREF else 'L_ba'}")
if QGATE: wait_cnt(RLAND, QGATE, regs=FR)
e(f"v_lshlrev_b32 v{vQP}, 4, v{vL}")
e(f"s_mov_b32 s{sCNT}, 0")
e(f"s_and_b32 s{sT2}, s2, {FCOPY-1}")
e(f"s_mul_i32 s{sT2}, s{sT2}, {FSTR}")
e(f"s_add_u32 s{sT2}, s{sT2}, {FLG}")
e(f"s_sub_u32 s{sLOW}, s{sTW}, {DELTA}")
if FORCE == "fb":
    e(f"s_add_u32 s{sLOW}, s{sLOW}, 0x40000000")
e(f"s_mov_b32 s{sK3}, {WIN}")
if PREF:
    qpoll_issue()
    e("s_mov_b64 exec, -1")
    lab("L_rlk")
    c("all records have their source node in REC: look up the source nodes of the first two tiles")
    wait_cnt(RPL, 8, regs=FR, slp=RPS)
    first_gathers(part=1)
    e(f"s_cmp_eq_u32 s{sW}, 7")
    e("s_cbranch_scc0 L_rwait")
    e("s_mov_b32 exec_lo, -1")
    e("s_mov_b32 exec_hi, 0x1ff")
    e("s_branch L_qpoll1")
lab("L_qpoll")
qpoll_issue()
lab("L_qpoll1")
e(f"s_add_u32 s{sCNT}, s{sCNT}, 1")
e("s_waitcnt vmcnt(0)")
stamp_dyn(19, sCNT)
for k in range(4):
    e(f"v_xor_b32 v{RA+k}, {FLC}, v{RA+k}")
for k in range(4):
    e(f"v_subrev_u32 v{RA+k}, s{sLOW}, v{RA+k}")
e(f"v_max_u32 v{RA}, v{RA}, v{RA+1}")
e(f"v_max3_u32 v{RA}, v{RA}, v{RA+2}, v{RA+3}")
e(f"v_cmp_le_u32 vcc, s{sK3}, v{RA}")
e("s_cmp_eq_u64 vcc, 0")
e("s_cbranch_scc1 L_qp_ok")
e(f"s_sleep {QSL}")
e(f"s_cmp_lt_u32 s{sCNT}, {NPOLL}")
e("s_cbranch_scc1 L_qpoll")
e(f"v_mov_b32 v{vT[0]}, {OVF}")
e(f"v_mov_b32 v{vT[1]}, 2")
e(f"ds_or_b32 v{vT[0]}, v{vT[1]}")
lab("L_qp_ok")
e("s_mov_b64 exec, -1")
if PREF:
    arrive(QOKF, FR)
    e("s_branch L_rpre")
    lab("L_rwait")
    wait_cnt(QOKF, 1, regs=FR, slp=RWS)
    lab("L_rpre")
    c("gather the first two tiles now (all R waves hold their H1 fragments: the tile buffers are free)")
    first_gathers(part=2)
    e(f"s_mov_b32 s{sPREF}, 1")
e("s_branch L_ba")
_st[0] = 8
def gcheck(G, M, M2):
    e(f"v_bfe_u32 v{vT[2]}, v{G+3}, 3, 9")
    e(f"v_xor_b32 v{vT[2]}, {TAGC}, v{vT[2]}")
    e(f"v_lshrrev_b32 v{vT[0]}, 23, v{G}")
    e(f"v_lshrrev_b32 v{vT[1]}, 23, v{G+2}")
    e(f"v_subrev_u32 v{vT[3]}, s{sLOW}, v{G+3}")
    e(f"v_cmp_eq_u32 {M}, v{vT[0]}, v{vT[2]}")
    e(f"v_cmp_eq_u32 {M2}, v{vT[1]}, v{vT[2]}")
    e(f"s_and_b64 {M}, {M}, {M2}")
    e(f"v_cmp_gt_u32 {M2}, s{sK3}, v{vT[3]}")
    e(f"s_and_b64 {M}, {M}, {M2}")
e("s_branch L_rpoll")
lab("L_rpoll_again")
poll_issue()
lab("L_rpoll")
e(f"s_add_u32 s{sCNT}, s{sCNT}, 1")
e("s_waitcnt vmcnt(0)")
stamp_dyn(19, sCNT)
gcheck(RA, "vcc", sp(sM0))
e(f"s_andn2_b64 {sp(sPA)}, {sp(sPA)}, vcc")
gcheck(RB, sp(sM1), sp(sM0))
e(f"v_bfe_u32 v{vT[0]}, v{RA}, 22, 1")
e(f"s_andn2_b64 {sp(sPB)}, {sp(sPB)}, {sp(sM1)}")
e(f"v_cmp_ne_u32 vcc, 0, v{vT[0]}                ; more")
e(f"s_andn2_b64 vcc, vcc, {sp(sPA)}")
if BSPEC:
    e(f"s_or_b64 vcc, vcc, {sp(sPA)}")
e(f"s_and_b64 {sp(sM2)}, {sp(sPB)}, vcc")
e(f"s_or_b64 vcc, {sp(sPA)}, {sp(sM2)}")
e("s_cmp_eq_u64 vcc, 0")
e("s_cbranch_scc1 L_rp_ok")
e(f"s_sleep {RSL}")
e(f"s_cmp_lt_u32 s{sCNT}, {NPOLL}")
e("s_cbranch_scc1 L_rpoll_again")
c("timed out: take the slow path")
e(f"v_mov_b32 v{vT[0]}, {OVF}")
e(f"v_mov_b32 v{vT[1]}, 1")
e(f"ds_or_b32 v{vT[0]}, v{vT[1]}")
e(f"s_andn2_b64 {sp(sEX)}, {sp(sEX)}, vcc")
lab("L_rp_ok")
e("s_mov_b64 exec, -1")
arrive(RLAND, FR)
stamp("records landed")
c("masks: a,b = valid bits of granule A ; c,d = valid bits of granule B & more")
RCS = [RA, RA+2, RB, RB+2]
e(f"v_bfe_u32 v{vT[0]}, v{RA}, 20, 1")
e(f"v_bfe_u32 v{vT[1]}, v{RA+2}, 20, 1")
e(f"v_bfe_u32 v{vT[2]}, v{RB}, 20, 1")
e(f"v_bfe_u32 v{vT[3]}, v{RB+2}, 20, 1")
e(f"v_bfe_u32 v{vT[4]}, v{RA}, 22, 1")
e(f"v_bfe_u32 v{vT[5]}, v{RA}, 21, 2")
e(f"v_and_b32 v{vT[2]}, v{vT[2]}, v{vT[4]}")
e(f"v_and_b32 v{vT[3]}, v{vT[3]}, v{vT[4]}")
for k in range(4):
    e(f"v_cmp_ne_u32 {sp(MK[k])}, 0, v{vT[k]}")
e(f"v_cmp_eq_u32 {sp(sM2)}, 3, v{vT[5]}")
for k in range(4):
    e(f"s_and_b64 {sp(MK[k])}, {sp(MK[k])}, {sp(sEX)}")
e(f"s_and_b64 {sp(sM2)}, {sp(sM2)}, {sp(sEX)}")
e(f"v_mov_b32 v{vOne}, 1")
e(f"s_mov_b32 s{sT0}, {ALLOC}")
VS = [91, 92, 93, 94]
def s1_issue(k):
    e(f"v_and_b32 v{VS[k]}, 0x3fff, v{RCS[k]}")
    e(f"v_mul_u32_u24 v{vT[0]}, 6, v{VS[k]}")
    e(f"v_and_b32 v{vT[0]}, -4, v{vT[0]}")
    e(f"s_mov_b64 exec, {sp(MK[k])}")
    e(f"buffer_load_dwordx2 {vr(PS[k],2)}, v{vT[0]}, {srd(S_POS)}, 0 offen")
    e(f"v_bfe_u32 v{VJ[k]}, v{RCS[k]}, 14, 6          ; k")
    e(f"v_mul_u32_u24 v{VI[k]}, 52, v{VJ[k]}")
    e(f"v_lshrrev_b32 v{VI[k]}, 8, v{VI[k]}           ; g")
    e(f"v_lshl_add_u32 v{vT[1]}, v{VI[k]}, 2, s{sT0}")
    e(f"ds_add_rtn_u32 v{VR[k]}, v{vT[1]}, v{vOne}")
    e(f"v_mul_u32_u24 v{vT[1]}, 5, v{VI[k]}")
    e(f"v_sub_u32 v{VJ[k]}, v{VJ[k]}, v{vT[1]}        ; j")
    e("s_mov_b64 exec, -1")
    e(f"v_mul_u32_u24 v{VI[k]}, {GSTR}, v{VI[k]}")
c("REC must be zero before placement (all F waves have zeroed their staging)")
wait_cnt(FCNT2, 8, dst=sT1, regs=FR)
for k in range(4):
    e(f"s_cmp_eq_u64 {sp(MK[k])}, 0")
    e(f"s_cbranch_scc1 L_s1i{k}")
    s1_issue(k)
    lab(f"L_s1i{k}")
e(f"s_cmp_eq_u64 {sp(sM2)}, 0")
e("s_cbranch_scc1 L_s1_noovf")
e(f"v_mov_b32 v{vT[0]}, {OVF}")
e(f"ds_or_b32 v{vT[0]}, v{vOne}")
lab("L_s1_noovf")
def s1_place(vR, vI, vS, msk, tag, slow=False):
    e(f"v_cmp_gt_u32 vcc, {CAP}, v{vR}")
    e(f"v_lshl_add_u32 v{vI}, v{vR}, 6, v{vI}")
    e(f"v_bfe_u32 v{vR}, v{vR}, 2, 2")
    e(f"v_lshl_add_u32 v{vI}, v{vR}, 4, v{vI}")
    e(f"v_xor_b32 v{vR}, 16, v{vI}")
    e(f"s_andn2_b64 exec, {sp(msk)}, vcc")
    e(f"s_cbranch_execz L_s1_ok{tag}")
    if slow:
        e(f"v_mov_b32 v{qP}, 1")
        e(f"v_mov_b32 v{vT[0]}, {PEND}")
        e(f"ds_write_b32 v{vT[0]}, v{vOne}")
    else:
        e(f"v_mov_b32 v{vT[0]}, {OVF}")
        e(f"ds_or_b32 v{vT[0]}, v{vOne}")
    lab(f"L_s1_ok{tag}")
    e(f"s_and_b64 {sp(msk)}, {sp(msk)}, vcc")
    e(f"s_mov_b64 exec, {sp(msk)}")
    e(f"ds_write_b16 v{vR}, v{vS} offset:{REC}")
    e("s_mov_b64 exec, -1")
e("s_waitcnt lgkmcnt(0)")
for k in range(4):
    e(f"s_cmp_eq_u64 {sp(MK[k])}, 0")
    e(f"s_cbranch_scc1 L_s1p{k}")
    s1_place(VR[k], VI[k], VS[k], MK[k], "abcd"[k])
    lab(f"L_s1p{k}")
if PREF: arrive(RPL, FR)
lab("L_st2")
c("stage 2 (sparse, up to four records per lane)")
PD = [48, 52, 112, 116]
e(f"s_mov_b32 s{sT0}, {PTF}")
e(f"s_mov_b32 s{sK2}, 0xffff0000")
e(f"v_mov_b32 v{vT[6]}, {'0x3c00' if F16 else '0x3f80'}")
for k in range(4):
    e(f"s_cmp_eq_u64 {sp(MK[k])}, 0")
    e(f"s_cbranch_scc1 L_s2r{k}")
    e(f"v_bfe_u32 v{vT[5]}, v{RCS[k]}, 14, 6              ; k")
    e(f"v_min_u32 v{vT[5]}, 39, v{vT[5]}")
    e(f"v_lshl_add_u32 v{vT[5]}, v{vT[5]}, 4, s{sT0}")
    e(f"ds_read_b128 {vr(PD[k],4)}, v{vT[5]}")
    lab(f"L_s2r{k}")
e("s_waitcnt vmcnt(0) lgkmcnt(0)")
stamp("pos landed", 12)
def stage2_pass(rec, ea, hi_half, ps, pd, row, msk, tag, vj):
    X = [84, 85, 86, 87, 91, 92]
    e(f"s_cmp_eq_u64 {sp(msk)}, 0")
    e(f"s_cbranch_scc1 L_s2_done{tag}")
    e(f"s_mov_b64 exec, {sp(msk)}")
    e(f"v_and_b32 v{X[0]}, 1, v{rec}")
    e(f"v_lshlrev_b32 v{X[0]}, 4, v{X[0]}        ; shift")
    e(f"v_alignbit_b32 v{X[1]}, v{ps+1}, v{ps}, v{X[0]}     ; x | y<<16")
    e(f"v_lshrrev_b32 v{X[2]}, v{X[0]}, v{ps+1}              ; z (low 16)")
    e(f"v_lshlrev_b32 v{ps}, 16, v{X[1]}")
    e(f"v_and_b32 v{ps+1}, s{sK2}, v{X[1]}")
    e(f"v_lshlrev_b32 v{X[2]}, 16, v{X[2]}")
    e(f"v_sub_f32 v{pd}, v{pd}, v{ps}")
    e(f"v_sub_f32 v{pd+1}, v{pd+1}, v{ps+1}")
    e(f"v_sub_f32 v{pd+2}, v{pd+2}, v{X[2]}")
    e(f"v_cvt_pk_bf16_f32 v{X[0]}, v{pd}, v{pd+1}")
    e(f"v_cvt_pk_bf16_f32 v{X[1]}, v{pd+2}, v{pd+2}     ; dz")
    e(f"v_lshlrev_b32 v{pd}, 16, v{X[0]}")
    e(f"v_and_b32 v{pd+1}, s{sK2}, v{X[0]}")
    e(f"v_lshlrev_b32 v{pd+2}, 16, v{X[1]}")
    e(f"v_lshl_add_u32 v{X[3]}, v{vj}, 1, v{row}")
    e(f"v_xor_b32 v{X[5]}, 16, v{X[3]}")
    if F16:
        e(f"v_cvt_pk_f16_f32 v{X[0]}, v{pd}, v{pd+1}")
        e(f"v_cvt_pk_f16_f32 v{X[1]}, v{pd+2}, v{pd+2}")
    e(f"ds_write_b16 v{X[3]}, v{vT[6]} offset:{REC+6}")
    e(f"ds_write_b16 v{X[5]}, v{X[0]} offset:{REC+6}")
    e(f"v_xor_b32 v{X[5]}, 32, v{X[3]}")
    e(f"v_xor_b32 v{X[3]}, 48, v{X[3]}")
    e(f"ds_write_b16_d16_hi v{X[5]}, v{X[0]} offset:{REC+6}")
    e(f"ds_write_b16 v{X[3]}, v{X[1]} offset:{REC+6}")
    for k in range(3):
        e(f"v_mul_f32 v{pd+k}, v{pd+k}, v{pd+k}")
    e(f"v_cvt_pk_bf16_f32 v{X[2]}, v{pd}, v{pd+1}")
    e(f"v_cvt_pk_bf16_f32 v{X[4]}, v{pd+2}, v{pd+2}")
    e(f"v_lshlrev_b32 v{pd}, 16, v{X[2]}")
    e(f"v_and_b32 v{pd+1}, s{sK2}, v{X[2]}")
    e(f"v_lshlrev_b32 v{pd+2}, 16, v{X[4]}")
    e(f"v_add_f32 v{pd}, v{pd}, v{pd+1}")
    e(f"v_add_f32 v{pd}, v{pd}, v{pd+2}")
    e(f"v_cvt_pk_bf16_f32 v{X[2]}, v{pd}, 0")
    if hi_half:
        e(f"v_and_or_b32 v{X[4]}, v{ea}, s{sK2}, v{X[2]}")
    else:
        e(f"v_lshl_or_b32 v{X[4]}, v{ea}, 16, v{X[2]}")
    e(f"ds_write_b32 v{row}, v{X[4]} offset:{REC}")
    e(f"ds_write_b16 v{row}, v{X[2]} offset:{REC+4}")
    e("s_mov_b64 exec, -1")
    lab(f"L_s2_done{tag}")
for k in range(4):
    stage2_pass(RCS[k], [RA+1, RB+1][k>>1], k & 1, PS[k], PD[k], VI[k], MK[k], "abcd"[k], VJ[k])
stamp("stage2 done", 13)
lab("L_ba")
stamp("placed+Q", 9)
if not NOPRIO: e(f"s_setprio {BAP}")
e(f"s_waitcnt lgkmcnt(0)")
e("s_barrier")
stamp("BA", 10)

lab("L_post")
c("count of own group, OVF, lookups for tiles 0,1")
assert EARLY
e(f"s_lshl_b32 s{sT0}, s{sG}, 2")
e(f"s_add_u32 s{sT0}, s{sT0}, {ALLOC}")
e(f"v_mov_b32 v{vT[0]}, s{sT0}")
e(f"v_mov_b32 v{vT[1]}, {OVF}")
def cnt_reads():
    e(f"ds_read_b32 v{vT[0]}, v{vT[0]}")
    e(f"ds_read_b32 v{vT[1]}, v{vT[1]}")
    return 2
e(f"s_cmp_eq_u32 s{sMODE}, 0")
e("s_cbranch_scc0 L_post_slow")
if PREF:
    e(f"s_cmp_eq_u32 s{sPREF}, 0")
    e("s_cbranch_scc1 L_post_g")
    cnt_reads()
    if PREFN == 1: dma_issue(LK[2], LK[3], sB1)
    e("s_branch L_post_fast")
    lab("L_post_g")
first_gathers(cnt_reads)
stamp("dma0 issued", 11)
e("s_branch L_post_fast")
lab("L_post_slow")
c("slow path: skip quickly if nothing was placed in this pass (no gather may be left in flight then)")
cnt_reads()
e(f"v_mov_b32 v{vT[7]}, {ALLOC}")
e(f"ds_read_b128 {vr(96,4)}, v{vT[7]}")
e(f"ds_read_b128 {vr(100,4)}, v{vT[7]} offset:16")
e("s_waitcnt lgkmcnt(0)")
e(f"v_or3_b32 v96, v96, v97, v98")
e(f"v_or3_b32 v96, v96, v99, v100")
e(f"v_or3_b32 v96, v96, v101, v102")
e(f"v_or_b32 v96, v96, v103")
e("s_nop 0")
e(f"v_readfirstlane_b32 s{sT0}, v96")
e(f"v_readfirstlane_b32 s{sCO}, v{vT[0]}")
e("s_nop 3")
e(f"s_cmp_lg_u32 s{sT0}, 0")
e("s_cbranch_scc1 L_post_sg")
e(f"s_mov_b32 s{sRETRY}, 0")
e("s_branch L_slow_adv")
lab("L_post_sg")
first_gathers()
e("s_branch L_post_go")
lab("L_post_fast")
e(f"s_waitcnt lgkmcnt({0 if EARLY else 4})")
e(f"v_readfirstlane_b32 s{sCO}, v{vT[0]}")
e(f"v_readfirstlane_b32 s{sT3}, v{vT[1]}           ; OVF")
e("s_nop 3")
e(f"s_cmp_lg_u32 s{sT3}, 0")
e("s_cbranch_scc1 L_slow_init")
lab("L_post_go")
e(f"s_min_u32 s{sCO}, s{sCO}, {CAP}")
e(f"s_add_u32 s{sNT}, s{sCO}, 15")
e(f"s_lshr_b32 s{sNT}, s{sNT}, 4")
if not EARLY:
    e("s_waitcnt lgkmcnt(2)")
    dma_issue(LK[0], LK[1], sB0)
    stamp("dma0 issued", 11)
if HOIST:
    e(f"s_cmp_eq_u32 s{sMODE}, 0")
    e("s_cbranch_scc1 L_noseg0")
id_consts(vT[0], vT[1])
c("SEG zero (first pass only)")
e(f"s_cmp_eq_u32 s{sNODE}, 0")
e("s_cbranch_scc1 L_noseg0")
e(f"s_mov_b32 s{sNODE}, 0")
seg_zero()
lab("L_noseg0")
c("BXF address: BXP + g*2048 + (64ch + l)*16   (l = 32hi + n)")
e(f"s_lshl_b32 s{sT0}, s{sG}, 11")
e(f"s_lshl_b32 s{sT1}, s{sCH2}, 10")
e(f"s_add_u32 s{sT0}, s{sT0}, s{sT1}")
e(f"s_add_u32 s{sT0}, s{sT0}, {BXP}")
e(f"v_lshlrev_b32 v{vT[0]}, 4, v{vL}")
e(f"v_add_u32 v{vT[0]}, s{sT0}, v{vT[0]}")
e(f"ds_read_b128 {vr(BXF,4)}, v{vT[0]}")
if not EARLY:
    e("s_waitcnt lgkmcnt(1)")
    dma_issue(LK[2], LK[3], sB1)
stamp("BB", 14)
_st[0] = 15
if not NOPRIO: e(f"s_setprio {PRIOS[0]}")
e(f"s_mov_b32 s{sU}, 0")
if XM:
    for i in range(4): e(f"v_mov_b32 v{124+i}, 0")
e("s_mov_b32 s6, 1.0")
e("s_mov_b32 s7, 1.0")
e(f"s_mov_b32 s{sREM}, s{sCO}")
e(f"s_mov_b32 s{sRT}, s{sNT}")
c("running pointers: vLKr / vLKr2 -> tile 2 ; working copies of vOD / vTRS")
e(f"v_add_u32 v{vLKr}, 2048, v{vLK}")
e(f"v_add_u32 v{vLKr2}, 2048, v{vLKr2}")
e(f"v_mov_b32 v{vODr}, v{vOD}")
e(f"v_mov_b32 v{vTRSr}, v{vTRS}")
e(f"v_xor_b32 v{vTRSr2}, 32, v{vTRS}")

def tile_body(buf):
    tag = f"t{buf}"
    sBUF = [sB0, sB1][buf]
    bo = buf * 2048
    c(f"---- tile (buffer {buf}) ----")
    e(f"s_cmp_gt_u32 s{sRT}, 2")
    e(f"s_cselect_b32 s{sK3}, 1, 0")
    e(f"s_cbranch_scc0 L_nolk{tag}")
    io = buf * 1024 if IMM else 0
    e(f"ds_read_u16 v{PA}, v{vLKr} offset:{io}")
    e(f"ds_read_u16 v{PB}, v{vLKr2} offset:{io+512}")
    lab(f"L_nolk{tag}")
    e(f"ds_read_b128 {vr(OHD,4)}, v{vODr} offset:{io}")
    e(f"s_cmp_gt_u32 s{sRT}, 1")
    e(f"s_cbranch_scc1 L_w2{tag}")
    e("s_waitcnt vmcnt(0)")
    e(f"s_branch L_wd{tag}")
    lab(f"L_w2{tag}")
    e("s_waitcnt vmcnt(2)")
    lab(f"L_wd{tag}")
    if os.environ.get("TSTAMP"):
        e(f"s_memtime s[{sC4}:{sC5}]")
        e(f"s_min_u32 s3, s{sU}, 13")
        e(f"s_add_u32 m0, s3, 24")
        e(f"s_add_u32 s{sU}, s{sU}, 1")
        e("s_waitcnt lgkmcnt(0)")
        e(f"v_writelane_b32 v{VST}, s{sC4}, m0")
    if "q" not in KO:
      e(f"ds_read_b64_tr_b16 {vr(QF,2)}, v{vTRQ0} offset:{bo}")
      e(f"ds_read_b64_tr_b16 {vr(QF+2,2)}, v{vTRQ0} offset:{bo+512}")
      e(f"ds_read_b64_tr_b16 {vr(QF+4,2)}, v{vTRQ1} offset:{bo}")
      e(f"ds_read_b64_tr_b16 {vr(QF+6,2)}, v{vTRQ1} offset:{bo+512}")
    e(f"ds_read_b64_tr_b16 {vr(SF,2)}, v{vTRSr} offset:{io}")
    e(f"ds_read_b64_tr_b16 {vr(SF+2,2)}, v{vTRSr2} offset:{io+512}")
    if buf == 1 or not IMM:
        st = 2048 if IMM else 1024
        e(f"v_add_u32 v{vLKr}, {st}, v{vLKr}")
        e(f"v_add_u32 v{vLKr2}, {st}, v{vLKr2}")
        e(f"v_add_u32 v{vODr}, v{vODM}, v{vODr}")
        e(f"v_add_u32 v{vTRSr}, {st}, v{vTRSr}")
        e(f"v_add_u32 v{vTRSr2}, {st}, v{vTRSr2}")
    e("s_waitcnt lgkmcnt(6)")
    mfma(ACC, OHD, BXF, "0")
    e("s_waitcnt lgkmcnt(4)")
    if "i" not in KO:
      mfma(ACC, ID, QF, vr(ACC,16))
      e("s_waitcnt lgkmcnt(2)")
      mfma(ACC, ID+4, QF+4, vr(ACC,16))
    for _ in range(XM):
        mfma(ACC, 124, QF+4*(_&1), vr(ACC,16))
    e(f"s_cmp_eq_u32 s{sK3}, 0")
    e(f"s_cbranch_scc1 L_nodma{tag}")
    if "d" not in KO: dma_issue(PA, PB, sBUF)
    lab(f"L_nodma{tag}")
    e("s_nop 7")
    e("s_nop 3")
    def blk(bb, t):
        a = ACC + 4*bb
        if "e" in KO:
            for i in range(4): e(f"v_mov_b32 v{t+i}, v{a+i}")
        else:
            for i in range(4): e(f"v_exp_f32 v{t+i}, v{a+i}")
        if PK & 1:
            if PK & 4:
                for i in (0, 2): e(f"v_pk_add_f32 {vr(t+i,2)}, {vr(t+i,2)}, 1.0 op_sel_hi:[1,0]")
            else:
                for i in (0, 2): e(f"v_pk_add_f32 {vr(t+i,2)}, {vr(t+i,2)}, s[6:7]")
        elif "a" not in KO:
            for i in range(4): e(f"v_add_f32 v{t+i}, 1.0, v{t+i}")
        if "r" not in KO:
            for i in range(4): e(f"v_rcp_f32 v{t+i}, v{t+i}")
        if PK & 2:
            for i in (0, 2): e(f"v_pk_mul_f32 {vr(t+i,2)}, {vr(a+i,2)}, {vr(t+i,2)}")
        elif "m" not in KO:
            for i in range(4): e(f"v_mul_f32 v{t+i}, v{a+i}, v{t+i}")
        e(f"v_cvt_pk_bf16_f32 v{MP+2*bb}, v{t}, v{t+1}")
        e(f"v_cvt_pk_bf16_f32 v{MP+2*bb+1}, v{t+2}, v{t+3}")
    def blk16(bbs):
        P = [(MP+2*bb+h, ACC+4*bb+2*h) for bb in bbs for h in range(2)]
        T = [TE+i for i in range(len(P))]
        for (m, a) in P: e(f"v_cvt_pk_f16_f32 v{m}, v{a}, v{a+1}")
        if "s" in KO: return
        if "h" in KO and bbs[0] == 1: return
        for (m, a), t in zip(P, T): e(f"v_exp_f16_sdwa v{t}, v{m} dst_sel:WORD_0 dst_unused:UNUSED_PAD src0_sel:WORD_0")
        for (m, a), t in zip(P, T): e(f"v_exp_f16_sdwa v{t}, v{m} dst_sel:WORD_1 dst_unused:UNUSED_PRESERVE src0_sel:WORD_1")
        for t in T: e(f"v_pk_add_f16 v{t}, v{t}, 1.0 op_sel_hi:[1,0]")
        for t in T: e(f"v_rcp_f16_sdwa v{t}, v{t} dst_sel:WORD_0 dst_unused:UNUSED_PRESERVE src0_sel:WORD_0")
        for t in T: e(f"v_rcp_f16_sdwa v{t}, v{t} dst_sel:WORD_1 dst_unused:UNUSED_PRESERVE src0_sel:WORD_1")
        for (m, a), t in zip(P, T): e(f"v_pk_mul_f16 v{m}, v{m}, v{t}")
    if F16: blk16((0, 2))
    else:
        blk(0, TE); blk(2, TE+4)
    e(f"s_cmp_le_u32 s{sREM}, 8")
    e(f"s_cbranch_scc1 L_skip{tag}")
    if F16: blk16((1, 3))
    else:
        blk(1, TE); blk(3, TE+4)
    e(f"s_branch L_blk{tag}")
    lab(f"L_skip{tag}")
    for r in (2, 3, 6, 7): e(f"v_mov_b32 v{MP+r}, 0")
    lab(f"L_blk{tag}")
    e("s_waitcnt lgkmcnt(0)")
    e("s_nop 1")
    if F16:
        e(f"v_mfma_f32_32x32x16_f16 {vr(SEG,16)}, {vr(MP,4)}, {vr(SF,4)}, {vr(SEG,16)}")
        e(f"v_mfma_f32_32x32x16_f16 {vr(SEG+16,16)}, {vr(MP+4,4)}, {vr(SF,4)}, {vr(SEG+16,16)}")
    else:
        mfma(SEG, MP, SF, vr(SEG,16))
        mfma(SEG+16, MP+4, SF, vr(SEG+16,16))
    e(f"s_sub_u32 s{sREM}, s{sREM}, 16")
    e(f"s_sub_u32 s{sRT}, s{sRT}, 1")
    if not NOPRIO:
        e(f"s_cmp_gt_u32 s{sRT}, 3")
        e(f"s_cbranch_scc1 L_pr{tag}")
        e(f"s_setprio {PRIOS[1]}")
        e(f"s_cmp_eq_u32 s{sRT}, 3")
        e(f"s_cbranch_scc1 L_pr{tag}")
        e(f"s_setprio {PRIOS[2]}")
        e(f"s_cmp_eq_u32 s{sRT}, 2")
        e(f"s_cbranch_scc1 L_pr{tag}")
        e(f"s_setprio {PRIOS[3]}")
        lab(f"L_pr{tag}")

e(f"s_cmp_eq_u32 s{sRT}, 0")
e("s_cbranch_scc1 L_tiles_done")
lab("L_tile_loop")
tile_body(0)
e(f"s_cmp_eq_u32 s{sRT}, 0")
e("s_cbranch_scc1 L_tiles_done")
tile_body(1)
e(f"s_cmp_lg_u32 s{sRT}, 0")
e("s_cbranch_scc1 L_tile_loop")
lab("L_tiles_done")
e("s_waitcnt vmcnt(0)")
if not NOPRIO: e("s_setprio 3")
stamp("tiles done")
e(f"s_cmp_eq_u32 s{sMODE}, 0")
e("s_cbranch_scc0 L_slow_next")

lab("L_final")
WFL = 80
ROW = 16
HRES = 112
vN = vT[1]; vHI = vT[2]; vOFF = vT[3]; vRD_ = vT[4]
e(f"s_memrealtime s[6:7]")
e(f"v_and_b32 v{vN}, 31, v{vL}")
e(f"v_lshrrev_b32 v{vHI}, 5, v{vL}")
c("late frags: quads 1, 2: WH2F slice ct ; quad 0: wx frags")
e(f"s_cmp_eq_u32 s{sQ}, {QC}")
e("s_cbranch_scc1 L_f_wx")
e(f"s_cmp_eq_u32 s{sQ}, 3")
e("s_cbranch_scc1 L_f_flush")
e(f"s_lshl_b32 s{sT0}, s{sCT}, 13")
e(f"s_add_u32 s{sT0}, s{sT0}, {WH2F}")
e(f"s_add_u32 s{sT1}, s{sT0}, 4096")
e(f"v_lshlrev_b32 v{vT[0]}, 4, v{vL}")
for s_ in range(8):
    e(f"buffer_load_dwordx4 {vr(WFL+4*s_,4)}, v{vT[0]}, {srd(S_WS)}, s{[sT0,sT1][s_>>2]} offen offset:{(s_%4)*1024}{WSC}")
e("s_branch L_f_flush")
lab("L_f_wx")
e(f"v_lshlrev_b32 v{vT[0]}, 4, v{vHI}")
for s_ in range(8):
    e(f"buffer_load_dwordx4 {vr(WFL+4*s_,4)}, v{vT[0]}, {srd(S_WX)}, 0 offen offset:{s_*32}")
lab("L_f_flush")
c("flush: lane (f=n, hi): addr = QTw + h*2048 + f*64 + ((bb ^ ((f>>2)&3) ^ (g&3))<<4) + hi*8")
e(f"s_and_b32 s{sT0}, s{sG}, 3")
e(f"v_bfe_u32 v{vT[5]}, v{vN}, 2, 2")
e(f"v_xor_b32 v{vT[5]}, s{sT0}, v{vT[5]}")
e(f"v_lshlrev_b32 v{vT[5]}, 4, v{vT[5]}")
e(f"v_lshl_add_u32 v{vT[5]}, v{vN}, 6, v{vT[5]}")
e(f"v_lshl_add_u32 v{vT[5]}, v{vHI}, 3, v{vT[5]}")
e(f"v_add_u32 v{vT[5]}, s{sB0}, v{vT[5]}")
e("s_nop 7")
e("s_nop 3")
for h in range(2):
    for bb in range(4):
        r0 = SEG + 16*h + 4*bb
        e(f"v_cvt_pk_bf16_f32 v{r0}, v{r0}, v{r0+1}")
        e(f"v_cvt_pk_bf16_f32 v{r0+1}, v{r0+2}, v{r0+3}")
        if bb == 0:
            e(f"ds_write_b64 v{vT[5]}, {vr(r0,2)} offset:{h*2048}")
        else:
            e(f"v_xor_b32 v{vT[6]}, {bb<<4}, v{vT[5]}")
            e(f"ds_write_b64 v{vT[6]}, {vr(r0,2)} offset:{h*2048}")
if FINR == 2:
    e(f"s_mul_i32 s{sNT}, s2, 40")
    e(f"s_cmp_eq_u32 s{sQ}, {QC}")
    e("s_cbranch_scc1 L_f_roleC")
    e(f"s_cmp_eq_u32 s{sQ}, {QB}")
    e("s_cbranch_scc1 L_f_roleB")
    e(f"s_cmp_eq_u32 s{sQ}, {QA}")
    e("s_cbranch_scc0 L_f_bar")
    for bb in range(4):
        e(f"v_xor_b32 v{vT[7]}, {bb<<4}, v{vFRES}")
        e(f"ds_read_b64 {vr(HRES+2*bb,2)}, v{vT[7]}")
    e("s_branch L_f_bar")
    lab("L_f_roleB")
    for i in range(4):
        e(f"v_xor_b32 v{vT[5]}, {i<<4}, v{vFRES}")
        e(f"ds_read_u16 v{HRES+i}, v{vT[5]} offset:{i*256}")
    e("s_branch L_f_bar")
    lab("L_f_roleC")
    vNODE = vT[5]; vCMP = vT[6]
    rolec_node(vN, vNODE, vCMP, vT[0], vT[7])
    c("role C: pos residual PTF[node][comp-1] ; out offset (40b + node)*6 + (comp-1)*2")
    e(f"v_lshlrev_b32 v{vT[0]}, 4, v{vNODE}")
    e(f"v_lshl_add_u32 v{vT[0]}, v{vCMP}, 2, v{vT[0]}")
    e(f"v_add_u32 v{vT[0]}, {PTF-4}, v{vT[0]}")
    e(f"ds_read_b32 v{HRES}, v{vT[0]}")
    e(f"v_add_u32 v{vOFF}, s{sNT}, v{vNODE}")
    e(f"v_mul_u32_u24 v{vOFF}, 6, v{vOFF}")
    e(f"v_lshl_add_u32 v{vOFF}, v{vCMP}, 1, v{vOFF}")
    e(f"v_subrev_u32 v{vOFF}, 2, v{vOFF}")
if not FINR:
    c("per-role (node, comp) -> g, f ; addr = QT + g*8192 + f*64 + ((hi ^ ((f>>2)&3) ^ (g&3))<<4)")
    vNODE = vT[5]; vCMP = vT[6]
    def node_addr(dst, node, cmp_, t0, t1):
        e(f"v_mul_u32_u24 v{t1}, 52, v{node}")
        e(f"v_lshrrev_b32 v{t1}, 8, v{t1}             ; g")
        e(f"v_mul_u32_u24 v{t0}, 5, v{t1}")
        e(f"v_sub_u32 v{t0}, v{node}, v{t0}          ; j")
        if cmp_ is not None:
            e(f"v_lshl_add_u32 v{t0}, v{cmp_}, 3, v{t0}")
        e(f"v_add_u32 v{t0}, 3, v{t0}                 ; f")
        e(f"v_bfe_u32 v{dst}, v{t0}, 2, 2")
        e(f"v_xor_b32 v{dst}, v{dst}, v{vHI}")
        e(f"v_lshlrev_b32 v{t0}, 6, v{t0}")
        e(f"v_lshl_add_u32 v{t0}, v{t1}, 13, v{t0}")
        e(f"v_and_b32 v{t1}, 3, v{t1}")
        e(f"v_xor_b32 v{dst}, v{dst}, v{t1}")
        e(f"v_lshl_add_u32 v{dst}, v{dst}, 4, v{t0}")
        e(f"v_add_u32 v{dst}, {QT}, v{dst}")
    e(f"s_mul_i32 s{sK3}, s2, 40")
    e(f"s_cmp_eq_u32 s{sQ}, {QC}")
    e("s_cbranch_scc1 L_f_roleC")
    e(f"s_cmp_eq_u32 s{sQ}, {QB}")
    e("s_cbranch_scc1 L_f_roleB")
    e(f"s_cmp_eq_u32 s{sQ}, {QA}")
    e("s_cbranch_scc0 L_f_bar")
    c("role A (nodes n)")
    node_addr(vRD_, vN, None, vT[0], vT[7])
    c("role A residual: h[node n][32ct + 8bb + 4hi..+3]: OWN + n*256 + (((ct*4+bb) ^ (n&15))<<4) + hi*8")
    e(f"v_and_b32 v{vT[0]}, 15, v{vN}")
    e(f"s_lshl_b32 s{sT0}, s{sCT}, 2")
    e(f"v_xor_b32 v{vT[0]}, s{sT0}, v{vT[0]}")
    e(f"v_lshlrev_b32 v{vT[0]}, 4, v{vT[0]}")
    e(f"v_lshl_add_u32 v{vT[0]}, v{vN}, 8, v{vT[0]}")
    e(f"v_lshl_add_u32 v{vT[0]}, v{vHI}, 3, v{vT[0]}")
    e(f"v_add_u32 v{vT[0]}, {OWN}, v{vT[0]}")
    for bb in range(4):
        e(f"v_xor_b32 v{vT[7]}, {bb<<4}, v{vT[0]}")
        e(f"ds_read_b64 {vr(HRES+2*bb,2)}, v{vT[7]}")
    e(f"v_add_u32 v{vOFF}, s{sK3}, v{vN}")
    e(f"v_lshlrev_b32 v{vOFF}, 8, v{vOFF}")
    e(f"v_lshl_add_u32 v{vOFF}, v{vHI}, 3, v{vOFF}")
    e(f"s_lshl_b32 s{sT0}, s{sCT}, 6")
    e(f"v_add_u32 v{vOFF}, s{sT0}, v{vOFF}")
    e("s_branch L_f_bar")
    lab("L_f_roleB")
    c("role B (nodes 32 + (n&7))")
    e(f"v_and_b32 v{vNODE}, 7, v{vN}")
    e(f"v_add_u32 v{vNODE}, 32, v{vNODE}")
    node_addr(vRD_, vNODE, None, vT[0], vT[7])
    c("role B residual: rows 32+4hi+i, col 32ct+n: OWN + row*256 + (((ct*4 + (n>>3)) ^ (row&15))<<4) + (n&7)*2")
    e(f"v_lshrrev_b32 v{vT[0]}, 3, v{vN}")
    e(f"s_lshl_b32 s{sT0}, s{sCT}, 2")
    e(f"v_add_u32 v{vT[0]}, s{sT0}, v{vT[0]}          ; chunk")
    e(f"v_lshlrev_b32 v{vT[7]}, 2, v{vHI}             ; 4hi")
    e(f"v_xor_b32 v{vT[0]}, v{vT[0]}, v{vT[7]}")
    e(f"v_lshlrev_b32 v{vT[0]}, 4, v{vT[0]}")
    e(f"v_lshl_add_u32 v{vT[0]}, v{vT[7]}, 8, v{vT[0]}   ; + 4hi*256")
    e(f"v_and_b32 v{vT[5]}, 7, v{vN}")
    e(f"v_lshl_add_u32 v{vT[0]}, v{vT[5]}, 1, v{vT[0]}")
    e(f"v_add_u32 v{vT[0]}, {OWN + 32*256}, v{vT[0]}")
    for i in range(4):
        e(f"v_xor_b32 v{vT[5]}, {i<<4}, v{vT[0]}")
        e(f"ds_read_u16 v{HRES+i}, v{vT[5]} offset:{i*256}")
    e(f"s_add_u32 s{sT0}, s{sK3}, 32")
    e(f"v_add_u32 v{vOFF}, s{sT0}, v{vT[7]}")
    e(f"v_lshlrev_b32 v{vOFF}, 8, v{vOFF}")
    e(f"v_lshl_add_u32 v{vOFF}, v{vN}, 1, v{vOFF}")
    e(f"s_lshl_b32 s{sT0}, s{sCT}, 6")
    e(f"v_add_u32 v{vOFF}, s{sT0}, v{vOFF}")
    e("s_branch L_f_bar")
    lab("L_f_roleC")
    c("role C: n' = min(n,29); idx = 30ct + n' ; G = idx/15 ; r = idx%15 ; c = r/5 ; j = r%5 ; node = 5G + j ; comp = c+1")
    e(f"v_min_u32 v{vT[0]}, 29, v{vN}")
    e(f"v_cmp_lt_u32 vcc, 14, v{vT[0]}")
    e(f"v_cndmask_b32 v{vT[7]}, 0, 1, vcc               ; G&1")
    e(f"v_mul_u32_u24 v{vNODE}, 15, v{vT[7]}")
    e(f"v_sub_u32 v{vT[0]}, v{vT[0]}, v{vNODE}          ; r")
    e(f"v_mul_u32_u24 v{vCMP}, 52, v{vT[0]}")
    e(f"v_lshrrev_b32 v{vCMP}, 8, v{vCMP}              ; c")
    e(f"v_mul_u32_u24 v{vNODE}, 5, v{vCMP}")
    e(f"v_sub_u32 v{vT[0]}, v{vT[0]}, v{vNODE}          ; j")
    e(f"s_lshl_b32 s{sT0}, s{sCT}, 1")
    e(f"v_add_u32 v{vT[7]}, s{sT0}, v{vT[7]}            ; G")
    e(f"v_mad_u32_u24 v{vNODE}, v{vT[7]}, 5, v{vT[0]}")
    e(f"v_add_u32 v{vCMP}, 1, v{vCMP}")
    node_addr(vRD_, vNODE, vCMP, vT[0], vT[7])
    c("role C: pos residual PTF[node][comp-1] ; out offset (40b + node)*6 + (comp-1)*2")
    e(f"v_lshlrev_b32 v{vT[0]}, 4, v{vNODE}")
    e(f"v_lshl_add_u32 v{vT[0]}, v{vCMP}, 2, v{vT[0]}")
    e(f"v_add_u32 v{vT[0]}, {PTF-4}, v{vT[0]}")
    e(f"ds_read_b32 v{HRES}, v{vT[0]}")
    e(f"v_add_u32 v{vOFF}, s{sK3}, v{vNODE}")
    e(f"v_mul_u32_u24 v{vOFF}, 6, v{vOFF}")
    e(f"v_lshl_add_u32 v{vOFF}, v{vCMP}, 1, v{vOFF}")
    e(f"v_subrev_u32 v{vOFF}, 2, v{vOFF}")

lab("L_f_bar")
e("s_waitcnt lgkmcnt(0)")
c("residency guard: this wave's stamp must be older than the accept window of any later launch")
lab("L_guard")
e(f"s_sub_u32 s{sT0}, s6, s{sTW}")
e(f"s_cmp_ge_u32 s{sT0}, {GUARD}")
e("s_cbranch_scc1 L_guard_ok")
e("s_sleep 8")
e("s_memrealtime s[6:7]")
e("s_waitcnt lgkmcnt(0)")
e("s_branch L_guard")
lab("L_guard_ok")
e("s_barrier")
stamp("final bar")
e(f"s_cmp_eq_u32 s{sQ}, 3")
e("s_cbranch_scc1 L_end")
if FINR: vRD_ = vFRD
e(f"v_xor_b32 v{vT[0]}, 32, v{vRD_}")
for s_ in range(8):
    e(f"ds_read_b128 {vr(ROW+4*s_,4)}, v{[vRD_, vT[0]][s_&1]} offset:{(s_>>1)*2048}")
e(f"s_mov_b32 s{sK2}, 0x{NLN2:08x}")
e(f"s_mul_i32 s{sNT}, s2, 40")
e(f"s_mov_b32 s{sK3}, 0xffff0000")
if FINR != 1: e("s_waitcnt vmcnt(0)")
vOFFC = vOFF
if FINR == 2: vOFF = vFOFF
e(f"s_cmp_eq_u32 s{sQ}, {QC}")
e("s_cbranch_scc1 L_f_C")
e(f"s_cmp_eq_u32 s{sQ}, {QB}")
e("s_cbranch_scc1 L_f_B")
c("role A")
NX = 0
if FINR == 1:
    NX = 4
    c("role A residual: h[node n][32ct + 8bb + 4hi..+3]: OWN + n*256 + (((ct*4+bb) ^ (n&15))<<4) + hi*8")
    e(f"v_and_b32 v{vT[0]}, 15, v{vN}")
    e(f"s_lshl_b32 s{sT0}, s{sCT}, 2")
    e(f"v_xor_b32 v{vT[0]}, s{sT0}, v{vT[0]}")
    e(f"v_lshlrev_b32 v{vT[0]}, 4, v{vT[0]}")
    e(f"v_lshl_add_u32 v{vT[0]}, v{vN}, 8, v{vT[0]}")
    e(f"v_lshl_add_u32 v{vT[0]}, v{vHI}, 3, v{vT[0]}")
    e(f"v_add_u32 v{vT[0]}, {OWN}, v{vT[0]}")
    for bb in range(4):
        e(f"v_xor_b32 v{vT[7]}, {bb<<4}, v{vT[0]}")
        e(f"ds_read_b64 {vr(HRES+2*bb,2)}, v{vT[7]}")
    e(f"v_add_u32 v{vOFF}, s{sNT}, v{vN}")
    e(f"v_lshlrev_b32 v{vOFF}, 8, v{vOFF}")
    e(f"v_lshl_add_u32 v{vOFF}, v{vHI}, 3, v{vOFF}")
    e(f"s_lshl_b32 s{sT0}, s{sCT}, 6")
    e(f"v_add_u32 v{vOFF}, s{sT0}, v{vOFF}")
    e("s_waitcnt vmcnt(0)")
for s_ in range(8):
    e(f"s_waitcnt lgkmcnt({7-s_+NX})")
    mfma(FACC, WFL+4*s_, ROW+4*s_, vr(FACC,16))
if FINR == 1: e("s_waitcnt lgkmcnt(0)")
def final_silu(a, n, T):
    for i in range(n): e(f"v_exp_f32 v{T+i}, v{a+i}")
    for i in range(n): e(f"v_add_f32 v{T+i}, 1.0, v{T+i}")
    for i in range(n): e(f"v_rcp_f32 v{T+i}, v{T+i}")
    for i in range(n): e(f"v_mul_f32 v{a+i}, v{a+i}, v{T+i}")
X = 48
e("s_nop 7")
e("s_nop 3")
for i in range(4):
    a = FACC + 4*i
    final_silu(a, 4, X)
    e(f"v_lshlrev_b32 v{X}, 16, v{HRES+2*i}")
    e(f"v_and_b32 v{X+1}, s{sK3}, v{HRES+2*i}")
    e(f"v_lshlrev_b32 v{X+2}, 16, v{HRES+2*i+1}")
    e(f"v_and_b32 v{X+3}, s{sK3}, v{HRES+2*i+1}")
    for k in range(4): e(f"v_fma_f32 v{a+k}, v{a+k}, s{sK2}, v{X+k}")
    e(f"v_cvt_pk_bf16_f32 v{X+4+2*i}, v{a}, v{a+1}")
    e(f"v_cvt_pk_bf16_f32 v{X+5+2*i}, v{a+2}, v{a+3}")
    e(f"buffer_store_dwordx2 {vr(X+4+2*i,2)}, v{vOFF}, {srd(S_O0)}, 0 offen offset:{i*16}{OSC}")
e("s_branch L_end")
lab("L_f_B")
c("role B: rows 32 + 4hi + r")
for i in range(4): e(f"v_mov_b32 v{ACC+i}, v{FB+i}")
if FINR == 1:
    c("role B residual: rows 32+4hi+i, col 32ct+n: OWN + row*256 + (((ct*4 + (n>>3)) ^ (row&15))<<4) + (n&7)*2")
    e(f"v_lshrrev_b32 v{vT[0]}, 3, v{vN}")
    e(f"s_lshl_b32 s{sT0}, s{sCT}, 2")
    e(f"v_add_u32 v{vT[0]}, s{sT0}, v{vT[0]}          ; chunk")
    e(f"v_lshlrev_b32 v{vT[7]}, 2, v{vHI}             ; 4hi")
    e(f"v_xor_b32 v{vT[0]}, v{vT[0]}, v{vT[7]}")
    e(f"v_lshlrev_b32 v{vT[0]}, 4, v{vT[0]}")
    e(f"v_lshl_add_u32 v{vT[0]}, v{vT[7]}, 8, v{vT[0]}   ; + 4hi*256")
    e(f"v_and_b32 v{vT[5]}, 7, v{vN}")
    e(f"v_lshl_add_u32 v{vT[0]}, v{vT[5]}, 1, v{vT[0]}")
    e(f"v_add_u32 v{vT[0]}, {OWN + 32*256}, v{vT[0]}")
    for i in range(4):
        e(f"v_xor_b32 v{vT[5]}, {i<<4}, v{vT[0]}")
        e(f"ds_read_u16 v{HRES+i}, v{vT[5]} offset:{i*256}")
    e(f"s_add_u32 s{sT0}, s{sNT}, 32")
    e(f"v_add_u32 v{vOFF}, s{sT0}, v{vT[7]}")
    e(f"v_lshlrev_b32 v{vOFF}, 8, v{vOFF}")
    e(f"v_lshl_add_u32 v{vOFF}, v{vN}, 1, v{vOFF}")
    e(f"s_lshl_b32 s{sT0}, s{sCT}, 6")
    e(f"v_add_u32 v{vOFF}, s{sT0}, v{vOFF}")
    e("s_waitcnt vmcnt(0)")
e("s_nop 1")
for s_ in range(8):
    e(f"s_waitcnt lgkmcnt({7-s_+NX})")
    mfma(ACC, ROW+4*s_, WFL+4*s_, vr(ACC,16))
if FINR == 1: e("s_waitcnt lgkmcnt(0)")
Y = 64
e("s_nop 7")
e("s_nop 3")
final_silu(ACC, 4, Y)
for k in range(4):
    e(f"v_lshlrev_b32 v{Y+k}, 16, v{HRES+k}")
for k in range(4):
    e(f"v_fma_f32 v{ACC+k}, v{ACC+k}, s{sK2}, v{Y+k}")
for k in range(4):
    e(f"v_cvt_pk_bf16_f32 v{Y+8+k}, v{ACC+k}, v{ACC+k}")
for r in range(4):
    e(f"buffer_store_short v{Y+8+r}, v{vOFF}, {srd(S_O0)}, 0 offen offset:{r*256}{OSC}")
e("s_branch L_end")
lab("L_f_C")
vOFF = vOFFC
if FINR == 1:
    vNODE = vT[5]; vCMP = vT[6]
    rolec_node(vN, vNODE, vCMP, vT[0], vT[7])
    c("role C: pos residual PTF[node][comp-1] ; out offset (40b + node)*6 + (comp-1)*2")
    e(f"v_lshlrev_b32 v{vT[0]}, 4, v{vNODE}")
    e(f"v_lshl_add_u32 v{vT[0]}, v{vCMP}, 2, v{vT[0]}")
    e(f"v_add_u32 v{vT[0]}, {PTF-4}, v{vT[0]}")
    e(f"ds_read_b32 v{HRES}, v{vT[0]}")
    e(f"v_add_u32 v{vOFF}, s{sNT}, v{vNODE}")
    e(f"v_mul_u32_u24 v{vOFF}, 6, v{vOFF}")
    e(f"v_lshl_add_u32 v{vOFF}, v{vCMP}, 1, v{vOFF}")
    e(f"v_subrev_u32 v{vOFF}, 2, v{vOFF}")
    e("s_waitcnt vmcnt(0)")
for s_ in range(8):
    e(f"s_waitcnt lgkmcnt({7-s_+(1 if FINR == 1 else 0)})")
    mfma(ACC, WFL+4*s_, ROW+4*s_, "0" if s_ == 0 else vr(ACC,16))
if FINR == 1: e("s_waitcnt lgkmcnt(0)")
e("s_nop 7")
e("s_nop 3")
e(f"v_fma_f32 v{ACC}, v{ACC}, s{sK2}, v{HRES}")
e(f"v_cvt_pk_bf16_f32 v{ACC}, v{ACC}, v{ACC}")
e(f"s_mov_b32 exec_lo, 0x3fffffff")
e(f"s_mov_b32 exec_hi, 0")
e(f"buffer_store_short v{ACC}, v{vOFF}, {srd(S_O1)}, 0 offen{OSC}")
lab("L_end")
stamp("end")
stamp_flush()
lab("L_end2")
e("s_endpgm")

def zero_lds(Z, vtid):
    c("zero REC (69632 B = 4352 x 16 B) and counters (64 B)")
    for i in range(4): e(f"v_mov_b32 v{Z+i}, 0")
    e(f"v_lshlrev_b32 v{vT[0]}, 4, v{vtid}")
    for i in range(4):
        e(f"ds_write_b128 v{vT[0]}, {vr(Z,4)} offset:{i*16384}")
    e(f"v_add_u32 v{vT[1]}, {65536}, v{vT[0]}")
    e(f"v_add_u32 v{vT[2]}, {CTR - 256*16}, v{vT[0]}")
    e(f"v_cmp_gt_u32 vcc, 256, v{vtid}")
    e(f"v_cndmask_b32 v{vT[1]}, v{vT[2]}, v{vT[1]}, vcc")
    e(f"v_cmp_gt_u32 vcc, 260, v{vtid}")
    e("s_mov_b64 exec, vcc")
    e(f"ds_write_b128 v{vT[1]}, {vr(Z,4)}")
    e("s_mov_b64 exec, -1")
lab("L_slow_init")
e(f"s_mov_b32 s{sPREF}, 0")
e(f"s_mov_b32 s{sMODE}, 1")
e(f"s_mov_b32 s{sCH}, 0")
e(f"s_mov_b32 s{sRETRY}, 0")
e(f"s_and_b32 s{sT3}, s{sT3}, 2")
e(f"s_cmp_eq_u32 s{sT3}, 0")
e("s_cbranch_scc1 L_slow_pass")
c("fallback: the hand-off timed out -> this workgroup computes all of Q and the WH2 fragments itself")
c("(waves 0..7 keep FACC (64..79) / FB (120..123); waves 8..15 run the GEMM blocks)")
e(f"s_mov_b32 s{sU}, 0")
lab("L_fb_loop")
e("s_waitcnt vmcnt(0) lgkmcnt(0)")
e("s_barrier")
e(f"s_cmp_lt_u32 s{sW}, 8")
e("s_cbranch_scc1 L_fb_idle")
gemm_role("fb", sU, True)
e("s_branch L_fb_next")
lab("L_fb_idle")
e("s_barrier")
lab("L_fb_next")
e(f"s_add_u32 s{sU}, s{sU}, 1")
e(f"s_cmp_lt_u32 s{sU}, {NG}")
e("s_cbranch_scc1 L_fb_loop")
e("s_waitcnt vmcnt(0) lgkmcnt(0)")
e("s_barrier")
e(f"s_cmp_ge_u32 s{sW}, 4")
e("s_cbranch_scc1 L_slow_pass")
wprep_role("fb", True)
e("s_branch L_slow_pass")
lab("L_slow_next")
e(f"v_mov_b32 v{vT[0]}, {PEND}")
e(f"ds_read_b32 v{vT[1]}, v{vT[0]}")
e("s_waitcnt lgkmcnt(0)")
e(f"v_readfirstlane_b32 s{sRETRY}, v{vT[1]}")
e("s_nop 3")
e(f"s_cmp_lg_u32 s{sRETRY}, 0")
e("s_cbranch_scc1 L_slow_pass")
lab("L_slow_adv")
e(f"s_add_u32 s{sCH}, s{sCH}, 1")
e(f"s_cmp_ge_u32 s{sCH}, 250")
e("s_cbranch_scc1 L_slow_fin")
lab("L_slow_pass")
e("s_waitcnt vmcnt(0) lgkmcnt(0)")
e("s_barrier")
e(f"s_lshl_b32 s{sT0}, s{sW}, 6")
e(f"v_add_u32 v{tid}, s{sT0}, v{vL}")
zero_lds(116, tid)
c("raw edge e = 640*ch + t (t<640)")
qD, qS, qB, qK, qR, qA = 104, 105, 106, 107, 108, 109
RC = RA; vEA = RA + 1; vI0 = VI[0]; PS0 = PS[0]
e(f"s_mul_i32 s{sT0}, s{sCH}, 2560")
e(f"s_mul_i32 s{sT1}, s{sCH}, 1280")
e(f"v_lshlrev_b32 v{vT[0]}, 2, v{tid}")
e(f"v_lshlrev_b32 v{vT[1]}, 1, v{tid}")
e(f"v_mov_b32 v{qD}, -1")
e(f"v_mov_b32 v{qS}, 0")
e(f"v_mov_b32 v{qP}, 0")
e(f"v_mov_b32 v{vEA}, 0")
e(f"v_mov_b32 v{qA}, 640")
e(f"v_cmp_gt_u32 {sp(sM0)}, v{qA}, v{tid}")
e(f"s_cmp_eq_u64 {sp(sM0)}, 0")
e("s_cbranch_scc1 L_slow_nold")
e(f"s_mov_b64 exec, {sp(sM0)}")
e(f"buffer_load_dword v{qD}, v{vT[0]}, {srd(S_DST)}, s{sT0} offen")
e(f"buffer_load_dword v{qS}, v{vT[0]}, {srd(S_SRC)}, s{sT0} offen")
e(f"buffer_load_ushort v{vEA}, v{vT[1]}, {srd(S_EA)}, s{sT1} offen")
e(f"v_add_u32 v{qA}, {PENDB}, v{tid}")
e(f"ds_read_u8 v{qP}, v{qA}")
e("s_mov_b64 exec, -1")
lab("L_slow_nold")
e("s_waitcnt vmcnt(0) lgkmcnt(0)")
e("s_barrier")
e(f"v_mul_u32_u24 v{qB}, 52429, v{qD}")
e(f"v_lshrrev_b32 v{qB}, 21, v{qB}")
e(f"v_mul_u32_u24 v{qK}, 40, v{qB}")
e(f"v_sub_u32 v{qK}, v{qD}, v{qK}")
e(f"v_cmp_eq_u32 vcc, s2, v{qB}")
e(f"s_and_b64 {sp(sM0)}, {sp(sM0)}, vcc          ; match")
e(f"s_cmp_eq_u32 s{sRETRY}, 0")
e("s_cbranch_scc1 L_slow_fresh")
e(f"v_cmp_ne_u32 vcc, 0, v{qP}")
e(f"s_and_b64 {sp(sM0)}, {sp(sM0)}, vcc")
lab("L_slow_fresh")
e(f"v_and_b32 v{qK}, 63, v{qK}")
e(f"v_min_u32 v{qK}, 39, v{qK}")
e(f"v_mul_u32_u24 v{vI0}, 52, v{qK}")
e(f"v_lshrrev_b32 v{vI0}, 8, v{vI0}           ; g")
e(f"v_mul_u32_u24 v{qA}, 5, v{vI0}")
e(f"v_sub_u32 v{qA}, v{qK}, v{qA}             ; j")
e(f"v_and_b32 v{qS}, 0x3fff, v{qS}")
e(f"v_lshl_or_b32 v{RC}, v{qK}, 14, v{qS}")
e(f"v_mov_b32 v{VJ[0]}, v{qA}")
e(f"s_mov_b32 s{sT0}, {ALLOC}")
e(f"v_lshl_add_u32 v{qA}, v{vI0}, 2, s{sT0}")
e(f"v_mov_b32 v{vOne}, 1")
e(f"v_mov_b32 v{qP}, 0")
e(f"v_mul_u32_u24 v{qB}, 6, v{qS}")
e(f"v_and_b32 v{qB}, -4, v{qB}")
for m in MK[1:]: e(f"s_mov_b64 {sp(m)}, 0")
e(f"s_cmp_eq_u64 {sp(sM0)}, 0")
e("s_cbranch_scc1 L_slow_nom")
e(f"s_mov_b64 exec, {sp(sM0)}")
e(f"buffer_load_dwordx2 {vr(PS0,2)}, v{qB}, {srd(S_POS)}, 0 offen")
e(f"ds_add_rtn_u32 v{qR}, v{qA}, v{vOne}")
e("s_mov_b64 exec, -1")
e(f"v_mul_u32_u24 v{vI0}, {GSTR}, v{vI0}")
e("s_waitcnt lgkmcnt(0)")
s1_place(qR, vI0, qS, sM0, "s", slow=True)
lab("L_slow_nom")
e(f"v_mov_b32 v{qA}, 640")
e(f"v_cmp_gt_u32 vcc, v{qA}, v{tid}")
e("s_mov_b64 exec, vcc")
e("s_cbranch_execz L_slow_nopb")
e(f"v_add_u32 v{qA}, {PENDB}, v{tid}")
e(f"ds_write_b8 v{qA}, v{qP}")
lab("L_slow_nopb")
e("s_mov_b64 exec, -1")
e("s_branch L_st2")
lab("L_slow_fin")
if FINR == 2:
    e(f"s_cmp_ge_u32 s{sW}, 8")
    e("s_cbranch_scc1 L_sf_nor")
    final_addr_res("s")
    lab("L_sf_nor")
c("SEG must be zero-initialised if no pass ever ran")
e(f"s_cmp_eq_u32 s{sNODE}, 0")
e("s_cbranch_scc1 L_final_bar")
for r in range(32):
    e(f"v_mov_b32 v{SEG+r}, 0")
lab("L_final_bar")
e("s_barrier")
e("s_branch L_final")

desc = f""".amdhsa_kernel {KNAME}
  .amdhsa_next_free_vgpr 128
  .amdhsa_next_free_sgpr 102
  .amdhsa_accum_offset 128
  .amdhsa_group_segment_fixed_size 0
  .amdhsa_kernarg_size 88
  .amdhsa_user_sgpr_count 2
  .amdhsa_user_sgpr_kernarg_segment_ptr 1
  .amdhsa_system_sgpr_workgroup_id_x 1
.end_amdhsa_kernel"""
body = "\n".join(x for x in out if x is not None)
final = "\n".join(header) + "\n" + body + "\n" + '.section .rodata,"a"\n.p2align 6\n' + desc + "\n"
dest = sys.argv[1] if len(sys.argv) > 1 else "standalone__cheap_equivariant_egnn__graph.s"
open(dest, "w").write(final)
print("wrote", dest, len(out), "lines")
```

```python
import sys, os
sys.path.insert(0, os.path.dirname(os.path.abspath(__file__)))
from g3common import *

KNAME = "standalone__cheap_equivariant_egnn__graph_kernel"
TIMING = os.environ.get("TIMING", "")
NOPRIO = os.environ.get("NOPRIO", "")
QSC = os.environ.get("QSC", " sc1")
FORCE = os.environ.get("FORCE", "")
NPOLL = int(os.environ.get("NPOLL", "3000"))
RSL = int(os.environ.get("RSL", "8"))
QSL = int(os.environ.get("QSL", "4"))
NSL = int(os.environ.get("NSL", "8"))
QST = int(os.environ.get("QST", "8"))
PK = int(os.environ.get("PK", "0"))
XM = int(os.environ.get("XM", "0"))
LATE = int(os.environ.get("LATE", "1"))
BSPEC = int(os.environ.get("BSPEC", "1"))
PPF = int(os.environ.get("PPF", "1"))
WSOFF = int(os.environ.get("WSOFF", "0")) << 20
TLBW = int(os.environ.get("TLBW", "0"))
PLATE = int(os.environ.get("PLATE", "1"))
KO = os.environ.get("KO", "")
OSC = os.environ.get("OSC", "")
if OSC: OSC = " " + OSC.replace("_", " ")
YM = int(os.environ.get("YM", "0"))
SWARM = int(os.environ.get("SWARM", "0"))
PSL = int(os.environ.get("PSL", "0"))
QGATE = int(os.environ.get("QGATE", "8"))
H1W = int(os.environ.get("H1W", "2"))
FPRIO = int(os.environ.get("FPRIO", "2"))
FDEL = int(os.environ.get("FDEL", "0"))
F16 = int(os.environ.get("F16", "1"))
HB = int(os.environ.get("HB", "4"))
BAP = int(os.environ.get("BAP", "3"))
HOIST = int(os.environ.get("HOIST", "1"))
IMM = int(os.environ.get("IMM", "1"))
IDX = int(os.environ.get("IDX", "1"))
FINR = int(os.environ.get("FINR", "2"))
PRIOS = [int(x) for x in os.environ.get("PRIOS", "3210")]
EARLY = int(os.environ.get("EARLY", "1"))
PREF = int(os.environ.get("PREF", "1"))
RWS = int(os.environ.get("RWS", "1"))
RPS = int(os.environ.get("RPS", "2"))
PREFN = int(os.environ.get("PREFN", "1"))
FCOPY = int(os.environ.get("FCOPY", "16"))
FSTR = int(os.environ.get("FSTR", "1024"))
WSC = " sc1" if os.environ.get("WSC", "1") == "1" else ""
FBS = int(os.environ.get("FBS", "0"))
FCS = int(os.environ.get("FCS", "0"))
PREB = int(os.environ.get("PREB", "0"))
BAL = int(os.environ.get("BAL", "0"))
RFE = int(os.environ.get("RFE", "1"))
DELTA = 600
WIN = 8192
GUARD = 800
TAGC = 0x1a5
FLC = 0x5A5AA5A5

CELLA = 0
CHB = 32000
CELLB = 4 << 20
WH2F = 12 << 20
NG = 157; NCH = 63
BIN0 = NG; WPR = NG + NCH
CAP = 136
GSTR = CAP * 64
REC = 0
QT = 8 * GSTR
BXP = QT + 65536
OWN = BXP + 16384
PTF = OWN + 10240
CTR = PTF + 640
ALLOC = CTR; OVF = CTR + 32; PEND = CTR + 36; GCNT = CTR + 40; NONCE = CTR + 44; ZERO16 = CTR + 48
SYN = CTR + 64
RISS = SYN; RCNT = SYN + 4; RCNT2 = SYN + 8; FCNT = SYN + 12; FCNT2 = SYN + 16; RCA = SYN + 20; RLAND = SYN + 24
RCB = SYN + 28; FCB = SYN + 32; FCC = SYN + 36; RPL = SYN + 40; QOKF = SYN + 44; RH1 = SYN + 48; MAPW = SYN + 52
PENDB = CTR + 128
LDS_TOTAL = PENDB + 640
ZB2 = ZERO16 + 1024
if IMM: LDS_TOTAL = ZB2 + 16
assert ZB2 >= PENDB + 640
FLG = 13 << 20
assert LDS_TOTAL <= 163840
NWG = 250

S_H, S_POS, S_EA, S_SRC, S_DST, S_WX, S_O0, S_O1, S_WS, S_Q, S_WE, S_WH = [8 + 4 * i for i in range(12)]
sRW, sRQ, sRL = 56, 57, 58
sC4, sC5 = 4, 5
sW, sQ, sCT, sMODE, sT0, sT1, sT2, sT3 = range(60, 68)
sEX, sM0, sM1, sM2 = 68, 70, 72, 74
sG, sCH2, sCO, sNT, sU, sREM, sK2, sK3, sNODE, sCH, sRETRY, sB0, sB1, sGB, sRT, sPREF = range(76, 92)
sTW, sLOW, sCNT, sC = 92, 93, 94, 95
sPA, sPB = 96, 98
sX0, sX1, sX2 = 96, 97, 98
KS = 76

vL = 0
vLK, vQD, vTRQ0, vTRQ1, vTRS, vOD, vODM = 1, 2, 3, 4, 5, 6, 7
vT = list(range(8, 16))
SEG = 16; ACC = 48; FACC = 64; QF = 80; SF = 88; OHD = 96; BXF = 100; ID = 104; MP = 112; FB = 120
TE = QF
VST = 127

_st = [0]
STAMPS = os.environ.get("STAMPS", "")
STAMPS = set(int(x) for x in STAMPS.split(",")) if STAMPS else None
def stamp(name, idx=None):
    if not TIMING: return
    i = _st[0] if idx is None else idx
    if idx is None: _st[0] += 1
    if STAMPS is not None and i not in STAMPS: return
    c(f"STAMP {i} {name}")
    e(f"s_memtime s[{sC4}:{sC5}]")
    e("s_waitcnt lgkmcnt(0)")
    e(f"v_writelane_b32 v{VST}, s{sC4}, {i}")
    print("stamp", i, name)
def stamp_dyn(base, scnt, mx=11):
    if not TIMING or os.environ.get("STAMPS", ""): return
    e(f"s_memtime s[{sC4}:{sC5}]")
    e(f"s_min_u32 s3, s{scnt}, {mx}")
    e(f"s_add_u32 m0, s3, {base}")
    e("s_waitcnt lgkmcnt(0)")
    e(f"v_writelane_b32 v{VST}, s{sC4}, m0")
def stamp_flush():
    if not TIMING: return
    e(f"s_memrealtime s[{sC4}:{sC5}]")
    e("s_waitcnt lgkmcnt(0)")
    e("s_mov_b64 exec, -1")
    e(f"v_writelane_b32 v{VST}, s100, 62")
    e(f"v_writelane_b32 v{VST}, s{sC4}, 63")
    e(f"s_lshl_b32 s{sT0}, s2, 4")
    e(f"s_add_u32 s{sT0}, s{sT0}, s{sW}")
    e(f"s_lshl_b32 s{sT0}, s{sT0}, 8")
    e(f"s_add_u32 s{sT0}, s{sT0}, {32<<20}")
    e(f"v_lshlrev_b32 v{vT[1]}, 2, v{vL}")
    e(f"buffer_store_dword v{VST}, v{vT[1]}, {srd(S_WS)}, s{sT0} offen")

header = []
header.append(f"; @launch grid=({NWG},1,1) block=(1024,1,1) lds={LDS_TOTAL}")
header.append('.amdgcn_target "amdgcn-amd-amdhsa--gfx950"')
header.append(".text")
header.append(f".globl {KNAME}")
header.append(".p2align 8")
header.append(f".type {KNAME},@function")

lab(KNAME)
e(f"s_cmp_ge_u32 s2, {NWG}")
e("s_cbranch_scc1 L_end2")
e("s_memrealtime s[6:7]")
if TIMING:
    e("s_memrealtime s[100:101]")
if TIMING:
    e(f"v_mov_b32 v{VST}, 0")
stamp("entry")
e(f"s_load_dwordx16 s[{KS}:{KS+15}], s[0:1], 0")
e(f"s_load_dwordx2 s[{S_WS}:{S_WS+1}], s[0:1], 80")
e(f"s_load_dwordx2 s[{S_O0}:{S_O0+1}], s[0:1], 64")
tid = vT[7]
e(f"v_mov_b32 v{tid}, v0")
e(f"v_lshrrev_b32 v{vT[0]}, 6, v0")
e(f"v_and_b32 v{vL}, 63, v0")
e(f"v_readfirstlane_b32 s{sW}, v{vT[0]}")
for (x, sz) in [(S_H,2560000),(S_POS,60000),(S_EA,320000),(S_SRC,640000),(S_DST,640000),(S_WX,256),(S_O0,2560000),(S_O1,60000),
                (S_WS,256*1048576-WSOFF),(S_Q,10000 if IDX else 2560000),(S_WE,66048),(S_WH,65536)]:
    e(f"s_mov_b32 s{x+2}, {sz}")
    e(f"s_mov_b32 s{x+3}, 0x20000")
e(f"s_lshr_b32 s{sQ}, s{sW}, 2")
e(f"s_and_b32 s{sCT}, s{sW}, 3")
e(f"s_and_b32 s{sRW}, s{sW}, 7")
e(f"s_and_b32 s{sRQ}, s{sQ}, 1")
e(f"s_mov_b32 s{sMODE}, 0")
e(f"s_mov_b32 s{sRL}, 0")
def kernarg_copy():
    for (x, k) in [(S_H,0),(S_POS,2),(S_EA,4),(S_SRC,6),(S_DST,8),(S_WE,10),(S_WX,12),(S_WH,14)]:
        e(f"s_mov_b64 s[{x}:{x+1}], s[{KS+k}:{KS+k+1}]")
    if WSOFF:
        e(f"s_add_u32 s{S_WS}, s{S_WS}, {WSOFF}")
        e(f"s_addc_u32 s{S_WS+1}, s{S_WS+1}, 0")
    e(f"s_add_u32 s{S_O1}, s{S_O0}, 2560000")
    e(f"s_addc_u32 s{S_O1+1}, s{S_O0+1}, 0")
    e(f"s_add_u32 s{S_Q}, s{S_WS}, {QOFF}")
    e(f"s_addc_u32 s{S_Q+1}, s{S_WS+1}, {(256 << 16) if IDX else 0}")
    e(f"s_mov_b32 s{sTW}, s6")
    if SWARM:
        c("address-translation warm-up through the scalar path (results unused)")
        lst = [(S_H,0),(S_POS,0),(S_WE,0),(S_WH,0),(S_SRC,0),(S_DST,0),(S_EA,0),(S_H,2097152),(S_WS,0),(S_WS,FLG & 0xfffff if False else 0),(S_Q,0),(S_O0,0)]
        if SWARM == 1: lst = [(S_H,0),(S_POS,0),(S_WE,0),(S_WH,0)]
        if SWARM == 2: lst = [(S_H,0),(S_POS,0),(S_WE,0),(S_WH,0),(S_SRC,0),(S_DST,0),(S_EA,0)]
        if SWARM == 3: lst = [(S_H,0),(S_POS,0),(S_WE,0),(S_WH,0),(S_SRC,0),(S_DST,0),(S_EA,0),(S_WS,0),(S_Q,0),(S_O0,0)]
        for (x, off) in lst:
            e(f"s_load_dword s3, s[{x}:{x+1}], {off}")

vSL = 16; vTRP = 17; vRA = 18; vRD = 19; vST = 20; vU0 = 21; vU1 = 22
def slice_lane(dst, sct):
    e(f"v_lshrrev_b32 v{dst}, 2, v{vL}")
    e(f"v_lshlrev_b32 v{dst}, 8, v{dst}")
    e(f"v_and_b32 v{vU0}, 3, v{vL}")
    e(f"v_lshl_add_u32 v{dst}, v{vU0}, 4, v{dst}")
    e(f"s_lshl_b32 s{sT0}, s{sct}, 6")
    e(f"v_add_u32 v{dst}, s{sT0}, v{dst}")
def trpat(dst, t0, t1):
    e(f"v_lshrrev_b32 v{t0}, 5, v{vL}")
    e(f"v_bfe_u32 v{t1}, v{vL}, 2, 2")
    e(f"v_lshl_add_u32 v{dst}, v{t0}, 3, v{t1}")
    e(f"v_lshlrev_b32 v{dst}, 6, v{dst}")
    e(f"v_bfe_u32 v{t0}, v{vL}, 4, 1")
    e(f"v_lshl_add_u32 v{dst}, v{t0}, 5, v{dst}")
    e(f"v_and_b32 v{t0}, 3, v{vL}")
    e(f"v_lshl_add_u32 v{dst}, v{t0}, 3, v{dst}")
def row_addr(dst, vrow, vhi, tmp, base=OWN):
    e(f"v_and_b32 v{tmp}, 15, v{vrow}")
    e(f"v_xor_b32 v{tmp}, v{tmp}, v{vhi}")
    e(f"v_lshlrev_b32 v{tmp}, 4, v{tmp}")
    e(f"v_lshl_add_u32 v{dst}, v{vrow}, 8, v{tmp}")
    e(f"v_add_u32 v{dst}, {base}, v{dst}")

Z = 24
for i in range(4): e(f"v_mov_b32 v{Z+i}, 0")
c("wave 0: zero the counters (128 B), then B0")
e(f"s_cmp_eq_u32 s{sW}, 0")
e("s_cbranch_scc0 L_b0")
e(f"v_lshlrev_b32 v{vT[0]}, 4, v{vL}")
e(f"v_add_u32 v{vT[0]}, {CTR}, v{vT[0]}")
e("s_mov_b64 exec, 0xff")
e(f"ds_write_b128 v{vT[0]}, {vr(Z,4)}")
if IMM:
    e(f"v_mov_b32 v{vT[0]}, {ZB2}")
    e("s_mov_b64 exec, 1")
    e(f"ds_write_b128 v{vT[0]}, {vr(Z,4)}")
e("s_mov_b64 exec, -1")
e("s_waitcnt lgkmcnt(0)")
lab("L_b0")
e("s_barrier")
vA_ = 23
_sy = [0]
def arrive(addr, regs=None):
    a_, d_ = regs if regs else (vA_, vU1)
    e(f"v_mov_b32 v{a_}, {addr}")
    e(f"v_mov_b32 v{d_}, 1")
    e("s_mov_b64 exec, 1")
    e(f"ds_add_u32 v{a_}, v{d_}")
    e("s_mov_b64 exec, -1")
def wait_cnt(addr, n, nz=False, dst=None, regs=None, slp=1):
    i = _sy[0]; _sy[0] += 1
    d = dst if dst is not None else sT0
    a_, d_ = regs if regs else (vA_, vU1)
    e(f"v_mov_b32 v{a_}, {addr}")
    lab(f"L_sy{i}")
    e(f"ds_read_b32 v{d_}, v{a_}")
    e("s_waitcnt lgkmcnt(0)")
    e(f"v_readfirstlane_b32 s{d}, v{d_}")
    if nz: e(f"s_cmp_lg_u32 s{d}, 0")
    else:  e(f"s_cmp_ge_u32 s{d}, {n}")
    e(f"s_cbranch_scc1 L_syd{i}")
    e(f"s_sleep {slp}")
    e(f"s_branch L_sy{i}")
    lab(f"L_syd{i}")
e(f"s_cmp_ge_u32 s{sW}, 8")
e("s_cbranch_scc1 L_front")
def lane_consts():
    e(f"s_lshr_b32 s{sG}, s{sW}, 1")
    e(f"s_and_b32 s{sCH2}, s{sW}, 1")
    e(f"s_mul_i32 s{sGB}, s{sG}, {GSTR}")
    e(f"s_lshl_b32 s{sB0}, s{sW}, 12")
    e(f"s_add_u32 s{sB0}, s{sB0}, {QT}")
    e(f"s_add_u32 s{sB1}, s{sB0}, 2048")
    c("lane constants (REC rows swizzled: 16-B chunk c of row with rank p at position c ^ ((p>>2)&3))")
    e(f"v_lshrrev_b32 v{vT[3]}, 5, v{vL}           ; hi")
    e(f"v_lshrrev_b32 v{vT[4]}, 3, v{vL}")
    e(f"v_lshlrev_b32 v{vLK}, 6, v{vT[4]}")
    e(f"v_xor_b32 v{vT[4]}, 1, v{vT[3]}")
    e(f"v_lshl_add_u32 v{vLK}, v{vT[4]}, 4, v{vLK}")
    e(f"s_add_u32 s{sT0}, s{sGB}, {REC}")
    e(f"v_add_u32 v{vLK}, s{sT0}, v{vLK}")
    e(f"v_and_b32 v{vT[5]}, 7, v{vL}")
    e(f"v_bfe_u32 v{vT[6]}, v{vL}, 4, 1")
    e(f"v_lshlrev_b32 v{vT[4]}, 2, v{vT[6]}")
    e(f"v_xor_b32 v{vT[5]}, v{vT[5]}, v{vT[4]}")
    e(f"v_lshlrev_b32 v{vQD}, 4, v{vT[5]}")
    e(f"s_lshl_b32 s{sT1}, s{sCH2}, 7")
    e(f"v_add_u32 v{vQD}, s{sT1}, v{vQD}            ; ch*128 + (((l&7) ^ 4*((l>>4)&1))<<4)")
    c("vT6 = colhalf ; r = (l>>2)&3 ; c4 = l&3")
    e(f"v_bfe_u32 v{vT[4]}, v{vL}, 2, 2            ; r")
    e(f"v_and_b32 v{vT[5]}, 3, v{vL}")
    e(f"v_lshlrev_b32 v{vT[2]}, 5, v{vT[6]}")
    e(f"v_lshl_add_u32 v{vT[2]}, v{vT[5]}, 3, v{vT[2]}   ; colhalf*32 + c4*8")
    e(f"v_lshl_add_u32 v{vTRQ0}, v{vT[3]}, 3, v{vT[4]}   ; 8hi + r")
    e(f"v_lshl_add_u32 v{vTRQ0}, v{vTRQ0}, 7, v{vT[2]}")
    e(f"v_bfe_u32 v{vT[5]}, v{vL}, 3, 1            ; (r>>1)&1")
    e(f"v_lshl_add_u32 v{vTRQ0}, v{vT[5]}, 6, v{vTRQ0}")
    e(f"v_add_u32 v{vTRQ0}, s{sB0}, v{vTRQ0}")
    e(f"v_xor_b32 v{vTRQ1}, 64, v{vTRQ0}")
    c("vTRS = REC + g*GSTR + (4hi + r)*64 + ((colhalf*32 + c4*8) ^ (hi<<4))")
    e(f"v_lshlrev_b32 v{vT[5]}, 4, v{vT[3]}")
    e(f"v_xor_b32 v{vT[2]}, v{vT[2]}, v{vT[5]}")
    e(f"v_lshl_add_u32 v{vTRS}, v{vT[3]}, 2, v{vT[4]}    ; 4hi + r")
    e(f"v_lshl_add_u32 v{vTRS}, v{vTRS}, 6, v{vT[2]}")
    e(f"v_add_u32 v{vTRS}, s{sT0}, v{vTRS}")
    c("OHD: lanes 0..15 and 48..63 read chunk 0 of row (l&15) at position (row>>2)&3; others read ZERO16")
    e(f"v_and_b32 v{vT[4]}, 15, v{vL}")
    e(f"v_bfe_u32 v{vT[5]}, v{vL}, 2, 2")
    e(f"v_lshlrev_b32 v{vT[4]}, 6, v{vT[4]}")
    e(f"v_lshl_add_u32 v{vT[4]}, v{vT[5]}, 4, v{vT[4]}")
    e(f"v_add_u32 v{vT[4]}, s{sT0}, v{vT[4]}")
    e(f"v_cmp_eq_u32 vcc, v{vT[3]}, v{vT[6]}")
    e(f"v_mov_b32 v{vT[5]}, {ZERO16}")
    e(f"v_cndmask_b32 v{vOD}, v{vT[5]}, v{vT[4]}, vcc")
    e(f"v_mov_b32 v{vT[4]}, {2048 if IMM else 1024}")
    e(f"v_cndmask_b32 v{vODM}, 0, v{vT[4]}, vcc")
    e(f"s_mov_b32 s{sNODE}, 1")
    e(f"s_mov_b32 s{sPREF}, 0")
RA = 96; RB = 100; vGA = 120
PS = [56, 58, 60, 62]
VI = [80, 81, 82, 83]
VR = [84, 85, 86, 87]
vOne = 89
qP = 90
VJ = [120+0, 0, 0, 0]
VJ = [124, 125, 95, 88]
def id_consts(t0, t1):
    c("ID constants: lane (m,hi): step s elem i = (m == 16s + 8hi + i)")
    e(f"v_and_b32 v{t0}, 1, v{vL}")
    e(f"v_lshlrev_b32 v{t0}, 4, v{t0}")
    e(f"v_mov_b32 v{t1}, 0x3f80")
    e(f"v_lshlrev_b32 v{t0}, v{t0}, v{t1}")
    for s_ in range(2):
        for r in range(4):
            m = 0
            for l in range(64):
                x = (l & 31) - 8 * (l >> 5)
                if x in (16*s_ + 2*r, 16*s_ + 2*r + 1): m |= 1 << l
            e(f"s_mov_b32 vcc_lo, 0x{m & 0xffffffff:x}")
            e(f"s_mov_b32 vcc_hi, 0x{m >> 32:x}")
            e(f"v_cndmask_b32 v{ID+4*s_+r}, 0, v{t0}, vcc")
def seg_zero():
    for r in range(32):
        e(f"v_mov_b32 v{SEG+r}, 0")
MK = [sM0, sM1, sPA, sPB]
if not NOPRIO: e("s_setprio 2")
c("zero REC tail (4096 B, threads 256..511)")
e(f"v_lshlrev_b32 v{vT[0]}, 4, v{tid}")
e(f"v_add_u32 v{vT[1]}, {65536 - 4096}, v{vT[0]}")
e(f"v_cmp_lt_u32 vcc, 255, v{tid}")
e("s_mov_b64 exec, vcc")
e(f"s_cbranch_execz L_notail")
e(f"ds_write_b128 v{vT[1]}, {vr(Z,4)}")
lab("L_notail")
e("s_mov_b64 exec, -1")
e(f"s_cmp_ge_u32 s2, {BIN0}")
e("s_cbranch_scc1 L_notgemm")

AF = 24; BF = 56; D0 = 88
def gemm_role(tag, blk, fb):
    slice_lane(vSL, sCT)
    c("rows DMA lane offset: row = 8w + 4i + (l>>4); chunk = (l&15) ^ (row&15)")
    e(f"v_lshrrev_b32 v{vU0}, 4, v{vL}")
    e(f"v_and_b32 v{vU1}, 15, v{vL}")
    e(f"v_xor_b32 v{vU1}, v{vU1}, v{vU0}")
    e(f"s_and_b32 s{sT0}, s{sRW}, 1")
    e(f"s_lshl_b32 s{sT0}, s{sT0}, 3")
    e(f"v_xor_b32 v{vU1}, s{sT0}, v{vU1}")
    e(f"v_lshlrev_b32 v{vU1}, 4, v{vU1}")
    e(f"v_lshl_add_u32 v{vRA}, v{vU0}, 8, v{vU1}")
    e(f"v_xor_b32 v{vRD}, 64, v{vRA}")
    e(f"s_lshl_b32 s{sT0}, s{sCT}, 13")
    e(f"s_lshl_b32 s{sT1}, s{sRQ}, 12")
    e(f"s_add_u32 s{sT0}, s{sT0}, s{sT1}")
    e(f"s_add_u32 s{sT0}, s{sT0}, {QT}")
    e(f"s_lshl_b32 s{sT1}, s{sRQ}, 14")
    e(f"s_add_u32 s{sT1}, s{sT1}, 32768")
    e(f"s_lshl_b32 s{sT3}, s{sRW}, 11")
    e(f"s_lshl_b32 s{sX0}, s{blk}, 14")
    e(f"s_add_u32 s{sX0}, s{sX0}, s{sT3}           ; (64r + 8w)*256")
    if not fb:
        e("s_waitcnt lgkmcnt(0)")
        stamp("kernarg", 1)
        kernarg_copy()
    e(f"s_add_u32 m0, s{sT3}, {QT+32768}")
    e(f"s_add_u32 s{sX1}, s{sX0}, 1024")
    e(f"buffer_load_dwordx4 v{vRA}, {srd(S_H)}, s{sX0} offen lds")
    e(f"s_add_u32 m0, s{sT3}, {QT+32768+1024}")
    e(f"s_nop 0")
    e(f"buffer_load_dwordx4 v{vRD}, {srd(S_H)}, s{sX1} offen lds")
    for i in range(4):
        e(f"s_add_u32 m0, s{sT0}, {i*1024}")
        e(f"s_add_u32 s{sT2}, s{sT1}, {i*4096}")
        e(f"buffer_load_dwordx4 v{vSL}, {srd(S_WE)}, s{sT2} offen lds")
    if not fb:
        if not LATE: arrive(RISS)
        stamp("role loads issued", 2)
    c("compute: all 8 waves, rb = w>>2, ct = w&3 : 32 rows x 32 cols")
    trpat(vTRP, vU0, vU1)
    e(f"s_lshl_b32 s{sT0}, s{sCT}, 13")
    e(f"s_add_u32 s{sT0}, s{sT0}, {QT}")
    e(f"v_add_u32 v{vTRP}, s{sT0}, v{vTRP}")
    c("row read address: QT+32768 + (rb*32+n)*256 + ((hi ^ (n&15))<<4) ^ (s<<5)")
    e(f"v_and_b32 v{vU0}, 31, v{vL}")
    e(f"v_lshrrev_b32 v{vU1}, 5, v{vL}")
    e(f"v_and_b32 v{vRD}, 15, v{vL}")
    e(f"v_xor_b32 v{vRD}, v{vRD}, v{vU1}")
    e(f"v_lshlrev_b32 v{vRD}, 4, v{vRD}")
    e(f"v_lshl_add_u32 v{vRD}, v{vU0}, 8, v{vRD}")
    e(f"s_lshl_b32 s{sT0}, s{sRQ}, 13")
    e(f"s_add_u32 s{sT0}, s{sT0}, {QT+32768}")
    e(f"v_add_u32 v{vRD}, s{sT0}, v{vRD}")
    c("out tile (2 KB per wave) write addr: OB + n*64 + ((bb ^ ((n>>2)&3))<<4) + hi*8")
    e(f"s_lshl_b32 s{sT0}, s{sRW}, 11")
    e(f"s_add_u32 s{sT0}, s{sT0}, {QT+49152}")
    e(f"v_bfe_u32 v{vRA}, v{vL}, 2, 2")
    e(f"v_lshlrev_b32 v{vRA}, 4, v{vRA}")
    e(f"v_lshl_add_u32 v{vRA}, v{vU0}, 6, v{vRA}")
    e(f"v_lshl_add_u32 v{vRA}, v{vU1}, 3, v{vRA}")
    e(f"v_add_u32 v{vRA}, s{sT0}, v{vRA}")
    c("out tile read addr: OB + (r + 16i)*64 + ((q ^ ((r>>2)&3))<<4), r = l>>2, q = l&3 ; store: row*256 + ct*64 + q*16")
    e(f"v_lshrrev_b32 v{vU0}, 2, v{vL}")
    e(f"v_and_b32 v{vU1}, 3, v{vL}")
    e(f"v_bfe_u32 v{vSL}, v{vL}, 4, 2")
    e(f"v_xor_b32 v{vSL}, v{vSL}, v{vU1}")
    e(f"v_lshlrev_b32 v{vSL}, 4, v{vSL}")
    e(f"v_lshl_add_u32 v{vSL}, v{vU0}, 6, v{vSL}")
    e(f"v_add_u32 v{vSL}, s{sT0}, v{vSL}")
    e(f"v_lshlrev_b32 v{vST}, 4, v{vU1}")
    e(f"v_lshl_add_u32 v{vST}, v{vU0}, 8, v{vST}")
    e(f"s_lshl_b32 s{sT0}, s{blk}, 14")
    e(f"s_lshl_b32 s{sT1}, s{sRQ}, 13")
    e(f"s_add_u32 s{sT0}, s{sT0}, s{sT1}")
    e(f"s_lshl_b32 s{sT1}, s{sCT}, 6")
    e(f"s_add_u32 s{sC}, s{sT0}, s{sT1}")
    if IDX: e(f"s_add_u32 s{sC}, s{sC}, {QOFF}")
    e("s_waitcnt vmcnt(0) lgkmcnt(0)")
    if not fb: stamp("role loads landed", 3)
    if fb:
        e("s_barrier")
    else:
        arrive(RCNT)
        if LATE: arrive(RISS)
        wait_cnt(RCNT, 8)
        stamp("B1", 4)
    for s_ in range(8):
        e(f"v_xor_b32 v{vU0}, {s_<<5}, v{vRD}")
        e(f"ds_read_b128 {vr(BF+4*s_,4)}, v{vU0}")
        e(f"ds_read_b64_tr_b16 {vr(AF+4*s_,2)}, v{vTRP} offset:{s_*1024}")
        e(f"ds_read_b64_tr_b16 {vr(AF+4*s_+2,2)}, v{vTRP} offset:{s_*1024+256}")
    for s_ in range(8):
        e(f"s_waitcnt lgkmcnt({min(15, 21-3*s_)})")
        mfma(D0, AF+4*s_, BF+4*s_, "0" if s_ == 0 else vr(D0,16))
    if not fb: arrive(RCA)
    e(f"s_mov_b32 s{sT1}, 0x{NLOG2E:08x}")
    e("s_nop 7")
    e("s_nop 3")
    for bb in range(4):
        r0 = D0 + 4*bb
        for i in range(4):
            e(f"v_mul_f32 v{r0+i}, s{sT1}, v{r0+i}")
        e(f"v_cvt_pk_bf16_f32 v{r0}, v{r0}, v{r0+1}")
        e(f"v_cvt_pk_bf16_f32 v{r0+1}, v{r0+2}, v{r0+3}")
        e(f"v_xor_b32 v{vU0}, {bb<<4}, v{vRA}")
        e(f"ds_write_b64 v{vU0}, {vr(r0,2)}")
    e("s_waitcnt lgkmcnt(0)")
    for i in range(2):
        e(f"ds_read_b128 {vr(AF+4*i,4)}, v{vSL} offset:{i*1024}")
    e(f"s_add_u32 s{sT1}, s{sC}, 4096")
    for i in range(2):
        e(f"s_waitcnt lgkmcnt({1-i})")
        e(f"buffer_store_dwordx4 {vr(AF+4*i,4)}, v{vST}, {srd(S_WS if IDX else S_Q)}, s{[sC,sT1][i]} offen sc1")
    if not fb: stamp("role stores issued", 5)

gemm_role("", 2, False)
e(f"s_mov_b32 s{sRL}, 8")
e(f"s_lshl_b32 s{sX1}, s2, 2")
e(f"s_add_u32 s{sX1}, s{sX1}, {FLG}")
FM1 = sum(1 << (4*i) for i in range(FCOPY)); FM4 = (1 << (4*FCOPY)) - 1
e(f"s_mov_b32 s{sM0}, 0x{FM1 & 0xffffffff:x}")
e(f"s_mov_b32 s{sM0+1}, 0x{FM1 >> 32:x}")
e("s_branch L_rfront")

lab("L_notgemm")
e(f"s_cmp_ge_u32 s2, {WPR}")
e("s_cbranch_scc1 L_notbin")
c("binning chunk c = wg - 157: edges e = 2560c + 512i + t ; LDS image: cell b at QT + b*128 (+32000 for ranks 16..31), 8-B records")
NE = 5
CNT = QT + 64000
vD = 24; vS = 29; vB = 34; vR = 39; vP = 44; vE = 54; vE2 = 55; vOne_ = 56; vK = 57; vG_ = 58
VM = [76, 78, 80, 82, 84]
sN40, sCB = 86, 87
e(f"s_sub_u32 s{sC}, s2, {BIN0}")
e(f"s_mul_i32 s{sT0}, s{sC}, {2560*4}")
e(f"v_lshlrev_b32 v{vE}, 2, v{tid}")
e(f"v_lshlrev_b32 v{vE2}, 1, v{tid}")
e(f"v_lshlrev_b32 v{vK}, 4, v{tid}")
e(f"v_add_u32 v{vK}, {QT}, v{vK}")
e(f"v_mov_b32 v{vOne_}, 1")
e(f"s_add_u32 s{sT2}, s{sT0}, 4096")
e(f"s_add_u32 s{sT1}, s{sT0}, 8192")
e(f"s_lshr_b32 s{sX0}, s{sT0}, 1")
e(f"s_add_u32 s{sX1}, s{sX0}, 4096")
e("s_waitcnt lgkmcnt(0)")
stamp("kernarg", 1)
kernarg_copy()
def soff(i): return [sT0, sT0, sT2, sT2, sT1][i], (i & 1) * 2048 if i < 4 else 0
for i in range(NE):
    so, of = soff(i)
    e(f"buffer_load_dword v{vD+i}, v{vE}, {srd(S_DST)}, s{so} offen offset:{of}")
for i in range(NE):
    so, of = soff(i)
    e(f"buffer_load_dword v{vS+i}, v{vE}, {srd(S_SRC)}, s{so} offen offset:{of}")
for i in range(NE):
    so = sX0 if i < 4 else sX1
    e(f"buffer_load_ushort v{vP+2*i+1}, v{vE2}, {srd(S_EA)}, s{so} offen offset:{(i & 3) * 1024 if i < 4 else 0}")
if not LATE: arrive(RISS)
stamp("role loads issued", 2)
c("zero the image and the counters (64 KB) ; v60..63 = 0")
for i in range(4): e(f"v_mov_b32 v{60+i}, 0")
for i in range(8):
    e(f"ds_write_b128 v{vK}, {vr(60,4)} offset:{i*8192}")
arrive(RCNT)
c("validity: e < 160000  <=> byte offset < 640000")
e(f"v_add_u32 v{vE}, s{sT0}, v{vE}")
for i in range(NE):
    e(f"s_mov_b32 s{sX0}, {640000 - i*2048}")
    e(f"v_cmp_gt_u32 {sp(VM[i])}, s{sX0}, v{vE}")
e(f"s_mov_b32 s{sX0}, {CNT}")
e(f"s_mov_b32 s{sX1}, {QT}")
e(f"s_mov_b32 s{sN40}, -40")
e(f"s_mov_b32 s{sCB}, {CHB - 128}")
e(f"s_mov_b32 s{sT3}, {1 << 20}")
wait_cnt(RCNT, 8, dst=sX2)
stamp("B1", 4)
for i in range(NE):
    e(f"s_waitcnt vmcnt({3*NE-1-i})")
    e(f"v_mul_u32_u24 v{vB+i}, 52429, v{vD+i}")
    e(f"v_lshrrev_b32 v{vB+i}, 21, v{vB+i}")
    e(f"v_lshl_add_u32 v{vU0}, v{vB+i}, 2, s{sX0}")
    e(f"s_mov_b64 exec, {sp(VM[i])}")
    e(f"ds_add_rtn_u32 v{vR+i}, v{vU0}, v{vOne_}")
    e(f"v_mad_i32_i24 v{vD+i}, v{vB+i}, s{sN40}, v{vD+i}       ; k")
    e(f"v_lshl_add_u32 v{vB+i}, v{vB+i}, 7, s{sX1}")
    e(f"v_lshlrev_b32 v{vD+i}, 14, v{vD+i}")
    e(f"s_mov_b64 exec, -1")
for i in range(NE):
    e(f"s_waitcnt vmcnt({2*NE-1-i})")
    e(f"v_or3_b32 v{vP+2*i}, v{vD+i}, v{vS+i}, s{sT3}")
e("s_waitcnt vmcnt(0) lgkmcnt(0)")
if LATE: arrive(RISS)
stamp("role loads landed", 3)
for i in range(NE):
    e(f"v_lshl_add_u32 v{vU0}, v{vR+i}, 3, v{vB+i}")
    e(f"v_lshrrev_b32 v{vU1}, 4, v{vR+i}")
    e(f"s_mov_b64 exec, {sp(VM[i])}")
    e(f"v_cmp_gt_u32 vcc, 32, v{vR+i}")
    e(f"v_mad_u32_u24 v{vU0}, v{vU1}, s{sCB}, v{vU0}")
    e(f"s_mov_b64 exec, vcc")
    e(f"ds_write_b64 v{vU0}, {vr(vP+2*i,2)}")
    e(f"s_mov_b64 exec, -1")
e("s_waitcnt lgkmcnt(0)")
arrive(RCNT2)
c("copy-out: granule x = t + 512i (<2000): cell b = x>>3, q = x&7")
GA = 24; vCn = 40; vX = 45; vF = 46; vY = 47; vXL = 52
e(f"v_lshlrev_b32 v{vX}, 4, v{tid}               ; x*16 (i=0)")
e(f"v_lshrrev_b32 v{vY}, 3, v{tid}")
e(f"v_lshl_add_u32 v{vY}, v{vY}, 2, s{sX0}")
e(f"v_add_u32 v{vXL}, {QT}, v{vX}")
e(f"s_mul_i32 s{sT0}, s{sC}, {CHB}")
e(f"s_bfe_u32 s{sT1}, s{sTW}, {3 | (9<<16)}")
e(f"s_xor_b32 s{sT1}, s{sT1}, {TAGC}")
e(f"s_lshl_b32 s{sT1}, s{sT1}, 23")
e(f"s_mov_b32 s{sX1}, {2000-1536}")
e(f"v_cmp_gt_u32 {sp(sM1)}, s{sX1}, v{tid}")
e(f"v_mov_b32 v{vCn+3}, 0")
wait_cnt(RCNT2, 8, dst=sX2)
stamp("B2", 6)
for i in range(4):
    if i == 3:
        e(f"s_mov_b64 exec, {sp(sM1)}")
    e(f"ds_read_b128 {vr(GA+4*i,4)}, v{vXL} offset:{i*8192}")
    e(f"ds_read_b32 v{vCn+i}, v{vY} offset:{i*256}")
e("s_mov_b64 exec, -1")
def granule(G, cn, so):
    e(f"v_add_u32 v{vU0}, 15, v{cn}")
    e(f"v_lshrrev_b32 v{vU0}, 4, v{vU0}")
    e(f"v_min_u32 v{vU0}, 3, v{vU0}")
    e(f"v_lshl_or_b32 v{vF}, v{vU0}, 21, s{sT1}")
    e(f"v_lshl_or_b32 v{G+1}, v{G+3}, 16, v{G+1}")
    e(f"v_or_b32 v{G}, v{G}, v{vF}")
    e(f"v_or_b32 v{G+2}, v{G+2}, v{vF}")
    e(f"v_mov_b32 v{G+3}, s{sTW}")
    e(f"buffer_store_dwordx4 {vr(G,4)}, v{vX}, {srd(S_WS)}, s{so} offen sc1")
for i in range(4):
    if i == 3:
        e(f"s_mov_b64 exec, {sp(sM1)}")
    e(f"s_waitcnt lgkmcnt({2*(3-i)})")
    granule(GA+4*i, vCn+i, sT0)
    e(f"s_add_u32 s{sT0}, s{sT0}, 8192")
e("s_mov_b64 exec, -1")
stamp("role stores issued", 5)
c("B lines (ranks 16..31) for cells with count > 16")
e(f"s_mul_i32 s{sT0}, s{sC}, {CHB}")
e(f"s_add_u32 s{sT0}, s{sT0}, {CELLB}")
for i in range(4):
    e(f"v_cmp_lt_u32 vcc, 16, v{vCn+i}")
    e("s_mov_b64 exec, vcc")
    e(f"s_cbranch_execz L_nob{i}")
    e(f"ds_read_b128 {vr(48,4)}, v{vXL} offset:{CHB+i*8192}")
    e("s_waitcnt lgkmcnt(0)")
    granule(48, vCn+i, sT0)
    e("s_nop 1")
    lab(f"L_nob{i}")
    e("s_mov_b64 exec, -1")
    e(f"s_add_u32 s{sT0}, s{sT0}, 8192")
arrive(RCA)
e("s_branch L_rfront")

lab("L_notbin")
def wprep_role(tag, fb):
    slice_lane(vSL, sCT)
    e(f"s_lshl_b32 s{sT2}, s{sCT}, 13")
    e(f"s_add_u32 s{sT2}, s{sT2}, {QT}")
    trpat(vTRP, vU0, vU1)
    e(f"v_add_u32 v{vTRP}, s{sT2}, v{vTRP}")
    e(f"v_lshlrev_b32 v{vST}, 4, v{vL}")
    for i in range(8):
        e(f"s_add_u32 m0, s{sT2}, {i*1024}")
        e(f"s_mov_b32 s{sT1}, {32768 + i*4096}")
        e(f"buffer_load_dwordx4 v{vSL}, {srd(S_WH)}, s{sT1} offen lds")
    e(f"s_lshl_b32 s{sC}, s{sCT}, 13")
    e(f"s_add_u32 s{sC}, s{sC}, {WH2F}")
    e("s_waitcnt vmcnt(0)")
    for s_ in range(8):
        e(f"ds_read_b64_tr_b16 {vr(AF+4*s_,2)}, v{vTRP} offset:{s_*1024}")
        e(f"ds_read_b64_tr_b16 {vr(AF+4*s_+2,2)}, v{vTRP} offset:{s_*1024+256}")
    for s_ in range(8):
        if s_ == 4:
            e(f"s_add_u32 s{sC}, s{sC}, 4096")
        e(f"s_waitcnt lgkmcnt({2*(7-s_)})")
        e(f"buffer_store_dwordx4 {vr(AF+4*s_,4)}, v{vST}, {srd(S_WS)}, s{sC} offen offset:{(s_%4)*1024} sc1")
e("s_waitcnt lgkmcnt(0)")
stamp("kernarg", 1)
kernarg_copy()
arrive(RISS)
c("workgroups WPR..WPR+3: slice ct = wg - WPR of WH2 ; wave w converts k-step w")
e(f"s_sub_u32 s{sC}, s2, {WPR}")
e(f"s_cmp_ge_u32 s{sC}, 4")
e("s_cbranch_scc1 L_norole")
slice_lane(vSL, sC)
trpat(vTRP, vU0, vU1)
e(f"s_lshl_b32 s{sT2}, s{sW}, 10")
e(f"s_add_u32 s{sT2}, s{sT2}, {QT}")
e(f"v_add_u32 v{vTRP}, s{sT2}, v{vTRP}")
e(f"v_lshlrev_b32 v{vST}, 4, v{vL}")
e(f"s_lshl_b32 s{sT1}, s{sW}, 12")
e(f"s_add_u32 s{sT1}, s{sT1}, 32768")
e(f"s_mov_b32 m0, s{sT2}")
e(f"s_lshl_b32 s{sT3}, s{sC}, 13")
e(f"buffer_load_dwordx4 v{vSL}, {srd(S_WH)}, s{sT1} offen lds")
e(f"s_lshl_b32 s{sT0}, s{sW}, 10")
e(f"s_add_u32 s{sT3}, s{sT3}, s{sT0}")
e(f"s_add_u32 s{sT3}, s{sT3}, {WH2F}")
e("s_waitcnt vmcnt(0)")
e(f"ds_read_b64_tr_b16 {vr(AF,2)}, v{vTRP}")
e(f"ds_read_b64_tr_b16 {vr(AF+2,2)}, v{vTRP} offset:256")
e("s_waitcnt lgkmcnt(0)")
e(f"buffer_store_dwordx4 {vr(AF,4)}, v{vST}, {srd(S_WS)}, s{sT3} offen sc1")
e(f"s_mov_b32 s{sRL}, 8")
e(f"s_lshl_b32 s{sX1}, s{sC}, 2")
e(f"s_add_u32 s{sX1}, s{sX1}, {FLG + NG*4}")
e(f"s_mov_b32 s{sM0}, 0x{FM1 & 0xffffffff:x}")
e(f"s_mov_b32 s{sM0+1}, 0x{FM1 >> 32:x}")
e(f"s_cmp_eq_u32 s{sC}, 3")
e("s_cbranch_scc0 L_wp_nopad")
c("the last one also fills the three padding flags")
e(f"s_mov_b32 s{sM0}, 0x{FM4 & 0xffffffff:x}")
e(f"s_mov_b32 s{sM0+1}, 0x{FM4 >> 32:x}")
lab("L_wp_nopad")
lab("L_norole")
arrive(RCA)

vFRD = 126
def node_addr2(dst, node, cmp_, t0, t1, vhi):
    e(f"v_mul_u32_u24 v{t1}, 52, v{node}")
    e(f"v_lshrrev_b32 v{t1}, 8, v{t1}             ; g")
    e(f"v_mul_u32_u24 v{t0}, 5, v{t1}")
    e(f"v_sub_u32 v{t0}, v{node}, v{t0}          ; j")
    if cmp_ is not None:
        e(f"v_lshl_add_u32 v{t0}, v{cmp_}, 3, v{t0}")
    e(f"v_add_u32 v{t0}, 3, v{t0}                 ; f")
    e(f"v_bfe_u32 v{dst}, v{t0}, 2, 2")
    e(f"v_xor_b32 v{dst}, v{dst}, v{vhi}")
    e(f"v_lshlrev_b32 v{t0}, 6, v{t0}")
    e(f"v_lshl_add_u32 v{t0}, v{t1}, 13, v{t0}")
    e(f"v_and_b32 v{t1}, 3, v{t1}")
    e(f"v_xor_b32 v{dst}, v{dst}, v{t1}")
    e(f"v_lshl_add_u32 v{dst}, v{dst}, 4, v{t0}")
    e(f"v_add_u32 v{dst}, {QT}, v{dst}")
def rolec_node(vn, vnode, vcmp, t0, t1):
    c("role C: n' = min(n,29); idx = 30ct + n' ; G = idx/15 ; r = idx%15 ; c = r/5 ; j = r%5 ; node = 5G + j ; comp = c+1")
    e(f"v_min_u32 v{t0}, 29, v{vn}")
    e(f"v_cmp_lt_u32 vcc, 14, v{t0}")
    e(f"v_cndmask_b32 v{t1}, 0, 1, vcc               ; G&1")
    e(f"v_mul_u32_u24 v{vnode}, 15, v{t1}")
    e(f"v_sub_u32 v{t0}, v{t0}, v{vnode}          ; r")
    e(f"v_mul_u32_u24 v{vcmp}, 52, v{t0}")
    e(f"v_lshrrev_b32 v{vcmp}, 8, v{vcmp}              ; c")
    e(f"v_mul_u32_u24 v{vnode}, 5, v{vcmp}")
    e(f"v_sub_u32 v{t0}, v{t0}, v{vnode}          ; j")
    e(f"s_lshl_b32 s{sT0}, s{sCT}, 1")
    e(f"v_add_u32 v{t1}, s{sT0}, v{t1}            ; G")
    e(f"v_mad_u32_u24 v{vnode}, v{t1}, 5, v{t0}")
    e(f"v_add_u32 v{vcmp}, 1, v{vcmp}")
def final_addr(rwaves):
    n, hi, nd, cm, t0, t1 = vT[0], vT[1], vT[2], vT[3], vT[4], vT[5]
    e(f"v_and_b32 v{n}, 31, v{vL}")
    e(f"v_lshrrev_b32 v{hi}, 5, v{vL}")
    if rwaves:
        c("role A: node n ; role B: node 32 + (n&7)")
        e(f"v_and_b32 v{nd}, 7, v{n}")
        e(f"v_add_u32 v{nd}, 32, v{nd}")
        e(f"s_cmp_eq_u32 s{sQ}, 0")
        e(f"s_cselect_b64 vcc, -1, 0")
        e(f"v_cndmask_b32 v{nd}, v{nd}, v{n}, vcc")
        node_addr2(vFRD, nd, None, t0, t1, hi)
    else:
        rolec_node(n, nd, cm, t0, t1)
        node_addr2(vFRD, nd, cm, t0, t1, hi)
vFOFF, vFRES = 124, 125
def final_addr_res(tag):
    n, hi, t0, t1 = vT[0], vT[1], vT[2], vT[3]
    e(f"v_and_b32 v{n}, 31, v{vL}")
    e(f"v_lshrrev_b32 v{hi}, 5, v{vL}")
    e(f"s_mul_i32 s{sT1}, s2, 40")
    e(f"s_cmp_eq_u32 s{sQ}, 0")
    e(f"s_cbranch_scc0 L_far_b{tag}")
    c("role A residual: h[node n][32ct + 8bb + 4hi..+3]: OWN + n*256 + (((ct*4+bb) ^ (n&15))<<4) + hi*8")
    e(f"v_and_b32 v{t0}, 15, v{n}")
    e(f"s_lshl_b32 s{sT0}, s{sCT}, 2")
    e(f"v_xor_b32 v{t0}, s{sT0}, v{t0}")
    e(f"v_lshlrev_b32 v{t0}, 4, v{t0}")
    e(f"v_lshl_add_u32 v{t0}, v{n}, 8, v{t0}")
    e(f"v_lshl_add_u32 v{t0}, v{hi}, 3, v{t0}")
    e(f"v_add_u32 v{vFRES}, {OWN}, v{t0}")
    e(f"v_add_u32 v{vFOFF}, s{sT1}, v{n}")
    e(f"v_lshlrev_b32 v{vFOFF}, 8, v{vFOFF}")
    e(f"v_lshl_add_u32 v{vFOFF}, v{hi}, 3, v{vFOFF}")
    e(f"s_lshl_b32 s{sT0}, s{sCT}, 6")
    e(f"v_add_u32 v{vFOFF}, s{sT0}, v{vFOFF}")
    e(f"s_branch L_far_d{tag}")
    lab(f"L_far_b{tag}")
    c("role B residual: rows 32+4hi+i, col 32ct+n: OWN + row*256 + (((ct*4 + (n>>3)) ^ (row&15))<<4) + (n&7)*2")
    e(f"v_lshrrev_b32 v{t0}, 3, v{n}")
    e(f"s_lshl_b32 s{sT0}, s{sCT}, 2")
    e(f"v_add_u32 v{t0}, s{sT0}, v{t0}          ; chunk")
    e(f"v_lshlrev_b32 v{t1}, 2, v{hi}             ; 4hi")
    e(f"v_xor_b32 v{t0}, v{t0}, v{t1}")
    e(f"v_lshlrev_b32 v{t0}, 4, v{t0}")
    e(f"v_lshl_add_u32 v{t0}, v{t1}, 8, v{t0}   ; + 4hi*256")
    e(f"v_and_b32 v{hi}, 7, v{n}")
    e(f"v_lshl_add_u32 v{t0}, v{hi}, 1, v{t0}")
    e(f"v_add_u32 v{vFRES}, {OWN + 32*256}, v{t0}")
    e(f"s_add_u32 s{sT0}, s{sT1}, 32")
    e(f"v_add_u32 v{vFOFF}, s{sT0}, v{t1}")
    e(f"v_lshlrev_b32 v{vFOFF}, 8, v{vFOFF}")
    e(f"v_lshl_add_u32 v{vFOFF}, v{n}, 1, v{vFOFF}")
    e(f"s_lshl_b32 s{sT0}, s{sCT}, 6")
    e(f"v_add_u32 v{vFOFF}, s{sT0}, v{vFOFF}")
    lab(f"L_far_d{tag}")
lab("L_rfront")
c("R waves after the role: H1 (quad 0: nodes 0..31, quad 1: nodes 32..39); WH1 slices staged in QT (ct*8192)")
WF = 16
D1 = 96
vR2 = 114
def rowreg(s_): return (ACC + 4*s_) if s_ < 4 else (QF + 4*(s_-4))
slice_lane(vT[2], sCT)
e(f"s_lshl_b32 s{sT2}, s{sCT}, 13")
e(f"s_add_u32 s{sT2}, s{sT2}, {QT}")
e(f"s_lshl_b32 s{sT3}, s{sRQ}, 12")
e(f"s_add_u32 s{sT3}, s{sT3}, s{sT2}          ; + half*4096")
e(f"s_lshl_b32 s{sX0}, s{sRQ}, 14")
wait_cnt(RCA, 8, dst=sX2)
for i in range(4):
    e(f"s_add_u32 m0, s{sT3}, {i*1024}")
    e(f"s_add_u32 s{sT1}, s{sX0}, {i*4096}")
    e(f"buffer_load_dwordx4 v{vT[2]}, {srd(S_WH)}, s{sT1} offen lds")
stamp("h1 dma", 7)
c("signal: the last of the role's waves writes the flag(s) once all stores are complete")
e(f"s_mov_b32 s{sC}, 0")
e(f"s_cmp_eq_u32 s{sRL}, 0")
e("s_cbranch_scc1 L_nosig")
e("s_waitcnt vmcnt(4)")
e(f"v_mov_b32 v{vU0}, {GCNT}")
e(f"v_mov_b32 v{vU1}, 1")
e("s_mov_b64 exec, 1")
e(f"ds_add_rtn_u32 v{vRA}, v{vU0}, v{vU1}")
e("s_waitcnt lgkmcnt(0)")
e("s_mov_b64 exec, -1")
e(f"v_readfirstlane_b32 s{sT0}, v{vRA}")
e(f"s_xor_b32 s{sT1}, s{sTW}, {FLC}")
e(f"v_mov_b32 v{vU1}, s{sT1}")
e(f"v_lshrrev_b32 v{vU0}, 2, v{vL}")
e(f"v_mul_u32_u24 v{vU0}, {FSTR}, v{vU0}")
e(f"v_and_b32 v{vRA}, 3, v{vL}")
e(f"v_lshl_add_u32 v{vU0}, v{vRA}, 2, v{vU0}")
e(f"s_add_u32 s{sT0}, s{sT0}, 1")
e(f"s_cmp_eq_u32 s{sT0}, s{sRL}")
e(f"s_cbranch_scc0 L_nosig")
e(f"s_mov_b64 exec, {sp(sM0)}")
e(f"buffer_store_dword v{vU1}, v{vU0}, {srd(S_WS)}, s{sX1} offen sc1")
e("s_mov_b64 exec, -1")
e(f"s_mov_b32 s{sC}, 1")
lab("L_nosig")
stamp("role signalled", 6)
if not NOPRIO: e("s_setprio 0")
e(f"s_mov_b32 s{sX0}, s{sT2}")
lane_consts()
if FINR and RFE: final_addr(True)
if FINR == 2 and RFE: final_addr_res("r")
trpat(vT[6], vT[0], vT[1])
e(f"v_add_u32 v{vT[6]}, s{sX0}, v{vT[6]}")
e(f"v_lshrrev_b32 v{vT[3]}, 5, v{vL}           ; hi")
e(f"v_and_b32 v{vT[4]}, 31, v{vL}")
e(f"s_lshl_b32 s{sT0}, s{sRQ}, 5")
e(f"v_add_u32 v{vT[4]}, s{sT0}, v{vT[4]}")
e(f"v_min_u32 v{vT[4]}, 39, v{vT[4]}")
row_addr(vT[1], vT[4], vT[3], vT[2])
c("DMA landed (the flag store, if this wave issued it, may stay in flight)")
e(f"s_cmp_eq_u32 s{sC}, 0")
e("s_cbranch_scc1 L_h1w0")
e(f"s_waitcnt vmcnt(1)")
e("s_branch L_h1w1")
lab("L_h1w0")
e("s_waitcnt vmcnt(0)")
lab("L_h1w1")
arrive(RCB)
wait_cnt([FCNT, FCC, FCNT2][H1W], 8, dst=sX2)
for s_ in range(8):
    e(f"v_xor_b32 v{vT[2]}, {s_<<5}, v{vT[1]}")
    e(f"ds_read_b128 {vr(rowreg(s_),4)}, v{vT[2]}")
wait_cnt(RCB, 8, dst=sX2)
for s_ in range(8):
    e(f"ds_read_b64_tr_b16 {vr(WF+4*s_,2)}, v{vT[6]} offset:{s_*1024}")
    e(f"ds_read_b64_tr_b16 {vr(WF+4*s_+2,2)}, v{vT[6]} offset:{s_*1024+256}")
e(f"s_mov_b32 s{sK2}, 0x{NLOG2E:08x}")
e(f"s_cmp_eq_u32 s{sRQ}, 0")
e("s_cbranch_scc0 L_h1b")
for s_ in range(8):
    e(f"s_waitcnt lgkmcnt({2*(7-s_)})")
    mfma(FACC, WF+4*s_, rowreg(s_), "0" if s_ == 0 else vr(FACC,16))
e("s_nop 7")
e("s_nop 3")
for r in range(16):
    e(f"v_mul_f32 v{FACC+r}, s{sK2}, v{FACC+r}")
e("s_branch L_h1d")
lab("L_h1b")
for s_ in range(8):
    e(f"s_waitcnt lgkmcnt({2*(7-s_)})")
    mfma(D1, rowreg(s_), WF+4*s_, "0" if s_ == 0 else vr(D1,16))
e("s_nop 7")
e("s_nop 3")
for r in range(4):
    e(f"v_mul_f32 v{FB+r}, s{sK2}, v{D1+r}")
lab("L_h1d")
if PREF: arrive(RH1)
stamp("h1 done", 8)
e("s_branch L_common")

lab("L_front")
QA, QB, QC = 0, 1, 2
KB = 124
PWR = 116
fw = sX2
e(f"s_sub_u32 s{fw}, s{sW}, 8")
e(f"v_lshlrev_b32 v{vT[0]}, 4, v{tid}")
c("own rows dma: instr idx u covers rows 4u..4u+3 ; lane: row = 4u + (l>>4); chunk = (l&15) ^ (row&15)")
e(f"v_lshrrev_b32 v{vT[4]}, 4, v{vL}")
e(f"v_and_b32 v{vT[1]}, 15, v{vL}")
e(f"v_xor_b32 v{vT[1]}, v{vT[1]}, v{vT[4]}")
e(f"s_lshl_b32 s{sT1}, s{sCT}, 2")
e(f"v_xor_b32 v{vT[1]}, s{sT1}, v{vT[1]}")
e(f"v_lshlrev_b32 v{vT[1]}, 4, v{vT[1]}")
e(f"v_lshl_add_u32 v{vT[1]}, v{vT[4]}, 8, v{vT[1]}")
slice_lane(vT[2], sCT)
e(f"s_lshl_b32 s{sT2}, s{sCT}, 13")
e(f"s_mul_i32 s{sT0}, s2, {40*256}")
e(f"s_lshl_b32 s{sT1}, s{fw}, 10")
e(f"s_add_u32 s{sT0}, s{sT0}, s{sT1}")
e(f"v_mul_u32_u24 v{vT[3]}, 6, v{vL}")
e(f"v_and_b32 v{vT[5]}, 31, v{vL}")
e(f"s_lshl_b32 s{sT3}, s{sCT}, 5")
e(f"v_add_u32 v{vT[5]}, s{sT3}, v{vT[5]}")
e(f"v_lshlrev_b32 v{vT[5]}, 1, v{vT[5]}           ; (32ct + n)*2")
e("s_waitcnt lgkmcnt(0)")
stamp("kernarg", 1)
kernarg_copy()
if FDEL: e(f"s_sleep {FDEL}")
e(f"s_add_u32 m0, s{sT1}, {OWN}")
e("s_nop 0")
e(f"buffer_load_dwordx4 v{vT[1]}, {srd(S_H)}, s{sT0} offen lds")
e(f"s_cmp_ge_u32 s{fw}, 2")
e("s_cbranch_scc1 L_f_no2")
e(f"s_add_u32 m0, s{sT1}, {OWN+8192}")
e(f"s_add_u32 s{sT0}, s{sT0}, 8192")
e(f"buffer_load_dwordx4 v{vT[1]}, {srd(S_H)}, s{sT0} offen lds")
lab("L_f_no2")
c("wave 10: own pos (lane l<40 loads x,y,z u16)")
e(f"s_cmp_eq_u32 s{fw}, 2")
e("s_cbranch_scc0 L_f_nopos")
e(f"s_mul_i32 s{sT0}, s2, 240")
e(f"v_cmp_gt_u32 vcc, 40, v{vL}")
e("s_mov_b64 exec, vcc")
for k in range(3):
    e(f"buffer_load_ushort v{PWR+k}, v{vT[3]}, {srd(S_POS)}, s{sT0} offen offset:{2*k}")
e("s_mov_b64 exec, -1")
lab("L_f_nopos")
if PPF:
    c("L2 warm-up of pos: segment (wg>>3)&7 of 7680 B, 960 B per F wave (result unused)")
    e(f"s_lshr_b32 s{sT1}, s2, 3")
    e(f"s_and_b32 s{sT1}, s{sT1}, 7")
    e(f"s_lshl_b32 s{sT1}, s{sT1}, 3")
    e(f"s_add_u32 s{sT1}, s{sT1}, s{fw}")
    e(f"s_mul_i32 s{sT1}, s{sT1}, 960")
    e(f"v_lshlrev_b32 v{vT[7]}, 4, v{vL}")
    e(f"buffer_load_dwordx4 {vr(108,4)}, v{vT[7]}, {srd(S_POS)}, s{sT1} offen")
c("K1B raw: w_e rows 256, 257")
e(f"s_mov_b32 s{sT1}, 65536")
e(f"buffer_load_ushort v{KB}, v{vT[5]}, {srd(S_WE)}, s{sT1} offen")
e(f"buffer_load_ushort v{KB+1}, v{vT[5]}, {srd(S_WE)}, s{sT1} offen offset:256")
e(f"s_add_u32 s{sX1}, s{sT2}, {REC}")
e(f"s_lshl_b32 s{sT3}, s{sRQ}, 12")
e(f"s_add_u32 s{sT3}, s{sT3}, s{sX1}          ; + half*4096")
e(f"s_lshl_b32 s{sX0}, s{sRQ}, 14")
stamp("role loads issued", 2)
c("zero REC[32768, 65536) (the first 32 KB stage W1 and are zeroed after use)")
for i in range(4):
    e(f"ds_write_b128 v{vT[0]}, {vr(Z,4)} offset:{32768 - 8192 + i*8192}")
c("let the role loads go first")
if YM == 1:
    e(f"s_cmp_lt_u32 s2, {BIN0}")
    e("s_cbranch_scc1 L_f_noriss")
wait_cnt(RISS, 8)
if YM == 1: lab("L_f_noriss")
stamp("B1", 4)
c("W1 slice ct (w_e rows 0..127): this wave loads k-steps 4*half .. 4*half+3")
for i in range(4):
    e(f"s_add_u32 m0, s{sT3}, {i*1024}")
    e(f"s_add_u32 s{sT1}, s{sX0}, {i*4096}")
    e(f"buffer_load_dwordx4 v{vT[2]}, {srd(S_WE)}, s{sT1} offen lds")
lane_consts()
e("s_waitcnt vmcnt(4)")
arrive(FCNT)
c("wave 10: PTF (f32 x4 per node)")
e(f"s_cmp_eq_u32 s{fw}, 2")
e("s_cbranch_scc0 L_noptf")
for k in range(3): e(f"v_lshlrev_b32 v{PWR+k}, 16, v{PWR+k}")
e(f"v_mov_b32 v{PWR+3}, 0")
e(f"v_lshlrev_b32 v{vT[0]}, 4, v{vL}")
e(f"v_add_u32 v{vT[0]}, {PTF}, v{vT[0]}")
e(f"v_cmp_gt_u32 vcc, 40, v{vL}")
e("s_mov_b64 exec, vcc")
e(f"ds_write_b128 v{vT[0]}, {vr(PWR,4)}")
e("s_mov_b64 exec, -1")
lab("L_noptf")
stamp("role loads landed", 3)
trpat(vT[6], vT[0], vT[1])
e(f"v_add_u32 v{vT[6]}, s{sX1}, v{vT[6]}")
c("P' task: rows m: slot = m&7, g' = m>>3 ; node = 5*(4B + g') + max(slot-3,0), B = half")
e(f"v_lshrrev_b32 v{vT[3]}, 5, v{vL}           ; hi")
e(f"v_and_b32 v{vT[0]}, 7, v{vL}")
e(f"v_subrev_u32 v{vT[0]}, 3, v{vT[0]}")
e(f"v_max_i32 v{vT[0]}, 0, v{vT[0]}")
e(f"v_bfe_u32 v{vT[1]}, v{vL}, 3, 2")
e(f"v_mad_u32_u24 v{vT[0]}, v{vT[1]}, 5, v{vT[0]}        ; node (B=0)")
e(f"s_mul_i32 s{sT0}, s{sRQ}, 20")
e(f"v_add_u32 v{vT[0]}, s{sT0}, v{vT[0]}")
row_addr(vT[1], vT[0], vT[3], vT[2])
c("K1B: (wd, we) scaled, hi and lo parts")
e(f"s_mov_b32 s{sT0}, 0x{NLOG2E:08x}")
e(f"s_mov_b32 s{sT1}, 0xffff0000")
k0, k1, k2, k3 = 116, 117, 118, 119
e(f"v_lshlrev_b32 v{k0}, 16, v{KB}")
e(f"v_lshlrev_b32 v{k1}, 16, v{KB+1}")
e(f"v_mul_f32 v{k0}, s{sT0}, v{k0}")
e(f"v_mul_f32 v{k1}, s{sT0}, v{k1}")
e(f"v_cvt_pk_bf16_f32 v{KB}, v{k0}, v{k1}")
e(f"v_lshlrev_b32 v{k2}, 16, v{KB}")
e(f"v_and_b32 v{k3}, s{sT1}, v{KB}")
e(f"v_sub_f32 v{k0}, v{k0}, v{k2}")
e(f"v_sub_f32 v{k1}, v{k1}, v{k3}")
e(f"v_cvt_pk_bf16_f32 v{KB+1}, v{k0}, v{k1}")
c("P' write: BXP + g*2048 + (32ct + n)*16 + hi*8 ; hi=0 lanes: slots 0,1 = (wd,we) hi ; slot 2 = wd lo ; slot 3 = P'[j=0]")
vPW, vPM = 126, 127 if not TIMING else 115
e(f"v_and_b32 v{vPW}, 31, v{vL}")
e(f"v_lshlrev_b32 v{vPW}, 4, v{vPW}")
e(f"v_lshl_add_u32 v{vPW}, v{vT[3]}, 3, v{vPW}")
e(f"s_lshl_b32 s{sT0}, s{sCT}, 9")
e(f"s_lshl_b32 s{sT1}, s{sRQ}, 13")
e(f"s_add_u32 s{sT0}, s{sT0}, s{sT1}")
e(f"s_add_u32 s{sT0}, s{sT0}, {BXP}")
e(f"v_add_u32 v{vPW}, s{sT0}, v{vPW}")
e(f"v_cmp_gt_u32 vcc, 32, v{vL}")
e(f"v_mov_b32 v{vPM}, 0xffff0000")
e(f"v_cndmask_b32 v{vPM}, -1, v{vPM}, vcc         ; mask M")
e(f"v_and_b32 v{KB+1}, 0xffff, v{KB+1}")
e(f"v_cndmask_b32 v{KB+1}, 0, v{KB+1}, vcc")
e(f"s_mov_b32 s{sK2}, 0x{NLOG2E + ((7 << 23) if F16 else 0):08x}")
for i in range(4): e(f"v_mov_b32 v{116+i}, 0")
e("s_waitcnt vmcnt(0)")
stamp("slices landed", 6)
arrive(FCB)
c("---- granule (16 B, two records) per lane: c = 8fw + (l>>3), q = l&7 : c*32000 + q*16 (+ b*128)")
e(f"s_lshl_b32 s{sT0}, s{fw}, 3")
e(f"v_lshrrev_b32 v{vT[4]}, 3, v{vL}")
e(f"v_add_u32 v{vT[4]}, s{sT0}, v{vT[4]}          ; c")
e(f"v_mul_u32_u24 v{vGA}, {CHB}, v{vT[4]}")
e(f"v_and_b32 v{vT[5]}, 7, v{vL}")
e(f"v_lshl_add_u32 v{vGA}, v{vT[5]}, 4, v{vGA}")
e(f"v_lshlrev_b32 v{vT[0]}, 4, v{vL}")
e(f"s_lshl_b32 s{sT0}, s{fw}, 12")
e(f"v_add_u32 v{vT[0]}, s{sT0}, v{vT[0]}")
e(f"v_cmp_gt_u32 {sp(sPA)}, {NCH}, v{vT[4]}")
e(f"s_lshl_b32 s{sT2}, s2, 7")
e(f"s_add_u32 s{sT3}, s{sT2}, {CELLB}")
e(f"s_mov_b64 {sp(sPB)}, {sp(sPA)}")
e(f"s_mov_b64 {sp(sEX)}, {sp(sPA)}")
e(f"s_sub_u32 s{sLOW}, s{sTW}, {DELTA}")
if FORCE == "ovf":
    e(f"s_add_u32 s{sLOW}, s{sLOW}, 0x40000000")
e(f"s_mov_b32 s{sK3}, {WIN}")
e(f"s_mov_b32 s{sCNT}, 0")
e(f"s_mov_b64 {sp(sM2)}, {sp(sPB)}")
wait_cnt(FCB, 8)
stamp("fcb", 45)
for s_ in range(8):
    e(f"ds_read_b64_tr_b16 {vr(WF+4*s_,2)}, v{vT[6]} offset:{s_*1024}")
    e(f"ds_read_b64_tr_b16 {vr(WF+4*s_+2,2)}, v{vT[6]} offset:{s_*1024+256}")
_pi = [0]
def poll_issue():
    i = _pi[0]; _pi[0] += 1
    e(f"s_cmp_eq_u64 {sp(sPA)}, 0")
    e(f"s_cbranch_scc1 L_rp_noa{i}")
    e(f"s_mov_b64 exec, {sp(sPA)}")
    e(f"buffer_load_dwordx4 {vr(RA,4)}, v{vGA}, {srd(S_WS)}, s{sT2} offen sc1")
    lab(f"L_rp_noa{i}")
    e(f"s_cmp_eq_u64 {sp(sM2)}, 0")
    e(f"s_cbranch_scc1 L_rp_nob{i}")
    e(f"s_mov_b64 exec, {sp(sM2)}")
    e(f"buffer_load_dwordx4 {vr(RB,4)}, v{vGA}, {srd(S_WS)}, s{sT3} offen sc1")
    lab(f"L_rp_nob{i}")
    e("s_mov_b64 exec, -1")
def pwrite(r0, g):
    for i in range(4):
        e(f"v_mul_f32 v{r0+i}, s{sK2}, v{r0+i}")
    e(f"v_cvt_pk_bf16_f32 v{r0}, v{r0}, v{r0+1}")
    e(f"v_cvt_pk_bf16_f32 v{r0+1}, v{r0+2}, v{r0+3}")
    e(f"v_cndmask_b32 v{r0}, v{r0}, v{KB}, vcc")
    e(f"v_and_or_b32 v{r0+1}, v{r0+1}, v{vPM}, v{KB+1}")
    e(f"ds_write_b64 v{vPW}, {vr(r0,2)} offset:{g*2048}")
def p_compute(first):
    for s_ in range(8):
        e(f"v_xor_b32 v{vT[2]}, {s_<<5}, v{vT[1]}")
        e(f"ds_read_b128 {vr(rowreg(s_),4)}, v{vT[2]}")
    for s_ in range(8):
        e(f"s_waitcnt lgkmcnt({7-s_})")
        mfma(FACC, rowreg(s_), WF+4*s_, "0" if s_ == 0 else vr(FACC,16))
    stamp("mfma issued", 46)
    e(f"v_cmp_gt_u32 vcc, 32, v{vL}")
    e("s_nop 7")
    e("s_nop 3")
    for g in range(4):
        pwrite(FACC+4*g, g)
e("s_waitcnt lgkmcnt(0)")
FR = (112, 113)
arrive(FCC, FR)
if not PLATE: p_compute(True)
c("all eight waves hold their fragments: zero the staging area (4 KB per wave)")
wait_cnt(FCC, 8, regs=FR)
for i in range(4):
    e(f"ds_write_b128 v{vT[0]}, {vr(116,4)} offset:{REC + i*1024}")
e("s_waitcnt lgkmcnt(0)")
arrive(FCNT2, FR)
stamp("front done", 5)
if not NOPRIO: e(f"s_setprio {FPRIO}")
if PLATE == 2: p_compute(True)
if PSL: e(f"s_sleep {PSL}")
poll_issue()
stamp("B3", 7)
if PLATE == 1: p_compute(True)
if HOIST:
    assert PLATE == 1
    id_consts(vT[0], vT[1])
    seg_zero()
if FINR: final_addr(False)
e("s_branch L_rpoll")

def dma_issue(va, vb, sbuf):
    if not IDX:
        e(f"v_lshl_add_u32 v{va}, v{va}, 8, v{vQD}")
        e(f"v_lshl_add_u32 v{vb}, v{vb}, 8, v{vQD}")
    e(f"s_mov_b32 m0, s{sbuf}")
    e(f"s_nop 0")
    if IDX: e(f"buffer_load_dwordx4 {vr(va,2)}, {srd(S_Q)}, 0 idxen offen{QSC} lds")
    else:   e(f"buffer_load_dwordx4 v{va}, {srd(S_Q)}, 0 offen{QSC} lds")
    e(f"s_add_u32 m0, s{sbuf}, 1024")
    e(f"s_nop 0")
    if IDX: e(f"buffer_load_dwordx4 {vr(vb,2)}, {srd(S_Q)}, 0 idxen offen{QSC} lds")
    else:   e(f"buffer_load_dwordx4 v{vb}, {srd(S_Q)}, 0 offen{QSC} lds")
vLKr, vODr, vTRSr, vTRSr2, vLKr2 = 92, 93, 94, 95, 14
PA, PB = 10, 12
LK = [PA, PB, 80, 82]
def fg_prep():
    e(f"v_xor_b32 v{vLKr2}, 32, v{vLK}")
    if IDX:
        for k in range(4): e(f"v_mov_b32 v{LK[k]+1}, v{vQD}")
def prep_post():
    e(f"s_lshl_b32 s{sT0}, s{sG}, 2")
    e(f"s_add_u32 s{sT0}, s{sT0}, {ALLOC}")
    e(f"v_mov_b32 v{vT[0]}, s{sT0}")
    e(f"v_mov_b32 v{vT[1]}, {OVF}")
def bal_compute():
    C = [68 + i for i in range(8)]
    e(f"v_mov_b32 v{vT[0]}, {ALLOC}")
    e(f"ds_read_b128 {vr(84,4)}, v{vT[0]}")
    e(f"ds_read_b128 {vr(88,4)}, v{vT[0]} offset:16")
    e("s_waitcnt lgkmcnt(0)")
    for g in range(8): e(f"v_readfirstlane_b32 s{C[g]}, v{84+g}")
    e("s_nop 1")
    for g in range(8):
        e(f"s_min_u32 s{C[g]}, s{C[g]}, {CAP}")
        e(f"s_add_u32 s{C[g]}, s{C[g]}, 7")
        e(f"s_lshr_b32 s{C[g]}, s{C[g]}, 3")
    for k in range(4): e(f"s_sub_i32 s{C[2*k]}, s{C[2*k]}, s{C[2*k+1]}")
    S = C[0]
    e(f"s_mov_b32 s{sT3}, 0")
    for k in range(1, 4):
        d, nd, t = C[2*k], C[2*k+1], C[1]
        e(f"s_mul_i32 s{t}, s{S}, s{d}")
        e(f"s_sub_i32 s{nd}, 0, s{d}")
        e(f"s_cmp_gt_i32 s{t}, 0")
        e(f"s_cselect_b32 s{d}, s{nd}, s{d}")
        e(f"s_cselect_b32 s{t}, {1 << k}, 0")
        e(f"s_or_b32 s{sT3}, s{sT3}, s{t}")
        e(f"s_add_i32 s{S}, s{S}, s{d}")
def bal_apply(sbits, tag):
    e(f"s_lshr_b32 s{sT0}, s{sbits}, s{sQ}")
    e(f"s_and_b32 s{sT0}, s{sT0}, 1")
    e(f"s_cbranch_scc0 L_bal_no{tag}")
    e(f"s_and_b32 s{sT0}, s{sG}, 1")
    e(f"s_xor_b32 s{sG}, s{sG}, 1")
    e(f"s_cmp_eq_u32 s{sT0}, 0")
    e(f"s_cselect_b32 s{sT1}, 1, -1")
    e(f"s_mul_i32 s{sT0}, s{sT1}, {GSTR}")
    e(f"s_lshl_b32 s{sT1}, s{sT1}, 13")
    e(f"s_add_u32 s{sB0}, s{sB0}, s{sT1}")
    e(f"s_add_u32 s{sB1}, s{sB1}, s{sT1}")
    e(f"v_add_u32 v{vLK}, s{sT0}, v{vLK}")
    e(f"v_add_u32 v{vTRS}, s{sT0}, v{vTRS}")
    e(f"v_add_u32 v{vTRQ0}, s{sT1}, v{vTRQ0}")
    e(f"v_add_u32 v{vTRQ1}, s{sT1}, v{vTRQ1}")
    e(f"v_lshrrev_b32 v{vT[2]}, {11 if IMM else 10}, v{vODM}")
    e(f"v_mad_i32_i24 v{vOD}, v{vT[2]}, s{sT0}, v{vOD}")
    lab(f"L_bal_no{tag}")
def first_gathers(extra=None, part=3, prep=True):
    if not part & 1:
        dma_issue(LK[0], LK[1], sB0)
        if PREFN == 2: dma_issue(LK[2], LK[3], sB1)
        return
    if prep: e(f"v_xor_b32 v{vLKr2}, 32, v{vLK}")
    e(f"ds_read_u16 v{LK[0]}, v{vLK}")
    e(f"ds_read_u16 v{LK[1]}, v{vLKr2} offset:512")
    e(f"ds_read_u16 v{LK[2]}, v{vLK} offset:1024")
    e(f"ds_read_u16 v{LK[3]}, v{vLKr2} offset:1536")
    n = extra() if extra else 0
    if IDX and prep:
        for k in range(4): e(f"v_mov_b32 v{LK[k]+1}, v{vQD}")
    if not part & 2:
        e("s_waitcnt lgkmcnt(0)")
        return
    e(f"s_waitcnt lgkmcnt({2+n})")
    dma_issue(LK[0], LK[1], sB0)
    e(f"s_waitcnt lgkmcnt({n})")
    dma_issue(LK[2], LK[3], sB1)
lab("L_common")
c("---- R waves: no records ; wave 7 waits for the Q / WH2F flags")
for m in MK: e(f"s_mov_b64 {sp(m)}, 0")
if HOIST:
    id_consts(vT[0], vT[1])
    seg_zero()
if FINR and not RFE: final_addr(True)
if FINR == 2 and not RFE: final_addr_res("r")
vQP = vT[7]
def qpoll_issue():
    e("s_mov_b32 exec_lo, -1")
    e("s_mov_b32 exec_hi, 0x1ff")
    e(f"buffer_load_dwordx4 {vr(RA,4)}, v{vQP}, {srd(S_WS)}, s{sT2} offen sc1")
if PREF: wait_cnt(RH1, 8, regs=FR)
e(f"s_cmp_eq_u32 s{sW}, 7")
e(f"s_cbranch_scc0 {'L_rlk' if PREF else 'L_ba'}")
if QGATE: wait_cnt(RLAND, QGATE, regs=FR)
e(f"v_lshlrev_b32 v{vQP}, 4, v{vL}")
e(f"s_mov_b32 s{sCNT}, 0")
e(f"s_and_b32 s{sT2}, s2, {FCOPY-1}")
e(f"s_mul_i32 s{sT2}, s{sT2}, {FSTR}")
e(f"s_add_u32 s{sT2}, s{sT2}, {FLG}")
e(f"s_sub_u32 s{sLOW}, s{sTW}, {DELTA}")
if FORCE == "fb":
    e(f"s_add_u32 s{sLOW}, s{sLOW}, 0x40000000")
e(f"s_mov_b32 s{sK3}, {WIN}")
if PREF:
    qpoll_issue()
    e("s_mov_b64 exec, -1")
    lab("L_rlk")
    c("all records have their source node in REC: look up the source nodes of the first two tiles")
    wait_cnt(RPL, 8, regs=FR, slp=RPS)
    if BAL:
        bal_compute()
        e(f"s_cmp_eq_u32 s{sW}, 0")
        e("s_cbranch_scc0 L_bal_np")
        c("wave 0 publishes the swap bits for the F waves")
        e(f"s_or_b32 s{sT0}, s{sT3}, 0x100")
        e(f"v_mov_b32 v{vT[0]}, {MAPW}")
        e(f"v_mov_b32 v{vT[1]}, s{sT0}")
        e(f"ds_write_b32 v{vT[0]}, v{vT[1]}")
        lab("L_bal_np")
        bal_apply(sT3, "r")
    first_gathers(part=1)
    e(f"s_cmp_eq_u32 s{sW}, 7")
    e("s_cbranch_scc0 L_rwait")
    e("s_mov_b32 exec_lo, -1")
    e("s_mov_b32 exec_hi, 0x1ff")
    e("s_branch L_qpoll1")
lab("L_qpoll")
qpoll_issue()
lab("L_qpoll1")
e(f"s_add_u32 s{sCNT}, s{sCNT}, 1")
e("s_waitcnt vmcnt(0)")
stamp_dyn(19, sCNT)
for k in range(4):
    e(f"v_xor_b32 v{RA+k}, {FLC}, v{RA+k}")
for k in range(4):
    e(f"v_subrev_u32 v{RA+k}, s{sLOW}, v{RA+k}")
e(f"v_max_u32 v{RA}, v{RA}, v{RA+1}")
e(f"v_max3_u32 v{RA}, v{RA}, v{RA+2}, v{RA+3}")
e(f"v_cmp_le_u32 vcc, s{sK3}, v{RA}")
e("s_cmp_eq_u64 vcc, 0")
e("s_cbranch_scc1 L_qp_ok")
e(f"s_sleep {QSL}")
e(f"s_cmp_lt_u32 s{sCNT}, {NPOLL}")
e("s_cbranch_scc1 L_qpoll")
e(f"v_mov_b32 v{vT[0]}, {OVF}")
e(f"v_mov_b32 v{vT[1]}, 2")
e(f"ds_or_b32 v{vT[0]}, v{vT[1]}")
lab("L_qp_ok")
e("s_mov_b64 exec, -1")
if PREF:
    arrive(QOKF, FR)
    e("s_branch L_rpre")
    lab("L_rwait")
    wait_cnt(QOKF, 1, regs=FR, slp=RWS)
    lab("L_rpre")
    c("gather the first two tiles now (all R waves hold their H1 fragments: the tile buffers are free)")
    first_gathers(part=2)
    if PREB: prep_post()
    e(f"s_mov_b32 s{sPREF}, 1")
e("s_branch L_ba")
_st[0] = 8
def gcheck(G, M, M2):
    e(f"v_bfe_u32 v{vT[2]}, v{G+3}, 3, 9")
    e(f"v_xor_b32 v{vT[2]}, {TAGC}, v{vT[2]}")
    e(f"v_lshrrev_b32 v{vT[0]}, 23, v{G}")
    e(f"v_lshrrev_b32 v{vT[1]}, 23, v{G+2}")
    e(f"v_subrev_u32 v{vT[3]}, s{sLOW}, v{G+3}")
    e(f"v_cmp_eq_u32 {M}, v{vT[0]}, v{vT[2]}")
    e(f"v_cmp_eq_u32 {M2}, v{vT[1]}, v{vT[2]}")
    e(f"s_and_b64 {M}, {M}, {M2}")
    e(f"v_cmp_gt_u32 {M2}, s{sK3}, v{vT[3]}")
    e(f"s_and_b64 {M}, {M}, {M2}")
e("s_branch L_rpoll")
lab("L_rpoll_again")
poll_issue()
lab("L_rpoll")
e(f"s_add_u32 s{sCNT}, s{sCNT}, 1")
e("s_waitcnt vmcnt(0)")
stamp_dyn(19, sCNT)
gcheck(RA, "vcc", sp(sM0))
e(f"s_andn2_b64 {sp(sPA)}, {sp(sPA)}, vcc")
gcheck(RB, sp(sM1), sp(sM0))
e(f"v_bfe_u32 v{vT[0]}, v{RA}, 22, 1")
e(f"s_andn2_b64 {sp(sPB)}, {sp(sPB)}, {sp(sM1)}")
e(f"v_cmp_ne_u32 vcc, 0, v{vT[0]}                ; more")
e(f"s_andn2_b64 vcc, vcc, {sp(sPA)}")
if BSPEC:
    e(f"s_or_b64 vcc, vcc, {sp(sPA)}")
e(f"s_and_b64 {sp(sM2)}, {sp(sPB)}, vcc")
e(f"s_or_b64 vcc, {sp(sPA)}, {sp(sM2)}")
e("s_cmp_eq_u64 vcc, 0")
e("s_cbranch_scc1 L_rp_ok")
e(f"s_sleep {RSL}")
e(f"s_cmp_lt_u32 s{sCNT}, {NPOLL}")
e("s_cbranch_scc1 L_rpoll_again")
c("timed out: take the slow path")
e(f"v_mov_b32 v{vT[0]}, {OVF}")
e(f"v_mov_b32 v{vT[1]}, 1")
e(f"ds_or_b32 v{vT[0]}, v{vT[1]}")
e(f"s_andn2_b64 {sp(sEX)}, {sp(sEX)}, vcc")
lab("L_rp_ok")
e("s_mov_b64 exec, -1")
arrive(RLAND, FR)
stamp("records landed")
c("masks: a,b = valid bits of granule A ; c,d = valid bits of granule B & more")
RCS = [RA, RA+2, RB, RB+2]
e(f"v_bfe_u32 v{vT[0]}, v{RA}, 20, 1")
e(f"v_bfe_u32 v{vT[1]}, v{RA+2}, 20, 1")
e(f"v_bfe_u32 v{vT[2]}, v{RB}, 20, 1")
e(f"v_bfe_u32 v{vT[3]}, v{RB+2}, 20, 1")
e(f"v_bfe_u32 v{vT[4]}, v{RA}, 22, 1")
e(f"v_bfe_u32 v{vT[5]}, v{RA}, 21, 2")
e(f"v_and_b32 v{vT[2]}, v{vT[2]}, v{vT[4]}")
e(f"v_and_b32 v{vT[3]}, v{vT[3]}, v{vT[4]}")
for k in range(4):
    e(f"v_cmp_ne_u32 {sp(MK[k])}, 0, v{vT[k]}")
e(f"v_cmp_eq_u32 {sp(sM2)}, 3, v{vT[5]}")
for k in range(4):
    e(f"s_and_b64 {sp(MK[k])}, {sp(MK[k])}, {sp(sEX)}")
e(f"s_and_b64 {sp(sM2)}, {sp(sM2)}, {sp(sEX)}")
e(f"v_mov_b32 v{vOne}, 1")
e(f"s_mov_b32 s{sT0}, {ALLOC}")
VS = [91, 92, 93, 94]
def s1_issue(k):
    e(f"v_and_b32 v{VS[k]}, 0x3fff, v{RCS[k]}")
    e(f"v_mul_u32_u24 v{vT[0]}, 6, v{VS[k]}")
    e(f"v_and_b32 v{vT[0]}, -4, v{vT[0]}")
    e(f"s_mov_b64 exec, {sp(MK[k])}")
    e(f"buffer_load_dwordx2 {vr(PS[k],2)}, v{vT[0]}, {srd(S_POS)}, 0 offen")
    e(f"v_bfe_u32 v{VJ[k]}, v{RCS[k]}, 14, 6          ; k")
    e(f"v_mul_u32_u24 v{VI[k]}, 52, v{VJ[k]}")
    e(f"v_lshrrev_b32 v{VI[k]}, 8, v{VI[k]}           ; g")
    e(f"v_lshl_add_u32 v{vT[1]}, v{VI[k]}, 2, s{sT0}")
    e(f"ds_add_rtn_u32 v{VR[k]}, v{vT[1]}, v{vOne}")
    e(f"v_mul_u32_u24 v{vT[1]}, 5, v{VI[k]}")
    e(f"v_sub_u32 v{VJ[k]}, v{VJ[k]}, v{vT[1]}        ; j")
    e("s_mov_b64 exec, -1")
    e(f"v_mul_u32_u24 v{VI[k]}, {GSTR}, v{VI[k]}")
c("REC must be zero before placement (all F waves have zeroed their staging)")
wait_cnt(FCNT2, 8, dst=sT1, regs=FR)
for k in range(4):
    e(f"s_cmp_eq_u64 {sp(MK[k])}, 0")
    e(f"s_cbranch_scc1 L_s1i{k}")
    s1_issue(k)
    lab(f"L_s1i{k}")
e(f"s_cmp_eq_u64 {sp(sM2)}, 0")
e("s_cbranch_scc1 L_s1_noovf")
e(f"v_mov_b32 v{vT[0]}, {OVF}")
e(f"ds_or_b32 v{vT[0]}, v{vOne}")
lab("L_s1_noovf")
def s1_place(vR, vI, vS, msk, tag, slow=False):
    e(f"v_cmp_gt_u32 vcc, {CAP}, v{vR}")
    e(f"v_lshl_add_u32 v{vI}, v{vR}, 6, v{vI}")
    e(f"v_bfe_u32 v{vR}, v{vR}, 2, 2")
    e(f"v_lshl_add_u32 v{vI}, v{vR}, 4, v{vI}")
    e(f"v_xor_b32 v{vR}, 16, v{vI}")
    e(f"s_andn2_b64 exec, {sp(msk)}, vcc")
    e(f"s_cbranch_execz L_s1_ok{tag}")
    if slow:
        e(f"v_mov_b32 v{qP}, 1")
        e(f"v_mov_b32 v{vT[0]}, {PEND}")
        e(f"ds_write_b32 v{vT[0]}, v{vOne}")
    else:
        e(f"v_mov_b32 v{vT[0]}, {OVF}")
        e(f"ds_or_b32 v{vT[0]}, v{vOne}")
    lab(f"L_s1_ok{tag}")
    e(f"s_and_b64 {sp(msk)}, {sp(msk)}, vcc")
    e(f"s_mov_b64 exec, {sp(msk)}")
    e(f"ds_write_b16 v{vR}, v{vS} offset:{REC}")
    e("s_mov_b64 exec, -1")
e("s_waitcnt lgkmcnt(0)")
for k in range(4):
    e(f"s_cmp_eq_u64 {sp(MK[k])}, 0")
    e(f"s_cbranch_scc1 L_s1p{k}")
    s1_place(VR[k], VI[k], VS[k], MK[k], "abcd"[k])
    lab(f"L_s1p{k}")
if PREF: arrive(RPL, FR)
lab("L_st2")
c("stage 2 (sparse, up to four records per lane)")
PD = [48, 52, 112, 116]
e(f"s_mov_b32 s{sT0}, {PTF}")
e(f"s_mov_b32 s{sK2}, 0xffff0000")
e(f"v_mov_b32 v{vT[6]}, {'0x3c00' if F16 else '0x3f80'}")
for k in range(4):
    e(f"s_cmp_eq_u64 {sp(MK[k])}, 0")
    e(f"s_cbranch_scc1 L_s2r{k}")
    e(f"v_bfe_u32 v{vT[5]}, v{RCS[k]}, 14, 6              ; k")
    e(f"v_min_u32 v{vT[5]}, 39, v{vT[5]}")
    e(f"v_lshl_add_u32 v{vT[5]}, v{vT[5]}, 4, s{sT0}")
    e(f"ds_read_b128 {vr(PD[k],4)}, v{vT[5]}")
    lab(f"L_s2r{k}")
e("s_waitcnt vmcnt(0) lgkmcnt(0)")
stamp("pos landed", 12)
if BAL:
    assert PREF
    e(f"v_mov_b32 v{vT[3]}, {MAPW}")
    e(f"ds_read_b32 v{vT[4]}, v{vT[3]}")
def stage2_pass(rec, ea, hi_half, ps, pd, row, msk, tag, vj):
    X = [84, 85, 86, 87, 91, 92]
    e(f"s_cmp_eq_u64 {sp(msk)}, 0")
    e(f"s_cbranch_scc1 L_s2_done{tag}")
    e(f"s_mov_b64 exec, {sp(msk)}")
    e(f"v_and_b32 v{X[0]}, 1, v{rec}")
    e(f"v_lshlrev_b32 v{X[0]}, 4, v{X[0]}        ; shift")
    e(f"v_alignbit_b32 v{X[1]}, v{ps+1}, v{ps}, v{X[0]}     ; x | y<<16")
    e(f"v_lshrrev_b32 v{X[2]}, v{X[0]}, v{ps+1}              ; z (low 16)")
    e(f"v_lshlrev_b32 v{ps}, 16, v{X[1]}")
    e(f"v_and_b32 v{ps+1}, s{sK2}, v{X[1]}")
    e(f"v_lshlrev_b32 v{X[2]}, 16, v{X[2]}")
    e(f"v_sub_f32 v{pd}, v{pd}, v{ps}")
    e(f"v_sub_f32 v{pd+1}, v{pd+1}, v{ps+1}")
    e(f"v_sub_f32 v{pd+2}, v{pd+2}, v{X[2]}")
    e(f"v_cvt_pk_bf16_f32 v{X[0]}, v{pd}, v{pd+1}")
    e(f"v_cvt_pk_bf16_f32 v{X[1]}, v{pd+2}, v{pd+2}     ; dz")
    e(f"v_lshlrev_b32 v{pd}, 16, v{X[0]}")
    e(f"v_and_b32 v{pd+1}, s{sK2}, v{X[0]}")
    e(f"v_lshlrev_b32 v{pd+2}, 16, v{X[1]}")
    e(f"v_lshl_add_u32 v{X[3]}, v{vj}, 1, v{row}")
    e(f"v_xor_b32 v{X[5]}, 16, v{X[3]}")
    if F16:
        e(f"v_cvt_pk_f16_f32 v{X[0]}, v{pd}, v{pd+1}")
        e(f"v_cvt_pk_f16_f32 v{X[1]}, v{pd+2}, v{pd+2}")
    e(f"ds_write_b16 v{X[3]}, v{vT[6]} offset:{REC+6}")
    e(f"ds_write_b16 v{X[5]}, v{X[0]} offset:{REC+6}")
    e(f"v_xor_b32 v{X[5]}, 32, v{X[3]}")
    e(f"v_xor_b32 v{X[3]}, 48, v{X[3]}")
    e(f"ds_write_b16_d16_hi v{X[5]}, v{X[0]} offset:{REC+6}")
    e(f"ds_write_b16 v{X[3]}, v{X[1]} offset:{REC+6}")
    for k in range(3):
        e(f"v_mul_f32 v{pd+k}, v{pd+k}, v{pd+k}")
    e(f"v_cvt_pk_bf16_f32 v{X[2]}, v{pd}, v{pd+1}")
    e(f"v_cvt_pk_bf16_f32 v{X[4]}, v{pd+2}, v{pd+2}")
    e(f"v_lshlrev_b32 v{pd}, 16, v{X[2]}")
    e(f"v_and_b32 v{pd+1}, s{sK2}, v{X[2]}")
    e(f"v_lshlrev_b32 v{pd+2}, 16, v{X[4]}")
    e(f"v_add_f32 v{pd}, v{pd}, v{pd+1}")
    e(f"v_add_f32 v{pd}, v{pd}, v{pd+2}")
    e(f"v_cvt_pk_bf16_f32 v{X[2]}, v{pd}, 0")
    if hi_half:
        e(f"v_and_or_b32 v{X[4]}, v{ea}, s{sK2}, v{X[2]}")
    else:
        e(f"v_lshl_or_b32 v{X[4]}, v{ea}, 16, v{X[2]}")
    e(f"ds_write_b32 v{row}, v{X[4]} offset:{REC}")
    e(f"ds_write_b16 v{row}, v{X[2]} offset:{REC+4}")
    e("s_mov_b64 exec, -1")
    lab(f"L_s2_done{tag}")
for k in range(4):
    stage2_pass(RCS[k], [RA+1, RB+1][k>>1], k & 1, PS[k], PD[k], VI[k], MK[k], "abcd"[k], VJ[k])
stamp("stage2 done", 13)
if BAL:
    e(f"s_cmp_eq_u32 s{sMODE}, 0")
    e("s_cbranch_scc0 L_bal_skip")
    lab("L_bal_chk")
    e("s_waitcnt lgkmcnt(0)")
    e(f"v_readfirstlane_b32 s{sT3}, v{vT[4]}")
    e("s_nop 1")
    e(f"s_bitcmp1_b32 s{sT3}, 8")
    e("s_cbranch_scc1 L_bal_ok")
    e("s_sleep 1")
    e(f"ds_read_b32 v{vT[4]}, v{vT[3]}")
    e("s_branch L_bal_chk")
    lab("L_bal_ok")
    bal_apply(sT3, "f")
    lab("L_bal_skip")
if PREB:
    assert PREF
    prep_post()
    fg_prep()
lab("L_ba")
stamp("placed+Q", 9)
if not NOPRIO: e(f"s_setprio {BAP}")
e(f"s_waitcnt lgkmcnt(0)")
e("s_barrier")
stamp("BA", 10)

lab("L_post")
c("count of own group, OVF, lookups for tiles 0,1")
assert EARLY
if not PREB: prep_post()
def cnt_reads():
    e(f"ds_read_b32 v{vT[0]}, v{vT[0]}")
    e(f"ds_read_b32 v{vT[1]}, v{vT[1]}")
    return 2
e(f"s_cmp_eq_u32 s{sMODE}, 0")
e("s_cbranch_scc0 L_post_slow")
if PREF:
    e(f"s_cmp_eq_u32 s{sPREF}, 0")
    e("s_cbranch_scc1 L_post_g")
    cnt_reads()
    if PREFN == 1: dma_issue(LK[2], LK[3], sB1)
    e("s_branch L_post_fast")
    lab("L_post_g")
first_gathers(cnt_reads, prep=not PREB)
stamp("dma0 issued", 11)
e("s_branch L_post_fast")
lab("L_post_slow")
c("slow path: skip quickly if nothing was placed in this pass (no gather may be left in flight then)")
cnt_reads()
e(f"v_mov_b32 v{vT[7]}, {ALLOC}")
e(f"ds_read_b128 {vr(96,4)}, v{vT[7]}")
e(f"ds_read_b128 {vr(100,4)}, v{vT[7]} offset:16")
e("s_waitcnt lgkmcnt(0)")
e(f"v_or3_b32 v96, v96, v97, v98")
e(f"v_or3_b32 v96, v96, v99, v100")
e(f"v_or3_b32 v96, v96, v101, v102")
e(f"v_or_b32 v96, v96, v103")
e("s_nop 0")
e(f"v_readfirstlane_b32 s{sT0}, v96")
e(f"v_readfirstlane_b32 s{sCO}, v{vT[0]}")
e("s_nop 3")
e(f"s_cmp_lg_u32 s{sT0}, 0")
e("s_cbranch_scc1 L_post_sg")
e(f"s_mov_b32 s{sRETRY}, 0")
e("s_branch L_slow_adv")
lab("L_post_sg")
first_gathers()
e("s_branch L_post_go")
lab("L_post_fast")
e(f"s_waitcnt lgkmcnt({0 if EARLY else 4})")
e(f"v_readfirstlane_b32 s{sCO}, v{vT[0]}")
e(f"v_readfirstlane_b32 s{sT3}, v{vT[1]}           ; OVF")
e("s_nop 3")
e(f"s_cmp_lg_u32 s{sT3}, 0")
e("s_cbranch_scc1 L_slow_init")
lab("L_post_go")
e(f"s_min_u32 s{sCO}, s{sCO}, {CAP}")
e(f"s_add_u32 s{sNT}, s{sCO}, 15")
e(f"s_lshr_b32 s{sNT}, s{sNT}, 4")
if not EARLY:
    e("s_waitcnt lgkmcnt(2)")
    dma_issue(LK[0], LK[1], sB0)
    stamp("dma0 issued", 11)
if HOIST:
    e(f"s_cmp_eq_u32 s{sMODE}, 0")
    e("s_cbranch_scc1 L_noseg0")
id_consts(vT[0], vT[1])
c("SEG zero (first pass only)")
e(f"s_cmp_eq_u32 s{sNODE}, 0")
e("s_cbranch_scc1 L_noseg0")
e(f"s_mov_b32 s{sNODE}, 0")
seg_zero()
lab("L_noseg0")
c("BXF address: BXP + g*2048 + (64ch + l)*16   (l = 32hi + n)")
e(f"s_lshl_b32 s{sT0}, s{sG}, 11")
e(f"s_lshl_b32 s{sT1}, s{sCH2}, 10")
e(f"s_add_u32 s{sT0}, s{sT0}, s{sT1}")
e(f"s_add_u32 s{sT0}, s{sT0}, {BXP}")
e(f"v_lshlrev_b32 v{vT[0]}, 4, v{vL}")
e(f"v_add_u32 v{vT[0]}, s{sT0}, v{vT[0]}")
e(f"ds_read_b128 {vr(BXF,4)}, v{vT[0]}")
if not EARLY:
    e("s_waitcnt lgkmcnt(1)")
    dma_issue(LK[2], LK[3], sB1)
stamp("BB", 14)
_st[0] = 15
if not NOPRIO: e(f"s_setprio {PRIOS[0]}")
e(f"s_mov_b32 s{sU}, 0")
if XM:
    for i in range(4): e(f"v_mov_b32 v{124+i}, 0")
e("s_mov_b32 s6, 1.0")
e("s_mov_b32 s7, 1.0")
e(f"s_mov_b32 s{sREM}, s{sCO}")
e(f"s_mov_b32 s{sRT}, s{sNT}")
c("running pointers: vLKr / vLKr2 -> tile 2 ; working copies of vOD / vTRS")
e(f"v_add_u32 v{vLKr}, 2048, v{vLK}")
e(f"v_add_u32 v{vLKr2}, 2048, v{vLKr2}")
e(f"v_mov_b32 v{vODr}, v{vOD}")
e(f"v_mov_b32 v{vTRSr}, v{vTRS}")
e(f"v_xor_b32 v{vTRSr2}, 32, v{vTRS}")

def tile_body(buf):
    tag = f"t{buf}"
    sBUF = [sB0, sB1][buf]
    bo = buf * 2048
    c(f"---- tile (buffer {buf}) ----")
    e(f"s_cmp_gt_u32 s{sRT}, 2")
    e(f"s_cselect_b32 s{sK3}, 1, 0")
    e(f"s_cbranch_scc0 L_nolk{tag}")
    io = buf * 1024 if IMM else 0
    e(f"ds_read_u16 v{PA}, v{vLKr} offset:{io}")
    e(f"ds_read_u16 v{PB}, v{vLKr2} offset:{io+512}")
    lab(f"L_nolk{tag}")
    e(f"ds_read_b128 {vr(OHD,4)}, v{vODr} offset:{io}")
    e(f"s_cmp_gt_u32 s{sRT}, 1")
    e(f"s_cbranch_scc1 L_w2{tag}")
    e("s_waitcnt vmcnt(0)")
    e(f"s_branch L_wd{tag}")
    lab(f"L_w2{tag}")
    e("s_waitcnt vmcnt(2)")
    lab(f"L_wd{tag}")
    if os.environ.get("TSTAMP"):
        e(f"s_memtime s[{sC4}:{sC5}]")
        e(f"s_min_u32 s3, s{sU}, 13")
        e(f"s_add_u32 m0, s3, 24")
        e(f"s_add_u32 s{sU}, s{sU}, 1")
        e("s_waitcnt lgkmcnt(0)")
        e(f"v_writelane_b32 v{VST}, s{sC4}, m0")
    if "q" not in KO:
      e(f"ds_read_b64_tr_b16 {vr(QF,2)}, v{vTRQ0} offset:{bo}")
      e(f"ds_read_b64_tr_b16 {vr(QF+2,2)}, v{vTRQ0} offset:{bo+512}")
      e(f"ds_read_b64_tr_b16 {vr(QF+4,2)}, v{vTRQ1} offset:{bo}")
      e(f"ds_read_b64_tr_b16 {vr(QF+6,2)}, v{vTRQ1} offset:{bo+512}")
    e(f"ds_read_b64_tr_b16 {vr(SF,2)}, v{vTRSr} offset:{io}")
    e(f"ds_read_b64_tr_b16 {vr(SF+2,2)}, v{vTRSr2} offset:{io+512}")
    if buf == 1 or not IMM:
        st = 2048 if IMM else 1024
        e(f"v_add_u32 v{vLKr}, {st}, v{vLKr}")
        e(f"v_add_u32 v{vLKr2}, {st}, v{vLKr2}")
        e(f"v_add_u32 v{vODr}, v{vODM}, v{vODr}")
        e(f"v_add_u32 v{vTRSr}, {st}, v{vTRSr}")
        e(f"v_add_u32 v{vTRSr2}, {st}, v{vTRSr2}")
    e("s_waitcnt lgkmcnt(6)")
    mfma(ACC, OHD, BXF, "0")
    e("s_waitcnt lgkmcnt(4)")
    if "i" not in KO:
      mfma(ACC, ID, QF, vr(ACC,16))
      e("s_waitcnt lgkmcnt(2)")
      mfma(ACC, ID+4, QF+4, vr(ACC,16))
    for _ in range(XM):
        mfma(ACC, 124, QF+4*(_&1), vr(ACC,16))
    e(f"s_cmp_eq_u32 s{sK3}, 0")
    e(f"s_cbranch_scc1 L_nodma{tag}")
    if "d" not in KO: dma_issue(PA, PB, sBUF)
    lab(f"L_nodma{tag}")
    e("s_nop 7")
    e("s_nop 3")
    def blk(bb, t):
        a = ACC + 4*bb
        if "e" in KO:
            for i in range(4): e(f"v_mov_b32 v{t+i}, v{a+i}")
        else:
            for i in range(4): e(f"v_exp_f32 v{t+i}, v{a+i}")
        if PK & 1:
            if PK & 4:
                for i in (0, 2): e(f"v_pk_add_f32 {vr(t+i,2)}, {vr(t+i,2)}, 1.0 op_sel_hi:[1,0]")
            else:
                for i in (0, 2): e(f"v_pk_add_f32 {vr(t+i,2)}, {vr(t+i,2)}, s[6:7]")
        elif "a" not in KO:
            for i in range(4): e(f"v_add_f32 v{t+i}, 1.0, v{t+i}")
        if "r" not in KO:
            for i in range(4): e(f"v_rcp_f32 v{t+i}, v{t+i}")
        if PK & 2:
            for i in (0, 2): e(f"v_pk_mul_f32 {vr(t+i,2)}, {vr(a+i,2)}, {vr(t+i,2)}")
        elif "m" not in KO:
            for i in range(4): e(f"v_mul_f32 v{t+i}, v{a+i}, v{t+i}")
        e(f"v_cvt_pk_bf16_f32 v{MP+2*bb}, v{t}, v{t+1}")
        e(f"v_cvt_pk_bf16_f32 v{MP+2*bb+1}, v{t+2}, v{t+3}")
    def blk16(bbs):
        P = [(MP+2*bb+h, ACC+4*bb+2*h) for bb in bbs for h in range(2)]
        T = [TE+i for i in range(len(P))]
        for (m, a) in P: e(f"v_cvt_pk_f16_f32 v{m}, v{a}, v{a+1}")
        if "s" in KO: return
        if "h" in KO and bbs[0] == 1: return
        for (m, a), t in zip(P, T): e(f"v_exp_f16_sdwa v{t}, v{m} dst_sel:WORD_0 dst_unused:UNUSED_PAD src0_sel:WORD_0")
        for (m, a), t in zip(P, T): e(f"v_exp_f16_sdwa v{t}, v{m} dst_sel:WORD_1 dst_unused:UNUSED_PRESERVE src0_sel:WORD_1")
        for t in T: e(f"v_pk_add_f16 v{t}, v{t}, 1.0 op_sel_hi:[1,0]")
        for t in T: e(f"v_rcp_f16_sdwa v{t}, v{t} dst_sel:WORD_0 dst_unused:UNUSED_PRESERVE src0_sel:WORD_0")
        for t in T: e(f"v_rcp_f16_sdwa v{t}, v{t} dst_sel:WORD_1 dst_unused:UNUSED_PRESERVE src0_sel:WORD_1")
        for (m, a), t in zip(P, T): e(f"v_pk_mul_f16 v{m}, v{m}, v{t}")
    if F16: blk16((0, 2))
    else:
        blk(0, TE); blk(2, TE+4)
    e(f"s_cmp_le_u32 s{sREM}, 8")
    e(f"s_cbranch_scc1 L_skip{tag}")
    if F16: blk16((1, 3))
    else:
        blk(1, TE); blk(3, TE+4)
    e(f"s_branch L_blk{tag}")
    lab(f"L_skip{tag}")
    for r in (2, 3, 6, 7): e(f"v_mov_b32 v{MP+r}, 0")
    lab(f"L_blk{tag}")
    e("s_waitcnt lgkmcnt(0)")
    e("s_nop 1")
    if F16:
        e(f"v_mfma_f32_32x32x16_f16 {vr(SEG,16)}, {vr(MP,4)}, {vr(SF,4)}, {vr(SEG,16)}")
        e(f"v_mfma_f32_32x32x16_f16 {vr(SEG+16,16)}, {vr(MP+4,4)}, {vr(SF,4)}, {vr(SEG+16,16)}")
    else:
        mfma(SEG, MP, SF, vr(SEG,16))
        mfma(SEG+16, MP+4, SF, vr(SEG+16,16))
    e(f"s_sub_u32 s{sREM}, s{sREM}, 16")
    e(f"s_sub_u32 s{sRT}, s{sRT}, 1")
    if not NOPRIO:
        e(f"s_cmp_gt_u32 s{sRT}, 3")
        e(f"s_cbranch_scc1 L_pr{tag}")
        e(f"s_setprio {PRIOS[1]}")
        e(f"s_cmp_eq_u32 s{sRT}, 3")
        e(f"s_cbranch_scc1 L_pr{tag}")
        e(f"s_setprio {PRIOS[2]}")
        e(f"s_cmp_eq_u32 s{sRT}, 2")
        e(f"s_cbranch_scc1 L_pr{tag}")
        e(f"s_setprio {PRIOS[3]}")
        lab(f"L_pr{tag}")

e(f"s_cmp_eq_u32 s{sRT}, 0")
e("s_cbranch_scc1 L_tiles_done")
lab("L_tile_loop")
tile_body(0)
e(f"s_cmp_eq_u32 s{sRT}, 0")
e("s_cbranch_scc1 L_tiles_done")
tile_body(1)
e(f"s_cmp_lg_u32 s{sRT}, 0")
e("s_cbranch_scc1 L_tile_loop")
lab("L_tiles_done")
e("s_waitcnt vmcnt(0)")
if not NOPRIO: e("s_setprio 3")
stamp("tiles done")
e(f"s_cmp_eq_u32 s{sMODE}, 0")
e("s_cbranch_scc0 L_slow_next")

lab("L_final")
WFL = 80
ROW = 16
HRES = 112
vN = vT[1]; vHI = vT[2]; vOFF = vT[3]; vRD_ = vT[4]
e(f"s_memrealtime s[6:7]")
e(f"v_and_b32 v{vN}, 31, v{vL}")
e(f"v_lshrrev_b32 v{vHI}, 5, v{vL}")
c("late frags: quads 1, 2: WH2F slice ct ; quad 0: wx frags")
e(f"s_cmp_eq_u32 s{sQ}, {QC}")
e("s_cbranch_scc1 L_f_wx")
e(f"s_cmp_eq_u32 s{sQ}, 3")
e("s_cbranch_scc1 L_f_flush")
e(f"s_lshl_b32 s{sT0}, s{sCT}, 13")
e(f"s_add_u32 s{sT0}, s{sT0}, {WH2F}")
e(f"s_add_u32 s{sT1}, s{sT0}, 4096")
e(f"v_lshlrev_b32 v{vT[0]}, 4, v{vL}")
for s_ in range(8):
    e(f"buffer_load_dwordx4 {vr(WFL+4*s_,4)}, v{vT[0]}, {srd(S_WS)}, s{[sT0,sT1][s_>>2]} offen offset:{(s_%4)*1024}{WSC}")
e("s_branch L_f_flush")
lab("L_f_wx")
e(f"v_lshlrev_b32 v{vT[0]}, 4, v{vHI}")
for s_ in range(8):
    e(f"buffer_load_dwordx4 {vr(WFL+4*s_,4)}, v{vT[0]}, {srd(S_WX)}, 0 offen offset:{s_*32}")
lab("L_f_flush")
c("flush: lane (f=n, hi): addr = QTw + h*2048 + f*64 + ((bb ^ ((f>>2)&3) ^ (g&3))<<4) + hi*8")
e(f"s_and_b32 s{sT0}, s{sG}, 3")
e(f"v_bfe_u32 v{vT[5]}, v{vN}, 2, 2")
e(f"v_xor_b32 v{vT[5]}, s{sT0}, v{vT[5]}")
e(f"v_lshlrev_b32 v{vT[5]}, 4, v{vT[5]}")
e(f"v_lshl_add_u32 v{vT[5]}, v{vN}, 6, v{vT[5]}")
e(f"v_lshl_add_u32 v{vT[5]}, v{vHI}, 3, v{vT[5]}")
e(f"v_add_u32 v{vT[5]}, s{sB0}, v{vT[5]}")
e("s_nop 7")
e("s_nop 3")
for h in range(2):
    for bb in range(4):
        r0 = SEG + 16*h + 4*bb
        e(f"v_cvt_pk_bf16_f32 v{r0}, v{r0}, v{r0+1}")
        e(f"v_cvt_pk_bf16_f32 v{r0+1}, v{r0+2}, v{r0+3}")
        if bb == 0:
            e(f"ds_write_b64 v{vT[5]}, {vr(r0,2)} offset:{h*2048}")
        else:
            e(f"v_xor_b32 v{vT[6]}, {bb<<4}, v{vT[5]}")
            e(f"ds_write_b64 v{vT[6]}, {vr(r0,2)} offset:{h*2048}")
if FINR == 2:
    e(f"s_mul_i32 s{sNT}, s2, 40")
    e(f"s_cmp_eq_u32 s{sQ}, {QC}")
    e("s_cbranch_scc1 L_f_roleC")
    e(f"s_cmp_eq_u32 s{sQ}, {QB}")
    e("s_cbranch_scc1 L_f_roleB")
    e(f"s_cmp_eq_u32 s{sQ}, {QA}")
    e("s_cbranch_scc0 L_f_bar")
    for bb in range(4):
        e(f"v_xor_b32 v{vT[7]}, {bb<<4}, v{vFRES}")
        e(f"ds_read_b64 {vr(HRES+2*bb,2)}, v{vT[7]}")
    e("s_branch L_f_bar")
    lab("L_f_roleB")
    for i in range(4):
        e(f"v_xor_b32 v{vT[5]}, {i<<4}, v{vFRES}")
        e(f"ds_read_u16 v{HRES+i}, v{vT[5]} offset:{i*256}")
    e("s_branch L_f_bar")
    lab("L_f_roleC")
    vNODE = vT[5]; vCMP = vT[6]
    rolec_node(vN, vNODE, vCMP, vT[0], vT[7])
    c("role C: pos residual PTF[node][comp-1] ; out offset (40b + node)*6 + (comp-1)*2")
    e(f"v_lshlrev_b32 v{vT[0]}, 4, v{vNODE}")
    e(f"v_lshl_add_u32 v{vT[0]}, v{vCMP}, 2, v{vT[0]}")
    e(f"v_add_u32 v{vT[0]}, {PTF-4}, v{vT[0]}")
    e(f"ds_read_b32 v{HRES}, v{vT[0]}")
    e(f"v_add_u32 v{vOFF}, s{sNT}, v{vNODE}")
    e(f"v_mul_u32_u24 v{vOFF}, 6, v{vOFF}")
    e(f"v_lshl_add_u32 v{vOFF}, v{vCMP}, 1, v{vOFF}")
    e(f"v_subrev_u32 v{vOFF}, 2, v{vOFF}")
if not FINR:
    c("per-role (node, comp) -> g, f ; addr = QT + g*8192 + f*64 + ((hi ^ ((f>>2)&3) ^ (g&3))<<4)")
    vNODE = vT[5]; vCMP = vT[6]
    def node_addr(dst, node, cmp_, t0, t1):
        e(f"v_mul_u32_u24 v{t1}, 52, v{node}")
        e(f"v_lshrrev_b32 v{t1}, 8, v{t1}             ; g")
        e(f"v_mul_u32_u24 v{t0}, 5, v{t1}")
        e(f"v_sub_u32 v{t0}, v{node}, v{t0}          ; j")
        if cmp_ is not None:
            e(f"v_lshl_add_u32 v{t0}, v{cmp_}, 3, v{t0}")
        e(f"v_add_u32 v{t0}, 3, v{t0}                 ; f")
        e(f"v_bfe_u32 v{dst}, v{t0}, 2, 2")
        e(f"v_xor_b32 v{dst}, v{dst}, v{vHI}")
        e(f"v_lshlrev_b32 v{t0}, 6, v{t0}")
        e(f"v_lshl_add_u32 v{t0}, v{t1}, 13, v{t0}")
        e(f"v_and_b32 v{t1}, 3, v{t1}")
        e(f"v_xor_b32 v{dst}, v{dst}, v{t1}")
        e(f"v_lshl_add_u32 v{dst}, v{dst}, 4, v{t0}")
        e(f"v_add_u32 v{dst}, {QT}, v{dst}")
    e(f"s_mul_i32 s{sK3}, s2, 40")
    e(f"s_cmp_eq_u32 s{sQ}, {QC}")
    e("s_cbranch_scc1 L_f_roleC")
    e(f"s_cmp_eq_u32 s{sQ}, {QB}")
    e("s_cbranch_scc1 L_f_roleB")
    e(f"s_cmp_eq_u32 s{sQ}, {QA}")
    e("s_cbranch_scc0 L_f_bar")
    c("role A (nodes n)")
    node_addr(vRD_, vN, None, vT[0], vT[7])
    c("role A residual: h[node n][32ct + 8bb + 4hi..+3]: OWN + n*256 + (((ct*4+bb) ^ (n&15))<<4) + hi*8")
    e(f"v_and_b32 v{vT[0]}, 15, v{vN}")
    e(f"s_lshl_b32 s{sT0}, s{sCT}, 2")
    e(f"v_xor_b32 v{vT[0]}, s{sT0}, v{vT[0]}")
    e(f"v_lshlrev_b32 v{vT[0]}, 4, v{vT[0]}")
    e(f"v_lshl_add_u32 v{vT[0]}, v{vN}, 8, v{vT[0]}")
    e(f"v_lshl_add_u32 v{vT[0]}, v{vHI}, 3, v{vT[0]}")
    e(f"v_add_u32 v{vT[0]}, {OWN}, v{vT[0]}")
    for bb in range(4):
        e(f"v_xor_b32 v{vT[7]}, {bb<<4}, v{vT[0]}")
        e(f"ds_read_b64 {vr(HRES+2*bb,2)}, v{vT[7]}")
    e(f"v_add_u32 v{vOFF}, s{sK3}, v{vN}")
    e(f"v_lshlrev_b32 v{vOFF}, 8, v{vOFF}")
    e(f"v_lshl_add_u32 v{vOFF}, v{vHI}, 3, v{vOFF}")
    e(f"s_lshl_b32 s{sT0}, s{sCT}, 6")
    e(f"v_add_u32 v{vOFF}, s{sT0}, v{vOFF}")
    e("s_branch L_f_bar")
    lab("L_f_roleB")
    c("role B (nodes 32 + (n&7))")
    e(f"v_and_b32 v{vNODE}, 7, v{vN}")
    e(f"v_add_u32 v{vNODE}, 32, v{vNODE}")
    node_addr(vRD_, vNODE, None, vT[0], vT[7])
    c("role B residual: rows 32+4hi+i, col 32ct+n: OWN + row*256 + (((ct*4 + (n>>3)) ^ (row&15))<<4) + (n&7)*2")
    e(f"v_lshrrev_b32 v{vT[0]}, 3, v{vN}")
    e(f"s_lshl_b32 s{sT0}, s{sCT}, 2")
    e(f"v_add_u32 v{vT[0]}, s{sT0}, v{vT[0]}          ; chunk")
    e(f"v_lshlrev_b32 v{vT[7]}, 2, v{vHI}             ; 4hi")
    e(f"v_xor_b32 v{vT[0]}, v{vT[0]}, v{vT[7]}")
    e(f"v_lshlrev_b32 v{vT[0]}, 4, v{vT[0]}")
    e(f"v_lshl_add_u32 v{vT[0]}, v{vT[7]}, 8, v{vT[0]}   ; + 4hi*256")
    e(f"v_and_b32 v{vT[5]}, 7, v{vN}")
    e(f"v_lshl_add_u32 v{vT[0]}, v{vT[5]}, 1, v{vT[0]}")
    e(f"v_add_u32 v{vT[0]}, {OWN + 32*256}, v{vT[0]}")
    for i in range(4):
        e(f"v_xor_b32 v{vT[5]}, {i<<4}, v{vT[0]}")
        e(f"ds_read_u16 v{HRES+i}, v{vT[5]} offset:{i*256}")
    e(f"s_add_u32 s{sT0}, s{sK3}, 32")
    e(f"v_add_u32 v{vOFF}, s{sT0}, v{vT[7]}")
    e(f"v_lshlrev_b32 v{vOFF}, 8, v{vOFF}")
    e(f"v_lshl_add_u32 v{vOFF}, v{vN}, 1, v{vOFF}")
    e(f"s_lshl_b32 s{sT0}, s{sCT}, 6")
    e(f"v_add_u32 v{vOFF}, s{sT0}, v{vOFF}")
    e("s_branch L_f_bar")
    lab("L_f_roleC")
    c("role C: n' = min(n,29); idx = 30ct + n' ; G = idx/15 ; r = idx%15 ; c = r/5 ; j = r%5 ; node = 5G + j ; comp = c+1")
    e(f"v_min_u32 v{vT[0]}, 29, v{vN}")
    e(f"v_cmp_lt_u32 vcc, 14, v{vT[0]}")
    e(f"v_cndmask_b32 v{vT[7]}, 0, 1, vcc               ; G&1")
    e(f"v_mul_u32_u24 v{vNODE}, 15, v{vT[7]}")
    e(f"v_sub_u32 v{vT[0]}, v{vT[0]}, v{vNODE}          ; r")
    e(f"v_mul_u32_u24 v{vCMP}, 52, v{vT[0]}")
    e(f"v_lshrrev_b32 v{vCMP}, 8, v{vCMP}              ; c")
    e(f"v_mul_u32_u24 v{vNODE}, 5, v{vCMP}")
    e(f"v_sub_u32 v{vT[0]}, v{vT[0]}, v{vNODE}          ; j")
    e(f"s_lshl_b32 s{sT0}, s{sCT}, 1")
    e(f"v_add_u32 v{vT[7]}, s{sT0}, v{vT[7]}            ; G")
    e(f"v_mad_u32_u24 v{vNODE}, v{vT[7]}, 5, v{vT[0]}")
    e(f"v_add_u32 v{vCMP}, 1, v{vCMP}")
    node_addr(vRD_, vNODE, vCMP, vT[0], vT[7])
    c("role C: pos residual PTF[node][comp-1] ; out offset (40b + node)*6 + (comp-1)*2")
    e(f"v_lshlrev_b32 v{vT[0]}, 4, v{vNODE}")
    e(f"v_lshl_add_u32 v{vT[0]}, v{vCMP}, 2, v{vT[0]}")
    e(f"v_add_u32 v{vT[0]}, {PTF-4}, v{vT[0]}")
    e(f"ds_read_b32 v{HRES}, v{vT[0]}")
    e(f"v_add_u32 v{vOFF}, s{sK3}, v{vNODE}")
    e(f"v_mul_u32_u24 v{vOFF}, 6, v{vOFF}")
    e(f"v_lshl_add_u32 v{vOFF}, v{vCMP}, 1, v{vOFF}")
    e(f"v_subrev_u32 v{vOFF}, 2, v{vOFF}")

lab("L_f_bar")
e("s_waitcnt lgkmcnt(0)")
c("residency guard: this wave's stamp must be older than the accept window of any later launch")
lab("L_guard")
e(f"s_sub_u32 s{sT0}, s6, s{sTW}")
e(f"s_cmp_ge_u32 s{sT0}, {GUARD}")
e("s_cbranch_scc1 L_guard_ok")
e("s_sleep 8")
e("s_memrealtime s[6:7]")
e("s_waitcnt lgkmcnt(0)")
e("s_branch L_guard")
lab("L_guard_ok")
e("s_barrier")
stamp("final bar")
e(f"s_cmp_eq_u32 s{sQ}, 3")
e("s_cbranch_scc1 L_end")
if FINR: vRD_ = vFRD
e(f"v_xor_b32 v{vT[0]}, 32, v{vRD_}")
for s_ in range(8):
    e(f"ds_read_b128 {vr(ROW+4*s_,4)}, v{[vRD_, vT[0]][s_&1]} offset:{(s_>>1)*2048}")
e(f"s_mov_b32 s{sK2}, 0x{NLN2:08x}")
e(f"s_mul_i32 s{sNT}, s2, 40")
e(f"s_mov_b32 s{sK3}, 0xffff0000")
if FINR != 1: e("s_waitcnt vmcnt(0)")
vOFFC = vOFF
if FINR == 2: vOFF = vFOFF
e(f"s_cmp_eq_u32 s{sQ}, {QC}")
e("s_cbranch_scc1 L_f_C")
e(f"s_cmp_eq_u32 s{sQ}, {QB}")
e("s_cbranch_scc1 L_f_B")
c("role A")
NX = 0
if FINR == 1:
    NX = 4
    c("role A residual: h[node n][32ct + 8bb + 4hi..+3]: OWN + n*256 + (((ct*4+bb) ^ (n&15))<<4) + hi*8")
    e(f"v_and_b32 v{vT[0]}, 15, v{vN}")
    e(f"s_lshl_b32 s{sT0}, s{sCT}, 2")
    e(f"v_xor_b32 v{vT[0]}, s{sT0}, v{vT[0]}")
    e(f"v_lshlrev_b32 v{vT[0]}, 4, v{vT[0]}")
    e(f"v_lshl_add_u32 v{vT[0]}, v{vN}, 8, v{vT[0]}")
    e(f"v_lshl_add_u32 v{vT[0]}, v{vHI}, 3, v{vT[0]}")
    e(f"v_add_u32 v{vT[0]}, {OWN}, v{vT[0]}")
    for bb in range(4):
        e(f"v_xor_b32 v{vT[7]}, {bb<<4}, v{vT[0]}")
        e(f"ds_read_b64 {vr(HRES+2*bb,2)}, v{vT[7]}")
    e(f"v_add_u32 v{vOFF}, s{sNT}, v{vN}")
    e(f"v_lshlrev_b32 v{vOFF}, 8, v{vOFF}")
    e(f"v_lshl_add_u32 v{vOFF}, v{vHI}, 3, v{vOFF}")
    e(f"s_lshl_b32 s{sT0}, s{sCT}, 6")
    e(f"v_add_u32 v{vOFF}, s{sT0}, v{vOFF}")
    e("s_waitcnt vmcnt(0)")
stamp("A vm", 40)
for s_ in range(8):
    e(f"s_waitcnt lgkmcnt({7-s_+NX})")
    mfma(FACC, WFL+4*s_, ROW+4*s_, vr(FACC,16))
if FINR == 1: e("s_waitcnt lgkmcnt(0)")
stamp("A mfma", 41)
def final_silu(a, n, T):
    for i in range(n): e(f"v_exp_f32 v{T+i}, v{a+i}")
    for i in range(n): e(f"v_add_f32 v{T+i}, 1.0, v{T+i}")
    for i in range(n): e(f"v_rcp_f32 v{T+i}, v{T+i}")
    for i in range(n): e(f"v_mul_f32 v{a+i}, v{a+i}, v{T+i}")
X = 48
e("s_nop 7")
e("s_nop 3")
for i in range(4):
    a = FACC + 4*i
    final_silu(a, 4, X)
    if i == 0: stamp("A silu0", 42)
    e(f"v_lshlrev_b32 v{X}, 16, v{HRES+2*i}")
    e(f"v_and_b32 v{X+1}, s{sK3}, v{HRES+2*i}")
    e(f"v_lshlrev_b32 v{X+2}, 16, v{HRES+2*i+1}")
    e(f"v_and_b32 v{X+3}, s{sK3}, v{HRES+2*i+1}")
    for k in range(4): e(f"v_fma_f32 v{a+k}, v{a+k}, s{sK2}, v{X+k}")
    e(f"v_cvt_pk_bf16_f32 v{X+4+2*i}, v{a}, v{a+1}")
    e(f"v_cvt_pk_bf16_f32 v{X+5+2*i}, v{a+2}, v{a+3}")
    e(f"buffer_store_dwordx2 {vr(X+4+2*i,2)}, v{vOFF}, {srd(S_O0)}, 0 offen offset:{i*16}{OSC}")
e("s_branch L_end")
lab("L_f_B")
if FBS: e(f"s_sleep {FBS}")
c("role B: rows 32 + 4hi + r")
for i in range(4): e(f"v_mov_b32 v{ACC+i}, v{FB+i}")
if FINR == 1:
    c("role B residual: rows 32+4hi+i, col 32ct+n: OWN + row*256 + (((ct*4 + (n>>3)) ^ (row&15))<<4) + (n&7)*2")
    e(f"v_lshrrev_b32 v{vT[0]}, 3, v{vN}")
    e(f"s_lshl_b32 s{sT0}, s{sCT}, 2")
    e(f"v_add_u32 v{vT[0]}, s{sT0}, v{vT[0]}          ; chunk")
    e(f"v_lshlrev_b32 v{vT[7]}, 2, v{vHI}             ; 4hi")
    e(f"v_xor_b32 v{vT[0]}, v{vT[0]}, v{vT[7]}")
    e(f"v_lshlrev_b32 v{vT[0]}, 4, v{vT[0]}")
    e(f"v_lshl_add_u32 v{vT[0]}, v{vT[7]}, 8, v{vT[0]}   ; + 4hi*256")
    e(f"v_and_b32 v{vT[5]}, 7, v{vN}")
    e(f"v_lshl_add_u32 v{vT[0]}, v{vT[5]}, 1, v{vT[0]}")
    e(f"v_add_u32 v{vT[0]}, {OWN + 32*256}, v{vT[0]}")
    for i in range(4):
        e(f"v_xor_b32 v{vT[5]}, {i<<4}, v{vT[0]}")
        e(f"ds_read_u16 v{HRES+i}, v{vT[5]} offset:{i*256}")
    e(f"s_add_u32 s{sT0}, s{sNT}, 32")
    e(f"v_add_u32 v{vOFF}, s{sT0}, v{vT[7]}")
    e(f"v_lshlrev_b32 v{vOFF}, 8, v{vOFF}")
    e(f"v_lshl_add_u32 v{vOFF}, v{vN}, 1, v{vOFF}")
    e(f"s_lshl_b32 s{sT0}, s{sCT}, 6")
    e(f"v_add_u32 v{vOFF}, s{sT0}, v{vOFF}")
    e("s_waitcnt vmcnt(0)")
e("s_nop 1")
for s_ in range(8):
    e(f"s_waitcnt lgkmcnt({7-s_+NX})")
    mfma(ACC, ROW+4*s_, WFL+4*s_, vr(ACC,16))
if FINR == 1: e("s_waitcnt lgkmcnt(0)")
Y = 64
e("s_nop 7")
e("s_nop 3")
final_silu(ACC, 4, Y)
for k in range(4):
    e(f"v_lshlrev_b32 v{Y+k}, 16, v{HRES+k}")
for k in range(4):
    e(f"v_fma_f32 v{ACC+k}, v{ACC+k}, s{sK2}, v{Y+k}")
for k in range(4):
    e(f"v_cvt_pk_bf16_f32 v{Y+8+k}, v{ACC+k}, v{ACC+k}")
for r in range(4):
    e(f"buffer_store_short v{Y+8+r}, v{vOFF}, {srd(S_O0)}, 0 offen offset:{r*256}{OSC}")
e("s_branch L_end")
lab("L_f_C")
if FCS: e(f"s_sleep {FCS}")
vOFF = vOFFC
if FINR == 1:
    vNODE = vT[5]; vCMP = vT[6]
    rolec_node(vN, vNODE, vCMP, vT[0], vT[7])
    c("role C: pos residual PTF[node][comp-1] ; out offset (40b + node)*6 + (comp-1)*2")
    e(f"v_lshlrev_b32 v{vT[0]}, 4, v{vNODE}")
    e(f"v_lshl_add_u32 v{vT[0]}, v{vCMP}, 2, v{vT[0]}")
    e(f"v_add_u32 v{vT[0]}, {PTF-4}, v{vT[0]}")
    e(f"ds_read_b32 v{HRES}, v{vT[0]}")
    e(f"v_add_u32 v{vOFF}, s{sNT}, v{vNODE}")
    e(f"v_mul_u32_u24 v{vOFF}, 6, v{vOFF}")
    e(f"v_lshl_add_u32 v{vOFF}, v{vCMP}, 1, v{vOFF}")
    e(f"v_subrev_u32 v{vOFF}, 2, v{vOFF}")
    e("s_waitcnt vmcnt(0)")
for s_ in range(8):
    e(f"s_waitcnt lgkmcnt({7-s_+(1 if FINR == 1 else 0)})")
    mfma(ACC, WFL+4*s_, ROW+4*s_, "0" if s_ == 0 else vr(ACC,16))
if FINR == 1: e("s_waitcnt lgkmcnt(0)")
e("s_nop 7")
e("s_nop 3")
e(f"v_fma_f32 v{ACC}, v{ACC}, s{sK2}, v{HRES}")
e(f"v_cvt_pk_bf16_f32 v{ACC}, v{ACC}, v{ACC}")
e(f"s_mov_b32 exec_lo, 0x3fffffff")
e(f"s_mov_b32 exec_hi, 0")
e(f"buffer_store_short v{ACC}, v{vOFF}, {srd(S_O1)}, 0 offen{OSC}")
lab("L_end")
stamp("end")
stamp_flush()
lab("L_end2")
e("s_endpgm")

def zero_lds(Z, vtid):
    c("zero REC (69632 B = 4352 x 16 B) and counters (64 B)")
    for i in range(4): e(f"v_mov_b32 v{Z+i}, 0")
    e(f"v_lshlrev_b32 v{vT[0]}, 4, v{vtid}")
    for i in range(4):
        e(f"ds_write_b128 v{vT[0]}, {vr(Z,4)} offset:{i*16384}")
    e(f"v_add_u32 v{vT[1]}, {65536}, v{vT[0]}")
    e(f"v_add_u32 v{vT[2]}, {CTR - 256*16}, v{vT[0]}")
    e(f"v_cmp_gt_u32 vcc, 256, v{vtid}")
    e(f"v_cndmask_b32 v{vT[1]}, v{vT[2]}, v{vT[1]}, vcc")
    e(f"v_cmp_gt_u32 vcc, 260, v{vtid}")
    e("s_mov_b64 exec, vcc")
    e(f"ds_write_b128 v{vT[1]}, {vr(Z,4)}")
    e("s_mov_b64 exec, -1")
lab("L_slow_init")
e(f"s_mov_b32 s{sPREF}, 0")
e(f"s_mov_b32 s{sMODE}, 1")
e(f"s_mov_b32 s{sCH}, 0")
e(f"s_mov_b32 s{sRETRY}, 0")
e(f"s_and_b32 s{sT3}, s{sT3}, 2")
e(f"s_cmp_eq_u32 s{sT3}, 0")
e("s_cbranch_scc1 L_slow_pass")
c("fallback: the hand-off timed out -> this workgroup computes all of Q and the WH2 fragments itself")
c("(waves 0..7 keep FACC (64..79) / FB (120..123); waves 8..15 run the GEMM blocks)")
e(f"s_mov_b32 s{sU}, 0")
lab("L_fb_loop")
e("s_waitcnt vmcnt(0) lgkmcnt(0)")
e("s_barrier")
e(f"s_cmp_lt_u32 s{sW}, 8")
e("s_cbranch_scc1 L_fb_idle")
gemm_role("fb", sU, True)
e("s_branch L_fb_next")
lab("L_fb_idle")
e("s_barrier")
lab("L_fb_next")
e(f"s_add_u32 s{sU}, s{sU}, 1")
e(f"s_cmp_lt_u32 s{sU}, {NG}")
e("s_cbranch_scc1 L_fb_loop")
e("s_waitcnt vmcnt(0) lgkmcnt(0)")
e("s_barrier")
e(f"s_cmp_ge_u32 s{sW}, 4")
e("s_cbranch_scc1 L_slow_pass")
wprep_role("fb", True)
e("s_branch L_slow_pass")
lab("L_slow_next")
e(f"v_mov_b32 v{vT[0]}, {PEND}")
e(f"ds_read_b32 v{vT[1]}, v{vT[0]}")
e("s_waitcnt lgkmcnt(0)")
e(f"v_readfirstlane_b32 s{sRETRY}, v{vT[1]}")
e("s_nop 3")
e(f"s_cmp_lg_u32 s{sRETRY}, 0")
e("s_cbranch_scc1 L_slow_pass")
lab("L_slow_adv")
e(f"s_add_u32 s{sCH}, s{sCH}, 1")
e(f"s_cmp_ge_u32 s{sCH}, 250")
e("s_cbranch_scc1 L_slow_fin")
lab("L_slow_pass")
e("s_waitcnt vmcnt(0) lgkmcnt(0)")
e("s_barrier")
e(f"s_lshl_b32 s{sT0}, s{sW}, 6")
e(f"v_add_u32 v{tid}, s{sT0}, v{vL}")
zero_lds(116, tid)
c("raw edge e = 640*ch + t (t<640)")
qD, qS, qB, qK, qR, qA = 104, 105, 106, 107, 108, 109
RC = RA; vEA = RA + 1; vI0 = VI[0]; PS0 = PS[0]
e(f"s_mul_i32 s{sT0}, s{sCH}, 2560")
e(f"s_mul_i32 s{sT1}, s{sCH}, 1280")
e(f"v_lshlrev_b32 v{vT[0]}, 2, v{tid}")
e(f"v_lshlrev_b32 v{vT[1]}, 1, v{tid}")
e(f"v_mov_b32 v{qD}, -1")
e(f"v_mov_b32 v{qS}, 0")
e(f"v_mov_b32 v{qP}, 0")
e(f"v_mov_b32 v{vEA}, 0")
e(f"v_mov_b32 v{qA}, 640")
e(f"v_cmp_gt_u32 {sp(sM0)}, v{qA}, v{tid}")
e(f"s_cmp_eq_u64 {sp(sM0)}, 0")
e("s_cbranch_scc1 L_slow_nold")
e(f"s_mov_b64 exec, {sp(sM0)}")
e(f"buffer_load_dword v{qD}, v{vT[0]}, {srd(S_DST)}, s{sT0} offen")
e(f"buffer_load_dword v{qS}, v{vT[0]}, {srd(S_SRC)}, s{sT0} offen")
e(f"buffer_load_ushort v{vEA}, v{vT[1]}, {srd(S_EA)}, s{sT1} offen")
e(f"v_add_u32 v{qA}, {PENDB}, v{tid}")
e(f"ds_read_u8 v{qP}, v{qA}")
e("s_mov_b64 exec, -1")
lab("L_slow_nold")
e("s_waitcnt vmcnt(0) lgkmcnt(0)")
e("s_barrier")
e(f"v_mul_u32_u24 v{qB}, 52429, v{qD}")
e(f"v_lshrrev_b32 v{qB}, 21, v{qB}")
e(f"v_mul_u32_u24 v{qK}, 40, v{qB}")
e(f"v_sub_u32 v{qK}, v{qD}, v{qK}")
e(f"v_cmp_eq_u32 vcc, s2, v{qB}")
e(f"s_and_b64 {sp(sM0)}, {sp(sM0)}, vcc          ; match")
e(f"s_cmp_eq_u32 s{sRETRY}, 0")
e("s_cbranch_scc1 L_slow_fresh")
e(f"v_cmp_ne_u32 vcc, 0, v{qP}")
e(f"s_and_b64 {sp(sM0)}, {sp(sM0)}, vcc")
lab("L_slow_fresh")
e(f"v_and_b32 v{qK}, 63, v{qK}")
e(f"v_min_u32 v{qK}, 39, v{qK}")
e(f"v_mul_u32_u24 v{vI0}, 52, v{qK}")
e(f"v_lshrrev_b32 v{vI0}, 8, v{vI0}           ; g")
e(f"v_mul_u32_u24 v{qA}, 5, v{vI0}")
e(f"v_sub_u32 v{qA}, v{qK}, v{qA}             ; j")
e(f"v_and_b32 v{qS}, 0x3fff, v{qS}")
e(f"v_lshl_or_b32 v{RC}, v{qK}, 14, v{qS}")
e(f"v_mov_b32 v{VJ[0]}, v{qA}")
e(f"s_mov_b32 s{sT0}, {ALLOC}")
e(f"v_lshl_add_u32 v{qA}, v{vI0}, 2, s{sT0}")
e(f"v_mov_b32 v{vOne}, 1")
e(f"v_mov_b32 v{qP}, 0")
e(f"v_mul_u32_u24 v{qB}, 6, v{qS}")
e(f"v_and_b32 v{qB}, -4, v{qB}")
for m in MK[1:]: e(f"s_mov_b64 {sp(m)}, 0")
e(f"s_cmp_eq_u64 {sp(sM0)}, 0")
e("s_cbranch_scc1 L_slow_nom")
e(f"s_mov_b64 exec, {sp(sM0)}")
e(f"buffer_load_dwordx2 {vr(PS0,2)}, v{qB}, {srd(S_POS)}, 0 offen")
e(f"ds_add_rtn_u32 v{qR}, v{qA}, v{vOne}")
e("s_mov_b64 exec, -1")
e(f"v_mul_u32_u24 v{vI0}, {GSTR}, v{vI0}")
e("s_waitcnt lgkmcnt(0)")
s1_place(qR, vI0, qS, sM0, "s", slow=True)
lab("L_slow_nom")
e(f"v_mov_b32 v{qA}, 640")
e(f"v_cmp_gt_u32 vcc, v{qA}, v{tid}")
e("s_mov_b64 exec, vcc")
e("s_cbranch_execz L_slow_nopb")
e(f"v_add_u32 v{qA}, {PENDB}, v{tid}")
e(f"ds_write_b8 v{qA}, v{qP}")
lab("L_slow_nopb")
e("s_mov_b64 exec, -1")
e("s_branch L_st2")
lab("L_slow_fin")
if FINR == 2:
    e(f"s_cmp_ge_u32 s{sW}, 8")
    e("s_cbranch_scc1 L_sf_nor")
    final_addr_res("s")
    lab("L_sf_nor")
c("SEG must be zero-initialised if no pass ever ran")
e(f"s_cmp_eq_u32 s{sNODE}, 0")
e("s_cbranch_scc1 L_final_bar")
for r in range(32):
    e(f"v_mov_b32 v{SEG+r}, 0")
lab("L_final_bar")
e("s_barrier")
e("s_branch L_final")

desc = f""".amdhsa_kernel {KNAME}
  .amdhsa_next_free_vgpr 128
  .amdhsa_next_free_sgpr 102
  .amdhsa_accum_offset 128
  .amdhsa_group_segment_fixed_size 0
  .amdhsa_kernarg_size 88
  .amdhsa_user_sgpr_count 2
  .amdhsa_user_sgpr_kernarg_segment_ptr 1
  .amdhsa_system_sgpr_workgroup_id_x 1
.end_amdhsa_kernel"""
body = "\n".join(x for x in out if x is not None)
final = "\n".join(header) + "\n" + body + "\n" + '.section .rodata,"a"\n.p2align 6\n' + desc + "\n"
dest = sys.argv[1] if len(sys.argv) > 1 else "standalone__cheap_equivariant_egnn__graph.s"
open(dest, "w").write(final)
print("wrote", dest, len(out), "lines")
```

```python
import sys, os
sys.path.insert(0, os.path.dirname(os.path.abspath(__file__)))
from g3common import *

KNAME = "standalone__cheap_equivariant_egnn__graph_kernel"
TIMING = os.environ.get("TIMING", "")
NOPRIO = os.environ.get("NOPRIO", "")
QSC = os.environ.get("QSC", " sc1")
FORCE = os.environ.get("FORCE", "")
NPOLL = int(os.environ.get("NPOLL", "3000"))
RSL = int(os.environ.get("RSL", "8"))
QSL = int(os.environ.get("QSL", "4"))
NSL = int(os.environ.get("NSL", "8"))
QST = int(os.environ.get("QST", "8"))
PK = int(os.environ.get("PK", "0"))
XM = int(os.environ.get("XM", "0"))
LATE = int(os.environ.get("LATE", "1"))
BSPEC = int(os.environ.get("BSPEC", "1"))
PPF = int(os.environ.get("PPF", "1"))
WSOFF = int(os.environ.get("WSOFF", "0")) << 20
TLBW = int(os.environ.get("TLBW", "0"))
PLATE = int(os.environ.get("PLATE", "1"))
KO = os.environ.get("KO", "")
OSC = os.environ.get("OSC", "")
if OSC: OSC = " " + OSC.replace("_", " ")
YM = int(os.environ.get("YM", "0"))
SWARM = int(os.environ.get("SWARM", "0"))
PSL = int(os.environ.get("PSL", "0"))
QGATE = int(os.environ.get("QGATE", "8"))
H1W = int(os.environ.get("H1W", "2"))
FPRIO = int(os.environ.get("FPRIO", "2"))
FDEL = int(os.environ.get("FDEL", "0"))
F16 = int(os.environ.get("F16", "1"))
HB = int(os.environ.get("HB", "4"))
BAP = int(os.environ.get("BAP", "3"))
HOIST = int(os.environ.get("HOIST", "1"))
IMM = int(os.environ.get("IMM", "1"))
IDX = int(os.environ.get("IDX", "1"))
FINR = int(os.environ.get("FINR", "2"))
PRIOS = [int(x) for x in os.environ.get("PRIOS", "3210")]
EARLY = int(os.environ.get("EARLY", "1"))
PREF = int(os.environ.get("PREF", "1"))
RWS = int(os.environ.get("RWS", "1"))
RPS = int(os.environ.get("RPS", "2"))
PREFN = int(os.environ.get("PREFN", "1"))
FCOPY = int(os.environ.get("FCOPY", "16"))
FSTR = int(os.environ.get("FSTR", "1024"))
WSC = " sc1" if os.environ.get("WSC", "1") == "1" else ""
FBS = int(os.environ.get("FBS", "0"))
FCS = int(os.environ.get("FCS", "0"))
PREB = int(os.environ.get("PREB", "0"))
BAL = int(os.environ.get("BAL", "0"))
RFE = int(os.environ.get("RFE", "1"))
NL = int(os.environ.get("NL", "1"))
FPR = int(os.environ.get("FPR", "1"))
FPK = int(os.environ.get("FPK", "1"))
FBP = int(os.environ.get("FBP", "2"))
FL3 = int(os.environ.get("FL3", "1"))
FLO = int(os.environ.get("FLO", "1"))
DELTA = 600
WIN = 8192
GUARD = 800
TAGC = 0x1a5
FLC = 0x5A5AA5A5

CELLA = 0
CHB = 32000
CELLB = 4 << 20
WH2F = 12 << 20
NG = 157; NCH = 63
BIN0 = NG; WPR = NG + NCH
CAP = 136
GSTR = CAP * 64
REC = 0
QT = 8 * GSTR
BXP = QT + 65536
OWN = BXP + 16384
PTF = OWN + 10240
CTR = PTF + 640
ALLOC = CTR; OVF = CTR + 32; PEND = CTR + 36; GCNT = CTR + 40; NONCE = CTR + 44; ZERO16 = CTR + 48
SYN = CTR + 64
RISS = SYN; RCNT = SYN + 4; RCNT2 = SYN + 8; FCNT = SYN + 12; FCNT2 = SYN + 16; RCA = SYN + 20; RLAND = SYN + 24
RCB = SYN + 28; FCB = SYN + 32; FCC = SYN + 36; RPL = SYN + 40; QOKF = SYN + 44; RH1 = SYN + 48; MAPW = SYN + 52
PENDB = CTR + 128
LDS_TOTAL = PENDB + 640
ZB2 = ZERO16 + 1024
if IMM: LDS_TOTAL = ZB2 + 16
assert ZB2 >= PENDB + 640
FLG = 13 << 20
assert LDS_TOTAL <= 163840
NWG = 250

S_H, S_POS, S_EA, S_SRC, S_DST, S_WX, S_O0, S_O1, S_WS, S_Q, S_WE, S_WH = [8 + 4 * i for i in range(12)]
sRW, sRQ, sRL = 56, 57, 58
sC4, sC5 = 4, 5
sW, sQ, sCT, sMODE, sT0, sT1, sT2, sT3 = range(60, 68)
sEX, sM0, sM1, sM2 = 68, 70, 72, 74
sG, sCH2, sCO, sNT, sU, sREM, sK2, sK3, sNODE, sCH, sRETRY, sB0, sB1, sGB, sRT, sPREF = range(76, 92)
sTW, sLOW, sCNT, sC = 92, 93, 94, 95
sPA, sPB = 96, 98
sX0, sX1, sX2 = 96, 97, 98
KS = 76

vL = 0
vLK, vQD, vTRQ0, vTRQ1, vTRS, vOD, vODM = 1, 2, 3, 4, 5, 6, 7
vT = list(range(8, 16))
SEG = 16; ACC = 48; FACC = 64; QF = 80; SF = 88; OHD = 96; BXF = 100; ID = 104; MP = 112; FB = 120
TE = QF
VST = 127

_st = [0]
STAMPS = os.environ.get("STAMPS", "")
STAMPS = set(int(x) for x in STAMPS.split(",")) if STAMPS else None
def stamp(name, idx=None):
    if not TIMING: return
    i = _st[0] if idx is None else idx
    if idx is None: _st[0] += 1
    if STAMPS is not None and i not in STAMPS: return
    c(f"STAMP {i} {name}")
    e(f"s_memtime s[{sC4}:{sC5}]")
    e("s_waitcnt lgkmcnt(0)")
    e(f"v_writelane_b32 v{VST}, s{sC4}, {i}")
    print("stamp", i, name)
def stamp_dyn(base, scnt, mx=11):
    if not TIMING or os.environ.get("STAMPS", ""): return
    e(f"s_memtime s[{sC4}:{sC5}]")
    e(f"s_min_u32 s3, s{scnt}, {mx}")
    e(f"s_add_u32 m0, s3, {base}")
    e("s_waitcnt lgkmcnt(0)")
    e(f"v_writelane_b32 v{VST}, s{sC4}, m0")
def stamp_flush():
    if not TIMING: return
    e(f"s_memrealtime s[{sC4}:{sC5}]")
    e("s_waitcnt lgkmcnt(0)")
    e("s_mov_b64 exec, -1")
    e(f"v_writelane_b32 v{VST}, s100, 62")
    e(f"v_writelane_b32 v{VST}, s{sC4}, 63")
    if os.environ.get("PCST"):
        e(f"s_getpc_b64 s[{sC4}:{sC5}]")
        e(f"v_writelane_b32 v{VST}, s{sC4}, 60")
        e(f"v_writelane_b32 v{VST}, s{sC5}, 59")
    e(f"s_lshl_b32 s{sT0}, s2, 4")
    e(f"s_add_u32 s{sT0}, s{sT0}, s{sW}")
    e(f"s_lshl_b32 s{sT0}, s{sT0}, 8")
    e(f"s_add_u32 s{sT0}, s{sT0}, {32<<20}")
    e(f"v_lshlrev_b32 v{vT[1]}, 2, v{vL}")
    e(f"buffer_store_dword v{VST}, v{vT[1]}, {srd(S_WS)}, s{sT0} offen")

header = []
header.append(f"; @launch grid=({NWG},1,1) block=(1024,1,1) lds={LDS_TOTAL}")
header.append('.amdgcn_target "amdgcn-amd-amdhsa--gfx950"')
header.append(".text")
header.append(f".globl {KNAME}")
header.append(".p2align 8")
header.append(f".type {KNAME},@function")

lab(KNAME)
e(f"s_cmp_ge_u32 s2, {NWG}")
e("s_cbranch_scc1 L_end2")
e("s_memrealtime s[6:7]")
if TIMING:
    e("s_memrealtime s[100:101]")
if TIMING:
    e(f"v_mov_b32 v{VST}, 0")
stamp("entry")
e(f"s_load_dwordx16 s[{KS}:{KS+15}], s[0:1], 0")
e(f"s_load_dwordx2 s[{S_WS}:{S_WS+1}], s[0:1], 80")
e(f"s_load_dwordx2 s[{S_O0}:{S_O0+1}], s[0:1], 64")
tid = vT[7]
e(f"v_mov_b32 v{tid}, v0")
e(f"v_lshrrev_b32 v{vT[0]}, 6, v0")
e(f"v_and_b32 v{vL}, 63, v0")
e(f"v_readfirstlane_b32 s{sW}, v{vT[0]}")
for (x, sz) in [(S_H,2560000),(S_POS,60000),(S_EA,320000),(S_SRC,640000),(S_DST,640000),(S_WX,256),(S_O0,2560000),(S_O1,60000),
                (S_WS,256*1048576-WSOFF),(S_Q,10000 if IDX else 2560000),(S_WE,66048),(S_WH,65536)]:
    e(f"s_mov_b32 s{x+2}, {sz}")
    e(f"s_mov_b32 s{x+3}, 0x20000")
e(f"s_lshr_b32 s{sQ}, s{sW}, 2")
e(f"s_and_b32 s{sCT}, s{sW}, 3")
e(f"s_and_b32 s{sRW}, s{sW}, 7")
e(f"s_and_b32 s{sRQ}, s{sQ}, 1")
e(f"s_mov_b32 s{sMODE}, 0")
e(f"s_mov_b32 s{sRL}, 0")
def kernarg_copy():
    for (x, k) in [(S_H,0),(S_POS,2),(S_EA,4),(S_SRC,6),(S_DST,8),(S_WE,10),(S_WX,12),(S_WH,14)]:
        e(f"s_mov_b64 s[{x}:{x+1}], s[{KS+k}:{KS+k+1}]")
    if WSOFF:
        e(f"s_add_u32 s{S_WS}, s{S_WS}, {WSOFF}")
        e(f"s_addc_u32 s{S_WS+1}, s{S_WS+1}, 0")
    e(f"s_add_u32 s{S_O1}, s{S_O0}, 2560000")
    e(f"s_addc_u32 s{S_O1+1}, s{S_O0+1}, 0")
    e(f"s_add_u32 s{S_Q}, s{S_WS}, {QOFF}")
    e(f"s_addc_u32 s{S_Q+1}, s{S_WS+1}, {(256 << 16) if IDX else 0}")
    e(f"s_mov_b32 s{sTW}, s6")
    if SWARM:
        c("address-translation warm-up through the scalar path (results unused)")
        lst = [(S_H,0),(S_POS,0),(S_WE,0),(S_WH,0),(S_SRC,0),(S_DST,0),(S_EA,0),(S_H,2097152),(S_WS,0),(S_WS,FLG & 0xfffff if False else 0),(S_Q,0),(S_O0,0)]
        if SWARM == 1: lst = [(S_H,0),(S_POS,0),(S_WE,0),(S_WH,0)]
        if SWARM == 2: lst = [(S_H,0),(S_POS,0),(S_WE,0),(S_WH,0),(S_SRC,0),(S_DST,0),(S_EA,0)]
        if SWARM == 3: lst = [(S_H,0),(S_POS,0),(S_WE,0),(S_WH,0),(S_SRC,0),(S_DST,0),(S_EA,0),(S_WS,0),(S_Q,0),(S_O0,0)]
        for (x, off) in lst:
            e(f"s_load_dword s3, s[{x}:{x+1}], {off}")

vSL = 16; vTRP = 17; vRA = 18; vRD = 19; vST = 20; vU0 = 21; vU1 = 22
def slice_lane(dst, sct):
    e(f"v_lshrrev_b32 v{dst}, 2, v{vL}")
    e(f"v_lshlrev_b32 v{dst}, 8, v{dst}")
    e(f"v_and_b32 v{vU0}, 3, v{vL}")
    e(f"v_lshl_add_u32 v{dst}, v{vU0}, 4, v{dst}")
    e(f"s_lshl_b32 s{sT0}, s{sct}, 6")
    e(f"v_add_u32 v{dst}, s{sT0}, v{dst}")
def trpat(dst, t0, t1):
    e(f"v_lshrrev_b32 v{t0}, 5, v{vL}")
    e(f"v_bfe_u32 v{t1}, v{vL}, 2, 2")
    e(f"v_lshl_add_u32 v{dst}, v{t0}, 3, v{t1}")
    e(f"v_lshlrev_b32 v{dst}, 6, v{dst}")
    e(f"v_bfe_u32 v{t0}, v{vL}, 4, 1")
    e(f"v_lshl_add_u32 v{dst}, v{t0}, 5, v{dst}")
    e(f"v_and_b32 v{t0}, 3, v{vL}")
    e(f"v_lshl_add_u32 v{dst}, v{t0}, 3, v{dst}")
def row_addr(dst, vrow, vhi, tmp, base=OWN):
    e(f"v_and_b32 v{tmp}, 15, v{vrow}")
    e(f"v_xor_b32 v{tmp}, v{tmp}, v{vhi}")
    e(f"v_lshlrev_b32 v{tmp}, 4, v{tmp}")
    e(f"v_lshl_add_u32 v{dst}, v{vrow}, 8, v{tmp}")
    e(f"v_add_u32 v{dst}, {base}, v{dst}")

Z = 24
for i in range(4): e(f"v_mov_b32 v{Z+i}, 0")
c("wave 0: zero the counters (128 B), then B0")
e(f"s_cmp_eq_u32 s{sW}, 0")
e("s_cbranch_scc0 L_b0")
e(f"v_lshlrev_b32 v{vT[0]}, 4, v{vL}")
e(f"v_add_u32 v{vT[0]}, {CTR}, v{vT[0]}")
e("s_mov_b64 exec, 0xff")
e(f"ds_write_b128 v{vT[0]}, {vr(Z,4)}")
if IMM:
    e(f"v_mov_b32 v{vT[0]}, {ZB2}")
    e("s_mov_b64 exec, 1")
    e(f"ds_write_b128 v{vT[0]}, {vr(Z,4)}")
e("s_mov_b64 exec, -1")
e("s_waitcnt lgkmcnt(0)")
lab("L_b0")
e("s_barrier")
vA_ = 23
_sy = [0]
def arrive(addr, regs=None):
    a_, d_ = regs if regs else (vA_, vU1)
    e(f"v_mov_b32 v{a_}, {addr}")
    e(f"v_mov_b32 v{d_}, 1")
    e("s_mov_b64 exec, 1")
    e(f"ds_add_u32 v{a_}, v{d_}")
    e("s_mov_b64 exec, -1")
def wait_cnt(addr, n, nz=False, dst=None, regs=None, slp=1):
    i = _sy[0]; _sy[0] += 1
    d = dst if dst is not None else sT0
    a_, d_ = regs if regs else (vA_, vU1)
    e(f"v_mov_b32 v{a_}, {addr}")
    lab(f"L_sy{i}")
    e(f"ds_read_b32 v{d_}, v{a_}")
    e("s_waitcnt lgkmcnt(0)")
    e(f"v_readfirstlane_b32 s{d}, v{d_}")
    if nz: e(f"s_cmp_lg_u32 s{d}, 0")
    else:  e(f"s_cmp_ge_u32 s{d}, {n}")
    e(f"s_cbranch_scc1 L_syd{i}")
    e(f"s_sleep {slp}")
    e(f"s_branch L_sy{i}")
    lab(f"L_syd{i}")
e(f"s_cmp_ge_u32 s{sW}, 8")
e("s_cbranch_scc1 L_front")
def lane_consts():
    e(f"s_lshr_b32 s{sG}, s{sW}, 1")
    e(f"s_and_b32 s{sCH2}, s{sW}, 1")
    e(f"s_mul_i32 s{sGB}, s{sG}, {GSTR}")
    e(f"s_lshl_b32 s{sB0}, s{sW}, 12")
    e(f"s_add_u32 s{sB0}, s{sB0}, {QT}")
    e(f"s_add_u32 s{sB1}, s{sB0}, 2048")
    c("lane constants (REC rows swizzled: 16-B chunk c of row with rank p at position c ^ ((p>>2)&3))")
    e(f"v_lshrrev_b32 v{vT[3]}, 5, v{vL}           ; hi")
    e(f"v_lshrrev_b32 v{vT[4]}, 3, v{vL}")
    e(f"v_lshlrev_b32 v{vLK}, 6, v{vT[4]}")
    e(f"v_xor_b32 v{vT[4]}, 1, v{vT[3]}")
    e(f"v_lshl_add_u32 v{vLK}, v{vT[4]}, 4, v{vLK}")
    e(f"s_add_u32 s{sT0}, s{sGB}, {REC}")
    e(f"v_add_u32 v{vLK}, s{sT0}, v{vLK}")
    e(f"v_and_b32 v{vT[5]}, 7, v{vL}")
    e(f"v_bfe_u32 v{vT[6]}, v{vL}, 4, 1")
    e(f"v_lshlrev_b32 v{vT[4]}, 2, v{vT[6]}")
    e(f"v_xor_b32 v{vT[5]}, v{vT[5]}, v{vT[4]}")
    e(f"v_lshlrev_b32 v{vQD}, 4, v{vT[5]}")
    e(f"s_lshl_b32 s{sT1}, s{sCH2}, 7")
    e(f"v_add_u32 v{vQD}, s{sT1}, v{vQD}            ; ch*128 + (((l&7) ^ 4*((l>>4)&1))<<4)")
    c("vT6 = colhalf ; r = (l>>2)&3 ; c4 = l&3")
    e(f"v_bfe_u32 v{vT[4]}, v{vL}, 2, 2            ; r")
    e(f"v_and_b32 v{vT[5]}, 3, v{vL}")
    e(f"v_lshlrev_b32 v{vT[2]}, 5, v{vT[6]}")
    e(f"v_lshl_add_u32 v{vT[2]}, v{vT[5]}, 3, v{vT[2]}   ; colhalf*32 + c4*8")
    e(f"v_lshl_add_u32 v{vTRQ0}, v{vT[3]}, 3, v{vT[4]}   ; 8hi + r")
    e(f"v_lshl_add_u32 v{vTRQ0}, v{vTRQ0}, 7, v{vT[2]}")
    e(f"v_bfe_u32 v{vT[5]}, v{vL}, 3, 1            ; (r>>1)&1")
    e(f"v_lshl_add_u32 v{vTRQ0}, v{vT[5]}, 6, v{vTRQ0}")
    e(f"v_add_u32 v{vTRQ0}, s{sB0}, v{vTRQ0}")
    e(f"v_xor_b32 v{vTRQ1}, 64, v{vTRQ0}")
    c("vTRS = REC + g*GSTR + (4hi + r)*64 + ((colhalf*32 + c4*8) ^ (hi<<4))")
    e(f"v_lshlrev_b32 v{vT[5]}, 4, v{vT[3]}")
    e(f"v_xor_b32 v{vT[2]}, v{vT[2]}, v{vT[5]}")
    e(f"v_lshl_add_u32 v{vTRS}, v{vT[3]}, 2, v{vT[4]}    ; 4hi + r")
    e(f"v_lshl_add_u32 v{vTRS}, v{vTRS}, 6, v{vT[2]}")
    e(f"v_add_u32 v{vTRS}, s{sT0}, v{vTRS}")
    c("OHD: lanes 0..15 and 48..63 read chunk 0 of row (l&15) at position (row>>2)&3; others read ZERO16")
    e(f"v_and_b32 v{vT[4]}, 15, v{vL}")
    e(f"v_bfe_u32 v{vT[5]}, v{vL}, 2, 2")
    e(f"v_lshlrev_b32 v{vT[4]}, 6, v{vT[4]}")
    e(f"v_lshl_add_u32 v{vT[4]}, v{vT[5]}, 4, v{vT[4]}")
    e(f"v_add_u32 v{vT[4]}, s{sT0}, v{vT[4]}")
    e(f"v_cmp_eq_u32 vcc, v{vT[3]}, v{vT[6]}")
    e(f"v_mov_b32 v{vT[5]}, {ZERO16}")
    e(f"v_cndmask_b32 v{vOD}, v{vT[5]}, v{vT[4]}, vcc")
    e(f"v_mov_b32 v{vT[4]}, {2048 if IMM else 1024}")
    e(f"v_cndmask_b32 v{vODM}, 0, v{vT[4]}, vcc")
    e(f"s_mov_b32 s{sNODE}, 1")
    e(f"s_mov_b32 s{sPREF}, 0")
RA = 96; RB = 100; vGA = 120
PS = [56, 58, 60, 62]
VI = [80, 81, 82, 83]
VR = [84, 85, 86, 87]
vOne = 89
qP = 90
VJ = [120+0, 0, 0, 0]
VJ = [124, 125, 95, 88]
def id_consts(t0, t1):
    c("ID constants: lane (m,hi): step s elem i = (m == 16s + 8hi + i)")
    e(f"v_and_b32 v{t0}, 1, v{vL}")
    e(f"v_lshlrev_b32 v{t0}, 4, v{t0}")
    e(f"v_mov_b32 v{t1}, 0x3f80")
    e(f"v_lshlrev_b32 v{t0}, v{t0}, v{t1}")
    for s_ in range(2):
        for r in range(4):
            m = 0
            for l in range(64):
                x = (l & 31) - 8 * (l >> 5)
                if x in (16*s_ + 2*r, 16*s_ + 2*r + 1): m |= 1 << l
            e(f"s_mov_b32 vcc_lo, 0x{m & 0xffffffff:x}")
            e(f"s_mov_b32 vcc_hi, 0x{m >> 32:x}")
            e(f"v_cndmask_b32 v{ID+4*s_+r}, 0, v{t0}, vcc")
def seg_zero():
    for r in range(32):
        e(f"v_mov_b32 v{SEG+r}, 0")
MK = [sM0, sM1, sPA, sPB]
if not NOPRIO: e("s_setprio 2")
c("zero REC tail (4096 B, threads 256..511)")
e(f"v_lshlrev_b32 v{vT[0]}, 4, v{tid}")
e(f"v_add_u32 v{vT[1]}, {65536 - 4096}, v{vT[0]}")
e(f"v_cmp_lt_u32 vcc, 255, v{tid}")
e("s_mov_b64 exec, vcc")
e(f"s_cbranch_execz L_notail")
e(f"ds_write_b128 v{vT[1]}, {vr(Z,4)}")
lab("L_notail")
e("s_mov_b64 exec, -1")
e(f"s_cmp_ge_u32 s2, {BIN0}")
e("s_cbranch_scc1 L_notgemm")

AF = 24; BF = 56; D0 = 88
def gemm_role(tag, blk, fb):
    slice_lane(vSL, sCT)
    c("rows DMA lane offset: row = 8w + 4i + (l>>4); chunk = (l&15) ^ (row&15)")
    e(f"v_lshrrev_b32 v{vU0}, 4, v{vL}")
    e(f"v_and_b32 v{vU1}, 15, v{vL}")
    e(f"v_xor_b32 v{vU1}, v{vU1}, v{vU0}")
    e(f"s_and_b32 s{sT0}, s{sRW}, 1")
    e(f"s_lshl_b32 s{sT0}, s{sT0}, 3")
    e(f"v_xor_b32 v{vU1}, s{sT0}, v{vU1}")
    e(f"v_lshlrev_b32 v{vU1}, 4, v{vU1}")
    e(f"v_lshl_add_u32 v{vRA}, v{vU0}, 8, v{vU1}")
    e(f"v_xor_b32 v{vRD}, 64, v{vRA}")
    e(f"s_lshl_b32 s{sT0}, s{sCT}, 13")
    e(f"s_lshl_b32 s{sT1}, s{sRQ}, 12")
    e(f"s_add_u32 s{sT0}, s{sT0}, s{sT1}")
    e(f"s_add_u32 s{sT0}, s{sT0}, {QT}")
    e(f"s_lshl_b32 s{sT1}, s{sRQ}, 14")
    e(f"s_add_u32 s{sT1}, s{sT1}, 32768")
    e(f"s_lshl_b32 s{sT3}, s{sRW}, 11")
    e(f"s_lshl_b32 s{sX0}, s{blk}, 14")
    e(f"s_add_u32 s{sX0}, s{sX0}, s{sT3}           ; (64r + 8w)*256")
    if not fb:
        e("s_waitcnt lgkmcnt(0)")
        stamp("kernarg", 1)
        kernarg_copy()
    e(f"s_add_u32 m0, s{sT3}, {QT+32768}")
    e(f"s_add_u32 s{sX1}, s{sX0}, 1024")
    e(f"buffer_load_dwordx4 v{vRA}, {srd(S_H)}, s{sX0} offen lds")
    e(f"s_add_u32 m0, s{sT3}, {QT+32768+1024}")
    e(f"s_nop 0")
    e(f"buffer_load_dwordx4 v{vRD}, {srd(S_H)}, s{sX1} offen lds")
    for i in range(4):
        e(f"s_add_u32 m0, s{sT0}, {i*1024}")
        e(f"s_add_u32 s{sT2}, s{sT1}, {i*4096}")
        e(f"buffer_load_dwordx4 v{vSL}, {srd(S_WE)}, s{sT2} offen lds")
    if not fb:
        if not LATE: arrive(RISS)
        stamp("role loads issued", 2)
    c("compute: all 8 waves, rb = w>>2, ct = w&3 : 32 rows x 32 cols")
    trpat(vTRP, vU0, vU1)
    e(f"s_lshl_b32 s{sT0}, s{sCT}, 13")
    e(f"s_add_u32 s{sT0}, s{sT0}, {QT}")
    e(f"v_add_u32 v{vTRP}, s{sT0}, v{vTRP}")
    c("row read address: QT+32768 + (rb*32+n)*256 + ((hi ^ (n&15))<<4) ^ (s<<5)")
    e(f"v_and_b32 v{vU0}, 31, v{vL}")
    e(f"v_lshrrev_b32 v{vU1}, 5, v{vL}")
    e(f"v_and_b32 v{vRD}, 15, v{vL}")
    e(f"v_xor_b32 v{vRD}, v{vRD}, v{vU1}")
    e(f"v_lshlrev_b32 v{vRD}, 4, v{vRD}")
    e(f"v_lshl_add_u32 v{vRD}, v{vU0}, 8, v{vRD}")
    e(f"s_lshl_b32 s{sT0}, s{sRQ}, 13")
    e(f"s_add_u32 s{sT0}, s{sT0}, {QT+32768}")
    e(f"v_add_u32 v{vRD}, s{sT0}, v{vRD}")
    c("out tile (2 KB per wave) write addr: OB + n*64 + ((bb ^ ((n>>2)&3))<<4) + hi*8")
    e(f"s_lshl_b32 s{sT0}, s{sRW}, 11")
    e(f"s_add_u32 s{sT0}, s{sT0}, {QT+49152}")
    e(f"v_bfe_u32 v{vRA}, v{vL}, 2, 2")
    e(f"v_lshlrev_b32 v{vRA}, 4, v{vRA}")
    e(f"v_lshl_add_u32 v{vRA}, v{vU0}, 6, v{vRA}")
    e(f"v_lshl_add_u32 v{vRA}, v{vU1}, 3, v{vRA}")
    e(f"v_add_u32 v{vRA}, s{sT0}, v{vRA}")
    c("out tile read addr: OB + (r + 16i)*64 + ((q ^ ((r>>2)&3))<<4), r = l>>2, q = l&3 ; store: row*256 + ct*64 + q*16")
    e(f"v_lshrrev_b32 v{vU0}, 2, v{vL}")
    e(f"v_and_b32 v{vU1}, 3, v{vL}")
    e(f"v_bfe_u32 v{vSL}, v{vL}, 4, 2")
    e(f"v_xor_b32 v{vSL}, v{vSL}, v{vU1}")
    e(f"v_lshlrev_b32 v{vSL}, 4, v{vSL}")
    e(f"v_lshl_add_u32 v{vSL}, v{vU0}, 6, v{vSL}")
    e(f"v_add_u32 v{vSL}, s{sT0}, v{vSL}")
    e(f"v_lshlrev_b32 v{vST}, 4, v{vU1}")
    e(f"v_lshl_add_u32 v{vST}, v{vU0}, 8, v{vST}")
    e(f"s_lshl_b32 s{sT0}, s{blk}, 14")
    e(f"s_lshl_b32 s{sT1}, s{sRQ}, 13")
    e(f"s_add_u32 s{sT0}, s{sT0}, s{sT1}")
    e(f"s_lshl_b32 s{sT1}, s{sCT}, 6")
    e(f"s_add_u32 s{sC}, s{sT0}, s{sT1}")
    if IDX: e(f"s_add_u32 s{sC}, s{sC}, {QOFF}")
    e("s_waitcnt vmcnt(0) lgkmcnt(0)")
    if not fb: stamp("role loads landed", 3)
    if fb:
        e("s_barrier")
    else:
        arrive(RCNT)
        if LATE: arrive(RISS)
        wait_cnt(RCNT, 8)
        stamp("B1", 4)
    for s_ in range(8):
        e(f"v_xor_b32 v{vU0}, {s_<<5}, v{vRD}")
        e(f"ds_read_b128 {vr(BF+4*s_,4)}, v{vU0}")
        e(f"ds_read_b64_tr_b16 {vr(AF+4*s_,2)}, v{vTRP} offset:{s_*1024}")
        e(f"ds_read_b64_tr_b16 {vr(AF+4*s_+2,2)}, v{vTRP} offset:{s_*1024+256}")
    for s_ in range(8):
        e(f"s_waitcnt lgkmcnt({min(15, 21-3*s_)})")
        mfma(D0, AF+4*s_, BF+4*s_, "0" if s_ == 0 else vr(D0,16))
    if not fb: arrive(RCA)
    e(f"s_mov_b32 s{sT1}, 0x{NLOG2E:08x}")
    e("s_nop 7")
    e("s_nop 3")
    for bb in range(4):
        r0 = D0 + 4*bb
        for i in range(4):
            e(f"v_mul_f32 v{r0+i}, s{sT1}, v{r0+i}")
        e(f"v_cvt_pk_bf16_f32 v{r0}, v{r0}, v{r0+1}")
        e(f"v_cvt_pk_bf16_f32 v{r0+1}, v{r0+2}, v{r0+3}")
        e(f"v_xor_b32 v{vU0}, {bb<<4}, v{vRA}")
        e(f"ds_write_b64 v{vU0}, {vr(r0,2)}")
    e("s_waitcnt lgkmcnt(0)")
    for i in range(2):
        e(f"ds_read_b128 {vr(AF+4*i,4)}, v{vSL} offset:{i*1024}")
    e(f"s_add_u32 s{sT1}, s{sC}, 4096")
    for i in range(2):
        e(f"s_waitcnt lgkmcnt({1-i})")
        e(f"buffer_store_dwordx4 {vr(AF+4*i,4)}, v{vST}, {srd(S_WS if IDX else S_Q)}, s{[sC,sT1][i]} offen sc1")
    if not fb: stamp("role stores issued", 5)

gemm_role("", 2, False)
e(f"s_mov_b32 s{sRL}, 8")
e(f"s_lshl_b32 s{sX1}, s2, 2")
e(f"s_add_u32 s{sX1}, s{sX1}, {FLG}")
FM1 = sum(1 << (4*i) for i in range(FCOPY)); FM4 = (1 << (4*FCOPY)) - 1
e(f"s_mov_b32 s{sM0}, 0x{FM1 & 0xffffffff:x}")
e(f"s_mov_b32 s{sM0+1}, 0x{FM1 >> 32:x}")
e("s_branch L_rfront")

lab("L_notgemm")
e(f"s_cmp_ge_u32 s2, {WPR}")
e("s_cbranch_scc1 L_notbin")
c("binning chunk c = wg - 157: edges e = 2560c + 512i + t ; LDS image: cell b at QT + b*128 (+32000 for ranks 16..31), 8-B records")
NE = 5
CNT = QT + 64000
vD = 24; vS = 29; vB = 34; vR = 39; vP = 44; vE = 54; vE2 = 55; vOne_ = 56; vK = 57; vG_ = 58
VM = [76, 78, 80, 82, 84]
sN40, sCB = 86, 87
e(f"s_sub_u32 s{sC}, s2, {BIN0}")
e(f"s_mul_i32 s{sT0}, s{sC}, {2560*4}")
e(f"v_lshlrev_b32 v{vE}, 2, v{tid}")
e(f"v_lshlrev_b32 v{vE2}, 1, v{tid}")
e(f"v_lshlrev_b32 v{vK}, 4, v{tid}")
e(f"v_add_u32 v{vK}, {QT}, v{vK}")
e(f"v_mov_b32 v{vOne_}, 1")
e(f"s_add_u32 s{sT2}, s{sT0}, 4096")
e(f"s_add_u32 s{sT1}, s{sT0}, 8192")
e(f"s_lshr_b32 s{sX0}, s{sT0}, 1")
e(f"s_add_u32 s{sX1}, s{sX0}, 4096")
e("s_waitcnt lgkmcnt(0)")
stamp("kernarg", 1)
kernarg_copy()
def soff(i): return [sT0, sT0, sT2, sT2, sT1][i], (i & 1) * 2048 if i < 4 else 0
for i in range(NE):
    so, of = soff(i)
    e(f"buffer_load_dword v{vD+i}, v{vE}, {srd(S_DST)}, s{so} offen offset:{of}")
for i in range(NE):
    so, of = soff(i)
    e(f"buffer_load_dword v{vS+i}, v{vE}, {srd(S_SRC)}, s{so} offen offset:{of}")
for i in range(NE):
    so = sX0 if i < 4 else sX1
    e(f"buffer_load_ushort v{vP+2*i+1}, v{vE2}, {srd(S_EA)}, s{so} offen offset:{(i & 3) * 1024 if i < 4 else 0}")
if not LATE: arrive(RISS)
stamp("role loads issued", 2)
c("zero the image and the counters (64 KB) ; v60..63 = 0")
for i in range(4): e(f"v_mov_b32 v{60+i}, 0")
for i in range(8):
    e(f"ds_write_b128 v{vK}, {vr(60,4)} offset:{i*8192}")
arrive(RCNT)
c("validity: e < 160000  <=> byte offset < 640000")
e(f"v_add_u32 v{vE}, s{sT0}, v{vE}")
for i in range(NE):
    e(f"s_mov_b32 s{sX0}, {640000 - i*2048}")
    e(f"v_cmp_gt_u32 {sp(VM[i])}, s{sX0}, v{vE}")
e(f"s_mov_b32 s{sX0}, {CNT}")
e(f"s_mov_b32 s{sX1}, {QT}")
e(f"s_mov_b32 s{sN40}, -40")
e(f"s_mov_b32 s{sCB}, {CHB - 128}")
e(f"s_mov_b32 s{sT3}, {1 << 20}")
wait_cnt(RCNT, 8, dst=sX2)
stamp("B1", 4)
for i in range(NE):
    e(f"s_waitcnt vmcnt({3*NE-1-i})")
    e(f"v_mul_u32_u24 v{vB+i}, 52429, v{vD+i}")
    e(f"v_lshrrev_b32 v{vB+i}, 21, v{vB+i}")
    e(f"v_lshl_add_u32 v{vU0}, v{vB+i}, 2, s{sX0}")
    e(f"s_mov_b64 exec, {sp(VM[i])}")
    e(f"ds_add_rtn_u32 v{vR+i}, v{vU0}, v{vOne_}")
    e(f"v_mad_i32_i24 v{vD+i}, v{vB+i}, s{sN40}, v{vD+i}       ; k")
    e(f"v_lshl_add_u32 v{vB+i}, v{vB+i}, 7, s{sX1}")
    e(f"v_lshlrev_b32 v{vD+i}, 14, v{vD+i}")
    e(f"s_mov_b64 exec, -1")
for i in range(NE):
    e(f"s_waitcnt vmcnt({2*NE-1-i})")
    e(f"v_or3_b32 v{vP+2*i}, v{vD+i}, v{vS+i}, s{sT3}")
e("s_waitcnt vmcnt(0) lgkmcnt(0)")
if LATE: arrive(RISS)
stamp("role loads landed", 3)
for i in range(NE):
    e(f"v_lshl_add_u32 v{vU0}, v{vR+i}, 3, v{vB+i}")
    e(f"v_lshrrev_b32 v{vU1}, 4, v{vR+i}")
    e(f"s_mov_b64 exec, {sp(VM[i])}")
    e(f"v_cmp_gt_u32 vcc, 32, v{vR+i}")
    e(f"v_mad_u32_u24 v{vU0}, v{vU1}, s{sCB}, v{vU0}")
    e(f"s_mov_b64 exec, vcc")
    e(f"ds_write_b64 v{vU0}, {vr(vP+2*i,2)}")
    e(f"s_mov_b64 exec, -1")
e("s_waitcnt lgkmcnt(0)")
arrive(RCNT2)
c("copy-out: granule x = t + 512i (<2000): cell b = x>>3, q = x&7")
GA = 24; vCn = 40; vX = 45; vF = 46; vY = 47; vXL = 52
e(f"v_lshlrev_b32 v{vX}, 4, v{tid}               ; x*16 (i=0)")
e(f"v_lshrrev_b32 v{vY}, 3, v{tid}")
e(f"v_lshl_add_u32 v{vY}, v{vY}, 2, s{sX0}")
e(f"v_add_u32 v{vXL}, {QT}, v{vX}")
e(f"s_mul_i32 s{sT0}, s{sC}, {CHB}")
e(f"s_bfe_u32 s{sT1}, s{sTW}, {3 | (9<<16)}")
e(f"s_xor_b32 s{sT1}, s{sT1}, {TAGC}")
e(f"s_lshl_b32 s{sT1}, s{sT1}, 23")
e(f"s_mov_b32 s{sX1}, {2000-1536}")
e(f"v_cmp_gt_u32 {sp(sM1)}, s{sX1}, v{tid}")
e(f"v_mov_b32 v{vCn+3}, 0")
wait_cnt(RCNT2, 8, dst=sX2)
stamp("B2", 6)
for i in range(4):
    if i == 3:
        e(f"s_mov_b64 exec, {sp(sM1)}")
    e(f"ds_read_b128 {vr(GA+4*i,4)}, v{vXL} offset:{i*8192}")
    e(f"ds_read_b32 v{vCn+i}, v{vY} offset:{i*256}")
e("s_mov_b64 exec, -1")
def granule(G, cn, so):
    e(f"v_add_u32 v{vU0}, 15, v{cn}")
    e(f"v_lshrrev_b32 v{vU0}, 4, v{vU0}")
    e(f"v_min_u32 v{vU0}, 3, v{vU0}")
    e(f"v_lshl_or_b32 v{vF}, v{vU0}, 21, s{sT1}")
    e(f"v_lshl_or_b32 v{G+1}, v{G+3}, 16, v{G+1}")
    e(f"v_or_b32 v{G}, v{G}, v{vF}")
    e(f"v_or_b32 v{G+2}, v{G+2}, v{vF}")
    e(f"v_mov_b32 v{G+3}, s{sTW}")
    e(f"buffer_store_dwordx4 {vr(G,4)}, v{vX}, {srd(S_WS)}, s{so} offen sc1")
for i in range(4):
    if i == 3:
        e(f"s_mov_b64 exec, {sp(sM1)}")
    e(f"s_waitcnt lgkmcnt({2*(3-i)})")
    granule(GA+4*i, vCn+i, sT0)
    e(f"s_add_u32 s{sT0}, s{sT0}, 8192")
e("s_mov_b64 exec, -1")
stamp("role stores issued", 5)
c("B lines (ranks 16..31) for cells with count > 16")
e(f"s_mul_i32 s{sT0}, s{sC}, {CHB}")
e(f"s_add_u32 s{sT0}, s{sT0}, {CELLB}")
for i in range(4):
    e(f"v_cmp_lt_u32 vcc, 16, v{vCn+i}")
    e("s_mov_b64 exec, vcc")
    e(f"s_cbranch_execz L_nob{i}")
    e(f"ds_read_b128 {vr(48,4)}, v{vXL} offset:{CHB+i*8192}")
    e("s_waitcnt lgkmcnt(0)")
    granule(48, vCn+i, sT0)
    e("s_nop 1")
    lab(f"L_nob{i}")
    e("s_mov_b64 exec, -1")
    e(f"s_add_u32 s{sT0}, s{sT0}, 8192")
arrive(RCA)
e("s_branch L_rfront")

lab("L_notbin")
def wprep_role(tag, fb):
    slice_lane(vSL, sCT)
    e(f"s_lshl_b32 s{sT2}, s{sCT}, 13")
    e(f"s_add_u32 s{sT2}, s{sT2}, {QT}")
    trpat(vTRP, vU0, vU1)
    e(f"v_add_u32 v{vTRP}, s{sT2}, v{vTRP}")
    e(f"v_lshlrev_b32 v{vST}, 4, v{vL}")
    for i in range(8):
        e(f"s_add_u32 m0, s{sT2}, {i*1024}")
        e(f"s_mov_b32 s{sT1}, {32768 + i*4096}")
        e(f"buffer_load_dwordx4 v{vSL}, {srd(S_WH)}, s{sT1} offen lds")
    e(f"s_lshl_b32 s{sC}, s{sCT}, 13")
    e(f"s_add_u32 s{sC}, s{sC}, {WH2F}")
    e("s_waitcnt vmcnt(0)")
    for s_ in range(8):
        e(f"ds_read_b64_tr_b16 {vr(AF+4*s_,2)}, v{vTRP} offset:{s_*1024}")
        e(f"ds_read_b64_tr_b16 {vr(AF+4*s_+2,2)}, v{vTRP} offset:{s_*1024+256}")
    for s_ in range(8):
        if s_ == 4:
            e(f"s_add_u32 s{sC}, s{sC}, 4096")
        e(f"s_waitcnt lgkmcnt({2*(7-s_)})")
        e(f"buffer_store_dwordx4 {vr(AF+4*s_,4)}, v{vST}, {srd(S_WS)}, s{sC} offen offset:{(s_%4)*1024} sc1")
e("s_waitcnt lgkmcnt(0)")
stamp("kernarg", 1)
kernarg_copy()
arrive(RISS)
c("workgroups WPR..WPR+3: slice ct = wg - WPR of WH2 ; wave w converts k-step w")
e(f"s_sub_u32 s{sC}, s2, {WPR}")
e(f"s_cmp_ge_u32 s{sC}, 4")
e("s_cbranch_scc1 L_norole")
slice_lane(vSL, sC)
trpat(vTRP, vU0, vU1)
e(f"s_lshl_b32 s{sT2}, s{sW}, 10")
e(f"s_add_u32 s{sT2}, s{sT2}, {QT}")
e(f"v_add_u32 v{vTRP}, s{sT2}, v{vTRP}")
e(f"v_lshlrev_b32 v{vST}, 4, v{vL}")
e(f"s_lshl_b32 s{sT1}, s{sW}, 12")
e(f"s_add_u32 s{sT1}, s{sT1}, 32768")
e(f"s_mov_b32 m0, s{sT2}")
e(f"s_lshl_b32 s{sT3}, s{sC}, 13")
e(f"buffer_load_dwordx4 v{vSL}, {srd(S_WH)}, s{sT1} offen lds")
e(f"s_lshl_b32 s{sT0}, s{sW}, 10")
e(f"s_add_u32 s{sT3}, s{sT3}, s{sT0}")
e(f"s_add_u32 s{sT3}, s{sT3}, {WH2F}")
e("s_waitcnt vmcnt(0)")
e(f"ds_read_b64_tr_b16 {vr(AF,2)}, v{vTRP}")
e(f"ds_read_b64_tr_b16 {vr(AF+2,2)}, v{vTRP} offset:256")
e("s_waitcnt lgkmcnt(0)")
e(f"buffer_store_dwordx4 {vr(AF,4)}, v{vST}, {srd(S_WS)}, s{sT3} offen sc1")
e(f"s_mov_b32 s{sRL}, 8")
e(f"s_lshl_b32 s{sX1}, s{sC}, 2")
e(f"s_add_u32 s{sX1}, s{sX1}, {FLG + NG*4}")
e(f"s_mov_b32 s{sM0}, 0x{FM1 & 0xffffffff:x}")
e(f"s_mov_b32 s{sM0+1}, 0x{FM1 >> 32:x}")
e(f"s_cmp_eq_u32 s{sC}, 3")
e("s_cbranch_scc0 L_wp_nopad")
c("the last one also fills the three padding flags")
e(f"s_mov_b32 s{sM0}, 0x{FM4 & 0xffffffff:x}")
e(f"s_mov_b32 s{sM0+1}, 0x{FM4 >> 32:x}")
lab("L_wp_nopad")
lab("L_norole")
arrive(RCA)

vFRD = 126
def node_addr2(dst, node, cmp_, t0, t1, vhi):
    if NL:
        assert cmp_ is None
        c("row of node v: QT + (v/5)*8192 + (u&3)*256 + (u>>2)*64 + ((hi ^ (u&3))<<4), u = v&15")
        e(f"v_mul_u32_u24 v{t1}, 52, v{node}")
        e(f"v_lshrrev_b32 v{t1}, 8, v{t1}             ; g")
        e(f"v_and_b32 v{t0}, 3, v{node}")
        e(f"v_xor_b32 v{dst}, v{t0}, v{vhi}")
        e(f"v_lshlrev_b32 v{dst}, 4, v{dst}")
        e(f"v_lshl_add_u32 v{dst}, v{t0}, 8, v{dst}")
        e(f"v_bfe_u32 v{t0}, v{node}, 2, 2")
        e(f"v_lshl_add_u32 v{dst}, v{t0}, 6, v{dst}")
        e(f"v_lshl_add_u32 v{dst}, v{t1}, 13, v{dst}")
        e(f"v_add_u32 v{dst}, {QT}, v{dst}")
        return
    e(f"v_mul_u32_u24 v{t1}, 52, v{node}")
    e(f"v_lshrrev_b32 v{t1}, 8, v{t1}             ; g")
    e(f"v_mul_u32_u24 v{t0}, 5, v{t1}")
    e(f"v_sub_u32 v{t0}, v{node}, v{t0}          ; j")
    if cmp_ is not None:
        e(f"v_lshl_add_u32 v{t0}, v{cmp_}, 3, v{t0}")
    e(f"v_add_u32 v{t0}, 3, v{t0}                 ; f")
    e(f"v_bfe_u32 v{dst}, v{t0}, 2, 2")
    e(f"v_xor_b32 v{dst}, v{dst}, v{vhi}")
    e(f"v_lshlrev_b32 v{t0}, 6, v{t0}")
    e(f"v_lshl_add_u32 v{t0}, v{t1}, 13, v{t0}")
    e(f"v_and_b32 v{t1}, 3, v{t1}")
    e(f"v_xor_b32 v{dst}, v{dst}, v{t1}")
    e(f"v_lshl_add_u32 v{dst}, v{dst}, 4, v{t0}")
    e(f"v_add_u32 v{dst}, {QT}, v{dst}")
def rolec_node(vn, vnode, vcmp, t0, t1):
    if NL:
        c("role C: G = 2ct + (n>>4) ; r = min(n&15, 14) ; c = r/5 ; j = r%5 ; node = 5G + j ; comp = c+1   (t0 <- r, t1 <- G)")
        e(f"v_and_b32 v{t0}, 15, v{vn}")
        e(f"v_min_u32 v{t0}, 14, v{t0}                ; r")
        e(f"v_mul_u32_u24 v{vcmp}, 52, v{t0}")
        e(f"v_lshrrev_b32 v{vcmp}, 8, v{vcmp}              ; c")
        e(f"v_lshrrev_b32 v{t1}, 4, v{vn}")
        e(f"s_lshl_b32 s{sT0}, s{sCT}, 1")
        e(f"v_add_u32 v{t1}, s{sT0}, v{t1}            ; G")
        e(f"v_sub_u32 v{vnode}, v{t1}, v{vcmp}          ; G - c")
        e(f"v_mad_u32_u24 v{vnode}, v{vnode}, 5, v{t0}")
        e(f"v_and_b32 v{vnode}, 63, v{vnode}")
        e(f"v_add_u32 v{vcmp}, 1, v{vcmp}")
        return
    c("role C: n' = min(n,29); idx = 30ct + n' ; G = idx/15 ; r = idx%15 ; c = r/5 ; j = r%5 ; node = 5G + j ; comp = c+1")
    e(f"v_min_u32 v{t0}, 29, v{vn}")
    e(f"v_cmp_lt_u32 vcc, 14, v{t0}")
    e(f"v_cndmask_b32 v{t1}, 0, 1, vcc               ; G&1")
    e(f"v_mul_u32_u24 v{vnode}, 15, v{t1}")
    e(f"v_sub_u32 v{t0}, v{t0}, v{vnode}          ; r")
    e(f"v_mul_u32_u24 v{vcmp}, 52, v{t0}")
    e(f"v_lshrrev_b32 v{vcmp}, 8, v{vcmp}              ; c")
    e(f"v_mul_u32_u24 v{vnode}, 5, v{vcmp}")
    e(f"v_sub_u32 v{t0}, v{t0}, v{vnode}          ; j")
    e(f"s_lshl_b32 s{sT0}, s{sCT}, 1")
    e(f"v_add_u32 v{t1}, s{sT0}, v{t1}            ; G")
    e(f"v_mad_u32_u24 v{vnode}, v{t1}, 5, v{t0}")
    e(f"v_add_u32 v{vcmp}, 1, v{vcmp}")
def flush_addr(dst, n, hi, t6, t7):
    e(f"s_mul_i32 s{sT0}, s{sG}, 5")
    e(f"s_sub_u32 s{sT0}, s{sT0}, 3")
    e(f"s_add_u32 s{sT1}, s{sB0}, 1024")
    e(f"v_lshrrev_b32 v{t6}, 3, v{n}              ; c")
    e(f"v_and_b32 v{dst}, 7, v{n}")
    e(f"v_mad_u32_u24 v{dst}, v{t6}, 5, v{dst}     ; 5c + (f&7)")
    e(f"v_mov_b32 v{t6}, -8")
    e(f"v_mov_b32 v{t7}, s{sT1}")
    e(f"s_mov_b32 exec_lo, 0xff")
    e(f"s_mov_b32 exec_hi, 0xff")
    e(f"v_mov_b32 v{t6}, s{sT0}")
    e(f"v_mov_b32 v{t7}, s{sB0}")
    e(f"s_mov_b64 exec, -1")
    e(f"v_add_u32 v{dst}, v{t6}, v{dst}")
    e(f"v_lshl_add_u32 v{t7}, v{hi}, 3, v{t7}")
    e(f"v_bfe_u32 v{t6}, v{dst}, 2, 2")
    e(f"v_lshl_add_u32 v{t7}, v{t6}, 6, v{t7}")
    e(f"v_and_b32 v{dst}, 3, v{dst}")
    e(f"v_mul_u32_u24 v{dst}, 0x110, v{dst}")
    e(f"v_add_u32 v{dst}, v{dst}, v{t7}")
def final_addr(rwaves):
    n, hi, nd, cm, t0, t1 = vT[0], vT[1], vT[2], vT[3], vT[4], vT[5]
    e(f"v_and_b32 v{n}, 31, v{vL}")
    e(f"v_lshrrev_b32 v{hi}, 5, v{vL}")
    if rwaves:
        c("role A: node n ; role B: node 32 + (n&7)")
        e(f"v_and_b32 v{nd}, 7, v{n}")
        e(f"v_add_u32 v{nd}, 32, v{nd}")
        e(f"s_cmp_eq_u32 s{sQ}, 0")
        e(f"s_cselect_b64 vcc, -1, 0")
        e(f"v_cndmask_b32 v{nd}, v{nd}, v{n}, vcc")
        node_addr2(vFRD, nd, None, t0, t1, hi)
    else:
        if NL and FL3:
            e(f"s_cmp_eq_u32 s{sQ}, 3")
            e("s_cbranch_scc0 L_fa_c")
            c("quad 3 has no final role: v126 <- its flush address")
            flush_addr(vFRD, n, hi, t0, t1)
            e("s_branch L_fa_d")
            lab("L_fa_c")
        rolec_node(n, nd, cm, t0, t1)
        if NL:
            c("row (G, r): QT + G*8192 + 1024 + (r&3)*256 + (r>>2)*64 + ((hi ^ (r&3))<<4)")
            e(f"v_and_b32 v{nd}, 3, v{t0}")
            e(f"v_xor_b32 v{vFRD}, v{nd}, v{hi}")
            e(f"v_lshlrev_b32 v{vFRD}, 4, v{vFRD}")
            e(f"v_lshl_add_u32 v{vFRD}, v{nd}, 8, v{vFRD}")
            e(f"v_lshrrev_b32 v{t0}, 2, v{t0}")
            e(f"v_lshl_add_u32 v{vFRD}, v{t0}, 6, v{vFRD}")
            e(f"v_lshl_add_u32 v{vFRD}, v{t1}, 13, v{vFRD}")
            e(f"v_add_u32 v{vFRD}, {QT + 1024}, v{vFRD}")
            if FL3: lab("L_fa_d")
        else:
            node_addr2(vFRD, nd, cm, t0, t1, hi)
vFOFF, vFRES = 124, 125
def final_addr_res(tag):
    n, hi, t0, t1 = vT[0], vT[1], vT[2], vT[3]
    e(f"v_and_b32 v{n}, 31, v{vL}")
    e(f"v_lshrrev_b32 v{hi}, 5, v{vL}")
    e(f"s_mul_i32 s{sT1}, s2, 40")
    e(f"s_cmp_eq_u32 s{sQ}, 0")
    e(f"s_cbranch_scc0 L_far_b{tag}")
    c("role A residual: h[node n][32ct + 8bb + 4hi..+3]: OWN + n*256 + (((ct*4+bb) ^ (n&15))<<4) + hi*8")
    e(f"v_and_b32 v{t0}, 15, v{n}")
    e(f"s_lshl_b32 s{sT0}, s{sCT}, 2")
    e(f"v_xor_b32 v{t0}, s{sT0}, v{t0}")
    e(f"v_lshlrev_b32 v{t0}, 4, v{t0}")
    e(f"v_lshl_add_u32 v{t0}, v{n}, 8, v{t0}")
    e(f"v_lshl_add_u32 v{t0}, v{hi}, 3, v{t0}")
    e(f"v_add_u32 v{vFRES}, {OWN}, v{t0}")
    e(f"v_add_u32 v{vFOFF}, s{sT1}, v{n}")
    e(f"v_lshlrev_b32 v{vFOFF}, 8, v{vFOFF}")
    e(f"v_lshl_add_u32 v{vFOFF}, v{hi}, 3, v{vFOFF}")
    e(f"s_lshl_b32 s{sT0}, s{sCT}, 6")
    e(f"v_add_u32 v{vFOFF}, s{sT0}, v{vFOFF}")
    e(f"s_branch L_far_d{tag}")
    lab(f"L_far_b{tag}")
    c("role B residual: rows 32+4hi+i, col 32ct+n: OWN + row*256 + (((ct*4 + (n>>3)) ^ (row&15))<<4) + (n&7)*2")
    e(f"v_lshrrev_b32 v{t0}, 3, v{n}")
    e(f"s_lshl_b32 s{sT0}, s{sCT}, 2")
    e(f"v_add_u32 v{t0}, s{sT0}, v{t0}          ; chunk")
    e(f"v_lshlrev_b32 v{t1}, 2, v{hi}             ; 4hi")
    e(f"v_xor_b32 v{t0}, v{t0}, v{t1}")
    e(f"v_lshlrev_b32 v{t0}, 4, v{t0}")
    e(f"v_lshl_add_u32 v{t0}, v{t1}, 8, v{t0}   ; + 4hi*256")
    e(f"v_and_b32 v{hi}, 7, v{n}")
    e(f"v_lshl_add_u32 v{t0}, v{hi}, 1, v{t0}")
    e(f"v_add_u32 v{vFRES}, {OWN + 32*256}, v{t0}")
    e(f"s_add_u32 s{sT0}, s{sT1}, 32")
    e(f"v_add_u32 v{vFOFF}, s{sT0}, v{t1}")
    e(f"v_lshlrev_b32 v{vFOFF}, 8, v{vFOFF}")
    e(f"v_lshl_add_u32 v{vFOFF}, v{n}, 1, v{vFOFF}")
    e(f"s_lshl_b32 s{sT0}, s{sCT}, 6")
    e(f"v_add_u32 v{vFOFF}, s{sT0}, v{vFOFF}")
    lab(f"L_far_d{tag}")
lab("L_rfront")
c("R waves after the role: H1 (quad 0: nodes 0..31, quad 1: nodes 32..39); WH1 slices staged in QT (ct*8192)")
WF = 16
D1 = 96
vR2 = 114
def rowreg(s_): return (ACC + 4*s_) if s_ < 4 else (QF + 4*(s_-4))
slice_lane(vT[2], sCT)
e(f"s_lshl_b32 s{sT2}, s{sCT}, 13")
e(f"s_add_u32 s{sT2}, s{sT2}, {QT}")
e(f"s_lshl_b32 s{sT3}, s{sRQ}, 12")
e(f"s_add_u32 s{sT3}, s{sT3}, s{sT2}          ; + half*4096")
e(f"s_lshl_b32 s{sX0}, s{sRQ}, 14")
wait_cnt(RCA, 8, dst=sX2)
for i in range(4):
    e(f"s_add_u32 m0, s{sT3}, {i*1024}")
    e(f"s_add_u32 s{sT1}, s{sX0}, {i*4096}")
    e(f"buffer_load_dwordx4 v{vT[2]}, {srd(S_WH)}, s{sT1} offen lds")
stamp("h1 dma", 7)
c("signal: the last of the role's waves writes the flag(s) once all stores are complete")
e(f"s_mov_b32 s{sC}, 0")
e(f"s_cmp_eq_u32 s{sRL}, 0")
e("s_cbranch_scc1 L_nosig")
e("s_waitcnt vmcnt(4)")
e(f"v_mov_b32 v{vU0}, {GCNT}")
e(f"v_mov_b32 v{vU1}, 1")
e("s_mov_b64 exec, 1")
e(f"ds_add_rtn_u32 v{vRA}, v{vU0}, v{vU1}")
e("s_waitcnt lgkmcnt(0)")
e("s_mov_b64 exec, -1")
e(f"v_readfirstlane_b32 s{sT0}, v{vRA}")
e(f"s_xor_b32 s{sT1}, s{sTW}, {FLC}")
e(f"v_mov_b32 v{vU1}, s{sT1}")
e(f"v_lshrrev_b32 v{vU0}, 2, v{vL}")
e(f"v_mul_u32_u24 v{vU0}, {FSTR}, v{vU0}")
e(f"v_and_b32 v{vRA}, 3, v{vL}")
e(f"v_lshl_add_u32 v{vU0}, v{vRA}, 2, v{vU0}")
e(f"s_add_u32 s{sT0}, s{sT0}, 1")
e(f"s_cmp_eq_u32 s{sT0}, s{sRL}")
e(f"s_cbranch_scc0 L_nosig")
e(f"s_mov_b64 exec, {sp(sM0)}")
e(f"buffer_store_dword v{vU1}, v{vU0}, {srd(S_WS)}, s{sX1} offen sc1")
e("s_mov_b64 exec, -1")
e(f"s_mov_b32 s{sC}, 1")
lab("L_nosig")
stamp("role signalled", 6)
if not NOPRIO: e("s_setprio 0")
e(f"s_mov_b32 s{sX0}, s{sT2}")
lane_consts()
if FINR and RFE: final_addr(True)
if FINR == 2 and RFE: final_addr_res("r")
trpat(vT[6], vT[0], vT[1])
e(f"v_add_u32 v{vT[6]}, s{sX0}, v{vT[6]}")
e(f"v_lshrrev_b32 v{vT[3]}, 5, v{vL}           ; hi")
e(f"v_and_b32 v{vT[4]}, 31, v{vL}")
e(f"s_lshl_b32 s{sT0}, s{sRQ}, 5")
e(f"v_add_u32 v{vT[4]}, s{sT0}, v{vT[4]}")
e(f"v_min_u32 v{vT[4]}, 39, v{vT[4]}")
row_addr(vT[1], vT[4], vT[3], vT[2])
c("DMA landed (the flag store, if this wave issued it, may stay in flight)")
e(f"s_cmp_eq_u32 s{sC}, 0")
e("s_cbranch_scc1 L_h1w0")
e(f"s_waitcnt vmcnt(1)")
e("s_branch L_h1w1")
lab("L_h1w0")
e("s_waitcnt vmcnt(0)")
lab("L_h1w1")
arrive(RCB)
wait_cnt([FCNT, FCC, FCNT2][H1W], 8, dst=sX2)
for s_ in range(8):
    e(f"v_xor_b32 v{vT[2]}, {s_<<5}, v{vT[1]}")
    e(f"ds_read_b128 {vr(rowreg(s_),4)}, v{vT[2]}")
wait_cnt(RCB, 8, dst=sX2)
for s_ in range(8):
    e(f"ds_read_b64_tr_b16 {vr(WF+4*s_,2)}, v{vT[6]} offset:{s_*1024}")
    e(f"ds_read_b64_tr_b16 {vr(WF+4*s_+2,2)}, v{vT[6]} offset:{s_*1024+256}")
e(f"s_mov_b32 s{sK2}, 0x{NLOG2E:08x}")
e(f"s_cmp_eq_u32 s{sRQ}, 0")
e("s_cbranch_scc0 L_h1b")
for s_ in range(8):
    e(f"s_waitcnt lgkmcnt({2*(7-s_)})")
    mfma(FACC, WF+4*s_, rowreg(s_), "0" if s_ == 0 else vr(FACC,16))
e("s_nop 7")
e("s_nop 3")
for r in range(16):
    e(f"v_mul_f32 v{FACC+r}, s{sK2}, v{FACC+r}")
e("s_branch L_h1d")
lab("L_h1b")
for s_ in range(8):
    e(f"s_waitcnt lgkmcnt({2*(7-s_)})")
    mfma(D1, rowreg(s_), WF+4*s_, "0" if s_ == 0 else vr(D1,16))
e("s_nop 7")
e("s_nop 3")
for r in range(4):
    e(f"v_mul_f32 v{FB+r}, s{sK2}, v{D1+r}")
lab("L_h1d")
if PREF: arrive(RH1)
stamp("h1 done", 8)
e("s_branch L_common")

lab("L_front")
QA, QB, QC = 0, 1, 2
KB = 124
PWR = 116
fw = sX2
e(f"s_sub_u32 s{fw}, s{sW}, 8")
e(f"v_lshlrev_b32 v{vT[0]}, 4, v{tid}")
c("own rows dma: instr idx u covers rows 4u..4u+3 ; lane: row = 4u + (l>>4); chunk = (l&15) ^ (row&15)")
e(f"v_lshrrev_b32 v{vT[4]}, 4, v{vL}")
e(f"v_and_b32 v{vT[1]}, 15, v{vL}")
e(f"v_xor_b32 v{vT[1]}, v{vT[1]}, v{vT[4]}")
e(f"s_lshl_b32 s{sT1}, s{sCT}, 2")
e(f"v_xor_b32 v{vT[1]}, s{sT1}, v{vT[1]}")
e(f"v_lshlrev_b32 v{vT[1]}, 4, v{vT[1]}")
e(f"v_lshl_add_u32 v{vT[1]}, v{vT[4]}, 8, v{vT[1]}")
slice_lane(vT[2], sCT)
e(f"s_lshl_b32 s{sT2}, s{sCT}, 13")
e(f"s_mul_i32 s{sT0}, s2, {40*256}")
e(f"s_lshl_b32 s{sT1}, s{fw}, 10")
e(f"s_add_u32 s{sT0}, s{sT0}, s{sT1}")
e(f"v_mul_u32_u24 v{vT[3]}, 6, v{vL}")
e(f"v_and_b32 v{vT[5]}, 31, v{vL}")
e(f"s_lshl_b32 s{sT3}, s{sCT}, 5")
e(f"v_add_u32 v{vT[5]}, s{sT3}, v{vT[5]}")
e(f"v_lshlrev_b32 v{vT[5]}, 1, v{vT[5]}           ; (32ct + n)*2")
e("s_waitcnt lgkmcnt(0)")
stamp("kernarg", 1)
kernarg_copy()
if FDEL: e(f"s_sleep {FDEL}")
e(f"s_add_u32 m0, s{sT1}, {OWN}")
e("s_nop 0")
e(f"buffer_load_dwordx4 v{vT[1]}, {srd(S_H)}, s{sT0} offen lds")
e(f"s_cmp_ge_u32 s{fw}, 2")
e("s_cbranch_scc1 L_f_no2")
e(f"s_add_u32 m0, s{sT1}, {OWN+8192}")
e(f"s_add_u32 s{sT0}, s{sT0}, 8192")
e(f"buffer_load_dwordx4 v{vT[1]}, {srd(S_H)}, s{sT0} offen lds")
lab("L_f_no2")
c("wave 10: own pos (lane l<40 loads x,y,z u16)")
e(f"s_cmp_eq_u32 s{fw}, 2")
e("s_cbranch_scc0 L_f_nopos")
e(f"s_mul_i32 s{sT0}, s2, 240")
e(f"v_cmp_gt_u32 vcc, 40, v{vL}")
e("s_mov_b64 exec, vcc")
for k in range(3):
    e(f"buffer_load_ushort v{PWR+k}, v{vT[3]}, {srd(S_POS)}, s{sT0} offen offset:{2*k}")
e("s_mov_b64 exec, -1")
lab("L_f_nopos")
if PPF:
    c("L2 warm-up of pos: segment (wg>>3)&7 of 7680 B, 960 B per F wave (result unused)")
    e(f"s_lshr_b32 s{sT1}, s2, 3")
    e(f"s_and_b32 s{sT1}, s{sT1}, 7")
    e(f"s_lshl_b32 s{sT1}, s{sT1}, 3")
    e(f"s_add_u32 s{sT1}, s{sT1}, s{fw}")
    e(f"s_mul_i32 s{sT1}, s{sT1}, 960")
    e(f"v_lshlrev_b32 v{vT[7]}, 4, v{vL}")
    e(f"buffer_load_dwordx4 {vr(108,4)}, v{vT[7]}, {srd(S_POS)}, s{sT1} offen")
c("K1B raw: w_e rows 256, 257")
e(f"s_mov_b32 s{sT1}, 65536")
e(f"buffer_load_ushort v{KB}, v{vT[5]}, {srd(S_WE)}, s{sT1} offen")
e(f"buffer_load_ushort v{KB+1}, v{vT[5]}, {srd(S_WE)}, s{sT1} offen offset:256")
e(f"s_add_u32 s{sX1}, s{sT2}, {REC}")
e(f"s_lshl_b32 s{sT3}, s{sRQ}, 12")
e(f"s_add_u32 s{sT3}, s{sT3}, s{sX1}          ; + half*4096")
e(f"s_lshl_b32 s{sX0}, s{sRQ}, 14")
stamp("role loads issued", 2)
c("zero REC[32768, 65536) (the first 32 KB stage W1 and are zeroed after use)")
for i in range(4):
    e(f"ds_write_b128 v{vT[0]}, {vr(Z,4)} offset:{32768 - 8192 + i*8192}")
c("let the role loads go first")
if YM == 1:
    e(f"s_cmp_lt_u32 s2, {BIN0}")
    e("s_cbranch_scc1 L_f_noriss")
wait_cnt(RISS, 8)
if YM == 1: lab("L_f_noriss")
stamp("B1", 4)
c("W1 slice ct (w_e rows 0..127): this wave loads k-steps 4*half .. 4*half+3")
for i in range(4):
    e(f"s_add_u32 m0, s{sT3}, {i*1024}")
    e(f"s_add_u32 s{sT1}, s{sX0}, {i*4096}")
    e(f"buffer_load_dwordx4 v{vT[2]}, {srd(S_WE)}, s{sT1} offen lds")
lane_consts()
e("s_waitcnt vmcnt(4)")
arrive(FCNT)
c("wave 10: PTF (f32 x4 per node)")
e(f"s_cmp_eq_u32 s{fw}, 2")
e("s_cbranch_scc0 L_noptf")
for k in range(3): e(f"v_lshlrev_b32 v{PWR+k}, 16, v{PWR+k}")
e(f"v_mov_b32 v{PWR+3}, 0")
e(f"v_lshlrev_b32 v{vT[0]}, 4, v{vL}")
e(f"v_add_u32 v{vT[0]}, {PTF}, v{vT[0]}")
e(f"v_cmp_gt_u32 vcc, 40, v{vL}")
e("s_mov_b64 exec, vcc")
e(f"ds_write_b128 v{vT[0]}, {vr(PWR,4)}")
e("s_mov_b64 exec, -1")
lab("L_noptf")
stamp("role loads landed", 3)
trpat(vT[6], vT[0], vT[1])
e(f"v_add_u32 v{vT[6]}, s{sX1}, v{vT[6]}")
c("P' task: rows m: slot = m&7, g' = m>>3 ; node = 5*(4B + g') + max(slot-3,0), B = half")
e(f"v_lshrrev_b32 v{vT[3]}, 5, v{vL}           ; hi")
e(f"v_and_b32 v{vT[0]}, 7, v{vL}")
e(f"v_subrev_u32 v{vT[0]}, 3, v{vT[0]}")
e(f"v_max_i32 v{vT[0]}, 0, v{vT[0]}")
e(f"v_bfe_u32 v{vT[1]}, v{vL}, 3, 2")
e(f"v_mad_u32_u24 v{vT[0]}, v{vT[1]}, 5, v{vT[0]}        ; node (B=0)")
e(f"s_mul_i32 s{sT0}, s{sRQ}, 20")
e(f"v_add_u32 v{vT[0]}, s{sT0}, v{vT[0]}")
row_addr(vT[1], vT[0], vT[3], vT[2])
c("K1B: (wd, we) scaled, hi and lo parts")
e(f"s_mov_b32 s{sT0}, 0x{NLOG2E:08x}")
e(f"s_mov_b32 s{sT1}, 0xffff0000")
k0, k1, k2, k3 = 116, 117, 118, 119
e(f"v_lshlrev_b32 v{k0}, 16, v{KB}")
e(f"v_lshlrev_b32 v{k1}, 16, v{KB+1}")
e(f"v_mul_f32 v{k0}, s{sT0}, v{k0}")
e(f"v_mul_f32 v{k1}, s{sT0}, v{k1}")
e(f"v_cvt_pk_bf16_f32 v{KB}, v{k0}, v{k1}")
e(f"v_lshlrev_b32 v{k2}, 16, v{KB}")
e(f"v_and_b32 v{k3}, s{sT1}, v{KB}")
e(f"v_sub_f32 v{k0}, v{k0}, v{k2}")
e(f"v_sub_f32 v{k1}, v{k1}, v{k3}")
e(f"v_cvt_pk_bf16_f32 v{KB+1}, v{k0}, v{k1}")
c("P' write: BXP + g*2048 + (32ct + n)*16 + hi*8 ; hi=0 lanes: slots 0,1 = (wd,we) hi ; slot 2 = wd lo ; slot 3 = P'[j=0]")
vPW, vPM = 126, 127 if not TIMING else 115
e(f"v_and_b32 v{vPW}, 31, v{vL}")
e(f"v_lshlrev_b32 v{vPW}, 4, v{vPW}")
e(f"v_lshl_add_u32 v{vPW}, v{vT[3]}, 3, v{vPW}")
e(f"s_lshl_b32 s{sT0}, s{sCT}, 9")
e(f"s_lshl_b32 s{sT1}, s{sRQ}, 13")
e(f"s_add_u32 s{sT0}, s{sT0}, s{sT1}")
e(f"s_add_u32 s{sT0}, s{sT0}, {BXP}")
e(f"v_add_u32 v{vPW}, s{sT0}, v{vPW}")
e(f"v_cmp_gt_u32 vcc, 32, v{vL}")
e(f"v_mov_b32 v{vPM}, 0xffff0000")
e(f"v_cndmask_b32 v{vPM}, -1, v{vPM}, vcc         ; mask M")
e(f"v_and_b32 v{KB+1}, 0xffff, v{KB+1}")
e(f"v_cndmask_b32 v{KB+1}, 0, v{KB+1}, vcc")
e(f"s_mov_b32 s{sK2}, 0x{NLOG2E + ((7 << 23) if F16 else 0):08x}")
for i in range(4): e(f"v_mov_b32 v{116+i}, 0")
e("s_waitcnt vmcnt(0)")
stamp("slices landed", 6)
arrive(FCB)
c("---- granule (16 B, two records) per lane: c = 8fw + (l>>3), q = l&7 : c*32000 + q*16 (+ b*128)")
e(f"s_lshl_b32 s{sT0}, s{fw}, 3")
e(f"v_lshrrev_b32 v{vT[4]}, 3, v{vL}")
e(f"v_add_u32 v{vT[4]}, s{sT0}, v{vT[4]}          ; c")
e(f"v_mul_u32_u24 v{vGA}, {CHB}, v{vT[4]}")
e(f"v_and_b32 v{vT[5]}, 7, v{vL}")
e(f"v_lshl_add_u32 v{vGA}, v{vT[5]}, 4, v{vGA}")
e(f"v_lshlrev_b32 v{vT[0]}, 4, v{vL}")
e(f"s_lshl_b32 s{sT0}, s{fw}, 12")
e(f"v_add_u32 v{vT[0]}, s{sT0}, v{vT[0]}")
e(f"v_cmp_gt_u32 {sp(sPA)}, {NCH}, v{vT[4]}")
e(f"s_lshl_b32 s{sT2}, s2, 7")
e(f"s_add_u32 s{sT3}, s{sT2}, {CELLB}")
e(f"s_mov_b64 {sp(sPB)}, {sp(sPA)}")
e(f"s_mov_b64 {sp(sEX)}, {sp(sPA)}")
e(f"s_sub_u32 s{sLOW}, s{sTW}, {DELTA}")
if FORCE == "ovf":
    e(f"s_add_u32 s{sLOW}, s{sLOW}, 0x40000000")
e(f"s_mov_b32 s{sK3}, {WIN}")
e(f"s_mov_b32 s{sCNT}, 0")
e(f"s_mov_b64 {sp(sM2)}, {sp(sPB)}")
wait_cnt(FCB, 8)
stamp("fcb", 45)
for s_ in range(8):
    e(f"ds_read_b64_tr_b16 {vr(WF+4*s_,2)}, v{vT[6]} offset:{s_*1024}")
    e(f"ds_read_b64_tr_b16 {vr(WF+4*s_+2,2)}, v{vT[6]} offset:{s_*1024+256}")
_pi = [0]
def poll_issue():
    i = _pi[0]; _pi[0] += 1
    e(f"s_cmp_eq_u64 {sp(sPA)}, 0")
    e(f"s_cbranch_scc1 L_rp_noa{i}")
    e(f"s_mov_b64 exec, {sp(sPA)}")
    e(f"buffer_load_dwordx4 {vr(RA,4)}, v{vGA}, {srd(S_WS)}, s{sT2} offen sc1")
    lab(f"L_rp_noa{i}")
    e(f"s_cmp_eq_u64 {sp(sM2)}, 0")
    e(f"s_cbranch_scc1 L_rp_nob{i}")
    e(f"s_mov_b64 exec, {sp(sM2)}")
    e(f"buffer_load_dwordx4 {vr(RB,4)}, v{vGA}, {srd(S_WS)}, s{sT3} offen sc1")
    lab(f"L_rp_nob{i}")
    e("s_mov_b64 exec, -1")
def pwrite(r0, g):
    for i in range(4):
        e(f"v_mul_f32 v{r0+i}, s{sK2}, v{r0+i}")
    e(f"v_cvt_pk_bf16_f32 v{r0}, v{r0}, v{r0+1}")
    e(f"v_cvt_pk_bf16_f32 v{r0+1}, v{r0+2}, v{r0+3}")
    e(f"v_cndmask_b32 v{r0}, v{r0}, v{KB}, vcc")
    e(f"v_and_or_b32 v{r0+1}, v{r0+1}, v{vPM}, v{KB+1}")
    e(f"ds_write_b64 v{vPW}, {vr(r0,2)} offset:{g*2048}")
def p_compute(first):
    for s_ in range(8):
        e(f"v_xor_b32 v{vT[2]}, {s_<<5}, v{vT[1]}")
        e(f"ds_read_b128 {vr(rowreg(s_),4)}, v{vT[2]}")
    for s_ in range(8):
        e(f"s_waitcnt lgkmcnt({7-s_})")
        mfma(FACC, rowreg(s_), WF+4*s_, "0" if s_ == 0 else vr(FACC,16))
    stamp("mfma issued", 46)
    e(f"v_cmp_gt_u32 vcc, 32, v{vL}")
    e("s_nop 7")
    e("s_nop 3")
    for g in range(4):
        pwrite(FACC+4*g, g)
e("s_waitcnt lgkmcnt(0)")
FR = (112, 113)
arrive(FCC, FR)
if not PLATE: p_compute(True)
c("all eight waves hold their fragments: zero the staging area (4 KB per wave)")
wait_cnt(FCC, 8, regs=FR)
for i in range(4):
    e(f"ds_write_b128 v{vT[0]}, {vr(116,4)} offset:{REC + i*1024}")
e("s_waitcnt lgkmcnt(0)")
arrive(FCNT2, FR)
stamp("front done", 5)
if not NOPRIO: e(f"s_setprio {FPRIO}")
if PLATE == 2: p_compute(True)
if PSL: e(f"s_sleep {PSL}")
poll_issue()
stamp("B3", 7)
if PLATE == 1: p_compute(True)
if HOIST:
    assert PLATE == 1
    id_consts(vT[0], vT[1])
    seg_zero()
if FINR: final_addr(False)
e("s_branch L_rpoll")

def dma_issue(va, vb, sbuf):
    if not IDX:
        e(f"v_lshl_add_u32 v{va}, v{va}, 8, v{vQD}")
        e(f"v_lshl_add_u32 v{vb}, v{vb}, 8, v{vQD}")
    e(f"s_mov_b32 m0, s{sbuf}")
    e(f"s_nop 0")
    if IDX: e(f"buffer_load_dwordx4 {vr(va,2)}, {srd(S_Q)}, 0 idxen offen{QSC} lds")
    else:   e(f"buffer_load_dwordx4 v{va}, {srd(S_Q)}, 0 offen{QSC} lds")
    e(f"s_add_u32 m0, s{sbuf}, 1024")
    e(f"s_nop 0")
    if IDX: e(f"buffer_load_dwordx4 {vr(vb,2)}, {srd(S_Q)}, 0 idxen offen{QSC} lds")
    else:   e(f"buffer_load_dwordx4 v{vb}, {srd(S_Q)}, 0 offen{QSC} lds")
vLKr, vODr, vTRSr, vTRSr2, vLKr2 = 92, 93, 94, 95, 14
PA, PB = 10, 12
LK = [PA, PB, 80, 82]
def fg_prep():
    e(f"v_xor_b32 v{vLKr2}, 32, v{vLK}")
    if IDX:
        for k in range(4): e(f"v_mov_b32 v{LK[k]+1}, v{vQD}")
def prep_post():
    e(f"s_lshl_b32 s{sT0}, s{sG}, 2")
    e(f"s_add_u32 s{sT0}, s{sT0}, {ALLOC}")
    e(f"v_mov_b32 v{vT[0]}, s{sT0}")
    e(f"v_mov_b32 v{vT[1]}, {OVF}")
def bal_compute():
    C = [68 + i for i in range(8)]
    e(f"v_mov_b32 v{vT[0]}, {ALLOC}")
    e(f"ds_read_b128 {vr(84,4)}, v{vT[0]}")
    e(f"ds_read_b128 {vr(88,4)}, v{vT[0]} offset:16")
    e("s_waitcnt lgkmcnt(0)")
    for g in range(8): e(f"v_readfirstlane_b32 s{C[g]}, v{84+g}")
    e("s_nop 1")
    for g in range(8):
        e(f"s_min_u32 s{C[g]}, s{C[g]}, {CAP}")
        e(f"s_add_u32 s{C[g]}, s{C[g]}, 7")
        e(f"s_lshr_b32 s{C[g]}, s{C[g]}, 3")
    for k in range(4): e(f"s_sub_i32 s{C[2*k]}, s{C[2*k]}, s{C[2*k+1]}")
    S = C[0]
    e(f"s_mov_b32 s{sT3}, 0")
    for k in range(1, 4):
        d, nd, t = C[2*k], C[2*k+1], C[1]
        e(f"s_mul_i32 s{t}, s{S}, s{d}")
        e(f"s_sub_i32 s{nd}, 0, s{d}")
        e(f"s_cmp_gt_i32 s{t}, 0")
        e(f"s_cselect_b32 s{d}, s{nd}, s{d}")
        e(f"s_cselect_b32 s{t}, {1 << k}, 0")
        e(f"s_or_b32 s{sT3}, s{sT3}, s{t}")
        e(f"s_add_i32 s{S}, s{S}, s{d}")
def bal_apply(sbits, tag):
    e(f"s_lshr_b32 s{sT0}, s{sbits}, s{sQ}")
    e(f"s_and_b32 s{sT0}, s{sT0}, 1")
    e(f"s_cbranch_scc0 L_bal_no{tag}")
    e(f"s_and_b32 s{sT0}, s{sG}, 1")
    e(f"s_xor_b32 s{sG}, s{sG}, 1")
    e(f"s_cmp_eq_u32 s{sT0}, 0")
    e(f"s_cselect_b32 s{sT1}, 1, -1")
    e(f"s_mul_i32 s{sT0}, s{sT1}, {GSTR}")
    e(f"s_lshl_b32 s{sT1}, s{sT1}, 13")
    e(f"s_add_u32 s{sB0}, s{sB0}, s{sT1}")
    e(f"s_add_u32 s{sB1}, s{sB1}, s{sT1}")
    e(f"v_add_u32 v{vLK}, s{sT0}, v{vLK}")
    e(f"v_add_u32 v{vTRS}, s{sT0}, v{vTRS}")
    e(f"v_add_u32 v{vTRQ0}, s{sT1}, v{vTRQ0}")
    e(f"v_add_u32 v{vTRQ1}, s{sT1}, v{vTRQ1}")
    e(f"v_lshrrev_b32 v{vT[2]}, {11 if IMM else 10}, v{vODM}")
    e(f"v_mad_i32_i24 v{vOD}, v{vT[2]}, s{sT0}, v{vOD}")
    lab(f"L_bal_no{tag}")
def first_gathers(extra=None, part=3, prep=True):
    if not part & 1:
        dma_issue(LK[0], LK[1], sB0)
        if PREFN == 2: dma_issue(LK[2], LK[3], sB1)
        return
    if prep: e(f"v_xor_b32 v{vLKr2}, 32, v{vLK}")
    e(f"ds_read_u16 v{LK[0]}, v{vLK}")
    e(f"ds_read_u16 v{LK[1]}, v{vLKr2} offset:512")
    e(f"ds_read_u16 v{LK[2]}, v{vLK} offset:1024")
    e(f"ds_read_u16 v{LK[3]}, v{vLKr2} offset:1536")
    n = extra() if extra else 0
    if IDX and prep:
        for k in range(4): e(f"v_mov_b32 v{LK[k]+1}, v{vQD}")
    if not part & 2:
        e("s_waitcnt lgkmcnt(0)")
        return
    e(f"s_waitcnt lgkmcnt({2+n})")
    dma_issue(LK[0], LK[1], sB0)
    e(f"s_waitcnt lgkmcnt({n})")
    dma_issue(LK[2], LK[3], sB1)
lab("L_common")
c("---- R waves: no records ; wave 7 waits for the Q / WH2F flags")
for m in MK: e(f"s_mov_b64 {sp(m)}, 0")
if HOIST:
    id_consts(vT[0], vT[1])
    seg_zero()
if FINR and not RFE: final_addr(True)
if FINR == 2 and not RFE: final_addr_res("r")
vQP = vT[7]
def qpoll_issue():
    e("s_mov_b32 exec_lo, -1")
    e("s_mov_b32 exec_hi, 0x1ff")
    e(f"buffer_load_dwordx4 {vr(RA,4)}, v{vQP}, {srd(S_WS)}, s{sT2} offen sc1")
if PREF: wait_cnt(RH1, 8, regs=FR)
e(f"s_cmp_eq_u32 s{sW}, 7")
e(f"s_cbranch_scc0 {'L_rlk' if PREF else 'L_ba'}")
if QGATE: wait_cnt(RLAND, QGATE, regs=FR)
e(f"v_lshlrev_b32 v{vQP}, 4, v{vL}")
e(f"s_mov_b32 s{sCNT}, 0")
e(f"s_and_b32 s{sT2}, s2, {FCOPY-1}")
e(f"s_mul_i32 s{sT2}, s{sT2}, {FSTR}")
e(f"s_add_u32 s{sT2}, s{sT2}, {FLG}")
e(f"s_sub_u32 s{sLOW}, s{sTW}, {DELTA}")
if FORCE == "fb":
    e(f"s_add_u32 s{sLOW}, s{sLOW}, 0x40000000")
e(f"s_mov_b32 s{sK3}, {WIN}")
if PREF:
    qpoll_issue()
    e("s_mov_b64 exec, -1")
    lab("L_rlk")
    c("all records have their source node in REC: look up the source nodes of the first two tiles")
    wait_cnt(RPL, 8, regs=FR, slp=RPS)
    if BAL:
        bal_compute()
        e(f"s_cmp_eq_u32 s{sW}, 0")
        e("s_cbranch_scc0 L_bal_np")
        c("wave 0 publishes the swap bits for the F waves")
        e(f"s_or_b32 s{sT0}, s{sT3}, 0x100")
        e(f"v_mov_b32 v{vT[0]}, {MAPW}")
        e(f"v_mov_b32 v{vT[1]}, s{sT0}")
        e(f"ds_write_b32 v{vT[0]}, v{vT[1]}")
        lab("L_bal_np")
        bal_apply(sT3, "r")
    first_gathers(part=1)
    e(f"s_cmp_eq_u32 s{sW}, 7")
    e("s_cbranch_scc0 L_rwait")
    e("s_mov_b32 exec_lo, -1")
    e("s_mov_b32 exec_hi, 0x1ff")
    e("s_branch L_qpoll1")
lab("L_qpoll")
qpoll_issue()
lab("L_qpoll1")
e(f"s_add_u32 s{sCNT}, s{sCNT}, 1")
e("s_waitcnt vmcnt(0)")
stamp_dyn(19, sCNT)
for k in range(4):
    e(f"v_xor_b32 v{RA+k}, {FLC}, v{RA+k}")
for k in range(4):
    e(f"v_subrev_u32 v{RA+k}, s{sLOW}, v{RA+k}")
e(f"v_max_u32 v{RA}, v{RA}, v{RA+1}")
e(f"v_max3_u32 v{RA}, v{RA}, v{RA+2}, v{RA+3}")
e(f"v_cmp_le_u32 vcc, s{sK3}, v{RA}")
e("s_cmp_eq_u64 vcc, 0")
e("s_cbranch_scc1 L_qp_ok")
e(f"s_sleep {QSL}")
e(f"s_cmp_lt_u32 s{sCNT}, {NPOLL}")
e("s_cbranch_scc1 L_qpoll")
e(f"v_mov_b32 v{vT[0]}, {OVF}")
e(f"v_mov_b32 v{vT[1]}, 2")
e(f"ds_or_b32 v{vT[0]}, v{vT[1]}")
lab("L_qp_ok")
e("s_mov_b64 exec, -1")
if PREF:
    arrive(QOKF, FR)
    e("s_branch L_rpre")
    lab("L_rwait")
    wait_cnt(QOKF, 1, regs=FR, slp=RWS)
    lab("L_rpre")
    c("gather the first two tiles now (all R waves hold their H1 fragments: the tile buffers are free)")
    first_gathers(part=2)
    if PREB: prep_post()
    e(f"s_mov_b32 s{sPREF}, 1")
e("s_branch L_ba")
_st[0] = 8
def gcheck(G, M, M2):
    e(f"v_bfe_u32 v{vT[2]}, v{G+3}, 3, 9")
    e(f"v_xor_b32 v{vT[2]}, {TAGC}, v{vT[2]}")
    e(f"v_lshrrev_b32 v{vT[0]}, 23, v{G}")
    e(f"v_lshrrev_b32 v{vT[1]}, 23, v{G+2}")
    e(f"v_subrev_u32 v{vT[3]}, s{sLOW}, v{G+3}")
    e(f"v_cmp_eq_u32 {M}, v{vT[0]}, v{vT[2]}")
    e(f"v_cmp_eq_u32 {M2}, v{vT[1]}, v{vT[2]}")
    e(f"s_and_b64 {M}, {M}, {M2}")
    e(f"v_cmp_gt_u32 {M2}, s{sK3}, v{vT[3]}")
    e(f"s_and_b64 {M}, {M}, {M2}")
e("s_branch L_rpoll")
lab("L_rpoll_again")
poll_issue()
lab("L_rpoll")
e(f"s_add_u32 s{sCNT}, s{sCNT}, 1")
e("s_waitcnt vmcnt(0)")
stamp_dyn(19, sCNT)
gcheck(RA, "vcc", sp(sM0))
e(f"s_andn2_b64 {sp(sPA)}, {sp(sPA)}, vcc")
gcheck(RB, sp(sM1), sp(sM0))
e(f"v_bfe_u32 v{vT[0]}, v{RA}, 22, 1")
e(f"s_andn2_b64 {sp(sPB)}, {sp(sPB)}, {sp(sM1)}")
e(f"v_cmp_ne_u32 vcc, 0, v{vT[0]}                ; more")
e(f"s_andn2_b64 vcc, vcc, {sp(sPA)}")
if BSPEC:
    e(f"s_or_b64 vcc, vcc, {sp(sPA)}")
e(f"s_and_b64 {sp(sM2)}, {sp(sPB)}, vcc")
e(f"s_or_b64 vcc, {sp(sPA)}, {sp(sM2)}")
e("s_cmp_eq_u64 vcc, 0")
e("s_cbranch_scc1 L_rp_ok")
e(f"s_sleep {RSL}")
e(f"s_cmp_lt_u32 s{sCNT}, {NPOLL}")
e("s_cbranch_scc1 L_rpoll_again")
c("timed out: take the slow path")
e(f"v_mov_b32 v{vT[0]}, {OVF}")
e(f"v_mov_b32 v{vT[1]}, 1")
e(f"ds_or_b32 v{vT[0]}, v{vT[1]}")
e(f"s_andn2_b64 {sp(sEX)}, {sp(sEX)}, vcc")
lab("L_rp_ok")
e("s_mov_b64 exec, -1")
arrive(RLAND, FR)
stamp("records landed")
c("masks: a,b = valid bits of granule A ; c,d = valid bits of granule B & more")
RCS = [RA, RA+2, RB, RB+2]
e(f"v_bfe_u32 v{vT[0]}, v{RA}, 20, 1")
e(f"v_bfe_u32 v{vT[1]}, v{RA+2}, 20, 1")
e(f"v_bfe_u32 v{vT[2]}, v{RB}, 20, 1")
e(f"v_bfe_u32 v{vT[3]}, v{RB+2}, 20, 1")
e(f"v_bfe_u32 v{vT[4]}, v{RA}, 22, 1")
e(f"v_bfe_u32 v{vT[5]}, v{RA}, 21, 2")
e(f"v_and_b32 v{vT[2]}, v{vT[2]}, v{vT[4]}")
e(f"v_and_b32 v{vT[3]}, v{vT[3]}, v{vT[4]}")
for k in range(4):
    e(f"v_cmp_ne_u32 {sp(MK[k])}, 0, v{vT[k]}")
e(f"v_cmp_eq_u32 {sp(sM2)}, 3, v{vT[5]}")
for k in range(4):
    e(f"s_and_b64 {sp(MK[k])}, {sp(MK[k])}, {sp(sEX)}")
e(f"s_and_b64 {sp(sM2)}, {sp(sM2)}, {sp(sEX)}")
e(f"v_mov_b32 v{vOne}, 1")
e(f"s_mov_b32 s{sT0}, {ALLOC}")
VS = [91, 92, 93, 94]
def s1_issue(k):
    e(f"v_and_b32 v{VS[k]}, 0x3fff, v{RCS[k]}")
    e(f"v_mul_u32_u24 v{vT[0]}, 6, v{VS[k]}")
    e(f"v_and_b32 v{vT[0]}, -4, v{vT[0]}")
    e(f"s_mov_b64 exec, {sp(MK[k])}")
    e(f"buffer_load_dwordx2 {vr(PS[k],2)}, v{vT[0]}, {srd(S_POS)}, 0 offen")
    e(f"v_bfe_u32 v{VJ[k]}, v{RCS[k]}, 14, 6          ; k")
    e(f"v_mul_u32_u24 v{VI[k]}, 52, v{VJ[k]}")
    e(f"v_lshrrev_b32 v{VI[k]}, 8, v{VI[k]}           ; g")
    e(f"v_lshl_add_u32 v{vT[1]}, v{VI[k]}, 2, s{sT0}")
    e(f"ds_add_rtn_u32 v{VR[k]}, v{vT[1]}, v{vOne}")
    e(f"v_mul_u32_u24 v{vT[1]}, 5, v{VI[k]}")
    e(f"v_sub_u32 v{VJ[k]}, v{VJ[k]}, v{vT[1]}        ; j")
    e("s_mov_b64 exec, -1")
    e(f"v_mul_u32_u24 v{VI[k]}, {GSTR}, v{VI[k]}")
c("REC must be zero before placement (all F waves have zeroed their staging)")
wait_cnt(FCNT2, 8, dst=sT1, regs=FR)
for k in range(4):
    e(f"s_cmp_eq_u64 {sp(MK[k])}, 0")
    e(f"s_cbranch_scc1 L_s1i{k}")
    s1_issue(k)
    lab(f"L_s1i{k}")
e(f"s_cmp_eq_u64 {sp(sM2)}, 0")
e("s_cbranch_scc1 L_s1_noovf")
e(f"v_mov_b32 v{vT[0]}, {OVF}")
e(f"ds_or_b32 v{vT[0]}, v{vOne}")
lab("L_s1_noovf")
def s1_place(vR, vI, vS, msk, tag, slow=False):
    e(f"v_cmp_gt_u32 vcc, {CAP}, v{vR}")
    e(f"v_lshl_add_u32 v{vI}, v{vR}, 6, v{vI}")
    e(f"v_bfe_u32 v{vR}, v{vR}, 2, 2")
    e(f"v_lshl_add_u32 v{vI}, v{vR}, 4, v{vI}")
    e(f"v_xor_b32 v{vR}, 16, v{vI}")
    e(f"s_andn2_b64 exec, {sp(msk)}, vcc")
    e(f"s_cbranch_execz L_s1_ok{tag}")
    if slow:
        e(f"v_mov_b32 v{qP}, 1")
        e(f"v_mov_b32 v{vT[0]}, {PEND}")
        e(f"ds_write_b32 v{vT[0]}, v{vOne}")
    else:
        e(f"v_mov_b32 v{vT[0]}, {OVF}")
        e(f"ds_or_b32 v{vT[0]}, v{vOne}")
    lab(f"L_s1_ok{tag}")
    e(f"s_and_b64 {sp(msk)}, {sp(msk)}, vcc")
    e(f"s_mov_b64 exec, {sp(msk)}")
    e(f"ds_write_b16 v{vR}, v{vS} offset:{REC}")
    e("s_mov_b64 exec, -1")
e("s_waitcnt lgkmcnt(0)")
for k in range(4):
    e(f"s_cmp_eq_u64 {sp(MK[k])}, 0")
    e(f"s_cbranch_scc1 L_s1p{k}")
    s1_place(VR[k], VI[k], VS[k], MK[k], "abcd"[k])
    lab(f"L_s1p{k}")
if PREF: arrive(RPL, FR)
lab("L_st2")
c("stage 2 (sparse, up to four records per lane)")
PD = [48, 52, 112, 116]
e(f"s_mov_b32 s{sT0}, {PTF}")
e(f"s_mov_b32 s{sK2}, 0xffff0000")
e(f"v_mov_b32 v{vT[6]}, {'0x3c00' if F16 else '0x3f80'}")
for k in range(4):
    e(f"s_cmp_eq_u64 {sp(MK[k])}, 0")
    e(f"s_cbranch_scc1 L_s2r{k}")
    e(f"v_bfe_u32 v{vT[5]}, v{RCS[k]}, 14, 6              ; k")
    e(f"v_min_u32 v{vT[5]}, 39, v{vT[5]}")
    e(f"v_lshl_add_u32 v{vT[5]}, v{vT[5]}, 4, s{sT0}")
    e(f"ds_read_b128 {vr(PD[k],4)}, v{vT[5]}")
    lab(f"L_s2r{k}")
e("s_waitcnt vmcnt(0) lgkmcnt(0)")
stamp("pos landed", 12)
if BAL:
    assert PREF
    e(f"v_mov_b32 v{vT[3]}, {MAPW}")
    e(f"ds_read_b32 v{vT[4]}, v{vT[3]}")
def stage2_pass(rec, ea, hi_half, ps, pd, row, msk, tag, vj):
    X = [84, 85, 86, 87, 91, 92]
    e_ = globals()["e"]
    def e(x):
        if "2" in KO and x.startswith("ds_write"): return
        e_(x)
    e(f"s_cmp_eq_u64 {sp(msk)}, 0")
    e(f"s_cbranch_scc1 L_s2_done{tag}")
    e(f"s_mov_b64 exec, {sp(msk)}")
    e(f"v_and_b32 v{X[0]}, 1, v{rec}")
    e(f"v_lshlrev_b32 v{X[0]}, 4, v{X[0]}        ; shift")
    e(f"v_alignbit_b32 v{X[1]}, v{ps+1}, v{ps}, v{X[0]}     ; x | y<<16")
    e(f"v_lshrrev_b32 v{X[2]}, v{X[0]}, v{ps+1}              ; z (low 16)")
    e(f"v_lshlrev_b32 v{ps}, 16, v{X[1]}")
    e(f"v_and_b32 v{ps+1}, s{sK2}, v{X[1]}")
    e(f"v_lshlrev_b32 v{X[2]}, 16, v{X[2]}")
    e(f"v_sub_f32 v{pd}, v{pd}, v{ps}")
    e(f"v_sub_f32 v{pd+1}, v{pd+1}, v{ps+1}")
    e(f"v_sub_f32 v{pd+2}, v{pd+2}, v{X[2]}")
    e(f"v_cvt_pk_bf16_f32 v{X[0]}, v{pd}, v{pd+1}")
    e(f"v_cvt_pk_bf16_f32 v{X[1]}, v{pd+2}, v{pd+2}     ; dz")
    e(f"v_lshlrev_b32 v{pd}, 16, v{X[0]}")
    e(f"v_and_b32 v{pd+1}, s{sK2}, v{X[0]}")
    e(f"v_lshlrev_b32 v{pd+2}, 16, v{X[1]}")
    e(f"v_lshl_add_u32 v{X[3]}, v{vj}, 1, v{row}")
    e(f"v_xor_b32 v{X[5]}, 16, v{X[3]}")
    if F16:
        e(f"v_cvt_pk_f16_f32 v{X[0]}, v{pd}, v{pd+1}")
        e(f"v_cvt_pk_f16_f32 v{X[1]}, v{pd+2}, v{pd+2}")
    e(f"ds_write_b16 v{X[3]}, v{vT[6]} offset:{REC+6}")
    e(f"ds_write_b16 v{X[5]}, v{X[0]} offset:{REC+6}")
    e(f"v_xor_b32 v{X[5]}, 32, v{X[3]}")
    e(f"v_xor_b32 v{X[3]}, 48, v{X[3]}")
    e(f"ds_write_b16_d16_hi v{X[5]}, v{X[0]} offset:{REC+6}")
    e(f"ds_write_b16 v{X[3]}, v{X[1]} offset:{REC+6}")
    for k in range(3):
        e(f"v_mul_f32 v{pd+k}, v{pd+k}, v{pd+k}")
    e(f"v_cvt_pk_bf16_f32 v{X[2]}, v{pd}, v{pd+1}")
    e(f"v_cvt_pk_bf16_f32 v{X[4]}, v{pd+2}, v{pd+2}")
    e(f"v_lshlrev_b32 v{pd}, 16, v{X[2]}")
    e(f"v_and_b32 v{pd+1}, s{sK2}, v{X[2]}")
    e(f"v_lshlrev_b32 v{pd+2}, 16, v{X[4]}")
    e(f"v_add_f32 v{pd}, v{pd}, v{pd+1}")
    e(f"v_add_f32 v{pd}, v{pd}, v{pd+2}")
    e(f"v_cvt_pk_bf16_f32 v{X[2]}, v{pd}, 0")
    if hi_half:
        e(f"v_and_or_b32 v{X[4]}, v{ea}, s{sK2}, v{X[2]}")
    else:
        e(f"v_lshl_or_b32 v{X[4]}, v{ea}, 16, v{X[2]}")
    e(f"ds_write_b32 v{row}, v{X[4]} offset:{REC}")
    e(f"ds_write_b16 v{row}, v{X[2]} offset:{REC+4}")
    e("s_mov_b64 exec, -1")
    lab(f"L_s2_done{tag}")
for k in range(4):
    stage2_pass(RCS[k], [RA+1, RB+1][k>>1], k & 1, PS[k], PD[k], VI[k], MK[k], "abcd"[k], VJ[k])
stamp("stage2 done", 13)
if BAL:
    e(f"s_cmp_eq_u32 s{sMODE}, 0")
    e("s_cbranch_scc0 L_bal_skip")
    lab("L_bal_chk")
    e("s_waitcnt lgkmcnt(0)")
    e(f"v_readfirstlane_b32 s{sT3}, v{vT[4]}")
    e("s_nop 1")
    e(f"s_bitcmp1_b32 s{sT3}, 8")
    e("s_cbranch_scc1 L_bal_ok")
    e("s_sleep 1")
    e(f"ds_read_b32 v{vT[4]}, v{vT[3]}")
    e("s_branch L_bal_chk")
    lab("L_bal_ok")
    bal_apply(sT3, "f")
    lab("L_bal_skip")
if PREB:
    assert PREF
    prep_post()
    fg_prep()
lab("L_ba")
stamp("placed+Q", 9)
if not NOPRIO: e(f"s_setprio {BAP}")
e(f"s_waitcnt lgkmcnt(0)")
e("s_barrier")
stamp("BA", 10)
if "B" in KO:
    e("s_waitcnt vmcnt(0)")
    e("s_branch L_end")

lab("L_post")
c("count of own group, OVF, lookups for tiles 0,1")
assert EARLY
if not PREB: prep_post()
def cnt_reads():
    e(f"ds_read_b32 v{vT[0]}, v{vT[0]}")
    e(f"ds_read_b32 v{vT[1]}, v{vT[1]}")
    return 2
e(f"s_cmp_eq_u32 s{sMODE}, 0")
e("s_cbranch_scc0 L_post_slow")
if PREF:
    e(f"s_cmp_eq_u32 s{sPREF}, 0")
    e("s_cbranch_scc1 L_post_g")
    cnt_reads()
    if PREFN == 1: dma_issue(LK[2], LK[3], sB1)
    e("s_branch L_post_fast")
    lab("L_post_g")
first_gathers(cnt_reads, prep=not PREB)
stamp("dma0 issued", 11)
e("s_branch L_post_fast")
lab("L_post_slow")
c("slow path: skip quickly if nothing was placed in this pass (no gather may be left in flight then)")
cnt_reads()
e(f"v_mov_b32 v{vT[7]}, {ALLOC}")
e(f"ds_read_b128 {vr(96,4)}, v{vT[7]}")
e(f"ds_read_b128 {vr(100,4)}, v{vT[7]} offset:16")
e("s_waitcnt lgkmcnt(0)")
e(f"v_or3_b32 v96, v96, v97, v98")
e(f"v_or3_b32 v96, v96, v99, v100")
e(f"v_or3_b32 v96, v96, v101, v102")
e(f"v_or_b32 v96, v96, v103")
e("s_nop 0")
e(f"v_readfirstlane_b32 s{sT0}, v96")
e(f"v_readfirstlane_b32 s{sCO}, v{vT[0]}")
e("s_nop 3")
e(f"s_cmp_lg_u32 s{sT0}, 0")
e("s_cbranch_scc1 L_post_sg")
e(f"s_mov_b32 s{sRETRY}, 0")
e("s_branch L_slow_adv")
lab("L_post_sg")
first_gathers()
e("s_branch L_post_go")
lab("L_post_fast")
e(f"s_waitcnt lgkmcnt({0 if EARLY else 4})")
e(f"v_readfirstlane_b32 s{sCO}, v{vT[0]}")
e(f"v_readfirstlane_b32 s{sT3}, v{vT[1]}           ; OVF")
e("s_nop 3")
e(f"s_cmp_lg_u32 s{sT3}, 0")
e("s_cbranch_scc1 L_slow_init")
lab("L_post_go")
e(f"s_min_u32 s{sCO}, s{sCO}, {CAP}")
e(f"s_add_u32 s{sNT}, s{sCO}, 15")
e(f"s_lshr_b32 s{sNT}, s{sNT}, 4")
if not EARLY:
    e("s_waitcnt lgkmcnt(2)")
    dma_issue(LK[0], LK[1], sB0)
    stamp("dma0 issued", 11)
if HOIST:
    e(f"s_cmp_eq_u32 s{sMODE}, 0")
    e("s_cbranch_scc1 L_noseg0")
id_consts(vT[0], vT[1])
c("SEG zero (first pass only)")
e(f"s_cmp_eq_u32 s{sNODE}, 0")
e("s_cbranch_scc1 L_noseg0")
e(f"s_mov_b32 s{sNODE}, 0")
seg_zero()
lab("L_noseg0")
c("BXF address: BXP + g*2048 + (64ch + l)*16   (l = 32hi + n)")
e(f"s_lshl_b32 s{sT0}, s{sG}, 11")
e(f"s_lshl_b32 s{sT1}, s{sCH2}, 10")
e(f"s_add_u32 s{sT0}, s{sT0}, s{sT1}")
e(f"s_add_u32 s{sT0}, s{sT0}, {BXP}")
e(f"v_lshlrev_b32 v{vT[0]}, 4, v{vL}")
e(f"v_add_u32 v{vT[0]}, s{sT0}, v{vT[0]}")
e(f"ds_read_b128 {vr(BXF,4)}, v{vT[0]}")
if not EARLY:
    e("s_waitcnt lgkmcnt(1)")
    dma_issue(LK[2], LK[3], sB1)
stamp("BB", 14)
_st[0] = 15
if not NOPRIO: e(f"s_setprio {PRIOS[0]}")
e(f"s_mov_b32 s{sU}, 0")
if XM:
    for i in range(4): e(f"v_mov_b32 v{124+i}, 0")
e("s_mov_b32 s6, 1.0")
e("s_mov_b32 s7, 1.0")
e(f"s_mov_b32 s{sREM}, s{sCO}")
e(f"s_mov_b32 s{sRT}, s{sNT}")
c("running pointers: vLKr / vLKr2 -> tile 2 ; working copies of vOD / vTRS")
e(f"v_add_u32 v{vLKr}, 2048, v{vLK}")
e(f"v_add_u32 v{vLKr2}, 2048, v{vLKr2}")
e(f"v_mov_b32 v{vODr}, v{vOD}")
e(f"v_mov_b32 v{vTRSr}, v{vTRS}")
e(f"v_xor_b32 v{vTRSr2}, 32, v{vTRS}")

def tile_body(buf):
    tag = f"t{buf}"
    sBUF = [sB0, sB1][buf]
    bo = buf * 2048
    c(f"---- tile (buffer {buf}) ----")
    e(f"s_cmp_gt_u32 s{sRT}, 2")
    e(f"s_cselect_b32 s{sK3}, 1, 0")
    e(f"s_cbranch_scc0 L_nolk{tag}")
    io = buf * 1024 if IMM else 0
    e(f"ds_read_u16 v{PA}, v{vLKr} offset:{io}")
    e(f"ds_read_u16 v{PB}, v{vLKr2} offset:{io+512}")
    lab(f"L_nolk{tag}")
    if "o" not in KO: e(f"ds_read_b128 {vr(OHD,4)}, v{vODr} offset:{io}")
    e(f"s_cmp_gt_u32 s{sRT}, 1")
    e(f"s_cbranch_scc1 L_w2{tag}")
    e("s_waitcnt vmcnt(0)")
    e(f"s_branch L_wd{tag}")
    lab(f"L_w2{tag}")
    e("s_waitcnt vmcnt(2)")
    lab(f"L_wd{tag}")
    if os.environ.get("TSTAMP"):
        e(f"s_memtime s[{sC4}:{sC5}]")
        e(f"s_min_u32 s3, s{sU}, 13")
        e(f"s_add_u32 m0, s3, 24")
        e(f"s_add_u32 s{sU}, s{sU}, 1")
        e("s_waitcnt lgkmcnt(0)")
        e(f"v_writelane_b32 v{VST}, s{sC4}, m0")
    if "q" not in KO:
      e(f"ds_read_b64_tr_b16 {vr(QF,2)}, v{vTRQ0} offset:{bo}")
      e(f"ds_read_b64_tr_b16 {vr(QF+2,2)}, v{vTRQ0} offset:{bo+512}")
      e(f"ds_read_b64_tr_b16 {vr(QF+4,2)}, v{vTRQ1} offset:{bo}")
      e(f"ds_read_b64_tr_b16 {vr(QF+6,2)}, v{vTRQ1} offset:{bo+512}")
    if "f" not in KO:
      e(f"ds_read_b64_tr_b16 {vr(SF,2)}, v{vTRSr} offset:{io}")
      e(f"ds_read_b64_tr_b16 {vr(SF+2,2)}, v{vTRSr2} offset:{io+512}")
    if buf == 1 or not IMM:
        st = 2048 if IMM else 1024
        e(f"v_add_u32 v{vLKr}, {st}, v{vLKr}")
        e(f"v_add_u32 v{vLKr2}, {st}, v{vLKr2}")
        e(f"v_add_u32 v{vODr}, v{vODM}, v{vODr}")
        e(f"v_add_u32 v{vTRSr}, {st}, v{vTRSr}")
        e(f"v_add_u32 v{vTRSr2}, {st}, v{vTRSr2}")
    e("s_waitcnt lgkmcnt(6)")
    mfma(ACC, OHD, BXF, "0")
    e("s_waitcnt lgkmcnt(4)")
    if "i" not in KO:
      mfma(ACC, ID, QF, vr(ACC,16))
      e("s_waitcnt lgkmcnt(2)")
      mfma(ACC, ID+4, QF+4, vr(ACC,16))
    for _ in range(XM):
        mfma(ACC, 124, QF+4*(_&1), vr(ACC,16))
    e(f"s_cmp_eq_u32 s{sK3}, 0")
    e(f"s_cbranch_scc1 L_nodma{tag}")
    if "d" not in KO: dma_issue(PA, PB, sBUF)
    lab(f"L_nodma{tag}")
    e("s_nop 7")
    e("s_nop 3")
    def blk(bb, t):
        a = ACC + 4*bb
        if "e" in KO:
            for i in range(4): e(f"v_mov_b32 v{t+i}, v{a+i}")
        else:
            for i in range(4): e(f"v_exp_f32 v{t+i}, v{a+i}")
        if PK & 1:
            if PK & 4:
                for i in (0, 2): e(f"v_pk_add_f32 {vr(t+i,2)}, {vr(t+i,2)}, 1.0 op_sel_hi:[1,0]")
            else:
                for i in (0, 2): e(f"v_pk_add_f32 {vr(t+i,2)}, {vr(t+i,2)}, s[6:7]")
        elif "a" not in KO:
            for i in range(4): e(f"v_add_f32 v{t+i}, 1.0, v{t+i}")
        if "r" not in KO:
            for i in range(4): e(f"v_rcp_f32 v{t+i}, v{t+i}")
        if PK & 2:
            for i in (0, 2): e(f"v_pk_mul_f32 {vr(t+i,2)}, {vr(a+i,2)}, {vr(t+i,2)}")
        elif "m" not in KO:
            for i in range(4): e(f"v_mul_f32 v{t+i}, v{a+i}, v{t+i}")
        e(f"v_cvt_pk_bf16_f32 v{MP+2*bb}, v{t}, v{t+1}")
        e(f"v_cvt_pk_bf16_f32 v{MP+2*bb+1}, v{t+2}, v{t+3}")
    def blk16(bbs):
        P = [(MP+2*bb+h, ACC+4*bb+2*h) for bb in bbs for h in range(2)]
        T = [TE+i for i in range(len(P))]
        for (m, a) in P: e(f"v_cvt_pk_f16_f32 v{m}, v{a}, v{a+1}")
        if "s" in KO: return
        if "h" in KO and bbs[0] == 1: return
        for (m, a), t in zip(P, T): e(f"v_exp_f16_sdwa v{t}, v{m} dst_sel:WORD_0 dst_unused:UNUSED_PAD src0_sel:WORD_0")
        for (m, a), t in zip(P, T): e(f"v_exp_f16_sdwa v{t}, v{m} dst_sel:WORD_1 dst_unused:UNUSED_PRESERVE src0_sel:WORD_1")
        for t in T: e(f"v_pk_add_f16 v{t}, v{t}, 1.0 op_sel_hi:[1,0]")
        for t in T: e(f"v_rcp_f16_sdwa v{t}, v{t} dst_sel:WORD_0 dst_unused:UNUSED_PRESERVE src0_sel:WORD_0")
        for t in T: e(f"v_rcp_f16_sdwa v{t}, v{t} dst_sel:WORD_1 dst_unused:UNUSED_PRESERVE src0_sel:WORD_1")
        for (m, a), t in zip(P, T): e(f"v_pk_mul_f16 v{m}, v{m}, v{t}")
    if F16: blk16((0, 2))
    else:
        blk(0, TE); blk(2, TE+4)
    e(f"s_cmp_le_u32 s{sREM}, 8")
    e(f"s_cbranch_scc1 L_skip{tag}")
    if F16: blk16((1, 3))
    else:
        blk(1, TE); blk(3, TE+4)
    e(f"s_branch L_blk{tag}")
    lab(f"L_skip{tag}")
    for r in (2, 3, 6, 7): e(f"v_mov_b32 v{MP+r}, 0")
    lab(f"L_blk{tag}")
    e("s_waitcnt lgkmcnt(0)")
    e("s_nop 1")
    if F16:
        e(f"v_mfma_f32_32x32x16_f16 {vr(SEG,16)}, {vr(MP,4)}, {vr(SF,4)}, {vr(SEG,16)}")
        e(f"v_mfma_f32_32x32x16_f16 {vr(SEG+16,16)}, {vr(MP+4,4)}, {vr(SF,4)}, {vr(SEG+16,16)}")
    else:
        mfma(SEG, MP, SF, vr(SEG,16))
        mfma(SEG+16, MP+4, SF, vr(SEG+16,16))
    e(f"s_sub_u32 s{sREM}, s{sREM}, 16")
    e(f"s_sub_u32 s{sRT}, s{sRT}, 1")
    if not NOPRIO:
        e(f"s_cmp_gt_u32 s{sRT}, 3")
        e(f"s_cbranch_scc1 L_pr{tag}")
        e(f"s_setprio {PRIOS[1]}")
        e(f"s_cmp_eq_u32 s{sRT}, 3")
        e(f"s_cbranch_scc1 L_pr{tag}")
        e(f"s_setprio {PRIOS[2]}")
        e(f"s_cmp_eq_u32 s{sRT}, 2")
        e(f"s_cbranch_scc1 L_pr{tag}")
        e(f"s_setprio {PRIOS[3]}")
        lab(f"L_pr{tag}")

e(f"s_cmp_eq_u32 s{sRT}, 0")
e("s_cbranch_scc1 L_tiles_done")
lab("L_tile_loop")
tile_body(0)
e(f"s_cmp_eq_u32 s{sRT}, 0")
e("s_cbranch_scc1 L_tiles_done")
tile_body(1)
e(f"s_cmp_lg_u32 s{sRT}, 0")
e("s_cbranch_scc1 L_tile_loop")
lab("L_tiles_done")
e("s_waitcnt vmcnt(0)")
if not NOPRIO: e("s_setprio 3")
stamp("tiles done")
if "T" in KO:
    e("s_branch L_end")
e(f"s_cmp_eq_u32 s{sMODE}, 0")
e("s_cbranch_scc0 L_slow_next")

lab("L_final")
WFL = 80
ROW = 16
HRES = 112
RX = [52, 56, 60, 120]
vN = vT[1]; vHI = vT[2]; vOFF = vT[3]; vRD_ = vT[4]
e(f"s_memrealtime s[6:7]")
e(f"v_and_b32 v{vN}, 31, v{vL}")
e(f"v_lshrrev_b32 v{vHI}, 5, v{vL}")
c("late frags: quads 0, 1: WH2F slice ct ; quad 2: wx frags")
def wh2f_loads():
    e(f"s_lshl_b32 s{sT0}, s{sCT}, 13")
    e(f"s_add_u32 s{sT0}, s{sT0}, {WH2F}")
    e(f"s_add_u32 s{sT1}, s{sT0}, 4096")
    e(f"v_lshlrev_b32 v{vT[0]}, 4, v{vL}")
    for s_ in range(8):
        e(f"buffer_load_dwordx4 {vr(WFL+4*s_,4)}, v{vT[0]}, {srd(S_WS)}, s{[sT0,sT1][s_>>2]} offen offset:{(s_%4)*1024}{WSC}")
def wx_loads():
    e(f"v_lshlrev_b32 v{vT[0]}, 4, v{vHI}")
    for s_ in range(8):
        e(f"buffer_load_dwordx4 {vr(WFL+4*s_,4)}, v{vT[0]}, {srd(S_WX)}, 0 offen offset:{s_*32}")
if FLO:
    assert NL and FL3 and FINR == 2
    e(f"s_cmp_eq_u32 s{sQ}, 3")
    e("s_cbranch_scc1 L_f_flush3")
    e(f"s_cmp_eq_u32 s{sQ}, {QA}")
    e("s_cbranch_scc0 L_f_flush")
    wh2f_loads()
else:
    e(f"s_cmp_eq_u32 s{sQ}, {QC}")
    e("s_cbranch_scc1 L_f_wx")
    e(f"s_cmp_eq_u32 s{sQ}, 3")
    e(f"s_cbranch_scc1 {'L_f_flush3' if NL and FL3 else 'L_f_flush'}")
    wh2f_loads()
    e("s_branch L_f_flush")
    lab("L_f_wx")
    wx_loads()
lab("L_f_flush")
stamp("flush start", 49)
c("flush: lane (f=n, hi): addr = QTw + h*2048 + f*64 + ((bb ^ ((f>>2)&3) ^ (g&3))<<4) + hi*8")
if NL:
    assert FINR == 2
    flush_addr(vT[5], vN, vHI, vT[6], vT[7])
    if FL3:
        e("s_branch L_f_wr")
        lab("L_f_flush3")
        stamp("flush start", 49)
        e(f"v_mov_b32 v{vT[5]}, v{vFRD}")
        lab("L_f_wr")
    e(f"s_mov_b32 exec_lo, 0xf8f8f8f8")
    e(f"s_mov_b32 exec_hi, 0xf8f8f8f8")
    if not FL3: e("s_nop 3")
else:
    e(f"s_and_b32 s{sT0}, s{sG}, 3")
    e(f"v_bfe_u32 v{vT[5]}, v{vN}, 2, 2")
    e(f"v_xor_b32 v{vT[5]}, s{sT0}, v{vT[5]}")
    e(f"v_lshlrev_b32 v{vT[5]}, 4, v{vT[5]}")
    e(f"v_lshl_add_u32 v{vT[5]}, v{vN}, 6, v{vT[5]}")
    e(f"v_lshl_add_u32 v{vT[5]}, v{vHI}, 3, v{vT[5]}")
    e(f"v_add_u32 v{vT[5]}, s{sB0}, v{vT[5]}")
    e("s_nop 7")
    e("s_nop 3")
if FL3 and NL:
    for bb in range(1, 4): e(f"v_xor_b32 v{ACC+bb}, {bb<<4}, v{vT[5]}")
    for h in range(2):
        for bb in range(4):
            r0 = SEG + 16*h + 4*bb
            e(f"v_cvt_pk_bf16_f32 v{r0}, v{r0}, v{r0+1}")
            e(f"v_cvt_pk_bf16_f32 v{r0+1}, v{r0+2}, v{r0+3}")
            if bb: e(f"ds_write_b64 v{ACC+bb-1 if bb > 1 else vT[5]}, {vr(r0-4,2)} offset:{h*2048}")
            elif h: e(f"ds_write_b64 v{ACC+3}, {vr(r0-4,2)} offset:0")
    e(f"ds_write_b64 v{ACC+3}, {vr(SEG+28,2)} offset:2048")
else:
  for h in range(2):
      for bb in range(4):
          r0 = SEG + 16*h + 4*bb
          e(f"v_cvt_pk_bf16_f32 v{r0}, v{r0}, v{r0+1}")
          e(f"v_cvt_pk_bf16_f32 v{r0+1}, v{r0+2}, v{r0+3}")
          if "W" in KO: pass
          elif bb == 0:
              e(f"ds_write_b64 v{vT[5]}, {vr(r0,2)} offset:{h*2048}")
          else:
              e(f"v_xor_b32 v{vT[6]}, {bb<<4}, v{vT[5]}")
              e(f"ds_write_b64 v{vT[6]}, {vr(r0,2)} offset:{h*2048}")
if NL: e("s_mov_b64 exec, -1")
stamp("flush written", 50)
if FINR == 2:
    e(f"s_mul_i32 s{sNT}, s2, 40")
    e(f"s_cmp_eq_u32 s{sQ}, {QC}")
    e("s_cbranch_scc1 L_f_roleC")
    e(f"s_cmp_eq_u32 s{sQ}, {QB}")
    e("s_cbranch_scc1 L_f_roleB")
    e(f"s_cmp_eq_u32 s{sQ}, {QA}")
    e("s_cbranch_scc0 L_f_bar")
    for bb in range(4):
        e(f"v_xor_b32 v{vT[7]}, {bb<<4}, v{vFRES}")
        e(f"ds_read_b64 {vr(HRES+2*bb,2)}, v{vT[7]}")
    if FPK:
        e(f"s_mov_b32 s{sK3}, 0xffff0000")
        for bb in range(4):
            e(f"s_waitcnt lgkmcnt({3-bb})")
            e(f"v_lshlrev_b32 v{RX[bb]}, 16, v{HRES+2*bb}")
            e(f"v_and_b32 v{RX[bb]+1}, s{sK3}, v{HRES+2*bb}")
            e(f"v_lshlrev_b32 v{RX[bb]+2}, 16, v{HRES+2*bb+1}")
            e(f"v_and_b32 v{RX[bb]+3}, s{sK3}, v{HRES+2*bb+1}")
    e("s_branch L_f_bar")
    lab("L_f_roleB")
    if FLO: wh2f_loads()
    for i in range(4):
        e(f"v_xor_b32 v{vT[5]}, {i<<4}, v{vFRES}")
        e(f"ds_read_u16 v{HRES+i}, v{vT[5]} offset:{i*256}")
    if FPK:
        for i in range(4):
            e(f"s_waitcnt lgkmcnt({3-i})")
            e(f"v_lshlrev_b32 v{HRES+i}, 16, v{HRES+i}")
    if FBP != 3: e(f"s_setprio {FBP}")
    e("s_branch L_f_bar")
    lab("L_f_roleC")
    if FLO: wx_loads()
    if FBP != 3: e(f"s_setprio {FBP}")
    vNODE = vT[5]; vCMP = vT[6]
    rolec_node(vN, vNODE, vCMP, vT[0], vT[7])
    c("role C: pos residual PTF[node][comp-1] ; out offset (40b + node)*6 + (comp-1)*2")
    e(f"v_lshlrev_b32 v{vT[0]}, 4, v{vNODE}")
    e(f"v_lshl_add_u32 v{vT[0]}, v{vCMP}, 2, v{vT[0]}")
    e(f"v_add_u32 v{vT[0]}, {PTF-4}, v{vT[0]}")
    e(f"ds_read_b32 v{HRES}, v{vT[0]}")
    e(f"v_add_u32 v{vOFF}, s{sNT}, v{vNODE}")
    e(f"v_mul_u32_u24 v{vOFF}, 6, v{vOFF}")
    e(f"v_lshl_add_u32 v{vOFF}, v{vCMP}, 1, v{vOFF}")
    e(f"v_subrev_u32 v{vOFF}, 2, v{vOFF}")
if not FINR:
    c("per-role (node, comp) -> g, f ; addr = QT + g*8192 + f*64 + ((hi ^ ((f>>2)&3) ^ (g&3))<<4)")
    vNODE = vT[5]; vCMP = vT[6]
    def node_addr(dst, node, cmp_, t0, t1):
        e(f"v_mul_u32_u24 v{t1}, 52, v{node}")
        e(f"v_lshrrev_b32 v{t1}, 8, v{t1}             ; g")
        e(f"v_mul_u32_u24 v{t0}, 5, v{t1}")
        e(f"v_sub_u32 v{t0}, v{node}, v{t0}          ; j")
        if cmp_ is not None:
            e(f"v_lshl_add_u32 v{t0}, v{cmp_}, 3, v{t0}")
        e(f"v_add_u32 v{t0}, 3, v{t0}                 ; f")
        e(f"v_bfe_u32 v{dst}, v{t0}, 2, 2")
        e(f"v_xor_b32 v{dst}, v{dst}, v{vHI}")
        e(f"v_lshlrev_b32 v{t0}, 6, v{t0}")
        e(f"v_lshl_add_u32 v{t0}, v{t1}, 13, v{t0}")
        e(f"v_and_b32 v{t1}, 3, v{t1}")
        e(f"v_xor_b32 v{dst}, v{dst}, v{t1}")
        e(f"v_lshl_add_u32 v{dst}, v{dst}, 4, v{t0}")
        e(f"v_add_u32 v{dst}, {QT}, v{dst}")
    e(f"s_mul_i32 s{sK3}, s2, 40")
    e(f"s_cmp_eq_u32 s{sQ}, {QC}")
    e("s_cbranch_scc1 L_f_roleC")
    e(f"s_cmp_eq_u32 s{sQ}, {QB}")
    e("s_cbranch_scc1 L_f_roleB")
    e(f"s_cmp_eq_u32 s{sQ}, {QA}")
    e("s_cbranch_scc0 L_f_bar")
    c("role A (nodes n)")
    node_addr(vRD_, vN, None, vT[0], vT[7])
    c("role A residual: h[node n][32ct + 8bb + 4hi..+3]: OWN + n*256 + (((ct*4+bb) ^ (n&15))<<4) + hi*8")
    e(f"v_and_b32 v{vT[0]}, 15, v{vN}")
    e(f"s_lshl_b32 s{sT0}, s{sCT}, 2")
    e(f"v_xor_b32 v{vT[0]}, s{sT0}, v{vT[0]}")
    e(f"v_lshlrev_b32 v{vT[0]}, 4, v{vT[0]}")
    e(f"v_lshl_add_u32 v{vT[0]}, v{vN}, 8, v{vT[0]}")
    e(f"v_lshl_add_u32 v{vT[0]}, v{vHI}, 3, v{vT[0]}")
    e(f"v_add_u32 v{vT[0]}, {OWN}, v{vT[0]}")
    for bb in range(4):
        e(f"v_xor_b32 v{vT[7]}, {bb<<4}, v{vT[0]}")
        e(f"ds_read_b64 {vr(HRES+2*bb,2)}, v{vT[7]}")
    e(f"v_add_u32 v{vOFF}, s{sK3}, v{vN}")
    e(f"v_lshlrev_b32 v{vOFF}, 8, v{vOFF}")
    e(f"v_lshl_add_u32 v{vOFF}, v{vHI}, 3, v{vOFF}")
    e(f"s_lshl_b32 s{sT0}, s{sCT}, 6")
    e(f"v_add_u32 v{vOFF}, s{sT0}, v{vOFF}")
    e("s_branch L_f_bar")
    lab("L_f_roleB")
    c("role B (nodes 32 + (n&7))")
    e(f"v_and_b32 v{vNODE}, 7, v{vN}")
    e(f"v_add_u32 v{vNODE}, 32, v{vNODE}")
    node_addr(vRD_, vNODE, None, vT[0], vT[7])
    c("role B residual: rows 32+4hi+i, col 32ct+n: OWN + row*256 + (((ct*4 + (n>>3)) ^ (row&15))<<4) + (n&7)*2")
    e(f"v_lshrrev_b32 v{vT[0]}, 3, v{vN}")
    e(f"s_lshl_b32 s{sT0}, s{sCT}, 2")
    e(f"v_add_u32 v{vT[0]}, s{sT0}, v{vT[0]}          ; chunk")
    e(f"v_lshlrev_b32 v{vT[7]}, 2, v{vHI}             ; 4hi")
    e(f"v_xor_b32 v{vT[0]}, v{vT[0]}, v{vT[7]}")
    e(f"v_lshlrev_b32 v{vT[0]}, 4, v{vT[0]}")
    e(f"v_lshl_add_u32 v{vT[0]}, v{vT[7]}, 8, v{vT[0]}   ; + 4hi*256")
    e(f"v_and_b32 v{vT[5]}, 7, v{vN}")
    e(f"v_lshl_add_u32 v{vT[0]}, v{vT[5]}, 1, v{vT[0]}")
    e(f"v_add_u32 v{vT[0]}, {OWN + 32*256}, v{vT[0]}")
    for i in range(4):
        e(f"v_xor_b32 v{vT[5]}, {i<<4}, v{vT[0]}")
        e(f"ds_read_u16 v{HRES+i}, v{vT[5]} offset:{i*256}")
    e(f"s_add_u32 s{sT0}, s{sK3}, 32")
    e(f"v_add_u32 v{vOFF}, s{sT0}, v{vT[7]}")
    e(f"v_lshlrev_b32 v{vOFF}, 8, v{vOFF}")
    e(f"v_lshl_add_u32 v{vOFF}, v{vN}, 1, v{vOFF}")
    e(f"s_lshl_b32 s{sT0}, s{sCT}, 6")
    e(f"v_add_u32 v{vOFF}, s{sT0}, v{vOFF}")
    e("s_branch L_f_bar")
    lab("L_f_roleC")
    c("role C: n' = min(n,29); idx = 30ct + n' ; G = idx/15 ; r = idx%15 ; c = r/5 ; j = r%5 ; node = 5G + j ; comp = c+1")
    e(f"v_min_u32 v{vT[0]}, 29, v{vN}")
    e(f"v_cmp_lt_u32 vcc, 14, v{vT[0]}")
    e(f"v_cndmask_b32 v{vT[7]}, 0, 1, vcc               ; G&1")
    e(f"v_mul_u32_u24 v{vNODE}, 15, v{vT[7]}")
    e(f"v_sub_u32 v{vT[0]}, v{vT[0]}, v{vNODE}          ; r")
    e(f"v_mul_u32_u24 v{vCMP}, 52, v{vT[0]}")
    e(f"v_lshrrev_b32 v{vCMP}, 8, v{vCMP}              ; c")
    e(f"v_mul_u32_u24 v{vNODE}, 5, v{vCMP}")
    e(f"v_sub_u32 v{vT[0]}, v{vT[0]}, v{vNODE}          ; j")
    e(f"s_lshl_b32 s{sT0}, s{sCT}, 1")
    e(f"v_add_u32 v{vT[7]}, s{sT0}, v{vT[7]}            ; G")
    e(f"v_mad_u32_u24 v{vNODE}, v{vT[7]}, 5, v{vT[0]}")
    e(f"v_add_u32 v{vCMP}, 1, v{vCMP}")
    node_addr(vRD_, vNODE, vCMP, vT[0], vT[7])
    c("role C: pos residual PTF[node][comp-1] ; out offset (40b + node)*6 + (comp-1)*2")
    e(f"v_lshlrev_b32 v{vT[0]}, 4, v{vNODE}")
    e(f"v_lshl_add_u32 v{vT[0]}, v{vCMP}, 2, v{vT[0]}")
    e(f"v_add_u32 v{vT[0]}, {PTF-4}, v{vT[0]}")
    e(f"ds_read_b32 v{HRES}, v{vT[0]}")
    e(f"v_add_u32 v{vOFF}, s{sK3}, v{vNODE}")
    e(f"v_mul_u32_u24 v{vOFF}, 6, v{vOFF}")
    e(f"v_lshl_add_u32 v{vOFF}, v{vCMP}, 1, v{vOFF}")
    e(f"v_subrev_u32 v{vOFF}, 2, v{vOFF}")

lab("L_f_bar")
e("s_waitcnt lgkmcnt(0)")
stamp("at bar", 51)
c("residency guard: this wave's stamp must be older than the accept window of any later launch")
lab("L_guard")
e(f"s_sub_u32 s{sT0}, s6, s{sTW}")
e(f"s_cmp_ge_u32 s{sT0}, {GUARD}")
e("s_cbranch_scc1 L_guard_ok")
e("s_sleep 8")
e("s_memrealtime s[6:7]")
e("s_waitcnt lgkmcnt(0)")
e("s_branch L_guard")
lab("L_guard_ok")
e("s_barrier")
stamp("final bar")
e(f"s_cmp_eq_u32 s{sQ}, 3")
e("s_cbranch_scc1 L_end")
if FINR: vRD_ = vFRD
e(f"v_xor_b32 v{vT[0]}, 32, v{vRD_}")
for s_ in range(8):
    if "R" not in KO: e(f"ds_read_b128 {vr(ROW+4*s_,4)}, v{[vRD_, vT[0]][s_&1]} offset:{(s_>>1)*2048}")
e(f"s_mov_b32 s{sK2}, 0x{NLN2:08x}")
e(f"s_mul_i32 s{sNT}, s2, 40")
e(f"s_mov_b32 s{sK3}, 0xffff0000")
if FPK & 2:
    e("s_mov_b32 s6, 1.0")
    e("s_mov_b32 s7, 1.0")
    e(f"s_mov_b32 s{sPA}, 0x{NLN2:08x}")
    e(f"s_mov_b32 s{sPA+1}, 0x{NLN2:08x}")
if FINR != 1: e("s_waitcnt vmcnt(0)")
vOFFC = vOFF
if FINR == 2: vOFF = vFOFF
e(f"s_cmp_eq_u32 s{sQ}, {QC}")
e("s_cbranch_scc1 L_f_C")
e(f"s_cmp_eq_u32 s{sQ}, {QB}")
e("s_cbranch_scc1 L_f_B")
c("role A")
NX = 0
if FINR == 1:
    NX = 4
    c("role A residual: h[node n][32ct + 8bb + 4hi..+3]: OWN + n*256 + (((ct*4+bb) ^ (n&15))<<4) + hi*8")
    e(f"v_and_b32 v{vT[0]}, 15, v{vN}")
    e(f"s_lshl_b32 s{sT0}, s{sCT}, 2")
    e(f"v_xor_b32 v{vT[0]}, s{sT0}, v{vT[0]}")
    e(f"v_lshlrev_b32 v{vT[0]}, 4, v{vT[0]}")
    e(f"v_lshl_add_u32 v{vT[0]}, v{vN}, 8, v{vT[0]}")
    e(f"v_lshl_add_u32 v{vT[0]}, v{vHI}, 3, v{vT[0]}")
    e(f"v_add_u32 v{vT[0]}, {OWN}, v{vT[0]}")
    for bb in range(4):
        e(f"v_xor_b32 v{vT[7]}, {bb<<4}, v{vT[0]}")
        e(f"ds_read_b64 {vr(HRES+2*bb,2)}, v{vT[7]}")
    e(f"v_add_u32 v{vOFF}, s{sNT}, v{vN}")
    e(f"v_lshlrev_b32 v{vOFF}, 8, v{vOFF}")
    e(f"v_lshl_add_u32 v{vOFF}, v{vHI}, 3, v{vOFF}")
    e(f"s_lshl_b32 s{sT0}, s{sCT}, 6")
    e(f"v_add_u32 v{vOFF}, s{sT0}, v{vOFF}")
    e("s_waitcnt vmcnt(0)")
stamp("A vm", 40)
for s_ in range(8):
    e(f"s_waitcnt lgkmcnt({7-s_+NX})")
    mfma(FACC, WFL+4*s_, ROW+4*s_, vr(FACC,16))
if FINR == 1: e("s_waitcnt lgkmcnt(0)")
if FPR: e(f"s_setprio {FPR-1}")
stamp("A mfma", 41)
def final_silu(a, n, T):
    for i in range(n): e(f"v_exp_f32 v{T+i}, v{a+i}")
    if FPK & 2:
        for i in range(0, n, 2): e(f"v_pk_add_f32 {vr(T+i,2)}, {vr(T+i,2)}, s[6:7]")
        for i in range(n): e(f"v_rcp_f32 v{T+i}, v{T+i}")
        for i in range(0, n, 2): e(f"v_pk_mul_f32 {vr(a+i,2)}, {vr(a+i,2)}, {vr(T+i,2)}")
        return
    for i in range(n): e(f"v_add_f32 v{T+i}, 1.0, v{T+i}")
    for i in range(n): e(f"v_rcp_f32 v{T+i}, v{T+i}")
    for i in range(n): e(f"v_mul_f32 v{a+i}, v{a+i}, v{T+i}")
X = 48
e("s_nop 7")
e("s_nop 3")
for i in range(4):
    a = FACC + 4*i
    final_silu(a, 4, X)
    if i == 0: stamp("A silu0", 42)
    if FPK:
        if FPK & 2:
            for k in (0, 2): e(f"v_pk_fma_f32 {vr(a+k,2)}, {vr(a+k,2)}, s[{sPA}:{sPA+1}], {vr(RX[i]+k,2)}")
        else:
            for k in range(4): e(f"v_fma_f32 v{a+k}, v{a+k}, s{sK2}, v{RX[i]+k}")
        e(f"v_cvt_pk_bf16_f32 v{a}, v{a}, v{a+1}")
        e(f"v_cvt_pk_bf16_f32 v{a+1}, v{a+2}, v{a+3}")
        e(f"buffer_store_dwordx2 {vr(a,2)}, v{vOFF}, {srd(S_O0)}, 0 offen offset:{i*16}{OSC}")
        continue
    e(f"v_lshlrev_b32 v{X}, 16, v{HRES+2*i}")
    e(f"v_and_b32 v{X+1}, s{sK3}, v{HRES+2*i}")
    e(f"v_lshlrev_b32 v{X+2}, 16, v{HRES+2*i+1}")
    e(f"v_and_b32 v{X+3}, s{sK3}, v{HRES+2*i+1}")
    for k in range(4): e(f"v_fma_f32 v{a+k}, v{a+k}, s{sK2}, v{X+k}")
    e(f"v_cvt_pk_bf16_f32 v{X+4+2*i}, v{a}, v{a+1}")
    e(f"v_cvt_pk_bf16_f32 v{X+5+2*i}, v{a+2}, v{a+3}")
    e(f"buffer_store_dwordx2 {vr(X+4+2*i,2)}, v{vOFF}, {srd(S_O0)}, 0 offen offset:{i*16}{OSC}")
e("s_branch L_end")
lab("L_f_B")
if FBS: e(f"s_sleep {FBS}")
c("role B: rows 32 + 4hi + r")
stamp("B start", 43)
for i in range(4): e(f"v_mov_b32 v{ACC+i}, v{FB+i}")
if FINR == 1:
    c("role B residual: rows 32+4hi+i, col 32ct+n: OWN + row*256 + (((ct*4 + (n>>3)) ^ (row&15))<<4) + (n&7)*2")
    e(f"v_lshrrev_b32 v{vT[0]}, 3, v{vN}")
    e(f"s_lshl_b32 s{sT0}, s{sCT}, 2")
    e(f"v_add_u32 v{vT[0]}, s{sT0}, v{vT[0]}          ; chunk")
    e(f"v_lshlrev_b32 v{vT[7]}, 2, v{vHI}             ; 4hi")
    e(f"v_xor_b32 v{vT[0]}, v{vT[0]}, v{vT[7]}")
    e(f"v_lshlrev_b32 v{vT[0]}, 4, v{vT[0]}")
    e(f"v_lshl_add_u32 v{vT[0]}, v{vT[7]}, 8, v{vT[0]}   ; + 4hi*256")
    e(f"v_and_b32 v{vT[5]}, 7, v{vN}")
    e(f"v_lshl_add_u32 v{vT[0]}, v{vT[5]}, 1, v{vT[0]}")
    e(f"v_add_u32 v{vT[0]}, {OWN + 32*256}, v{vT[0]}")
    for i in range(4):
        e(f"v_xor_b32 v{vT[5]}, {i<<4}, v{vT[0]}")
        e(f"ds_read_u16 v{HRES+i}, v{vT[5]} offset:{i*256}")
    e(f"s_add_u32 s{sT0}, s{sNT}, 32")
    e(f"v_add_u32 v{vOFF}, s{sT0}, v{vT[7]}")
    e(f"v_lshlrev_b32 v{vOFF}, 8, v{vOFF}")
    e(f"v_lshl_add_u32 v{vOFF}, v{vN}, 1, v{vOFF}")
    e(f"s_lshl_b32 s{sT0}, s{sCT}, 6")
    e(f"v_add_u32 v{vOFF}, s{sT0}, v{vOFF}")
    e("s_waitcnt vmcnt(0)")
e("s_nop 1")
for s_ in range(8):
    e(f"s_waitcnt lgkmcnt({7-s_+NX})")
    mfma(ACC, ROW+4*s_, WFL+4*s_, vr(ACC,16))
if FINR == 1: e("s_waitcnt lgkmcnt(0)")
Y = 64
stamp("B mfma", 44)
e("s_nop 7")
e("s_nop 3")
final_silu(ACC, 4, Y)
if FPK:
    if FPK & 2:
        for k in (0, 2): e(f"v_pk_fma_f32 {vr(ACC+k,2)}, {vr(ACC+k,2)}, s[{sPA}:{sPA+1}], {vr(HRES+k,2)}")
    else:
        for k in range(4): e(f"v_fma_f32 v{ACC+k}, v{ACC+k}, s{sK2}, v{HRES+k}")
    for k in (0, 2): e(f"v_cvt_pk_bf16_f32 v{Y+8+k}, v{ACC+k}, v{ACC+k+1}")
    for r in range(4):
        e(f"buffer_store_short{'_d16_hi' if r & 1 else ''} v{Y+8+(r&2)}, v{vOFF}, {srd(S_O0)}, 0 offen offset:{r*256}{OSC}")
else:
  for k in range(4):
    e(f"v_lshlrev_b32 v{Y+k}, 16, v{HRES+k}")
  for k in range(4):
    e(f"v_fma_f32 v{ACC+k}, v{ACC+k}, s{sK2}, v{Y+k}")
  for k in range(4):
    e(f"v_cvt_pk_bf16_f32 v{Y+8+k}, v{ACC+k}, v{ACC+k}")
  for r in range(4):
    e(f"buffer_store_short v{Y+8+r}, v{vOFF}, {srd(S_O0)}, 0 offen offset:{r*256}{OSC}")
e("s_branch L_end")
lab("L_f_C")
if FCS: e(f"s_sleep {FCS}")
stamp("C start", 47)
vOFF = vOFFC
if FINR == 1:
    vNODE = vT[5]; vCMP = vT[6]
    rolec_node(vN, vNODE, vCMP, vT[0], vT[7])
    c("role C: pos residual PTF[node][comp-1] ; out offset (40b + node)*6 + (comp-1)*2")
    e(f"v_lshlrev_b32 v{vT[0]}, 4, v{vNODE}")
    e(f"v_lshl_add_u32 v{vT[0]}, v{vCMP}, 2, v{vT[0]}")
    e(f"v_add_u32 v{vT[0]}, {PTF-4}, v{vT[0]}")
    e(f"ds_read_b32 v{HRES}, v{vT[0]}")
    e(f"v_add_u32 v{vOFF}, s{sNT}, v{vNODE}")
    e(f"v_mul_u32_u24 v{vOFF}, 6, v{vOFF}")
    e(f"v_lshl_add_u32 v{vOFF}, v{vCMP}, 1, v{vOFF}")
    e(f"v_subrev_u32 v{vOFF}, 2, v{vOFF}")
    e("s_waitcnt vmcnt(0)")
for s_ in range(8):
    e(f"s_waitcnt lgkmcnt({7-s_+(1 if FINR == 1 else 0)})")
    mfma(ACC, WFL+4*s_, ROW+4*s_, "0" if s_ == 0 else vr(ACC,16))
if FINR == 1: e("s_waitcnt lgkmcnt(0)")
stamp("C mfma", 48)
e("s_nop 7")
e("s_nop 3")
e(f"v_fma_f32 v{ACC}, v{ACC}, s{sK2}, v{HRES}")
e(f"v_cvt_pk_bf16_f32 v{ACC}, v{ACC}, v{ACC}")
e(f"s_mov_b32 exec_lo, 0x{0x7fff7fff if NL else 0x3fffffff:x}")
e(f"s_mov_b32 exec_hi, 0")
e(f"buffer_store_short v{ACC}, v{vOFF}, {srd(S_O1)}, 0 offen{OSC}")
lab("L_end")
stamp("end")
stamp_flush()
lab("L_end2")
e("s_endpgm")

def zero_lds(Z, vtid):
    c("zero REC (69632 B = 4352 x 16 B) and counters (64 B)")
    for i in range(4): e(f"v_mov_b32 v{Z+i}, 0")
    e(f"v_lshlrev_b32 v{vT[0]}, 4, v{vtid}")
    for i in range(4):
        e(f"ds_write_b128 v{vT[0]}, {vr(Z,4)} offset:{i*16384}")
    e(f"v_add_u32 v{vT[1]}, {65536}, v{vT[0]}")
    e(f"v_add_u32 v{vT[2]}, {CTR - 256*16}, v{vT[0]}")
    e(f"v_cmp_gt_u32 vcc, 256, v{vtid}")
    e(f"v_cndmask_b32 v{vT[1]}, v{vT[2]}, v{vT[1]}, vcc")
    e(f"v_cmp_gt_u32 vcc, 260, v{vtid}")
    e("s_mov_b64 exec, vcc")
    e(f"ds_write_b128 v{vT[1]}, {vr(Z,4)}")
    e("s_mov_b64 exec, -1")
lab("L_slow_init")
e(f"s_mov_b32 s{sPREF}, 0")
e(f"s_mov_b32 s{sMODE}, 1")
e(f"s_mov_b32 s{sCH}, 0")
e(f"s_mov_b32 s{sRETRY}, 0")
e(f"s_and_b32 s{sT3}, s{sT3}, 2")
e(f"s_cmp_eq_u32 s{sT3}, 0")
e("s_cbranch_scc1 L_slow_pass")
c("fallback: the hand-off timed out -> this workgroup computes all of Q and the WH2 fragments itself")
c("(waves 0..7 keep FACC (64..79) / FB (120..123); waves 8..15 run the GEMM blocks)")
e(f"s_mov_b32 s{sU}, 0")
lab("L_fb_loop")
e("s_waitcnt vmcnt(0) lgkmcnt(0)")
e("s_barrier")
e(f"s_cmp_lt_u32 s{sW}, 8")
e("s_cbranch_scc1 L_fb_idle")
gemm_role("fb", sU, True)
e("s_branch L_fb_next")
lab("L_fb_idle")
e("s_barrier")
lab("L_fb_next")
e(f"s_add_u32 s{sU}, s{sU}, 1")
e(f"s_cmp_lt_u32 s{sU}, {NG}")
e("s_cbranch_scc1 L_fb_loop")
e("s_waitcnt vmcnt(0) lgkmcnt(0)")
e("s_barrier")
e(f"s_cmp_ge_u32 s{sW}, 4")
e("s_cbranch_scc1 L_slow_pass")
wprep_role("fb", True)
e("s_branch L_slow_pass")
lab("L_slow_next")
e(f"v_mov_b32 v{vT[0]}, {PEND}")
e(f"ds_read_b32 v{vT[1]}, v{vT[0]}")
e("s_waitcnt lgkmcnt(0)")
e(f"v_readfirstlane_b32 s{sRETRY}, v{vT[1]}")
e("s_nop 3")
e(f"s_cmp_lg_u32 s{sRETRY}, 0")
e("s_cbranch_scc1 L_slow_pass")
lab("L_slow_adv")
e(f"s_add_u32 s{sCH}, s{sCH}, 1")
e(f"s_cmp_ge_u32 s{sCH}, 250")
e("s_cbranch_scc1 L_slow_fin")
lab("L_slow_pass")
e("s_waitcnt vmcnt(0) lgkmcnt(0)")
e("s_barrier")
e(f"s_lshl_b32 s{sT0}, s{sW}, 6")
e(f"v_add_u32 v{tid}, s{sT0}, v{vL}")
zero_lds(116, tid)
c("raw edge e = 640*ch + t (t<640)")
qD, qS, qB, qK, qR, qA = 104, 105, 106, 107, 108, 109
RC = RA; vEA = RA + 1; vI0 = VI[0]; PS0 = PS[0]
e(f"s_mul_i32 s{sT0}, s{sCH}, 2560")
e(f"s_mul_i32 s{sT1}, s{sCH}, 1280")
e(f"v_lshlrev_b32 v{vT[0]}, 2, v{tid}")
e(f"v_lshlrev_b32 v{vT[1]}, 1, v{tid}")
e(f"v_mov_b32 v{qD}, -1")
e(f"v_mov_b32 v{qS}, 0")
e(f"v_mov_b32 v{qP}, 0")
e(f"v_mov_b32 v{vEA}, 0")
e(f"v_mov_b32 v{qA}, 640")
e(f"v_cmp_gt_u32 {sp(sM0)}, v{qA}, v{tid}")
e(f"s_cmp_eq_u64 {sp(sM0)}, 0")
e("s_cbranch_scc1 L_slow_nold")
e(f"s_mov_b64 exec, {sp(sM0)}")
e(f"buffer_load_dword v{qD}, v{vT[0]}, {srd(S_DST)}, s{sT0} offen")
e(f"buffer_load_dword v{qS}, v{vT[0]}, {srd(S_SRC)}, s{sT0} offen")
e(f"buffer_load_ushort v{vEA}, v{vT[1]}, {srd(S_EA)}, s{sT1} offen")
e(f"v_add_u32 v{qA}, {PENDB}, v{tid}")
e(f"ds_read_u8 v{qP}, v{qA}")
e("s_mov_b64 exec, -1")
lab("L_slow_nold")
e("s_waitcnt vmcnt(0) lgkmcnt(0)")
e("s_barrier")
e(f"v_mul_u32_u24 v{qB}, 52429, v{qD}")
e(f"v_lshrrev_b32 v{qB}, 21, v{qB}")
e(f"v_mul_u32_u24 v{qK}, 40, v{qB}")
e(f"v_sub_u32 v{qK}, v{qD}, v{qK}")
e(f"v_cmp_eq_u32 vcc, s2, v{qB}")
e(f"s_and_b64 {sp(sM0)}, {sp(sM0)}, vcc          ; match")
e(f"s_cmp_eq_u32 s{sRETRY}, 0")
e("s_cbranch_scc1 L_slow_fresh")
e(f"v_cmp_ne_u32 vcc, 0, v{qP}")
e(f"s_and_b64 {sp(sM0)}, {sp(sM0)}, vcc")
lab("L_slow_fresh")
e(f"v_and_b32 v{qK}, 63, v{qK}")
e(f"v_min_u32 v{qK}, 39, v{qK}")
e(f"v_mul_u32_u24 v{vI0}, 52, v{qK}")
e(f"v_lshrrev_b32 v{vI0}, 8, v{vI0}           ; g")
e(f"v_mul_u32_u24 v{qA}, 5, v{vI0}")
e(f"v_sub_u32 v{qA}, v{qK}, v{qA}             ; j")
e(f"v_and_b32 v{qS}, 0x3fff, v{qS}")
e(f"v_lshl_or_b32 v{RC}, v{qK}, 14, v{qS}")
e(f"v_mov_b32 v{VJ[0]}, v{qA}")
e(f"s_mov_b32 s{sT0}, {ALLOC}")
e(f"v_lshl_add_u32 v{qA}, v{vI0}, 2, s{sT0}")
e(f"v_mov_b32 v{vOne}, 1")
e(f"v_mov_b32 v{qP}, 0")
e(f"v_mul_u32_u24 v{qB}, 6, v{qS}")
e(f"v_and_b32 v{qB}, -4, v{qB}")
for m in MK[1:]: e(f"s_mov_b64 {sp(m)}, 0")
e(f"s_cmp_eq_u64 {sp(sM0)}, 0")
e("s_cbranch_scc1 L_slow_nom")
e(f"s_mov_b64 exec, {sp(sM0)}")
e(f"buffer_load_dwordx2 {vr(PS0,2)}, v{qB}, {srd(S_POS)}, 0 offen")
e(f"ds_add_rtn_u32 v{qR}, v{qA}, v{vOne}")
e("s_mov_b64 exec, -1")
e(f"v_mul_u32_u24 v{vI0}, {GSTR}, v{vI0}")
e("s_waitcnt lgkmcnt(0)")
s1_place(qR, vI0, qS, sM0, "s", slow=True)
lab("L_slow_nom")
e(f"v_mov_b32 v{qA}, 640")
e(f"v_cmp_gt_u32 vcc, v{qA}, v{tid}")
e("s_mov_b64 exec, vcc")
e("s_cbranch_execz L_slow_nopb")
e(f"v_add_u32 v{qA}, {PENDB}, v{tid}")
e(f"ds_write_b8 v{qA}, v{qP}")
lab("L_slow_nopb")
e("s_mov_b64 exec, -1")
e("s_branch L_st2")
lab("L_slow_fin")
if FINR == 2:
    e(f"s_cmp_ge_u32 s{sW}, 8")
    e("s_cbranch_scc1 L_sf_nor")
    final_addr_res("s")
    lab("L_sf_nor")
c("SEG must be zero-initialised if no pass ever ran")
e(f"s_cmp_eq_u32 s{sNODE}, 0")
e("s_cbranch_scc1 L_final_bar")
for r in range(32):
    e(f"v_mov_b32 v{SEG+r}, 0")
lab("L_final_bar")
e("s_barrier")
e("s_branch L_final")

desc = f""".amdhsa_kernel {KNAME}
  .amdhsa_next_free_vgpr 128
  .amdhsa_next_free_sgpr 102
  .amdhsa_accum_offset 128
  .amdhsa_group_segment_fixed_size 0
  .amdhsa_kernarg_size 88
  .amdhsa_user_sgpr_count 2
  .amdhsa_user_sgpr_kernarg_segment_ptr 1
  .amdhsa_system_sgpr_workgroup_id_x 1
.end_amdhsa_kernel"""
body = "\n".join(x for x in out if x is not None)
final = "\n".join(header) + "\n" + body + "\n" + '.section .rodata,"a"\n.p2align 6\n' + desc + "\n"
dest = sys.argv[1] if len(sys.argv) > 1 else "standalone__cheap_equivariant_egnn__graph.s"
open(dest, "w").write(final)
print("wrote", dest, len(out), "lines")
```

```python
import sys, os
sys.path.insert(0, os.path.dirname(os.path.abspath(__file__)))
from g3common import *

KNAME = "standalone__cheap_equivariant_egnn__graph_kernel"
TIMING = os.environ.get("TIMING", "")
NOPRIO = os.environ.get("NOPRIO", "")
QSC = os.environ.get("QSC", " sc1")
FORCE = os.environ.get("FORCE", "")
NPOLL = int(os.environ.get("NPOLL", "3000"))
RSL = int(os.environ.get("RSL", "8"))
QSL = int(os.environ.get("QSL", "4"))
NSL = int(os.environ.get("NSL", "8"))
QST = int(os.environ.get("QST", "8"))
PK = int(os.environ.get("PK", "0"))
XM = int(os.environ.get("XM", "0"))
LATE = int(os.environ.get("LATE", "1"))
BSPEC = int(os.environ.get("BSPEC", "1"))
PPF = int(os.environ.get("PPF", "1"))
WSOFF = int(os.environ.get("WSOFF", "0")) << 20
TLBW = int(os.environ.get("TLBW", "0"))
PLATE = int(os.environ.get("PLATE", "1"))
KO = os.environ.get("KO", "")
OSC = os.environ.get("OSC", "")
if OSC: OSC = " " + OSC.replace("_", " ")
YM = int(os.environ.get("YM", "0"))
SWARM = int(os.environ.get("SWARM", "0"))
PSL = int(os.environ.get("PSL", "0"))
QGATE = int(os.environ.get("QGATE", "8"))
H1W = int(os.environ.get("H1W", "2"))
FPRIO = int(os.environ.get("FPRIO", "2"))
FDEL = int(os.environ.get("FDEL", "0"))
F16 = int(os.environ.get("F16", "1"))
HB = int(os.environ.get("HB", "4"))
BAP = int(os.environ.get("BAP", "3"))
HOIST = int(os.environ.get("HOIST", "1"))
IMM = int(os.environ.get("IMM", "1"))
IDX = int(os.environ.get("IDX", "1"))
FINR = int(os.environ.get("FINR", "2"))
PRIOS = [int(x) for x in os.environ.get("PRIOS", "3210")]
EARLY = int(os.environ.get("EARLY", "1"))
PREF = int(os.environ.get("PREF", "1"))
RWS = int(os.environ.get("RWS", "1"))
RPS = int(os.environ.get("RPS", "2"))
PREFN = int(os.environ.get("PREFN", "1"))
FCOPY = int(os.environ.get("FCOPY", "16"))
FSTR = int(os.environ.get("FSTR", "1024"))
WSC = " sc1" if os.environ.get("WSC", "1") == "1" else ""
FBS = int(os.environ.get("FBS", "0"))
FCS = int(os.environ.get("FCS", "0"))
PREB = int(os.environ.get("PREB", "0"))
BAL = int(os.environ.get("BAL", "0"))
RFE = int(os.environ.get("RFE", "1"))
NL = int(os.environ.get("NL", "1"))
FPR = int(os.environ.get("FPR", "1"))
FPK = int(os.environ.get("FPK", "1"))
FBP = int(os.environ.get("FBP", "2"))
FL3 = int(os.environ.get("FL3", "1"))
FLO = int(os.environ.get("FLO", "1"))
WXL = int(os.environ.get("WXL", "1"))
OTW = int(os.environ.get("OTW", "0"))
WTW = int(os.environ.get("WTW", "0"))
TW = int(os.environ.get("TW", "1"))
BLO = int(os.environ.get("BLO", "0"))
DELTA = 600
WIN = 8192
GUARD = 800
TAGC = 0x1a5
FLC = 0x5A5AA5A5

CELLA = 0
CHB = 32000
CELLB = 4 << 20
WH2F = 12 << 20
NG = 157; NCH = 63
BIN0 = NG; WPR = NG + NCH
CAP = 136
GSTR = CAP * 64
REC = 0
QT = 8 * GSTR
BXP = QT + 65536
OWN = BXP + 16384
PTF = OWN + 10240
CTR = PTF + 640
ALLOC = CTR; OVF = CTR + 32; PEND = CTR + 36; GCNT = CTR + 40; NONCE = CTR + 44; ZERO16 = CTR + 48
SYN = CTR + 64
RISS = SYN; RCNT = SYN + 4; RCNT2 = SYN + 8; FCNT = SYN + 12; FCNT2 = SYN + 16; RCA = SYN + 20; RLAND = SYN + 24
RCB = SYN + 28; FCB = SYN + 32; FCC = SYN + 36; RPL = SYN + 40; QOKF = SYN + 44; RH1 = SYN + 48; MAPW = SYN + 52
PENDB = CTR + 128
LDS_TOTAL = PENDB + 640
ZB2 = ZERO16 + 1024
if IMM: LDS_TOTAL = ZB2 + 16
assert ZB2 >= PENDB + 640
WXB = (LDS_TOTAL + 15) & ~15
if WXL: LDS_TOTAL = WXB + 256
FLG = 13 << 20
assert LDS_TOTAL <= 163840
NWG = 250

S_H, S_POS, S_EA, S_SRC, S_DST, S_WX, S_O0, S_O1, S_WS, S_Q, S_WE, S_WH = [8 + 4 * i for i in range(12)]
sRW, sRQ, sRL = 56, 57, 58
sC4, sC5 = 4, 5
sW, sQ, sCT, sMODE, sT0, sT1, sT2, sT3 = range(60, 68)
sEX, sM0, sM1, sM2 = 68, 70, 72, 74
sG, sCH2, sCO, sNT, sU, sREM, sK2, sK3, sNODE, sCH, sRETRY, sB0, sB1, sGB, sRT, sPREF = range(76, 92)
sTW, sLOW, sCNT, sC = 92, 93, 94, 95
sPA, sPB = 96, 98
sX0, sX1, sX2 = 96, 97, 98
KS = 76

vL = 0
vLK, vQD, vTRQ0, vTRQ1, vTRS, vOD, vODM = 1, 2, 3, 4, 5, 6, 7
vT = list(range(8, 16))
SEG = 16; ACC = 48; FACC = 64; QF = 80; SF = 88; OHD = 96; BXF = 100; ID = 104; MP = 112; FB = 120
TE = QF
VST = 127

_st = [0]
STAMPS = os.environ.get("STAMPS", "")
STAMPS = set(int(x) for x in STAMPS.split(",")) if STAMPS else None
def stamp(name, idx=None):
    if not TIMING: return
    i = _st[0] if idx is None else idx
    if idx is None: _st[0] += 1
    if STAMPS is not None and i not in STAMPS: return
    c(f"STAMP {i} {name}")
    e(f"s_memtime s[{sC4}:{sC5}]")
    e("s_waitcnt lgkmcnt(0)")
    e(f"v_writelane_b32 v{VST}, s{sC4}, {i}")
    print("stamp", i, name)
def stamp_dyn(base, scnt, mx=11):
    if not TIMING or os.environ.get("STAMPS", ""): return
    e(f"s_memtime s[{sC4}:{sC5}]")
    e(f"s_min_u32 s3, s{scnt}, {mx}")
    e(f"s_add_u32 m0, s3, {base}")
    e("s_waitcnt lgkmcnt(0)")
    e(f"v_writelane_b32 v{VST}, s{sC4}, m0")
def stamp_flush():
    if not TIMING: return
    e(f"s_memrealtime s[{sC4}:{sC5}]")
    e("s_waitcnt lgkmcnt(0)")
    e("s_mov_b64 exec, -1")
    e(f"v_writelane_b32 v{VST}, s100, 62")
    e(f"v_writelane_b32 v{VST}, s{sC4}, 63")
    if os.environ.get("PCST"):
        e(f"s_getpc_b64 s[{sC4}:{sC5}]")
        e(f"v_writelane_b32 v{VST}, s{sC4}, 60")
        e(f"v_writelane_b32 v{VST}, s{sC5}, 59")
    e(f"s_lshl_b32 s{sT0}, s2, 4")
    e(f"s_add_u32 s{sT0}, s{sT0}, s{sW}")
    e(f"s_lshl_b32 s{sT0}, s{sT0}, 8")
    e(f"s_add_u32 s{sT0}, s{sT0}, {32<<20}")
    e(f"v_lshlrev_b32 v{vT[1]}, 2, v{vL}")
    e(f"buffer_store_dword v{VST}, v{vT[1]}, {srd(S_WS)}, s{sT0} offen")

header = []
header.append(f"; @launch grid=({NWG},1,1) block=(1024,1,1) lds={LDS_TOTAL}")
header.append('.amdgcn_target "amdgcn-amd-amdhsa--gfx950"')
header.append(".text")
header.append(f".globl {KNAME}")
header.append(".p2align 8")
header.append(f".type {KNAME},@function")

lab(KNAME)
e(f"s_cmp_ge_u32 s2, {NWG}")
e("s_cbranch_scc1 L_end2")
e("s_memrealtime s[6:7]")
if TIMING:
    e("s_memrealtime s[100:101]")
if TIMING:
    e(f"v_mov_b32 v{VST}, 0")
stamp("entry")
e(f"s_load_dwordx16 s[{KS}:{KS+15}], s[0:1], 0")
e(f"s_load_dwordx2 s[{S_WS}:{S_WS+1}], s[0:1], 80")
e(f"s_load_dwordx2 s[{S_O0}:{S_O0+1}], s[0:1], 64")
tid = vT[7]
e(f"v_mov_b32 v{tid}, v0")
e(f"v_lshrrev_b32 v{vT[0]}, 6, v0")
e(f"v_and_b32 v{vL}, 63, v0")
e(f"v_readfirstlane_b32 s{sW}, v{vT[0]}")
for (x, sz) in [(S_H,2560000),(S_POS,60000),(S_EA,320000),(S_SRC,640000),(S_DST,640000),(S_WX,256),(S_O0,2560000),(S_O1,60000),
                (S_WS,256*1048576-WSOFF),(S_Q,10000 if IDX else 2560000),(S_WE,66048),(S_WH,65536)]:
    e(f"s_mov_b32 s{x+2}, {sz}")
    e(f"s_mov_b32 s{x+3}, 0x20000")
e(f"s_lshr_b32 s{sQ}, s{sW}, 2")
e(f"s_and_b32 s{sCT}, s{sW}, 3")
e(f"s_and_b32 s{sRW}, s{sW}, 7")
e(f"s_and_b32 s{sRQ}, s{sQ}, 1")
e(f"s_mov_b32 s{sMODE}, 0")
e(f"s_mov_b32 s{sRL}, 0")
def kernarg_copy():
    for (x, k) in [(S_H,0),(S_POS,2),(S_EA,4),(S_SRC,6),(S_DST,8),(S_WE,10),(S_WX,12),(S_WH,14)]:
        e(f"s_mov_b64 s[{x}:{x+1}], s[{KS+k}:{KS+k+1}]")
    if WSOFF:
        e(f"s_add_u32 s{S_WS}, s{S_WS}, {WSOFF}")
        e(f"s_addc_u32 s{S_WS+1}, s{S_WS+1}, 0")
    e(f"s_add_u32 s{S_O1}, s{S_O0}, 2560000")
    e(f"s_addc_u32 s{S_O1+1}, s{S_O0+1}, 0")
    e(f"s_add_u32 s{S_Q}, s{S_WS}, {QOFF}")
    e(f"s_addc_u32 s{S_Q+1}, s{S_WS+1}, {(256 << 16) if IDX else 0}")
    e(f"s_mov_b32 s{sTW}, s6")
    if SWARM:
        c("address-translation warm-up through the scalar path (results unused)")
        lst = [(S_H,0),(S_POS,0),(S_WE,0),(S_WH,0),(S_SRC,0),(S_DST,0),(S_EA,0),(S_H,2097152),(S_WS,0),(S_WS,FLG & 0xfffff if False else 0),(S_Q,0),(S_O0,0)]
        if SWARM == 1: lst = [(S_H,0),(S_POS,0),(S_WE,0),(S_WH,0)]
        if SWARM == 2: lst = [(S_H,0),(S_POS,0),(S_WE,0),(S_WH,0),(S_SRC,0),(S_DST,0),(S_EA,0)]
        if SWARM == 3: lst = [(S_H,0),(S_POS,0),(S_WE,0),(S_WH,0),(S_SRC,0),(S_DST,0),(S_EA,0),(S_WS,0),(S_Q,0),(S_O0,0)]
        for (x, off) in lst:
            e(f"s_load_dword s3, s[{x}:{x+1}], {off}")

vSL = 16; vTRP = 17; vRA = 18; vRD = 19; vST = 20; vU0 = 21; vU1 = 22
def slice_lane(dst, sct):
    e(f"v_lshrrev_b32 v{dst}, 2, v{vL}")
    e(f"v_lshlrev_b32 v{dst}, 8, v{dst}")
    e(f"v_and_b32 v{vU0}, 3, v{vL}")
    e(f"v_lshl_add_u32 v{dst}, v{vU0}, 4, v{dst}")
    e(f"s_lshl_b32 s{sT0}, s{sct}, 6")
    e(f"v_add_u32 v{dst}, s{sT0}, v{dst}")
def trpat(dst, t0, t1):
    e(f"v_lshrrev_b32 v{t0}, 5, v{vL}")
    e(f"v_bfe_u32 v{t1}, v{vL}, 2, 2")
    e(f"v_lshl_add_u32 v{dst}, v{t0}, 3, v{t1}")
    e(f"v_lshlrev_b32 v{dst}, 6, v{dst}")
    e(f"v_bfe_u32 v{t0}, v{vL}, 4, 1")
    e(f"v_lshl_add_u32 v{dst}, v{t0}, 5, v{dst}")
    e(f"v_and_b32 v{t0}, 3, v{vL}")
    e(f"v_lshl_add_u32 v{dst}, v{t0}, 3, v{dst}")
def row_addr(dst, vrow, vhi, tmp, base=OWN):
    e(f"v_and_b32 v{tmp}, 15, v{vrow}")
    e(f"v_xor_b32 v{tmp}, v{tmp}, v{vhi}")
    e(f"v_lshlrev_b32 v{tmp}, 4, v{tmp}")
    e(f"v_lshl_add_u32 v{dst}, v{vrow}, 8, v{tmp}")
    e(f"v_add_u32 v{dst}, {base}, v{dst}")

Z = 24
for i in range(4): e(f"v_mov_b32 v{Z+i}, 0")
c("wave 0: zero the counters (128 B), then B0")
e(f"s_cmp_eq_u32 s{sW}, 0")
e("s_cbranch_scc0 L_b0")
e(f"v_lshlrev_b32 v{vT[0]}, 4, v{vL}")
e(f"v_add_u32 v{vT[0]}, {CTR}, v{vT[0]}")
e("s_mov_b64 exec, 0xff")
e(f"ds_write_b128 v{vT[0]}, {vr(Z,4)}")
if IMM:
    e(f"v_mov_b32 v{vT[0]}, {ZB2}")
    e("s_mov_b64 exec, 1")
    e(f"ds_write_b128 v{vT[0]}, {vr(Z,4)}")
e("s_mov_b64 exec, -1")
e("s_waitcnt lgkmcnt(0)")
lab("L_b0")
e("s_barrier")
vA_ = 23
_sy = [0]
def arrive(addr, regs=None):
    a_, d_ = regs if regs else (vA_, vU1)
    e(f"v_mov_b32 v{a_}, {addr}")
    e(f"v_mov_b32 v{d_}, 1")
    e("s_mov_b64 exec, 1")
    e(f"ds_add_u32 v{a_}, v{d_}")
    e("s_mov_b64 exec, -1")
def wait_cnt(addr, n, nz=False, dst=None, regs=None, slp=1):
    i = _sy[0]; _sy[0] += 1
    d = dst if dst is not None else sT0
    a_, d_ = regs if regs else (vA_, vU1)
    e(f"v_mov_b32 v{a_}, {addr}")
    lab(f"L_sy{i}")
    e(f"ds_read_b32 v{d_}, v{a_}")
    e("s_waitcnt lgkmcnt(0)")
    e(f"v_readfirstlane_b32 s{d}, v{d_}")
    if nz: e(f"s_cmp_lg_u32 s{d}, 0")
    else:  e(f"s_cmp_ge_u32 s{d}, {n}")
    e(f"s_cbranch_scc1 L_syd{i}")
    e(f"s_sleep {slp}")
    e(f"s_branch L_sy{i}")
    lab(f"L_syd{i}")
e(f"s_cmp_ge_u32 s{sW}, 8")
e("s_cbranch_scc1 L_front")
def lane_consts():
    e(f"s_lshr_b32 s{sG}, s{sW}, 1")
    e(f"s_and_b32 s{sCH2}, s{sW}, 1")
    e(f"s_mul_i32 s{sGB}, s{sG}, {GSTR}")
    e(f"s_lshl_b32 s{sB0}, s{sW}, 12")
    e(f"s_add_u32 s{sB0}, s{sB0}, {QT}")
    e(f"s_add_u32 s{sB1}, s{sB0}, 2048")
    c("lane constants (REC rows swizzled: 16-B chunk c of row with rank p at position c ^ ((p>>2)&3))")
    e(f"v_lshrrev_b32 v{vT[3]}, 5, v{vL}           ; hi")
    e(f"v_lshrrev_b32 v{vT[4]}, 3, v{vL}")
    e(f"v_lshlrev_b32 v{vLK}, 6, v{vT[4]}")
    e(f"v_xor_b32 v{vT[4]}, 1, v{vT[3]}")
    e(f"v_lshl_add_u32 v{vLK}, v{vT[4]}, 4, v{vLK}")
    e(f"s_add_u32 s{sT0}, s{sGB}, {REC}")
    e(f"v_add_u32 v{vLK}, s{sT0}, v{vLK}")
    e(f"v_and_b32 v{vT[5]}, 7, v{vL}")
    e(f"v_bfe_u32 v{vT[6]}, v{vL}, 4, 1")
    e(f"v_lshlrev_b32 v{vT[4]}, 2, v{vT[6]}")
    e(f"v_xor_b32 v{vT[5]}, v{vT[5]}, v{vT[4]}")
    e(f"v_lshlrev_b32 v{vQD}, 4, v{vT[5]}")
    e(f"s_lshl_b32 s{sT1}, s{sCH2}, 7")
    e(f"v_add_u32 v{vQD}, s{sT1}, v{vQD}            ; ch*128 + (((l&7) ^ 4*((l>>4)&1))<<4)")
    c("vT6 = colhalf ; r = (l>>2)&3 ; c4 = l&3")
    e(f"v_bfe_u32 v{vT[4]}, v{vL}, 2, 2            ; r")
    e(f"v_and_b32 v{vT[5]}, 3, v{vL}")
    e(f"v_lshlrev_b32 v{vT[2]}, 5, v{vT[6]}")
    e(f"v_lshl_add_u32 v{vT[2]}, v{vT[5]}, 3, v{vT[2]}   ; colhalf*32 + c4*8")
    e(f"v_lshl_add_u32 v{vTRQ0}, v{vT[3]}, 3, v{vT[4]}   ; 8hi + r")
    e(f"v_lshl_add_u32 v{vTRQ0}, v{vTRQ0}, 7, v{vT[2]}")
    e(f"v_bfe_u32 v{vT[5]}, v{vL}, 3, 1            ; (r>>1)&1")
    e(f"v_lshl_add_u32 v{vTRQ0}, v{vT[5]}, 6, v{vTRQ0}")
    e(f"v_add_u32 v{vTRQ0}, s{sB0}, v{vTRQ0}")
    e(f"v_xor_b32 v{vTRQ1}, 64, v{vTRQ0}")
    c("vTRS = REC + g*GSTR + (4hi + r)*64 + ((colhalf*32 + c4*8) ^ (hi<<4))")
    e(f"v_lshlrev_b32 v{vT[5]}, 4, v{vT[3]}")
    e(f"v_xor_b32 v{vT[2]}, v{vT[2]}, v{vT[5]}")
    e(f"v_lshl_add_u32 v{vTRS}, v{vT[3]}, 2, v{vT[4]}    ; 4hi + r")
    e(f"v_lshl_add_u32 v{vTRS}, v{vTRS}, 6, v{vT[2]}")
    e(f"v_add_u32 v{vTRS}, s{sT0}, v{vTRS}")
    c("OHD: lanes 0..15 and 48..63 read chunk 0 of row (l&15) at position (row>>2)&3; others read ZERO16")
    e(f"v_and_b32 v{vT[4]}, 15, v{vL}")
    e(f"v_bfe_u32 v{vT[5]}, v{vL}, 2, 2")
    e(f"v_lshlrev_b32 v{vT[4]}, 6, v{vT[4]}")
    e(f"v_lshl_add_u32 v{vT[4]}, v{vT[5]}, 4, v{vT[4]}")
    e(f"v_add_u32 v{vT[4]}, s{sT0}, v{vT[4]}")
    e(f"v_cmp_eq_u32 vcc, v{vT[3]}, v{vT[6]}")
    e(f"v_mov_b32 v{vT[5]}, {ZERO16}")
    e(f"v_cndmask_b32 v{vOD}, v{vT[5]}, v{vT[4]}, vcc")
    e(f"v_mov_b32 v{vT[4]}, {2048 if IMM else 1024}")
    e(f"v_cndmask_b32 v{vODM}, 0, v{vT[4]}, vcc")
    e(f"s_mov_b32 s{sNODE}, 1")
    e(f"s_mov_b32 s{sPREF}, 0")
RA = 96; RB = 100; vGA = 120
PS = [56, 58, 60, 62]
VI = [80, 81, 82, 83]
VR = [84, 85, 86, 87]
vOne = 89
qP = 90
VJ = [120+0, 0, 0, 0]
VJ = [124, 125, 95, 88]
def id_consts(t0, t1):
    c("ID constants: lane (m,hi): step s elem i = (m == 16s + 8hi + i)")
    e(f"v_and_b32 v{t0}, 1, v{vL}")
    e(f"v_lshlrev_b32 v{t0}, 4, v{t0}")
    e(f"v_mov_b32 v{t1}, 0x3f80")
    e(f"v_lshlrev_b32 v{t0}, v{t0}, v{t1}")
    for s_ in range(2):
        for r in range(4):
            m = 0
            for l in range(64):
                x = (l & 31) - 8 * (l >> 5)
                if x in (16*s_ + 2*r, 16*s_ + 2*r + 1): m |= 1 << l
            e(f"s_mov_b32 vcc_lo, 0x{m & 0xffffffff:x}")
            e(f"s_mov_b32 vcc_hi, 0x{m >> 32:x}")
            e(f"v_cndmask_b32 v{ID+4*s_+r}, 0, v{t0}, vcc")
def seg_zero():
    for r in range(32):
        e(f"v_mov_b32 v{SEG+r}, 0")
MK = [sM0, sM1, sPA, sPB]
if not NOPRIO: e("s_setprio 2")
c("zero REC tail (4096 B, threads 256..511)")
e(f"v_lshlrev_b32 v{vT[0]}, 4, v{tid}")
e(f"v_add_u32 v{vT[1]}, {65536 - 4096}, v{vT[0]}")
e(f"v_cmp_lt_u32 vcc, 255, v{tid}")
e("s_mov_b64 exec, vcc")
e(f"s_cbranch_execz L_notail")
e(f"ds_write_b128 v{vT[1]}, {vr(Z,4)}")
lab("L_notail")
e("s_mov_b64 exec, -1")
e(f"s_cmp_ge_u32 s2, {BIN0}")
e("s_cbranch_scc1 L_notgemm")

AF = 24; BF = 56; D0 = 88
def gemm_role(tag, blk, fb):
    slice_lane(vSL, sCT)
    c("rows DMA lane offset: row = 8w + 4i + (l>>4); chunk = (l&15) ^ (row&15)")
    e(f"v_lshrrev_b32 v{vU0}, 4, v{vL}")
    e(f"v_and_b32 v{vU1}, 15, v{vL}")
    e(f"v_xor_b32 v{vU1}, v{vU1}, v{vU0}")
    e(f"s_and_b32 s{sT0}, s{sRW}, 1")
    e(f"s_lshl_b32 s{sT0}, s{sT0}, 3")
    e(f"v_xor_b32 v{vU1}, s{sT0}, v{vU1}")
    e(f"v_lshlrev_b32 v{vU1}, 4, v{vU1}")
    e(f"v_lshl_add_u32 v{vRA}, v{vU0}, 8, v{vU1}")
    e(f"v_xor_b32 v{vRD}, 64, v{vRA}")
    e(f"s_lshl_b32 s{sT0}, s{sCT}, 13")
    e(f"s_lshl_b32 s{sT1}, s{sRQ}, 12")
    e(f"s_add_u32 s{sT0}, s{sT0}, s{sT1}")
    e(f"s_add_u32 s{sT0}, s{sT0}, {QT}")
    e(f"s_lshl_b32 s{sT1}, s{sRQ}, 14")
    e(f"s_add_u32 s{sT1}, s{sT1}, 32768")
    e(f"s_lshl_b32 s{sT3}, s{sRW}, 11")
    e(f"s_lshl_b32 s{sX0}, s{blk}, 14")
    e(f"s_add_u32 s{sX0}, s{sX0}, s{sT3}           ; (64r + 8w)*256")
    if not fb:
        e("s_waitcnt lgkmcnt(0)")
        stamp("kernarg", 1)
        kernarg_copy()
    e(f"s_add_u32 m0, s{sT3}, {QT+32768}")
    e(f"s_add_u32 s{sX1}, s{sX0}, 1024")
    e(f"buffer_load_dwordx4 v{vRA}, {srd(S_H)}, s{sX0} offen lds")
    e(f"s_add_u32 m0, s{sT3}, {QT+32768+1024}")
    e(f"s_nop 0")
    e(f"buffer_load_dwordx4 v{vRD}, {srd(S_H)}, s{sX1} offen lds")
    for i in range(4):
        e(f"s_add_u32 m0, s{sT0}, {i*1024}")
        e(f"s_add_u32 s{sT2}, s{sT1}, {i*4096}")
        e(f"buffer_load_dwordx4 v{vSL}, {srd(S_WE)}, s{sT2} offen lds")
    if not fb:
        if not LATE: arrive(RISS)
        stamp("role loads issued", 2)
    c("compute: all 8 waves, rb = w>>2, ct = w&3 : 32 rows x 32 cols")
    trpat(vTRP, vU0, vU1)
    e(f"s_lshl_b32 s{sT0}, s{sCT}, 13")
    e(f"s_add_u32 s{sT0}, s{sT0}, {QT}")
    e(f"v_add_u32 v{vTRP}, s{sT0}, v{vTRP}")
    c("row read address: QT+32768 + (rb*32+n)*256 + ((hi ^ (n&15))<<4) ^ (s<<5)")
    e(f"v_and_b32 v{vU0}, 31, v{vL}")
    e(f"v_lshrrev_b32 v{vU1}, 5, v{vL}")
    e(f"v_and_b32 v{vRD}, 15, v{vL}")
    e(f"v_xor_b32 v{vRD}, v{vRD}, v{vU1}")
    e(f"v_lshlrev_b32 v{vRD}, 4, v{vRD}")
    e(f"v_lshl_add_u32 v{vRD}, v{vU0}, 8, v{vRD}")
    e(f"s_lshl_b32 s{sT0}, s{sRQ}, 13")
    e(f"s_add_u32 s{sT0}, s{sT0}, {QT+32768}")
    e(f"v_add_u32 v{vRD}, s{sT0}, v{vRD}")
    c("out tile (2 KB per wave) write addr: OB + n*64 + ((bb ^ ((n>>2)&3))<<4) + hi*8")
    e(f"s_lshl_b32 s{sT0}, s{sRW}, 11")
    e(f"s_add_u32 s{sT0}, s{sT0}, {QT+49152}")
    e(f"v_bfe_u32 v{vRA}, v{vL}, 2, 2")
    e(f"v_lshlrev_b32 v{vRA}, 4, v{vRA}")
    e(f"v_lshl_add_u32 v{vRA}, v{vU0}, 6, v{vRA}")
    e(f"v_lshl_add_u32 v{vRA}, v{vU1}, 3, v{vRA}")
    e(f"v_add_u32 v{vRA}, s{sT0}, v{vRA}")
    c("out tile read addr: OB + (r + 16i)*64 + ((q ^ ((r>>2)&3))<<4), r = l>>2, q = l&3 ; store: row*256 + ct*64 + q*16")
    e(f"v_lshrrev_b32 v{vU0}, 2, v{vL}")
    e(f"v_and_b32 v{vU1}, 3, v{vL}")
    e(f"v_bfe_u32 v{vSL}, v{vL}, 4, 2")
    e(f"v_xor_b32 v{vSL}, v{vSL}, v{vU1}")
    e(f"v_lshlrev_b32 v{vSL}, 4, v{vSL}")
    e(f"v_lshl_add_u32 v{vSL}, v{vU0}, 6, v{vSL}")
    e(f"v_add_u32 v{vSL}, s{sT0}, v{vSL}")
    e(f"v_lshlrev_b32 v{vST}, 4, v{vU1}")
    e(f"v_lshl_add_u32 v{vST}, v{vU0}, 8, v{vST}")
    e(f"s_lshl_b32 s{sT0}, s{blk}, 14")
    e(f"s_lshl_b32 s{sT1}, s{sRQ}, 13")
    e(f"s_add_u32 s{sT0}, s{sT0}, s{sT1}")
    e(f"s_lshl_b32 s{sT1}, s{sCT}, 6")
    e(f"s_add_u32 s{sC}, s{sT0}, s{sT1}")
    if IDX: e(f"s_add_u32 s{sC}, s{sC}, {QOFF}")
    e("s_waitcnt vmcnt(0) lgkmcnt(0)")
    if not fb: stamp("role loads landed", 3)
    if fb:
        e("s_barrier")
    else:
        arrive(RCNT)
        if LATE: arrive(RISS)
        wait_cnt(RCNT, 8)
        stamp("B1", 4)
    for s_ in range(8):
        e(f"v_xor_b32 v{vU0}, {s_<<5}, v{vRD}")
        e(f"ds_read_b128 {vr(BF+4*s_,4)}, v{vU0}")
        e(f"ds_read_b64_tr_b16 {vr(AF+4*s_,2)}, v{vTRP} offset:{s_*1024}")
        e(f"ds_read_b64_tr_b16 {vr(AF+4*s_+2,2)}, v{vTRP} offset:{s_*1024+256}")
    for s_ in range(8):
        e(f"s_waitcnt lgkmcnt({min(15, 21-3*s_)})")
        mfma(D0, AF+4*s_, BF+4*s_, "0" if s_ == 0 else vr(D0,16))
    if not fb: arrive(RCA)
    e(f"s_mov_b32 s{sT1}, 0x{NLOG2E:08x}")
    e("s_nop 7")
    e("s_nop 3")
    for bb in range(4):
        r0 = D0 + 4*bb
        for i in range(4):
            e(f"v_mul_f32 v{r0+i}, s{sT1}, v{r0+i}")
        e(f"v_cvt_pk_bf16_f32 v{r0}, v{r0}, v{r0+1}")
        e(f"v_cvt_pk_bf16_f32 v{r0+1}, v{r0+2}, v{r0+3}")
        e(f"v_xor_b32 v{vU0}, {bb<<4}, v{vRA}")
        e(f"ds_write_b64 v{vU0}, {vr(r0,2)}")
    e("s_waitcnt lgkmcnt(0)")
    for i in range(2):
        e(f"ds_read_b128 {vr(AF+4*i,4)}, v{vSL} offset:{i*1024}")
    e(f"s_add_u32 s{sT1}, s{sC}, 4096")
    for i in range(2):
        e(f"s_waitcnt lgkmcnt({1-i})")
        e(f"buffer_store_dwordx4 {vr(AF+4*i,4)}, v{vST}, {srd(S_WS if IDX else S_Q)}, s{[sC,sT1][i]} offen sc1")
    if not fb: stamp("role stores issued", 5)

gemm_role("", 2, False)
e(f"s_mov_b32 s{sRL}, 8")
e(f"s_lshl_b32 s{sX1}, s2, 2")
e(f"s_add_u32 s{sX1}, s{sX1}, {FLG}")
FM1 = sum(1 << (4*i) for i in range(FCOPY)); FM4 = (1 << (4*FCOPY)) - 1
e(f"s_mov_b32 s{sM0}, 0x{FM1 & 0xffffffff:x}")
e(f"s_mov_b32 s{sM0+1}, 0x{FM1 >> 32:x}")
e("s_branch L_rfront")

lab("L_notgemm")
e(f"s_cmp_ge_u32 s2, {WPR}")
e("s_cbranch_scc1 L_notbin")
c("binning chunk c = wg - 157: edges e = 2560c + 512i + t ; LDS image: cell b at QT + b*128 (+32000 for ranks 16..31), 8-B records")
NE = 5
CNT = QT + 64000
vD = 24; vS = 29; vB = 34; vR = 39; vP = 44; vE = 54; vE2 = 55; vOne_ = 56; vK = 57; vG_ = 58
VM = [76, 78, 80, 82, 84]
sN40, sCB = 86, 87
e(f"s_sub_u32 s{sC}, s2, {BIN0}")
e(f"s_mul_i32 s{sT0}, s{sC}, {2560*4}")
e(f"v_lshlrev_b32 v{vE}, 2, v{tid}")
e(f"v_lshlrev_b32 v{vE2}, 1, v{tid}")
e(f"v_lshlrev_b32 v{vK}, 4, v{tid}")
e(f"v_add_u32 v{vK}, {QT}, v{vK}")
e(f"v_mov_b32 v{vOne_}, 1")
e(f"s_add_u32 s{sT2}, s{sT0}, 4096")
e(f"s_add_u32 s{sT1}, s{sT0}, 8192")
e(f"s_lshr_b32 s{sX0}, s{sT0}, 1")
e(f"s_add_u32 s{sX1}, s{sX0}, 4096")
e("s_waitcnt lgkmcnt(0)")
stamp("kernarg", 1)
kernarg_copy()
def soff(i): return [sT0, sT0, sT2, sT2, sT1][i], (i & 1) * 2048 if i < 4 else 0
def ld_d(i):
    so, of = soff(i)
    e(f"buffer_load_dword v{vD+i}, v{vE}, {srd(S_DST)}, s{so} offen offset:{of}")
def ld_s(i):
    so, of = soff(i)
    e(f"buffer_load_dword v{vS+i}, v{vE}, {srd(S_SRC)}, s{so} offen offset:{of}")
def ld_e(i):
    so = sX0 if i < 4 else sX1
    e(f"buffer_load_ushort v{vP+2*i+1}, v{vE2}, {srd(S_EA)}, s{so} offen offset:{(i & 3) * 1024 if i < 4 else 0}")
if BLO:
    ORD = [("d",0),("s",0),("e",0)] + [("d",i) for i in range(1,NE)] + [("s",i) for i in range(1,NE)] + [("e",i) for i in range(1,NE)]
else:
    ORD = [("d",i) for i in range(NE)] + [("s",i) for i in range(NE)] + [("e",i) for i in range(NE)]
for (k_, i) in ORD: {"d": ld_d, "s": ld_s, "e": ld_e}[k_](i)
def vm_left(k_, i): return len(ORD) - 1 - ORD.index((k_, i))
if not LATE: arrive(RISS)
stamp("role loads issued", 2)
c("zero the image and the counters (64 KB) ; v60..63 = 0")
for i in range(4): e(f"v_mov_b32 v{60+i}, 0")
for i in range(8):
    e(f"ds_write_b128 v{vK}, {vr(60,4)} offset:{i*8192}")
arrive(RCNT)
c("validity: e < 160000  <=> byte offset < 640000")
e(f"v_add_u32 v{vE}, s{sT0}, v{vE}")
for i in range(NE):
    e(f"s_mov_b32 s{sX0}, {640000 - i*2048}")
    e(f"v_cmp_gt_u32 {sp(VM[i])}, s{sX0}, v{vE}")
e(f"s_mov_b32 s{sX0}, {CNT}")
e(f"s_mov_b32 s{sX1}, {QT}")
e(f"s_mov_b32 s{sN40}, -40")
e(f"s_mov_b32 s{sCB}, {CHB - 128}")
e(f"s_mov_b32 s{sT3}, {1 << 20}")
wait_cnt(RCNT, 8, dst=sX2)
stamp("B1", 4)
for i in range(NE):
    e(f"s_waitcnt vmcnt({vm_left('d', i)})")
    e(f"v_mul_u32_u24 v{vB+i}, 52429, v{vD+i}")
    e(f"v_lshrrev_b32 v{vB+i}, 21, v{vB+i}")
    e(f"v_lshl_add_u32 v{vU0}, v{vB+i}, 2, s{sX0}")
    e(f"s_mov_b64 exec, {sp(VM[i])}")
    e(f"ds_add_rtn_u32 v{vR+i}, v{vU0}, v{vOne_}")
    e(f"v_mad_i32_i24 v{vD+i}, v{vB+i}, s{sN40}, v{vD+i}       ; k")
    e(f"v_lshl_add_u32 v{vB+i}, v{vB+i}, 7, s{sX1}")
    e(f"v_lshlrev_b32 v{vD+i}, 14, v{vD+i}")
    e(f"s_mov_b64 exec, -1")
for i in range(NE):
    e(f"s_waitcnt vmcnt({vm_left('s', i)})")
    e(f"v_or3_b32 v{vP+2*i}, v{vD+i}, v{vS+i}, s{sT3}")
e("s_waitcnt vmcnt(0) lgkmcnt(0)")
if LATE: arrive(RISS)
stamp("role loads landed", 3)
for i in range(NE):
    e(f"v_lshl_add_u32 v{vU0}, v{vR+i}, 3, v{vB+i}")
    e(f"v_lshrrev_b32 v{vU1}, 4, v{vR+i}")
    e(f"s_mov_b64 exec, {sp(VM[i])}")
    e(f"v_cmp_gt_u32 vcc, 32, v{vR+i}")
    e(f"v_mad_u32_u24 v{vU0}, v{vU1}, s{sCB}, v{vU0}")
    e(f"s_mov_b64 exec, vcc")
    e(f"ds_write_b64 v{vU0}, {vr(vP+2*i,2)}")
    e(f"s_mov_b64 exec, -1")
e("s_waitcnt lgkmcnt(0)")
arrive(RCNT2)
c("copy-out: granule x = t + 512i (<2000): cell b = x>>3, q = x&7")
GA = 24; vCn = 40; vX = 45; vF = 46; vY = 47; vXL = 52
e(f"v_lshlrev_b32 v{vX}, 4, v{tid}               ; x*16 (i=0)")
e(f"v_lshrrev_b32 v{vY}, 3, v{tid}")
e(f"v_lshl_add_u32 v{vY}, v{vY}, 2, s{sX0}")
e(f"v_add_u32 v{vXL}, {QT}, v{vX}")
e(f"s_mul_i32 s{sT0}, s{sC}, {CHB}")
e(f"s_bfe_u32 s{sT1}, s{sTW}, {3 | (9<<16)}")
e(f"s_xor_b32 s{sT1}, s{sT1}, {TAGC}")
e(f"s_lshl_b32 s{sT1}, s{sT1}, 23")
e(f"s_mov_b32 s{sX1}, {2000-1536}")
e(f"v_cmp_gt_u32 {sp(sM1)}, s{sX1}, v{tid}")
e(f"v_mov_b32 v{vCn+3}, 0")
wait_cnt(RCNT2, 8, dst=sX2)
stamp("B2", 6)
for i in range(4):
    if i == 3:
        e(f"s_mov_b64 exec, {sp(sM1)}")
    e(f"ds_read_b128 {vr(GA+4*i,4)}, v{vXL} offset:{i*8192}")
    e(f"ds_read_b32 v{vCn+i}, v{vY} offset:{i*256}")
e("s_mov_b64 exec, -1")
def granule(G, cn, so):
    e(f"v_add_u32 v{vU0}, 15, v{cn}")
    e(f"v_lshrrev_b32 v{vU0}, 4, v{vU0}")
    e(f"v_min_u32 v{vU0}, 3, v{vU0}")
    e(f"v_lshl_or_b32 v{vF}, v{vU0}, 21, s{sT1}")
    e(f"v_lshl_or_b32 v{G+1}, v{G+3}, 16, v{G+1}")
    e(f"v_or_b32 v{G}, v{G}, v{vF}")
    e(f"v_or_b32 v{G+2}, v{G+2}, v{vF}")
    e(f"v_mov_b32 v{G+3}, s{sTW}")
    e(f"buffer_store_dwordx4 {vr(G,4)}, v{vX}, {srd(S_WS)}, s{so} offen sc1")
for i in range(4):
    if i == 3:
        e(f"s_mov_b64 exec, {sp(sM1)}")
    e(f"s_waitcnt lgkmcnt({2*(3-i)})")
    granule(GA+4*i, vCn+i, sT0)
    e(f"s_add_u32 s{sT0}, s{sT0}, 8192")
e("s_mov_b64 exec, -1")
stamp("role stores issued", 5)
c("B lines (ranks 16..31) for cells with count > 16")
e(f"s_mul_i32 s{sT0}, s{sC}, {CHB}")
e(f"s_add_u32 s{sT0}, s{sT0}, {CELLB}")
for i in range(4):
    e(f"v_cmp_lt_u32 vcc, 16, v{vCn+i}")
    e("s_mov_b64 exec, vcc")
    e(f"s_cbranch_execz L_nob{i}")
    e(f"ds_read_b128 {vr(48,4)}, v{vXL} offset:{CHB+i*8192}")
    e("s_waitcnt lgkmcnt(0)")
    granule(48, vCn+i, sT0)
    e("s_nop 1")
    lab(f"L_nob{i}")
    e("s_mov_b64 exec, -1")
    e(f"s_add_u32 s{sT0}, s{sT0}, 8192")
arrive(RCA)
e("s_branch L_rfront")

lab("L_notbin")
def wprep_role(tag, fb):
    slice_lane(vSL, sCT)
    e(f"s_lshl_b32 s{sT2}, s{sCT}, 13")
    e(f"s_add_u32 s{sT2}, s{sT2}, {QT}")
    trpat(vTRP, vU0, vU1)
    e(f"v_add_u32 v{vTRP}, s{sT2}, v{vTRP}")
    e(f"v_lshlrev_b32 v{vST}, 4, v{vL}")
    for i in range(8):
        e(f"s_add_u32 m0, s{sT2}, {i*1024}")
        e(f"s_mov_b32 s{sT1}, {32768 + i*4096}")
        e(f"buffer_load_dwordx4 v{vSL}, {srd(S_WH)}, s{sT1} offen lds")
    e(f"s_lshl_b32 s{sC}, s{sCT}, 13")
    e(f"s_add_u32 s{sC}, s{sC}, {WH2F}")
    e("s_waitcnt vmcnt(0)")
    for s_ in range(8):
        e(f"ds_read_b64_tr_b16 {vr(AF+4*s_,2)}, v{vTRP} offset:{s_*1024}")
        e(f"ds_read_b64_tr_b16 {vr(AF+4*s_+2,2)}, v{vTRP} offset:{s_*1024+256}")
    for s_ in range(8):
        if s_ == 4:
            e(f"s_add_u32 s{sC}, s{sC}, 4096")
        e(f"s_waitcnt lgkmcnt({2*(7-s_)})")
        e(f"buffer_store_dwordx4 {vr(AF+4*s_,4)}, v{vST}, {srd(S_WS)}, s{sC} offen offset:{(s_%4)*1024} sc1")
e("s_waitcnt lgkmcnt(0)")
stamp("kernarg", 1)
kernarg_copy()
arrive(RISS)
c("workgroups WPR..WPR+3: slice ct = wg - WPR of WH2 ; wave w converts k-step w")
e(f"s_sub_u32 s{sC}, s2, {WPR}")
e(f"s_cmp_ge_u32 s{sC}, 4")
e(f"s_cbranch_scc1 {'L_norole0' if TW else 'L_norole'}")
slice_lane(vSL, sC)
trpat(vTRP, vU0, vU1)
e(f"s_lshl_b32 s{sT2}, s{sW}, 10")
e(f"s_add_u32 s{sT2}, s{sT2}, {QT}")
e(f"v_add_u32 v{vTRP}, s{sT2}, v{vTRP}")
e(f"v_lshlrev_b32 v{vST}, 4, v{vL}")
e(f"s_lshl_b32 s{sT1}, s{sW}, 12")
e(f"s_add_u32 s{sT1}, s{sT1}, 32768")
e(f"s_mov_b32 m0, s{sT2}")
e(f"s_lshl_b32 s{sT3}, s{sC}, 13")
e(f"buffer_load_dwordx4 v{vSL}, {srd(S_WH)}, s{sT1} offen lds")
e(f"s_lshl_b32 s{sT0}, s{sW}, 10")
e(f"s_add_u32 s{sT3}, s{sT3}, s{sT0}")
e(f"s_add_u32 s{sT3}, s{sT3}, {WH2F}")
e("s_waitcnt vmcnt(0)")
e(f"ds_read_b64_tr_b16 {vr(AF,2)}, v{vTRP}")
e(f"ds_read_b64_tr_b16 {vr(AF+2,2)}, v{vTRP} offset:256")
e("s_waitcnt lgkmcnt(0)")
e(f"buffer_store_dwordx4 {vr(AF,4)}, v{vST}, {srd(S_WS)}, s{sT3} offen sc1")
e(f"s_mov_b32 s{sRL}, 8")
e(f"s_lshl_b32 s{sX1}, s{sC}, 2")
e(f"s_add_u32 s{sX1}, s{sX1}, {FLG + NG*4}")
e(f"s_mov_b32 s{sM0}, 0x{FM1 & 0xffffffff:x}")
e(f"s_mov_b32 s{sM0+1}, 0x{FM1 >> 32:x}")
e(f"s_cmp_eq_u32 s{sC}, 3")
e("s_cbranch_scc0 L_wp_nopad")
c("the last one also fills the three padding flags")
e(f"s_mov_b32 s{sM0}, 0x{FM4 & 0xffffffff:x}")
e(f"s_mov_b32 s{sM0+1}, 0x{FM4 >> 32:x}")
lab("L_wp_nopad")
if TW:
    e("s_branch L_norole")
    lab("L_norole0")
    c("address translation warm-up (results unused): 40 lanes, 64 KB apart ; wave 0: out, waves 1..4: scratch regions")
    e(f"v_lshlrev_b32 v{vU0}, 16, v{vL}")
    e(f"s_mov_b32 exec_lo, -1")
    e(f"s_mov_b32 exec_hi, 0xff")
    e(f"s_cmp_eq_u32 s{sW}, 0")
    e("s_cbranch_scc0 L_tw1")
    e(f"buffer_load_dword v24, v{vU0}, {srd(S_O0)}, 0 offen")
    e(f"buffer_load_dword v25, v{vU0}, {srd(S_O1)}, 0 offen")
    e("s_branch L_tw2")
    lab("L_tw1")
    e(f"s_cmp_gt_u32 s{sW}, 4")
    e("s_cbranch_scc1 L_tw2")
    e(f"s_mov_b32 s{sT0}, {CELLA}")
    e(f"s_cmp_eq_u32 s{sW}, 2")
    e(f"s_cselect_b32 s{sT0}, {QOFF}, s{sT0}")
    e(f"s_cmp_eq_u32 s{sW}, 3")
    e(f"s_cselect_b32 s{sT0}, {WH2F}, s{sT0}")
    e(f"s_cmp_eq_u32 s{sW}, 4")
    e(f"s_cselect_b32 s{sT0}, {CELLB}, s{sT0}")
    e(f"buffer_load_dword v24, v{vU0}, {srd(S_WS)}, s{sT0} offen")
    lab("L_tw2")
    e("s_mov_b64 exec, -1")
lab("L_norole")
arrive(RCA)

vFRD = 126
def node_addr2(dst, node, cmp_, t0, t1, vhi):
    if NL:
        assert cmp_ is None
        c("row of node v: QT + (v/5)*8192 + (u&3)*256 + (u>>2)*64 + ((hi ^ (u&3))<<4), u = v&15")
        e(f"v_mul_u32_u24 v{t1}, 52, v{node}")
        e(f"v_lshrrev_b32 v{t1}, 8, v{t1}             ; g")
        e(f"v_and_b32 v{t0}, 3, v{node}")
        e(f"v_xor_b32 v{dst}, v{t0}, v{vhi}")
        e(f"v_lshlrev_b32 v{dst}, 4, v{dst}")
        e(f"v_lshl_add_u32 v{dst}, v{t0}, 8, v{dst}")
        e(f"v_bfe_u32 v{t0}, v{node}, 2, 2")
        e(f"v_lshl_add_u32 v{dst}, v{t0}, 6, v{dst}")
        e(f"v_lshl_add_u32 v{dst}, v{t1}, 13, v{dst}")
        e(f"v_add_u32 v{dst}, {QT}, v{dst}")
        return
    e(f"v_mul_u32_u24 v{t1}, 52, v{node}")
    e(f"v_lshrrev_b32 v{t1}, 8, v{t1}             ; g")
    e(f"v_mul_u32_u24 v{t0}, 5, v{t1}")
    e(f"v_sub_u32 v{t0}, v{node}, v{t0}          ; j")
    if cmp_ is not None:
        e(f"v_lshl_add_u32 v{t0}, v{cmp_}, 3, v{t0}")
    e(f"v_add_u32 v{t0}, 3, v{t0}                 ; f")
    e(f"v_bfe_u32 v{dst}, v{t0}, 2, 2")
    e(f"v_xor_b32 v{dst}, v{dst}, v{vhi}")
    e(f"v_lshlrev_b32 v{t0}, 6, v{t0}")
    e(f"v_lshl_add_u32 v{t0}, v{t1}, 13, v{t0}")
    e(f"v_and_b32 v{t1}, 3, v{t1}")
    e(f"v_xor_b32 v{dst}, v{dst}, v{t1}")
    e(f"v_lshl_add_u32 v{dst}, v{dst}, 4, v{t0}")
    e(f"v_add_u32 v{dst}, {QT}, v{dst}")
def rolec_node(vn, vnode, vcmp, t0, t1):
    if NL:
        c("role C: G = 2ct + (n>>4) ; r = min(n&15, 14) ; c = r/5 ; j = r%5 ; node = 5G + j ; comp = c+1   (t0 <- r, t1 <- G)")
        e(f"v_and_b32 v{t0}, 15, v{vn}")
        e(f"v_min_u32 v{t0}, 14, v{t0}                ; r")
        e(f"v_mul_u32_u24 v{vcmp}, 52, v{t0}")
        e(f"v_lshrrev_b32 v{vcmp}, 8, v{vcmp}              ; c")
        e(f"v_lshrrev_b32 v{t1}, 4, v{vn}")
        e(f"s_lshl_b32 s{sT0}, s{sCT}, 1")
        e(f"v_add_u32 v{t1}, s{sT0}, v{t1}            ; G")
        e(f"v_sub_u32 v{vnode}, v{t1}, v{vcmp}          ; G - c")
        e(f"v_mad_u32_u24 v{vnode}, v{vnode}, 5, v{t0}")
        e(f"v_and_b32 v{vnode}, 63, v{vnode}")
        e(f"v_add_u32 v{vcmp}, 1, v{vcmp}")
        return
    c("role C: n' = min(n,29); idx = 30ct + n' ; G = idx/15 ; r = idx%15 ; c = r/5 ; j = r%5 ; node = 5G + j ; comp = c+1")
    e(f"v_min_u32 v{t0}, 29, v{vn}")
    e(f"v_cmp_lt_u32 vcc, 14, v{t0}")
    e(f"v_cndmask_b32 v{t1}, 0, 1, vcc               ; G&1")
    e(f"v_mul_u32_u24 v{vnode}, 15, v{t1}")
    e(f"v_sub_u32 v{t0}, v{t0}, v{vnode}          ; r")
    e(f"v_mul_u32_u24 v{vcmp}, 52, v{t0}")
    e(f"v_lshrrev_b32 v{vcmp}, 8, v{vcmp}              ; c")
    e(f"v_mul_u32_u24 v{vnode}, 5, v{vcmp}")
    e(f"v_sub_u32 v{t0}, v{t0}, v{vnode}          ; j")
    e(f"s_lshl_b32 s{sT0}, s{sCT}, 1")
    e(f"v_add_u32 v{t1}, s{sT0}, v{t1}            ; G")
    e(f"v_mad_u32_u24 v{vnode}, v{t1}, 5, v{t0}")
    e(f"v_add_u32 v{vcmp}, 1, v{vcmp}")
def flush_addr(dst, n, hi, t6, t7):
    e(f"s_mul_i32 s{sT0}, s{sG}, 5")
    e(f"s_sub_u32 s{sT0}, s{sT0}, 3")
    e(f"s_add_u32 s{sT1}, s{sB0}, 1024")
    e(f"v_lshrrev_b32 v{t6}, 3, v{n}              ; c")
    e(f"v_and_b32 v{dst}, 7, v{n}")
    e(f"v_mad_u32_u24 v{dst}, v{t6}, 5, v{dst}     ; 5c + (f&7)")
    e(f"v_mov_b32 v{t6}, -8")
    e(f"v_mov_b32 v{t7}, s{sT1}")
    e(f"s_mov_b32 exec_lo, 0xff")
    e(f"s_mov_b32 exec_hi, 0xff")
    e(f"v_mov_b32 v{t6}, s{sT0}")
    e(f"v_mov_b32 v{t7}, s{sB0}")
    e(f"s_mov_b64 exec, -1")
    e(f"v_add_u32 v{dst}, v{t6}, v{dst}")
    e(f"v_lshl_add_u32 v{t7}, v{hi}, 3, v{t7}")
    e(f"v_bfe_u32 v{t6}, v{dst}, 2, 2")
    e(f"v_lshl_add_u32 v{t7}, v{t6}, 6, v{t7}")
    e(f"v_and_b32 v{dst}, 3, v{dst}")
    e(f"v_mul_u32_u24 v{dst}, 0x110, v{dst}")
    e(f"v_add_u32 v{dst}, v{dst}, v{t7}")
def final_addr(rwaves):
    n, hi, nd, cm, t0, t1 = vT[0], vT[1], vT[2], vT[3], vT[4], vT[5]
    e(f"v_and_b32 v{n}, 31, v{vL}")
    e(f"v_lshrrev_b32 v{hi}, 5, v{vL}")
    if rwaves:
        c("role A: node n ; role B: node 32 + (n&7)")
        e(f"v_and_b32 v{nd}, 7, v{n}")
        e(f"v_add_u32 v{nd}, 32, v{nd}")
        e(f"s_cmp_eq_u32 s{sQ}, 0")
        e(f"s_cselect_b64 vcc, -1, 0")
        e(f"v_cndmask_b32 v{nd}, v{nd}, v{n}, vcc")
        node_addr2(vFRD, nd, None, t0, t1, hi)
    else:
        if NL and FL3:
            e(f"s_cmp_eq_u32 s{sQ}, 3")
            e("s_cbranch_scc0 L_fa_c")
            c("quad 3 has no final role: v126 <- its flush address")
            flush_addr(vFRD, n, hi, t0, t1)
            e("s_branch L_fa_d")
            lab("L_fa_c")
        rolec_node(n, nd, cm, t0, t1)
        if NL:
            c("row (G, r): QT + G*8192 + 1024 + (r&3)*256 + (r>>2)*64 + ((hi ^ (r&3))<<4)")
            e(f"v_and_b32 v{nd}, 3, v{t0}")
            e(f"v_xor_b32 v{vFRD}, v{nd}, v{hi}")
            e(f"v_lshlrev_b32 v{vFRD}, 4, v{vFRD}")
            e(f"v_lshl_add_u32 v{vFRD}, v{nd}, 8, v{vFRD}")
            e(f"v_lshrrev_b32 v{t0}, 2, v{t0}")
            e(f"v_lshl_add_u32 v{vFRD}, v{t0}, 6, v{vFRD}")
            e(f"v_lshl_add_u32 v{vFRD}, v{t1}, 13, v{vFRD}")
            e(f"v_add_u32 v{vFRD}, {QT + 1024}, v{vFRD}")
            if FL3: lab("L_fa_d")
        else:
            node_addr2(vFRD, nd, cm, t0, t1, hi)
vFOFF, vFRES = 124, 125
def final_addr_res(tag):
    n, hi, t0, t1 = vT[0], vT[1], vT[2], vT[3]
    e(f"v_and_b32 v{n}, 31, v{vL}")
    e(f"v_lshrrev_b32 v{hi}, 5, v{vL}")
    e(f"s_mul_i32 s{sT1}, s2, 40")
    e(f"s_cmp_eq_u32 s{sQ}, 0")
    e(f"s_cbranch_scc0 L_far_b{tag}")
    c("role A residual: h[node n][32ct + 8bb + 4hi..+3]: OWN + n*256 + (((ct*4+bb) ^ (n&15))<<4) + hi*8")
    e(f"v_and_b32 v{t0}, 15, v{n}")
    e(f"s_lshl_b32 s{sT0}, s{sCT}, 2")
    e(f"v_xor_b32 v{t0}, s{sT0}, v{t0}")
    e(f"v_lshlrev_b32 v{t0}, 4, v{t0}")
    e(f"v_lshl_add_u32 v{t0}, v{n}, 8, v{t0}")
    e(f"v_lshl_add_u32 v{t0}, v{hi}, 3, v{t0}")
    e(f"v_add_u32 v{vFRES}, {OWN}, v{t0}")
    e(f"v_add_u32 v{vFOFF}, s{sT1}, v{n}")
    e(f"v_lshlrev_b32 v{vFOFF}, 8, v{vFOFF}")
    e(f"v_lshl_add_u32 v{vFOFF}, v{hi}, 3, v{vFOFF}")
    e(f"s_lshl_b32 s{sT0}, s{sCT}, 6")
    e(f"v_add_u32 v{vFOFF}, s{sT0}, v{vFOFF}")
    e(f"s_branch L_far_d{tag}")
    lab(f"L_far_b{tag}")
    c("role B residual: rows 32+4hi+i, col 32ct+n: OWN + row*256 + (((ct*4 + (n>>3)) ^ (row&15))<<4) + (n&7)*2")
    e(f"v_lshrrev_b32 v{t0}, 3, v{n}")
    e(f"s_lshl_b32 s{sT0}, s{sCT}, 2")
    e(f"v_add_u32 v{t0}, s{sT0}, v{t0}          ; chunk")
    e(f"v_lshlrev_b32 v{t1}, 2, v{hi}             ; 4hi")
    e(f"v_xor_b32 v{t0}, v{t0}, v{t1}")
    e(f"v_lshlrev_b32 v{t0}, 4, v{t0}")
    e(f"v_lshl_add_u32 v{t0}, v{t1}, 8, v{t0}   ; + 4hi*256")
    e(f"v_and_b32 v{hi}, 7, v{n}")
    e(f"v_lshl_add_u32 v{t0}, v{hi}, 1, v{t0}")
    e(f"v_add_u32 v{vFRES}, {OWN + 32*256}, v{t0}")
    e(f"s_add_u32 s{sT0}, s{sT1}, 32")
    e(f"v_add_u32 v{vFOFF}, s{sT0}, v{t1}")
    e(f"v_lshlrev_b32 v{vFOFF}, 8, v{vFOFF}")
    e(f"v_lshl_add_u32 v{vFOFF}, v{n}, 1, v{vFOFF}")
    e(f"s_lshl_b32 s{sT0}, s{sCT}, 6")
    e(f"v_add_u32 v{vFOFF}, s{sT0}, v{vFOFF}")
    lab(f"L_far_d{tag}")
lab("L_rfront")
c("R waves after the role: H1 (quad 0: nodes 0..31, quad 1: nodes 32..39); WH1 slices staged in QT (ct*8192)")
WF = 16
D1 = 96
vR2 = 114
def rowreg(s_): return (ACC + 4*s_) if s_ < 4 else (QF + 4*(s_-4))
slice_lane(vT[2], sCT)
e(f"s_lshl_b32 s{sT2}, s{sCT}, 13")
e(f"s_add_u32 s{sT2}, s{sT2}, {QT}")
e(f"s_lshl_b32 s{sT3}, s{sRQ}, 12")
e(f"s_add_u32 s{sT3}, s{sT3}, s{sT2}          ; + half*4096")
e(f"s_lshl_b32 s{sX0}, s{sRQ}, 14")
wait_cnt(RCA, 8, dst=sX2)
for i in range(4):
    e(f"s_add_u32 m0, s{sT3}, {i*1024}")
    e(f"s_add_u32 s{sT1}, s{sX0}, {i*4096}")
    e(f"buffer_load_dwordx4 v{vT[2]}, {srd(S_WH)}, s{sT1} offen lds")
stamp("h1 dma", 7)
c("signal: the last of the role's waves writes the flag(s) once all stores are complete")
e(f"s_mov_b32 s{sC}, 0")
e(f"s_cmp_eq_u32 s{sRL}, 0")
e("s_cbranch_scc1 L_nosig")
e("s_waitcnt vmcnt(4)")
e(f"v_mov_b32 v{vU0}, {GCNT}")
e(f"v_mov_b32 v{vU1}, 1")
e("s_mov_b64 exec, 1")
e(f"ds_add_rtn_u32 v{vRA}, v{vU0}, v{vU1}")
e("s_waitcnt lgkmcnt(0)")
e("s_mov_b64 exec, -1")
e(f"v_readfirstlane_b32 s{sT0}, v{vRA}")
e(f"s_xor_b32 s{sT1}, s{sTW}, {FLC}")
e(f"v_mov_b32 v{vU1}, s{sT1}")
e(f"v_lshrrev_b32 v{vU0}, 2, v{vL}")
e(f"v_mul_u32_u24 v{vU0}, {FSTR}, v{vU0}")
e(f"v_and_b32 v{vRA}, 3, v{vL}")
e(f"v_lshl_add_u32 v{vU0}, v{vRA}, 2, v{vU0}")
e(f"s_add_u32 s{sT0}, s{sT0}, 1")
e(f"s_cmp_eq_u32 s{sT0}, s{sRL}")
e(f"s_cbranch_scc0 L_nosig")
e(f"s_mov_b64 exec, {sp(sM0)}")
e(f"buffer_store_dword v{vU1}, v{vU0}, {srd(S_WS)}, s{sX1} offen sc1")
e("s_mov_b64 exec, -1")
e(f"s_mov_b32 s{sC}, 1")
lab("L_nosig")
stamp("role signalled", 6)
if not NOPRIO: e("s_setprio 0")
e(f"s_mov_b32 s{sX0}, s{sT2}")
lane_consts()
if FINR and RFE: final_addr(True)
if FINR == 2 and RFE: final_addr_res("r")
trpat(vT[6], vT[0], vT[1])
e(f"v_add_u32 v{vT[6]}, s{sX0}, v{vT[6]}")
e(f"v_lshrrev_b32 v{vT[3]}, 5, v{vL}           ; hi")
e(f"v_and_b32 v{vT[4]}, 31, v{vL}")
e(f"s_lshl_b32 s{sT0}, s{sRQ}, 5")
e(f"v_add_u32 v{vT[4]}, s{sT0}, v{vT[4]}")
e(f"v_min_u32 v{vT[4]}, 39, v{vT[4]}")
row_addr(vT[1], vT[4], vT[3], vT[2])
c("DMA landed (the flag store, if this wave issued it, may stay in flight)")
e(f"s_cmp_eq_u32 s{sC}, 0")
e("s_cbranch_scc1 L_h1w0")
e(f"s_waitcnt vmcnt(1)")
e("s_branch L_h1w1")
lab("L_h1w0")
e("s_waitcnt vmcnt(0)")
lab("L_h1w1")
arrive(RCB)
wait_cnt([FCNT, FCC, FCNT2][H1W], 8, dst=sX2)
for s_ in range(8):
    e(f"v_xor_b32 v{vT[2]}, {s_<<5}, v{vT[1]}")
    e(f"ds_read_b128 {vr(rowreg(s_),4)}, v{vT[2]}")
wait_cnt(RCB, 8, dst=sX2)
for s_ in range(8):
    e(f"ds_read_b64_tr_b16 {vr(WF+4*s_,2)}, v{vT[6]} offset:{s_*1024}")
    e(f"ds_read_b64_tr_b16 {vr(WF+4*s_+2,2)}, v{vT[6]} offset:{s_*1024+256}")
e(f"s_mov_b32 s{sK2}, 0x{NLOG2E:08x}")
e(f"s_cmp_eq_u32 s{sRQ}, 0")
e("s_cbranch_scc0 L_h1b")
for s_ in range(8):
    e(f"s_waitcnt lgkmcnt({2*(7-s_)})")
    mfma(FACC, WF+4*s_, rowreg(s_), "0" if s_ == 0 else vr(FACC,16))
e("s_nop 7")
e("s_nop 3")
for r in range(16):
    e(f"v_mul_f32 v{FACC+r}, s{sK2}, v{FACC+r}")
e("s_branch L_h1d")
lab("L_h1b")
for s_ in range(8):
    e(f"s_waitcnt lgkmcnt({2*(7-s_)})")
    mfma(D1, rowreg(s_), WF+4*s_, "0" if s_ == 0 else vr(D1,16))
e("s_nop 7")
e("s_nop 3")
for r in range(4):
    e(f"v_mul_f32 v{FB+r}, s{sK2}, v{D1+r}")
lab("L_h1d")
if PREF: arrive(RH1)
stamp("h1 done", 8)
e("s_branch L_common")

lab("L_front")
QA, QB, QC = 0, 1, 2
KB = 124
PWR = 116
fw = sX2
e(f"s_sub_u32 s{fw}, s{sW}, 8")
e(f"v_lshlrev_b32 v{vT[0]}, 4, v{tid}")
c("own rows dma: instr idx u covers rows 4u..4u+3 ; lane: row = 4u + (l>>4); chunk = (l&15) ^ (row&15)")
e(f"v_lshrrev_b32 v{vT[4]}, 4, v{vL}")
e(f"v_and_b32 v{vT[1]}, 15, v{vL}")
e(f"v_xor_b32 v{vT[1]}, v{vT[1]}, v{vT[4]}")
e(f"s_lshl_b32 s{sT1}, s{sCT}, 2")
e(f"v_xor_b32 v{vT[1]}, s{sT1}, v{vT[1]}")
e(f"v_lshlrev_b32 v{vT[1]}, 4, v{vT[1]}")
e(f"v_lshl_add_u32 v{vT[1]}, v{vT[4]}, 8, v{vT[1]}")
slice_lane(vT[2], sCT)
e(f"s_lshl_b32 s{sT2}, s{sCT}, 13")
e(f"s_mul_i32 s{sT0}, s2, {40*256}")
e(f"s_lshl_b32 s{sT1}, s{fw}, 10")
e(f"s_add_u32 s{sT0}, s{sT0}, s{sT1}")
e(f"v_mul_u32_u24 v{vT[3]}, 6, v{vL}")
e(f"v_and_b32 v{vT[5]}, 31, v{vL}")
e(f"s_lshl_b32 s{sT3}, s{sCT}, 5")
e(f"v_add_u32 v{vT[5]}, s{sT3}, v{vT[5]}")
e(f"v_lshlrev_b32 v{vT[5]}, 1, v{vT[5]}           ; (32ct + n)*2")
e("s_waitcnt lgkmcnt(0)")
stamp("kernarg", 1)
kernarg_copy()
if FDEL: e(f"s_sleep {FDEL}")
e(f"s_add_u32 m0, s{sT1}, {OWN}")
e("s_nop 0")
e(f"buffer_load_dwordx4 v{vT[1]}, {srd(S_H)}, s{sT0} offen lds")
e(f"s_cmp_ge_u32 s{fw}, 2")
e("s_cbranch_scc1 L_f_no2")
e(f"s_add_u32 m0, s{sT1}, {OWN+8192}")
e(f"s_add_u32 s{sT0}, s{sT0}, 8192")
e(f"buffer_load_dwordx4 v{vT[1]}, {srd(S_H)}, s{sT0} offen lds")
lab("L_f_no2")
c("wave 10: own pos (lane l<40 loads x,y,z u16)")
e(f"s_cmp_eq_u32 s{fw}, 2")
e("s_cbranch_scc0 L_f_nopos")
e(f"s_mul_i32 s{sT0}, s2, 240")
e(f"v_cmp_gt_u32 vcc, 40, v{vL}")
e("s_mov_b64 exec, vcc")
for k in range(3):
    e(f"buffer_load_ushort v{PWR+k}, v{vT[3]}, {srd(S_POS)}, s{sT0} offen offset:{2*k}")
e("s_mov_b64 exec, -1")
lab("L_f_nopos")
if PPF:
    c("L2 warm-up of pos: segment (wg>>3)&7 of 7680 B, 960 B per F wave (result unused)")
    e(f"s_lshr_b32 s{sT1}, s2, 3")
    e(f"s_and_b32 s{sT1}, s{sT1}, 7")
    e(f"s_lshl_b32 s{sT1}, s{sT1}, 3")
    e(f"s_add_u32 s{sT1}, s{sT1}, s{fw}")
    e(f"s_mul_i32 s{sT1}, s{sT1}, 960")
    e(f"v_lshlrev_b32 v{vT[7]}, 4, v{vL}")
    e(f"buffer_load_dwordx4 {vr(108,4)}, v{vT[7]}, {srd(S_POS)}, s{sT1} offen")
if WXL:
    c("wave 11: w_x -> LDS")
    e(f"s_cmp_eq_u32 s{fw}, 3")
    e("s_cbranch_scc0 L_f_nowx")
    e(f"s_mov_b32 m0, {WXB}")
    e(f"v_lshlrev_b32 v{vT[7]}, 4, v{vL}")
    e("s_mov_b64 exec, 0xffff")
    e(f"buffer_load_dwordx4 v{vT[7]}, {srd(S_WX)}, 0 offen lds")
    e("s_mov_b64 exec, -1")
    lab("L_f_nowx")
if OTW:
    c("wave 12: touch the output rows of this workgroup (result unused)")
    e(f"s_cmp_eq_u32 s{fw}, 4")
    e("s_cbranch_scc0 L_f_notw")
    e(f"v_mov_b32 v{vT[7]}, 0")
    e(f"s_mul_i32 s{sT1}, s2, {40*256}")
    e("s_mov_b64 exec, 1")
    e(f"buffer_load_dword v112, v{vT[7]}, {srd(S_O0)}, s{sT1} offen")
    e(f"s_mul_i32 s{sT1}, s2, 240")
    e(f"buffer_load_dword v113, v{vT[7]}, {srd(S_O1)}, s{sT1} offen")
    e("s_mov_b64 exec, -1")
    lab("L_f_notw")
if WTW:
    c("wave 13: touch the scratch regions (result unused): lane i -> i MB * 2, i < 7")
    e(f"s_cmp_eq_u32 s{fw}, 5")
    e("s_cbranch_scc0 L_f_nowtw")
    e(f"v_lshlrev_b32 v{vT[7]}, 21, v{vL}")
    if WTW == 2:
        c("plus the exact places this workgroup writes first")
        e(f"s_mul_i32 s{sT1}, s2, 8192")
        e(f"v_add_u32 v{vT[7]}, s{sT1}, v{vT[7]}")
    e("s_mov_b64 exec, 0x7f")
    e(f"buffer_load_dword v112, v{vT[7]}, {srd(S_WS)}, 0 offen")
    e("s_mov_b64 exec, -1")
    lab("L_f_nowtw")
c("K1B raw: w_e rows 256, 257")
e(f"s_mov_b32 s{sT1}, 65536")
e(f"buffer_load_ushort v{KB}, v{vT[5]}, {srd(S_WE)}, s{sT1} offen")
e(f"buffer_load_ushort v{KB+1}, v{vT[5]}, {srd(S_WE)}, s{sT1} offen offset:256")
e(f"s_add_u32 s{sX1}, s{sT2}, {REC}")
e(f"s_lshl_b32 s{sT3}, s{sRQ}, 12")
e(f"s_add_u32 s{sT3}, s{sT3}, s{sX1}          ; + half*4096")
e(f"s_lshl_b32 s{sX0}, s{sRQ}, 14")
stamp("role loads issued", 2)
c("zero REC[32768, 65536) (the first 32 KB stage W1 and are zeroed after use)")
for i in range(4):
    e(f"ds_write_b128 v{vT[0]}, {vr(Z,4)} offset:{32768 - 8192 + i*8192}")
c("let the role loads go first")
if YM == 1:
    e(f"s_cmp_lt_u32 s2, {BIN0}")
    e("s_cbranch_scc1 L_f_noriss")
wait_cnt(RISS, 8)
if YM == 1: lab("L_f_noriss")
stamp("B1", 4)
c("W1 slice ct (w_e rows 0..127): this wave loads k-steps 4*half .. 4*half+3")
for i in range(4):
    e(f"s_add_u32 m0, s{sT3}, {i*1024}")
    e(f"s_add_u32 s{sT1}, s{sX0}, {i*4096}")
    e(f"buffer_load_dwordx4 v{vT[2]}, {srd(S_WE)}, s{sT1} offen lds")
lane_consts()
e("s_waitcnt vmcnt(4)")
arrive(FCNT)
c("wave 10: PTF (f32 x4 per node)")
e(f"s_cmp_eq_u32 s{fw}, 2")
e("s_cbranch_scc0 L_noptf")
for k in range(3): e(f"v_lshlrev_b32 v{PWR+k}, 16, v{PWR+k}")
e(f"v_mov_b32 v{PWR+3}, 0")
e(f"v_lshlrev_b32 v{vT[0]}, 4, v{vL}")
e(f"v_add_u32 v{vT[0]}, {PTF}, v{vT[0]}")
e(f"v_cmp_gt_u32 vcc, 40, v{vL}")
e("s_mov_b64 exec, vcc")
e(f"ds_write_b128 v{vT[0]}, {vr(PWR,4)}")
e("s_mov_b64 exec, -1")
lab("L_noptf")
stamp("role loads landed", 3)
trpat(vT[6], vT[0], vT[1])
e(f"v_add_u32 v{vT[6]}, s{sX1}, v{vT[6]}")
c("P' task: rows m: slot = m&7, g' = m>>3 ; node = 5*(4B + g') + max(slot-3,0), B = half")
e(f"v_lshrrev_b32 v{vT[3]}, 5, v{vL}           ; hi")
e(f"v_and_b32 v{vT[0]}, 7, v{vL}")
e(f"v_subrev_u32 v{vT[0]}, 3, v{vT[0]}")
e(f"v_max_i32 v{vT[0]}, 0, v{vT[0]}")
e(f"v_bfe_u32 v{vT[1]}, v{vL}, 3, 2")
e(f"v_mad_u32_u24 v{vT[0]}, v{vT[1]}, 5, v{vT[0]}        ; node (B=0)")
e(f"s_mul_i32 s{sT0}, s{sRQ}, 20")
e(f"v_add_u32 v{vT[0]}, s{sT0}, v{vT[0]}")
row_addr(vT[1], vT[0], vT[3], vT[2])
c("K1B: (wd, we) scaled, hi and lo parts")
e(f"s_mov_b32 s{sT0}, 0x{NLOG2E:08x}")
e(f"s_mov_b32 s{sT1}, 0xffff0000")
k0, k1, k2, k3 = 116, 117, 118, 119
e(f"v_lshlrev_b32 v{k0}, 16, v{KB}")
e(f"v_lshlrev_b32 v{k1}, 16, v{KB+1}")
e(f"v_mul_f32 v{k0}, s{sT0}, v{k0}")
e(f"v_mul_f32 v{k1}, s{sT0}, v{k1}")
e(f"v_cvt_pk_bf16_f32 v{KB}, v{k0}, v{k1}")
e(f"v_lshlrev_b32 v{k2}, 16, v{KB}")
e(f"v_and_b32 v{k3}, s{sT1}, v{KB}")
e(f"v_sub_f32 v{k0}, v{k0}, v{k2}")
e(f"v_sub_f32 v{k1}, v{k1}, v{k3}")
e(f"v_cvt_pk_bf16_f32 v{KB+1}, v{k0}, v{k1}")
c("P' write: BXP + g*2048 + (32ct + n)*16 + hi*8 ; hi=0 lanes: slots 0,1 = (wd,we) hi ; slot 2 = wd lo ; slot 3 = P'[j=0]")
vPW, vPM = 126, 127 if not TIMING else 115
e(f"v_and_b32 v{vPW}, 31, v{vL}")
e(f"v_lshlrev_b32 v{vPW}, 4, v{vPW}")
e(f"v_lshl_add_u32 v{vPW}, v{vT[3]}, 3, v{vPW}")
e(f"s_lshl_b32 s{sT0}, s{sCT}, 9")
e(f"s_lshl_b32 s{sT1}, s{sRQ}, 13")
e(f"s_add_u32 s{sT0}, s{sT0}, s{sT1}")
e(f"s_add_u32 s{sT0}, s{sT0}, {BXP}")
e(f"v_add_u32 v{vPW}, s{sT0}, v{vPW}")
e(f"v_cmp_gt_u32 vcc, 32, v{vL}")
e(f"v_mov_b32 v{vPM}, 0xffff0000")
e(f"v_cndmask_b32 v{vPM}, -1, v{vPM}, vcc         ; mask M")
e(f"v_and_b32 v{KB+1}, 0xffff, v{KB+1}")
e(f"v_cndmask_b32 v{KB+1}, 0, v{KB+1}, vcc")
e(f"s_mov_b32 s{sK2}, 0x{NLOG2E + ((7 << 23) if F16 else 0):08x}")
for i in range(4): e(f"v_mov_b32 v{116+i}, 0")
e("s_waitcnt vmcnt(0)")
stamp("slices landed", 6)
arrive(FCB)
c("---- granule (16 B, two records) per lane: c = 8fw + (l>>3), q = l&7 : c*32000 + q*16 (+ b*128)")
e(f"s_lshl_b32 s{sT0}, s{fw}, 3")
e(f"v_lshrrev_b32 v{vT[4]}, 3, v{vL}")
e(f"v_add_u32 v{vT[4]}, s{sT0}, v{vT[4]}          ; c")
e(f"v_mul_u32_u24 v{vGA}, {CHB}, v{vT[4]}")
e(f"v_and_b32 v{vT[5]}, 7, v{vL}")
e(f"v_lshl_add_u32 v{vGA}, v{vT[5]}, 4, v{vGA}")
e(f"v_lshlrev_b32 v{vT[0]}, 4, v{vL}")
e(f"s_lshl_b32 s{sT0}, s{fw}, 12")
e(f"v_add_u32 v{vT[0]}, s{sT0}, v{vT[0]}")
e(f"v_cmp_gt_u32 {sp(sPA)}, {NCH}, v{vT[4]}")
e(f"s_lshl_b32 s{sT2}, s2, 7")
e(f"s_add_u32 s{sT3}, s{sT2}, {CELLB}")
e(f"s_mov_b64 {sp(sPB)}, {sp(sPA)}")
e(f"s_mov_b64 {sp(sEX)}, {sp(sPA)}")
e(f"s_sub_u32 s{sLOW}, s{sTW}, {DELTA}")
if FORCE == "ovf":
    e(f"s_add_u32 s{sLOW}, s{sLOW}, 0x40000000")
e(f"s_mov_b32 s{sK3}, {WIN}")
e(f"s_mov_b32 s{sCNT}, 0")
e(f"s_mov_b64 {sp(sM2)}, {sp(sPB)}")
wait_cnt(FCB, 8)
stamp("fcb", 45)
for s_ in range(8):
    e(f"ds_read_b64_tr_b16 {vr(WF+4*s_,2)}, v{vT[6]} offset:{s_*1024}")
    e(f"ds_read_b64_tr_b16 {vr(WF+4*s_+2,2)}, v{vT[6]} offset:{s_*1024+256}")
_pi = [0]
def poll_issue():
    i = _pi[0]; _pi[0] += 1
    e(f"s_cmp_eq_u64 {sp(sPA)}, 0")
    e(f"s_cbranch_scc1 L_rp_noa{i}")
    e(f"s_mov_b64 exec, {sp(sPA)}")
    e(f"buffer_load_dwordx4 {vr(RA,4)}, v{vGA}, {srd(S_WS)}, s{sT2} offen sc1")
    lab(f"L_rp_noa{i}")
    e(f"s_cmp_eq_u64 {sp(sM2)}, 0")
    e(f"s_cbranch_scc1 L_rp_nob{i}")
    e(f"s_mov_b64 exec, {sp(sM2)}")
    e(f"buffer_load_dwordx4 {vr(RB,4)}, v{vGA}, {srd(S_WS)}, s{sT3} offen sc1")
    lab(f"L_rp_nob{i}")
    e("s_mov_b64 exec, -1")
def pwrite(r0, g):
    for i in range(4):
        e(f"v_mul_f32 v{r0+i}, s{sK2}, v{r0+i}")
    e(f"v_cvt_pk_bf16_f32 v{r0}, v{r0}, v{r0+1}")
    e(f"v_cvt_pk_bf16_f32 v{r0+1}, v{r0+2}, v{r0+3}")
    e(f"v_cndmask_b32 v{r0}, v{r0}, v{KB}, vcc")
    e(f"v_and_or_b32 v{r0+1}, v{r0+1}, v{vPM}, v{KB+1}")
    e(f"ds_write_b64 v{vPW}, {vr(r0,2)} offset:{g*2048}")
def p_compute(first):
    for s_ in range(8):
        e(f"v_xor_b32 v{vT[2]}, {s_<<5}, v{vT[1]}")
        e(f"ds_read_b128 {vr(rowreg(s_),4)}, v{vT[2]}")
    for s_ in range(8):
        e(f"s_waitcnt lgkmcnt({7-s_})")
        mfma(FACC, rowreg(s_), WF+4*s_, "0" if s_ == 0 else vr(FACC,16))
    stamp("mfma issued", 46)
    e(f"v_cmp_gt_u32 vcc, 32, v{vL}")
    e("s_nop 7")
    e("s_nop 3")
    for g in range(4):
        pwrite(FACC+4*g, g)
e("s_waitcnt lgkmcnt(0)")
FR = (112, 113)
arrive(FCC, FR)
if not PLATE: p_compute(True)
c("all eight waves hold their fragments: zero the staging area (4 KB per wave)")
wait_cnt(FCC, 8, regs=FR)
for i in range(4):
    e(f"ds_write_b128 v{vT[0]}, {vr(116,4)} offset:{REC + i*1024}")
e("s_waitcnt lgkmcnt(0)")
arrive(FCNT2, FR)
stamp("front done", 5)
if not NOPRIO: e(f"s_setprio {FPRIO}")
if PLATE == 2: p_compute(True)
if PSL: e(f"s_sleep {PSL}")
poll_issue()
stamp("B3", 7)
if PLATE == 1: p_compute(True)
if HOIST:
    assert PLATE == 1
    id_consts(vT[0], vT[1])
    seg_zero()
if FINR: final_addr(False)
e("s_branch L_rpoll")

def dma_issue(va, vb, sbuf):
    if not IDX:
        e(f"v_lshl_add_u32 v{va}, v{va}, 8, v{vQD}")
        e(f"v_lshl_add_u32 v{vb}, v{vb}, 8, v{vQD}")
    e(f"s_mov_b32 m0, s{sbuf}")
    e(f"s_nop 0")
    if IDX: e(f"buffer_load_dwordx4 {vr(va,2)}, {srd(S_Q)}, 0 idxen offen{QSC} lds")
    else:   e(f"buffer_load_dwordx4 v{va}, {srd(S_Q)}, 0 offen{QSC} lds")
    e(f"s_add_u32 m0, s{sbuf}, 1024")
    e(f"s_nop 0")
    if IDX: e(f"buffer_load_dwordx4 {vr(vb,2)}, {srd(S_Q)}, 0 idxen offen{QSC} lds")
    else:   e(f"buffer_load_dwordx4 v{vb}, {srd(S_Q)}, 0 offen{QSC} lds")
vLKr, vODr, vTRSr, vTRSr2, vLKr2 = 92, 93, 94, 95, 14
PA, PB = 10, 12
LK = [PA, PB, 80, 82]
def fg_prep():
    e(f"v_xor_b32 v{vLKr2}, 32, v{vLK}")
    if IDX:
        for k in range(4): e(f"v_mov_b32 v{LK[k]+1}, v{vQD}")
def prep_post():
    e(f"s_lshl_b32 s{sT0}, s{sG}, 2")
    e(f"s_add_u32 s{sT0}, s{sT0}, {ALLOC}")
    e(f"v_mov_b32 v{vT[0]}, s{sT0}")
    e(f"v_mov_b32 v{vT[1]}, {OVF}")
def bal_compute():
    C = [68 + i for i in range(8)]
    e(f"v_mov_b32 v{vT[0]}, {ALLOC}")
    e(f"ds_read_b128 {vr(84,4)}, v{vT[0]}")
    e(f"ds_read_b128 {vr(88,4)}, v{vT[0]} offset:16")
    e("s_waitcnt lgkmcnt(0)")
    for g in range(8): e(f"v_readfirstlane_b32 s{C[g]}, v{84+g}")
    e("s_nop 1")
    for g in range(8):
        e(f"s_min_u32 s{C[g]}, s{C[g]}, {CAP}")
        e(f"s_add_u32 s{C[g]}, s{C[g]}, 7")
        e(f"s_lshr_b32 s{C[g]}, s{C[g]}, 3")
    for k in range(4): e(f"s_sub_i32 s{C[2*k]}, s{C[2*k]}, s{C[2*k+1]}")
    S = C[0]
    e(f"s_mov_b32 s{sT3}, 0")
    for k in range(1, 4):
        d, nd, t = C[2*k], C[2*k+1], C[1]
        e(f"s_mul_i32 s{t}, s{S}, s{d}")
        e(f"s_sub_i32 s{nd}, 0, s{d}")
        e(f"s_cmp_gt_i32 s{t}, 0")
        e(f"s_cselect_b32 s{d}, s{nd}, s{d}")
        e(f"s_cselect_b32 s{t}, {1 << k}, 0")
        e(f"s_or_b32 s{sT3}, s{sT3}, s{t}")
        e(f"s_add_i32 s{S}, s{S}, s{d}")
def bal_apply(sbits, tag):
    e(f"s_lshr_b32 s{sT0}, s{sbits}, s{sQ}")
    e(f"s_and_b32 s{sT0}, s{sT0}, 1")
    e(f"s_cbranch_scc0 L_bal_no{tag}")
    e(f"s_and_b32 s{sT0}, s{sG}, 1")
    e(f"s_xor_b32 s{sG}, s{sG}, 1")
    e(f"s_cmp_eq_u32 s{sT0}, 0")
    e(f"s_cselect_b32 s{sT1}, 1, -1")
    e(f"s_mul_i32 s{sT0}, s{sT1}, {GSTR}")
    e(f"s_lshl_b32 s{sT1}, s{sT1}, 13")
    e(f"s_add_u32 s{sB0}, s{sB0}, s{sT1}")
    e(f"s_add_u32 s{sB1}, s{sB1}, s{sT1}")
    e(f"v_add_u32 v{vLK}, s{sT0}, v{vLK}")
    e(f"v_add_u32 v{vTRS}, s{sT0}, v{vTRS}")
    e(f"v_add_u32 v{vTRQ0}, s{sT1}, v{vTRQ0}")
    e(f"v_add_u32 v{vTRQ1}, s{sT1}, v{vTRQ1}")
    e(f"v_lshrrev_b32 v{vT[2]}, {11 if IMM else 10}, v{vODM}")
    e(f"v_mad_i32_i24 v{vOD}, v{vT[2]}, s{sT0}, v{vOD}")
    lab(f"L_bal_no{tag}")
def first_gathers(extra=None, part=3, prep=True):
    if not part & 1:
        dma_issue(LK[0], LK[1], sB0)
        if PREFN == 2: dma_issue(LK[2], LK[3], sB1)
        return
    if prep: e(f"v_xor_b32 v{vLKr2}, 32, v{vLK}")
    e(f"ds_read_u16 v{LK[0]}, v{vLK}")
    e(f"ds_read_u16 v{LK[1]}, v{vLKr2} offset:512")
    e(f"ds_read_u16 v{LK[2]}, v{vLK} offset:1024")
    e(f"ds_read_u16 v{LK[3]}, v{vLKr2} offset:1536")
    n = extra() if extra else 0
    if IDX and prep:
        for k in range(4): e(f"v_mov_b32 v{LK[k]+1}, v{vQD}")
    if not part & 2:
        e("s_waitcnt lgkmcnt(0)")
        return
    e(f"s_waitcnt lgkmcnt({2+n})")
    dma_issue(LK[0], LK[1], sB0)
    e(f"s_waitcnt lgkmcnt({n})")
    dma_issue(LK[2], LK[3], sB1)
lab("L_common")
c("---- R waves: no records ; wave 7 waits for the Q / WH2F flags")
for m in MK: e(f"s_mov_b64 {sp(m)}, 0")
if HOIST:
    id_consts(vT[0], vT[1])
    seg_zero()
if FINR and not RFE: final_addr(True)
if FINR == 2 and not RFE: final_addr_res("r")
vQP = vT[7]
def qpoll_issue():
    e("s_mov_b32 exec_lo, -1")
    e("s_mov_b32 exec_hi, 0x1ff")
    e(f"buffer_load_dwordx4 {vr(RA,4)}, v{vQP}, {srd(S_WS)}, s{sT2} offen sc1")
if PREF: wait_cnt(RH1, 8, regs=FR)
e(f"s_cmp_eq_u32 s{sW}, 7")
e(f"s_cbranch_scc0 {'L_rlk' if PREF else 'L_ba'}")
if QGATE: wait_cnt(RLAND, QGATE, regs=FR)
e(f"v_lshlrev_b32 v{vQP}, 4, v{vL}")
e(f"s_mov_b32 s{sCNT}, 0")
e(f"s_and_b32 s{sT2}, s2, {FCOPY-1}")
e(f"s_mul_i32 s{sT2}, s{sT2}, {FSTR}")
e(f"s_add_u32 s{sT2}, s{sT2}, {FLG}")
e(f"s_sub_u32 s{sLOW}, s{sTW}, {DELTA}")
if FORCE == "fb":
    e(f"s_add_u32 s{sLOW}, s{sLOW}, 0x40000000")
e(f"s_mov_b32 s{sK3}, {WIN}")
if PREF:
    qpoll_issue()
    e("s_mov_b64 exec, -1")
    lab("L_rlk")
    c("all records have their source node in REC: look up the source nodes of the first two tiles")
    wait_cnt(RPL, 8, regs=FR, slp=RPS)
    if BAL:
        bal_compute()
        e(f"s_cmp_eq_u32 s{sW}, 0")
        e("s_cbranch_scc0 L_bal_np")
        c("wave 0 publishes the swap bits for the F waves")
        e(f"s_or_b32 s{sT0}, s{sT3}, 0x100")
        e(f"v_mov_b32 v{vT[0]}, {MAPW}")
        e(f"v_mov_b32 v{vT[1]}, s{sT0}")
        e(f"ds_write_b32 v{vT[0]}, v{vT[1]}")
        lab("L_bal_np")
        bal_apply(sT3, "r")
    first_gathers(part=1)
    e(f"s_cmp_eq_u32 s{sW}, 7")
    e("s_cbranch_scc0 L_rwait")
    e("s_mov_b32 exec_lo, -1")
    e("s_mov_b32 exec_hi, 0x1ff")
    e("s_branch L_qpoll1")
lab("L_qpoll")
qpoll_issue()
lab("L_qpoll1")
e(f"s_add_u32 s{sCNT}, s{sCNT}, 1")
e("s_waitcnt vmcnt(0)")
stamp_dyn(19, sCNT)
for k in range(4):
    e(f"v_xor_b32 v{RA+k}, {FLC}, v{RA+k}")
for k in range(4):
    e(f"v_subrev_u32 v{RA+k}, s{sLOW}, v{RA+k}")
e(f"v_max_u32 v{RA}, v{RA}, v{RA+1}")
e(f"v_max3_u32 v{RA}, v{RA}, v{RA+2}, v{RA+3}")
e(f"v_cmp_le_u32 vcc, s{sK3}, v{RA}")
e("s_cmp_eq_u64 vcc, 0")
e("s_cbranch_scc1 L_qp_ok")
e(f"s_sleep {QSL}")
e(f"s_cmp_lt_u32 s{sCNT}, {NPOLL}")
e("s_cbranch_scc1 L_qpoll")
e(f"v_mov_b32 v{vT[0]}, {OVF}")
e(f"v_mov_b32 v{vT[1]}, 2")
e(f"ds_or_b32 v{vT[0]}, v{vT[1]}")
lab("L_qp_ok")
e("s_mov_b64 exec, -1")
if PREF:
    arrive(QOKF, FR)
    e("s_branch L_rpre")
    lab("L_rwait")
    wait_cnt(QOKF, 1, regs=FR, slp=RWS)
    lab("L_rpre")
    c("gather the first two tiles now (all R waves hold their H1 fragments: the tile buffers are free)")
    first_gathers(part=2)
    if PREB: prep_post()
    e(f"s_mov_b32 s{sPREF}, 1")
e("s_branch L_ba")
_st[0] = 8
def gcheck(G, M, M2):
    e(f"v_bfe_u32 v{vT[2]}, v{G+3}, 3, 9")
    e(f"v_xor_b32 v{vT[2]}, {TAGC}, v{vT[2]}")
    e(f"v_lshrrev_b32 v{vT[0]}, 23, v{G}")
    e(f"v_lshrrev_b32 v{vT[1]}, 23, v{G+2}")
    e(f"v_subrev_u32 v{vT[3]}, s{sLOW}, v{G+3}")
    e(f"v_cmp_eq_u32 {M}, v{vT[0]}, v{vT[2]}")
    e(f"v_cmp_eq_u32 {M2}, v{vT[1]}, v{vT[2]}")
    e(f"s_and_b64 {M}, {M}, {M2}")
    e(f"v_cmp_gt_u32 {M2}, s{sK3}, v{vT[3]}")
    e(f"s_and_b64 {M}, {M}, {M2}")
e("s_branch L_rpoll")
lab("L_rpoll_again")
poll_issue()
lab("L_rpoll")
e(f"s_add_u32 s{sCNT}, s{sCNT}, 1")
e("s_waitcnt vmcnt(0)")
stamp_dyn(19, sCNT)
gcheck(RA, "vcc", sp(sM0))
e(f"s_andn2_b64 {sp(sPA)}, {sp(sPA)}, vcc")
gcheck(RB, sp(sM1), sp(sM0))
e(f"v_bfe_u32 v{vT[0]}, v{RA}, 22, 1")
e(f"s_andn2_b64 {sp(sPB)}, {sp(sPB)}, {sp(sM1)}")
e(f"v_cmp_ne_u32 vcc, 0, v{vT[0]}                ; more")
e(f"s_andn2_b64 vcc, vcc, {sp(sPA)}")
if BSPEC:
    e(f"s_or_b64 vcc, vcc, {sp(sPA)}")
e(f"s_and_b64 {sp(sM2)}, {sp(sPB)}, vcc")
e(f"s_or_b64 vcc, {sp(sPA)}, {sp(sM2)}")
e("s_cmp_eq_u64 vcc, 0")
e("s_cbranch_scc1 L_rp_ok")
e(f"s_sleep {RSL}")
e(f"s_cmp_lt_u32 s{sCNT}, {NPOLL}")
e("s_cbranch_scc1 L_rpoll_again")
c("timed out: take the slow path")
e(f"v_mov_b32 v{vT[0]}, {OVF}")
e(f"v_mov_b32 v{vT[1]}, 1")
e(f"ds_or_b32 v{vT[0]}, v{vT[1]}")
e(f"s_andn2_b64 {sp(sEX)}, {sp(sEX)}, vcc")
lab("L_rp_ok")
e("s_mov_b64 exec, -1")
arrive(RLAND, FR)
stamp("records landed")
c("masks: a,b = valid bits of granule A ; c,d = valid bits of granule B & more")
RCS = [RA, RA+2, RB, RB+2]
e(f"v_bfe_u32 v{vT[0]}, v{RA}, 20, 1")
e(f"v_bfe_u32 v{vT[1]}, v{RA+2}, 20, 1")
e(f"v_bfe_u32 v{vT[2]}, v{RB}, 20, 1")
e(f"v_bfe_u32 v{vT[3]}, v{RB+2}, 20, 1")
e(f"v_bfe_u32 v{vT[4]}, v{RA}, 22, 1")
e(f"v_bfe_u32 v{vT[5]}, v{RA}, 21, 2")
e(f"v_and_b32 v{vT[2]}, v{vT[2]}, v{vT[4]}")
e(f"v_and_b32 v{vT[3]}, v{vT[3]}, v{vT[4]}")
for k in range(4):
    e(f"v_cmp_ne_u32 {sp(MK[k])}, 0, v{vT[k]}")
e(f"v_cmp_eq_u32 {sp(sM2)}, 3, v{vT[5]}")
for k in range(4):
    e(f"s_and_b64 {sp(MK[k])}, {sp(MK[k])}, {sp(sEX)}")
e(f"s_and_b64 {sp(sM2)}, {sp(sM2)}, {sp(sEX)}")
e(f"v_mov_b32 v{vOne}, 1")
e(f"s_mov_b32 s{sT0}, {ALLOC}")
VS = [91, 92, 93, 94]
def s1_issue(k):
    e(f"v_and_b32 v{VS[k]}, 0x3fff, v{RCS[k]}")
    e(f"v_mul_u32_u24 v{vT[0]}, 6, v{VS[k]}")
    e(f"v_and_b32 v{vT[0]}, -4, v{vT[0]}")
    e(f"s_mov_b64 exec, {sp(MK[k])}")
    e(f"buffer_load_dwordx2 {vr(PS[k],2)}, v{vT[0]}, {srd(S_POS)}, 0 offen")
    e(f"v_bfe_u32 v{VJ[k]}, v{RCS[k]}, 14, 6          ; k")
    e(f"v_mul_u32_u24 v{VI[k]}, 52, v{VJ[k]}")
    e(f"v_lshrrev_b32 v{VI[k]}, 8, v{VI[k]}           ; g")
    e(f"v_lshl_add_u32 v{vT[1]}, v{VI[k]}, 2, s{sT0}")
    e(f"ds_add_rtn_u32 v{VR[k]}, v{vT[1]}, v{vOne}")
    e(f"v_mul_u32_u24 v{vT[1]}, 5, v{VI[k]}")
    e(f"v_sub_u32 v{VJ[k]}, v{VJ[k]}, v{vT[1]}        ; j")
    e("s_mov_b64 exec, -1")
    e(f"v_mul_u32_u24 v{VI[k]}, {GSTR}, v{VI[k]}")
c("REC must be zero before placement (all F waves have zeroed their staging)")
wait_cnt(FCNT2, 8, dst=sT1, regs=FR)
for k in range(4):
    e(f"s_cmp_eq_u64 {sp(MK[k])}, 0")
    e(f"s_cbranch_scc1 L_s1i{k}")
    s1_issue(k)
    lab(f"L_s1i{k}")
e(f"s_cmp_eq_u64 {sp(sM2)}, 0")
e("s_cbranch_scc1 L_s1_noovf")
e(f"v_mov_b32 v{vT[0]}, {OVF}")
e(f"ds_or_b32 v{vT[0]}, v{vOne}")
lab("L_s1_noovf")
def s1_place(vR, vI, vS, msk, tag, slow=False):
    e(f"v_cmp_gt_u32 vcc, {CAP}, v{vR}")
    e(f"v_lshl_add_u32 v{vI}, v{vR}, 6, v{vI}")
    e(f"v_bfe_u32 v{vR}, v{vR}, 2, 2")
    e(f"v_lshl_add_u32 v{vI}, v{vR}, 4, v{vI}")
    e(f"v_xor_b32 v{vR}, 16, v{vI}")
    e(f"s_andn2_b64 exec, {sp(msk)}, vcc")
    e(f"s_cbranch_execz L_s1_ok{tag}")
    if slow:
        e(f"v_mov_b32 v{qP}, 1")
        e(f"v_mov_b32 v{vT[0]}, {PEND}")
        e(f"ds_write_b32 v{vT[0]}, v{vOne}")
    else:
        e(f"v_mov_b32 v{vT[0]}, {OVF}")
        e(f"ds_or_b32 v{vT[0]}, v{vOne}")
    lab(f"L_s1_ok{tag}")
    e(f"s_and_b64 {sp(msk)}, {sp(msk)}, vcc")
    e(f"s_mov_b64 exec, {sp(msk)}")
    e(f"ds_write_b16 v{vR}, v{vS} offset:{REC}")
    e("s_mov_b64 exec, -1")
e("s_waitcnt lgkmcnt(0)")
for k in range(4):
    e(f"s_cmp_eq_u64 {sp(MK[k])}, 0")
    e(f"s_cbranch_scc1 L_s1p{k}")
    s1_place(VR[k], VI[k], VS[k], MK[k], "abcd"[k])
    lab(f"L_s1p{k}")
if PREF: arrive(RPL, FR)
lab("L_st2")
c("stage 2 (sparse, up to four records per lane)")
PD = [48, 52, 112, 116]
e(f"s_mov_b32 s{sT0}, {PTF}")
e(f"s_mov_b32 s{sK2}, 0xffff0000")
e(f"v_mov_b32 v{vT[6]}, {'0x3c00' if F16 else '0x3f80'}")
for k in range(4):
    e(f"s_cmp_eq_u64 {sp(MK[k])}, 0")
    e(f"s_cbranch_scc1 L_s2r{k}")
    e(f"v_bfe_u32 v{vT[5]}, v{RCS[k]}, 14, 6              ; k")
    e(f"v_min_u32 v{vT[5]}, 39, v{vT[5]}")
    e(f"v_lshl_add_u32 v{vT[5]}, v{vT[5]}, 4, s{sT0}")
    e(f"ds_read_b128 {vr(PD[k],4)}, v{vT[5]}")
    lab(f"L_s2r{k}")
e("s_waitcnt vmcnt(0) lgkmcnt(0)")
stamp("pos landed", 12)
if BAL:
    assert PREF
    e(f"v_mov_b32 v{vT[3]}, {MAPW}")
    e(f"ds_read_b32 v{vT[4]}, v{vT[3]}")
def stage2_pass(rec, ea, hi_half, ps, pd, row, msk, tag, vj):
    X = [84, 85, 86, 87, 91, 92]
    e_ = globals()["e"]
    def e(x):
        if "2" in KO and x.startswith("ds_write"): return
        e_(x)
    e(f"s_cmp_eq_u64 {sp(msk)}, 0")
    e(f"s_cbranch_scc1 L_s2_done{tag}")
    e(f"s_mov_b64 exec, {sp(msk)}")
    e(f"v_and_b32 v{X[0]}, 1, v{rec}")
    e(f"v_lshlrev_b32 v{X[0]}, 4, v{X[0]}        ; shift")
    e(f"v_alignbit_b32 v{X[1]}, v{ps+1}, v{ps}, v{X[0]}     ; x | y<<16")
    e(f"v_lshrrev_b32 v{X[2]}, v{X[0]}, v{ps+1}              ; z (low 16)")
    e(f"v_lshlrev_b32 v{ps}, 16, v{X[1]}")
    e(f"v_and_b32 v{ps+1}, s{sK2}, v{X[1]}")
    e(f"v_lshlrev_b32 v{X[2]}, 16, v{X[2]}")
    e(f"v_sub_f32 v{pd}, v{pd}, v{ps}")
    e(f"v_sub_f32 v{pd+1}, v{pd+1}, v{ps+1}")
    e(f"v_sub_f32 v{pd+2}, v{pd+2}, v{X[2]}")
    e(f"v_cvt_pk_bf16_f32 v{X[0]}, v{pd}, v{pd+1}")
    e(f"v_cvt_pk_bf16_f32 v{X[1]}, v{pd+2}, v{pd+2}     ; dz")
    e(f"v_lshlrev_b32 v{pd}, 16, v{X[0]}")
    e(f"v_and_b32 v{pd+1}, s{sK2}, v{X[0]}")
    e(f"v_lshlrev_b32 v{pd+2}, 16, v{X[1]}")
    e(f"v_lshl_add_u32 v{X[3]}, v{vj}, 1, v{row}")
    e(f"v_xor_b32 v{X[5]}, 16, v{X[3]}")
    if F16:
        e(f"v_cvt_pk_f16_f32 v{X[0]}, v{pd}, v{pd+1}")
        e(f"v_cvt_pk_f16_f32 v{X[1]}, v{pd+2}, v{pd+2}")
    e(f"ds_write_b16 v{X[3]}, v{vT[6]} offset:{REC+6}")
    e(f"ds_write_b16 v{X[5]}, v{X[0]} offset:{REC+6}")
    e(f"v_xor_b32 v{X[5]}, 32, v{X[3]}")
    e(f"v_xor_b32 v{X[3]}, 48, v{X[3]}")
    e(f"ds_write_b16_d16_hi v{X[5]}, v{X[0]} offset:{REC+6}")
    e(f"ds_write_b16 v{X[3]}, v{X[1]} offset:{REC+6}")
    for k in range(3):
        e(f"v_mul_f32 v{pd+k}, v{pd+k}, v{pd+k}")
    e(f"v_cvt_pk_bf16_f32 v{X[2]}, v{pd}, v{pd+1}")
    e(f"v_cvt_pk_bf16_f32 v{X[4]}, v{pd+2}, v{pd+2}")
    e(f"v_lshlrev_b32 v{pd}, 16, v{X[2]}")
    e(f"v_and_b32 v{pd+1}, s{sK2}, v{X[2]}")
    e(f"v_lshlrev_b32 v{pd+2}, 16, v{X[4]}")
    e(f"v_add_f32 v{pd}, v{pd}, v{pd+1}")
    e(f"v_add_f32 v{pd}, v{pd}, v{pd+2}")
    e(f"v_cvt_pk_bf16_f32 v{X[2]}, v{pd}, 0")
    if hi_half:
        e(f"v_and_or_b32 v{X[4]}, v{ea}, s{sK2}, v{X[2]}")
    else:
        e(f"v_lshl_or_b32 v{X[4]}, v{ea}, 16, v{X[2]}")
    e(f"ds_write_b32 v{row}, v{X[4]} offset:{REC}")
    e(f"ds_write_b16 v{row}, v{X[2]} offset:{REC+4}")
    e("s_mov_b64 exec, -1")
    lab(f"L_s2_done{tag}")
for k in range(4):
    stage2_pass(RCS[k], [RA+1, RB+1][k>>1], k & 1, PS[k], PD[k], VI[k], MK[k], "abcd"[k], VJ[k])
stamp("stage2 done", 13)
if BAL:
    e(f"s_cmp_eq_u32 s{sMODE}, 0")
    e("s_cbranch_scc0 L_bal_skip")
    lab("L_bal_chk")
    e("s_waitcnt lgkmcnt(0)")
    e(f"v_readfirstlane_b32 s{sT3}, v{vT[4]}")
    e("s_nop 1")
    e(f"s_bitcmp1_b32 s{sT3}, 8")
    e("s_cbranch_scc1 L_bal_ok")
    e("s_sleep 1")
    e(f"ds_read_b32 v{vT[4]}, v{vT[3]}")
    e("s_branch L_bal_chk")
    lab("L_bal_ok")
    bal_apply(sT3, "f")
    lab("L_bal_skip")
if PREB:
    assert PREF
    prep_post()
    fg_prep()
lab("L_ba")
stamp("placed+Q", 9)
if not NOPRIO: e(f"s_setprio {BAP}")
e(f"s_waitcnt lgkmcnt(0)")
e("s_barrier")
stamp("BA", 10)
if "B" in KO:
    e("s_waitcnt vmcnt(0)")
    e("s_branch L_end")

lab("L_post")
c("count of own group, OVF, lookups for tiles 0,1")
assert EARLY
if not PREB: prep_post()
def cnt_reads():
    e(f"ds_read_b32 v{vT[0]}, v{vT[0]}")
    e(f"ds_read_b32 v{vT[1]}, v{vT[1]}")
    return 2
e(f"s_cmp_eq_u32 s{sMODE}, 0")
e("s_cbranch_scc0 L_post_slow")
if PREF:
    e(f"s_cmp_eq_u32 s{sPREF}, 0")
    e("s_cbranch_scc1 L_post_g")
    cnt_reads()
    if PREFN == 1: dma_issue(LK[2], LK[3], sB1)
    e("s_branch L_post_fast")
    lab("L_post_g")
first_gathers(cnt_reads, prep=not PREB)
stamp("dma0 issued", 11)
e("s_branch L_post_fast")
lab("L_post_slow")
c("slow path: skip quickly if nothing was placed in this pass (no gather may be left in flight then)")
cnt_reads()
e(f"v_mov_b32 v{vT[7]}, {ALLOC}")
e(f"ds_read_b128 {vr(96,4)}, v{vT[7]}")
e(f"ds_read_b128 {vr(100,4)}, v{vT[7]} offset:16")
e("s_waitcnt lgkmcnt(0)")
e(f"v_or3_b32 v96, v96, v97, v98")
e(f"v_or3_b32 v96, v96, v99, v100")
e(f"v_or3_b32 v96, v96, v101, v102")
e(f"v_or_b32 v96, v96, v103")
e("s_nop 0")
e(f"v_readfirstlane_b32 s{sT0}, v96")
e(f"v_readfirstlane_b32 s{sCO}, v{vT[0]}")
e("s_nop 3")
e(f"s_cmp_lg_u32 s{sT0}, 0")
e("s_cbranch_scc1 L_post_sg")
e(f"s_mov_b32 s{sRETRY}, 0")
e("s_branch L_slow_adv")
lab("L_post_sg")
first_gathers()
e("s_branch L_post_go")
lab("L_post_fast")
e(f"s_waitcnt lgkmcnt({0 if EARLY else 4})")
e(f"v_readfirstlane_b32 s{sCO}, v{vT[0]}")
e(f"v_readfirstlane_b32 s{sT3}, v{vT[1]}           ; OVF")
e("s_nop 3")
e(f"s_cmp_lg_u32 s{sT3}, 0")
e("s_cbranch_scc1 L_slow_init")
lab("L_post_go")
e(f"s_min_u32 s{sCO}, s{sCO}, {CAP}")
e(f"s_add_u32 s{sNT}, s{sCO}, 15")
e(f"s_lshr_b32 s{sNT}, s{sNT}, 4")
if not EARLY:
    e("s_waitcnt lgkmcnt(2)")
    dma_issue(LK[0], LK[1], sB0)
    stamp("dma0 issued", 11)
if HOIST:
    e(f"s_cmp_eq_u32 s{sMODE}, 0")
    e("s_cbranch_scc1 L_noseg0")
id_consts(vT[0], vT[1])
c("SEG zero (first pass only)")
e(f"s_cmp_eq_u32 s{sNODE}, 0")
e("s_cbranch_scc1 L_noseg0")
e(f"s_mov_b32 s{sNODE}, 0")
seg_zero()
lab("L_noseg0")
c("BXF address: BXP + g*2048 + (64ch + l)*16   (l = 32hi + n)")
e(f"s_lshl_b32 s{sT0}, s{sG}, 11")
e(f"s_lshl_b32 s{sT1}, s{sCH2}, 10")
e(f"s_add_u32 s{sT0}, s{sT0}, s{sT1}")
e(f"s_add_u32 s{sT0}, s{sT0}, {BXP}")
e(f"v_lshlrev_b32 v{vT[0]}, 4, v{vL}")
e(f"v_add_u32 v{vT[0]}, s{sT0}, v{vT[0]}")
e(f"ds_read_b128 {vr(BXF,4)}, v{vT[0]}")
if not EARLY:
    e("s_waitcnt lgkmcnt(1)")
    dma_issue(LK[2], LK[3], sB1)
stamp("BB", 14)
_st[0] = 15
if not NOPRIO: e(f"s_setprio {PRIOS[0]}")
e(f"s_mov_b32 s{sU}, 0")
if XM:
    for i in range(4): e(f"v_mov_b32 v{124+i}, 0")
e("s_mov_b32 s6, 1.0")
e("s_mov_b32 s7, 1.0")
e(f"s_mov_b32 s{sREM}, s{sCO}")
e(f"s_mov_b32 s{sRT}, s{sNT}")
c("running pointers: vLKr / vLKr2 -> tile 2 ; working copies of vOD / vTRS")
e(f"v_add_u32 v{vLKr}, 2048, v{vLK}")
e(f"v_add_u32 v{vLKr2}, 2048, v{vLKr2}")
e(f"v_mov_b32 v{vODr}, v{vOD}")
e(f"v_mov_b32 v{vTRSr}, v{vTRS}")
e(f"v_xor_b32 v{vTRSr2}, 32, v{vTRS}")

def tile_body(buf):
    tag = f"t{buf}"
    sBUF = [sB0, sB1][buf]
    bo = buf * 2048
    c(f"---- tile (buffer {buf}) ----")
    e(f"s_cmp_gt_u32 s{sRT}, 2")
    e(f"s_cselect_b32 s{sK3}, 1, 0")
    e(f"s_cbranch_scc0 L_nolk{tag}")
    io = buf * 1024 if IMM else 0
    e(f"ds_read_u16 v{PA}, v{vLKr} offset:{io}")
    e(f"ds_read_u16 v{PB}, v{vLKr2} offset:{io+512}")
    lab(f"L_nolk{tag}")
    if "o" not in KO: e(f"ds_read_b128 {vr(OHD,4)}, v{vODr} offset:{io}")
    e(f"s_cmp_gt_u32 s{sRT}, 1")
    e(f"s_cbranch_scc1 L_w2{tag}")
    e("s_waitcnt vmcnt(0)")
    e(f"s_branch L_wd{tag}")
    lab(f"L_w2{tag}")
    e("s_waitcnt vmcnt(2)")
    lab(f"L_wd{tag}")
    if os.environ.get("TSTAMP"):
        e(f"s_memtime s[{sC4}:{sC5}]")
        e(f"s_min_u32 s3, s{sU}, 13")
        e(f"s_add_u32 m0, s3, 24")
        e(f"s_add_u32 s{sU}, s{sU}, 1")
        e("s_waitcnt lgkmcnt(0)")
        e(f"v_writelane_b32 v{VST}, s{sC4}, m0")
    if "q" not in KO:
      e(f"ds_read_b64_tr_b16 {vr(QF,2)}, v{vTRQ0} offset:{bo}")
      e(f"ds_read_b64_tr_b16 {vr(QF+2,2)}, v{vTRQ0} offset:{bo+512}")
      e(f"ds_read_b64_tr_b16 {vr(QF+4,2)}, v{vTRQ1} offset:{bo}")
      e(f"ds_read_b64_tr_b16 {vr(QF+6,2)}, v{vTRQ1} offset:{bo+512}")
    if "f" not in KO:
      e(f"ds_read_b64_tr_b16 {vr(SF,2)}, v{vTRSr} offset:{io}")
      e(f"ds_read_b64_tr_b16 {vr(SF+2,2)}, v{vTRSr2} offset:{io+512}")
    if buf == 1 or not IMM:
        st = 2048 if IMM else 1024
        e(f"v_add_u32 v{vLKr}, {st}, v{vLKr}")
        e(f"v_add_u32 v{vLKr2}, {st}, v{vLKr2}")
        e(f"v_add_u32 v{vODr}, v{vODM}, v{vODr}")
        e(f"v_add_u32 v{vTRSr}, {st}, v{vTRSr}")
        e(f"v_add_u32 v{vTRSr2}, {st}, v{vTRSr2}")
    e("s_waitcnt lgkmcnt(6)")
    mfma(ACC, OHD, BXF, "0")
    e("s_waitcnt lgkmcnt(4)")
    if "i" not in KO:
      mfma(ACC, ID, QF, vr(ACC,16))
      e("s_waitcnt lgkmcnt(2)")
      mfma(ACC, ID+4, QF+4, vr(ACC,16))
    for _ in range(XM):
        mfma(ACC, 124, QF+4*(_&1), vr(ACC,16))
    e(f"s_cmp_eq_u32 s{sK3}, 0")
    e(f"s_cbranch_scc1 L_nodma{tag}")
    if "d" not in KO: dma_issue(PA, PB, sBUF)
    lab(f"L_nodma{tag}")
    e("s_nop 7")
    e("s_nop 3")
    def blk(bb, t):
        a = ACC + 4*bb
        if "e" in KO:
            for i in range(4): e(f"v_mov_b32 v{t+i}, v{a+i}")
        else:
            for i in range(4): e(f"v_exp_f32 v{t+i}, v{a+i}")
        if PK & 1:
            if PK & 4:
                for i in (0, 2): e(f"v_pk_add_f32 {vr(t+i,2)}, {vr(t+i,2)}, 1.0 op_sel_hi:[1,0]")
            else:
                for i in (0, 2): e(f"v_pk_add_f32 {vr(t+i,2)}, {vr(t+i,2)}, s[6:7]")
        elif "a" not in KO:
            for i in range(4): e(f"v_add_f32 v{t+i}, 1.0, v{t+i}")
        if "r" not in KO:
            for i in range(4): e(f"v_rcp_f32 v{t+i}, v{t+i}")
        if PK & 2:
            for i in (0, 2): e(f"v_pk_mul_f32 {vr(t+i,2)}, {vr(a+i,2)}, {vr(t+i,2)}")
        elif "m" not in KO:
            for i in range(4): e(f"v_mul_f32 v{t+i}, v{a+i}, v{t+i}")
        e(f"v_cvt_pk_bf16_f32 v{MP+2*bb}, v{t}, v{t+1}")
        e(f"v_cvt_pk_bf16_f32 v{MP+2*bb+1}, v{t+2}, v{t+3}")
    def blk16(bbs):
        P = [(MP+2*bb+h, ACC+4*bb+2*h) for bb in bbs for h in range(2)]
        T = [TE+i for i in range(len(P))]
        for (m, a) in P: e(f"v_cvt_pk_f16_f32 v{m}, v{a}, v{a+1}")
        if "s" in KO: return
        if "h" in KO and bbs[0] == 1: return
        for (m, a), t in zip(P, T): e(f"v_exp_f16_sdwa v{t}, v{m} dst_sel:WORD_0 dst_unused:UNUSED_PAD src0_sel:WORD_0")
        for (m, a), t in zip(P, T): e(f"v_exp_f16_sdwa v{t}, v{m} dst_sel:WORD_1 dst_unused:UNUSED_PRESERVE src0_sel:WORD_1")
        for t in T: e(f"v_pk_add_f16 v{t}, v{t}, 1.0 op_sel_hi:[1,0]")
        for t in T: e(f"v_rcp_f16_sdwa v{t}, v{t} dst_sel:WORD_0 dst_unused:UNUSED_PRESERVE src0_sel:WORD_0")
        for t in T: e(f"v_rcp_f16_sdwa v{t}, v{t} dst_sel:WORD_1 dst_unused:UNUSED_PRESERVE src0_sel:WORD_1")
        for (m, a), t in zip(P, T): e(f"v_pk_mul_f16 v{m}, v{m}, v{t}")
    if F16: blk16((0, 2))
    else:
        blk(0, TE); blk(2, TE+4)
    e(f"s_cmp_le_u32 s{sREM}, 8")
    e(f"s_cbranch_scc1 L_skip{tag}")
    if F16: blk16((1, 3))
    else:
        blk(1, TE); blk(3, TE+4)
    e(f"s_branch L_blk{tag}")
    lab(f"L_skip{tag}")
    for r in (2, 3, 6, 7): e(f"v_mov_b32 v{MP+r}, 0")
    lab(f"L_blk{tag}")
    e("s_waitcnt lgkmcnt(0)")
    e("s_nop 1")
    if F16:
        e(f"v_mfma_f32_32x32x16_f16 {vr(SEG,16)}, {vr(MP,4)}, {vr(SF,4)}, {vr(SEG,16)}")
        e(f"v_mfma_f32_32x32x16_f16 {vr(SEG+16,16)}, {vr(MP+4,4)}, {vr(SF,4)}, {vr(SEG+16,16)}")
    else:
        mfma(SEG, MP, SF, vr(SEG,16))
        mfma(SEG+16, MP+4, SF, vr(SEG+16,16))
    e(f"s_sub_u32 s{sREM}, s{sREM}, 16")
    e(f"s_sub_u32 s{sRT}, s{sRT}, 1")
    if not NOPRIO:
        e(f"s_cmp_gt_u32 s{sRT}, 3")
        e(f"s_cbranch_scc1 L_pr{tag}")
        e(f"s_setprio {PRIOS[1]}")
        e(f"s_cmp_eq_u32 s{sRT}, 3")
        e(f"s_cbranch_scc1 L_pr{tag}")
        e(f"s_setprio {PRIOS[2]}")
        e(f"s_cmp_eq_u32 s{sRT}, 2")
        e(f"s_cbranch_scc1 L_pr{tag}")
        e(f"s_setprio {PRIOS[3]}")
        lab(f"L_pr{tag}")

e(f"s_cmp_eq_u32 s{sRT}, 0")
e("s_cbranch_scc1 L_tiles_done")
lab("L_tile_loop")
tile_body(0)
e(f"s_cmp_eq_u32 s{sRT}, 0")
e("s_cbranch_scc1 L_tiles_done")
tile_body(1)
e(f"s_cmp_lg_u32 s{sRT}, 0")
e("s_cbranch_scc1 L_tile_loop")
lab("L_tiles_done")
e("s_waitcnt vmcnt(0)")
if not NOPRIO: e("s_setprio 3")
stamp("tiles done")
if "T" in KO:
    e("s_branch L_end")
e(f"s_cmp_eq_u32 s{sMODE}, 0")
e("s_cbranch_scc0 L_slow_next")

lab("L_final")
WFL = 80
ROW = 16
HRES = 112
RX = [52, 56, 60, 120]
vN = vT[1]; vHI = vT[2]; vOFF = vT[3]; vRD_ = vT[4]
e(f"s_memrealtime s[6:7]")
e(f"v_and_b32 v{vN}, 31, v{vL}")
e(f"v_lshrrev_b32 v{vHI}, 5, v{vL}")
c("late frags: quads 0, 1: WH2F slice ct ; quad 2: wx frags")
def wh2f_loads():
    e(f"s_lshl_b32 s{sT0}, s{sCT}, 13")
    e(f"s_add_u32 s{sT0}, s{sT0}, {WH2F}")
    e(f"s_add_u32 s{sT1}, s{sT0}, 4096")
    e(f"v_lshlrev_b32 v{vT[0]}, 4, v{vL}")
    for s_ in range(8):
        e(f"buffer_load_dwordx4 {vr(WFL+4*s_,4)}, v{vT[0]}, {srd(S_WS)}, s{[sT0,sT1][s_>>2]} offen offset:{(s_%4)*1024}{WSC}")
def wx_loads():
    e(f"v_lshlrev_b32 v{vT[0]}, 4, v{vHI}")
    if WXL:
        e(f"v_add_u32 v{vT[0]}, {WXB}, v{vT[0]}")
        for s_ in range(8):
            e(f"ds_read_b128 {vr(WFL+4*s_,4)}, v{vT[0]} offset:{s_*32}")
        return
    for s_ in range(8):
        e(f"buffer_load_dwordx4 {vr(WFL+4*s_,4)}, v{vT[0]}, {srd(S_WX)}, 0 offen offset:{s_*32}")
if FLO:
    assert NL and FL3 and FINR == 2
    e(f"s_cmp_eq_u32 s{sQ}, 3")
    e("s_cbranch_scc1 L_f_flush3")
    e(f"s_cmp_eq_u32 s{sQ}, {QA}")
    e("s_cbranch_scc0 L_f_flush")
    wh2f_loads()
else:
    e(f"s_cmp_eq_u32 s{sQ}, {QC}")
    e("s_cbranch_scc1 L_f_wx")
    e(f"s_cmp_eq_u32 s{sQ}, 3")
    e(f"s_cbranch_scc1 {'L_f_flush3' if NL and FL3 else 'L_f_flush'}")
    wh2f_loads()
    e("s_branch L_f_flush")
    lab("L_f_wx")
    wx_loads()
lab("L_f_flush")
stamp("flush start", 49)
c("flush: lane (f=n, hi): addr = QTw + h*2048 + f*64 + ((bb ^ ((f>>2)&3) ^ (g&3))<<4) + hi*8")
if NL:
    assert FINR == 2
    flush_addr(vT[5], vN, vHI, vT[6], vT[7])
    if FL3:
        e("s_branch L_f_wr")
        lab("L_f_flush3")
        stamp("flush start", 49)
        e(f"v_mov_b32 v{vT[5]}, v{vFRD}")
        lab("L_f_wr")
    e(f"s_mov_b32 exec_lo, 0xf8f8f8f8")
    e(f"s_mov_b32 exec_hi, 0xf8f8f8f8")
    if not FL3: e("s_nop 3")
else:
    e(f"s_and_b32 s{sT0}, s{sG}, 3")
    e(f"v_bfe_u32 v{vT[5]}, v{vN}, 2, 2")
    e(f"v_xor_b32 v{vT[5]}, s{sT0}, v{vT[5]}")
    e(f"v_lshlrev_b32 v{vT[5]}, 4, v{vT[5]}")
    e(f"v_lshl_add_u32 v{vT[5]}, v{vN}, 6, v{vT[5]}")
    e(f"v_lshl_add_u32 v{vT[5]}, v{vHI}, 3, v{vT[5]}")
    e(f"v_add_u32 v{vT[5]}, s{sB0}, v{vT[5]}")
    e("s_nop 7")
    e("s_nop 3")
if FL3 and NL:
    for bb in range(1, 4): e(f"v_xor_b32 v{ACC+bb}, {bb<<4}, v{vT[5]}")
    for h in range(2):
        for bb in range(4):
            r0 = SEG + 16*h + 4*bb
            e(f"v_cvt_pk_bf16_f32 v{r0}, v{r0}, v{r0+1}")
            e(f"v_cvt_pk_bf16_f32 v{r0+1}, v{r0+2}, v{r0+3}")
            if bb: e(f"ds_write_b64 v{ACC+bb-1 if bb > 1 else vT[5]}, {vr(r0-4,2)} offset:{h*2048}")
            elif h: e(f"ds_write_b64 v{ACC+3}, {vr(r0-4,2)} offset:0")
    e(f"ds_write_b64 v{ACC+3}, {vr(SEG+28,2)} offset:2048")
else:
  for h in range(2):
      for bb in range(4):
          r0 = SEG + 16*h + 4*bb
          e(f"v_cvt_pk_bf16_f32 v{r0}, v{r0}, v{r0+1}")
          e(f"v_cvt_pk_bf16_f32 v{r0+1}, v{r0+2}, v{r0+3}")
          if "W" in KO: pass
          elif bb == 0:
              e(f"ds_write_b64 v{vT[5]}, {vr(r0,2)} offset:{h*2048}")
          else:
              e(f"v_xor_b32 v{vT[6]}, {bb<<4}, v{vT[5]}")
              e(f"ds_write_b64 v{vT[6]}, {vr(r0,2)} offset:{h*2048}")
if NL: e("s_mov_b64 exec, -1")
stamp("flush written", 50)
if FINR == 2:
    e(f"s_mul_i32 s{sNT}, s2, 40")
    e(f"s_cmp_eq_u32 s{sQ}, {QC}")
    e("s_cbranch_scc1 L_f_roleC")
    e(f"s_cmp_eq_u32 s{sQ}, {QB}")
    e("s_cbranch_scc1 L_f_roleB")
    e(f"s_cmp_eq_u32 s{sQ}, {QA}")
    e("s_cbranch_scc0 L_f_bar")
    for bb in range(4):
        e(f"v_xor_b32 v{vT[7]}, {bb<<4}, v{vFRES}")
        e(f"ds_read_b64 {vr(HRES+2*bb,2)}, v{vT[7]}")
    if FPK:
        e(f"s_mov_b32 s{sK3}, 0xffff0000")
        for bb in range(4):
            e(f"s_waitcnt lgkmcnt({3-bb})")
            e(f"v_lshlrev_b32 v{RX[bb]}, 16, v{HRES+2*bb}")
            e(f"v_and_b32 v{RX[bb]+1}, s{sK3}, v{HRES+2*bb}")
            e(f"v_lshlrev_b32 v{RX[bb]+2}, 16, v{HRES+2*bb+1}")
            e(f"v_and_b32 v{RX[bb]+3}, s{sK3}, v{HRES+2*bb+1}")
    e("s_branch L_f_bar")
    lab("L_f_roleB")
    if FLO: wh2f_loads()
    for i in range(4):
        e(f"v_xor_b32 v{vT[5]}, {i<<4}, v{vFRES}")
        e(f"ds_read_u16 v{HRES+i}, v{vT[5]} offset:{i*256}")
    if FPK:
        for i in range(4):
            e(f"s_waitcnt lgkmcnt({3-i})")
            e(f"v_lshlrev_b32 v{HRES+i}, 16, v{HRES+i}")
    if FBP != 3: e(f"s_setprio {FBP}")
    e("s_branch L_f_bar")
    lab("L_f_roleC")
    if FLO: wx_loads()
    if FBP != 3: e(f"s_setprio {FBP}")
    vNODE = vT[5]; vCMP = vT[6]
    rolec_node(vN, vNODE, vCMP, vT[0], vT[7])
    c("role C: pos residual PTF[node][comp-1] ; out offset (40b + node)*6 + (comp-1)*2")
    e(f"v_lshlrev_b32 v{vT[0]}, 4, v{vNODE}")
    e(f"v_lshl_add_u32 v{vT[0]}, v{vCMP}, 2, v{vT[0]}")
    e(f"v_add_u32 v{vT[0]}, {PTF-4}, v{vT[0]}")
    e(f"ds_read_b32 v{HRES}, v{vT[0]}")
    e(f"v_add_u32 v{vOFF}, s{sNT}, v{vNODE}")
    e(f"v_mul_u32_u24 v{vOFF}, 6, v{vOFF}")
    e(f"v_lshl_add_u32 v{vOFF}, v{vCMP}, 1, v{vOFF}")
    e(f"v_subrev_u32 v{vOFF}, 2, v{vOFF}")
if not FINR:
    c("per-role (node, comp) -> g, f ; addr = QT + g*8192 + f*64 + ((hi ^ ((f>>2)&3) ^ (g&3))<<4)")
    vNODE = vT[5]; vCMP = vT[6]
    def node_addr(dst, node, cmp_, t0, t1):
        e(f"v_mul_u32_u24 v{t1}, 52, v{node}")
        e(f"v_lshrrev_b32 v{t1}, 8, v{t1}             ; g")
        e(f"v_mul_u32_u24 v{t0}, 5, v{t1}")
        e(f"v_sub_u32 v{t0}, v{node}, v{t0}          ; j")
        if cmp_ is not None:
            e(f"v_lshl_add_u32 v{t0}, v{cmp_}, 3, v{t0}")
        e(f"v_add_u32 v{t0}, 3, v{t0}                 ; f")
        e(f"v_bfe_u32 v{dst}, v{t0}, 2, 2")
        e(f"v_xor_b32 v{dst}, v{dst}, v{vHI}")
        e(f"v_lshlrev_b32 v{t0}, 6, v{t0}")
        e(f"v_lshl_add_u32 v{t0}, v{t1}, 13, v{t0}")
        e(f"v_and_b32 v{t1}, 3, v{t1}")
        e(f"v_xor_b32 v{dst}, v{dst}, v{t1}")
        e(f"v_lshl_add_u32 v{dst}, v{dst}, 4, v{t0}")
        e(f"v_add_u32 v{dst}, {QT}, v{dst}")
    e(f"s_mul_i32 s{sK3}, s2, 40")
    e(f"s_cmp_eq_u32 s{sQ}, {QC}")
    e("s_cbranch_scc1 L_f_roleC")
    e(f"s_cmp_eq_u32 s{sQ}, {QB}")
    e("s_cbranch_scc1 L_f_roleB")
    e(f"s_cmp_eq_u32 s{sQ}, {QA}")
    e("s_cbranch_scc0 L_f_bar")
    c("role A (nodes n)")
    node_addr(vRD_, vN, None, vT[0], vT[7])
    c("role A residual: h[node n][32ct + 8bb + 4hi..+3]: OWN + n*256 + (((ct*4+bb) ^ (n&15))<<4) + hi*8")
    e(f"v_and_b32 v{vT[0]}, 15, v{vN}")
    e(f"s_lshl_b32 s{sT0}, s{sCT}, 2")
    e(f"v_xor_b32 v{vT[0]}, s{sT0}, v{vT[0]}")
    e(f"v_lshlrev_b32 v{vT[0]}, 4, v{vT[0]}")
    e(f"v_lshl_add_u32 v{vT[0]}, v{vN}, 8, v{vT[0]}")
    e(f"v_lshl_add_u32 v{vT[0]}, v{vHI}, 3, v{vT[0]}")
    e(f"v_add_u32 v{vT[0]}, {OWN}, v{vT[0]}")
    for bb in range(4):
        e(f"v_xor_b32 v{vT[7]}, {bb<<4}, v{vT[0]}")
        e(f"ds_read_b64 {vr(HRES+2*bb,2)}, v{vT[7]}")
    e(f"v_add_u32 v{vOFF}, s{sK3}, v{vN}")
    e(f"v_lshlrev_b32 v{vOFF}, 8, v{vOFF}")
    e(f"v_lshl_add_u32 v{vOFF}, v{vHI}, 3, v{vOFF}")
    e(f"s_lshl_b32 s{sT0}, s{sCT}, 6")
    e(f"v_add_u32 v{vOFF}, s{sT0}, v{vOFF}")
    e("s_branch L_f_bar")
    lab("L_f_roleB")
    c("role B (nodes 32 + (n&7))")
    e(f"v_and_b32 v{vNODE}, 7, v{vN}")
    e(f"v_add_u32 v{vNODE}, 32, v{vNODE}")
    node_addr(vRD_, vNODE, None, vT[0], vT[7])
    c("role B residual: rows 32+4hi+i, col 32ct+n: OWN + row*256 + (((ct*4 + (n>>3)) ^ (row&15))<<4) + (n&7)*2")
    e(f"v_lshrrev_b32 v{vT[0]}, 3, v{vN}")
    e(f"s_lshl_b32 s{sT0}, s{sCT}, 2")
    e(f"v_add_u32 v{vT[0]}, s{sT0}, v{vT[0]}          ; chunk")
    e(f"v_lshlrev_b32 v{vT[7]}, 2, v{vHI}             ; 4hi")
    e(f"v_xor_b32 v{vT[0]}, v{vT[0]}, v{vT[7]}")
    e(f"v_lshlrev_b32 v{vT[0]}, 4, v{vT[0]}")
    e(f"v_lshl_add_u32 v{vT[0]}, v{vT[7]}, 8, v{vT[0]}   ; + 4hi*256")
    e(f"v_and_b32 v{vT[5]}, 7, v{vN}")
    e(f"v_lshl_add_u32 v{vT[0]}, v{vT[5]}, 1, v{vT[0]}")
    e(f"v_add_u32 v{vT[0]}, {OWN + 32*256}, v{vT[0]}")
    for i in range(4):
        e(f"v_xor_b32 v{vT[5]}, {i<<4}, v{vT[0]}")
        e(f"ds_read_u16 v{HRES+i}, v{vT[5]} offset:{i*256}")
    e(f"s_add_u32 s{sT0}, s{sK3}, 32")
    e(f"v_add_u32 v{vOFF}, s{sT0}, v{vT[7]}")
    e(f"v_lshlrev_b32 v{vOFF}, 8, v{vOFF}")
    e(f"v_lshl_add_u32 v{vOFF}, v{vN}, 1, v{vOFF}")
    e(f"s_lshl_b32 s{sT0}, s{sCT}, 6")
    e(f"v_add_u32 v{vOFF}, s{sT0}, v{vOFF}")
    e("s_branch L_f_bar")
    lab("L_f_roleC")
    c("role C: n' = min(n,29); idx = 30ct + n' ; G = idx/15 ; r = idx%15 ; c = r/5 ; j = r%5 ; node = 5G + j ; comp = c+1")
    e(f"v_min_u32 v{vT[0]}, 29, v{vN}")
    e(f"v_cmp_lt_u32 vcc, 14, v{vT[0]}")
    e(f"v_cndmask_b32 v{vT[7]}, 0, 1, vcc               ; G&1")
    e(f"v_mul_u32_u24 v{vNODE}, 15, v{vT[7]}")
    e(f"v_sub_u32 v{vT[0]}, v{vT[0]}, v{vNODE}          ; r")
    e(f"v_mul_u32_u24 v{vCMP}, 52, v{vT[0]}")
    e(f"v_lshrrev_b32 v{vCMP}, 8, v{vCMP}              ; c")
    e(f"v_mul_u32_u24 v{vNODE}, 5, v{vCMP}")
    e(f"v_sub_u32 v{vT[0]}, v{vT[0]}, v{vNODE}          ; j")
    e(f"s_lshl_b32 s{sT0}, s{sCT}, 1")
    e(f"v_add_u32 v{vT[7]}, s{sT0}, v{vT[7]}            ; G")
    e(f"v_mad_u32_u24 v{vNODE}, v{vT[7]}, 5, v{vT[0]}")
    e(f"v_add_u32 v{vCMP}, 1, v{vCMP}")
    node_addr(vRD_, vNODE, vCMP, vT[0], vT[7])
    c("role C: pos residual PTF[node][comp-1] ; out offset (40b + node)*6 + (comp-1)*2")
    e(f"v_lshlrev_b32 v{vT[0]}, 4, v{vNODE}")
    e(f"v_lshl_add_u32 v{vT[0]}, v{vCMP}, 2, v{vT[0]}")
    e(f"v_add_u32 v{vT[0]}, {PTF-4}, v{vT[0]}")
    e(f"ds_read_b32 v{HRES}, v{vT[0]}")
    e(f"v_add_u32 v{vOFF}, s{sK3}, v{vNODE}")
    e(f"v_mul_u32_u24 v{vOFF}, 6, v{vOFF}")
    e(f"v_lshl_add_u32 v{vOFF}, v{vCMP}, 1, v{vOFF}")
    e(f"v_subrev_u32 v{vOFF}, 2, v{vOFF}")

lab("L_f_bar")
e("s_waitcnt lgkmcnt(0)")
stamp("at bar", 51)
c("residency guard: this wave's stamp must be older than the accept window of any later launch")
lab("L_guard")
e(f"s_sub_u32 s{sT0}, s6, s{sTW}")
e(f"s_cmp_ge_u32 s{sT0}, {GUARD}")
e("s_cbranch_scc1 L_guard_ok")
e("s_sleep 8")
e("s_memrealtime s[6:7]")
e("s_waitcnt lgkmcnt(0)")
e("s_branch L_guard")
lab("L_guard_ok")
e("s_barrier")
stamp("final bar")
e(f"s_cmp_eq_u32 s{sQ}, 3")
e("s_cbranch_scc1 L_end")
if FINR: vRD_ = vFRD
e(f"v_xor_b32 v{vT[0]}, 32, v{vRD_}")
for s_ in range(8):
    if "R" not in KO: e(f"ds_read_b128 {vr(ROW+4*s_,4)}, v{[vRD_, vT[0]][s_&1]} offset:{(s_>>1)*2048}")
e(f"s_mov_b32 s{sK2}, 0x{NLN2:08x}")
e(f"s_mul_i32 s{sNT}, s2, 40")
e(f"s_mov_b32 s{sK3}, 0xffff0000")
if FPK & 2:
    e("s_mov_b32 s6, 1.0")
    e("s_mov_b32 s7, 1.0")
    e(f"s_mov_b32 s{sPA}, 0x{NLN2:08x}")
    e(f"s_mov_b32 s{sPA+1}, 0x{NLN2:08x}")
if FINR != 1: e("s_waitcnt vmcnt(0)")
vOFFC = vOFF
if FINR == 2: vOFF = vFOFF
e(f"s_cmp_eq_u32 s{sQ}, {QC}")
e("s_cbranch_scc1 L_f_C")
e(f"s_cmp_eq_u32 s{sQ}, {QB}")
e("s_cbranch_scc1 L_f_B")
c("role A")
NX = 0
if FINR == 1:
    NX = 4
    c("role A residual: h[node n][32ct + 8bb + 4hi..+3]: OWN + n*256 + (((ct*4+bb) ^ (n&15))<<4) + hi*8")
    e(f"v_and_b32 v{vT[0]}, 15, v{vN}")
    e(f"s_lshl_b32 s{sT0}, s{sCT}, 2")
    e(f"v_xor_b32 v{vT[0]}, s{sT0}, v{vT[0]}")
    e(f"v_lshlrev_b32 v{vT[0]}, 4, v{vT[0]}")
    e(f"v_lshl_add_u32 v{vT[0]}, v{vN}, 8, v{vT[0]}")
    e(f"v_lshl_add_u32 v{vT[0]}, v{vHI}, 3, v{vT[0]}")
    e(f"v_add_u32 v{vT[0]}, {OWN}, v{vT[0]}")
    for bb in range(4):
        e(f"v_xor_b32 v{vT[7]}, {bb<<4}, v{vT[0]}")
        e(f"ds_read_b64 {vr(HRES+2*bb,2)}, v{vT[7]}")
    e(f"v_add_u32 v{vOFF}, s{sNT}, v{vN}")
    e(f"v_lshlrev_b32 v{vOFF}, 8, v{vOFF}")
    e(f"v_lshl_add_u32 v{vOFF}, v{vHI}, 3, v{vOFF}")
    e(f"s_lshl_b32 s{sT0}, s{sCT}, 6")
    e(f"v_add_u32 v{vOFF}, s{sT0}, v{vOFF}")
    e("s_waitcnt vmcnt(0)")
stamp("A vm", 40)
for s_ in range(8):
    e(f"s_waitcnt lgkmcnt({7-s_+NX})")
    mfma(FACC, WFL+4*s_, ROW+4*s_, vr(FACC,16))
if FINR == 1: e("s_waitcnt lgkmcnt(0)")
if FPR: e(f"s_setprio {FPR-1}")
stamp("A mfma", 41)
def final_silu(a, n, T):
    for i in range(n): e(f"v_exp_f32 v{T+i}, v{a+i}")
    if FPK & 2:
        for i in range(0, n, 2): e(f"v_pk_add_f32 {vr(T+i,2)}, {vr(T+i,2)}, s[6:7]")
        for i in range(n): e(f"v_rcp_f32 v{T+i}, v{T+i}")
        for i in range(0, n, 2): e(f"v_pk_mul_f32 {vr(a+i,2)}, {vr(a+i,2)}, {vr(T+i,2)}")
        return
    for i in range(n): e(f"v_add_f32 v{T+i}, 1.0, v{T+i}")
    for i in range(n): e(f"v_rcp_f32 v{T+i}, v{T+i}")
    for i in range(n): e(f"v_mul_f32 v{a+i}, v{a+i}, v{T+i}")
X = 48
e("s_nop 7")
e("s_nop 3")
for i in range(4):
    a = FACC + 4*i
    final_silu(a, 4, X)
    if i == 0: stamp("A silu0", 42)
    if FPK:
        if FPK & 2:
            for k in (0, 2): e(f"v_pk_fma_f32 {vr(a+k,2)}, {vr(a+k,2)}, s[{sPA}:{sPA+1}], {vr(RX[i]+k,2)}")
        else:
            for k in range(4): e(f"v_fma_f32 v{a+k}, v{a+k}, s{sK2}, v{RX[i]+k}")
        e(f"v_cvt_pk_bf16_f32 v{a}, v{a}, v{a+1}")
        e(f"v_cvt_pk_bf16_f32 v{a+1}, v{a+2}, v{a+3}")
        e(f"buffer_store_dwordx2 {vr(a,2)}, v{vOFF}, {srd(S_O0)}, 0 offen offset:{i*16}{OSC}")
        continue
    e(f"v_lshlrev_b32 v{X}, 16, v{HRES+2*i}")
    e(f"v_and_b32 v{X+1}, s{sK3}, v{HRES+2*i}")
    e(f"v_lshlrev_b32 v{X+2}, 16, v{HRES+2*i+1}")
    e(f"v_and_b32 v{X+3}, s{sK3}, v{HRES+2*i+1}")
    for k in range(4): e(f"v_fma_f32 v{a+k}, v{a+k}, s{sK2}, v{X+k}")
    e(f"v_cvt_pk_bf16_f32 v{X+4+2*i}, v{a}, v{a+1}")
    e(f"v_cvt_pk_bf16_f32 v{X+5+2*i}, v{a+2}, v{a+3}")
    e(f"buffer_store_dwordx2 {vr(X+4+2*i,2)}, v{vOFF}, {srd(S_O0)}, 0 offen offset:{i*16}{OSC}")
e("s_branch L_end")
lab("L_f_B")
if FBS: e(f"s_sleep {FBS}")
c("role B: rows 32 + 4hi + r")
stamp("B start", 43)
for i in range(4): e(f"v_mov_b32 v{ACC+i}, v{FB+i}")
if FINR == 1:
    c("role B residual: rows 32+4hi+i, col 32ct+n: OWN + row*256 + (((ct*4 + (n>>3)) ^ (row&15))<<4) + (n&7)*2")
    e(f"v_lshrrev_b32 v{vT[0]}, 3, v{vN}")
    e(f"s_lshl_b32 s{sT0}, s{sCT}, 2")
    e(f"v_add_u32 v{vT[0]}, s{sT0}, v{vT[0]}          ; chunk")
    e(f"v_lshlrev_b32 v{vT[7]}, 2, v{vHI}             ; 4hi")
    e(f"v_xor_b32 v{vT[0]}, v{vT[0]}, v{vT[7]}")
    e(f"v_lshlrev_b32 v{vT[0]}, 4, v{vT[0]}")
    e(f"v_lshl_add_u32 v{vT[0]}, v{vT[7]}, 8, v{vT[0]}   ; + 4hi*256")
    e(f"v_and_b32 v{vT[5]}, 7, v{vN}")
    e(f"v_lshl_add_u32 v{vT[0]}, v{vT[5]}, 1, v{vT[0]}")
    e(f"v_add_u32 v{vT[0]}, {OWN + 32*256}, v{vT[0]}")
    for i in range(4):
        e(f"v_xor_b32 v{vT[5]}, {i<<4}, v{vT[0]}")
        e(f"ds_read_u16 v{HRES+i}, v{vT[5]} offset:{i*256}")
    e(f"s_add_u32 s{sT0}, s{sNT}, 32")
    e(f"v_add_u32 v{vOFF}, s{sT0}, v{vT[7]}")
    e(f"v_lshlrev_b32 v{vOFF}, 8, v{vOFF}")
    e(f"v_lshl_add_u32 v{vOFF}, v{vN}, 1, v{vOFF}")
    e(f"s_lshl_b32 s{sT0}, s{sCT}, 6")
    e(f"v_add_u32 v{vOFF}, s{sT0}, v{vOFF}")
    e("s_waitcnt vmcnt(0)")
e("s_nop 1")
for s_ in range(8):
    e(f"s_waitcnt lgkmcnt({7-s_+NX})")
    mfma(ACC, ROW+4*s_, WFL+4*s_, vr(ACC,16))
if FINR == 1: e("s_waitcnt lgkmcnt(0)")
Y = 64
stamp("B mfma", 44)
e("s_nop 7")
e("s_nop 3")
final_silu(ACC, 4, Y)
if FPK:
    if FPK & 2:
        for k in (0, 2): e(f"v_pk_fma_f32 {vr(ACC+k,2)}, {vr(ACC+k,2)}, s[{sPA}:{sPA+1}], {vr(HRES+k,2)}")
    else:
        for k in range(4): e(f"v_fma_f32 v{ACC+k}, v{ACC+k}, s{sK2}, v{HRES+k}")
    for k in (0, 2): e(f"v_cvt_pk_bf16_f32 v{Y+8+k}, v{ACC+k}, v{ACC+k+1}")
    for r in range(4):
        e(f"buffer_store_short{'_d16_hi' if r & 1 else ''} v{Y+8+(r&2)}, v{vOFF}, {srd(S_O0)}, 0 offen offset:{r*256}{OSC}")
else:
  for k in range(4):
    e(f"v_lshlrev_b32 v{Y+k}, 16, v{HRES+k}")
  for k in range(4):
    e(f"v_fma_f32 v{ACC+k}, v{ACC+k}, s{sK2}, v{Y+k}")
  for k in range(4):
    e(f"v_cvt_pk_bf16_f32 v{Y+8+k}, v{ACC+k}, v{ACC+k}")
  for r in range(4):
    e(f"buffer_store_short v{Y+8+r}, v{vOFF}, {srd(S_O0)}, 0 offen offset:{r*256}{OSC}")
e("s_branch L_end")
lab("L_f_C")
if FCS: e(f"s_sleep {FCS}")
stamp("C start", 47)
vOFF = vOFFC
if FINR == 1:
    vNODE = vT[5]; vCMP = vT[6]
    rolec_node(vN, vNODE, vCMP, vT[0], vT[7])
    c("role C: pos residual PTF[node][comp-1] ; out offset (40b + node)*6 + (comp-1)*2")
    e(f"v_lshlrev_b32 v{vT[0]}, 4, v{vNODE}")
    e(f"v_lshl_add_u32 v{vT[0]}, v{vCMP}, 2, v{vT[0]}")
    e(f"v_add_u32 v{vT[0]}, {PTF-4}, v{vT[0]}")
    e(f"ds_read_b32 v{HRES}, v{vT[0]}")
    e(f"v_add_u32 v{vOFF}, s{sNT}, v{vNODE}")
    e(f"v_mul_u32_u24 v{vOFF}, 6, v{vOFF}")
    e(f"v_lshl_add_u32 v{vOFF}, v{vCMP}, 1, v{vOFF}")
    e(f"v_subrev_u32 v{vOFF}, 2, v{vOFF}")
    e("s_waitcnt vmcnt(0)")
for s_ in range(8):
    e(f"s_waitcnt lgkmcnt({7-s_+(1 if FINR == 1 else 0)})")
    mfma(ACC, WFL+4*s_, ROW+4*s_, "0" if s_ == 0 else vr(ACC,16))
if FINR == 1: e("s_waitcnt lgkmcnt(0)")
stamp("C mfma", 48)
e("s_nop 7")
e("s_nop 3")
e(f"v_fma_f32 v{ACC}, v{ACC}, s{sK2}, v{HRES}")
e(f"v_cvt_pk_bf16_f32 v{ACC}, v{ACC}, v{ACC}")
e(f"s_mov_b32 exec_lo, 0x{0x7fff7fff if NL else 0x3fffffff:x}")
e(f"s_mov_b32 exec_hi, 0")
e(f"buffer_store_short v{ACC}, v{vOFF}, {srd(S_O1)}, 0 offen{OSC}")
lab("L_end")
stamp("end")
stamp_flush()
lab("L_end2")
e("s_endpgm")

def zero_lds(Z, vtid):
    c("zero REC (69632 B = 4352 x 16 B) and counters (64 B)")
    for i in range(4): e(f"v_mov_b32 v{Z+i}, 0")
    e(f"v_lshlrev_b32 v{vT[0]}, 4, v{vtid}")
    for i in range(4):
        e(f"ds_write_b128 v{vT[0]}, {vr(Z,4)} offset:{i*16384}")
    e(f"v_add_u32 v{vT[1]}, {65536}, v{vT[0]}")
    e(f"v_add_u32 v{vT[2]}, {CTR - 256*16}, v{vT[0]}")
    e(f"v_cmp_gt_u32 vcc, 256, v{vtid}")
    e(f"v_cndmask_b32 v{vT[1]}, v{vT[2]}, v{vT[1]}, vcc")
    e(f"v_cmp_gt_u32 vcc, 260, v{vtid}")
    e("s_mov_b64 exec, vcc")
    e(f"ds_write_b128 v{vT[1]}, {vr(Z,4)}")
    e("s_mov_b64 exec, -1")
lab("L_slow_init")
e(f"s_mov_b32 s{sPREF}, 0")
e(f"s_mov_b32 s{sMODE}, 1")
e(f"s_mov_b32 s{sCH}, 0")
e(f"s_mov_b32 s{sRETRY}, 0")
e(f"s_and_b32 s{sT3}, s{sT3}, 2")
e(f"s_cmp_eq_u32 s{sT3}, 0")
e("s_cbranch_scc1 L_slow_pass")
c("fallback: the hand-off timed out -> this workgroup computes all of Q and the WH2 fragments itself")
c("(waves 0..7 keep FACC (64..79) / FB (120..123); waves 8..15 run the GEMM blocks)")
e(f"s_mov_b32 s{sU}, 0")
lab("L_fb_loop")
e("s_waitcnt vmcnt(0) lgkmcnt(0)")
e("s_barrier")
e(f"s_cmp_lt_u32 s{sW}, 8")
e("s_cbranch_scc1 L_fb_idle")
gemm_role("fb", sU, True)
e("s_branch L_fb_next")
lab("L_fb_idle")
e("s_barrier")
lab("L_fb_next")
e(f"s_add_u32 s{sU}, s{sU}, 1")
e(f"s_cmp_lt_u32 s{sU}, {NG}")
e("s_cbranch_scc1 L_fb_loop")
e("s_waitcnt vmcnt(0) lgkmcnt(0)")
e("s_barrier")
e(f"s_cmp_ge_u32 s{sW}, 4")
e("s_cbranch_scc1 L_slow_pass")
wprep_role("fb", True)
e("s_branch L_slow_pass")
lab("L_slow_next")
e(f"v_mov_b32 v{vT[0]}, {PEND}")
e(f"ds_read_b32 v{vT[1]}, v{vT[0]}")
e("s_waitcnt lgkmcnt(0)")
e(f"v_readfirstlane_b32 s{sRETRY}, v{vT[1]}")
e("s_nop 3")
e(f"s_cmp_lg_u32 s{sRETRY}, 0")
e("s_cbranch_scc1 L_slow_pass")
lab("L_slow_adv")
e(f"s_add_u32 s{sCH}, s{sCH}, 1")
e(f"s_cmp_ge_u32 s{sCH}, 250")
e("s_cbranch_scc1 L_slow_fin")
lab("L_slow_pass")
e("s_waitcnt vmcnt(0) lgkmcnt(0)")
e("s_barrier")
e(f"s_lshl_b32 s{sT0}, s{sW}, 6")
e(f"v_add_u32 v{tid}, s{sT0}, v{vL}")
zero_lds(116, tid)
c("raw edge e = 640*ch + t (t<640)")
qD, qS, qB, qK, qR, qA = 104, 105, 106, 107, 108, 109
RC = RA; vEA = RA + 1; vI0 = VI[0]; PS0 = PS[0]
e(f"s_mul_i32 s{sT0}, s{sCH}, 2560")
e(f"s_mul_i32 s{sT1}, s{sCH}, 1280")
e(f"v_lshlrev_b32 v{vT[0]}, 2, v{tid}")
e(f"v_lshlrev_b32 v{vT[1]}, 1, v{tid}")
e(f"v_mov_b32 v{qD}, -1")
e(f"v_mov_b32 v{qS}, 0")
e(f"v_mov_b32 v{qP}, 0")
e(f"v_mov_b32 v{vEA}, 0")
e(f"v_mov_b32 v{qA}, 640")
e(f"v_cmp_gt_u32 {sp(sM0)}, v{qA}, v{tid}")
e(f"s_cmp_eq_u64 {sp(sM0)}, 0")
e("s_cbranch_scc1 L_slow_nold")
e(f"s_mov_b64 exec, {sp(sM0)}")
e(f"buffer_load_dword v{qD}, v{vT[0]}, {srd(S_DST)}, s{sT0} offen")
e(f"buffer_load_dword v{qS}, v{vT[0]}, {srd(S_SRC)}, s{sT0} offen")
e(f"buffer_load_ushort v{vEA}, v{vT[1]}, {srd(S_EA)}, s{sT1} offen")
e(f"v_add_u32 v{qA}, {PENDB}, v{tid}")
e(f"ds_read_u8 v{qP}, v{qA}")
e("s_mov_b64 exec, -1")
lab("L_slow_nold")
e("s_waitcnt vmcnt(0) lgkmcnt(0)")
e("s_barrier")
e(f"v_mul_u32_u24 v{qB}, 52429, v{qD}")
e(f"v_lshrrev_b32 v{qB}, 21, v{qB}")
e(f"v_mul_u32_u24 v{qK}, 40, v{qB}")
e(f"v_sub_u32 v{qK}, v{qD}, v{qK}")
e(f"v_cmp_eq_u32 vcc, s2, v{qB}")
e(f"s_and_b64 {sp(sM0)}, {sp(sM0)}, vcc          ; match")
e(f"s_cmp_eq_u32 s{sRETRY}, 0")
e("s_cbranch_scc1 L_slow_fresh")
e(f"v_cmp_ne_u32 vcc, 0, v{qP}")
e(f"s_and_b64 {sp(sM0)}, {sp(sM0)}, vcc")
lab("L_slow_fresh")
e(f"v_and_b32 v{qK}, 63, v{qK}")
e(f"v_min_u32 v{qK}, 39, v{qK}")
e(f"v_mul_u32_u24 v{vI0}, 52, v{qK}")
e(f"v_lshrrev_b32 v{vI0}, 8, v{vI0}           ; g")
e(f"v_mul_u32_u24 v{qA}, 5, v{vI0}")
e(f"v_sub_u32 v{qA}, v{qK}, v{qA}             ; j")
e(f"v_and_b32 v{qS}, 0x3fff, v{qS}")
e(f"v_lshl_or_b32 v{RC}, v{qK}, 14, v{qS}")
e(f"v_mov_b32 v{VJ[0]}, v{qA}")
e(f"s_mov_b32 s{sT0}, {ALLOC}")
e(f"v_lshl_add_u32 v{qA}, v{vI0}, 2, s{sT0}")
e(f"v_mov_b32 v{vOne}, 1")
e(f"v_mov_b32 v{qP}, 0")
e(f"v_mul_u32_u24 v{qB}, 6, v{qS}")
e(f"v_and_b32 v{qB}, -4, v{qB}")
for m in MK[1:]: e(f"s_mov_b64 {sp(m)}, 0")
e(f"s_cmp_eq_u64 {sp(sM0)}, 0")
e("s_cbranch_scc1 L_slow_nom")
e(f"s_mov_b64 exec, {sp(sM0)}")
e(f"buffer_load_dwordx2 {vr(PS0,2)}, v{qB}, {srd(S_POS)}, 0 offen")
e(f"ds_add_rtn_u32 v{qR}, v{qA}, v{vOne}")
e("s_mov_b64 exec, -1")
e(f"v_mul_u32_u24 v{vI0}, {GSTR}, v{vI0}")
e("s_waitcnt lgkmcnt(0)")
s1_place(qR, vI0, qS, sM0, "s", slow=True)
lab("L_slow_nom")
e(f"v_mov_b32 v{qA}, 640")
e(f"v_cmp_gt_u32 vcc, v{qA}, v{tid}")
e("s_mov_b64 exec, vcc")
e("s_cbranch_execz L_slow_nopb")
e(f"v_add_u32 v{qA}, {PENDB}, v{tid}")
e(f"ds_write_b8 v{qA}, v{qP}")
lab("L_slow_nopb")
e("s_mov_b64 exec, -1")
e("s_branch L_st2")
lab("L_slow_fin")
if FINR == 2:
    e(f"s_cmp_ge_u32 s{sW}, 8")
    e("s_cbranch_scc1 L_sf_nor")
    final_addr_res("s")
    lab("L_sf_nor")
c("SEG must be zero-initialised if no pass ever ran")
e(f"s_cmp_eq_u32 s{sNODE}, 0")
e("s_cbranch_scc1 L_final_bar")
for r in range(32):
    e(f"v_mov_b32 v{SEG+r}, 0")
lab("L_final_bar")
e("s_barrier")
e("s_branch L_final")

desc = f""".amdhsa_kernel {KNAME}
  .amdhsa_next_free_vgpr 128
  .amdhsa_next_free_sgpr 102
  .amdhsa_accum_offset 128
  .amdhsa_group_segment_fixed_size 0
  .amdhsa_kernarg_size 88
  .amdhsa_user_sgpr_count 2
  .amdhsa_user_sgpr_kernarg_segment_ptr 1
  .amdhsa_system_sgpr_workgroup_id_x 1
.end_amdhsa_kernel"""
body = "\n".join(x for x in out if x is not None)
final = "\n".join(header) + "\n" + body + "\n" + '.section .rodata,"a"\n.p2align 6\n' + desc + "\n"
dest = sys.argv[1] if len(sys.argv) > 1 else "standalone__cheap_equivariant_egnn__graph.s"
open(dest, "w").write(final)
print("wrote", dest, len(out), "lines")
```

```python
import sys, os
sys.path.insert(0, os.path.dirname(os.path.abspath(__file__)))
from g3common import *

KNAME = "standalone__cheap_equivariant_egnn__graph_kernel"
TIMING = os.environ.get("TIMING", "")
NOPRIO = os.environ.get("NOPRIO", "")
QSC = os.environ.get("QSC", " sc1")
FORCE = os.environ.get("FORCE", "")
NPOLL = int(os.environ.get("NPOLL", "3000"))
RSL = int(os.environ.get("RSL", "4"))
QSL = int(os.environ.get("QSL", "4"))
NSL = int(os.environ.get("NSL", "8"))
QST = int(os.environ.get("QST", "8"))
PK = int(os.environ.get("PK", "0"))
XM = int(os.environ.get("XM", "0"))
LATE = int(os.environ.get("LATE", "1"))
BSPEC = int(os.environ.get("BSPEC", "1"))
PPF = int(os.environ.get("PPF", "1"))
WSOFF = int(os.environ.get("WSOFF", "0")) << 20
TLBW = int(os.environ.get("TLBW", "0"))
PLATE = int(os.environ.get("PLATE", "1"))
KO = os.environ.get("KO", "")
OSC = os.environ.get("OSC", "")
if OSC: OSC = " " + OSC.replace("_", " ")
YM = int(os.environ.get("YM", "0"))
SWARM = int(os.environ.get("SWARM", "0"))
PSL = int(os.environ.get("PSL", "0"))
QGATE = int(os.environ.get("QGATE", "8"))
H1W = int(os.environ.get("H1W", "0"))
FPRIO = int(os.environ.get("FPRIO", "2"))
FDEL = int(os.environ.get("FDEL", "0"))
F16 = int(os.environ.get("F16", "1"))
HB = int(os.environ.get("HB", "4"))
BAP = int(os.environ.get("BAP", "3"))
HOIST = int(os.environ.get("HOIST", "1"))
IMM = int(os.environ.get("IMM", "1"))
IDX = int(os.environ.get("IDX", "1"))
FINR = int(os.environ.get("FINR", "2"))
PRIOS = [int(x) for x in os.environ.get("PRIOS", "3210")]
EARLY = int(os.environ.get("EARLY", "1"))
PREF = int(os.environ.get("PREF", "1"))
RWS = int(os.environ.get("RWS", "1"))
RPS = int(os.environ.get("RPS", "2"))
PREFN = int(os.environ.get("PREFN", "1"))
FCOPY = int(os.environ.get("FCOPY", "16"))
FSTR = int(os.environ.get("FSTR", "1024"))
WSC = " sc1" if os.environ.get("WSC", "1") == "1" else ""
FBS = int(os.environ.get("FBS", "0"))
FCS = int(os.environ.get("FCS", "0"))
PREB = int(os.environ.get("PREB", "0"))
BAL = int(os.environ.get("BAL", "0"))
RFE = int(os.environ.get("RFE", "1"))
NL = int(os.environ.get("NL", "1"))
FPR = int(os.environ.get("FPR", "1"))
FPK = int(os.environ.get("FPK", "1"))
FBP = int(os.environ.get("FBP", "2"))
FL3 = int(os.environ.get("FL3", "1"))
FLO = int(os.environ.get("FLO", "1"))
WXL = int(os.environ.get("WXL", "1"))
OTW = int(os.environ.get("OTW", "0"))
WTW = int(os.environ.get("WTW", "0"))
TW = int(os.environ.get("TW", "1"))
BLO = int(os.environ.get("BLO", "0"))
DELTA = 600
WIN = 8192
GUARD = 800
TAGC = 0x1a5
FLC = 0x5A5AA5A5

CELLA = 0
CHB = 32000
CELLB = 4 << 20
WH2F = 12 << 20
NG = 157; NCH = 63
BIN0 = NG; WPR = NG + NCH
CAP = 136
GSTR = CAP * 64
REC = 0
QT = 8 * GSTR
BXP = QT + 65536
OWN = BXP + 16384
PTF = OWN + 10240
CTR = PTF + 640
ALLOC = CTR; OVF = CTR + 32; PEND = CTR + 36; GCNT = CTR + 40; NONCE = CTR + 44; ZERO16 = CTR + 48
SYN = CTR + 64
RISS = SYN; RCNT = SYN + 4; RCNT2 = SYN + 8; FCNT = SYN + 12; FCNT2 = SYN + 16; RCA = SYN + 20; RLAND = SYN + 24
RCB = SYN + 28; FCB = SYN + 32; FCC = SYN + 36; RPL = SYN + 40; QOKF = SYN + 44; RH1 = SYN + 48; MAPW = SYN + 52
PENDB = CTR + 128
LDS_TOTAL = PENDB + 640
ZB2 = ZERO16 + 1024
if IMM: LDS_TOTAL = ZB2 + 16
assert ZB2 >= PENDB + 640
WXB = (LDS_TOTAL + 15) & ~15
if WXL: LDS_TOTAL = WXB + 256
FLG = 13 << 20
assert LDS_TOTAL <= 163840
NWG = 250

S_H, S_POS, S_EA, S_SRC, S_DST, S_WX, S_O0, S_O1, S_WS, S_Q, S_WE, S_WH = [8 + 4 * i for i in range(12)]
sRW, sRQ, sRL = 56, 57, 58
sC4, sC5 = 4, 5
sW, sQ, sCT, sMODE, sT0, sT1, sT2, sT3 = range(60, 68)
sEX, sM0, sM1, sM2 = 68, 70, 72, 74
sG, sCH2, sCO, sNT, sU, sREM, sK2, sK3, sNODE, sCH, sRETRY, sB0, sB1, sGB, sRT, sPREF = range(76, 92)
sTW, sLOW, sCNT, sC = 92, 93, 94, 95
sPA, sPB = 96, 98
sX0, sX1, sX2 = 96, 97, 98
KS = 76

vL = 0
vLK, vQD, vTRQ0, vTRQ1, vTRS, vOD, vODM = 1, 2, 3, 4, 5, 6, 7
vT = list(range(8, 16))
SEG = 16; ACC = 48; FACC = 64; QF = 80; SF = 88; OHD = 96; BXF = 100; ID = 104; MP = 112; FB = 120
TE = QF
VST = 127

_st = [0]
STAMPS = os.environ.get("STAMPS", "")
STAMPS = set(int(x) for x in STAMPS.split(",")) if STAMPS else None
def stamp(name, idx=None):
    if not TIMING: return
    i = _st[0] if idx is None else idx
    if idx is None: _st[0] += 1
    if STAMPS is not None and i not in STAMPS: return
    c(f"STAMP {i} {name}")
    e(f"s_memtime s[{sC4}:{sC5}]")
    e("s_waitcnt lgkmcnt(0)")
    e(f"v_writelane_b32 v{VST}, s{sC4}, {i}")
    print("stamp", i, name)
def stamp_dyn(base, scnt, mx=11):
    if not TIMING or os.environ.get("STAMPS", ""): return
    e(f"s_memtime s[{sC4}:{sC5}]")
    e(f"s_min_u32 s3, s{scnt}, {mx}")
    e(f"s_add_u32 m0, s3, {base}")
    e("s_waitcnt lgkmcnt(0)")
    e(f"v_writelane_b32 v{VST}, s{sC4}, m0")
def stamp_flush():
    if not TIMING: return
    e(f"s_memrealtime s[{sC4}:{sC5}]")
    e("s_waitcnt lgkmcnt(0)")
    e("s_mov_b64 exec, -1")
    e(f"v_writelane_b32 v{VST}, s100, 62")
    e(f"v_writelane_b32 v{VST}, s{sC4}, 63")
    if os.environ.get("PCST"):
        e(f"s_getpc_b64 s[{sC4}:{sC5}]")
        e(f"v_writelane_b32 v{VST}, s{sC4}, 60")
        e(f"v_writelane_b32 v{VST}, s{sC5}, 59")
    e(f"s_lshl_b32 s{sT0}, s2, 4")
    e(f"s_add_u32 s{sT0}, s{sT0}, s{sW}")
    e(f"s_lshl_b32 s{sT0}, s{sT0}, 8")
    e(f"s_add_u32 s{sT0}, s{sT0}, {32<<20}")
    e(f"v_lshlrev_b32 v{vT[1]}, 2, v{vL}")
    e(f"buffer_store_dword v{VST}, v{vT[1]}, {srd(S_WS)}, s{sT0} offen")

header = []
header.append(f"; @launch grid=({NWG},1,1) block=(1024,1,1) lds={LDS_TOTAL}")
header.append('.amdgcn_target "amdgcn-amd-amdhsa--gfx950"')
header.append(".text")
header.append(f".globl {KNAME}")
header.append(".p2align 8")
header.append(f".type {KNAME},@function")

lab(KNAME)
e(f"s_cmp_ge_u32 s2, {NWG}")
e("s_cbranch_scc1 L_end2")
e("s_memrealtime s[6:7]")
if TIMING:
    e("s_memrealtime s[100:101]")
if TIMING:
    e(f"v_mov_b32 v{VST}, 0")
stamp("entry")
e(f"s_load_dwordx16 s[{KS}:{KS+15}], s[0:1], 0")
e(f"s_load_dwordx2 s[{S_WS}:{S_WS+1}], s[0:1], 80")
e(f"s_load_dwordx2 s[{S_O0}:{S_O0+1}], s[0:1], 64")
tid = vT[7]
e(f"v_mov_b32 v{tid}, v0")
e(f"v_lshrrev_b32 v{vT[0]}, 6, v0")
e(f"v_and_b32 v{vL}, 63, v0")
e(f"v_readfirstlane_b32 s{sW}, v{vT[0]}")
for (x, sz) in [(S_H,2560000),(S_POS,60000),(S_EA,320000),(S_SRC,640000),(S_DST,640000),(S_WX,256),(S_O0,2560000),(S_O1,60000),
                (S_WS,256*1048576-WSOFF),(S_Q,10000 if IDX else 2560000),(S_WE,66048),(S_WH,65536)]:
    e(f"s_mov_b32 s{x+2}, {sz}")
    e(f"s_mov_b32 s{x+3}, 0x20000")
e(f"s_lshr_b32 s{sQ}, s{sW}, 2")
e(f"s_and_b32 s{sCT}, s{sW}, 3")
e(f"s_and_b32 s{sRW}, s{sW}, 7")
e(f"s_and_b32 s{sRQ}, s{sQ}, 1")
e(f"s_mov_b32 s{sMODE}, 0")
e(f"s_mov_b32 s{sRL}, 0")
def kernarg_copy():
    for (x, k) in [(S_H,0),(S_POS,2),(S_EA,4),(S_SRC,6),(S_DST,8),(S_WE,10),(S_WX,12),(S_WH,14)]:
        e(f"s_mov_b64 s[{x}:{x+1}], s[{KS+k}:{KS+k+1}]")
    if WSOFF:
        e(f"s_add_u32 s{S_WS}, s{S_WS}, {WSOFF}")
        e(f"s_addc_u32 s{S_WS+1}, s{S_WS+1}, 0")
    e(f"s_add_u32 s{S_O1}, s{S_O0}, 2560000")
    e(f"s_addc_u32 s{S_O1+1}, s{S_O0+1}, 0")
    e(f"s_add_u32 s{S_Q}, s{S_WS}, {QOFF}")
    e(f"s_addc_u32 s{S_Q+1}, s{S_WS+1}, {(256 << 16) if IDX else 0}")
    e(f"s_mov_b32 s{sTW}, s6")
    if SWARM:
        c("address-translation warm-up through the scalar path (results unused)")
        lst = [(S_H,0),(S_POS,0),(S_WE,0),(S_WH,0),(S_SRC,0),(S_DST,0),(S_EA,0),(S_H,2097152),(S_WS,0),(S_WS,FLG & 0xfffff if False else 0),(S_Q,0),(S_O0,0)]
        if SWARM == 1: lst = [(S_H,0),(S_POS,0),(S_WE,0),(S_WH,0)]
        if SWARM == 2: lst = [(S_H,0),(S_POS,0),(S_WE,0),(S_WH,0),(S_SRC,0),(S_DST,0),(S_EA,0)]
        if SWARM == 3: lst = [(S_H,0),(S_POS,0),(S_WE,0),(S_WH,0),(S_SRC,0),(S_DST,0),(S_EA,0),(S_WS,0),(S_Q,0),(S_O0,0)]
        for (x, off) in lst:
            e(f"s_load_dword s3, s[{x}:{x+1}], {off}")

vSL = 16; vTRP = 17; vRA = 18; vRD = 19; vST = 20; vU0 = 21; vU1 = 22
def slice_lane(dst, sct):
    e(f"v_lshrrev_b32 v{dst}, 2, v{vL}")
    e(f"v_lshlrev_b32 v{dst}, 8, v{dst}")
    e(f"v_and_b32 v{vU0}, 3, v{vL}")
    e(f"v_lshl_add_u32 v{dst}, v{vU0}, 4, v{dst}")
    e(f"s_lshl_b32 s{sT0}, s{sct}, 6")
    e(f"v_add_u32 v{dst}, s{sT0}, v{dst}")
def trpat(dst, t0, t1):
    e(f"v_lshrrev_b32 v{t0}, 5, v{vL}")
    e(f"v_bfe_u32 v{t1}, v{vL}, 2, 2")
    e(f"v_lshl_add_u32 v{dst}, v{t0}, 3, v{t1}")
    e(f"v_lshlrev_b32 v{dst}, 6, v{dst}")
    e(f"v_bfe_u32 v{t0}, v{vL}, 4, 1")
    e(f"v_lshl_add_u32 v{dst}, v{t0}, 5, v{dst}")
    e(f"v_and_b32 v{t0}, 3, v{vL}")
    e(f"v_lshl_add_u32 v{dst}, v{t0}, 3, v{dst}")
def row_addr(dst, vrow, vhi, tmp, base=OWN):
    e(f"v_and_b32 v{tmp}, 15, v{vrow}")
    e(f"v_xor_b32 v{tmp}, v{tmp}, v{vhi}")
    e(f"v_lshlrev_b32 v{tmp}, 4, v{tmp}")
    e(f"v_lshl_add_u32 v{dst}, v{vrow}, 8, v{tmp}")
    e(f"v_add_u32 v{dst}, {base}, v{dst}")

Z = 24
for i in range(4): e(f"v_mov_b32 v{Z+i}, 0")
c("wave 0: zero the counters (128 B), then B0")
e(f"s_cmp_eq_u32 s{sW}, 0")
e("s_cbranch_scc0 L_b0")
e(f"v_lshlrev_b32 v{vT[0]}, 4, v{vL}")
e(f"v_add_u32 v{vT[0]}, {CTR}, v{vT[0]}")
e("s_mov_b64 exec, 0xff")
e(f"ds_write_b128 v{vT[0]}, {vr(Z,4)}")
if IMM:
    e(f"v_mov_b32 v{vT[0]}, {ZB2}")
    e("s_mov_b64 exec, 1")
    e(f"ds_write_b128 v{vT[0]}, {vr(Z,4)}")
e("s_mov_b64 exec, -1")
e("s_waitcnt lgkmcnt(0)")
lab("L_b0")
e("s_barrier")
vA_ = 23
_sy = [0]
def arrive(addr, regs=None):
    a_, d_ = regs if regs else (vA_, vU1)
    e(f"v_mov_b32 v{a_}, {addr}")
    e(f"v_mov_b32 v{d_}, 1")
    e("s_mov_b64 exec, 1")
    e(f"ds_add_u32 v{a_}, v{d_}")
    e("s_mov_b64 exec, -1")
def wait_cnt(addr, n, nz=False, dst=None, regs=None, slp=1):
    i = _sy[0]; _sy[0] += 1
    d = dst if dst is not None else sT0
    a_, d_ = regs if regs else (vA_, vU1)
    e(f"v_mov_b32 v{a_}, {addr}")
    lab(f"L_sy{i}")
    e(f"ds_read_b32 v{d_}, v{a_}")
    e("s_waitcnt lgkmcnt(0)")
    e(f"v_readfirstlane_b32 s{d}, v{d_}")
    if nz: e(f"s_cmp_lg_u32 s{d}, 0")
    else:  e(f"s_cmp_ge_u32 s{d}, {n}")
    e(f"s_cbranch_scc1 L_syd{i}")
    e(f"s_sleep {slp}")
    e(f"s_branch L_sy{i}")
    lab(f"L_syd{i}")
e(f"s_cmp_ge_u32 s{sW}, 8")
e("s_cbranch_scc1 L_front")
def lane_consts():
    e(f"s_lshr_b32 s{sG}, s{sW}, 1")
    e(f"s_and_b32 s{sCH2}, s{sW}, 1")
    e(f"s_mul_i32 s{sGB}, s{sG}, {GSTR}")
    e(f"s_lshl_b32 s{sB0}, s{sW}, 12")
    e(f"s_add_u32 s{sB0}, s{sB0}, {QT}")
    e(f"s_add_u32 s{sB1}, s{sB0}, 2048")
    c("lane constants (REC rows swizzled: 16-B chunk c of row with rank p at position c ^ ((p>>2)&3))")
    e(f"v_lshrrev_b32 v{vT[3]}, 5, v{vL}           ; hi")
    e(f"v_lshrrev_b32 v{vT[4]}, 3, v{vL}")
    e(f"v_lshlrev_b32 v{vLK}, 6, v{vT[4]}")
    e(f"v_xor_b32 v{vT[4]}, 1, v{vT[3]}")
    e(f"v_lshl_add_u32 v{vLK}, v{vT[4]}, 4, v{vLK}")
    e(f"s_add_u32 s{sT0}, s{sGB}, {REC}")
    e(f"v_add_u32 v{vLK}, s{sT0}, v{vLK}")
    e(f"v_and_b32 v{vT[5]}, 7, v{vL}")
    e(f"v_bfe_u32 v{vT[6]}, v{vL}, 4, 1")
    e(f"v_lshlrev_b32 v{vT[4]}, 2, v{vT[6]}")
    e(f"v_xor_b32 v{vT[5]}, v{vT[5]}, v{vT[4]}")
    e(f"v_lshlrev_b32 v{vQD}, 4, v{vT[5]}")
    e(f"s_lshl_b32 s{sT1}, s{sCH2}, 7")
    e(f"v_add_u32 v{vQD}, s{sT1}, v{vQD}            ; ch*128 + (((l&7) ^ 4*((l>>4)&1))<<4)")
    c("vT6 = colhalf ; r = (l>>2)&3 ; c4 = l&3")
    e(f"v_bfe_u32 v{vT[4]}, v{vL}, 2, 2            ; r")
    e(f"v_and_b32 v{vT[5]}, 3, v{vL}")
    e(f"v_lshlrev_b32 v{vT[2]}, 5, v{vT[6]}")
    e(f"v_lshl_add_u32 v{vT[2]}, v{vT[5]}, 3, v{vT[2]}   ; colhalf*32 + c4*8")
    e(f"v_lshl_add_u32 v{vTRQ0}, v{vT[3]}, 3, v{vT[4]}   ; 8hi + r")
    e(f"v_lshl_add_u32 v{vTRQ0}, v{vTRQ0}, 7, v{vT[2]}")
    e(f"v_bfe_u32 v{vT[5]}, v{vL}, 3, 1            ; (r>>1)&1")
    e(f"v_lshl_add_u32 v{vTRQ0}, v{vT[5]}, 6, v{vTRQ0}")
    e(f"v_add_u32 v{vTRQ0}, s{sB0}, v{vTRQ0}")
    e(f"v_xor_b32 v{vTRQ1}, 64, v{vTRQ0}")
    c("vTRS = REC + g*GSTR + (4hi + r)*64 + ((colhalf*32 + c4*8) ^ (hi<<4))")
    e(f"v_lshlrev_b32 v{vT[5]}, 4, v{vT[3]}")
    e(f"v_xor_b32 v{vT[2]}, v{vT[2]}, v{vT[5]}")
    e(f"v_lshl_add_u32 v{vTRS}, v{vT[3]}, 2, v{vT[4]}    ; 4hi + r")
    e(f"v_lshl_add_u32 v{vTRS}, v{vTRS}, 6, v{vT[2]}")
    e(f"v_add_u32 v{vTRS}, s{sT0}, v{vTRS}")
    c("OHD: lanes 0..15 and 48..63 read chunk 0 of row (l&15) at position (row>>2)&3; others read ZERO16")
    e(f"v_and_b32 v{vT[4]}, 15, v{vL}")
    e(f"v_bfe_u32 v{vT[5]}, v{vL}, 2, 2")
    e(f"v_lshlrev_b32 v{vT[4]}, 6, v{vT[4]}")
    e(f"v_lshl_add_u32 v{vT[4]}, v{vT[5]}, 4, v{vT[4]}")
    e(f"v_add_u32 v{vT[4]}, s{sT0}, v{vT[4]}")
    e(f"v_cmp_eq_u32 vcc, v{vT[3]}, v{vT[6]}")
    e(f"v_mov_b32 v{vT[5]}, {ZERO16}")
    e(f"v_cndmask_b32 v{vOD}, v{vT[5]}, v{vT[4]}, vcc")
    e(f"v_mov_b32 v{vT[4]}, {2048 if IMM else 1024}")
    e(f"v_cndmask_b32 v{vODM}, 0, v{vT[4]}, vcc")
    e(f"s_mov_b32 s{sNODE}, 1")
    e(f"s_mov_b32 s{sPREF}, 0")
RA = 96; RB = 100; vGA = 120
PS = [56, 58, 60, 62]
VI = [80, 81, 82, 83]
VR = [84, 85, 86, 87]
vOne = 89
qP = 90
VJ = [120+0, 0, 0, 0]
VJ = [124, 125, 95, 88]
def id_consts(t0, t1):
    c("ID constants: lane (m,hi): step s elem i = (m == 16s + 8hi + i)")
    e(f"v_and_b32 v{t0}, 1, v{vL}")
    e(f"v_lshlrev_b32 v{t0}, 4, v{t0}")
    e(f"v_mov_b32 v{t1}, 0x3f80")
    e(f"v_lshlrev_b32 v{t0}, v{t0}, v{t1}")
    for s_ in range(2):
        for r in range(4):
            m = 0
            for l in range(64):
                x = (l & 31) - 8 * (l >> 5)
                if x in (16*s_ + 2*r, 16*s_ + 2*r + 1): m |= 1 << l
            e(f"s_mov_b32 vcc_lo, 0x{m & 0xffffffff:x}")
            e(f"s_mov_b32 vcc_hi, 0x{m >> 32:x}")
            e(f"v_cndmask_b32 v{ID+4*s_+r}, 0, v{t0}, vcc")
def seg_zero():
    for r in range(32):
        e(f"v_mov_b32 v{SEG+r}, 0")
MK = [sM0, sM1, sPA, sPB]
if not NOPRIO: e("s_setprio 2")
c("zero REC tail (4096 B, threads 256..511)")
e(f"v_lshlrev_b32 v{vT[0]}, 4, v{tid}")
e(f"v_add_u32 v{vT[1]}, {65536 - 4096}, v{vT[0]}")
e(f"v_cmp_lt_u32 vcc, 255, v{tid}")
e("s_mov_b64 exec, vcc")
e(f"s_cbranch_execz L_notail")
e(f"ds_write_b128 v{vT[1]}, {vr(Z,4)}")
lab("L_notail")
e("s_mov_b64 exec, -1")
e(f"s_cmp_ge_u32 s2, {BIN0}")
e("s_cbranch_scc1 L_notgemm")

AF = 24; BF = 56; D0 = 88
def gemm_role(tag, blk, fb):
    slice_lane(vSL, sCT)
    c("rows DMA lane offset: row = 8w + 4i + (l>>4); chunk = (l&15) ^ (row&15)")
    e(f"v_lshrrev_b32 v{vU0}, 4, v{vL}")
    e(f"v_and_b32 v{vU1}, 15, v{vL}")
    e(f"v_xor_b32 v{vU1}, v{vU1}, v{vU0}")
    e(f"s_and_b32 s{sT0}, s{sRW}, 1")
    e(f"s_lshl_b32 s{sT0}, s{sT0}, 3")
    e(f"v_xor_b32 v{vU1}, s{sT0}, v{vU1}")
    e(f"v_lshlrev_b32 v{vU1}, 4, v{vU1}")
    e(f"v_lshl_add_u32 v{vRA}, v{vU0}, 8, v{vU1}")
    e(f"v_xor_b32 v{vRD}, 64, v{vRA}")
    e(f"s_lshl_b32 s{sT0}, s{sCT}, 13")
    e(f"s_lshl_b32 s{sT1}, s{sRQ}, 12")
    e(f"s_add_u32 s{sT0}, s{sT0}, s{sT1}")
    e(f"s_add_u32 s{sT0}, s{sT0}, {QT}")
    e(f"s_lshl_b32 s{sT1}, s{sRQ}, 14")
    e(f"s_add_u32 s{sT1}, s{sT1}, 32768")
    e(f"s_lshl_b32 s{sT3}, s{sRW}, 11")
    e(f"s_lshl_b32 s{sX0}, s{blk}, 14")
    e(f"s_add_u32 s{sX0}, s{sX0}, s{sT3}           ; (64r + 8w)*256")
    if not fb:
        e("s_waitcnt lgkmcnt(0)")
        stamp("kernarg", 1)
        kernarg_copy()
    e(f"s_add_u32 m0, s{sT3}, {QT+32768}")
    e(f"s_add_u32 s{sX1}, s{sX0}, 1024")
    e(f"buffer_load_dwordx4 v{vRA}, {srd(S_H)}, s{sX0} offen lds")
    e(f"s_add_u32 m0, s{sT3}, {QT+32768+1024}")
    e(f"s_nop 0")
    e(f"buffer_load_dwordx4 v{vRD}, {srd(S_H)}, s{sX1} offen lds")
    for i in range(4):
        e(f"s_add_u32 m0, s{sT0}, {i*1024}")
        e(f"s_add_u32 s{sT2}, s{sT1}, {i*4096}")
        e(f"buffer_load_dwordx4 v{vSL}, {srd(S_WE)}, s{sT2} offen lds")
    if not fb:
        if not LATE: arrive(RISS)
        stamp("role loads issued", 2)
    c("compute: all 8 waves, rb = w>>2, ct = w&3 : 32 rows x 32 cols")
    trpat(vTRP, vU0, vU1)
    e(f"s_lshl_b32 s{sT0}, s{sCT}, 13")
    e(f"s_add_u32 s{sT0}, s{sT0}, {QT}")
    e(f"v_add_u32 v{vTRP}, s{sT0}, v{vTRP}")
    c("row read address: QT+32768 + (rb*32+n)*256 + ((hi ^ (n&15))<<4) ^ (s<<5)")
    e(f"v_and_b32 v{vU0}, 31, v{vL}")
    e(f"v_lshrrev_b32 v{vU1}, 5, v{vL}")
    e(f"v_and_b32 v{vRD}, 15, v{vL}")
    e(f"v_xor_b32 v{vRD}, v{vRD}, v{vU1}")
    e(f"v_lshlrev_b32 v{vRD}, 4, v{vRD}")
    e(f"v_lshl_add_u32 v{vRD}, v{vU0}, 8, v{vRD}")
    e(f"s_lshl_b32 s{sT0}, s{sRQ}, 13")
    e(f"s_add_u32 s{sT0}, s{sT0}, {QT+32768}")
    e(f"v_add_u32 v{vRD}, s{sT0}, v{vRD}")
    c("out tile (2 KB per wave) write addr: OB + n*64 + ((bb ^ ((n>>2)&3))<<4) + hi*8")
    e(f"s_lshl_b32 s{sT0}, s{sRW}, 11")
    e(f"s_add_u32 s{sT0}, s{sT0}, {QT+49152}")
    e(f"v_bfe_u32 v{vRA}, v{vL}, 2, 2")
    e(f"v_lshlrev_b32 v{vRA}, 4, v{vRA}")
    e(f"v_lshl_add_u32 v{vRA}, v{vU0}, 6, v{vRA}")
    e(f"v_lshl_add_u32 v{vRA}, v{vU1}, 3, v{vRA}")
    e(f"v_add_u32 v{vRA}, s{sT0}, v{vRA}")
    c("out tile read addr: OB + (r + 16i)*64 + ((q ^ ((r>>2)&3))<<4), r = l>>2, q = l&3 ; store: row*256 + ct*64 + q*16")
    e(f"v_lshrrev_b32 v{vU0}, 2, v{vL}")
    e(f"v_and_b32 v{vU1}, 3, v{vL}")
    e(f"v_bfe_u32 v{vSL}, v{vL}, 4, 2")
    e(f"v_xor_b32 v{vSL}, v{vSL}, v{vU1}")
    e(f"v_lshlrev_b32 v{vSL}, 4, v{vSL}")
    e(f"v_lshl_add_u32 v{vSL}, v{vU0}, 6, v{vSL}")
    e(f"v_add_u32 v{vSL}, s{sT0}, v{vSL}")
    e(f"v_lshlrev_b32 v{vST}, 4, v{vU1}")
    e(f"v_lshl_add_u32 v{vST}, v{vU0}, 8, v{vST}")
    e(f"s_lshl_b32 s{sT0}, s{blk}, 14")
    e(f"s_lshl_b32 s{sT1}, s{sRQ}, 13")
    e(f"s_add_u32 s{sT0}, s{sT0}, s{sT1}")
    e(f"s_lshl_b32 s{sT1}, s{sCT}, 6")
    e(f"s_add_u32 s{sC}, s{sT0}, s{sT1}")
    if IDX: e(f"s_add_u32 s{sC}, s{sC}, {QOFF}")
    e("s_waitcnt vmcnt(0) lgkmcnt(0)")
    if not fb: stamp("role loads landed", 3)
    if fb:
        e("s_barrier")
    else:
        arrive(RCNT)
        if LATE: arrive(RISS)
        wait_cnt(RCNT, 8)
        stamp("B1", 4)
    for s_ in range(8):
        e(f"v_xor_b32 v{vU0}, {s_<<5}, v{vRD}")
        e(f"ds_read_b128 {vr(BF+4*s_,4)}, v{vU0}")
        e(f"ds_read_b64_tr_b16 {vr(AF+4*s_,2)}, v{vTRP} offset:{s_*1024}")
        e(f"ds_read_b64_tr_b16 {vr(AF+4*s_+2,2)}, v{vTRP} offset:{s_*1024+256}")
    for s_ in range(8):
        e(f"s_waitcnt lgkmcnt({min(15, 21-3*s_)})")
        mfma(D0, AF+4*s_, BF+4*s_, "0" if s_ == 0 else vr(D0,16))
    if not fb: arrive(RCA)
    e(f"s_mov_b32 s{sT1}, 0x{NLOG2E:08x}")
    e("s_nop 7")
    e("s_nop 3")
    for bb in range(4):
        r0 = D0 + 4*bb
        for i in range(4):
            e(f"v_mul_f32 v{r0+i}, s{sT1}, v{r0+i}")
        e(f"v_cvt_pk_bf16_f32 v{r0}, v{r0}, v{r0+1}")
        e(f"v_cvt_pk_bf16_f32 v{r0+1}, v{r0+2}, v{r0+3}")
        e(f"v_xor_b32 v{vU0}, {bb<<4}, v{vRA}")
        e(f"ds_write_b64 v{vU0}, {vr(r0,2)}")
    e("s_waitcnt lgkmcnt(0)")
    for i in range(2):
        e(f"ds_read_b128 {vr(AF+4*i,4)}, v{vSL} offset:{i*1024}")
    e(f"s_add_u32 s{sT1}, s{sC}, 4096")
    for i in range(2):
        e(f"s_waitcnt lgkmcnt({1-i})")
        e(f"buffer_store_dwordx4 {vr(AF+4*i,4)}, v{vST}, {srd(S_WS if IDX else S_Q)}, s{[sC,sT1][i]} offen sc1")
    if not fb: stamp("role stores issued", 5)

gemm_role("", 2, False)
e(f"s_mov_b32 s{sRL}, 8")
e(f"s_lshl_b32 s{sX1}, s2, 2")
e(f"s_add_u32 s{sX1}, s{sX1}, {FLG}")
FM1 = sum(1 << (4*i) for i in range(FCOPY)); FM4 = (1 << (4*FCOPY)) - 1
e(f"s_mov_b32 s{sM0}, 0x{FM1 & 0xffffffff:x}")
e(f"s_mov_b32 s{sM0+1}, 0x{FM1 >> 32:x}")
e("s_branch L_rfront")

lab("L_notgemm")
e(f"s_cmp_ge_u32 s2, {WPR}")
e("s_cbranch_scc1 L_notbin")
c("binning chunk c = wg - 157: edges e = 2560c + 512i + t ; LDS image: cell b at QT + b*128 (+32000 for ranks 16..31), 8-B records")
NE = 5
CNT = QT + 64000
vD = 24; vS = 29; vB = 34; vR = 39; vP = 44; vE = 54; vE2 = 55; vOne_ = 56; vK = 57; vG_ = 58
VM = [76, 78, 80, 82, 84]
sN40, sCB = 86, 87
e(f"s_sub_u32 s{sC}, s2, {BIN0}")
e(f"s_mul_i32 s{sT0}, s{sC}, {2560*4}")
e(f"v_lshlrev_b32 v{vE}, 2, v{tid}")
e(f"v_lshlrev_b32 v{vE2}, 1, v{tid}")
e(f"v_lshlrev_b32 v{vK}, 4, v{tid}")
e(f"v_add_u32 v{vK}, {QT}, v{vK}")
e(f"v_mov_b32 v{vOne_}, 1")
e(f"s_add_u32 s{sT2}, s{sT0}, 4096")
e(f"s_add_u32 s{sT1}, s{sT0}, 8192")
e(f"s_lshr_b32 s{sX0}, s{sT0}, 1")
e(f"s_add_u32 s{sX1}, s{sX0}, 4096")
e("s_waitcnt lgkmcnt(0)")
stamp("kernarg", 1)
kernarg_copy()
def soff(i): return [sT0, sT0, sT2, sT2, sT1][i], (i & 1) * 2048 if i < 4 else 0
def ld_d(i):
    so, of = soff(i)
    e(f"buffer_load_dword v{vD+i}, v{vE}, {srd(S_DST)}, s{so} offen offset:{of}")
def ld_s(i):
    so, of = soff(i)
    e(f"buffer_load_dword v{vS+i}, v{vE}, {srd(S_SRC)}, s{so} offen offset:{of}")
def ld_e(i):
    so = sX0 if i < 4 else sX1
    e(f"buffer_load_ushort v{vP+2*i+1}, v{vE2}, {srd(S_EA)}, s{so} offen offset:{(i & 3) * 1024 if i < 4 else 0}")
if BLO:
    ORD = [("d",0),("s",0),("e",0)] + [("d",i) for i in range(1,NE)] + [("s",i) for i in range(1,NE)] + [("e",i) for i in range(1,NE)]
else:
    ORD = [("d",i) for i in range(NE)] + [("s",i) for i in range(NE)] + [("e",i) for i in range(NE)]
for (k_, i) in ORD: {"d": ld_d, "s": ld_s, "e": ld_e}[k_](i)
def vm_left(k_, i): return len(ORD) - 1 - ORD.index((k_, i))
if not LATE: arrive(RISS)
stamp("role loads issued", 2)
c("zero the image and the counters (64 KB) ; v60..63 = 0")
for i in range(4): e(f"v_mov_b32 v{60+i}, 0")
for i in range(8):
    e(f"ds_write_b128 v{vK}, {vr(60,4)} offset:{i*8192}")
arrive(RCNT)
c("validity: e < 160000  <=> byte offset < 640000")
e(f"v_add_u32 v{vE}, s{sT0}, v{vE}")
for i in range(NE):
    e(f"s_mov_b32 s{sX0}, {640000 - i*2048}")
    e(f"v_cmp_gt_u32 {sp(VM[i])}, s{sX0}, v{vE}")
e(f"s_mov_b32 s{sX0}, {CNT}")
e(f"s_mov_b32 s{sX1}, {QT}")
e(f"s_mov_b32 s{sN40}, -40")
e(f"s_mov_b32 s{sCB}, {CHB - 128}")
e(f"s_mov_b32 s{sT3}, {1 << 20}")
wait_cnt(RCNT, 8, dst=sX2)
stamp("B1", 4)
for i in range(NE):
    e(f"s_waitcnt vmcnt({vm_left('d', i)})")
    e(f"v_mul_u32_u24 v{vB+i}, 52429, v{vD+i}")
    e(f"v_lshrrev_b32 v{vB+i}, 21, v{vB+i}")
    e(f"v_lshl_add_u32 v{vU0}, v{vB+i}, 2, s{sX0}")
    e(f"s_mov_b64 exec, {sp(VM[i])}")
    e(f"ds_add_rtn_u32 v{vR+i}, v{vU0}, v{vOne_}")
    e(f"v_mad_i32_i24 v{vD+i}, v{vB+i}, s{sN40}, v{vD+i}       ; k")
    e(f"v_lshl_add_u32 v{vB+i}, v{vB+i}, 7, s{sX1}")
    e(f"v_lshlrev_b32 v{vD+i}, 14, v{vD+i}")
    e(f"s_mov_b64 exec, -1")
for i in range(NE):
    e(f"s_waitcnt vmcnt({vm_left('s', i)})")
    e(f"v_or3_b32 v{vP+2*i}, v{vD+i}, v{vS+i}, s{sT3}")
e("s_waitcnt vmcnt(0) lgkmcnt(0)")
if LATE: arrive(RISS)
stamp("role loads landed", 3)
for i in range(NE):
    e(f"v_lshl_add_u32 v{vU0}, v{vR+i}, 3, v{vB+i}")
    e(f"v_lshrrev_b32 v{vU1}, 4, v{vR+i}")
    e(f"s_mov_b64 exec, {sp(VM[i])}")
    e(f"v_cmp_gt_u32 vcc, 32, v{vR+i}")
    e(f"v_mad_u32_u24 v{vU0}, v{vU1}, s{sCB}, v{vU0}")
    e(f"s_mov_b64 exec, vcc")
    e(f"ds_write_b64 v{vU0}, {vr(vP+2*i,2)}")
    e(f"s_mov_b64 exec, -1")
e("s_waitcnt lgkmcnt(0)")
arrive(RCNT2)
c("copy-out: granule x = t + 512i (<2000): cell b = x>>3, q = x&7")
GA = 24; vCn = 40; vX = 45; vF = 46; vY = 47; vXL = 52
e(f"v_lshlrev_b32 v{vX}, 4, v{tid}               ; x*16 (i=0)")
e(f"v_lshrrev_b32 v{vY}, 3, v{tid}")
e(f"v_lshl_add_u32 v{vY}, v{vY}, 2, s{sX0}")
e(f"v_add_u32 v{vXL}, {QT}, v{vX}")
e(f"s_mul_i32 s{sT0}, s{sC}, {CHB}")
e(f"s_bfe_u32 s{sT1}, s{sTW}, {3 | (9<<16)}")
e(f"s_xor_b32 s{sT1}, s{sT1}, {TAGC}")
e(f"s_lshl_b32 s{sT1}, s{sT1}, 23")
e(f"s_mov_b32 s{sX1}, {2000-1536}")
e(f"v_cmp_gt_u32 {sp(sM1)}, s{sX1}, v{tid}")
e(f"v_mov_b32 v{vCn+3}, 0")
wait_cnt(RCNT2, 8, dst=sX2)
stamp("B2", 6)
for i in range(4):
    if i == 3:
        e(f"s_mov_b64 exec, {sp(sM1)}")
    e(f"ds_read_b128 {vr(GA+4*i,4)}, v{vXL} offset:{i*8192}")
    e(f"ds_read_b32 v{vCn+i}, v{vY} offset:{i*256}")
e("s_mov_b64 exec, -1")
def granule(G, cn, so):
    e(f"v_add_u32 v{vU0}, 15, v{cn}")
    e(f"v_lshrrev_b32 v{vU0}, 4, v{vU0}")
    e(f"v_min_u32 v{vU0}, 3, v{vU0}")
    e(f"v_lshl_or_b32 v{vF}, v{vU0}, 21, s{sT1}")
    e(f"v_lshl_or_b32 v{G+1}, v{G+3}, 16, v{G+1}")
    e(f"v_or_b32 v{G}, v{G}, v{vF}")
    e(f"v_or_b32 v{G+2}, v{G+2}, v{vF}")
    e(f"v_mov_b32 v{G+3}, s{sTW}")
    e(f"buffer_store_dwordx4 {vr(G,4)}, v{vX}, {srd(S_WS)}, s{so} offen sc1")
for i in range(4):
    if i == 3:
        e(f"s_mov_b64 exec, {sp(sM1)}")
    e(f"s_waitcnt lgkmcnt({2*(3-i)})")
    granule(GA+4*i, vCn+i, sT0)
    e(f"s_add_u32 s{sT0}, s{sT0}, 8192")
e("s_mov_b64 exec, -1")
stamp("role stores issued", 5)
c("B lines (ranks 16..31) for cells with count > 16")
e(f"s_mul_i32 s{sT0}, s{sC}, {CHB}")
e(f"s_add_u32 s{sT0}, s{sT0}, {CELLB}")
for i in range(4):
    e(f"v_cmp_lt_u32 vcc, 16, v{vCn+i}")
    e("s_mov_b64 exec, vcc")
    e(f"s_cbranch_execz L_nob{i}")
    e(f"ds_read_b128 {vr(48,4)}, v{vXL} offset:{CHB+i*8192}")
    e("s_waitcnt lgkmcnt(0)")
    granule(48, vCn+i, sT0)
    e("s_nop 1")
    lab(f"L_nob{i}")
    e("s_mov_b64 exec, -1")
    e(f"s_add_u32 s{sT0}, s{sT0}, 8192")
arrive(RCA)
e("s_branch L_rfront")

lab("L_notbin")
def wprep_role(tag, fb):
    slice_lane(vSL, sCT)
    e(f"s_lshl_b32 s{sT2}, s{sCT}, 13")
    e(f"s_add_u32 s{sT2}, s{sT2}, {QT}")
    trpat(vTRP, vU0, vU1)
    e(f"v_add_u32 v{vTRP}, s{sT2}, v{vTRP}")
    e(f"v_lshlrev_b32 v{vST}, 4, v{vL}")
    for i in range(8):
        e(f"s_add_u32 m0, s{sT2}, {i*1024}")
        e(f"s_mov_b32 s{sT1}, {32768 + i*4096}")
        e(f"buffer_load_dwordx4 v{vSL}, {srd(S_WH)}, s{sT1} offen lds")
    e(f"s_lshl_b32 s{sC}, s{sCT}, 13")
    e(f"s_add_u32 s{sC}, s{sC}, {WH2F}")
    e("s_waitcnt vmcnt(0)")
    for s_ in range(8):
        e(f"ds_read_b64_tr_b16 {vr(AF+4*s_,2)}, v{vTRP} offset:{s_*1024}")
        e(f"ds_read_b64_tr_b16 {vr(AF+4*s_+2,2)}, v{vTRP} offset:{s_*1024+256}")
    for s_ in range(8):
        if s_ == 4:
            e(f"s_add_u32 s{sC}, s{sC}, 4096")
        e(f"s_waitcnt lgkmcnt({2*(7-s_)})")
        e(f"buffer_store_dwordx4 {vr(AF+4*s_,4)}, v{vST}, {srd(S_WS)}, s{sC} offen offset:{(s_%4)*1024} sc1")
e("s_waitcnt lgkmcnt(0)")
stamp("kernarg", 1)
kernarg_copy()
arrive(RISS)
c("workgroups WPR..WPR+3: slice ct = wg - WPR of WH2 ; wave w converts k-step w")
e(f"s_sub_u32 s{sC}, s2, {WPR}")
e(f"s_cmp_ge_u32 s{sC}, 4")
e(f"s_cbranch_scc1 {'L_norole0' if TW else 'L_norole'}")
slice_lane(vSL, sC)
trpat(vTRP, vU0, vU1)
e(f"s_lshl_b32 s{sT2}, s{sW}, 10")
e(f"s_add_u32 s{sT2}, s{sT2}, {QT}")
e(f"v_add_u32 v{vTRP}, s{sT2}, v{vTRP}")
e(f"v_lshlrev_b32 v{vST}, 4, v{vL}")
e(f"s_lshl_b32 s{sT1}, s{sW}, 12")
e(f"s_add_u32 s{sT1}, s{sT1}, 32768")
e(f"s_mov_b32 m0, s{sT2}")
e(f"s_lshl_b32 s{sT3}, s{sC}, 13")
e(f"buffer_load_dwordx4 v{vSL}, {srd(S_WH)}, s{sT1} offen lds")
e(f"s_lshl_b32 s{sT0}, s{sW}, 10")
e(f"s_add_u32 s{sT3}, s{sT3}, s{sT0}")
e(f"s_add_u32 s{sT3}, s{sT3}, {WH2F}")
e("s_waitcnt vmcnt(0)")
e(f"ds_read_b64_tr_b16 {vr(AF,2)}, v{vTRP}")
e(f"ds_read_b64_tr_b16 {vr(AF+2,2)}, v{vTRP} offset:256")
e("s_waitcnt lgkmcnt(0)")
e(f"buffer_store_dwordx4 {vr(AF,4)}, v{vST}, {srd(S_WS)}, s{sT3} offen sc1")
e(f"s_mov_b32 s{sRL}, 8")
e(f"s_lshl_b32 s{sX1}, s{sC}, 2")
e(f"s_add_u32 s{sX1}, s{sX1}, {FLG + NG*4}")
e(f"s_mov_b32 s{sM0}, 0x{FM1 & 0xffffffff:x}")
e(f"s_mov_b32 s{sM0+1}, 0x{FM1 >> 32:x}")
e(f"s_cmp_eq_u32 s{sC}, 3")
e("s_cbranch_scc0 L_wp_nopad")
c("the last one also fills the three padding flags")
e(f"s_mov_b32 s{sM0}, 0x{FM4 & 0xffffffff:x}")
e(f"s_mov_b32 s{sM0+1}, 0x{FM4 >> 32:x}")
lab("L_wp_nopad")
if TW:
    e("s_branch L_norole")
    lab("L_norole0")
    c("address translation warm-up (results unused): 40 lanes, 64 KB apart ; wave 0: out, waves 1..4: workspace regions")
    TWS = int(os.environ.get("TWS", "16"))
    TWN = 1 if TWS >= 16 else -(-(41 << 16) // (64 << TWS))
    if TW == 1:
        e(f"v_lshlrev_b32 v{vU0}, {TWS}, v{vL}")
        if TWS >= 16:
            e(f"s_mov_b32 exec_lo, -1")
            e(f"s_mov_b32 exec_hi, 0xff")
    else:
        e(f"v_lshlrev_b32 v{vU0}, 21, v{vL}")
        e(f"s_mov_b64 exec, 3")
    e(f"s_cmp_eq_u32 s{sW}, 0")
    e("s_cbranch_scc0 L_tw1")
    for k in range(TWN):
        if k: e(f"s_mov_b32 s{sT0}, {k * (64 << TWS)}")
        e(f"buffer_load_dword v24, v{vU0}, {srd(S_O0)}, {('s%d' % sT0) if k else '0'} offen")
    e(f"buffer_load_dword v25, v{vU0}, {srd(S_O1)}, 0 offen")
    e("s_branch L_tw2")
    lab("L_tw1")
    e(f"s_cmp_gt_u32 s{sW}, 4")
    e("s_cbranch_scc1 L_tw2")
    e(f"s_mov_b32 s{sT0}, {CELLA}")
    e(f"s_cmp_eq_u32 s{sW}, 2")
    e(f"s_cselect_b32 s{sT0}, {QOFF}, s{sT0}")
    e(f"s_cmp_eq_u32 s{sW}, 3")
    e(f"s_cselect_b32 s{sT0}, {WH2F}, s{sT0}")
    e(f"s_cmp_eq_u32 s{sW}, 4")
    e(f"s_cselect_b32 s{sT0}, {CELLB}, s{sT0}")
    for k in range(TWN):
        if k: e(f"s_add_u32 s{sT0}, s{sT0}, {64 << TWS}")
        e(f"buffer_load_dword v24, v{vU0}, {srd(S_WS)}, s{sT0} offen")
    lab("L_tw2")
    e("s_mov_b64 exec, -1")
lab("L_norole")
arrive(RCA)

vFRD = 126
def node_addr2(dst, node, cmp_, t0, t1, vhi):
    if NL:
        assert cmp_ is None
        c("row of node v: QT + (v/5)*8192 + (u&3)*256 + (u>>2)*64 + ((hi ^ (u&3))<<4), u = v&15")
        e(f"v_mul_u32_u24 v{t1}, 52, v{node}")
        e(f"v_lshrrev_b32 v{t1}, 8, v{t1}             ; g")
        e(f"v_and_b32 v{t0}, 3, v{node}")
        e(f"v_xor_b32 v{dst}, v{t0}, v{vhi}")
        e(f"v_lshlrev_b32 v{dst}, 4, v{dst}")
        e(f"v_lshl_add_u32 v{dst}, v{t0}, 8, v{dst}")
        e(f"v_bfe_u32 v{t0}, v{node}, 2, 2")
        e(f"v_lshl_add_u32 v{dst}, v{t0}, 6, v{dst}")
        e(f"v_lshl_add_u32 v{dst}, v{t1}, 13, v{dst}")
        e(f"v_add_u32 v{dst}, {QT}, v{dst}")
        return
    e(f"v_mul_u32_u24 v{t1}, 52, v{node}")
    e(f"v_lshrrev_b32 v{t1}, 8, v{t1}             ; g")
    e(f"v_mul_u32_u24 v{t0}, 5, v{t1}")
    e(f"v_sub_u32 v{t0}, v{node}, v{t0}          ; j")
    if cmp_ is not None:
        e(f"v_lshl_add_u32 v{t0}, v{cmp_}, 3, v{t0}")
    e(f"v_add_u32 v{t0}, 3, v{t0}                 ; f")
    e(f"v_bfe_u32 v{dst}, v{t0}, 2, 2")
    e(f"v_xor_b32 v{dst}, v{dst}, v{vhi}")
    e(f"v_lshlrev_b32 v{t0}, 6, v{t0}")
    e(f"v_lshl_add_u32 v{t0}, v{t1}, 13, v{t0}")
    e(f"v_and_b32 v{t1}, 3, v{t1}")
    e(f"v_xor_b32 v{dst}, v{dst}, v{t1}")
    e(f"v_lshl_add_u32 v{dst}, v{dst}, 4, v{t0}")
    e(f"v_add_u32 v{dst}, {QT}, v{dst}")
def rolec_node(vn, vnode, vcmp, t0, t1):
    if NL:
        c("role C: G = 2ct + (n>>4) ; r = min(n&15, 14) ; c = r/5 ; j = r%5 ; node = 5G + j ; comp = c+1   (t0 <- r, t1 <- G)")
        e(f"v_and_b32 v{t0}, 15, v{vn}")
        e(f"v_min_u32 v{t0}, 14, v{t0}                ; r")
        e(f"v_mul_u32_u24 v{vcmp}, 52, v{t0}")
        e(f"v_lshrrev_b32 v{vcmp}, 8, v{vcmp}              ; c")
        e(f"v_lshrrev_b32 v{t1}, 4, v{vn}")
        e(f"s_lshl_b32 s{sT0}, s{sCT}, 1")
        e(f"v_add_u32 v{t1}, s{sT0}, v{t1}            ; G")
        e(f"v_sub_u32 v{vnode}, v{t1}, v{vcmp}          ; G - c")
        e(f"v_mad_u32_u24 v{vnode}, v{vnode}, 5, v{t0}")
        e(f"v_and_b32 v{vnode}, 63, v{vnode}")
        e(f"v_add_u32 v{vcmp}, 1, v{vcmp}")
        return
    c("role C: n' = min(n,29); idx = 30ct + n' ; G = idx/15 ; r = idx%15 ; c = r/5 ; j = r%5 ; node = 5G + j ; comp = c+1")
    e(f"v_min_u32 v{t0}, 29, v{vn}")
    e(f"v_cmp_lt_u32 vcc, 14, v{t0}")
    e(f"v_cndmask_b32 v{t1}, 0, 1, vcc               ; G&1")
    e(f"v_mul_u32_u24 v{vnode}, 15, v{t1}")
    e(f"v_sub_u32 v{t0}, v{t0}, v{vnode}          ; r")
    e(f"v_mul_u32_u24 v{vcmp}, 52, v{t0}")
    e(f"v_lshrrev_b32 v{vcmp}, 8, v{vcmp}              ; c")
    e(f"v_mul_u32_u24 v{vnode}, 5, v{vcmp}")
    e(f"v_sub_u32 v{t0}, v{t0}, v{vnode}          ; j")
    e(f"s_lshl_b32 s{sT0}, s{sCT}, 1")
    e(f"v_add_u32 v{t1}, s{sT0}, v{t1}            ; G")
    e(f"v_mad_u32_u24 v{vnode}, v{t1}, 5, v{t0}")
    e(f"v_add_u32 v{vcmp}, 1, v{vcmp}")
def flush_addr(dst, n, hi, t6, t7):
    e(f"s_mul_i32 s{sT0}, s{sG}, 5")
    e(f"s_sub_u32 s{sT0}, s{sT0}, 3")
    e(f"s_add_u32 s{sT1}, s{sB0}, 1024")
    e(f"v_lshrrev_b32 v{t6}, 3, v{n}              ; c")
    e(f"v_and_b32 v{dst}, 7, v{n}")
    e(f"v_mad_u32_u24 v{dst}, v{t6}, 5, v{dst}     ; 5c + (f&7)")
    e(f"v_mov_b32 v{t6}, -8")
    e(f"v_mov_b32 v{t7}, s{sT1}")
    e(f"s_mov_b32 exec_lo, 0xff")
    e(f"s_mov_b32 exec_hi, 0xff")
    e(f"v_mov_b32 v{t6}, s{sT0}")
    e(f"v_mov_b32 v{t7}, s{sB0}")
    e(f"s_mov_b64 exec, -1")
    e(f"v_add_u32 v{dst}, v{t6}, v{dst}")
    e(f"v_lshl_add_u32 v{t7}, v{hi}, 3, v{t7}")
    e(f"v_bfe_u32 v{t6}, v{dst}, 2, 2")
    e(f"v_lshl_add_u32 v{t7}, v{t6}, 6, v{t7}")
    e(f"v_and_b32 v{dst}, 3, v{dst}")
    e(f"v_mul_u32_u24 v{dst}, 0x110, v{dst}")
    e(f"v_add_u32 v{dst}, v{dst}, v{t7}")
def final_addr(rwaves):
    n, hi, nd, cm, t0, t1 = vT[0], vT[1], vT[2], vT[3], vT[4], vT[5]
    e(f"v_and_b32 v{n}, 31, v{vL}")
    e(f"v_lshrrev_b32 v{hi}, 5, v{vL}")
    if rwaves:
        c("role A: node n ; role B: node 32 + (n&7)")
        e(f"v_and_b32 v{nd}, 7, v{n}")
        e(f"v_add_u32 v{nd}, 32, v{nd}")
        e(f"s_cmp_eq_u32 s{sQ}, 0")
        e(f"s_cselect_b64 vcc, -1, 0")
        e(f"v_cndmask_b32 v{nd}, v{nd}, v{n}, vcc")
        node_addr2(vFRD, nd, None, t0, t1, hi)
    else:
        if NL and FL3:
            e(f"s_cmp_eq_u32 s{sQ}, 3")
            e("s_cbranch_scc0 L_fa_c")
            c("quad 3 has no final role: v126 <- its flush address")
            flush_addr(vFRD, n, hi, t0, t1)
            e("s_branch L_fa_d")
            lab("L_fa_c")
        rolec_node(n, nd, cm, t0, t1)
        if NL:
            c("row (G, r): QT + G*8192 + 1024 + (r&3)*256 + (r>>2)*64 + ((hi ^ (r&3))<<4)")
            e(f"v_and_b32 v{nd}, 3, v{t0}")
            e(f"v_xor_b32 v{vFRD}, v{nd}, v{hi}")
            e(f"v_lshlrev_b32 v{vFRD}, 4, v{vFRD}")
            e(f"v_lshl_add_u32 v{vFRD}, v{nd}, 8, v{vFRD}")
            e(f"v_lshrrev_b32 v{t0}, 2, v{t0}")
            e(f"v_lshl_add_u32 v{vFRD}, v{t0}, 6, v{vFRD}")
            e(f"v_lshl_add_u32 v{vFRD}, v{t1}, 13, v{vFRD}")
            e(f"v_add_u32 v{vFRD}, {QT + 1024}, v{vFRD}")
            if FL3: lab("L_fa_d")
        else:
            node_addr2(vFRD, nd, cm, t0, t1, hi)
vFOFF, vFRES = 124, 125
def final_addr_res(tag):
    n, hi, t0, t1 = vT[0], vT[1], vT[2], vT[3]
    e(f"v_and_b32 v{n}, 31, v{vL}")
    e(f"v_lshrrev_b32 v{hi}, 5, v{vL}")
    e(f"s_mul_i32 s{sT1}, s2, 40")
    e(f"s_cmp_eq_u32 s{sQ}, 0")
    e(f"s_cbranch_scc0 L_far_b{tag}")
    c("role A residual: h[node n][32ct + 8bb + 4hi..+3]: OWN + n*256 + (((ct*4+bb) ^ (n&15))<<4) + hi*8")
    e(f"v_and_b32 v{t0}, 15, v{n}")
    e(f"s_lshl_b32 s{sT0}, s{sCT}, 2")
    e(f"v_xor_b32 v{t0}, s{sT0}, v{t0}")
    e(f"v_lshlrev_b32 v{t0}, 4, v{t0}")
    e(f"v_lshl_add_u32 v{t0}, v{n}, 8, v{t0}")
    e(f"v_lshl_add_u32 v{t0}, v{hi}, 3, v{t0}")
    e(f"v_add_u32 v{vFRES}, {OWN}, v{t0}")
    e(f"v_add_u32 v{vFOFF}, s{sT1}, v{n}")
    e(f"v_lshlrev_b32 v{vFOFF}, 8, v{vFOFF}")
    e(f"v_lshl_add_u32 v{vFOFF}, v{hi}, 3, v{vFOFF}")
    e(f"s_lshl_b32 s{sT0}, s{sCT}, 6")
    e(f"v_add_u32 v{vFOFF}, s{sT0}, v{vFOFF}")
    e(f"s_branch L_far_d{tag}")
    lab(f"L_far_b{tag}")
    c("role B residual: rows 32+4hi+i, col 32ct+n: OWN + row*256 + (((ct*4 + (n>>3)) ^ (row&15))<<4) + (n&7)*2")
    e(f"v_lshrrev_b32 v{t0}, 3, v{n}")
    e(f"s_lshl_b32 s{sT0}, s{sCT}, 2")
    e(f"v_add_u32 v{t0}, s{sT0}, v{t0}          ; chunk")
    e(f"v_lshlrev_b32 v{t1}, 2, v{hi}             ; 4hi")
    e(f"v_xor_b32 v{t0}, v{t0}, v{t1}")
    e(f"v_lshlrev_b32 v{t0}, 4, v{t0}")
    e(f"v_lshl_add_u32 v{t0}, v{t1}, 8, v{t0}   ; + 4hi*256")
    e(f"v_and_b32 v{hi}, 7, v{n}")
    e(f"v_lshl_add_u32 v{t0}, v{hi}, 1, v{t0}")
    e(f"v_add_u32 v{vFRES}, {OWN + 32*256}, v{t0}")
    e(f"s_add_u32 s{sT0}, s{sT1}, 32")
    e(f"v_add_u32 v{vFOFF}, s{sT0}, v{t1}")
    e(f"v_lshlrev_b32 v{vFOFF}, 8, v{vFOFF}")
    e(f"v_lshl_add_u32 v{vFOFF}, v{n}, 1, v{vFOFF}")
    e(f"s_lshl_b32 s{sT0}, s{sCT}, 6")
    e(f"v_add_u32 v{vFOFF}, s{sT0}, v{vFOFF}")
    lab(f"L_far_d{tag}")
lab("L_rfront")
c("R waves after the role: H1 (quad 0: nodes 0..31, quad 1: nodes 32..39); WH1 slices staged in QT (ct*8192)")
WF = 16
D1 = 96
vR2 = 114
def rowreg(s_): return (ACC + 4*s_) if s_ < 4 else (QF + 4*(s_-4))
slice_lane(vT[2], sCT)
e(f"s_lshl_b32 s{sT2}, s{sCT}, 13")
e(f"s_add_u32 s{sT2}, s{sT2}, {QT}")
e(f"s_lshl_b32 s{sT3}, s{sRQ}, 12")
e(f"s_add_u32 s{sT3}, s{sT3}, s{sT2}          ; + half*4096")
e(f"s_lshl_b32 s{sX0}, s{sRQ}, 14")
wait_cnt(RCA, 8, dst=sX2)
for i in range(4):
    e(f"s_add_u32 m0, s{sT3}, {i*1024}")
    e(f"s_add_u32 s{sT1}, s{sX0}, {i*4096}")
    e(f"buffer_load_dwordx4 v{vT[2]}, {srd(S_WH)}, s{sT1} offen lds")
stamp("h1 dma", 7)
c("signal: the last of the role's waves writes the flag(s) once all stores are complete")
e(f"s_mov_b32 s{sC}, 0")
e(f"s_cmp_eq_u32 s{sRL}, 0")
e("s_cbranch_scc1 L_nosig")
e("s_waitcnt vmcnt(4)")
e(f"v_mov_b32 v{vU0}, {GCNT}")
e(f"v_mov_b32 v{vU1}, 1")
e("s_mov_b64 exec, 1")
e(f"ds_add_rtn_u32 v{vRA}, v{vU0}, v{vU1}")
e("s_waitcnt lgkmcnt(0)")
e("s_mov_b64 exec, -1")
e(f"v_readfirstlane_b32 s{sT0}, v{vRA}")
e(f"s_xor_b32 s{sT1}, s{sTW}, {FLC}")
e(f"v_mov_b32 v{vU1}, s{sT1}")
e(f"v_lshrrev_b32 v{vU0}, 2, v{vL}")
e(f"v_mul_u32_u24 v{vU0}, {FSTR}, v{vU0}")
e(f"v_and_b32 v{vRA}, 3, v{vL}")
e(f"v_lshl_add_u32 v{vU0}, v{vRA}, 2, v{vU0}")
e(f"s_add_u32 s{sT0}, s{sT0}, 1")
e(f"s_cmp_eq_u32 s{sT0}, s{sRL}")
e(f"s_cbranch_scc0 L_nosig")
e(f"s_mov_b64 exec, {sp(sM0)}")
e(f"buffer_store_dword v{vU1}, v{vU0}, {srd(S_WS)}, s{sX1} offen sc1")
e("s_mov_b64 exec, -1")
e(f"s_mov_b32 s{sC}, 1")
lab("L_nosig")
stamp("role signalled", 6)
if not NOPRIO: e("s_setprio 0")
e(f"s_mov_b32 s{sX0}, s{sT2}")
lane_consts()
if FINR and RFE: final_addr(True)
if FINR == 2 and RFE: final_addr_res("r")
trpat(vT[6], vT[0], vT[1])
e(f"v_add_u32 v{vT[6]}, s{sX0}, v{vT[6]}")
e(f"v_lshrrev_b32 v{vT[3]}, 5, v{vL}           ; hi")
e(f"v_and_b32 v{vT[4]}, 31, v{vL}")
e(f"s_lshl_b32 s{sT0}, s{sRQ}, 5")
e(f"v_add_u32 v{vT[4]}, s{sT0}, v{vT[4]}")
e(f"v_min_u32 v{vT[4]}, 39, v{vT[4]}")
row_addr(vT[1], vT[4], vT[3], vT[2])
c("DMA landed (the flag store, if this wave issued it, may stay in flight)")
e(f"s_cmp_eq_u32 s{sC}, 0")
e("s_cbranch_scc1 L_h1w0")
e(f"s_waitcnt vmcnt(1)")
e("s_branch L_h1w1")
lab("L_h1w0")
e("s_waitcnt vmcnt(0)")
lab("L_h1w1")
arrive(RCB)
wait_cnt([FCNT, FCC, FCNT2][H1W], 8, dst=sX2)
for s_ in range(8):
    e(f"v_xor_b32 v{vT[2]}, {s_<<5}, v{vT[1]}")
    e(f"ds_read_b128 {vr(rowreg(s_),4)}, v{vT[2]}")
wait_cnt(RCB, 8, dst=sX2)
for s_ in range(8):
    e(f"ds_read_b64_tr_b16 {vr(WF+4*s_,2)}, v{vT[6]} offset:{s_*1024}")
    e(f"ds_read_b64_tr_b16 {vr(WF+4*s_+2,2)}, v{vT[6]} offset:{s_*1024+256}")
e(f"s_mov_b32 s{sK2}, 0x{NLOG2E:08x}")
e(f"s_cmp_eq_u32 s{sRQ}, 0")
e("s_cbranch_scc0 L_h1b")
for s_ in range(8):
    e(f"s_waitcnt lgkmcnt({2*(7-s_)})")
    mfma(FACC, WF+4*s_, rowreg(s_), "0" if s_ == 0 else vr(FACC,16))
e("s_nop 7")
e("s_nop 3")
for r in range(16):
    e(f"v_mul_f32 v{FACC+r}, s{sK2}, v{FACC+r}")
e("s_branch L_h1d")
lab("L_h1b")
for s_ in range(8):
    e(f"s_waitcnt lgkmcnt({2*(7-s_)})")
    mfma(D1, rowreg(s_), WF+4*s_, "0" if s_ == 0 else vr(D1,16))
e("s_nop 7")
e("s_nop 3")
for r in range(4):
    e(f"v_mul_f32 v{FB+r}, s{sK2}, v{D1+r}")
lab("L_h1d")
if PREF: arrive(RH1)
stamp("h1 done", 8)
e("s_branch L_common")

lab("L_front")
QA, QB, QC = 0, 1, 2
KB = 124
PWR = 116
fw = sX2
e(f"s_sub_u32 s{fw}, s{sW}, 8")
e(f"v_lshlrev_b32 v{vT[0]}, 4, v{tid}")
c("own rows dma: instr idx u covers rows 4u..4u+3 ; lane: row = 4u + (l>>4); chunk = (l&15) ^ (row&15)")
e(f"v_lshrrev_b32 v{vT[4]}, 4, v{vL}")
e(f"v_and_b32 v{vT[1]}, 15, v{vL}")
e(f"v_xor_b32 v{vT[1]}, v{vT[1]}, v{vT[4]}")
e(f"s_lshl_b32 s{sT1}, s{sCT}, 2")
e(f"v_xor_b32 v{vT[1]}, s{sT1}, v{vT[1]}")
e(f"v_lshlrev_b32 v{vT[1]}, 4, v{vT[1]}")
e(f"v_lshl_add_u32 v{vT[1]}, v{vT[4]}, 8, v{vT[1]}")
slice_lane(vT[2], sCT)
e(f"s_lshl_b32 s{sT2}, s{sCT}, 13")
e(f"s_mul_i32 s{sT0}, s2, {40*256}")
e(f"s_lshl_b32 s{sT1}, s{fw}, 10")
e(f"s_add_u32 s{sT0}, s{sT0}, s{sT1}")
e(f"v_mul_u32_u24 v{vT[3]}, 6, v{vL}")
e(f"v_and_b32 v{vT[5]}, 31, v{vL}")
e(f"s_lshl_b32 s{sT3}, s{sCT}, 5")
e(f"v_add_u32 v{vT[5]}, s{sT3}, v{vT[5]}")
e(f"v_lshlrev_b32 v{vT[5]}, 1, v{vT[5]}           ; (32ct + n)*2")
e("s_waitcnt lgkmcnt(0)")
stamp("kernarg", 1)
kernarg_copy()
if FDEL: e(f"s_sleep {FDEL}")
e(f"s_add_u32 m0, s{sT1}, {OWN}")
e("s_nop 0")
e(f"buffer_load_dwordx4 v{vT[1]}, {srd(S_H)}, s{sT0} offen lds")
e(f"s_cmp_ge_u32 s{fw}, 2")
e("s_cbranch_scc1 L_f_no2")
e(f"s_add_u32 m0, s{sT1}, {OWN+8192}")
e(f"s_add_u32 s{sT0}, s{sT0}, 8192")
e(f"buffer_load_dwordx4 v{vT[1]}, {srd(S_H)}, s{sT0} offen lds")
lab("L_f_no2")
c("wave 10: own pos (lane l<40 loads x,y,z u16)")
e(f"s_cmp_eq_u32 s{fw}, 2")
e("s_cbranch_scc0 L_f_nopos")
e(f"s_mul_i32 s{sT0}, s2, 240")
e(f"v_cmp_gt_u32 vcc, 40, v{vL}")
e("s_mov_b64 exec, vcc")
for k in range(3):
    e(f"buffer_load_ushort v{PWR+k}, v{vT[3]}, {srd(S_POS)}, s{sT0} offen offset:{2*k}")
e("s_mov_b64 exec, -1")
lab("L_f_nopos")
if PPF:
    c("L2 warm-up of pos: segment (wg>>3)&7 of 7680 B, 960 B per F wave (result unused)")
    e(f"s_lshr_b32 s{sT1}, s2, 3")
    e(f"s_and_b32 s{sT1}, s{sT1}, 7")
    e(f"s_lshl_b32 s{sT1}, s{sT1}, 3")
    e(f"s_add_u32 s{sT1}, s{sT1}, s{fw}")
    e(f"s_mul_i32 s{sT1}, s{sT1}, 960")
    e(f"v_lshlrev_b32 v{vT[7]}, 4, v{vL}")
    e(f"buffer_load_dwordx4 {vr(108,4)}, v{vT[7]}, {srd(S_POS)}, s{sT1} offen")
if WXL:
    c("wave 11: w_x -> LDS")
    e(f"s_cmp_eq_u32 s{fw}, 3")
    e("s_cbranch_scc0 L_f_nowx")
    e(f"s_mov_b32 m0, {WXB}")
    e(f"v_lshlrev_b32 v{vT[7]}, 4, v{vL}")
    e("s_mov_b64 exec, 0xffff")
    e(f"buffer_load_dwordx4 v{vT[7]}, {srd(S_WX)}, 0 offen lds")
    e("s_mov_b64 exec, -1")
    lab("L_f_nowx")
if OTW:
    c("wave 12: touch the output rows of this workgroup (result unused)")
    e(f"s_cmp_eq_u32 s{fw}, 4")
    e("s_cbranch_scc0 L_f_notw")
    e(f"v_mov_b32 v{vT[7]}, 0")
    e(f"s_mul_i32 s{sT1}, s2, {40*256}")
    e("s_mov_b64 exec, 1")
    e(f"buffer_load_dword v112, v{vT[7]}, {srd(S_O0)}, s{sT1} offen")
    e(f"s_mul_i32 s{sT1}, s2, 240")
    e(f"buffer_load_dword v113, v{vT[7]}, {srd(S_O1)}, s{sT1} offen")
    e("s_mov_b64 exec, -1")
    lab("L_f_notw")
if WTW:
    c("wave 13: touch the workspace regions (result unused): lane i -> i MB * 2, i < 7")
    e(f"s_cmp_eq_u32 s{fw}, 5")
    e("s_cbranch_scc0 L_f_nowtw")
    e(f"v_lshlrev_b32 v{vT[7]}, 21, v{vL}")
    if WTW == 2:
        c("plus the exact places this workgroup writes first")
        e(f"s_mul_i32 s{sT1}, s2, 8192")
        e(f"v_add_u32 v{vT[7]}, s{sT1}, v{vT[7]}")
    e("s_mov_b64 exec, 0x7f")
    e(f"buffer_load_dword v112, v{vT[7]}, {srd(S_WS)}, 0 offen")
    e("s_mov_b64 exec, -1")
    lab("L_f_nowtw")
c("K1B raw: w_e rows 256, 257")
e(f"s_mov_b32 s{sT1}, 65536")
e(f"buffer_load_ushort v{KB}, v{vT[5]}, {srd(S_WE)}, s{sT1} offen")
e(f"buffer_load_ushort v{KB+1}, v{vT[5]}, {srd(S_WE)}, s{sT1} offen offset:256")
e(f"s_add_u32 s{sX1}, s{sT2}, {REC}")
e(f"s_lshl_b32 s{sT3}, s{sRQ}, 12")
e(f"s_add_u32 s{sT3}, s{sT3}, s{sX1}          ; + half*4096")
e(f"s_lshl_b32 s{sX0}, s{sRQ}, 14")
stamp("role loads issued", 2)
c("zero REC[32768, 65536) (the first 32 KB stage W1 and are zeroed after use)")
for i in range(4):
    e(f"ds_write_b128 v{vT[0]}, {vr(Z,4)} offset:{32768 - 8192 + i*8192}")
c("let the role loads go first")
if YM == 1:
    e(f"s_cmp_lt_u32 s2, {BIN0}")
    e("s_cbranch_scc1 L_f_noriss")
wait_cnt(RISS, 8)
if YM == 1: lab("L_f_noriss")
stamp("B1", 4)
c("W1 slice ct (w_e rows 0..127): this wave loads k-steps 4*half .. 4*half+3")
for i in range(4):
    e(f"s_add_u32 m0, s{sT3}, {i*1024}")
    e(f"s_add_u32 s{sT1}, s{sX0}, {i*4096}")
    e(f"buffer_load_dwordx4 v{vT[2]}, {srd(S_WE)}, s{sT1} offen lds")
lane_consts()
e("s_waitcnt vmcnt(4)")
arrive(FCNT)
c("wave 10: PTF (f32 x4 per node)")
e(f"s_cmp_eq_u32 s{fw}, 2")
e("s_cbranch_scc0 L_noptf")
for k in range(3): e(f"v_lshlrev_b32 v{PWR+k}, 16, v{PWR+k}")
e(f"v_mov_b32 v{PWR+3}, 0")
e(f"v_lshlrev_b32 v{vT[0]}, 4, v{vL}")
e(f"v_add_u32 v{vT[0]}, {PTF}, v{vT[0]}")
e(f"v_cmp_gt_u32 vcc, 40, v{vL}")
e("s_mov_b64 exec, vcc")
e(f"ds_write_b128 v{vT[0]}, {vr(PWR,4)}")
e("s_mov_b64 exec, -1")
lab("L_noptf")
stamp("role loads landed", 3)
trpat(vT[6], vT[0], vT[1])
e(f"v_add_u32 v{vT[6]}, s{sX1}, v{vT[6]}")
c("P' task: rows m: slot = m&7, g' = m>>3 ; node = 5*(4B + g') + max(slot-3,0), B = half")
e(f"v_lshrrev_b32 v{vT[3]}, 5, v{vL}           ; hi")
e(f"v_and_b32 v{vT[0]}, 7, v{vL}")
e(f"v_subrev_u32 v{vT[0]}, 3, v{vT[0]}")
e(f"v_max_i32 v{vT[0]}, 0, v{vT[0]}")
e(f"v_bfe_u32 v{vT[1]}, v{vL}, 3, 2")
e(f"v_mad_u32_u24 v{vT[0]}, v{vT[1]}, 5, v{vT[0]}        ; node (B=0)")
e(f"s_mul_i32 s{sT0}, s{sRQ}, 20")
e(f"v_add_u32 v{vT[0]}, s{sT0}, v{vT[0]}")
row_addr(vT[1], vT[0], vT[3], vT[2])
c("K1B: (wd, we) scaled, hi and lo parts")
e(f"s_mov_b32 s{sT0}, 0x{NLOG2E:08x}")
e(f"s_mov_b32 s{sT1}, 0xffff0000")
k0, k1, k2, k3 = 116, 117, 118, 119
e(f"v_lshlrev_b32 v{k0}, 16, v{KB}")
e(f"v_lshlrev_b32 v{k1}, 16, v{KB+1}")
e(f"v_mul_f32 v{k0}, s{sT0}, v{k0}")
e(f"v_mul_f32 v{k1}, s{sT0}, v{k1}")
e(f"v_cvt_pk_bf16_f32 v{KB}, v{k0}, v{k1}")
e(f"v_lshlrev_b32 v{k2}, 16, v{KB}")
e(f"v_and_b32 v{k3}, s{sT1}, v{KB}")
e(f"v_sub_f32 v{k0}, v{k0}, v{k2}")
e(f"v_sub_f32 v{k1}, v{k1}, v{k3}")
e(f"v_cvt_pk_bf16_f32 v{KB+1}, v{k0}, v{k1}")
c("P' write: BXP + g*2048 + (32ct + n)*16 + hi*8 ; hi=0 lanes: slots 0,1 = (wd,we) hi ; slot 2 = wd lo ; slot 3 = P'[j=0]")
vPW, vPM = 126, 127 if not TIMING else 115
e(f"v_and_b32 v{vPW}, 31, v{vL}")
e(f"v_lshlrev_b32 v{vPW}, 4, v{vPW}")
e(f"v_lshl_add_u32 v{vPW}, v{vT[3]}, 3, v{vPW}")
e(f"s_lshl_b32 s{sT0}, s{sCT}, 9")
e(f"s_lshl_b32 s{sT1}, s{sRQ}, 13")
e(f"s_add_u32 s{sT0}, s{sT0}, s{sT1}")
e(f"s_add_u32 s{sT0}, s{sT0}, {BXP}")
e(f"v_add_u32 v{vPW}, s{sT0}, v{vPW}")
e(f"v_cmp_gt_u32 vcc, 32, v{vL}")
e(f"v_mov_b32 v{vPM}, 0xffff0000")
e(f"v_cndmask_b32 v{vPM}, -1, v{vPM}, vcc         ; mask M")
e(f"v_and_b32 v{KB+1}, 0xffff, v{KB+1}")
e(f"v_cndmask_b32 v{KB+1}, 0, v{KB+1}, vcc")
e(f"s_mov_b32 s{sK2}, 0x{NLOG2E + ((7 << 23) if F16 else 0):08x}")
for i in range(4): e(f"v_mov_b32 v{116+i}, 0")
e("s_waitcnt vmcnt(0)")
stamp("slices landed", 6)
arrive(FCB)
c("---- granule (16 B, two records) per lane: c = 8fw + (l>>3), q = l&7 : c*32000 + q*16 (+ b*128)")
e(f"s_lshl_b32 s{sT0}, s{fw}, 3")
e(f"v_lshrrev_b32 v{vT[4]}, 3, v{vL}")
e(f"v_add_u32 v{vT[4]}, s{sT0}, v{vT[4]}          ; c")
e(f"v_mul_u32_u24 v{vGA}, {CHB}, v{vT[4]}")
e(f"v_and_b32 v{vT[5]}, 7, v{vL}")
e(f"v_lshl_add_u32 v{vGA}, v{vT[5]}, 4, v{vGA}")
e(f"v_lshlrev_b32 v{vT[0]}, 4, v{vL}")
e(f"s_lshl_b32 s{sT0}, s{fw}, 12")
e(f"v_add_u32 v{vT[0]}, s{sT0}, v{vT[0]}")
e(f"v_cmp_gt_u32 {sp(sPA)}, {NCH}, v{vT[4]}")
e(f"s_lshl_b32 s{sT2}, s2, 7")
e(f"s_add_u32 s{sT3}, s{sT2}, {CELLB}")
e(f"s_mov_b64 {sp(sPB)}, {sp(sPA)}")
e(f"s_mov_b64 {sp(sEX)}, {sp(sPA)}")
e(f"s_sub_u32 s{sLOW}, s{sTW}, {DELTA}")
if FORCE == "ovf":
    e(f"s_add_u32 s{sLOW}, s{sLOW}, 0x40000000")
e(f"s_mov_b32 s{sK3}, {WIN}")
e(f"s_mov_b32 s{sCNT}, 0")
e(f"s_mov_b64 {sp(sM2)}, {sp(sPB)}")
wait_cnt(FCB, 8)
stamp("fcb", 45)
for s_ in range(8):
    e(f"ds_read_b64_tr_b16 {vr(WF+4*s_,2)}, v{vT[6]} offset:{s_*1024}")
    e(f"ds_read_b64_tr_b16 {vr(WF+4*s_+2,2)}, v{vT[6]} offset:{s_*1024+256}")
_pi = [0]
def poll_issue():
    i = _pi[0]; _pi[0] += 1
    e(f"s_cmp_eq_u64 {sp(sPA)}, 0")
    e(f"s_cbranch_scc1 L_rp_noa{i}")
    e(f"s_mov_b64 exec, {sp(sPA)}")
    e(f"buffer_load_dwordx4 {vr(RA,4)}, v{vGA}, {srd(S_WS)}, s{sT2} offen sc1")
    lab(f"L_rp_noa{i}")
    e(f"s_cmp_eq_u64 {sp(sM2)}, 0")
    e(f"s_cbranch_scc1 L_rp_nob{i}")
    e(f"s_mov_b64 exec, {sp(sM2)}")
    e(f"buffer_load_dwordx4 {vr(RB,4)}, v{vGA}, {srd(S_WS)}, s{sT3} offen sc1")
    lab(f"L_rp_nob{i}")
    e("s_mov_b64 exec, -1")
def pwrite(r0, g):
    for i in range(4):
        e(f"v_mul_f32 v{r0+i}, s{sK2}, v{r0+i}")
    e(f"v_cvt_pk_bf16_f32 v{r0}, v{r0}, v{r0+1}")
    e(f"v_cvt_pk_bf16_f32 v{r0+1}, v{r0+2}, v{r0+3}")
    e(f"v_cndmask_b32 v{r0}, v{r0}, v{KB}, vcc")
    e(f"v_and_or_b32 v{r0+1}, v{r0+1}, v{vPM}, v{KB+1}")
    e(f"ds_write_b64 v{vPW}, {vr(r0,2)} offset:{g*2048}")
def p_compute(first):
    for s_ in range(8):
        e(f"v_xor_b32 v{vT[2]}, {s_<<5}, v{vT[1]}")
        e(f"ds_read_b128 {vr(rowreg(s_),4)}, v{vT[2]}")
    for s_ in range(8):
        e(f"s_waitcnt lgkmcnt({7-s_})")
        mfma(FACC, rowreg(s_), WF+4*s_, "0" if s_ == 0 else vr(FACC,16))
    stamp("mfma issued", 46)
    e(f"v_cmp_gt_u32 vcc, 32, v{vL}")
    e("s_nop 7")
    e("s_nop 3")
    for g in range(4):
        pwrite(FACC+4*g, g)
e("s_waitcnt lgkmcnt(0)")
FR = (112, 113)
arrive(FCC, FR)
if not PLATE: p_compute(True)
c("all eight waves hold their fragments: zero the staging area (4 KB per wave)")
wait_cnt(FCC, 8, regs=FR)
for i in range(4):
    e(f"ds_write_b128 v{vT[0]}, {vr(116,4)} offset:{REC + i*1024}")
e("s_waitcnt lgkmcnt(0)")
arrive(FCNT2, FR)
stamp("front done", 5)
if not NOPRIO: e(f"s_setprio {FPRIO}")
if PLATE == 2: p_compute(True)
if PSL: e(f"s_sleep {PSL}")
poll_issue()
stamp("B3", 7)
if PLATE == 1: p_compute(True)
if HOIST:
    assert PLATE == 1
    id_consts(vT[0], vT[1])
    seg_zero()
if FINR: final_addr(False)
e("s_branch L_rpoll")

def dma_issue(va, vb, sbuf):
    if not IDX:
        e(f"v_lshl_add_u32 v{va}, v{va}, 8, v{vQD}")
        e(f"v_lshl_add_u32 v{vb}, v{vb}, 8, v{vQD}")
    e(f"s_mov_b32 m0, s{sbuf}")
    e(f"s_nop 0")
    if IDX: e(f"buffer_load_dwordx4 {vr(va,2)}, {srd(S_Q)}, 0 idxen offen{QSC} lds")
    else:   e(f"buffer_load_dwordx4 v{va}, {srd(S_Q)}, 0 offen{QSC} lds")
    e(f"s_add_u32 m0, s{sbuf}, 1024")
    e(f"s_nop 0")
    if IDX: e(f"buffer_load_dwordx4 {vr(vb,2)}, {srd(S_Q)}, 0 idxen offen{QSC} lds")
    else:   e(f"buffer_load_dwordx4 v{vb}, {srd(S_Q)}, 0 offen{QSC} lds")
vLKr, vODr, vTRSr, vTRSr2, vLKr2 = 92, 93, 94, 95, 14
PA, PB = 10, 12
LK = [PA, PB, 80, 82]
def fg_prep():
    e(f"v_xor_b32 v{vLKr2}, 32, v{vLK}")
    if IDX:
        for k in range(4): e(f"v_mov_b32 v{LK[k]+1}, v{vQD}")
def prep_post():
    e(f"s_lshl_b32 s{sT0}, s{sG}, 2")
    e(f"s_add_u32 s{sT0}, s{sT0}, {ALLOC}")
    e(f"v_mov_b32 v{vT[0]}, s{sT0}")
    e(f"v_mov_b32 v{vT[1]}, {OVF}")
def bal_compute():
    C = [68 + i for i in range(8)]
    e(f"v_mov_b32 v{vT[0]}, {ALLOC}")
    e(f"ds_read_b128 {vr(84,4)}, v{vT[0]}")
    e(f"ds_read_b128 {vr(88,4)}, v{vT[0]} offset:16")
    e("s_waitcnt lgkmcnt(0)")
    for g in range(8): e(f"v_readfirstlane_b32 s{C[g]}, v{84+g}")
    e("s_nop 1")
    for g in range(8):
        e(f"s_min_u32 s{C[g]}, s{C[g]}, {CAP}")
        e(f"s_add_u32 s{C[g]}, s{C[g]}, 7")
        e(f"s_lshr_b32 s{C[g]}, s{C[g]}, 3")
    for k in range(4): e(f"s_sub_i32 s{C[2*k]}, s{C[2*k]}, s{C[2*k+1]}")
    S = C[0]
    e(f"s_mov_b32 s{sT3}, 0")
    for k in range(1, 4):
        d, nd, t = C[2*k], C[2*k+1], C[1]
        e(f"s_mul_i32 s{t}, s{S}, s{d}")
        e(f"s_sub_i32 s{nd}, 0, s{d}")
        e(f"s_cmp_gt_i32 s{t}, 0")
        e(f"s_cselect_b32 s{d}, s{nd}, s{d}")
        e(f"s_cselect_b32 s{t}, {1 << k}, 0")
        e(f"s_or_b32 s{sT3}, s{sT3}, s{t}")
        e(f"s_add_i32 s{S}, s{S}, s{d}")
def bal_apply(sbits, tag):
    e(f"s_lshr_b32 s{sT0}, s{sbits}, s{sQ}")
    e(f"s_and_b32 s{sT0}, s{sT0}, 1")
    e(f"s_cbranch_scc0 L_bal_no{tag}")
    e(f"s_and_b32 s{sT0}, s{sG}, 1")
    e(f"s_xor_b32 s{sG}, s{sG}, 1")
    e(f"s_cmp_eq_u32 s{sT0}, 0")
    e(f"s_cselect_b32 s{sT1}, 1, -1")
    e(f"s_mul_i32 s{sT0}, s{sT1}, {GSTR}")
    e(f"s_lshl_b32 s{sT1}, s{sT1}, 13")
    e(f"s_add_u32 s{sB0}, s{sB0}, s{sT1}")
    e(f"s_add_u32 s{sB1}, s{sB1}, s{sT1}")
    e(f"v_add_u32 v{vLK}, s{sT0}, v{vLK}")
    e(f"v_add_u32 v{vTRS}, s{sT0}, v{vTRS}")
    e(f"v_add_u32 v{vTRQ0}, s{sT1}, v{vTRQ0}")
    e(f"v_add_u32 v{vTRQ1}, s{sT1}, v{vTRQ1}")
    e(f"v_lshrrev_b32 v{vT[2]}, {11 if IMM else 10}, v{vODM}")
    e(f"v_mad_i32_i24 v{vOD}, v{vT[2]}, s{sT0}, v{vOD}")
    lab(f"L_bal_no{tag}")
def first_gathers(extra=None, part=3, prep=True):
    if not part & 1:
        dma_issue(LK[0], LK[1], sB0)
        if PREFN == 2: dma_issue(LK[2], LK[3], sB1)
        return
    if prep: e(f"v_xor_b32 v{vLKr2}, 32, v{vLK}")
    e(f"ds_read_u16 v{LK[0]}, v{vLK}")
    e(f"ds_read_u16 v{LK[1]}, v{vLKr2} offset:512")
    e(f"ds_read_u16 v{LK[2]}, v{vLK} offset:1024")
    e(f"ds_read_u16 v{LK[3]}, v{vLKr2} offset:1536")
    n = extra() if extra else 0
    if IDX and prep:
        for k in range(4): e(f"v_mov_b32 v{LK[k]+1}, v{vQD}")
    if not part & 2:
        e("s_waitcnt lgkmcnt(0)")
        return
    e(f"s_waitcnt lgkmcnt({2+n})")
    dma_issue(LK[0], LK[1], sB0)
    e(f"s_waitcnt lgkmcnt({n})")
    dma_issue(LK[2], LK[3], sB1)
lab("L_common")
c("---- R waves: no records ; wave 7 waits for the Q / WH2F flags")
for m in MK: e(f"s_mov_b64 {sp(m)}, 0")
if HOIST:
    id_consts(vT[0], vT[1])
    seg_zero()
if FINR and not RFE: final_addr(True)
if FINR == 2 and not RFE: final_addr_res("r")
vQP = vT[7]
def qpoll_issue():
    e("s_mov_b32 exec_lo, -1")
    e("s_mov_b32 exec_hi, 0x1ff")
    e(f"buffer_load_dwordx4 {vr(RA,4)}, v{vQP}, {srd(S_WS)}, s{sT2} offen sc1")
if PREF: wait_cnt(RH1, 8, regs=FR)
e(f"s_cmp_eq_u32 s{sW}, 7")
e(f"s_cbranch_scc0 {'L_rlk' if PREF else 'L_ba'}")
if QGATE: wait_cnt(RLAND, QGATE, regs=FR)
e(f"v_lshlrev_b32 v{vQP}, 4, v{vL}")
e(f"s_mov_b32 s{sCNT}, 0")
e(f"s_and_b32 s{sT2}, s2, {FCOPY-1}")
e(f"s_mul_i32 s{sT2}, s{sT2}, {FSTR}")
e(f"s_add_u32 s{sT2}, s{sT2}, {FLG}")
e(f"s_sub_u32 s{sLOW}, s{sTW}, {DELTA}")
if FORCE == "fb":
    e(f"s_add_u32 s{sLOW}, s{sLOW}, 0x40000000")
e(f"s_mov_b32 s{sK3}, {WIN}")
if PREF:
    qpoll_issue()
    e("s_mov_b64 exec, -1")
    lab("L_rlk")
    c("all records have their source node in REC: look up the source nodes of the first two tiles")
    wait_cnt(RPL, 8, regs=FR, slp=RPS)
    if BAL:
        bal_compute()
        e(f"s_cmp_eq_u32 s{sW}, 0")
        e("s_cbranch_scc0 L_bal_np")
        c("wave 0 publishes the swap bits for the F waves")
        e(f"s_or_b32 s{sT0}, s{sT3}, 0x100")
        e(f"v_mov_b32 v{vT[0]}, {MAPW}")
        e(f"v_mov_b32 v{vT[1]}, s{sT0}")
        e(f"ds_write_b32 v{vT[0]}, v{vT[1]}")
        lab("L_bal_np")
        bal_apply(sT3, "r")
    first_gathers(part=1)
    e(f"s_cmp_eq_u32 s{sW}, 7")
    e("s_cbranch_scc0 L_rwait")
    e("s_mov_b32 exec_lo, -1")
    e("s_mov_b32 exec_hi, 0x1ff")
    e("s_branch L_qpoll1")
lab("L_qpoll")
qpoll_issue()
lab("L_qpoll1")
e(f"s_add_u32 s{sCNT}, s{sCNT}, 1")
e("s_waitcnt vmcnt(0)")
stamp_dyn(19, sCNT)
for k in range(4):
    e(f"v_xor_b32 v{RA+k}, {FLC}, v{RA+k}")
for k in range(4):
    e(f"v_subrev_u32 v{RA+k}, s{sLOW}, v{RA+k}")
e(f"v_max_u32 v{RA}, v{RA}, v{RA+1}")
e(f"v_max3_u32 v{RA}, v{RA}, v{RA+2}, v{RA+3}")
e(f"v_cmp_le_u32 vcc, s{sK3}, v{RA}")
e("s_cmp_eq_u64 vcc, 0")
e("s_cbranch_scc1 L_qp_ok")
e(f"s_sleep {QSL}")
e(f"s_cmp_lt_u32 s{sCNT}, {NPOLL}")
e("s_cbranch_scc1 L_qpoll")
e(f"v_mov_b32 v{vT[0]}, {OVF}")
e(f"v_mov_b32 v{vT[1]}, 2")
e(f"ds_or_b32 v{vT[0]}, v{vT[1]}")
lab("L_qp_ok")
e("s_mov_b64 exec, -1")
if PREF:
    arrive(QOKF, FR)
    e("s_branch L_rpre")
    lab("L_rwait")
    wait_cnt(QOKF, 1, regs=FR, slp=RWS)
    lab("L_rpre")
    c("gather the first two tiles now (all R waves hold their H1 fragments: the tile buffers are free)")
    first_gathers(part=2)
    if PREB: prep_post()
    e(f"s_mov_b32 s{sPREF}, 1")
e("s_branch L_ba")
_st[0] = 8
def gcheck(G, M, M2):
    e(f"v_bfe_u32 v{vT[2]}, v{G+3}, 3, 9")
    e(f"v_xor_b32 v{vT[2]}, {TAGC}, v{vT[2]}")
    e(f"v_lshrrev_b32 v{vT[0]}, 23, v{G}")
    e(f"v_lshrrev_b32 v{vT[1]}, 23, v{G+2}")
    e(f"v_subrev_u32 v{vT[3]}, s{sLOW}, v{G+3}")
    e(f"v_cmp_eq_u32 {M}, v{vT[0]}, v{vT[2]}")
    e(f"v_cmp_eq_u32 {M2}, v{vT[1]}, v{vT[2]}")
    e(f"s_and_b64 {M}, {M}, {M2}")
    e(f"v_cmp_gt_u32 {M2}, s{sK3}, v{vT[3]}")
    e(f"s_and_b64 {M}, {M}, {M2}")
e("s_branch L_rpoll")
lab("L_rpoll_again")
poll_issue()
lab("L_rpoll")
e(f"s_add_u32 s{sCNT}, s{sCNT}, 1")
e("s_waitcnt vmcnt(0)")
stamp_dyn(19, sCNT)
gcheck(RA, "vcc", sp(sM0))
e(f"s_andn2_b64 {sp(sPA)}, {sp(sPA)}, vcc")
gcheck(RB, sp(sM1), sp(sM0))
e(f"v_bfe_u32 v{vT[0]}, v{RA}, 22, 1")
e(f"s_andn2_b64 {sp(sPB)}, {sp(sPB)}, {sp(sM1)}")
e(f"v_cmp_ne_u32 vcc, 0, v{vT[0]}                ; more")
e(f"s_andn2_b64 vcc, vcc, {sp(sPA)}")
if BSPEC:
    e(f"s_or_b64 vcc, vcc, {sp(sPA)}")
e(f"s_and_b64 {sp(sM2)}, {sp(sPB)}, vcc")
e(f"s_or_b64 vcc, {sp(sPA)}, {sp(sM2)}")
e("s_cmp_eq_u64 vcc, 0")
e("s_cbranch_scc1 L_rp_ok")
e(f"s_sleep {RSL}")
e(f"s_cmp_lt_u32 s{sCNT}, {NPOLL}")
e("s_cbranch_scc1 L_rpoll_again")
c("timed out: take the slow path")
e(f"v_mov_b32 v{vT[0]}, {OVF}")
e(f"v_mov_b32 v{vT[1]}, 1")
e(f"ds_or_b32 v{vT[0]}, v{vT[1]}")
e(f"s_andn2_b64 {sp(sEX)}, {sp(sEX)}, vcc")
lab("L_rp_ok")
e("s_mov_b64 exec, -1")
arrive(RLAND, FR)
stamp("records landed")
c("masks: a,b = valid bits of granule A ; c,d = valid bits of granule B & more")
RCS = [RA, RA+2, RB, RB+2]
e(f"v_bfe_u32 v{vT[0]}, v{RA}, 20, 1")
e(f"v_bfe_u32 v{vT[1]}, v{RA+2}, 20, 1")
e(f"v_bfe_u32 v{vT[2]}, v{RB}, 20, 1")
e(f"v_bfe_u32 v{vT[3]}, v{RB+2}, 20, 1")
e(f"v_bfe_u32 v{vT[4]}, v{RA}, 22, 1")
e(f"v_bfe_u32 v{vT[5]}, v{RA}, 21, 2")
e(f"v_and_b32 v{vT[2]}, v{vT[2]}, v{vT[4]}")
e(f"v_and_b32 v{vT[3]}, v{vT[3]}, v{vT[4]}")
for k in range(4):
    e(f"v_cmp_ne_u32 {sp(MK[k])}, 0, v{vT[k]}")
e(f"v_cmp_eq_u32 {sp(sM2)}, 3, v{vT[5]}")
for k in range(4):
    e(f"s_and_b64 {sp(MK[k])}, {sp(MK[k])}, {sp(sEX)}")
e(f"s_and_b64 {sp(sM2)}, {sp(sM2)}, {sp(sEX)}")
e(f"v_mov_b32 v{vOne}, 1")
e(f"s_mov_b32 s{sT0}, {ALLOC}")
VS = [91, 92, 93, 94]
def s1_issue(k):
    e(f"v_and_b32 v{VS[k]}, 0x3fff, v{RCS[k]}")
    e(f"v_mul_u32_u24 v{vT[0]}, 6, v{VS[k]}")
    e(f"v_and_b32 v{vT[0]}, -4, v{vT[0]}")
    e(f"s_mov_b64 exec, {sp(MK[k])}")
    e(f"buffer_load_dwordx2 {vr(PS[k],2)}, v{vT[0]}, {srd(S_POS)}, 0 offen")
    e(f"v_bfe_u32 v{VJ[k]}, v{RCS[k]}, 14, 6          ; k")
    e(f"v_mul_u32_u24 v{VI[k]}, 52, v{VJ[k]}")
    e(f"v_lshrrev_b32 v{VI[k]}, 8, v{VI[k]}           ; g")
    e(f"v_lshl_add_u32 v{vT[1]}, v{VI[k]}, 2, s{sT0}")
    e(f"ds_add_rtn_u32 v{VR[k]}, v{vT[1]}, v{vOne}")
    e(f"v_mul_u32_u24 v{vT[1]}, 5, v{VI[k]}")
    e(f"v_sub_u32 v{VJ[k]}, v{VJ[k]}, v{vT[1]}        ; j")
    e("s_mov_b64 exec, -1")
    e(f"v_mul_u32_u24 v{VI[k]}, {GSTR}, v{VI[k]}")
c("REC must be zero before placement (all F waves have zeroed their staging)")
wait_cnt(FCNT2, 8, dst=sT1, regs=FR)
for k in range(4):
    e(f"s_cmp_eq_u64 {sp(MK[k])}, 0")
    e(f"s_cbranch_scc1 L_s1i{k}")
    s1_issue(k)
    lab(f"L_s1i{k}")
e(f"s_cmp_eq_u64 {sp(sM2)}, 0")
e("s_cbranch_scc1 L_s1_noovf")
e(f"v_mov_b32 v{vT[0]}, {OVF}")
e(f"ds_or_b32 v{vT[0]}, v{vOne}")
lab("L_s1_noovf")
def s1_place(vR, vI, vS, msk, tag, slow=False):
    e(f"v_cmp_gt_u32 vcc, {CAP}, v{vR}")
    e(f"v_lshl_add_u32 v{vI}, v{vR}, 6, v{vI}")
    e(f"v_bfe_u32 v{vR}, v{vR}, 2, 2")
    e(f"v_lshl_add_u32 v{vI}, v{vR}, 4, v{vI}")
    e(f"v_xor_b32 v{vR}, 16, v{vI}")
    e(f"s_andn2_b64 exec, {sp(msk)}, vcc")
    e(f"s_cbranch_execz L_s1_ok{tag}")
    if slow:
        e(f"v_mov_b32 v{qP}, 1")
        e(f"v_mov_b32 v{vT[0]}, {PEND}")
        e(f"ds_write_b32 v{vT[0]}, v{vOne}")
    else:
        e(f"v_mov_b32 v{vT[0]}, {OVF}")
        e(f"ds_or_b32 v{vT[0]}, v{vOne}")
    lab(f"L_s1_ok{tag}")
    e(f"s_and_b64 {sp(msk)}, {sp(msk)}, vcc")
    e(f"s_mov_b64 exec, {sp(msk)}")
    e(f"ds_write_b16 v{vR}, v{vS} offset:{REC}")
    e("s_mov_b64 exec, -1")
e("s_waitcnt lgkmcnt(0)")
for k in range(4):
    e(f"s_cmp_eq_u64 {sp(MK[k])}, 0")
    e(f"s_cbranch_scc1 L_s1p{k}")
    s1_place(VR[k], VI[k], VS[k], MK[k], "abcd"[k])
    lab(f"L_s1p{k}")
if PREF: arrive(RPL, FR)
lab("L_st2")
c("stage 2 (sparse, up to four records per lane)")
PD = [48, 52, 112, 116]
e(f"s_mov_b32 s{sT0}, {PTF}")
e(f"s_mov_b32 s{sK2}, 0xffff0000")
e(f"v_mov_b32 v{vT[6]}, {'0x3c00' if F16 else '0x3f80'}")
for k in range(4):
    e(f"s_cmp_eq_u64 {sp(MK[k])}, 0")
    e(f"s_cbranch_scc1 L_s2r{k}")
    e(f"v_bfe_u32 v{vT[5]}, v{RCS[k]}, 14, 6              ; k")
    e(f"v_min_u32 v{vT[5]}, 39, v{vT[5]}")
    e(f"v_lshl_add_u32 v{vT[5]}, v{vT[5]}, 4, s{sT0}")
    e(f"ds_read_b128 {vr(PD[k],4)}, v{vT[5]}")
    lab(f"L_s2r{k}")
e("s_waitcnt vmcnt(0) lgkmcnt(0)")
stamp("pos landed", 12)
if BAL:
    assert PREF
    e(f"v_mov_b32 v{vT[3]}, {MAPW}")
    e(f"ds_read_b32 v{vT[4]}, v{vT[3]}")
def stage2_pass(rec, ea, hi_half, ps, pd, row, msk, tag, vj):
    X = [84, 85, 86, 87, 91, 92]
    e_ = globals()["e"]
    def e(x):
        if "2" in KO and x.startswith("ds_write"): return
        e_(x)
    e(f"s_cmp_eq_u64 {sp(msk)}, 0")
    e(f"s_cbranch_scc1 L_s2_done{tag}")
    e(f"s_mov_b64 exec, {sp(msk)}")
    e(f"v_and_b32 v{X[0]}, 1, v{rec}")
    e(f"v_lshlrev_b32 v{X[0]}, 4, v{X[0]}        ; shift")
    e(f"v_alignbit_b32 v{X[1]}, v{ps+1}, v{ps}, v{X[0]}     ; x | y<<16")
    e(f"v_lshrrev_b32 v{X[2]}, v{X[0]}, v{ps+1}              ; z (low 16)")
    e(f"v_lshlrev_b32 v{ps}, 16, v{X[1]}")
    e(f"v_and_b32 v{ps+1}, s{sK2}, v{X[1]}")
    e(f"v_lshlrev_b32 v{X[2]}, 16, v{X[2]}")
    e(f"v_sub_f32 v{pd}, v{pd}, v{ps}")
    e(f"v_sub_f32 v{pd+1}, v{pd+1}, v{ps+1}")
    e(f"v_sub_f32 v{pd+2}, v{pd+2}, v{X[2]}")
    e(f"v_cvt_pk_bf16_f32 v{X[0]}, v{pd}, v{pd+1}")
    e(f"v_cvt_pk_bf16_f32 v{X[1]}, v{pd+2}, v{pd+2}     ; dz")
    e(f"v_lshlrev_b32 v{pd}, 16, v{X[0]}")
    e(f"v_and_b32 v{pd+1}, s{sK2}, v{X[0]}")
    e(f"v_lshlrev_b32 v{pd+2}, 16, v{X[1]}")
    e(f"v_lshl_add_u32 v{X[3]}, v{vj}, 1, v{row}")
    e(f"v_xor_b32 v{X[5]}, 16, v{X[3]}")
    if F16:
        e(f"v_cvt_pk_f16_f32 v{X[0]}, v{pd}, v{pd+1}")
        e(f"v_cvt_pk_f16_f32 v{X[1]}, v{pd+2}, v{pd+2}")
    e(f"ds_write_b16 v{X[3]}, v{vT[6]} offset:{REC+6}")
    e(f"ds_write_b16 v{X[5]}, v{X[0]} offset:{REC+6}")
    e(f"v_xor_b32 v{X[5]}, 32, v{X[3]}")
    e(f"v_xor_b32 v{X[3]}, 48, v{X[3]}")
    e(f"ds_write_b16_d16_hi v{X[5]}, v{X[0]} offset:{REC+6}")
    e(f"ds_write_b16 v{X[3]}, v{X[1]} offset:{REC+6}")
    for k in range(3):
        e(f"v_mul_f32 v{pd+k}, v{pd+k}, v{pd+k}")
    e(f"v_cvt_pk_bf16_f32 v{X[2]}, v{pd}, v{pd+1}")
    e(f"v_cvt_pk_bf16_f32 v{X[4]}, v{pd+2}, v{pd+2}")
    e(f"v_lshlrev_b32 v{pd}, 16, v{X[2]}")
    e(f"v_and_b32 v{pd+1}, s{sK2}, v{X[2]}")
    e(f"v_lshlrev_b32 v{pd+2}, 16, v{X[4]}")
    e(f"v_add_f32 v{pd}, v{pd}, v{pd+1}")
    e(f"v_add_f32 v{pd}, v{pd}, v{pd+2}")
    e(f"v_cvt_pk_bf16_f32 v{X[2]}, v{pd}, 0")
    if hi_half:
        e(f"v_and_or_b32 v{X[4]}, v{ea}, s{sK2}, v{X[2]}")
    else:
        e(f"v_lshl_or_b32 v{X[4]}, v{ea}, 16, v{X[2]}")
    e(f"ds_write_b32 v{row}, v{X[4]} offset:{REC}")
    e(f"ds_write_b16 v{row}, v{X[2]} offset:{REC+4}")
    e("s_mov_b64 exec, -1")
    lab(f"L_s2_done{tag}")
for k in range(4):
    stage2_pass(RCS[k], [RA+1, RB+1][k>>1], k & 1, PS[k], PD[k], VI[k], MK[k], "abcd"[k], VJ[k])
stamp("stage2 done", 13)
if BAL:
    e(f"s_cmp_eq_u32 s{sMODE}, 0")
    e("s_cbranch_scc0 L_bal_skip")
    lab("L_bal_chk")
    e("s_waitcnt lgkmcnt(0)")
    e(f"v_readfirstlane_b32 s{sT3}, v{vT[4]}")
    e("s_nop 1")
    e(f"s_bitcmp1_b32 s{sT3}, 8")
    e("s_cbranch_scc1 L_bal_ok")
    e("s_sleep 1")
    e(f"ds_read_b32 v{vT[4]}, v{vT[3]}")
    e("s_branch L_bal_chk")
    lab("L_bal_ok")
    bal_apply(sT3, "f")
    lab("L_bal_skip")
if PREB:
    assert PREF
    prep_post()
    fg_prep()
lab("L_ba")
stamp("placed+Q", 9)
if not NOPRIO: e(f"s_setprio {BAP}")
e(f"s_waitcnt lgkmcnt(0)")
e("s_barrier")
stamp("BA", 10)
if "B" in KO:
    e("s_waitcnt vmcnt(0)")
    e("s_branch L_end")

lab("L_post")
c("count of own group, OVF, lookups for tiles 0,1")
assert EARLY
if not PREB: prep_post()
def cnt_reads():
    e(f"ds_read_b32 v{vT[0]}, v{vT[0]}")
    e(f"ds_read_b32 v{vT[1]}, v{vT[1]}")
    return 2
e(f"s_cmp_eq_u32 s{sMODE}, 0")
e("s_cbranch_scc0 L_post_slow")
if PREF:
    e(f"s_cmp_eq_u32 s{sPREF}, 0")
    e("s_cbranch_scc1 L_post_g")
    cnt_reads()
    if PREFN == 1: dma_issue(LK[2], LK[3], sB1)
    e("s_branch L_post_fast")
    lab("L_post_g")
first_gathers(cnt_reads, prep=not PREB)
stamp("dma0 issued", 11)
e("s_branch L_post_fast")
lab("L_post_slow")
c("slow path: skip quickly if nothing was placed in this pass (no gather may be left in flight then)")
cnt_reads()
e(f"v_mov_b32 v{vT[7]}, {ALLOC}")
e(f"ds_read_b128 {vr(96,4)}, v{vT[7]}")
e(f"ds_read_b128 {vr(100,4)}, v{vT[7]} offset:16")
e("s_waitcnt lgkmcnt(0)")
e(f"v_or3_b32 v96, v96, v97, v98")
e(f"v_or3_b32 v96, v96, v99, v100")
e(f"v_or3_b32 v96, v96, v101, v102")
e(f"v_or_b32 v96, v96, v103")
e("s_nop 0")
e(f"v_readfirstlane_b32 s{sT0}, v96")
e(f"v_readfirstlane_b32 s{sCO}, v{vT[0]}")
e("s_nop 3")
e(f"s_cmp_lg_u32 s{sT0}, 0")
e("s_cbranch_scc1 L_post_sg")
e(f"s_mov_b32 s{sRETRY}, 0")
e("s_branch L_slow_adv")
lab("L_post_sg")
first_gathers()
e("s_branch L_post_go")
lab("L_post_fast")
e(f"s_waitcnt lgkmcnt({0 if EARLY else 4})")
e(f"v_readfirstlane_b32 s{sCO}, v{vT[0]}")
e(f"v_readfirstlane_b32 s{sT3}, v{vT[1]}           ; OVF")
e("s_nop 3")
e(f"s_cmp_lg_u32 s{sT3}, 0")
e("s_cbranch_scc1 L_slow_init")
lab("L_post_go")
e(f"s_min_u32 s{sCO}, s{sCO}, {CAP}")
e(f"s_add_u32 s{sNT}, s{sCO}, 15")
e(f"s_lshr_b32 s{sNT}, s{sNT}, 4")
if not EARLY:
    e("s_waitcnt lgkmcnt(2)")
    dma_issue(LK[0], LK[1], sB0)
    stamp("dma0 issued", 11)
if HOIST:
    e(f"s_cmp_eq_u32 s{sMODE}, 0")
    e("s_cbranch_scc1 L_noseg0")
id_consts(vT[0], vT[1])
c("SEG zero (first pass only)")
e(f"s_cmp_eq_u32 s{sNODE}, 0")
e("s_cbranch_scc1 L_noseg0")
e(f"s_mov_b32 s{sNODE}, 0")
seg_zero()
lab("L_noseg0")
c("BXF address: BXP + g*2048 + (64ch + l)*16   (l = 32hi + n)")
e(f"s_lshl_b32 s{sT0}, s{sG}, 11")
e(f"s_lshl_b32 s{sT1}, s{sCH2}, 10")
e(f"s_add_u32 s{sT0}, s{sT0}, s{sT1}")
e(f"s_add_u32 s{sT0}, s{sT0}, {BXP}")
e(f"v_lshlrev_b32 v{vT[0]}, 4, v{vL}")
e(f"v_add_u32 v{vT[0]}, s{sT0}, v{vT[0]}")
e(f"ds_read_b128 {vr(BXF,4)}, v{vT[0]}")
if not EARLY:
    e("s_waitcnt lgkmcnt(1)")
    dma_issue(LK[2], LK[3], sB1)
stamp("BB", 14)
_st[0] = 15
if not NOPRIO: e(f"s_setprio {PRIOS[0]}")
e(f"s_mov_b32 s{sU}, 0")
if XM:
    for i in range(4): e(f"v_mov_b32 v{124+i}, 0")
e("s_mov_b32 s6, 1.0")
e("s_mov_b32 s7, 1.0")
e(f"s_mov_b32 s{sREM}, s{sCO}")
e(f"s_mov_b32 s{sRT}, s{sNT}")
c("running pointers: vLKr / vLKr2 -> tile 2 ; working copies of vOD / vTRS")
e(f"v_add_u32 v{vLKr}, 2048, v{vLK}")
e(f"v_add_u32 v{vLKr2}, 2048, v{vLKr2}")
e(f"v_mov_b32 v{vODr}, v{vOD}")
e(f"v_mov_b32 v{vTRSr}, v{vTRS}")
e(f"v_xor_b32 v{vTRSr2}, 32, v{vTRS}")

def tile_body(buf):
    tag = f"t{buf}"
    sBUF = [sB0, sB1][buf]
    bo = buf * 2048
    c(f"---- tile (buffer {buf}) ----")
    e(f"s_cmp_gt_u32 s{sRT}, 2")
    e(f"s_cselect_b32 s{sK3}, 1, 0")
    e(f"s_cbranch_scc0 L_nolk{tag}")
    io = buf * 1024 if IMM else 0
    e(f"ds_read_u16 v{PA}, v{vLKr} offset:{io}")
    e(f"ds_read_u16 v{PB}, v{vLKr2} offset:{io+512}")
    lab(f"L_nolk{tag}")
    if "o" not in KO: e(f"ds_read_b128 {vr(OHD,4)}, v{vODr} offset:{io}")
    e(f"s_cmp_gt_u32 s{sRT}, 1")
    e(f"s_cbranch_scc1 L_w2{tag}")
    e("s_waitcnt vmcnt(0)")
    e(f"s_branch L_wd{tag}")
    lab(f"L_w2{tag}")
    e("s_waitcnt vmcnt(2)")
    lab(f"L_wd{tag}")
    if os.environ.get("TSTAMP"):
        e(f"s_memtime s[{sC4}:{sC5}]")
        e(f"s_min_u32 s3, s{sU}, 13")
        e(f"s_add_u32 m0, s3, 24")
        e(f"s_add_u32 s{sU}, s{sU}, 1")
        e("s_waitcnt lgkmcnt(0)")
        e(f"v_writelane_b32 v{VST}, s{sC4}, m0")
    if "q" not in KO:
      e(f"ds_read_b64_tr_b16 {vr(QF,2)}, v{vTRQ0} offset:{bo}")
      e(f"ds_read_b64_tr_b16 {vr(QF+2,2)}, v{vTRQ0} offset:{bo+512}")
      e(f"ds_read_b64_tr_b16 {vr(QF+4,2)}, v{vTRQ1} offset:{bo}")
      e(f"ds_read_b64_tr_b16 {vr(QF+6,2)}, v{vTRQ1} offset:{bo+512}")
    if "f" not in KO:
      e(f"ds_read_b64_tr_b16 {vr(SF,2)}, v{vTRSr} offset:{io}")
      e(f"ds_read_b64_tr_b16 {vr(SF+2,2)}, v{vTRSr2} offset:{io+512}")
    if buf == 1 or not IMM:
        st = 2048 if IMM else 1024
        e(f"v_add_u32 v{vLKr}, {st}, v{vLKr}")
        e(f"v_add_u32 v{vLKr2}, {st}, v{vLKr2}")
        e(f"v_add_u32 v{vODr}, v{vODM}, v{vODr}")
        e(f"v_add_u32 v{vTRSr}, {st}, v{vTRSr}")
        e(f"v_add_u32 v{vTRSr2}, {st}, v{vTRSr2}")
    e("s_waitcnt lgkmcnt(6)")
    mfma(ACC, OHD, BXF, "0")
    e("s_waitcnt lgkmcnt(4)")
    if "i" not in KO:
      mfma(ACC, ID, QF, vr(ACC,16))
      e("s_waitcnt lgkmcnt(2)")
      mfma(ACC, ID+4, QF+4, vr(ACC,16))
    for _ in range(XM):
        mfma(ACC, 124, QF+4*(_&1), vr(ACC,16))
    e(f"s_cmp_eq_u32 s{sK3}, 0")
    e(f"s_cbranch_scc1 L_nodma{tag}")
    if "d" not in KO: dma_issue(PA, PB, sBUF)
    lab(f"L_nodma{tag}")
    e("s_nop 7")
    e("s_nop 3")
    def blk(bb, t):
        a = ACC + 4*bb
        if "e" in KO:
            for i in range(4): e(f"v_mov_b32 v{t+i}, v{a+i}")
        else:
            for i in range(4): e(f"v_exp_f32 v{t+i}, v{a+i}")
        if PK & 1:
            if PK & 4:
                for i in (0, 2): e(f"v_pk_add_f32 {vr(t+i,2)}, {vr(t+i,2)}, 1.0 op_sel_hi:[1,0]")
            else:
                for i in (0, 2): e(f"v_pk_add_f32 {vr(t+i,2)}, {vr(t+i,2)}, s[6:7]")
        elif "a" not in KO:
            for i in range(4): e(f"v_add_f32 v{t+i}, 1.0, v{t+i}")
        if "r" not in KO:
            for i in range(4): e(f"v_rcp_f32 v{t+i}, v{t+i}")
        if PK & 2:
            for i in (0, 2): e(f"v_pk_mul_f32 {vr(t+i,2)}, {vr(a+i,2)}, {vr(t+i,2)}")
        elif "m" not in KO:
            for i in range(4): e(f"v_mul_f32 v{t+i}, v{a+i}, v{t+i}")
        e(f"v_cvt_pk_bf16_f32 v{MP+2*bb}, v{t}, v{t+1}")
        e(f"v_cvt_pk_bf16_f32 v{MP+2*bb+1}, v{t+2}, v{t+3}")
    def blk16(bbs):
        P = [(MP+2*bb+h, ACC+4*bb+2*h) for bb in bbs for h in range(2)]
        T = [TE+i for i in range(len(P))]
        for (m, a) in P: e(f"v_cvt_pk_f16_f32 v{m}, v{a}, v{a+1}")
        if "s" in KO: return
        if "h" in KO and bbs[0] == 1: return
        for (m, a), t in zip(P, T): e(f"v_exp_f16_sdwa v{t}, v{m} dst_sel:WORD_0 dst_unused:UNUSED_PAD src0_sel:WORD_0")
        for (m, a), t in zip(P, T): e(f"v_exp_f16_sdwa v{t}, v{m} dst_sel:WORD_1 dst_unused:UNUSED_PRESERVE src0_sel:WORD_1")
        for t in T: e(f"v_pk_add_f16 v{t}, v{t}, 1.0 op_sel_hi:[1,0]")
        for t in T: e(f"v_rcp_f16_sdwa v{t}, v{t} dst_sel:WORD_0 dst_unused:UNUSED_PRESERVE src0_sel:WORD_0")
        for t in T: e(f"v_rcp_f16_sdwa v{t}, v{t} dst_sel:WORD_1 dst_unused:UNUSED_PRESERVE src0_sel:WORD_1")
        for (m, a), t in zip(P, T): e(f"v_pk_mul_f16 v{m}, v{m}, v{t}")
    if F16: blk16((0, 2))
    else:
        blk(0, TE); blk(2, TE+4)
    e(f"s_cmp_le_u32 s{sREM}, 8")
    e(f"s_cbranch_scc1 L_skip{tag}")
    if F16: blk16((1, 3))
    else:
        blk(1, TE); blk(3, TE+4)
    e(f"s_branch L_blk{tag}")
    lab(f"L_skip{tag}")
    for r in (2, 3, 6, 7): e(f"v_mov_b32 v{MP+r}, 0")
    lab(f"L_blk{tag}")
    e("s_waitcnt lgkmcnt(0)")
    e("s_nop 1")
    if F16:
        e(f"v_mfma_f32_32x32x16_f16 {vr(SEG,16)}, {vr(MP,4)}, {vr(SF,4)}, {vr(SEG,16)}")
        e(f"v_mfma_f32_32x32x16_f16 {vr(SEG+16,16)}, {vr(MP+4,4)}, {vr(SF,4)}, {vr(SEG+16,16)}")
    else:
        mfma(SEG, MP, SF, vr(SEG,16))
        mfma(SEG+16, MP+4, SF, vr(SEG+16,16))
    e(f"s_sub_u32 s{sREM}, s{sREM}, 16")
    e(f"s_sub_u32 s{sRT}, s{sRT}, 1")
    if not NOPRIO:
        e(f"s_cmp_gt_u32 s{sRT}, 3")
        e(f"s_cbranch_scc1 L_pr{tag}")
        e(f"s_setprio {PRIOS[1]}")
        e(f"s_cmp_eq_u32 s{sRT}, 3")
        e(f"s_cbranch_scc1 L_pr{tag}")
        e(f"s_setprio {PRIOS[2]}")
        e(f"s_cmp_eq_u32 s{sRT}, 2")
        e(f"s_cbranch_scc1 L_pr{tag}")
        e(f"s_setprio {PRIOS[3]}")
        lab(f"L_pr{tag}")

e(f"s_cmp_eq_u32 s{sRT}, 0")
e("s_cbranch_scc1 L_tiles_done")
lab("L_tile_loop")
tile_body(0)
e(f"s_cmp_eq_u32 s{sRT}, 0")
e("s_cbranch_scc1 L_tiles_done")
tile_body(1)
e(f"s_cmp_lg_u32 s{sRT}, 0")
e("s_cbranch_scc1 L_tile_loop")
lab("L_tiles_done")
e("s_waitcnt vmcnt(0)")
if not NOPRIO: e("s_setprio 3")
stamp("tiles done")
if "T" in KO:
    e("s_branch L_end")
e(f"s_cmp_eq_u32 s{sMODE}, 0")
e("s_cbranch_scc0 L_slow_next")

lab("L_final")
WFL = 80
ROW = 16
HRES = 112
RX = [52, 56, 60, 120]
vN = vT[1]; vHI = vT[2]; vOFF = vT[3]; vRD_ = vT[4]
e(f"s_memrealtime s[6:7]")
e(f"v_and_b32 v{vN}, 31, v{vL}")
e(f"v_lshrrev_b32 v{vHI}, 5, v{vL}")
c("late frags: quads 0, 1: WH2F slice ct ; quad 2: wx frags")
def wh2f_loads():
    e(f"s_lshl_b32 s{sT0}, s{sCT}, 13")
    e(f"s_add_u32 s{sT0}, s{sT0}, {WH2F}")
    e(f"s_add_u32 s{sT1}, s{sT0}, 4096")
    e(f"v_lshlrev_b32 v{vT[0]}, 4, v{vL}")
    for s_ in range(8):
        e(f"buffer_load_dwordx4 {vr(WFL+4*s_,4)}, v{vT[0]}, {srd(S_WS)}, s{[sT0,sT1][s_>>2]} offen offset:{(s_%4)*1024}{WSC}")
def wx_loads():
    e(f"v_lshlrev_b32 v{vT[0]}, 4, v{vHI}")
    if WXL:
        e(f"v_add_u32 v{vT[0]}, {WXB}, v{vT[0]}")
        for s_ in range(8):
            e(f"ds_read_b128 {vr(WFL+4*s_,4)}, v{vT[0]} offset:{s_*32}")
        return
    for s_ in range(8):
        e(f"buffer_load_dwordx4 {vr(WFL+4*s_,4)}, v{vT[0]}, {srd(S_WX)}, 0 offen offset:{s_*32}")
if FLO:
    assert NL and FL3 and FINR == 2
    e(f"s_cmp_eq_u32 s{sQ}, 3")
    e("s_cbranch_scc1 L_f_flush3")
    e(f"s_cmp_eq_u32 s{sQ}, {QA}")
    e("s_cbranch_scc0 L_f_flush")
    wh2f_loads()
else:
    e(f"s_cmp_eq_u32 s{sQ}, {QC}")
    e("s_cbranch_scc1 L_f_wx")
    e(f"s_cmp_eq_u32 s{sQ}, 3")
    e(f"s_cbranch_scc1 {'L_f_flush3' if NL and FL3 else 'L_f_flush'}")
    wh2f_loads()
    e("s_branch L_f_flush")
    lab("L_f_wx")
    wx_loads()
lab("L_f_flush")
stamp("flush start", 49)
c("flush: lane (f=n, hi): addr = QTw + h*2048 + f*64 + ((bb ^ ((f>>2)&3) ^ (g&3))<<4) + hi*8")
if NL:
    assert FINR == 2
    flush_addr(vT[5], vN, vHI, vT[6], vT[7])
    if FL3:
        e("s_branch L_f_wr")
        lab("L_f_flush3")
        stamp("flush start", 49)
        e(f"v_mov_b32 v{vT[5]}, v{vFRD}")
        lab("L_f_wr")
    e(f"s_mov_b32 exec_lo, 0xf8f8f8f8")
    e(f"s_mov_b32 exec_hi, 0xf8f8f8f8")
    if not FL3: e("s_nop 3")
else:
    e(f"s_and_b32 s{sT0}, s{sG}, 3")
    e(f"v_bfe_u32 v{vT[5]}, v{vN}, 2, 2")
    e(f"v_xor_b32 v{vT[5]}, s{sT0}, v{vT[5]}")
    e(f"v_lshlrev_b32 v{vT[5]}, 4, v{vT[5]}")
    e(f"v_lshl_add_u32 v{vT[5]}, v{vN}, 6, v{vT[5]}")
    e(f"v_lshl_add_u32 v{vT[5]}, v{vHI}, 3, v{vT[5]}")
    e(f"v_add_u32 v{vT[5]}, s{sB0}, v{vT[5]}")
    e("s_nop 7")
    e("s_nop 3")
if FL3 and NL:
    for bb in range(1, 4): e(f"v_xor_b32 v{ACC+bb}, {bb<<4}, v{vT[5]}")
    for h in range(2):
        for bb in range(4):
            r0 = SEG + 16*h + 4*bb
            e(f"v_cvt_pk_bf16_f32 v{r0}, v{r0}, v{r0+1}")
            e(f"v_cvt_pk_bf16_f32 v{r0+1}, v{r0+2}, v{r0+3}")
            if bb: e(f"ds_write_b64 v{ACC+bb-1 if bb > 1 else vT[5]}, {vr(r0-4,2)} offset:{h*2048}")
            elif h: e(f"ds_write_b64 v{ACC+3}, {vr(r0-4,2)} offset:0")
    e(f"ds_write_b64 v{ACC+3}, {vr(SEG+28,2)} offset:2048")
else:
  for h in range(2):
      for bb in range(4):
          r0 = SEG + 16*h + 4*bb
          e(f"v_cvt_pk_bf16_f32 v{r0}, v{r0}, v{r0+1}")
          e(f"v_cvt_pk_bf16_f32 v{r0+1}, v{r0+2}, v{r0+3}")
          if "W" in KO: pass
          elif bb == 0:
              e(f"ds_write_b64 v{vT[5]}, {vr(r0,2)} offset:{h*2048}")
          else:
              e(f"v_xor_b32 v{vT[6]}, {bb<<4}, v{vT[5]}")
              e(f"ds_write_b64 v{vT[6]}, {vr(r0,2)} offset:{h*2048}")
if NL: e("s_mov_b64 exec, -1")
stamp("flush written", 50)
if FINR == 2:
    e(f"s_mul_i32 s{sNT}, s2, 40")
    e(f"s_cmp_eq_u32 s{sQ}, {QC}")
    e("s_cbranch_scc1 L_f_roleC")
    e(f"s_cmp_eq_u32 s{sQ}, {QB}")
    e("s_cbranch_scc1 L_f_roleB")
    e(f"s_cmp_eq_u32 s{sQ}, {QA}")
    e("s_cbranch_scc0 L_f_bar")
    for bb in range(4):
        e(f"v_xor_b32 v{vT[7]}, {bb<<4}, v{vFRES}")
        e(f"ds_read_b64 {vr(HRES+2*bb,2)}, v{vT[7]}")
    if FPK:
        e(f"s_mov_b32 s{sK3}, 0xffff0000")
        for bb in range(4):
            e(f"s_waitcnt lgkmcnt({3-bb})")
            e(f"v_lshlrev_b32 v{RX[bb]}, 16, v{HRES+2*bb}")
            e(f"v_and_b32 v{RX[bb]+1}, s{sK3}, v{HRES+2*bb}")
            e(f"v_lshlrev_b32 v{RX[bb]+2}, 16, v{HRES+2*bb+1}")
            e(f"v_and_b32 v{RX[bb]+3}, s{sK3}, v{HRES+2*bb+1}")
    e("s_branch L_f_bar")
    lab("L_f_roleB")
    if FLO: wh2f_loads()
    for i in range(4):
        e(f"v_xor_b32 v{vT[5]}, {i<<4}, v{vFRES}")
        e(f"ds_read_u16 v{HRES+i}, v{vT[5]} offset:{i*256}")
    if FPK:
        for i in range(4):
            e(f"s_waitcnt lgkmcnt({3-i})")
            e(f"v_lshlrev_b32 v{HRES+i}, 16, v{HRES+i}")
    if FBP != 3: e(f"s_setprio {FBP}")
    e("s_branch L_f_bar")
    lab("L_f_roleC")
    if FLO: wx_loads()
    if FBP != 3: e(f"s_setprio {FBP}")
    vNODE = vT[5]; vCMP = vT[6]
    rolec_node(vN, vNODE, vCMP, vT[0], vT[7])
    c("role C: pos residual PTF[node][comp-1] ; out offset (40b + node)*6 + (comp-1)*2")
    e(f"v_lshlrev_b32 v{vT[0]}, 4, v{vNODE}")
    e(f"v_lshl_add_u32 v{vT[0]}, v{vCMP}, 2, v{vT[0]}")
    e(f"v_add_u32 v{vT[0]}, {PTF-4}, v{vT[0]}")
    e(f"ds_read_b32 v{HRES}, v{vT[0]}")
    e(f"v_add_u32 v{vOFF}, s{sNT}, v{vNODE}")
    e(f"v_mul_u32_u24 v{vOFF}, 6, v{vOFF}")
    e(f"v_lshl_add_u32 v{vOFF}, v{vCMP}, 1, v{vOFF}")
    e(f"v_subrev_u32 v{vOFF}, 2, v{vOFF}")
if not FINR:
    c("per-role (node, comp) -> g, f ; addr = QT + g*8192 + f*64 + ((hi ^ ((f>>2)&3) ^ (g&3))<<4)")
    vNODE = vT[5]; vCMP = vT[6]
    def node_addr(dst, node, cmp_, t0, t1):
        e(f"v_mul_u32_u24 v{t1}, 52, v{node}")
        e(f"v_lshrrev_b32 v{t1}, 8, v{t1}             ; g")
        e(f"v_mul_u32_u24 v{t0}, 5, v{t1}")
        e(f"v_sub_u32 v{t0}, v{node}, v{t0}          ; j")
        if cmp_ is not None:
            e(f"v_lshl_add_u32 v{t0}, v{cmp_}, 3, v{t0}")
        e(f"v_add_u32 v{t0}, 3, v{t0}                 ; f")
        e(f"v_bfe_u32 v{dst}, v{t0}, 2, 2")
        e(f"v_xor_b32 v{dst}, v{dst}, v{vHI}")
        e(f"v_lshlrev_b32 v{t0}, 6, v{t0}")
        e(f"v_lshl_add_u32 v{t0}, v{t1}, 13, v{t0}")
        e(f"v_and_b32 v{t1}, 3, v{t1}")
        e(f"v_xor_b32 v{dst}, v{dst}, v{t1}")
        e(f"v_lshl_add_u32 v{dst}, v{dst}, 4, v{t0}")
        e(f"v_add_u32 v{dst}, {QT}, v{dst}")
    e(f"s_mul_i32 s{sK3}, s2, 40")
    e(f"s_cmp_eq_u32 s{sQ}, {QC}")
    e("s_cbranch_scc1 L_f_roleC")
    e(f"s_cmp_eq_u32 s{sQ}, {QB}")
    e("s_cbranch_scc1 L_f_roleB")
    e(f"s_cmp_eq_u32 s{sQ}, {QA}")
    e("s_cbranch_scc0 L_f_bar")
    c("role A (nodes n)")
    node_addr(vRD_, vN, None, vT[0], vT[7])
    c("role A residual: h[node n][32ct + 8bb + 4hi..+3]: OWN + n*256 + (((ct*4+bb) ^ (n&15))<<4) + hi*8")
    e(f"v_and_b32 v{vT[0]}, 15, v{vN}")
    e(f"s_lshl_b32 s{sT0}, s{sCT}, 2")
    e(f"v_xor_b32 v{vT[0]}, s{sT0}, v{vT[0]}")
    e(f"v_lshlrev_b32 v{vT[0]}, 4, v{vT[0]}")
    e(f"v_lshl_add_u32 v{vT[0]}, v{vN}, 8, v{vT[0]}")
    e(f"v_lshl_add_u32 v{vT[0]}, v{vHI}, 3, v{vT[0]}")
    e(f"v_add_u32 v{vT[0]}, {OWN}, v{vT[0]}")
    for bb in range(4):
        e(f"v_xor_b32 v{vT[7]}, {bb<<4}, v{vT[0]}")
        e(f"ds_read_b64 {vr(HRES+2*bb,2)}, v{vT[7]}")
    e(f"v_add_u32 v{vOFF}, s{sK3}, v{vN}")
    e(f"v_lshlrev_b32 v{vOFF}, 8, v{vOFF}")
    e(f"v_lshl_add_u32 v{vOFF}, v{vHI}, 3, v{vOFF}")
    e(f"s_lshl_b32 s{sT0}, s{sCT}, 6")
    e(f"v_add_u32 v{vOFF}, s{sT0}, v{vOFF}")
    e("s_branch L_f_bar")
    lab("L_f_roleB")
    c("role B (nodes 32 + (n&7))")
    e(f"v_and_b32 v{vNODE}, 7, v{vN}")
    e(f"v_add_u32 v{vNODE}, 32, v{vNODE}")
    node_addr(vRD_, vNODE, None, vT[0], vT[7])
    c("role B residual: rows 32+4hi+i, col 32ct+n: OWN + row*256 + (((ct*4 + (n>>3)) ^ (row&15))<<4) + (n&7)*2")
    e(f"v_lshrrev_b32 v{vT[0]}, 3, v{vN}")
    e(f"s_lshl_b32 s{sT0}, s{sCT}, 2")
    e(f"v_add_u32 v{vT[0]}, s{sT0}, v{vT[0]}          ; chunk")
    e(f"v_lshlrev_b32 v{vT[7]}, 2, v{vHI}             ; 4hi")
    e(f"v_xor_b32 v{vT[0]}, v{vT[0]}, v{vT[7]}")
    e(f"v_lshlrev_b32 v{vT[0]}, 4, v{vT[0]}")
    e(f"v_lshl_add_u32 v{vT[0]}, v{vT[7]}, 8, v{vT[0]}   ; + 4hi*256")
    e(f"v_and_b32 v{vT[5]}, 7, v{vN}")
    e(f"v_lshl_add_u32 v{vT[0]}, v{vT[5]}, 1, v{vT[0]}")
    e(f"v_add_u32 v{vT[0]}, {OWN + 32*256}, v{vT[0]}")
    for i in range(4):
        e(f"v_xor_b32 v{vT[5]}, {i<<4}, v{vT[0]}")
        e(f"ds_read_u16 v{HRES+i}, v{vT[5]} offset:{i*256}")
    e(f"s_add_u32 s{sT0}, s{sK3}, 32")
    e(f"v_add_u32 v{vOFF}, s{sT0}, v{vT[7]}")
    e(f"v_lshlrev_b32 v{vOFF}, 8, v{vOFF}")
    e(f"v_lshl_add_u32 v{vOFF}, v{vN}, 1, v{vOFF}")
    e(f"s_lshl_b32 s{sT0}, s{sCT}, 6")
    e(f"v_add_u32 v{vOFF}, s{sT0}, v{vOFF}")
    e("s_branch L_f_bar")
    lab("L_f_roleC")
    c("role C: n' = min(n,29); idx = 30ct + n' ; G = idx/15 ; r = idx%15 ; c = r/5 ; j = r%5 ; node = 5G + j ; comp = c+1")
    e(f"v_min_u32 v{vT[0]}, 29, v{vN}")
    e(f"v_cmp_lt_u32 vcc, 14, v{vT[0]}")
    e(f"v_cndmask_b32 v{vT[7]}, 0, 1, vcc               ; G&1")
    e(f"v_mul_u32_u24 v{vNODE}, 15, v{vT[7]}")
    e(f"v_sub_u32 v{vT[0]}, v{vT[0]}, v{vNODE}          ; r")
    e(f"v_mul_u32_u24 v{vCMP}, 52, v{vT[0]}")
    e(f"v_lshrrev_b32 v{vCMP}, 8, v{vCMP}              ; c")
    e(f"v_mul_u32_u24 v{vNODE}, 5, v{vCMP}")
    e(f"v_sub_u32 v{vT[0]}, v{vT[0]}, v{vNODE}          ; j")
    e(f"s_lshl_b32 s{sT0}, s{sCT}, 1")
    e(f"v_add_u32 v{vT[7]}, s{sT0}, v{vT[7]}            ; G")
    e(f"v_mad_u32_u24 v{vNODE}, v{vT[7]}, 5, v{vT[0]}")
    e(f"v_add_u32 v{vCMP}, 1, v{vCMP}")
    node_addr(vRD_, vNODE, vCMP, vT[0], vT[7])
    c("role C: pos residual PTF[node][comp-1] ; out offset (40b + node)*6 + (comp-1)*2")
    e(f"v_lshlrev_b32 v{vT[0]}, 4, v{vNODE}")
    e(f"v_lshl_add_u32 v{vT[0]}, v{vCMP}, 2, v{vT[0]}")
    e(f"v_add_u32 v{vT[0]}, {PTF-4}, v{vT[0]}")
    e(f"ds_read_b32 v{HRES}, v{vT[0]}")
    e(f"v_add_u32 v{vOFF}, s{sK3}, v{vNODE}")
    e(f"v_mul_u32_u24 v{vOFF}, 6, v{vOFF}")
    e(f"v_lshl_add_u32 v{vOFF}, v{vCMP}, 1, v{vOFF}")
    e(f"v_subrev_u32 v{vOFF}, 2, v{vOFF}")

lab("L_f_bar")
e("s_waitcnt lgkmcnt(0)")
stamp("at bar", 51)
c("residency guard: this wave's stamp must be older than the accept window of any later launch")
lab("L_guard")
e(f"s_sub_u32 s{sT0}, s6, s{sTW}")
e(f"s_cmp_ge_u32 s{sT0}, {GUARD}")
e("s_cbranch_scc1 L_guard_ok")
e("s_sleep 8")
e("s_memrealtime s[6:7]")
e("s_waitcnt lgkmcnt(0)")
e("s_branch L_guard")
lab("L_guard_ok")
e("s_barrier")
stamp("final bar")
e(f"s_cmp_eq_u32 s{sQ}, 3")
e("s_cbranch_scc1 L_end")
if FINR: vRD_ = vFRD
e(f"v_xor_b32 v{vT[0]}, 32, v{vRD_}")
for s_ in range(8):
    if "R" not in KO: e(f"ds_read_b128 {vr(ROW+4*s_,4)}, v{[vRD_, vT[0]][s_&1]} offset:{(s_>>1)*2048}")
e(f"s_mov_b32 s{sK2}, 0x{NLN2:08x}")
e(f"s_mul_i32 s{sNT}, s2, 40")
e(f"s_mov_b32 s{sK3}, 0xffff0000")
if FPK & 2:
    e("s_mov_b32 s6, 1.0")
    e("s_mov_b32 s7, 1.0")
    e(f"s_mov_b32 s{sPA}, 0x{NLN2:08x}")
    e(f"s_mov_b32 s{sPA+1}, 0x{NLN2:08x}")
if FINR != 1: e("s_waitcnt vmcnt(0)")
vOFFC = vOFF
if FINR == 2: vOFF = vFOFF
e(f"s_cmp_eq_u32 s{sQ}, {QC}")
e("s_cbranch_scc1 L_f_C")
e(f"s_cmp_eq_u32 s{sQ}, {QB}")
e("s_cbranch_scc1 L_f_B")
c("role A")
NX = 0
if FINR == 1:
    NX = 4
    c("role A residual: h[node n][32ct + 8bb + 4hi..+3]: OWN + n*256 + (((ct*4+bb) ^ (n&15))<<4) + hi*8")
    e(f"v_and_b32 v{vT[0]}, 15, v{vN}")
    e(f"s_lshl_b32 s{sT0}, s{sCT}, 2")
    e(f"v_xor_b32 v{vT[0]}, s{sT0}, v{vT[0]}")
    e(f"v_lshlrev_b32 v{vT[0]}, 4, v{vT[0]}")
    e(f"v_lshl_add_u32 v{vT[0]}, v{vN}, 8, v{vT[0]}")
    e(f"v_lshl_add_u32 v{vT[0]}, v{vHI}, 3, v{vT[0]}")
    e(f"v_add_u32 v{vT[0]}, {OWN}, v{vT[0]}")
    for bb in range(4):
        e(f"v_xor_b32 v{vT[7]}, {bb<<4}, v{vT[0]}")
        e(f"ds_read_b64 {vr(HRES+2*bb,2)}, v{vT[7]}")
    e(f"v_add_u32 v{vOFF}, s{sNT}, v{vN}")
    e(f"v_lshlrev_b32 v{vOFF}, 8, v{vOFF}")
    e(f"v_lshl_add_u32 v{vOFF}, v{vHI}, 3, v{vOFF}")
    e(f"s_lshl_b32 s{sT0}, s{sCT}, 6")
    e(f"v_add_u32 v{vOFF}, s{sT0}, v{vOFF}")
    e("s_waitcnt vmcnt(0)")
stamp("A vm", 40)
for s_ in range(8):
    e(f"s_waitcnt lgkmcnt({7-s_+NX})")
    mfma(FACC, WFL+4*s_, ROW+4*s_, vr(FACC,16))
if FINR == 1: e("s_waitcnt lgkmcnt(0)")
if FPR: e(f"s_setprio {FPR-1}")
stamp("A mfma", 41)
def final_silu(a, n, T):
    for i in range(n): e(f"v_exp_f32 v{T+i}, v{a+i}")
    if FPK & 2:
        for i in range(0, n, 2): e(f"v_pk_add_f32 {vr(T+i,2)}, {vr(T+i,2)}, s[6:7]")
        for i in range(n): e(f"v_rcp_f32 v{T+i}, v{T+i}")
        for i in range(0, n, 2): e(f"v_pk_mul_f32 {vr(a+i,2)}, {vr(a+i,2)}, {vr(T+i,2)}")
        return
    for i in range(n): e(f"v_add_f32 v{T+i}, 1.0, v{T+i}")
    for i in range(n): e(f"v_rcp_f32 v{T+i}, v{T+i}")
    for i in range(n): e(f"v_mul_f32 v{a+i}, v{a+i}, v{T+i}")
X = 48
e("s_nop 7")
e("s_nop 3")
for i in range(4):
    a = FACC + 4*i
    final_silu(a, 4, X)
    if i == 0: stamp("A silu0", 42)
    if FPK:
        if FPK & 2:
            for k in (0, 2): e(f"v_pk_fma_f32 {vr(a+k,2)}, {vr(a+k,2)}, s[{sPA}:{sPA+1}], {vr(RX[i]+k,2)}")
        else:
            for k in range(4): e(f"v_fma_f32 v{a+k}, v{a+k}, s{sK2}, v{RX[i]+k}")
        e(f"v_cvt_pk_bf16_f32 v{a}, v{a}, v{a+1}")
        e(f"v_cvt_pk_bf16_f32 v{a+1}, v{a+2}, v{a+3}")
        e(f"buffer_store_dwordx2 {vr(a,2)}, v{vOFF}, {srd(S_O0)}, 0 offen offset:{i*16}{OSC}")
        continue
    e(f"v_lshlrev_b32 v{X}, 16, v{HRES+2*i}")
    e(f"v_and_b32 v{X+1}, s{sK3}, v{HRES+2*i}")
    e(f"v_lshlrev_b32 v{X+2}, 16, v{HRES+2*i+1}")
    e(f"v_and_b32 v{X+3}, s{sK3}, v{HRES+2*i+1}")
    for k in range(4): e(f"v_fma_f32 v{a+k}, v{a+k}, s{sK2}, v{X+k}")
    e(f"v_cvt_pk_bf16_f32 v{X+4+2*i}, v{a}, v{a+1}")
    e(f"v_cvt_pk_bf16_f32 v{X+5+2*i}, v{a+2}, v{a+3}")
    e(f"buffer_store_dwordx2 {vr(X+4+2*i,2)}, v{vOFF}, {srd(S_O0)}, 0 offen offset:{i*16}{OSC}")
e("s_branch L_end")
lab("L_f_B")
if FBS: e(f"s_sleep {FBS}")
c("role B: rows 32 + 4hi + r")
stamp("B start", 43)
for i in range(4): e(f"v_mov_b32 v{ACC+i}, v{FB+i}")
if FINR == 1:
    c("role B residual: rows 32+4hi+i, col 32ct+n: OWN + row*256 + (((ct*4 + (n>>3)) ^ (row&15))<<4) + (n&7)*2")
    e(f"v_lshrrev_b32 v{vT[0]}, 3, v{vN}")
    e(f"s_lshl_b32 s{sT0}, s{sCT}, 2")
    e(f"v_add_u32 v{vT[0]}, s{sT0}, v{vT[0]}          ; chunk")
    e(f"v_lshlrev_b32 v{vT[7]}, 2, v{vHI}             ; 4hi")
    e(f"v_xor_b32 v{vT[0]}, v{vT[0]}, v{vT[7]}")
    e(f"v_lshlrev_b32 v{vT[0]}, 4, v{vT[0]}")
    e(f"v_lshl_add_u32 v{vT[0]}, v{vT[7]}, 8, v{vT[0]}   ; + 4hi*256")
    e(f"v_and_b32 v{vT[5]}, 7, v{vN}")
    e(f"v_lshl_add_u32 v{vT[0]}, v{vT[5]}, 1, v{vT[0]}")
    e(f"v_add_u32 v{vT[0]}, {OWN + 32*256}, v{vT[0]}")
    for i in range(4):
        e(f"v_xor_b32 v{vT[5]}, {i<<4}, v{vT[0]}")
        e(f"ds_read_u16 v{HRES+i}, v{vT[5]} offset:{i*256}")
    e(f"s_add_u32 s{sT0}, s{sNT}, 32")
    e(f"v_add_u32 v{vOFF}, s{sT0}, v{vT[7]}")
    e(f"v_lshlrev_b32 v{vOFF}, 8, v{vOFF}")
    e(f"v_lshl_add_u32 v{vOFF}, v{vN}, 1, v{vOFF}")
    e(f"s_lshl_b32 s{sT0}, s{sCT}, 6")
    e(f"v_add_u32 v{vOFF}, s{sT0}, v{vOFF}")
    e("s_waitcnt vmcnt(0)")
e("s_nop 1")
for s_ in range(8):
    e(f"s_waitcnt lgkmcnt({7-s_+NX})")
    mfma(ACC, ROW+4*s_, WFL+4*s_, vr(ACC,16))
if FINR == 1: e("s_waitcnt lgkmcnt(0)")
Y = 64
stamp("B mfma", 44)
e("s_nop 7")
e("s_nop 3")
final_silu(ACC, 4, Y)
if FPK:
    if FPK & 2:
        for k in (0, 2): e(f"v_pk_fma_f32 {vr(ACC+k,2)}, {vr(ACC+k,2)}, s[{sPA}:{sPA+1}], {vr(HRES+k,2)}")
    else:
        for k in range(4): e(f"v_fma_f32 v{ACC+k}, v{ACC+k}, s{sK2}, v{HRES+k}")
    for k in (0, 2): e(f"v_cvt_pk_bf16_f32 v{Y+8+k}, v{ACC+k}, v{ACC+k+1}")
    for r in range(4):
        e(f"buffer_store_short{'_d16_hi' if r & 1 else ''} v{Y+8+(r&2)}, v{vOFF}, {srd(S_O0)}, 0 offen offset:{r*256}{OSC}")
else:
  for k in range(4):
    e(f"v_lshlrev_b32 v{Y+k}, 16, v{HRES+k}")
  for k in range(4):
    e(f"v_fma_f32 v{ACC+k}, v{ACC+k}, s{sK2}, v{Y+k}")
  for k in range(4):
    e(f"v_cvt_pk_bf16_f32 v{Y+8+k}, v{ACC+k}, v{ACC+k}")
  for r in range(4):
    e(f"buffer_store_short v{Y+8+r}, v{vOFF}, {srd(S_O0)}, 0 offen offset:{r*256}{OSC}")
e("s_branch L_end")
lab("L_f_C")
if FCS: e(f"s_sleep {FCS}")
stamp("C start", 47)
vOFF = vOFFC
if FINR == 1:
    vNODE = vT[5]; vCMP = vT[6]
    rolec_node(vN, vNODE, vCMP, vT[0], vT[7])
    c("role C: pos residual PTF[node][comp-1] ; out offset (40b + node)*6 + (comp-1)*2")
    e(f"v_lshlrev_b32 v{vT[0]}, 4, v{vNODE}")
    e(f"v_lshl_add_u32 v{vT[0]}, v{vCMP}, 2, v{vT[0]}")
    e(f"v_add_u32 v{vT[0]}, {PTF-4}, v{vT[0]}")
    e(f"ds_read_b32 v{HRES}, v{vT[0]}")
    e(f"v_add_u32 v{vOFF}, s{sNT}, v{vNODE}")
    e(f"v_mul_u32_u24 v{vOFF}, 6, v{vOFF}")
    e(f"v_lshl_add_u32 v{vOFF}, v{vCMP}, 1, v{vOFF}")
    e(f"v_subrev_u32 v{vOFF}, 2, v{vOFF}")
    e("s_waitcnt vmcnt(0)")
for s_ in range(8):
    e(f"s_waitcnt lgkmcnt({7-s_+(1 if FINR == 1 else 0)})")
    mfma(ACC, WFL+4*s_, ROW+4*s_, "0" if s_ == 0 else vr(ACC,16))
if FINR == 1: e("s_waitcnt lgkmcnt(0)")
stamp("C mfma", 48)
e("s_nop 7")
e("s_nop 3")
e(f"v_fma_f32 v{ACC}, v{ACC}, s{sK2}, v{HRES}")
e(f"v_cvt_pk_bf16_f32 v{ACC}, v{ACC}, v{ACC}")
e(f"s_mov_b32 exec_lo, 0x{0x7fff7fff if NL else 0x3fffffff:x}")
e(f"s_mov_b32 exec_hi, 0")
e(f"buffer_store_short v{ACC}, v{vOFF}, {srd(S_O1)}, 0 offen{OSC}")
lab("L_end")
stamp("end")
stamp_flush()
lab("L_end2")
e("s_endpgm")

def zero_lds(Z, vtid):
    c("zero REC (69632 B = 4352 x 16 B) and counters (64 B)")
    for i in range(4): e(f"v_mov_b32 v{Z+i}, 0")
    e(f"v_lshlrev_b32 v{vT[0]}, 4, v{vtid}")
    for i in range(4):
        e(f"ds_write_b128 v{vT[0]}, {vr(Z,4)} offset:{i*16384}")
    e(f"v_add_u32 v{vT[1]}, {65536}, v{vT[0]}")
    e(f"v_add_u32 v{vT[2]}, {CTR - 256*16}, v{vT[0]}")
    e(f"v_cmp_gt_u32 vcc, 256, v{vtid}")
    e(f"v_cndmask_b32 v{vT[1]}, v{vT[2]}, v{vT[1]}, vcc")
    e(f"v_cmp_gt_u32 vcc, 260, v{vtid}")
    e("s_mov_b64 exec, vcc")
    e(f"ds_write_b128 v{vT[1]}, {vr(Z,4)}")
    e("s_mov_b64 exec, -1")
lab("L_slow_init")
e(f"s_mov_b32 s{sPREF}, 0")
e(f"s_mov_b32 s{sMODE}, 1")
e(f"s_mov_b32 s{sCH}, 0")
e(f"s_mov_b32 s{sRETRY}, 0")
e(f"s_and_b32 s{sT3}, s{sT3}, 2")
e(f"s_cmp_eq_u32 s{sT3}, 0")
e("s_cbranch_scc1 L_slow_pass")
c("fallback: the hand-off timed out -> this workgroup computes all of Q and the WH2 fragments itself")
c("(waves 0..7 keep FACC (64..79) / FB (120..123); waves 8..15 run the GEMM blocks)")
e(f"s_mov_b32 s{sU}, 0")
lab("L_fb_loop")
e("s_waitcnt vmcnt(0) lgkmcnt(0)")
e("s_barrier")
e(f"s_cmp_lt_u32 s{sW}, 8")
e("s_cbranch_scc1 L_fb_idle")
gemm_role("fb", sU, True)
e("s_branch L_fb_next")
lab("L_fb_idle")
e("s_barrier")
lab("L_fb_next")
e(f"s_add_u32 s{sU}, s{sU}, 1")
e(f"s_cmp_lt_u32 s{sU}, {NG}")
e("s_cbranch_scc1 L_fb_loop")
e("s_waitcnt vmcnt(0) lgkmcnt(0)")
e("s_barrier")
e(f"s_cmp_ge_u32 s{sW}, 4")
e("s_cbranch_scc1 L_slow_pass")
wprep_role("fb", True)
e("s_branch L_slow_pass")
lab("L_slow_next")
e(f"v_mov_b32 v{vT[0]}, {PEND}")
e(f"ds_read_b32 v{vT[1]}, v{vT[0]}")
e("s_waitcnt lgkmcnt(0)")
e(f"v_readfirstlane_b32 s{sRETRY}, v{vT[1]}")
e("s_nop 3")
e(f"s_cmp_lg_u32 s{sRETRY}, 0")
e("s_cbranch_scc1 L_slow_pass")
lab("L_slow_adv")
e(f"s_add_u32 s{sCH}, s{sCH}, 1")
e(f"s_cmp_ge_u32 s{sCH}, 250")
e("s_cbranch_scc1 L_slow_fin")
lab("L_slow_pass")
e("s_waitcnt vmcnt(0) lgkmcnt(0)")
e("s_barrier")
e(f"s_lshl_b32 s{sT0}, s{sW}, 6")
e(f"v_add_u32 v{tid}, s{sT0}, v{vL}")
zero_lds(116, tid)
c("raw edge e = 640*ch + t (t<640)")
qD, qS, qB, qK, qR, qA = 104, 105, 106, 107, 108, 109
RC = RA; vEA = RA + 1; vI0 = VI[0]; PS0 = PS[0]
e(f"s_mul_i32 s{sT0}, s{sCH}, 2560")
e(f"s_mul_i32 s{sT1}, s{sCH}, 1280")
e(f"v_lshlrev_b32 v{vT[0]}, 2, v{tid}")
e(f"v_lshlrev_b32 v{vT[1]}, 1, v{tid}")
e(f"v_mov_b32 v{qD}, -1")
e(f"v_mov_b32 v{qS}, 0")
e(f"v_mov_b32 v{qP}, 0")
e(f"v_mov_b32 v{vEA}, 0")
e(f"v_mov_b32 v{qA}, 640")
e(f"v_cmp_gt_u32 {sp(sM0)}, v{qA}, v{tid}")
e(f"s_cmp_eq_u64 {sp(sM0)}, 0")
e("s_cbranch_scc1 L_slow_nold")
e(f"s_mov_b64 exec, {sp(sM0)}")
e(f"buffer_load_dword v{qD}, v{vT[0]}, {srd(S_DST)}, s{sT0} offen")
e(f"buffer_load_dword v{qS}, v{vT[0]}, {srd(S_SRC)}, s{sT0} offen")
e(f"buffer_load_ushort v{vEA}, v{vT[1]}, {srd(S_EA)}, s{sT1} offen")
e(f"v_add_u32 v{qA}, {PENDB}, v{tid}")
e(f"ds_read_u8 v{qP}, v{qA}")
e("s_mov_b64 exec, -1")
lab("L_slow_nold")
e("s_waitcnt vmcnt(0) lgkmcnt(0)")
e("s_barrier")
e(f"v_mul_u32_u24 v{qB}, 52429, v{qD}")
e(f"v_lshrrev_b32 v{qB}, 21, v{qB}")
e(f"v_mul_u32_u24 v{qK}, 40, v{qB}")
e(f"v_sub_u32 v{qK}, v{qD}, v{qK}")
e(f"v_cmp_eq_u32 vcc, s2, v{qB}")
e(f"s_and_b64 {sp(sM0)}, {sp(sM0)}, vcc          ; match")
e(f"s_cmp_eq_u32 s{sRETRY}, 0")
e("s_cbranch_scc1 L_slow_fresh")
e(f"v_cmp_ne_u32 vcc, 0, v{qP}")
e(f"s_and_b64 {sp(sM0)}, {sp(sM0)}, vcc")
lab("L_slow_fresh")
e(f"v_and_b32 v{qK}, 63, v{qK}")
e(f"v_min_u32 v{qK}, 39, v{qK}")
e(f"v_mul_u32_u24 v{vI0}, 52, v{qK}")
e(f"v_lshrrev_b32 v{vI0}, 8, v{vI0}           ; g")
e(f"v_mul_u32_u24 v{qA}, 5, v{vI0}")
e(f"v_sub_u32 v{qA}, v{qK}, v{qA}             ; j")
e(f"v_and_b32 v{qS}, 0x3fff, v{qS}")
e(f"v_lshl_or_b32 v{RC}, v{qK}, 14, v{qS}")
e(f"v_mov_b32 v{VJ[0]}, v{qA}")
e(f"s_mov_b32 s{sT0}, {ALLOC}")
e(f"v_lshl_add_u32 v{qA}, v{vI0}, 2, s{sT0}")
e(f"v_mov_b32 v{vOne}, 1")
e(f"v_mov_b32 v{qP}, 0")
e(f"v_mul_u32_u24 v{qB}, 6, v{qS}")
e(f"v_and_b32 v{qB}, -4, v{qB}")
for m in MK[1:]: e(f"s_mov_b64 {sp(m)}, 0")
e(f"s_cmp_eq_u64 {sp(sM0)}, 0")
e("s_cbranch_scc1 L_slow_nom")
e(f"s_mov_b64 exec, {sp(sM0)}")
e(f"buffer_load_dwordx2 {vr(PS0,2)}, v{qB}, {srd(S_POS)}, 0 offen")
e(f"ds_add_rtn_u32 v{qR}, v{qA}, v{vOne}")
e("s_mov_b64 exec, -1")
e(f"v_mul_u32_u24 v{vI0}, {GSTR}, v{vI0}")
e("s_waitcnt lgkmcnt(0)")
s1_place(qR, vI0, qS, sM0, "s", slow=True)
lab("L_slow_nom")
e(f"v_mov_b32 v{qA}, 640")
e(f"v_cmp_gt_u32 vcc, v{qA}, v{tid}")
e("s_mov_b64 exec, vcc")
e("s_cbranch_execz L_slow_nopb")
e(f"v_add_u32 v{qA}, {PENDB}, v{tid}")
e(f"ds_write_b8 v{qA}, v{qP}")
lab("L_slow_nopb")
e("s_mov_b64 exec, -1")
e("s_branch L_st2")
lab("L_slow_fin")
if FINR == 2:
    e(f"s_cmp_ge_u32 s{sW}, 8")
    e("s_cbranch_scc1 L_sf_nor")
    final_addr_res("s")
    lab("L_sf_nor")
c("SEG must be zero-initialised if no pass ever ran")
e(f"s_cmp_eq_u32 s{sNODE}, 0")
e("s_cbranch_scc1 L_final_bar")
for r in range(32):
    e(f"v_mov_b32 v{SEG+r}, 0")
lab("L_final_bar")
e("s_barrier")
e("s_branch L_final")

desc = f""".amdhsa_kernel {KNAME}
  .amdhsa_next_free_vgpr 128
  .amdhsa_next_free_sgpr 102
  .amdhsa_accum_offset 128
  .amdhsa_group_segment_fixed_size 0
  .amdhsa_kernarg_size 88
  .amdhsa_user_sgpr_count 2
  .amdhsa_user_sgpr_kernarg_segment_ptr 1
  .amdhsa_system_sgpr_workgroup_id_x 1
.end_amdhsa_kernel"""
body = "\n".join(x for x in out if x is not None)
final = "\n".join(header) + "\n" + body + "\n" + '.section .rodata,"a"\n.p2align 6\n' + desc + "\n"
dest = sys.argv[1] if len(sys.argv) > 1 else "standalone__cheap_equivariant_egnn__graph.s"
open(dest, "w").write(final)
print("wrote", dest, len(out), "lines")
```
